```python
import torch

def _softmax(x, axis=-1):
    return torch.softmax(x, dim=axis)
def _gelu(x):
    return torch.nn.functional.gelu(x, approximate="tanh")
def _silu(x):
    return torch.nn.functional.silu(x)
def _sigmoid(x):
    return torch.sigmoid(x)
def _layernorm(x, axis=-1, eps=1e-5):
    m = x.mean(dim=axis, keepdim=True)
    v = x.var(dim=axis, keepdim=True, unbiased=False)
    return (x - m) / torch.sqrt(v + eps)
def _scatter_add(tgt, idx, src, axis=0):
    return tgt.clone().index_add_(axis, idx, src)
def _segment_sum(src, seg, n):
    out = torch.zeros((n,) + src.shape[1:], dtype=src.dtype)
    return out.index_add_(0, seg, src)
def _pad(x, pw):
    flat = tuple(v for pair in reversed(pw) for v in pair)
    return torch.nn.functional.pad(x, flat)

kernel_name = 'recurrent_scan__sliding_block_cached__moe_arch_mod__prompt'

def setup_inputs():

    _w = (lambda a: (lambda t: t.to(torch.bfloat16) if t.is_floating_point() else t)(torch.as_tensor(a)))
    def _A_setup():
        B, Sq, D = 1, 2048, 512
        Hq, Hkv, Sk, Dh = 32, 8, 2048, 128
        assert Hq % Hkv == 0, (Hq, Hkv)
        return {
            "x": _w((lambda *s: torch.randn(*s, dtype=torch.bfloat16) * 0.1)(B, Sq, D)),
            "k_cache": _w((lambda *s: torch.randn(*s, dtype=torch.bfloat16) * 0.8)(B, Hkv, Sk, Dh)),
            "v_cache": _w((lambda *s: torch.randn(*s, dtype=torch.bfloat16) * 3.2)(B, Hkv, Sk, Dh)),
            "wq": _w((lambda *s: torch.randn(*s, dtype=torch.bfloat16) * 0.8)(D, Hq * Dh) * (D ** -0.5)),
            "wo": _w((lambda *s: torch.randn(*s, dtype=torch.bfloat16) * 3.2)(Hq * Dh, D) * ((Hq * Dh) ** -0.5)),
        }
    _A_in = _A_setup()

    def _B_setup():
        B, S, D, F, C = 1, 2048, 512, 1792, 8
        return {
            "x": _w((lambda *s: torch.randn(*s, dtype=torch.bfloat16) * 0.1)(B, S, D)),
            "w_r": _w((lambda *s: torch.randn(*s, dtype=torch.bfloat16) * 3.2)(D)),
            "w_gate": _w((lambda *s: torch.randn(*s, dtype=torch.bfloat16) * 1.6)(D, F)),
            "w_up": _w((lambda *s: torch.randn(*s, dtype=torch.bfloat16) * 1.6)(D, F)),
            "w_down": _w((lambda *s: torch.randn(*s, dtype=torch.bfloat16) * 1.6)(F, D)),
        }
    _B_in = _B_setup()

    return {
        "A_x": _A_in["x"],
        "A_k_cache": _A_in["k_cache"],
        "A_v_cache": _A_in["v_cache"],
        "A_wq": _A_in["wq"],
        "A_wo": _A_in["wo"],
        "B_x": _B_in["x"],
        "B_w_r": _B_in["w_r"],
        "B_w_gate": _B_in["w_gate"],
        "B_w_up": _B_in["w_up"],
        "B_w_down": _B_in["w_down"],
    }

def reference(A_x, A_k_cache, A_v_cache, A_wq, A_wo, B_x, B_w_r, B_w_gate, B_w_up, B_w_down):
    def _A_ref(x, k_cache, v_cache, wq, wo):
        B, Sq, D = x.shape
        Hq, Dh = 32, 128
        Hkv, Sk = k_cache.shape[1], k_cache.shape[2]
        W = min(4096, max(256, Sk // 4))
        rep = Hq // Hkv
        q = (lambda x, *d: x.permute(*d))((x @ wq).reshape(B, Sq, Hq, Dh), 0, 2, 1, 3)
        k = (lambda x, n, axis: torch.repeat_interleave(x, n, dim=axis))(k_cache[:, :, Sk - W:, :], rep, axis=1)
        v = (lambda x, n, axis: torch.repeat_interleave(x, n, dim=axis))(v_cache[:, :, Sk - W:, :], rep, axis=1)
        scores = torch.einsum("bhqd,bhkd->bhqk", q, k) * (Dh ** -0.5)
        p = _softmax(scores, axis=-1)
        o = torch.einsum("bhqk,bhkd->bhqd", p, v)
        return (lambda x, *d: x.permute(*d))(o, 0, 2, 1, 3).reshape(B, Sq, Hq * Dh) @ wo

    def _B_ref(x, w_r, w_gate, w_up, w_down):
        B, S, D = x.shape
        C = 8
        r = x @ w_r
        idx = torch.argsort(-r, axis=-1)[:, :C]
        idx_e = (lambda x, n, axis: torch.repeat_interleave(x, n, dim=axis))(idx.reshape(B, C, 1), D, axis=2)
        x_sel = (lambda x, i, axis: torch.take_along_dim(x, i, dim=axis))(x, idx_e, axis=1)
        g = _silu(x_sel @ w_gate)
        u = x_sel @ w_up
        y = (g * u) @ w_down
        r_sel = _sigmoid((lambda x, i, axis: torch.take_along_dim(x, i, dim=axis))(r, idx, axis=1))
        y = y * r_sel.reshape(B, C, 1)
        b_off = (torch.arange(B) * S).reshape(B, 1)
        flat_idx = (idx + b_off).reshape(B * C)
        zero = (x * 0.0).reshape(B * S, D)
        upd = _scatter_add(zero, flat_idx, y.reshape(B * C, D), axis=0)
        return x + upd.reshape(B, S, D)

    x = A_x
    xn = _layernorm(x, axis=-1)
    s = _A_ref(xn, A_k_cache, A_v_cache, A_wq, A_wo)
    g = _silu(_B_ref(xn, B_w_r, B_w_gate, B_w_up, B_w_down))
    return x + s * g
```

```python
NAME = "recurrent_scan__sliding_block_cached__moe_arch_mod__prompt"

KA = dict(x=0, k=8, v=16, wq=24, wo=32, bx=40, wr=48, wg=56, wu=64, wd=72, out=80, dbg=88, ws=96)


class A:
    def __init__(self):
        self.l = []

    def __call__(self, s=""):
        for line in s.split("\n"):
            self.l.append(line if line.strip().endswith(":") or not line.strip() else "    " + line.strip())

    def raw(self, s):
        self.l.append(s)

    def text(self):
        return "\n".join(self.l) + "\n"


def header(launches):
    s = []
    for lab, g, b, lds in launches:
        s.append(f"; @launch kernel={lab} grid=({g},1,1) block=({b},1,1) lds={lds}")
    s.append('.amdgcn_target "amdgcn-amd-amdhsa--gfx950"')
    s.append(".text")
    return "\n".join(s) + "\n"


def kstart(label):
    return (f".globl {label}\n.p2align 8\n.type {label},@function\n{label}:\n")


def kdesc(label, vgpr, sgpr=102, accum=None):
    if accum is None:
        accum = min(256, (vgpr + 3) // 4 * 4)
    return (f'.section .rodata,"a"\n.p2align 6\n.amdhsa_kernel {label}\n'
            f"  .amdhsa_next_free_vgpr {vgpr}\n  .amdhsa_next_free_sgpr {sgpr}\n"
            f"  .amdhsa_accum_offset {accum}\n  .amdhsa_group_segment_fixed_size 0\n"
            f"  .amdhsa_kernarg_size 104\n  .amdhsa_user_sgpr_count 2\n"
            f"  .amdhsa_user_sgpr_kernarg_segment_ptr 1\n  .amdhsa_system_sgpr_workgroup_id_x 1\n"
            f"  .amdhsa_float_denorm_mode_32 3\n"
            f".end_amdhsa_kernel\n.text\n")
```

```python
import re


def regs_of(op):
    op = op.strip()
    neg = op.lstrip("-")
    m = re.fullmatch(r"abs\((.*)\)", neg)
    if m:
        neg = m.group(1)
    m = re.fullmatch(r"([vas])(\d+)", neg)
    if m:
        return [(m.group(1), int(m.group(2)))]
    m = re.fullmatch(r"([vas])\[(\d+):(\d+)\]", neg)
    if m:
        return [(m.group(1), i) for i in range(int(m.group(2)), int(m.group(3)) + 1)]
    if neg == "vcc":
        return [("s", "vcc")]
    if neg == "exec":
        return [("s", "exec")]
    if neg == "m0":
        return [("s", "m0")]
    return []


def split_ops(s):
    out, depth, cur = [], 0, ""
    for ch in s:
        if ch == "[":
            depth += 1
        if ch == "]":
            depth -= 1
        if ch == "," and depth == 0:
            out.append(cur.strip())
            cur = ""
        else:
            cur += ch
    if cur.strip():
        out.append(cur.strip())
    return out


TRANS = ("v_exp_f32", "v_log_f32", "v_rcp_f32", "v_rsq_f32", "v_sqrt_f32", "v_sin_f32", "v_cos_f32")


class Ins:
    def __init__(self, text):
        self.text = text
        t = text.split(";")[0].strip()
        self.is_label = t.endswith(":")
        self.mn = ""
        self.ops = []
        self.wr = []
        self.rd = []
        self.kind = "other"
        self.states = 1
        if self.is_label or not t or t.startswith("."):
            self.kind = "nop0"
            self.states = 0
            return
        parts = t.split(None, 1)
        self.mn = parts[0]
        rest = parts[1] if len(parts) > 1 else ""
        ops = split_ops(rest)
        if ops:
            last = ops[-1].split()
            ops[-1] = last[0]
            self.mods = last[1:]
        else:
            self.mods = []
        self.ops = ops
        mn = self.mn
        R = lambda i: regs_of(ops[i]) if i < len(ops) else []
        if mn.startswith("v_mfma"):
            self.kind = "mfma"
            self.wr = R(0)
            self.a = R(1)
            self.b = R(2)
            self.c = R(3)
            self.rd = self.a + self.b + self.c
            self.passes = 8 if "32x32x16" in mn else 4
        elif mn.startswith("ds_read") or mn.startswith("ds_bpermute") or mn.startswith("ds_swizzle"):
            self.kind = "lds"
            self.wr = R(0)
            self.rd = sum((R(i) for i in range(1, len(ops))), [])
        elif mn.startswith("ds_"):
            self.kind = "lds"
            self.rd = sum((R(i) for i in range(len(ops))), [])
        elif mn.startswith("buffer_load") or mn.startswith("global_load"):
            self.kind = "vmem"
            if "lds" in self.mods or "_lds_" in mn:
                self.rd = sum((R(i) for i in range(len(ops))), []) + [("s", "m0")]
                self.dma = True
            else:
                self.wr = R(0)
                self.rd = sum((R(i) for i in range(1, len(ops))), [])
        elif mn.startswith("buffer_store") or mn.startswith("global_store"):
            self.kind = "vmem"
            self.rd = sum((R(i) for i in range(len(ops))), [])
            self.store_data = R(0) if mn.startswith("buffer_store") else R(1)
            self.wide = "x4" in mn or "x3" in mn
        elif mn.startswith("buffer_atomic") or mn.startswith("global_atomic"):
            self.kind = "vmem"
            self.rd = sum((R(i) for i in range(len(ops))), [])
            if "sc0" in self.mods:
                self.wr = R(0)
        elif mn.startswith("buffer_"):
            self.kind = "vmem"
        elif mn.startswith("v_"):
            self.kind = "valu"
            if mn.startswith("v_cmp"):
                self.wr = R(0)
                self.rd = sum((R(i) for i in range(1, len(ops))), [])
                if mn.startswith("v_cmpx"):
                    self.wr = self.wr + [("s", "exec")]
            elif mn.startswith("v_permlane") and "swap" in mn:
                self.wr = R(0) + R(1)
                self.rd = R(0) + R(1)
                self.perm = True
            elif mn.startswith("v_readfirstlane") or mn.startswith("v_readlane"):
                self.wr = R(0)
                self.rd = sum((R(i) for i in range(1, len(ops))), [])
                self.rdlane = True
            else:
                self.wr = R(0)
                self.rd = sum((R(i) for i in range(1, len(ops))), [])
                if mn.startswith("v_fmac") or mn.startswith("v_dot2c") or mn.startswith("v_writelane"):
                    self.rd = self.rd + R(0)
                if mn.startswith("v_add_co") or mn.startswith("v_sub_co") or mn.startswith("v_addc_co") \
                        or mn.startswith("v_subb_co"):
                    self.wr = R(0) + R(1)
                    self.rd = sum((R(i) for i in range(2, len(ops))), [])
                if mn.startswith("v_cndmask") and len(ops) == 3:
                    self.rd = self.rd + [("s", "vcc")]
            self.trans = any(mn.startswith(x) for x in TRANS)
            self.dpp = any(m.startswith(("row_", "quad_perm", "wave_", "row_bcast")) for m in self.mods) or "_dpp" in mn
        elif mn == "s_nop":
            self.kind = "nop"
            self.states = int(ops[0], 0) + 1
        elif mn.startswith("s_"):
            self.kind = "salu"
            if mn.startswith(("s_cmp", "s_waitcnt", "s_barrier", "s_branch", "s_cbranch", "s_endpgm",
                              "s_setprio", "s_sleep", "s_bitcmp")):
                self.rd = sum((R(i) for i in range(len(ops))), [])
            else:
                self.wr = R(0)
                self.rd = sum((R(i) for i in range(1, len(ops))), [])
                if "saveexec" in mn:
                    self.wr = self.wr + [("s", "exec")]


def check_hazards(lines, name=""):
    ins = [Ins(l) for l in lines]
    probs = []
    n = len(ins)
    for i, c in enumerate(ins):
        if c.kind in ("nop0", "nop"):
            continue
        dist = 0
        j = i - 1
        while j >= 0 and dist < 24:
            p = ins[j]
            if p.kind == "nop0":
                j -= 1
                continue
            need = 0
            why = ""
            pw = set(p.wr)
            crd = set(c.rd)
            cwr = set(c.wr)
            if p.kind == "valu":
                vw = {r for r in pw if r[0] in "va"}
                sw = {r for r in pw if r[0] == "s"}
                if c.kind == "mfma" and vw & crd:
                    need, why = 2, "VALU->MFMA operand"
                if c.kind == "valu" and getattr(c, "perm", False) and vw & crd:
                    need, why = max(need, 2), "VALU->permlane"
                if c.kind == "valu" and getattr(c, "dpp", False) and vw & crd:
                    need, why = max(need, 2), "VALU->DPP"
                if c.kind == "valu" and getattr(c, "rdlane", False) and vw & crd:
                    need, why = max(need, 1), "VALU->readlane"
                if getattr(p, "trans", False) and c.kind in ("valu",) and not getattr(c, "trans", False) and vw & crd:
                    need, why = max(need, 1), "trans->VALU"
                if getattr(p, "trans", False) and c.kind in ("valu",) and getattr(c, "trans", False) and vw & crd:
                    need, why = max(need, 1), "trans->trans(pad anyway)"
                if sw & crd:
                    if c.kind == "vmem":
                        need, why = max(need, 5), "VALU sgpr->VMEM"
                    elif c.kind == "valu":
                        if ("s", "exec") in (sw & crd):
                            need, why = max(need, 2), "cmpx exec read"
                        elif getattr(c, "rdlane", False):
                            need, why = max(need, 4), "VALU sgpr->readlane sel"
                        else:
                            need, why = max(need, 2), "VALU sgpr->VALU"
                    elif c.kind == "salu":
                        need, why = max(need, 1), "VALU sgpr->SALU (pad)"
                if ("s", "exec") in sw:
                    if c.kind == "mfma":
                        need, why = max(need, 4), "VALU exec->MFMA"
                    if c.kind == "valu" and getattr(c, "dpp", False):
                        need, why = max(need, 5), "VALU exec->DPP"
                    if c.kind == "valu" and (getattr(c, "rdlane", False) or getattr(c, "perm", False)):
                        need, why = max(need, 4), "cmpx->readlane/permlane"
            if p.kind == "mfma":
                D = pw
                ps = p.passes
                if c.kind == "mfma":
                    cc = set(c.c)
                    if D & cc:
                        if D == cc and c.passes == ps:
                            pass
                        else:
                            need, why = max(need, {4: 6, 8: 10}[ps]), "MFMA D->C overlap"
                    if D & (set(c.a) | set(c.b)):
                        need, why = max(need, {4: 8, 8: 12}[ps]), "MFMA D->A/B"
                    if D & cwr and D != cwr:
                        need, why = max(need, {4: 6, 8: 10}[ps]), "MFMA D WAW partial"
                elif c.kind in ("valu", "vmem", "lds"):
                    if D & (crd | cwr):
                        need, why = max(need, {4: 8, 8: 12}[ps]), "MFMA D->VALU/mem"
                    if c.kind == "valu" and set(p.c) & cwr:
                        need, why = max(need, {4: 3, 8: 7}[ps]), "MFMA C WAR"
            if p.kind == "salu":
                if ("s", "m0") in pw and c.kind == "vmem" and getattr(c, "dma", False):
                    need, why = max(need, 1), "M0->DMA"
            if p.kind == "vmem" and getattr(p, "wide", False):
                if c.kind == "valu" and set(p.store_data) & cwr:
                    need, why = max(need, 2), "store data WAR"
                elif set(p.store_data) & cwr and c.kind != "valu":
                    need, why = max(need, 1), "store data WAR"
            if need > dist:
                probs.append(f"{name}: line {i}: '{c.text.strip()}' needs {need} states after line {j} "
                             f"'{p.text.strip()}' ({why}), has {dist}")
            dist += p.states
            j -= 1
    return probs


class E:
    def __init__(self):
        self.l = []
        self.lq = []
        self.vq = []

    def __call__(self, s):
        for line in s.split("\n"):
            t = line.strip()
            if not t:
                continue
            self.l.append(t if t.endswith(":") else "    " + t)

    def lds(self, s, tag=None):
        self(s)
        self.lq.append(tag)

    def vm(self, s, tag=None):
        self(s)
        self.vq.append(tag)

    def _need(self, q, tags, maxn):
        if not isinstance(tags, (list, tuple, set)):
            tags = [tags]
        idx = -1
        for t in tags:
            for i, x in enumerate(q):
                if x == t:
                    idx = max(idx, i)
        if idx < 0:
            return None
        n = len(q) - 1 - idx
        return min(n, maxn)

    def need(self, ltags=None, vtags=None):
        s = []
        if vtags is not None:
            n = self._need(self.vq, vtags, 63)
            if n is not None:
                s.append(f"vmcnt({n})")
                self.vq = self.vq[len(self.vq) - n:] if n else []
        if ltags is not None:
            n = self._need(self.lq, ltags, 15)
            if n is not None:
                s.append(f"lgkmcnt({n})")
                self.lq = self.lq[len(self.lq) - n:] if n else []
        if s:
            self("s_waitcnt " + " ".join(s))

    def wait_all(self, vm=True, lds=True):
        s = []
        if vm:
            s.append("vmcnt(0)")
            self.vq = []
        if lds:
            s.append("lgkmcnt(0)")
            self.lq = []
        self("s_waitcnt " + " ".join(s))

    def nop(self, n):
        while n > 0:
            k = min(n, 16)
            self(f"s_nop {k - 1}")
            n -= k

    def text(self):
        return "\n".join(self.l) + "\n"
```

```python
from emit import E, check_hazards
from asmlib import KA

RB = 65536
WSTR = 24576
SLOT = 8192
C_SCALE = 1.4426950408889634 * (128 ** -0.5)

WS_PART = 0
WS_R = 16 << 20
WS_STAT = WS_R + 8192
WS_H = WS_R + 65536
WS_IDX = WS_H + 32768
WS_TS = 32 << 20


def f2u(x):
    import struct
    return struct.unpack("<I", struct.pack("<f", x))[0]


S_X, S_WQ, S_K, S_V, S_WO, S_WS, S_WR = 4, 8, 12, 16, 20, 24, 28
sG, sTB, sW, sSK = 32, 33, 34, 35
sWQO, sWOO, sKO, sVO = 36, 37, 38, 39
sRING = 40
sCNT = 41
sT0, sT1, sT2, sT3 = 42, 43, 44, 45
sKSL, sVSL = 46, 47
sKD, sVD = 48, 49
sTRIP = 50
sGA = 52
sGB = 56
sGAO, sGBO = 60, 61
sGAM, sGBM = 62, 63
sMASK = 64
sPASS = 70
sKVB = 71
sKVT = 72
sC = 73
sTS = 74

vLANE = 0
vWQ = 1
vWO = 5
vKDM = 9
vVDM = 13
vAA = 14
vAB = 22
vBR = 30
vKR = 32
vVR = 40
vGA = 44
vGB = 48
vL = 52
vOW = 56
vPS = 57
vT = 58
vQ = 64
vS = 128
vP = 192
vNM = 224
vACC = 128

aA = 0
aB = 96
aF = 0
aO = 128


def rng(f, b, n):
    return f"{f}[{b}:{b + n - 1}]" if n > 1 else f"{f}{b}"


def Bset(setidx, tq):
    if setidx < 2:
        return rng("a", aB + setidx * 16 + tq * 4, 4)
    return rng("v", 64 + tq * 4, 4)


def Aset(setidx, dt):
    return rng("a", aA + setidx * 32 + dt * 4, 4)


def Ahalf(setidx, dt, rd):
    return rng("a", aA + setidx * 32 + dt * 4 + 2 * rd, 2)


def acc16(dt, tq):
    return rng("v", vACC + (dt * 4 + tq) * 4, 4)


OPT = {}


class Slots:
    def __init__(self, n):
        self.n = n
        self.f = [[] for _ in range(n + 1)]

    def at(self, i, fn):
        self.f[min(max(i, 0), self.n)].append(fn)


def gemm_step(e, p, phase, opts):
    j = p % 3
    jn = (p + 1) % 3
    va = vAA if phase == 1 else vAB
    rdoff = 1024 if phase == 1 else 2048
    sl = Slots(32)
    if opts.get("next", True):
        reads = []
        for dt in range(8):
            for rd in range(2):
                reads.append((dt, rd))
        spread = opts.get("aspread", 10)
        for n, (dt, rd) in enumerate(reads):
            def f(dt=dt, rd=rd):
                if OPT.get("noaread"):
                    return
                e.lds(f"ds_read_b64_tr_b16 {Ahalf(jn, dt, rd)}, v{va + dt} offset:{jn * SLOT + rd * rdoff}",
                      ("A", p + 1, dt))
            sl.at(n * spread // 16, f)
        for tq in range(4):
            def f(tq=tq):
                e.lds(f"ds_read_b128 {Bset(jn, tq)}, v{vBR} offset:{opts['boff_next'] + tq * 1024}", ("B", p + 1, tq))
            sl.at(spread + 1 + tq, f)
    for pos, fn in opts.get("fill", []):
        sl.at(pos, fn)
    if opts.get("next", True):
        e.need(vtags=opts.get("vneed"))
    for n in range(32):
        dt, tq = n // 4, n % 4
        need = [("A", p, dt), ("B", p, tq)]
        e.need(ltags=need)
        c = "0" if opts.get("first") else acc16(dt, tq)
        e(f"v_mfma_f32_16x16x32_bf16 {acc16(dt, tq)}, {Aset(j, dt)}, {Bset(j, tq)}, {c}")
        for fn in sl.f[n]:
            fn()
    for fn in sl.f[32]:
        fn()


def wdma(e, phase, i, tag):
    if OPT.get("nodma") and tag[1] > 3:
        e.vq.append(tag)
        return
    if phase == 1:
        e.vm(f"buffer_load_dwordx4 v{vWQ + i}, s[{S_WQ}:{S_WQ + 3}], s{sWQO} offen offset:{i * 1024} lds", tag)
    else:
        e.vm(f"buffer_load_dwordx4 v{vWO + i}, s[{S_WO}:{S_WO + 3}], s{sWOO} offen offset:{i * 1024} lds", tag)


def wdma_adv(e, phase):
    if phase == 1:
        e(f"s_add_u32 s{sWQO}, s{sWQO}, {16 * 8192}")
        e(f"s_and_b32 s{sWQO}, s{sWQO}, {512 * 8192 - 1}")
    else:
        e(f"s_add_u32 s{sT0}, s{sWOO}, {16 * 1024}")
        e(f"s_and_b32 s{sT0}, s{sT0}, {512 * 1024 - 1}")
        e(f"s_and_b32 s{sWOO}, s{sWOO}, {~(512 * 1024 - 1) & 0xffffffff}")
        e(f"s_or_b32 s{sWOO}, s{sWOO}, s{sT0}")


def half_dma(e, phase, slot, half, tag):
    def m0():
        e(f"s_add_u32 m0, s{sRING}, {slot * SLOT + half * 4096}")
    out = [m0]
    for i in range(4):
        out.append(lambda i=i: wdma(e, phase, i, tag))
    out.append(lambda: wdma_adv(e, phase))
    return out


def serial(e, fl):
    fl[0]()
    e("s_nop 0")
    for fn in fl[1:]:
        fn()


def place(fl, start, stride):
    res = [(start, fl[0])]
    for i in range(4):
        res.append((start + 1 + i * stride, fl[1 + i]))
    res.append((start + 1 + 3 * stride, fl[5]))
    return res


def kv_dma(e, which, tile_slot, tag):
    out = []
    if which == "K":
        out.append(lambda: e(f"s_add_u32 m0, s{sRING}, {tile_slot * SLOT}"))
        for i in range(4):
            out.append(lambda i=i: e.vm(
                f"buffer_load_dwordx4 v{vKDM + i}, s[{S_K}:{S_K + 3}], s{sKO} offen offset:{i * 1024} lds", tag))
        out.append(lambda: kv_adv(e, sKO))
    else:
        out.append(lambda: e(f"s_add_u32 m0, s{sRING}, {tile_slot * SLOT + 4096}"))
        for i in range(4):
            out.append(lambda i=i: e.vm(
                f"buffer_load_dwordx4 v{vVDM}, s[{S_V}:{S_V + 3}], s{sVO} offen offset:{i * 1024} lds", tag))
        out.append(lambda: kv_adv(e, sVO))
    return out


def kv_adv(e, sreg):
    e(f"s_sub_u32 s{sT0}, s{sreg}, s{sKVB}")
    e(f"s_add_u32 s{sT0}, s{sT0}, 16384")
    e(f"s_and_b32 s{sT0}, s{sT0}, {8 * 16384 - 1}")
    e(f"s_add_u32 s{sreg}, s{sT0}, s{sKVB}")


def gemm_pre(e, phase):
    va = vAA if phase == 1 else vAB
    rdoff = 1024 if phase == 1 else 2048
    e.need(vtags=[("W", 0, 0), ("W", 0, 1)])
    for tq in range(4):
        e.lds(f"ds_read_b128 {Bset(0, tq)}, v{vBR} offset:{tq * 1024}", ("B", 0, tq))
    for dt in range(8):
        for rd in range(2):
            e.lds(f"ds_read_b64_tr_b16 {Ahalf(0, dt, rd)}, v{va + dt} offset:{rd * rdoff}", ("A", 0, dt))


def gemm_main(e, phase, tail_fill):
    e.need(ltags=[("A", 0, 7)])
    serial(e, half_dma(e, phase, 0, 0, ("W", 3, 0)))

    def step_opts(p, boff_next):
        fill = []
        if p + 3 <= 15:
            fill += place(half_dma(e, phase, p % 3, 1, ("W", p + 3, 1)), 1, 4)
        if p + 4 <= 15:
            fl = half_dma(e, phase, (p + 1) % 3, 0, ("W", p + 4, 0))

            def guard(p=p):
                e.need(ltags=[("A", p + 1, 7)])
            fill += [(17, guard)] + place(fl, 17, 4)
        return dict(first=(p == 0), next=(p < 15), boff_next=boff_next, fill=fill,
                    vneed=[("W", p + 1, 0), ("W", p + 1, 1)])

    o = step_opts(0, 1 * 4096)
    gemm_step(e, 0, phase, o)
    lab = f"L_g{phase}_loop"
    e(f"s_mov_b32 s{sCNT}, 3")
    e(f"v_add_u32 v{vBR}, {1 * 4096}, v{vBR}")
    lq0, vq0 = list(e.lq), list(e.vq)
    e(f"{lab}:")
    n0 = len(e.l)
    for u in range(3):
        p = 1 + u
        o = step_opts(p, (u + 1) * 4096)
        if u == 2:
            o["fill"] = o["fill"] + [(29, lambda: e(f"v_add_u32 v{vBR}, {3 * 4096}, v{vBR}")),
                                     (31, lambda: e(f"s_sub_u32 s{sCNT}, s{sCNT}, 1")),
                                     (31, lambda: e(f"s_cmp_lg_u32 s{sCNT}, 0"))]
        gemm_step(e, p, phase, o)
    e(f"s_cbranch_scc1 {lab}")
    body = e.l[n0:]
    probs = check_hazards(body + body, f"gemm{phase} loop x2")
    assert not probs or any(k.startswith("no") for k in OPT), "\n".join(probs[:10])
    sh = lambda q, d: [(t[0], t[1] + d) + tuple(t[2:]) if t else t for t in q]
    assert sh(lq0, 3) == e.lq or OPT.get('noaread'), (lq0, e.lq)
    assert sh(vq0, 3) == e.vq, (vq0, e.vq)
    e.lq, e.vq = sh(e.lq, 6), sh(e.vq, 6)
    for p in range(10, 16):
        o = step_opts(p, (p - 10 + 1) * 4096)
        o["fill"] = o["fill"] + tail_fill(p)
        gemm_step(e, p, phase, o)


def Sreg(par, qb, i=None):
    b = vS + par * 32 + qb * 16
    return rng("v", b, 16) if i is None else f"v{b + i}"


def Preg(par, qb, t):
    return rng("v", vP + par * 16 + qb * 8 + t * 4, 4)


def Qreg(s16, qb):
    return rng("v", vQ + (s16 * 2 + qb) * 4, 4)


def Oreg(db, qb):
    return rng("a", aO + (db * 2 + qb) * 16, 16)


def Fbuf(n, half=None):
    b = aF + (n % 8) * 4
    return rng("a", b, 4) if half is None else rng("a", b + 2 * half, 2)


def k_read(e, b, s16):
    if OPT.get("nokvread"):
        return
    e.lds(f"ds_read_b128 {Fbuf(s16)}, v{vKR + s16} offset:{(b & 1) * 49152}", ("K", b, s16))


def v_read(e, b, f):
    t, db = f // 4, f % 4
    if OPT.get("nokvread"):
        return
    for rd in range(2):
        e.lds(f"ds_read_b64_tr_b16 {Fbuf(8 + f, rd)}, v{vVR + db} offset:{t * WSTR + rd * 2048}", ("V", b, f))


def sm_ops(e, b):
    par = b & 1
    ops = []
    S = lambda x: Sreg(par, x // 16, x % 16)
    exp = lambda x: (lambda: e(f"v_exp_f32 {S(x)}, {S(x)}") if not OPT.get("noexp") else None)
    add = lambda x: (lambda: e(f"v_add_f32 v{vL + (x // 16) * 2 + (x & 1)}, v{vL + (x // 16) * 2 + (x & 1)}, {S(x)}"))
    cvt = lambda k: (lambda: e(f"v_cvt_pk_bf16_f32 v{vP + par * 16 + k}, {S(2 * k)}, {S(2 * k + 1)}"))
    if OPT.get("nosm"):
        return []
    for k in range(16):
        ops.append((2 * k, exp(2 * k)))
        if k > 0:
            ops.append((2 * k, add(2 * k - 2)))
            ops.append((2 * k, cvt(k - 1)))
        ops.append((2 * k + 1, exp(2 * k + 1)))
        if k > 0:
            ops.append((2 * k + 1, add(2 * k - 1)))
    ops.append((32, add(30)))
    ops.append((32, add(31)))
    ops.append((32, cvt(15)))
    return ops


def p2_iter(e, b, qk=True, sm=True, pv=True, look="K", fill=(), vpre=False, smstart=0):
    mf = []
    if qk:
        par = (b + 1) & 1
        for s16 in range(8):
            for qb in range(2):
                c = rng("v", vNM + qb * 16, 16) if s16 == 0 else Sreg(par, qb)
                mf.append((f"v_mfma_f32_32x32x16_bf16 {Sreg(par, qb)}, {Fbuf(s16)}, {Qreg(s16, qb)}, {c}",
                           ("K", b + 1, s16), s16))
    if pv:
        par = (b - 1) & 1
        for f in range(8):
            t, db = f // 4, f % 4
            for qb in range(2):
                mf.append((f"v_mfma_f32_32x32x16_bf16 {Oreg(db, qb)}, {Fbuf(8 + f)}, {Preg(par, qb, t)}, {Oreg(db, qb)}",
                           ("V", b - 1, f), 8 + f))
    n = len(mf)
    sl = Slots(n)
    if qk and pv:
        for f in range(4, 8):
            sl.at(2 * (f - 4) + 1, lambda f=f: k_read(e, b + 1, f))
        for f in range(8):
            sl.at(2 * (f + 4) + 1, lambda f=f: v_read(e, b - 1, f))
        if look == "K":
            for f in range(4):
                sl.at(24 + 2 * f + 1, lambda f=f: k_read(e, b + 2, f))
    elif qk:
        for f in range(4, 8):
            sl.at(2 * (f - 4) + 1, lambda f=f: k_read(e, b + 1, f))
        if look == "K":
            for f in range(4):
                sl.at(8 + 2 * f + 1, lambda f=f: k_read(e, b + 2, f))
    else:
        if vpre:
            for f in range(4):
                v_read(e, b - 1, f)
        for f in range(4, 8):
            sl.at(2 * (f - 4) + 1, lambda f=f: v_read(e, b - 1, f))
        if look == "V":
            for f in range(4):
                sl.at(8 + 2 * f + 1, lambda f=f: v_read(e, b, f))
    if sm:
        ops = sm_ops(e, b)
        for (s, fn) in ops:
            sl.at(smstart + s * (n - smstart) // 32 if s < 32 else n, fn)
    for (s, fn) in fill:
        sl.at(s, fn)
    if vpre and sm:
        pass
    for i, (txt, tag, fi) in enumerate(mf):
        if i % 4 == 0:
            tags = [tag]
            if i + 2 < n:
                tags.append(mf[i + 2][1])
            e.need(ltags=tags)
        e(txt)
        for fn in sl.f[i]:
            fn()
    for fn in sl.f[n]:
        fn()


def gen_k1(label, stamps=False, debug=None, opt=None):
    OPT.clear()
    OPT.update(opt or {})
    e = E()
    nst = [0]

    def stamp(name, wait=True):
        if not stamps:
            return
        k = nst[0]
        assert k < 12
        e(f"{stamps} s[{sTS + 2 * k}:{sTS + 2 * k + 1}]   ; stamp {k} {name}")
        if wait:
            e.wait_all(vm=False)
        nst[0] += 1
    done = f"L_{label}_done"
    e(f"""
    s_cmp_ge_u32 s2, 256
    s_cbranch_scc1 {done}
    s_load_dwordx2 s[4:5], s[0:1], 0
    s_load_dwordx2 s[12:13], s[0:1], 8
    s_load_dwordx2 s[16:17], s[0:1], 16
    s_load_dwordx2 s[8:9], s[0:1], 24
    s_load_dwordx2 s[20:21], s[0:1], {KA['wo']}
    s_load_dwordx2 s[28:29], s[0:1], {KA['wr']}
    s_load_dwordx2 s[24:25], s[0:1], {KA['ws']}
    """)
    stamp("start", wait=False)
    e(f"""
    v_lshrrev_b32 v{vT}, 6, v0
    v_and_b32 v{vLANE}, 63, v0
    v_readfirstlane_b32 s{sW}, v{vT}
    """)
    mp = OPT.get("map", "A")
    if mp == "A":
        e(f"""
        s_and_b32 s{sG}, s2, 7
        s_lshr_b32 s{sTB}, s2, 3
        s_and_b32 s{sSK}, s{sTB}, 15
        s_and_b32 s{sKVT}, s{sTB}, 7
        """)
    elif mp == "B":
        e(f"""
        s_and_b32 s{sT0}, s2, 3
        s_lshl_b32 s{sT0}, s{sT0}, 1
        s_bfe_u32 s{sT1}, s2, {3 | (1 << 16)}
        s_or_b32 s{sG}, s{sT0}, s{sT1}
        s_bfe_u32 s{sT0}, s2, {2 | (1 << 16)}
        s_lshl_b32 s{sT0}, s{sT0}, 4
        s_lshr_b32 s{sT1}, s2, 4
        s_or_b32 s{sTB}, s{sT0}, s{sT1}
        s_and_b32 s{sSK}, s{sTB}, 7
        s_lshl_b32 s{sSK}, s{sSK}, 1
        s_and_b32 s{sKVT}, s{sTB}, 7
        """)
    elif mp == "C":
        e(f"""
        s_and_b32 s{sT0}, s2, 1
        s_lshl_b32 s{sT0}, s{sT0}, 2
        s_bfe_u32 s{sT1}, s2, {3 | (2 << 16)}
        s_or_b32 s{sG}, s{sT0}, s{sT1}
        s_bfe_u32 s{sT0}, s2, {1 | (2 << 16)}
        s_lshl_b32 s{sT0}, s{sT0}, 3
        s_lshr_b32 s{sT1}, s2, 5
        s_or_b32 s{sTB}, s{sT0}, s{sT1}
        s_and_b32 s{sSK}, s{sTB}, 7
        s_lshl_b32 s{sSK}, s{sSK}, 1
        s_and_b32 s{sKVT}, s{sTB}, 7
        """)
        if OPT.get("s4"):
            e(f"""
            s_and_b32 s{sSK}, s{sTB}, 3
            s_lshl_b32 s{sSK}, s{sSK}, 2
            """)
        if OPT.get("gskew"):
            e(f"""
            s_and_b32 s{sT0}, s{sG}, 3
            s_lshl_b32 s{sT0}, s{sT0}, 2
            s_add_u32 s{sSK}, s{sSK}, s{sT0}
            s_and_b32 s{sSK}, s{sSK}, 15
            """)
    L = vLANE
    t0, t1, t2, t3, t4, t5 = vT, vT + 1, vT + 2, vT + 3, vT + 4, vT + 5
    XV0, XV1 = 56, 57
    e(f"""
    v_and_b32 v{t2}, 15, v{L}
    v_lshrrev_b32 v{t3}, 4, v{L}
    s_lshl_b32 s{sT0}, s{sTB}, 6
    s_lshl_b32 s{sT1}, s{sW}, 4
    s_add_u32 s{sT0}, s{sT0}, s{sT1}
    v_lshrrev_b32 v{t0}, 3, v{L}
    v_add_u32 v{t0}, s{sT0}, v{t0}
    v_and_b32 v{t1}, 7, v{L}
    v_xor_b32 v{t1}, v{t1}, v{t3}
    v_lshlrev_b32 v{t1}, 4, v{t1}
    v_lshl_add_u32 v{XV0}, v{t0}, 10, v{t1}
    v_xor_b32 v{XV1}, 64, v{XV0}              ; chunk ^ 4
    v_add_u32 v{XV1}, 8192, v{XV1}            ; +8 tokens
    s_mul_i32 s{sRING}, s{sW}, {WSTR}
    s_add_u32 s{sRING}, s{sRING}, {RB}
    s_lshl_b32 s{sT3}, s{sW}, 10              ; w*1024
    s_lshl_b32 s101, s{sSK}, 6
    s_waitcnt lgkmcnt(0)
    """)
    for (dst, size) in [(S_X, 2097152), (S_K, 4194304), (S_V, 4194304), (S_WQ, 4194304),
                        (S_WO, 4194304), (S_WR, 1024), (S_WS, 0x10000000)]:
        e(f"""
        s_mov_b32 s{dst + 2}, {size}
        s_mov_b32 s{dst + 3}, 0x20000
        """)
    stamp("kernarg", wait=True)
    def xdma(u):
        for hb in range(2):
            e(f"s_add_u32 m0, s{sT3}, {(2 * u + hb) * 4096}")
            e("s_nop 0")
            e.vm(f"buffer_load_dwordx4 v{XV0 + hb}, s[{S_X}:{S_X + 3}], s101 offen lds", ("x", u, hb))
        e(f"s_add_u32 s101, s101, 128")
        e(f"s_and_b32 s101, s101, 1023")

    def wrdma():
        e(f"""
        s_lshl_b32 s{sT0}, s{sSK}, 2
        v_add_u32 v58, s{sT0}, v{L}
        v_and_b32 v58, 63, v58
        v_lshlrev_b32 v58, 4, v58
        s_add_u32 m0, s{sRING}, {2 * SLOT + 4096}
        s_nop 0
        """)
        e.vm(f"buffer_load_dwordx4 v58, s[{S_WR}:{S_WR + 3}], 0 offen lds", ("wr", 0))
    NU0 = OPT.get("nu0", 6)
    for u in range(NU0):
        xdma(u)
    e(f"""
    s_lshl_b32 s{sT0}, s{sG}, 2
    s_add_u32 s{sT0}, s{sT0}, s{sW}
    s_lshl_b32 s{sT0}, s{sT0}, 8            ; head*256
    v_lshlrev_b32 v{t4}, 1, v{t3}
    v_xor_b32 v{t4}, v{t4}, v{t2}
    v_lshlrev_b32 v{t5}, 13, v{t3}           ; rr*8192
    v_add_u32 v{t5}, s{sT0}, v{t5}
    v_lshl_add_u32 v{vWQ}, v{t4}, 4, v{t5}
    v_add_u32 v{vWQ + 1}, {32768 - 1024}, v{vWQ}
    v_xor_b32 v{t4}, 8, v{t4}
    v_lshl_add_u32 v{vWQ + 2}, v{t4}, 4, v{t5}
    v_add_u32 v{vWQ + 2}, {2 * (32768 - 1024)}, v{vWQ + 2}
    v_add_u32 v{vWQ + 3}, {32768 - 1024}, v{vWQ + 2}
    s_lshl_b32 s{sWQO}, s{sSK}, 18
    """)
    wq_pre = []
    for p in range(3):
        for h in range(2):
            fl = half_dma(e, 1, p, h, ("W", p, h))
            for i in range(4):
                grp = []
                if i == 0:
                    grp += [fl[0], lambda: e("s_nop 0")]
                grp.append(fl[1 + i])
                if i == 3:
                    grp.append(fl[5])
                wq_pre.append(grp)
    if OPT.get("early_dma", 0):
        for grp in wq_pre[:OPT["early_dma"]]:
            for fn in grp:
                fn()
        wq_pre = wq_pre[OPT["early_dma"]:]


    r_, c_ = 60, 61
    A0, A1, A2, A3, A4, A5 = 128, 129, 130, 131, 132, 133
    e(f"""
    v_bfe_u32 v{A0}, v{L}, 2, 2              ; r
    v_and_b32 v{A1}, 3, v{L}                 ; c
    v_lshrrev_b32 v{A2}, 4, v{L}             ; q4
    v_and_b32 v{A3}, 1, v{A2}
    v_lshl_or_b32 v{A3}, v{A3}, 2, v{A0}     ; phi
    v_lshlrev_b32 v{A3}, 1, v{A3}            ; f
    v_lshrrev_b32 v{A4}, 1, v{A1}
    v_xor_b32 v{A3}, v{A3}, v{A4}            ; chunk
    v_lshlrev_b32 v{A3}, 4, v{A3}
    v_and_b32 v{A4}, 1, v{A1}
    v_lshl_or_b32 v{A3}, v{A4}, 3, v{A3}     ; + (c&1)*8
    v_lshl_add_u32 v{A4}, v{A2}, 3, v{A0}    ; row
    v_lshl_add_u32 v{A3}, v{A4}, 8, v{A3}
    v_add_u32 v{vAA}, s{sRING}, v{A3}
    """)
    for dt in range(1, 8):
        e(f"v_xor_b32 v{vAA + dt}, {32 * dt}, v{vAA}")
    e(f"""
    v_and_b32 v{A3}, 1, v{A2}
    v_lshl_or_b32 v{A3}, v{A3}, 2, v{A0}
    v_lshrrev_b32 v{A4}, 1, v{A2}
    v_lshl_or_b32 v{A4}, v{A4}, 4, v{A3}     ; row
    v_lshlrev_b32 v{A3}, 1, v{A3}
    v_lshrrev_b32 v{A5}, 1, v{A1}
    v_xor_b32 v{A3}, v{A3}, v{A5}
    v_lshlrev_b32 v{A3}, 4, v{A3}
    v_and_b32 v{A5}, 1, v{A1}
    v_lshl_or_b32 v{A3}, v{A5}, 3, v{A3}
    v_lshl_add_u32 v{A3}, v{A4}, 8, v{A3}
    v_add_u32 v{vAB}, s{sRING}, v{A3}
    """)
    for dt in range(1, 8):
        e(f"v_xor_b32 v{vAB + dt}, {32 * dt}, v{vAB}")
    e(f"""
    v_lshlrev_b32 v{vBR}, 4, v{L}            ; B read: X + l*16
    v_and_b32 v{A3}, 15, v{L}
    v_lshlrev_b32 v{A4}, 1, v{A2}
    v_xor_b32 v{A4}, v{A4}, v{A3}
    s_lshl_b32 s{sT0}, s{sW}, 8
    v_lshlrev_b32 v{A5}, 10, v{A2}
    v_add_u32 v{A5}, s{sT0}, v{A5}
    v_lshl_add_u32 v{vWO}, v{A4}, 4, v{A5}
    v_add_u32 v{vWO + 2}, {2 * 3072}, v{vWO}
    v_xor_b32 v{A4}, 8, v{A4}
    v_lshl_add_u32 v{vWO + 1}, v{A4}, 4, v{A5}
    v_add_u32 v{vWO + 1}, 3072, v{vWO + 1}
    v_add_u32 v{vWO + 3}, {2 * 3072}, v{vWO + 1}
    s_lshl_b32 s{sWOO}, s{sG}, 19
    s_lshl_b32 s{sT0}, s{sSK}, 15
    s_add_u32 s{sWOO}, s{sWOO}, s{sT0}
    v_xor_b32 v{A4}, v{A2}, v{A3}            ; (l&15)^rr
    v_lshlrev_b32 v{A5}, 8, v{A2}
    v_lshl_add_u32 v{vKDM}, v{A4}, 4, v{A5}
    v_xor_b32 v{vKDM + 1}, 64, v{vKDM}
    v_xor_b32 v{vKDM + 2}, 128, v{vKDM}
    v_xor_b32 v{vKDM + 3}, 192, v{vKDM}
    v_lshlrev_b32 v{A4}, 2, v{A2}
    v_xor_b32 v{A4}, v{A4}, v{A3}
    v_lshl_add_u32 v{vVDM}, v{A4}, 4, v{A5}
    v_lshrrev_b32 v{A4}, 5, v{L}             ; h
    v_xor_b32 v{A4}, v{A4}, v{A3}
    v_lshlrev_b32 v{A4}, 4, v{A4}
    v_lshl_add_u32 v{A4}, v{A3}, 8, v{A4}
    v_and_b32 v{A5}, 1, v{A2}
    v_mul_u32_u24 v{A5}, {WSTR}, v{A5}
    v_add_u32 v{A4}, v{A4}, v{A5}
    v_add_u32 v{vKR}, {RB + 1 * SLOT}, v{A4}
    """)
    for s16 in range(1, 8):
        e(f"v_xor_b32 v{vKR + s16}, {32 * s16}, v{vKR}")
    e(f"""
    v_and_b32 v{A4}, 1, v{A2}
    v_lshlrev_b32 v{A4}, 1, v{A4}
    v_lshrrev_b32 v{A5}, 1, v{A1}
    v_or_b32 v{A4}, v{A4}, v{A5}
    v_lshlrev_b32 v{A5}, 2, v{A0}
    v_xor_b32 v{A4}, v{A4}, v{A5}
    v_lshlrev_b32 v{A4}, 4, v{A4}
    v_and_b32 v{A5}, 1, v{A1}
    v_lshl_or_b32 v{A4}, v{A5}, 3, v{A4}
    v_lshrrev_b32 v{A5}, 5, v{L}
    v_lshl_add_u32 v{A5}, v{A5}, 2, v{A0}    ; 4h + r
    v_lshl_add_u32 v{A4}, v{A5}, 8, v{A4}
    v_add_u32 v{vVR}, {RB + 4096 + 1 * SLOT}, v{A4}
    """)
    for db in range(1, 4):
        e(f"v_xor_b32 v{vVR + db}, {64 * db}, v{vVR}")
    e(f"""
    """)
    for u in range(NU0, 8):
        xdma(u)
    wrdma()
    e(f"""
    v_lshlrev_b32 v{vOW}, 4, v{A3}
    v_lshrrev_b32 v{A4}, 5, v{L}
    v_lshl_add_u32 v{vOW}, v{A4}, 8, v{vOW}
    v_and_b32 v{A4}, 1, v{A2}
    v_lshl_add_u32 v{vOW}, v{A4}, 10, v{vOW}
    """)
    e(f"""
    s_lshl_b32 s{sT0}, s{sG}, 5
    s_add_u32 s{sT0}, s{sT0}, s{sTB}
    s_lshl_b32 s{sT0}, s{sT0}, 2
    s_add_u32 s{sT0}, s{sT0}, s{sW}
    s_lshl_b32 s{sT0}, s{sT0}, 14
    v_lshlrev_b32 v{vPS}, 4, v{L}
    v_add_u32 v{vPS}, s{sT0}, v{vPS}
    s_lshl_b32 s{sKVB}, s{sG}, 19
    s_lshl_b32 s{sT0}, s{sW}, 12
    s_add_u32 s{sKVB}, s{sKVB}, s{sT0}
    s_add_u32 s{sKVB}, s{sKVB}, {1536 * 256}
    s_lshl_b32 s{sT0}, s{sKVT}, 14
    s_add_u32 s{sKO}, s{sKVB}, s{sT0}
    s_mov_b32 s{sVO}, s{sKO}
    v_cmp_eq_u32 s[{sMASK}:{sMASK + 1}], 1, v{A1}
    v_cmp_eq_u32 s[{sMASK + 2}:{sMASK + 3}], 2, v{A1}
    v_cmp_eq_u32 s[{sMASK + 4}:{sMASK + 5}], 3, v{A1}
    v_cmp_eq_u32 s[98:99], v{A2}, v{A0}
    """)
    e(f"v_mov_b32 v{A5}, 0x3f803f80")
    for i in range(4):
        e(f"v_accvgpr_write_b32 a{64 + i}, v{A5}")
    e(f"s_mov_b32 s100, 0xffff0000")
    e("s_nop 0")
    SUM, GRM = 68, 72
    e(f"""
    v_and_b32 v58, 15, v{L}                  ; tok16
    v_lshrrev_b32 v59, 4, v{L}               ; q4
    v_bfe_u32 v60, v58, 1, 3                 ; swz
    v_xor_b32 v59, v59, v60
    v_lshlrev_b32 v59, 4, v59
    v_and_b32 v60, 7, v58
    v_lshl_add_u32 v59, v60, 7, v59
    v_lshrrev_b32 v60, 3, v58
    v_lshl_add_u32 v59, v60, 12, v59
    v_add_u32 v62, s{sT3}, v59
    v_xor_b32 v63, 64, v62
    """)
    if not OPT.get("fine"):
        stamp("addr_done")

    def stat_frag(p):
        e.need(ltags=[("xr", p)])
        xf = rng("v", vQ + 4 * p, 4)
        c1 = "0" if p == 0 else rng("a", SUM, 4)
        c2 = "0" if p == 0 else rng("a", GRM, 4)
        e(f"v_mfma_f32_16x16x32_bf16 {rng('a', SUM, 4)}, a[64:67], {xf}, {c1}")
        e(f"v_mfma_f32_16x16x32_bf16 {rng('a', GRM, 4)}, {xf}, {xf}, {c2}")
        for i in range(4):
            src = vQ + 4 * p + i
            dst = 128 + 8 * p + 2 * i
            e(f"v_lshlrev_b32 v{dst}, 16, v{src}")
            e(f"v_and_b32 v{dst + 1}, s100, v{src}")

    for u in range(8):
        e.need(vtags=[("x", u, 1)])
        if u == 0 and not OPT.get("fine"):
            stamp("x0")
        for par in range(2):
            e.lds(f"ds_read_b128 {rng('v', vQ + 4 * (2 * u + par), 4)}, v{62 + par} offset:{u * 8192}", ("xr", 2 * u + par))
        for k in range(2):
            if wq_pre and u >= OPT.get("dma_from", 0):
                for fn in wq_pre.pop(0):
                    fn()
        if u > 0:
            stat_frag(2 * u - 2)
            stat_frag(2 * u - 1)
    e.need(vtags=[("wr", 0)])
    e(f"""
    v_lshrrev_b32 v58, 4, v{L}
    v_lshlrev_b32 v58, 4, v58
    v_add_u32 v58, s{sRING}, v58
    """)
    for p in range(16):
        e.lds(f"ds_read_b128 {rng('a', 128 + 4 * p, 4)}, v58 offset:{2 * SLOT + 4096 + p * 64}", ("wrf", p))
    stat_frag(14)
    stat_frag(15)
    e.nop(6)
    stamp("x15_stats")
    s1, s2_, u0, u1, u2, u3 = 58, 59, 60, 61, 62, 63
    e(f"""
    v_accvgpr_read_b32 v{s1}, a{SUM}
    v_accvgpr_read_b32 v{u0}, a{GRM}
    v_accvgpr_read_b32 v{u1}, a{GRM + 1}
    v_accvgpr_read_b32 v{u2}, a{GRM + 2}
    v_accvgpr_read_b32 v{u3}, a{GRM + 3}
    v_cndmask_b32 v{u0}, v{u0}, v{u1}, s[{sMASK}:{sMASK + 1}]
    v_cndmask_b32 v{u0}, v{u0}, v{u2}, s[{sMASK + 2}:{sMASK + 3}]
    v_cndmask_b32 v{u0}, v{u0}, v{u3}, s[{sMASK + 4}:{sMASK + 5}]
    v_cndmask_b32 v{u0}, 0, v{u0}, s[98:99]
    v_mov_b32 v{u1}, v{u0}
    s_nop 1
    v_permlane32_swap_b32 v{u0}, v{u1}
    s_nop 0
    v_add_f32 v{u0}, v{u0}, v{u1}
    v_mov_b32 v{u1}, v{u0}
    s_nop 1
    v_permlane16_swap_b32 v{u0}, v{u1}
    s_nop 0
    v_add_f32 v{s2_}, v{u0}, v{u1}
    v_mul_f32 v{s1}, {hex(f2u(1.0 / 512))}, v{s1}     ; mean
    v_mul_f32 v{s2_}, {hex(f2u(1.0 / 512))}, v{s2_}
    v_fma_f32 v{s2_}, -v{s1}, v{s1}, v{s2_}      ; var
    v_max_f32 v{s2_}, 0, v{s2_}
    v_cvt_pk_bf16_f32 v{u0}, v{s1}, v{s2_}
    v_and_b32 v{u1}, s100, v{u0}
    v_add_f32 v{u1}, {hex(f2u(1e-5))}, v{u1}
    v_cvt_pk_bf16_f32 v{u1}, v{u1}, v{u1}
    v_and_b32 v{u1}, s100, v{u1}
    v_sqrt_f32 v{u1}, v{u1}
    v_lshlrev_b32 v{s1}, 16, v{u0}             ; mean_b f32
    v_cvt_pk_bf16_f32 v{u1}, v{u1}, v{u1}
    v_and_b32 v{u2}, s100, v{u1}                ; sd_b f32
    v_rcp_f32 v{u3}, v{u2}
    v_and_b32 v{u0}, 0xffff, v{u0}
    v_or_b32 v31, v{u0}, v{u2}
    v_mul_f32 v{u3}, {hex(f2u(C_SCALE))}, v{u3}     ; rsc
    v_mul_f32 v{u2}, v{s1}, v{u3}
    v_sub_f32 v{u2}, 0, v{u2}
    """)
    e(f"""
    v_mov_b32 v60, v{u3}
    v_mov_b32 v61, v{u3}
    v_mov_b32 v63, v{u2}
    """)
    e(f"""
    s_lshl_b32 s{sT0}, s{sW}, 10
    v_add_u32 v{s1}, s{sT0}, v{vBR}
    """)
    for p in range(16):
        for i in range(4):
            src = 128 + 8 * p + 2 * i
            e(f"v_pk_fma_f32 v[{src}:{src + 1}], v[{src}:{src + 1}], v[60:61], v[62:63]")
        for i in range(4):
            src = 128 + 8 * p + 2 * i
            e(f"v_cvt_pk_bf16_f32 v{vQ + 4 * p + i}, v{src}, v{src + 1}")
        e.lds(f"ds_write_b128 v{s1}, {rng('v', vQ + 4 * p, 4)} offset:{p * 4096}", ("xw", p))
        if wq_pre and p % OPT.get("dma_norm", 2) == 0 and not OPT.get("dma_late"):
            if len(wq_pre) <= 4:
                e.need(ltags=[("wrf", 15)])
            for fn in wq_pre.pop(0):
                fn()
    e.need(ltags=[("wrf", 15)])
    while wq_pre:
        for fn in wq_pre.pop(0):
            fn()
    e.need(ltags=[("xw", 15)])
    stamp("norm_done")
    e("s_barrier")
    stamp("ln_done")
    gemm_pre(e, 1)
    for p in range(16):
        c = "0" if p == 0 else "a[76:79]"
        e(f"v_mfma_f32_16x16x32_bf16 a[76:79], {rng('a', 128 + 4 * p, 4)}, {rng('v', vQ + 4 * p, 4)}, {c}")
    e.nop(8)
    e(f"""
    v_accvgpr_read_b32 v58, a76
    v_mul_f32 v58, {hex(f2u(1.0 / C_SCALE))}, v58
    v_cvt_pk_bf16_f32 v58, v58, v58
    v_and_b32 v59, s100, v58
    """)

    def tail1(p):
        f = []

        def guard(pp):
            return lambda: e.need(ltags=[("A", pp + 1, 7)])
        if p == 12:
            f += [(17, guard(12))] + place(kv_dma(e, "K", 1, ("KV", 0, "K")), 17, 4)
        if p == 13:
            f += place(kv_dma(e, "V", 1, ("KV", 0, "V")), 1, 4)
            f += [(17, guard(13))] + place(kv_dma(e, "K", 2, ("KV", 1, "K")), 17, 4)
        if p == 14:
            f += place(kv_dma(e, "V", 2, ("KV", 1, "V")), 1, 4)
            f += [(17, guard(14))] + place(kv_dma(e, "K", 0, ("KV", 2, "K")), 17, 4)
        if p >= 12:
            for i in range(32):
                f.append((i, lambda i=i: e(f"v_accvgpr_write_b32 a{128 + (p - 12) * 32 + i}, 0")))
        return f

    gemm_main(e, 1, tail1)
    if not OPT.get("fine"):
        stamp("p1_done")
    e(f"""
    s_add_u32 s{sGA}, s{S_WS}, {WS_R}
    s_addc_u32 s{sGA + 1}, s{S_WS + 1}, 0
    s_mov_b32 s{sGA + 2}, 8192
    s_mov_b32 s{sGA + 3}, 0x20000
    s_add_u32 s{sGB}, s{S_WS}, {WS_STAT}
    s_addc_u32 s{sGB + 1}, s{S_WS + 1}, 0
    s_mov_b32 s{sGB + 2}, 8192
    s_mov_b32 s{sGB + 3}, 0x20000
    s_lshl_b32 s{sT0}, s{sTB}, 6
    s_lshl_b32 s{sT1}, s{sW}, 4
    s_add_u32 s{sT0}, s{sT0}, s{sT1}
    v_add_u32 v58, s{sT0}, v{vLANE}
    v_lshlrev_b32 v58, 2, v58
    v_cmp_gt_u32 vcc, 16, v{vLANE}
    s_cmp_eq_u32 s{sG}, 0
    s_cselect_b64 s[{sMASK}:{sMASK + 1}], -1, 0
    v_mov_b32 v60, 0x7ffffff0
    s_and_b64 vcc, vcc, s[{sMASK}:{sMASK + 1}]
    v_cndmask_b32 v58, v60, v58, vcc
    """)
    e.vm(f"buffer_store_dword v59, v58, s[{sGA}:{sGA + 3}], 0 offen", ("st", 0))
    e.vm(f"buffer_store_dword v31, v58, s[{sGB}:{sGB + 3}], 0 offen", ("st", 1))
    e.nop(4)
    for dt in (6, 7, 0, 1, 2, 3, 4, 5):
        for qb in range(2):
            R = vQ + (dt * 2 + qb) * 4
            a0 = vACC + (dt * 4 + 2 * qb) * 4
            a1 = a0 + 4
            e(f"v_cvt_pk_bf16_f32 v{R}, v{a0}, v{a0 + 1}")
            e(f"v_cvt_pk_bf16_f32 v{R + 1}, v{a0 + 2}, v{a0 + 3}")
            e(f"v_cvt_pk_bf16_f32 v{R + 2}, v{a1}, v{a1 + 1}")
            e(f"v_cvt_pk_bf16_f32 v{R + 3}, v{a1 + 2}, v{a1 + 3}")
        for qb in range(2):
            R = vQ + (dt * 2 + qb) * 4
            e(f"v_permlane16_swap_b32 v{R}, v{R + 2}")
            e(f"v_permlane16_swap_b32 v{R + 1}, v{R + 3}")
        if dt == 7:
            for i in range(32):
                e(f"v_mov_b32 v{vNM + i}, 0")
    for i in range(4):
        e(f"v_mov_b32 v{vL + i}, 0")
    for i in range(4):
        e(f"v_mov_b32 v{vGA + i}, v{vKDM + i}")
        e(f"v_mov_b32 v{vGB + i}, v{vVDM}")
    e(f"s_mov_b32 s{sPASS}, 0")
    e(f"L_p2_start:")
    e.need(vtags=[("KV", 1, "V")])
    e("s_barrier")
    e(f"""
    s_mov_b32 s{sGA}, s{S_K}
    s_mov_b32 s{sGA + 1}, s{S_K + 1}
    s_mov_b32 s{sGA + 2}, s{S_K + 2}
    s_mov_b32 s{sGB}, s{S_V}
    s_mov_b32 s{sGB + 1}, s{S_V + 1}
    s_mov_b32 s{sGB + 2}, s{S_V + 2}
    s_mov_b32 s{sKSL}, {2 * SLOT}
    s_mov_b32 s{sVSL}, {1 * SLOT}
    s_mov_b32 s{sTRIP}, 1
    """)
    for f in range(4):
        k_read(e, 0, f)
    p2_iter(e, -1, qk=True, sm=False, pv=False, look="K")
    upd = []
    for i in range(8):
        upd.append((i // 4 * 8 + i % 4 if i < 4 else 9 + i, lambda i=i: e(f"v_add_u32 v{vKR + i}, {SLOT}, v{vKR + i}")))
    p2_iter(e, 0, qk=True, sm=True, pv=False, look="K", fill=upd, smstart=5)

    lq0 = list(e.lq)
    e("L_p2_loop:")
    n0 = len(e.l)
    e.wait_all(lds=False)
    e("s_barrier")
    sal = [
        f"s_add_u32 s{sT1}, s{sKSL}, {SLOT}",
        f"s_cmp_eq_u32 s{sT1}, {3 * SLOT}",
        f"s_cselect_b32 s{sT1}, 0, s{sT1}",
        f"s_sub_u32 s{sKD}, s{sT1}, s{sKSL}",
        f"s_sub_u32 s{sVD}, s{sKSL}, s{sVSL}",
        f"s_sub_u32 s{sVD}, s{sVD}, 49152",
        f"s_add_u32 s{sGAM}, s{sRING}, s{sVSL}",
        f"s_add_u32 s{sGBM}, s{sRING}, s{sT1}",
        f"s_add_u32 s{sGBM}, s{sGBM}, 4096",
        f"s_mov_b32 s{sVSL}, s{sKSL}",
        f"s_mov_b32 s{sKSL}, s{sT1}",
    ]
    for x in sal:
        e(x)
    e(f"""
    s_cmp_lg_u32 s{sTRIP}, 7
    s_cbranch_scc1 L_p2_noswitch
    s_mov_b32 s{sGA}, s{S_WO}
    s_mov_b32 s{sGA + 1}, s{S_WO + 1}
    s_mov_b32 s{sGA + 2}, s{S_WO + 2}
    s_mov_b32 s{sGB}, s{S_WO}
    s_mov_b32 s{sGB + 1}, s{S_WO + 1}
    s_mov_b32 s{sGB + 2}, s{S_WO + 2}
    s_mov_b32 s{sGAM}, s{sRING}
    s_add_u32 s{sGBM}, s{sRING}, 4096
    s_mov_b32 s{sKO}, s{sWOO}
    """)
    wdma_adv(e, 3)
    e(f"s_mov_b32 s{sVO}, s{sWOO}")
    wdma_adv(e, 3)
    for i in range(4):
        e(f"v_mov_b32 v{vGA + i}, v{vWO + i}")
        e(f"v_mov_b32 v{vGB + i}, v{vWO + i}")
    e("L_p2_noswitch:")
    fill = []
    fill.append((0, lambda: e(f"s_mov_b32 m0, s{sGAM}")))
    for i in range(4):
        fill.append((2 + 4 * i, lambda i=i: e.vm(
            f"buffer_load_dwordx4 v{vGA + i}, s[{sGA}:{sGA + 3}], s{sKO} offen offset:{i * 1024} lds", ("G", 0))))
    fill.append((14, lambda: kv_adv(e, sKO)))
    fill.append((16, lambda: e(f"s_mov_b32 m0, s{sGBM}")))
    for i in range(4):
        fill.append((18 + 4 * i, lambda i=i: e.vm(
            f"buffer_load_dwordx4 v{vGB + i}, s[{sGB}:{sGB + 3}], s{sVO} offen offset:{i * 1024} lds", ("G", 1))))
    fill.append((30, lambda: kv_adv(e, sVO)))
    for db in range(4):
        fill.append((24 + 2 * db, lambda db=db: e(f"v_add_u32 v{vVR + db}, 49152, v{vVR + db}")))
    p2_iter(e, 1, fill=fill)
    fill = []
    for i in range(8):
        fill.append((8 + 2 * i if i >= 4 else 2 * i, lambda i=i: e(f"v_add_u32 v{vKR + i}, s{sKD}, v{vKR + i}")))
    for db in range(4):
        fill.append((24 + 2 * db, lambda db=db: e(f"v_add_u32 v{vVR + db}, s{sVD}, v{vVR + db}")))
    fill.append((30, lambda: e(f"s_add_u32 s{sTRIP}, s{sTRIP}, 1")))
    fill.append((32, lambda: e(f"s_cmp_lg_u32 s{sTRIP}, 8")))
    p2_iter(e, 2, fill=fill)
    e("s_cbranch_scc1 L_p2_loop")
    body = e.l[n0:]
    probs = check_hazards(body + body, "p2 loop x2")
    assert not probs or any(k.startswith("no") for k in OPT), "\n".join(probs[:10])
    sh = lambda q, d: [(t[0], t[1] + d) + tuple(t[2:]) if t else t for t in q]
    assert sh(lq0, 2) == e.lq, (lq0, e.lq)
    e.lq = sh(e.lq, 12)
    e.wait_all(lds=False)
    e("s_barrier")
    e.vq = [("W", 0, 0)] * 0
    fill = place(half_dma(e, 3, 1, 0, ("W", 1, 0)), 0, 2) + place(half_dma(e, 3, 1, 1, ("W", 1, 1)), 8, 2)
    for db in range(4):
        fill.append((7 + db, lambda db=db: e(f"v_add_u32 v{vVR + db}, 49152, v{vVR + db}")))
    e.lq = [t for t in e.lq]
    p2_iter(e, 15, qk=False, sm=True, pv=True, look="V", fill=fill, vpre=True)
    p2_iter(e, 16, qk=False, sm=False, pv=True, look=None)
    if not OPT.get("fine"):
        stamp("p2_done")
    e(f"""
    v_add_f32 v{vL}, v{vL}, v{vL + 1}
    v_add_f32 v{vL + 2}, v{vL + 2}, v{vL + 3}
    v_mov_b32 v{vL + 1}, v{vL}
    v_mov_b32 v{vL + 3}, v{vL + 2}
    s_nop 1
    v_permlane32_swap_b32 v{vL}, v{vL + 1}
    v_permlane32_swap_b32 v{vL + 2}, v{vL + 3}
    s_nop 0
    v_add_f32 v{vL}, v{vL}, v{vL + 1}
    v_add_f32 v{vL + 2}, v{vL + 2}, v{vL + 3}
    v_rcp_f32 v{vL + 1}, v{vL}
    v_rcp_f32 v{vL + 3}, v{vL + 2}
    s_mov_b32 s{sT0}, {hex(f2u(2.0 ** -40))}
    s_mov_b32 s{sT1}, {hex(f2u(2.0 ** 40))}
    v_cmp_lt_f32 s[{sMASK}:{sMASK + 1}], s{sT0}, v{vL}
    v_cmp_gt_f32 s[{sMASK + 2}:{sMASK + 3}], s{sT1}, v{vL}
    v_cmp_lt_f32 s[{sMASK + 4}:{sMASK + 5}], s{sT0}, v{vL + 2}
    v_cmp_gt_f32 vcc, s{sT1}, v{vL + 2}
    s_nop 1
    s_and_b64 s[{sMASK}:{sMASK + 1}], s[{sMASK}:{sMASK + 1}], s[{sMASK + 2}:{sMASK + 3}]
    s_and_b64 vcc, vcc, s[{sMASK + 4}:{sMASK + 5}]
    s_and_b64 s[{sMASK}:{sMASK + 1}], s[{sMASK}:{sMASK + 1}], vcc
    """)
    for db in range(4):
        e(f"""
        s_lshl_b32 s{sT0}, s{sW}, 2
        s_add_u32 s{sT0}, s{sT0}, {db}
        s_sub_u32 s{sT0}, s{sT0}, s{sSK}
        s_and_b32 s{sT0}, s{sT0}, 15
        s_lshl_b32 s{sT0}, s{sT0}, 12
        v_add_u32 v58, s{sT0}, v{vOW}
        """)
        for qb in range(2):
            src = aO + (db * 2 + qb) * 16
            T = 128 + (db * 2 + qb) * 16
            for i in range(16):
                e(f"v_accvgpr_read_b32 v{T + i}, a{src + i}")
            rl = vL + 1 + 2 * qb
            for i in range(16):
                e(f"v_mul_f32 v{T + i}, v{T + i}, v{rl}")
            for i in range(8):
                e(f"v_cvt_pk_bf16_f32 v{T + i}, v{T + 2 * i}, v{T + 2 * i + 1}")
            for jp in range(2):
                e.lds(f"ds_write_b128 v58, {rng('v', T + 4 * jp, 4)} offset:{qb * 2048 + jp * 512}", ("ow", db, qb, jp))
    e(f"""
    s_cmp_eq_u64 s[{sMASK}:{sMASK + 1}], -1
    s_cselect_b32 s{sT2}, 0, 1
    s_cmp_eq_u32 s{sPASS}, 0
    s_cselect_b32 s{sT2}, s{sT2}, 0
    s_cmp_eq_u32 s{sT2}, 0
    s_cbranch_scc1 L_noflag
    s_lshl_b32 s{sT0}, s{sW}, 2
    s_sub_u32 s{sT0}, s{sT0}, s{sSK}
    s_and_b32 s{sT0}, s{sT0}, 15
    s_lshl_b32 s{sT0}, s{sT0}, 12
    v_mov_b32 v58, s{sT0}
    v_mov_b32 v59, -1
    ds_write_b32 v58, v59
    L_noflag:
    """)
    e.wait_all(vm=False)
    e("s_barrier")
    for w_ in range(4):
        e(f"""
        s_sub_u32 s{sT0}, {4 * w_}, s{sSK}
        s_and_b32 s{sT0}, s{sT0}, 15
        s_lshl_b32 s{sT0}, s{sT0}, 12
        v_mov_b32 v{58 + w_}, s{sT0}
        """)
    for w_ in range(4):
        e.lds(f"ds_read_b32 v{58 + w_}, v{58 + w_}", ("mk", w_))
    for h in range(2):
        serial(e, half_dma(e, 3, 2, h, ("W", 2, h)))
    e.need(ltags=[("mk", 3)])
    e(f"""
    v_and_b32 v58, v58, v59
    v_and_b32 v60, v60, v61
    v_max_u32 v58, v58, v60
    v_max_u32 v59, v59, v61
    """)
    e.l = e.l[:-4]
    e(f"""
    v_max_u32 v58, v58, v59
    v_max_u32 v60, v60, v61
    v_max_u32 v58, v58, v60
    s_nop 0
    v_readfirstlane_b32 s{sT0}, v58
    s_nop 0
    s_cmp_eq_u32 s{sT0}, -1
    s_cbranch_scc1 L_fallback
    L_p3_start:
    """)
    e(f"v_lshlrev_b32 v{vBR}, 4, v{vLANE}")
    e.vq = [("W", 0, 0)] * 4 + [("W", 0, 1)] * 4 + e.vq
    gemm_pre(e, 3)
    gemm_main(e, 3, lambda p: [])
    if not OPT.get("fine"):
        stamp("p3_done")
    e.nop(6)
    for nt in range(8):
        for qb in range(2):
            R = vQ + (nt * 2 + qb) * 4
            a0 = vACC + (nt * 4 + 2 * qb) * 4
            a1 = a0 + 4
            e(f"v_cvt_pk_bf16_f32 v{R}, v{a0}, v{a0 + 1}")
            e(f"v_cvt_pk_bf16_f32 v{R + 1}, v{a0 + 2}, v{a0 + 3}")
            e(f"v_cvt_pk_bf16_f32 v{R + 2}, v{a1}, v{a1 + 1}")
            e(f"v_cvt_pk_bf16_f32 v{R + 3}, v{a1 + 2}, v{a1 + 3}")
        for qb in range(2):
            R = vQ + (nt * 2 + qb) * 4
            e(f"v_permlane16_swap_b32 v{R}, v{R + 2}")
            e(f"v_permlane16_swap_b32 v{R + 1}, v{R + 3}")
        for qb in range(2):
            R = vQ + (nt * 2 + qb) * 4
            off = (nt * 2 + qb) * 1024
            if off >= 4096 and off % 4096 == 0:
                e(f"v_add_u32 v{vPS}, 4096, v{vPS}")
            e.vm(f"buffer_store_dwordx4 {rng('v', R, 4)}, v{vPS}, s[{S_WS}:{S_WS + 3}], 0 offen offset:{off % 4096}",
                 ("ps", nt, qb))
    stamp("end")
    if stamps:
        e.wait_all()
        e(f"""
        s_lshl_b32 s{sT0}, s2, 2
        s_add_u32 s{sT0}, s{sT0}, s{sW}
        s_lshl_b32 s{sT0}, s{sT0}, 7
        s_add_u32 s{sT0}, s{sT0}, {WS_TS}
        v_mov_b32 v58, s{sT0}
        v_cmp_eq_u32 vcc, 0, v{vLANE}
        s_nop 0
        s_and_saveexec_b64 s[{sMASK}:{sMASK + 1}], vcc
        """)
        for i in range(0, 24, 4):
            for q in range(4):
                e(f"v_mov_b32 v{60 + q}, s{sTS + i + q}")
            e(f"buffer_store_dwordx4 v[60:63], v58, s[{S_WS}:{S_WS + 3}], 0 offen offset:{i * 4}")
            e("s_nop 1")
        e(f"s_mov_b64 exec, s[{sMASK}:{sMASK + 1}]")
    e(f"s_branch {done}")
    e("L_fallback:")
    e("s_branch L_p3_start")
    e(f"{done}:")
    e("s_endpgm")
    probs = check_hazards(e.l, "k1")
    if probs and not any(k.startswith("no") for k in OPT):
        print("\n".join(probs[:40]))
        raise SystemExit("hazards")
    return e.text()
```

```python
from emit import E, check_hazards
from asmlib import KA
from k1 import WS_PART, WS_R, WS_STAT, WS_IDX, f2u, rng

WS_YP = 17 << 20
NSL = 224
LOG2E = 1.4426950408889634


def wave_max_u32(e, v, tmp_s):
    for sh in (1, 2, 4, 8):
        e("s_nop 1")
        e(f"v_max_u32_dpp v{v}, v{v}, v{v} row_shr:{sh} row_mask:0xf bank_mask:0xf")
    e("s_nop 1")
    e(f"v_max_u32_dpp v{v}, v{v}, v{v} row_bcast:15 row_mask:0xa bank_mask:0xf")
    e("s_nop 1")
    e(f"v_max_u32_dpp v{v}, v{v}, v{v} row_bcast:31 row_mask:0xc bank_mask:0xf")
    e("s_nop 0")
    e(f"v_readlane_b32 s{tmp_s}, v{v}, 63")


def silu_bf16(e, dst, src, t0, t1, sM):
    e(f"v_mul_f32 v{t0}, {hex(f2u(-LOG2E))}, v{src}")
    e(f"v_exp_f32 v{t0}, v{t0}")
    e("s_nop 0")
    e(f"v_add_f32 v{t0}, 1.0, v{t0}")
    e(f"v_rcp_f32 v{t0}, v{t0}")
    e("s_nop 0")
    e(f"v_mul_f32 v{t0}, v{src}, v{t0}")
    e(f"v_cvt_pk_bf16_f32 v{t0}, v{t0}, v{t0}")
    e(f"v_and_b32 v{dst}, s{sM}, v{t0}")


def gen_km(label):
    e = E()
    done = f"L_{label}_done"
    S_X, S_WG, S_WU, S_WD, S_WS = 4, 8, 12, 16, 20
    sW, sF0, sM = 24, 25, 26
    sWIN = 32
    e(f"""
    s_cmp_ge_u32 s2, {NSL}
    s_cbranch_scc1 {done}
    s_load_dwordx2 s[4:5], s[0:1], {KA['x']}
    s_load_dwordx2 s[8:9], s[0:1], {KA['wg']}
    s_load_dwordx2 s[12:13], s[0:1], {KA['wu']}
    s_load_dwordx2 s[16:17], s[0:1], {KA['wd']}
    s_load_dwordx2 s[20:21], s[0:1], {KA['ws']}
    v_lshrrev_b32 v1, 6, v0
    v_mov_b32 v63, v0                    ; tid
    v_and_b32 v0, 63, v0
    v_readfirstlane_b32 s{sW}, v1
    s_lshl_b32 s{sF0}, s2, 4
    s_mov_b32 s{sM}, 0xffff0000
    s_waitcnt lgkmcnt(0)
    s_mov_b32 s6, 2097152
    s_mov_b32 s7, 0x20000
    s_mov_b32 s10, {512 * 1792 * 2}
    s_mov_b32 s11, 0x20000
    s_mov_b32 s14, {512 * 1792 * 2}
    s_mov_b32 s15, 0x20000
    s_mov_b32 s18, {1792 * 512 * 2}
    s_mov_b32 s19, 0x20000
    s_mov_b32 s22, 0x10000000
    s_mov_b32 s23, 0x20000
    """)
    e(f"""
    v_lshlrev_b32 v2, 5, v63
    v_add_u32 v2, {WS_R}, v2
    """)
    e.vm(f"buffer_load_dwordx4 v[8:11], v2, s[20:23], 0 offen", "r0")
    e.vm(f"buffer_load_dwordx4 v[12:15], v2, s[20:23], 0 offen offset:16", "r1")
    e(f"""
    s_lshl_b32 s27, s{sW}, 7
    v_add_u32 v3, s27, v0                ; row = 128 w + l
    v_mul_u32_u24 v3, 3584, v3
    v_add_u32 v3, s{sF0}, v3
    v_add_u32 v4, {64 * 3584}, v3
    s_lshl_b32 s28, s{sW}, 11            ; w*2048
    """)
    for (srd, base) in ((S_WG, 0), (S_WU, 8192)):
        for i in range(2):
            e(f"s_add_u32 m0, s28, {base + i * 1024}")
            e("s_nop 0")
            e.vm(f"buffer_load_dwordx4 v{3 + i}, s[{srd}:{srd + 3}], 0 offen lds", "wgu")
    e(f"""
    s_lshl_b32 s29, s2, 3
    s_lshl_b32 s30, s{sW}, 1
    s_add_u32 s29, s29, s30
    s_lshl_b32 s29, s29, 10              ; row*1024
    v_lshlrev_b32 v5, 4, v0
    """)
    for i in range(2):
        e(f"s_add_u32 m0, s28, {16384 + i * 1024}")
        e("s_nop 0")
        e.vm(f"buffer_load_dwordx4 v5, s[{S_WD}:{S_WD + 3}], s29 offen lds", "wd")
        e("s_add_u32 s29, s29, 1024")
    e.need(vtags=["r1"])
    e(f"v_lshlrev_b32 v6, 3, v63")
    e(f"v_sub_u32 v6, 2047, v6            ; 2047 - idx0")
    for i in range(8):
        r = 8 + i
        e(f"v_ashrrev_i32 v7, 31, v{r}")
        e(f"v_or_b32 v7, 0x80000000, v7")
        e(f"v_xor_b32 v{r}, v{r}, v7")
        e(f"v_and_b32 v{r}, s{sM}, v{r}")
        e(f"v_or_b32 v{r}, v{r}, v6")
        if i < 7:
            e(f"v_subrev_u32 v6, 1, v6")
    e("v_mov_b32 v20, 0")
    for rd in range(8):
        e("v_max3_u32 v16, v8, v9, v10")
        e("v_max3_u32 v17, v11, v12, v13")
        e("v_max3_u32 v16, v16, v14, v15")
        e("v_max_u32 v16, v16, v17")
        wave_max_u32(e, 16, 31)
        e("s_nop 1")
        for i in range(8):
            e(f"v_cmp_ne_u32 vcc, s31, v{8 + i}")
            e("s_nop 1")
            e(f"v_cndmask_b32 v{8 + i}, 0, v{8 + i}, vcc")
        e(f"v_writelane_b32 v20, s31, {rd}")
    e(f"""
    s_lshl_b32 s27, s{sW}, 5
    v_lshlrev_b32 v21, 2, v0
    v_add_u32 v21, s27, v21
    v_add_u32 v21, 24576, v21
    v_cmp_gt_u32 vcc, 8, v0
    s_nop 0
    s_and_saveexec_b64 s[40:41], vcc
    ds_write_b32 v21, v20
    s_mov_b64 exec, s[40:41]
    s_waitcnt lgkmcnt(0)
    s_barrier
    v_and_b32 v21, 31, v0
    v_lshlrev_b32 v21, 2, v21
    ds_read_b32 v22, v21 offset:24576
    v_cmp_gt_u32 vcc, 32, v0
    s_waitcnt lgkmcnt(0)
    s_nop 0
    v_cndmask_b32 v22, 0, v22, vcc
    """)
    for rd in range(8):
        e("v_mov_b32 v16, v22")
        wave_max_u32(e, 16, sWIN + rd)
        e("s_nop 1")
        e(f"v_cmp_ne_u32 vcc, s{sWIN + rd}, v22")
        e("s_nop 1")
        e(f"v_cndmask_b32 v22, 0, v22, vcc")
    e("v_and_b32 v24, 7, v0")
    e(f"v_mov_b32 v23, s{sWIN}")
    for j in range(1, 8):
        e(f"v_cmp_eq_u32 vcc, {j}, v24")
        e(f"v_mov_b32 v25, s{sWIN + j}")
        e("s_nop 0")
        e("v_cndmask_b32 v23, v23, v25, vcc")
    e(f"""
    v_and_b32 v26, 0x7ff, v23
    v_sub_u32 v26, 2047, v26
    v_and_b32 v27, s{sM}, v23
    v_ashrrev_i32 v28, 31, v27
    v_not_b32 v28, v28
    v_or_b32 v28, 0x80000000, v28
    v_xor_b32 v27, v27, v28
    v_and_b32 v27, s{sM}, v27             ; r (f32 bits)
    """)
    e(f"""
    v_mul_f32 v28, {hex(f2u(-LOG2E))}, v27
    v_exp_f32 v28, v28
    s_nop 0
    v_add_f32 v28, 1.0, v28
    v_rcp_f32 v28, v28
    s_nop 0
    v_cvt_pk_bf16_f32 v28, v28, v28
    v_and_b32 v28, s{sM}, v28             ; bf16(sigmoid(r))
    v_lshlrev_b32 v29, 2, v0
    v_add_u32 v29, {WS_IDX}, v29
    s_or_b32 s27, s2, s{sW}
    s_cmp_eq_u32 s27, 0
    s_cselect_b64 s[42:43], -1, 0
    v_cmp_gt_u32 vcc, 8, v0
    s_nop 1
    s_and_b64 vcc, vcc, s[42:43]
    s_and_saveexec_b64 s[40:41], vcc
    s_cbranch_execz L_km_nopub
    buffer_store_dword v26, v29, s[20:23], 0 offen
    buffer_store_dword v28, v29, s[20:23], 0 offen offset:32
    L_km_nopub:
    s_mov_b64 exec, s[40:41]
    """)
    e.vq += ["pub", "pub"]
    e(f"""
    v_lshrrev_b32 v30, 4, v0
    v_lshlrev_b32 v30, 4, v30             ; q4*16
    v_lshl_add_u32 v30, v26, 10, v30
    s_lshl_b32 s27, s{sW}, 8              ; 4w*64 bytes
    v_lshlrev_b32 v31, 2, v26
    v_add_u32 v31, {WS_STAT}, v31
    """)
    e.vm(f"buffer_load_dword v32, v31, s[20:23], 0 offen", "st")
    for i in range(4):
        e.vm(f"buffer_load_dwordx4 {rng('v', 36 + 4 * i, 4)}, v30, s[4:7], s27 offen offset:{64 * i}", ("xg", i))
    e.need(vtags=["st"])
    e(f"""
    v_lshlrev_b32 v33, 16, v32            ; mean
    v_and_b32 v34, s{sM}, v32             ; sd
    v_rcp_f32 v34, v34
    """)
    e.need(vtags=[("xg", 3)])
    for i in range(16):
        r = 36 + i
        e(f"""
        v_lshlrev_b32 v52, 16, v{r}
        v_and_b32 v53, s{sM}, v{r}
        v_sub_f32 v52, v52, v33
        v_sub_f32 v53, v53, v33
        v_cvt_pk_bf16_f32 v52, v52, v53
        v_and_b32 v53, s{sM}, v52
        v_lshlrev_b32 v52, 16, v52
        v_mul_f32 v52, v52, v34
        v_mul_f32 v53, v53, v34
        v_cvt_pk_bf16_f32 v{r}, v52, v53
        """)
    e.need(vtags=["wd"])
    e("s_barrier")
    e(f"""
    v_bfe_u32 v54, v0, 2, 2               ; r
    v_lshrrev_b32 v55, 4, v0              ; q4
    v_lshl_add_u32 v54, v55, 3, v54       ; 8 q4 + r
    v_lshlrev_b32 v54, 4, v54
    v_and_b32 v55, 1, v0
    v_lshl_add_u32 v54, v55, 3, v54       ; + (c&1)*8
    v_bfe_u32 v55, v0, 1, 1
    v_lshl_add_u32 v54, v55, 13, v54      ; + U
    s_lshl_b32 s27, s{sW}, 11
    v_add_u32 v54, s27, v54
    """)
    for i in range(4):
        for rd in range(2):
            e.lds(f"ds_read_b64_tr_b16 {rng('v', 64 + 4 * i + 2 * rd, 2)}, v54 offset:{i * 512 + rd * 64}", ("fa", i))
    for i in range(4):
        e.need(ltags=[("fa", i)])
        c = "0" if i == 0 else "v[56:59]"
        e(f"v_mfma_f32_16x16x32_bf16 v[56:59], {rng('v', 64 + 4 * i, 4)}, {rng('v', 36 + 4 * i, 4)}, {c}")
    e.nop(8)
    e(f"""
    s_lshl_b32 s27, s{sW}, 10
    v_lshlrev_b32 v60, 4, v0
    v_add_u32 v61, s27, v60
    ds_write_b128 v61, v[56:59] offset:25600
    s_waitcnt lgkmcnt(0)
    s_barrier
    ds_read_b128 v[64:67], v60 offset:25600
    ds_read_b128 v[68:71], v60 offset:{25600 + 1024}
    ds_read_b128 v[72:75], v60 offset:{25600 + 2048}
    ds_read_b128 v[76:79], v60 offset:{25600 + 3072}
    s_waitcnt lgkmcnt(0)
    """)
    for i in range(4):
        e(f"v_add_f32 v{64 + i}, v{64 + i}, v{68 + i}")
        e(f"v_add_f32 v{72 + i}, v{72 + i}, v{76 + i}")
        e(f"v_add_f32 v{64 + i}, v{64 + i}, v{72 + i}")
    for i in range(4):
        e(f"v_cvt_pk_bf16_f32 v{64 + i}, v{64 + i}, v{64 + i}")
        e(f"v_and_b32 v{64 + i}, s{sM}, v{64 + i}")
        e(f"v_mov_b32 v{68 + i}, v{64 + i}")
    e("s_nop 0")
    for i in range(4):
        e(f"v_permlane32_swap_b32 v{64 + i}, v{68 + i}")
    for i in range(4):
        silu_bf16(e, 72 + i, 64 + i, 76, 77, sM)
        e(f"v_mul_f32 v{72 + i}, v{72 + i}, v{68 + i}")
    e(f"""
    v_cvt_pk_bf16_f32 v80, v72, v73
    v_cvt_pk_bf16_f32 v81, v74, v75
    v_cmp_gt_u32 vcc, 32, v0
    v_mov_b32 v82, 0
    v_mov_b32 v83, 0
    v_cndmask_b32 v80, 0, v80, vcc
    v_cndmask_b32 v81, 0, v81, vcc
    """)
    e(f"""
    v_bfe_u32 v54, v0, 2, 2               ; r
    v_bfe_u32 v55, v0, 4, 1               ; q4 & 1
    v_lshl_add_u32 v54, v55, 2, v54       ; row 0..7
    v_lshlrev_b32 v54, 10, v54
    v_and_b32 v55, 3, v0
    v_lshl_add_u32 v54, v55, 3, v54       ; + c*8
    s_lshl_b32 s27, s{sW}, 8              ; 8w tiles * 32 B
    v_add_u32 v54, s27, v54
    v_mov_b32 v86, 0
    v_mov_b32 v87, 0
    """)
    for t in range(8):
        e.lds(f"ds_read_b64_tr_b16 {rng('v', 88 + 4 * t, 2)}, v54 offset:{16384 + t * 32}", ("da", t))
        e(f"v_mov_b32 v{90 + 4 * t}, 0")
        e(f"v_mov_b32 v{91 + 4 * t}, 0")
    for t in range(8):
        e.need(ltags=[("da", t)])
        e(f"v_mfma_f32_16x16x32_bf16 {rng('v', 120 + 4 * t, 4)}, {rng('v', 88 + 4 * t, 4)}, v[80:83], 0")
    e(f"""
    s_lshl_b32 s27, s2, 14
    s_lshl_b32 s28, s{sW}, 9              ; 8w*16*4 bytes
    s_add_u32 s27, s27, s28
    s_add_u32 s27, s27, {WS_YP}
    v_and_b32 v60, 15, v0
    v_lshlrev_b32 v61, 11, v60
    v_lshrrev_b32 v62, 4, v0
    v_lshl_add_u32 v61, v62, 4, v61
    v_add_u32 v61, s27, v61
    v_cmp_gt_u32 vcc, 8, v60
    s_nop 4
    s_and_saveexec_b64 s[40:41], vcc
    """)
    for t in range(8):
        e(f"buffer_store_dwordx4 {rng('v', 120 + 4 * t, 4)}, v61, s[20:23], 0 offen offset:{t * 64}")
    e("s_mov_b64 exec, s[40:41]")
    e(f"{done}:")
    e("s_endpgm")
    probs = check_hazards(e.l, "km")
    if probs:
        print("\n".join(probs[:40]))
        raise SystemExit("hazards")
    return e.text()


def final_math(e, n, vs, vx, vmean, vrsd, vupd, vout, t, sM):
    for i in range(n):
        a, b = t, t + 1
        e(f"v_cvt_pk_bf16_f32 v{vs[i]}, v{vs[i]}, v{vs[i]}")
        e(f"v_and_b32 v{vs[i]}, s{sM}, v{vs[i]}")
        e(f"v_sub_f32 v{a}, v{vx[i]}, v{vmean}")
        e(f"v_cvt_pk_bf16_f32 v{a}, v{a}, v{a}")
        e(f"v_and_b32 v{a}, s{sM}, v{a}")
        e(f"v_mul_f32 v{a}, v{a}, v{vrsd}")
        e(f"v_cvt_pk_bf16_f32 v{a}, v{a}, v{a}")
        e(f"v_and_b32 v{a}, s{sM}, v{a}")
        if vupd is not None:
            e(f"v_add_f32 v{a}, v{a}, v{vupd[i]}")
            e(f"v_cvt_pk_bf16_f32 v{a}, v{a}, v{a}")
            e(f"v_and_b32 v{a}, s{sM}, v{a}")
        silu_bf16(e, a, a, b, b, sM)
        e(f"v_mul_f32 v{a}, v{vs[i]}, v{a}")
        e(f"v_cvt_pk_bf16_f32 v{a}, v{a}, v{a}")
        e(f"v_and_b32 v{a}, s{sM}, v{a}")
        e(f"v_add_f32 v{vout[i]}, v{vx[i]}, v{a}")


def gen_k2(label):
    e = E()
    done = f"L_{label}_done"
    S_X, S_WS, S_OUT = 4, 8, 12
    sW, sM = 16, 17
    sIDX = 24
    e(f"""
    s_cmp_ge_u32 s2, 576
    s_cbranch_scc1 {done}
    s_load_dwordx2 s[4:5], s[0:1], {KA['x']}
    s_load_dwordx2 s[8:9], s[0:1], {KA['ws']}
    s_load_dwordx2 s[12:13], s[0:1], {KA['out']}
    v_lshrrev_b32 v1, 6, v0
    v_and_b32 v0, 63, v0
    s_mov_b32 s{sM}, 0xffff0000
    v_readfirstlane_b32 s{sW}, v1
    s_waitcnt lgkmcnt(0)
    s_add_u32 s18, s8, {WS_IDX}
    s_addc_u32 s19, s9, 0
    s_load_dwordx8 s[24:31], s[18:19], 0
    s_load_dwordx8 s[32:39], s[18:19], 32
    s_mov_b32 s6, 2097152
    s_mov_b32 s7, 0x20000
    s_mov_b32 s10, 0x10000000
    s_mov_b32 s11, 0x20000
    s_mov_b32 s14, 2097152
    s_mov_b32 s15, 0x20000
    s_cmp_ge_u32 s2, 512
    s_cbranch_scc1 L_k2_sel
    """)
    e(f"""
    s_lshl_b32 s20, s2, 2
    s_add_u32 s20, s20, s{sW}
    s_lshr_b32 s21, s20, 6                ; tb
    s_bfe_u32 s22, s20, {5 | (1 << 16)}   ; qb
    s_bfe_u32 s23, s20, {3 | (2 << 16)}   ; a
    s_and_b32 s20, s20, 7                 ; b
    s_lshl_b32 s40, s21, 6
    s_lshl_b32 s41, s22, 5
    s_add_u32 s40, s40, s41
    s_lshl_b32 s41, s23, 3
    s_add_u32 s40, s40, s41
    v_and_b32 v2, 7, v0
    v_add_u32 v3, s40, v2                 ; token
    v_lshrrev_b32 v4, 3, v0
    s_lshl_b32 s41, s20, 7
    v_lshlrev_b32 v4, 4, v4
    v_lshl_add_u32 v4, v3, 10, v4
    v_add_u32 v4, s41, v4
    s_lshl_b32 s41, s21, 16
    s_lshr_b32 s42, s20, 1
    s_lshl_b32 s42, s42, 14
    s_add_u32 s41, s41, s42
    s_and_b32 s42, s20, 1
    s_lshl_b32 s42, s42, 13
    s_add_u32 s41, s41, s42
    s_lshl_b32 s42, s22, 10
    s_add_u32 s41, s41, s42
    s_lshl_b32 s42, s23, 7
    s_add_u32 s41, s41, s42
    v_lshrrev_b32 v5, 4, v0
    v_lshlrev_b32 v5, 11, v5
    v_bfe_u32 v6, v0, 3, 1
    v_lshl_add_u32 v5, v6, 9, v5
    v_lshl_add_u32 v5, v2, 4, v5
    v_add_u32 v5, s41, v5
    v_lshlrev_b32 v7, 2, v3
    v_add_u32 v7, {WS_STAT}, v7
    """)
    for g in range(8):
        e(f"s_mov_b32 s{44 + g}, {g << 21}")
    e.vm(f"buffer_load_dword v8, v7, s[8:11], 0 offen", "st")
    e.vm(f"buffer_load_dwordx4 v[12:15], v4, s[4:7], 0 offen", "x")
    for g in range(8):
        e.vm(f"buffer_load_dwordx4 {rng('v', 16 + 4 * g, 4)}, v5, s[8:11], s{44 + g} offen", ("p", g))
    e("s_waitcnt lgkmcnt(0)")
    e(f"v_cmp_ne_u32 s[52:53], s24, v3")
    for j in range(1, 8):
        e(f"v_cmp_ne_u32 vcc, s{24 + j}, v3")
        e("s_nop 1")
        e(f"s_and_b64 s[52:53], s[52:53], vcc")
    for g in range(8):
        e.need(vtags=[("p", g)])
        for i in range(4):
            r = 16 + 4 * g + i
            if g == 0:
                e(f"v_lshlrev_b32 v{48 + 2 * i}, 16, v{r}")
                e(f"v_and_b32 v{49 + 2 * i}, s{sM}, v{r}")
            else:
                e(f"v_lshlrev_b32 v56, 16, v{r}")
                e(f"v_and_b32 v57, s{sM}, v{r}")
                e(f"v_add_f32 v{48 + 2 * i}, v{48 + 2 * i}, v56")
                e(f"v_add_f32 v{49 + 2 * i}, v{49 + 2 * i}, v57")
    e(f"""
    v_lshlrev_b32 v9, 16, v8              ; mean
    v_and_b32 v10, s{sM}, v8              ; sd
    v_rcp_f32 v10, v10
    """)
    for i in range(4):
        e(f"v_lshlrev_b32 v{60 + 2 * i}, 16, v{12 + i}")
        e(f"v_and_b32 v{61 + 2 * i}, s{sM}, v{12 + i}")
    final_math(e, 8, [48 + i for i in range(8)], [60 + i for i in range(8)], 9, 10, None,
               [60 + i for i in range(8)], 56, sM)
    for i in range(4):
        e(f"v_cvt_pk_bf16_f32 v{12 + i}, v{60 + 2 * i}, v{61 + 2 * i}")
    e(f"""
    s_and_saveexec_b64 s[54:55], s[52:53]
    s_cbranch_execz {done}
    buffer_store_dwordx4 v[12:15], v4, s[12:15], 0 offen
    s_branch {done}
    """)
    e("L_k2_sel:")
    e.vq, e.lq = [], []
    e(f"""
    s_sub_u32 s20, s2, 512
    s_lshr_b32 s21, s20, 3                ; j
    s_and_b32 s22, s20, 7                 ; cb
    s_waitcnt lgkmcnt(0)
    """)
    e("s_mov_b32 s40, s24")
    e("s_mov_b32 s41, s32")
    for j in range(1, 8):
        e(f"s_cmp_eq_u32 s21, {j}")
        e(f"s_cselect_b32 s40, s{24 + j}, s40")
        e(f"s_cselect_b32 s41, s{32 + j}, s41")
    e(f"""
    s_mul_i32 s42, s{sW}, {56 * 16384}
    s_lshl_b32 s43, s21, 11               ; j*2048
    s_add_u32 s42, s42, s43
    s_lshl_b32 s43, s22, 8                ; cb*64*4
    s_add_u32 s42, s42, s43
    s_add_u32 s42, s42, {WS_YP}
    v_lshrrev_b32 v2, 4, v0
    v_lshlrev_b32 v2, 14, v2
    v_and_b32 v3, 15, v0
    v_lshl_add_u32 v2, v3, 4, v2
    v_add_u32 v2, s42, v2
    s_mov_b32 s43, 0
    """)
    for i in range(14):
        e.vm(f"buffer_load_dwordx4 {rng('v', 16 + 4 * i, 4)}, v2, s[8:11], s43 offen", ("y", i))
        e(f"s_add_u32 s43, s43, {4 * 16384}")
    e(f"""
    s_lshl_b32 s43, s22, 7
    s_lshl_b32 s44, s40, 10
    s_add_u32 s43, s43, s44
    v_lshlrev_b32 v4, 3, v3
    v_add_u32 v4, s43, v4
    s_lshl_b32 s44, s40, 2
    s_add_u32 s44, s44, {WS_STAT}
    v_mov_b32 v7, s44
    s_lshr_b32 s44, s40, 6
    s_lshl_b32 s44, s44, 16
    s_lshr_b32 s45, s22, 1
    s_lshl_b32 s45, s45, 14
    s_add_u32 s44, s44, s45
    s_and_b32 s45, s22, 1
    s_lshl_b32 s45, s45, 13
    s_add_u32 s44, s44, s45
    s_bfe_u32 s45, s40, {5 | (1 << 16)}
    s_lshl_b32 s45, s45, 10
    s_add_u32 s44, s44, s45
    s_and_b32 s45, s40, 31
    s_lshl_b32 s45, s45, 4
    s_add_u32 s44, s44, s45
    v_lshrrev_b32 v5, 2, v3
    v_lshlrev_b32 v5, 11, v5
    v_bfe_u32 v6, v3, 1, 1
    v_lshl_add_u32 v5, v6, 9, v5
    v_and_b32 v6, 1, v3
    v_lshl_add_u32 v5, v6, 3, v5
    v_add_u32 v5, s44, v5
    """)
    for g in range(8):
        e(f"s_mov_b32 s{56 + g}, {g << 21}")
    e.vm(f"buffer_load_dword v8, v7, s[8:11], 0 offen", "st")
    e.vm(f"buffer_load_dwordx2 v[12:13], v4, s[4:7], 0 offen", "x")
    for g in range(8):
        e.vm(f"buffer_load_dwordx2 {rng('v', 80 + 2 * g, 2)}, v5, s[8:11], s{56 + g} offen", ("p", g))
    for i in range(14):
        e.need(vtags=[("y", i)])
        if i > 0:
            for q in range(4):
                e(f"v_add_f32 v{16 + q}, v{16 + q}, v{16 + 4 * i + q}")
    for q in range(4):
        e(f"v_mov_b32 v{20 + q}, v{16 + q}")
    e("s_nop 0")
    for q in range(4):
        e(f"v_permlane32_swap_b32 v{16 + q}, v{20 + q}")
    for q in range(4):
        e(f"v_add_f32 v{16 + q}, v{16 + q}, v{20 + q}")
    for q in range(4):
        e(f"v_mov_b32 v{20 + q}, v{16 + q}")
    e("s_nop 0")
    for q in range(4):
        e(f"v_permlane16_swap_b32 v{16 + q}, v{20 + q}")
    for q in range(4):
        e(f"v_add_f32 v{16 + q}, v{16 + q}, v{20 + q}")
    e(f"""
    s_lshl_b32 s43, s{sW}, 10
    v_lshlrev_b32 v24, 4, v0
    v_add_u32 v25, s43, v24
    ds_write_b128 v25, v[16:19]
    s_waitcnt lgkmcnt(0)
    s_barrier
    s_cmp_lg_u32 s{sW}, 0
    s_cbranch_scc1 {done}
    ds_read_b128 v[16:19], v24
    ds_read_b128 v[20:23], v24 offset:1024
    ds_read_b128 v[28:31], v24 offset:2048
    ds_read_b128 v[32:35], v24 offset:3072
    s_waitcnt lgkmcnt(0)
    """)
    for q in range(4):
        e(f"v_add_f32 v{16 + q}, v{16 + q}, v{20 + q}")
        e(f"v_add_f32 v{28 + q}, v{28 + q}, v{32 + q}")
        e(f"v_add_f32 v{16 + q}, v{16 + q}, v{28 + q}")
    for q in range(4):
        e(f"v_cvt_pk_bf16_f32 v{16 + q}, v{16 + q}, v{16 + q}")
        e(f"v_and_b32 v{16 + q}, s{sM}, v{16 + q}")
        e(f"v_mul_f32 v{16 + q}, s41, v{16 + q}")
        e(f"v_cvt_pk_bf16_f32 v{16 + q}, v{16 + q}, v{16 + q}")
        e(f"v_and_b32 v{16 + q}, s{sM}, v{16 + q}")
    e.need(vtags=[("p", 7)])
    for g in range(8):
        for i in range(2):
            r = 80 + 2 * g + i
            if g == 0:
                e(f"v_lshlrev_b32 v{48 + 2 * i}, 16, v{r}")
                e(f"v_and_b32 v{49 + 2 * i}, s{sM}, v{r}")
            else:
                e(f"v_lshlrev_b32 v56, 16, v{r}")
                e(f"v_and_b32 v57, s{sM}, v{r}")
                e(f"v_add_f32 v{48 + 2 * i}, v{48 + 2 * i}, v56")
                e(f"v_add_f32 v{49 + 2 * i}, v{49 + 2 * i}, v57")
    e(f"""
    v_lshlrev_b32 v9, 16, v8
    v_and_b32 v10, s{sM}, v8
    v_rcp_f32 v10, v10
    """)
    for i in range(2):
        e(f"v_lshlrev_b32 v{60 + 2 * i}, 16, v{12 + i}")
        e(f"v_and_b32 v{61 + 2 * i}, s{sM}, v{12 + i}")
    final_math(e, 4, [48 + i for i in range(4)], [60 + i for i in range(4)], 9, 10, [16 + i for i in range(4)],
               [60 + i for i in range(4)], 56, sM)
    for i in range(2):
        e(f"v_cvt_pk_bf16_f32 v{12 + i}, v{60 + 2 * i}, v{61 + 2 * i}")
    e(f"""
    v_cmp_gt_u32 vcc, 16, v0
    s_nop 0
    s_and_saveexec_b64 s[54:55], vcc
    buffer_store_dwordx2 v[12:13], v4, s[12:15], 0 offen
    """)
    e(f"{done}:")
    e("s_endpgm")
    probs = check_hazards(e.l, "k2")
    if probs:
        print("\n".join(probs[:40]))
        raise SystemExit("hazards")
    return e.text()
```

```python
import sys
sys.path.insert(0, "dev")
from asmlib import header, kstart, kdesc, NAME
import k1, moe

HDR = """; Kernarg layout (104 bytes, pointers only): x, k_cache, v_cache, wq, wo, B_x (unused), w_r, w_gate, w_up, w_down, out, debug, ws
"""

def build(path, opt=None, stamps=False, with_moe=True):
    opt = dict(map="C", gskew=1, dma_from=2) if opt is None else opt
    launches = [("mainfused_kernel", 256, 256, 163840)]
    if with_moe:
        launches.append(("moeffn_kernel", 224, 256, 32768))
    launches.append((NAME + "_kernel", 576, 256, 4096))
    s = HDR + header(launches)
    lab = "mainfused_kernel"
    s += kstart(lab) + k1.gen_k1(lab, stamps=stamps, opt=opt) + kdesc(lab, 512, accum=256)
    if with_moe:
        lab = "moeffn_kernel"
        s += kstart(lab) + moe.gen_km(lab) + kdesc(lab, 160, sgpr=64)
    lab = NAME + "_kernel"
    s += kstart(lab) + moe.gen_k2(lab) + kdesc(lab, 96, sgpr=72)
    open(path, "w").write(s)

if __name__ == "__main__":
    build("full.s")
```

```python
from emit import E, check_hazards
from asmlib import KA

RB = 65536
WSTR = 24576
SLOT = 8192
C_SCALE = 1.4426950408889634 * (128 ** -0.5)

WS_PART = 0
WS_R = 16 << 20
WS_STAT = WS_R + 8192
WS_H = WS_R + 65536
WS_IDX = WS_H + 32768
WS_TS = 32 << 20


def f2u(x):
    import struct
    return struct.unpack("<I", struct.pack("<f", x))[0]


S_X, S_WQ, S_K, S_V, S_WO, S_WS, S_WR = 4, 8, 12, 16, 20, 24, 28
sG, sTB, sW, sSK = 32, 33, 34, 35
sWQO, sWOO, sKO, sVO = 36, 37, 38, 39
sRING = 40
sCNT = 41
sT0, sT1, sT2, sT3 = 42, 43, 44, 45
sKSL, sVSL = 46, 47
sKD, sVD = 48, 49
sTRIP = 50
sGA = 52
sGB = 56
sGAO, sGBO = 60, 61
sGAM, sGBM = 62, 63
sMASK = 64
sPASS = 70
sKVB = 71
sKVT = 51
sDBG = 72
sSL = 98
sRDY = 99
sFP = 92
sTS = 74

vLANE = 0
vWQ = 1
vWO = 5
vKDM = 9
vVDM = 13
vAA = 14
vAB = 22
vBR = 30
vKR = 32
vVR = 40
vGA = 44
vGB = 48
vL = 52
vOW = 56
vPS = 57
vT = 58
vQ = 64
vS = 128
vP = 192
vNM = 224
vACC = 128

aA = 0
aB = 96
aF = 0
aO = 128


def rng(f, b, n):
    return f"{f}[{b}:{b + n - 1}]" if n > 1 else f"{f}{b}"


def Bset(setidx, tq):
    if setidx < 2:
        return rng("a", aB + setidx * 16 + tq * 4, 4)
    return rng("v", 64 + tq * 4, 4)


def Aset(setidx, dt):
    return rng("a", aA + setidx * 32 + dt * 4, 4)


def Ahalf(setidx, dt, rd):
    return rng("a", aA + setidx * 32 + dt * 4 + 2 * rd, 2)


def acc16(dt, tq):
    return rng("v", vACC + (dt * 4 + tq) * 4, 4)


OPT = {}


class Slots:
    def __init__(self, n):
        self.n = n
        self.f = [[] for _ in range(n + 1)]

    def at(self, i, fn):
        self.f[min(max(i, 0), self.n)].append(fn)


def gemm_step(e, p, phase, opts):
    j = p % 3
    jn = (p + 1) % 3
    va = vAA if phase == 1 else vAB
    rdoff = 1024 if phase == 1 else 2048
    sl = Slots(32)
    if opts.get("next", True):
        reads = []
        for dt in range(8):
            for rd in range(2):
                reads.append((dt, rd))
        spread = opts.get("aspread", 10)
        for n, (dt, rd) in enumerate(reads):
            def f(dt=dt, rd=rd):
                if OPT.get("noaread"):
                    return
                e.lds(f"ds_read_b64_tr_b16 {Ahalf(jn, dt, rd)}, v{va + dt} offset:{jn * SLOT + rd * rdoff}",
                      ("A", p + 1, dt))
            sl.at(n * spread // 16, f)
        for tq in range(4):
            def f(tq=tq):
                e.lds(f"ds_read_b128 {Bset(jn, tq)}, v{vBR} offset:{opts['boff_next'] + tq * 1024}", ("B", p + 1, tq))
            sl.at(spread + 1 + tq, f)
    for pos, fn in opts.get("fill", []):
        sl.at(pos, fn)
    if opts.get("next", True):
        e.need(vtags=opts.get("vneed"))
    for n in range(32):
        dt, tq = n // 4, n % 4
        need = [("A", p, dt), ("B", p, tq)]
        e.need(ltags=need)
        c = "0" if opts.get("first") else acc16(dt, tq)
        e(f"v_mfma_f32_16x16x32_bf16 {acc16(dt, tq)}, {Aset(j, dt)}, {Bset(j, tq)}, {c}")
        for fn in sl.f[n]:
            fn()
    for fn in sl.f[32]:
        fn()


def wdma(e, phase, i, tag):
    if OPT.get("nodma") and tag[1] > 3:
        e.vq.append(tag)
        return
    if phase == 1:
        e.vm(f"buffer_load_dwordx4 v{vWQ + i}, s[{S_WQ}:{S_WQ + 3}], s{sWQO} offen offset:{i * 1024} lds", tag)
    else:
        e.vm(f"buffer_load_dwordx4 v{vWO + i}, s[{S_WO}:{S_WO + 3}], s{sWOO} offen offset:{i * 1024} lds", tag)


def wdma_adv(e, phase):
    if phase == 1:
        e(f"s_add_u32 s{sWQO}, s{sWQO}, {16 * 8192}")
        e(f"s_and_b32 s{sWQO}, s{sWQO}, {512 * 8192 - 1}")
    else:
        e(f"s_add_u32 s{sT0}, s{sWOO}, {16 * 1024}")
        e(f"s_and_b32 s{sT0}, s{sT0}, {512 * 1024 - 1}")
        e(f"s_and_b32 s{sWOO}, s{sWOO}, {~(512 * 1024 - 1) & 0xffffffff}")
        e(f"s_or_b32 s{sWOO}, s{sWOO}, s{sT0}")


def half_dma(e, phase, slot, half, tag):
    def m0():
        e(f"s_add_u32 m0, s{sRING}, {slot * SLOT + half * 4096}")
    out = [m0]
    for i in range(4):
        out.append(lambda i=i: wdma(e, phase, i, tag))
    out.append(lambda: wdma_adv(e, phase))
    return out


def serial(e, fl):
    fl[0]()
    e("s_nop 0")
    for fn in fl[1:]:
        fn()


def place(fl, start, stride):
    res = [(start, fl[0])]
    for i in range(4):
        res.append((start + 1 + i * stride, fl[1 + i]))
    res.append((start + 1 + 3 * stride, fl[5]))
    return res


def kv_dma(e, which, tile_slot, tag):
    out = []
    if which == "K":
        out.append(lambda: e(f"s_add_u32 m0, s{sRING}, {tile_slot * SLOT}"))
        for i in range(4):
            out.append(lambda i=i: e.vm(
                f"buffer_load_dwordx4 v{vKDM + i}, s[{S_K}:{S_K + 3}], s{sKO} offen offset:{i * 1024} lds", tag))
        out.append(lambda: kv_adv(e, sKO))
    else:
        out.append(lambda: e(f"s_add_u32 m0, s{sRING}, {tile_slot * SLOT + 4096}"))
        for i in range(4):
            out.append(lambda i=i: e.vm(
                f"buffer_load_dwordx4 v{vVDM}, s[{S_V}:{S_V + 3}], s{sVO} offen offset:{i * 1024} lds", tag))
        out.append(lambda: kv_adv(e, sVO))
    return out


def kv_adv(e, sreg):
    e(f"s_sub_u32 s{sT0}, s{sreg}, s{sKVB}")
    e(f"s_add_u32 s{sT0}, s{sT0}, 16384")
    e(f"s_and_b32 s{sT0}, s{sT0}, {8 * 16384 - 1}")
    e(f"s_add_u32 s{sreg}, s{sT0}, s{sKVB}")


def gemm_pre(e, phase):
    va = vAA if phase == 1 else vAB
    rdoff = 1024 if phase == 1 else 2048
    e.need(vtags=[("W", 0, 0), ("W", 0, 1)])
    for tq in range(4):
        e.lds(f"ds_read_b128 {Bset(0, tq)}, v{vBR} offset:{tq * 1024}", ("B", 0, tq))
    for dt in range(8):
        for rd in range(2):
            e.lds(f"ds_read_b64_tr_b16 {Ahalf(0, dt, rd)}, v{va + dt} offset:{rd * rdoff}", ("A", 0, dt))


def gemm_main(e, phase, tail_fill):
    e.need(ltags=[("A", 0, 7)])
    serial(e, half_dma(e, phase, 0, 0, ("W", 3, 0)))

    def step_opts(p, boff_next):
        fill = []
        if p + 3 <= 15:
            fill += place(half_dma(e, phase, p % 3, 1, ("W", p + 3, 1)), 1, 4)
        if p + 4 <= 15:
            fl = half_dma(e, phase, (p + 1) % 3, 0, ("W", p + 4, 0))

            def guard(p=p):
                e.need(ltags=[("A", p + 1, 7)])
            fill += [(17, guard)] + place(fl, 17, 4)
        return dict(first=(p == 0), next=(p < 15), boff_next=boff_next, fill=fill,
                    vneed=[("W", p + 1, 0), ("W", p + 1, 1)])

    o = step_opts(0, 1 * 4096)
    gemm_step(e, 0, phase, o)
    lab = f"L_g{phase}_loop"
    e(f"s_mov_b32 s{sCNT}, 3")
    e(f"v_add_u32 v{vBR}, {1 * 4096}, v{vBR}")
    lq0, vq0 = list(e.lq), list(e.vq)
    e(f"{lab}:")
    n0 = len(e.l)
    for u in range(3):
        p = 1 + u
        o = step_opts(p, (u + 1) * 4096)
        if u == 2:
            o["fill"] = o["fill"] + [(29, lambda: e(f"v_add_u32 v{vBR}, {3 * 4096}, v{vBR}")),
                                     (31, lambda: e(f"s_sub_u32 s{sCNT}, s{sCNT}, 1")),
                                     (31, lambda: e(f"s_cmp_lg_u32 s{sCNT}, 0"))]
        gemm_step(e, p, phase, o)
    e(f"s_cbranch_scc1 {lab}")
    body = e.l[n0:]
    probs = check_hazards(body + body, f"gemm{phase} loop x2")
    assert not probs or any(k.startswith("no") for k in OPT), "\n".join(probs[:10])
    sh = lambda q, d: [(t[0], t[1] + d) + tuple(t[2:]) if t else t for t in q]
    assert sh(lq0, 3) == e.lq or OPT.get('noaread'), (lq0, e.lq)
    assert sh(vq0, 3) == e.vq, (vq0, e.vq)
    e.lq, e.vq = sh(e.lq, 6), sh(e.vq, 6)
    for p in range(10, 16):
        o = step_opts(p, (p - 10 + 1) * 4096)
        o["fill"] = o["fill"] + tail_fill(p)
        gemm_step(e, p, phase, o)


def Sreg(par, qb, i=None):
    b = vS + par * 32 + qb * 16
    return rng("v", b, 16) if i is None else f"v{b + i}"


def Preg(par, qb, t):
    return rng("v", vP + par * 16 + qb * 8 + t * 4, 4)


def Qreg(s16, qb):
    return rng("v", vQ + (s16 * 2 + qb) * 4, 4)


def Oreg(db, qb):
    return rng("a", aO + (db * 2 + qb) * 16, 16)


def Fbuf(n, half=None):
    b = aF + (n % 8) * 4
    return rng("a", b, 4) if half is None else rng("a", b + 2 * half, 2)


def k_read(e, b, s16):
    if OPT.get("nokvread"):
        return
    e.lds(f"ds_read_b128 {Fbuf(s16)}, v{vKR + s16} offset:{(b & 1) * 49152}", ("K", b, s16))


def v_read(e, b, f):
    t, db = f // 4, f % 4
    if OPT.get("nokvread"):
        return
    for rd in range(2):
        e.lds(f"ds_read_b64_tr_b16 {Fbuf(8 + f, rd)}, v{vVR + db} offset:{t * WSTR + rd * 2048}", ("V", b, f))


def sm_ops(e, b):
    par = b & 1
    ops = []
    S = lambda x: Sreg(par, x // 16, x % 16)
    exp = lambda x: (lambda: e(f"v_exp_f32 {S(x)}, {S(x)}") if not OPT.get("noexp") else None)
    add = lambda x: (lambda: e(f"v_add_f32 v{vL + (x // 16) * 2 + (x & 1)}, v{vL + (x // 16) * 2 + (x & 1)}, {S(x)}"))
    cvt = lambda k: (lambda: e(f"v_cvt_pk_bf16_f32 v{vP + par * 16 + k}, {S(2 * k)}, {S(2 * k + 1)}"))
    if OPT.get("nosm"):
        return []
    for k in range(16):
        ops.append((2 * k, exp(2 * k)))
        if k > 0:
            ops.append((2 * k, add(2 * k - 2)))
            ops.append((2 * k, cvt(k - 1)))
        ops.append((2 * k + 1, exp(2 * k + 1)))
        if k > 0:
            ops.append((2 * k + 1, add(2 * k - 1)))
    ops.append((32, add(30)))
    ops.append((32, add(31)))
    ops.append((32, cvt(15)))
    return ops


def p2_iter(e, b, qk=True, sm=True, pv=True, look="K", fill=(), vpre=False, smstart=0):
    mf = []
    if qk:
        par = (b + 1) & 1
        for s16 in range(8):
            for qb in range(2):
                c = rng("v", vNM + qb * 16, 16) if s16 == 0 else Sreg(par, qb)
                mf.append((f"v_mfma_f32_32x32x16_bf16 {Sreg(par, qb)}, {Fbuf(s16)}, {Qreg(s16, qb)}, {c}",
                           ("K", b + 1, s16), s16))
    if pv:
        par = (b - 1) & 1
        for f in range(8):
            t, db = f // 4, f % 4
            for qb in range(2):
                mf.append((f"v_mfma_f32_32x32x16_bf16 {Oreg(db, qb)}, {Fbuf(8 + f)}, {Preg(par, qb, t)}, {Oreg(db, qb)}",
                           ("V", b - 1, f), 8 + f))
    n = len(mf)
    sl = Slots(n)
    if qk and pv:
        for f in range(4, 8):
            sl.at(2 * (f - 4) + 1, lambda f=f: k_read(e, b + 1, f))
        for f in range(8):
            sl.at(2 * (f + 4) + 1, lambda f=f: v_read(e, b - 1, f))
        if look == "K":
            for f in range(4):
                sl.at(24 + 2 * f + 1, lambda f=f: k_read(e, b + 2, f))
    elif qk:
        for f in range(4, 8):
            sl.at(2 * (f - 4) + 1, lambda f=f: k_read(e, b + 1, f))
        if look == "K":
            for f in range(4):
                sl.at(8 + 2 * f + 1, lambda f=f: k_read(e, b + 2, f))
    else:
        if vpre:
            for f in range(4):
                v_read(e, b - 1, f)
        for f in range(4, 8):
            sl.at(2 * (f - 4) + 1, lambda f=f: v_read(e, b - 1, f))
        if look == "V":
            for f in range(4):
                sl.at(8 + 2 * f + 1, lambda f=f: v_read(e, b, f))
    if sm:
        ops = sm_ops(e, b)
        for (s, fn) in ops:
            sl.at(smstart + s * (n - smstart) // 32 if s < 32 else n, fn)
    for (s, fn) in fill:
        sl.at(s, fn)
    if vpre and sm:
        pass
    for i, (txt, tag, fi) in enumerate(mf):
        if i % 4 == 0:
            tags = [tag]
            if i + 2 < n:
                tags.append(mf[i + 2][1])
            e.need(ltags=tags)
        e(txt)
        for fn in sl.f[i]:
            fn()
    for fn in sl.f[n]:
        fn()


def gen_k1(label, stamps=False, debug=None, opt=None):
    OPT.clear()
    OPT.update(opt or {})
    e = E()
    nst = [0]

    def stamp(name, wait=True):
        if not stamps:
            return
        k = nst[0]
        assert k < 9
        e(f"{stamps} s[{sTS + 2 * k}:{sTS + 2 * k + 1}]   ; stamp {k} {name}")
        if wait:
            e.wait_all(vm=False)
        nst[0] += 1
    done = f"L_{label}_done"
    e(f"""
    s_cmp_ge_u32 s2, 256
    s_cbranch_scc1 {done}
    s_load_dwordx2 s[4:5], s[0:1], 0
    s_load_dwordx2 s[12:13], s[0:1], 8
    s_load_dwordx2 s[16:17], s[0:1], 16
    s_load_dwordx2 s[8:9], s[0:1], 24
    s_load_dwordx2 s[20:21], s[0:1], {KA['wo']}
    s_load_dwordx2 s[28:29], s[0:1], {KA['wr']}
    s_load_dwordx2 s[24:25], s[0:1], {KA['ws']}
    s_load_dwordx2 s[{sDBG}:{sDBG + 1}], s[0:1], {KA['dbg']}
    s_load_dwordx4 s[{sFP}:{sFP + 3}], s[0:1], {KA['wg']}
    s_load_dwordx2 s[{sFP + 4}:{sFP + 5}], s[0:1], {KA['wd']}
    """)
    stamp("start", wait=False)
    e(f"""
    v_lshrrev_b32 v{vT}, 6, v0
    v_and_b32 v{vLANE}, 63, v0
    v_readfirstlane_b32 s{sW}, v{vT}
    """)
    mp = OPT.get("map", "A")
    if mp == "A":
        e(f"""
        s_and_b32 s{sG}, s2, 7
        s_lshr_b32 s{sTB}, s2, 3
        s_and_b32 s{sSK}, s{sTB}, 15
        s_and_b32 s{sKVT}, s{sTB}, 7
        """)
    elif mp == "B":
        e(f"""
        s_and_b32 s{sT0}, s2, 3
        s_lshl_b32 s{sT0}, s{sT0}, 1
        s_bfe_u32 s{sT1}, s2, {3 | (1 << 16)}
        s_or_b32 s{sG}, s{sT0}, s{sT1}
        s_bfe_u32 s{sT0}, s2, {2 | (1 << 16)}
        s_lshl_b32 s{sT0}, s{sT0}, 4
        s_lshr_b32 s{sT1}, s2, 4
        s_or_b32 s{sTB}, s{sT0}, s{sT1}
        s_and_b32 s{sSK}, s{sTB}, 7
        s_lshl_b32 s{sSK}, s{sSK}, 1
        s_and_b32 s{sKVT}, s{sTB}, 7
        """)
    elif mp == "C":
        e(f"""
        s_and_b32 s{sT0}, s2, 1
        s_lshl_b32 s{sT0}, s{sT0}, 2
        s_bfe_u32 s{sT1}, s2, {3 | (2 << 16)}
        s_or_b32 s{sG}, s{sT0}, s{sT1}
        s_bfe_u32 s{sT0}, s2, {1 | (2 << 16)}
        s_lshl_b32 s{sT0}, s{sT0}, 3
        s_lshr_b32 s{sT1}, s2, 5
        s_or_b32 s{sTB}, s{sT0}, s{sT1}
        s_and_b32 s{sSK}, s{sTB}, 7
        s_lshl_b32 s{sSK}, s{sSK}, 1
        s_and_b32 s{sKVT}, s{sTB}, 7
        """)
        if OPT.get("s4"):
            e(f"""
            s_and_b32 s{sSK}, s{sTB}, 3
            s_lshl_b32 s{sSK}, s{sSK}, 2
            """)
        if OPT.get("gskew"):
            e(f"""
            s_and_b32 s{sT0}, s{sG}, 3
            s_lshl_b32 s{sT0}, s{sT0}, 2
            s_add_u32 s{sSK}, s{sSK}, s{sT0}
            s_and_b32 s{sSK}, s{sSK}, 15
            """)
    L = vLANE
    t0, t1, t2, t3, t4, t5 = vT, vT + 1, vT + 2, vT + 3, vT + 4, vT + 5
    XV0, XV1 = 56, 57
    e(f"""
    v_and_b32 v{t2}, 15, v{L}
    v_lshrrev_b32 v{t3}, 4, v{L}
    s_lshl_b32 s{sT0}, s{sTB}, 6
    s_lshl_b32 s{sT1}, s{sW}, 4
    s_add_u32 s{sT0}, s{sT0}, s{sT1}
    v_lshrrev_b32 v{t0}, 3, v{L}
    v_add_u32 v{t0}, s{sT0}, v{t0}
    v_and_b32 v{t1}, 7, v{L}
    v_xor_b32 v{t1}, v{t1}, v{t3}
    v_lshlrev_b32 v{t1}, 4, v{t1}
    v_lshl_add_u32 v{XV0}, v{t0}, 10, v{t1}
    v_xor_b32 v{XV1}, 64, v{XV0}              ; chunk ^ 4
    v_add_u32 v{XV1}, 8192, v{XV1}            ; +8 tokens
    s_mul_i32 s{sRING}, s{sW}, {WSTR}
    s_add_u32 s{sRING}, s{sRING}, {RB}
    s_lshl_b32 s{sT3}, s{sW}, 10              ; w*1024
    s_lshl_b32 s101, s{sSK}, 6
    s_waitcnt lgkmcnt(0)
    """)
    for (dst, size) in [(S_X, 2097152), (S_K, 4194304), (S_V, 4194304), (S_WQ, 4194304),
                        (S_WO, 4194304), (S_WR, 1024), (S_WS, 0x10000000)]:
        e(f"""
        s_mov_b32 s{dst + 2}, {size}
        s_mov_b32 s{dst + 3}, 0x20000
        """)
    stamp("kernarg", wait=True)
    def xdma(u):
        for hb in range(2):
            e(f"s_add_u32 m0, s{sT3}, {(2 * u + hb) * 4096}")
            e("s_nop 0")
            e.vm(f"buffer_load_dwordx4 v{XV0 + hb}, s[{S_X}:{S_X + 3}], s101 offen lds", ("x", u, hb))
        e(f"s_add_u32 s101, s101, 128")
        e(f"s_and_b32 s101, s101, 1023")

    def wrdma():
        e(f"""
        s_lshl_b32 s{sT0}, s{sSK}, 2
        v_add_u32 v58, s{sT0}, v{L}
        v_and_b32 v58, 63, v58
        v_lshlrev_b32 v58, 4, v58
        s_add_u32 m0, s{sRING}, {2 * SLOT + 4096}
        s_nop 0
        """)
        e.vm(f"buffer_load_dwordx4 v58, s[{S_WR}:{S_WR + 3}], 0 offen lds", ("wr", 0))
    NU0 = OPT.get("nu0", 6)
    for u in range(NU0):
        xdma(u)
    e(f"""
    s_lshl_b32 s{sT0}, s{sG}, 2
    s_add_u32 s{sT0}, s{sT0}, s{sW}
    s_lshl_b32 s{sT0}, s{sT0}, 8            ; head*256
    v_lshlrev_b32 v{t4}, 1, v{t3}
    v_xor_b32 v{t4}, v{t4}, v{t2}
    v_lshlrev_b32 v{t5}, 13, v{t3}           ; rr*8192
    v_add_u32 v{t5}, s{sT0}, v{t5}
    v_lshl_add_u32 v{vWQ}, v{t4}, 4, v{t5}
    v_add_u32 v{vWQ + 1}, {32768 - 1024}, v{vWQ}
    v_xor_b32 v{t4}, 8, v{t4}
    v_lshl_add_u32 v{vWQ + 2}, v{t4}, 4, v{t5}
    v_add_u32 v{vWQ + 2}, {2 * (32768 - 1024)}, v{vWQ + 2}
    v_add_u32 v{vWQ + 3}, {32768 - 1024}, v{vWQ + 2}
    s_lshl_b32 s{sWQO}, s{sSK}, 18
    """)
    wq_pre = []
    for p in range(3):
        for h in range(2):
            fl = half_dma(e, 1, p, h, ("W", p, h))
            for i in range(4):
                grp = []
                if i == 0:
                    grp += [fl[0], lambda: e("s_nop 0")]
                grp.append(fl[1 + i])
                if i == 3:
                    grp.append(fl[5])
                wq_pre.append(grp)
    if OPT.get("early_dma", 0):
        for grp in wq_pre[:OPT["early_dma"]]:
            for fn in grp:
                fn()
        wq_pre = wq_pre[OPT["early_dma"]:]


    r_, c_ = 60, 61
    A0, A1, A2, A3, A4, A5 = 128, 129, 130, 131, 132, 133
    e(f"""
    v_bfe_u32 v{A0}, v{L}, 2, 2              ; r
    v_and_b32 v{A1}, 3, v{L}                 ; c
    v_lshrrev_b32 v{A2}, 4, v{L}             ; q4
    v_and_b32 v{A3}, 1, v{A2}
    v_lshl_or_b32 v{A3}, v{A3}, 2, v{A0}     ; phi
    v_lshlrev_b32 v{A3}, 1, v{A3}            ; f
    v_lshrrev_b32 v{A4}, 1, v{A1}
    v_xor_b32 v{A3}, v{A3}, v{A4}            ; chunk
    v_lshlrev_b32 v{A3}, 4, v{A3}
    v_and_b32 v{A4}, 1, v{A1}
    v_lshl_or_b32 v{A3}, v{A4}, 3, v{A3}     ; + (c&1)*8
    v_lshl_add_u32 v{A4}, v{A2}, 3, v{A0}    ; row
    v_lshl_add_u32 v{A3}, v{A4}, 8, v{A3}
    v_add_u32 v{vAA}, s{sRING}, v{A3}
    """)
    for dt in range(1, 8):
        e(f"v_xor_b32 v{vAA + dt}, {32 * dt}, v{vAA}")
    e(f"""
    v_and_b32 v{A3}, 1, v{A2}
    v_lshl_or_b32 v{A3}, v{A3}, 2, v{A0}
    v_lshrrev_b32 v{A4}, 1, v{A2}
    v_lshl_or_b32 v{A4}, v{A4}, 4, v{A3}     ; row
    v_lshlrev_b32 v{A3}, 1, v{A3}
    v_lshrrev_b32 v{A5}, 1, v{A1}
    v_xor_b32 v{A3}, v{A3}, v{A5}
    v_lshlrev_b32 v{A3}, 4, v{A3}
    v_and_b32 v{A5}, 1, v{A1}
    v_lshl_or_b32 v{A3}, v{A5}, 3, v{A3}
    v_lshl_add_u32 v{A3}, v{A4}, 8, v{A3}
    v_add_u32 v{vAB}, s{sRING}, v{A3}
    """)
    for dt in range(1, 8):
        e(f"v_xor_b32 v{vAB + dt}, {32 * dt}, v{vAB}")
    e(f"""
    v_lshlrev_b32 v{vBR}, 4, v{L}            ; B read: X + l*16
    v_and_b32 v{A3}, 15, v{L}
    v_lshlrev_b32 v{A4}, 1, v{A2}
    v_xor_b32 v{A4}, v{A4}, v{A3}
    s_lshl_b32 s{sT0}, s{sW}, 8
    v_lshlrev_b32 v{A5}, 10, v{A2}
    v_add_u32 v{A5}, s{sT0}, v{A5}
    v_lshl_add_u32 v{vWO}, v{A4}, 4, v{A5}
    v_add_u32 v{vWO + 2}, {2 * 3072}, v{vWO}
    v_xor_b32 v{A4}, 8, v{A4}
    v_lshl_add_u32 v{vWO + 1}, v{A4}, 4, v{A5}
    v_add_u32 v{vWO + 1}, 3072, v{vWO + 1}
    v_add_u32 v{vWO + 3}, {2 * 3072}, v{vWO + 1}
    s_lshl_b32 s{sWOO}, s{sG}, 19
    s_lshl_b32 s{sT0}, s{sSK}, 15
    s_add_u32 s{sWOO}, s{sWOO}, s{sT0}
    v_xor_b32 v{A4}, v{A2}, v{A3}            ; (l&15)^rr
    v_lshlrev_b32 v{A5}, 8, v{A2}
    v_lshl_add_u32 v{vKDM}, v{A4}, 4, v{A5}
    v_xor_b32 v{vKDM + 1}, 64, v{vKDM}
    v_xor_b32 v{vKDM + 2}, 128, v{vKDM}
    v_xor_b32 v{vKDM + 3}, 192, v{vKDM}
    v_lshlrev_b32 v{A4}, 2, v{A2}
    v_xor_b32 v{A4}, v{A4}, v{A3}
    v_lshl_add_u32 v{vVDM}, v{A4}, 4, v{A5}
    v_lshrrev_b32 v{A4}, 5, v{L}             ; h
    v_xor_b32 v{A4}, v{A4}, v{A3}
    v_lshlrev_b32 v{A4}, 4, v{A4}
    v_lshl_add_u32 v{A4}, v{A3}, 8, v{A4}
    v_and_b32 v{A5}, 1, v{A2}
    v_mul_u32_u24 v{A5}, {WSTR}, v{A5}
    v_add_u32 v{A4}, v{A4}, v{A5}
    v_add_u32 v{vKR}, {RB + 1 * SLOT}, v{A4}
    """)
    for s16 in range(1, 8):
        e(f"v_xor_b32 v{vKR + s16}, {32 * s16}, v{vKR}")
    e(f"""
    v_and_b32 v{A4}, 1, v{A2}
    v_lshlrev_b32 v{A4}, 1, v{A4}
    v_lshrrev_b32 v{A5}, 1, v{A1}
    v_or_b32 v{A4}, v{A4}, v{A5}
    v_lshlrev_b32 v{A5}, 2, v{A0}
    v_xor_b32 v{A4}, v{A4}, v{A5}
    v_lshlrev_b32 v{A4}, 4, v{A4}
    v_and_b32 v{A5}, 1, v{A1}
    v_lshl_or_b32 v{A4}, v{A5}, 3, v{A4}
    v_lshrrev_b32 v{A5}, 5, v{L}
    v_lshl_add_u32 v{A5}, v{A5}, 2, v{A0}    ; 4h + r
    v_lshl_add_u32 v{A4}, v{A5}, 8, v{A4}
    v_add_u32 v{vVR}, {RB + 4096 + 1 * SLOT}, v{A4}
    """)
    for db in range(1, 4):
        e(f"v_xor_b32 v{vVR + db}, {64 * db}, v{vVR}")
    e(f"""
    """)
    for u in range(NU0, 8):
        xdma(u)
    wrdma()
    e(f"""
    v_lshlrev_b32 v{vOW}, 4, v{A3}
    v_lshrrev_b32 v{A4}, 5, v{L}
    v_lshl_add_u32 v{vOW}, v{A4}, 8, v{vOW}
    v_and_b32 v{A4}, 1, v{A2}
    v_lshl_add_u32 v{vOW}, v{A4}, 10, v{vOW}
    """)
    e(f"""
    s_lshl_b32 s{sT0}, s{sG}, 5
    s_add_u32 s{sT0}, s{sT0}, s{sTB}
    s_lshl_b32 s{sT0}, s{sT0}, 2
    s_add_u32 s{sT0}, s{sT0}, s{sW}
    s_lshl_b32 s{sT0}, s{sT0}, 14
    v_lshlrev_b32 v{vPS}, 4, v{L}
    v_add_u32 v{vPS}, s{sT0}, v{vPS}
    s_lshl_b32 s{sKVB}, s{sG}, 19
    s_lshl_b32 s{sT0}, s{sW}, 12
    s_add_u32 s{sKVB}, s{sKVB}, s{sT0}
    s_add_u32 s{sKVB}, s{sKVB}, {1536 * 256}
    s_lshl_b32 s{sT0}, s{sKVT}, 14
    s_add_u32 s{sKO}, s{sKVB}, s{sT0}
    s_mov_b32 s{sVO}, s{sKO}
    v_cmp_eq_u32 s[{sMASK}:{sMASK + 1}], 1, v{A1}
    v_cmp_eq_u32 s[{sMASK + 2}:{sMASK + 3}], 2, v{A1}
    v_cmp_eq_u32 s[{sMASK + 4}:{sMASK + 5}], 3, v{A1}
    v_cmp_eq_u32 s[98:99], v{A2}, v{A0}
    """)
    e(f"v_mov_b32 v{A5}, 0x3f803f80")
    for i in range(4):
        e(f"v_accvgpr_write_b32 a{64 + i}, v{A5}")
    e(f"s_mov_b32 s100, 0xffff0000")
    e("s_nop 0")
    SUM, GRM = 68, 72
    e(f"""
    v_and_b32 v58, 15, v{L}                  ; tok16
    v_lshrrev_b32 v59, 4, v{L}               ; q4
    v_bfe_u32 v60, v58, 1, 3                 ; swz
    v_xor_b32 v59, v59, v60
    v_lshlrev_b32 v59, 4, v59
    v_and_b32 v60, 7, v58
    v_lshl_add_u32 v59, v60, 7, v59
    v_lshrrev_b32 v60, 3, v58
    v_lshl_add_u32 v59, v60, 12, v59
    v_add_u32 v62, s{sT3}, v59
    v_xor_b32 v63, 64, v62
    """)

    def stat_frag(p):
        e.need(ltags=[("xr", p)])
        xf = rng("v", vQ + 4 * p, 4)
        c1 = "0" if p == 0 else rng("a", SUM, 4)
        c2 = "0" if p == 0 else rng("a", GRM, 4)
        e(f"v_mfma_f32_16x16x32_bf16 {rng('a', SUM, 4)}, a[64:67], {xf}, {c1}")
        e(f"v_mfma_f32_16x16x32_bf16 {rng('a', GRM, 4)}, {xf}, {xf}, {c2}")
        for i in range(4):
            src = vQ + 4 * p + i
            dst = 128 + 8 * p + 2 * i
            e(f"v_lshlrev_b32 v{dst}, 16, v{src}")
            e(f"v_and_b32 v{dst + 1}, s100, v{src}")

    for u in range(8):
        e.need(vtags=[("x", u, 1)])
        for par in range(2):
            e.lds(f"ds_read_b128 {rng('v', vQ + 4 * (2 * u + par), 4)}, v{62 + par} offset:{u * 8192}", ("xr", 2 * u + par))
        for k in range(2):
            if wq_pre and u >= OPT.get("dma_from", 0):
                for fn in wq_pre.pop(0):
                    fn()
        if u > 0:
            stat_frag(2 * u - 2)
            stat_frag(2 * u - 1)
    e.need(vtags=[("wr", 0)])
    e(f"""
    v_lshrrev_b32 v58, 4, v{L}
    v_lshlrev_b32 v58, 4, v58
    v_add_u32 v58, s{sRING}, v58
    """)
    for p in range(16):
        e.lds(f"ds_read_b128 {rng('a', 128 + 4 * p, 4)}, v58 offset:{2 * SLOT + 4096 + p * 64}", ("wrf", p))
    stat_frag(14)
    stat_frag(15)
    e.nop(6)
    if not OPT.get("tailstamps"):
        stamp("x15_stats")
    s1, s2_, u0, u1, u2, u3 = 58, 59, 60, 61, 62, 63
    e(f"""
    v_accvgpr_read_b32 v{s1}, a{SUM}
    v_accvgpr_read_b32 v{u0}, a{GRM}
    v_accvgpr_read_b32 v{u1}, a{GRM + 1}
    v_accvgpr_read_b32 v{u2}, a{GRM + 2}
    v_accvgpr_read_b32 v{u3}, a{GRM + 3}
    v_cndmask_b32 v{u0}, v{u0}, v{u1}, s[{sMASK}:{sMASK + 1}]
    v_cndmask_b32 v{u0}, v{u0}, v{u2}, s[{sMASK + 2}:{sMASK + 3}]
    v_cndmask_b32 v{u0}, v{u0}, v{u3}, s[{sMASK + 4}:{sMASK + 5}]
    v_cndmask_b32 v{u0}, 0, v{u0}, s[98:99]
    v_mov_b32 v{u1}, v{u0}
    s_nop 1
    v_permlane32_swap_b32 v{u0}, v{u1}
    s_nop 0
    v_add_f32 v{u0}, v{u0}, v{u1}
    v_mov_b32 v{u1}, v{u0}
    s_nop 1
    v_permlane16_swap_b32 v{u0}, v{u1}
    s_nop 0
    v_add_f32 v{s2_}, v{u0}, v{u1}
    v_mul_f32 v{s1}, {hex(f2u(1.0 / 512))}, v{s1}     ; mean
    v_mul_f32 v{s2_}, {hex(f2u(1.0 / 512))}, v{s2_}
    v_fma_f32 v{s2_}, -v{s1}, v{s1}, v{s2_}      ; var
    v_max_f32 v{s2_}, 0, v{s2_}
    v_cvt_pk_bf16_f32 v{u0}, v{s1}, v{s2_}
    v_and_b32 v{u1}, s100, v{u0}
    v_add_f32 v{u1}, {hex(f2u(1e-5))}, v{u1}
    v_cvt_pk_bf16_f32 v{u1}, v{u1}, v{u1}
    v_and_b32 v{u1}, s100, v{u1}
    v_sqrt_f32 v{u1}, v{u1}
    v_lshlrev_b32 v{s1}, 16, v{u0}             ; mean_b f32
    v_cvt_pk_bf16_f32 v{u1}, v{u1}, v{u1}
    v_and_b32 v{u2}, s100, v{u1}                ; sd_b f32
    v_rcp_f32 v{u3}, v{u2}
    v_and_b32 v{u0}, 0xffff, v{u0}
    v_or_b32 v31, v{u0}, v{u2}
    v_mul_f32 v{u3}, {hex(f2u(C_SCALE))}, v{u3}     ; rsc
    v_mul_f32 v{u2}, v{s1}, v{u3}
    v_sub_f32 v{u2}, 0, v{u2}
    """)
    e(f"""
    v_mov_b32 v60, v{u3}
    v_mov_b32 v61, v{u3}
    v_mov_b32 v63, v{u2}
    """)
    e(f"""
    s_lshl_b32 s{sT0}, s{sW}, 10
    v_add_u32 v{s1}, s{sT0}, v{vBR}
    """)
    for p in range(16):
        for i in range(4):
            src = 128 + 8 * p + 2 * i
            e(f"v_pk_fma_f32 v[{src}:{src + 1}], v[{src}:{src + 1}], v[60:61], v[62:63]")
        for i in range(4):
            src = 128 + 8 * p + 2 * i
            e(f"v_cvt_pk_bf16_f32 v{vQ + 4 * p + i}, v{src}, v{src + 1}")
        e.lds(f"ds_write_b128 v{s1}, {rng('v', vQ + 4 * p, 4)} offset:{p * 4096}", ("xw", p))
        if wq_pre and p % OPT.get("dma_norm", 2) == 0 and not OPT.get("dma_late"):
            if len(wq_pre) <= 4:
                e.need(ltags=[("wrf", 15)])
            for fn in wq_pre.pop(0):
                fn()
    e.need(ltags=[("wrf", 15)])
    while wq_pre:
        for fn in wq_pre.pop(0):
            fn()
    e.need(ltags=[("xw", 15)])
    e("s_barrier")
    if not OPT.get("tailstamps"):
        stamp("ln_done")
    gemm_pre(e, 1)
    for p in range(16):
        c = "0" if p == 0 else "a[76:79]"
        e(f"v_mfma_f32_16x16x32_bf16 a[76:79], {rng('a', 128 + 4 * p, 4)}, {rng('v', vQ + 4 * p, 4)}, {c}")
    e.nop(8)
    e(f"""
    v_accvgpr_read_b32 v58, a76
    v_mul_f32 v58, {hex(f2u(1.0 / C_SCALE))}, v58
    v_cvt_pk_bf16_f32 v58, v58, v58
    v_and_b32 v59, s100, v58
    """)

    def tail1(p):
        f = []

        def guard(pp):
            return lambda: e.need(ltags=[("A", pp + 1, 7)])
        if p == 12:
            f += [(17, guard(12))] + place(kv_dma(e, "K", 1, ("KV", 0, "K")), 17, 4)
        if p == 13:
            f += place(kv_dma(e, "V", 1, ("KV", 0, "V")), 1, 4)
            f += [(17, guard(13))] + place(kv_dma(e, "K", 2, ("KV", 1, "K")), 17, 4)
        if p == 14:
            f += place(kv_dma(e, "V", 2, ("KV", 1, "V")), 1, 4)
            f += [(17, guard(14))] + place(kv_dma(e, "K", 0, ("KV", 2, "K")), 17, 4)
        if p >= 12:
            for i in range(32):
                f.append((i, lambda i=i: e(f"v_accvgpr_write_b32 a{128 + (p - 12) * 32 + i}, 0")))
        return f

    gemm_main(e, 1, tail1)
    if not OPT.get("tailstamps"):
        stamp("p1_done")
    e(f"""
    s_add_u32 s{sGA}, s{S_WS}, {WS_R}
    s_addc_u32 s{sGA + 1}, s{S_WS + 1}, 0
    s_mov_b32 s{sGA + 2}, 8192
    s_mov_b32 s{sGA + 3}, 0x20000
    s_add_u32 s{sGB}, s{S_WS}, {WS_STAT}
    s_addc_u32 s{sGB + 1}, s{S_WS + 1}, 0
    s_mov_b32 s{sGB + 2}, 8192
    s_mov_b32 s{sGB + 3}, 0x20000
    s_lshl_b32 s{sT0}, s{sTB}, 6
    s_lshl_b32 s{sT1}, s{sW}, 4
    s_add_u32 s{sT0}, s{sT0}, s{sT1}
    v_add_u32 v58, s{sT0}, v{vLANE}
    v_lshlrev_b32 v58, 2, v58
    v_cmp_gt_u32 vcc, 16, v{vLANE}
    s_cmp_eq_u32 s{sG}, 0
    s_cselect_b64 s[{sMASK}:{sMASK + 1}], -1, 0
    v_mov_b32 v60, 0x7ffffff0
    s_and_b64 vcc, vcc, s[{sMASK}:{sMASK + 1}]
    v_cndmask_b32 v58, v60, v58, vcc
    """)
    e.vm(f"buffer_store_dword v59, v58, s[{sGA}:{sGA + 3}], 0 offen sc1", ("st", 0))
    e.vm(f"buffer_store_dword v31, v58, s[{sGB}:{sGB + 3}], 0 offen sc1", ("st", 1))
    e.nop(4)
    for dt in (6, 7, 0, 1, 2, 3, 4, 5):
        for qb in range(2):
            R = vQ + (dt * 2 + qb) * 4
            a0 = vACC + (dt * 4 + 2 * qb) * 4
            a1 = a0 + 4
            e(f"v_cvt_pk_bf16_f32 v{R}, v{a0}, v{a0 + 1}")
            e(f"v_cvt_pk_bf16_f32 v{R + 1}, v{a0 + 2}, v{a0 + 3}")
            e(f"v_cvt_pk_bf16_f32 v{R + 2}, v{a1}, v{a1 + 1}")
            e(f"v_cvt_pk_bf16_f32 v{R + 3}, v{a1 + 2}, v{a1 + 3}")
        for qb in range(2):
            R = vQ + (dt * 2 + qb) * 4
            e(f"v_permlane16_swap_b32 v{R}, v{R + 2}")
            e(f"v_permlane16_swap_b32 v{R + 1}, v{R + 3}")
        if dt == 7:
            for i in range(32):
                e(f"v_mov_b32 v{vNM + i}, 0")
    for i in range(4):
        e(f"v_mov_b32 v{vL + i}, 0")
    for i in range(4):
        e(f"v_mov_b32 v{vGA + i}, v{vKDM + i}")
        e(f"v_mov_b32 v{vGB + i}, v{vVDM}")
    e(f"s_mov_b32 s{sPASS}, 0")
    e(f"v_accvgpr_write_b32 a96, v{vKR}")
    e(f"v_accvgpr_write_b32 a97, v{vVR}")
    e(f"L_p2_start:")
    e.wait_all()
    e("s_barrier")
    e(f"""
    s_or_b32 s{sT0}, s{sG}, s{sW}
    s_or_b32 s{sT0}, s{sT0}, s{sPASS}
    s_cmp_lg_u32 s{sT0}, 0
    s_cbranch_scc1 L_nopub
    """)
    if not OPT.get("xnopublish"):
        e(f"""
        v_mov_b32 v58, 0
        v_mov_b32 v59, 1
        v_cmp_eq_u32 vcc, 0, v{vLANE}
        s_nop 0
        s_and_saveexec_b64 s[{sMASK}:{sMASK + 1}], vcc
        global_atomic_add v58, v59, s[{sDBG}:{sDBG + 1}] sc1
        s_mov_b64 exec, s[{sMASK}:{sMASK + 1}]
        """)
    e("L_nopub:")
    e(f"""
    s_mov_b32 s{sGA}, s{S_K}
    s_mov_b32 s{sGA + 1}, s{S_K + 1}
    s_mov_b32 s{sGA + 2}, s{S_K + 2}
    s_mov_b32 s{sGB}, s{S_V}
    s_mov_b32 s{sGB + 1}, s{S_V + 1}
    s_mov_b32 s{sGB + 2}, s{S_V + 2}
    s_mov_b32 s{sKSL}, {2 * SLOT}
    s_mov_b32 s{sVSL}, {1 * SLOT}
    s_mov_b32 s{sTRIP}, 1
    """)
    for f in range(4):
        k_read(e, 0, f)
    p2_iter(e, -1, qk=True, sm=False, pv=False, look="K")
    upd = []
    for i in range(8):
        upd.append((i // 4 * 8 + i % 4 if i < 4 else 9 + i, lambda i=i: e(f"v_add_u32 v{vKR + i}, {SLOT}, v{vKR + i}")))
    p2_iter(e, 0, qk=True, sm=True, pv=False, look="K", fill=upd, smstart=5)

    lq0 = list(e.lq)
    e("L_p2_loop:")
    n0 = len(e.l)
    e.wait_all(lds=False)
    e("s_barrier")
    sal = [
        f"s_add_u32 s{sT1}, s{sKSL}, {SLOT}",
        f"s_cmp_eq_u32 s{sT1}, {3 * SLOT}",
        f"s_cselect_b32 s{sT1}, 0, s{sT1}",
        f"s_sub_u32 s{sKD}, s{sT1}, s{sKSL}",
        f"s_sub_u32 s{sVD}, s{sKSL}, s{sVSL}",
        f"s_sub_u32 s{sVD}, s{sVD}, 49152",
        f"s_add_u32 s{sGAM}, s{sRING}, s{sVSL}",
        f"s_add_u32 s{sGBM}, s{sRING}, s{sT1}",
        f"s_add_u32 s{sGBM}, s{sGBM}, 4096",
        f"s_mov_b32 s{sVSL}, s{sKSL}",
        f"s_mov_b32 s{sKSL}, s{sT1}",
    ]
    for x in sal:
        e(x)
    e(f"""
    s_cmp_lg_u32 s{sTRIP}, 7
    s_cbranch_scc1 L_p2_noswitch
    s_mov_b32 s{sGA}, s{S_WO}
    s_mov_b32 s{sGA + 1}, s{S_WO + 1}
    s_mov_b32 s{sGA + 2}, s{S_WO + 2}
    s_mov_b32 s{sGB}, s{S_WO}
    s_mov_b32 s{sGB + 1}, s{S_WO + 1}
    s_mov_b32 s{sGB + 2}, s{S_WO + 2}
    s_mov_b32 s{sGAM}, s{sRING}
    s_add_u32 s{sGBM}, s{sRING}, 4096
    s_mov_b32 s{sKO}, s{sWOO}
    """)
    wdma_adv(e, 3)
    e(f"s_mov_b32 s{sVO}, s{sWOO}")
    wdma_adv(e, 3)
    for i in range(4):
        e(f"v_mov_b32 v{vGA + i}, v{vWO + i}")
        e(f"v_mov_b32 v{vGB + i}, v{vWO + i}")
    e("L_p2_noswitch:")
    fill = []
    fill.append((0, lambda: e(f"s_mov_b32 m0, s{sGAM}")))
    for i in range(4):
        fill.append((2 + 4 * i, lambda i=i: e.vm(
            f"buffer_load_dwordx4 v{vGA + i}, s[{sGA}:{sGA + 3}], s{sKO} offen offset:{i * 1024} lds", ("G", 0))))
    fill.append((14, lambda: kv_adv(e, sKO)))
    fill.append((16, lambda: e(f"s_mov_b32 m0, s{sGBM}")))
    for i in range(4):
        fill.append((18 + 4 * i, lambda i=i: e.vm(
            f"buffer_load_dwordx4 v{vGB + i}, s[{sGB}:{sGB + 3}], s{sVO} offen offset:{i * 1024} lds", ("G", 1))))
    fill.append((30, lambda: kv_adv(e, sVO)))
    for db in range(4):
        fill.append((24 + 2 * db, lambda db=db: e(f"v_add_u32 v{vVR + db}, 49152, v{vVR + db}")))
    p2_iter(e, 1, fill=fill)
    fill = []
    for i in range(8):
        fill.append((8 + 2 * i if i >= 4 else 2 * i, lambda i=i: e(f"v_add_u32 v{vKR + i}, s{sKD}, v{vKR + i}")))
    for db in range(4):
        fill.append((24 + 2 * db, lambda db=db: e(f"v_add_u32 v{vVR + db}, s{sVD}, v{vVR + db}")))
    fill.append((30, lambda: e(f"s_add_u32 s{sTRIP}, s{sTRIP}, 1")))
    fill.append((32, lambda: e(f"s_cmp_lg_u32 s{sTRIP}, 8")))
    p2_iter(e, 2, fill=fill)
    e("s_cbranch_scc1 L_p2_loop")
    body = e.l[n0:]
    probs = check_hazards(body + body, "p2 loop x2")
    assert not probs or any(k.startswith("no") for k in OPT), "\n".join(probs[:10])
    sh = lambda q, d: [(t[0], t[1] + d) + tuple(t[2:]) if t else t for t in q]
    assert sh(lq0, 2) == e.lq, (lq0, e.lq)
    e.lq = sh(e.lq, 12)
    e.wait_all(lds=False)
    e("s_barrier")
    e.vq = [("W", 0, 0)] * 0
    fill = place(half_dma(e, 3, 1, 0, ("W", 1, 0)), 0, 2) + place(half_dma(e, 3, 1, 1, ("W", 1, 1)), 8, 2)
    for db in range(4):
        fill.append((7 + db, lambda db=db: e(f"v_add_u32 v{vVR + db}, 49152, v{vVR + db}")))
    e.lq = [t for t in e.lq]
    p2_iter(e, 15, qk=False, sm=True, pv=True, look="V", fill=fill, vpre=True)
    p2_iter(e, 16, qk=False, sm=False, pv=True, look=None)
    if not OPT.get("tailstamps"):
        stamp("p2_done")
    e(f"""
    v_add_f32 v{vL}, v{vL}, v{vL + 1}
    v_add_f32 v{vL + 2}, v{vL + 2}, v{vL + 3}
    v_mov_b32 v{vL + 1}, v{vL}
    v_mov_b32 v{vL + 3}, v{vL + 2}
    s_nop 1
    v_permlane32_swap_b32 v{vL}, v{vL + 1}
    v_permlane32_swap_b32 v{vL + 2}, v{vL + 3}
    s_nop 0
    v_add_f32 v{vL}, v{vL}, v{vL + 1}
    v_add_f32 v{vL + 2}, v{vL + 2}, v{vL + 3}
    v_rcp_f32 v{vL + 1}, v{vL}
    v_rcp_f32 v{vL + 3}, v{vL + 2}
    s_mov_b32 s{sT0}, {hex(f2u(2.0 ** -40))}
    s_mov_b32 s{sT1}, {hex(f2u(2.0 ** 40))}
    v_cmp_lt_f32 s[{sMASK}:{sMASK + 1}], s{sT0}, v{vL}
    v_cmp_gt_f32 s[{sMASK + 2}:{sMASK + 3}], s{sT1}, v{vL}
    v_cmp_lt_f32 s[{sMASK + 4}:{sMASK + 5}], s{sT0}, v{vL + 2}
    v_cmp_gt_f32 vcc, s{sT1}, v{vL + 2}
    s_nop 1
    s_and_b64 s[{sMASK}:{sMASK + 1}], s[{sMASK}:{sMASK + 1}], s[{sMASK + 2}:{sMASK + 3}]
    s_and_b64 vcc, vcc, s[{sMASK + 4}:{sMASK + 5}]
    s_and_b64 s[{sMASK}:{sMASK + 1}], s[{sMASK}:{sMASK + 1}], vcc
    """)
    for db in range(4):
        e(f"""
        s_lshl_b32 s{sT0}, s{sW}, 2
        s_add_u32 s{sT0}, s{sT0}, {db}
        s_sub_u32 s{sT0}, s{sT0}, s{sSK}
        s_and_b32 s{sT0}, s{sT0}, 15
        s_lshl_b32 s{sT0}, s{sT0}, 12
        v_add_u32 v58, s{sT0}, v{vOW}
        """)
        for qb in range(2):
            src = aO + (db * 2 + qb) * 16
            T = 128 + (db * 2 + qb) * 16
            for i in range(16):
                e(f"v_accvgpr_read_b32 v{T + i}, a{src + i}")
            rl = vL + 1 + 2 * qb
            for i in range(16):
                e(f"v_mul_f32 v{T + i}, v{T + i}, v{rl}")
            for i in range(8):
                e(f"v_cvt_pk_bf16_f32 v{T + i}, v{T + 2 * i}, v{T + 2 * i + 1}")
            for jp in range(2):
                e.lds(f"ds_write_b128 v58, {rng('v', T + 4 * jp, 4)} offset:{qb * 2048 + jp * 512}", ("ow", db, qb, jp))
    e(f"""
    s_cmp_eq_u64 s[{sMASK}:{sMASK + 1}], -1
    s_cselect_b32 s{sT2}, 0, 1
    s_cmp_eq_u32 s{sPASS}, 0
    s_cselect_b32 s{sT2}, s{sT2}, 0
    s_cmp_eq_u32 s{sT2}, 0
    s_cbranch_scc1 L_noflag
    s_lshl_b32 s{sT0}, s{sW}, 2
    s_sub_u32 s{sT0}, s{sT0}, s{sSK}
    s_and_b32 s{sT0}, s{sT0}, 15
    s_lshl_b32 s{sT0}, s{sT0}, 12
    v_mov_b32 v58, s{sT0}
    v_mov_b32 v59, -1
    ds_write_b32 v58, v59
    L_noflag:
    """)
    e.wait_all(vm=False)
    e("s_barrier")
    for w_ in range(4):
        e(f"""
        s_sub_u32 s{sT0}, {4 * w_}, s{sSK}
        s_and_b32 s{sT0}, s{sT0}, 15
        s_lshl_b32 s{sT0}, s{sT0}, 12
        v_mov_b32 v{58 + w_}, s{sT0}
        """)
    for w_ in range(4):
        e.lds(f"ds_read_b32 v{58 + w_}, v{58 + w_}", ("mk", w_))
    for h in range(2):
        serial(e, half_dma(e, 3, 2, h, ("W", 2, h)))
    e.need(ltags=[("mk", 3)])
    e(f"""
    v_and_b32 v58, v58, v59
    v_and_b32 v60, v60, v61
    v_max_u32 v58, v58, v60
    v_max_u32 v59, v59, v61
    """)
    e.l = e.l[:-4]
    e(f"""
    v_max_u32 v58, v58, v59
    v_max_u32 v60, v60, v61
    v_max_u32 v58, v58, v60
    s_nop 0
    v_readfirstlane_b32 s{sT0}, v58
    s_nop 0
    s_cmp_eq_u32 s{sT0}, -1
    s_cbranch_scc1 L_fallback
    L_p3_start:
    """)
    e(f"v_lshlrev_b32 v{vBR}, 4, v{vLANE}")
    e(f"""
    s_mov_b32 s{S_WQ}, s{sFP}
    s_mov_b32 s{S_WQ + 1}, s{sFP + 1}
    s_mov_b32 s{S_WQ + 2}, {512 * 1792 * 2}
    s_mov_b32 s{S_K}, s{sFP + 2}
    s_mov_b32 s{S_K + 1}, s{sFP + 3}
    s_mov_b32 s{S_K + 2}, {512 * 1792 * 2}
    s_mov_b32 s{S_V}, s{sFP + 4}
    s_mov_b32 s{S_V + 1}, s{sFP + 5}
    s_mov_b32 s{S_V + 2}, {1792 * 512 * 2}
    s_min_u32 s{sSL}, s2, 223
    """)
    e(f"""
    s_lshl_b32 s{sT0}, s{sW}, 7
    v_add_u32 v80, s{sT0}, v{vLANE}
    v_mul_u32_u24 v80, 3584, v80
    s_lshl_b32 s{sT0}, s{sSL}, 4
    v_add_u32 v80, s{sT0}, v80
    v_add_u32 v81, {64 * 3584}, v80
    v_lshrrev_b32 v82, 4, v{vLANE}
    v_lshlrev_b32 v82, 10, v82
    v_and_b32 v83, 15, v{vLANE}
    v_lshl_add_u32 v82, v83, 4, v82
    s_lshl_b32 s{sT0}, s{sSL}, 13
    s_lshl_b32 s{sT1}, s{sW}, 8
    s_add_u32 s{sT0}, s{sT0}, s{sT1}
    v_add_u32 v82, s{sT0}, v82
    v_add_u32 v83, 4096, v82
    v_mov_b32 v84, 0
    s_lshl_b32 s{sT0}, s{sW}, 11
    v_lshlrev_b32 v85, 5, v{vLANE}
    v_add_u32 v85, s{sT0}, v85
    v_add_u32 v85, {WS_R}, v85
    """)
    e.vq = [("W", 0, 0)] * 4 + [("W", 0, 1)] * 4 + e.vq
    gemm_pre(e, 3)

    def tail3(p):
        f = []
        if p == 12:
            def guard():
                e.need(ltags=[("A", 13, 7)])
            f.append((17, guard))
            lst = [(S_WQ, 80, 0), (S_WQ, 81, 1024), (S_K, 80, 2048), (S_K, 81, 3072), (S_V, 82, 4096), (S_V, 83, 5120)]
            for n, (srd, v, off) in enumerate(lst):
                f.append((18 + 2 * n, lambda off=off: e(f"s_add_u32 m0, s{sRING}, {SLOT + off}")))
                f.append((19 + 2 * n, lambda srd=srd, v=v: e.vm(
                    f"buffer_load_dwordx4 v{v}, s[{srd}:{srd + 3}], 0 offen lds", ("fw", 0))))
            f.append((31, lambda: e.vm(f"global_load_dword v86, v84, s[{sDBG}:{sDBG + 1}] sc1", ("cnt", 0))))
        if p == 14:
            def chk():
                e.need(vtags=[("cnt", 0)])
                e(f"v_readfirstlane_b32 s{sT0}, v86")
            f.append((4, chk))
            f.append((5, lambda: e(f"s_cmp_ge_u32 s{sT0}, 32")))
            f.append((5, lambda: e(f"s_cselect_b32 s{sRDY}, 1, 0")))
            f.append((6, lambda: e.vm(f"buffer_load_dwordx4 a[200:203], v85, s[{S_WS}:{S_WS + 3}], 0 offen sc1", ("rl", 0))))
            f.append((8, lambda: e.vm(f"buffer_load_dwordx4 a[204:207], v85, s[{S_WS}:{S_WS + 3}], 0 offen offset:16 sc1", ("rl", 1))))
        return f
    gemm_main(e, 3, tail3)
    stamp("p3_done")
    e.nop(6)
    e.need(vtags=[("rl", 1)])
    for nt in range(8):
        for qb in range(2):
            R = vQ + (nt * 2 + qb) * 4
            a0 = vACC + (nt * 4 + 2 * qb) * 4
            a1 = a0 + 4
            e(f"v_cvt_pk_bf16_f32 v{R}, v{a0}, v{a0 + 1}")
            e(f"v_cvt_pk_bf16_f32 v{R + 1}, v{a0 + 2}, v{a0 + 3}")
            e(f"v_cvt_pk_bf16_f32 v{R + 2}, v{a1}, v{a1 + 1}")
            e(f"v_cvt_pk_bf16_f32 v{R + 3}, v{a1 + 2}, v{a1 + 3}")
        for qb in range(2):
            R = vQ + (nt * 2 + qb) * 4
            e(f"v_permlane16_swap_b32 v{R}, v{R + 2}")
            e(f"v_permlane16_swap_b32 v{R + 1}, v{R + 3}")
        for qb in range(2):
            R = vQ + (nt * 2 + qb) * 4
            off = (nt * 2 + qb) * 1024
            if off >= 4096 and off % 4096 == 0:
                e(f"v_add_u32 v{vPS}, 4096, v{vPS}")
            e.vm(f"buffer_store_dwordx4 {rng('v', R, 4)}, v{vPS}, s[{S_WS}:{S_WS + 3}], 0 offen offset:{off % 4096} "
                 + OPT.get("pstore", "sc1"), ("ps", nt, qb))
    stamp("epi")
    doneq = f"L_{label}_fin"
    if not OPT.get("nomoe"):
        import moe
        e(f"""
        s_cmp_ge_u32 s2, 224
        s_cbranch_scc1 {doneq}
        s_nop 1
        """)
        moe.moe_tail(e, dict(X=S_X, WS=S_WS, WR=S_WR, W=sW, RING=sRING, SL=sSL, RDY=sRDY, DBG=sDBG, M=100,
                             T=[42, 43, 44, 45, 46, 47, 60, 61, 62, 63, 64, 65, 66, 67], done=doneq,
                             spin=OPT.get("spin", 4000),
                             stamp=(stamp if OPT.get("tailstamps") else (lambda n: None))))
    e(f"{doneq}:")
    stamp("end")
    if stamps:
        e.wait_all()
        e(f"""
        s_lshl_b32 s{sT0}, s2, 2
        s_add_u32 s{sT0}, s{sT0}, s{sW}
        s_lshl_b32 s{sT0}, s{sT0}, 7
        s_add_u32 s{sT0}, s{sT0}, {WS_TS}
        v_mov_b32 v58, s{sT0}
        v_cmp_eq_u32 vcc, 0, v{vLANE}
        s_nop 0
        s_and_saveexec_b64 s[{sMASK}:{sMASK + 1}], vcc
        """)
        for i in range(0, 20, 4):
            for q in range(4):
                e(f"v_mov_b32 v{60 + q}, s{min(sTS + i + q, sTS + 17)}")
            e(f"buffer_store_dwordx4 v[60:63], v58, s[{S_WS}:{S_WS + 3}], 0 offen offset:{i * 4}")
            e("s_nop 1")
        e(f"s_mov_b64 exec, s[{sMASK}:{sMASK + 1}]")
    e(f"s_branch {done}")
    e("L_fallback:")
    e(f"""
    s_barrier
    s_lshl_b32 s{sT0}, s{sKVT}, 14
    s_add_u32 s{sKO}, s{sKVB}, s{sT0}
    v_accvgpr_read_b32 v{vKR}, a96
    v_mov_b32 v{vL}, 0xff800000
    v_mov_b32 v{vL + 2}, 0xff800000
    v_subrev_u32 v{vKR}, {SLOT}, v{vKR}
    s_mov_b32 s{sTRIP}, 0
    """)
    for s16 in range(1, 8):
        e(f"v_xor_b32 v{vKR + s16}, {32 * s16}, v{vKR}")
    e("L_fb_loop:")
    e("s_waitcnt vmcnt(0) lgkmcnt(0)")
    e("s_barrier")
    e.vq, e.lq = [], []
    serial(e, kv_dma(e, "K", 0, ("fbk", 0)))
    e.wait_all()
    e("s_barrier")
    for kb in range(2):
        for s16 in range(8):
            e(f"ds_read_b128 {Fbuf(s16)}, v{vKR + s16} offset:{kb * 49152}")
        e("s_waitcnt lgkmcnt(0)")
        for s16 in range(8):
            for qb in range(2):
                c = "0" if s16 == 0 else Sreg(0, qb)
                e(f"v_mfma_f32_32x32x16_bf16 {Sreg(0, qb)}, {Fbuf(s16)}, {Qreg(s16, qb)}, {c}")
        e.nop(16)
        for qb in range(2):
            m = vL + 2 * qb
            for i in range(0, 16, 2):
                e(f"v_max3_f32 v{m}, v{m}, {Sreg(0, qb, i)}, {Sreg(0, qb, i + 1)}")
    e(f"""
    s_add_u32 s{sTRIP}, s{sTRIP}, 1
    s_cmp_lt_u32 s{sTRIP}, 8
    s_cbranch_scc1 L_fb_loop
    v_mov_b32 v{vL + 1}, v{vL}
    v_mov_b32 v{vL + 3}, v{vL + 2}
    s_nop 1
    v_permlane32_swap_b32 v{vL}, v{vL + 1}
    v_permlane32_swap_b32 v{vL + 2}, v{vL + 3}
    s_nop 0
    v_max_f32 v{vL}, v{vL}, v{vL + 1}
    v_max_f32 v{vL + 2}, v{vL + 2}, v{vL + 3}
    """)
    for qb in range(2):
        for i in range(16):
            e(f"v_sub_f32 v{vNM + 16 * qb + i}, 0, v{vL + 2 * qb}")
    e(f"""
    s_barrier
    s_lshl_b32 s{sT0}, s{sKVT}, 14
    s_add_u32 s{sKO}, s{sKVB}, s{sT0}
    s_mov_b32 s{sVO}, s{sKO}
    s_lshl_b32 s{sWOO}, s{sG}, 19
    s_lshl_b32 s{sT0}, s{sSK}, 15
    s_add_u32 s{sWOO}, s{sWOO}, s{sT0}
    v_accvgpr_read_b32 v{vKR}, a96
    v_accvgpr_read_b32 v{vVR}, a97
    s_mov_b32 s{sPASS}, 1
    """)
    for s16 in range(1, 8):
        e(f"v_xor_b32 v{vKR + s16}, {32 * s16}, v{vKR}")
    for db in range(1, 4):
        e(f"v_xor_b32 v{vVR + db}, {64 * db}, v{vVR}")
    for (which, slot) in (("K", 1), ("V", 1), ("K", 2), ("V", 2), ("K", 0)):
        serial(e, kv_dma(e, which, slot, ("fbp", 0)))
    for i in range(4):
        e(f"v_mov_b32 v{vL + i}, 0")
        e(f"v_mov_b32 v{vGA + i}, v{vKDM + i}")
        e(f"v_mov_b32 v{vGB + i}, v{vVDM}")
    for i in range(128):
        e(f"v_accvgpr_write_b32 a{128 + i}, 0")
    e("s_branch L_p2_start")
    e(f"{done}:")
    e("s_endpgm")
    probs = check_hazards(e.l, "k1")
    if probs and not any(k.startswith("no") for k in OPT):
        print("\n".join(probs[:40]))
        raise SystemExit("hazards")
    return e.text()
```

```python
from emit import E, check_hazards
from asmlib import KA
from k1 import WS_PART, WS_R, WS_STAT, WS_IDX, WS_TS, f2u, rng

WS_YP = 17 << 20
NSL = 224
LOG2E = 1.4426950408889634


def wave_max_u32(e, v, tmp_s):
    for sh in (1, 2, 4, 8):
        e("s_nop 1")
        e(f"v_max_u32_dpp v{v}, v{v}, v{v} row_shr:{sh} row_mask:0xf bank_mask:0xf")
    e("s_nop 1")
    e(f"v_max_u32_dpp v{v}, v{v}, v{v} row_bcast:15 row_mask:0xa bank_mask:0xf")
    e("s_nop 1")
    e(f"v_max_u32_dpp v{v}, v{v}, v{v} row_bcast:31 row_mask:0xc bank_mask:0xf")
    e("s_nop 0")
    e(f"v_readlane_b32 s{tmp_s}, v{v}, 63")


def silu_bf16(e, dst, src, t0, t1, sM):
    e(f"v_mul_f32 v{t0}, {hex(f2u(-LOG2E))}, v{src}")
    e(f"v_exp_f32 v{t0}, v{t0}")
    e("s_nop 0")
    e(f"v_add_f32 v{t0}, 1.0, v{t0}")
    e(f"v_rcp_f32 v{t0}, v{t0}")
    e("s_nop 0")
    e(f"v_mul_f32 v{t0}, v{src}, v{t0}")
    e(f"v_cvt_pk_bf16_f32 v{t0}, v{t0}, v{t0}")
    e(f"v_and_b32 v{dst}, s{sM}, v{t0}")


def ts_begin(e, on):
    if on:
        e("s_memrealtime s[64:65]")


def ts_end(e, on, srd, off, wave_sreg, lane_v=0):
    if not on:
        return
    e(f"""
    s_memrealtime s[66:67]
    s_mov_b64 exec, -1
    s_lshl_b32 s68, s2, 2
    s_add_u32 s68, s68, s{wave_sreg}
    s_lshl_b32 s68, s68, 4
    s_add_u32 s68, s68, {off}
    s_waitcnt vmcnt(0) lgkmcnt(0)
    s_memrealtime s[66:67]
    s_waitcnt lgkmcnt(0)
    v_mov_b32 v100, s64
    v_mov_b32 v101, s65
    v_mov_b32 v102, s66
    v_mov_b32 v103, s67
    v_mov_b32 v104, s68
    v_cmp_eq_u32 vcc, 0, v{lane_v}
    s_nop 1
    s_and_saveexec_b64 s[70:71], vcc
    buffer_store_dwordx4 v[100:103], v104, s[{srd}:{srd + 3}], 0 offen
    """)


def gen_km(label, ts=False):
    e = E()
    done = f"L_{label}_done"
    S_X, S_WG, S_WU, S_WD, S_WS = 4, 8, 12, 16, 20
    sW, sF0, sM = 24, 25, 26
    sWIN = 32
    e(f"""
    s_cmp_ge_u32 s2, {NSL}
    s_cbranch_scc1 {done}
    {"s_memrealtime s[64:65]" if ts else ""}
    s_load_dwordx2 s[4:5], s[0:1], {KA['x']}
    s_load_dwordx2 s[8:9], s[0:1], {KA['wg']}
    s_load_dwordx2 s[12:13], s[0:1], {KA['wu']}
    s_load_dwordx2 s[16:17], s[0:1], {KA['wd']}
    s_load_dwordx2 s[20:21], s[0:1], {KA['ws']}
    v_lshrrev_b32 v1, 6, v0
    v_mov_b32 v63, v0                    ; tid
    v_and_b32 v0, 63, v0
    v_readfirstlane_b32 s{sW}, v1
    s_lshl_b32 s{sF0}, s2, 4
    s_mov_b32 s{sM}, 0xffff0000
    s_waitcnt lgkmcnt(0)
    s_mov_b32 s6, 2097152
    s_mov_b32 s7, 0x20000
    s_mov_b32 s10, {512 * 1792 * 2}
    s_mov_b32 s11, 0x20000
    s_mov_b32 s14, {512 * 1792 * 2}
    s_mov_b32 s15, 0x20000
    s_mov_b32 s18, {1792 * 512 * 2}
    s_mov_b32 s19, 0x20000
    s_mov_b32 s22, 0x10000000
    s_mov_b32 s23, 0x20000
    """)
    e(f"""
    v_lshlrev_b32 v2, 5, v63
    v_add_u32 v2, {WS_R}, v2
    """)
    e.vm(f"buffer_load_dwordx4 v[8:11], v2, s[20:23], 0 offen", "r0")
    e.vm(f"buffer_load_dwordx4 v[12:15], v2, s[20:23], 0 offen offset:16", "r1")
    e(f"""
    s_lshl_b32 s27, s{sW}, 7
    v_add_u32 v3, s27, v0                ; row = 128 w + l
    v_mul_u32_u24 v3, 3584, v3
    v_add_u32 v3, s{sF0}, v3
    v_add_u32 v4, {64 * 3584}, v3
    s_lshl_b32 s28, s{sW}, 11            ; w*2048
    """)
    for (srd, base) in ((S_WG, 0), (S_WU, 8192)):
        for i in range(2):
            e(f"s_add_u32 m0, s28, {base + i * 1024}")
            e("s_nop 0")
            e.vm(f"buffer_load_dwordx4 v{3 + i}, s[{srd}:{srd + 3}], 0 offen lds", "wgu")
    e(f"""
    s_lshl_b32 s29, s2, 3
    s_lshl_b32 s30, s{sW}, 1
    s_add_u32 s29, s29, s30
    s_lshl_b32 s29, s29, 10              ; row*1024
    v_lshlrev_b32 v5, 4, v0
    """)
    for i in range(2):
        e(f"s_add_u32 m0, s28, {16384 + i * 1024}")
        e("s_nop 0")
        e.vm(f"buffer_load_dwordx4 v5, s[{S_WD}:{S_WD + 3}], s29 offen lds", "wd")
        e("s_add_u32 s29, s29, 1024")
    e.need(vtags=["r1"])
    e(f"v_lshlrev_b32 v6, 3, v63")
    e(f"v_sub_u32 v6, 2047, v6            ; 2047 - idx0")
    for i in range(8):
        r = 8 + i
        e(f"v_ashrrev_i32 v7, 31, v{r}")
        e(f"v_or_b32 v7, 0x80000000, v7")
        e(f"v_xor_b32 v{r}, v{r}, v7          ; monotone map")
        e(f"v_and_b32 v{r}, s{sM}, v{r}")
        e(f"v_or_b32 v{r}, v{r}, v6")
        if i < 7:
            e(f"v_subrev_u32 v6, 1, v6")
    e("v_mov_b32 v20, 0")
    for rd in range(8):
        e("v_max3_u32 v16, v8, v9, v10")
        e("v_max3_u32 v17, v11, v12, v13")
        e("v_max3_u32 v16, v16, v14, v15")
        e("v_max_u32 v16, v16, v17")
        wave_max_u32(e, 16, 31)
        e("s_nop 1")
        for i in range(8):
            e(f"v_cmp_ne_u32 vcc, s31, v{8 + i}")
            e("s_nop 1")
            e(f"v_cndmask_b32 v{8 + i}, 0, v{8 + i}, vcc")
        e(f"v_writelane_b32 v20, s31, {rd}")
    e(f"""
    s_lshl_b32 s27, s{sW}, 5
    v_lshlrev_b32 v21, 2, v0
    v_add_u32 v21, s27, v21
    v_add_u32 v21, 24576, v21
    v_cmp_gt_u32 vcc, 8, v0
    s_nop 0
    s_and_saveexec_b64 s[40:41], vcc
    ds_write_b32 v21, v20
    s_mov_b64 exec, s[40:41]
    s_waitcnt lgkmcnt(0)
    s_barrier
    v_and_b32 v21, 31, v0
    v_lshlrev_b32 v21, 2, v21
    ds_read_b32 v22, v21 offset:24576
    v_cmp_gt_u32 vcc, 32, v0
    s_waitcnt lgkmcnt(0)
    s_nop 0
    v_cndmask_b32 v22, 0, v22, vcc
    """)
    for rd in range(8):
        e("v_mov_b32 v16, v22")
        wave_max_u32(e, 16, sWIN + rd)
        e("s_nop 1")
        e(f"v_cmp_ne_u32 vcc, s{sWIN + rd}, v22")
        e("s_nop 1")
        e(f"v_cndmask_b32 v22, 0, v22, vcc")
    e("v_and_b32 v24, 7, v0")
    e(f"v_mov_b32 v23, s{sWIN}")
    for j in range(1, 8):
        e(f"v_cmp_eq_u32 vcc, {j}, v24")
        e(f"v_mov_b32 v25, s{sWIN + j}")
        e("s_nop 0")
        e("v_cndmask_b32 v23, v23, v25, vcc")
    e(f"""
    v_and_b32 v26, 0x7ff, v23
    v_sub_u32 v26, 2047, v26
    v_and_b32 v27, s{sM}, v23
    v_ashrrev_i32 v28, 31, v27
    v_not_b32 v28, v28
    v_or_b32 v28, 0x80000000, v28
    v_xor_b32 v27, v27, v28
    v_and_b32 v27, s{sM}, v27             ; r (f32 bits)
    """)
    e(f"""
    v_mul_f32 v28, {hex(f2u(-LOG2E))}, v27
    v_exp_f32 v28, v28
    s_nop 0
    v_add_f32 v28, 1.0, v28
    v_rcp_f32 v28, v28
    s_nop 0
    v_cvt_pk_bf16_f32 v28, v28, v28
    v_and_b32 v28, s{sM}, v28             ; bf16(sigmoid(r))
    v_lshlrev_b32 v29, 2, v0
    v_add_u32 v29, {WS_IDX}, v29
    s_or_b32 s27, s2, s{sW}
    s_cmp_eq_u32 s27, 0
    s_cselect_b64 s[42:43], -1, 0
    v_cmp_gt_u32 vcc, 8, v0
    s_nop 1
    s_and_b64 vcc, vcc, s[42:43]
    s_and_saveexec_b64 s[40:41], vcc
    s_cbranch_execz L_km_nopub
    buffer_store_dword v26, v29, s[20:23], 0 offen
    buffer_store_dword v28, v29, s[20:23], 0 offen offset:32
    L_km_nopub:
    s_mov_b64 exec, s[40:41]
    """)
    e.vq += ["pub", "pub"]
    e(f"""
    v_lshrrev_b32 v30, 4, v0
    v_lshlrev_b32 v30, 4, v30             ; q4*16
    v_lshl_add_u32 v30, v26, 10, v30
    s_lshl_b32 s27, s{sW}, 8              ; 4w*64 bytes
    v_lshlrev_b32 v31, 2, v26
    v_add_u32 v31, {WS_STAT}, v31
    """)
    e.vm(f"buffer_load_dword v32, v31, s[20:23], 0 offen", "st")
    for i in range(4):
        e.vm(f"buffer_load_dwordx4 {rng('v', 36 + 4 * i, 4)}, v30, s[4:7], s27 offen offset:{64 * i}", ("xg", i))
    e.need(vtags=["st"])
    e(f"""
    v_lshlrev_b32 v33, 16, v32            ; mean
    v_and_b32 v34, s{sM}, v32             ; sd
    v_rcp_f32 v34, v34
    """)
    e.need(vtags=[("xg", 3)])
    for i in range(16):
        r = 36 + i
        e(f"""
        v_lshlrev_b32 v52, 16, v{r}
        v_and_b32 v53, s{sM}, v{r}
        v_sub_f32 v52, v52, v33
        v_sub_f32 v53, v53, v33
        v_cvt_pk_bf16_f32 v52, v52, v53
        v_and_b32 v53, s{sM}, v52
        v_lshlrev_b32 v52, 16, v52
        v_mul_f32 v52, v52, v34
        v_mul_f32 v53, v53, v34
        v_cvt_pk_bf16_f32 v{r}, v52, v53
        """)
    e.need(vtags=["wd"])
    e("s_barrier")
    e(f"""
    v_bfe_u32 v54, v0, 2, 2               ; r
    v_lshrrev_b32 v55, 4, v0              ; q4
    v_lshl_add_u32 v54, v55, 3, v54       ; 8 q4 + r
    v_lshlrev_b32 v54, 4, v54
    v_and_b32 v55, 1, v0
    v_lshl_add_u32 v54, v55, 3, v54       ; + (c&1)*8
    v_bfe_u32 v55, v0, 1, 1
    v_lshl_add_u32 v54, v55, 13, v54      ; + U
    s_lshl_b32 s27, s{sW}, 11
    v_add_u32 v54, s27, v54
    """)
    for i in range(4):
        for rd in range(2):
            e.lds(f"ds_read_b64_tr_b16 {rng('v', 64 + 4 * i + 2 * rd, 2)}, v54 offset:{i * 512 + rd * 64}", ("fa", i))
    for i in range(4):
        e.need(ltags=[("fa", i)])
        c = "0" if i == 0 else "v[56:59]"
        e(f"v_mfma_f32_16x16x32_bf16 v[56:59], {rng('v', 64 + 4 * i, 4)}, {rng('v', 36 + 4 * i, 4)}, {c}")
    e.nop(8)
    e(f"""
    s_lshl_b32 s27, s{sW}, 10
    v_lshlrev_b32 v60, 4, v0
    v_add_u32 v61, s27, v60
    ds_write_b128 v61, v[56:59] offset:25600
    s_waitcnt lgkmcnt(0)
    s_barrier
    ds_read_b128 v[64:67], v60 offset:25600
    ds_read_b128 v[68:71], v60 offset:{25600 + 1024}
    ds_read_b128 v[72:75], v60 offset:{25600 + 2048}
    ds_read_b128 v[76:79], v60 offset:{25600 + 3072}
    s_waitcnt lgkmcnt(0)
    """)
    for i in range(4):
        e(f"v_add_f32 v{64 + i}, v{64 + i}, v{68 + i}")
        e(f"v_add_f32 v{72 + i}, v{72 + i}, v{76 + i}")
        e(f"v_add_f32 v{64 + i}, v{64 + i}, v{72 + i}")
    for i in range(4):
        e(f"v_cvt_pk_bf16_f32 v{64 + i}, v{64 + i}, v{64 + i}")
        e(f"v_and_b32 v{64 + i}, s{sM}, v{64 + i}")
        e(f"v_mov_b32 v{68 + i}, v{64 + i}")
    e("s_nop 0")
    for i in range(4):
        e(f"v_permlane32_swap_b32 v{64 + i}, v{68 + i}")
    for i in range(4):
        silu_bf16(e, 72 + i, 64 + i, 76, 77, sM)
        e(f"v_mul_f32 v{72 + i}, v{72 + i}, v{68 + i}")
    e(f"""
    v_cvt_pk_bf16_f32 v80, v72, v73
    v_cvt_pk_bf16_f32 v81, v74, v75
    v_cmp_gt_u32 vcc, 32, v0
    v_mov_b32 v82, 0
    v_mov_b32 v83, 0
    v_cndmask_b32 v80, 0, v80, vcc
    v_cndmask_b32 v81, 0, v81, vcc
    """)
    e(f"""
    v_bfe_u32 v54, v0, 2, 2               ; r
    v_bfe_u32 v55, v0, 4, 1               ; q4 & 1
    v_lshl_add_u32 v54, v55, 2, v54       ; row 0..7
    v_lshlrev_b32 v54, 10, v54
    v_and_b32 v55, 3, v0
    v_lshl_add_u32 v54, v55, 3, v54       ; + c*8
    s_lshl_b32 s27, s{sW}, 8              ; 8w tiles * 32 B
    v_add_u32 v54, s27, v54
    v_mov_b32 v86, 0
    v_mov_b32 v87, 0
    """)
    for t in range(8):
        e.lds(f"ds_read_b64_tr_b16 {rng('v', 88 + 4 * t, 2)}, v54 offset:{16384 + t * 32}", ("da", t))
        e(f"v_mov_b32 v{90 + 4 * t}, 0")
        e(f"v_mov_b32 v{91 + 4 * t}, 0")
    for t in range(8):
        e.need(ltags=[("da", t)])
        e(f"v_mfma_f32_16x16x32_bf16 {rng('v', 120 + 4 * t, 4)}, {rng('v', 88 + 4 * t, 4)}, v[80:83], 0")
    e(f"""
    s_lshl_b32 s27, s2, 14
    s_lshl_b32 s28, s{sW}, 9              ; 8w*16*4 bytes
    s_add_u32 s27, s27, s28
    s_add_u32 s27, s27, {WS_YP}
    v_and_b32 v60, 15, v0
    v_lshlrev_b32 v61, 11, v60
    v_lshrrev_b32 v62, 4, v0
    v_lshl_add_u32 v61, v62, 4, v61
    v_add_u32 v61, s27, v61
    v_cmp_gt_u32 vcc, 8, v60
    s_nop 4
    s_and_saveexec_b64 s[40:41], vcc
    """)
    for t in range(8):
        e(f"buffer_store_dwordx4 {rng('v', 120 + 4 * t, 4)}, v61, s[20:23], 0 offen offset:{t * 64}")
    e("s_mov_b64 exec, s[40:41]")
    ts_end(e, ts, S_WS, WS_TS + (1 << 20), sW)
    e(f"{done}:")
    e("s_endpgm")
    probs = check_hazards(e.l, "km")
    if probs:
        print("\n".join(probs[:40]))
        raise SystemExit("hazards")
    return e.text()


def final_math(e, n, vs, vx, vmean, vrsd, vupd, vout, t, sM):
    for i in range(n):
        a, b = t, t + 1
        e(f"v_cvt_pk_bf16_f32 v{vs[i]}, v{vs[i]}, v{vs[i]}")
        e(f"v_and_b32 v{vs[i]}, s{sM}, v{vs[i]}")
        e(f"v_sub_f32 v{a}, v{vx[i]}, v{vmean}")
        e(f"v_cvt_pk_bf16_f32 v{a}, v{a}, v{a}")
        e(f"v_and_b32 v{a}, s{sM}, v{a}")
        e(f"v_mul_f32 v{a}, v{a}, v{vrsd}")
        e(f"v_cvt_pk_bf16_f32 v{a}, v{a}, v{a}")
        e(f"v_and_b32 v{a}, s{sM}, v{a}")
        if vupd is not None:
            e(f"v_add_f32 v{a}, v{a}, v{vupd[i]}")
            e(f"v_cvt_pk_bf16_f32 v{a}, v{a}, v{a}")
            e(f"v_and_b32 v{a}, s{sM}, v{a}")
        silu_bf16(e, a, a, b, b, sM)
        e(f"v_mul_f32 v{a}, v{vs[i]}, v{a}")
        e(f"v_cvt_pk_bf16_f32 v{a}, v{a}, v{a}")
        e(f"v_and_b32 v{a}, s{sM}, v{a}")
        e(f"v_add_f32 v{vout[i]}, v{vx[i]}, v{a}")


def gen_k2(label, ts=False, perturb=None):
    e = E()
    done = f"L_{label}_done"
    tail = f"L_{label}_tail"
    S_X, S_WS, S_OUT = 4, 8, 12
    sW, sM = 16, 17
    sIDX = 24
    e(f"""
    s_cmp_ge_u32 s2, 576
    s_cbranch_scc1 {done}
    {"s_memrealtime s[64:65]" if ts else ""}
    s_load_dwordx2 s[4:5], s[0:1], {KA['x']}
    s_load_dwordx2 s[8:9], s[0:1], {KA['ws']}
    s_load_dwordx2 s[12:13], s[0:1], {KA['out']}
    v_lshrrev_b32 v1, 6, v0
    v_and_b32 v0, 63, v0
    s_mov_b32 s{sM}, 0xffff0000
    v_readfirstlane_b32 s{sW}, v1
    s_waitcnt lgkmcnt(0)
    s_add_u32 s18, s8, {WS_IDX}
    s_addc_u32 s19, s9, 0
    s_load_dwordx8 s[24:31], s[18:19], 0
    s_load_dwordx8 s[32:39], s[18:19], 32
    s_mov_b32 s6, 2097152
    s_mov_b32 s7, 0x20000
    s_mov_b32 s10, 0x10000000
    s_mov_b32 s11, 0x20000
    s_mov_b32 s14, 2097152
    s_mov_b32 s15, 0x20000
    s_cmp_ge_u32 s2, 512
    s_cbranch_scc1 L_k2_sel
    """)
    e(f"""
    s_lshl_b32 s20, s2, 2
    s_add_u32 s20, s20, s{sW}
    s_lshr_b32 s21, s20, 6                ; tb
    s_bfe_u32 s22, s20, {5 | (1 << 16)}   ; qb
    s_bfe_u32 s23, s20, {3 | (2 << 16)}   ; a
    s_and_b32 s20, s20, 7                 ; b
    s_lshl_b32 s40, s21, 6
    s_lshl_b32 s41, s22, 5
    s_add_u32 s40, s40, s41
    s_lshl_b32 s41, s23, 3
    s_add_u32 s40, s40, s41
    v_and_b32 v2, 7, v0
    v_add_u32 v3, s40, v2                 ; token
    v_lshrrev_b32 v4, 3, v0
    s_lshl_b32 s41, s20, 7
    v_lshlrev_b32 v4, 4, v4
    v_lshl_add_u32 v4, v3, 10, v4
    v_add_u32 v4, s41, v4
    s_lshl_b32 s41, s21, 16
    s_lshr_b32 s42, s20, 1
    s_lshl_b32 s42, s42, 14
    s_add_u32 s41, s41, s42
    s_and_b32 s42, s20, 1
    s_lshl_b32 s42, s42, 13
    s_add_u32 s41, s41, s42
    s_lshl_b32 s42, s22, 10
    s_add_u32 s41, s41, s42
    s_lshl_b32 s42, s23, 7
    s_add_u32 s41, s41, s42
    v_lshrrev_b32 v5, 4, v0
    v_lshlrev_b32 v5, 11, v5
    v_bfe_u32 v6, v0, 3, 1
    v_lshl_add_u32 v5, v6, 9, v5
    v_lshl_add_u32 v5, v2, 4, v5
    v_add_u32 v5, s41, v5
    v_lshlrev_b32 v7, 2, v3
    v_add_u32 v7, {WS_STAT}, v7
    """)
    for g in range(8):
        e(f"s_mov_b32 s{44 + g}, {g << 21}")
    e.vm(f"buffer_load_dword v8, v7, s[8:11], 0 offen", "st")
    e.vm(f"buffer_load_dwordx4 v[12:15], v4, s[4:7], 0 offen", "x")
    for g in range(8):
        e.vm(f"buffer_load_dwordx4 {rng('v', 16 + 4 * g, 4)}, v5, s[8:11], s{44 + g} offen", ("p", g))
    e("s_waitcnt lgkmcnt(0)")
    e(f"v_cmp_ne_u32 s[52:53], s24, v3")
    for j in range(1, 8):
        e(f"v_cmp_ne_u32 vcc, s{24 + j}, v3")
        e("s_nop 1")
        e(f"s_and_b64 s[52:53], s[52:53], vcc")
    for g in range(8):
        e.need(vtags=[("p", g)])
        for i in range(4):
            r = 16 + 4 * g + i
            if g == 0:
                e(f"v_lshlrev_b32 v{48 + 2 * i}, 16, v{r}")
                e(f"v_and_b32 v{49 + 2 * i}, s{sM}, v{r}")
            else:
                e(f"v_lshlrev_b32 v56, 16, v{r}")
                e(f"v_and_b32 v57, s{sM}, v{r}")
                e(f"v_add_f32 v{48 + 2 * i}, v{48 + 2 * i}, v56")
                e(f"v_add_f32 v{49 + 2 * i}, v{49 + 2 * i}, v57")
    e(f"""
    v_lshlrev_b32 v9, 16, v8              ; mean
    v_and_b32 v10, s{sM}, v8              ; sd
    v_rcp_f32 v10, v10
    """)
    for i in range(4):
        e(f"v_lshlrev_b32 v{60 + 2 * i}, 16, v{12 + i}")
        e(f"v_and_b32 v{61 + 2 * i}, s{sM}, v{12 + i}")
    final_math(e, 8, [48 + i for i in range(8)], [60 + i for i in range(8)], 9, 10, None,
               [60 + i for i in range(8)], 56, sM)
    if perturb is not None:
        kind, delta = perturb
        if kind == "one":
            e(f"""
            v_cmp_eq_u32 vcc, 0, v4
            v_mov_b32 v58, {hex(f2u(delta))}
            s_nop 0
            v_cndmask_b32 v58, 0, v58, vcc
            v_add_f32 v60, v60, v58
            """)
        elif kind == "all":
            for i in range(8):
                e(f"v_add_f32 v{60 + i}, {hex(f2u(delta))}, v{60 + i}")
        elif kind == "mul":
            for i in range(8):
                e(f"v_mul_f32 v{60 + i}, {hex(f2u(delta))}, v{60 + i}")
    for i in range(4):
        e(f"v_cvt_pk_bf16_f32 v{12 + i}, v{60 + 2 * i}, v{61 + 2 * i}")
    e(f"""
    s_and_saveexec_b64 s[54:55], s[52:53]
    s_cbranch_execz {tail}
    buffer_store_dwordx4 v[12:15], v4, s[12:15], 0 offen
    s_branch {tail}
    """)
    e("L_k2_sel:")
    e.vq, e.lq = [], []
    e(f"""
    s_sub_u32 s20, s2, 512
    s_lshr_b32 s21, s20, 3                ; j
    s_and_b32 s22, s20, 7                 ; cb
    s_waitcnt lgkmcnt(0)
    """)
    e("s_mov_b32 s40, s24")
    e("s_mov_b32 s41, s32")
    for j in range(1, 8):
        e(f"s_cmp_eq_u32 s21, {j}")
        e(f"s_cselect_b32 s40, s{24 + j}, s40")
        e(f"s_cselect_b32 s41, s{32 + j}, s41")
    e(f"""
    s_mul_i32 s42, s{sW}, {56 * 16384}
    s_lshl_b32 s43, s21, 11               ; j*2048
    s_add_u32 s42, s42, s43
    s_lshl_b32 s43, s22, 8                ; cb*64*4
    s_add_u32 s42, s42, s43
    s_add_u32 s42, s42, {WS_YP}
    v_lshrrev_b32 v2, 4, v0
    v_lshlrev_b32 v2, 14, v2
    v_and_b32 v3, 15, v0
    v_lshl_add_u32 v2, v3, 4, v2
    v_add_u32 v2, s42, v2
    s_mov_b32 s43, 0
    """)
    for i in range(14):
        e.vm(f"buffer_load_dwordx4 {rng('v', 16 + 4 * i, 4)}, v2, s[8:11], s43 offen", ("y", i))
        e(f"s_add_u32 s43, s43, {4 * 16384}")
    e(f"""
    s_lshl_b32 s43, s22, 7
    s_lshl_b32 s44, s40, 10
    s_add_u32 s43, s43, s44
    v_lshlrev_b32 v4, 3, v3
    v_add_u32 v4, s43, v4
    s_lshl_b32 s44, s40, 2
    s_add_u32 s44, s44, {WS_STAT}
    v_mov_b32 v7, s44
    s_lshr_b32 s44, s40, 6
    s_lshl_b32 s44, s44, 16
    s_lshr_b32 s45, s22, 1
    s_lshl_b32 s45, s45, 14
    s_add_u32 s44, s44, s45
    s_and_b32 s45, s22, 1
    s_lshl_b32 s45, s45, 13
    s_add_u32 s44, s44, s45
    s_bfe_u32 s45, s40, {5 | (1 << 16)}
    s_lshl_b32 s45, s45, 10
    s_add_u32 s44, s44, s45
    s_and_b32 s45, s40, 31
    s_lshl_b32 s45, s45, 4
    s_add_u32 s44, s44, s45
    v_lshrrev_b32 v5, 2, v3
    v_lshlrev_b32 v5, 11, v5
    v_bfe_u32 v6, v3, 1, 1
    v_lshl_add_u32 v5, v6, 9, v5
    v_and_b32 v6, 1, v3
    v_lshl_add_u32 v5, v6, 3, v5
    v_add_u32 v5, s44, v5
    """)
    for g in range(8):
        e(f"s_mov_b32 s{56 + g}, {g << 21}")
    e.vm(f"buffer_load_dword v8, v7, s[8:11], 0 offen", "st")
    e.vm(f"buffer_load_dwordx2 v[12:13], v4, s[4:7], 0 offen", "x")
    for g in range(8):
        e.vm(f"buffer_load_dwordx2 {rng('v', 80 + 2 * g, 2)}, v5, s[8:11], s{56 + g} offen", ("p", g))
    for i in range(14):
        e.need(vtags=[("y", i)])
        if i > 0:
            for q in range(4):
                e(f"v_add_f32 v{16 + q}, v{16 + q}, v{16 + 4 * i + q}")
    for q in range(4):
        e(f"v_mov_b32 v{20 + q}, v{16 + q}")
    e("s_nop 0")
    for q in range(4):
        e(f"v_permlane32_swap_b32 v{16 + q}, v{20 + q}")
    for q in range(4):
        e(f"v_add_f32 v{16 + q}, v{16 + q}, v{20 + q}")
    for q in range(4):
        e(f"v_mov_b32 v{20 + q}, v{16 + q}")
    e("s_nop 0")
    for q in range(4):
        e(f"v_permlane16_swap_b32 v{16 + q}, v{20 + q}")
    for q in range(4):
        e(f"v_add_f32 v{16 + q}, v{16 + q}, v{20 + q}")
    e(f"""
    s_lshl_b32 s43, s{sW}, 10
    v_lshlrev_b32 v24, 4, v0
    v_add_u32 v25, s43, v24
    ds_write_b128 v25, v[16:19]
    s_waitcnt lgkmcnt(0)
    s_barrier
    s_cmp_lg_u32 s{sW}, 0
    s_cbranch_scc1 {tail}
    ds_read_b128 v[16:19], v24
    ds_read_b128 v[20:23], v24 offset:1024
    ds_read_b128 v[28:31], v24 offset:2048
    ds_read_b128 v[32:35], v24 offset:3072
    s_waitcnt lgkmcnt(0)
    """)
    for q in range(4):
        e(f"v_add_f32 v{16 + q}, v{16 + q}, v{20 + q}")
        e(f"v_add_f32 v{28 + q}, v{28 + q}, v{32 + q}")
        e(f"v_add_f32 v{16 + q}, v{16 + q}, v{28 + q}")
    for q in range(4):
        e(f"v_cvt_pk_bf16_f32 v{16 + q}, v{16 + q}, v{16 + q}")
        e(f"v_and_b32 v{16 + q}, s{sM}, v{16 + q}")
        e(f"v_mul_f32 v{16 + q}, s41, v{16 + q}")
        e(f"v_cvt_pk_bf16_f32 v{16 + q}, v{16 + q}, v{16 + q}")
        e(f"v_and_b32 v{16 + q}, s{sM}, v{16 + q}")
    e.need(vtags=[("p", 7)])
    for g in range(8):
        for i in range(2):
            r = 80 + 2 * g + i
            if g == 0:
                e(f"v_lshlrev_b32 v{48 + 2 * i}, 16, v{r}")
                e(f"v_and_b32 v{49 + 2 * i}, s{sM}, v{r}")
            else:
                e(f"v_lshlrev_b32 v56, 16, v{r}")
                e(f"v_and_b32 v57, s{sM}, v{r}")
                e(f"v_add_f32 v{48 + 2 * i}, v{48 + 2 * i}, v56")
                e(f"v_add_f32 v{49 + 2 * i}, v{49 + 2 * i}, v57")
    e(f"""
    v_lshlrev_b32 v9, 16, v8
    v_and_b32 v10, s{sM}, v8
    v_rcp_f32 v10, v10
    """)
    for i in range(2):
        e(f"v_lshlrev_b32 v{60 + 2 * i}, 16, v{12 + i}")
        e(f"v_and_b32 v{61 + 2 * i}, s{sM}, v{12 + i}")
    final_math(e, 4, [48 + i for i in range(4)], [60 + i for i in range(4)], 9, 10, [16 + i for i in range(4)],
               [60 + i for i in range(4)], 56, sM)
    for i in range(2):
        e(f"v_cvt_pk_bf16_f32 v{12 + i}, v{60 + 2 * i}, v{61 + 2 * i}")
    e(f"""
    v_cmp_gt_u32 vcc, 16, v0
    s_nop 0
    s_and_saveexec_b64 s[54:55], vcc
    buffer_store_dwordx2 v[12:13], v4, s[12:15], 0 offen
    """)
    e(f"{tail}:")
    ts_end(e, ts, S_WS, WS_TS + (2 << 20), sW)
    e(f"{done}:")
    e("s_endpgm")
    probs = check_hazards(e.l, "k2")
    if probs:
        print("\n".join(probs[:40]))
        raise SystemExit("hazards")
    return e.text()


SORT8 = [(0, 1), (2, 3), (4, 5), (6, 7), (0, 2), (1, 3), (4, 6), (5, 7), (1, 2), (5, 6), (0, 4), (3, 7),
         (1, 5), (2, 6), (1, 4), (3, 6), (2, 4), (3, 5), (3, 4)]


def _check_sort8():
    import itertools
    for bits in itertools.product([0, 1], repeat=8):
        a = list(bits)
        for i, j in SORT8:
            if a[i] < a[j]:
                a[i], a[j] = a[j], a[i]
        assert a == sorted(a, reverse=True)


_check_sort8()


def keys_from_r(e, K, vidx, sM, tmp):
    for i in range(8):
        r = K[i]
        e(f"v_ashrrev_i32 v{tmp}, 31, v{r}")
        e(f"v_or_b32 v{tmp}, 0x80000000, v{tmp}")
        e(f"v_xor_b32 v{r}, v{r}, v{tmp}")
        e(f"v_and_or_b32 v{r}, v{r}, s{sM}, v{vidx}")
        if i < 7:
            e(f"v_subrev_u32 v{vidx}, 1, v{vidx}")


def wave_top8(e, K, spare, vres, vt, stmp, smask):
    K = list(K)
    free = spare
    for (i, j) in SORT8:
        e(f"v_max_u32 v{free}, v{K[i]}, v{K[j]}")
        e(f"v_min_u32 v{K[j]}, v{K[i]}, v{K[j]}")
        K[i], free = free, K[i]
    e(f"v_mov_b32 v{vres}, 0")
    for rd in range(8):
        e(f"v_mov_b32 v{vt}, v{K[0]}")
        wave_max_u32(e, vt, stmp)
        e("s_nop 1")
        e(f"v_writelane_b32 v{vres}, s{stmp}, {rd}")
        if rd < 7:
            e(f"v_cmp_eq_u32 s[{smask}:{smask + 1}], s{stmp}, v{K[0]}")
            e("s_nop 1")
            for q in range(7 - rd):
                e(f"v_cndmask_b32 v{K[q]}, v{K[q]}, v{K[q + 1]}, s[{smask}:{smask + 1}]")


def moe_tail(e, R):
    from k1 import RB, WSTR, SLOT
    T = R["T"]
    sW, sRING, sM = R["W"], R["RING"], R["M"]
    S_X, S_WS = R["X"], R["WS"]
    sRO, sSO = T[0], T[1]
    sA, sB, sC_, sD = T[2], T[3], T[4], T[5]
    mk = [T[6], T[8], T[10], T[12]]
    e(f"s_mov_b32 s{sRO}, {WS_R}")
    e(f"s_mov_b32 s{sSO}, {WS_STAT}")
    e("L_moe_have_r:")
    K = [8 + i for i in range(8)]
    for i in range(8):
        e(f"v_accvgpr_read_b32 v{K[i]}, a{200 + i}")
    e("L_moe_keys:")
    e(f"""
    s_lshl_b32 s{sA}, s{sW}, 9
    v_lshlrev_b32 v6, 3, v0
    v_add_u32 v6, s{sA}, v6
    v_sub_u32 v6, 2047, v6
    """)
    st = R.get("stamp", lambda n: None)
    keys_from_r(e, K, 6, sM, 7)
    wave_top8(e, K, 16, 20, 17, sA, mk[0])
    st("top8")
    e(f"""
    v_mov_b32 v21, s{R['RDY']}
    v_cmp_eq_u32 vcc, 8, v0
    v_lshlrev_b32 v22, 2, v0
    v_add_u32 v22, s{sRING}, v22
    v_cndmask_b32 v20, v20, v21, vcc
    v_cmp_gt_u32 vcc, 9, v0
    s_nop 1
    s_and_saveexec_b64 s[{mk[0]}:{mk[0] + 1}], vcc
    ds_write_b32 v22, v20
    s_mov_b64 exec, s[{mk[0]}:{mk[0] + 1}]
    s_waitcnt lgkmcnt(0)
    s_barrier
    """)
    e(f"""
    v_lshrrev_b32 v21, 3, v0
    v_and_b32 v21, 3, v21
    v_mul_u32_u24 v21, {WSTR}, v21
    v_and_b32 v22, 7, v0
    v_lshl_add_u32 v21, v22, 2, v21
    v_mov_b32 v23, {RB}
    v_add_u32 v21, v23, v21
    ds_read_b32 v24, v21
    """)
    for w_ in range(4):
        e(f"v_add_u32 v{100 + w_}, {w_ * WSTR}, v23")
    for w_ in range(4):
        e(f"ds_read_b128 v[{32 + 8 * w_}:{35 + 8 * w_}], v{100 + w_}")
        e(f"ds_read_b128 v[{36 + 8 * w_}:{39 + 8 * w_}], v{100 + w_} offset:16")
        e(f"ds_read_b32 v{104 + w_}, v{100 + w_} offset:32")
    e(f"""
    s_waitcnt lgkmcnt(0)
    v_and_b32 v104, v104, v105
    v_and_b32 v106, v106, v107
    v_and_b32 v104, v104, v106
    v_mov_b32 v25, 0
    v_readfirstlane_b32 s{sA}, v104
    s_nop 0
    s_cmp_eq_u32 s{sA}, 0
    s_cbranch_scc1 L_moe_slow
    """)
    for j0 in range(0, 32, 4):
        for q in range(4):
            e(f"v_cmp_gt_u32 s[{mk[q]}:{mk[q] + 1}], v{32 + j0 + q}, v24")
        for q in range(4):
            e(f"v_addc_co_u32 v25, vcc, 0, v25, s[{mk[q]}:{mk[q] + 1}]")
    e(f"""
    v_cmp_gt_u32 s[{mk[0]}:{mk[0] + 1}], 8, v25
    v_cmp_gt_u32 vcc, 32, v0
    v_lshlrev_b32 v26, 2, v25
    v_add_u32 v26, s{sRING}, v26
    s_and_b64 vcc, vcc, s[{mk[0]}:{mk[0] + 1}]
    s_and_saveexec_b64 s[{mk[1]}:{mk[1] + 1}], vcc
    ds_write_b32 v26, v24 offset:64
    s_mov_b64 exec, s[{mk[1]}:{mk[1] + 1}]
    v_and_b32 v22, 7, v0
    v_lshlrev_b32 v22, 2, v22
    v_add_u32 v22, s{sRING}, v22
    ds_read_b32 v23, v22 offset:64
    s_waitcnt lgkmcnt(0)
    v_and_b32 v26, 0x7ff, v23
    v_sub_u32 v26, 2047, v26
    """)
    st("merge")
    e(f"""
    v_lshrrev_b32 v30, 4, v0
    v_lshlrev_b32 v30, 4, v30             ; q4*16
    v_lshl_add_u32 v30, v26, 10, v30
    s_lshl_b32 s{sA}, s{sW}, 8            ; 4w*64 bytes
    v_lshlrev_b32 v31, 2, v26
    v_add_u32 v31, s{sSO}, v31
    """)
    e.vq, e.lq = ["old"], []
    e.vm(f"buffer_load_dword v32, v31, s[{S_WS}:{S_WS + 3}], 0 offen sc1", "st")
    for i in range(4):
        e.vm(f"buffer_load_dwordx4 {rng('v', 36 + 4 * i, 4)}, v30, s[{S_X}:{S_X + 3}], s{sA} offen offset:{64 * i}",
             ("xg", i))
    e(f"""
    v_and_b32 v27, s{sM}, v23
    v_ashrrev_i32 v28, 31, v27
    v_not_b32 v28, v28
    v_or_b32 v28, 0x80000000, v28
    v_xor_b32 v27, v27, v28
    v_and_b32 v27, s{sM}, v27             ; r (f32 bits)
    v_mul_f32 v28, {hex(f2u(-LOG2E))}, v27
    v_exp_f32 v28, v28
    s_nop 0
    v_add_f32 v28, 1.0, v28
    v_rcp_f32 v28, v28
    s_nop 0
    v_cvt_pk_bf16_f32 v28, v28, v28
    v_and_b32 v28, s{sM}, v28             ; bf16(sigmoid(r))
    v_lshlrev_b32 v29, 2, v0
    v_add_u32 v29, {WS_IDX}, v29
    v_mov_b32 v33, 0x7ffffff0
    s_or_b32 s{sA}, s{R['SL']}, s{sW}
    s_cmp_eq_u32 s{sA}, 0
    s_cselect_b64 s[{mk[0]}:{mk[0] + 1}], -1, 0
    v_cmp_gt_u32 vcc, 8, v0
    s_nop 1
    s_and_b64 vcc, vcc, s[{mk[0]}:{mk[0] + 1}]
    v_cndmask_b32 v29, v33, v29, vcc
    """)
    e.vm(f"buffer_store_dword v26, v29, s[{S_WS}:{S_WS + 3}], 0 offen", "pub")
    e.vm(f"buffer_store_dword v28, v29, s[{S_WS}:{S_WS + 3}], 0 offen offset:32", "pub")
    e.need(vtags=["st"])
    e(f"""
    v_lshlrev_b32 v33, 16, v32            ; mean
    v_and_b32 v34, s{sM}, v32             ; sd
    v_rcp_f32 v34, v34
    """)
    e.need(vtags=[("xg", 3)])
    st("gather")
    for i in range(16):
        r = 36 + i
        e(f"""
        v_lshlrev_b32 v52, 16, v{r}
        v_and_b32 v53, s{sM}, v{r}
        v_sub_f32 v52, v52, v33
        v_sub_f32 v53, v53, v33
        v_cvt_pk_bf16_f32 v52, v52, v53
        v_and_b32 v53, s{sM}, v52
        v_lshlrev_b32 v52, 16, v52
        v_mul_f32 v52, v52, v34
        v_mul_f32 v53, v53, v34
        v_cvt_pk_bf16_f32 v{r}, v52, v53
        """)
    st("ln")
    e(f"""
    v_bfe_u32 v54, v0, 2, 2               ; r
    v_lshrrev_b32 v55, 4, v0              ; q4
    v_lshl_add_u32 v54, v55, 3, v54       ; 8 q4 + r
    v_lshlrev_b32 v54, 4, v54
    v_and_b32 v55, 1, v0
    v_lshl_add_u32 v54, v55, 3, v54       ; + (c&1)*8
    v_bfe_u32 v55, v0, 1, 1
    v_lshl_add_u32 v54, v55, 11, v54      ; + U
    v_add_u32 v54, s{sRING}, v54
    """)
    for i in range(4):
        for rd in range(2):
            e.lds(f"ds_read_b64_tr_b16 {rng('v', 64 + 4 * i + 2 * rd, 2)}, v54 offset:{SLOT + i * 512 + rd * 64}", ("fa", i))
    for i in range(4):
        e.need(ltags=[("fa", i)])
        c = "0" if i == 0 else "v[56:59]"
        e(f"v_mfma_f32_16x16x32_bf16 v[56:59], {rng('v', 64 + 4 * i, 4)}, {rng('v', 36 + 4 * i, 4)}, {c}")
    e(f"""
    v_bfe_u32 v54, v0, 2, 2               ; r
    v_bfe_u32 v55, v0, 4, 1               ; q4 & 1
    v_lshl_add_u32 v54, v55, 2, v54       ; row 0..7
    v_lshlrev_b32 v54, 8, v54
    v_and_b32 v55, 3, v0
    v_lshl_add_u32 v54, v55, 3, v54       ; + c*8
    v_add_u32 v54, s{sRING}, v54
    """)
    for t in range(8):
        e.lds(f"ds_read_b64_tr_b16 {rng('v', 88 + 4 * t, 2)}, v54 offset:{SLOT + 4096 + t * 32}", ("da", t))
        e(f"v_mov_b32 v{90 + 4 * t}, 0")
        e(f"v_mov_b32 v{91 + 4 * t}, 0")
    e(f"""
    v_lshlrev_b32 v60, 4, v0
    v_add_u32 v61, s{sRING}, v60
    ds_write_b128 v61, v[56:59] offset:{2 * SLOT}
    s_waitcnt lgkmcnt(0)
    s_barrier
    v_add_u32 v60, {RB + 2 * SLOT}, v60
    v_add_u32 v61, {WSTR}, v60
    v_add_u32 v62, {2 * WSTR}, v60
    v_add_u32 v63, {3 * WSTR}, v60
    ds_read_b128 v[64:67], v60
    ds_read_b128 v[68:71], v61
    ds_read_b128 v[72:75], v62
    ds_read_b128 v[76:79], v63
    s_waitcnt lgkmcnt(0)
    """)
    e.lq = []
    for i in range(4):
        e(f"v_add_f32 v{64 + i}, v{64 + i}, v{68 + i}")
        e(f"v_add_f32 v{72 + i}, v{72 + i}, v{76 + i}")
        e(f"v_add_f32 v{64 + i}, v{64 + i}, v{72 + i}")
    for i in range(4):
        e(f"v_cvt_pk_bf16_f32 v{64 + i}, v{64 + i}, v{64 + i}")
        e(f"v_and_b32 v{64 + i}, s{sM}, v{64 + i}")
        e(f"v_mov_b32 v{68 + i}, v{64 + i}")
    e("s_nop 0")
    for i in range(4):
        e(f"v_permlane32_swap_b32 v{64 + i}, v{68 + i}")
    for i in range(4):
        silu_bf16(e, 72 + i, 64 + i, 76, 77, sM)
        e(f"v_mul_f32 v{72 + i}, v{72 + i}, v{68 + i}")
    e(f"""
    v_cvt_pk_bf16_f32 v80, v72, v73
    v_cvt_pk_bf16_f32 v81, v74, v75
    v_cmp_gt_u32 vcc, 32, v0
    v_mov_b32 v82, 0
    v_mov_b32 v83, 0
    v_cndmask_b32 v80, 0, v80, vcc
    v_cndmask_b32 v81, 0, v81, vcc
    s_nop 1
    """)
    for t in range(8):
        e(f"v_mfma_f32_16x16x32_bf16 {rng('v', 120 + 4 * t, 4)}, {rng('v', 88 + 4 * t, 4)}, v[80:83], 0")
    e(f"""
    s_lshl_b32 s{sA}, s{R['SL']}, 14
    s_lshl_b32 s{sB}, s{sW}, 9            ; 8w*16*4 bytes
    s_add_u32 s{sA}, s{sA}, s{sB}
    s_add_u32 s{sA}, s{sA}, {WS_YP}
    v_and_b32 v60, 15, v0
    v_lshlrev_b32 v61, 11, v60
    v_lshrrev_b32 v62, 4, v0
    v_lshl_add_u32 v61, v62, 4, v61
    v_add_u32 v61, s{sA}, v61
    v_mov_b32 v63, 0x1ffffff0
    v_cmp_gt_u32 vcc, 8, v60
    s_nop 1
    v_cndmask_b32 v61, v63, v61, vcc
    s_nop 1
    """)
    for t in range(8):
        e(f"buffer_store_dwordx4 {rng('v', 120 + 4 * t, 4)}, v61, s[{S_WS}:{S_WS + 3}], 0 offen offset:{t * 64}")
    e(f"s_branch {R['done']}")

    e("L_moe_slow:")
    dbg = R["DBG"]
    e(f"""
    s_barrier
    s_mov_b32 s{sB}, {R.get('spin', 4000)}
    v_mov_b32 v21, 0
    L_moe_spin:
    global_load_dword v22, v21, s[{dbg}:{dbg + 1}] sc1
    s_waitcnt vmcnt(0)
    v_readfirstlane_b32 s{sA}, v22
    s_nop 0
    s_cmp_ge_u32 s{sA}, 32
    s_cbranch_scc1 L_moe_spin_ok
    s_sleep 8
    s_sub_u32 s{sB}, s{sB}, 1
    s_cmp_lg_u32 s{sB}, 0
    s_cbranch_scc1 L_moe_spin
    L_moe_spin_ok:
    s_cmp_ge_u32 s{sA}, 32
    s_cselect_b32 s{sA}, 1, 0
    v_mov_b32 v22, s{sA}
    v_mov_b32 v23, s{sRING}
    ds_write_b32 v23, v22 offset:128
    s_waitcnt lgkmcnt(0)
    s_barrier
    v_mov_b32 v23, {RB}
    ds_read_b32 v32, v23 offset:128
    ds_read_b32 v33, v23 offset:{WSTR + 128}
    ds_read_b32 v34, v23 offset:{2 * WSTR + 128}
    v_add_u32 v23, {3 * WSTR}, v23
    ds_read_b32 v35, v23 offset:128
    s_waitcnt lgkmcnt(0)
    v_and_b32 v32, v32, v33
    v_and_b32 v34, v34, v35
    v_and_b32 v32, v32, v34
    s_nop 0
    v_readfirstlane_b32 s{sA}, v32
    s_nop 0
    s_cmp_eq_u32 s{sA}, 1
    s_cbranch_scc1 L_moe_reload
    """)
    e(f"""
    s_lshl_b32 s{sRO}, s{R['SL']}, 14
    s_add_u32 s{sRO}, s{sRO}, {WS_FB}
    s_add_u32 s{sSO}, s{sRO}, 8192
    v_lshlrev_b32 v21, 4, v0
    buffer_load_dwordx4 v[40:43], v21, s[{R['WR']}:{R['WR'] + 3}], 0 offen
    s_lshl_b32 s{sB}, s{sW}, 9
    s_add_u32 s{sC_}, s{sB}, 512
    s_waitcnt vmcnt(0)
    """)
    for i in range(4):
        e(f"v_lshlrev_b32 v{44 + 2 * i}, 16, v{40 + i}")
        e(f"v_and_b32 v{45 + 2 * i}, s{sM}, v{40 + i}")
    e(f"""
    L_moe_fb:
    s_lshl_b32 s{sA}, s{sB}, 10
    buffer_load_dwordx4 v[40:43], v21, s[{S_X}:{S_X + 3}], s{sA} offen
    s_waitcnt vmcnt(0)
    """)
    for i in range(4):
        e(f"v_lshlrev_b32 v{56 + 2 * i}, 16, v{40 + i}")
        e(f"v_and_b32 v{57 + 2 * i}, s{sM}, v{40 + i}")

    def wave_sum(v, t):
        for x in (1, 2, 4, 8):
            e(f"s_nop 1")
            e(f"v_add_f32_dpp v{v}, v{v}, v{v} row_ror:{x} row_mask:0xf bank_mask:0xf")
        e(f"v_mov_b32 v{t}, v{v}")
        e("s_nop 1")
        e(f"v_permlane16_swap_b32 v{v}, v{t}")
        e("s_nop 0")
        e(f"v_add_f32 v{v}, v{v}, v{t}")
        e(f"v_mov_b32 v{t}, v{v}")
        e("s_nop 1")
        e(f"v_permlane32_swap_b32 v{v}, v{t}")
        e("s_nop 0")
        e(f"v_add_f32 v{v}, v{v}, v{t}")
    e("v_add_f32 v64, v56, v57")
    for i in range(2, 8):
        e(f"v_add_f32 v64, v64, v{56 + i}")
    wave_sum(64, 65)
    e(f"v_mul_f32 v64, {hex(f2u(1.0 / 512))}, v64        ; mean")
    e("v_sub_f32 v66, v56, v64")
    e("v_mul_f32 v67, v66, v66")
    for i in range(1, 8):
        e(f"v_sub_f32 v66, v{56 + i}, v64")
        e(f"v_fmac_f32 v67, v66, v66")
    wave_sum(67, 65)
    e(f"""
    v_mul_f32 v67, {hex(f2u(1.0 / 512))}, v67
    v_cvt_pk_bf16_f32 v68, v64, v67
    v_and_b32 v69, s{sM}, v68
    v_add_f32 v69, {hex(f2u(1e-5))}, v69
    v_cvt_pk_bf16_f32 v69, v69, v69
    v_and_b32 v69, s{sM}, v69
    v_sqrt_f32 v69, v69
    v_lshlrev_b32 v64, 16, v68
    v_cvt_pk_bf16_f32 v69, v69, v69
    v_and_b32 v69, s{sM}, v69             ; sd
    v_rcp_f32 v70, v69
    v_and_b32 v68, 0xffff, v68
    v_or_b32 v68, v68, v69
    v_mov_b32 v71, 0
    """)
    for i in range(8):
        e(f"""
        v_sub_f32 v66, v{56 + i}, v64
        v_mul_f32 v66, v66, v70
        v_cvt_pk_bf16_f32 v66, v66, v66
        v_and_b32 v66, s{sM}, v66
        v_fmac_f32 v71, v66, v{44 + i}
        """)
    wave_sum(71, 65)
    e(f"""
    v_cvt_pk_bf16_f32 v71, v71, v71
    v_and_b32 v71, s{sM}, v71
    s_lshl_b32 s{sA}, s{sB}, 2
    v_mov_b32 v72, s{sA}
    v_add_u32 v73, s{sRO}, v72
    v_add_u32 v74, s{sSO}, v72
    v_cmp_eq_u32 vcc, 0, v0
    s_nop 1
    s_and_saveexec_b64 s[{mk[0]}:{mk[0] + 1}], vcc
    buffer_store_dword v71, v73, s[{S_WS}:{S_WS + 3}], 0 offen sc1
    buffer_store_dword v68, v74, s[{S_WS}:{S_WS + 3}], 0 offen sc1
    s_mov_b64 exec, s[{mk[0]}:{mk[0] + 1}]
    s_add_u32 s{sB}, s{sB}, 1
    s_cmp_lt_u32 s{sB}, s{sC_}
    s_cbranch_scc1 L_moe_fb
    s_waitcnt vmcnt(0)
    s_barrier
    L_moe_reload:
    s_lshl_b32 s{sA}, s{sW}, 11
    v_lshlrev_b32 v21, 5, v0
    v_add_u32 v21, s{sA}, v21
    v_add_u32 v21, s{sRO}, v21
    buffer_load_dwordx4 v[8:11], v21, s[{S_WS}:{S_WS + 3}], 0 offen sc1
    buffer_load_dwordx4 v[12:15], v21, s[{S_WS}:{S_WS + 3}], 0 offen offset:16 sc1
    s_mov_b32 s{R['RDY']}, 1
    s_waitcnt vmcnt(0)
    s_barrier
    s_branch L_moe_keys
    """)


WS_FB = 24 << 20
```

```python
import sys
sys.path.insert(0, "dev")
from asmlib import header, kstart, kdesc, NAME
import k1, moe

HDR = """; Kernarg layout (104 bytes, pointers only): x, k_cache, v_cache, wq, wo, B_x (unused), w_r, w_gate, w_up, w_down, out, debug, ws
"""

DEF = dict(map="C", gskew=1, dma_from=2)


def build(path, opt=None, stamps=False, with_moe=False, perturb=None):
    o = dict(DEF)
    o.update(opt or {})
    opt = o
    launches = [("mainfused_kernel", 256, 256, 163840)]
    if with_moe:
        launches.append(("moeffn_kernel", 224, 256, 32768))
    launches.append((NAME + "_kernel", 576, 256, 4096))
    s = HDR + header(launches)
    lab = "mainfused_kernel"
    s += kstart(lab) + k1.gen_k1(lab, stamps=stamps, opt=opt) + kdesc(lab, 512, accum=256)
    if with_moe:
        lab = "moeffn_kernel"
        s += kstart(lab) + moe.gen_km(lab, ts=bool(stamps)) + kdesc(lab, 160, sgpr=80)
    lab = NAME + "_kernel"
    s += kstart(lab) + moe.gen_k2(lab, ts=bool(stamps) and not opt.get('dbgcopy'), perturb=perturb, dbgcopy=opt.get('dbgcopy')) + kdesc(lab, 112, sgpr=80)
    open(path, "w").write(s)

if __name__ == "__main__":
    build("full.s")
    build("full_dbg.s", stamps="s_memrealtime", opt=dict(dbgcopy=1))
```

```python
from emit import E, check_hazards
from asmlib import KA

RB = 65536
WSTR = 24576
SLOT = 8192
C_SCALE = 1.4426950408889634 * (128 ** -0.5)

WS_PART = 0
WS_R = 16 << 20
WS_STAT = WS_R + 8192
WS_H = WS_R + 65536
WS_IDX = WS_H + 32768
WS_TS = 32 << 20


def f2u(x):
    import struct
    return struct.unpack("<I", struct.pack("<f", x))[0]


S_X, S_WQ, S_K, S_V, S_WO, S_WS, S_WR = 4, 8, 12, 16, 20, 24, 28
sG, sTB, sW, sSK = 32, 33, 34, 35
sWQO, sWOO, sKO, sVO = 36, 37, 38, 39
sRING = 40
sCNT = 41
sT0, sT1, sT2, sT3 = 42, 43, 44, 45
sKSL, sVSL = 46, 47
sKD, sVD = 48, 49
sTRIP = 50
sGA = 52
sGB = 56
sGAO, sGBO = 60, 61
sGAM, sGBM = 62, 63
sMASK = 64
sPASS = 70
sKVB = 71
sKVT = 51
sDBG = 72
sSL = 98
sRDY = 99
sFP = 92
sTS = 74

vLANE = 0
vWQ = 1
vWO = 5
vKDM = 9
vVDM = 13
vAA = 14
vAB = 22
vBR = 30
vKR = 32
vVR = 40
vGA = 44
vGB = 48
vL = 52
vOW = 56
vPS = 57
vT = 58
vQ = 64
vS = 128
vP = 192
vNM = 224
vACC = 128

aA = 0
aB = 96
aF = 0
aO = 128


def rng(f, b, n):
    return f"{f}[{b}:{b + n - 1}]" if n > 1 else f"{f}{b}"


def Bset(setidx, tq):
    if setidx < 2:
        return rng("a", aB + setidx * 16 + tq * 4, 4)
    return rng("v", 64 + tq * 4, 4)


def Aset(setidx, dt):
    return rng("a", aA + setidx * 32 + dt * 4, 4)


def Ahalf(setidx, dt, rd):
    return rng("a", aA + setidx * 32 + dt * 4 + 2 * rd, 2)


def acc16(dt, tq):
    return rng("v", vACC + (dt * 4 + tq) * 4, 4)


OPT = {}


class Slots:
    def __init__(self, n):
        self.n = n
        self.f = [[] for _ in range(n + 1)]

    def at(self, i, fn):
        self.f[min(max(i, 0), self.n)].append(fn)


def gemm_step(e, p, phase, opts):
    j = p % 3
    jn = (p + 1) % 3
    va = vAA if phase == 1 else vAB
    rdoff = 1024 if phase == 1 else 2048
    sl = Slots(32)
    if opts.get("next", True):
        reads = []
        for dt in range(8):
            for rd in range(2):
                reads.append((dt, rd))
        spread = opts.get("aspread", 10)
        for n, (dt, rd) in enumerate(reads):
            def f(dt=dt, rd=rd):
                if OPT.get("noaread"):
                    return
                e.lds(f"ds_read_b64_tr_b16 {Ahalf(jn, dt, rd)}, v{va + dt} offset:{jn * SLOT + rd * rdoff}",
                      ("A", p + 1, dt))
            sl.at(n * spread // 16, f)
        for tq in range(4):
            def f(tq=tq):
                e.lds(f"ds_read_b128 {Bset(jn, tq)}, v{vBR} offset:{opts['boff_next'] + tq * 1024}", ("B", p + 1, tq))
            sl.at(spread + 1 + tq, f)
    for pos, fn in opts.get("fill", []):
        sl.at(pos, fn)
    if opts.get("next", True):
        e.need(vtags=opts.get("vneed"))
    for n in range(32):
        dt, tq = n // 4, n % 4
        need = [("A", p, dt), ("B", p, tq)]
        e.need(ltags=need)
        c = "0" if opts.get("first") else acc16(dt, tq)
        e(f"v_mfma_f32_16x16x32_bf16 {acc16(dt, tq)}, {Aset(j, dt)}, {Bset(j, tq)}, {c}")
        for fn in sl.f[n]:
            fn()
    for fn in sl.f[32]:
        fn()


def wdma(e, phase, i, tag):
    if OPT.get("nodma") and tag[1] > 3:
        e.vq.append(tag)
        return
    if phase == 1:
        e.vm(f"buffer_load_dwordx4 v{vWQ + i}, s[{S_WQ}:{S_WQ + 3}], s{sWQO} offen offset:{i * 1024} lds", tag)
    else:
        e.vm(f"buffer_load_dwordx4 v{vWO + i}, s[{S_WO}:{S_WO + 3}], s{sWOO} offen offset:{i * 1024} lds", tag)


def wdma_adv(e, phase):
    if phase == 1:
        e(f"s_add_u32 s{sWQO}, s{sWQO}, {16 * 8192}")
        e(f"s_and_b32 s{sWQO}, s{sWQO}, {512 * 8192 - 1}")
    else:
        e(f"s_add_u32 s{sT0}, s{sWOO}, {16 * 1024}")
        e(f"s_and_b32 s{sT0}, s{sT0}, {512 * 1024 - 1}")
        e(f"s_and_b32 s{sWOO}, s{sWOO}, {~(512 * 1024 - 1) & 0xffffffff}")
        e(f"s_or_b32 s{sWOO}, s{sWOO}, s{sT0}")


def half_dma(e, phase, slot, half, tag):
    def m0():
        e(f"s_add_u32 m0, s{sRING}, {slot * SLOT + half * 4096}")
    out = [m0]
    for i in range(4):
        out.append(lambda i=i: wdma(e, phase, i, tag))
    out.append(lambda: wdma_adv(e, phase))
    return out


def serial(e, fl):
    fl[0]()
    e("s_nop 0")
    for fn in fl[1:]:
        fn()


def place(fl, start, stride):
    res = [(start, fl[0])]
    for i in range(4):
        res.append((start + 1 + i * stride, fl[1 + i]))
    res.append((start + 1 + 3 * stride, fl[5]))
    return res


def kv_dma(e, which, tile_slot, tag):
    out = []
    if which == "K":
        out.append(lambda: e(f"s_add_u32 m0, s{sRING}, {tile_slot * SLOT}"))
        for i in range(4):
            out.append(lambda i=i: e.vm(
                f"buffer_load_dwordx4 v{vKDM + i}, s[{S_K}:{S_K + 3}], s{sKO} offen offset:{i * 1024} lds", tag))
        out.append(lambda: kv_adv(e, sKO))
    else:
        out.append(lambda: e(f"s_add_u32 m0, s{sRING}, {tile_slot * SLOT + 4096}"))
        for i in range(4):
            out.append(lambda i=i: e.vm(
                f"buffer_load_dwordx4 v{vVDM}, s[{S_V}:{S_V + 3}], s{sVO} offen offset:{i * 1024} lds", tag))
        out.append(lambda: kv_adv(e, sVO))
    return out


def kv_adv(e, sreg):
    e(f"s_sub_u32 s{sT0}, s{sreg}, s{sKVB}")
    e(f"s_add_u32 s{sT0}, s{sT0}, 16384")
    e(f"s_and_b32 s{sT0}, s{sT0}, {8 * 16384 - 1}")
    e(f"s_add_u32 s{sreg}, s{sT0}, s{sKVB}")


def gemm_pre(e, phase):
    va = vAA if phase == 1 else vAB
    rdoff = 1024 if phase == 1 else 2048
    e.need(vtags=[("W", 0, 0), ("W", 0, 1)])
    for tq in range(4):
        e.lds(f"ds_read_b128 {Bset(0, tq)}, v{vBR} offset:{tq * 1024}", ("B", 0, tq))
    for dt in range(8):
        for rd in range(2):
            e.lds(f"ds_read_b64_tr_b16 {Ahalf(0, dt, rd)}, v{va + dt} offset:{rd * rdoff}", ("A", 0, dt))


def gemm_main(e, phase, tail_fill):
    e.need(ltags=[("A", 0, 7)])
    serial(e, half_dma(e, phase, 0, 0, ("W", 3, 0)))

    def step_opts(p, boff_next):
        fill = []
        if p + 3 <= 15:
            fill += place(half_dma(e, phase, p % 3, 1, ("W", p + 3, 1)), 1, 4)
        if p + 4 <= 15:
            fl = half_dma(e, phase, (p + 1) % 3, 0, ("W", p + 4, 0))

            def guard(p=p):
                e.need(ltags=[("A", p + 1, 7)])
            fill += [(17, guard)] + place(fl, 17, 4)
        return dict(first=(p == 0), next=(p < 15), boff_next=boff_next, fill=fill,
                    vneed=[("W", p + 1, 0), ("W", p + 1, 1)])

    o = step_opts(0, 1 * 4096)
    gemm_step(e, 0, phase, o)
    lab = f"L_g{phase}_loop"
    e(f"s_mov_b32 s{sCNT}, 3")
    e(f"v_add_u32 v{vBR}, {1 * 4096}, v{vBR}")
    lq0, vq0 = list(e.lq), list(e.vq)
    e(f"{lab}:")
    n0 = len(e.l)
    for u in range(3):
        p = 1 + u
        o = step_opts(p, (u + 1) * 4096)
        if u == 2:
            o["fill"] = o["fill"] + [(29, lambda: e(f"v_add_u32 v{vBR}, {3 * 4096}, v{vBR}")),
                                     (31, lambda: e(f"s_sub_u32 s{sCNT}, s{sCNT}, 1")),
                                     (31, lambda: e(f"s_cmp_lg_u32 s{sCNT}, 0"))]
        gemm_step(e, p, phase, o)
    e(f"s_cbranch_scc1 {lab}")
    body = e.l[n0:]
    probs = check_hazards(body + body, f"gemm{phase} loop x2")
    assert not probs or any(k.startswith("no") for k in OPT), "\n".join(probs[:10])
    sh = lambda q, d: [(t[0], t[1] + d) + tuple(t[2:]) if t else t for t in q]
    assert sh(lq0, 3) == e.lq or OPT.get('noaread'), (lq0, e.lq)
    assert sh(vq0, 3) == e.vq, (vq0, e.vq)
    e.lq, e.vq = sh(e.lq, 6), sh(e.vq, 6)
    for p in range(10, 16):
        o = step_opts(p, (p - 10 + 1) * 4096)
        o["fill"] = o["fill"] + tail_fill(p)
        gemm_step(e, p, phase, o)


def Sreg(par, qb, i=None):
    b = vS + par * 32 + qb * 16
    return rng("v", b, 16) if i is None else f"v{b + i}"


def Preg(par, qb, t):
    return rng("v", vP + par * 16 + qb * 8 + t * 4, 4)


def Qreg(s16, qb):
    return rng("v", vQ + (s16 * 2 + qb) * 4, 4)


def Oreg(db, qb):
    return rng("a", aO + (db * 2 + qb) * 16, 16)


def Fbuf(n, half=None):
    b = aF + (n % 8) * 4
    return rng("a", b, 4) if half is None else rng("a", b + 2 * half, 2)


def k_read(e, b, s16):
    if OPT.get("nokvread"):
        return
    e.lds(f"ds_read_b128 {Fbuf(s16)}, v{vKR + s16} offset:{(b & 1) * 49152}", ("K", b, s16))


def v_read(e, b, f):
    t, db = f // 4, f % 4
    if OPT.get("nokvread"):
        return
    for rd in range(2):
        e.lds(f"ds_read_b64_tr_b16 {Fbuf(8 + f, rd)}, v{vVR + db} offset:{t * WSTR + rd * 2048}", ("V", b, f))


def sm_ops(e, b):
    par = b & 1
    ops = []
    S = lambda x: Sreg(par, x // 16, x % 16)
    exp = lambda x: (lambda: e(f"v_exp_f32 {S(x)}, {S(x)}") if not OPT.get("noexp") else None)
    add = lambda x: (lambda: e(f"v_add_f32 v{vL + (x // 16) * 2 + (x & 1)}, v{vL + (x // 16) * 2 + (x & 1)}, {S(x)}"))
    cvt = lambda k: (lambda: e(f"v_cvt_pk_bf16_f32 v{vP + par * 16 + k}, {S(2 * k)}, {S(2 * k + 1)}"))
    if OPT.get("nosm"):
        return []
    for k in range(16):
        ops.append((2 * k, exp(2 * k)))
        if k > 0:
            ops.append((2 * k, add(2 * k - 2)))
            ops.append((2 * k, cvt(k - 1)))
        ops.append((2 * k + 1, exp(2 * k + 1)))
        if k > 0:
            ops.append((2 * k + 1, add(2 * k - 1)))
    ops.append((32, add(30)))
    ops.append((32, add(31)))
    ops.append((32, cvt(15)))
    return ops


def p2_iter(e, b, qk=True, sm=True, pv=True, look="K", fill=(), vpre=False, smstart=0):
    mf = []
    if qk:
        par = (b + 1) & 1
        for s16 in range(8):
            for qb in range(2):
                c = rng("v", vNM + qb * 16, 16) if s16 == 0 else Sreg(par, qb)
                mf.append((f"v_mfma_f32_32x32x16_bf16 {Sreg(par, qb)}, {Fbuf(s16)}, {Qreg(s16, qb)}, {c}",
                           ("K", b + 1, s16), s16))
    if pv:
        par = (b - 1) & 1
        for f in range(8):
            t, db = f // 4, f % 4
            for qb in range(2):
                mf.append((f"v_mfma_f32_32x32x16_bf16 {Oreg(db, qb)}, {Fbuf(8 + f)}, {Preg(par, qb, t)}, {Oreg(db, qb)}",
                           ("V", b - 1, f), 8 + f))
    n = len(mf)
    sl = Slots(n)
    if qk and pv:
        for f in range(4, 8):
            sl.at(2 * (f - 4) + 1, lambda f=f: k_read(e, b + 1, f))
        for f in range(8):
            sl.at(2 * (f + 4) + 1, lambda f=f: v_read(e, b - 1, f))
        if look == "K":
            for f in range(4):
                sl.at(24 + 2 * f + 1, lambda f=f: k_read(e, b + 2, f))
    elif qk:
        for f in range(4, 8):
            sl.at(2 * (f - 4) + 1, lambda f=f: k_read(e, b + 1, f))
        if look == "K":
            for f in range(4):
                sl.at(8 + 2 * f + 1, lambda f=f: k_read(e, b + 2, f))
    else:
        if vpre:
            for f in range(4):
                v_read(e, b - 1, f)
        for f in range(4, 8):
            sl.at(2 * (f - 4) + 1, lambda f=f: v_read(e, b - 1, f))
        if look == "V":
            for f in range(4):
                sl.at(8 + 2 * f + 1, lambda f=f: v_read(e, b, f))
    if sm:
        ops = sm_ops(e, b)
        for (s, fn) in ops:
            sl.at(smstart + s * (n - smstart) // 32 if s < 32 else n, fn)
    for (s, fn) in fill:
        sl.at(s, fn)
    if vpre and sm:
        pass
    for i, (txt, tag, fi) in enumerate(mf):
        if i % 4 == 0:
            tags = [tag]
            if i + 2 < n:
                tags.append(mf[i + 2][1])
            e.need(ltags=tags)
        e(txt)
        for fn in sl.f[i]:
            fn()
    for fn in sl.f[n]:
        fn()


def gen_k1(label, stamps=False, debug=None, opt=None):
    OPT.clear()
    OPT.update(opt or {})
    e = E()
    nst = [0]

    def stamp(name, wait=True):
        if not stamps:
            return
        k = nst[0]
        assert k < 9
        e(f"{stamps} s[{sTS + 2 * k}:{sTS + 2 * k + 1}]   ; stamp {k} {name}")
        if wait:
            e.wait_all(vm=False)
        nst[0] += 1
    done = f"L_{label}_done"
    e(f"""
    s_cmp_ge_u32 s2, 256
    s_cbranch_scc1 {done}
    s_load_dwordx2 s[4:5], s[0:1], 0
    s_load_dwordx2 s[12:13], s[0:1], 8
    s_load_dwordx2 s[16:17], s[0:1], 16
    s_load_dwordx2 s[8:9], s[0:1], 24
    s_load_dwordx2 s[20:21], s[0:1], {KA['wo']}
    s_load_dwordx2 s[28:29], s[0:1], {KA['wr']}
    s_load_dwordx2 s[24:25], s[0:1], {KA['ws']}
    s_load_dwordx2 s[{sDBG}:{sDBG + 1}], s[0:1], {KA['dbg']}
    s_load_dwordx4 s[{sFP}:{sFP + 3}], s[0:1], {KA['wg']}
    s_load_dwordx2 s[{sFP + 4}:{sFP + 5}], s[0:1], {KA['wd']}
    """)
    stamp("start", wait=False)
    e(f"""
    v_lshrrev_b32 v{vT}, 6, v0
    v_and_b32 v{vLANE}, 63, v0
    v_readfirstlane_b32 s{sW}, v{vT}
    """)
    mp = OPT.get("map", "A")
    if mp == "A":
        e(f"""
        s_and_b32 s{sG}, s2, 7
        s_lshr_b32 s{sTB}, s2, 3
        s_and_b32 s{sSK}, s{sTB}, 15
        s_and_b32 s{sKVT}, s{sTB}, 7
        """)
    elif mp == "B":
        e(f"""
        s_and_b32 s{sT0}, s2, 3
        s_lshl_b32 s{sT0}, s{sT0}, 1
        s_bfe_u32 s{sT1}, s2, {3 | (1 << 16)}
        s_or_b32 s{sG}, s{sT0}, s{sT1}
        s_bfe_u32 s{sT0}, s2, {2 | (1 << 16)}
        s_lshl_b32 s{sT0}, s{sT0}, 4
        s_lshr_b32 s{sT1}, s2, 4
        s_or_b32 s{sTB}, s{sT0}, s{sT1}
        s_and_b32 s{sSK}, s{sTB}, 7
        s_lshl_b32 s{sSK}, s{sSK}, 1
        s_and_b32 s{sKVT}, s{sTB}, 7
        """)
    elif mp == "C":
        e(f"""
        s_and_b32 s{sT0}, s2, 1
        s_lshl_b32 s{sT0}, s{sT0}, 2
        s_bfe_u32 s{sT1}, s2, {3 | (2 << 16)}
        s_or_b32 s{sG}, s{sT0}, s{sT1}
        s_bfe_u32 s{sT0}, s2, {1 | (2 << 16)}
        s_lshl_b32 s{sT0}, s{sT0}, 3
        s_lshr_b32 s{sT1}, s2, 5
        s_or_b32 s{sTB}, s{sT0}, s{sT1}
        s_and_b32 s{sSK}, s{sTB}, 7
        s_lshl_b32 s{sSK}, s{sSK}, 1
        s_and_b32 s{sKVT}, s{sTB}, 7
        """)
        if OPT.get("s4"):
            e(f"""
            s_and_b32 s{sSK}, s{sTB}, 3
            s_lshl_b32 s{sSK}, s{sSK}, 2
            """)
        if OPT.get("gskew"):
            e(f"""
            s_and_b32 s{sT0}, s{sG}, 3
            s_lshl_b32 s{sT0}, s{sT0}, 2
            s_add_u32 s{sSK}, s{sSK}, s{sT0}
            s_and_b32 s{sSK}, s{sSK}, 15
            """)
    L = vLANE
    t0, t1, t2, t3, t4, t5 = vT, vT + 1, vT + 2, vT + 3, vT + 4, vT + 5
    XV0, XV1 = 56, 57
    e(f"""
    v_and_b32 v{t2}, 15, v{L}
    v_lshrrev_b32 v{t3}, 4, v{L}
    s_lshl_b32 s{sT0}, s{sTB}, 6
    s_lshl_b32 s{sT1}, s{sW}, 4
    s_add_u32 s{sT0}, s{sT0}, s{sT1}
    v_lshrrev_b32 v{t0}, 3, v{L}
    v_add_u32 v{t0}, s{sT0}, v{t0}
    v_and_b32 v{t1}, 7, v{L}
    v_xor_b32 v{t1}, v{t1}, v{t3}
    v_lshlrev_b32 v{t1}, 4, v{t1}
    v_lshl_add_u32 v{XV0}, v{t0}, 10, v{t1}
    v_xor_b32 v{XV1}, 64, v{XV0}              ; chunk ^ 4
    v_add_u32 v{XV1}, 8192, v{XV1}            ; +8 tokens
    s_mul_i32 s{sRING}, s{sW}, {WSTR}
    s_add_u32 s{sRING}, s{sRING}, {RB}
    s_lshl_b32 s{sT3}, s{sW}, 10              ; w*1024
    s_lshl_b32 s101, s{sSK}, 6
    s_waitcnt lgkmcnt(0)
    """)
    for (dst, size) in [(S_X, 2097152), (S_K, 4194304), (S_V, 4194304), (S_WQ, 4194304),
                        (S_WO, 4194304), (S_WR, 1024), (S_WS, 0x10000000)]:
        e(f"""
        s_mov_b32 s{dst + 2}, {size}
        s_mov_b32 s{dst + 3}, 0x20000
        """)
    stamp("kernarg", wait=True)
    def xdma(u):
        for hb in range(2):
            e(f"s_add_u32 m0, s{sT3}, {(2 * u + hb) * 4096}")
            e("s_nop 0")
            e.vm(f"buffer_load_dwordx4 v{XV0 + hb}, s[{S_X}:{S_X + 3}], s101 offen lds", ("x", u, hb))
        e(f"s_add_u32 s101, s101, 128")
        e(f"s_and_b32 s101, s101, 1023")

    def wrdma():
        e(f"""
        s_lshl_b32 s{sT0}, s{sSK}, 2
        v_add_u32 v58, s{sT0}, v{L}
        v_and_b32 v58, 63, v58
        v_lshlrev_b32 v58, 4, v58
        s_add_u32 m0, s{sRING}, {2 * SLOT + 4096}
        s_nop 0
        """)
        e.vm(f"buffer_load_dwordx4 v58, s[{S_WR}:{S_WR + 3}], 0 offen lds", ("wr", 0))
    NU0 = OPT.get("nu0", 6)
    for u in range(NU0):
        xdma(u)
    e(f"""
    s_lshl_b32 s{sT0}, s{sG}, 2
    s_add_u32 s{sT0}, s{sT0}, s{sW}
    s_lshl_b32 s{sT0}, s{sT0}, 8            ; head*256
    v_lshlrev_b32 v{t4}, 1, v{t3}
    v_xor_b32 v{t4}, v{t4}, v{t2}
    v_lshlrev_b32 v{t5}, 13, v{t3}           ; rr*8192
    v_add_u32 v{t5}, s{sT0}, v{t5}
    v_lshl_add_u32 v{vWQ}, v{t4}, 4, v{t5}
    v_add_u32 v{vWQ + 1}, {32768 - 1024}, v{vWQ}
    v_xor_b32 v{t4}, 8, v{t4}
    v_lshl_add_u32 v{vWQ + 2}, v{t4}, 4, v{t5}
    v_add_u32 v{vWQ + 2}, {2 * (32768 - 1024)}, v{vWQ + 2}
    v_add_u32 v{vWQ + 3}, {32768 - 1024}, v{vWQ + 2}
    s_lshl_b32 s{sWQO}, s{sSK}, 18
    """)
    wq_pre = []
    for p in range(3):
        for h in range(2):
            fl = half_dma(e, 1, p, h, ("W", p, h))
            for i in range(4):
                grp = []
                if i == 0:
                    grp += [fl[0], lambda: e("s_nop 0")]
                grp.append(fl[1 + i])
                if i == 3:
                    grp.append(fl[5])
                wq_pre.append(grp)
    if OPT.get("early_dma", 0):
        for grp in wq_pre[:OPT["early_dma"]]:
            for fn in grp:
                fn()
        wq_pre = wq_pre[OPT["early_dma"]:]


    r_, c_ = 60, 61
    A0, A1, A2, A3, A4, A5 = 128, 129, 130, 131, 132, 133
    e(f"""
    v_bfe_u32 v{A0}, v{L}, 2, 2              ; r
    v_and_b32 v{A1}, 3, v{L}                 ; c
    v_lshrrev_b32 v{A2}, 4, v{L}             ; q4
    v_and_b32 v{A3}, 1, v{A2}
    v_lshl_or_b32 v{A3}, v{A3}, 2, v{A0}     ; phi
    v_lshlrev_b32 v{A3}, 1, v{A3}            ; f
    v_lshrrev_b32 v{A4}, 1, v{A1}
    v_xor_b32 v{A3}, v{A3}, v{A4}            ; chunk
    v_lshlrev_b32 v{A3}, 4, v{A3}
    v_and_b32 v{A4}, 1, v{A1}
    v_lshl_or_b32 v{A3}, v{A4}, 3, v{A3}     ; + (c&1)*8
    v_lshl_add_u32 v{A4}, v{A2}, 3, v{A0}    ; row
    v_lshl_add_u32 v{A3}, v{A4}, 8, v{A3}
    v_add_u32 v{vAA}, s{sRING}, v{A3}
    """)
    for dt in range(1, 8):
        e(f"v_xor_b32 v{vAA + dt}, {32 * dt}, v{vAA}")
    e(f"""
    v_and_b32 v{A3}, 1, v{A2}
    v_lshl_or_b32 v{A3}, v{A3}, 2, v{A0}
    v_lshrrev_b32 v{A4}, 1, v{A2}
    v_lshl_or_b32 v{A4}, v{A4}, 4, v{A3}     ; row
    v_lshlrev_b32 v{A3}, 1, v{A3}
    v_lshrrev_b32 v{A5}, 1, v{A1}
    v_xor_b32 v{A3}, v{A3}, v{A5}
    v_lshlrev_b32 v{A3}, 4, v{A3}
    v_and_b32 v{A5}, 1, v{A1}
    v_lshl_or_b32 v{A3}, v{A5}, 3, v{A3}
    v_lshl_add_u32 v{A3}, v{A4}, 8, v{A3}
    v_add_u32 v{vAB}, s{sRING}, v{A3}
    """)
    for dt in range(1, 8):
        e(f"v_xor_b32 v{vAB + dt}, {32 * dt}, v{vAB}")
    e(f"""
    v_lshlrev_b32 v{vBR}, 4, v{L}            ; B read: X + l*16
    v_and_b32 v{A3}, 15, v{L}
    v_lshlrev_b32 v{A4}, 1, v{A2}
    v_xor_b32 v{A4}, v{A4}, v{A3}
    s_lshl_b32 s{sT0}, s{sW}, 8
    v_lshlrev_b32 v{A5}, 10, v{A2}
    v_add_u32 v{A5}, s{sT0}, v{A5}
    v_lshl_add_u32 v{vWO}, v{A4}, 4, v{A5}
    v_add_u32 v{vWO + 2}, {2 * 3072}, v{vWO}
    v_xor_b32 v{A4}, 8, v{A4}
    v_lshl_add_u32 v{vWO + 1}, v{A4}, 4, v{A5}
    v_add_u32 v{vWO + 1}, 3072, v{vWO + 1}
    v_add_u32 v{vWO + 3}, {2 * 3072}, v{vWO + 1}
    s_lshl_b32 s{sWOO}, s{sG}, 19
    s_lshl_b32 s{sT0}, s{sSK}, 15
    s_add_u32 s{sWOO}, s{sWOO}, s{sT0}
    v_xor_b32 v{A4}, v{A2}, v{A3}            ; (l&15)^rr
    v_lshlrev_b32 v{A5}, 8, v{A2}
    v_lshl_add_u32 v{vKDM}, v{A4}, 4, v{A5}
    v_xor_b32 v{vKDM + 1}, 64, v{vKDM}
    v_xor_b32 v{vKDM + 2}, 128, v{vKDM}
    v_xor_b32 v{vKDM + 3}, 192, v{vKDM}
    v_lshlrev_b32 v{A4}, 2, v{A2}
    v_xor_b32 v{A4}, v{A4}, v{A3}
    v_lshl_add_u32 v{vVDM}, v{A4}, 4, v{A5}
    v_lshrrev_b32 v{A4}, 5, v{L}             ; h
    v_xor_b32 v{A4}, v{A4}, v{A3}
    v_lshlrev_b32 v{A4}, 4, v{A4}
    v_lshl_add_u32 v{A4}, v{A3}, 8, v{A4}
    v_and_b32 v{A5}, 1, v{A2}
    v_mul_u32_u24 v{A5}, {WSTR}, v{A5}
    v_add_u32 v{A4}, v{A4}, v{A5}
    v_add_u32 v{vKR}, {RB + 1 * SLOT}, v{A4}
    """)
    for s16 in range(1, 8):
        e(f"v_xor_b32 v{vKR + s16}, {32 * s16}, v{vKR}")
    e(f"""
    v_and_b32 v{A4}, 1, v{A2}
    v_lshlrev_b32 v{A4}, 1, v{A4}
    v_lshrrev_b32 v{A5}, 1, v{A1}
    v_or_b32 v{A4}, v{A4}, v{A5}
    v_lshlrev_b32 v{A5}, 2, v{A0}
    v_xor_b32 v{A4}, v{A4}, v{A5}
    v_lshlrev_b32 v{A4}, 4, v{A4}
    v_and_b32 v{A5}, 1, v{A1}
    v_lshl_or_b32 v{A4}, v{A5}, 3, v{A4}
    v_lshrrev_b32 v{A5}, 5, v{L}
    v_lshl_add_u32 v{A5}, v{A5}, 2, v{A0}    ; 4h + r
    v_lshl_add_u32 v{A4}, v{A5}, 8, v{A4}
    v_add_u32 v{vVR}, {RB + 4096 + 1 * SLOT}, v{A4}
    """)
    for db in range(1, 4):
        e(f"v_xor_b32 v{vVR + db}, {64 * db}, v{vVR}")
    e(f"""
    """)
    for u in range(NU0, 8):
        xdma(u)
    wrdma()
    e(f"""
    v_lshlrev_b32 v{vOW}, 4, v{A3}
    v_lshrrev_b32 v{A4}, 5, v{L}
    v_lshl_add_u32 v{vOW}, v{A4}, 8, v{vOW}
    v_and_b32 v{A4}, 1, v{A2}
    v_lshl_add_u32 v{vOW}, v{A4}, 10, v{vOW}
    """)
    e(f"""
    s_lshl_b32 s{sT0}, s{sG}, 5
    s_add_u32 s{sT0}, s{sT0}, s{sTB}
    s_lshl_b32 s{sT0}, s{sT0}, 2
    s_add_u32 s{sT0}, s{sT0}, s{sW}
    s_lshl_b32 s{sT0}, s{sT0}, 14
    v_lshlrev_b32 v{vPS}, 4, v{L}
    v_add_u32 v{vPS}, s{sT0}, v{vPS}
    s_lshl_b32 s{sKVB}, s{sG}, 19
    s_lshl_b32 s{sT0}, s{sW}, 12
    s_add_u32 s{sKVB}, s{sKVB}, s{sT0}
    s_add_u32 s{sKVB}, s{sKVB}, {1536 * 256}
    s_lshl_b32 s{sT0}, s{sKVT}, 14
    s_add_u32 s{sKO}, s{sKVB}, s{sT0}
    s_mov_b32 s{sVO}, s{sKO}
    v_cmp_eq_u32 s[{sMASK}:{sMASK + 1}], 1, v{A1}
    v_cmp_eq_u32 s[{sMASK + 2}:{sMASK + 3}], 2, v{A1}
    v_cmp_eq_u32 s[{sMASK + 4}:{sMASK + 5}], 3, v{A1}
    v_cmp_eq_u32 s[98:99], v{A2}, v{A0}
    """)
    e(f"v_mov_b32 v{A5}, 0x3f803f80")
    for i in range(4):
        e(f"v_accvgpr_write_b32 a{64 + i}, v{A5}")
    e(f"s_mov_b32 s100, 0xffff0000")
    e("s_nop 0")
    SUM, GRM = 68, 72
    e(f"""
    v_and_b32 v58, 15, v{L}                  ; tok16
    v_lshrrev_b32 v59, 4, v{L}               ; q4
    v_bfe_u32 v60, v58, 1, 3                 ; swz
    v_xor_b32 v59, v59, v60
    v_lshlrev_b32 v59, 4, v59
    v_and_b32 v60, 7, v58
    v_lshl_add_u32 v59, v60, 7, v59
    v_lshrrev_b32 v60, 3, v58
    v_lshl_add_u32 v59, v60, 12, v59
    v_add_u32 v62, s{sT3}, v59
    v_xor_b32 v63, 64, v62
    """)

    def stat_frag(p):
        e.need(ltags=[("xr", p)])
        xf = rng("v", vQ + 4 * p, 4)
        c1 = "0" if p == 0 else rng("a", SUM, 4)
        c2 = "0" if p == 0 else rng("a", GRM, 4)
        e(f"v_mfma_f32_16x16x32_bf16 {rng('a', SUM, 4)}, a[64:67], {xf}, {c1}")
        e(f"v_mfma_f32_16x16x32_bf16 {rng('a', GRM, 4)}, {xf}, {xf}, {c2}")
        for i in range(4):
            src = vQ + 4 * p + i
            dst = 128 + 8 * p + 2 * i
            e(f"v_lshlrev_b32 v{dst}, 16, v{src}")
            e(f"v_and_b32 v{dst + 1}, s100, v{src}")

    for u in range(8):
        e.need(vtags=[("x", u, 1)])
        for par in range(2):
            e.lds(f"ds_read_b128 {rng('v', vQ + 4 * (2 * u + par), 4)}, v{62 + par} offset:{u * 8192}", ("xr", 2 * u + par))
        for k in range(2):
            if wq_pre and u >= OPT.get("dma_from", 0):
                for fn in wq_pre.pop(0):
                    fn()
        if u > 0:
            stat_frag(2 * u - 2)
            stat_frag(2 * u - 1)
    e.need(vtags=[("wr", 0)])
    e(f"""
    v_lshrrev_b32 v58, 4, v{L}
    v_lshlrev_b32 v58, 4, v58
    v_add_u32 v58, s{sRING}, v58
    """)
    for p in range(16):
        e.lds(f"ds_read_b128 {rng('a', 128 + 4 * p, 4)}, v58 offset:{2 * SLOT + 4096 + p * 64}", ("wrf", p))
    stat_frag(14)
    stat_frag(15)
    e.nop(6)
    if not OPT.get("tailstamps"):
        stamp("x15_stats")
    s1, s2_, u0, u1, u2, u3 = 58, 59, 60, 61, 62, 63
    e(f"""
    v_accvgpr_read_b32 v{s1}, a{SUM}
    v_accvgpr_read_b32 v{u0}, a{GRM}
    v_accvgpr_read_b32 v{u1}, a{GRM + 1}
    v_accvgpr_read_b32 v{u2}, a{GRM + 2}
    v_accvgpr_read_b32 v{u3}, a{GRM + 3}
    v_cndmask_b32 v{u0}, v{u0}, v{u1}, s[{sMASK}:{sMASK + 1}]
    v_cndmask_b32 v{u0}, v{u0}, v{u2}, s[{sMASK + 2}:{sMASK + 3}]
    v_cndmask_b32 v{u0}, v{u0}, v{u3}, s[{sMASK + 4}:{sMASK + 5}]
    v_cndmask_b32 v{u0}, 0, v{u0}, s[98:99]
    v_mov_b32 v{u1}, v{u0}
    s_nop 1
    v_permlane32_swap_b32 v{u0}, v{u1}
    s_nop 0
    v_add_f32 v{u0}, v{u0}, v{u1}
    v_mov_b32 v{u1}, v{u0}
    s_nop 1
    v_permlane16_swap_b32 v{u0}, v{u1}
    s_nop 0
    v_add_f32 v{s2_}, v{u0}, v{u1}
    v_mul_f32 v{s1}, {hex(f2u(1.0 / 512))}, v{s1}     ; mean
    v_mul_f32 v{s2_}, {hex(f2u(1.0 / 512))}, v{s2_}
    v_fma_f32 v{s2_}, -v{s1}, v{s1}, v{s2_}      ; var
    v_max_f32 v{s2_}, 0, v{s2_}
    v_cvt_pk_bf16_f32 v{u0}, v{s1}, v{s2_}
    v_and_b32 v{u1}, s100, v{u0}
    v_add_f32 v{u1}, {hex(f2u(1e-5))}, v{u1}
    v_cvt_pk_bf16_f32 v{u1}, v{u1}, v{u1}
    v_and_b32 v{u1}, s100, v{u1}
    v_sqrt_f32 v{u1}, v{u1}
    v_lshlrev_b32 v{s1}, 16, v{u0}             ; mean_b f32
    v_cvt_pk_bf16_f32 v{u1}, v{u1}, v{u1}
    v_and_b32 v{u2}, s100, v{u1}                ; sd_b f32
    v_rcp_f32 v{u3}, v{u2}
    v_and_b32 v{u0}, 0xffff, v{u0}
    v_or_b32 v31, v{u0}, v{u2}
    v_mul_f32 v{u3}, {hex(f2u(C_SCALE))}, v{u3}     ; rsc
    v_mul_f32 v{u2}, v{s1}, v{u3}
    v_sub_f32 v{u2}, 0, v{u2}
    """)
    e(f"""
    v_mov_b32 v60, v{u3}
    v_mov_b32 v61, v{u3}
    v_mov_b32 v63, v{u2}
    """)
    e(f"""
    s_lshl_b32 s{sT0}, s{sW}, 10
    v_add_u32 v{s1}, s{sT0}, v{vBR}
    """)
    for p in range(16):
        for i in range(4):
            src = 128 + 8 * p + 2 * i
            e(f"v_pk_fma_f32 v[{src}:{src + 1}], v[{src}:{src + 1}], v[60:61], v[62:63]")
        for i in range(4):
            src = 128 + 8 * p + 2 * i
            e(f"v_cvt_pk_bf16_f32 v{vQ + 4 * p + i}, v{src}, v{src + 1}")
        e.lds(f"ds_write_b128 v{s1}, {rng('v', vQ + 4 * p, 4)} offset:{p * 4096}", ("xw", p))
        if wq_pre and p % OPT.get("dma_norm", 2) == 0 and not OPT.get("dma_late"):
            if len(wq_pre) <= 4:
                e.need(ltags=[("wrf", 15)])
            for fn in wq_pre.pop(0):
                fn()
    e.need(ltags=[("wrf", 15)])
    while wq_pre:
        for fn in wq_pre.pop(0):
            fn()
    e.need(ltags=[("xw", 15)])
    e("s_barrier")
    if not OPT.get("tailstamps"):
        stamp("ln_done")
    gemm_pre(e, 1)
    for p in range(16):
        c = "0" if p == 0 else "a[76:79]"
        e(f"v_mfma_f32_16x16x32_bf16 a[76:79], {rng('a', 128 + 4 * p, 4)}, {rng('v', vQ + 4 * p, 4)}, {c}")
    e.nop(8)
    e(f"""
    v_accvgpr_read_b32 v58, a76
    v_mul_f32 v58, {hex(f2u(1.0 / C_SCALE))}, v58
    v_cvt_pk_bf16_f32 v58, v58, v58
    v_and_b32 v59, s100, v58
    """)

    def tail1(p):
        f = []

        def guard(pp):
            return lambda: e.need(ltags=[("A", pp + 1, 7)])
        if p == 12:
            f += [(17, guard(12))] + place(kv_dma(e, "K", 1, ("KV", 0, "K")), 17, 4)
        if p == 13:
            f += place(kv_dma(e, "V", 1, ("KV", 0, "V")), 1, 4)
            f += [(17, guard(13))] + place(kv_dma(e, "K", 2, ("KV", 1, "K")), 17, 4)
        if p == 14:
            f += place(kv_dma(e, "V", 2, ("KV", 1, "V")), 1, 4)
            f += [(17, guard(14))] + place(kv_dma(e, "K", 0, ("KV", 2, "K")), 17, 4)
        if p >= 12:
            for i in range(32):
                f.append((i, lambda i=i: e(f"v_accvgpr_write_b32 a{128 + (p - 12) * 32 + i}, 0")))
        return f

    gemm_main(e, 1, tail1)
    if not OPT.get("tailstamps"):
        stamp("p1_done")
    e(f"""
    s_add_u32 s{sGA}, s{S_WS}, {WS_R}
    s_addc_u32 s{sGA + 1}, s{S_WS + 1}, 0
    s_mov_b32 s{sGA + 2}, 8192
    s_mov_b32 s{sGA + 3}, 0x20000
    s_add_u32 s{sGB}, s{S_WS}, {WS_STAT}
    s_addc_u32 s{sGB + 1}, s{S_WS + 1}, 0
    s_mov_b32 s{sGB + 2}, 8192
    s_mov_b32 s{sGB + 3}, 0x20000
    s_lshl_b32 s{sT0}, s{sTB}, 6
    s_lshl_b32 s{sT1}, s{sW}, 4
    s_add_u32 s{sT0}, s{sT0}, s{sT1}
    v_add_u32 v58, s{sT0}, v{vLANE}
    v_lshlrev_b32 v58, 2, v58
    v_cmp_gt_u32 vcc, 16, v{vLANE}
    s_cmp_eq_u32 s{sG}, 0
    s_cselect_b64 s[{sMASK}:{sMASK + 1}], -1, 0
    v_mov_b32 v60, 0x7ffffff0
    s_and_b64 vcc, vcc, s[{sMASK}:{sMASK + 1}]
    v_cndmask_b32 v58, v60, v58, vcc
    """)
    e.vm(f"buffer_store_dword v59, v58, s[{sGA}:{sGA + 3}], 0 offen sc1", ("st", 0))
    e.vm(f"buffer_store_dword v31, v58, s[{sGB}:{sGB + 3}], 0 offen sc1", ("st", 1))
    e.nop(4)
    for dt in (6, 7, 0, 1, 2, 3, 4, 5):
        for qb in range(2):
            R = vQ + (dt * 2 + qb) * 4
            a0 = vACC + (dt * 4 + 2 * qb) * 4
            a1 = a0 + 4
            e(f"v_cvt_pk_bf16_f32 v{R}, v{a0}, v{a0 + 1}")
            e(f"v_cvt_pk_bf16_f32 v{R + 1}, v{a0 + 2}, v{a0 + 3}")
            e(f"v_cvt_pk_bf16_f32 v{R + 2}, v{a1}, v{a1 + 1}")
            e(f"v_cvt_pk_bf16_f32 v{R + 3}, v{a1 + 2}, v{a1 + 3}")
        for qb in range(2):
            R = vQ + (dt * 2 + qb) * 4
            e(f"v_permlane16_swap_b32 v{R}, v{R + 2}")
            e(f"v_permlane16_swap_b32 v{R + 1}, v{R + 3}")
        if dt == 7:
            for i in range(32):
                e(f"v_mov_b32 v{vNM + i}, 0")
    for i in range(4):
        e(f"v_mov_b32 v{vL + i}, 0")
    for i in range(4):
        e(f"v_mov_b32 v{vGA + i}, v{vKDM + i}")
        e(f"v_mov_b32 v{vGB + i}, v{vVDM}")
    e(f"s_mov_b32 s{sPASS}, 0")
    e(f"v_accvgpr_write_b32 a96, v{vKR}")
    e(f"v_accvgpr_write_b32 a97, v{vVR}")
    e(f"L_p2_start:")
    e.wait_all()
    e("s_barrier")
    e(f"""
    s_or_b32 s{sT0}, s{sG}, s{sW}
    s_or_b32 s{sT0}, s{sT0}, s{sPASS}
    s_cmp_lg_u32 s{sT0}, 0
    s_cbranch_scc1 L_nopub
    """)
    if not OPT.get("xnopublish"):
        e(f"""
        v_mov_b32 v58, 0
        v_mov_b32 v59, 1
        v_cmp_eq_u32 vcc, 0, v{vLANE}
        s_nop 0
        s_and_saveexec_b64 s[{sMASK}:{sMASK + 1}], vcc
        global_atomic_add v58, v59, s[{sDBG}:{sDBG + 1}] sc1
        s_mov_b64 exec, s[{sMASK}:{sMASK + 1}]
        """)
    e("L_nopub:")
    e(f"""
    s_mov_b32 s{sGA}, s{S_K}
    s_mov_b32 s{sGA + 1}, s{S_K + 1}
    s_mov_b32 s{sGA + 2}, s{S_K + 2}
    s_mov_b32 s{sGB}, s{S_V}
    s_mov_b32 s{sGB + 1}, s{S_V + 1}
    s_mov_b32 s{sGB + 2}, s{S_V + 2}
    s_mov_b32 s{sKSL}, {2 * SLOT}
    s_mov_b32 s{sVSL}, {1 * SLOT}
    s_mov_b32 s{sTRIP}, 1
    """)
    for f in range(4):
        k_read(e, 0, f)
    p2_iter(e, -1, qk=True, sm=False, pv=False, look="K")
    upd = []
    for i in range(8):
        upd.append((i // 4 * 8 + i % 4 if i < 4 else 9 + i, lambda i=i: e(f"v_add_u32 v{vKR + i}, {SLOT}, v{vKR + i}")))
    p2_iter(e, 0, qk=True, sm=True, pv=False, look="K", fill=upd, smstart=5)

    lq0 = list(e.lq)
    e("L_p2_loop:")
    n0 = len(e.l)
    e.wait_all(lds=False)
    e("s_barrier")
    sal = [
        f"s_add_u32 s{sT1}, s{sKSL}, {SLOT}",
        f"s_cmp_eq_u32 s{sT1}, {3 * SLOT}",
        f"s_cselect_b32 s{sT1}, 0, s{sT1}",
        f"s_sub_u32 s{sKD}, s{sT1}, s{sKSL}",
        f"s_sub_u32 s{sVD}, s{sKSL}, s{sVSL}",
        f"s_sub_u32 s{sVD}, s{sVD}, 49152",
        f"s_add_u32 s{sGAM}, s{sRING}, s{sVSL}",
        f"s_add_u32 s{sGBM}, s{sRING}, s{sT1}",
        f"s_add_u32 s{sGBM}, s{sGBM}, 4096",
        f"s_mov_b32 s{sVSL}, s{sKSL}",
        f"s_mov_b32 s{sKSL}, s{sT1}",
    ]
    for x in sal:
        e(x)
    e(f"""
    s_cmp_lg_u32 s{sTRIP}, 7
    s_cbranch_scc1 L_p2_noswitch
    s_mov_b32 s{sGA}, s{S_WO}
    s_mov_b32 s{sGA + 1}, s{S_WO + 1}
    s_mov_b32 s{sGA + 2}, s{S_WO + 2}
    s_mov_b32 s{sGB}, s{S_WO}
    s_mov_b32 s{sGB + 1}, s{S_WO + 1}
    s_mov_b32 s{sGB + 2}, s{S_WO + 2}
    s_mov_b32 s{sGAM}, s{sRING}
    s_add_u32 s{sGBM}, s{sRING}, 4096
    s_mov_b32 s{sKO}, s{sWOO}
    """)
    wdma_adv(e, 3)
    e(f"s_mov_b32 s{sVO}, s{sWOO}")
    wdma_adv(e, 3)
    for i in range(4):
        e(f"v_mov_b32 v{vGA + i}, v{vWO + i}")
        e(f"v_mov_b32 v{vGB + i}, v{vWO + i}")
    e("L_p2_noswitch:")
    fill = []
    fill.append((0, lambda: e(f"s_mov_b32 m0, s{sGAM}")))
    for i in range(4):
        fill.append((2 + 4 * i, lambda i=i: e.vm(
            f"buffer_load_dwordx4 v{vGA + i}, s[{sGA}:{sGA + 3}], s{sKO} offen offset:{i * 1024} lds", ("G", 0))))
    fill.append((14, lambda: kv_adv(e, sKO)))
    fill.append((16, lambda: e(f"s_mov_b32 m0, s{sGBM}")))
    for i in range(4):
        fill.append((18 + 4 * i, lambda i=i: e.vm(
            f"buffer_load_dwordx4 v{vGB + i}, s[{sGB}:{sGB + 3}], s{sVO} offen offset:{i * 1024} lds", ("G", 1))))
    fill.append((30, lambda: kv_adv(e, sVO)))
    for db in range(4):
        fill.append((24 + 2 * db, lambda db=db: e(f"v_add_u32 v{vVR + db}, 49152, v{vVR + db}")))
    p2_iter(e, 1, fill=fill)
    fill = []
    for i in range(8):
        fill.append((8 + 2 * i if i >= 4 else 2 * i, lambda i=i: e(f"v_add_u32 v{vKR + i}, s{sKD}, v{vKR + i}")))
    for db in range(4):
        fill.append((24 + 2 * db, lambda db=db: e(f"v_add_u32 v{vVR + db}, s{sVD}, v{vVR + db}")))
    fill.append((30, lambda: e(f"s_add_u32 s{sTRIP}, s{sTRIP}, 1")))
    fill.append((32, lambda: e(f"s_cmp_lg_u32 s{sTRIP}, 8")))
    p2_iter(e, 2, fill=fill)
    e("s_cbranch_scc1 L_p2_loop")
    body = e.l[n0:]
    probs = check_hazards(body + body, "p2 loop x2")
    assert not probs or any(k.startswith("no") for k in OPT), "\n".join(probs[:10])
    sh = lambda q, d: [(t[0], t[1] + d) + tuple(t[2:]) if t else t for t in q]
    assert sh(lq0, 2) == e.lq, (lq0, e.lq)
    e.lq = sh(e.lq, 12)
    e.wait_all(lds=False)
    e("s_barrier")
    e.vq = [("W", 0, 0)] * 0
    fill = place(half_dma(e, 3, 1, 0, ("W", 1, 0)), 0, 2) + place(half_dma(e, 3, 1, 1, ("W", 1, 1)), 8, 2)
    for db in range(4):
        fill.append((7 + db, lambda db=db: e(f"v_add_u32 v{vVR + db}, 49152, v{vVR + db}")))
    e.lq = [t for t in e.lq]
    p2_iter(e, 15, qk=False, sm=True, pv=True, look="V", fill=fill, vpre=True)
    p2_iter(e, 16, qk=False, sm=False, pv=True, look=None)
    if not OPT.get("tailstamps"):
        stamp("p2_done")
    e(f"""
    v_add_f32 v{vL}, v{vL}, v{vL + 1}
    v_add_f32 v{vL + 2}, v{vL + 2}, v{vL + 3}
    v_mov_b32 v{vL + 1}, v{vL}
    v_mov_b32 v{vL + 3}, v{vL + 2}
    s_nop 1
    v_permlane32_swap_b32 v{vL}, v{vL + 1}
    v_permlane32_swap_b32 v{vL + 2}, v{vL + 3}
    s_nop 0
    v_add_f32 v{vL}, v{vL}, v{vL + 1}
    v_add_f32 v{vL + 2}, v{vL + 2}, v{vL + 3}
    v_rcp_f32 v{vL + 1}, v{vL}
    v_rcp_f32 v{vL + 3}, v{vL + 2}
    s_mov_b32 s{sT0}, {hex(f2u(2.0 ** -40))}
    s_mov_b32 s{sT1}, {hex(f2u(2.0 ** 40))}
    v_cmp_lt_f32 s[{sMASK}:{sMASK + 1}], s{sT0}, v{vL}
    v_cmp_gt_f32 s[{sMASK + 2}:{sMASK + 3}], s{sT1}, v{vL}
    v_cmp_lt_f32 s[{sMASK + 4}:{sMASK + 5}], s{sT0}, v{vL + 2}
    v_cmp_gt_f32 vcc, s{sT1}, v{vL + 2}
    s_nop 1
    s_and_b64 s[{sMASK}:{sMASK + 1}], s[{sMASK}:{sMASK + 1}], s[{sMASK + 2}:{sMASK + 3}]
    s_and_b64 vcc, vcc, s[{sMASK + 4}:{sMASK + 5}]
    s_and_b64 s[{sMASK}:{sMASK + 1}], s[{sMASK}:{sMASK + 1}], vcc
    """)
    for db in range(4):
        e(f"""
        s_lshl_b32 s{sT0}, s{sW}, 2
        s_add_u32 s{sT0}, s{sT0}, {db}
        s_sub_u32 s{sT0}, s{sT0}, s{sSK}
        s_and_b32 s{sT0}, s{sT0}, 15
        s_lshl_b32 s{sT0}, s{sT0}, 12
        v_add_u32 v58, s{sT0}, v{vOW}
        """)
        for qb in range(2):
            src = aO + (db * 2 + qb) * 16
            T = 128 + (db * 2 + qb) * 16
            for i in range(16):
                e(f"v_accvgpr_read_b32 v{T + i}, a{src + i}")
            rl = vL + 1 + 2 * qb
            for i in range(16):
                e(f"v_mul_f32 v{T + i}, v{T + i}, v{rl}")
            for i in range(8):
                e(f"v_cvt_pk_bf16_f32 v{T + i}, v{T + 2 * i}, v{T + 2 * i + 1}")
            for jp in range(2):
                e.lds(f"ds_write_b128 v58, {rng('v', T + 4 * jp, 4)} offset:{qb * 2048 + jp * 512}", ("ow", db, qb, jp))
    e(f"""
    s_cmp_eq_u64 s[{sMASK}:{sMASK + 1}], -1
    s_cselect_b32 s{sT2}, 0, 1
    s_cmp_eq_u32 s{sPASS}, 0
    s_cselect_b32 s{sT2}, s{sT2}, 0
    s_cmp_eq_u32 s{sT2}, 0
    s_cbranch_scc1 L_noflag
    s_lshl_b32 s{sT0}, s{sW}, 2
    s_sub_u32 s{sT0}, s{sT0}, s{sSK}
    s_and_b32 s{sT0}, s{sT0}, 15
    s_lshl_b32 s{sT0}, s{sT0}, 12
    v_mov_b32 v58, s{sT0}
    v_mov_b32 v59, -1
    ds_write_b32 v58, v59
    L_noflag:
    """)
    e.wait_all(vm=False)
    e("s_barrier")
    for w_ in range(4):
        e(f"""
        s_sub_u32 s{sT0}, {4 * w_}, s{sSK}
        s_and_b32 s{sT0}, s{sT0}, 15
        s_lshl_b32 s{sT0}, s{sT0}, 12
        v_mov_b32 v{58 + w_}, s{sT0}
        """)
    for w_ in range(4):
        e.lds(f"ds_read_b32 v{58 + w_}, v{58 + w_}", ("mk", w_))
    for h in range(2):
        serial(e, half_dma(e, 3, 2, h, ("W", 2, h)))
    e.need(ltags=[("mk", 3)])
    e(f"""
    v_and_b32 v58, v58, v59
    v_and_b32 v60, v60, v61
    v_max_u32 v58, v58, v60
    v_max_u32 v59, v59, v61
    """)
    e.l = e.l[:-4]
    e(f"""
    v_max_u32 v58, v58, v59
    v_max_u32 v60, v60, v61
    v_max_u32 v58, v58, v60
    s_nop 0
    v_readfirstlane_b32 s{sT0}, v58
    s_nop 0
    s_cmp_eq_u32 s{sT0}, -1
    s_cbranch_scc1 L_fallback
    L_p3_start:
    """)
    e(f"v_lshlrev_b32 v{vBR}, 4, v{vLANE}")
    e(f"""
    s_mov_b32 s{S_WQ}, s{sFP}
    s_mov_b32 s{S_WQ + 1}, s{sFP + 1}
    s_mov_b32 s{S_WQ + 2}, {512 * 1792 * 2}
    s_mov_b32 s{S_K}, s{sFP + 2}
    s_mov_b32 s{S_K + 1}, s{sFP + 3}
    s_mov_b32 s{S_K + 2}, {512 * 1792 * 2}
    s_mov_b32 s{S_V}, s{sFP + 4}
    s_mov_b32 s{S_V + 1}, s{sFP + 5}
    s_mov_b32 s{S_V + 2}, {1792 * 512 * 2}
    s_min_u32 s{sSL}, s2, 223
    """)
    e(f"""
    s_lshl_b32 s{sT0}, s{sW}, 7
    v_add_u32 v80, s{sT0}, v{vLANE}
    v_mul_u32_u24 v80, 3584, v80
    s_lshl_b32 s{sT0}, s{sSL}, 4
    v_add_u32 v80, s{sT0}, v80
    v_add_u32 v81, {64 * 3584}, v80
    v_lshrrev_b32 v82, 4, v{vLANE}
    v_lshlrev_b32 v82, 10, v82
    v_and_b32 v83, 15, v{vLANE}
    v_lshl_add_u32 v82, v83, 4, v82
    s_lshl_b32 s{sT0}, s{sSL}, 13
    s_lshl_b32 s{sT1}, s{sW}, 8
    s_add_u32 s{sT0}, s{sT0}, s{sT1}
    v_add_u32 v82, s{sT0}, v82
    v_add_u32 v83, 4096, v82
    v_mov_b32 v84, 0
    s_lshl_b32 s{sT0}, s{sW}, 11
    v_lshlrev_b32 v85, 5, v{vLANE}
    v_add_u32 v85, s{sT0}, v85
    v_add_u32 v85, {WS_R}, v85
    """)
    e.vq = [("W", 0, 0)] * 4 + [("W", 0, 1)] * 4 + e.vq
    gemm_pre(e, 3)

    def tail3(p):
        f = []
        if p == 12:
            def guard():
                e.need(ltags=[("A", 13, 7)])
            f.append((17, guard))
            lst = [(S_WQ, 80, 0), (S_WQ, 81, 1024), (S_K, 80, 2048), (S_K, 81, 3072), (S_V, 82, 4096), (S_V, 83, 5120)]
            for n, (srd, v, off) in enumerate(lst):
                f.append((18 + 2 * n, lambda off=off: e(f"s_add_u32 m0, s{sRING}, {SLOT + off}")))
                f.append((19 + 2 * n, lambda srd=srd, v=v: e.vm(
                    f"buffer_load_dwordx4 v{v}, s[{srd}:{srd + 3}], 0 offen lds", ("fw", 0))))
            f.append((31, lambda: e.vm(f"global_load_dword v86, v84, s[{sDBG}:{sDBG + 1}] sc1", ("cnt", 0))))
        if p == 14:
            def chk():
                e.need(vtags=[("cnt", 0)])
                e(f"v_readfirstlane_b32 s{sT0}, v86")
            f.append((4, chk))
            f.append((5, lambda: e(f"s_cmp_ge_u32 s{sT0}, 32")))
            f.append((5, lambda: e(f"s_cselect_b32 s{sRDY}, 1, 0")))
            f.append((6, lambda: e.vm(f"buffer_load_dwordx4 a[200:203], v85, s[{S_WS}:{S_WS + 3}], 0 offen sc1", ("rl", 0))))
            f.append((8, lambda: e.vm(f"buffer_load_dwordx4 a[204:207], v85, s[{S_WS}:{S_WS + 3}], 0 offen offset:16 sc1", ("rl", 1))))
        return f
    gemm_main(e, 3, tail3)
    stamp("p3_done")
    e.nop(6)
    e.need(vtags=[("rl", 1)])
    for nt in range(8):
        for qb in range(2):
            R = vQ + (nt * 2 + qb) * 4
            a0 = vACC + (nt * 4 + 2 * qb) * 4
            a1 = a0 + 4
            e(f"v_cvt_pk_bf16_f32 v{R}, v{a0}, v{a0 + 1}")
            e(f"v_cvt_pk_bf16_f32 v{R + 1}, v{a0 + 2}, v{a0 + 3}")
            e(f"v_cvt_pk_bf16_f32 v{R + 2}, v{a1}, v{a1 + 1}")
            e(f"v_cvt_pk_bf16_f32 v{R + 3}, v{a1 + 2}, v{a1 + 3}")
        for qb in range(2):
            R = vQ + (nt * 2 + qb) * 4
            e(f"v_permlane16_swap_b32 v{R}, v{R + 2}")
            e(f"v_permlane16_swap_b32 v{R + 1}, v{R + 3}")
        for qb in range(2):
            R = vQ + (nt * 2 + qb) * 4
            off = (nt * 2 + qb) * 1024
            if off >= 4096 and off % 4096 == 0:
                e(f"v_add_u32 v{vPS}, 4096, v{vPS}")
            e.vm(f"buffer_store_dwordx4 {rng('v', R, 4)}, v{vPS}, s[{S_WS}:{S_WS + 3}], 0 offen offset:{off % 4096} "
                 + OPT.get("pstore", "sc1"), ("ps", nt, qb))
    stamp("epi")
    doneq = f"L_{label}_fin"
    if not OPT.get("nomoe"):
        import moe
        e(f"""
        s_cmp_ge_u32 s2, 224
        s_cbranch_scc1 {doneq}
        s_nop 1
        """)
        moe.moe_tail(e, dict(X=S_X, WS=S_WS, WR=S_WR, W=sW, RING=sRING, SL=sSL, RDY=sRDY, DBG=sDBG, M=100,
                             T=[42, 43, 44, 45, 46, 47, 60, 61, 62, 63, 64, 65, 66, 67], done=doneq,
                             spin=OPT.get("spin", 4000),
                             stamp=(stamp if OPT.get("tailstamps") else (lambda n: None))))
    e(f"{doneq}:")
    stamp("end")
    if stamps and OPT.get("dbgstamps"):
        e.wait_all()
        e(f"""
        v_mov_b32 v58, 16
        v_mov_b32 v59, s{sTS + 16}
        v_mov_b32 v60, 20
        s_not_b32 s{sT0}, s{sTS}
        v_mov_b32 v61, s{sT0}
        v_cmp_eq_u32 vcc, 0, v{vLANE}
        s_nop 0
        s_and_saveexec_b64 s[{sMASK}:{sMASK + 1}], vcc
        global_atomic_umax v58, v59, s[{sDBG}:{sDBG + 1}] sc1
        global_atomic_umax v60, v61, s[{sDBG}:{sDBG + 1}] sc1
        s_or_b32 s{sT0}, s2, s{sW}
        s_cmp_lg_u32 s{sT0}, 0
        s_cbranch_scc1 L_dbg_skip
        """)
        for k in range(1, 9):
            e(f"s_sub_u32 s{sT0}, s{sTS + 2 * k}, s{sTS}")
            e(f"v_mov_b32 v59, s{sT0}")
            e(f"v_mov_b32 v58, {24 + 4 * (k - 1)}")
            e(f"global_store_dword v58, v59, s[{sDBG}:{sDBG + 1}]")
            e("s_nop 1")
        e("L_dbg_skip:")
        e(f"s_mov_b64 exec, s[{sMASK}:{sMASK + 1}]")
    elif stamps:
        e.wait_all()
        e(f"""
        s_lshl_b32 s{sT0}, s2, 2
        s_add_u32 s{sT0}, s{sT0}, s{sW}
        s_lshl_b32 s{sT0}, s{sT0}, 7
        s_add_u32 s{sT0}, s{sT0}, {WS_TS}
        v_mov_b32 v58, s{sT0}
        v_cmp_eq_u32 vcc, 0, v{vLANE}
        s_nop 0
        s_and_saveexec_b64 s[{sMASK}:{sMASK + 1}], vcc
        """)
        for i in range(0, 20, 4):
            for q in range(4):
                e(f"v_mov_b32 v{60 + q}, s{min(sTS + i + q, sTS + 17)}")
            e(f"buffer_store_dwordx4 v[60:63], v58, s[{S_WS}:{S_WS + 3}], 0 offen offset:{i * 4}")
            e("s_nop 1")
        e(f"s_mov_b64 exec, s[{sMASK}:{sMASK + 1}]")
    e(f"s_branch {done}")
    e("L_fallback:")
    e(f"""
    s_barrier
    s_lshl_b32 s{sT0}, s{sKVT}, 14
    s_add_u32 s{sKO}, s{sKVB}, s{sT0}
    v_accvgpr_read_b32 v{vKR}, a96
    v_mov_b32 v{vL}, 0xff800000
    v_mov_b32 v{vL + 2}, 0xff800000
    v_subrev_u32 v{vKR}, {SLOT}, v{vKR}
    s_mov_b32 s{sTRIP}, 0
    """)
    for s16 in range(1, 8):
        e(f"v_xor_b32 v{vKR + s16}, {32 * s16}, v{vKR}")
    e("L_fb_loop:")
    e("s_waitcnt vmcnt(0) lgkmcnt(0)")
    e("s_barrier")
    e.vq, e.lq = [], []
    serial(e, kv_dma(e, "K", 0, ("fbk", 0)))
    e.wait_all()
    e("s_barrier")
    for kb in range(2):
        for s16 in range(8):
            e(f"ds_read_b128 {Fbuf(s16)}, v{vKR + s16} offset:{kb * 49152}")
        e("s_waitcnt lgkmcnt(0)")
        for s16 in range(8):
            for qb in range(2):
                c = "0" if s16 == 0 else Sreg(0, qb)
                e(f"v_mfma_f32_32x32x16_bf16 {Sreg(0, qb)}, {Fbuf(s16)}, {Qreg(s16, qb)}, {c}")
        e.nop(16)
        for qb in range(2):
            m = vL + 2 * qb
            for i in range(0, 16, 2):
                e(f"v_max3_f32 v{m}, v{m}, {Sreg(0, qb, i)}, {Sreg(0, qb, i + 1)}")
    e(f"""
    s_add_u32 s{sTRIP}, s{sTRIP}, 1
    s_cmp_lt_u32 s{sTRIP}, 8
    s_cbranch_scc1 L_fb_loop
    v_mov_b32 v{vL + 1}, v{vL}
    v_mov_b32 v{vL + 3}, v{vL + 2}
    s_nop 1
    v_permlane32_swap_b32 v{vL}, v{vL + 1}
    v_permlane32_swap_b32 v{vL + 2}, v{vL + 3}
    s_nop 0
    v_max_f32 v{vL}, v{vL}, v{vL + 1}
    v_max_f32 v{vL + 2}, v{vL + 2}, v{vL + 3}
    """)
    for qb in range(2):
        for i in range(16):
            e(f"v_sub_f32 v{vNM + 16 * qb + i}, 0, v{vL + 2 * qb}")
    e(f"""
    s_barrier
    s_lshl_b32 s{sT0}, s{sKVT}, 14
    s_add_u32 s{sKO}, s{sKVB}, s{sT0}
    s_mov_b32 s{sVO}, s{sKO}
    s_lshl_b32 s{sWOO}, s{sG}, 19
    s_lshl_b32 s{sT0}, s{sSK}, 15
    s_add_u32 s{sWOO}, s{sWOO}, s{sT0}
    v_accvgpr_read_b32 v{vKR}, a96
    v_accvgpr_read_b32 v{vVR}, a97
    s_mov_b32 s{sPASS}, 1
    """)
    for s16 in range(1, 8):
        e(f"v_xor_b32 v{vKR + s16}, {32 * s16}, v{vKR}")
    for db in range(1, 4):
        e(f"v_xor_b32 v{vVR + db}, {64 * db}, v{vVR}")
    for (which, slot) in (("K", 1), ("V", 1), ("K", 2), ("V", 2), ("K", 0)):
        serial(e, kv_dma(e, which, slot, ("fbp", 0)))
    for i in range(4):
        e(f"v_mov_b32 v{vL + i}, 0")
        e(f"v_mov_b32 v{vGA + i}, v{vKDM + i}")
        e(f"v_mov_b32 v{vGB + i}, v{vVDM}")
    for i in range(128):
        e(f"v_accvgpr_write_b32 a{128 + i}, 0")
    e("s_branch L_p2_start")
    e(f"{done}:")
    e("s_endpgm")
    probs = check_hazards(e.l, "k1")
    if probs and not any(k.startswith("no") for k in OPT):
        print("\n".join(probs[:40]))
        raise SystemExit("hazards")
    return e.text()
```

```python
from emit import E, check_hazards
from asmlib import KA
from k1 import WS_PART, WS_R, WS_STAT, WS_IDX, WS_TS, f2u, rng

WS_YP = 17 << 20
NSL = 224
LOG2E = 1.4426950408889634


def wave_max_u32(e, v, tmp_s):
    for sh in (1, 2, 4, 8):
        e("s_nop 1")
        e(f"v_max_u32_dpp v{v}, v{v}, v{v} row_shr:{sh} row_mask:0xf bank_mask:0xf")
    e("s_nop 1")
    e(f"v_max_u32_dpp v{v}, v{v}, v{v} row_bcast:15 row_mask:0xa bank_mask:0xf")
    e("s_nop 1")
    e(f"v_max_u32_dpp v{v}, v{v}, v{v} row_bcast:31 row_mask:0xc bank_mask:0xf")
    e("s_nop 0")
    e(f"v_readlane_b32 s{tmp_s}, v{v}, 63")


def silu_bf16(e, dst, src, t0, t1, sM):
    e(f"v_mul_f32 v{t0}, {hex(f2u(-LOG2E))}, v{src}")
    e(f"v_exp_f32 v{t0}, v{t0}")
    e("s_nop 0")
    e(f"v_add_f32 v{t0}, 1.0, v{t0}")
    e(f"v_rcp_f32 v{t0}, v{t0}")
    e("s_nop 0")
    e(f"v_mul_f32 v{t0}, v{src}, v{t0}")
    e(f"v_cvt_pk_bf16_f32 v{t0}, v{t0}, v{t0}")
    e(f"v_and_b32 v{dst}, s{sM}, v{t0}")


def ts_begin(e, on):
    if on:
        e("s_memrealtime s[64:65]")


def ts_end(e, on, srd, off, wave_sreg, lane_v=0):
    if not on:
        return
    e(f"""
    s_memrealtime s[66:67]
    s_mov_b64 exec, -1
    s_lshl_b32 s68, s2, 2
    s_add_u32 s68, s68, s{wave_sreg}
    s_lshl_b32 s68, s68, 4
    s_add_u32 s68, s68, {off}
    s_waitcnt vmcnt(0) lgkmcnt(0)
    s_memrealtime s[66:67]
    s_waitcnt lgkmcnt(0)
    v_mov_b32 v100, s64
    v_mov_b32 v101, s65
    v_mov_b32 v102, s66
    v_mov_b32 v103, s67
    v_mov_b32 v104, s68
    v_cmp_eq_u32 vcc, 0, v{lane_v}
    s_nop 1
    s_and_saveexec_b64 s[70:71], vcc
    buffer_store_dwordx4 v[100:103], v104, s[{srd}:{srd + 3}], 0 offen
    """)


def gen_km(label, ts=False):
    e = E()
    done = f"L_{label}_done"
    S_X, S_WG, S_WU, S_WD, S_WS = 4, 8, 12, 16, 20
    sW, sF0, sM = 24, 25, 26
    sWIN = 32
    e(f"""
    s_cmp_ge_u32 s2, {NSL}
    s_cbranch_scc1 {done}
    {"s_memrealtime s[64:65]" if ts else ""}
    s_load_dwordx2 s[4:5], s[0:1], {KA['x']}
    s_load_dwordx2 s[8:9], s[0:1], {KA['wg']}
    s_load_dwordx2 s[12:13], s[0:1], {KA['wu']}
    s_load_dwordx2 s[16:17], s[0:1], {KA['wd']}
    s_load_dwordx2 s[20:21], s[0:1], {KA['ws']}
    v_lshrrev_b32 v1, 6, v0
    v_mov_b32 v63, v0                    ; tid
    v_and_b32 v0, 63, v0
    v_readfirstlane_b32 s{sW}, v1
    s_lshl_b32 s{sF0}, s2, 4
    s_mov_b32 s{sM}, 0xffff0000
    s_waitcnt lgkmcnt(0)
    s_mov_b32 s6, 2097152
    s_mov_b32 s7, 0x20000
    s_mov_b32 s10, {512 * 1792 * 2}
    s_mov_b32 s11, 0x20000
    s_mov_b32 s14, {512 * 1792 * 2}
    s_mov_b32 s15, 0x20000
    s_mov_b32 s18, {1792 * 512 * 2}
    s_mov_b32 s19, 0x20000
    s_mov_b32 s22, 0x10000000
    s_mov_b32 s23, 0x20000
    """)
    e(f"""
    v_lshlrev_b32 v2, 5, v63
    v_add_u32 v2, {WS_R}, v2
    """)
    e.vm(f"buffer_load_dwordx4 v[8:11], v2, s[20:23], 0 offen", "r0")
    e.vm(f"buffer_load_dwordx4 v[12:15], v2, s[20:23], 0 offen offset:16", "r1")
    e(f"""
    s_lshl_b32 s27, s{sW}, 7
    v_add_u32 v3, s27, v0                ; row = 128 w + l
    v_mul_u32_u24 v3, 3584, v3
    v_add_u32 v3, s{sF0}, v3
    v_add_u32 v4, {64 * 3584}, v3
    s_lshl_b32 s28, s{sW}, 11            ; w*2048
    """)
    for (srd, base) in ((S_WG, 0), (S_WU, 8192)):
        for i in range(2):
            e(f"s_add_u32 m0, s28, {base + i * 1024}")
            e("s_nop 0")
            e.vm(f"buffer_load_dwordx4 v{3 + i}, s[{srd}:{srd + 3}], 0 offen lds", "wgu")
    e(f"""
    s_lshl_b32 s29, s2, 3
    s_lshl_b32 s30, s{sW}, 1
    s_add_u32 s29, s29, s30
    s_lshl_b32 s29, s29, 10              ; row*1024
    v_lshlrev_b32 v5, 4, v0
    """)
    for i in range(2):
        e(f"s_add_u32 m0, s28, {16384 + i * 1024}")
        e("s_nop 0")
        e.vm(f"buffer_load_dwordx4 v5, s[{S_WD}:{S_WD + 3}], s29 offen lds", "wd")
        e("s_add_u32 s29, s29, 1024")
    e.need(vtags=["r1"])
    e(f"v_lshlrev_b32 v6, 3, v63")
    e(f"v_sub_u32 v6, 2047, v6            ; 2047 - idx0")
    for i in range(8):
        r = 8 + i
        e(f"v_ashrrev_i32 v7, 31, v{r}")
        e(f"v_or_b32 v7, 0x80000000, v7")
        e(f"v_xor_b32 v{r}, v{r}, v7          ; monotone map")
        e(f"v_and_b32 v{r}, s{sM}, v{r}")
        e(f"v_or_b32 v{r}, v{r}, v6")
        if i < 7:
            e(f"v_subrev_u32 v6, 1, v6")
    e("v_mov_b32 v20, 0")
    for rd in range(8):
        e("v_max3_u32 v16, v8, v9, v10")
        e("v_max3_u32 v17, v11, v12, v13")
        e("v_max3_u32 v16, v16, v14, v15")
        e("v_max_u32 v16, v16, v17")
        wave_max_u32(e, 16, 31)
        e("s_nop 1")
        for i in range(8):
            e(f"v_cmp_ne_u32 vcc, s31, v{8 + i}")
            e("s_nop 1")
            e(f"v_cndmask_b32 v{8 + i}, 0, v{8 + i}, vcc")
        e(f"v_writelane_b32 v20, s31, {rd}")
    e(f"""
    s_lshl_b32 s27, s{sW}, 5
    v_lshlrev_b32 v21, 2, v0
    v_add_u32 v21, s27, v21
    v_add_u32 v21, 24576, v21
    v_cmp_gt_u32 vcc, 8, v0
    s_nop 0
    s_and_saveexec_b64 s[40:41], vcc
    ds_write_b32 v21, v20
    s_mov_b64 exec, s[40:41]
    s_waitcnt lgkmcnt(0)
    s_barrier
    v_and_b32 v21, 31, v0
    v_lshlrev_b32 v21, 2, v21
    ds_read_b32 v22, v21 offset:24576
    v_cmp_gt_u32 vcc, 32, v0
    s_waitcnt lgkmcnt(0)
    s_nop 0
    v_cndmask_b32 v22, 0, v22, vcc
    """)
    for rd in range(8):
        e("v_mov_b32 v16, v22")
        wave_max_u32(e, 16, sWIN + rd)
        e("s_nop 1")
        e(f"v_cmp_ne_u32 vcc, s{sWIN + rd}, v22")
        e("s_nop 1")
        e(f"v_cndmask_b32 v22, 0, v22, vcc")
    e("v_and_b32 v24, 7, v0")
    e(f"v_mov_b32 v23, s{sWIN}")
    for j in range(1, 8):
        e(f"v_cmp_eq_u32 vcc, {j}, v24")
        e(f"v_mov_b32 v25, s{sWIN + j}")
        e("s_nop 0")
        e("v_cndmask_b32 v23, v23, v25, vcc")
    e(f"""
    v_and_b32 v26, 0x7ff, v23
    v_sub_u32 v26, 2047, v26
    v_and_b32 v27, s{sM}, v23
    v_ashrrev_i32 v28, 31, v27
    v_not_b32 v28, v28
    v_or_b32 v28, 0x80000000, v28
    v_xor_b32 v27, v27, v28
    v_and_b32 v27, s{sM}, v27             ; r (f32 bits)
    """)
    e(f"""
    v_mul_f32 v28, {hex(f2u(-LOG2E))}, v27
    v_exp_f32 v28, v28
    s_nop 0
    v_add_f32 v28, 1.0, v28
    v_rcp_f32 v28, v28
    s_nop 0
    v_cvt_pk_bf16_f32 v28, v28, v28
    v_and_b32 v28, s{sM}, v28             ; bf16(sigmoid(r))
    v_lshlrev_b32 v29, 2, v0
    v_add_u32 v29, {WS_IDX}, v29
    s_or_b32 s27, s2, s{sW}
    s_cmp_eq_u32 s27, 0
    s_cselect_b64 s[42:43], -1, 0
    v_cmp_gt_u32 vcc, 8, v0
    s_nop 1
    s_and_b64 vcc, vcc, s[42:43]
    s_and_saveexec_b64 s[40:41], vcc
    s_cbranch_execz L_km_nopub
    buffer_store_dword v26, v29, s[20:23], 0 offen
    buffer_store_dword v28, v29, s[20:23], 0 offen offset:32
    L_km_nopub:
    s_mov_b64 exec, s[40:41]
    """)
    e.vq += ["pub", "pub"]
    e(f"""
    v_lshrrev_b32 v30, 4, v0
    v_lshlrev_b32 v30, 4, v30             ; q4*16
    v_lshl_add_u32 v30, v26, 10, v30
    s_lshl_b32 s27, s{sW}, 8              ; 4w*64 bytes
    v_lshlrev_b32 v31, 2, v26
    v_add_u32 v31, {WS_STAT}, v31
    """)
    e.vm(f"buffer_load_dword v32, v31, s[20:23], 0 offen", "st")
    for i in range(4):
        e.vm(f"buffer_load_dwordx4 {rng('v', 36 + 4 * i, 4)}, v30, s[4:7], s27 offen offset:{64 * i}", ("xg", i))
    e.need(vtags=["st"])
    e(f"""
    v_lshlrev_b32 v33, 16, v32            ; mean
    v_and_b32 v34, s{sM}, v32             ; sd
    v_rcp_f32 v34, v34
    """)
    e.need(vtags=[("xg", 3)])
    for i in range(16):
        r = 36 + i
        e(f"""
        v_lshlrev_b32 v52, 16, v{r}
        v_and_b32 v53, s{sM}, v{r}
        v_sub_f32 v52, v52, v33
        v_sub_f32 v53, v53, v33
        v_cvt_pk_bf16_f32 v52, v52, v53
        v_and_b32 v53, s{sM}, v52
        v_lshlrev_b32 v52, 16, v52
        v_mul_f32 v52, v52, v34
        v_mul_f32 v53, v53, v34
        v_cvt_pk_bf16_f32 v{r}, v52, v53
        """)
    e.need(vtags=["wd"])
    e("s_barrier")
    e(f"""
    v_bfe_u32 v54, v0, 2, 2               ; r
    v_lshrrev_b32 v55, 4, v0              ; q4
    v_lshl_add_u32 v54, v55, 3, v54       ; 8 q4 + r
    v_lshlrev_b32 v54, 4, v54
    v_and_b32 v55, 1, v0
    v_lshl_add_u32 v54, v55, 3, v54       ; + (c&1)*8
    v_bfe_u32 v55, v0, 1, 1
    v_lshl_add_u32 v54, v55, 13, v54      ; + U
    s_lshl_b32 s27, s{sW}, 11
    v_add_u32 v54, s27, v54
    """)
    for i in range(4):
        for rd in range(2):
            e.lds(f"ds_read_b64_tr_b16 {rng('v', 64 + 4 * i + 2 * rd, 2)}, v54 offset:{i * 512 + rd * 64}", ("fa", i))
    for i in range(4):
        e.need(ltags=[("fa", i)])
        c = "0" if i == 0 else "v[56:59]"
        e(f"v_mfma_f32_16x16x32_bf16 v[56:59], {rng('v', 64 + 4 * i, 4)}, {rng('v', 36 + 4 * i, 4)}, {c}")
    e.nop(8)
    e(f"""
    s_lshl_b32 s27, s{sW}, 10
    v_lshlrev_b32 v60, 4, v0
    v_add_u32 v61, s27, v60
    ds_write_b128 v61, v[56:59] offset:25600
    s_waitcnt lgkmcnt(0)
    s_barrier
    ds_read_b128 v[64:67], v60 offset:25600
    ds_read_b128 v[68:71], v60 offset:{25600 + 1024}
    ds_read_b128 v[72:75], v60 offset:{25600 + 2048}
    ds_read_b128 v[76:79], v60 offset:{25600 + 3072}
    s_waitcnt lgkmcnt(0)
    """)
    for i in range(4):
        e(f"v_add_f32 v{64 + i}, v{64 + i}, v{68 + i}")
        e(f"v_add_f32 v{72 + i}, v{72 + i}, v{76 + i}")
        e(f"v_add_f32 v{64 + i}, v{64 + i}, v{72 + i}")
    for i in range(4):
        e(f"v_cvt_pk_bf16_f32 v{64 + i}, v{64 + i}, v{64 + i}")
        e(f"v_and_b32 v{64 + i}, s{sM}, v{64 + i}")
        e(f"v_mov_b32 v{68 + i}, v{64 + i}")
    e("s_nop 0")
    for i in range(4):
        e(f"v_permlane32_swap_b32 v{64 + i}, v{68 + i}")
    for i in range(4):
        silu_bf16(e, 72 + i, 64 + i, 76, 77, sM)
        e(f"v_mul_f32 v{72 + i}, v{72 + i}, v{68 + i}")
    e(f"""
    v_cvt_pk_bf16_f32 v80, v72, v73
    v_cvt_pk_bf16_f32 v81, v74, v75
    v_cmp_gt_u32 vcc, 32, v0
    v_mov_b32 v82, 0
    v_mov_b32 v83, 0
    v_cndmask_b32 v80, 0, v80, vcc
    v_cndmask_b32 v81, 0, v81, vcc
    """)
    e(f"""
    v_bfe_u32 v54, v0, 2, 2               ; r
    v_bfe_u32 v55, v0, 4, 1               ; q4 & 1
    v_lshl_add_u32 v54, v55, 2, v54       ; row 0..7
    v_lshlrev_b32 v54, 10, v54
    v_and_b32 v55, 3, v0
    v_lshl_add_u32 v54, v55, 3, v54       ; + c*8
    s_lshl_b32 s27, s{sW}, 8              ; 8w tiles * 32 B
    v_add_u32 v54, s27, v54
    v_mov_b32 v86, 0
    v_mov_b32 v87, 0
    """)
    for t in range(8):
        e.lds(f"ds_read_b64_tr_b16 {rng('v', 88 + 4 * t, 2)}, v54 offset:{16384 + t * 32}", ("da", t))
        e(f"v_mov_b32 v{90 + 4 * t}, 0")
        e(f"v_mov_b32 v{91 + 4 * t}, 0")
    for t in range(8):
        e.need(ltags=[("da", t)])
        e(f"v_mfma_f32_16x16x32_bf16 {rng('v', 120 + 4 * t, 4)}, {rng('v', 88 + 4 * t, 4)}, v[80:83], 0")
    e(f"""
    s_lshl_b32 s27, s2, 14
    s_lshl_b32 s28, s{sW}, 9              ; 8w*16*4 bytes
    s_add_u32 s27, s27, s28
    s_add_u32 s27, s27, {WS_YP}
    v_and_b32 v60, 15, v0
    v_lshlrev_b32 v61, 11, v60
    v_lshrrev_b32 v62, 4, v0
    v_lshl_add_u32 v61, v62, 4, v61
    v_add_u32 v61, s27, v61
    v_cmp_gt_u32 vcc, 8, v60
    s_nop 4
    s_and_saveexec_b64 s[40:41], vcc
    """)
    for t in range(8):
        e(f"buffer_store_dwordx4 {rng('v', 120 + 4 * t, 4)}, v61, s[20:23], 0 offen offset:{t * 64}")
    e("s_mov_b64 exec, s[40:41]")
    ts_end(e, ts, S_WS, WS_TS + (1 << 20), sW)
    e(f"{done}:")
    e("s_endpgm")
    probs = check_hazards(e.l, "km")
    if probs:
        print("\n".join(probs[:40]))
        raise SystemExit("hazards")
    return e.text()


def final_math(e, n, vs, vx, vmean, vrsd, vupd, vout, t, sM):
    for i in range(n):
        a, b = t, t + 1
        e(f"v_cvt_pk_bf16_f32 v{vs[i]}, v{vs[i]}, v{vs[i]}")
        e(f"v_and_b32 v{vs[i]}, s{sM}, v{vs[i]}")
        e(f"v_sub_f32 v{a}, v{vx[i]}, v{vmean}")
        e(f"v_cvt_pk_bf16_f32 v{a}, v{a}, v{a}")
        e(f"v_and_b32 v{a}, s{sM}, v{a}")
        e(f"v_mul_f32 v{a}, v{a}, v{vrsd}")
        e(f"v_cvt_pk_bf16_f32 v{a}, v{a}, v{a}")
        e(f"v_and_b32 v{a}, s{sM}, v{a}")
        if vupd is not None:
            e(f"v_add_f32 v{a}, v{a}, v{vupd[i]}")
            e(f"v_cvt_pk_bf16_f32 v{a}, v{a}, v{a}")
            e(f"v_and_b32 v{a}, s{sM}, v{a}")
        silu_bf16(e, a, a, b, b, sM)
        e(f"v_mul_f32 v{a}, v{vs[i]}, v{a}")
        e(f"v_cvt_pk_bf16_f32 v{a}, v{a}, v{a}")
        e(f"v_and_b32 v{a}, s{sM}, v{a}")
        e(f"v_add_f32 v{vout[i]}, v{vx[i]}, v{a}")


def gen_k2(label, ts=False, perturb=None, dbgcopy=False):
    e = E()
    done = f"L_{label}_done"
    tail = f"L_{label}_tail"
    S_X, S_WS, S_OUT = 4, 8, 12
    sW, sM = 16, 17
    sIDX = 24
    e(f"""
    s_cmp_ge_u32 s2, 576
    s_cbranch_scc1 {done}
    {"s_memrealtime s[64:65]" if (ts or dbgcopy) else ""}
    s_load_dwordx2 s[4:5], s[0:1], {KA['x']}
    s_load_dwordx2 s[8:9], s[0:1], {KA['ws']}
    s_load_dwordx2 s[12:13], s[0:1], {KA['out']}
    v_lshrrev_b32 v1, 6, v0
    v_and_b32 v0, 63, v0
    s_mov_b32 s{sM}, 0xffff0000
    v_readfirstlane_b32 s{sW}, v1
    s_waitcnt lgkmcnt(0)
    s_add_u32 s18, s8, {WS_IDX}
    s_addc_u32 s19, s9, 0
    s_load_dwordx8 s[24:31], s[18:19], 0
    s_load_dwordx8 s[32:39], s[18:19], 32
    s_mov_b32 s6, 2097152
    s_mov_b32 s7, 0x20000
    s_mov_b32 s10, 0x10000000
    s_mov_b32 s11, 0x20000
    s_mov_b32 s14, 2097152
    s_mov_b32 s15, 0x20000
    s_cmp_ge_u32 s2, 512
    s_cbranch_scc1 L_k2_sel
    """)
    e(f"""
    s_lshl_b32 s20, s2, 2
    s_add_u32 s20, s20, s{sW}
    s_lshr_b32 s21, s20, 6                ; tb
    s_bfe_u32 s22, s20, {5 | (1 << 16)}   ; qb
    s_bfe_u32 s23, s20, {3 | (2 << 16)}   ; a
    s_and_b32 s20, s20, 7                 ; b
    s_lshl_b32 s40, s21, 6
    s_lshl_b32 s41, s22, 5
    s_add_u32 s40, s40, s41
    s_lshl_b32 s41, s23, 3
    s_add_u32 s40, s40, s41
    v_and_b32 v2, 7, v0
    v_add_u32 v3, s40, v2                 ; token
    v_lshrrev_b32 v4, 3, v0
    s_lshl_b32 s41, s20, 7
    v_lshlrev_b32 v4, 4, v4
    v_lshl_add_u32 v4, v3, 10, v4
    v_add_u32 v4, s41, v4
    s_lshl_b32 s41, s21, 16
    s_lshr_b32 s42, s20, 1
    s_lshl_b32 s42, s42, 14
    s_add_u32 s41, s41, s42
    s_and_b32 s42, s20, 1
    s_lshl_b32 s42, s42, 13
    s_add_u32 s41, s41, s42
    s_lshl_b32 s42, s22, 10
    s_add_u32 s41, s41, s42
    s_lshl_b32 s42, s23, 7
    s_add_u32 s41, s41, s42
    v_lshrrev_b32 v5, 4, v0
    v_lshlrev_b32 v5, 11, v5
    v_bfe_u32 v6, v0, 3, 1
    v_lshl_add_u32 v5, v6, 9, v5
    v_lshl_add_u32 v5, v2, 4, v5
    v_add_u32 v5, s41, v5
    v_lshlrev_b32 v7, 2, v3
    v_add_u32 v7, {WS_STAT}, v7
    """)
    for g in range(8):
        e(f"s_mov_b32 s{44 + g}, {g << 21}")
    e.vm(f"buffer_load_dword v8, v7, s[8:11], 0 offen", "st")
    e.vm(f"buffer_load_dwordx4 v[12:15], v4, s[4:7], 0 offen", "x")
    for g in range(8):
        e.vm(f"buffer_load_dwordx4 {rng('v', 16 + 4 * g, 4)}, v5, s[8:11], s{44 + g} offen", ("p", g))
    e("s_waitcnt lgkmcnt(0)")
    e(f"v_cmp_ne_u32 s[52:53], s24, v3")
    for j in range(1, 8):
        e(f"v_cmp_ne_u32 vcc, s{24 + j}, v3")
        e("s_nop 1")
        e(f"s_and_b64 s[52:53], s[52:53], vcc")
    for g in range(8):
        e.need(vtags=[("p", g)])
        for i in range(4):
            r = 16 + 4 * g + i
            if g == 0:
                e(f"v_lshlrev_b32 v{48 + 2 * i}, 16, v{r}")
                e(f"v_and_b32 v{49 + 2 * i}, s{sM}, v{r}")
            else:
                e(f"v_lshlrev_b32 v56, 16, v{r}")
                e(f"v_and_b32 v57, s{sM}, v{r}")
                e(f"v_add_f32 v{48 + 2 * i}, v{48 + 2 * i}, v56")
                e(f"v_add_f32 v{49 + 2 * i}, v{49 + 2 * i}, v57")
    e(f"""
    v_lshlrev_b32 v9, 16, v8              ; mean
    v_and_b32 v10, s{sM}, v8              ; sd
    v_rcp_f32 v10, v10
    """)
    for i in range(4):
        e(f"v_lshlrev_b32 v{60 + 2 * i}, 16, v{12 + i}")
        e(f"v_and_b32 v{61 + 2 * i}, s{sM}, v{12 + i}")
    final_math(e, 8, [48 + i for i in range(8)], [60 + i for i in range(8)], 9, 10, None,
               [60 + i for i in range(8)], 56, sM)
    if perturb is not None:
        kind, delta = perturb
        if kind == "one":
            e(f"""
            v_cmp_eq_u32 vcc, 0, v4
            v_mov_b32 v58, {hex(f2u(delta))}
            s_nop 0
            v_cndmask_b32 v58, 0, v58, vcc
            v_add_f32 v60, v60, v58
            """)
        elif kind == "all":
            for i in range(8):
                e(f"v_add_f32 v{60 + i}, {hex(f2u(delta))}, v{60 + i}")
        elif kind == "mul":
            for i in range(8):
                e(f"v_mul_f32 v{60 + i}, {hex(f2u(delta))}, v{60 + i}")
    for i in range(4):
        e(f"v_cvt_pk_bf16_f32 v{12 + i}, v{60 + 2 * i}, v{61 + 2 * i}")
    e(f"""
    s_and_saveexec_b64 s[54:55], s[52:53]
    s_cbranch_execz {tail}
    buffer_store_dwordx4 v[12:15], v4, s[12:15], 0 offen
    s_branch {tail}
    """)
    e("L_k2_sel:")
    e.vq, e.lq = [], []
    e(f"""
    s_sub_u32 s20, s2, 512
    s_lshr_b32 s21, s20, 3                ; j
    s_and_b32 s22, s20, 7                 ; cb
    s_waitcnt lgkmcnt(0)
    """)
    e("s_mov_b32 s40, s24")
    e("s_mov_b32 s41, s32")
    for j in range(1, 8):
        e(f"s_cmp_eq_u32 s21, {j}")
        e(f"s_cselect_b32 s40, s{24 + j}, s40")
        e(f"s_cselect_b32 s41, s{32 + j}, s41")
    e(f"""
    s_mul_i32 s42, s{sW}, {56 * 16384}
    s_lshl_b32 s43, s21, 11               ; j*2048
    s_add_u32 s42, s42, s43
    s_lshl_b32 s43, s22, 8                ; cb*64*4
    s_add_u32 s42, s42, s43
    s_add_u32 s42, s42, {WS_YP}
    v_lshrrev_b32 v2, 4, v0
    v_lshlrev_b32 v2, 14, v2
    v_and_b32 v3, 15, v0
    v_lshl_add_u32 v2, v3, 4, v2
    v_add_u32 v2, s42, v2
    s_mov_b32 s43, 0
    """)
    for i in range(14):
        e.vm(f"buffer_load_dwordx4 {rng('v', 16 + 4 * i, 4)}, v2, s[8:11], s43 offen", ("y", i))
        e(f"s_add_u32 s43, s43, {4 * 16384}")
    e(f"""
    s_lshl_b32 s43, s22, 7
    s_lshl_b32 s44, s40, 10
    s_add_u32 s43, s43, s44
    v_lshlrev_b32 v4, 3, v3
    v_add_u32 v4, s43, v4
    s_lshl_b32 s44, s40, 2
    s_add_u32 s44, s44, {WS_STAT}
    v_mov_b32 v7, s44
    s_lshr_b32 s44, s40, 6
    s_lshl_b32 s44, s44, 16
    s_lshr_b32 s45, s22, 1
    s_lshl_b32 s45, s45, 14
    s_add_u32 s44, s44, s45
    s_and_b32 s45, s22, 1
    s_lshl_b32 s45, s45, 13
    s_add_u32 s44, s44, s45
    s_bfe_u32 s45, s40, {5 | (1 << 16)}
    s_lshl_b32 s45, s45, 10
    s_add_u32 s44, s44, s45
    s_and_b32 s45, s40, 31
    s_lshl_b32 s45, s45, 4
    s_add_u32 s44, s44, s45
    v_lshrrev_b32 v5, 2, v3
    v_lshlrev_b32 v5, 11, v5
    v_bfe_u32 v6, v3, 1, 1
    v_lshl_add_u32 v5, v6, 9, v5
    v_and_b32 v6, 1, v3
    v_lshl_add_u32 v5, v6, 3, v5
    v_add_u32 v5, s44, v5
    """)
    for g in range(8):
        e(f"s_mov_b32 s{56 + g}, {g << 21}")
    e.vm(f"buffer_load_dword v8, v7, s[8:11], 0 offen", "st")
    e.vm(f"buffer_load_dwordx2 v[12:13], v4, s[4:7], 0 offen", "x")
    for g in range(8):
        e.vm(f"buffer_load_dwordx2 {rng('v', 80 + 2 * g, 2)}, v5, s[8:11], s{56 + g} offen", ("p", g))
    for i in range(14):
        e.need(vtags=[("y", i)])
        if i > 0:
            for q in range(4):
                e(f"v_add_f32 v{16 + q}, v{16 + q}, v{16 + 4 * i + q}")
    for q in range(4):
        e(f"v_mov_b32 v{20 + q}, v{16 + q}")
    e("s_nop 0")
    for q in range(4):
        e(f"v_permlane32_swap_b32 v{16 + q}, v{20 + q}")
    for q in range(4):
        e(f"v_add_f32 v{16 + q}, v{16 + q}, v{20 + q}")
    for q in range(4):
        e(f"v_mov_b32 v{20 + q}, v{16 + q}")
    e("s_nop 0")
    for q in range(4):
        e(f"v_permlane16_swap_b32 v{16 + q}, v{20 + q}")
    for q in range(4):
        e(f"v_add_f32 v{16 + q}, v{16 + q}, v{20 + q}")
    e(f"""
    s_lshl_b32 s43, s{sW}, 10
    v_lshlrev_b32 v24, 4, v0
    v_add_u32 v25, s43, v24
    ds_write_b128 v25, v[16:19]
    s_waitcnt lgkmcnt(0)
    s_barrier
    s_cmp_lg_u32 s{sW}, 0
    s_cbranch_scc1 {tail}
    ds_read_b128 v[16:19], v24
    ds_read_b128 v[20:23], v24 offset:1024
    ds_read_b128 v[28:31], v24 offset:2048
    ds_read_b128 v[32:35], v24 offset:3072
    s_waitcnt lgkmcnt(0)
    """)
    for q in range(4):
        e(f"v_add_f32 v{16 + q}, v{16 + q}, v{20 + q}")
        e(f"v_add_f32 v{28 + q}, v{28 + q}, v{32 + q}")
        e(f"v_add_f32 v{16 + q}, v{16 + q}, v{28 + q}")
    for q in range(4):
        e(f"v_cvt_pk_bf16_f32 v{16 + q}, v{16 + q}, v{16 + q}")
        e(f"v_and_b32 v{16 + q}, s{sM}, v{16 + q}")
        e(f"v_mul_f32 v{16 + q}, s41, v{16 + q}")
        e(f"v_cvt_pk_bf16_f32 v{16 + q}, v{16 + q}, v{16 + q}")
        e(f"v_and_b32 v{16 + q}, s{sM}, v{16 + q}")
    e.need(vtags=[("p", 7)])
    for g in range(8):
        for i in range(2):
            r = 80 + 2 * g + i
            if g == 0:
                e(f"v_lshlrev_b32 v{48 + 2 * i}, 16, v{r}")
                e(f"v_and_b32 v{49 + 2 * i}, s{sM}, v{r}")
            else:
                e(f"v_lshlrev_b32 v56, 16, v{r}")
                e(f"v_and_b32 v57, s{sM}, v{r}")
                e(f"v_add_f32 v{48 + 2 * i}, v{48 + 2 * i}, v56")
                e(f"v_add_f32 v{49 + 2 * i}, v{49 + 2 * i}, v57")
    e(f"""
    v_lshlrev_b32 v9, 16, v8
    v_and_b32 v10, s{sM}, v8
    v_rcp_f32 v10, v10
    """)
    for i in range(2):
        e(f"v_lshlrev_b32 v{60 + 2 * i}, 16, v{12 + i}")
        e(f"v_and_b32 v{61 + 2 * i}, s{sM}, v{12 + i}")
    final_math(e, 4, [48 + i for i in range(4)], [60 + i for i in range(4)], 9, 10, [16 + i for i in range(4)],
               [60 + i for i in range(4)], 56, sM)
    for i in range(2):
        e(f"v_cvt_pk_bf16_f32 v{12 + i}, v{60 + 2 * i}, v{61 + 2 * i}")
    e(f"""
    v_cmp_gt_u32 vcc, 16, v0
    s_nop 0
    s_and_saveexec_b64 s[54:55], vcc
    buffer_store_dwordx2 v[12:13], v4, s[12:15], 0 offen
    """)
    e(f"{tail}:")
    if dbgcopy:
        e(f"""
        s_mov_b64 exec, -1
        s_waitcnt vmcnt(0) lgkmcnt(0)
        s_memrealtime s[66:67]
        s_load_dwordx2 s[70:71], s[0:1], {KA['dbg']}
        s_cmp_lg_u32 s{sW}, 0
        s_cbranch_scc1 {done}
        s_cmp_lg_u32 s2, 0
        s_cbranch_scc1 {done}
        v_lshlrev_b32 v100, 3, v0
        v_add_u32 v100, {WS_TS}, v100
        buffer_load_dword v101, v100, s[{S_WS}:{S_WS + 3}], 0 offen
        v_mov_b32 v102, {WS_TS}
        buffer_load_dword v103, v102, s[{S_WS}:{S_WS + 3}], 0 offen
        s_waitcnt vmcnt(0) lgkmcnt(0)
        v_sub_u32 v101, v101, v103
        v_mov_b32 v104, s64
        v_sub_u32 v104, v104, v103
        v_mov_b32 v105, s66
        v_sub_u32 v105, v105, v103
        v_cmp_eq_u32 vcc, 9, v0
        s_nop 1
        v_cndmask_b32 v101, v101, v104, vcc
        v_cmp_eq_u32 vcc, 10, v0
        s_nop 1
        v_cndmask_b32 v101, v101, v105, vcc
        v_lshlrev_b32 v100, 2, v0
        v_cmp_gt_u32 vcc, 11, v0
        s_nop 1
        s_and_saveexec_b64 s[68:69], vcc
        global_store_dword v100, v101, s[70:71]
        s_waitcnt vmcnt(0)
        """)
    ts_end(e, ts, S_WS, WS_TS + (2 << 20), sW)
    e(f"{done}:")
    e("s_endpgm")
    probs = check_hazards(e.l, "k2")
    if probs:
        print("\n".join(probs[:40]))
        raise SystemExit("hazards")
    return e.text()


SORT8 = [(0, 1), (2, 3), (4, 5), (6, 7), (0, 2), (1, 3), (4, 6), (5, 7), (1, 2), (5, 6), (0, 4), (3, 7),
         (1, 5), (2, 6), (1, 4), (3, 6), (2, 4), (3, 5), (3, 4)]


def _check_sort8():
    import itertools
    for bits in itertools.product([0, 1], repeat=8):
        a = list(bits)
        for i, j in SORT8:
            if a[i] < a[j]:
                a[i], a[j] = a[j], a[i]
        assert a == sorted(a, reverse=True)


_check_sort8()


def keys_from_r(e, K, vidx, sM, tmp):
    for i in range(8):
        r = K[i]
        e(f"v_ashrrev_i32 v{tmp}, 31, v{r}")
        e(f"v_or_b32 v{tmp}, 0x80000000, v{tmp}")
        e(f"v_xor_b32 v{r}, v{r}, v{tmp}")
        e(f"v_and_or_b32 v{r}, v{r}, s{sM}, v{vidx}")
        if i < 7:
            e(f"v_subrev_u32 v{vidx}, 1, v{vidx}")


def wave_top8(e, K, spare, vres, vt, stmp, smask):
    K = list(K)
    free = spare
    for (i, j) in SORT8:
        e(f"v_max_u32 v{free}, v{K[i]}, v{K[j]}")
        e(f"v_min_u32 v{K[j]}, v{K[i]}, v{K[j]}")
        K[i], free = free, K[i]
    e(f"v_mov_b32 v{vres}, 0")
    for rd in range(8):
        e(f"v_mov_b32 v{vt}, v{K[0]}")
        wave_max_u32(e, vt, stmp)
        e("s_nop 1")
        e(f"v_writelane_b32 v{vres}, s{stmp}, {rd}")
        if rd < 7:
            e(f"v_cmp_eq_u32 s[{smask}:{smask + 1}], s{stmp}, v{K[0]}")
            e("s_nop 1")
            for q in range(7 - rd):
                e(f"v_cndmask_b32 v{K[q]}, v{K[q]}, v{K[q + 1]}, s[{smask}:{smask + 1}]")


def moe_tail(e, R):
    from k1 import RB, WSTR, SLOT
    T = R["T"]
    sW, sRING, sM = R["W"], R["RING"], R["M"]
    S_X, S_WS = R["X"], R["WS"]
    sRO, sSO = T[0], T[1]
    sA, sB, sC_, sD = T[2], T[3], T[4], T[5]
    mk = [T[6], T[8], T[10], T[12]]
    e(f"s_mov_b32 s{sRO}, {WS_R}")
    e(f"s_mov_b32 s{sSO}, {WS_STAT}")
    e("L_moe_have_r:")
    K = [8 + i for i in range(8)]
    for i in range(8):
        e(f"v_accvgpr_read_b32 v{K[i]}, a{200 + i}")
    e("L_moe_keys:")
    e(f"""
    s_lshl_b32 s{sA}, s{sW}, 9
    v_lshlrev_b32 v6, 3, v0
    v_add_u32 v6, s{sA}, v6
    v_sub_u32 v6, 2047, v6
    """)
    st = R.get("stamp", lambda n: None)
    keys_from_r(e, K, 6, sM, 7)
    wave_top8(e, K, 16, 20, 17, sA, mk[0])
    st("top8")
    e(f"""
    v_mov_b32 v21, s{R['RDY']}
    v_cmp_eq_u32 vcc, 8, v0
    v_lshlrev_b32 v22, 2, v0
    v_add_u32 v22, s{sRING}, v22
    v_cndmask_b32 v20, v20, v21, vcc
    v_cmp_gt_u32 vcc, 9, v0
    s_nop 1
    s_and_saveexec_b64 s[{mk[0]}:{mk[0] + 1}], vcc
    ds_write_b32 v22, v20
    s_mov_b64 exec, s[{mk[0]}:{mk[0] + 1}]
    s_waitcnt lgkmcnt(0)
    s_barrier
    """)
    e(f"""
    v_lshrrev_b32 v21, 3, v0
    v_and_b32 v21, 3, v21
    v_mul_u32_u24 v21, {WSTR}, v21
    v_and_b32 v22, 7, v0
    v_lshl_add_u32 v21, v22, 2, v21
    v_mov_b32 v23, {RB}
    v_add_u32 v21, v23, v21
    ds_read_b32 v24, v21
    """)
    for w_ in range(4):
        e(f"v_add_u32 v{100 + w_}, {w_ * WSTR}, v23")
    for w_ in range(4):
        e(f"ds_read_b128 v[{32 + 8 * w_}:{35 + 8 * w_}], v{100 + w_}")
        e(f"ds_read_b128 v[{36 + 8 * w_}:{39 + 8 * w_}], v{100 + w_} offset:16")
        e(f"ds_read_b32 v{104 + w_}, v{100 + w_} offset:32")
    e(f"""
    s_waitcnt lgkmcnt(0)
    v_and_b32 v104, v104, v105
    v_and_b32 v106, v106, v107
    v_and_b32 v104, v104, v106
    v_mov_b32 v25, 0
    v_readfirstlane_b32 s{sA}, v104
    s_nop 0
    s_cmp_eq_u32 s{sA}, 0
    s_cbranch_scc1 L_moe_slow
    """)
    for j0 in range(0, 32, 4):
        for q in range(4):
            e(f"v_cmp_gt_u32 s[{mk[q]}:{mk[q] + 1}], v{32 + j0 + q}, v24")
        for q in range(4):
            e(f"v_addc_co_u32 v25, vcc, 0, v25, s[{mk[q]}:{mk[q] + 1}]")
    e(f"""
    v_cmp_gt_u32 s[{mk[0]}:{mk[0] + 1}], 8, v25
    v_cmp_gt_u32 vcc, 32, v0
    v_lshlrev_b32 v26, 2, v25
    v_add_u32 v26, s{sRING}, v26
    s_and_b64 vcc, vcc, s[{mk[0]}:{mk[0] + 1}]
    s_and_saveexec_b64 s[{mk[1]}:{mk[1] + 1}], vcc
    ds_write_b32 v26, v24 offset:64
    s_mov_b64 exec, s[{mk[1]}:{mk[1] + 1}]
    v_and_b32 v22, 7, v0
    v_lshlrev_b32 v22, 2, v22
    v_add_u32 v22, s{sRING}, v22
    ds_read_b32 v23, v22 offset:64
    s_waitcnt lgkmcnt(0)
    v_and_b32 v26, 0x7ff, v23
    v_sub_u32 v26, 2047, v26
    """)
    st("merge")
    e(f"""
    v_lshrrev_b32 v30, 4, v0
    v_lshlrev_b32 v30, 4, v30             ; q4*16
    v_lshl_add_u32 v30, v26, 10, v30
    s_lshl_b32 s{sA}, s{sW}, 8            ; 4w*64 bytes
    v_lshlrev_b32 v31, 2, v26
    v_add_u32 v31, s{sSO}, v31
    """)
    e.vq, e.lq = ["old"], []
    e.vm(f"buffer_load_dword v32, v31, s[{S_WS}:{S_WS + 3}], 0 offen sc1", "st")
    for i in range(4):
        e.vm(f"buffer_load_dwordx4 {rng('v', 36 + 4 * i, 4)}, v30, s[{S_X}:{S_X + 3}], s{sA} offen offset:{64 * i}",
             ("xg", i))
    e(f"""
    v_and_b32 v27, s{sM}, v23
    v_ashrrev_i32 v28, 31, v27
    v_not_b32 v28, v28
    v_or_b32 v28, 0x80000000, v28
    v_xor_b32 v27, v27, v28
    v_and_b32 v27, s{sM}, v27             ; r (f32 bits)
    v_mul_f32 v28, {hex(f2u(-LOG2E))}, v27
    v_exp_f32 v28, v28
    s_nop 0
    v_add_f32 v28, 1.0, v28
    v_rcp_f32 v28, v28
    s_nop 0
    v_cvt_pk_bf16_f32 v28, v28, v28
    v_and_b32 v28, s{sM}, v28             ; bf16(sigmoid(r))
    v_lshlrev_b32 v29, 2, v0
    v_add_u32 v29, {WS_IDX}, v29
    v_mov_b32 v33, 0x7ffffff0
    s_or_b32 s{sA}, s{R['SL']}, s{sW}
    s_cmp_eq_u32 s{sA}, 0
    s_cselect_b64 s[{mk[0]}:{mk[0] + 1}], -1, 0
    v_cmp_gt_u32 vcc, 8, v0
    s_nop 1
    s_and_b64 vcc, vcc, s[{mk[0]}:{mk[0] + 1}]
    v_cndmask_b32 v29, v33, v29, vcc
    """)
    e.vm(f"buffer_store_dword v26, v29, s[{S_WS}:{S_WS + 3}], 0 offen", "pub")
    e.vm(f"buffer_store_dword v28, v29, s[{S_WS}:{S_WS + 3}], 0 offen offset:32", "pub")
    e.need(vtags=["st"])
    e(f"""
    v_lshlrev_b32 v33, 16, v32            ; mean
    v_and_b32 v34, s{sM}, v32             ; sd
    v_rcp_f32 v34, v34
    """)
    e.need(vtags=[("xg", 3)])
    st("gather")
    for i in range(16):
        r = 36 + i
        e(f"""
        v_lshlrev_b32 v52, 16, v{r}
        v_and_b32 v53, s{sM}, v{r}
        v_sub_f32 v52, v52, v33
        v_sub_f32 v53, v53, v33
        v_cvt_pk_bf16_f32 v52, v52, v53
        v_and_b32 v53, s{sM}, v52
        v_lshlrev_b32 v52, 16, v52
        v_mul_f32 v52, v52, v34
        v_mul_f32 v53, v53, v34
        v_cvt_pk_bf16_f32 v{r}, v52, v53
        """)
    st("ln")
    e(f"""
    v_bfe_u32 v54, v0, 2, 2               ; r
    v_lshrrev_b32 v55, 4, v0              ; q4
    v_lshl_add_u32 v54, v55, 3, v54       ; 8 q4 + r
    v_lshlrev_b32 v54, 4, v54
    v_and_b32 v55, 1, v0
    v_lshl_add_u32 v54, v55, 3, v54       ; + (c&1)*8
    v_bfe_u32 v55, v0, 1, 1
    v_lshl_add_u32 v54, v55, 11, v54      ; + U
    v_add_u32 v54, s{sRING}, v54
    """)
    for i in range(4):
        for rd in range(2):
            e.lds(f"ds_read_b64_tr_b16 {rng('v', 64 + 4 * i + 2 * rd, 2)}, v54 offset:{SLOT + i * 512 + rd * 64}", ("fa", i))
    for i in range(4):
        e.need(ltags=[("fa", i)])
        c = "0" if i == 0 else "v[56:59]"
        e(f"v_mfma_f32_16x16x32_bf16 v[56:59], {rng('v', 64 + 4 * i, 4)}, {rng('v', 36 + 4 * i, 4)}, {c}")
    e(f"""
    v_bfe_u32 v54, v0, 2, 2               ; r
    v_bfe_u32 v55, v0, 4, 1               ; q4 & 1
    v_lshl_add_u32 v54, v55, 2, v54       ; row 0..7
    v_lshlrev_b32 v54, 8, v54
    v_and_b32 v55, 3, v0
    v_lshl_add_u32 v54, v55, 3, v54       ; + c*8
    v_add_u32 v54, s{sRING}, v54
    """)
    for t in range(8):
        e.lds(f"ds_read_b64_tr_b16 {rng('v', 88 + 4 * t, 2)}, v54 offset:{SLOT + 4096 + t * 32}", ("da", t))
        e(f"v_mov_b32 v{90 + 4 * t}, 0")
        e(f"v_mov_b32 v{91 + 4 * t}, 0")
    e(f"""
    v_lshlrev_b32 v60, 4, v0
    v_add_u32 v61, s{sRING}, v60
    ds_write_b128 v61, v[56:59] offset:{2 * SLOT}
    s_waitcnt lgkmcnt(0)
    s_barrier
    v_add_u32 v60, {RB + 2 * SLOT}, v60
    v_add_u32 v61, {WSTR}, v60
    v_add_u32 v62, {2 * WSTR}, v60
    v_add_u32 v63, {3 * WSTR}, v60
    ds_read_b128 v[64:67], v60
    ds_read_b128 v[68:71], v61
    ds_read_b128 v[72:75], v62
    ds_read_b128 v[76:79], v63
    s_waitcnt lgkmcnt(0)
    """)
    e.lq = []
    for i in range(4):
        e(f"v_add_f32 v{64 + i}, v{64 + i}, v{68 + i}")
        e(f"v_add_f32 v{72 + i}, v{72 + i}, v{76 + i}")
        e(f"v_add_f32 v{64 + i}, v{64 + i}, v{72 + i}")
    for i in range(4):
        e(f"v_cvt_pk_bf16_f32 v{64 + i}, v{64 + i}, v{64 + i}")
        e(f"v_and_b32 v{64 + i}, s{sM}, v{64 + i}")
        e(f"v_mov_b32 v{68 + i}, v{64 + i}")
    e("s_nop 0")
    for i in range(4):
        e(f"v_permlane32_swap_b32 v{64 + i}, v{68 + i}")
    for i in range(4):
        silu_bf16(e, 72 + i, 64 + i, 76, 77, sM)
        e(f"v_mul_f32 v{72 + i}, v{72 + i}, v{68 + i}")
    e(f"""
    v_cvt_pk_bf16_f32 v80, v72, v73
    v_cvt_pk_bf16_f32 v81, v74, v75
    v_cmp_gt_u32 vcc, 32, v0
    v_mov_b32 v82, 0
    v_mov_b32 v83, 0
    v_cndmask_b32 v80, 0, v80, vcc
    v_cndmask_b32 v81, 0, v81, vcc
    s_nop 1
    """)
    for t in range(8):
        e(f"v_mfma_f32_16x16x32_bf16 {rng('v', 120 + 4 * t, 4)}, {rng('v', 88 + 4 * t, 4)}, v[80:83], 0")
    e(f"""
    s_lshl_b32 s{sA}, s{R['SL']}, 14
    s_lshl_b32 s{sB}, s{sW}, 9            ; 8w*16*4 bytes
    s_add_u32 s{sA}, s{sA}, s{sB}
    s_add_u32 s{sA}, s{sA}, {WS_YP}
    v_and_b32 v60, 15, v0
    v_lshlrev_b32 v61, 11, v60
    v_lshrrev_b32 v62, 4, v0
    v_lshl_add_u32 v61, v62, 4, v61
    v_add_u32 v61, s{sA}, v61
    v_mov_b32 v63, 0x1ffffff0
    v_cmp_gt_u32 vcc, 8, v60
    s_nop 1
    v_cndmask_b32 v61, v63, v61, vcc
    s_nop 1
    """)
    for t in range(8):
        e(f"buffer_store_dwordx4 {rng('v', 120 + 4 * t, 4)}, v61, s[{S_WS}:{S_WS + 3}], 0 offen offset:{t * 64}")
    e(f"s_branch {R['done']}")

    e("L_moe_slow:")
    dbg = R["DBG"]
    e(f"""
    s_barrier
    s_mov_b32 s{sB}, {R.get('spin', 4000)}
    v_mov_b32 v21, 0
    L_moe_spin:
    global_load_dword v22, v21, s[{dbg}:{dbg + 1}] sc1
    s_waitcnt vmcnt(0)
    v_readfirstlane_b32 s{sA}, v22
    s_nop 0
    s_cmp_ge_u32 s{sA}, 32
    s_cbranch_scc1 L_moe_spin_ok
    s_sleep 8
    s_sub_u32 s{sB}, s{sB}, 1
    s_cmp_lg_u32 s{sB}, 0
    s_cbranch_scc1 L_moe_spin
    L_moe_spin_ok:
    s_cmp_ge_u32 s{sA}, 32
    s_cselect_b32 s{sA}, 1, 0
    v_mov_b32 v22, s{sA}
    v_mov_b32 v23, s{sRING}
    ds_write_b32 v23, v22 offset:128
    s_waitcnt lgkmcnt(0)
    s_barrier
    v_mov_b32 v23, {RB}
    ds_read_b32 v32, v23 offset:128
    ds_read_b32 v33, v23 offset:{WSTR + 128}
    ds_read_b32 v34, v23 offset:{2 * WSTR + 128}
    v_add_u32 v23, {3 * WSTR}, v23
    ds_read_b32 v35, v23 offset:128
    s_waitcnt lgkmcnt(0)
    v_and_b32 v32, v32, v33
    v_and_b32 v34, v34, v35
    v_and_b32 v32, v32, v34
    s_nop 0
    v_readfirstlane_b32 s{sA}, v32
    s_nop 0
    s_cmp_eq_u32 s{sA}, 1
    s_cbranch_scc1 L_moe_reload
    """)
    e(f"""
    s_lshl_b32 s{sRO}, s{R['SL']}, 14
    s_add_u32 s{sRO}, s{sRO}, {WS_FB}
    s_add_u32 s{sSO}, s{sRO}, 8192
    v_lshlrev_b32 v21, 4, v0
    buffer_load_dwordx4 v[40:43], v21, s[{R['WR']}:{R['WR'] + 3}], 0 offen
    s_lshl_b32 s{sB}, s{sW}, 9
    s_add_u32 s{sC_}, s{sB}, 512
    s_waitcnt vmcnt(0)
    """)
    for i in range(4):
        e(f"v_lshlrev_b32 v{44 + 2 * i}, 16, v{40 + i}")
        e(f"v_and_b32 v{45 + 2 * i}, s{sM}, v{40 + i}")
    e(f"""
    L_moe_fb:
    s_lshl_b32 s{sA}, s{sB}, 10
    buffer_load_dwordx4 v[40:43], v21, s[{S_X}:{S_X + 3}], s{sA} offen
    s_waitcnt vmcnt(0)
    """)
    for i in range(4):
        e(f"v_lshlrev_b32 v{56 + 2 * i}, 16, v{40 + i}")
        e(f"v_and_b32 v{57 + 2 * i}, s{sM}, v{40 + i}")

    def wave_sum(v, t):
        for x in (1, 2, 4, 8):
            e(f"s_nop 1")
            e(f"v_add_f32_dpp v{v}, v{v}, v{v} row_ror:{x} row_mask:0xf bank_mask:0xf")
        e(f"v_mov_b32 v{t}, v{v}")
        e("s_nop 1")
        e(f"v_permlane16_swap_b32 v{v}, v{t}")
        e("s_nop 0")
        e(f"v_add_f32 v{v}, v{v}, v{t}")
        e(f"v_mov_b32 v{t}, v{v}")
        e("s_nop 1")
        e(f"v_permlane32_swap_b32 v{v}, v{t}")
        e("s_nop 0")
        e(f"v_add_f32 v{v}, v{v}, v{t}")
    e("v_add_f32 v64, v56, v57")
    for i in range(2, 8):
        e(f"v_add_f32 v64, v64, v{56 + i}")
    wave_sum(64, 65)
    e(f"v_mul_f32 v64, {hex(f2u(1.0 / 512))}, v64        ; mean")
    e("v_sub_f32 v66, v56, v64")
    e("v_mul_f32 v67, v66, v66")
    for i in range(1, 8):
        e(f"v_sub_f32 v66, v{56 + i}, v64")
        e(f"v_fmac_f32 v67, v66, v66")
    wave_sum(67, 65)
    e(f"""
    v_mul_f32 v67, {hex(f2u(1.0 / 512))}, v67
    v_cvt_pk_bf16_f32 v68, v64, v67
    v_and_b32 v69, s{sM}, v68
    v_add_f32 v69, {hex(f2u(1e-5))}, v69
    v_cvt_pk_bf16_f32 v69, v69, v69
    v_and_b32 v69, s{sM}, v69
    v_sqrt_f32 v69, v69
    v_lshlrev_b32 v64, 16, v68
    v_cvt_pk_bf16_f32 v69, v69, v69
    v_and_b32 v69, s{sM}, v69             ; sd
    v_rcp_f32 v70, v69
    v_and_b32 v68, 0xffff, v68
    v_or_b32 v68, v68, v69
    v_mov_b32 v71, 0
    """)
    for i in range(8):
        e(f"""
        v_sub_f32 v66, v{56 + i}, v64
        v_mul_f32 v66, v66, v70
        v_cvt_pk_bf16_f32 v66, v66, v66
        v_and_b32 v66, s{sM}, v66
        v_fmac_f32 v71, v66, v{44 + i}
        """)
    wave_sum(71, 65)
    e(f"""
    v_cvt_pk_bf16_f32 v71, v71, v71
    v_and_b32 v71, s{sM}, v71
    s_lshl_b32 s{sA}, s{sB}, 2
    v_mov_b32 v72, s{sA}
    v_add_u32 v73, s{sRO}, v72
    v_add_u32 v74, s{sSO}, v72
    v_cmp_eq_u32 vcc, 0, v0
    s_nop 1
    s_and_saveexec_b64 s[{mk[0]}:{mk[0] + 1}], vcc
    buffer_store_dword v71, v73, s[{S_WS}:{S_WS + 3}], 0 offen sc1
    buffer_store_dword v68, v74, s[{S_WS}:{S_WS + 3}], 0 offen sc1
    s_mov_b64 exec, s[{mk[0]}:{mk[0] + 1}]
    s_add_u32 s{sB}, s{sB}, 1
    s_cmp_lt_u32 s{sB}, s{sC_}
    s_cbranch_scc1 L_moe_fb
    s_waitcnt vmcnt(0)
    s_barrier
    L_moe_reload:
    s_lshl_b32 s{sA}, s{sW}, 11
    v_lshlrev_b32 v21, 5, v0
    v_add_u32 v21, s{sA}, v21
    v_add_u32 v21, s{sRO}, v21
    buffer_load_dwordx4 v[8:11], v21, s[{S_WS}:{S_WS + 3}], 0 offen sc1
    buffer_load_dwordx4 v[12:15], v21, s[{S_WS}:{S_WS + 3}], 0 offen offset:16 sc1
    s_mov_b32 s{R['RDY']}, 1
    s_waitcnt vmcnt(0)
    s_barrier
    s_branch L_moe_keys
    """)


WS_FB = 24 << 20
```

```python
from emit import E, check_hazards
from asmlib import KA

RB = 65536
WSTR = 24576
SLOT = 8192
C_SCALE = 1.4426950408889634 * (128 ** -0.5)

WS_PART = 0
WS_R = 16 << 20
WS_STAT = WS_R + 8192
WS_H = WS_R + 65536
WS_IDX = WS_H + 32768
WS_TS = 32 << 20


def f2u(x):
    import struct
    return struct.unpack("<I", struct.pack("<f", x))[0]


S_X, S_WQ, S_K, S_V, S_WO, S_WS, S_WR = 4, 8, 12, 16, 20, 24, 28
sG, sTB, sW, sSK = 32, 33, 34, 35
sWQO, sWOO, sKO, sVO = 36, 37, 38, 39
sRING = 40
sCNT = 41
sT0, sT1, sT2, sT3 = 42, 43, 44, 45
sKSL, sVSL = 46, 47
sKD, sVD = 48, 49
sTRIP = 50
sGA = 52
sGB = 56
sGAO, sGBO = 60, 61
sGAM, sGBM = 62, 63
sMASK = 64
sPASS = 70
sKVB = 71
sKVT = 51
sDBG = 72
sSL = 98
sRDY = 99
sFP = 92
sHFD = 70
sTS = 74

vLANE = 0
vWQ = 1
vWO = 5
vKDM = 9
vVDM = 13
vAA = 14
vAB = 22
vBR = 30
vKR = 32
vVR = 40
vGA = 44
vGB = 48
vL = 52
vOW = 56
vPS = 57
vT = 58
vQ = 64
vS = 128
vP = 192
vNM = 224
vACC = 128

aA = 0
aB = 96
aF = 0
aO = 128


def rng(f, b, n):
    return f"{f}[{b}:{b + n - 1}]" if n > 1 else f"{f}{b}"


def Bset(setidx, tq):
    if setidx < 2:
        return rng("a", aB + setidx * 16 + tq * 4, 4)
    return rng("v", 64 + tq * 4, 4)


def Aset(setidx, dt):
    return rng("a", aA + setidx * 32 + dt * 4, 4)


def Ahalf(setidx, dt, rd):
    return rng("a", aA + setidx * 32 + dt * 4 + 2 * rd, 2)


def acc16(dt, tq):
    return rng("v", vACC + (dt * 4 + tq) * 4, 4)


OPT = {}
STAMP = [None]


class Slots:
    def __init__(self, n):
        self.n = n
        self.f = [[] for _ in range(n + 1)]

    def at(self, i, fn):
        self.f[min(max(i, 0), self.n)].append(fn)


class Side:
    def __init__(self):
        self.q = []
        self.last = None

    def add(self, x, gap=0, cond=None):
        self.q.append((x, gap, cond))

    def states_since(self, e):
        if self.last is None:
            return 99
        n = 0
        for l in e.l[self.last:]:
            t = l.strip()
            if t.endswith(":") or not t:
                continue
            n += int(t.split()[1], 0) + 1 if t.startswith("s_nop") else 1
        return n

    def emit(self, e, budget, pos=None, flush=False):
        while self.q and (budget > 0 or flush):
            x, gap, cond = self.q[0]
            if cond is not None and pos is not None and pos < cond and not flush:
                return
            have = self.states_since(e)
            if have < gap:
                if not flush:
                    return
                e.nop(gap - have)
            self.q.pop(0)
            if callable(x):
                x()
            else:
                e(x)
            self.last = len(e.l)
            budget -= 1


def gemm_step(e, p, phase, opts):
    j = p % 3
    jn = (p + 1) % 3
    va = vAA if phase == 1 else vAB
    rdoff = 1024 if phase == 1 else 2048
    sl = Slots(32)
    if opts.get("next", True):
        reads = []
        for dt in range(8):
            for rd in range(2):
                reads.append((dt, rd))
        spread = opts.get("aspread", 10)
        for n, (dt, rd) in enumerate(reads):
            def f(dt=dt, rd=rd):
                if OPT.get("noaread"):
                    return
                e.lds(f"ds_read_b64_tr_b16 {Ahalf(jn, dt, rd)}, v{va + dt} offset:{jn * SLOT + rd * rdoff}",
                      ("A", p + 1, dt))
            sl.at(n * spread // 16, f)
        for tq in range(4):
            def f(tq=tq):
                e.lds(f"ds_read_b128 {Bset(jn, tq)}, v{vBR} offset:{opts['boff_next'] + tq * 1024}", ("B", p + 1, tq))
            sl.at(spread + 1 + tq, f)
    for pos, fn in opts.get("fill", []):
        sl.at(pos, fn)
    if opts.get("next", True):
        e.need(vtags=opts.get("vneed"))
    for n in range(32):
        dt, tq = n // 4, n % 4
        need = [("A", p, dt), ("B", p, tq)]
        e.need(ltags=need)
        c = "0" if opts.get("first") else acc16(dt, tq)
        e(f"v_mfma_f32_16x16x32_bf16 {acc16(dt, tq)}, {Aset(j, dt)}, {Bset(j, tq)}, {c}")
        for fn in sl.f[n]:
            fn()
        side = opts.get("side")
        if side is not None:
            side.emit(e, opts.get("cap", 2) - len(sl.f[n]), pos=(p, n))
    for fn in sl.f[32]:
        fn()


def wdma(e, phase, i, tag):
    if OPT.get("nodma") and tag[1] > 3:
        e.vq.append(tag)
        return
    if phase == 1:
        e.vm(f"buffer_load_dwordx4 v{vWQ + i}, s[{S_WQ}:{S_WQ + 3}], s{sWQO} offen offset:{i * 1024} lds", tag)
    else:
        e.vm(f"buffer_load_dwordx4 v{vWO + i}, s[{S_WO}:{S_WO + 3}], s{sWOO} offen offset:{i * 1024} lds", tag)


def wdma_adv(e, phase):
    if phase == 1:
        e(f"s_add_u32 s{sWQO}, s{sWQO}, {16 * 8192}")
        e(f"s_and_b32 s{sWQO}, s{sWQO}, {512 * 8192 - 1}")
    else:
        e(f"s_add_u32 s{sT0}, s{sWOO}, {16 * 1024}")
        e(f"s_and_b32 s{sT0}, s{sT0}, {512 * 1024 - 1}")
        e(f"s_and_b32 s{sWOO}, s{sWOO}, {~(512 * 1024 - 1) & 0xffffffff}")
        e(f"s_or_b32 s{sWOO}, s{sWOO}, s{sT0}")


def half_dma(e, phase, slot, half, tag):
    def m0():
        e(f"s_add_u32 m0, s{sRING}, {slot * SLOT + half * 4096}")
    out = [m0]
    for i in range(4):
        out.append(lambda i=i: wdma(e, phase, i, tag))
    out.append(lambda: wdma_adv(e, phase))
    return out


def serial(e, fl):
    fl[0]()
    e("s_nop 0")
    for fn in fl[1:]:
        fn()


def place(fl, start, stride):
    res = [(start, fl[0])]
    for i in range(4):
        res.append((start + 1 + i * stride, fl[1 + i]))
    res.append((start + 1 + 3 * stride, fl[5]))
    return res


def kv_dma(e, which, tile_slot, tag):
    out = []
    if which == "K":
        out.append(lambda: e(f"s_add_u32 m0, s{sRING}, {tile_slot * SLOT}"))
        for i in range(4):
            out.append(lambda i=i: e.vm(
                f"buffer_load_dwordx4 v{vKDM + i}, s[{S_K}:{S_K + 3}], s{sKO} offen offset:{i * 1024} lds", tag))
        out.append(lambda: kv_adv(e, sKO))
    else:
        out.append(lambda: e(f"s_add_u32 m0, s{sRING}, {tile_slot * SLOT + 4096}"))
        for i in range(4):
            out.append(lambda i=i: e.vm(
                f"buffer_load_dwordx4 v{vVDM}, s[{S_V}:{S_V + 3}], s{sVO} offen offset:{i * 1024} lds", tag))
        out.append(lambda: kv_adv(e, sVO))
    return out


def kv_adv(e, sreg):
    e(f"s_sub_u32 s{sT0}, s{sreg}, s{sKVB}")
    e(f"s_add_u32 s{sT0}, s{sT0}, 16384")
    e(f"s_and_b32 s{sT0}, s{sT0}, {8 * 16384 - 1}")
    e(f"s_add_u32 s{sreg}, s{sT0}, s{sKVB}")


def gemm_pre(e, phase):
    va = vAA if phase == 1 else vAB
    rdoff = 1024 if phase == 1 else 2048
    e.need(vtags=[("W", 0, 0), ("W", 0, 1)])
    for tq in range(4):
        e.lds(f"ds_read_b128 {Bset(0, tq)}, v{vBR} offset:{tq * 1024}", ("B", 0, tq))
    for dt in range(8):
        for rd in range(2):
            e.lds(f"ds_read_b64_tr_b16 {Ahalf(0, dt, rd)}, v{va + dt} offset:{rd * rdoff}", ("A", 0, dt))


def gemm_main(e, phase, tail_fill, side=None):
    e.need(ltags=[("A", 0, 7)])
    serial(e, half_dma(e, phase, 0, 0, ("W", 3, 0)))

    def step_opts(p, boff_next):
        fill = []
        if p + 3 <= 15:
            fill += place(half_dma(e, phase, p % 3, 1, ("W", p + 3, 1)), 1, 4)
        if p + 4 <= 15:
            fl = half_dma(e, phase, (p + 1) % 3, 0, ("W", p + 4, 0))

            def guard(p=p):
                e.need(ltags=[("A", p + 1, 7)])
            fill += [(17, guard)] + place(fl, 17, 4)
        return dict(first=(p == 0), next=(p < 15), boff_next=boff_next, fill=fill,
                    vneed=[("W", p + 1, 0), ("W", p + 1, 1)])

    o = step_opts(0, 1 * 4096)
    gemm_step(e, 0, phase, o)
    lab = f"L_g{phase}_loop"
    e(f"s_mov_b32 s{sCNT}, 3")
    e(f"v_add_u32 v{vBR}, {1 * 4096}, v{vBR}")
    lq0, vq0 = list(e.lq), list(e.vq)
    e(f"{lab}:")
    n0 = len(e.l)
    for u in range(3):
        p = 1 + u
        o = step_opts(p, (u + 1) * 4096)
        if u == 2:
            o["fill"] = o["fill"] + [(29, lambda: e(f"v_add_u32 v{vBR}, {3 * 4096}, v{vBR}")),
                                     (31, lambda: e(f"s_sub_u32 s{sCNT}, s{sCNT}, 1")),
                                     (31, lambda: e(f"s_cmp_lg_u32 s{sCNT}, 0"))]
        gemm_step(e, p, phase, o)
    e(f"s_cbranch_scc1 {lab}")
    body = e.l[n0:]
    probs = check_hazards(body + body, f"gemm{phase} loop x2")
    assert not probs or any(k.startswith("no") for k in OPT), "\n".join(probs[:10])
    sh = lambda q, d: [(t[0], t[1] + d) + tuple(t[2:]) if t else t for t in q]
    assert sh(lq0, 3) == e.lq or OPT.get('noaread'), (lq0, e.lq)
    assert sh(vq0, 3) == e.vq, (vq0, e.vq)
    e.lq, e.vq = sh(e.lq, 6), sh(e.vq, 6)
    for p in range(10, 16):
        o = step_opts(p, (p - 10 + 1) * 4096)
        o["fill"] = o["fill"] + tail_fill(p)
        o["side"] = side
        o["cap"] = OPT.get("sidecap", 2)
        gemm_step(e, p, phase, o)


def acc3(hf, nt, tq):
    return rng("v", vACC + 64 * hf + (nt * 4 + tq) * 4, 4)


def A3(st, nt, rd=None):
    b = st * 16 + nt * 4
    return rng("a", b, 4) if rd is None else rng("a", b + 2 * rd, 2)


def B3(st, tq):
    return rng("a", 48 + st * 16 + tq * 4, 4)


def p3_dma(e, u):
    out = [lambda: e(f"s_add_u32 m0, s{sRING}, {(u % 6) * 4096}")]
    for i in range(4):
        out.append(lambda i=i: e.vm(
            f"buffer_load_dwordx4 v{vWO + i}, s[{S_WO}:{S_WO + 3}], s{sWOO} offen offset:{i * 1024} lds", ("W", u)))

    def adv():
        p3_adv(e)
        if u == 9:
            e(f"s_add_u32 s{sWOO}, s{sWOO}, s{sHFD}")
    out.append(adv)
    return out


def p3_adv(e):
    e(f"s_add_u32 s{sT0}, s{sWOO}, {32 * 1024}")
    e(f"s_and_b32 s{sT0}, s{sT0}, {512 * 1024 - 1}")
    e(f"s_and_b32 s{sWOO}, s{sWOO}, {~(512 * 1024 - 1) & 0xffffffff}")
    e(f"s_or_b32 s{sWOO}, s{sWOO}, s{sT0}")


def p3_reads(e, u, boff):
    st = u % 3
    r = []
    for nt in range(4):
        for rd in range(2):
            r.append(lambda nt=nt, rd=rd: e.lds(
                f"ds_read_b64_tr_b16 {A3(st, nt, rd)}, v{vAB + nt} offset:{(u % 6) * 4096 + rd * 1024}", ("A", u, nt)))
    for tq in range(4):
        r.append(lambda tq=tq: e.lds(f"ds_read_b128 {B3(st, tq)}, v{vBR} offset:{boff + tq * 1024}", ("B", u, tq)))
    return r


def p3_step(e, u, boff_next, fill=(), side=None, cap=2):
    hf, st = u >> 4, u % 3
    sl = Slots(16)
    nxt = u < 31
    if nxt:
        rd = p3_reads(e, u + 1, boff_next)
        for n in range(8):
            sl.at(n * 6 // 8, rd[n])
        for tq in range(4):
            sl.at(6 + tq, rd[8 + tq])
    if u + 6 <= 31:
        fl = p3_dma(e, u + 6)
        sl.at(1, fl[0])
        for i in range(4):
            sl.at(2 + 4 * i, fl[1 + i])
        sl.at(14, fl[5])
    for pos, fn in fill:
        sl.at(pos, fn)
    if nxt:
        e.need(vtags=[("W", u + 1)])
    for n in range(16):
        nt, tq = n // 4, n % 4
        e.need(ltags=[("A", u, nt), ("B", u, tq)])
        c = "0" if (u & 15) == 0 else acc3(hf, nt, tq)
        e(f"v_mfma_f32_16x16x32_bf16 {acc3(hf, nt, tq)}, {A3(st, nt)}, {B3(st, tq)}, {c}")
        for fn in sl.f[n]:
            fn()
        if side is not None:
            left = cap - len(sl.f[n])
            for sd in side:
                n0 = len(sd.q)
                sd.emit(e, left, pos=(u, n))
                left -= n0 - len(sd.q)
    for fn in sl.f[16]:
        fn()


def p3_epilogue_items(e, hf, regs):
    items = []
    k = 0
    for nt in range(4):
        for qb in range(2):
            R = regs[k % len(regs)]
            k += 1
            a0 = vACC + 64 * hf + (nt * 4 + 2 * qb) * 4
            a1 = a0 + 4
            items.append((f"v_cvt_pk_bf16_f32 v{R}, v{a0}, v{a0 + 1}", 2))
            items.append((f"v_cvt_pk_bf16_f32 v{R + 1}, v{a0 + 2}, v{a0 + 3}", 0))
            items.append((f"v_cvt_pk_bf16_f32 v{R + 2}, v{a1}, v{a1 + 1}", 0))
            items.append((f"v_cvt_pk_bf16_f32 v{R + 3}, v{a1 + 2}, v{a1 + 3}", 0))
            items.append((f"v_permlane16_swap_b32 v{R}, v{R + 2}", 2))
            items.append((f"v_permlane16_swap_b32 v{R + 1}, v{R + 3}", 1))
            off = (nt & 1) * 2048 + qb * 1024
            so = {(0, 0): "0", (0, 1): "s48", (1, 0): "s49", (1, 1): "s50"}[(hf, nt >> 1)]
            items.append((lambda R=R, off=off, nt=nt, qb=qb, so=so: e.vm(
                f"buffer_store_dwordx4 {rng('v', R, 4)}, v{vPS}, s[{S_WS}:{S_WS + 3}], {so} offen offset:{off} "
                + OPT.get("pstore", "sc1"), ("ps", hf, nt, qb)), 0))
    return items


def p3_phase(e, tail_fill, side0, side1):
    if STAMP[0]:
        STAMP[0]("p3_start")
    p3_step(e, 0, 4096)
    e(f"s_mov_b32 s{sCNT}, 2")
    e(f"s_mov_b32 s{sHFD}, 0")
    e(f"v_add_u32 v{vBR}, {1 * 4096}, v{vBR}")
    lq0, vq0 = list(e.lq), list(e.vq)
    e("L_p3_loop:")
    n0 = len(e.l)
    for k in range(6):
        u = 1 + k
        fill = []
        if k == 5:
            fill = [(11, lambda: e(f"v_add_u32 v{vBR}, {6 * 4096}, v{vBR}")),
                    (15, lambda: e(f"s_mov_b32 s{sHFD}, 512")),
                    (15, lambda: e(f"s_sub_u32 s{sCNT}, s{sCNT}, 1")),
                    (15, lambda: e(f"s_cmp_lg_u32 s{sCNT}, 0"))]
        p3_step(e, u, (k + 1) * 4096, fill=fill)
    e("s_cbranch_scc1 L_p3_loop")
    body = e.l[n0:]
    probs = check_hazards(body + body, "p3 loop x2")
    assert not probs, "\n".join(probs[:10])
    sh = lambda q, d: [(t[0], t[1] + d) + tuple(t[2:]) if t else t for t in q]
    assert sh(lq0, 6) == e.lq, (lq0, e.lq)
    assert sh(vq0, 6) == e.vq, (vq0, e.vq)
    e.lq, e.vq = sh(e.lq, 6), sh(e.vq, 6)
    for u in range(13, 16):
        boff = (u - 13 + 1) * 4096 if u < 15 else -13 * 4096
        if u == 15:
            fill = [(0, lambda: e(f"v_subrev_u32 v{vBR}, {13 * 4096}, v{vBR}"))]
            p3_step(e, u, 0, fill=fill)
        else:
            p3_step(e, u, boff)
    for u in range(16, 32):
        p = u & 15
        if STAMP[0] and u in (16, 24):
            STAMP[0](f"p3_u{u}")
        p3_step(e, u, ((p + 1) & 15) * 4096, fill=tail_fill(u), side=side0, cap=OPT.get("sidecap", 2))


def Sreg(par, qb, i=None):
    b = vS + par * 32 + qb * 16
    return rng("v", b, 16) if i is None else f"v{b + i}"


def Preg(par, qb, t):
    return rng("v", vP + par * 16 + qb * 8 + t * 4, 4)


def Qreg(s16, qb):
    return rng("v", vQ + (s16 * 2 + qb) * 4, 4)


def Oreg(db, qb):
    return rng("a", aO + (db * 2 + qb) * 16, 16)


def Fbuf(n, half=None):
    b = aF + (n % 8) * 4
    return rng("a", b, 4) if half is None else rng("a", b + 2 * half, 2)


def k_read(e, b, s16):
    if OPT.get("nokvread"):
        return
    e.lds(f"ds_read_b128 {Fbuf(s16)}, v{vKR + s16} offset:{(b & 1) * 49152}", ("K", b, s16))


def v_read(e, b, f, order=None):
    t, db = (order or VORD_T)[f]
    if OPT.get("nokvread"):
        return
    for rd in range(2):
        e.lds(f"ds_read_b64_tr_b16 {Fbuf(8 + f, rd)}, v{vVR + db} offset:{t * WSTR + rd * 2048}", ("V", b, f))


def sm_ops(e, b):
    par = b & 1
    ops = []
    S = lambda x: Sreg(par, x // 16, x % 16)
    exp = lambda x: (lambda: e(f"v_exp_f32 {S(x)}, {S(x)}") if not OPT.get("noexp") else None)
    add = lambda x: (lambda: e(f"v_add_f32 v{vL + (x // 16) * 2 + (x & 1)}, v{vL + (x // 16) * 2 + (x & 1)}, {S(x)}"))
    cvt = lambda k: (lambda: e(f"v_cvt_pk_bf16_f32 v{vP + par * 16 + k}, {S(2 * k)}, {S(2 * k + 1)}"))
    if OPT.get("nosm"):
        return []
    for k in range(16):
        ops.append((2 * k, exp(2 * k)))
        if k > 0:
            ops.append((2 * k, add(2 * k - 2)))
            ops.append((2 * k, cvt(k - 1)))
        ops.append((2 * k + 1, exp(2 * k + 1)))
        if k > 0:
            ops.append((2 * k + 1, add(2 * k - 1)))
    ops.append((32, add(30)))
    ops.append((32, add(31)))
    ops.append((32, cvt(15)))
    return ops


VORD_T = [(f // 4, f % 4) for f in range(8)]
VORD_D = [(f % 2, f // 2) for f in range(8)]


def p2_iter(e, b, qk=True, sm=True, pv=True, look="K", fill=(), vpre=False, smstart=0, vord=VORD_T, vord_next=VORD_T,
            side=None, cap=5):
    mf = []
    if qk:
        par = (b + 1) & 1
        for s16 in range(8):
            for qb in range(2):
                c = rng("v", vNM + qb * 16, 16) if s16 == 0 else Sreg(par, qb)
                mf.append((f"v_mfma_f32_32x32x16_bf16 {Sreg(par, qb)}, {Fbuf(s16)}, {Qreg(s16, qb)}, {c}",
                           ("K", b + 1, s16), s16))
    if pv:
        par = (b - 1) & 1
        for f in range(8):
            t, db = vord[f]
            for qb in range(2):
                mf.append((f"v_mfma_f32_32x32x16_bf16 {Oreg(db, qb)}, {Fbuf(8 + f)}, {Preg(par, qb, t)}, {Oreg(db, qb)}",
                           ("V", b - 1, f), 8 + f))
    n = len(mf)
    sl = Slots(n)
    if qk and pv:
        for f in range(4, 8):
            sl.at(2 * (f - 4) + 1, lambda f=f: k_read(e, b + 1, f))
        for f in range(8):
            sl.at(2 * (f + 4) + 1, lambda f=f: v_read(e, b - 1, f))
        if look == "K":
            for f in range(4):
                sl.at(24 + 2 * f + 1, lambda f=f: k_read(e, b + 2, f))
    elif qk:
        for f in range(4, 8):
            sl.at(2 * (f - 4) + 1, lambda f=f: k_read(e, b + 1, f))
        if look == "K":
            for f in range(4):
                sl.at(8 + 2 * f + 1, lambda f=f: k_read(e, b + 2, f))
    else:
        if vpre:
            for f in range(4):
                v_read(e, b - 1, f, vord)
        for f in range(4, 8):
            sl.at(2 * (f - 4) + 1, lambda f=f: v_read(e, b - 1, f, vord))
        if look == "V":
            for f in range(4):
                sl.at(8 + 2 * f + 1, lambda f=f: v_read(e, b, f, vord_next))
    if sm:
        ops = sm_ops(e, b)
        for (s, fn) in ops:
            sl.at(smstart + s * (n - smstart) // 32 if s < 32 else n, fn)
    for (s, fn) in fill:
        sl.at(s, fn)
    if vpre and sm:
        pass
    for i, (txt, tag, fi) in enumerate(mf):
        if i % 4 == 0:
            tags = [tag]
            if i + 2 < n:
                tags.append(mf[i + 2][1])
            e.need(ltags=tags)
        e(txt)
        for fn in sl.f[i]:
            fn()
        if side is not None:
            side.emit(e, cap - len(sl.f[i]), pos=(b, i))
    for fn in sl.f[n]:
        fn()


def gen_k1(label, stamps=False, debug=None, opt=None):
    OPT.clear()
    OPT.update(opt or {})
    STAMP[0] = None
    e = E()
    nst = [0]

    def stamp(name, wait=True):
        if not stamps:
            return
        k = nst[0]
        assert k < 9
        e(f"{stamps} s[{sTS + 2 * k}:{sTS + 2 * k + 1}]   ; stamp {k} {name}")
        if wait:
            e.wait_all(vm=False)
        nst[0] += 1
    done = f"L_{label}_done"
    e(f"""
    s_cmp_ge_u32 s2, 256
    s_cbranch_scc1 {done}
    s_load_dwordx2 s[4:5], s[0:1], 0
    s_load_dwordx2 s[12:13], s[0:1], 8
    s_load_dwordx2 s[16:17], s[0:1], 16
    s_load_dwordx2 s[8:9], s[0:1], 24
    s_load_dwordx2 s[20:21], s[0:1], {KA['wo']}
    s_load_dwordx2 s[28:29], s[0:1], {KA['wr']}
    s_load_dwordx2 s[24:25], s[0:1], {KA['ws']}
    s_load_dwordx2 s[{sDBG}:{sDBG + 1}], s[0:1], {KA['dbg']}
    s_load_dwordx4 s[{sFP}:{sFP + 3}], s[0:1], {KA['wg']}
    s_load_dwordx2 s[{sFP + 4}:{sFP + 5}], s[0:1], {KA['wd']}
    """)
    stamp("start", wait=False)
    e(f"""
    v_lshrrev_b32 v{vT}, 6, v0
    v_and_b32 v{vLANE}, 63, v0
    v_readfirstlane_b32 s{sW}, v{vT}
    """)
    mp = OPT.get("map", "A")
    if mp == "A":
        e(f"""
        s_and_b32 s{sG}, s2, 7
        s_lshr_b32 s{sTB}, s2, 3
        s_and_b32 s{sSK}, s{sTB}, 15
        s_and_b32 s{sKVT}, s{sTB}, 7
        """)
    elif mp == "B":
        e(f"""
        s_and_b32 s{sT0}, s2, 3
        s_lshl_b32 s{sT0}, s{sT0}, 1
        s_bfe_u32 s{sT1}, s2, {3 | (1 << 16)}
        s_or_b32 s{sG}, s{sT0}, s{sT1}
        s_bfe_u32 s{sT0}, s2, {2 | (1 << 16)}
        s_lshl_b32 s{sT0}, s{sT0}, 4
        s_lshr_b32 s{sT1}, s2, 4
        s_or_b32 s{sTB}, s{sT0}, s{sT1}
        s_and_b32 s{sSK}, s{sTB}, 7
        s_lshl_b32 s{sSK}, s{sSK}, 1
        s_and_b32 s{sKVT}, s{sTB}, 7
        """)
    elif mp == "C":
        e(f"""
        s_and_b32 s{sT0}, s2, 1
        s_lshl_b32 s{sT0}, s{sT0}, 2
        s_bfe_u32 s{sT1}, s2, {3 | (2 << 16)}
        s_or_b32 s{sG}, s{sT0}, s{sT1}
        s_bfe_u32 s{sT0}, s2, {1 | (2 << 16)}
        s_lshl_b32 s{sT0}, s{sT0}, 3
        s_lshr_b32 s{sT1}, s2, 5
        s_or_b32 s{sTB}, s{sT0}, s{sT1}
        s_and_b32 s{sSK}, s{sTB}, 7
        s_lshl_b32 s{sSK}, s{sSK}, 1
        s_and_b32 s{sKVT}, s{sTB}, 7
        """)
        if OPT.get("s4"):
            e(f"""
            s_and_b32 s{sSK}, s{sTB}, 3
            s_lshl_b32 s{sSK}, s{sSK}, 2
            """)
        if OPT.get("gskew"):
            e(f"""
            s_and_b32 s{sT0}, s{sG}, 3
            s_lshl_b32 s{sT0}, s{sT0}, 2
            s_add_u32 s{sSK}, s{sSK}, s{sT0}
            s_and_b32 s{sSK}, s{sSK}, 15
            """)
    L = vLANE
    t0, t1, t2, t3, t4, t5 = vT, vT + 1, vT + 2, vT + 3, vT + 4, vT + 5
    XV0, XV1 = 56, 57
    e(f"""
    v_and_b32 v{t2}, 15, v{L}
    v_lshrrev_b32 v{t3}, 4, v{L}
    s_lshl_b32 s{sT0}, s{sTB}, 6
    s_lshl_b32 s{sT1}, s{sW}, 4
    s_add_u32 s{sT0}, s{sT0}, s{sT1}
    v_lshrrev_b32 v{t0}, 3, v{L}
    v_add_u32 v{t0}, s{sT0}, v{t0}
    v_and_b32 v{t1}, 7, v{L}
    v_xor_b32 v{t1}, v{t1}, v{t3}
    v_lshlrev_b32 v{t1}, 4, v{t1}
    v_lshl_add_u32 v{XV0}, v{t0}, 10, v{t1}
    v_xor_b32 v{XV1}, 64, v{XV0}              ; chunk ^ 4
    v_add_u32 v{XV1}, 8192, v{XV1}            ; +8 tokens
    s_mul_i32 s{sRING}, s{sW}, {WSTR}
    s_add_u32 s{sRING}, s{sRING}, {RB}
    s_lshl_b32 s{sT3}, s{sW}, 10              ; w*1024
    s_lshl_b32 s101, s{sSK}, 6
    s_waitcnt lgkmcnt(0)
    """)
    for (dst, size) in [(S_X, 2097152), (S_K, 4194304), (S_V, 4194304), (S_WQ, 4194304),
                        (S_WO, 4194304), (S_WR, 1024), (S_WS, 0x10000000)]:
        e(f"""
        s_mov_b32 s{dst + 2}, {size}
        s_mov_b32 s{dst + 3}, 0x20000
        """)
    stamp("kernarg", wait=True)
    def xdma(u):
        for hb in range(2):
            e(f"s_add_u32 m0, s{sT3}, {(2 * u + hb) * 4096}")
            e("s_nop 0")
            e.vm(f"buffer_load_dwordx4 v{XV0 + hb}, s[{S_X}:{S_X + 3}], s101 offen lds", ("x", u, hb))
        e(f"s_add_u32 s101, s101, 128")
        e(f"s_and_b32 s101, s101, 1023")

    def wrdma():
        e(f"""
        s_lshl_b32 s{sT0}, s{sSK}, 2
        v_add_u32 v58, s{sT0}, v{L}
        v_and_b32 v58, 63, v58
        v_lshlrev_b32 v58, 4, v58
        s_add_u32 m0, s{sRING}, {2 * SLOT + 4096}
        s_nop 0
        """)
        e.vm(f"buffer_load_dwordx4 v58, s[{S_WR}:{S_WR + 3}], 0 offen lds", ("wr", 0))
    NU0 = OPT.get("nu0", 6)
    for u in range(NU0):
        xdma(u)
    e(f"""
    s_lshl_b32 s{sT0}, s{sG}, 2
    s_add_u32 s{sT0}, s{sT0}, s{sW}
    s_lshl_b32 s{sT0}, s{sT0}, 8            ; head*256
    v_lshlrev_b32 v{t4}, 1, v{t3}
    v_xor_b32 v{t4}, v{t4}, v{t2}
    v_lshlrev_b32 v{t5}, 13, v{t3}           ; rr*8192
    v_add_u32 v{t5}, s{sT0}, v{t5}
    v_lshl_add_u32 v{vWQ}, v{t4}, 4, v{t5}
    v_add_u32 v{vWQ + 1}, {32768 - 1024}, v{vWQ}
    v_xor_b32 v{t4}, 8, v{t4}
    v_lshl_add_u32 v{vWQ + 2}, v{t4}, 4, v{t5}
    v_add_u32 v{vWQ + 2}, {2 * (32768 - 1024)}, v{vWQ + 2}
    v_add_u32 v{vWQ + 3}, {32768 - 1024}, v{vWQ + 2}
    s_lshl_b32 s{sWQO}, s{sSK}, 18
    """)
    wq_pre = []
    for p in range(3):
        for h in range(2):
            fl = half_dma(e, 1, p, h, ("W", p, h))
            for i in range(4):
                grp = []
                if i == 0:
                    grp += [fl[0], lambda: e("s_nop 0")]
                grp.append(fl[1 + i])
                if i == 3:
                    grp.append(fl[5])
                wq_pre.append(grp)
    if OPT.get("early_dma", 0):
        for grp in wq_pre[:OPT["early_dma"]]:
            for fn in grp:
                fn()
        wq_pre = wq_pre[OPT["early_dma"]:]


    r_, c_ = 60, 61
    A0, A1, A2, A3, A4, A5 = 128, 129, 130, 131, 132, 133
    e(f"""
    v_bfe_u32 v{A0}, v{L}, 2, 2              ; r
    v_and_b32 v{A1}, 3, v{L}                 ; c
    v_lshrrev_b32 v{A2}, 4, v{L}             ; q4
    v_and_b32 v{A3}, 1, v{A2}
    v_lshl_or_b32 v{A3}, v{A3}, 2, v{A0}     ; phi
    v_lshlrev_b32 v{A3}, 1, v{A3}            ; f
    v_lshrrev_b32 v{A4}, 1, v{A1}
    v_xor_b32 v{A3}, v{A3}, v{A4}            ; chunk
    v_lshlrev_b32 v{A3}, 4, v{A3}
    v_and_b32 v{A4}, 1, v{A1}
    v_lshl_or_b32 v{A3}, v{A4}, 3, v{A3}     ; + (c&1)*8
    v_lshl_add_u32 v{A4}, v{A2}, 3, v{A0}    ; row
    v_lshl_add_u32 v{A3}, v{A4}, 8, v{A3}
    v_add_u32 v{vAA}, s{sRING}, v{A3}
    """)
    for dt in range(1, 8):
        e(f"v_xor_b32 v{vAA + dt}, {32 * dt}, v{vAA}")
    e(f"""
    v_and_b32 v{A3}, 1, v{A2}
    v_lshl_or_b32 v{A4}, v{A3}, 2, v{A0}     ; 4(q4&1) + r
    v_lshrrev_b32 v{A3}, 1, v{A4}            ; psi
    v_lshrrev_b32 v{A5}, 1, v{A2}
    v_lshl_or_b32 v{A4}, v{A5}, 4, v{A4}     ; row
    v_lshlrev_b32 v{A3}, 1, v{A3}
    v_lshrrev_b32 v{A5}, 1, v{A1}
    v_xor_b32 v{A3}, v{A3}, v{A5}            ; chunk
    v_lshlrev_b32 v{A3}, 4, v{A3}
    v_and_b32 v{A5}, 1, v{A1}
    v_lshl_or_b32 v{A3}, v{A5}, 3, v{A3}
    v_lshl_add_u32 v{A3}, v{A4}, 7, v{A3}
    v_add_u32 v{vAB}, s{sRING}, v{A3}
    """)
    for dt in range(1, 4):
        e(f"v_xor_b32 v{vAB + dt}, {32 * dt}, v{vAB}")
    e(f"""
    v_lshlrev_b32 v{vBR}, 4, v{L}            ; B read: X + l*16
    v_lshrrev_b32 v{A3}, 3, v{L}             ; row8
    v_lshrrev_b32 v{A4}, 1, v{A3}
    v_and_b32 v{A4}, 3, v{A4}
    v_lshlrev_b32 v{A4}, 1, v{A4}
    v_and_b32 v{A5}, 7, v{L}
    v_xor_b32 v{A4}, v{A4}, v{A5}
    v_lshlrev_b32 v{A4}, 4, v{A4}
    v_lshl_add_u32 v{A4}, v{A3}, 10, v{A4}
    s_lshl_b32 s{sT0}, s{sW}, 7
    v_add_u32 v{vWO}, s{sT0}, v{A4}
    v_add_u32 v{vWO + 1}, 7168, v{vWO}
    v_add_u32 v{vWO + 2}, {2 * 7168}, v{vWO}
    v_add_u32 v{vWO + 3}, {3 * 7168}, v{vWO}
    v_and_b32 v{A3}, 15, v{L}
    s_lshl_b32 s{sWOO}, s{sG}, 19
    s_lshl_b32 s{sT0}, s{sSK}, 15
    s_add_u32 s{sWOO}, s{sWOO}, s{sT0}
    v_xor_b32 v{A4}, v{A2}, v{A3}            ; (l&15)^rr
    v_lshlrev_b32 v{A5}, 8, v{A2}
    v_lshl_add_u32 v{vKDM}, v{A4}, 4, v{A5}
    v_xor_b32 v{vKDM + 1}, 64, v{vKDM}
    v_xor_b32 v{vKDM + 2}, 128, v{vKDM}
    v_xor_b32 v{vKDM + 3}, 192, v{vKDM}
    v_lshlrev_b32 v{A4}, 2, v{A2}
    v_xor_b32 v{A4}, v{A4}, v{A3}
    v_lshl_add_u32 v{vVDM}, v{A4}, 4, v{A5}
    v_lshrrev_b32 v{A4}, 5, v{L}             ; h
    v_xor_b32 v{A4}, v{A4}, v{A3}
    v_lshlrev_b32 v{A4}, 4, v{A4}
    v_lshl_add_u32 v{A4}, v{A3}, 8, v{A4}
    v_and_b32 v{A5}, 1, v{A2}
    v_mul_u32_u24 v{A5}, {WSTR}, v{A5}
    v_add_u32 v{A4}, v{A4}, v{A5}
    v_add_u32 v{vKR}, {RB + 1 * SLOT}, v{A4}
    """)
    for s16 in range(1, 8):
        e(f"v_xor_b32 v{vKR + s16}, {32 * s16}, v{vKR}")
    e(f"""
    v_and_b32 v{A4}, 1, v{A2}
    v_lshlrev_b32 v{A4}, 1, v{A4}
    v_lshrrev_b32 v{A5}, 1, v{A1}
    v_or_b32 v{A4}, v{A4}, v{A5}
    v_lshlrev_b32 v{A5}, 2, v{A0}
    v_xor_b32 v{A4}, v{A4}, v{A5}
    v_lshlrev_b32 v{A4}, 4, v{A4}
    v_and_b32 v{A5}, 1, v{A1}
    v_lshl_or_b32 v{A4}, v{A5}, 3, v{A4}
    v_lshrrev_b32 v{A5}, 5, v{L}
    v_lshl_add_u32 v{A5}, v{A5}, 2, v{A0}    ; 4h + r
    v_lshl_add_u32 v{A4}, v{A5}, 8, v{A4}
    v_add_u32 v{vVR}, {RB + 4096 + 1 * SLOT}, v{A4}
    """)
    for db in range(1, 4):
        e(f"v_xor_b32 v{vVR + db}, {64 * db}, v{vVR}")
    e(f"""
    """)
    for u in range(NU0, 8):
        xdma(u)
    wrdma()
    e(f"""
    v_lshlrev_b32 v{vOW}, 4, v{A3}
    v_lshrrev_b32 v{A4}, 5, v{L}
    v_lshl_add_u32 v{vOW}, v{A4}, 8, v{vOW}
    v_and_b32 v{A4}, 1, v{A2}
    v_lshl_add_u32 v{vOW}, v{A4}, 10, v{vOW}
    """)
    e(f"""
    s_lshl_b32 s{sT0}, s{sG}, 5
    s_add_u32 s{sT0}, s{sT0}, s{sTB}
    s_lshl_b32 s{sT0}, s{sT0}, 3
    s_add_u32 s{sT0}, s{sT0}, s{sW}
    s_lshl_b32 s{sT0}, s{sT0}, 13
    v_lshlrev_b32 v{vPS}, 4, v{L}
    v_add_u32 v{vPS}, s{sT0}, v{vPS}
    s_lshl_b32 s{sKVB}, s{sG}, 19
    s_lshl_b32 s{sT0}, s{sW}, 12
    s_add_u32 s{sKVB}, s{sKVB}, s{sT0}
    s_add_u32 s{sKVB}, s{sKVB}, {1536 * 256}
    s_lshl_b32 s{sT0}, s{sKVT}, 14
    s_add_u32 s{sKO}, s{sKVB}, s{sT0}
    s_mov_b32 s{sVO}, s{sKO}
    v_cmp_eq_u32 s[{sMASK}:{sMASK + 1}], 1, v{A1}
    v_cmp_eq_u32 s[{sMASK + 2}:{sMASK + 3}], 2, v{A1}
    v_cmp_eq_u32 s[{sMASK + 4}:{sMASK + 5}], 3, v{A1}
    v_cmp_eq_u32 s[98:99], v{A2}, v{A0}
    """)
    e(f"v_mov_b32 v{A5}, 0x3f803f80")
    for i in range(4):
        e(f"v_accvgpr_write_b32 a{64 + i}, v{A5}")
    e(f"s_mov_b32 s100, 0xffff0000")
    e("s_nop 0")
    SUM, GRM = 68, 72
    e(f"""
    v_and_b32 v58, 15, v{L}                  ; tok16
    v_lshrrev_b32 v59, 4, v{L}               ; q4
    v_bfe_u32 v60, v58, 1, 3                 ; swz
    v_xor_b32 v59, v59, v60
    v_lshlrev_b32 v59, 4, v59
    v_and_b32 v60, 7, v58
    v_lshl_add_u32 v59, v60, 7, v59
    v_lshrrev_b32 v60, 3, v58
    v_lshl_add_u32 v59, v60, 12, v59
    v_add_u32 v62, s{sT3}, v59
    v_xor_b32 v63, 64, v62
    """)

    def stat_frag(p):
        e.need(ltags=[("xr", p)])
        xf = rng("v", vQ + 4 * p, 4)
        c1 = "0" if p == 0 else rng("a", SUM, 4)
        c2 = "0" if p == 0 else rng("a", GRM, 4)
        e(f"v_mfma_f32_16x16x32_bf16 {rng('a', SUM, 4)}, a[64:67], {xf}, {c1}")
        e(f"v_mfma_f32_16x16x32_bf16 {rng('a', GRM, 4)}, {xf}, {xf}, {c2}")
        for i in range(4):
            src = vQ + 4 * p + i
            dst = 128 + 8 * p + 2 * i
            e(f"v_lshlrev_b32 v{dst}, 16, v{src}")
            e(f"v_and_b32 v{dst + 1}, s100, v{src}")

    for u in range(8):
        e.need(vtags=[("x", u, 1)])
        for par in range(2):
            e.lds(f"ds_read_b128 {rng('v', vQ + 4 * (2 * u + par), 4)}, v{62 + par} offset:{u * 8192}", ("xr", 2 * u + par))
        for k in range(2):
            if wq_pre and u >= OPT.get("dma_from", 0):
                for fn in wq_pre.pop(0):
                    fn()
        if u > 0:
            stat_frag(2 * u - 2)
            stat_frag(2 * u - 1)
    e.need(vtags=[("wr", 0)])
    e(f"""
    v_lshrrev_b32 v58, 4, v{L}
    v_lshlrev_b32 v58, 4, v58
    v_add_u32 v58, s{sRING}, v58
    """)
    for p in range(16):
        e.lds(f"ds_read_b128 {rng('a', 128 + 4 * p, 4)}, v58 offset:{2 * SLOT + 4096 + p * 64}", ("wrf", p))
    stat_frag(14)
    stat_frag(15)
    e.nop(6)
    if not OPT.get("tailstamps") and not OPT.get("p3stamps"):
        stamp("x15_stats")
    s1, s2_, u0, u1, u2, u3 = 58, 59, 60, 61, 62, 63
    e(f"""
    v_accvgpr_read_b32 v{s1}, a{SUM}
    v_accvgpr_read_b32 v{u0}, a{GRM}
    v_accvgpr_read_b32 v{u1}, a{GRM + 1}
    v_accvgpr_read_b32 v{u2}, a{GRM + 2}
    v_accvgpr_read_b32 v{u3}, a{GRM + 3}
    v_cndmask_b32 v{u0}, v{u0}, v{u1}, s[{sMASK}:{sMASK + 1}]
    v_cndmask_b32 v{u0}, v{u0}, v{u2}, s[{sMASK + 2}:{sMASK + 3}]
    v_cndmask_b32 v{u0}, v{u0}, v{u3}, s[{sMASK + 4}:{sMASK + 5}]
    v_cndmask_b32 v{u0}, 0, v{u0}, s[98:99]
    v_mov_b32 v{u1}, v{u0}
    s_nop 1
    v_permlane32_swap_b32 v{u0}, v{u1}
    s_nop 0
    v_add_f32 v{u0}, v{u0}, v{u1}
    v_mov_b32 v{u1}, v{u0}
    s_nop 1
    v_permlane16_swap_b32 v{u0}, v{u1}
    s_nop 0
    v_add_f32 v{s2_}, v{u0}, v{u1}
    v_mul_f32 v{s1}, {hex(f2u(1.0 / 512))}, v{s1}     ; mean
    v_mul_f32 v{s2_}, {hex(f2u(1.0 / 512))}, v{s2_}
    v_fma_f32 v{s2_}, -v{s1}, v{s1}, v{s2_}      ; var
    v_max_f32 v{s2_}, 0, v{s2_}
    v_cvt_pk_bf16_f32 v{u0}, v{s1}, v{s2_}
    v_and_b32 v{u1}, s100, v{u0}
    v_add_f32 v{u1}, {hex(f2u(1e-5))}, v{u1}
    v_cvt_pk_bf16_f32 v{u1}, v{u1}, v{u1}
    v_and_b32 v{u1}, s100, v{u1}
    v_sqrt_f32 v{u1}, v{u1}
    v_lshlrev_b32 v{s1}, 16, v{u0}             ; mean_b f32
    v_cvt_pk_bf16_f32 v{u1}, v{u1}, v{u1}
    v_and_b32 v{u2}, s100, v{u1}                ; sd_b f32
    v_rcp_f32 v{u3}, v{u2}
    v_and_b32 v{u0}, 0xffff, v{u0}
    v_or_b32 v31, v{u0}, v{u2}
    v_mul_f32 v{u3}, {hex(f2u(C_SCALE))}, v{u3}     ; rsc
    v_mul_f32 v{u2}, v{s1}, v{u3}
    v_sub_f32 v{u2}, 0, v{u2}
    """)
    e(f"""
    v_mov_b32 v60, v{u3}
    v_mov_b32 v61, v{u3}
    v_mov_b32 v63, v{u2}
    """)
    e(f"""
    s_lshl_b32 s{sT0}, s{sW}, 10
    v_add_u32 v{s1}, s{sT0}, v{vBR}
    """)
    for p in range(16):
        for i in range(4):
            src = 128 + 8 * p + 2 * i
            e(f"v_pk_fma_f32 v[{src}:{src + 1}], v[{src}:{src + 1}], v[60:61], v[62:63]")
        for i in range(4):
            src = 128 + 8 * p + 2 * i
            e(f"v_cvt_pk_bf16_f32 v{vQ + 4 * p + i}, v{src}, v{src + 1}")
        e.lds(f"ds_write_b128 v{s1}, {rng('v', vQ + 4 * p, 4)} offset:{p * 4096}", ("xw", p))
        if wq_pre and p % OPT.get("dma_norm", 2) == 0 and not OPT.get("dma_late"):
            if len(wq_pre) <= 4:
                e.need(ltags=[("wrf", 15)])
            for fn in wq_pre.pop(0):
                fn()
    e.need(ltags=[("wrf", 15)])
    while wq_pre:
        for fn in wq_pre.pop(0):
            fn()
    e.need(ltags=[("xw", 15)])
    e("s_barrier")
    if not OPT.get("tailstamps") and not OPT.get("p3stamps"):
        stamp("ln_done")
    gemm_pre(e, 1)
    for p in range(16):
        c = "0" if p == 0 else "a[76:79]"
        e(f"v_mfma_f32_16x16x32_bf16 a[76:79], {rng('a', 128 + 4 * p, 4)}, {rng('v', vQ + 4 * p, 4)}, {c}")
    e.nop(8)
    e(f"""
    v_accvgpr_read_b32 v58, a76
    v_mul_f32 v58, {hex(f2u(1.0 / C_SCALE))}, v58
    v_cvt_pk_bf16_f32 v58, v58, v58
    v_and_b32 v59, s100, v58
    v_ashrrev_i32 v58, 31, v59
    v_or_b32 v58, 0x80000000, v58
    v_xor_b32 v59, v59, v58                  ; monotone map
    s_lshl_b32 s{sT0}, s{sTB}, 6
    s_lshl_b32 s{sT1}, s{sW}, 4
    s_add_u32 s{sT0}, s{sT0}, s{sT1}
    s_sub_u32 s{sT0}, 2047, s{sT0}
    v_and_b32 v58, 15, v{vLANE}
    v_sub_u32 v58, s{sT0}, v58               ; 2047 - token
    v_and_or_b32 v59, v59, s100, v58
    """)

    def tail1(p):
        f = []

        def guard(pp):
            return lambda: e.need(ltags=[("A", pp + 1, 7)])
        if p == 12:
            f += [(17, guard(12))] + place(kv_dma(e, "K", 1, ("KV", 0, "K")), 17, 4)
        if p == 13:
            f += place(kv_dma(e, "V", 1, ("KV", 0, "V")), 1, 4)
            f += [(17, guard(13))] + place(kv_dma(e, "K", 2, ("KV", 1, "K")), 17, 4)
        if p == 14:
            f += place(kv_dma(e, "V", 2, ("KV", 1, "V")), 1, 4)
            f += [(17, guard(14))] + place(kv_dma(e, "K", 0, ("KV", 2, "K")), 17, 4)
        if p >= 12:
            for i in range(32):
                f.append((i, lambda i=i: e(f"v_accvgpr_write_b32 a{128 + (p - 12) * 32 + i}, 0")))
        return f

    gemm_main(e, 1, tail1)
    if not OPT.get("tailstamps") and not OPT.get("p3stamps"):
        stamp("p1_done")
    e(f"""
    s_add_u32 s{sGA}, s{S_WS}, {WS_R}
    s_addc_u32 s{sGA + 1}, s{S_WS + 1}, 0
    s_mov_b32 s{sGA + 2}, 8192
    s_mov_b32 s{sGA + 3}, 0x20000
    s_add_u32 s{sGB}, s{S_WS}, {WS_STAT}
    s_addc_u32 s{sGB + 1}, s{S_WS + 1}, 0
    s_mov_b32 s{sGB + 2}, 8192
    s_mov_b32 s{sGB + 3}, 0x20000
    s_lshl_b32 s{sT0}, s{sTB}, 6
    s_lshl_b32 s{sT1}, s{sW}, 4
    s_add_u32 s{sT0}, s{sT0}, s{sT1}
    v_add_u32 v58, s{sT0}, v{vLANE}
    v_lshlrev_b32 v58, 2, v58
    v_cmp_gt_u32 vcc, 16, v{vLANE}
    s_cmp_eq_u32 s{sG}, 0
    s_cselect_b64 s[{sMASK}:{sMASK + 1}], -1, 0
    v_mov_b32 v60, 0x7ffffff0
    s_and_b64 vcc, vcc, s[{sMASK}:{sMASK + 1}]
    v_cndmask_b32 v58, v60, v58, vcc
    """)
    e.vm(f"buffer_store_dword v59, v58, s[{sGA}:{sGA + 3}], 0 offen sc1", ("st", 0))
    e.vm(f"buffer_store_dword v31, v58, s[{sGB}:{sGB + 3}], 0 offen sc1", ("st", 1))
    e.nop(4)
    for dt in (6, 7, 0, 1, 2, 3, 4, 5):
        for qb in range(2):
            R = vQ + (dt * 2 + qb) * 4
            a0 = vACC + (dt * 4 + 2 * qb) * 4
            a1 = a0 + 4
            e(f"v_cvt_pk_bf16_f32 v{R}, v{a0}, v{a0 + 1}")
            e(f"v_cvt_pk_bf16_f32 v{R + 1}, v{a0 + 2}, v{a0 + 3}")
            e(f"v_cvt_pk_bf16_f32 v{R + 2}, v{a1}, v{a1 + 1}")
            e(f"v_cvt_pk_bf16_f32 v{R + 3}, v{a1 + 2}, v{a1 + 3}")
        for qb in range(2):
            R = vQ + (dt * 2 + qb) * 4
            e(f"v_permlane16_swap_b32 v{R}, v{R + 2}")
            e(f"v_permlane16_swap_b32 v{R + 1}, v{R + 3}")
        if dt == 7:
            for i in range(32):
                e(f"v_mov_b32 v{vNM + i}, 0")
    for i in range(4):
        e(f"v_mov_b32 v{vL + i}, 0")
    for i in range(4):
        e(f"v_mov_b32 v{vGA + i}, v{vKDM + i}")
        e(f"v_mov_b32 v{vGB + i}, v{vVDM}")
    e(f"s_mov_b32 s{sPASS}, 0")
    e(f"v_mov_b32 v31, v{vKR}")
    e(f"v_mov_b32 v63, v{vVR}")
    e(f"""
    s_min_u32 s{sSL}, s2, 223
    s_lshl_b32 s{sT0}, s{sW}, 7
    v_add_u32 v3, s{sT0}, v{vLANE}
    v_mul_u32_u24 v3, 3584, v3
    s_lshl_b32 s{sT0}, s{sSL}, 4
    v_add_u32 v3, s{sT0}, v3
    v_lshrrev_b32 v4, 4, v{vLANE}
    v_lshlrev_b32 v4, 10, v4
    v_and_b32 v2, 15, v{vLANE}
    v_lshl_add_u32 v4, v2, 4, v4
    s_lshl_b32 s{sT0}, s{sSL}, 13
    s_lshl_b32 s{sT1}, s{sW}, 8
    s_add_u32 s{sT0}, s{sT0}, s{sT1}
    v_add_u32 v4, s{sT0}, v4
    """)
    e(f"L_p2_start:")
    e.wait_all()
    e("s_barrier")
    e(f"""
    s_or_b32 s{sT0}, s{sG}, s{sW}
    s_or_b32 s{sT0}, s{sT0}, s{sPASS}
    s_cmp_lg_u32 s{sT0}, 0
    s_cbranch_scc1 L_nopub
    """)
    if not OPT.get("xnopublish"):
        e(f"""
        v_mov_b32 v58, 0
        v_mov_b32 v59, 1
        v_cmp_eq_u32 vcc, 0, v{vLANE}
        s_nop 0
        s_and_saveexec_b64 s[{sMASK}:{sMASK + 1}], vcc
        global_atomic_add v58, v59, s[{sDBG}:{sDBG + 1}] sc1
        s_mov_b64 exec, s[{sMASK}:{sMASK + 1}]
        """)
    e("L_nopub:")
    e(f"""
    s_mov_b32 s{sGA}, s{S_K}
    s_mov_b32 s{sGA + 1}, s{S_K + 1}
    s_mov_b32 s{sGA + 2}, s{S_K + 2}
    s_mov_b32 s{sGB}, s{S_V}
    s_mov_b32 s{sGB + 1}, s{S_V + 1}
    s_mov_b32 s{sGB + 2}, s{S_V + 2}
    s_mov_b32 s{sKSL}, {2 * SLOT}
    s_mov_b32 s{sVSL}, {1 * SLOT}
    s_mov_b32 s{sTRIP}, 1
    s_add_u32 s{sGAM}, s{sRING}, {1 * SLOT}
    s_add_u32 s{sGBM}, s{sRING}, 4096
    s_lshl_b32 s{sGAO}, s{sW}, 13
    s_mov_b32 s{sMASK + 2}, {64 * 3584}
    s_mov_b32 s{S_WQ + 2}, {512 * 1792 * 2}
    """)
    for f in range(4):
        k_read(e, 0, f)
    p2_iter(e, -1, qk=True, sm=False, pv=False, look="K")
    upd = []
    for i in range(8):
        upd.append((i // 4 * 8 + i % 4 if i < 4 else 9 + i, lambda i=i: e(f"v_add_u32 v{vKR + i}, {SLOT}, v{vKR + i}")))
    p2_iter(e, 0, qk=True, sm=True, pv=False, look="K", fill=upd, smstart=5)

    lq0 = list(e.lq)
    e("L_p2_loop:")
    n0 = len(e.l)
    e("s_waitcnt vmcnt(1)")
    e.vq = []
    e("s_barrier")
    D64 = 64 * 3584
    fill = []

    def grp(*lines):
        return lambda: [e(x) for x in lines]
    fill.append((0, lambda: e(f"s_mov_b32 m0, s{sGAM}")))
    for i in range(4):
        fill.append((2 + 4 * i, lambda i=i: e.vm(
            f"buffer_load_dwordx4 v{vGA + i}, s[{sGA}:{sGA + 3}], s{sKO} offen offset:{i * 1024} lds", ("G", 0))))
    fill.append((14, lambda: kv_adv(e, sKO)))
    fill.append((16, lambda: e(f"s_mov_b32 m0, s{sGBM}")))
    for i in range(4):
        fill.append((18 + 4 * i, lambda i=i: e.vm(
            f"buffer_load_dwordx4 v{vGB + i}, s[{sGB}:{sGB + 3}], s{sVO} offen offset:{i * 1024} lds", ("G", 1))))
    fill.append((30, lambda: kv_adv(e, sVO)))
    for db in range(4):
        fill.append((24 + 2 * db, lambda db=db: e(f"v_add_u32 v{vVR + db}, 49152, v{vVR + db}")))
    fill.append((4, grp(f"s_add_u32 s{sT1}, s{sKSL}, {SLOT}", f"s_cmp_eq_u32 s{sT1}, {3 * SLOT}",
                        f"s_cselect_b32 s{sT1}, 0, s{sT1}")))
    fill.append((8, grp(f"s_sub_u32 s{sKD}, s{sT1}, s{sKSL}", f"s_sub_u32 s{sVD}, s{sKSL}, s{sVSL}")))
    fill.append((12, grp(f"s_sub_u32 s{sVD}, s{sVD}, 49152", f"s_mov_b32 s{sVSL}, s{sKSL}", f"s_mov_b32 s{sKSL}, s{sT1}")))
    fill.append((20, grp(f"s_cmp_ge_u32 s{sTRIP}, 3", f"s_cselect_b32 s{S_WQ}, s{sFP + 2}, s{sFP}",
                         f"s_cselect_b32 s{S_WQ + 1}, s{sFP + 3}, s{sFP + 1}")))
    fill.append((22, grp(f"s_bitcmp0_b32 s{sTRIP}, 0", f"s_cselect_b32 s{sGBO}, s{sMASK + 2}, 0")))
    fill.append((24, grp(f"s_cmp_ge_u32 s{sTRIP}, 5", f"s_cselect_b32 s{S_WQ}, s{sFP + 4}, s{S_WQ}",
                         f"s_cselect_b32 s{S_WQ + 1}, s{sFP + 5}, s{S_WQ + 1}")))
    fill.append((26, grp(f"s_cmp_ge_u32 s{sTRIP}, 5", f"s_cselect_b32 s{sGBO}, 0, s{sGBO}",
                         f"s_cselect_b64 s[{sMASK}:{sMASK + 1}], -1, 0")))
    fill.append((28, grp(f"s_cmp_ge_u32 s{sTRIP}, 6", f"s_cselect_b32 s{sGBO}, 4096, s{sGBO}")))
    p2_iter(e, 1, fill=fill)
    fill = []
    for i in range(8):
        fill.append((8 + 2 * i if i >= 4 else 2 * i, lambda i=i: e(f"v_add_u32 v{vKR + i}, s{sKD}, v{vKR + i}")))
    for db in range(4):
        fill.append((24 + 2 * db, lambda db=db: e(f"v_add_u32 v{vVR + db}, s{sVD}, v{vVR + db}")))
    fill.append((1, lambda: e(f"v_cndmask_b32 v1, v3, v4, s[{sMASK}:{sMASK + 1}]")))
    fill.append((2, lambda: e(f"s_mov_b32 m0, s{sGAO}")))
    fill.append((4, lambda: e.vm(f"buffer_load_dwordx4 v1, s[{S_WQ}:{S_WQ + 3}], s{sGBO} offen lds", ("C", 0))))
    fill.append((6, lambda: e(f"s_add_u32 s{sGAO}, s{sGAO}, 1024")))
    fill.append((10, grp(f"s_add_u32 s{sGAM}, s{sRING}, s{sVSL}", f"s_add_u32 s{sT1}, s{sKSL}, {SLOT}")))
    fill.append((12, grp(f"s_cmp_eq_u32 s{sT1}, {3 * SLOT}", f"s_cselect_b32 s{sT1}, 0, s{sT1}",
                         f"s_add_u32 s{sGBM}, s{sRING}, s{sT1}")))
    fill.append((14, lambda: e(f"s_add_u32 s{sGBM}, s{sGBM}, 4096")))
    fill.append((28, lambda: e(f"s_add_u32 s{sTRIP}, s{sTRIP}, 1")))
    p2_iter(e, 2, fill=fill)
    e(f"""
    s_cmp_lg_u32 s{sTRIP}, 7
    s_cbranch_scc1 L_p2_noswitch
    s_mov_b32 s{sGA}, s{S_WO}
    s_mov_b32 s{sGA + 1}, s{S_WO + 1}
    s_mov_b32 s{sGA + 2}, s{S_WO + 2}
    s_mov_b32 s{sGB}, s{S_WO}
    s_mov_b32 s{sGB + 1}, s{S_WO + 1}
    s_mov_b32 s{sGB + 2}, s{S_WO + 2}
    s_mov_b32 s{sGAM}, s{sRING}
    s_add_u32 s{sGBM}, s{sRING}, 4096
    s_mov_b32 s{sKO}, s{sWOO}
    """)
    p3_adv(e)
    e(f"s_mov_b32 s{sVO}, s{sWOO}")
    p3_adv(e)
    for i in range(4):
        e(f"v_mov_b32 v{vGA + i}, v{vWO + i}")
        e(f"v_mov_b32 v{vGB + i}, v{vWO + i}")
    e("L_p2_noswitch:")
    e(f"s_cmp_lg_u32 s{sTRIP}, 8")
    e("s_cbranch_scc1 L_p2_loop")
    body = e.l[n0:]
    probs = check_hazards(body + body, "p2 loop x2")
    assert not probs or any(k.startswith("no") for k in OPT), "\n".join(probs[:10])
    sh = lambda q, d: [(t[0], t[1] + d) + tuple(t[2:]) if t else t for t in q]
    assert sh(lq0, 2) == e.lq, (lq0, e.lq)
    e.lq = sh(e.lq, 12)
    e.wait_all(lds=False)
    e(f"""
    v_bfe_u32 v58, v{vLANE}, 2, 2               ; r
    v_lshrrev_b32 v59, 4, v{vLANE}              ; q4
    v_lshl_add_u32 v60, v59, 3, v58             ; 8 q4 + r
    v_lshlrev_b32 v60, 4, v60
    v_and_b32 v61, 1, v{vLANE}
    v_lshl_add_u32 v60, v61, 3, v60             ; + (c&1)*8
    v_bfe_u32 v61, v{vLANE}, 1, 1
    v_lshl_add_u32 v60, v61, 11, v60            ; + U
    s_lshl_b32 s{sT0}, s{sW}, 13
    v_add_u32 v60, s{sT0}, v60
    v_and_b32 v59, 1, v59
    v_lshl_add_u32 v58, v59, 2, v58             ; row 0..7
    v_lshlrev_b32 v58, 8, v58
    v_and_b32 v59, 3, v{vLANE}
    v_lshl_add_u32 v58, v59, 3, v58             ; + c*8
    v_add_u32 v58, s{sT0}, v58
    """)
    for i in range(4):
        for rd in range(2):
            e.lds(f"ds_read_b64_tr_b16 {rng('a', 96 + 4 * i + 2 * rd, 2)}, v60 offset:{i * 512 + rd * 64}", ("fa", i))
    for t in range(8):
        e.lds(f"ds_read_b64_tr_b16 {rng('a', 112 + 2 * t, 2)}, v58 offset:{4096 + t * 32}", ("da", t))
    e.wait_all(vm=False)
    e("s_barrier")
    e.vq = [("W", 0, 0)] * 0
    fill = place(p3_dma(e, 2), 0, 2) + place(p3_dma(e, 3), 8, 2)
    for db in range(4):
        fill.append((7 + db, lambda db=db: e(f"v_add_u32 v{vVR + db}, 49152, v{vVR + db}")))
    e.lq = [t for t in e.lq]
    e(f"v_mov_b32 v62, 0")
    e.vm(f"global_load_dword v2, v62, s[{sDBG}:{sDBG + 1}] sc1", ("cnt", 0))
    p2_iter(e, 15, qk=False, sm=True, pv=True, look="V", fill=fill, vpre=True, vord_next=VORD_D)
    RL = [58, 60]
    side = Side()
    A = side.add
    A(f"v_add_f32 v{vL}, v{vL}, v{vL + 1}")
    A(f"v_add_f32 v{vL + 2}, v{vL + 2}, v{vL + 3}")
    A(f"v_mov_b32 v{vL + 1}, v{vL}")
    A(f"v_mov_b32 v{vL + 3}, v{vL + 2}")
    A(f"v_permlane32_swap_b32 v{vL}, v{vL + 1}", gap=2)
    A(f"v_permlane32_swap_b32 v{vL + 2}, v{vL + 3}", gap=1)
    A(f"v_add_f32 v{vL}, v{vL}, v{vL + 1}", gap=1)
    A(f"v_add_f32 v{vL + 2}, v{vL + 2}, v{vL + 3}")
    A(f"v_rcp_f32 v{RL[0]}, v{vL}")
    A(f"v_rcp_f32 v{RL[1]}, v{vL + 2}")
    A(f"s_mov_b32 s{sT2}, {hex(f2u(2.0 ** -40))}")
    A(f"s_mov_b32 s{sT3}, {hex(f2u(2.0 ** 40))}")
    A(f"v_cmp_lt_f32 s[{sMASK}:{sMASK + 1}], s{sT2}, v{vL}")
    A(f"v_cmp_gt_f32 s[{sMASK + 2}:{sMASK + 3}], s{sT3}, v{vL}")
    A(f"v_cmp_lt_f32 s[{sMASK + 4}:{sMASK + 5}], s{sT2}, v{vL + 2}")
    A(f"v_cmp_gt_f32 vcc, s{sT3}, v{vL + 2}")
    A(f"s_and_b64 s[{sMASK}:{sMASK + 1}], s[{sMASK}:{sMASK + 1}], s[{sMASK + 2}:{sMASK + 3}]", gap=2)
    A(f"s_and_b64 vcc, vcc, s[{sMASK + 4}:{sMASK + 5}]")
    A(f"s_and_b64 s[{sMASK}:{sMASK + 1}], s[{sMASK}:{sMASK + 1}], vcc")
    for db in range(4):
        wa = 61 + (db & 1)
        A(lambda db=db: [e(x) for x in (f"s_lshl_b32 s{sT1}, s{sW}, 2", f"s_add_u32 s{sT1}, s{sT1}, {db}",
                                        f"s_sub_u32 s{sT1}, s{sT1}, s{sSK}")])
        A(lambda: [e(x) for x in (f"s_and_b32 s{sT1}, s{sT1}, 15", f"s_lshl_b32 s{sT1}, s{sT1}, 12")])
        A(f"v_add_u32 v{wa}, s{sT1}, v{vOW}")
        for qb in range(2):
            src = aO + (db * 2 + qb) * 16
            T = 128 + ((db * 2 + qb) % 4) * 16 if False else 128 + (db * 2 + qb) * 16
            for i in range(16):
                A(f"v_accvgpr_read_b32 v{T + i}, a{src + i}", cond=((16, min(4 * db + 7, 99)) if (i == 0 and qb == 0) else None))
            for i in range(8):
                A(f"v_pk_mul_f32 v[{T + 2 * i}:{T + 2 * i + 1}], v[{T + 2 * i}:{T + 2 * i + 1}], v[{RL[qb]}:{RL[qb] + 1}] op_sel_hi:[1,0]")
            for i in range(8):
                A(f"v_cvt_pk_bf16_f32 v{T + i}, v{T + 2 * i}, v{T + 2 * i + 1}")
            for jp in range(2):
                A(lambda T=T, jp=jp, qb=qb, db=db, wa=wa: e.lds(
                    f"ds_write_b128 v{wa}, {rng('v', T + 4 * jp, 4)} offset:{qb * 2048 + jp * 512}", ("ow", db, qb, jp)))
    p2_iter(e, 16, qk=False, sm=False, pv=True, look=None, vord=VORD_D, side=side, cap=OPT.get("normcap", 5))
    if not OPT.get("tailstamps"):
        stamp("p2_done")
    e.nop(OPT.get("normnop", 10))
    side.emit(e, 0, flush=True)
    e(f"""
    s_cmp_eq_u64 s[{sMASK}:{sMASK + 1}], -1
    s_cselect_b32 s{sT2}, 0, 1
    s_cmp_eq_u32 s{sPASS}, 0
    s_cselect_b32 s{sT2}, s{sT2}, 0
    s_cmp_eq_u32 s{sT2}, 0
    s_cbranch_scc1 L_noflag
    s_lshl_b32 s{sT0}, s{sW}, 2
    s_sub_u32 s{sT0}, s{sT0}, s{sSK}
    s_and_b32 s{sT0}, s{sT0}, 15
    s_lshl_b32 s{sT0}, s{sT0}, 12
    v_mov_b32 v58, s{sT0}
    v_mov_b32 v59, -1
    ds_write_b32 v58, v59
    L_noflag:
    """)
    e.wait_all(vm=False)
    e("s_barrier")
    for w_ in range(4):
        e(f"""
        s_sub_u32 s{sT0}, {4 * w_}, s{sSK}
        s_and_b32 s{sT0}, s{sT0}, 15
        s_lshl_b32 s{sT0}, s{sT0}, 12
        v_mov_b32 v{58 + w_}, s{sT0}
        """)
    for w_ in range(4):
        e.lds(f"ds_read_b32 v{58 + w_}, v{58 + w_}", ("mk", w_))
    e(f"v_lshlrev_b32 v{vBR}, 4, v{vLANE}")
    for fn in p3_reads(e, 0, 0)[8:] + p3_reads(e, 0, 0)[:8]:
        fn()
    for h in range(2):
        serial(e, p3_dma(e, 4 + h))
    e.need(ltags=[("mk", 3)])
    e(f"""
    v_and_b32 v58, v58, v59
    v_and_b32 v60, v60, v61
    v_max_u32 v58, v58, v60
    v_max_u32 v59, v59, v61
    """)
    e.l = e.l[:-4]
    e(f"""
    v_max_u32 v58, v58, v59
    v_max_u32 v60, v60, v61
    v_max_u32 v58, v58, v60
    s_nop 0
    v_readfirstlane_b32 s{sT0}, v58
    s_nop 0
    s_cmp_eq_u32 s{sT0}, -1
    s_cbranch_scc1 L_fallback
    L_p3_start:
    """)
    e.need(vtags=[("cnt", 0)])
    e(f"""
    v_readfirstlane_b32 s{sT0}, v2
    s_lshl_b32 s{sT1}, s{sW}, 11
    v_lshlrev_b32 v62, 5, v{vLANE}
    v_add_u32 v62, s{sT1}, v62
    v_add_u32 v62, {WS_R}, v62
    s_cmp_ge_u32 s{sT0}, 32
    s_cselect_b32 s{sRDY}, 1, 0
    s_mov_b32 s48, 4096
    s_mov_b32 s49, 32768
    s_mov_b32 s50, {32768 + 4096}
    """)
    e.vm(f"buffer_load_dwordx4 v[88:91], v62, s[{S_WS}:{S_WS + 3}], 0 offen sc1", ("rl", 0))
    e.vm(f"buffer_load_dwordx4 v[92:95], v62, s[{S_WS}:{S_WS + 3}], 0 offen offset:16 sc1", ("rl", 1))
    assert [t for t in e.vq if t[0] == "W"] == [("W", u) for u in range(2, 6) for _ in range(4)], e.vq
    e.vq = [("W", u) for u in range(6) for _ in range(4)]
    import moe

    def tail3(u):
        return []

    def tail3_old(u):
        f = []
        lst = {28: [(S_WQ, 80, 0), (S_WQ, 81, 1024), (S_K, 80, 2048), (S_K, 81, 3072)], 29: [(S_V, 82, 4096), (S_V, 83, 5120)]}
        if u in lst and not OPT.get("nomoe") and not OPT.get("xnofw"):
            f.append((0, lambda u=u: e.need(ltags=[("A", u, 3)])))
            for n, (srd, v, off) in enumerate(lst[u]):
                f.append((1 + 3 * n, lambda off=off: e(f"s_add_u32 m0, s{sRING}, {2 * SLOT + off}")))
                f.append((2 + 3 * n, lambda srd=srd, v=v: e.vm(
                    f"buffer_load_dwordx4 v{v}, s[{srd}:{srd + 3}], 0 offen lds", ("fw", 0))))
        return f
    side_e, side = Side(), Side()
    sp = OPT.get("stspread", 2.0)
    for n, (x, gap) in enumerate(p3_epilogue_items(e, 0, [64, 68, 72, 76])):
        k, r = n // 7, n % 7
        pos = 16 + k * sp
        side_e.add(x, gap=gap, cond=((int(pos), 2 + int((pos % 1) * 16)) if r == 0 else None))
    if not OPT.get("nomoe"):
        moe.moe_side(e, side, dict(W=sW, RING=sRING, RDY=sRDY, M=100, X=S_X, WS=S_WS))
        side.q[0] = (side.q[0][0], side.q[0][1], (16, 0))
    if OPT.get("p3stamps"):
        def st_nowait(name):
            q = list(e.lq)
            stamp(name)
        STAMP[0] = st_nowait
    p3_phase(e, tail3, [side_e, side], None)
    side_e.emit(e, 0, flush=True)
    side.emit(e, 0, flush=True)
    stamp("p3_done")
    e.nop(6)
    side = Side()
    for (x, gap) in p3_epilogue_items(e, 1, [64, 68, 72, 76, 80, 84, 88, 92]):
        side.add(x, gap=gap)
    side.emit(e, 0, flush=True)
    stamp("epi")
    doneq = f"L_{label}_fin"
    if not OPT.get("nomoe"):
        e(f"""
        s_cmp_ge_u32 s2, 224
        s_cbranch_scc1 {doneq}
        s_nop 1
        """)
        moe.moe_tail(e, dict(X=S_X, WS=S_WS, WR=S_WR, W=sW, RING=sRING, SL=sSL, RDY=sRDY, DBG=sDBG, M=100,
                             T=[42, 43, 44, 45, 46, 47, 60, 61, 62, 63, 64, 65, 66, 67], done=doneq,
                             spin=OPT.get("spin", 4000),
                             stamp=(stamp if OPT.get("tailstamps") else (lambda n: None))))
    e(f"{doneq}:")
    stamp("end")
    if stamps and OPT.get("dbgstamps"):
        e.wait_all()
        e(f"""
        v_mov_b32 v58, 16
        v_mov_b32 v59, s{sTS + 16}
        v_mov_b32 v60, 20
        s_not_b32 s{sT0}, s{sTS}
        v_mov_b32 v61, s{sT0}
        v_cmp_eq_u32 vcc, 0, v{vLANE}
        s_nop 0
        s_and_saveexec_b64 s[{sMASK}:{sMASK + 1}], vcc
        global_atomic_umax v58, v59, s[{sDBG}:{sDBG + 1}] sc1
        global_atomic_umax v60, v61, s[{sDBG}:{sDBG + 1}] sc1
        s_or_b32 s{sT0}, s2, s{sW}
        s_cmp_lg_u32 s{sT0}, 0
        s_cbranch_scc1 L_dbg_skip
        """)
        for k in range(1, 9):
            e(f"s_sub_u32 s{sT0}, s{sTS + 2 * k}, s{sTS}")
            e(f"v_mov_b32 v59, s{sT0}")
            e(f"v_mov_b32 v58, {24 + 4 * (k - 1)}")
            e(f"global_store_dword v58, v59, s[{sDBG}:{sDBG + 1}]")
            e("s_nop 1")
        e("L_dbg_skip:")
        e(f"s_mov_b64 exec, s[{sMASK}:{sMASK + 1}]")
    elif stamps:
        e.wait_all()
        e(f"""
        s_lshl_b32 s{sT0}, s2, 2
        s_add_u32 s{sT0}, s{sT0}, s{sW}
        s_lshl_b32 s{sT0}, s{sT0}, 7
        s_add_u32 s{sT0}, s{sT0}, {WS_TS}
        v_mov_b32 v58, s{sT0}
        v_cmp_eq_u32 vcc, 0, v{vLANE}
        s_nop 0
        s_and_saveexec_b64 s[{sMASK}:{sMASK + 1}], vcc
        """)
        for i in range(0, 20, 4):
            for q in range(4):
                e(f"v_mov_b32 v{60 + q}, s{min(sTS + i + q, sTS + 17)}")
            e(f"buffer_store_dwordx4 v[60:63], v58, s[{S_WS}:{S_WS + 3}], 0 offen offset:{i * 4}")
            e("s_nop 1")
        e(f"s_mov_b64 exec, s[{sMASK}:{sMASK + 1}]")
    e(f"s_branch {done}")
    e("L_fallback:")
    e(f"""
    s_barrier
    s_lshl_b32 s{sT0}, s{sKVT}, 14
    s_add_u32 s{sKO}, s{sKVB}, s{sT0}
    v_mov_b32 v{vKR}, v31
    v_mov_b32 v{vL}, 0xff800000
    v_mov_b32 v{vL + 2}, 0xff800000
    v_subrev_u32 v{vKR}, {SLOT}, v{vKR}
    s_mov_b32 s{sTRIP}, 0
    """)
    for s16 in range(1, 8):
        e(f"v_xor_b32 v{vKR + s16}, {32 * s16}, v{vKR}")
    e("L_fb_loop:")
    e("s_waitcnt vmcnt(0) lgkmcnt(0)")
    e("s_barrier")
    e.vq, e.lq = [], []
    serial(e, kv_dma(e, "K", 0, ("fbk", 0)))
    e.wait_all()
    e("s_barrier")
    for kb in range(2):
        for s16 in range(8):
            e(f"ds_read_b128 {Fbuf(s16)}, v{vKR + s16} offset:{kb * 49152}")
        e("s_waitcnt lgkmcnt(0)")
        for s16 in range(8):
            for qb in range(2):
                c = "0" if s16 == 0 else Sreg(0, qb)
                e(f"v_mfma_f32_32x32x16_bf16 {Sreg(0, qb)}, {Fbuf(s16)}, {Qreg(s16, qb)}, {c}")
        e.nop(16)
        for qb in range(2):
            m = vL + 2 * qb
            for i in range(0, 16, 2):
                e(f"v_max3_f32 v{m}, v{m}, {Sreg(0, qb, i)}, {Sreg(0, qb, i + 1)}")
    e(f"""
    s_add_u32 s{sTRIP}, s{sTRIP}, 1
    s_cmp_lt_u32 s{sTRIP}, 8
    s_cbranch_scc1 L_fb_loop
    v_mov_b32 v{vL + 1}, v{vL}
    v_mov_b32 v{vL + 3}, v{vL + 2}
    s_nop 1
    v_permlane32_swap_b32 v{vL}, v{vL + 1}
    v_permlane32_swap_b32 v{vL + 2}, v{vL + 3}
    s_nop 0
    v_max_f32 v{vL}, v{vL}, v{vL + 1}
    v_max_f32 v{vL + 2}, v{vL + 2}, v{vL + 3}
    """)
    for qb in range(2):
        for i in range(16):
            e(f"v_sub_f32 v{vNM + 16 * qb + i}, 0, v{vL + 2 * qb}")
    e(f"""
    s_barrier
    s_lshl_b32 s{sT0}, s{sKVT}, 14
    s_add_u32 s{sKO}, s{sKVB}, s{sT0}
    s_mov_b32 s{sVO}, s{sKO}
    s_lshl_b32 s{sWOO}, s{sG}, 19
    s_lshl_b32 s{sT0}, s{sSK}, 15
    s_add_u32 s{sWOO}, s{sWOO}, s{sT0}
    v_mov_b32 v{vKR}, v31
    v_mov_b32 v{vVR}, v63
    s_mov_b32 s{sPASS}, 1
    """)
    for s16 in range(1, 8):
        e(f"v_xor_b32 v{vKR + s16}, {32 * s16}, v{vKR}")
    for db in range(1, 4):
        e(f"v_xor_b32 v{vVR + db}, {64 * db}, v{vVR}")
    for (which, slot) in (("K", 1), ("V", 1), ("K", 2), ("V", 2), ("K", 0)):
        serial(e, kv_dma(e, which, slot, ("fbp", 0)))
    for i in range(4):
        e(f"v_mov_b32 v{vL + i}, 0")
        e(f"v_mov_b32 v{vGA + i}, v{vKDM + i}")
        e(f"v_mov_b32 v{vGB + i}, v{vVDM}")
    for i in range(128):
        e(f"v_accvgpr_write_b32 a{128 + i}, 0")
    e("s_branch L_p2_start")
    e(f"{done}:")
    e("s_endpgm")
    probs = check_hazards(e.l, "k1")
    if probs and not any(k.startswith("no") for k in OPT):
        print("\n".join(probs[:40]))
        raise SystemExit("hazards")
    return e.text()
```

```python
from emit import E, check_hazards
from asmlib import KA
from k1 import WS_PART, WS_R, WS_STAT, WS_IDX, WS_TS, f2u, rng

WS_YP = 17 << 20
NSL = 224
LOG2E = 1.4426950408889634


def wave_max_u32(e, v, tmp_s):
    for sh in (1, 2, 4, 8):
        e("s_nop 1")
        e(f"v_max_u32_dpp v{v}, v{v}, v{v} row_shr:{sh} row_mask:0xf bank_mask:0xf")
    e("s_nop 1")
    e(f"v_max_u32_dpp v{v}, v{v}, v{v} row_bcast:15 row_mask:0xa bank_mask:0xf")
    e("s_nop 1")
    e(f"v_max_u32_dpp v{v}, v{v}, v{v} row_bcast:31 row_mask:0xc bank_mask:0xf")
    e("s_nop 0")
    e(f"v_readlane_b32 s{tmp_s}, v{v}, 63")


def silu_bf16(e, dst, src, t0, t1, sM):
    e(f"v_mul_f32 v{t0}, {hex(f2u(-LOG2E))}, v{src}")
    e(f"v_exp_f32 v{t0}, v{t0}")
    e("s_nop 0")
    e(f"v_add_f32 v{t0}, 1.0, v{t0}")
    e(f"v_rcp_f32 v{t0}, v{t0}")
    e("s_nop 0")
    e(f"v_mul_f32 v{t0}, v{src}, v{t0}")
    e(f"v_cvt_pk_bf16_f32 v{t0}, v{t0}, v{t0}")
    e(f"v_and_b32 v{dst}, s{sM}, v{t0}")


def ts_begin(e, on):
    if on:
        e("s_memrealtime s[64:65]")


def ts_end(e, on, srd, off, wave_sreg, lane_v=0):
    if not on:
        return
    e(f"""
    s_memrealtime s[66:67]
    s_mov_b64 exec, -1
    s_lshl_b32 s68, s2, 2
    s_add_u32 s68, s68, s{wave_sreg}
    s_lshl_b32 s68, s68, 4
    s_add_u32 s68, s68, {off}
    s_waitcnt vmcnt(0) lgkmcnt(0)
    s_memrealtime s[66:67]
    s_waitcnt lgkmcnt(0)
    v_mov_b32 v100, s64
    v_mov_b32 v101, s65
    v_mov_b32 v102, s66
    v_mov_b32 v103, s67
    v_mov_b32 v104, s68
    v_cmp_eq_u32 vcc, 0, v{lane_v}
    s_nop 1
    s_and_saveexec_b64 s[70:71], vcc
    buffer_store_dwordx4 v[100:103], v104, s[{srd}:{srd + 3}], 0 offen
    """)


def gen_km(label, ts=False):
    e = E()
    done = f"L_{label}_done"
    S_X, S_WG, S_WU, S_WD, S_WS = 4, 8, 12, 16, 20
    sW, sF0, sM = 24, 25, 26
    sWIN = 32
    e(f"""
    s_cmp_ge_u32 s2, {NSL}
    s_cbranch_scc1 {done}
    {"s_memrealtime s[64:65]" if ts else ""}
    s_load_dwordx2 s[4:5], s[0:1], {KA['x']}
    s_load_dwordx2 s[8:9], s[0:1], {KA['wg']}
    s_load_dwordx2 s[12:13], s[0:1], {KA['wu']}
    s_load_dwordx2 s[16:17], s[0:1], {KA['wd']}
    s_load_dwordx2 s[20:21], s[0:1], {KA['ws']}
    v_lshrrev_b32 v1, 6, v0
    v_mov_b32 v63, v0                    ; tid
    v_and_b32 v0, 63, v0
    v_readfirstlane_b32 s{sW}, v1
    s_lshl_b32 s{sF0}, s2, 4
    s_mov_b32 s{sM}, 0xffff0000
    s_waitcnt lgkmcnt(0)
    s_mov_b32 s6, 2097152
    s_mov_b32 s7, 0x20000
    s_mov_b32 s10, {512 * 1792 * 2}
    s_mov_b32 s11, 0x20000
    s_mov_b32 s14, {512 * 1792 * 2}
    s_mov_b32 s15, 0x20000
    s_mov_b32 s18, {1792 * 512 * 2}
    s_mov_b32 s19, 0x20000
    s_mov_b32 s22, 0x10000000
    s_mov_b32 s23, 0x20000
    """)
    e(f"""
    v_lshlrev_b32 v2, 5, v63
    v_add_u32 v2, {WS_R}, v2
    """)
    e.vm(f"buffer_load_dwordx4 v[8:11], v2, s[20:23], 0 offen", "r0")
    e.vm(f"buffer_load_dwordx4 v[12:15], v2, s[20:23], 0 offen offset:16", "r1")
    e(f"""
    s_lshl_b32 s27, s{sW}, 7
    v_add_u32 v3, s27, v0                ; row = 128 w + l
    v_mul_u32_u24 v3, 3584, v3
    v_add_u32 v3, s{sF0}, v3
    v_add_u32 v4, {64 * 3584}, v3
    s_lshl_b32 s28, s{sW}, 11            ; w*2048
    """)
    for (srd, base) in ((S_WG, 0), (S_WU, 8192)):
        for i in range(2):
            e(f"s_add_u32 m0, s28, {base + i * 1024}")
            e("s_nop 0")
            e.vm(f"buffer_load_dwordx4 v{3 + i}, s[{srd}:{srd + 3}], 0 offen lds", "wgu")
    e(f"""
    s_lshl_b32 s29, s2, 3
    s_lshl_b32 s30, s{sW}, 1
    s_add_u32 s29, s29, s30
    s_lshl_b32 s29, s29, 10              ; row*1024
    v_lshlrev_b32 v5, 4, v0
    """)
    for i in range(2):
        e(f"s_add_u32 m0, s28, {16384 + i * 1024}")
        e("s_nop 0")
        e.vm(f"buffer_load_dwordx4 v5, s[{S_WD}:{S_WD + 3}], s29 offen lds", "wd")
        e("s_add_u32 s29, s29, 1024")
    e.need(vtags=["r1"])
    e(f"v_lshlrev_b32 v6, 3, v63")
    e(f"v_sub_u32 v6, 2047, v6            ; 2047 - idx0")
    for i in range(8):
        r = 8 + i
        e(f"v_ashrrev_i32 v7, 31, v{r}")
        e(f"v_or_b32 v7, 0x80000000, v7")
        e(f"v_xor_b32 v{r}, v{r}, v7          ; monotone map")
        e(f"v_and_b32 v{r}, s{sM}, v{r}")
        e(f"v_or_b32 v{r}, v{r}, v6")
        if i < 7:
            e(f"v_subrev_u32 v6, 1, v6")
    e("v_mov_b32 v20, 0")
    for rd in range(8):
        e("v_max3_u32 v16, v8, v9, v10")
        e("v_max3_u32 v17, v11, v12, v13")
        e("v_max3_u32 v16, v16, v14, v15")
        e("v_max_u32 v16, v16, v17")
        wave_max_u32(e, 16, 31)
        e("s_nop 1")
        for i in range(8):
            e(f"v_cmp_ne_u32 vcc, s31, v{8 + i}")
            e("s_nop 1")
            e(f"v_cndmask_b32 v{8 + i}, 0, v{8 + i}, vcc")
        e(f"v_writelane_b32 v20, s31, {rd}")
    e(f"""
    s_lshl_b32 s27, s{sW}, 5
    v_lshlrev_b32 v21, 2, v0
    v_add_u32 v21, s27, v21
    v_add_u32 v21, 24576, v21
    v_cmp_gt_u32 vcc, 8, v0
    s_nop 0
    s_and_saveexec_b64 s[40:41], vcc
    ds_write_b32 v21, v20
    s_mov_b64 exec, s[40:41]
    s_waitcnt lgkmcnt(0)
    s_barrier
    v_and_b32 v21, 31, v0
    v_lshlrev_b32 v21, 2, v21
    ds_read_b32 v22, v21 offset:24576
    v_cmp_gt_u32 vcc, 32, v0
    s_waitcnt lgkmcnt(0)
    s_nop 0
    v_cndmask_b32 v22, 0, v22, vcc
    """)
    for rd in range(8):
        e("v_mov_b32 v16, v22")
        wave_max_u32(e, 16, sWIN + rd)
        e("s_nop 1")
        e(f"v_cmp_ne_u32 vcc, s{sWIN + rd}, v22")
        e("s_nop 1")
        e(f"v_cndmask_b32 v22, 0, v22, vcc")
    e("v_and_b32 v24, 7, v0")
    e(f"v_mov_b32 v23, s{sWIN}")
    for j in range(1, 8):
        e(f"v_cmp_eq_u32 vcc, {j}, v24")
        e(f"v_mov_b32 v25, s{sWIN + j}")
        e("s_nop 0")
        e("v_cndmask_b32 v23, v23, v25, vcc")
    e(f"""
    v_and_b32 v26, 0x7ff, v23
    v_sub_u32 v26, 2047, v26
    v_and_b32 v27, s{sM}, v23
    v_ashrrev_i32 v28, 31, v27
    v_not_b32 v28, v28
    v_or_b32 v28, 0x80000000, v28
    v_xor_b32 v27, v27, v28
    v_and_b32 v27, s{sM}, v27             ; r (f32 bits)
    """)
    e(f"""
    v_mul_f32 v28, {hex(f2u(-LOG2E))}, v27
    v_exp_f32 v28, v28
    s_nop 0
    v_add_f32 v28, 1.0, v28
    v_rcp_f32 v28, v28
    s_nop 0
    v_cvt_pk_bf16_f32 v28, v28, v28
    v_and_b32 v28, s{sM}, v28             ; bf16(sigmoid(r))
    v_lshlrev_b32 v29, 2, v0
    v_add_u32 v29, {WS_IDX}, v29
    s_or_b32 s27, s2, s{sW}
    s_cmp_eq_u32 s27, 0
    s_cselect_b64 s[42:43], -1, 0
    v_cmp_gt_u32 vcc, 8, v0
    s_nop 1
    s_and_b64 vcc, vcc, s[42:43]
    s_and_saveexec_b64 s[40:41], vcc
    s_cbranch_execz L_km_nopub
    buffer_store_dword v26, v29, s[20:23], 0 offen
    buffer_store_dword v28, v29, s[20:23], 0 offen offset:32
    L_km_nopub:
    s_mov_b64 exec, s[40:41]
    """)
    e.vq += ["pub", "pub"]
    e(f"""
    v_lshrrev_b32 v30, 4, v0
    v_lshlrev_b32 v30, 4, v30             ; q4*16
    v_lshl_add_u32 v30, v26, 10, v30
    s_lshl_b32 s27, s{sW}, 8              ; 4w*64 bytes
    v_lshlrev_b32 v31, 2, v26
    v_add_u32 v31, {WS_STAT}, v31
    """)
    e.vm(f"buffer_load_dword v32, v31, s[20:23], 0 offen", "st")
    for i in range(4):
        e.vm(f"buffer_load_dwordx4 {rng('v', 36 + 4 * i, 4)}, v30, s[4:7], s27 offen offset:{64 * i}", ("xg", i))
    e.need(vtags=["st"])
    e(f"""
    v_lshlrev_b32 v33, 16, v32            ; mean
    v_and_b32 v34, s{sM}, v32             ; sd
    v_rcp_f32 v34, v34
    """)
    e.need(vtags=[("xg", 3)])
    for i in range(16):
        r = 36 + i
        e(f"""
        v_lshlrev_b32 v52, 16, v{r}
        v_and_b32 v53, s{sM}, v{r}
        v_sub_f32 v52, v52, v33
        v_sub_f32 v53, v53, v33
        v_cvt_pk_bf16_f32 v52, v52, v53
        v_and_b32 v53, s{sM}, v52
        v_lshlrev_b32 v52, 16, v52
        v_mul_f32 v52, v52, v34
        v_mul_f32 v53, v53, v34
        v_cvt_pk_bf16_f32 v{r}, v52, v53
        """)
    e.need(vtags=["wd"])
    e("s_barrier")
    e(f"""
    v_bfe_u32 v54, v0, 2, 2               ; r
    v_lshrrev_b32 v55, 4, v0              ; q4
    v_lshl_add_u32 v54, v55, 3, v54       ; 8 q4 + r
    v_lshlrev_b32 v54, 4, v54
    v_and_b32 v55, 1, v0
    v_lshl_add_u32 v54, v55, 3, v54       ; + (c&1)*8
    v_bfe_u32 v55, v0, 1, 1
    v_lshl_add_u32 v54, v55, 13, v54      ; + U
    s_lshl_b32 s27, s{sW}, 11
    v_add_u32 v54, s27, v54
    """)
    for i in range(4):
        for rd in range(2):
            e.lds(f"ds_read_b64_tr_b16 {rng('v', 64 + 4 * i + 2 * rd, 2)}, v54 offset:{i * 512 + rd * 64}", ("fa", i))
    for i in range(4):
        e.need(ltags=[("fa", i)])
        c = "0" if i == 0 else "v[56:59]"
        e(f"v_mfma_f32_16x16x32_bf16 v[56:59], {rng('v', 64 + 4 * i, 4)}, {rng('v', 36 + 4 * i, 4)}, {c}")
    e.nop(8)
    e(f"""
    s_lshl_b32 s27, s{sW}, 10
    v_lshlrev_b32 v60, 4, v0
    v_add_u32 v61, s27, v60
    ds_write_b128 v61, v[56:59] offset:25600
    s_waitcnt lgkmcnt(0)
    s_barrier
    ds_read_b128 v[64:67], v60 offset:25600
    ds_read_b128 v[68:71], v60 offset:{25600 + 1024}
    ds_read_b128 v[72:75], v60 offset:{25600 + 2048}
    ds_read_b128 v[76:79], v60 offset:{25600 + 3072}
    s_waitcnt lgkmcnt(0)
    """)
    for i in range(4):
        e(f"v_add_f32 v{64 + i}, v{64 + i}, v{68 + i}")
        e(f"v_add_f32 v{72 + i}, v{72 + i}, v{76 + i}")
        e(f"v_add_f32 v{64 + i}, v{64 + i}, v{72 + i}")
    for i in range(4):
        e(f"v_cvt_pk_bf16_f32 v{64 + i}, v{64 + i}, v{64 + i}")
        e(f"v_and_b32 v{64 + i}, s{sM}, v{64 + i}")
        e(f"v_mov_b32 v{68 + i}, v{64 + i}")
    e("s_nop 0")
    for i in range(4):
        e(f"v_permlane32_swap_b32 v{64 + i}, v{68 + i}")
    for i in range(4):
        silu_bf16(e, 72 + i, 64 + i, 76, 77, sM)
        e(f"v_mul_f32 v{72 + i}, v{72 + i}, v{68 + i}")
    e(f"""
    v_cvt_pk_bf16_f32 v80, v72, v73
    v_cvt_pk_bf16_f32 v81, v74, v75
    v_cmp_gt_u32 vcc, 32, v0
    v_mov_b32 v82, 0
    v_mov_b32 v83, 0
    v_cndmask_b32 v80, 0, v80, vcc
    v_cndmask_b32 v81, 0, v81, vcc
    """)
    e(f"""
    v_bfe_u32 v54, v0, 2, 2               ; r
    v_bfe_u32 v55, v0, 4, 1               ; q4 & 1
    v_lshl_add_u32 v54, v55, 2, v54       ; row 0..7
    v_lshlrev_b32 v54, 10, v54
    v_and_b32 v55, 3, v0
    v_lshl_add_u32 v54, v55, 3, v54       ; + c*8
    s_lshl_b32 s27, s{sW}, 8              ; 8w tiles * 32 B
    v_add_u32 v54, s27, v54
    v_mov_b32 v86, 0
    v_mov_b32 v87, 0
    """)
    for t in range(8):
        e.lds(f"ds_read_b64_tr_b16 {rng('v', 88 + 4 * t, 2)}, v54 offset:{16384 + t * 32}", ("da", t))
        e(f"v_mov_b32 v{90 + 4 * t}, 0")
        e(f"v_mov_b32 v{91 + 4 * t}, 0")
    for t in range(8):
        e.need(ltags=[("da", t)])
        e(f"v_mfma_f32_16x16x32_bf16 {rng('v', 120 + 4 * t, 4)}, {rng('v', 88 + 4 * t, 4)}, v[80:83], 0")
    e(f"""
    s_lshl_b32 s27, s2, 14
    s_lshl_b32 s28, s{sW}, 9              ; 8w*16*4 bytes
    s_add_u32 s27, s27, s28
    s_add_u32 s27, s27, {WS_YP}
    v_and_b32 v60, 15, v0
    v_lshlrev_b32 v61, 11, v60
    v_lshrrev_b32 v62, 4, v0
    v_lshl_add_u32 v61, v62, 4, v61
    v_add_u32 v61, s27, v61
    v_cmp_gt_u32 vcc, 8, v60
    s_nop 4
    s_and_saveexec_b64 s[40:41], vcc
    """)
    for t in range(8):
        e(f"buffer_store_dwordx4 {rng('v', 120 + 4 * t, 4)}, v61, s[20:23], 0 offen offset:{t * 64}")
    e("s_mov_b64 exec, s[40:41]")
    ts_end(e, ts, S_WS, WS_TS + (1 << 20), sW)
    e(f"{done}:")
    e("s_endpgm")
    probs = check_hazards(e.l, "km")
    if probs:
        print("\n".join(probs[:40]))
        raise SystemExit("hazards")
    return e.text()


def final_math(e, n, vs, vx, vmean, vrsd, vupd, vout, t, sM):
    for i in range(n):
        a, b = t, t + 1
        e(f"v_cvt_pk_bf16_f32 v{vs[i]}, v{vs[i]}, v{vs[i]}")
        e(f"v_and_b32 v{vs[i]}, s{sM}, v{vs[i]}")
        e(f"v_sub_f32 v{a}, v{vx[i]}, v{vmean}")
        e(f"v_cvt_pk_bf16_f32 v{a}, v{a}, v{a}")
        e(f"v_and_b32 v{a}, s{sM}, v{a}")
        e(f"v_mul_f32 v{a}, v{a}, v{vrsd}")
        e(f"v_cvt_pk_bf16_f32 v{a}, v{a}, v{a}")
        e(f"v_and_b32 v{a}, s{sM}, v{a}")
        if vupd is not None:
            e(f"v_add_f32 v{a}, v{a}, v{vupd[i]}")
            e(f"v_cvt_pk_bf16_f32 v{a}, v{a}, v{a}")
            e(f"v_and_b32 v{a}, s{sM}, v{a}")
        silu_bf16(e, a, a, b, b, sM)
        e(f"v_mul_f32 v{a}, v{vs[i]}, v{a}")
        e(f"v_cvt_pk_bf16_f32 v{a}, v{a}, v{a}")
        e(f"v_and_b32 v{a}, s{sM}, v{a}")
        e(f"v_add_f32 v{vout[i]}, v{vx[i]}, v{a}")


def gen_k2(label, ts=False, perturb=None, dbgcopy=False):
    e = E()
    done = f"L_{label}_done"
    tail = f"L_{label}_tail"
    S_X, S_WS, S_OUT = 4, 8, 12
    sW, sM = 16, 17
    sIDX = 24
    e(f"""
    s_cmp_ge_u32 s2, 576
    s_cbranch_scc1 {done}
    {"s_memrealtime s[64:65]" if (ts or dbgcopy) else ""}
    s_load_dwordx2 s[4:5], s[0:1], {KA['x']}
    s_load_dwordx2 s[8:9], s[0:1], {KA['ws']}
    s_load_dwordx2 s[12:13], s[0:1], {KA['out']}
    v_lshrrev_b32 v1, 6, v0
    v_and_b32 v0, 63, v0
    s_mov_b32 s{sM}, 0xffff0000
    v_readfirstlane_b32 s{sW}, v1
    s_waitcnt lgkmcnt(0)
    s_add_u32 s18, s8, {WS_IDX}
    s_addc_u32 s19, s9, 0
    s_load_dwordx8 s[24:31], s[18:19], 0
    s_load_dwordx8 s[32:39], s[18:19], 32
    s_mov_b32 s6, 2097152
    s_mov_b32 s7, 0x20000
    s_mov_b32 s10, 0x10000000
    s_mov_b32 s11, 0x20000
    s_mov_b32 s14, 2097152
    s_mov_b32 s15, 0x20000
    s_cmp_ge_u32 s2, 512
    s_cbranch_scc1 L_k2_sel
    """)
    e(f"""
    s_lshl_b32 s20, s2, 2
    s_add_u32 s20, s20, s{sW}
    s_lshr_b32 s21, s20, 6                ; tb
    s_bfe_u32 s22, s20, {5 | (1 << 16)}   ; qb
    s_bfe_u32 s23, s20, {3 | (2 << 16)}   ; a
    s_and_b32 s20, s20, 7                 ; b
    s_lshl_b32 s40, s21, 6
    s_lshl_b32 s41, s22, 5
    s_add_u32 s40, s40, s41
    s_lshl_b32 s41, s23, 3
    s_add_u32 s40, s40, s41
    v_and_b32 v2, 7, v0
    v_add_u32 v3, s40, v2                 ; token
    v_lshrrev_b32 v4, 3, v0
    s_lshl_b32 s41, s20, 7
    v_lshlrev_b32 v4, 4, v4
    v_lshl_add_u32 v4, v3, 10, v4
    v_add_u32 v4, s41, v4
    s_lshl_b32 s41, s21, 16
    s_lshr_b32 s42, s20, 1
    s_lshl_b32 s42, s42, 14
    s_add_u32 s41, s41, s42
    s_and_b32 s42, s20, 1
    s_lshl_b32 s42, s42, 13
    s_add_u32 s41, s41, s42
    s_lshl_b32 s42, s22, 10
    s_add_u32 s41, s41, s42
    s_lshl_b32 s42, s23, 7
    s_add_u32 s41, s41, s42
    v_lshrrev_b32 v5, 4, v0
    v_lshlrev_b32 v5, 11, v5
    v_bfe_u32 v6, v0, 3, 1
    v_lshl_add_u32 v5, v6, 9, v5
    v_lshl_add_u32 v5, v2, 4, v5
    v_add_u32 v5, s41, v5
    v_lshlrev_b32 v7, 2, v3
    v_add_u32 v7, {WS_STAT}, v7
    """)
    for g in range(8):
        e(f"s_mov_b32 s{44 + g}, {g << 21}")
    e.vm(f"buffer_load_dword v8, v7, s[8:11], 0 offen", "st")
    e.vm(f"buffer_load_dwordx4 v[12:15], v4, s[4:7], 0 offen", "x")
    for g in range(8):
        e.vm(f"buffer_load_dwordx4 {rng('v', 16 + 4 * g, 4)}, v5, s[8:11], s{44 + g} offen", ("p", g))
    e("s_waitcnt lgkmcnt(0)")
    e(f"v_cmp_ne_u32 s[52:53], s24, v3")
    for j in range(1, 8):
        e(f"v_cmp_ne_u32 vcc, s{24 + j}, v3")
        e("s_nop 1")
        e(f"s_and_b64 s[52:53], s[52:53], vcc")
    for g in range(8):
        e.need(vtags=[("p", g)])
        for i in range(4):
            r = 16 + 4 * g + i
            if g == 0:
                e(f"v_lshlrev_b32 v{48 + 2 * i}, 16, v{r}")
                e(f"v_and_b32 v{49 + 2 * i}, s{sM}, v{r}")
            else:
                e(f"v_lshlrev_b32 v56, 16, v{r}")
                e(f"v_and_b32 v57, s{sM}, v{r}")
                e(f"v_add_f32 v{48 + 2 * i}, v{48 + 2 * i}, v56")
                e(f"v_add_f32 v{49 + 2 * i}, v{49 + 2 * i}, v57")
    e(f"""
    v_lshlrev_b32 v9, 16, v8              ; mean
    v_and_b32 v10, s{sM}, v8              ; sd
    v_rcp_f32 v10, v10
    """)
    for i in range(4):
        e(f"v_lshlrev_b32 v{60 + 2 * i}, 16, v{12 + i}")
        e(f"v_and_b32 v{61 + 2 * i}, s{sM}, v{12 + i}")
    final_math(e, 8, [48 + i for i in range(8)], [60 + i for i in range(8)], 9, 10, None,
               [60 + i for i in range(8)], 56, sM)
    if perturb is not None:
        kind, delta = perturb
        if kind == "one":
            e(f"""
            v_cmp_eq_u32 vcc, 0, v4
            v_mov_b32 v58, {hex(f2u(delta))}
            s_nop 0
            v_cndmask_b32 v58, 0, v58, vcc
            v_add_f32 v60, v60, v58
            """)
        elif kind == "all":
            for i in range(8):
                e(f"v_add_f32 v{60 + i}, {hex(f2u(delta))}, v{60 + i}")
        elif kind == "mul":
            for i in range(8):
                e(f"v_mul_f32 v{60 + i}, {hex(f2u(delta))}, v{60 + i}")
    for i in range(4):
        e(f"v_cvt_pk_bf16_f32 v{12 + i}, v{60 + 2 * i}, v{61 + 2 * i}")
    e(f"""
    s_and_saveexec_b64 s[54:55], s[52:53]
    s_cbranch_execz {tail}
    buffer_store_dwordx4 v[12:15], v4, s[12:15], 0 offen
    s_branch {tail}
    """)
    e("L_k2_sel:")
    e.vq, e.lq = [], []
    e(f"""
    s_sub_u32 s20, s2, 512
    s_lshr_b32 s21, s20, 3                ; j
    s_and_b32 s22, s20, 7                 ; cb
    s_waitcnt lgkmcnt(0)
    """)
    e("s_mov_b32 s40, s24")
    e("s_mov_b32 s41, s32")
    for j in range(1, 8):
        e(f"s_cmp_eq_u32 s21, {j}")
        e(f"s_cselect_b32 s40, s{24 + j}, s40")
        e(f"s_cselect_b32 s41, s{32 + j}, s41")
    e(f"""
    s_mul_i32 s42, s{sW}, {56 * 16384}
    s_lshl_b32 s43, s21, 11               ; j*2048
    s_add_u32 s42, s42, s43
    s_lshl_b32 s43, s22, 8                ; cb*64*4
    s_add_u32 s42, s42, s43
    s_add_u32 s42, s42, {WS_YP}
    v_lshrrev_b32 v2, 4, v0
    v_lshlrev_b32 v2, 14, v2
    v_and_b32 v3, 15, v0
    v_lshl_add_u32 v2, v3, 4, v2
    v_add_u32 v2, s42, v2
    s_mov_b32 s43, 0
    """)
    for i in range(14):
        e.vm(f"buffer_load_dwordx4 {rng('v', 16 + 4 * i, 4)}, v2, s[8:11], s43 offen", ("y", i))
        e(f"s_add_u32 s43, s43, {4 * 16384}")
    e(f"""
    s_lshl_b32 s43, s22, 7
    s_lshl_b32 s44, s40, 10
    s_add_u32 s43, s43, s44
    v_lshlrev_b32 v4, 3, v3
    v_add_u32 v4, s43, v4
    s_lshl_b32 s44, s40, 2
    s_add_u32 s44, s44, {WS_STAT}
    v_mov_b32 v7, s44
    s_lshr_b32 s44, s40, 6
    s_lshl_b32 s44, s44, 16
    s_lshr_b32 s45, s22, 1
    s_lshl_b32 s45, s45, 14
    s_add_u32 s44, s44, s45
    s_and_b32 s45, s22, 1
    s_lshl_b32 s45, s45, 13
    s_add_u32 s44, s44, s45
    s_bfe_u32 s45, s40, {5 | (1 << 16)}
    s_lshl_b32 s45, s45, 10
    s_add_u32 s44, s44, s45
    s_and_b32 s45, s40, 31
    s_lshl_b32 s45, s45, 4
    s_add_u32 s44, s44, s45
    v_lshrrev_b32 v5, 2, v3
    v_lshlrev_b32 v5, 11, v5
    v_bfe_u32 v6, v3, 1, 1
    v_lshl_add_u32 v5, v6, 9, v5
    v_and_b32 v6, 1, v3
    v_lshl_add_u32 v5, v6, 3, v5
    v_add_u32 v5, s44, v5
    """)
    for g in range(8):
        e(f"s_mov_b32 s{56 + g}, {g << 21}")
    e.vm(f"buffer_load_dword v8, v7, s[8:11], 0 offen", "st")
    e.vm(f"buffer_load_dwordx2 v[12:13], v4, s[4:7], 0 offen", "x")
    for g in range(8):
        e.vm(f"buffer_load_dwordx2 {rng('v', 80 + 2 * g, 2)}, v5, s[8:11], s{56 + g} offen", ("p", g))
    for i in range(14):
        e.need(vtags=[("y", i)])
        if i > 0:
            for q in range(4):
                e(f"v_add_f32 v{16 + q}, v{16 + q}, v{16 + 4 * i + q}")
    for q in range(4):
        e(f"v_mov_b32 v{20 + q}, v{16 + q}")
    e("s_nop 0")
    for q in range(4):
        e(f"v_permlane32_swap_b32 v{16 + q}, v{20 + q}")
    for q in range(4):
        e(f"v_add_f32 v{16 + q}, v{16 + q}, v{20 + q}")
    for q in range(4):
        e(f"v_mov_b32 v{20 + q}, v{16 + q}")
    e("s_nop 0")
    for q in range(4):
        e(f"v_permlane16_swap_b32 v{16 + q}, v{20 + q}")
    for q in range(4):
        e(f"v_add_f32 v{16 + q}, v{16 + q}, v{20 + q}")
    e(f"""
    s_lshl_b32 s43, s{sW}, 10
    v_lshlrev_b32 v24, 4, v0
    v_add_u32 v25, s43, v24
    ds_write_b128 v25, v[16:19]
    s_waitcnt lgkmcnt(0)
    s_barrier
    s_cmp_lg_u32 s{sW}, 0
    s_cbranch_scc1 {tail}
    ds_read_b128 v[16:19], v24
    ds_read_b128 v[20:23], v24 offset:1024
    ds_read_b128 v[28:31], v24 offset:2048
    ds_read_b128 v[32:35], v24 offset:3072
    s_waitcnt lgkmcnt(0)
    """)
    for q in range(4):
        e(f"v_add_f32 v{16 + q}, v{16 + q}, v{20 + q}")
        e(f"v_add_f32 v{28 + q}, v{28 + q}, v{32 + q}")
        e(f"v_add_f32 v{16 + q}, v{16 + q}, v{28 + q}")
    for q in range(4):
        e(f"v_cvt_pk_bf16_f32 v{16 + q}, v{16 + q}, v{16 + q}")
        e(f"v_and_b32 v{16 + q}, s{sM}, v{16 + q}")
        e(f"v_mul_f32 v{16 + q}, s41, v{16 + q}")
        e(f"v_cvt_pk_bf16_f32 v{16 + q}, v{16 + q}, v{16 + q}")
        e(f"v_and_b32 v{16 + q}, s{sM}, v{16 + q}")
    e.need(vtags=[("p", 7)])
    for g in range(8):
        for i in range(2):
            r = 80 + 2 * g + i
            if g == 0:
                e(f"v_lshlrev_b32 v{48 + 2 * i}, 16, v{r}")
                e(f"v_and_b32 v{49 + 2 * i}, s{sM}, v{r}")
            else:
                e(f"v_lshlrev_b32 v56, 16, v{r}")
                e(f"v_and_b32 v57, s{sM}, v{r}")
                e(f"v_add_f32 v{48 + 2 * i}, v{48 + 2 * i}, v56")
                e(f"v_add_f32 v{49 + 2 * i}, v{49 + 2 * i}, v57")
    e(f"""
    v_lshlrev_b32 v9, 16, v8
    v_and_b32 v10, s{sM}, v8
    v_rcp_f32 v10, v10
    """)
    for i in range(2):
        e(f"v_lshlrev_b32 v{60 + 2 * i}, 16, v{12 + i}")
        e(f"v_and_b32 v{61 + 2 * i}, s{sM}, v{12 + i}")
    final_math(e, 4, [48 + i for i in range(4)], [60 + i for i in range(4)], 9, 10, [16 + i for i in range(4)],
               [60 + i for i in range(4)], 56, sM)
    for i in range(2):
        e(f"v_cvt_pk_bf16_f32 v{12 + i}, v{60 + 2 * i}, v{61 + 2 * i}")
    e(f"""
    v_cmp_gt_u32 vcc, 16, v0
    s_nop 0
    s_and_saveexec_b64 s[54:55], vcc
    buffer_store_dwordx2 v[12:13], v4, s[12:15], 0 offen
    """)
    e(f"{tail}:")
    if dbgcopy:
        e(f"""
        s_mov_b64 exec, -1
        s_waitcnt vmcnt(0) lgkmcnt(0)
        s_memrealtime s[66:67]
        s_load_dwordx2 s[70:71], s[0:1], {KA['dbg']}
        s_cmp_lg_u32 s{sW}, 0
        s_cbranch_scc1 {done}
        s_cmp_lg_u32 s2, 0
        s_cbranch_scc1 {done}
        v_lshlrev_b32 v100, 3, v0
        v_add_u32 v100, {WS_TS}, v100
        buffer_load_dword v101, v100, s[{S_WS}:{S_WS + 3}], 0 offen
        v_mov_b32 v102, {WS_TS}
        buffer_load_dword v103, v102, s[{S_WS}:{S_WS + 3}], 0 offen
        s_waitcnt vmcnt(0) lgkmcnt(0)
        v_sub_u32 v101, v101, v103
        v_mov_b32 v104, s64
        v_sub_u32 v104, v104, v103
        v_mov_b32 v105, s66
        v_sub_u32 v105, v105, v103
        v_cmp_eq_u32 vcc, 9, v0
        s_nop 1
        v_cndmask_b32 v101, v101, v104, vcc
        v_cmp_eq_u32 vcc, 10, v0
        s_nop 1
        v_cndmask_b32 v101, v101, v105, vcc
        v_lshlrev_b32 v100, 2, v0
        v_cmp_gt_u32 vcc, 11, v0
        s_nop 1
        s_and_saveexec_b64 s[68:69], vcc
        global_store_dword v100, v101, s[70:71]
        s_waitcnt vmcnt(0)
        """)
    ts_end(e, ts, S_WS, WS_TS + (2 << 20), sW)
    e(f"{done}:")
    e("s_endpgm")
    probs = check_hazards(e.l, "k2")
    if probs:
        print("\n".join(probs[:40]))
        raise SystemExit("hazards")
    return e.text()


SORT8 = [(0, 1), (2, 3), (4, 5), (6, 7), (0, 2), (1, 3), (4, 6), (5, 7), (1, 2), (5, 6), (0, 4), (3, 7),
         (1, 5), (2, 6), (1, 4), (3, 6), (2, 4), (3, 5), (3, 4)]


def _check_sort8():
    import itertools
    for bits in itertools.product([0, 1], repeat=8):
        a = list(bits)
        for i, j in SORT8:
            if a[i] < a[j]:
                a[i], a[j] = a[j], a[i]
        assert a == sorted(a, reverse=True)


_check_sort8()


def keys_from_r(e, K, vidx, sM, tmp):
    for i in range(8):
        r = K[i]
        e(f"v_ashrrev_i32 v{tmp}, 31, v{r}")
        e(f"v_or_b32 v{tmp}, 0x80000000, v{tmp}")
        e(f"v_xor_b32 v{r}, v{r}, v{tmp}")
        e(f"v_and_or_b32 v{r}, v{r}, s{sM}, v{vidx}")
        if i < 7:
            e(f"v_subrev_u32 v{vidx}, 1, v{vidx}")


def wave_top8(e, K, spare, vres, vt, stmp, smask):
    K = list(K)
    free = spare
    for (i, j) in SORT8:
        e(f"v_max_u32 v{free}, v{K[i]}, v{K[j]}")
        e(f"v_min_u32 v{K[j]}, v{K[i]}, v{K[j]}")
        K[i], free = free, K[i]
    e(f"v_mov_b32 v{vres}, 0")
    for rd in range(8):
        e(f"v_mov_b32 v{vt}, v{K[0]}")
        wave_max_u32(e, vt, stmp)
        e("s_nop 1")
        e(f"v_writelane_b32 v{vres}, s{stmp}, {rd}")
        if rd < 7:
            e(f"v_cmp_eq_u32 s[{smask}:{smask + 1}], s{stmp}, v{K[0]}")
            e("s_nop 1")
            for q in range(7 - rd):
                e(f"v_cndmask_b32 v{K[q]}, v{K[q]}, v{K[q + 1]}, s[{smask}:{smask + 1}]")


def moe_side(e, side, R):
    from k1 import RB, WSTR, SLOT
    sW, sRING, sM = R["W"], R["RING"], R["M"]
    S_X, S_WS = R["X"], R["WS"]
    sA, sB = 46, 47
    mk = [60, 62, 64, 66]
    K = [88 + i for i in range(8)]
    spare, vres, vt, vidx, tmp = 96, 97, 98, 99, 100
    A = side.add
    free = spare
    for (i, j) in SORT8:
        A(f"v_max_u32 v{free}, v{K[i]}, v{K[j]}")
        A(f"v_min_u32 v{K[j]}, v{K[i]}, v{K[j]}")
        K[i], free = free, K[i]
    A(f"v_mov_b32 v{vres}, 0")
    for rd in range(8):
        A(f"v_mov_b32 v{vt}, v{K[0]}")
        for sh in (1, 2, 4, 8):
            A(f"v_max_u32_dpp v{vt}, v{vt}, v{vt} row_shr:{sh} row_mask:0xf bank_mask:0xf", gap=2)
        A(f"v_max_u32_dpp v{vt}, v{vt}, v{vt} row_bcast:15 row_mask:0xa bank_mask:0xf", gap=2)
        A(f"v_max_u32_dpp v{vt}, v{vt}, v{vt} row_bcast:31 row_mask:0xc bank_mask:0xf", gap=2)
        A(f"v_readlane_b32 s{sA}, v{vt}, 63", gap=1)
        if rd < 7:
            A(f"v_cmp_eq_u32 s[{mk[0]}:{mk[0] + 1}], s{sA}, v{K[0]}", gap=2)
            A(f"v_writelane_b32 v{vres}, s{sA}, {rd}")
            for q in range(7 - rd):
                A(f"v_cndmask_b32 v{K[q]}, v{K[q]}, v{K[q + 1]}, s[{mk[0]}:{mk[0] + 1}]", gap=(1 if q == 0 else 0))
        else:
            A(f"v_writelane_b32 v{vres}, s{sA}, {rd}", gap=2)
    A(f"v_writelane_b32 v{vres}, s{R['RDY']}, 8")
    A(f"v_lshlrev_b32 v{tmp}, 2, v0")
    A(f"v_add_u32 v{tmp}, s{sRING}, v{tmp}")
    A(lambda: e.need(ltags=[("A", 26, 3)]), cond=(26, 1))
    A(lambda: e.lds(f"ds_write_b32 v{tmp}, v{vres} offset:{SLOT}", ("mw", 0)))
    A(f"v_lshrrev_b32 v126, 3, v0")
    A(f"v_and_b32 v126, 3, v126")
    A(f"v_mul_u32_u24 v126, {WSTR}, v126")
    A(f"v_and_b32 v127, 7, v0")
    A(f"v_lshl_add_u32 v126, v127, 2, v126")
    A(f"v_add_u32 v126, {RB + SLOT}, v126")

    def bar():
        e.need(ltags=[("mw", 0)])
        e("s_barrier")
    A(bar)
    A(lambda: e.lds(f"ds_read_b32 v120, v126", ("mo", 0)))
    for w_ in range(4):
        A(f"v_mov_b32 v127, {RB + SLOT + w_ * WSTR}")
        A(lambda w_=w_: e.lds(f"ds_read_b128 v[{88 + 8 * w_}:{91 + 8 * w_}], v127", ("mc", w_)))
        A(lambda w_=w_: e.lds(f"ds_read_b128 v[{92 + 8 * w_}:{95 + 8 * w_}], v127 offset:16", ("mc", w_)))
        A(lambda w_=w_: e.lds(f"ds_read_b32 v{121 + w_}, v127 offset:32", ("mf", w_)))
    A(f"v_mov_b32 v125, 0")
    A(lambda: e.need(ltags=[("mf", 3)]))
    A(f"v_and_b32 v121, v121, v122")
    A(f"v_and_b32 v123, v123, v124")
    A(f"v_and_b32 v121, v121, v123")
    for j0 in range(0, 32, 4):
        for q in range(4):
            A(f"v_cmp_gt_u32 s[{mk[q]}:{mk[q] + 1}], v{88 + j0 + q}, v120")
        for q in range(4):
            A(f"v_addc_co_u32 v125, vcc, 0, v125, s[{mk[q]}:{mk[q] + 1}]", gap=(0 if q else 0))
    A(f"v_readfirstlane_b32 s{R['RDY']}, v121")
    A(f"v_lshlrev_b32 v126, 2, v125")
    A(f"v_add_u32 v126, s{sRING}, v126")
    A(lambda: e.lds(f"ds_write_b32 v126, v120 offset:{SLOT + 64}", ("mp", 0)))
    A(f"v_and_b32 v127, 7, v0")
    A(f"v_lshlrev_b32 v127, 2, v127")
    A(f"v_add_u32 v127, s{sRING}, v127")
    A(lambda: e.lds(f"ds_read_b32 v124, v127 offset:{SLOT + 64}", ("mq", 0)))
    A(f"v_lshrrev_b32 v122, 4, v0")
    A(f"v_lshlrev_b32 v122, 4, v122")
    A(f"s_lshl_b32 s{sB}, s{sW}, 8")
    A(lambda: e.need(ltags=[("mq", 0)]))
    A(f"v_and_b32 v123, 0x7ff, v124")
    A(f"v_sub_u32 v123, 2047, v123")
    A(f"v_accvgpr_write_b32 a225, v124")
    A(f"v_lshl_add_u32 v122, v123, 10, v122")
    A(f"v_lshlrev_b32 v123, 2, v123")
    A(f"v_add_u32 v123, {WS_STAT}, v123")
    A(lambda: e.vm(f"buffer_load_dword a224, v123, s[{S_WS}:{S_WS + 3}], 0 offen sc1", ("g", 0)))
    for i in range(4):
        A(lambda i=i: e.vm(f"buffer_load_dwordx4 a[{208 + 4 * i}:{211 + 4 * i}], v122, s[{S_X}:{S_X + 3}], s{sB} offen offset:{64 * i}",
                           ("g", 1 + i)))


def moe_tail(e, R):
    from k1 import RB, WSTR, SLOT
    T = R["T"]
    sW, sRING, sM = R["W"], R["RING"], R["M"]
    S_X, S_WS = R["X"], R["WS"]
    sRO, sSO = T[0], T[1]
    sA, sB, sC_, sD = T[2], T[3], T[4], T[5]
    mk = [T[6], T[8], T[10], T[12]]
    e(f"s_mov_b32 s{sRO}, {WS_R}")
    e(f"s_mov_b32 s{sSO}, {WS_STAT}")
    K = [8 + i for i in range(8)]
    e(f"""
    s_cmp_eq_u32 s{R['RDY']}, 0
    s_cbranch_scc1 L_moe_slow
    """)
    e.need(vtags=[("g", 4)])
    for i in range(16):
        e(f"v_accvgpr_read_b32 v{36 + i}, a{208 + i}")
    e("v_accvgpr_read_b32 v32, a224")
    e("v_accvgpr_read_b32 v23, a225")
    e(f"""
    v_and_b32 v26, 0x7ff, v23
    v_sub_u32 v26, 2047, v26
    s_branch L_moe_gathered
    """)
    e("L_moe_keys:")
    st = R.get("stamp", lambda n: None)
    wave_top8(e, K, 16, 20, 17, sA, mk[0])
    st("top8")
    e(f"""
    v_mov_b32 v21, s{R['RDY']}
    v_cmp_eq_u32 vcc, 8, v0
    v_lshlrev_b32 v22, 2, v0
    v_add_u32 v22, s{sRING}, v22
    v_cndmask_b32 v20, v20, v21, vcc
    v_cmp_gt_u32 vcc, 9, v0
    s_nop 1
    s_and_saveexec_b64 s[{mk[0]}:{mk[0] + 1}], vcc
    ds_write_b32 v22, v20
    s_mov_b64 exec, s[{mk[0]}:{mk[0] + 1}]
    s_waitcnt lgkmcnt(0)
    s_barrier
    """)
    e(f"""
    v_lshrrev_b32 v21, 3, v0
    v_and_b32 v21, 3, v21
    v_mul_u32_u24 v21, {WSTR}, v21
    v_and_b32 v22, 7, v0
    v_lshl_add_u32 v21, v22, 2, v21
    v_mov_b32 v23, {RB}
    v_add_u32 v21, v23, v21
    ds_read_b32 v24, v21
    """)
    for w_ in range(4):
        e(f"v_add_u32 v{100 + w_}, {w_ * WSTR}, v23")
    for w_ in range(4):
        e(f"ds_read_b128 v[{32 + 8 * w_}:{35 + 8 * w_}], v{100 + w_}")
        e(f"ds_read_b128 v[{36 + 8 * w_}:{39 + 8 * w_}], v{100 + w_} offset:16")
        e(f"ds_read_b32 v{104 + w_}, v{100 + w_} offset:32")
    e(f"""
    s_waitcnt lgkmcnt(0)
    v_and_b32 v104, v104, v105
    v_and_b32 v106, v106, v107
    v_and_b32 v104, v104, v106
    v_mov_b32 v25, 0
    v_readfirstlane_b32 s{sA}, v104
    s_nop 0
    s_cmp_eq_u32 s{sA}, 0
    s_cbranch_scc1 L_moe_slow
    """)
    for j0 in range(0, 32, 4):
        for q in range(4):
            e(f"v_cmp_gt_u32 s[{mk[q]}:{mk[q] + 1}], v{32 + j0 + q}, v24")
        for q in range(4):
            e(f"v_addc_co_u32 v25, vcc, 0, v25, s[{mk[q]}:{mk[q] + 1}]")
    e(f"""
    v_cmp_gt_u32 s[{mk[0]}:{mk[0] + 1}], 8, v25
    v_cmp_gt_u32 vcc, 32, v0
    v_lshlrev_b32 v26, 2, v25
    v_add_u32 v26, s{sRING}, v26
    s_and_b64 vcc, vcc, s[{mk[0]}:{mk[0] + 1}]
    s_and_saveexec_b64 s[{mk[1]}:{mk[1] + 1}], vcc
    ds_write_b32 v26, v24 offset:64
    s_mov_b64 exec, s[{mk[1]}:{mk[1] + 1}]
    v_and_b32 v22, 7, v0
    v_lshlrev_b32 v22, 2, v22
    v_add_u32 v22, s{sRING}, v22
    ds_read_b32 v23, v22 offset:64
    s_waitcnt lgkmcnt(0)
    v_and_b32 v26, 0x7ff, v23
    v_sub_u32 v26, 2047, v26
    """)
    st("merge")
    e(f"""
    v_lshrrev_b32 v30, 4, v0
    v_lshlrev_b32 v30, 4, v30             ; q4*16
    v_lshl_add_u32 v30, v26, 10, v30
    s_lshl_b32 s{sA}, s{sW}, 8            ; 4w*64 bytes
    v_lshlrev_b32 v31, 2, v26
    v_add_u32 v31, s{sSO}, v31
    """)
    e.vq, e.lq = ["old"], []
    e.vm(f"buffer_load_dword v32, v31, s[{S_WS}:{S_WS + 3}], 0 offen sc1", "st")
    for i in range(4):
        e.vm(f"buffer_load_dwordx4 {rng('v', 36 + 4 * i, 4)}, v30, s[{S_X}:{S_X + 3}], s{sA} offen offset:{64 * i}",
             ("xg", i))
    e("s_waitcnt vmcnt(0)")
    e("L_moe_gathered:")
    e.vq = []
    e(f"""
    v_and_b32 v27, s{sM}, v23
    v_ashrrev_i32 v28, 31, v27
    v_not_b32 v28, v28
    v_or_b32 v28, 0x80000000, v28
    v_xor_b32 v27, v27, v28
    v_and_b32 v27, s{sM}, v27             ; r (f32 bits)
    v_mul_f32 v28, {hex(f2u(-LOG2E))}, v27
    v_exp_f32 v28, v28
    s_nop 0
    v_add_f32 v28, 1.0, v28
    v_rcp_f32 v28, v28
    s_nop 0
    v_cvt_pk_bf16_f32 v28, v28, v28
    v_and_b32 v28, s{sM}, v28             ; bf16(sigmoid(r))
    v_lshlrev_b32 v29, 2, v0
    v_add_u32 v29, {WS_IDX}, v29
    v_mov_b32 v33, 0x7ffffff0
    s_or_b32 s{sA}, s{R['SL']}, s{sW}
    s_cmp_eq_u32 s{sA}, 0
    s_cselect_b64 s[{mk[0]}:{mk[0] + 1}], -1, 0
    v_cmp_gt_u32 vcc, 8, v0
    s_nop 1
    s_and_b64 vcc, vcc, s[{mk[0]}:{mk[0] + 1}]
    v_cndmask_b32 v29, v33, v29, vcc
    """)
    e.vm(f"buffer_store_dword v26, v29, s[{S_WS}:{S_WS + 3}], 0 offen", "pub")
    e.vm(f"buffer_store_dword v28, v29, s[{S_WS}:{S_WS + 3}], 0 offen offset:32", "pub")
    e(f"""
    v_and_b32 v34, s{sM}, v32             ; sd
    v_rcp_f32 v34, v34
    v_lshlrev_b32 v30, 16, v32            ; mean
    v_sub_f32 v30, 0, v30
    """)
    st("gather")
    for i in range(0, 16, 2):
        for j in range(2):
            r, t = 36 + i + j, 52 + 2 * j
            e(f"v_lshlrev_b32 v{t}, 16, v{r}")
            e(f"v_and_b32 v{t + 1}, s{sM}, v{r}")
        for j in range(2):
            t = 52 + 2 * j
            e(f"v_pk_add_f32 v[{t}:{t + 1}], v[{t}:{t + 1}], v[30:31] op_sel_hi:[1,0]")
        for j in range(2):
            r, t = 36 + i + j, 52 + 2 * j
            e(f"v_cvt_pk_bf16_f32 v{r}, v{t}, v{t + 1}")
        for j in range(2):
            r, t = 36 + i + j, 52 + 2 * j
            e(f"v_lshlrev_b32 v{t}, 16, v{r}")
            e(f"v_and_b32 v{t + 1}, s{sM}, v{r}")
        for j in range(2):
            t = 52 + 2 * j
            e(f"v_pk_mul_f32 v[{t}:{t + 1}], v[{t}:{t + 1}], v[34:35] op_sel_hi:[1,0]")
        for j in range(2):
            r, t = 36 + i + j, 52 + 2 * j
            e(f"v_cvt_pk_bf16_f32 v{r}, v{t}, v{t + 1}")
    st("ln")
    e("v_accvgpr_write_b32 a128, 0")
    e("v_accvgpr_write_b32 a129, 0")
    for i in range(4):
        c = "0" if i == 0 else "v[56:59]"
        e(f"v_mfma_f32_16x16x32_bf16 v[56:59], {rng('a', 96 + 4 * i, 4)}, {rng('v', 36 + 4 * i, 4)}, {c}")
    e.nop(8)
    e(f"""
    v_lshlrev_b32 v60, 4, v0
    v_add_u32 v61, s{sRING}, v60
    ds_write_b128 v61, v[56:59] offset:2048
    s_waitcnt lgkmcnt(0)
    s_barrier
    v_add_u32 v60, {RB + 2048}, v60
    v_add_u32 v61, {WSTR}, v60
    v_add_u32 v62, {2 * WSTR}, v60
    v_add_u32 v63, {3 * WSTR}, v60
    ds_read_b128 v[64:67], v60
    ds_read_b128 v[68:71], v61
    ds_read_b128 v[72:75], v62
    ds_read_b128 v[76:79], v63
    s_waitcnt lgkmcnt(0)
    """)
    e.lq = []
    for i in range(4):
        e(f"v_add_f32 v{64 + i}, v{64 + i}, v{68 + i}")
        e(f"v_add_f32 v{72 + i}, v{72 + i}, v{76 + i}")
        e(f"v_add_f32 v{64 + i}, v{64 + i}, v{72 + i}")
    for i in range(4):
        e(f"v_cvt_pk_bf16_f32 v{64 + i}, v{64 + i}, v{64 + i}")
        e(f"v_and_b32 v{64 + i}, s{sM}, v{64 + i}")
        e(f"v_mov_b32 v{68 + i}, v{64 + i}")
    e("s_nop 0")
    for i in range(4):
        e(f"v_permlane32_swap_b32 v{64 + i}, v{68 + i}")
    for i in range(4):
        silu_bf16(e, 72 + i, 64 + i, 76, 77, sM)
        e(f"v_mul_f32 v{72 + i}, v{72 + i}, v{68 + i}")
    e(f"""
    v_cvt_pk_bf16_f32 v80, v72, v73
    v_cvt_pk_bf16_f32 v81, v74, v75
    v_cmp_gt_u32 vcc, 32, v0
    v_mov_b32 v82, 0
    v_mov_b32 v83, 0
    v_cndmask_b32 v80, 0, v80, vcc
    v_cndmask_b32 v81, 0, v81, vcc
    s_nop 1
    """)
    for t in range(8):
        e(f"v_mfma_f32_16x16x32_bf16 {rng('v', 120 + 4 * t, 4)}, {rng('a', 112 + 2 * t, 4)}, v[80:83], 0")
    e(f"""
    s_lshl_b32 s{sA}, s{R['SL']}, 14
    s_lshl_b32 s{sB}, s{sW}, 9            ; 8w*16*4 bytes
    s_add_u32 s{sA}, s{sA}, s{sB}
    s_add_u32 s{sA}, s{sA}, {WS_YP}
    v_and_b32 v60, 15, v0
    v_lshlrev_b32 v61, 11, v60
    v_lshrrev_b32 v62, 4, v0
    v_lshl_add_u32 v61, v62, 4, v61
    v_add_u32 v61, s{sA}, v61
    v_mov_b32 v63, 0x1ffffff0
    v_cmp_gt_u32 vcc, 8, v60
    s_nop 1
    v_cndmask_b32 v61, v63, v61, vcc
    s_nop 1
    """)
    for t in range(8):
        e(f"buffer_store_dwordx4 {rng('v', 120 + 4 * t, 4)}, v61, s[{S_WS}:{S_WS + 3}], 0 offen offset:{t * 64}")
    e(f"s_branch {R['done']}")

    e("L_moe_slow:")
    dbg = R["DBG"]
    e(f"""
    s_barrier
    s_mov_b32 s{sB}, {R.get('spin', 4000)}
    v_mov_b32 v21, 0
    L_moe_spin:
    global_load_dword v22, v21, s[{dbg}:{dbg + 1}] sc1
    s_waitcnt vmcnt(0)
    v_readfirstlane_b32 s{sA}, v22
    s_nop 0
    s_cmp_ge_u32 s{sA}, 32
    s_cbranch_scc1 L_moe_spin_ok
    s_sleep 8
    s_sub_u32 s{sB}, s{sB}, 1
    s_cmp_lg_u32 s{sB}, 0
    s_cbranch_scc1 L_moe_spin
    L_moe_spin_ok:
    s_cmp_ge_u32 s{sA}, 32
    s_cselect_b32 s{sA}, 1, 0
    v_mov_b32 v22, s{sA}
    v_mov_b32 v23, s{sRING}
    ds_write_b32 v23, v22 offset:128
    s_waitcnt lgkmcnt(0)
    s_barrier
    v_mov_b32 v23, {RB}
    ds_read_b32 v32, v23 offset:128
    ds_read_b32 v33, v23 offset:{WSTR + 128}
    ds_read_b32 v34, v23 offset:{2 * WSTR + 128}
    v_add_u32 v23, {3 * WSTR}, v23
    ds_read_b32 v35, v23 offset:128
    s_waitcnt lgkmcnt(0)
    v_and_b32 v32, v32, v33
    v_and_b32 v34, v34, v35
    v_and_b32 v32, v32, v34
    s_nop 0
    v_readfirstlane_b32 s{sA}, v32
    s_nop 0
    s_cmp_eq_u32 s{sA}, 1
    s_cbranch_scc1 L_moe_reload
    """)
    e(f"""
    s_lshl_b32 s{sRO}, s{R['SL']}, 14
    s_add_u32 s{sRO}, s{sRO}, {WS_FB}
    s_add_u32 s{sSO}, s{sRO}, 8192
    v_lshlrev_b32 v21, 4, v0
    buffer_load_dwordx4 v[40:43], v21, s[{R['WR']}:{R['WR'] + 3}], 0 offen
    s_lshl_b32 s{sB}, s{sW}, 9
    s_add_u32 s{sC_}, s{sB}, 512
    s_waitcnt vmcnt(0)
    """)
    for i in range(4):
        e(f"v_lshlrev_b32 v{44 + 2 * i}, 16, v{40 + i}")
        e(f"v_and_b32 v{45 + 2 * i}, s{sM}, v{40 + i}")
    e(f"""
    L_moe_fb:
    s_lshl_b32 s{sA}, s{sB}, 10
    buffer_load_dwordx4 v[40:43], v21, s[{S_X}:{S_X + 3}], s{sA} offen
    s_waitcnt vmcnt(0)
    """)
    for i in range(4):
        e(f"v_lshlrev_b32 v{56 + 2 * i}, 16, v{40 + i}")
        e(f"v_and_b32 v{57 + 2 * i}, s{sM}, v{40 + i}")

    def wave_sum(v, t):
        for x in (1, 2, 4, 8):
            e(f"s_nop 1")
            e(f"v_add_f32_dpp v{v}, v{v}, v{v} row_ror:{x} row_mask:0xf bank_mask:0xf")
        e(f"v_mov_b32 v{t}, v{v}")
        e("s_nop 1")
        e(f"v_permlane16_swap_b32 v{v}, v{t}")
        e("s_nop 0")
        e(f"v_add_f32 v{v}, v{v}, v{t}")
        e(f"v_mov_b32 v{t}, v{v}")
        e("s_nop 1")
        e(f"v_permlane32_swap_b32 v{v}, v{t}")
        e("s_nop 0")
        e(f"v_add_f32 v{v}, v{v}, v{t}")
    e("v_add_f32 v64, v56, v57")
    for i in range(2, 8):
        e(f"v_add_f32 v64, v64, v{56 + i}")
    wave_sum(64, 65)
    e(f"v_mul_f32 v64, {hex(f2u(1.0 / 512))}, v64        ; mean")
    e("v_sub_f32 v66, v56, v64")
    e("v_mul_f32 v67, v66, v66")
    for i in range(1, 8):
        e(f"v_sub_f32 v66, v{56 + i}, v64")
        e(f"v_fmac_f32 v67, v66, v66")
    wave_sum(67, 65)
    e(f"""
    v_mul_f32 v67, {hex(f2u(1.0 / 512))}, v67
    v_cvt_pk_bf16_f32 v68, v64, v67
    v_and_b32 v69, s{sM}, v68
    v_add_f32 v69, {hex(f2u(1e-5))}, v69
    v_cvt_pk_bf16_f32 v69, v69, v69
    v_and_b32 v69, s{sM}, v69
    v_sqrt_f32 v69, v69
    v_lshlrev_b32 v64, 16, v68
    v_cvt_pk_bf16_f32 v69, v69, v69
    v_and_b32 v69, s{sM}, v69             ; sd
    v_rcp_f32 v70, v69
    v_and_b32 v68, 0xffff, v68
    v_or_b32 v68, v68, v69
    v_mov_b32 v71, 0
    """)
    for i in range(8):
        e(f"""
        v_sub_f32 v66, v{56 + i}, v64
        v_mul_f32 v66, v66, v70
        v_cvt_pk_bf16_f32 v66, v66, v66
        v_and_b32 v66, s{sM}, v66
        v_fmac_f32 v71, v66, v{44 + i}
        """)
    wave_sum(71, 65)
    e(f"""
    v_cvt_pk_bf16_f32 v71, v71, v71
    v_and_b32 v71, s{sM}, v71
    v_ashrrev_i32 v72, 31, v71
    v_or_b32 v72, 0x80000000, v72
    v_xor_b32 v71, v71, v72
    s_sub_u32 s{sA}, 2047, s{sB}
    v_mov_b32 v72, s{sA}
    v_and_or_b32 v71, v71, s{sM}, v72
    s_lshl_b32 s{sA}, s{sB}, 2
    v_mov_b32 v72, s{sA}
    v_add_u32 v73, s{sRO}, v72
    v_add_u32 v74, s{sSO}, v72
    v_cmp_eq_u32 vcc, 0, v0
    s_nop 1
    s_and_saveexec_b64 s[{mk[0]}:{mk[0] + 1}], vcc
    buffer_store_dword v71, v73, s[{S_WS}:{S_WS + 3}], 0 offen sc1
    buffer_store_dword v68, v74, s[{S_WS}:{S_WS + 3}], 0 offen sc1
    s_mov_b64 exec, s[{mk[0]}:{mk[0] + 1}]
    s_add_u32 s{sB}, s{sB}, 1
    s_cmp_lt_u32 s{sB}, s{sC_}
    s_cbranch_scc1 L_moe_fb
    s_waitcnt vmcnt(0)
    s_barrier
    L_moe_reload:
    s_lshl_b32 s{sA}, s{sW}, 11
    v_lshlrev_b32 v21, 5, v0
    v_add_u32 v21, s{sA}, v21
    v_add_u32 v21, s{sRO}, v21
    buffer_load_dwordx4 v[8:11], v21, s[{S_WS}:{S_WS + 3}], 0 offen sc1
    buffer_load_dwordx4 v[12:15], v21, s[{S_WS}:{S_WS + 3}], 0 offen offset:16 sc1
    s_mov_b32 s{R['RDY']}, 1
    s_waitcnt vmcnt(0)
    s_barrier
    s_branch L_moe_keys
    """)


WS_FB = 24 << 20
```

```python
import sys
sys.path.insert(0, "dev")
from asmlib import header, kstart, kdesc, NAME
import k1, moe

HDR = """; Kernarg layout (104 bytes, pointers only): x, k_cache, v_cache, wq, wo, B_x (unused), w_r, w_gate, w_up, w_down, out, debug, ws
"""

DEF = dict(map="C", gskew=1, dma_from=2)


def build(path, opt=None, stamps=False, with_moe=False, perturb=None):
    o = dict(DEF)
    o.update(opt or {})
    opt = o
    launches = [("mainfused_kernel", 256, 256, 163840)]
    if with_moe:
        launches.append(("moeffn_kernel", 224, 256, 32768))
    launches.append((NAME + "_kernel", 576, 256, 4096))
    s = HDR + header(launches)
    lab = "mainfused_kernel"
    s += kstart(lab) + k1.gen_k1(lab, stamps=stamps, opt=opt) + kdesc(lab, 512, accum=256)
    if with_moe:
        lab = "moeffn_kernel"
        s += kstart(lab) + moe.gen_km(lab, ts=bool(stamps)) + kdesc(lab, 160, sgpr=80)
    lab = NAME + "_kernel"
    s += kstart(lab) + moe.gen_k2(lab, ts=bool(stamps) and not opt.get('dbgcopy'), perturb=perturb, dbgcopy=opt.get('dbgcopy')) + kdesc(lab, 112, sgpr=80)
    open(path, "w").write(s)

if __name__ == "__main__":
    build("full.s")
    build("full_nopub.s", opt=dict(xnopublish=1, spin=20))
    for n, o in (("a", dict(p3stamps=1)), ("b", dict(p3stamps=1, sidecap=3)), ("d", dict()), ("e", dict(normcap=7))):
        build(f"v_{n}_c.s", stamps="s_memtime", opt=o)
    build(f"full_ts.s", stamps="s_memrealtime")
```

```python
import re


def regs_of(op):
    op = op.strip()
    neg = op.lstrip("-")
    m = re.fullmatch(r"abs\((.*)\)", neg)
    if m:
        neg = m.group(1)
    m = re.fullmatch(r"([vas])(\d+)", neg)
    if m:
        return [(m.group(1), int(m.group(2)))]
    m = re.fullmatch(r"([vas])\[(\d+):(\d+)\]", neg)
    if m:
        return [(m.group(1), i) for i in range(int(m.group(2)), int(m.group(3)) + 1)]
    if neg == "vcc":
        return [("s", "vcc")]
    if neg == "exec":
        return [("s", "exec")]
    if neg == "m0":
        return [("s", "m0")]
    return []


def split_ops(s):
    out, depth, cur = [], 0, ""
    for ch in s:
        if ch == "[":
            depth += 1
        if ch == "]":
            depth -= 1
        if ch == "," and depth == 0:
            out.append(cur.strip())
            cur = ""
        else:
            cur += ch
    if cur.strip():
        out.append(cur.strip())
    return out


TRANS = ("v_exp_f32", "v_log_f32", "v_rcp_f32", "v_rsq_f32", "v_sqrt_f32", "v_sin_f32", "v_cos_f32")


class Ins:
    def __init__(self, text):
        self.text = text
        t = text.split(";")[0].strip()
        self.is_label = t.endswith(":")
        self.mn = ""
        self.ops = []
        self.wr = []
        self.rd = []
        self.kind = "other"
        self.states = 1
        if self.is_label or not t or t.startswith("."):
            self.kind = "nop0"
            self.states = 0
            return
        parts = t.split(None, 1)
        self.mn = parts[0]
        rest = parts[1] if len(parts) > 1 else ""
        ops = split_ops(rest)
        if ops:
            last = ops[-1].split()
            ops[-1] = last[0]
            self.mods = last[1:]
        else:
            self.mods = []
        self.ops = ops
        mn = self.mn
        R = lambda i: regs_of(ops[i]) if i < len(ops) else []
        if mn.startswith("v_mfma"):
            self.kind = "mfma"
            self.wr = R(0)
            self.a = R(1)
            self.b = R(2)
            self.c = R(3)
            self.rd = self.a + self.b + self.c
            self.passes = 8 if "32x32x16" in mn else 4
        elif mn.startswith("ds_read") or mn.startswith("ds_bpermute") or mn.startswith("ds_swizzle"):
            self.kind = "lds"
            self.wr = R(0)
            self.rd = sum((R(i) for i in range(1, len(ops))), [])
        elif mn.startswith("ds_"):
            self.kind = "lds"
            self.rd = sum((R(i) for i in range(len(ops))), [])
        elif mn.startswith("buffer_load") or mn.startswith("global_load"):
            self.kind = "vmem"
            if "lds" in self.mods or "_lds_" in mn:
                self.rd = sum((R(i) for i in range(len(ops))), []) + [("s", "m0")]
                self.dma = True
            else:
                self.wr = R(0)
                self.rd = sum((R(i) for i in range(1, len(ops))), [])
        elif mn.startswith("buffer_store") or mn.startswith("global_store"):
            self.kind = "vmem"
            self.rd = sum((R(i) for i in range(len(ops))), [])
            self.store_data = R(0) if mn.startswith("buffer_store") else R(1)
            self.wide = "x4" in mn or "x3" in mn
        elif mn.startswith("buffer_atomic") or mn.startswith("global_atomic"):
            self.kind = "vmem"
            self.rd = sum((R(i) for i in range(len(ops))), [])
            if "sc0" in self.mods:
                self.wr = R(0)
        elif mn.startswith("buffer_"):
            self.kind = "vmem"
        elif mn.startswith("v_"):
            self.kind = "valu"
            if mn.startswith("v_cmp"):
                self.wr = R(0)
                self.rd = sum((R(i) for i in range(1, len(ops))), [])
                if mn.startswith("v_cmpx"):
                    self.wr = self.wr + [("s", "exec")]
            elif mn.startswith("v_permlane") and "swap" in mn:
                self.wr = R(0) + R(1)
                self.rd = R(0) + R(1)
                self.perm = True
            elif mn.startswith("v_readfirstlane") or mn.startswith("v_readlane"):
                self.wr = R(0)
                self.rd = sum((R(i) for i in range(1, len(ops))), [])
                self.rdlane = True
            else:
                self.wr = R(0)
                self.rd = sum((R(i) for i in range(1, len(ops))), [])
                if mn.startswith("v_fmac") or mn.startswith("v_dot2c") or mn.startswith("v_writelane"):
                    self.rd = self.rd + R(0)
                if mn.startswith("v_add_co") or mn.startswith("v_sub_co") or mn.startswith("v_addc_co") \
                        or mn.startswith("v_subb_co"):
                    self.wr = R(0) + R(1)
                    self.rd = sum((R(i) for i in range(2, len(ops))), [])
                if mn.startswith("v_cndmask") and len(ops) == 3:
                    self.rd = self.rd + [("s", "vcc")]
            self.trans = any(mn.startswith(x) for x in TRANS)
            self.dpp = any(m.startswith(("row_", "quad_perm", "wave_", "row_bcast")) for m in self.mods) or "_dpp" in mn
        elif mn == "s_nop":
            self.kind = "nop"
            self.states = int(ops[0], 0) + 1
        elif mn.startswith("s_"):
            self.kind = "salu"
            if mn.startswith(("s_cmp", "s_waitcnt", "s_barrier", "s_branch", "s_cbranch", "s_endpgm",
                              "s_setprio", "s_sleep", "s_bitcmp")):
                self.rd = sum((R(i) for i in range(len(ops))), [])
            else:
                self.wr = R(0)
                self.rd = sum((R(i) for i in range(1, len(ops))), [])
                if "saveexec" in mn:
                    self.wr = self.wr + [("s", "exec")]


def check_hazards(lines, name=""):
    ins = [Ins(l) for l in lines]
    probs = []
    n = len(ins)
    for i, c in enumerate(ins):
        if c.kind in ("nop0", "nop"):
            continue
        dist = 0
        j = i - 1
        while j >= 0 and dist < 24:
            p = ins[j]
            if p.kind == "nop0":
                j -= 1
                continue
            need = 0
            why = ""
            pw = set(p.wr)
            crd = set(c.rd)
            cwr = set(c.wr)
            if p.kind == "valu":
                vw = {r for r in pw if r[0] in "va"}
                sw = {r for r in pw if r[0] == "s"}
                if c.kind == "mfma" and vw & crd:
                    need, why = 2, "VALU->MFMA operand"
                if c.kind == "valu" and getattr(c, "perm", False) and vw & crd:
                    need, why = max(need, 2), "VALU->permlane"
                if c.kind == "valu" and getattr(c, "dpp", False) and vw & crd:
                    need, why = max(need, 2), "VALU->DPP"
                if c.kind == "valu" and getattr(c, "rdlane", False) and vw & crd:
                    need, why = max(need, 1), "VALU->readlane"
                if getattr(p, "trans", False) and c.kind in ("valu",) and not getattr(c, "trans", False) and vw & crd:
                    need, why = max(need, 1), "trans->VALU"
                if getattr(p, "trans", False) and c.kind in ("valu",) and getattr(c, "trans", False) and vw & crd:
                    need, why = max(need, 1), "trans->trans(pad anyway)"
                if sw & crd:
                    if c.kind == "vmem":
                        need, why = max(need, 5), "VALU sgpr->VMEM"
                    elif c.kind == "valu":
                        if ("s", "exec") in (sw & crd):
                            need, why = max(need, 2), "cmpx exec read"
                        elif getattr(c, "rdlane", False):
                            need, why = max(need, 4), "VALU sgpr->readlane sel"
                        else:
                            need, why = max(need, 2), "VALU sgpr->VALU"
                    elif c.kind == "salu":
                        need, why = max(need, 1), "VALU sgpr->SALU (pad)"
                if ("s", "exec") in sw:
                    if c.kind == "mfma":
                        need, why = max(need, 4), "VALU exec->MFMA"
                    if c.kind == "valu" and getattr(c, "dpp", False):
                        need, why = max(need, 5), "VALU exec->DPP"
                    if c.kind == "valu" and (getattr(c, "rdlane", False) or getattr(c, "perm", False)):
                        need, why = max(need, 4), "cmpx->readlane/permlane"
            if p.kind == "mfma":
                D = pw
                ps = p.passes
                if c.kind == "mfma":
                    cc = set(c.c)
                    if D & cc:
                        if D == cc and c.passes == ps:
                            pass
                        else:
                            need, why = max(need, {4: 6, 8: 10}[ps]), "MFMA D->C overlap"
                    if D & (set(c.a) | set(c.b)):
                        need, why = max(need, {4: 8, 8: 12}[ps]), "MFMA D->A/B"
                    if D & cwr and D != cwr:
                        need, why = max(need, {4: 6, 8: 10}[ps]), "MFMA D WAW partial"
                elif c.kind in ("valu", "vmem", "lds"):
                    if D & (crd | cwr):
                        need, why = max(need, {4: 8, 8: 12}[ps]), "MFMA D->VALU/mem"
                    if c.kind == "valu" and set(p.c) & cwr:
                        need, why = max(need, {4: 3, 8: 7}[ps]), "MFMA C WAR"
            if p.kind == "salu":
                if ("s", "m0") in pw and c.kind == "vmem" and getattr(c, "dma", False):
                    need, why = max(need, 1), "M0->DMA"
            if p.kind == "vmem" and getattr(p, "wide", False):
                if c.kind == "valu" and set(p.store_data) & cwr:
                    need, why = max(need, 2), "store data WAR"
                elif set(p.store_data) & cwr and c.kind != "valu":
                    need, why = max(need, 1), "store data WAR"
            if need > dist:
                probs.append(f"{name}: line {i}: '{c.text.strip()}' needs {need} states after line {j} "
                             f"'{p.text.strip()}' ({why}), has {dist}")
            dist += p.states
            j -= 1
    return probs


class E:
    def __init__(self):
        self.l = []
        self.lq = []
        self.vq = []

    def __call__(self, s):
        for line in s.split("\n"):
            t = line.strip()
            if not t:
                continue
            self.l.append(t if t.endswith(":") else "    " + t)

    def lds(self, s, tag=None):
        self(s)
        self.lq.append(tag)

    def vm(self, s, tag=None):
        self(s)
        self.vq.append(tag)

    def _need(self, q, tags, maxn):
        if not isinstance(tags, (list, tuple, set)):
            tags = [tags]
        idx = -1
        for t in tags:
            for i, x in enumerate(q):
                if x == t:
                    idx = max(idx, i)
        if idx < 0:
            return None
        n = len(q) - 1 - idx
        return min(n, maxn)

    def need(self, ltags=None, vtags=None):
        s = []
        if vtags is not None:
            n = self._need(self.vq, vtags, 63)
            if n is not None:
                s.append(f"vmcnt({n})")
                self.vq = self.vq[len(self.vq) - n:] if n else []
        if ltags is not None:
            n = self._need(self.lq, ltags, 15)
            if n is not None:
                s.append(f"lgkmcnt({n})")
                self.lq = self.lq[len(self.lq) - n:] if n else []
        if s:
            self("s_waitcnt " + " ".join(s))

    def wait_all(self, vm=True, lds=True):
        s = []
        if vm:
            s.append("vmcnt(0)")
            self.vq = []
        if lds:
            s.append("lgkmcnt(0)")
            self.lq = []
        self("s_waitcnt " + " ".join(s))

    def nop(self, n):
        while n > 0:
            k = min(n, 16)
            self(f"s_nop {k - 1}")
            n -= k

    def text(self):
        return "\n".join(self.l) + "\n"


SCC_WRITERS = ("s_add", "s_sub", "s_and", "s_or", "s_xor", "s_lshl", "s_lshr", "s_ashr", "s_cmp", "s_bitcmp", "s_min", "s_max",
               "s_not", "s_bfe", "s_andn2", "s_orn2", "s_nand", "s_nor", "s_xnor", "s_abs", "s_bcnt", "s_mul_i32_dummy")


def check_scc(lines):
    probs = []
    last = None
    for i, l in enumerate(lines):
        t = l.split(";")[0].strip()
        if not t:
            continue
        if t.endswith(":"):
            last = ("label", i, t)
            continue
        mn = t.split()[0]
        if mn.startswith(("s_cbranch_scc", "s_cselect")):
            if last is None or not (last[0].startswith("s_cmp") or last[0].startswith("s_bitcmp")):
                probs.append(f"line {i}: '{t}' follows SCC writer {last}")
        if mn.startswith("s_addc"):
            if last is None or not last[0].startswith("s_add_u32"):
                probs.append(f"line {i}: '{t}' follows SCC writer {last}")
        if mn.startswith(SCC_WRITERS) and not mn.startswith("s_cselect"):
            last = (mn, i, t)
    return probs
```

```python
from emit import E, check_hazards, check_scc
from asmlib import KA

RB = 65536
WSTR = 24576
SLOT = 8192
C_SCALE = 1.4426950408889634 * (128 ** -0.5)

WS_PART = 0
WS_R = 16 << 20
WS_STAT = WS_R + 8192
WS_H = WS_R + 65536
WS_IDX = WS_H + 32768
WS_TS = 32 << 20


def f2u(x):
    import struct
    return struct.unpack("<I", struct.pack("<f", x))[0]


S_X, S_WQ, S_K, S_V, S_WO, S_WS, S_WR = 4, 8, 12, 16, 20, 24, 28
sG, sTB, sW, sSK = 32, 33, 34, 35
sWQO, sWOO, sKO, sVO = 36, 37, 38, 39
sRING = 40
sCNT = 41
sT0, sT1, sT2, sT3 = 42, 43, 44, 45
sKSL, sVSL = 46, 47
sKD, sVD = 48, 49
sTRIP = 50
sGA = 52
sGB = 56
sGAO, sGBO = 60, 61
sGAM, sGBM = 62, 63
sMASK = 64
sPASS = 70
sKVB = 71
sKVT = 51
sDBG = 72
sSL = 98
sRDY = 99
sFP = 92
sHFD = 70
sTS = 74

vLANE = 0
vWQ = 1
vWO = 5
vKDM = 9
vVDM = 13
vAA = 14
vAB = 22
vBR = 30
vKR = 32
vVR = 40
vGA = 44
vGB = 48
vL = 52
vOW = 56
vPS = 57
vT = 58
vQ = 64
vS = 128
vP = 192
vNM = 224
vACC = 128

aA = 0
aB = 96
aF = 0
aO = 128


def rng(f, b, n):
    return f"{f}[{b}:{b + n - 1}]" if n > 1 else f"{f}{b}"


def Bset(setidx, tq):
    if setidx < 2:
        return rng("a", aB + setidx * 16 + tq * 4, 4)
    return rng("v", 64 + tq * 4, 4)


def Aset(setidx, dt):
    return rng("a", aA + setidx * 32 + dt * 4, 4)


def Ahalf(setidx, dt, rd):
    return rng("a", aA + setidx * 32 + dt * 4 + 2 * rd, 2)


def acc16(dt, tq):
    return rng("v", vACC + (dt * 4 + tq) * 4, 4)


OPT = {}
STAMP = [None]
GSTAMP = [None]
P3_STATIC = [False]
NS3 = 5


class Slots:
    def __init__(self, n):
        self.n = n
        self.f = [[] for _ in range(n + 1)]

    def at(self, i, fn):
        self.f[min(max(i, 0), self.n)].append(fn)


class Side:
    def __init__(self):
        self.q = []
        self.last = None

    def add(self, x, gap=0, cond=None):
        self.q.append((x, gap, cond))

    def states_since(self, e):
        if self.last is None:
            return 99
        n = 0
        for l in e.l[self.last:]:
            t = l.strip()
            if t.endswith(":") or not t:
                continue
            n += int(t.split()[1], 0) + 1 if t.startswith("s_nop") else 1
        return n

    def emit(self, e, budget, pos=None, flush=False):
        while self.q and (budget > 0 or flush):
            x, gap, cond = self.q[0]
            if cond is not None and pos is not None and pos < cond and not flush:
                return
            have = self.states_since(e)
            if have < gap:
                if not flush:
                    return
                e.nop(gap - have)
            self.q.pop(0)
            if callable(x):
                x()
            else:
                e(x)
            self.last = len(e.l)
            budget -= 1


def gemm_step(e, p, phase, opts):
    j = p % 3
    jn = (p + 1) % 3
    va = vAA if phase == 1 else vAB
    rdoff = 1024 if phase == 1 else 2048
    sl = Slots(32)
    if opts.get("next", True):
        reads = []
        for dt in range(8):
            for rd in range(2):
                reads.append((dt, rd))
        spread = OPT.get("aspread", 16)
        for n, (dt, rd) in enumerate(reads):
            def f(dt=dt, rd=rd):
                if OPT.get("noaread"):
                    return
                e.lds(f"ds_read_b64_tr_b16 {Ahalf(jn, dt, rd)}, v{va + dt} offset:{jn * SLOT + rd * rdoff}",
                      ("A", p + 1, dt))
            sl.at(n * spread // 16, f)
        for tq in range(4):
            def f(tq=tq):
                e.lds(f"ds_read_b128 {Bset(jn, tq)}, v{vBR} offset:{opts['boff_next'] + tq * 1024}", ("B", p + 1, tq))
            sl.at(spread + tq, f)
    for pos, fn in opts.get("fill", []):
        sl.at(pos, fn)
    if opts.get("next", True):
        e.need(vtags=opts.get("vneed"))
    for n in range(32):
        dt, tq = n // 4, n % 4
        need = [("A", p, dt), ("B", p, tq)] + ([("B", p, 3), ("A", p, 7)] if n == 0 else [])
        e.need(ltags=need)
        c = "0" if opts.get("first") else acc16(dt, tq)
        e(f"v_mfma_f32_16x16x32_bf16 {acc16(dt, tq)}, {Aset(j, dt)}, {Bset(j, tq)}, {c}")
        for fn in sl.f[n]:
            fn()
        side = opts.get("side")
        if side is not None:
            side.emit(e, opts.get("cap", 2) - len(sl.f[n]), pos=(p, n))
    for fn in sl.f[32]:
        fn()


def wdma(e, phase, i, tag):
    if OPT.get("nodma") and tag[1] > 3:
        e.vq.append(tag)
        return
    if phase == 1:
        e.vm(f"buffer_load_dwordx4 v{vWQ + i}, s[{S_WQ}:{S_WQ + 3}], s{sWQO} offen offset:{i * 1024} lds", tag)
    else:
        e.vm(f"buffer_load_dwordx4 v{vWO + i}, s[{S_WO}:{S_WO + 3}], s{sWOO} offen offset:{i * 1024} lds", tag)


def wdma_adv(e, phase):
    if phase == 1:
        e(f"s_add_u32 s{sWQO}, s{sWQO}, {16 * 8192}")
        e(f"s_and_b32 s{sWQO}, s{sWQO}, {512 * 8192 - 1}")
    else:
        e(f"s_add_u32 s{sT0}, s{sWOO}, {16 * 1024}")
        e(f"s_and_b32 s{sT0}, s{sT0}, {512 * 1024 - 1}")
        e(f"s_and_b32 s{sWOO}, s{sWOO}, {~(512 * 1024 - 1) & 0xffffffff}")
        e(f"s_or_b32 s{sWOO}, s{sWOO}, s{sT0}")


def half_dma(e, phase, slot, half, tag):
    def m0():
        e(f"s_add_u32 m0, s{sRING}, {slot * SLOT + half * 4096}")
    out = [m0]
    for i in range(4):
        out.append(lambda i=i: wdma(e, phase, i, tag))
    out.append(lambda: wdma_adv(e, phase))
    return out


def serial(e, fl):
    fl[0]()
    e("s_nop 0")
    for fn in fl[1:]:
        fn()


def place(fl, start, stride):
    res = [(start, fl[0])]
    for i in range(4):
        res.append((start + 1 + i * stride, fl[1 + i]))
    res.append((start + 1 + 3 * stride, fl[5]))
    return res


def kv_dma(e, which, tile_slot, tag):
    out = []
    if which == "K":
        out.append(lambda: e(f"s_add_u32 m0, s{sRING}, {tile_slot * SLOT}"))
        for i in range(4):
            out.append(lambda i=i: e.vm(
                f"buffer_load_dwordx4 v{vKDM + i}, s[{S_K}:{S_K + 3}], s{sKO} offen offset:{i * 1024} lds", tag))
        out.append(lambda: kv_adv(e, sKO))
    else:
        out.append(lambda: e(f"s_add_u32 m0, s{sRING}, {tile_slot * SLOT + 4096}"))
        for i in range(4):
            out.append(lambda i=i: e.vm(
                f"buffer_load_dwordx4 v{vVDM}, s[{S_V}:{S_V + 3}], s{sVO} offen offset:{i * 1024} lds", tag))
        out.append(lambda: kv_adv(e, sVO))
    return out


def kv_adv(e, sreg):
    e(f"s_add_u32 s{sreg}, s{sreg}, 16384")
    e(f"s_and_b32 s{sreg}, s{sreg}, {8 * 16384 - 1}")


def gemm_pre(e, phase):
    va = vAA if phase == 1 else vAB
    rdoff = 1024 if phase == 1 else 2048
    e.need(vtags=[("W", 0, 0), ("W", 0, 1)])
    for tq in range(4):
        e.lds(f"ds_read_b128 {Bset(0, tq)}, v{vBR} offset:{tq * 1024}", ("B", 0, tq))
    for dt in range(8):
        for rd in range(2):
            e.lds(f"ds_read_b64_tr_b16 {Ahalf(0, dt, rd)}, v{va + dt} offset:{rd * rdoff}", ("A", 0, dt))


def gemm_main(e, phase, tail_fill, side=None):
    e.need(ltags=[("A", 0, 7)])
    serial(e, half_dma(e, phase, 0, 0, ("W", 3, 0)))

    def step_opts(p, boff_next):
        fill = []
        sp = OPT.get("aspread", 16)
        if p + 3 <= 15:
            fl = half_dma(e, phase, p % 3, 1, ("W", p + 3, 1))
            fill += [(0, fl[0])] + [(2 + 4 * i, fl[1 + i]) for i in range(4)] + [(sp + 4, fl[5])]
        if p + 4 <= 15:
            fl = half_dma(e, phase, (p + 1) % 3, 0, ("W", p + 4, 0))

            def guard(p=p):
                e.need(ltags=[("A", p + 1, 7)])
            fill += [(sp + 5, guard), (sp + 5, fl[0])] + [(min(sp + 6 + 3 * i, 31), fl[1 + i]) for i in range(4)] + [(32, fl[5])]
        return dict(first=(p == 0), next=(p < 15), boff_next=boff_next, fill=fill,
                    vneed=[("W", p + 1, 0), ("W", p + 1, 1)])

    if GSTAMP[0]:
        GSTAMP[0]("p1_pre")
    o = step_opts(0, 1 * 4096)
    gemm_step(e, 0, phase, o)
    if GSTAMP[0]:
        GSTAMP[0]("p1_s0")
    lab = f"L_g{phase}_loop"
    e(f"s_mov_b32 s{sCNT}, 3")
    e(f"v_add_u32 v{vBR}, {1 * 4096}, v{vBR}")
    lq0, vq0 = list(e.lq), list(e.vq)
    e(f"{lab}:")
    n0 = len(e.l)
    for u in range(3):
        p = 1 + u
        o = step_opts(p, (u + 1) * 4096)
        if u == 2:
            o["fill"] = o["fill"] + [(24, lambda: e(f"v_add_u32 v{vBR}, {3 * 4096}, v{vBR}")),
                                     (32, lambda: e(f"s_sub_u32 s{sCNT}, s{sCNT}, 1")),
                                     (32, lambda: e(f"s_cmp_lg_u32 s{sCNT}, 0"))]
        gemm_step(e, p, phase, o)
    e(f"s_cbranch_scc1 {lab}")
    body = e.l[n0:]
    probs = check_hazards(body + body, f"gemm{phase} loop x2")
    assert not probs or any(k.startswith("no") for k in OPT), "\n".join(probs[:10])
    sh = lambda q, d: [(t[0], t[1] + d) + tuple(t[2:]) if t else t for t in q]
    assert sh(lq0, 3) == e.lq or OPT.get('noaread'), (lq0, e.lq)
    assert sh(vq0, 3) == e.vq, (vq0, e.vq)
    e.lq, e.vq = sh(e.lq, 6), sh(e.vq, 6)
    for p in range(10, 16):
        if GSTAMP[0] and p in (10, 13):
            GSTAMP[0](f"p1_s{p}")
        o = step_opts(p, (p - 10 + 1) * 4096)
        o["fill"] = o["fill"] + tail_fill(p)
        o["side"] = side
        o["cap"] = OPT.get("sidecap", 2)
        gemm_step(e, p, phase, o)


def acc3(hf, nt, tq):
    return rng("v", vACC + 64 * hf + (nt * 4 + tq) * 4, 4)


def A3(st, nt, rd=None):
    b = st * 16 + nt * 4
    return rng("a", b, 4) if rd is None else rng("a", b + 2 * rd, 2)


def B3(st, tq):
    return rng("a", 48 + st * 16 + tq * 4, 4)


def p3_dma(e, u):
    out = [lambda: e(f"s_add_u32 m0, s{sRING}, {(u % NS3) * 4096}")]
    for i in range(4):
        out.append(lambda i=i: e.vm(
            f"buffer_load_dwordx4 v{vWO + i}, s[{S_WO}:{S_WO + 3}], s{sWOO} offen offset:{i * 1024} lds", ("W", u)))

    def adv():
        p3_adv(e)
        if u == 9 and not OPT.get("p3unroll", 1):
            e(f"s_add_u32 s{sWOO}, s{sWOO}, s{sHFD}")
    out.append(adv)
    return out


def p3_adv(e):
    e(f"s_add_u32 s{sWOO}, s{sWOO}, {32 * 1024}")
    e(f"s_and_b32 s{sWOO}, s{sWOO}, {512 * 1024 - 1}")


def p3_reads(e, u, boff):
    st = u % 3
    r = []
    for nt in range(4):
        for rd in range(2):
            r.append(lambda nt=nt, rd=rd: e.lds(
                f"ds_read_b64_tr_b16 {A3(st, nt, rd)}, v{vAB + nt} offset:{(u % NS3) * 4096 + rd * 1024}", ("A", u, nt)))
    for tq in range(4):
        r.append(lambda tq=tq: e.lds(f"ds_read_b128 {B3(st, tq)}, v{vBR} offset:{boff + tq * 1024}", ("B", u, tq)))
    return r


def p3_step(e, u, boff_next, fill=(), side=None, cap=2):
    hf, st = u >> 4, u % 3
    sl = Slots(16)
    nxt = u < 31
    if nxt:
        rd = p3_reads(e, u + 1, boff_next)
        for n in range(8):
            sl.at(n, rd[n])
        for tq in range(4):
            sl.at(8 + tq, rd[8 + tq])
    if u + NS3 <= 31:
        fl = p3_dma(e, u + NS3)
        sl.at(0, fl[0])
        for i, pos in enumerate((2, 6, 12, 14)):
            sl.at(pos, fl[1 + i])
        sl.at(15, fl[5])
    for pos, fn in fill:
        sl.at(pos, fn)
    if nxt:
        e.need(vtags=[("W", u + 1)])
    for n in range(16):
        nt, tq = n // 4, n % 4
        e.need(ltags=[("A", u, nt), ("B", u, tq)] + ([("B", u, 3), ("A", u, 3)] if n == 0 else []))
        c = "0" if (u & 15) == 0 else acc3(hf, nt, tq)
        e(f"v_mfma_f32_16x16x32_bf16 {acc3(hf, nt, tq)}, {A3(st, nt)}, {B3(st, tq)}, {c}")
        for fn in sl.f[n]:
            fn()
        if side is not None:
            left = cap - len(sl.f[n])
            for sd in side:
                n0 = len(sd.q)
                sd.emit(e, left, pos=(u, n))
                left -= n0 - len(sd.q)
    for fn in sl.f[16]:
        fn()


def p3_epilogue_items(e, hf, regs):
    items = []
    k = 0
    for nt in range(4):
        for qb in range(2):
            R = regs[k % len(regs)]
            k += 1
            a0 = vACC + 64 * hf + (nt * 4 + 2 * qb) * 4
            a1 = a0 + 4
            items.append((f"v_cvt_pk_bf16_f32 v{R}, v{a0}, v{a0 + 1}", 2))
            items.append((f"v_cvt_pk_bf16_f32 v{R + 1}, v{a0 + 2}, v{a0 + 3}", 0))
            items.append((f"v_cvt_pk_bf16_f32 v{R + 2}, v{a1}, v{a1 + 1}", 0))
            items.append((f"v_cvt_pk_bf16_f32 v{R + 3}, v{a1 + 2}, v{a1 + 3}", 0))
            items.append((f"v_permlane16_swap_b32 v{R}, v{R + 2}", 2))
            items.append((f"v_permlane16_swap_b32 v{R + 1}, v{R + 3}", 1))
            off = (nt & 1) * 2048 + qb * 1024
            so = {(0, 0): "0", (0, 1): "s48", (1, 0): "s49", (1, 1): "s50"}[(hf, nt >> 1)]
            items.append((lambda R=R, off=off, nt=nt, qb=qb, so=so: e.vm(
                f"buffer_store_dwordx4 {rng('v', R, 4)}, v{vPS}, s[{S_WS}:{S_WS + 3}], {so} offen offset:{off} "
                + OPT.get("pstore", "sc1"), ("ps", hf, nt, qb)), 0))
    return items


def p3_loop_half0(e):
    p3_step(e, 0, 4096)
    e(f"s_mov_b32 s{sCNT}, 2")
    e(f"s_mov_b32 s{sHFD}, 0")
    e(f"v_add_u32 v{vBR}, {1 * 4096}, v{vBR}")
    lq0, vq0 = list(e.lq), list(e.vq)
    e("L_p3_loop:")
    n0 = len(e.l)
    for k in range(6):
        u = 1 + k
        fill = []
        if k == 5:
            fill = [(13, lambda: e(f"v_add_u32 v{vBR}, {6 * 4096}, v{vBR}")),
                    (15, lambda: e(f"s_mov_b32 s{sHFD}, 512")),
                    (15, lambda: e(f"s_sub_u32 s{sCNT}, s{sCNT}, 1")),
                    (15, lambda: e(f"s_cmp_lg_u32 s{sCNT}, 0"))]
        p3_step(e, u, (k + 1) * 4096, fill=fill)
    e("s_cbranch_scc1 L_p3_loop")
    body = e.l[n0:]
    probs = check_hazards(body + body, "p3 loop x2")
    assert not probs, "\n".join(probs[:10])
    sh = lambda q, d: [(t[0], t[1] + d) + tuple(t[2:]) if t else t for t in q]
    assert sh(lq0, 6) == e.lq, (lq0, e.lq)
    assert sh(vq0, 6) == e.vq, (vq0, e.vq)
    e.lq, e.vq = sh(e.lq, 6), sh(e.vq, 6)
    for u in range(13, 16):
        boff = (u - 13 + 1) * 4096 if u < 15 else -13 * 4096
        if u == 15:
            fill = [(0, lambda: e(f"v_subrev_u32 v{vBR}, {13 * 4096}, v{vBR}"))]
            p3_step(e, u, 0, fill=fill)
        else:
            p3_step(e, u, boff)


def p3_phase(e, tail_fill, side0, side1):
    if STAMP[0]:
        STAMP[0]("p3_start")
    if OPT.get("p3unroll", 1):
        cap = OPT.get("sidecap", 2)
        for u in range(16):
            fill = []
            if u == 15 - NS3:
                fill = [(16, lambda: e(f"s_add_u32 s{sWOO}, s{sWOO}, 512"))]
            P3_STATIC[0] = True
            p3_step(e, u, ((u + 1) & 15) * 4096, fill=fill, side=side0, cap=cap)
    else:
        p3_loop_half0(e)
    for u in range(16, 32):
        p = u & 15
        if STAMP[0] and u in (16, 24):
            STAMP[0](f"p3_u{u}")
        p3_step(e, u, ((p + 1) & 15) * 4096, fill=tail_fill(u), side=side0, cap=OPT.get("sidecap", 2))


def Sreg(par, qb, i=None):
    b = vS + par * 32 + qb * 16
    return rng("v", b, 16) if i is None else f"v{b + i}"


def Preg(par, qb, t):
    return rng("v", vP + par * 16 + qb * 8 + t * 4, 4)


def Qreg(s16, qb):
    return rng("v", vQ + (s16 * 2 + qb) * 4, 4)


def Oreg(db, qb):
    return rng("a", aO + (db * 2 + qb) * 16, 16)


def Fbuf(n, half=None):
    b = aF + (n % 8) * 4
    return rng("a", b, 4) if half is None else rng("a", b + 2 * half, 2)


def k_read(e, b, s16):
    if OPT.get("nokvread"):
        return
    e.lds(f"ds_read_b128 {Fbuf(s16)}, v{vKR + s16} offset:{(b & 1) * 49152}", ("K", b, s16))


def v_read(e, b, f, order=None):
    t, db = (order or VORD_T)[f]
    if OPT.get("nokvread"):
        return
    for rd in range(2):
        e.lds(f"ds_read_b64_tr_b16 {Fbuf(8 + f, rd)}, v{vVR + db} offset:{t * WSTR + rd * 2048}", ("V", b, f))


def sm_ops(e, b):
    par = b & 1
    ops = []
    S = lambda x: Sreg(par, x // 16, x % 16)
    exp = lambda x: (lambda: e(f"v_exp_f32 {S(x)}, {S(x)}") if not OPT.get("noexp") else None)
    add = lambda x: (lambda: e(f"v_add_f32 v{vL + (x // 16) * 2 + (x & 1)}, v{vL + (x // 16) * 2 + (x & 1)}, {S(x)}"))
    cvt = lambda k: (lambda: e(f"v_cvt_pk_bf16_f32 v{vP + par * 16 + k}, {S(2 * k)}, {S(2 * k + 1)}"))
    if OPT.get("nosm"):
        return []
    for k in range(16):
        ops.append((2 * k, exp(2 * k)))
        if k > 0:
            ops.append((2 * k, add(2 * k - 2)))
            ops.append((2 * k, cvt(k - 1)))
        ops.append((2 * k + 1, exp(2 * k + 1)))
        if k > 0:
            ops.append((2 * k + 1, add(2 * k - 1)))
    ops.append((32, add(30)))
    ops.append((32, add(31)))
    ops.append((32, cvt(15)))
    return ops


def sm_queue(e, b):
    par = b & 1
    S = lambda x: Sreg(par, x // 16, x % 16)
    exp = lambda x: (8, lambda: e(f"v_exp_f32 {S(x)}, {S(x)}"))
    add = lambda x: (4, lambda: e(f"v_add_f32 v{vL + (x // 16) * 2 + (x & 1)}, v{vL + (x // 16) * 2 + (x & 1)}, {S(x)}"))
    cvt = lambda k: (4, lambda: e(f"v_cvt_pk_bf16_f32 v{vP + par * 16 + k}, {S(2 * k)}, {S(2 * k + 1)}"))
    q = []
    for k in range(32):
        q.append(exp(k))
        if k >= 1:
            q.append(add(k - 1))
        if k >= 2 and k % 2 == 0:
            q.append(cvt(k // 2 - 1))
    q.append(add(31))
    q.append(cvt(15))
    return q


VORD_T = [(f // 4, f % 4) for f in range(8)]
VORD_D = [(f % 2, f // 2) for f in range(8)]


def p2_iter(e, b, qk=True, sm=True, pv=True, look="K", fill=(), vpre=False, smstart=0, vord=VORD_T, vord_next=VORD_T,
            side=None, cap=5):
    mf = []
    if qk:
        par = (b + 1) & 1
        for s16 in range(8):
            for qb in range(2):
                c = rng("v", vNM + qb * 16, 16) if s16 == 0 else Sreg(par, qb)
                mf.append((f"v_mfma_f32_32x32x16_bf16 {Sreg(par, qb)}, {Fbuf(s16)}, {Qreg(s16, qb)}, {c}",
                           ("K", b + 1, s16), s16))
    if pv:
        par = (b - 1) & 1
        for f in range(8):
            t, db = vord[f]
            for qb in range(2):
                mf.append((f"v_mfma_f32_32x32x16_bf16 {Oreg(db, qb)}, {Fbuf(8 + f)}, {Preg(par, qb, t)}, {Oreg(db, qb)}",
                           ("V", b - 1, f), 8 + f))
    n = len(mf)
    sl = Slots(n)
    if qk and pv:
        for f in range(4, 8):
            sl.at(2 * (f - 4) + 1, lambda f=f: k_read(e, b + 1, f))
        for f in range(8):
            fn = lambda f=f: v_read(e, b - 1, f)
            fn.ninstr = 2
            sl.at(2 * (f + 4) + 1, fn)
        if look == "K":
            for f in range(4):
                sl.at(24 + 2 * f + 1, lambda f=f: k_read(e, b + 2, f))
    elif qk:
        for f in range(4, 8):
            sl.at(2 * (f - 4) + 1, lambda f=f: k_read(e, b + 1, f))
        if look == "K":
            for f in range(4):
                sl.at(8 + 2 * f + 1, lambda f=f: k_read(e, b + 2, f))
    else:
        if vpre:
            for f in range(4):
                v_read(e, b - 1, f, vord)
        for f in range(4, 8):
            sl.at(2 * (f - 4) + 1, lambda f=f: v_read(e, b - 1, f, vord))
        if look == "V":
            for f in range(4):
                sl.at(8 + 2 * f + 1, lambda f=f: v_read(e, b, f, vord_next))
    if OPT.get("greedy", 1) and n == 32 and sm:
        B = OPT.get("budget", 24)
        cost = [4 * sum(2 if False else 1 for _ in sl.f[i]) for i in range(n)]
        for i in range(n):
            cost[i] = 0
            for fn in sl.f[i]:
                cost[i] += 4 * getattr(fn, "ninstr", 1)
            if (i + 1) % 4 == 0:
                cost[i] += 4
        q = sm_queue(e, b)
        tot = sum(c for c, _ in q)
        ex = sorted(enumerate(fill), key=lambda t: (t[1][0], t[0]))
        ex = [(pos, fn) for _, (pos, fn) in ex]
        done = 0
        for i in range(n):
            left = B - cost[i]
            need = tot * (i + 1) / n
            while q and done < need and q[0][0] <= left + (4 if done + 12 < need else 0):
                c, fn = q.pop(0)
                sl.at(i, fn)
                left -= c
                done += c
            while ex and ex[0][0] <= i and (left >= 4 * getattr(ex[0][1], "ninstr", 1) or ex[0][0] + 3 <= i):
                pos, fn = ex.pop(0)
                sl.at(i, fn)
                left -= 4 * getattr(fn, "ninstr", 1)
            while q and q[0][0] <= left and done < need + 16:
                c, fn = q.pop(0)
                sl.at(i, fn)
                left -= c
                done += c
        for c, fn in q:
            sl.at(n, fn)
        for pos, fn in ex:
            sl.at(n, fn)
    else:
        if sm:
            ops = sm_ops(e, b)
            for (s, fn) in ops:
                sl.at(smstart + s * (n - smstart) // 32 if s < 32 else n, fn)
        for (s, fn) in fill:
            sl.at(s, fn)
    if vpre and sm:
        pass
    for i, (txt, tag, fi) in enumerate(mf):
        if i % 4 == 0:
            tags = [tag]
            if i + 2 < n:
                tags.append(mf[i + 2][1])
            e.need(ltags=tags)
        e(txt)
        for fn in sl.f[i]:
            fn()
        if side is not None:
            side.emit(e, cap - len(sl.f[i]), pos=(b, i))
    for fn in sl.f[n]:
        fn()


def gen_k1(label, stamps=False, debug=None, opt=None):
    OPT.clear()
    OPT.update(opt or {})
    STAMP[0] = None
    GSTAMP[0] = None
    e = E()
    nst = [0]

    def stamp(name, wait=True):
        if not stamps:
            return
        if OPT.get("only") and name not in OPT["only"]:
            return
        k = nst[0]
        assert k < 9
        e(f"{stamps} s[{sTS + 2 * k}:{sTS + 2 * k + 1}]   ; stamp {k} {name}")
        if wait:
            e.wait_all(vm=False)
        nst[0] += 1
    done = f"L_{label}_done"
    e(f"""
    s_cmp_ge_u32 s2, 256
    s_cbranch_scc1 {done}
    s_load_dwordx2 s[4:5], s[0:1], 0
    s_load_dwordx2 s[12:13], s[0:1], 8
    s_load_dwordx2 s[16:17], s[0:1], 16
    s_load_dwordx2 s[8:9], s[0:1], 24
    s_load_dwordx2 s[20:21], s[0:1], {KA['wo']}
    s_load_dwordx2 s[28:29], s[0:1], {KA['wr']}
    s_load_dwordx2 s[24:25], s[0:1], {KA['ws']}
    s_load_dwordx2 s[{sDBG}:{sDBG + 1}], s[0:1], {KA['dbg']}
    s_load_dwordx4 s[{sFP}:{sFP + 3}], s[0:1], {KA['wg']}
    s_load_dwordx2 s[{sFP + 4}:{sFP + 5}], s[0:1], {KA['wd']}
    """)
    stamp("start", wait=False)
    e(f"""
    v_lshrrev_b32 v{vT}, 6, v0
    v_and_b32 v{vLANE}, 63, v0
    v_readfirstlane_b32 s{sW}, v{vT}
    """)
    mp = OPT.get("map", "A")
    if mp == "A":
        e(f"""
        s_and_b32 s{sG}, s2, 7
        s_lshr_b32 s{sTB}, s2, 3
        s_and_b32 s{sSK}, s{sTB}, 15
        s_and_b32 s{sKVT}, s{sTB}, 7
        """)
    elif mp == "B":
        e(f"""
        s_and_b32 s{sT0}, s2, 3
        s_lshl_b32 s{sT0}, s{sT0}, 1
        s_bfe_u32 s{sT1}, s2, {3 | (1 << 16)}
        s_or_b32 s{sG}, s{sT0}, s{sT1}
        s_bfe_u32 s{sT0}, s2, {2 | (1 << 16)}
        s_lshl_b32 s{sT0}, s{sT0}, 4
        s_lshr_b32 s{sT1}, s2, 4
        s_or_b32 s{sTB}, s{sT0}, s{sT1}
        s_and_b32 s{sSK}, s{sTB}, 7
        s_lshl_b32 s{sSK}, s{sSK}, 1
        s_and_b32 s{sKVT}, s{sTB}, 7
        """)
    elif mp == "C":
        e(f"""
        s_and_b32 s{sT0}, s2, 1
        s_lshl_b32 s{sT0}, s{sT0}, 2
        s_bfe_u32 s{sT1}, s2, {3 | (2 << 16)}
        s_or_b32 s{sG}, s{sT0}, s{sT1}
        s_bfe_u32 s{sT0}, s2, {1 | (2 << 16)}
        s_lshl_b32 s{sT0}, s{sT0}, 3
        s_lshr_b32 s{sT1}, s2, 5
        s_or_b32 s{sTB}, s{sT0}, s{sT1}
        s_and_b32 s{sSK}, s{sTB}, 7
        s_lshl_b32 s{sSK}, s{sSK}, 1
        s_and_b32 s{sKVT}, s{sTB}, 7
        """)
        if OPT.get("s4"):
            e(f"""
            s_and_b32 s{sSK}, s{sTB}, 3
            s_lshl_b32 s{sSK}, s{sSK}, 2
            """)
        if OPT.get("gskew"):
            e(f"""
            s_and_b32 s{sT0}, s{sG}, 3
            s_lshl_b32 s{sT0}, s{sT0}, 2
            s_add_u32 s{sSK}, s{sSK}, s{sT0}
            s_and_b32 s{sSK}, s{sSK}, 15
            """)
    L = vLANE
    t0, t1, t2, t3, t4, t5 = vT, vT + 1, vT + 2, vT + 3, vT + 4, vT + 5
    XV0, XV1 = 56, 57
    e(f"""
    v_and_b32 v{t2}, 15, v{L}
    v_lshrrev_b32 v{t3}, 4, v{L}
    s_lshl_b32 s{sT0}, s{sTB}, 6
    s_lshl_b32 s{sT1}, s{sW}, 4
    s_add_u32 s{sT0}, s{sT0}, s{sT1}
    v_lshrrev_b32 v{t0}, 3, v{L}
    v_add_u32 v{t0}, s{sT0}, v{t0}
    v_and_b32 v{t1}, 7, v{L}
    v_xor_b32 v{t1}, v{t1}, v{t3}
    v_lshlrev_b32 v{t1}, 4, v{t1}
    v_lshl_add_u32 v{XV0}, v{t0}, 10, v{t1}
    v_xor_b32 v{XV1}, 64, v{XV0}              ; chunk ^ 4
    v_add_u32 v{XV1}, 8192, v{XV1}            ; +8 tokens
    s_mul_i32 s{sRING}, s{sW}, {WSTR}
    s_add_u32 s{sRING}, s{sRING}, {RB}
    s_lshl_b32 s{sT3}, s{sW}, 10              ; w*1024
    s_lshl_b32 s101, s{sSK}, 6
    s_waitcnt lgkmcnt(0)
    """)
    for (dst, size) in [(S_X, 2097152), (S_K, 4194304), (S_V, 4194304), (S_WQ, 4194304),
                        (S_WO, 4194304), (S_WR, 1024), (S_WS, 0x10000000)]:
        e(f"""
        s_mov_b32 s{dst + 2}, {size}
        s_mov_b32 s{dst + 3}, 0x20000
        """)
    stamp("kernarg", wait=True)
    def xdma(u):
        for hb in range(2):
            e(f"s_add_u32 m0, s{sT3}, {(2 * u + hb) * 4096}")
            e("s_nop 0")
            e.vm(f"buffer_load_dwordx4 v{XV0 + hb}, s[{S_X}:{S_X + 3}], s101 offen lds", ("x", u, hb))
        e(f"s_add_u32 s101, s101, 128")
        e(f"s_and_b32 s101, s101, 1023")

    def wrdma():
        e(f"""
        s_lshl_b32 s{sT0}, s{sSK}, 2
        v_add_u32 v58, s{sT0}, v{L}
        v_and_b32 v58, 63, v58
        v_lshlrev_b32 v58, 4, v58
        s_add_u32 m0, s{sRING}, {2 * SLOT + 4096}
        s_nop 0
        """)
        e.vm(f"buffer_load_dwordx4 v58, s[{S_WR}:{S_WR + 3}], 0 offen lds", ("wr", 0))
    NU0 = OPT.get("nu0", 6)
    for u in range(NU0):
        xdma(u)
    e(f"""
    s_lshl_b32 s{sT0}, s{sG}, 2
    s_add_u32 s{sT0}, s{sT0}, s{sW}
    s_lshl_b32 s{sT0}, s{sT0}, 8            ; head*256
    v_lshlrev_b32 v{t4}, 1, v{t3}
    v_xor_b32 v{t4}, v{t4}, v{t2}
    v_lshlrev_b32 v{t5}, 13, v{t3}           ; rr*8192
    v_add_u32 v{t5}, s{sT0}, v{t5}
    v_lshl_add_u32 v{vWQ}, v{t4}, 4, v{t5}
    v_add_u32 v{vWQ + 1}, {32768 - 1024}, v{vWQ}
    v_xor_b32 v{t4}, 8, v{t4}
    v_lshl_add_u32 v{vWQ + 2}, v{t4}, 4, v{t5}
    v_add_u32 v{vWQ + 2}, {2 * (32768 - 1024)}, v{vWQ + 2}
    v_add_u32 v{vWQ + 3}, {32768 - 1024}, v{vWQ + 2}
    s_lshl_b32 s{sWQO}, s{sSK}, 18
    """)
    wq_pre = []
    for p in range(3):
        for h in range(2):
            fl = half_dma(e, 1, p, h, ("W", p, h))
            for i in range(4):
                grp = []
                if i == 0:
                    grp += [fl[0], lambda: e("s_nop 0")]
                grp.append(fl[1 + i])
                if i == 3:
                    grp.append(fl[5])
                wq_pre.append(grp)
    if OPT.get("early_dma", 0):
        for grp in wq_pre[:OPT["early_dma"]]:
            for fn in grp:
                fn()
        wq_pre = wq_pre[OPT["early_dma"]:]


    r_, c_ = 60, 61
    A0, A1, A2, A3, A4, A5 = 128, 129, 130, 131, 132, 133
    e(f"""
    v_bfe_u32 v{A0}, v{L}, 2, 2              ; r
    v_and_b32 v{A1}, 3, v{L}                 ; c
    v_lshrrev_b32 v{A2}, 4, v{L}             ; q4
    v_and_b32 v{A3}, 1, v{A2}
    v_lshl_or_b32 v{A3}, v{A3}, 2, v{A0}     ; phi
    v_lshlrev_b32 v{A3}, 1, v{A3}            ; f
    v_lshrrev_b32 v{A4}, 1, v{A1}
    v_xor_b32 v{A3}, v{A3}, v{A4}            ; chunk
    v_lshlrev_b32 v{A3}, 4, v{A3}
    v_and_b32 v{A4}, 1, v{A1}
    v_lshl_or_b32 v{A3}, v{A4}, 3, v{A3}     ; + (c&1)*8
    v_lshl_add_u32 v{A4}, v{A2}, 3, v{A0}    ; row
    v_lshl_add_u32 v{A3}, v{A4}, 8, v{A3}
    v_add_u32 v{vAA}, s{sRING}, v{A3}
    """)
    for dt in range(1, 8):
        e(f"v_xor_b32 v{vAA + dt}, {32 * dt}, v{vAA}")
    e(f"""
    v_and_b32 v{A3}, 1, v{A2}
    v_lshl_or_b32 v{A4}, v{A3}, 2, v{A0}     ; 4(q4&1) + r
    v_lshrrev_b32 v{A3}, 1, v{A4}            ; psi
    v_lshrrev_b32 v{A5}, 1, v{A2}
    v_lshl_or_b32 v{A4}, v{A5}, 4, v{A4}     ; row
    v_lshlrev_b32 v{A3}, 1, v{A3}
    v_lshrrev_b32 v{A5}, 1, v{A1}
    v_xor_b32 v{A3}, v{A3}, v{A5}            ; chunk
    v_lshlrev_b32 v{A3}, 4, v{A3}
    v_and_b32 v{A5}, 1, v{A1}
    v_lshl_or_b32 v{A3}, v{A5}, 3, v{A3}
    v_lshl_add_u32 v{A3}, v{A4}, 7, v{A3}
    v_add_u32 v{vAB}, s{sRING}, v{A3}
    """)
    for dt in range(1, 4):
        e(f"v_xor_b32 v{vAB + dt}, {32 * dt}, v{vAB}")
    e(f"""
    v_lshlrev_b32 v{vBR}, 4, v{L}            ; B read: X + l*16
    v_lshrrev_b32 v{A3}, 3, v{L}             ; row8
    v_lshrrev_b32 v{A4}, 1, v{A3}
    v_and_b32 v{A4}, 3, v{A4}
    v_lshlrev_b32 v{A4}, 1, v{A4}
    v_and_b32 v{A5}, 7, v{L}
    v_xor_b32 v{A4}, v{A4}, v{A5}
    v_lshlrev_b32 v{A4}, 4, v{A4}
    v_lshl_add_u32 v{A4}, v{A3}, 10, v{A4}
    s_lshl_b32 s{sT0}, s{sW}, 7
    v_add_u32 v{vWO}, s{sT0}, v{A4}
    v_add_u32 v{vWO + 1}, 7168, v{vWO}
    v_add_u32 v{vWO + 2}, {2 * 7168}, v{vWO}
    v_add_u32 v{vWO + 3}, {3 * 7168}, v{vWO}
    v_and_b32 v{A3}, 15, v{L}
    s_lshl_b32 s{sWOO}, s{sSK}, 15
    v_xor_b32 v{A4}, v{A2}, v{A3}            ; (l&15)^rr
    v_lshlrev_b32 v{A5}, 8, v{A2}
    v_lshl_add_u32 v{vKDM}, v{A4}, 4, v{A5}
    v_xor_b32 v{vKDM + 1}, 64, v{vKDM}
    v_xor_b32 v{vKDM + 2}, 128, v{vKDM}
    v_xor_b32 v{vKDM + 3}, 192, v{vKDM}
    v_lshlrev_b32 v{A4}, 2, v{A2}
    v_xor_b32 v{A4}, v{A4}, v{A3}
    v_lshl_add_u32 v{vVDM}, v{A4}, 4, v{A5}
    v_lshrrev_b32 v{A4}, 5, v{L}             ; h
    v_xor_b32 v{A4}, v{A4}, v{A3}
    v_lshlrev_b32 v{A4}, 4, v{A4}
    v_lshl_add_u32 v{A4}, v{A3}, 8, v{A4}
    v_and_b32 v{A5}, 1, v{A2}
    v_mul_u32_u24 v{A5}, {WSTR}, v{A5}
    v_add_u32 v{A4}, v{A4}, v{A5}
    v_add_u32 v{vKR}, {RB + 1 * SLOT}, v{A4}
    """)
    for s16 in range(1, 8):
        e(f"v_xor_b32 v{vKR + s16}, {32 * s16}, v{vKR}")
    e(f"""
    v_and_b32 v{A4}, 1, v{A2}
    v_lshlrev_b32 v{A4}, 1, v{A4}
    v_lshrrev_b32 v{A5}, 1, v{A1}
    v_or_b32 v{A4}, v{A4}, v{A5}
    v_lshlrev_b32 v{A5}, 2, v{A0}
    v_xor_b32 v{A4}, v{A4}, v{A5}
    v_lshlrev_b32 v{A4}, 4, v{A4}
    v_and_b32 v{A5}, 1, v{A1}
    v_lshl_or_b32 v{A4}, v{A5}, 3, v{A4}
    v_lshrrev_b32 v{A5}, 5, v{L}
    v_lshl_add_u32 v{A5}, v{A5}, 2, v{A0}    ; 4h + r
    v_lshl_add_u32 v{A4}, v{A5}, 8, v{A4}
    v_add_u32 v{vVR}, {RB + 4096 + 1 * SLOT}, v{A4}
    """)
    for db in range(1, 4):
        e(f"v_xor_b32 v{vVR + db}, {64 * db}, v{vVR}")
    e(f"""
    """)
    for u in range(NU0, 8):
        xdma(u)
    wrdma()
    e(f"""
    v_lshlrev_b32 v{vOW}, 4, v{A3}
    v_lshrrev_b32 v{A4}, 5, v{L}
    v_lshl_add_u32 v{vOW}, v{A4}, 8, v{vOW}
    v_and_b32 v{A4}, 1, v{A2}
    v_lshl_add_u32 v{vOW}, v{A4}, 10, v{vOW}
    """)
    e(f"""
    s_lshl_b32 s{sT0}, s{sG}, 5
    s_add_u32 s{sT0}, s{sT0}, s{sTB}
    s_lshl_b32 s{sT0}, s{sT0}, 3
    s_add_u32 s{sT0}, s{sT0}, s{sW}
    s_lshl_b32 s{sT0}, s{sT0}, 13
    v_lshlrev_b32 v{vPS}, 4, v{L}
    v_add_u32 v{vPS}, s{sT0}, v{vPS}
    s_lshl_b32 s{sKVB}, s{sG}, 19
    s_lshl_b32 s{sT0}, s{sW}, 12
    s_add_u32 s{sKVB}, s{sKVB}, s{sT0}
    s_add_u32 s{sKVB}, s{sKVB}, {1536 * 256}
    s_add_u32 s{S_K}, s{S_K}, s{sKVB}
    s_addc_u32 s{S_K + 1}, s{S_K + 1}, 0
    s_add_u32 s{S_V}, s{S_V}, s{sKVB}
    s_addc_u32 s{S_V + 1}, s{S_V + 1}, 0
    s_sub_u32 s{S_K + 2}, {131072}, s{sT0}
    s_mov_b32 s{S_V + 2}, s{S_K + 2}
    s_lshl_b32 s{sT0}, s{sG}, 19
    s_add_u32 s{S_WO}, s{S_WO}, s{sT0}
    s_addc_u32 s{S_WO + 1}, s{S_WO + 1}, 0
    s_mov_b32 s{S_WO + 2}, 524288
    s_lshl_b32 s{sKO}, s{sKVT}, 14
    s_mov_b32 s{sVO}, s{sKO}
    v_cmp_eq_u32 s[{sMASK}:{sMASK + 1}], 1, v{A1}
    v_cmp_eq_u32 s[{sMASK + 2}:{sMASK + 3}], 2, v{A1}
    v_cmp_eq_u32 s[{sMASK + 4}:{sMASK + 5}], 3, v{A1}
    v_cmp_eq_u32 s[98:99], v{A2}, v{A0}
    """)
    e(f"v_mov_b32 v{A5}, 0x3f803f80")
    for i in range(4):
        e(f"v_accvgpr_write_b32 a{64 + i}, v{A5}")
    e(f"s_mov_b32 s100, 0xffff0000")
    e("s_nop 0")
    SUM, GRM = 68, 72
    e(f"""
    v_and_b32 v58, 15, v{L}                  ; tok16
    v_lshrrev_b32 v59, 4, v{L}               ; q4
    v_bfe_u32 v60, v58, 1, 3                 ; swz
    v_xor_b32 v59, v59, v60
    v_lshlrev_b32 v59, 4, v59
    v_and_b32 v60, 7, v58
    v_lshl_add_u32 v59, v60, 7, v59
    v_lshrrev_b32 v60, 3, v58
    v_lshl_add_u32 v59, v60, 12, v59
    v_add_u32 v62, s{sT3}, v59
    v_xor_b32 v63, 64, v62
    """)

    def stat_frag(p):
        e.need(ltags=[("xr", p)])
        xf = rng("v", vQ + 4 * p, 4)
        c1 = "0" if p == 0 else rng("a", SUM, 4)
        c2 = "0" if p == 0 else rng("a", GRM, 4)
        e(f"v_mfma_f32_16x16x32_bf16 {rng('a', SUM, 4)}, a[64:67], {xf}, {c1}")
        e(f"v_mfma_f32_16x16x32_bf16 {rng('a', GRM, 4)}, {xf}, {xf}, {c2}")
        for i in range(4):
            src = vQ + 4 * p + i
            dst = 128 + 8 * p + 2 * i
            e(f"v_lshlrev_b32 v{dst}, 16, v{src}")
            e(f"v_and_b32 v{dst + 1}, s100, v{src}")

    for u in range(8):
        e.need(vtags=[("x", u, 1)])
        for par in range(2):
            e.lds(f"ds_read_b128 {rng('v', vQ + 4 * (2 * u + par), 4)}, v{62 + par} offset:{u * 8192}", ("xr", 2 * u + par))
        for k in range(2):
            if wq_pre and u >= OPT.get("dma_from", 0):
                for fn in wq_pre.pop(0):
                    fn()
        if u > 0:
            stat_frag(2 * u - 2)
            stat_frag(2 * u - 1)
    e.need(vtags=[("wr", 0)])
    e(f"""
    v_lshrrev_b32 v58, 4, v{L}
    v_lshlrev_b32 v58, 4, v58
    v_add_u32 v58, s{sRING}, v58
    """)
    for p in range(16):
        e.lds(f"ds_read_b128 {rng('a', 128 + 4 * p, 4)}, v58 offset:{2 * SLOT + 4096 + p * 64}", ("wrf", p))
    stat_frag(14)
    stat_frag(15)
    e.nop(6)
    if not OPT.get("tailstamps") and not OPT.get("p3stamps"):
        stamp("x15_stats")
    s1, s2_, u0, u1, u2, u3 = 58, 59, 60, 61, 62, 63
    e(f"""
    v_accvgpr_read_b32 v{s1}, a{SUM}
    v_accvgpr_read_b32 v{u0}, a{GRM}
    v_accvgpr_read_b32 v{u1}, a{GRM + 1}
    v_accvgpr_read_b32 v{u2}, a{GRM + 2}
    v_accvgpr_read_b32 v{u3}, a{GRM + 3}
    v_cndmask_b32 v{u0}, v{u0}, v{u1}, s[{sMASK}:{sMASK + 1}]
    v_cndmask_b32 v{u0}, v{u0}, v{u2}, s[{sMASK + 2}:{sMASK + 3}]
    v_cndmask_b32 v{u0}, v{u0}, v{u3}, s[{sMASK + 4}:{sMASK + 5}]
    v_cndmask_b32 v{u0}, 0, v{u0}, s[98:99]
    v_mov_b32 v{u1}, v{u0}
    s_nop 1
    v_permlane32_swap_b32 v{u0}, v{u1}
    s_nop 0
    v_add_f32 v{u0}, v{u0}, v{u1}
    v_mov_b32 v{u1}, v{u0}
    s_nop 1
    v_permlane16_swap_b32 v{u0}, v{u1}
    s_nop 0
    v_add_f32 v{s2_}, v{u0}, v{u1}
    v_mul_f32 v{s1}, {hex(f2u(1.0 / 512))}, v{s1}     ; mean
    v_mul_f32 v{s2_}, {hex(f2u(1.0 / 512))}, v{s2_}
    v_fma_f32 v{s2_}, -v{s1}, v{s1}, v{s2_}      ; var
    v_max_f32 v{s2_}, 0, v{s2_}
    v_cvt_pk_bf16_f32 v{u0}, v{s1}, v{s2_}
    v_and_b32 v{u1}, s100, v{u0}
    v_add_f32 v{u1}, {hex(f2u(1e-5))}, v{u1}
    v_cvt_pk_bf16_f32 v{u1}, v{u1}, v{u1}
    v_and_b32 v{u1}, s100, v{u1}
    v_sqrt_f32 v{u1}, v{u1}
    v_lshlrev_b32 v{s1}, 16, v{u0}             ; mean_b f32
    v_cvt_pk_bf16_f32 v{u1}, v{u1}, v{u1}
    v_and_b32 v{u2}, s100, v{u1}                ; sd_b f32
    v_rcp_f32 v{u3}, v{u2}
    v_and_b32 v{u0}, 0xffff, v{u0}
    v_or_b32 v31, v{u0}, v{u2}
    v_mul_f32 v{u3}, {hex(f2u(C_SCALE))}, v{u3}     ; rsc
    v_mul_f32 v{u2}, v{s1}, v{u3}
    v_sub_f32 v{u2}, 0, v{u2}
    """)
    e(f"""
    v_mov_b32 v60, v{u3}
    v_mov_b32 v61, v{u3}
    v_mov_b32 v63, v{u2}
    """)
    e(f"""
    s_lshl_b32 s{sT0}, s{sW}, 10
    v_add_u32 v{s1}, s{sT0}, v{vBR}
    """)
    for p in range(16):
        for i in range(4):
            src = 128 + 8 * p + 2 * i
            e(f"v_pk_fma_f32 v[{src}:{src + 1}], v[{src}:{src + 1}], v[60:61], v[62:63]")
        for i in range(4):
            src = 128 + 8 * p + 2 * i
            e(f"v_cvt_pk_bf16_f32 v{vQ + 4 * p + i}, v{src}, v{src + 1}")
        e.lds(f"ds_write_b128 v{s1}, {rng('v', vQ + 4 * p, 4)} offset:{p * 4096}", ("xw", p))
        if wq_pre and p % OPT.get("dma_norm", 2) == 0 and not OPT.get("dma_late"):
            if len(wq_pre) <= 4:
                e.need(ltags=[("wrf", 15)])
            for fn in wq_pre.pop(0):
                fn()
    e.need(ltags=[("wrf", 15)])
    while wq_pre:
        for fn in wq_pre.pop(0):
            fn()
    e.need(ltags=[("xw", 15)])
    e("s_barrier")
    if not OPT.get("tailstamps") and not OPT.get("p3stamps"):
        stamp("ln_done")
    gemm_pre(e, 1)
    for p in range(16):
        c = "0" if p == 0 else "a[76:79]"
        e(f"v_mfma_f32_16x16x32_bf16 a[76:79], {rng('a', 128 + 4 * p, 4)}, {rng('v', vQ + 4 * p, 4)}, {c}")
    e.nop(8)
    e(f"""
    v_accvgpr_read_b32 v58, a76
    v_mul_f32 v58, {hex(f2u(1.0 / C_SCALE))}, v58
    v_cvt_pk_bf16_f32 v58, v58, v58
    v_and_b32 v59, s100, v58
    v_ashrrev_i32 v58, 31, v59
    v_or_b32 v58, 0x80000000, v58
    v_xor_b32 v59, v59, v58                  ; monotone map
    s_lshl_b32 s{sT0}, s{sTB}, 6
    s_lshl_b32 s{sT1}, s{sW}, 4
    s_add_u32 s{sT0}, s{sT0}, s{sT1}
    s_sub_u32 s{sT0}, 2047, s{sT0}
    v_and_b32 v58, 15, v{vLANE}
    v_sub_u32 v58, s{sT0}, v58               ; 2047 - token
    v_and_or_b32 v59, v59, s100, v58
    """)

    def tail1(p):
        f = []

        def guard(pp):
            return lambda: e.need(ltags=[("A", pp + 1, 7)])
        if p == 12:
            f += [(21, guard(12))] + place(kv_dma(e, "K", 1, ("KV", 0, "K")), 21, 3)
        if p == 13:
            f += place(kv_dma(e, "V", 1, ("KV", 0, "V")), 1, 4)
            f += [(21, guard(13))] + place(kv_dma(e, "K", 2, ("KV", 1, "K")), 21, 3)
        if p == 14:
            f += place(kv_dma(e, "V", 2, ("KV", 1, "V")), 1, 4)
            f += [(21, guard(14))] + place(kv_dma(e, "K", 0, ("KV", 2, "K")), 21, 3)
        if p >= 12:
            for i in range(32):
                f.append((i, lambda i=i: e(f"v_accvgpr_write_b32 a{128 + (p - 12) * 32 + i}, 0")))
        return f

    if OPT.get("only"):
        def gs(name):
            lq = list(e.lq)
            stamp(name)
            if name in OPT["only"]:
                e.lq = lq
        GSTAMP[0] = gs
    gemm_main(e, 1, tail1)
    if not OPT.get("tailstamps") and not OPT.get("p3stamps"):
        stamp("p1_done")
    e(f"""
    s_add_u32 s{sGA}, s{S_WS}, {WS_R}
    s_addc_u32 s{sGA + 1}, s{S_WS + 1}, 0
    s_mov_b32 s{sGA + 2}, 8192
    s_mov_b32 s{sGA + 3}, 0x20000
    s_add_u32 s{sGB}, s{S_WS}, {WS_STAT}
    s_addc_u32 s{sGB + 1}, s{S_WS + 1}, 0
    s_mov_b32 s{sGB + 2}, 8192
    s_mov_b32 s{sGB + 3}, 0x20000
    s_lshl_b32 s{sT0}, s{sTB}, 6
    s_lshl_b32 s{sT1}, s{sW}, 4
    s_add_u32 s{sT0}, s{sT0}, s{sT1}
    v_add_u32 v58, s{sT0}, v{vLANE}
    v_lshlrev_b32 v58, 2, v58
    v_cmp_gt_u32 vcc, 16, v{vLANE}
    s_cmp_eq_u32 s{sG}, 0
    s_cselect_b64 s[{sMASK}:{sMASK + 1}], -1, 0
    v_mov_b32 v60, 0x7ffffff0
    s_and_b64 vcc, vcc, s[{sMASK}:{sMASK + 1}]
    v_cndmask_b32 v58, v60, v58, vcc
    """)
    e.vm(f"buffer_store_dword v59, v58, s[{sGA}:{sGA + 3}], 0 offen sc1", ("st", 0))
    e.vm(f"buffer_store_dword v31, v58, s[{sGB}:{sGB + 3}], 0 offen sc1", ("st", 1))
    e.nop(4)
    for dt in (6, 7, 0, 1, 2, 3, 4, 5):
        for qb in range(2):
            R = vQ + (dt * 2 + qb) * 4
            a0 = vACC + (dt * 4 + 2 * qb) * 4
            a1 = a0 + 4
            e(f"v_cvt_pk_bf16_f32 v{R}, v{a0}, v{a0 + 1}")
            e(f"v_cvt_pk_bf16_f32 v{R + 1}, v{a0 + 2}, v{a0 + 3}")
            e(f"v_cvt_pk_bf16_f32 v{R + 2}, v{a1}, v{a1 + 1}")
            e(f"v_cvt_pk_bf16_f32 v{R + 3}, v{a1 + 2}, v{a1 + 3}")
        for qb in range(2):
            R = vQ + (dt * 2 + qb) * 4
            e(f"v_permlane16_swap_b32 v{R}, v{R + 2}")
            e(f"v_permlane16_swap_b32 v{R + 1}, v{R + 3}")
        if dt == 7:
            for i in range(32):
                e(f"v_mov_b32 v{vNM + i}, 0")
    for i in range(4):
        e(f"v_mov_b32 v{vL + i}, 0")
    for i in range(4):
        e(f"v_mov_b32 v{vGA + i}, v{vKDM + i}")
        e(f"v_mov_b32 v{vGB + i}, v{vVDM}")
    e(f"s_mov_b32 s{sPASS}, 0")
    e(f"v_mov_b32 v31, v{vKR}")
    e(f"v_mov_b32 v63, v{vVR}")
    e(f"""
    s_min_u32 s{sSL}, s2, 223
    s_lshl_b32 s{sT0}, s{sW}, 7
    v_add_u32 v3, s{sT0}, v{vLANE}
    v_mul_u32_u24 v3, 3584, v3
    s_lshl_b32 s{sT0}, s{sSL}, 4
    v_add_u32 v3, s{sT0}, v3
    v_lshrrev_b32 v4, 4, v{vLANE}
    v_lshlrev_b32 v4, 10, v4
    v_and_b32 v2, 15, v{vLANE}
    v_lshl_add_u32 v4, v2, 4, v4
    s_lshl_b32 s{sT0}, s{sSL}, 13
    s_lshl_b32 s{sT1}, s{sW}, 8
    s_add_u32 s{sT0}, s{sT0}, s{sT1}
    v_add_u32 v4, s{sT0}, v4
    """)
    if OPT.get("only"):
        stamp("q_conv")
    e(f"L_p2_start:")
    e.wait_all()
    e("s_barrier")
    e(f"""
    s_or_b32 s{sT0}, s{sG}, s{sW}
    s_or_b32 s{sT0}, s{sT0}, s{sPASS}
    s_cmp_lg_u32 s{sT0}, 0
    s_cbranch_scc1 L_nopub
    """)
    if not OPT.get("xnopublish"):
        e(f"""
        v_mov_b32 v58, 0
        v_mov_b32 v59, 1
        v_cmp_eq_u32 vcc, 0, v{vLANE}
        s_nop 0
        s_and_saveexec_b64 s[{sMASK}:{sMASK + 1}], vcc
        global_atomic_add v58, v59, s[{sDBG}:{sDBG + 1}] sc1
        s_mov_b64 exec, s[{sMASK}:{sMASK + 1}]
        """)
    e("L_nopub:")
    e(f"""
    s_mov_b32 s{sGA}, s{S_K}
    s_mov_b32 s{sGA + 1}, s{S_K + 1}
    s_mov_b32 s{sGA + 2}, s{S_K + 2}
    s_mov_b32 s{sGB}, s{S_V}
    s_mov_b32 s{sGB + 1}, s{S_V + 1}
    s_mov_b32 s{sGB + 2}, s{S_V + 2}
    s_mov_b32 s{sKSL}, {2 * SLOT}
    s_mov_b32 s{sVSL}, {1 * SLOT}
    s_mov_b32 s{sTRIP}, 1
    s_add_u32 s{sGAM}, s{sRING}, {1 * SLOT}
    s_add_u32 s{sGBM}, s{sRING}, 4096
    s_lshl_b32 s{sGAO}, s{sW}, 13
    s_mov_b32 s{sMASK + 2}, {64 * 3584}
    s_mov_b32 s{S_WQ + 2}, {512 * 1792 * 2}
    """)
    for f in range(4):
        k_read(e, 0, f)
    p2_iter(e, -1, qk=True, sm=False, pv=False, look="K")
    upd = []
    for i in range(8):
        upd.append((i // 4 * 8 + i % 4 if i < 4 else 9 + i, lambda i=i: e(f"v_add_u32 v{vKR + i}, {SLOT}, v{vKR + i}")))
    p2_iter(e, 0, qk=True, sm=True, pv=False, look="K", fill=upd, smstart=5)

    if OPT.get("only"):
        lqs = list(e.lq)
        stamp("p2_preloop")
        e.lq = lqs
    lq0 = list(e.lq)
    e("L_p2_loop:")
    n0 = len(e.l)
    e("s_waitcnt vmcnt(1)")
    e.vq = []
    e("s_barrier")
    D64 = 64 * 3584
    fill = []

    def grp(*lines):
        f = lambda: [e(x) for x in lines]
        f.ninstr = len(lines)
        return f

    def adv2(sreg):
        f = lambda: kv_adv(e, sreg)
        f.ninstr = 2
        return f
    fill.append((0, lambda: e(f"s_mov_b32 m0, s{sGAM}")))
    for i in range(4):
        fill.append((2 + 4 * i, lambda i=i: e.vm(
            f"buffer_load_dwordx4 v{vGA + i}, s[{sGA}:{sGA + 3}], s{sKO} offen offset:{i * 1024} lds", ("G", 0))))
    fill.append((15, adv2(sKO)))
    fill.append((16, lambda: e(f"s_mov_b32 m0, s{sGBM}")))
    for i in range(4):
        fill.append((18 + 4 * i, lambda i=i: e.vm(
            f"buffer_load_dwordx4 v{vGB + i}, s[{sGB}:{sGB + 3}], s{sVO} offen offset:{i * 1024} lds", ("G", 1))))
    fill.append((30, adv2(sVO)))
    for db in range(4):
        fill.append((24 + 2 * db, lambda db=db: e(f"v_add_u32 v{vVR + db}, 49152, v{vVR + db}")))
    fill.append((4, grp(f"s_add_u32 s{sT1}, s{sKSL}, {SLOT}", f"s_cmp_eq_u32 s{sT1}, {3 * SLOT}",
                        f"s_cselect_b32 s{sT1}, 0, s{sT1}")))
    fill.append((8, grp(f"s_sub_u32 s{sKD}, s{sT1}, s{sKSL}", f"s_sub_u32 s{sVD}, s{sKSL}, s{sVSL}")))
    fill.append((12, grp(f"s_sub_u32 s{sVD}, s{sVD}, 49152", f"s_mov_b32 s{sVSL}, s{sKSL}", f"s_mov_b32 s{sKSL}, s{sT1}")))
    fill.append((20, grp(f"s_cmp_ge_u32 s{sTRIP}, 3", f"s_cselect_b32 s{S_WQ}, s{sFP + 2}, s{sFP}",
                         f"s_cselect_b32 s{S_WQ + 1}, s{sFP + 3}, s{sFP + 1}")))
    fill.append((22, grp(f"s_bitcmp0_b32 s{sTRIP}, 0", f"s_cselect_b32 s{sGBO}, s{sMASK + 2}, 0")))
    fill.append((24, grp(f"s_cmp_ge_u32 s{sTRIP}, 5", f"s_cselect_b32 s{S_WQ}, s{sFP + 4}, s{S_WQ}",
                         f"s_cselect_b32 s{S_WQ + 1}, s{sFP + 5}, s{S_WQ + 1}")))
    fill.append((26, grp(f"s_cmp_ge_u32 s{sTRIP}, 5", f"s_cselect_b32 s{sGBO}, 0, s{sGBO}",
                         f"s_cselect_b64 s[{sMASK}:{sMASK + 1}], -1, 0")))
    fill.append((28, grp(f"s_cmp_ge_u32 s{sTRIP}, 6", f"s_cselect_b32 s{sGBO}, 4096, s{sGBO}")))
    p2_iter(e, 1, fill=fill)
    fill = []
    for i in range(8):
        fill.append((8 + 2 * i if i >= 4 else 2 * i, lambda i=i: e(f"v_add_u32 v{vKR + i}, s{sKD}, v{vKR + i}")))
    for db in range(4):
        fill.append((24 + 2 * db, lambda db=db: e(f"v_add_u32 v{vVR + db}, s{sVD}, v{vVR + db}")))
    fill.append((1, lambda: e(f"v_cndmask_b32 v1, v3, v4, s[{sMASK}:{sMASK + 1}]")))
    fill.append((2, lambda: e(f"s_mov_b32 m0, s{sGAO}")))
    fill.append((4, lambda: e.vm(f"buffer_load_dwordx4 v1, s[{S_WQ}:{S_WQ + 3}], s{sGBO} offen lds", ("C", 0))))
    fill.append((6, lambda: e(f"s_add_u32 s{sGAO}, s{sGAO}, 1024")))
    fill.append((10, grp(f"s_add_u32 s{sGAM}, s{sRING}, s{sVSL}", f"s_add_u32 s{sT1}, s{sKSL}, {SLOT}")))
    fill.append((12, grp(f"s_cmp_eq_u32 s{sT1}, {3 * SLOT}", f"s_cselect_b32 s{sT1}, 0, s{sT1}",
                         f"s_add_u32 s{sGBM}, s{sRING}, s{sT1}")))
    fill.append((14, lambda: e(f"s_add_u32 s{sGBM}, s{sGBM}, 4096")))
    fill.append((28, lambda: e(f"s_add_u32 s{sTRIP}, s{sTRIP}, 1")))
    p2_iter(e, 2, fill=fill)
    e(f"""
    s_cmp_lg_u32 s{sTRIP}, 7
    s_cbranch_scc1 L_p2_noswitch
    s_mov_b32 s{sGA}, s{S_WO}
    s_mov_b32 s{sGA + 1}, s{S_WO + 1}
    s_mov_b32 s{sGA + 2}, s{S_WO + 2}
    s_mov_b32 s{sGB}, s{S_WO}
    s_mov_b32 s{sGB + 1}, s{S_WO + 1}
    s_mov_b32 s{sGB + 2}, s{S_WO + 2}
    s_mov_b32 s{sGAM}, s{sRING}
    s_add_u32 s{sGBM}, s{sRING}, 4096
    s_mov_b32 s{sKO}, s{sWOO}
    """)
    p3_adv(e)
    e(f"s_mov_b32 s{sVO}, s{sWOO}")
    p3_adv(e)
    for i in range(4):
        e(f"v_mov_b32 v{vGA + i}, v{vWO + i}")
        e(f"v_mov_b32 v{vGB + i}, v{vWO + i}")
    e("L_p2_noswitch:")
    e(f"s_cmp_lg_u32 s{sTRIP}, 8")
    e("s_cbranch_scc1 L_p2_loop")
    body = e.l[n0:]
    probs = check_hazards(body + body, "p2 loop x2")
    assert not probs or any(k.startswith("no") for k in OPT), "\n".join(probs[:10])
    sh = lambda q, d: [(t[0], t[1] + d) + tuple(t[2:]) if t else t for t in q]
    assert sh(lq0, 2) == e.lq, (lq0, e.lq)
    e.lq = sh(e.lq, 12)
    if OPT.get("only"):
        stamp("p2_loopend")
    e.wait_all(lds=False)
    e(f"""
    v_bfe_u32 v58, v{vLANE}, 2, 2               ; r
    v_lshrrev_b32 v59, 4, v{vLANE}              ; q4
    v_lshl_add_u32 v60, v59, 3, v58             ; 8 q4 + r
    v_lshlrev_b32 v60, 4, v60
    v_and_b32 v61, 1, v{vLANE}
    v_lshl_add_u32 v60, v61, 3, v60             ; + (c&1)*8
    v_bfe_u32 v61, v{vLANE}, 1, 1
    v_lshl_add_u32 v60, v61, 11, v60            ; + U
    s_lshl_b32 s{sT0}, s{sW}, 13
    v_add_u32 v60, s{sT0}, v60
    v_and_b32 v59, 1, v59
    v_lshl_add_u32 v58, v59, 2, v58             ; row 0..7
    v_lshlrev_b32 v58, 8, v58
    v_and_b32 v59, 3, v{vLANE}
    v_lshl_add_u32 v58, v59, 3, v58             ; + c*8
    v_add_u32 v58, s{sT0}, v58
    """)
    for i in range(4):
        for rd in range(2):
            e.lds(f"ds_read_b64_tr_b16 {rng('a', 96 + 4 * i + 2 * rd, 2)}, v60 offset:{i * 512 + rd * 64}", ("fa", i))
    for t in range(8):
        e.lds(f"ds_read_b64_tr_b16 {rng('a', 112 + 2 * t, 2)}, v58 offset:{4096 + t * 32}", ("da", t))
    e.wait_all(vm=False)
    e("s_barrier")
    e.vq = [("W", 0, 0)] * 0
    fill = place(p3_dma(e, 2), 0, 2) + place(p3_dma(e, 3), 8, 2)
    for db in range(4):
        fill.append((7 + db, lambda db=db: e(f"v_add_u32 v{vVR + db}, 49152, v{vVR + db}")))
    e.lq = [t for t in e.lq]
    e(f"v_mov_b32 v62, 0")
    e.vm(f"global_load_dword v2, v62, s[{sDBG}:{sDBG + 1}] sc1", ("cnt", 0))
    p2_iter(e, 15, qk=False, sm=True, pv=True, look="V", fill=fill, vpre=True, vord_next=VORD_D)
    RL = [58, 60]
    side = Side()
    A = side.add
    A(f"v_add_f32 v{vL}, v{vL}, v{vL + 1}")
    A(f"v_add_f32 v{vL + 2}, v{vL + 2}, v{vL + 3}")
    A(f"v_mov_b32 v{vL + 1}, v{vL}")
    A(f"v_mov_b32 v{vL + 3}, v{vL + 2}")
    A(f"v_permlane32_swap_b32 v{vL}, v{vL + 1}", gap=2)
    A(f"v_permlane32_swap_b32 v{vL + 2}, v{vL + 3}", gap=1)
    A(f"v_add_f32 v{vL}, v{vL}, v{vL + 1}", gap=1)
    A(f"v_add_f32 v{vL + 2}, v{vL + 2}, v{vL + 3}")
    A(f"v_rcp_f32 v{RL[0]}, v{vL}")
    A(f"v_rcp_f32 v{RL[1]}, v{vL + 2}")
    A(f"s_mov_b32 s{sT2}, {hex(f2u(2.0 ** -40))}")
    A(f"s_mov_b32 s{sT3}, {hex(f2u(2.0 ** 40))}")
    A(f"v_cmp_lt_f32 s[{sMASK}:{sMASK + 1}], s{sT2}, v{vL}")
    A(f"v_cmp_gt_f32 s[{sMASK + 2}:{sMASK + 3}], s{sT3}, v{vL}")
    A(f"v_cmp_lt_f32 s[{sMASK + 4}:{sMASK + 5}], s{sT2}, v{vL + 2}")
    A(f"v_cmp_gt_f32 vcc, s{sT3}, v{vL + 2}")
    A(f"s_and_b64 s[{sMASK}:{sMASK + 1}], s[{sMASK}:{sMASK + 1}], s[{sMASK + 2}:{sMASK + 3}]", gap=2)
    A(f"s_and_b64 vcc, vcc, s[{sMASK + 4}:{sMASK + 5}]")
    A(f"s_and_b64 s[{sMASK}:{sMASK + 1}], s[{sMASK}:{sMASK + 1}], vcc")
    for db in range(4):
        wa = 61 + (db & 1)
        A(lambda db=db: [e(x) for x in (f"s_lshl_b32 s{sT1}, s{sW}, 2", f"s_add_u32 s{sT1}, s{sT1}, {db}",
                                        f"s_sub_u32 s{sT1}, s{sT1}, s{sSK}")])
        A(lambda: [e(x) for x in (f"s_and_b32 s{sT1}, s{sT1}, 15", f"s_lshl_b32 s{sT1}, s{sT1}, 12")])
        A(f"v_add_u32 v{wa}, s{sT1}, v{vOW}")
        for qb in range(2):
            src = aO + (db * 2 + qb) * 16
            T = 128 + ((db * 2 + qb) % 4) * 16 if False else 128 + (db * 2 + qb) * 16
            for i in range(16):
                A(f"v_accvgpr_read_b32 v{T + i}, a{src + i}", cond=((16, min(4 * db + 7, 99)) if (i == 0 and qb == 0) else None))
            for i in range(8):
                A(f"v_pk_mul_f32 v[{T + 2 * i}:{T + 2 * i + 1}], v[{T + 2 * i}:{T + 2 * i + 1}], v[{RL[qb]}:{RL[qb] + 1}] op_sel_hi:[1,0]")
            for i in range(8):
                A(f"v_cvt_pk_bf16_f32 v{T + i}, v{T + 2 * i}, v{T + 2 * i + 1}")
            for jp in range(2):
                A(lambda T=T, jp=jp, qb=qb, db=db, wa=wa: e.lds(
                    f"ds_write_b128 v{wa}, {rng('v', T + 4 * jp, 4)} offset:{qb * 2048 + jp * 512}", ("ow", db, qb, jp)))
    p2_iter(e, 16, qk=False, sm=False, pv=True, look=None, vord=VORD_D, side=side, cap=OPT.get("normcap", 5))
    if not OPT.get("tailstamps"):
        stamp("p2_done")
    e.nop(OPT.get("normnop", 10))
    side.emit(e, 0, flush=True)
    e(f"""
    s_cmp_eq_u64 s[{sMASK}:{sMASK + 1}], -1
    s_cselect_b32 s{sT2}, 0, 1
    s_cmp_eq_u32 s{sPASS}, 0
    s_cselect_b32 s{sT2}, s{sT2}, 0
    s_cmp_eq_u32 s{sT2}, 0
    s_cbranch_scc1 L_noflag
    s_lshl_b32 s{sT0}, s{sW}, 2
    s_sub_u32 s{sT0}, s{sT0}, s{sSK}
    s_and_b32 s{sT0}, s{sT0}, 15
    s_lshl_b32 s{sT0}, s{sT0}, 12
    v_mov_b32 v58, s{sT0}
    v_mov_b32 v59, -1
    ds_write_b32 v58, v59
    L_noflag:
    """)
    e.wait_all(vm=False)
    e("s_barrier")
    for w_ in range(4):
        e(f"""
        s_sub_u32 s{sT0}, {4 * w_}, s{sSK}
        s_and_b32 s{sT0}, s{sT0}, 15
        s_lshl_b32 s{sT0}, s{sT0}, 12
        v_mov_b32 v{58 + w_}, s{sT0}
        """)
    for w_ in range(4):
        e.lds(f"ds_read_b32 v{58 + w_}, v{58 + w_}", ("mk", w_))
    e(f"v_lshlrev_b32 v{vBR}, 4, v{vLANE}")
    for fn in p3_reads(e, 0, 0)[8:] + p3_reads(e, 0, 0)[:8]:
        fn()
    serial(e, p3_dma(e, 4))
    e.need(ltags=[("mk", 3)])
    e(f"""
    v_and_b32 v58, v58, v59
    v_and_b32 v60, v60, v61
    v_max_u32 v58, v58, v60
    v_max_u32 v59, v59, v61
    """)
    e.l = e.l[:-4]
    e(f"""
    v_max_u32 v58, v58, v59
    v_max_u32 v60, v60, v61
    v_max_u32 v58, v58, v60
    s_nop 0
    v_readfirstlane_b32 s{sT0}, v58
    s_nop 0
    s_cmp_eq_u32 s{sT0}, -1
    s_cbranch_scc1 L_fallback
    L_p3_start:
    """)
    e.need(vtags=[("cnt", 0)])
    e(f"""
    v_readfirstlane_b32 s{sT0}, v2
    s_lshl_b32 s{sT1}, s{sW}, 11
    v_lshlrev_b32 v62, 5, v{vLANE}
    v_add_u32 v62, s{sT1}, v62
    v_add_u32 v62, {WS_R}, v62
    s_cmp_ge_u32 s{sT0}, 32
    s_cselect_b32 s{sRDY}, 1, 0
    s_mov_b32 s48, 4096
    s_mov_b32 s49, 32768
    s_mov_b32 s50, {32768 + 4096}
    """)
    e.vm(f"buffer_load_dwordx4 v[88:91], v62, s[{S_WS}:{S_WS + 3}], 0 offen sc1", ("rl", 0))
    e.vm(f"buffer_load_dwordx4 v[92:95], v62, s[{S_WS}:{S_WS + 3}], 0 offen offset:16 sc1", ("rl", 1))
    assert [t for t in e.vq if t[0] == "W"] == [("W", u) for u in range(2, 5) for _ in range(4)], e.vq
    e.vq = [("W", u) for u in range(5) for _ in range(4)]
    import moe

    def tail3(u):
        return []

    def tail3_old(u):
        f = []
        lst = {28: [(S_WQ, 80, 0), (S_WQ, 81, 1024), (S_K, 80, 2048), (S_K, 81, 3072)], 29: [(S_V, 82, 4096), (S_V, 83, 5120)]}
        if u in lst and not OPT.get("nomoe") and not OPT.get("xnofw"):
            f.append((0, lambda u=u: e.need(ltags=[("A", u, 3)])))
            for n, (srd, v, off) in enumerate(lst[u]):
                f.append((1 + 3 * n, lambda off=off: e(f"s_add_u32 m0, s{sRING}, {2 * SLOT + off}")))
                f.append((2 + 3 * n, lambda srd=srd, v=v: e.vm(
                    f"buffer_load_dwordx4 v{v}, s[{srd}:{srd + 3}], 0 offen lds", ("fw", 0))))
        return f
    side_e, side = Side(), Side()
    sp = OPT.get("stspread", 2.0)
    for n, (x, gap) in enumerate(p3_epilogue_items(e, 0, [64, 68, 72, 76])):
        k, r = n // 7, n % 7
        pos = 16 + k * sp
        side_e.add(x, gap=gap, cond=((int(pos), 2 + int((pos % 1) * 16)) if r == 0 else None))
    if not OPT.get("nomoe"):
        moe.moe_side(e, side, dict(W=sW, RING=sRING, RDY=sRDY, M=100, X=S_X, WS=S_WS))
        side.q[0] = (side.q[0][0], side.q[0][1], (OPT.get("moestart", 4) if OPT.get("p3unroll", 1) else 16, 0))
    if OPT.get("p3stamps") or OPT.get("only"):
        def st_nowait(name):
            q = list(e.lq)
            stamp(name)
        STAMP[0] = st_nowait
    p3_phase(e, tail3, [side_e, side], None)
    side_e.emit(e, 0, flush=True)
    side.emit(e, 0, flush=True)
    stamp("p3_done")
    e.nop(6)
    side = Side()
    for (x, gap) in p3_epilogue_items(e, 1, [64, 68, 72, 76, 80, 84, 88, 92]):
        side.add(x, gap=gap)
    side.emit(e, 0, flush=True)
    stamp("epi")
    doneq = f"L_{label}_fin"
    if not OPT.get("nomoe"):
        e(f"""
        s_cmp_ge_u32 s2, 224
        s_cbranch_scc1 {doneq}
        s_nop 1
        """)
        moe.moe_tail(e, dict(X=S_X, WS=S_WS, WR=S_WR, W=sW, RING=sRING, SL=sSL, RDY=sRDY, DBG=sDBG, M=100,
                             T=[42, 43, 44, 45, 46, 47, 60, 61, 62, 63, 64, 65, 66, 67], done=doneq,
                             spin=OPT.get("spin", 4000),
                             stamp=(stamp if OPT.get("tailstamps") else (lambda n: None))))
    e(f"{doneq}:")
    stamp("end")
    if stamps and OPT.get("dbgstamps"):
        e.wait_all()
        e(f"""
        v_mov_b32 v58, 16
        v_mov_b32 v59, s{sTS + 16}
        v_mov_b32 v60, 20
        s_not_b32 s{sT0}, s{sTS}
        v_mov_b32 v61, s{sT0}
        v_cmp_eq_u32 vcc, 0, v{vLANE}
        s_nop 0
        s_and_saveexec_b64 s[{sMASK}:{sMASK + 1}], vcc
        global_atomic_umax v58, v59, s[{sDBG}:{sDBG + 1}] sc1
        global_atomic_umax v60, v61, s[{sDBG}:{sDBG + 1}] sc1
        s_or_b32 s{sT0}, s2, s{sW}
        s_cmp_lg_u32 s{sT0}, 0
        s_cbranch_scc1 L_dbg_skip
        """)
        for k in range(1, 9):
            e(f"s_sub_u32 s{sT0}, s{sTS + 2 * k}, s{sTS}")
            e(f"v_mov_b32 v59, s{sT0}")
            e(f"v_mov_b32 v58, {24 + 4 * (k - 1)}")
            e(f"global_store_dword v58, v59, s[{sDBG}:{sDBG + 1}]")
            e("s_nop 1")
        e("L_dbg_skip:")
        e(f"s_mov_b64 exec, s[{sMASK}:{sMASK + 1}]")
    elif stamps:
        e.wait_all()
        e(f"""
        s_lshl_b32 s{sT0}, s2, 2
        s_add_u32 s{sT0}, s{sT0}, s{sW}
        s_lshl_b32 s{sT0}, s{sT0}, 7
        s_add_u32 s{sT0}, s{sT0}, {WS_TS}
        v_mov_b32 v58, s{sT0}
        v_cmp_eq_u32 vcc, 0, v{vLANE}
        s_nop 0
        s_and_saveexec_b64 s[{sMASK}:{sMASK + 1}], vcc
        """)
        for i in range(0, 20, 4):
            for q in range(4):
                e(f"v_mov_b32 v{60 + q}, s{min(sTS + i + q, sTS + 17)}")
            e(f"buffer_store_dwordx4 v[60:63], v58, s[{S_WS}:{S_WS + 3}], 0 offen offset:{i * 4}")
            e("s_nop 1")
        e(f"s_mov_b64 exec, s[{sMASK}:{sMASK + 1}]")
    e(f"s_branch {done}")
    e("L_fallback:")
    e(f"""
    s_barrier
    s_lshl_b32 s{sKO}, s{sKVT}, 14
    v_mov_b32 v{vKR}, v31
    v_mov_b32 v{vL}, 0xff800000
    v_mov_b32 v{vL + 2}, 0xff800000
    v_subrev_u32 v{vKR}, {SLOT}, v{vKR}
    s_mov_b32 s{sTRIP}, 0
    """)
    for s16 in range(1, 8):
        e(f"v_xor_b32 v{vKR + s16}, {32 * s16}, v{vKR}")
    e("L_fb_loop:")
    e("s_waitcnt vmcnt(0) lgkmcnt(0)")
    e("s_barrier")
    e.vq, e.lq = [], []
    serial(e, kv_dma(e, "K", 0, ("fbk", 0)))
    e.wait_all()
    e("s_barrier")
    for kb in range(2):
        for s16 in range(8):
            e(f"ds_read_b128 {Fbuf(s16)}, v{vKR + s16} offset:{kb * 49152}")
        e("s_waitcnt lgkmcnt(0)")
        for s16 in range(8):
            for qb in range(2):
                c = "0" if s16 == 0 else Sreg(0, qb)
                e(f"v_mfma_f32_32x32x16_bf16 {Sreg(0, qb)}, {Fbuf(s16)}, {Qreg(s16, qb)}, {c}")
        e.nop(16)
        for qb in range(2):
            m = vL + 2 * qb
            for i in range(0, 16, 2):
                e(f"v_max3_f32 v{m}, v{m}, {Sreg(0, qb, i)}, {Sreg(0, qb, i + 1)}")
    e(f"""
    s_add_u32 s{sTRIP}, s{sTRIP}, 1
    s_cmp_lt_u32 s{sTRIP}, 8
    s_cbranch_scc1 L_fb_loop
    v_mov_b32 v{vL + 1}, v{vL}
    v_mov_b32 v{vL + 3}, v{vL + 2}
    s_nop 1
    v_permlane32_swap_b32 v{vL}, v{vL + 1}
    v_permlane32_swap_b32 v{vL + 2}, v{vL + 3}
    s_nop 0
    v_max_f32 v{vL}, v{vL}, v{vL + 1}
    v_max_f32 v{vL + 2}, v{vL + 2}, v{vL + 3}
    """)
    for qb in range(2):
        for i in range(16):
            e(f"v_sub_f32 v{vNM + 16 * qb + i}, 0, v{vL + 2 * qb}")
    e(f"""
    s_barrier
    s_lshl_b32 s{sKO}, s{sKVT}, 14
    s_mov_b32 s{sVO}, s{sKO}
    s_lshl_b32 s{sWOO}, s{sSK}, 15
    v_mov_b32 v{vKR}, v31
    v_mov_b32 v{vVR}, v63
    s_mov_b32 s{sPASS}, 1
    """)
    for s16 in range(1, 8):
        e(f"v_xor_b32 v{vKR + s16}, {32 * s16}, v{vKR}")
    for db in range(1, 4):
        e(f"v_xor_b32 v{vVR + db}, {64 * db}, v{vVR}")
    for (which, slot) in (("K", 1), ("V", 1), ("K", 2), ("V", 2), ("K", 0)):
        serial(e, kv_dma(e, which, slot, ("fbp", 0)))
    for i in range(4):
        e(f"v_mov_b32 v{vL + i}, 0")
        e(f"v_mov_b32 v{vGA + i}, v{vKDM + i}")
        e(f"v_mov_b32 v{vGB + i}, v{vVDM}")
    for i in range(128):
        e(f"v_accvgpr_write_b32 a{128 + i}, 0")
    e("s_branch L_p2_start")
    e(f"{done}:")
    e("s_endpgm")
    sp = check_scc(e.l)
    if sp:
        print("\n".join(sp))
        raise SystemExit("scc")
    probs = check_hazards(e.l, "k1")
    if probs and not any(k.startswith("no") for k in OPT):
        print("\n".join(probs[:40]))
        raise SystemExit("hazards")
    return e.text()
```

```python
from emit import E, check_hazards, check_scc
from asmlib import KA
from k1 import WS_PART, WS_R, WS_STAT, WS_IDX, WS_TS, f2u, rng

WS_YP = 17 << 20
NSL = 224
LOG2E = 1.4426950408889634


def wave_max_u32(e, v, tmp_s):
    for sh in (1, 2, 4, 8):
        e("s_nop 1")
        e(f"v_max_u32_dpp v{v}, v{v}, v{v} row_shr:{sh} row_mask:0xf bank_mask:0xf")
    e("s_nop 1")
    e(f"v_max_u32_dpp v{v}, v{v}, v{v} row_bcast:15 row_mask:0xa bank_mask:0xf")
    e("s_nop 1")
    e(f"v_max_u32_dpp v{v}, v{v}, v{v} row_bcast:31 row_mask:0xc bank_mask:0xf")
    e("s_nop 0")
    e(f"v_readlane_b32 s{tmp_s}, v{v}, 63")


def silu_bf16(e, dst, src, t0, t1, sM):
    e(f"v_mul_f32 v{t0}, {hex(f2u(-LOG2E))}, v{src}")
    e(f"v_exp_f32 v{t0}, v{t0}")
    e("s_nop 0")
    e(f"v_add_f32 v{t0}, 1.0, v{t0}")
    e(f"v_rcp_f32 v{t0}, v{t0}")
    e("s_nop 0")
    e(f"v_mul_f32 v{t0}, v{src}, v{t0}")
    e(f"v_cvt_pk_bf16_f32 v{t0}, v{t0}, v{t0}")
    e(f"v_and_b32 v{dst}, s{sM}, v{t0}")


def ts_begin(e, on):
    if on:
        e("s_memrealtime s[64:65]")


def ts_end(e, on, srd, off, wave_sreg, lane_v=0):
    if not on:
        return
    e(f"""
    s_memrealtime s[66:67]
    s_mov_b64 exec, -1
    s_lshl_b32 s68, s2, 2
    s_add_u32 s68, s68, s{wave_sreg}
    s_lshl_b32 s68, s68, 4
    s_add_u32 s68, s68, {off}
    s_waitcnt vmcnt(0) lgkmcnt(0)
    s_memrealtime s[66:67]
    s_waitcnt lgkmcnt(0)
    v_mov_b32 v100, s64
    v_mov_b32 v101, s65
    v_mov_b32 v102, s66
    v_mov_b32 v103, s67
    v_mov_b32 v104, s68
    v_cmp_eq_u32 vcc, 0, v{lane_v}
    s_nop 1
    s_and_saveexec_b64 s[70:71], vcc
    buffer_store_dwordx4 v[100:103], v104, s[{srd}:{srd + 3}], 0 offen
    """)


def gen_km(label, ts=False):
    e = E()
    done = f"L_{label}_done"
    S_X, S_WG, S_WU, S_WD, S_WS = 4, 8, 12, 16, 20
    sW, sF0, sM = 24, 25, 26
    sWIN = 32
    e(f"""
    s_cmp_ge_u32 s2, {NSL}
    s_cbranch_scc1 {done}
    {"s_memrealtime s[64:65]" if ts else ""}
    s_load_dwordx2 s[4:5], s[0:1], {KA['x']}
    s_load_dwordx2 s[8:9], s[0:1], {KA['wg']}
    s_load_dwordx2 s[12:13], s[0:1], {KA['wu']}
    s_load_dwordx2 s[16:17], s[0:1], {KA['wd']}
    s_load_dwordx2 s[20:21], s[0:1], {KA['ws']}
    v_lshrrev_b32 v1, 6, v0
    v_mov_b32 v63, v0                    ; tid
    v_and_b32 v0, 63, v0
    v_readfirstlane_b32 s{sW}, v1
    s_lshl_b32 s{sF0}, s2, 4
    s_mov_b32 s{sM}, 0xffff0000
    s_waitcnt lgkmcnt(0)
    s_mov_b32 s6, 2097152
    s_mov_b32 s7, 0x20000
    s_mov_b32 s10, {512 * 1792 * 2}
    s_mov_b32 s11, 0x20000
    s_mov_b32 s14, {512 * 1792 * 2}
    s_mov_b32 s15, 0x20000
    s_mov_b32 s18, {1792 * 512 * 2}
    s_mov_b32 s19, 0x20000
    s_mov_b32 s22, 0x10000000
    s_mov_b32 s23, 0x20000
    """)
    e(f"""
    v_lshlrev_b32 v2, 5, v63
    v_add_u32 v2, {WS_R}, v2
    """)
    e.vm(f"buffer_load_dwordx4 v[8:11], v2, s[20:23], 0 offen", "r0")
    e.vm(f"buffer_load_dwordx4 v[12:15], v2, s[20:23], 0 offen offset:16", "r1")
    e(f"""
    s_lshl_b32 s27, s{sW}, 7
    v_add_u32 v3, s27, v0                ; row = 128 w + l
    v_mul_u32_u24 v3, 3584, v3
    v_add_u32 v3, s{sF0}, v3
    v_add_u32 v4, {64 * 3584}, v3
    s_lshl_b32 s28, s{sW}, 11            ; w*2048
    """)
    for (srd, base) in ((S_WG, 0), (S_WU, 8192)):
        for i in range(2):
            e(f"s_add_u32 m0, s28, {base + i * 1024}")
            e("s_nop 0")
            e.vm(f"buffer_load_dwordx4 v{3 + i}, s[{srd}:{srd + 3}], 0 offen lds", "wgu")
    e(f"""
    s_lshl_b32 s29, s2, 3
    s_lshl_b32 s30, s{sW}, 1
    s_add_u32 s29, s29, s30
    s_lshl_b32 s29, s29, 10              ; row*1024
    v_lshlrev_b32 v5, 4, v0
    """)
    for i in range(2):
        e(f"s_add_u32 m0, s28, {16384 + i * 1024}")
        e("s_nop 0")
        e.vm(f"buffer_load_dwordx4 v5, s[{S_WD}:{S_WD + 3}], s29 offen lds", "wd")
        e("s_add_u32 s29, s29, 1024")
    e.need(vtags=["r1"])
    e(f"v_lshlrev_b32 v6, 3, v63")
    e(f"v_sub_u32 v6, 2047, v6            ; 2047 - idx0")
    for i in range(8):
        r = 8 + i
        e(f"v_ashrrev_i32 v7, 31, v{r}")
        e(f"v_or_b32 v7, 0x80000000, v7")
        e(f"v_xor_b32 v{r}, v{r}, v7          ; monotone map")
        e(f"v_and_b32 v{r}, s{sM}, v{r}")
        e(f"v_or_b32 v{r}, v{r}, v6")
        if i < 7:
            e(f"v_subrev_u32 v6, 1, v6")
    e("v_mov_b32 v20, 0")
    for rd in range(8):
        e("v_max3_u32 v16, v8, v9, v10")
        e("v_max3_u32 v17, v11, v12, v13")
        e("v_max3_u32 v16, v16, v14, v15")
        e("v_max_u32 v16, v16, v17")
        wave_max_u32(e, 16, 31)
        e("s_nop 1")
        for i in range(8):
            e(f"v_cmp_ne_u32 vcc, s31, v{8 + i}")
            e("s_nop 1")
            e(f"v_cndmask_b32 v{8 + i}, 0, v{8 + i}, vcc")
        e(f"v_writelane_b32 v20, s31, {rd}")
    e(f"""
    s_lshl_b32 s27, s{sW}, 5
    v_lshlrev_b32 v21, 2, v0
    v_add_u32 v21, s27, v21
    v_add_u32 v21, 24576, v21
    v_cmp_gt_u32 vcc, 8, v0
    s_nop 0
    s_and_saveexec_b64 s[40:41], vcc
    ds_write_b32 v21, v20
    s_mov_b64 exec, s[40:41]
    s_waitcnt lgkmcnt(0)
    s_barrier
    v_and_b32 v21, 31, v0
    v_lshlrev_b32 v21, 2, v21
    ds_read_b32 v22, v21 offset:24576
    v_cmp_gt_u32 vcc, 32, v0
    s_waitcnt lgkmcnt(0)
    s_nop 0
    v_cndmask_b32 v22, 0, v22, vcc
    """)
    for rd in range(8):
        e("v_mov_b32 v16, v22")
        wave_max_u32(e, 16, sWIN + rd)
        e("s_nop 1")
        e(f"v_cmp_ne_u32 vcc, s{sWIN + rd}, v22")
        e("s_nop 1")
        e(f"v_cndmask_b32 v22, 0, v22, vcc")
    e("v_and_b32 v24, 7, v0")
    e(f"v_mov_b32 v23, s{sWIN}")
    for j in range(1, 8):
        e(f"v_cmp_eq_u32 vcc, {j}, v24")
        e(f"v_mov_b32 v25, s{sWIN + j}")
        e("s_nop 0")
        e("v_cndmask_b32 v23, v23, v25, vcc")
    e(f"""
    v_and_b32 v26, 0x7ff, v23
    v_sub_u32 v26, 2047, v26
    v_and_b32 v27, s{sM}, v23
    v_ashrrev_i32 v28, 31, v27
    v_not_b32 v28, v28
    v_or_b32 v28, 0x80000000, v28
    v_xor_b32 v27, v27, v28
    v_and_b32 v27, s{sM}, v27             ; r (f32 bits)
    """)
    e(f"""
    v_mul_f32 v28, {hex(f2u(-LOG2E))}, v27
    v_exp_f32 v28, v28
    s_nop 0
    v_add_f32 v28, 1.0, v28
    v_rcp_f32 v28, v28
    s_nop 0
    v_cvt_pk_bf16_f32 v28, v28, v28
    v_and_b32 v28, s{sM}, v28             ; bf16(sigmoid(r))
    v_lshlrev_b32 v29, 2, v0
    v_add_u32 v29, {WS_IDX}, v29
    s_or_b32 s27, s2, s{sW}
    s_cmp_eq_u32 s27, 0
    s_cselect_b64 s[42:43], -1, 0
    v_cmp_gt_u32 vcc, 8, v0
    s_nop 1
    s_and_b64 vcc, vcc, s[42:43]
    s_and_saveexec_b64 s[40:41], vcc
    s_cbranch_execz L_km_nopub
    buffer_store_dword v26, v29, s[20:23], 0 offen
    buffer_store_dword v28, v29, s[20:23], 0 offen offset:32
    L_km_nopub:
    s_mov_b64 exec, s[40:41]
    """)
    e.vq += ["pub", "pub"]
    e(f"""
    v_lshrrev_b32 v30, 4, v0
    v_lshlrev_b32 v30, 4, v30             ; q4*16
    v_lshl_add_u32 v30, v26, 10, v30
    s_lshl_b32 s27, s{sW}, 8              ; 4w*64 bytes
    v_lshlrev_b32 v31, 2, v26
    v_add_u32 v31, {WS_STAT}, v31
    """)
    e.vm(f"buffer_load_dword v32, v31, s[20:23], 0 offen", "st")
    for i in range(4):
        e.vm(f"buffer_load_dwordx4 {rng('v', 36 + 4 * i, 4)}, v30, s[4:7], s27 offen offset:{64 * i}", ("xg", i))
    e.need(vtags=["st"])
    e(f"""
    v_lshlrev_b32 v33, 16, v32            ; mean
    v_and_b32 v34, s{sM}, v32             ; sd
    v_rcp_f32 v34, v34
    """)
    e.need(vtags=[("xg", 3)])
    for i in range(16):
        r = 36 + i
        e(f"""
        v_lshlrev_b32 v52, 16, v{r}
        v_and_b32 v53, s{sM}, v{r}
        v_sub_f32 v52, v52, v33
        v_sub_f32 v53, v53, v33
        v_cvt_pk_bf16_f32 v52, v52, v53
        v_and_b32 v53, s{sM}, v52
        v_lshlrev_b32 v52, 16, v52
        v_mul_f32 v52, v52, v34
        v_mul_f32 v53, v53, v34
        v_cvt_pk_bf16_f32 v{r}, v52, v53
        """)
    e.need(vtags=["wd"])
    e("s_barrier")
    e(f"""
    v_bfe_u32 v54, v0, 2, 2               ; r
    v_lshrrev_b32 v55, 4, v0              ; q4
    v_lshl_add_u32 v54, v55, 3, v54       ; 8 q4 + r
    v_lshlrev_b32 v54, 4, v54
    v_and_b32 v55, 1, v0
    v_lshl_add_u32 v54, v55, 3, v54       ; + (c&1)*8
    v_bfe_u32 v55, v0, 1, 1
    v_lshl_add_u32 v54, v55, 13, v54      ; + U
    s_lshl_b32 s27, s{sW}, 11
    v_add_u32 v54, s27, v54
    """)
    for i in range(4):
        for rd in range(2):
            e.lds(f"ds_read_b64_tr_b16 {rng('v', 64 + 4 * i + 2 * rd, 2)}, v54 offset:{i * 512 + rd * 64}", ("fa", i))
    for i in range(4):
        e.need(ltags=[("fa", i)])
        c = "0" if i == 0 else "v[56:59]"
        e(f"v_mfma_f32_16x16x32_bf16 v[56:59], {rng('v', 64 + 4 * i, 4)}, {rng('v', 36 + 4 * i, 4)}, {c}")
    e.nop(8)
    e(f"""
    s_lshl_b32 s27, s{sW}, 10
    v_lshlrev_b32 v60, 4, v0
    v_add_u32 v61, s27, v60
    ds_write_b128 v61, v[56:59] offset:25600
    s_waitcnt lgkmcnt(0)
    s_barrier
    ds_read_b128 v[64:67], v60 offset:25600
    ds_read_b128 v[68:71], v60 offset:{25600 + 1024}
    ds_read_b128 v[72:75], v60 offset:{25600 + 2048}
    ds_read_b128 v[76:79], v60 offset:{25600 + 3072}
    s_waitcnt lgkmcnt(0)
    """)
    for i in range(4):
        e(f"v_add_f32 v{64 + i}, v{64 + i}, v{68 + i}")
        e(f"v_add_f32 v{72 + i}, v{72 + i}, v{76 + i}")
        e(f"v_add_f32 v{64 + i}, v{64 + i}, v{72 + i}")
    for i in range(4):
        e(f"v_cvt_pk_bf16_f32 v{64 + i}, v{64 + i}, v{64 + i}")
        e(f"v_and_b32 v{64 + i}, s{sM}, v{64 + i}")
        e(f"v_mov_b32 v{68 + i}, v{64 + i}")
    e("s_nop 0")
    for i in range(4):
        e(f"v_permlane32_swap_b32 v{64 + i}, v{68 + i}")
    for i in range(4):
        silu_bf16(e, 72 + i, 64 + i, 76, 77, sM)
        e(f"v_mul_f32 v{72 + i}, v{72 + i}, v{68 + i}")
    e(f"""
    v_cvt_pk_bf16_f32 v80, v72, v73
    v_cvt_pk_bf16_f32 v81, v74, v75
    v_cmp_gt_u32 vcc, 32, v0
    v_mov_b32 v82, 0
    v_mov_b32 v83, 0
    v_cndmask_b32 v80, 0, v80, vcc
    v_cndmask_b32 v81, 0, v81, vcc
    """)
    e(f"""
    v_bfe_u32 v54, v0, 2, 2               ; r
    v_bfe_u32 v55, v0, 4, 1               ; q4 & 1
    v_lshl_add_u32 v54, v55, 2, v54       ; row 0..7
    v_lshlrev_b32 v54, 10, v54
    v_and_b32 v55, 3, v0
    v_lshl_add_u32 v54, v55, 3, v54       ; + c*8
    s_lshl_b32 s27, s{sW}, 8              ; 8w tiles * 32 B
    v_add_u32 v54, s27, v54
    v_mov_b32 v86, 0
    v_mov_b32 v87, 0
    """)
    for t in range(8):
        e.lds(f"ds_read_b64_tr_b16 {rng('v', 88 + 4 * t, 2)}, v54 offset:{16384 + t * 32}", ("da", t))
        e(f"v_mov_b32 v{90 + 4 * t}, 0")
        e(f"v_mov_b32 v{91 + 4 * t}, 0")
    for t in range(8):
        e.need(ltags=[("da", t)])
        e(f"v_mfma_f32_16x16x32_bf16 {rng('v', 120 + 4 * t, 4)}, {rng('v', 88 + 4 * t, 4)}, v[80:83], 0")
    e(f"""
    s_lshl_b32 s27, s2, 14
    s_lshl_b32 s28, s{sW}, 9              ; 8w*16*4 bytes
    s_add_u32 s27, s27, s28
    s_add_u32 s27, s27, {WS_YP}
    v_and_b32 v60, 15, v0
    v_lshlrev_b32 v61, 11, v60
    v_lshrrev_b32 v62, 4, v0
    v_lshl_add_u32 v61, v62, 4, v61
    v_add_u32 v61, s27, v61
    v_cmp_gt_u32 vcc, 8, v60
    s_nop 4
    s_and_saveexec_b64 s[40:41], vcc
    """)
    for t in range(8):
        e(f"buffer_store_dwordx4 {rng('v', 120 + 4 * t, 4)}, v61, s[20:23], 0 offen offset:{t * 64}")
    e("s_mov_b64 exec, s[40:41]")
    ts_end(e, ts, S_WS, WS_TS + (1 << 20), sW)
    e(f"{done}:")
    e("s_endpgm")
    probs = check_hazards(e.l, "km")
    if probs:
        print("\n".join(probs[:40]))
        raise SystemExit("hazards")
    return e.text()


def final_math(e, n, vs, vx, vmean, vrsd, vupd, vout, t, sM):
    for i in range(n):
        a, b = t, t + 1
        e(f"v_cvt_pk_bf16_f32 v{vs[i]}, v{vs[i]}, v{vs[i]}")
        e(f"v_and_b32 v{vs[i]}, s{sM}, v{vs[i]}")
        e(f"v_sub_f32 v{a}, v{vx[i]}, v{vmean}")
        e(f"v_cvt_pk_bf16_f32 v{a}, v{a}, v{a}")
        e(f"v_and_b32 v{a}, s{sM}, v{a}")
        e(f"v_mul_f32 v{a}, v{a}, v{vrsd}")
        e(f"v_cvt_pk_bf16_f32 v{a}, v{a}, v{a}")
        e(f"v_and_b32 v{a}, s{sM}, v{a}")
        if vupd is not None:
            e(f"v_add_f32 v{a}, v{a}, v{vupd[i]}")
            e(f"v_cvt_pk_bf16_f32 v{a}, v{a}, v{a}")
            e(f"v_and_b32 v{a}, s{sM}, v{a}")
        silu_bf16(e, a, a, b, b, sM)
        e(f"v_mul_f32 v{a}, v{vs[i]}, v{a}")
        e(f"v_cvt_pk_bf16_f32 v{a}, v{a}, v{a}")
        e(f"v_and_b32 v{a}, s{sM}, v{a}")
        e(f"v_add_f32 v{vout[i]}, v{vx[i]}, v{a}")


def gen_k2(label, ts=False, perturb=None, dbgcopy=False):
    e = E()
    done = f"L_{label}_done"
    tail = f"L_{label}_tail"
    S_X, S_WS, S_OUT = 4, 8, 12
    sW, sM = 16, 17
    sIDX = 24
    e(f"""
    s_cmp_ge_u32 s2, 576
    s_cbranch_scc1 {done}
    {"s_memrealtime s[64:65]" if (ts or dbgcopy) else ""}
    s_load_dwordx2 s[4:5], s[0:1], {KA['x']}
    s_load_dwordx2 s[8:9], s[0:1], {KA['ws']}
    s_load_dwordx2 s[12:13], s[0:1], {KA['out']}
    v_lshrrev_b32 v1, 6, v0
    v_and_b32 v0, 63, v0
    s_mov_b32 s{sM}, 0xffff0000
    v_readfirstlane_b32 s{sW}, v1
    s_waitcnt lgkmcnt(0)
    s_add_u32 s18, s8, {WS_IDX}
    s_addc_u32 s19, s9, 0
    s_load_dwordx8 s[24:31], s[18:19], 0
    s_load_dwordx8 s[32:39], s[18:19], 32
    s_mov_b32 s6, 2097152
    s_mov_b32 s7, 0x20000
    s_mov_b32 s10, 0x10000000
    s_mov_b32 s11, 0x20000
    s_mov_b32 s14, 2097152
    s_mov_b32 s15, 0x20000
    s_cmp_lt_u32 s2, 64
    s_cbranch_scc1 L_k2_sel
    s_sub_u32 s63, s2, 64
    """)
    e(f"""
    s_lshl_b32 s20, s63, 2
    s_add_u32 s20, s20, s{sW}
    s_lshr_b32 s21, s20, 6                ; tb
    s_bfe_u32 s22, s20, {5 | (1 << 16)}   ; qb
    s_bfe_u32 s23, s20, {3 | (2 << 16)}   ; a
    s_and_b32 s20, s20, 7                 ; b
    s_lshl_b32 s40, s21, 6
    s_lshl_b32 s41, s22, 5
    s_add_u32 s40, s40, s41
    s_lshl_b32 s41, s23, 3
    s_add_u32 s40, s40, s41
    v_and_b32 v2, 7, v0
    v_add_u32 v3, s40, v2                 ; token
    v_lshrrev_b32 v4, 3, v0
    s_lshl_b32 s41, s20, 7
    v_lshlrev_b32 v4, 4, v4
    v_lshl_add_u32 v4, v3, 10, v4
    v_add_u32 v4, s41, v4
    s_lshl_b32 s41, s21, 16
    s_lshr_b32 s42, s20, 1
    s_lshl_b32 s42, s42, 14
    s_add_u32 s41, s41, s42
    s_and_b32 s42, s20, 1
    s_lshl_b32 s42, s42, 13
    s_add_u32 s41, s41, s42
    s_lshl_b32 s42, s22, 10
    s_add_u32 s41, s41, s42
    s_lshl_b32 s42, s23, 7
    s_add_u32 s41, s41, s42
    v_lshrrev_b32 v5, 4, v0
    v_lshlrev_b32 v5, 11, v5
    v_bfe_u32 v6, v0, 3, 1
    v_lshl_add_u32 v5, v6, 9, v5
    v_lshl_add_u32 v5, v2, 4, v5
    v_add_u32 v5, s41, v5
    v_lshlrev_b32 v7, 2, v3
    v_add_u32 v7, {WS_STAT}, v7
    """)
    for g in range(8):
        e(f"s_mov_b32 s{44 + g}, {g << 21}")
    for g in range(8):
        e.vm(f"buffer_load_dwordx4 {rng('v', 16 + 4 * g, 4)}, v5, s[8:11], s{44 + g} offen", ("p", g))
    e.vm(f"buffer_load_dword v8, v7, s[8:11], 0 offen", "st")
    e.vm(f"buffer_load_dwordx4 v[12:15], v4, s[4:7], 0 offen", "x")
    e(f"""
    s_mov_b32 s56, 0x00003f80            ; (1.0, 0)
    s_mov_b32 s57, 0x3f800000            ; (0, 1.0)
    s_mov_b32 s58, {hex(f2u(-LOG2E))}
    s_mov_b32 s59, {hex(f2u(-LOG2E))}
    s_mov_b32 s60, 1.0
    s_mov_b32 s61, 1.0
    """)
    e("s_waitcnt lgkmcnt(0)")
    for j in range(8):
        e(f"v_cmp_ne_u32 s[{72 + 2 * (j & 3)}:{73 + 2 * (j & 3)}], s{24 + j}, v3")
        if j == 3:
            e("s_nop 0")
            e("s_and_b64 s[52:53], s[72:73], s[74:75]")
            e("s_and_b64 s[54:55], s[76:77], s[78:79]")
            e("s_and_b64 s[52:53], s[52:53], s[54:55]")
    e("s_nop 0")
    e("s_and_b64 s[72:73], s[72:73], s[74:75]")
    e("s_and_b64 s[76:77], s[76:77], s[78:79]")
    e("s_and_b64 s[52:53], s[52:53], s[72:73]")
    e("s_and_b64 s[52:53], s[52:53], s[76:77]")
    for g in range(8):
        e.need(vtags=[("p", g)])
        for i in range(4):
            r = 16 + 4 * g + i
            c0 = "0" if g == 0 else f"v{48 + 2 * i}"
            c1 = "0" if g == 0 else f"v{49 + 2 * i}"
            e(f"v_dot2_f32_bf16 v{48 + 2 * i}, v{r}, s56, {c0}")
            e(f"v_dot2_f32_bf16 v{49 + 2 * i}, v{r}, s57, {c1}")
    e.need(vtags=["x"])
    e(f"""
    v_and_b32 v10, s{sM}, v8              ; sd
    v_rcp_f32 v10, v10
    v_lshlrev_b32 v9, 16, v8              ; mean
    v_mul_f32 v8, v9, v10
    v_sub_f32 v8, 0, v8
    """)
    for i in range(4):
        e(f"v_lshlrev_b32 v{60 + 2 * i}, 16, v{12 + i}")
        e(f"v_and_b32 v{61 + 2 * i}, s{sM}, v{12 + i}")
    P = lambda b: f"v[{b}:{b + 1}]"
    for i in range(4):
        e(f"v_pk_fma_f32 {P(16 + 2 * i)}, {P(60 + 2 * i)}, v[10:11], v[8:9] op_sel_hi:[1,0,0]")
    for i in range(4):
        e(f"v_pk_mul_f32 {P(24 + 2 * i)}, {P(16 + 2 * i)}, s[58:59]")
    for i in range(8):
        e(f"v_exp_f32 v{24 + i}, v{24 + i}")
    for i in range(4):
        e(f"v_pk_add_f32 {P(24 + 2 * i)}, {P(24 + 2 * i)}, s[60:61]")
    for i in range(8):
        e(f"v_rcp_f32 v{24 + i}, v{24 + i}")
    for i in range(4):
        e(f"v_pk_mul_f32 {P(16 + 2 * i)}, {P(16 + 2 * i)}, {P(24 + 2 * i)}")
    for i in range(4):
        e(f"v_pk_fma_f32 {P(60 + 2 * i)}, {P(48 + 2 * i)}, {P(16 + 2 * i)}, {P(60 + 2 * i)}")
    if perturb is not None:
        kind, delta = perturb
        if kind == "one":
            e(f"""
            v_cmp_eq_u32 vcc, 0, v4
            v_mov_b32 v58, {hex(f2u(delta))}
            s_nop 0
            v_cndmask_b32 v58, 0, v58, vcc
            v_add_f32 v60, v60, v58
            """)
        elif kind == "all":
            for i in range(8):
                e(f"v_add_f32 v{60 + i}, {hex(f2u(delta))}, v{60 + i}")
        elif kind == "mul":
            for i in range(8):
                e(f"v_mul_f32 v{60 + i}, {hex(f2u(delta))}, v{60 + i}")
    for i in range(4):
        e(f"v_cvt_pk_bf16_f32 v{12 + i}, v{60 + 2 * i}, v{61 + 2 * i}")
    e(f"""
    s_and_saveexec_b64 s[54:55], s[52:53]
    s_cbranch_execz {tail}
    buffer_store_dwordx4 v[12:15], v4, s[12:15], 0 offen
    s_branch {tail}
    """)
    e("L_k2_sel:")
    e.vq, e.lq = [], []
    e(f"""
    s_lshr_b32 s21, s2, 3                 ; j
    s_and_b32 s22, s2, 7                  ; cb
    """)
    e(f"""
    s_mul_i32 s42, s{sW}, {56 * 16384}
    s_lshl_b32 s43, s21, 11               ; j*2048
    s_add_u32 s42, s42, s43
    s_lshl_b32 s43, s22, 8                ; cb*64*4
    s_add_u32 s42, s42, s43
    s_add_u32 s42, s42, {WS_YP}
    v_lshrrev_b32 v2, 4, v0
    v_lshlrev_b32 v2, 14, v2
    v_and_b32 v3, 15, v0
    v_lshl_add_u32 v2, v3, 4, v2
    v_add_u32 v2, s42, v2
    s_mov_b32 s43, 0
    """)
    for i in range(14):
        e.vm(f"buffer_load_dwordx4 {rng('v', 16 + 4 * i, 4)}, v2, s[8:11], s43 offen", ("y", i))
        e(f"s_add_u32 s43, s43, {4 * 16384}")
    e("s_waitcnt lgkmcnt(0)")
    e("s_mov_b32 s40, s24")
    e("s_mov_b32 s41, s32")
    for j in range(1, 8):
        e(f"s_cmp_eq_u32 s21, {j}")
        e(f"s_cselect_b32 s40, s{24 + j}, s40")
        e(f"s_cselect_b32 s41, s{32 + j}, s41")
    e(f"""
    s_lshl_b32 s43, s22, 7
    s_lshl_b32 s44, s40, 10
    s_add_u32 s43, s43, s44
    v_lshlrev_b32 v4, 3, v3
    v_add_u32 v4, s43, v4
    s_lshl_b32 s44, s40, 2
    s_add_u32 s44, s44, {WS_STAT}
    v_mov_b32 v7, s44
    s_lshr_b32 s44, s40, 6
    s_lshl_b32 s44, s44, 16
    s_lshr_b32 s45, s22, 1
    s_lshl_b32 s45, s45, 14
    s_add_u32 s44, s44, s45
    s_and_b32 s45, s22, 1
    s_lshl_b32 s45, s45, 13
    s_add_u32 s44, s44, s45
    s_bfe_u32 s45, s40, {5 | (1 << 16)}
    s_lshl_b32 s45, s45, 10
    s_add_u32 s44, s44, s45
    s_and_b32 s45, s40, 31
    s_lshl_b32 s45, s45, 4
    s_add_u32 s44, s44, s45
    v_lshrrev_b32 v5, 2, v3
    v_lshlrev_b32 v5, 11, v5
    v_bfe_u32 v6, v3, 1, 1
    v_lshl_add_u32 v5, v6, 9, v5
    v_and_b32 v6, 1, v3
    v_lshl_add_u32 v5, v6, 3, v5
    v_add_u32 v5, s44, v5
    """)
    for g in range(8):
        e(f"s_mov_b32 s{56 + g}, {g << 21}")
    e.vm(f"buffer_load_dword v8, v7, s[8:11], 0 offen", "st")
    e.vm(f"buffer_load_dwordx2 v[12:13], v4, s[4:7], 0 offen", "x")
    for g in range(8):
        e.vm(f"buffer_load_dwordx2 {rng('v', 80 + 2 * g, 2)}, v5, s[8:11], s{56 + g} offen", ("p", g))
    for i in range(14):
        e.need(vtags=[("y", i)])
        if i > 0:
            for q in range(4):
                e(f"v_add_f32 v{16 + q}, v{16 + q}, v{16 + 4 * i + q}")
    for q in range(4):
        e(f"v_mov_b32 v{20 + q}, v{16 + q}")
    e("s_nop 0")
    for q in range(4):
        e(f"v_permlane32_swap_b32 v{16 + q}, v{20 + q}")
    for q in range(4):
        e(f"v_add_f32 v{16 + q}, v{16 + q}, v{20 + q}")
    for q in range(4):
        e(f"v_mov_b32 v{20 + q}, v{16 + q}")
    e("s_nop 0")
    for q in range(4):
        e(f"v_permlane16_swap_b32 v{16 + q}, v{20 + q}")
    for q in range(4):
        e(f"v_add_f32 v{16 + q}, v{16 + q}, v{20 + q}")
    e(f"""
    s_lshl_b32 s43, s{sW}, 10
    v_lshlrev_b32 v24, 4, v0
    v_add_u32 v25, s43, v24
    ds_write_b128 v25, v[16:19]
    s_waitcnt lgkmcnt(0)
    s_barrier
    s_cmp_lg_u32 s{sW}, 0
    s_cbranch_scc1 {tail}
    ds_read_b128 v[16:19], v24
    ds_read_b128 v[20:23], v24 offset:1024
    ds_read_b128 v[28:31], v24 offset:2048
    ds_read_b128 v[32:35], v24 offset:3072
    s_waitcnt lgkmcnt(0)
    """)
    for q in range(4):
        e(f"v_add_f32 v{16 + q}, v{16 + q}, v{20 + q}")
        e(f"v_add_f32 v{28 + q}, v{28 + q}, v{32 + q}")
        e(f"v_add_f32 v{16 + q}, v{16 + q}, v{28 + q}")
    for q in range(4):
        e(f"v_cvt_pk_bf16_f32 v{16 + q}, v{16 + q}, v{16 + q}")
        e(f"v_and_b32 v{16 + q}, s{sM}, v{16 + q}")
        e(f"v_mul_f32 v{16 + q}, s41, v{16 + q}")
        e(f"v_cvt_pk_bf16_f32 v{16 + q}, v{16 + q}, v{16 + q}")
        e(f"v_and_b32 v{16 + q}, s{sM}, v{16 + q}")
    e.need(vtags=[("p", 7)])
    for g in range(8):
        for i in range(2):
            r = 80 + 2 * g + i
            if g == 0:
                e(f"v_lshlrev_b32 v{48 + 2 * i}, 16, v{r}")
                e(f"v_and_b32 v{49 + 2 * i}, s{sM}, v{r}")
            else:
                e(f"v_lshlrev_b32 v56, 16, v{r}")
                e(f"v_and_b32 v57, s{sM}, v{r}")
                e(f"v_add_f32 v{48 + 2 * i}, v{48 + 2 * i}, v56")
                e(f"v_add_f32 v{49 + 2 * i}, v{49 + 2 * i}, v57")
    e(f"""
    v_lshlrev_b32 v9, 16, v8
    v_and_b32 v10, s{sM}, v8
    v_rcp_f32 v10, v10
    """)
    for i in range(2):
        e(f"v_lshlrev_b32 v{60 + 2 * i}, 16, v{12 + i}")
        e(f"v_and_b32 v{61 + 2 * i}, s{sM}, v{12 + i}")
    final_math(e, 4, [48 + i for i in range(4)], [60 + i for i in range(4)], 9, 10, [16 + i for i in range(4)],
               [60 + i for i in range(4)], 56, sM)
    for i in range(2):
        e(f"v_cvt_pk_bf16_f32 v{12 + i}, v{60 + 2 * i}, v{61 + 2 * i}")
    e(f"""
    v_cmp_gt_u32 vcc, 16, v0
    s_nop 0
    s_and_saveexec_b64 s[54:55], vcc
    buffer_store_dwordx2 v[12:13], v4, s[12:15], 0 offen
    """)
    e(f"{tail}:")
    if dbgcopy:
        e(f"""
        s_mov_b64 exec, -1
        s_waitcnt vmcnt(0) lgkmcnt(0)
        s_memrealtime s[66:67]
        s_load_dwordx2 s[70:71], s[0:1], {KA['dbg']}
        s_cmp_lg_u32 s{sW}, 0
        s_cbranch_scc1 {done}
        s_cmp_lg_u32 s2, 0
        s_cbranch_scc1 {done}
        v_lshlrev_b32 v100, 3, v0
        v_add_u32 v100, {WS_TS}, v100
        buffer_load_dword v101, v100, s[{S_WS}:{S_WS + 3}], 0 offen
        v_mov_b32 v102, {WS_TS}
        buffer_load_dword v103, v102, s[{S_WS}:{S_WS + 3}], 0 offen
        s_waitcnt vmcnt(0) lgkmcnt(0)
        v_sub_u32 v101, v101, v103
        v_mov_b32 v104, s64
        v_sub_u32 v104, v104, v103
        v_mov_b32 v105, s66
        v_sub_u32 v105, v105, v103
        v_cmp_eq_u32 vcc, 9, v0
        s_nop 1
        v_cndmask_b32 v101, v101, v104, vcc
        v_cmp_eq_u32 vcc, 10, v0
        s_nop 1
        v_cndmask_b32 v101, v101, v105, vcc
        v_lshlrev_b32 v100, 2, v0
        v_cmp_gt_u32 vcc, 11, v0
        s_nop 1
        s_and_saveexec_b64 s[68:69], vcc
        global_store_dword v100, v101, s[70:71]
        s_waitcnt vmcnt(0)
        """)
    ts_end(e, ts, S_WS, WS_TS + (2 << 20), sW)
    e(f"{done}:")
    e("s_endpgm")
    probs = check_hazards(e.l, "k2") + check_scc(e.l)
    if probs:
        print("\n".join(probs[:40]))
        raise SystemExit("hazards")
    return e.text()


SORT8 = [(0, 1), (2, 3), (4, 5), (6, 7), (0, 2), (1, 3), (4, 6), (5, 7), (1, 2), (5, 6), (0, 4), (3, 7),
         (1, 5), (2, 6), (1, 4), (3, 6), (2, 4), (3, 5), (3, 4)]


def _check_sort8():
    import itertools
    for bits in itertools.product([0, 1], repeat=8):
        a = list(bits)
        for i, j in SORT8:
            if a[i] < a[j]:
                a[i], a[j] = a[j], a[i]
        assert a == sorted(a, reverse=True)


_check_sort8()


def keys_from_r(e, K, vidx, sM, tmp):
    for i in range(8):
        r = K[i]
        e(f"v_ashrrev_i32 v{tmp}, 31, v{r}")
        e(f"v_or_b32 v{tmp}, 0x80000000, v{tmp}")
        e(f"v_xor_b32 v{r}, v{r}, v{tmp}")
        e(f"v_and_or_b32 v{r}, v{r}, s{sM}, v{vidx}")
        if i < 7:
            e(f"v_subrev_u32 v{vidx}, 1, v{vidx}")


def wave_top8(e, K, spare, vres, vt, stmp, smask):
    K = list(K)
    free = spare
    for (i, j) in SORT8:
        e(f"v_max_u32 v{free}, v{K[i]}, v{K[j]}")
        e(f"v_min_u32 v{K[j]}, v{K[i]}, v{K[j]}")
        K[i], free = free, K[i]
    e(f"v_mov_b32 v{vres}, 0")
    for rd in range(8):
        e(f"v_mov_b32 v{vt}, v{K[0]}")
        wave_max_u32(e, vt, stmp)
        e("s_nop 1")
        e(f"v_writelane_b32 v{vres}, s{stmp}, {rd}")
        if rd < 7:
            e(f"v_cmp_eq_u32 s[{smask}:{smask + 1}], s{stmp}, v{K[0]}")
            e("s_nop 1")
            for q in range(7 - rd):
                e(f"v_cndmask_b32 v{K[q]}, v{K[q]}, v{K[q + 1]}, s[{smask}:{smask + 1}]")


def moe_side(e, side, R):
    from k1 import RB, WSTR, SLOT
    sW, sRING, sM = R["W"], R["RING"], R["M"]
    S_X, S_WS = R["X"], R["WS"]
    sA, sB = 46, 47
    MX = 5 * 4096
    mk = [60, 62, 64, 66]
    K = [88 + i for i in range(8)]
    spare, vres, vt, vidx, tmp = 96, 97, 98, 99, 100
    A = side.add
    free = spare
    for (i, j) in SORT8:
        A(f"v_max_u32 v{free}, v{K[i]}, v{K[j]}")
        A(f"v_min_u32 v{K[j]}, v{K[i]}, v{K[j]}")
        K[i], free = free, K[i]
    A(f"v_mov_b32 v{vres}, 0")
    for rd in range(8):
        A(f"v_mov_b32 v{vt}, v{K[0]}")
        for sh in (1, 2, 4, 8):
            A(f"v_max_u32_dpp v{vt}, v{vt}, v{vt} row_shr:{sh} row_mask:0xf bank_mask:0xf", gap=2)
        A(f"v_max_u32_dpp v{vt}, v{vt}, v{vt} row_bcast:15 row_mask:0xa bank_mask:0xf", gap=2)
        A(f"v_max_u32_dpp v{vt}, v{vt}, v{vt} row_bcast:31 row_mask:0xc bank_mask:0xf", gap=2)
        A(f"v_readlane_b32 s{sA}, v{vt}, 63", gap=1)
        if rd < 7:
            A(f"v_cmp_eq_u32 s[{mk[0]}:{mk[0] + 1}], s{sA}, v{K[0]}", gap=2)
            A(f"v_writelane_b32 v{vres}, s{sA}, {rd}")
            for q in range(7 - rd):
                A(f"v_cndmask_b32 v{K[q]}, v{K[q]}, v{K[q + 1]}, s[{mk[0]}:{mk[0] + 1}]", gap=(1 if q == 0 else 0))
        else:
            A(f"v_writelane_b32 v{vres}, s{sA}, {rd}", gap=2)
    A(f"v_writelane_b32 v{vres}, s{R['RDY']}, 8")
    A(f"v_lshlrev_b32 v{tmp}, 2, v0")
    A(f"v_add_u32 v{tmp}, s{sRING}, v{tmp}")
    A(lambda: e.lds(f"ds_write_b32 v{tmp}, v{vres} offset:{MX}", ("mw", 0)))
    A(f"v_lshrrev_b32 v126, 3, v0")
    A(f"v_and_b32 v126, 3, v126")
    A(f"v_mul_u32_u24 v126, {WSTR}, v126")
    A(f"v_and_b32 v127, 7, v0")
    A(f"v_lshl_add_u32 v126, v127, 2, v126")
    A(f"v_add_u32 v126, {RB + MX}, v126")

    def bar():
        e.need(ltags=[("mw", 0)])
        e("s_barrier")
    A(bar)
    A(lambda: e.lds(f"ds_read_b32 v120, v126", ("mo", 0)))
    for w_ in range(4):
        A(f"v_mov_b32 v127, {RB + MX + w_ * WSTR}")
        A(lambda w_=w_: e.lds(f"ds_read_b128 v[{88 + 8 * w_}:{91 + 8 * w_}], v127", ("mc", w_)))
        A(lambda w_=w_: e.lds(f"ds_read_b128 v[{92 + 8 * w_}:{95 + 8 * w_}], v127 offset:16", ("mc", w_)))
        A(lambda w_=w_: e.lds(f"ds_read_b32 v{121 + w_}, v127 offset:32", ("mf", w_)))
    A(f"v_mov_b32 v125, 0")
    A(lambda: e.need(ltags=[("mf", 3)]))
    A(f"v_and_b32 v121, v121, v122")
    A(f"v_and_b32 v123, v123, v124")
    A(f"v_and_b32 v121, v121, v123")
    for j0 in range(0, 32, 4):
        for q in range(4):
            A(f"v_cmp_gt_u32 s[{mk[q]}:{mk[q] + 1}], v{88 + j0 + q}, v120")
        for q in range(4):
            A(f"v_addc_co_u32 v125, vcc, 0, v125, s[{mk[q]}:{mk[q] + 1}]", gap=(0 if q else 0))
    A(f"v_readfirstlane_b32 s{R['RDY']}, v121")
    A(f"v_lshlrev_b32 v126, 2, v125")
    A(f"v_add_u32 v126, s{sRING}, v126")
    A(lambda: e.lds(f"ds_write_b32 v126, v120 offset:{MX + 64}", ("mp", 0)))
    A(f"v_and_b32 v127, 7, v0")
    A(f"v_lshlrev_b32 v127, 2, v127")
    A(f"v_add_u32 v127, s{sRING}, v127")
    A(lambda: e.lds(f"ds_read_b32 v124, v127 offset:{MX + 64}", ("mq", 0)))
    A(f"v_lshrrev_b32 v122, 4, v0")
    A(f"v_lshlrev_b32 v122, 4, v122")
    A(f"s_lshl_b32 s{sB}, s{sW}, 8")
    A(lambda: e.need(ltags=[("mq", 0)]))
    A(f"v_and_b32 v123, 0x7ff, v124")
    A(f"v_sub_u32 v123, 2047, v123")
    A(f"v_accvgpr_write_b32 a225, v124")
    A(f"v_lshl_add_u32 v122, v123, 10, v122")
    A(f"v_lshlrev_b32 v123, 2, v123")
    A(f"v_add_u32 v123, {WS_STAT}, v123")
    A(lambda: e.vm(f"buffer_load_dword a224, v123, s[{S_WS}:{S_WS + 3}], 0 offen sc1", ("g", 0)), cond=(27, 0))
    for i in range(4):
        A(lambda i=i: e.vm(f"buffer_load_dwordx4 a[{208 + 4 * i}:{211 + 4 * i}], v122, s[{S_X}:{S_X + 3}], s{sB} offen offset:{64 * i}",
                           ("g", 1 + i)))


def moe_tail(e, R):
    from k1 import RB, WSTR, SLOT
    T = R["T"]
    sW, sRING, sM = R["W"], R["RING"], R["M"]
    S_X, S_WS = R["X"], R["WS"]
    sRO, sSO = T[0], T[1]
    sA, sB, sC_, sD = T[2], T[3], T[4], T[5]
    mk = [T[6], T[8], T[10], T[12]]
    e(f"s_mov_b32 s{sRO}, {WS_R}")
    e(f"s_mov_b32 s{sSO}, {WS_STAT}")
    K = [8 + i for i in range(8)]
    e(f"""
    s_cmp_eq_u32 s{R['RDY']}, 0
    s_cbranch_scc1 L_moe_slow
    """)
    e.need(vtags=[("g", 4)])
    for i in range(16):
        e(f"v_accvgpr_read_b32 v{36 + i}, a{208 + i}")
    e("v_accvgpr_read_b32 v32, a224")
    e("v_accvgpr_read_b32 v23, a225")
    e(f"""
    v_and_b32 v26, 0x7ff, v23
    v_sub_u32 v26, 2047, v26
    s_branch L_moe_gathered
    """)
    e("L_moe_keys:")
    st = R.get("stamp", lambda n: None)
    wave_top8(e, K, 16, 20, 17, sA, mk[0])
    st("top8")
    e(f"""
    v_mov_b32 v21, s{R['RDY']}
    v_cmp_eq_u32 vcc, 8, v0
    v_lshlrev_b32 v22, 2, v0
    v_add_u32 v22, s{sRING}, v22
    v_cndmask_b32 v20, v20, v21, vcc
    v_cmp_gt_u32 vcc, 9, v0
    s_nop 1
    s_and_saveexec_b64 s[{mk[0]}:{mk[0] + 1}], vcc
    ds_write_b32 v22, v20
    s_mov_b64 exec, s[{mk[0]}:{mk[0] + 1}]
    s_waitcnt lgkmcnt(0)
    s_barrier
    """)
    e(f"""
    v_lshrrev_b32 v21, 3, v0
    v_and_b32 v21, 3, v21
    v_mul_u32_u24 v21, {WSTR}, v21
    v_and_b32 v22, 7, v0
    v_lshl_add_u32 v21, v22, 2, v21
    v_mov_b32 v23, {RB}
    v_add_u32 v21, v23, v21
    ds_read_b32 v24, v21
    """)
    for w_ in range(4):
        e(f"v_add_u32 v{100 + w_}, {w_ * WSTR}, v23")
    for w_ in range(4):
        e(f"ds_read_b128 v[{32 + 8 * w_}:{35 + 8 * w_}], v{100 + w_}")
        e(f"ds_read_b128 v[{36 + 8 * w_}:{39 + 8 * w_}], v{100 + w_} offset:16")
        e(f"ds_read_b32 v{104 + w_}, v{100 + w_} offset:32")
    e(f"""
    s_waitcnt lgkmcnt(0)
    v_and_b32 v104, v104, v105
    v_and_b32 v106, v106, v107
    v_and_b32 v104, v104, v106
    v_mov_b32 v25, 0
    v_readfirstlane_b32 s{sA}, v104
    s_nop 0
    s_cmp_eq_u32 s{sA}, 0
    s_cbranch_scc1 L_moe_slow
    """)
    for j0 in range(0, 32, 4):
        for q in range(4):
            e(f"v_cmp_gt_u32 s[{mk[q]}:{mk[q] + 1}], v{32 + j0 + q}, v24")
        for q in range(4):
            e(f"v_addc_co_u32 v25, vcc, 0, v25, s[{mk[q]}:{mk[q] + 1}]")
    e(f"""
    v_cmp_gt_u32 s[{mk[0]}:{mk[0] + 1}], 8, v25
    v_cmp_gt_u32 vcc, 32, v0
    v_lshlrev_b32 v26, 2, v25
    v_add_u32 v26, s{sRING}, v26
    s_and_b64 vcc, vcc, s[{mk[0]}:{mk[0] + 1}]
    s_and_saveexec_b64 s[{mk[1]}:{mk[1] + 1}], vcc
    ds_write_b32 v26, v24 offset:64
    s_mov_b64 exec, s[{mk[1]}:{mk[1] + 1}]
    v_and_b32 v22, 7, v0
    v_lshlrev_b32 v22, 2, v22
    v_add_u32 v22, s{sRING}, v22
    ds_read_b32 v23, v22 offset:64
    s_waitcnt lgkmcnt(0)
    v_and_b32 v26, 0x7ff, v23
    v_sub_u32 v26, 2047, v26
    """)
    st("merge")
    e(f"""
    v_lshrrev_b32 v30, 4, v0
    v_lshlrev_b32 v30, 4, v30             ; q4*16
    v_lshl_add_u32 v30, v26, 10, v30
    s_lshl_b32 s{sA}, s{sW}, 8            ; 4w*64 bytes
    v_lshlrev_b32 v31, 2, v26
    v_add_u32 v31, s{sSO}, v31
    """)
    e.vq, e.lq = ["old"], []
    e.vm(f"buffer_load_dword v32, v31, s[{S_WS}:{S_WS + 3}], 0 offen sc1", "st")
    for i in range(4):
        e.vm(f"buffer_load_dwordx4 {rng('v', 36 + 4 * i, 4)}, v30, s[{S_X}:{S_X + 3}], s{sA} offen offset:{64 * i}",
             ("xg", i))
    e("s_waitcnt vmcnt(0)")
    e("L_moe_gathered:")
    e.vq = []
    e(f"""
    v_and_b32 v27, s{sM}, v23
    v_ashrrev_i32 v28, 31, v27
    v_not_b32 v28, v28
    v_or_b32 v28, 0x80000000, v28
    v_xor_b32 v27, v27, v28
    v_and_b32 v27, s{sM}, v27             ; r (f32 bits)
    v_mul_f32 v28, {hex(f2u(-LOG2E))}, v27
    v_exp_f32 v28, v28
    s_nop 0
    v_add_f32 v28, 1.0, v28
    v_rcp_f32 v28, v28
    s_nop 0
    v_cvt_pk_bf16_f32 v28, v28, v28
    v_and_b32 v28, s{sM}, v28             ; bf16(sigmoid(r))
    v_lshlrev_b32 v29, 2, v0
    v_add_u32 v29, {WS_IDX}, v29
    v_mov_b32 v33, 0x7ffffff0
    s_or_b32 s{sA}, s{R['SL']}, s{sW}
    s_cmp_eq_u32 s{sA}, 0
    s_cselect_b64 s[{mk[0]}:{mk[0] + 1}], -1, 0
    v_cmp_gt_u32 vcc, 8, v0
    s_nop 1
    s_and_b64 vcc, vcc, s[{mk[0]}:{mk[0] + 1}]
    v_cndmask_b32 v29, v33, v29, vcc
    """)
    e.vm(f"buffer_store_dword v26, v29, s[{S_WS}:{S_WS + 3}], 0 offen", "pub")
    e.vm(f"buffer_store_dword v28, v29, s[{S_WS}:{S_WS + 3}], 0 offen offset:32", "pub")
    e(f"""
    v_and_b32 v34, s{sM}, v32             ; sd
    v_rcp_f32 v34, v34
    v_lshlrev_b32 v30, 16, v32            ; mean
    v_sub_f32 v30, 0, v30
    """)
    st("gather")
    for i in range(0, 16, 2):
        for j in range(2):
            r, t = 36 + i + j, 52 + 2 * j
            e(f"v_lshlrev_b32 v{t}, 16, v{r}")
            e(f"v_and_b32 v{t + 1}, s{sM}, v{r}")
        for j in range(2):
            t = 52 + 2 * j
            e(f"v_pk_add_f32 v[{t}:{t + 1}], v[{t}:{t + 1}], v[30:31] op_sel_hi:[1,0]")
        for j in range(2):
            r, t = 36 + i + j, 52 + 2 * j
            e(f"v_cvt_pk_bf16_f32 v{r}, v{t}, v{t + 1}")
        for j in range(2):
            r, t = 36 + i + j, 52 + 2 * j
            e(f"v_lshlrev_b32 v{t}, 16, v{r}")
            e(f"v_and_b32 v{t + 1}, s{sM}, v{r}")
        for j in range(2):
            t = 52 + 2 * j
            e(f"v_pk_mul_f32 v[{t}:{t + 1}], v[{t}:{t + 1}], v[34:35] op_sel_hi:[1,0]")
        for j in range(2):
            r, t = 36 + i + j, 52 + 2 * j
            e(f"v_cvt_pk_bf16_f32 v{r}, v{t}, v{t + 1}")
    st("ln")
    e("v_accvgpr_write_b32 a128, 0")
    e("v_accvgpr_write_b32 a129, 0")
    for i in range(4):
        c = "0" if i == 0 else "v[56:59]"
        e(f"v_mfma_f32_16x16x32_bf16 v[56:59], {rng('a', 96 + 4 * i, 4)}, {rng('v', 36 + 4 * i, 4)}, {c}")
    e.nop(8)
    e(f"""
    v_lshlrev_b32 v60, 4, v0
    v_add_u32 v61, s{sRING}, v60
    ds_write_b128 v61, v[56:59] offset:2048
    s_waitcnt lgkmcnt(0)
    s_barrier
    v_add_u32 v60, {RB + 2048}, v60
    v_add_u32 v61, {WSTR}, v60
    v_add_u32 v62, {2 * WSTR}, v60
    v_add_u32 v63, {3 * WSTR}, v60
    ds_read_b128 v[64:67], v60
    ds_read_b128 v[68:71], v61
    ds_read_b128 v[72:75], v62
    ds_read_b128 v[76:79], v63
    s_waitcnt lgkmcnt(0)
    """)
    e.lq = []
    for i in range(4):
        e(f"v_add_f32 v{64 + i}, v{64 + i}, v{68 + i}")
        e(f"v_add_f32 v{72 + i}, v{72 + i}, v{76 + i}")
        e(f"v_add_f32 v{64 + i}, v{64 + i}, v{72 + i}")
    for i in range(4):
        e(f"v_cvt_pk_bf16_f32 v{64 + i}, v{64 + i}, v{64 + i}")
        e(f"v_and_b32 v{64 + i}, s{sM}, v{64 + i}")
        e(f"v_mov_b32 v{68 + i}, v{64 + i}")
    e("s_nop 0")
    for i in range(4):
        e(f"v_permlane32_swap_b32 v{64 + i}, v{68 + i}")
    for i in range(4):
        silu_bf16(e, 72 + i, 64 + i, 76, 77, sM)
        e(f"v_mul_f32 v{72 + i}, v{72 + i}, v{68 + i}")
    e(f"""
    v_cvt_pk_bf16_f32 v80, v72, v73
    v_cvt_pk_bf16_f32 v81, v74, v75
    v_cmp_gt_u32 vcc, 32, v0
    v_mov_b32 v82, 0
    v_mov_b32 v83, 0
    v_cndmask_b32 v80, 0, v80, vcc
    v_cndmask_b32 v81, 0, v81, vcc
    s_nop 1
    """)
    for t in range(8):
        e(f"v_mfma_f32_16x16x32_bf16 {rng('v', 120 + 4 * t, 4)}, {rng('a', 112 + 2 * t, 4)}, v[80:83], 0")
    e(f"""
    s_lshl_b32 s{sA}, s{R['SL']}, 14
    s_lshl_b32 s{sB}, s{sW}, 9            ; 8w*16*4 bytes
    s_add_u32 s{sA}, s{sA}, s{sB}
    s_add_u32 s{sA}, s{sA}, {WS_YP}
    v_and_b32 v60, 15, v0
    v_lshlrev_b32 v61, 11, v60
    v_lshrrev_b32 v62, 4, v0
    v_lshl_add_u32 v61, v62, 4, v61
    v_add_u32 v61, s{sA}, v61
    v_mov_b32 v63, 0x1ffffff0
    v_cmp_gt_u32 vcc, 8, v60
    s_nop 1
    v_cndmask_b32 v61, v63, v61, vcc
    s_nop 1
    """)
    for t in range(8):
        e(f"buffer_store_dwordx4 {rng('v', 120 + 4 * t, 4)}, v61, s[{S_WS}:{S_WS + 3}], 0 offen offset:{t * 64}")
    e(f"s_branch {R['done']}")

    e("L_moe_slow:")
    dbg = R["DBG"]
    e(f"""
    s_barrier
    s_mov_b32 s{sB}, {R.get('spin', 4000)}
    v_mov_b32 v21, 0
    L_moe_spin:
    global_load_dword v22, v21, s[{dbg}:{dbg + 1}] sc1
    s_waitcnt vmcnt(0)
    v_readfirstlane_b32 s{sA}, v22
    s_nop 0
    s_cmp_ge_u32 s{sA}, 32
    s_cbranch_scc1 L_moe_spin_ok
    s_sleep 8
    s_sub_u32 s{sB}, s{sB}, 1
    s_cmp_lg_u32 s{sB}, 0
    s_cbranch_scc1 L_moe_spin
    L_moe_spin_ok:
    s_cmp_ge_u32 s{sA}, 32
    s_cselect_b32 s{sA}, 1, 0
    v_mov_b32 v22, s{sA}
    v_mov_b32 v23, s{sRING}
    ds_write_b32 v23, v22 offset:128
    s_waitcnt lgkmcnt(0)
    s_barrier
    v_mov_b32 v23, {RB}
    ds_read_b32 v32, v23 offset:128
    ds_read_b32 v33, v23 offset:{WSTR + 128}
    ds_read_b32 v34, v23 offset:{2 * WSTR + 128}
    v_add_u32 v23, {3 * WSTR}, v23
    ds_read_b32 v35, v23 offset:128
    s_waitcnt lgkmcnt(0)
    v_and_b32 v32, v32, v33
    v_and_b32 v34, v34, v35
    v_and_b32 v32, v32, v34
    s_nop 0
    v_readfirstlane_b32 s{sA}, v32
    s_nop 0
    s_cmp_eq_u32 s{sA}, 1
    s_cbranch_scc1 L_moe_reload
    """)
    e(f"""
    s_lshl_b32 s{sRO}, s{R['SL']}, 14
    s_add_u32 s{sRO}, s{sRO}, {WS_FB}
    s_add_u32 s{sSO}, s{sRO}, 8192
    v_lshlrev_b32 v21, 4, v0
    buffer_load_dwordx4 v[40:43], v21, s[{R['WR']}:{R['WR'] + 3}], 0 offen
    s_lshl_b32 s{sB}, s{sW}, 9
    s_add_u32 s{sC_}, s{sB}, 512
    s_waitcnt vmcnt(0)
    """)
    for i in range(4):
        e(f"v_lshlrev_b32 v{44 + 2 * i}, 16, v{40 + i}")
        e(f"v_and_b32 v{45 + 2 * i}, s{sM}, v{40 + i}")
    e(f"""
    L_moe_fb:
    s_lshl_b32 s{sA}, s{sB}, 10
    buffer_load_dwordx4 v[40:43], v21, s[{S_X}:{S_X + 3}], s{sA} offen
    s_waitcnt vmcnt(0)
    """)
    for i in range(4):
        e(f"v_lshlrev_b32 v{56 + 2 * i}, 16, v{40 + i}")
        e(f"v_and_b32 v{57 + 2 * i}, s{sM}, v{40 + i}")

    def wave_sum(v, t):
        for x in (1, 2, 4, 8):
            e(f"s_nop 1")
            e(f"v_add_f32_dpp v{v}, v{v}, v{v} row_ror:{x} row_mask:0xf bank_mask:0xf")
        e(f"v_mov_b32 v{t}, v{v}")
        e("s_nop 1")
        e(f"v_permlane16_swap_b32 v{v}, v{t}")
        e("s_nop 0")
        e(f"v_add_f32 v{v}, v{v}, v{t}")
        e(f"v_mov_b32 v{t}, v{v}")
        e("s_nop 1")
        e(f"v_permlane32_swap_b32 v{v}, v{t}")
        e("s_nop 0")
        e(f"v_add_f32 v{v}, v{v}, v{t}")
    e("v_add_f32 v64, v56, v57")
    for i in range(2, 8):
        e(f"v_add_f32 v64, v64, v{56 + i}")
    wave_sum(64, 65)
    e(f"v_mul_f32 v64, {hex(f2u(1.0 / 512))}, v64        ; mean")
    e("v_sub_f32 v66, v56, v64")
    e("v_mul_f32 v67, v66, v66")
    for i in range(1, 8):
        e(f"v_sub_f32 v66, v{56 + i}, v64")
        e(f"v_fmac_f32 v67, v66, v66")
    wave_sum(67, 65)
    e(f"""
    v_mul_f32 v67, {hex(f2u(1.0 / 512))}, v67
    v_cvt_pk_bf16_f32 v68, v64, v67
    v_and_b32 v69, s{sM}, v68
    v_add_f32 v69, {hex(f2u(1e-5))}, v69
    v_cvt_pk_bf16_f32 v69, v69, v69
    v_and_b32 v69, s{sM}, v69
    v_sqrt_f32 v69, v69
    v_lshlrev_b32 v64, 16, v68
    v_cvt_pk_bf16_f32 v69, v69, v69
    v_and_b32 v69, s{sM}, v69             ; sd
    v_rcp_f32 v70, v69
    v_and_b32 v68, 0xffff, v68
    v_or_b32 v68, v68, v69
    v_mov_b32 v71, 0
    """)
    for i in range(8):
        e(f"""
        v_sub_f32 v66, v{56 + i}, v64
        v_mul_f32 v66, v66, v70
        v_cvt_pk_bf16_f32 v66, v66, v66
        v_and_b32 v66, s{sM}, v66
        v_fmac_f32 v71, v66, v{44 + i}
        """)
    wave_sum(71, 65)
    e(f"""
    v_cvt_pk_bf16_f32 v71, v71, v71
    v_and_b32 v71, s{sM}, v71
    v_ashrrev_i32 v72, 31, v71
    v_or_b32 v72, 0x80000000, v72
    v_xor_b32 v71, v71, v72
    s_sub_u32 s{sA}, 2047, s{sB}
    v_mov_b32 v72, s{sA}
    v_and_or_b32 v71, v71, s{sM}, v72
    s_lshl_b32 s{sA}, s{sB}, 2
    v_mov_b32 v72, s{sA}
    v_add_u32 v73, s{sRO}, v72
    v_add_u32 v74, s{sSO}, v72
    v_cmp_eq_u32 vcc, 0, v0
    s_nop 1
    s_and_saveexec_b64 s[{mk[0]}:{mk[0] + 1}], vcc
    buffer_store_dword v71, v73, s[{S_WS}:{S_WS + 3}], 0 offen sc1
    buffer_store_dword v68, v74, s[{S_WS}:{S_WS + 3}], 0 offen sc1
    s_mov_b64 exec, s[{mk[0]}:{mk[0] + 1}]
    s_add_u32 s{sB}, s{sB}, 1
    s_cmp_lt_u32 s{sB}, s{sC_}
    s_cbranch_scc1 L_moe_fb
    s_waitcnt vmcnt(0)
    s_barrier
    L_moe_reload:
    s_lshl_b32 s{sA}, s{sW}, 11
    v_lshlrev_b32 v21, 5, v0
    v_add_u32 v21, s{sA}, v21
    v_add_u32 v21, s{sRO}, v21
    buffer_load_dwordx4 v[8:11], v21, s[{S_WS}:{S_WS + 3}], 0 offen sc1
    buffer_load_dwordx4 v[12:15], v21, s[{S_WS}:{S_WS + 3}], 0 offen offset:16 sc1
    s_mov_b32 s{R['RDY']}, 1
    s_waitcnt vmcnt(0)
    s_barrier
    s_branch L_moe_keys
    """)


WS_FB = 24 << 20
```

```python
import sys
sys.path.insert(0, "dev")
from asmlib import header, kstart, kdesc, NAME
import k1, moe

HDR = """; Kernarg layout (104 bytes, pointers only): x, k_cache, v_cache, wq, wo, B_x (unused), w_r, w_gate, w_up, w_down, out, debug, ws
"""

DEF = dict(map="B", dma_from=2, moestart=8)


def build(path, opt=None, stamps=False, with_moe=False, perturb=None):
    o = dict(DEF)
    o.update(opt or {})
    opt = o
    launches = [("mainfused_kernel", 256, 256, 163840)]
    if with_moe:
        launches.append(("moeffn_kernel", 224, 256, 32768))
    launches.append((NAME + "_kernel", 576, 256, 4096))
    s = HDR + header(launches)
    lab = "mainfused_kernel"
    s += kstart(lab) + k1.gen_k1(lab, stamps=stamps, opt=opt) + kdesc(lab, 512, accum=256)
    if with_moe:
        lab = "moeffn_kernel"
        s += kstart(lab) + moe.gen_km(lab, ts=bool(stamps)) + kdesc(lab, 160, sgpr=80)
    lab = NAME + "_kernel"
    s += kstart(lab) + moe.gen_k2(lab, ts=bool(stamps) and not opt.get('dbgcopy'), perturb=perturb, dbgcopy=opt.get('dbgcopy')) + kdesc(lab, 112, sgpr=80)
    open(path, "w").write(s)

if __name__ == "__main__":
    build("full.s")
    build("full_C.s", opt=dict(map="C", gskew=1))
```

```python
from emit import E, check_hazards, check_scc
from asmlib import KA

RB = 65536
WSTR = 24576
SLOT = 8192
C_SCALE = 1.4426950408889634 * (128 ** -0.5)

WS_PART = 0
WS_R = 16 << 20
WS_STAT = WS_R + 8192
WS_H = WS_R + 65536
WS_IDX = WS_H + 32768
WS_FLG = WS_R + 32768
WS_TS = 32 << 20


def f2u(x):
    import struct
    return struct.unpack("<I", struct.pack("<f", x))[0]


S_X, S_WQ, S_K, S_V, S_WO, S_WS, S_WR = 4, 8, 12, 16, 20, 24, 28
sG, sTB, sW, sSK = 32, 33, 34, 35
sWQO, sWOO, sKO, sVO = 36, 37, 38, 39
sRING = 40
sCNT = 41
sT0, sT1, sT2, sT3 = 42, 43, 44, 45
sKSL, sVSL = 46, 47
sKD, sVD = 48, 49
sTRIP = 50
sGA = 52
sGB = 56
sGAO, sGBO = 60, 61
sGAM, sGBM = 62, 63
sMASK = 64
sPASS = 70
sKVB = 71
sKVT = 51
sDBG = 72
sSL = 98
sRDY = 99
sFP = 92
sHFD = 70
sTS = 74

vLANE = 0
vWQ = 1
vWO = 5
vKDM = 9
vVDM = 13
vAA = 14
vAB = 22
vBR = 30
vKR = 32
vVR = 40
vGA = 44
vGB = 48
vL = 52
vOW = 56
vPS = 57
vT = 58
vQ = 64
vS = 128
vP = 192
vNM = 224
vACC = 128

aA = 0
aB = 96
aF = 0
aO = 128


def rng(f, b, n):
    return f"{f}[{b}:{b + n - 1}]" if n > 1 else f"{f}{b}"


def Bset(setidx, tq):
    if setidx < 2:
        return rng("a", aB + setidx * 16 + tq * 4, 4)
    return rng("v", 64 + tq * 4, 4)


def Aset(setidx, dt):
    return rng("a", aA + setidx * 32 + dt * 4, 4)


def Ahalf(setidx, dt, rd):
    return rng("a", aA + setidx * 32 + dt * 4 + 2 * rd, 2)


def acc16(dt, tq):
    return rng("v", vACC + (dt * 4 + tq) * 4, 4)


OPT = {}
STAMP = [None]
GSTAMP = [None]
P3_STATIC = [False]
NS3 = 5


class Slots:
    def __init__(self, n):
        self.n = n
        self.f = [[] for _ in range(n + 1)]

    def at(self, i, fn):
        self.f[min(max(i, 0), self.n)].append(fn)


class Side:
    def __init__(self):
        self.q = []
        self.last = None

    def add(self, x, gap=0, cond=None):
        self.q.append((x, gap, cond))

    def states_since(self, e):
        if self.last is None:
            return 99
        n = 0
        for l in e.l[self.last:]:
            t = l.strip()
            if t.endswith(":") or not t:
                continue
            n += int(t.split()[1], 0) + 1 if t.startswith("s_nop") else 1
        return n

    def emit(self, e, budget, pos=None, flush=False):
        while self.q and (budget > 0 or flush):
            x, gap, cond = self.q[0]
            if cond is not None and pos is not None and pos < cond and not flush:
                return
            have = self.states_since(e)
            if have < gap:
                if not flush:
                    return
                e.nop(gap - have)
            self.q.pop(0)
            if callable(x):
                x()
            else:
                e(x)
            self.last = len(e.l)
            budget -= 1


def gemm_step(e, p, phase, opts):
    j = p % 3
    jn = (p + 1) % 3
    va = vAA if phase == 1 else vAB
    rdoff = 1024 if phase == 1 else 2048
    sl = Slots(32)
    if opts.get("next", True):
        reads = []
        for dt in range(8):
            for rd in range(2):
                reads.append((dt, rd))
        spread = OPT.get("aspread", 16)
        for n, (dt, rd) in enumerate(reads):
            def f(dt=dt, rd=rd):
                if OPT.get("noaread"):
                    return
                e.lds(f"ds_read_b64_tr_b16 {Ahalf(jn, dt, rd)}, v{va + dt} offset:{jn * SLOT + rd * rdoff}",
                      ("A", p + 1, dt))
            sl.at(n * spread // 16, f)
        for tq in range(4):
            def f(tq=tq):
                e.lds(f"ds_read_b128 {Bset(jn, tq)}, v{vBR} offset:{opts['boff_next'] + tq * 1024}", ("B", p + 1, tq))
            sl.at(spread + tq, f)
    for pos, fn in opts.get("fill", []):
        sl.at(pos, fn)
    if opts.get("next", True):
        e.need(vtags=opts.get("vneed"))
    for n in range(32):
        dt, tq = n // 4, n % 4
        need = [("A", p, dt), ("B", p, tq)] + ([("B", p, 3), ("A", p, 7)] if n == 0 else [])
        e.need(ltags=need)
        c = "0" if opts.get("first") else acc16(dt, tq)
        e(f"v_mfma_f32_16x16x32_bf16 {acc16(dt, tq)}, {Aset(j, dt)}, {Bset(j, tq)}, {c}")
        for fn in sl.f[n]:
            fn()
        side = opts.get("side")
        if side is not None:
            side.emit(e, opts.get("cap", 2) - len(sl.f[n]), pos=(p, n))
    for fn in sl.f[32]:
        fn()


def wdma(e, phase, i, tag):
    if OPT.get("nodma") and tag[1] > 3:
        e.vq.append(tag)
        return
    if phase == 1:
        e.vm(f"buffer_load_dwordx4 v{vWQ + i}, s[{S_WQ}:{S_WQ + 3}], s{sWQO} offen offset:{i * 1024} lds", tag)
    else:
        e.vm(f"buffer_load_dwordx4 v{vWO + i}, s[{S_WO}:{S_WO + 3}], s{sWOO} offen offset:{i * 1024} lds", tag)


def wdma_adv(e, phase):
    if phase == 1:
        e(f"s_add_u32 s{sWQO}, s{sWQO}, {16 * 8192}")
        e(f"s_and_b32 s{sWQO}, s{sWQO}, {512 * 8192 - 1}")
    else:
        e(f"s_add_u32 s{sT0}, s{sWOO}, {16 * 1024}")
        e(f"s_and_b32 s{sT0}, s{sT0}, {512 * 1024 - 1}")
        e(f"s_and_b32 s{sWOO}, s{sWOO}, {~(512 * 1024 - 1) & 0xffffffff}")
        e(f"s_or_b32 s{sWOO}, s{sWOO}, s{sT0}")


def half_dma(e, phase, slot, half, tag):
    def m0():
        e(f"s_add_u32 m0, s{sRING}, {slot * SLOT + half * 4096}")
    out = [m0]
    for i in range(4):
        out.append(lambda i=i: wdma(e, phase, i, tag))
    out.append(lambda: wdma_adv(e, phase))
    return out


def serial(e, fl):
    fl[0]()
    e("s_nop 0")
    for fn in fl[1:]:
        fn()


def place(fl, start, stride):
    res = [(start, fl[0])]
    for i in range(4):
        res.append((start + 1 + i * stride, fl[1 + i]))
    res.append((start + 1 + 3 * stride, fl[5]))
    return res


def kv_dma(e, which, tile_slot, tag):
    out = []
    if which == "K":
        out.append(lambda: e(f"s_add_u32 m0, s{sRING}, {tile_slot * SLOT}"))
        for i in range(4):
            out.append(lambda i=i: e.vm(
                f"buffer_load_dwordx4 v{vKDM + i}, s[{S_K}:{S_K + 3}], s{sKO} offen offset:{i * 1024} lds", tag))
        out.append(lambda: kv_adv(e, sKO))
    else:
        out.append(lambda: e(f"s_add_u32 m0, s{sRING}, {tile_slot * SLOT + 4096}"))
        for i in range(4):
            out.append(lambda i=i: e.vm(
                f"buffer_load_dwordx4 v{vVDM}, s[{S_V}:{S_V + 3}], s{sVO} offen offset:{i * 1024} lds", tag))
        out.append(lambda: kv_adv(e, sVO))
    return out


def kv_adv(e, sreg):
    e(f"s_add_u32 s{sreg}, s{sreg}, 16384")
    e(f"s_and_b32 s{sreg}, s{sreg}, {8 * 16384 - 1}")


def gemm_pre(e, phase):
    va = vAA if phase == 1 else vAB
    rdoff = 1024 if phase == 1 else 2048
    e.need(vtags=[("W", 0, 0), ("W", 0, 1)])
    for tq in range(4):
        e.lds(f"ds_read_b128 {Bset(0, tq)}, v{vBR} offset:{tq * 1024}", ("B", 0, tq))
    for dt in range(8):
        for rd in range(2):
            e.lds(f"ds_read_b64_tr_b16 {Ahalf(0, dt, rd)}, v{va + dt} offset:{rd * rdoff}", ("A", 0, dt))


def gemm_main(e, phase, tail_fill, side=None):
    e.need(ltags=[("A", 0, 7)])
    serial(e, half_dma(e, phase, 0, 0, ("W", 3, 0)))

    def step_opts(p, boff_next):
        fill = []
        sp = OPT.get("aspread", 16)
        if p + 3 <= 15:
            fl = half_dma(e, phase, p % 3, 1, ("W", p + 3, 1))
            fill += [(0, fl[0])] + [(2 + 4 * i, fl[1 + i]) for i in range(4)] + [(sp + 4, fl[5])]
        if p + 4 <= 15:
            fl = half_dma(e, phase, (p + 1) % 3, 0, ("W", p + 4, 0))

            def guard(p=p):
                e.need(ltags=[("A", p + 1, 7)])
            fill += [(sp + 5, guard), (sp + 5, fl[0])] + [(min(sp + 6 + 3 * i, 31), fl[1 + i]) for i in range(4)] + [(32, fl[5])]
        return dict(first=(p == 0), next=(p < 15), boff_next=boff_next, fill=fill,
                    vneed=[("W", p + 1, 0), ("W", p + 1, 1)])

    if GSTAMP[0]:
        GSTAMP[0]("p1_pre")
    o = step_opts(0, 1 * 4096)
    gemm_step(e, 0, phase, o)
    if GSTAMP[0]:
        GSTAMP[0]("p1_s0")
    lab = f"L_g{phase}_loop"
    e(f"s_mov_b32 s{sCNT}, 3")
    e(f"v_add_u32 v{vBR}, {1 * 4096}, v{vBR}")
    lq0, vq0 = list(e.lq), list(e.vq)
    e(f"{lab}:")
    n0 = len(e.l)
    for u in range(3):
        p = 1 + u
        o = step_opts(p, (u + 1) * 4096)
        if u == 2:
            o["fill"] = o["fill"] + [(24, lambda: e(f"v_add_u32 v{vBR}, {3 * 4096}, v{vBR}")),
                                     (32, lambda: e(f"s_sub_u32 s{sCNT}, s{sCNT}, 1")),
                                     (32, lambda: e(f"s_cmp_lg_u32 s{sCNT}, 0"))]
        gemm_step(e, p, phase, o)
    e(f"s_cbranch_scc1 {lab}")
    body = e.l[n0:]
    probs = check_hazards(body + body, f"gemm{phase} loop x2")
    assert not probs or any(k.startswith("no") for k in OPT), "\n".join(probs[:10])
    sh = lambda q, d: [(t[0], t[1] + d) + tuple(t[2:]) if t else t for t in q]
    assert sh(lq0, 3) == e.lq or OPT.get('noaread'), (lq0, e.lq)
    assert sh(vq0, 3) == e.vq, (vq0, e.vq)
    e.lq, e.vq = sh(e.lq, 6), sh(e.vq, 6)
    for p in range(10, 16):
        if GSTAMP[0] and p in (10, 13):
            GSTAMP[0](f"p1_s{p}")
        o = step_opts(p, (p - 10 + 1) * 4096)
        o["fill"] = o["fill"] + tail_fill(p)
        o["side"] = side
        o["cap"] = OPT.get("sidecap", 2)
        gemm_step(e, p, phase, o)


def acc3(hf, nt, tq):
    return rng("v", vACC + 64 * hf + (nt * 4 + tq) * 4, 4)


def A3(st, nt, rd=None):
    b = st * 16 + nt * 4
    return rng("a", b, 4) if rd is None else rng("a", b + 2 * rd, 2)


def B3(st, tq):
    return rng("a", 48 + st * 16 + tq * 4, 4)


def p3_dma(e, u):
    out = [lambda: e(f"s_add_u32 m0, s{sRING}, {(u % NS3) * 4096}")]
    for i in range(4):
        out.append(lambda i=i: e.vm(
            f"buffer_load_dwordx4 v{vWO + i}, s[{S_WO}:{S_WO + 3}], s{sWOO} offen offset:{i * 1024} lds", ("W", u)))

    def adv():
        p3_adv(e)
        if u == 9 and not OPT.get("p3unroll", 1):
            e(f"s_add_u32 s{sWOO}, s{sWOO}, s{sHFD}")
    out.append(adv)
    return out


def p3_adv(e):
    e(f"s_add_u32 s{sWOO}, s{sWOO}, {32 * 1024}")
    e(f"s_and_b32 s{sWOO}, s{sWOO}, {512 * 1024 - 1}")


def p3_reads(e, u, boff):
    st = u % 3
    r = []
    for nt in range(4):
        for rd in range(2):
            r.append(lambda nt=nt, rd=rd: e.lds(
                f"ds_read_b64_tr_b16 {A3(st, nt, rd)}, v{vAB + nt} offset:{(u % NS3) * 4096 + rd * 1024}", ("A", u, nt)))
    for tq in range(4):
        r.append(lambda tq=tq: e.lds(f"ds_read_b128 {B3(st, tq)}, v{vBR} offset:{boff + tq * 1024}", ("B", u, tq)))
    return r


def p3_step(e, u, boff_next, fill=(), side=None, cap=2):
    hf, st = u >> 4, u % 3
    sl = Slots(16)
    nxt = u < 31
    if nxt:
        rd = p3_reads(e, u + 1, boff_next)
        for n in range(8):
            sl.at(n, rd[n])
        for tq in range(4):
            sl.at(8 + tq, rd[8 + tq])
    if u + NS3 <= 31:
        fl = p3_dma(e, u + NS3)
        sl.at(0, fl[0])
        for i, pos in enumerate((2, 6, 12, 14)):
            sl.at(pos, fl[1 + i])
        sl.at(15, fl[5])
    for pos, fn in fill:
        sl.at(pos, fn)
    if nxt:
        e.need(vtags=[("W", u + 1)])
    for n in range(16):
        nt, tq = n // 4, n % 4
        e.need(ltags=[("A", u, nt), ("B", u, tq)] + ([("B", u, 3), ("A", u, 3)] if n == 0 else []))
        c = "0" if (u & 15) == 0 else acc3(hf, nt, tq)
        e(f"v_mfma_f32_16x16x32_bf16 {acc3(hf, nt, tq)}, {A3(st, nt)}, {B3(st, tq)}, {c}")
        for fn in sl.f[n]:
            fn()
        if side is not None:
            left = cap - len(sl.f[n])
            for sd in side:
                n0 = len(sd.q)
                sd.emit(e, left, pos=(u, n))
                left -= n0 - len(sd.q)
    for fn in sl.f[16]:
        fn()


def p3_epilogue_items(e, hf, regs):
    items = []
    k = 0
    for nt in range(4):
        for qb in range(2):
            R = regs[k % len(regs)]
            k += 1
            a0 = vACC + 64 * hf + (nt * 4 + 2 * qb) * 4
            a1 = a0 + 4
            items.append((f"v_cvt_pk_bf16_f32 v{R}, v{a0}, v{a0 + 1}", 2))
            items.append((f"v_cvt_pk_bf16_f32 v{R + 1}, v{a0 + 2}, v{a0 + 3}", 0))
            items.append((f"v_cvt_pk_bf16_f32 v{R + 2}, v{a1}, v{a1 + 1}", 0))
            items.append((f"v_cvt_pk_bf16_f32 v{R + 3}, v{a1 + 2}, v{a1 + 3}", 0))
            items.append((f"v_permlane16_swap_b32 v{R}, v{R + 2}", 2))
            items.append((f"v_permlane16_swap_b32 v{R + 1}, v{R + 3}", 1))
            off = (nt & 1) * 2048 + qb * 1024
            so = {(0, 0): "0", (0, 1): "s48", (1, 0): "s49", (1, 1): "s50"}[(hf, nt >> 1)]
            items.append((lambda R=R, off=off, nt=nt, qb=qb, so=so: e.vm(
                f"buffer_store_dwordx4 {rng('v', R, 4)}, v{vPS}, s[{S_WS}:{S_WS + 3}], {so} offen offset:{off} "
                + OPT.get("pstore", "sc1"), ("ps", hf, nt, qb)), 0))
    return items


def p3_loop_half0(e):
    p3_step(e, 0, 4096)
    e(f"s_mov_b32 s{sCNT}, 2")
    e(f"s_mov_b32 s{sHFD}, 0")
    e(f"v_add_u32 v{vBR}, {1 * 4096}, v{vBR}")
    lq0, vq0 = list(e.lq), list(e.vq)
    e("L_p3_loop:")
    n0 = len(e.l)
    for k in range(6):
        u = 1 + k
        fill = []
        if k == 5:
            fill = [(13, lambda: e(f"v_add_u32 v{vBR}, {6 * 4096}, v{vBR}")),
                    (15, lambda: e(f"s_mov_b32 s{sHFD}, 512")),
                    (15, lambda: e(f"s_sub_u32 s{sCNT}, s{sCNT}, 1")),
                    (15, lambda: e(f"s_cmp_lg_u32 s{sCNT}, 0"))]
        p3_step(e, u, (k + 1) * 4096, fill=fill)
    e("s_cbranch_scc1 L_p3_loop")
    body = e.l[n0:]
    probs = check_hazards(body + body, "p3 loop x2")
    assert not probs, "\n".join(probs[:10])
    sh = lambda q, d: [(t[0], t[1] + d) + tuple(t[2:]) if t else t for t in q]
    assert sh(lq0, 6) == e.lq, (lq0, e.lq)
    assert sh(vq0, 6) == e.vq, (vq0, e.vq)
    e.lq, e.vq = sh(e.lq, 6), sh(e.vq, 6)
    for u in range(13, 16):
        boff = (u - 13 + 1) * 4096 if u < 15 else -13 * 4096
        if u == 15:
            fill = [(0, lambda: e(f"v_subrev_u32 v{vBR}, {13 * 4096}, v{vBR}"))]
            p3_step(e, u, 0, fill=fill)
        else:
            p3_step(e, u, boff)


def p3_phase(e, tail_fill, side0, side1):
    if STAMP[0]:
        STAMP[0]("p3_start")
    if OPT.get("p3unroll", 1):
        cap = OPT.get("sidecap", 2)
        for u in range(16):
            fill = []
            if u == 15 - NS3:
                fill = [(16, lambda: e(f"s_add_u32 s{sWOO}, s{sWOO}, 512"))]
            P3_STATIC[0] = True
            p3_step(e, u, ((u + 1) & 15) * 4096, fill=fill, side=side0, cap=cap)
    else:
        p3_loop_half0(e)
    for u in range(16, 32):
        p = u & 15
        if STAMP[0] and u in (16, 24):
            STAMP[0](f"p3_u{u}")
        p3_step(e, u, ((p + 1) & 15) * 4096, fill=tail_fill(u), side=side0, cap=OPT.get("sidecap", 2))


def Sreg(par, qb, i=None):
    b = vS + par * 32 + qb * 16
    return rng("v", b, 16) if i is None else f"v{b + i}"


def Preg(par, qb, t):
    return rng("v", vP + par * 16 + qb * 8 + t * 4, 4)


def Qreg(s16, qb):
    return rng("v", vQ + (s16 * 2 + qb) * 4, 4)


def Oreg(db, qb):
    return rng("a", aO + (db * 2 + qb) * 16, 16)


def Fbuf(n, half=None):
    b = aF + (n % 8) * 4
    return rng("a", b, 4) if half is None else rng("a", b + 2 * half, 2)


def k_read(e, b, s16):
    if OPT.get("nokvread"):
        return
    e.lds(f"ds_read_b128 {Fbuf(s16)}, v{vKR + s16} offset:{(b & 1) * 49152}", ("K", b, s16))


def v_read(e, b, f, order=None):
    t, db = (order or VORD_T)[f]
    if OPT.get("nokvread"):
        return
    for rd in range(2):
        e.lds(f"ds_read_b64_tr_b16 {Fbuf(8 + f, rd)}, v{vVR + db} offset:{t * WSTR + rd * 2048}", ("V", b, f))


def sm_ops(e, b):
    par = b & 1
    ops = []
    S = lambda x: Sreg(par, x // 16, x % 16)
    exp = lambda x: (lambda: e(f"v_exp_f32 {S(x)}, {S(x)}") if not OPT.get("noexp") else None)
    add = lambda x: (lambda: e(f"v_add_f32 v{vL + (x // 16) * 2 + (x & 1)}, v{vL + (x // 16) * 2 + (x & 1)}, {S(x)}"))
    cvt = lambda k: (lambda: e(f"v_cvt_pk_bf16_f32 v{vP + par * 16 + k}, {S(2 * k)}, {S(2 * k + 1)}"))
    if OPT.get("nosm"):
        return []
    for k in range(16):
        ops.append((2 * k, exp(2 * k)))
        if k > 0:
            ops.append((2 * k, add(2 * k - 2)))
            ops.append((2 * k, cvt(k - 1)))
        ops.append((2 * k + 1, exp(2 * k + 1)))
        if k > 0:
            ops.append((2 * k + 1, add(2 * k - 1)))
    ops.append((32, add(30)))
    ops.append((32, add(31)))
    ops.append((32, cvt(15)))
    return ops


def sm_queue(e, b):
    par = b & 1
    S = lambda x: Sreg(par, x // 16, x % 16)
    exp = lambda x: (8, lambda: e(f"v_exp_f32 {S(x)}, {S(x)}"))
    add = lambda x: (4, lambda: e(f"v_add_f32 v{vL + (x // 16) * 2 + (x & 1)}, v{vL + (x // 16) * 2 + (x & 1)}, {S(x)}"))
    cvt = lambda k: (4, lambda: e(f"v_cvt_pk_bf16_f32 v{vP + par * 16 + k}, {S(2 * k)}, {S(2 * k + 1)}"))
    q = []
    for k in range(32):
        q.append(exp(k))
        if k >= 1:
            q.append(add(k - 1))
        if k >= 2 and k % 2 == 0:
            q.append(cvt(k // 2 - 1))
    q.append(add(31))
    q.append(cvt(15))
    return q


VORD_T = [(f // 4, f % 4) for f in range(8)]
VORD_D = [(f % 2, f // 2) for f in range(8)]


def p2_iter(e, b, qk=True, sm=True, pv=True, look="K", fill=(), vpre=False, smstart=0, vord=VORD_T, vord_next=VORD_T,
            side=None, cap=5):
    mf = []
    if qk:
        par = (b + 1) & 1
        for s16 in range(8):
            for qb in range(2):
                c = rng("v", vNM + qb * 16, 16) if s16 == 0 else Sreg(par, qb)
                mf.append((f"v_mfma_f32_32x32x16_bf16 {Sreg(par, qb)}, {Fbuf(s16)}, {Qreg(s16, qb)}, {c}",
                           ("K", b + 1, s16), s16))
    if pv:
        par = (b - 1) & 1
        for f in range(8):
            t, db = vord[f]
            for qb in range(2):
                mf.append((f"v_mfma_f32_32x32x16_bf16 {Oreg(db, qb)}, {Fbuf(8 + f)}, {Preg(par, qb, t)}, {Oreg(db, qb)}",
                           ("V", b - 1, f), 8 + f))
    n = len(mf)
    sl = Slots(n)
    if qk and pv:
        for f in range(4, 8):
            sl.at(2 * (f - 4) + 1, lambda f=f: k_read(e, b + 1, f))
        for f in range(8):
            fn = lambda f=f: v_read(e, b - 1, f)
            fn.ninstr = 2
            sl.at(2 * (f + 4) + 1, fn)
        if look == "K":
            for f in range(4):
                sl.at(24 + 2 * f + 1, lambda f=f: k_read(e, b + 2, f))
    elif qk:
        for f in range(4, 8):
            sl.at(2 * (f - 4) + 1, lambda f=f: k_read(e, b + 1, f))
        if look == "K":
            for f in range(4):
                sl.at(8 + 2 * f + 1, lambda f=f: k_read(e, b + 2, f))
    else:
        if vpre:
            for f in range(4):
                v_read(e, b - 1, f, vord)
        for f in range(4, 8):
            sl.at(2 * (f - 4) + 1, lambda f=f: v_read(e, b - 1, f, vord))
        if look == "V":
            for f in range(4):
                sl.at(8 + 2 * f + 1, lambda f=f: v_read(e, b, f, vord_next))
    if OPT.get("greedy", 1) and n == 32 and sm:
        B = OPT.get("budget", 24)
        cost = [4 * sum(2 if False else 1 for _ in sl.f[i]) for i in range(n)]
        for i in range(n):
            cost[i] = 0
            for fn in sl.f[i]:
                cost[i] += 4 * getattr(fn, "ninstr", 1)
            if (i + 1) % 4 == 0:
                cost[i] += 4
        q = sm_queue(e, b)
        tot = sum(c for c, _ in q)
        ex = sorted(enumerate(fill), key=lambda t: (t[1][0], t[0]))
        ex = [(pos, fn) for _, (pos, fn) in ex]
        done = 0
        for i in range(n):
            left = B - cost[i]
            need = tot * (i + 1) / n
            while q and done < need and q[0][0] <= left + (4 if done + 12 < need else 0):
                c, fn = q.pop(0)
                sl.at(i, fn)
                left -= c
                done += c
            while ex and ex[0][0] <= i and (left >= 4 * getattr(ex[0][1], "ninstr", 1) or ex[0][0] + 3 <= i):
                pos, fn = ex.pop(0)
                sl.at(i, fn)
                left -= 4 * getattr(fn, "ninstr", 1)
            while q and q[0][0] <= left and done < need + 16:
                c, fn = q.pop(0)
                sl.at(i, fn)
                left -= c
                done += c
        for c, fn in q:
            sl.at(n, fn)
        for pos, fn in ex:
            sl.at(n, fn)
    else:
        if sm:
            ops = sm_ops(e, b)
            for (s, fn) in ops:
                sl.at(smstart + s * (n - smstart) // 32 if s < 32 else n, fn)
        for (s, fn) in fill:
            sl.at(s, fn)
    if vpre and sm:
        pass
    for i, (txt, tag, fi) in enumerate(mf):
        if i % 4 == 0:
            tags = [tag]
            if i + 2 < n:
                tags.append(mf[i + 2][1])
            e.need(ltags=tags)
        e(txt)
        for fn in sl.f[i]:
            fn()
        if side is not None:
            side.emit(e, cap - len(sl.f[i]), pos=(b, i))
    for fn in sl.f[n]:
        fn()


def gen_k1(label, stamps=False, debug=None, opt=None):
    OPT.clear()
    OPT.update(opt or {})
    STAMP[0] = None
    GSTAMP[0] = None
    e = E()
    nst = [0]

    def stamp(name, wait=True):
        if not stamps:
            return
        if OPT.get("only") and name not in OPT["only"]:
            return
        k = nst[0]
        assert k < 9
        e(f"{stamps} s[{sTS + 2 * k}:{sTS + 2 * k + 1}]   ; stamp {k} {name}")
        if wait:
            e.wait_all(vm=False)
        nst[0] += 1
    done = f"L_{label}_done"
    e(f"""
    s_cmp_ge_u32 s2, 256
    s_cbranch_scc1 {done}
    s_load_dwordx2 s[4:5], s[0:1], 0
    s_load_dwordx2 s[12:13], s[0:1], 8
    s_load_dwordx2 s[16:17], s[0:1], 16
    s_load_dwordx2 s[8:9], s[0:1], 24
    s_load_dwordx2 s[20:21], s[0:1], {KA['wo']}
    s_load_dwordx2 s[28:29], s[0:1], {KA['wr']}
    s_load_dwordx2 s[24:25], s[0:1], {KA['ws']}
    s_load_dwordx2 s[{sDBG}:{sDBG + 1}], s[0:1], {KA['dbg']}
    s_load_dwordx4 s[{sFP}:{sFP + 3}], s[0:1], {KA['wg']}
    s_load_dwordx2 s[{sFP + 4}:{sFP + 5}], s[0:1], {KA['wd']}
    """)
    stamp("start", wait=False)
    e(f"""
    v_lshrrev_b32 v{vT}, 6, v0
    v_and_b32 v{vLANE}, 63, v0
    v_readfirstlane_b32 s{sW}, v{vT}
    """)
    mp = OPT.get("map", "A")
    if mp == "A":
        e(f"""
        s_and_b32 s{sG}, s2, 7
        s_lshr_b32 s{sTB}, s2, 3
        s_and_b32 s{sSK}, s{sTB}, 15
        s_and_b32 s{sKVT}, s{sTB}, 7
        """)
    elif mp == "B":
        e(f"""
        s_and_b32 s{sT0}, s2, 3
        s_lshl_b32 s{sT0}, s{sT0}, 1
        s_bfe_u32 s{sT1}, s2, {3 | (1 << 16)}
        s_or_b32 s{sG}, s{sT0}, s{sT1}
        s_bfe_u32 s{sT0}, s2, {2 | (1 << 16)}
        s_lshl_b32 s{sT0}, s{sT0}, 4
        s_lshr_b32 s{sT1}, s2, 4
        s_or_b32 s{sTB}, s{sT0}, s{sT1}
        s_and_b32 s{sSK}, s{sTB}, 7
        s_lshl_b32 s{sSK}, s{sSK}, 1
        s_and_b32 s{sKVT}, s{sTB}, 7
        """)
    elif mp == "C":
        e(f"""
        s_and_b32 s{sT0}, s2, 1
        s_lshl_b32 s{sT0}, s{sT0}, 2
        s_bfe_u32 s{sT1}, s2, {3 | (2 << 16)}
        s_or_b32 s{sG}, s{sT0}, s{sT1}
        s_bfe_u32 s{sT0}, s2, {1 | (2 << 16)}
        s_lshl_b32 s{sT0}, s{sT0}, 3
        s_lshr_b32 s{sT1}, s2, 5
        s_or_b32 s{sTB}, s{sT0}, s{sT1}
        s_and_b32 s{sSK}, s{sTB}, 7
        s_lshl_b32 s{sSK}, s{sSK}, 1
        s_and_b32 s{sKVT}, s{sTB}, 7
        """)
        if OPT.get("s4"):
            e(f"""
            s_and_b32 s{sSK}, s{sTB}, 3
            s_lshl_b32 s{sSK}, s{sSK}, 2
            """)
        if OPT.get("gskew"):
            e(f"""
            s_and_b32 s{sT0}, s{sG}, 3
            s_lshl_b32 s{sT0}, s{sT0}, 2
            s_add_u32 s{sSK}, s{sSK}, s{sT0}
            s_and_b32 s{sSK}, s{sSK}, 15
            """)
    L = vLANE
    t0, t1, t2, t3, t4, t5 = vT, vT + 1, vT + 2, vT + 3, vT + 4, vT + 5
    XV0, XV1 = 56, 57
    e(f"""
    v_and_b32 v{t2}, 15, v{L}
    v_lshrrev_b32 v{t3}, 4, v{L}
    s_lshl_b32 s{sT0}, s{sTB}, 6
    s_lshl_b32 s{sT1}, s{sW}, 4
    s_add_u32 s{sT0}, s{sT0}, s{sT1}
    v_lshrrev_b32 v{t0}, 3, v{L}
    v_add_u32 v{t0}, s{sT0}, v{t0}
    v_and_b32 v{t1}, 7, v{L}
    v_xor_b32 v{t1}, v{t1}, v{t3}
    v_lshlrev_b32 v{t1}, 4, v{t1}
    v_lshl_add_u32 v{XV0}, v{t0}, 10, v{t1}
    v_xor_b32 v{XV1}, 64, v{XV0}              ; chunk ^ 4
    v_add_u32 v{XV1}, 8192, v{XV1}            ; +8 tokens
    s_mul_i32 s{sRING}, s{sW}, {WSTR}
    s_add_u32 s{sRING}, s{sRING}, {RB}
    s_lshl_b32 s{sT3}, s{sW}, 10              ; w*1024
    s_lshl_b32 s101, s{sSK}, 6
    s_waitcnt lgkmcnt(0)
    """)
    for (dst, size) in [(S_X, 2097152), (S_K, 4194304), (S_V, 4194304), (S_WQ, 4194304),
                        (S_WO, 4194304), (S_WR, 1024), (S_WS, 0x10000000)]:
        e(f"""
        s_mov_b32 s{dst + 2}, {size}
        s_mov_b32 s{dst + 3}, 0x20000
        """)
    stamp("kernarg", wait=True)
    def xdma(u):
        for hb in range(2):
            e(f"s_add_u32 m0, s{sT3}, {(2 * u + hb) * 4096}")
            e("s_nop 0")
            e.vm(f"buffer_load_dwordx4 v{XV0 + hb}, s[{S_X}:{S_X + 3}], s101 offen lds", ("x", u, hb))
        e(f"s_add_u32 s101, s101, 128")
        e(f"s_and_b32 s101, s101, 1023")

    def wrdma():
        e(f"""
        s_lshl_b32 s{sT0}, s{sSK}, 2
        v_add_u32 v58, s{sT0}, v{L}
        v_and_b32 v58, 63, v58
        v_lshlrev_b32 v58, 4, v58
        s_add_u32 m0, s{sRING}, {2 * SLOT + 4096}
        s_nop 0
        """)
        e.vm(f"buffer_load_dwordx4 v58, s[{S_WR}:{S_WR + 3}], 0 offen lds", ("wr", 0))
    NU0 = OPT.get("nu0", 6)
    for u in range(NU0):
        xdma(u)
    e(f"""
    s_lshl_b32 s{sT0}, s{sG}, 2
    s_add_u32 s{sT0}, s{sT0}, s{sW}
    s_lshl_b32 s{sT0}, s{sT0}, 8            ; head*256
    v_lshlrev_b32 v{t4}, 1, v{t3}
    v_xor_b32 v{t4}, v{t4}, v{t2}
    v_lshlrev_b32 v{t5}, 13, v{t3}           ; rr*8192
    v_add_u32 v{t5}, s{sT0}, v{t5}
    v_lshl_add_u32 v{vWQ}, v{t4}, 4, v{t5}
    v_add_u32 v{vWQ + 1}, {32768 - 1024}, v{vWQ}
    v_xor_b32 v{t4}, 8, v{t4}
    v_lshl_add_u32 v{vWQ + 2}, v{t4}, 4, v{t5}
    v_add_u32 v{vWQ + 2}, {2 * (32768 - 1024)}, v{vWQ + 2}
    v_add_u32 v{vWQ + 3}, {32768 - 1024}, v{vWQ + 2}
    s_lshl_b32 s{sWQO}, s{sSK}, 18
    """)
    wq_pre = []
    for p in range(3):
        for h in range(2):
            fl = half_dma(e, 1, p, h, ("W", p, h))
            for i in range(4):
                grp = []
                if i == 0:
                    grp += [fl[0], lambda: e("s_nop 0")]
                grp.append(fl[1 + i])
                if i == 3:
                    grp.append(fl[5])
                wq_pre.append(grp)
    if OPT.get("early_dma", 0):
        for grp in wq_pre[:OPT["early_dma"]]:
            for fn in grp:
                fn()
        wq_pre = wq_pre[OPT["early_dma"]:]


    r_, c_ = 60, 61
    A0, A1, A2, A3, A4, A5 = 128, 129, 130, 131, 132, 133
    e(f"""
    v_bfe_u32 v{A0}, v{L}, 2, 2              ; r
    v_and_b32 v{A1}, 3, v{L}                 ; c
    v_lshrrev_b32 v{A2}, 4, v{L}             ; q4
    v_and_b32 v{A3}, 1, v{A2}
    v_lshl_or_b32 v{A3}, v{A3}, 2, v{A0}     ; phi
    v_lshlrev_b32 v{A3}, 1, v{A3}            ; f
    v_lshrrev_b32 v{A4}, 1, v{A1}
    v_xor_b32 v{A3}, v{A3}, v{A4}            ; chunk
    v_lshlrev_b32 v{A3}, 4, v{A3}
    v_and_b32 v{A4}, 1, v{A1}
    v_lshl_or_b32 v{A3}, v{A4}, 3, v{A3}     ; + (c&1)*8
    v_lshl_add_u32 v{A4}, v{A2}, 3, v{A0}    ; row
    v_lshl_add_u32 v{A3}, v{A4}, 8, v{A3}
    v_add_u32 v{vAA}, s{sRING}, v{A3}
    """)
    for dt in range(1, 8):
        e(f"v_xor_b32 v{vAA + dt}, {32 * dt}, v{vAA}")
    e(f"""
    v_and_b32 v{A3}, 1, v{A2}
    v_lshl_or_b32 v{A4}, v{A3}, 2, v{A0}     ; 4(q4&1) + r
    v_lshrrev_b32 v{A3}, 1, v{A4}            ; psi
    v_lshrrev_b32 v{A5}, 1, v{A2}
    v_lshl_or_b32 v{A4}, v{A5}, 4, v{A4}     ; row
    v_lshlrev_b32 v{A3}, 1, v{A3}
    v_lshrrev_b32 v{A5}, 1, v{A1}
    v_xor_b32 v{A3}, v{A3}, v{A5}            ; chunk
    v_lshlrev_b32 v{A3}, 4, v{A3}
    v_and_b32 v{A5}, 1, v{A1}
    v_lshl_or_b32 v{A3}, v{A5}, 3, v{A3}
    v_lshl_add_u32 v{A3}, v{A4}, 7, v{A3}
    v_add_u32 v{vAB}, s{sRING}, v{A3}
    """)
    for dt in range(1, 4):
        e(f"v_xor_b32 v{vAB + dt}, {32 * dt}, v{vAB}")
    e(f"""
    v_lshlrev_b32 v{vBR}, 4, v{L}            ; B read: X + l*16
    v_lshrrev_b32 v{A3}, 3, v{L}             ; row8
    v_lshrrev_b32 v{A4}, 1, v{A3}
    v_and_b32 v{A4}, 3, v{A4}
    v_lshlrev_b32 v{A4}, 1, v{A4}
    v_and_b32 v{A5}, 7, v{L}
    v_xor_b32 v{A4}, v{A4}, v{A5}
    v_lshlrev_b32 v{A4}, 4, v{A4}
    v_lshl_add_u32 v{A4}, v{A3}, 10, v{A4}
    s_lshl_b32 s{sT0}, s{sW}, 7
    v_add_u32 v{vWO}, s{sT0}, v{A4}
    v_add_u32 v{vWO + 1}, 7168, v{vWO}
    v_add_u32 v{vWO + 2}, {2 * 7168}, v{vWO}
    v_add_u32 v{vWO + 3}, {3 * 7168}, v{vWO}
    v_and_b32 v{A3}, 15, v{L}
    s_lshl_b32 s{sWOO}, s{sSK}, 15
    v_xor_b32 v{A4}, v{A2}, v{A3}            ; (l&15)^rr
    v_lshlrev_b32 v{A5}, 8, v{A2}
    v_lshl_add_u32 v{vKDM}, v{A4}, 4, v{A5}
    v_xor_b32 v{vKDM + 1}, 64, v{vKDM}
    v_xor_b32 v{vKDM + 2}, 128, v{vKDM}
    v_xor_b32 v{vKDM + 3}, 192, v{vKDM}
    v_lshlrev_b32 v{A4}, 2, v{A2}
    v_xor_b32 v{A4}, v{A4}, v{A3}
    v_lshl_add_u32 v{vVDM}, v{A4}, 4, v{A5}
    v_lshrrev_b32 v{A4}, 5, v{L}             ; h
    v_xor_b32 v{A4}, v{A4}, v{A3}
    v_lshlrev_b32 v{A4}, 4, v{A4}
    v_lshl_add_u32 v{A4}, v{A3}, 8, v{A4}
    v_and_b32 v{A5}, 1, v{A2}
    v_mul_u32_u24 v{A5}, {WSTR}, v{A5}
    v_add_u32 v{A4}, v{A4}, v{A5}
    v_add_u32 v{vKR}, {RB + 1 * SLOT}, v{A4}
    """)
    for s16 in range(1, 8):
        e(f"v_xor_b32 v{vKR + s16}, {32 * s16}, v{vKR}")
    e(f"""
    v_and_b32 v{A4}, 1, v{A2}
    v_lshlrev_b32 v{A4}, 1, v{A4}
    v_lshrrev_b32 v{A5}, 1, v{A1}
    v_or_b32 v{A4}, v{A4}, v{A5}
    v_lshlrev_b32 v{A5}, 2, v{A0}
    v_xor_b32 v{A4}, v{A4}, v{A5}
    v_lshlrev_b32 v{A4}, 4, v{A4}
    v_and_b32 v{A5}, 1, v{A1}
    v_lshl_or_b32 v{A4}, v{A5}, 3, v{A4}
    v_lshrrev_b32 v{A5}, 5, v{L}
    v_lshl_add_u32 v{A5}, v{A5}, 2, v{A0}    ; 4h + r
    v_lshl_add_u32 v{A4}, v{A5}, 8, v{A4}
    v_add_u32 v{vVR}, {RB + 4096 + 1 * SLOT}, v{A4}
    """)
    for db in range(1, 4):
        e(f"v_xor_b32 v{vVR + db}, {64 * db}, v{vVR}")
    e(f"""
    """)
    for u in range(NU0, 8):
        xdma(u)
    wrdma()
    e(f"""
    v_lshlrev_b32 v{vOW}, 4, v{A3}
    v_lshrrev_b32 v{A4}, 5, v{L}
    v_lshl_add_u32 v{vOW}, v{A4}, 8, v{vOW}
    v_and_b32 v{A4}, 1, v{A2}
    v_lshl_add_u32 v{vOW}, v{A4}, 10, v{vOW}
    """)
    e(f"""
    s_lshl_b32 s{sT0}, s{sG}, 5
    s_add_u32 s{sT0}, s{sT0}, s{sTB}
    s_lshl_b32 s{sT0}, s{sT0}, 3
    s_add_u32 s{sT0}, s{sT0}, s{sW}
    s_lshl_b32 s{sT0}, s{sT0}, 13
    v_lshlrev_b32 v{vPS}, 4, v{L}
    v_add_u32 v{vPS}, s{sT0}, v{vPS}
    s_lshl_b32 s{sKVB}, s{sG}, 19
    s_lshl_b32 s{sT0}, s{sW}, 12
    s_add_u32 s{sKVB}, s{sKVB}, s{sT0}
    s_add_u32 s{sKVB}, s{sKVB}, {1536 * 256}
    s_add_u32 s{S_K}, s{S_K}, s{sKVB}
    s_addc_u32 s{S_K + 1}, s{S_K + 1}, 0
    s_add_u32 s{S_V}, s{S_V}, s{sKVB}
    s_addc_u32 s{S_V + 1}, s{S_V + 1}, 0
    s_sub_u32 s{S_K + 2}, {131072}, s{sT0}
    s_mov_b32 s{S_V + 2}, s{S_K + 2}
    s_lshl_b32 s{sT0}, s{sG}, 19
    s_add_u32 s{S_WO}, s{S_WO}, s{sT0}
    s_addc_u32 s{S_WO + 1}, s{S_WO + 1}, 0
    s_mov_b32 s{S_WO + 2}, 524288
    s_lshl_b32 s{sKO}, s{sKVT}, 14
    s_mov_b32 s{sVO}, s{sKO}
    v_cmp_eq_u32 s[{sMASK}:{sMASK + 1}], 1, v{A1}
    v_cmp_eq_u32 s[{sMASK + 2}:{sMASK + 3}], 2, v{A1}
    v_cmp_eq_u32 s[{sMASK + 4}:{sMASK + 5}], 3, v{A1}
    v_cmp_eq_u32 s[98:99], v{A2}, v{A0}
    """)
    e(f"v_mov_b32 v{A5}, 0x3f803f80")
    for i in range(4):
        e(f"v_accvgpr_write_b32 a{64 + i}, v{A5}")
    e(f"s_mov_b32 s100, 0xffff0000")
    e("s_nop 0")
    SUM, GRM = 68, 72
    e(f"""
    v_and_b32 v58, 15, v{L}                  ; tok16
    v_lshrrev_b32 v59, 4, v{L}               ; q4
    v_bfe_u32 v60, v58, 1, 3                 ; swz
    v_xor_b32 v59, v59, v60
    v_lshlrev_b32 v59, 4, v59
    v_and_b32 v60, 7, v58
    v_lshl_add_u32 v59, v60, 7, v59
    v_lshrrev_b32 v60, 3, v58
    v_lshl_add_u32 v59, v60, 12, v59
    v_add_u32 v62, s{sT3}, v59
    v_xor_b32 v63, 64, v62
    """)

    def stat_frag(p):
        e.need(ltags=[("xr", p)])
        xf = rng("v", vQ + 4 * p, 4)
        c1 = "0" if p == 0 else rng("a", SUM, 4)
        c2 = "0" if p == 0 else rng("a", GRM, 4)
        e(f"v_mfma_f32_16x16x32_bf16 {rng('a', SUM, 4)}, a[64:67], {xf}, {c1}")
        e(f"v_mfma_f32_16x16x32_bf16 {rng('a', GRM, 4)}, {xf}, {xf}, {c2}")
        for i in range(4):
            src = vQ + 4 * p + i
            dst = 128 + 8 * p + 2 * i
            e(f"v_lshlrev_b32 v{dst}, 16, v{src}")
            e(f"v_and_b32 v{dst + 1}, s100, v{src}")

    for u in range(8):
        e.need(vtags=[("x", u, 1)])
        for par in range(2):
            e.lds(f"ds_read_b128 {rng('v', vQ + 4 * (2 * u + par), 4)}, v{62 + par} offset:{u * 8192}", ("xr", 2 * u + par))
        for k in range(2):
            if wq_pre and u >= OPT.get("dma_from", 0):
                for fn in wq_pre.pop(0):
                    fn()
        if u > 0:
            stat_frag(2 * u - 2)
            stat_frag(2 * u - 1)
    e.need(vtags=[("wr", 0)])
    e(f"""
    v_lshrrev_b32 v58, 4, v{L}
    v_lshlrev_b32 v58, 4, v58
    v_add_u32 v58, s{sRING}, v58
    """)
    for p in range(16):
        e.lds(f"ds_read_b128 {rng('a', 128 + 4 * p, 4)}, v58 offset:{2 * SLOT + 4096 + p * 64}", ("wrf", p))
    stat_frag(14)
    stat_frag(15)
    e.nop(6)
    if not OPT.get("tailstamps") and not OPT.get("p3stamps"):
        stamp("x15_stats")
    s1, s2_, u0, u1, u2, u3 = 58, 59, 60, 61, 62, 63
    e(f"""
    v_accvgpr_read_b32 v{s1}, a{SUM}
    v_accvgpr_read_b32 v{u0}, a{GRM}
    v_accvgpr_read_b32 v{u1}, a{GRM + 1}
    v_accvgpr_read_b32 v{u2}, a{GRM + 2}
    v_accvgpr_read_b32 v{u3}, a{GRM + 3}
    v_cndmask_b32 v{u0}, v{u0}, v{u1}, s[{sMASK}:{sMASK + 1}]
    v_cndmask_b32 v{u0}, v{u0}, v{u2}, s[{sMASK + 2}:{sMASK + 3}]
    v_cndmask_b32 v{u0}, v{u0}, v{u3}, s[{sMASK + 4}:{sMASK + 5}]
    v_cndmask_b32 v{u0}, 0, v{u0}, s[98:99]
    v_mov_b32 v{u1}, v{u0}
    s_nop 1
    v_permlane32_swap_b32 v{u0}, v{u1}
    s_nop 0
    v_add_f32 v{u0}, v{u0}, v{u1}
    v_mov_b32 v{u1}, v{u0}
    s_nop 1
    v_permlane16_swap_b32 v{u0}, v{u1}
    s_nop 0
    v_add_f32 v{s2_}, v{u0}, v{u1}
    v_mul_f32 v{s1}, {hex(f2u(1.0 / 512))}, v{s1}     ; mean
    v_mul_f32 v{s2_}, {hex(f2u(1.0 / 512))}, v{s2_}
    v_fma_f32 v{s2_}, -v{s1}, v{s1}, v{s2_}      ; var
    v_max_f32 v{s2_}, 0, v{s2_}
    v_cvt_pk_bf16_f32 v{u0}, v{s1}, v{s2_}
    v_and_b32 v{u1}, s100, v{u0}
    v_add_f32 v{u1}, {hex(f2u(1e-5))}, v{u1}
    v_cvt_pk_bf16_f32 v{u1}, v{u1}, v{u1}
    v_and_b32 v{u1}, s100, v{u1}
    v_sqrt_f32 v{u1}, v{u1}
    v_lshlrev_b32 v{s1}, 16, v{u0}             ; mean_b f32
    v_cvt_pk_bf16_f32 v{u1}, v{u1}, v{u1}
    v_and_b32 v{u2}, s100, v{u1}                ; sd_b f32
    v_rcp_f32 v{u3}, v{u2}
    v_and_b32 v{u0}, 0xffff, v{u0}
    v_or_b32 v31, v{u0}, v{u2}
    v_mul_f32 v{u3}, {hex(f2u(C_SCALE))}, v{u3}     ; rsc
    v_mul_f32 v{u2}, v{s1}, v{u3}
    v_sub_f32 v{u2}, 0, v{u2}
    """)
    e(f"""
    v_mov_b32 v60, v{u3}
    v_mov_b32 v61, v{u3}
    v_mov_b32 v63, v{u2}
    """)
    e(f"""
    s_lshl_b32 s{sT0}, s{sW}, 10
    v_add_u32 v{s1}, s{sT0}, v{vBR}
    """)
    for p in range(16):
        for i in range(4):
            src = 128 + 8 * p + 2 * i
            e(f"v_pk_fma_f32 v[{src}:{src + 1}], v[{src}:{src + 1}], v[60:61], v[62:63]")
        for i in range(4):
            src = 128 + 8 * p + 2 * i
            e(f"v_cvt_pk_bf16_f32 v{vQ + 4 * p + i}, v{src}, v{src + 1}")
        e.lds(f"ds_write_b128 v{s1}, {rng('v', vQ + 4 * p, 4)} offset:{p * 4096}", ("xw", p))
        if wq_pre and p % OPT.get("dma_norm", 2) == 0 and not OPT.get("dma_late"):
            if len(wq_pre) <= 4:
                e.need(ltags=[("wrf", 15)])
            for fn in wq_pre.pop(0):
                fn()
    e.need(ltags=[("wrf", 15)])
    while wq_pre:
        for fn in wq_pre.pop(0):
            fn()
    e.need(ltags=[("xw", 15)])
    e("s_barrier")
    if not OPT.get("tailstamps") and not OPT.get("p3stamps"):
        stamp("ln_done")
    gemm_pre(e, 1)
    for p in range(16):
        c = "0" if p == 0 else "a[76:79]"
        e(f"v_mfma_f32_16x16x32_bf16 a[76:79], {rng('a', 128 + 4 * p, 4)}, {rng('v', vQ + 4 * p, 4)}, {c}")
    e.nop(8)
    e(f"""
    v_accvgpr_read_b32 v58, a76
    v_mul_f32 v58, {hex(f2u(1.0 / C_SCALE))}, v58
    v_cvt_pk_bf16_f32 v58, v58, v58
    v_and_b32 v59, s100, v58
    v_ashrrev_i32 v58, 31, v59
    v_or_b32 v58, 0x80000000, v58
    v_xor_b32 v59, v59, v58                  ; monotone map
    s_lshl_b32 s{sT0}, s{sTB}, 6
    s_lshl_b32 s{sT1}, s{sW}, 4
    s_add_u32 s{sT0}, s{sT0}, s{sT1}
    s_sub_u32 s{sT0}, 2047, s{sT0}
    v_and_b32 v58, 15, v{vLANE}
    v_sub_u32 v58, s{sT0}, v58               ; 2047 - token
    v_and_or_b32 v59, v59, s100, v58
    """)

    def tail1(p):
        f = []

        def guard(pp):
            return lambda: e.need(ltags=[("A", pp + 1, 7)])
        if p == 12:
            f += [(21, guard(12))] + place(kv_dma(e, "K", 1, ("KV", 0, "K")), 21, 3)
        if p == 13:
            f += place(kv_dma(e, "V", 1, ("KV", 0, "V")), 1, 4)
            f += [(21, guard(13))] + place(kv_dma(e, "K", 2, ("KV", 1, "K")), 21, 3)
        if p == 14:
            f += place(kv_dma(e, "V", 2, ("KV", 1, "V")), 1, 4)
            f += [(21, guard(14))] + place(kv_dma(e, "K", 0, ("KV", 2, "K")), 21, 3)
        if p >= 12:
            for i in range(32):
                f.append((i, lambda i=i: e(f"v_accvgpr_write_b32 a{128 + (p - 12) * 32 + i}, 0")))
        return f

    if OPT.get("only"):
        def gs(name):
            lq = list(e.lq)
            stamp(name)
            if name in OPT["only"]:
                e.lq = lq
        GSTAMP[0] = gs
    gemm_main(e, 1, tail1)
    if not OPT.get("tailstamps") and not OPT.get("p3stamps"):
        stamp("p1_done")
    e(f"""
    s_add_u32 s{sGA}, s{S_WS}, {WS_R}
    s_addc_u32 s{sGA + 1}, s{S_WS + 1}, 0
    s_mov_b32 s{sGA + 2}, 8192
    s_mov_b32 s{sGA + 3}, 0x20000
    s_add_u32 s{sGB}, s{S_WS}, {WS_STAT}
    s_addc_u32 s{sGB + 1}, s{S_WS + 1}, 0
    s_mov_b32 s{sGB + 2}, 8192
    s_mov_b32 s{sGB + 3}, 0x20000
    s_lshl_b32 s{sT0}, s{sTB}, 6
    s_lshl_b32 s{sT1}, s{sW}, 4
    s_add_u32 s{sT0}, s{sT0}, s{sT1}
    v_add_u32 v58, s{sT0}, v{vLANE}
    v_lshlrev_b32 v58, 2, v58
    v_cmp_gt_u32 vcc, 16, v{vLANE}
    s_cmp_eq_u32 s{sG}, 0
    s_cselect_b64 s[{sMASK}:{sMASK + 1}], -1, 0
    v_mov_b32 v60, 0x7ffffff0
    s_and_b64 vcc, vcc, s[{sMASK}:{sMASK + 1}]
    v_cndmask_b32 v58, v60, v58, vcc
    """)
    e.vm(f"buffer_store_dword v59, v58, s[{sGA}:{sGA + 3}], 0 offen sc1", ("st", 0))
    e.vm(f"buffer_store_dword v31, v58, s[{sGB}:{sGB + 3}], 0 offen sc1", ("st", 1))
    if OPT.get("fused"):
        e(f"""
        s_lshl_b32 s{sT0}, s{sTB}, 3
        s_add_u32 s{sT0}, s{sT0}, s{sG}
        s_lshl_b32 s{sT0}, s{sT0}, 2
        s_add_u32 s{sT0}, s{sT0}, {WS_FLG}
        s_cmp_eq_u32 s{sW}, 0
        s_cselect_b32 s{sT0}, s{sT0}, 0x7fff0000
        v_lshlrev_b32 v58, 10, v{vLANE}
        v_add_u32 v58, s{sT0}, v58
        v_mov_b32 v60, 0x7fff0000
        v_cmp_gt_u32 vcc, 9, v{vLANE}
        v_mov_b32 v61, 0
        s_nop 0
        v_cndmask_b32 v58, v60, v58, vcc
        """)
        e.vm(f"buffer_store_dword v61, v58, s[{S_WS}:{S_WS + 3}], 0 offen sc1", ("st", 2))
    e.nop(4)
    for dt in (6, 7, 0, 1, 2, 3, 4, 5):
        for qb in range(2):
            R = vQ + (dt * 2 + qb) * 4
            a0 = vACC + (dt * 4 + 2 * qb) * 4
            a1 = a0 + 4
            e(f"v_cvt_pk_bf16_f32 v{R}, v{a0}, v{a0 + 1}")
            e(f"v_cvt_pk_bf16_f32 v{R + 1}, v{a0 + 2}, v{a0 + 3}")
            e(f"v_cvt_pk_bf16_f32 v{R + 2}, v{a1}, v{a1 + 1}")
            e(f"v_cvt_pk_bf16_f32 v{R + 3}, v{a1 + 2}, v{a1 + 3}")
        for qb in range(2):
            R = vQ + (dt * 2 + qb) * 4
            e(f"v_permlane16_swap_b32 v{R}, v{R + 2}")
            e(f"v_permlane16_swap_b32 v{R + 1}, v{R + 3}")
        if dt == 7:
            for i in range(32):
                e(f"v_mov_b32 v{vNM + i}, 0")
    for i in range(4):
        e(f"v_mov_b32 v{vL + i}, 0")
    for i in range(4):
        e(f"v_mov_b32 v{vGA + i}, v{vKDM + i}")
        e(f"v_mov_b32 v{vGB + i}, v{vVDM}")
    e(f"s_mov_b32 s{sPASS}, 0")
    e(f"v_mov_b32 v31, v{vKR}")
    e(f"v_mov_b32 v63, v{vVR}")
    e(f"""
    s_min_u32 s{sSL}, s2, 223
    s_lshl_b32 s{sT0}, s{sW}, 7
    v_add_u32 v3, s{sT0}, v{vLANE}
    v_mul_u32_u24 v3, 3584, v3
    s_lshl_b32 s{sT0}, s{sSL}, 4
    v_add_u32 v3, s{sT0}, v3
    v_lshrrev_b32 v4, 4, v{vLANE}
    v_lshlrev_b32 v4, 10, v4
    v_and_b32 v2, 15, v{vLANE}
    v_lshl_add_u32 v4, v2, 4, v4
    s_lshl_b32 s{sT0}, s{sSL}, 13
    s_lshl_b32 s{sT1}, s{sW}, 8
    s_add_u32 s{sT0}, s{sT0}, s{sT1}
    v_add_u32 v4, s{sT0}, v4
    """)
    if OPT.get("only"):
        stamp("q_conv")
    e(f"L_p2_start:")
    e.wait_all()
    e("s_barrier")
    e(f"""
    s_or_b32 s{sT0}, {'0' if OPT.get("fused") else 's%d' % sG}, s{sW}
    s_or_b32 s{sT0}, s{sT0}, s{sPASS}
    s_cmp_lg_u32 s{sT0}, 0
    s_cbranch_scc1 L_nopub
    """)
    if not OPT.get("xnopublish"):
        e(f"""
        v_mov_b32 v58, 0
        v_mov_b32 v59, 1
        v_cmp_eq_u32 vcc, 0, v{vLANE}
        s_nop 0
        s_and_saveexec_b64 s[{sMASK}:{sMASK + 1}], vcc
        global_atomic_add v58, v59, s[{sDBG}:{sDBG + 1}] sc1
        s_mov_b64 exec, s[{sMASK}:{sMASK + 1}]
        """)
    e("L_nopub:")
    e(f"""
    s_mov_b32 s{sGA}, s{S_K}
    s_mov_b32 s{sGA + 1}, s{S_K + 1}
    s_mov_b32 s{sGA + 2}, s{S_K + 2}
    s_mov_b32 s{sGB}, s{S_V}
    s_mov_b32 s{sGB + 1}, s{S_V + 1}
    s_mov_b32 s{sGB + 2}, s{S_V + 2}
    s_mov_b32 s{sKSL}, {2 * SLOT}
    s_mov_b32 s{sVSL}, {1 * SLOT}
    s_mov_b32 s{sTRIP}, 1
    s_add_u32 s{sGAM}, s{sRING}, {1 * SLOT}
    s_add_u32 s{sGBM}, s{sRING}, 4096
    s_lshl_b32 s{sGAO}, s{sW}, 13
    s_mov_b32 s{sMASK + 2}, {64 * 3584}
    s_mov_b32 s{S_WQ + 2}, {512 * 1792 * 2}
    """)
    for f in range(4):
        k_read(e, 0, f)
    p2_iter(e, -1, qk=True, sm=False, pv=False, look="K")
    upd = []
    for i in range(8):
        upd.append((i // 4 * 8 + i % 4 if i < 4 else 9 + i, lambda i=i: e(f"v_add_u32 v{vKR + i}, {SLOT}, v{vKR + i}")))
    p2_iter(e, 0, qk=True, sm=True, pv=False, look="K", fill=upd, smstart=5)

    if OPT.get("only"):
        lqs = list(e.lq)
        stamp("p2_preloop")
        e.lq = lqs
    lq0 = list(e.lq)
    e("L_p2_loop:")
    n0 = len(e.l)
    e("s_waitcnt vmcnt(1)")
    e.vq = []
    e("s_barrier")
    D64 = 64 * 3584
    fill = []

    def grp(*lines):
        f = lambda: [e(x) for x in lines]
        f.ninstr = len(lines)
        return f

    def adv2(sreg):
        f = lambda: kv_adv(e, sreg)
        f.ninstr = 2
        return f
    fill.append((0, lambda: e(f"s_mov_b32 m0, s{sGAM}")))
    for i in range(4):
        fill.append((2 + 4 * i, lambda i=i: e.vm(
            f"buffer_load_dwordx4 v{vGA + i}, s[{sGA}:{sGA + 3}], s{sKO} offen offset:{i * 1024} lds", ("G", 0))))
    fill.append((15, adv2(sKO)))
    fill.append((16, lambda: e(f"s_mov_b32 m0, s{sGBM}")))
    for i in range(4):
        fill.append((18 + 4 * i, lambda i=i: e.vm(
            f"buffer_load_dwordx4 v{vGB + i}, s[{sGB}:{sGB + 3}], s{sVO} offen offset:{i * 1024} lds", ("G", 1))))
    fill.append((30, adv2(sVO)))
    for db in range(4):
        fill.append((24 + 2 * db, lambda db=db: e(f"v_add_u32 v{vVR + db}, 49152, v{vVR + db}")))
    fill.append((4, grp(f"s_add_u32 s{sT1}, s{sKSL}, {SLOT}", f"s_cmp_eq_u32 s{sT1}, {3 * SLOT}",
                        f"s_cselect_b32 s{sT1}, 0, s{sT1}")))
    fill.append((8, grp(f"s_sub_u32 s{sKD}, s{sT1}, s{sKSL}", f"s_sub_u32 s{sVD}, s{sKSL}, s{sVSL}")))
    fill.append((12, grp(f"s_sub_u32 s{sVD}, s{sVD}, 49152", f"s_mov_b32 s{sVSL}, s{sKSL}", f"s_mov_b32 s{sKSL}, s{sT1}")))
    fill.append((20, grp(f"s_cmp_ge_u32 s{sTRIP}, 3", f"s_cselect_b32 s{S_WQ}, s{sFP + 2}, s{sFP}",
                         f"s_cselect_b32 s{S_WQ + 1}, s{sFP + 3}, s{sFP + 1}")))
    fill.append((22, grp(f"s_bitcmp0_b32 s{sTRIP}, 0", f"s_cselect_b32 s{sGBO}, s{sMASK + 2}, 0")))
    fill.append((24, grp(f"s_cmp_ge_u32 s{sTRIP}, 5", f"s_cselect_b32 s{S_WQ}, s{sFP + 4}, s{S_WQ}",
                         f"s_cselect_b32 s{S_WQ + 1}, s{sFP + 5}, s{S_WQ + 1}")))
    fill.append((26, grp(f"s_cmp_ge_u32 s{sTRIP}, 5", f"s_cselect_b32 s{sGBO}, 0, s{sGBO}",
                         f"s_cselect_b64 s[{sMASK}:{sMASK + 1}], -1, 0")))
    fill.append((28, grp(f"s_cmp_ge_u32 s{sTRIP}, 6", f"s_cselect_b32 s{sGBO}, 4096, s{sGBO}")))
    p2_iter(e, 1, fill=fill)
    fill = []
    for i in range(8):
        fill.append((8 + 2 * i if i >= 4 else 2 * i, lambda i=i: e(f"v_add_u32 v{vKR + i}, s{sKD}, v{vKR + i}")))
    for db in range(4):
        fill.append((24 + 2 * db, lambda db=db: e(f"v_add_u32 v{vVR + db}, s{sVD}, v{vVR + db}")))
    fill.append((1, lambda: e(f"v_cndmask_b32 v1, v3, v4, s[{sMASK}:{sMASK + 1}]")))
    fill.append((2, lambda: e(f"s_mov_b32 m0, s{sGAO}")))
    fill.append((4, lambda: e.vm(f"buffer_load_dwordx4 v1, s[{S_WQ}:{S_WQ + 3}], s{sGBO} offen lds", ("C", 0))))
    fill.append((6, lambda: e(f"s_add_u32 s{sGAO}, s{sGAO}, 1024")))
    fill.append((10, grp(f"s_add_u32 s{sGAM}, s{sRING}, s{sVSL}", f"s_add_u32 s{sT1}, s{sKSL}, {SLOT}")))
    fill.append((12, grp(f"s_cmp_eq_u32 s{sT1}, {3 * SLOT}", f"s_cselect_b32 s{sT1}, 0, s{sT1}",
                         f"s_add_u32 s{sGBM}, s{sRING}, s{sT1}")))
    fill.append((14, lambda: e(f"s_add_u32 s{sGBM}, s{sGBM}, 4096")))
    fill.append((28, lambda: e(f"s_add_u32 s{sTRIP}, s{sTRIP}, 1")))
    p2_iter(e, 2, fill=fill)
    e(f"""
    s_cmp_lg_u32 s{sTRIP}, 7
    s_cbranch_scc1 L_p2_noswitch
    s_mov_b32 s{sGA}, s{S_WO}
    s_mov_b32 s{sGA + 1}, s{S_WO + 1}
    s_mov_b32 s{sGA + 2}, s{S_WO + 2}
    s_mov_b32 s{sGB}, s{S_WO}
    s_mov_b32 s{sGB + 1}, s{S_WO + 1}
    s_mov_b32 s{sGB + 2}, s{S_WO + 2}
    s_mov_b32 s{sGAM}, s{sRING}
    s_add_u32 s{sGBM}, s{sRING}, 4096
    s_mov_b32 s{sKO}, s{sWOO}
    """)
    p3_adv(e)
    e(f"s_mov_b32 s{sVO}, s{sWOO}")
    p3_adv(e)
    for i in range(4):
        e(f"v_mov_b32 v{vGA + i}, v{vWO + i}")
        e(f"v_mov_b32 v{vGB + i}, v{vWO + i}")
    e("L_p2_noswitch:")
    e(f"s_cmp_lg_u32 s{sTRIP}, 8")
    e("s_cbranch_scc1 L_p2_loop")
    body = e.l[n0:]
    probs = check_hazards(body + body, "p2 loop x2")
    assert not probs or any(k.startswith("no") for k in OPT), "\n".join(probs[:10])
    sh = lambda q, d: [(t[0], t[1] + d) + tuple(t[2:]) if t else t for t in q]
    assert sh(lq0, 2) == e.lq, (lq0, e.lq)
    e.lq = sh(e.lq, 12)
    if OPT.get("only"):
        stamp("p2_loopend")
    e.wait_all(lds=False)
    e(f"""
    v_bfe_u32 v58, v{vLANE}, 2, 2               ; r
    v_lshrrev_b32 v59, 4, v{vLANE}              ; q4
    v_lshl_add_u32 v60, v59, 3, v58             ; 8 q4 + r
    v_lshlrev_b32 v60, 4, v60
    v_and_b32 v61, 1, v{vLANE}
    v_lshl_add_u32 v60, v61, 3, v60             ; + (c&1)*8
    v_bfe_u32 v61, v{vLANE}, 1, 1
    v_lshl_add_u32 v60, v61, 11, v60            ; + U
    s_lshl_b32 s{sT0}, s{sW}, 13
    v_add_u32 v60, s{sT0}, v60
    v_and_b32 v59, 1, v59
    v_lshl_add_u32 v58, v59, 2, v58             ; row 0..7
    v_lshlrev_b32 v58, 8, v58
    v_and_b32 v59, 3, v{vLANE}
    v_lshl_add_u32 v58, v59, 3, v58             ; + c*8
    v_add_u32 v58, s{sT0}, v58
    """)
    for i in range(4):
        for rd in range(2):
            e.lds(f"ds_read_b64_tr_b16 {rng('a', 96 + 4 * i + 2 * rd, 2)}, v60 offset:{i * 512 + rd * 64}", ("fa", i))
    for t in range(8):
        e.lds(f"ds_read_b64_tr_b16 {rng('a', 112 + 2 * t, 2)}, v58 offset:{4096 + t * 32}", ("da", t))
    e.wait_all(vm=False)
    e("s_barrier")
    e.vq = [("W", 0, 0)] * 0
    fill = place(p3_dma(e, 2), 0, 2) + place(p3_dma(e, 3), 8, 2)
    for db in range(4):
        fill.append((7 + db, lambda db=db: e(f"v_add_u32 v{vVR + db}, 49152, v{vVR + db}")))
    e.lq = [t for t in e.lq]
    e(f"v_mov_b32 v62, 0")
    e.vm(f"global_load_dword v2, v62, s[{sDBG}:{sDBG + 1}] sc1", ("cnt", 0))
    p2_iter(e, 15, qk=False, sm=True, pv=True, look="V", fill=fill, vpre=True, vord_next=VORD_D)
    RL = [58, 60]
    side = Side()
    A = side.add
    A(f"v_add_f32 v{vL}, v{vL}, v{vL + 1}")
    A(f"v_add_f32 v{vL + 2}, v{vL + 2}, v{vL + 3}")
    A(f"v_mov_b32 v{vL + 1}, v{vL}")
    A(f"v_mov_b32 v{vL + 3}, v{vL + 2}")
    A(f"v_permlane32_swap_b32 v{vL}, v{vL + 1}", gap=2)
    A(f"v_permlane32_swap_b32 v{vL + 2}, v{vL + 3}", gap=1)
    A(f"v_add_f32 v{vL}, v{vL}, v{vL + 1}", gap=1)
    A(f"v_add_f32 v{vL + 2}, v{vL + 2}, v{vL + 3}")
    A(f"v_rcp_f32 v{RL[0]}, v{vL}")
    A(f"v_rcp_f32 v{RL[1]}, v{vL + 2}")
    A(f"s_mov_b32 s{sT2}, {hex(f2u(2.0 ** -40))}")
    A(f"s_mov_b32 s{sT3}, {hex(f2u(2.0 ** 40))}")
    A(f"v_cmp_lt_f32 s[{sMASK}:{sMASK + 1}], s{sT2}, v{vL}")
    A(f"v_cmp_gt_f32 s[{sMASK + 2}:{sMASK + 3}], s{sT3}, v{vL}")
    A(f"v_cmp_lt_f32 s[{sMASK + 4}:{sMASK + 5}], s{sT2}, v{vL + 2}")
    A(f"v_cmp_gt_f32 vcc, s{sT3}, v{vL + 2}")
    A(f"s_and_b64 s[{sMASK}:{sMASK + 1}], s[{sMASK}:{sMASK + 1}], s[{sMASK + 2}:{sMASK + 3}]", gap=2)
    A(f"s_and_b64 vcc, vcc, s[{sMASK + 4}:{sMASK + 5}]")
    A(f"s_and_b64 s[{sMASK}:{sMASK + 1}], s[{sMASK}:{sMASK + 1}], vcc")
    for db in range(4):
        wa = 61 + (db & 1)
        A(lambda db=db: [e(x) for x in (f"s_lshl_b32 s{sT1}, s{sW}, 2", f"s_add_u32 s{sT1}, s{sT1}, {db}",
                                        f"s_sub_u32 s{sT1}, s{sT1}, s{sSK}")])
        A(lambda: [e(x) for x in (f"s_and_b32 s{sT1}, s{sT1}, 15", f"s_lshl_b32 s{sT1}, s{sT1}, 12")])
        A(f"v_add_u32 v{wa}, s{sT1}, v{vOW}")
        for qb in range(2):
            src = aO + (db * 2 + qb) * 16
            T = 128 + ((db * 2 + qb) % 4) * 16 if False else 128 + (db * 2 + qb) * 16
            for i in range(16):
                A(f"v_accvgpr_read_b32 v{T + i}, a{src + i}", cond=((16, min(4 * db + 7, 99)) if (i == 0 and qb == 0) else None))
            for i in range(8):
                A(f"v_pk_mul_f32 v[{T + 2 * i}:{T + 2 * i + 1}], v[{T + 2 * i}:{T + 2 * i + 1}], v[{RL[qb]}:{RL[qb] + 1}] op_sel_hi:[1,0]")
            for i in range(8):
                A(f"v_cvt_pk_bf16_f32 v{T + i}, v{T + 2 * i}, v{T + 2 * i + 1}")
            for jp in range(2):
                A(lambda T=T, jp=jp, qb=qb, db=db, wa=wa: e.lds(
                    f"ds_write_b128 v{wa}, {rng('v', T + 4 * jp, 4)} offset:{qb * 2048 + jp * 512}", ("ow", db, qb, jp)))
    p2_iter(e, 16, qk=False, sm=False, pv=True, look=None, vord=VORD_D, side=side, cap=OPT.get("normcap", 5))
    if not OPT.get("tailstamps"):
        stamp("p2_done")
    e.nop(OPT.get("normnop", 10))
    side.emit(e, 0, flush=True)
    e(f"""
    s_cmp_eq_u64 s[{sMASK}:{sMASK + 1}], -1
    s_cselect_b32 s{sT2}, 0, 1
    s_cmp_eq_u32 s{sPASS}, 0
    s_cselect_b32 s{sT2}, s{sT2}, 0
    s_cmp_eq_u32 s{sT2}, 0
    s_cbranch_scc1 L_noflag
    s_lshl_b32 s{sT0}, s{sW}, 2
    s_sub_u32 s{sT0}, s{sT0}, s{sSK}
    s_and_b32 s{sT0}, s{sT0}, 15
    s_lshl_b32 s{sT0}, s{sT0}, 12
    v_mov_b32 v58, s{sT0}
    v_mov_b32 v59, -1
    ds_write_b32 v58, v59
    L_noflag:
    """)
    e.wait_all(vm=False)
    e("s_barrier")
    for w_ in range(4):
        e(f"""
        s_sub_u32 s{sT0}, {4 * w_}, s{sSK}
        s_and_b32 s{sT0}, s{sT0}, 15
        s_lshl_b32 s{sT0}, s{sT0}, 12
        v_mov_b32 v{58 + w_}, s{sT0}
        """)
    for w_ in range(4):
        e.lds(f"ds_read_b32 v{58 + w_}, v{58 + w_}", ("mk", w_))
    e(f"v_lshlrev_b32 v{vBR}, 4, v{vLANE}")
    for fn in p3_reads(e, 0, 0)[8:] + p3_reads(e, 0, 0)[:8]:
        fn()
    serial(e, p3_dma(e, 4))
    e.need(ltags=[("mk", 3)])
    e(f"""
    v_and_b32 v58, v58, v59
    v_and_b32 v60, v60, v61
    v_max_u32 v58, v58, v60
    v_max_u32 v59, v59, v61
    """)
    e.l = e.l[:-4]
    e(f"""
    v_max_u32 v58, v58, v59
    v_max_u32 v60, v60, v61
    v_max_u32 v58, v58, v60
    s_nop 0
    v_readfirstlane_b32 s{sT0}, v58
    s_nop 0
    s_cmp_eq_u32 s{sT0}, -1
    s_cbranch_scc1 L_fallback
    L_p3_start:
    """)
    e.need(vtags=[("cnt", 0)])
    e(f"""
    v_readfirstlane_b32 s{sT0}, v2
    s_lshl_b32 s{sT1}, s{sW}, 11
    v_lshlrev_b32 v62, 5, v{vLANE}
    v_add_u32 v62, s{sT1}, v62
    v_add_u32 v62, {WS_R}, v62
    s_cmp_ge_u32 s{sT0}, {256 if OPT.get("fused") else 32}
    s_cselect_b32 s{sRDY}, 1, 0
    s_mov_b32 s48, 4096
    s_mov_b32 s49, 32768
    s_mov_b32 s50, {32768 + 4096}
    """)
    e.vm(f"buffer_load_dwordx4 v[88:91], v62, s[{S_WS}:{S_WS + 3}], 0 offen sc1", ("rl", 0))
    e.vm(f"buffer_load_dwordx4 v[92:95], v62, s[{S_WS}:{S_WS + 3}], 0 offen offset:16 sc1", ("rl", 1))
    assert [t for t in e.vq if t[0] == "W"] == [("W", u) for u in range(2, 5) for _ in range(4)], e.vq
    e.vq = [("W", u) for u in range(5) for _ in range(4)]
    import moe

    def tail3(u):
        return []

    def tail3_old(u):
        f = []
        lst = {28: [(S_WQ, 80, 0), (S_WQ, 81, 1024), (S_K, 80, 2048), (S_K, 81, 3072)], 29: [(S_V, 82, 4096), (S_V, 83, 5120)]}
        if u in lst and not OPT.get("nomoe") and not OPT.get("xnofw"):
            f.append((0, lambda u=u: e.need(ltags=[("A", u, 3)])))
            for n, (srd, v, off) in enumerate(lst[u]):
                f.append((1 + 3 * n, lambda off=off: e(f"s_add_u32 m0, s{sRING}, {2 * SLOT + off}")))
                f.append((2 + 3 * n, lambda srd=srd, v=v: e.vm(
                    f"buffer_load_dwordx4 v{v}, s[{srd}:{srd + 3}], 0 offen lds", ("fw", 0))))
        return f
    side_e, side = Side(), Side()
    sp = OPT.get("stspread", 2.0)
    for n, (x, gap) in enumerate(p3_epilogue_items(e, 0, [64, 68, 72, 76])):
        k, r = n // 7, n % 7
        pos = 16 + k * sp
        side_e.add(x, gap=gap, cond=((int(pos), 2 + int((pos % 1) * 16)) if r == 0 else None))
    if not OPT.get("nomoe"):
        moe.moe_side(e, side, dict(W=sW, RING=sRING, RDY=sRDY, M=100, X=S_X, WS=S_WS))
        side.q[0] = (side.q[0][0], side.q[0][1], (OPT.get("moestart", 4) if OPT.get("p3unroll", 1) else 16, 0))
    if OPT.get("p3stamps") or OPT.get("only"):
        def st_nowait(name):
            q = list(e.lq)
            stamp(name)
        STAMP[0] = st_nowait
    p3_phase(e, tail3, [side_e, side], None)
    side_e.emit(e, 0, flush=True)
    side.emit(e, 0, flush=True)
    stamp("p3_done")
    e.nop(6)
    side = Side()
    for (x, gap) in p3_epilogue_items(e, 1, [64, 68, 72, 76, 80, 84, 88, 92]):
        side.add(x, gap=gap)
    side.emit(e, 0, flush=True)
    stamp("epi")
    doneq = f"L_{label}_fin"
    RT = dict(X=S_X, WS=S_WS, WR=S_WR, W=sW, RING=sRING, SL=sSL, RDY=sRDY, DBG=sDBG, M=100, G=sG, TB=sTB,
              T=[42, 43, 44, 45, 46, 47, 60, 61, 62, 63, 64, 65, 66, 67], done=doneq,
              spin=OPT.get("spin", 4000), fused=OPT.get("fused"), NCNT=(256 if OPT.get("fused") else 32),
              stamp=(stamp if OPT.get("tailstamps") else (lambda n: None)), opt=OPT)
    if OPT.get("fused"):
        moe.moe_tail(e, RT)
    elif not OPT.get("nomoe"):
        e(f"""
        s_cmp_ge_u32 s2, 224
        s_cbranch_scc1 {doneq}
        s_nop 1
        """)
        moe.moe_tail(e, RT)
    e(f"{doneq}:")
    stamp("end")
    if stamps and OPT.get("dbgstamps"):
        e.wait_all()
        e(f"""
        v_mov_b32 v58, 16
        v_mov_b32 v59, s{sTS + 16}
        v_mov_b32 v60, 20
        s_not_b32 s{sT0}, s{sTS}
        v_mov_b32 v61, s{sT0}
        v_cmp_eq_u32 vcc, 0, v{vLANE}
        s_nop 0
        s_and_saveexec_b64 s[{sMASK}:{sMASK + 1}], vcc
        global_atomic_umax v58, v59, s[{sDBG}:{sDBG + 1}] sc1
        global_atomic_umax v60, v61, s[{sDBG}:{sDBG + 1}] sc1
        s_or_b32 s{sT0}, s2, s{sW}
        s_cmp_lg_u32 s{sT0}, 0
        s_cbranch_scc1 L_dbg_skip
        """)
        for k in range(1, 9):
            e(f"s_sub_u32 s{sT0}, s{sTS + 2 * k}, s{sTS}")
            e(f"v_mov_b32 v59, s{sT0}")
            e(f"v_mov_b32 v58, {24 + 4 * (k - 1)}")
            e(f"global_store_dword v58, v59, s[{sDBG}:{sDBG + 1}]")
            e("s_nop 1")
        e("L_dbg_skip:")
        e(f"s_mov_b64 exec, s[{sMASK}:{sMASK + 1}]")
    elif stamps:
        e.wait_all()
        e(f"""
        s_lshl_b32 s{sT0}, s2, 2
        s_add_u32 s{sT0}, s{sT0}, s{sW}
        s_lshl_b32 s{sT0}, s{sT0}, 7
        s_add_u32 s{sT0}, s{sT0}, {WS_TS}
        v_mov_b32 v58, s{sT0}
        v_cmp_eq_u32 vcc, 0, v{vLANE}
        s_nop 0
        s_and_saveexec_b64 s[{sMASK}:{sMASK + 1}], vcc
        """)
        for i in range(0, 20, 4):
            for q in range(4):
                e(f"v_mov_b32 v{60 + q}, s{min(sTS + i + q, sTS + 17)}")
            e(f"buffer_store_dwordx4 v[60:63], v58, s[{S_WS}:{S_WS + 3}], 0 offen offset:{i * 4}")
            e("s_nop 1")
        e(f"s_mov_b64 exec, s[{sMASK}:{sMASK + 1}]")
    e(f"s_branch {done}")
    e("L_fallback:")
    e(f"""
    s_barrier
    s_lshl_b32 s{sKO}, s{sKVT}, 14
    v_mov_b32 v{vKR}, v31
    v_mov_b32 v{vL}, 0xff800000
    v_mov_b32 v{vL + 2}, 0xff800000
    v_subrev_u32 v{vKR}, {SLOT}, v{vKR}
    s_mov_b32 s{sTRIP}, 0
    """)
    for s16 in range(1, 8):
        e(f"v_xor_b32 v{vKR + s16}, {32 * s16}, v{vKR}")
    e("L_fb_loop:")
    e("s_waitcnt vmcnt(0) lgkmcnt(0)")
    e("s_barrier")
    e.vq, e.lq = [], []
    serial(e, kv_dma(e, "K", 0, ("fbk", 0)))
    e.wait_all()
    e("s_barrier")
    for kb in range(2):
        for s16 in range(8):
            e(f"ds_read_b128 {Fbuf(s16)}, v{vKR + s16} offset:{kb * 49152}")
        e("s_waitcnt lgkmcnt(0)")
        for s16 in range(8):
            for qb in range(2):
                c = "0" if s16 == 0 else Sreg(0, qb)
                e(f"v_mfma_f32_32x32x16_bf16 {Sreg(0, qb)}, {Fbuf(s16)}, {Qreg(s16, qb)}, {c}")
        e.nop(16)
        for qb in range(2):
            m = vL + 2 * qb
            for i in range(0, 16, 2):
                e(f"v_max3_f32 v{m}, v{m}, {Sreg(0, qb, i)}, {Sreg(0, qb, i + 1)}")
    e(f"""
    s_add_u32 s{sTRIP}, s{sTRIP}, 1
    s_cmp_lt_u32 s{sTRIP}, 8
    s_cbranch_scc1 L_fb_loop
    v_mov_b32 v{vL + 1}, v{vL}
    v_mov_b32 v{vL + 3}, v{vL + 2}
    s_nop 1
    v_permlane32_swap_b32 v{vL}, v{vL + 1}
    v_permlane32_swap_b32 v{vL + 2}, v{vL + 3}
    s_nop 0
    v_max_f32 v{vL}, v{vL}, v{vL + 1}
    v_max_f32 v{vL + 2}, v{vL + 2}, v{vL + 3}
    """)
    for qb in range(2):
        for i in range(16):
            e(f"v_sub_f32 v{vNM + 16 * qb + i}, 0, v{vL + 2 * qb}")
    e(f"""
    s_barrier
    s_lshl_b32 s{sKO}, s{sKVT}, 14
    s_mov_b32 s{sVO}, s{sKO}
    s_lshl_b32 s{sWOO}, s{sSK}, 15
    v_mov_b32 v{vKR}, v31
    v_mov_b32 v{vVR}, v63
    s_mov_b32 s{sPASS}, 1
    """)
    for s16 in range(1, 8):
        e(f"v_xor_b32 v{vKR + s16}, {32 * s16}, v{vKR}")
    for db in range(1, 4):
        e(f"v_xor_b32 v{vVR + db}, {64 * db}, v{vVR}")
    for (which, slot) in (("K", 1), ("V", 1), ("K", 2), ("V", 2), ("K", 0)):
        serial(e, kv_dma(e, which, slot, ("fbp", 0)))
    for i in range(4):
        e(f"v_mov_b32 v{vL + i}, 0")
        e(f"v_mov_b32 v{vGA + i}, v{vKDM + i}")
        e(f"v_mov_b32 v{vGB + i}, v{vVDM}")
    for i in range(128):
        e(f"v_accvgpr_write_b32 a{128 + i}, 0")
    e("s_branch L_p2_start")
    e(f"{done}:")
    e("s_endpgm")
    sp = check_scc(e.l)
    if sp:
        print("\n".join(sp))
        raise SystemExit("scc")
    probs = check_hazards(e.l, "k1")
    if probs and not any(k.startswith("no") for k in OPT):
        print("\n".join(probs[:40]))
        raise SystemExit("hazards")
    return e.text()
```

```python
from emit import E, check_hazards, check_scc
from asmlib import KA
from k1 import WS_PART, WS_R, WS_STAT, WS_IDX, WS_TS, WS_FLG, f2u, rng

WS_YP = 17 << 20
NSL = 224
LOG2E = 1.4426950408889634


def wave_max_u32(e, v, tmp_s):
    for sh in (1, 2, 4, 8):
        e("s_nop 1")
        e(f"v_max_u32_dpp v{v}, v{v}, v{v} row_shr:{sh} row_mask:0xf bank_mask:0xf")
    e("s_nop 1")
    e(f"v_max_u32_dpp v{v}, v{v}, v{v} row_bcast:15 row_mask:0xa bank_mask:0xf")
    e("s_nop 1")
    e(f"v_max_u32_dpp v{v}, v{v}, v{v} row_bcast:31 row_mask:0xc bank_mask:0xf")
    e("s_nop 0")
    e(f"v_readlane_b32 s{tmp_s}, v{v}, 63")


def silu_bf16(e, dst, src, t0, t1, sM):
    e(f"v_mul_f32 v{t0}, {hex(f2u(-LOG2E))}, v{src}")
    e(f"v_exp_f32 v{t0}, v{t0}")
    e("s_nop 0")
    e(f"v_add_f32 v{t0}, 1.0, v{t0}")
    e(f"v_rcp_f32 v{t0}, v{t0}")
    e("s_nop 0")
    e(f"v_mul_f32 v{t0}, v{src}, v{t0}")
    e(f"v_cvt_pk_bf16_f32 v{t0}, v{t0}, v{t0}")
    e(f"v_and_b32 v{dst}, s{sM}, v{t0}")


def ts_begin(e, on):
    if on:
        e("s_memrealtime s[64:65]")


def ts_end(e, on, srd, off, wave_sreg, lane_v=0):
    if not on:
        return
    e(f"""
    s_memrealtime s[66:67]
    s_mov_b64 exec, -1
    s_lshl_b32 s68, s2, 2
    s_add_u32 s68, s68, s{wave_sreg}
    s_lshl_b32 s68, s68, 4
    s_add_u32 s68, s68, {off}
    s_waitcnt vmcnt(0) lgkmcnt(0)
    s_memrealtime s[66:67]
    s_waitcnt lgkmcnt(0)
    v_mov_b32 v100, s64
    v_mov_b32 v101, s65
    v_mov_b32 v102, s66
    v_mov_b32 v103, s67
    v_mov_b32 v104, s68
    v_cmp_eq_u32 vcc, 0, v{lane_v}
    s_nop 1
    s_and_saveexec_b64 s[70:71], vcc
    buffer_store_dwordx4 v[100:103], v104, s[{srd}:{srd + 3}], 0 offen
    """)


def gen_km(label, ts=False):
    e = E()
    done = f"L_{label}_done"
    S_X, S_WG, S_WU, S_WD, S_WS = 4, 8, 12, 16, 20
    sW, sF0, sM = 24, 25, 26
    sWIN = 32
    e(f"""
    s_cmp_ge_u32 s2, {NSL}
    s_cbranch_scc1 {done}
    {"s_memrealtime s[64:65]" if ts else ""}
    s_load_dwordx2 s[4:5], s[0:1], {KA['x']}
    s_load_dwordx2 s[8:9], s[0:1], {KA['wg']}
    s_load_dwordx2 s[12:13], s[0:1], {KA['wu']}
    s_load_dwordx2 s[16:17], s[0:1], {KA['wd']}
    s_load_dwordx2 s[20:21], s[0:1], {KA['ws']}
    v_lshrrev_b32 v1, 6, v0
    v_mov_b32 v63, v0                    ; tid
    v_and_b32 v0, 63, v0
    v_readfirstlane_b32 s{sW}, v1
    s_lshl_b32 s{sF0}, s2, 4
    s_mov_b32 s{sM}, 0xffff0000
    s_waitcnt lgkmcnt(0)
    s_mov_b32 s6, 2097152
    s_mov_b32 s7, 0x20000
    s_mov_b32 s10, {512 * 1792 * 2}
    s_mov_b32 s11, 0x20000
    s_mov_b32 s14, {512 * 1792 * 2}
    s_mov_b32 s15, 0x20000
    s_mov_b32 s18, {1792 * 512 * 2}
    s_mov_b32 s19, 0x20000
    s_mov_b32 s22, 0x10000000
    s_mov_b32 s23, 0x20000
    """)
    e(f"""
    v_lshlrev_b32 v2, 5, v63
    v_add_u32 v2, {WS_R}, v2
    """)
    e.vm(f"buffer_load_dwordx4 v[8:11], v2, s[20:23], 0 offen", "r0")
    e.vm(f"buffer_load_dwordx4 v[12:15], v2, s[20:23], 0 offen offset:16", "r1")
    e(f"""
    s_lshl_b32 s27, s{sW}, 7
    v_add_u32 v3, s27, v0                ; row = 128 w + l
    v_mul_u32_u24 v3, 3584, v3
    v_add_u32 v3, s{sF0}, v3
    v_add_u32 v4, {64 * 3584}, v3
    s_lshl_b32 s28, s{sW}, 11            ; w*2048
    """)
    for (srd, base) in ((S_WG, 0), (S_WU, 8192)):
        for i in range(2):
            e(f"s_add_u32 m0, s28, {base + i * 1024}")
            e("s_nop 0")
            e.vm(f"buffer_load_dwordx4 v{3 + i}, s[{srd}:{srd + 3}], 0 offen lds", "wgu")
    e(f"""
    s_lshl_b32 s29, s2, 3
    s_lshl_b32 s30, s{sW}, 1
    s_add_u32 s29, s29, s30
    s_lshl_b32 s29, s29, 10              ; row*1024
    v_lshlrev_b32 v5, 4, v0
    """)
    for i in range(2):
        e(f"s_add_u32 m0, s28, {16384 + i * 1024}")
        e("s_nop 0")
        e.vm(f"buffer_load_dwordx4 v5, s[{S_WD}:{S_WD + 3}], s29 offen lds", "wd")
        e("s_add_u32 s29, s29, 1024")
    e.need(vtags=["r1"])
    e(f"v_lshlrev_b32 v6, 3, v63")
    e(f"v_sub_u32 v6, 2047, v6            ; 2047 - idx0")
    for i in range(8):
        r = 8 + i
        e(f"v_ashrrev_i32 v7, 31, v{r}")
        e(f"v_or_b32 v7, 0x80000000, v7")
        e(f"v_xor_b32 v{r}, v{r}, v7          ; monotone map")
        e(f"v_and_b32 v{r}, s{sM}, v{r}")
        e(f"v_or_b32 v{r}, v{r}, v6")
        if i < 7:
            e(f"v_subrev_u32 v6, 1, v6")
    e("v_mov_b32 v20, 0")
    for rd in range(8):
        e("v_max3_u32 v16, v8, v9, v10")
        e("v_max3_u32 v17, v11, v12, v13")
        e("v_max3_u32 v16, v16, v14, v15")
        e("v_max_u32 v16, v16, v17")
        wave_max_u32(e, 16, 31)
        e("s_nop 1")
        for i in range(8):
            e(f"v_cmp_ne_u32 vcc, s31, v{8 + i}")
            e("s_nop 1")
            e(f"v_cndmask_b32 v{8 + i}, 0, v{8 + i}, vcc")
        e(f"v_writelane_b32 v20, s31, {rd}")
    e(f"""
    s_lshl_b32 s27, s{sW}, 5
    v_lshlrev_b32 v21, 2, v0
    v_add_u32 v21, s27, v21
    v_add_u32 v21, 24576, v21
    v_cmp_gt_u32 vcc, 8, v0
    s_nop 0
    s_and_saveexec_b64 s[40:41], vcc
    ds_write_b32 v21, v20
    s_mov_b64 exec, s[40:41]
    s_waitcnt lgkmcnt(0)
    s_barrier
    v_and_b32 v21, 31, v0
    v_lshlrev_b32 v21, 2, v21
    ds_read_b32 v22, v21 offset:24576
    v_cmp_gt_u32 vcc, 32, v0
    s_waitcnt lgkmcnt(0)
    s_nop 0
    v_cndmask_b32 v22, 0, v22, vcc
    """)
    for rd in range(8):
        e("v_mov_b32 v16, v22")
        wave_max_u32(e, 16, sWIN + rd)
        e("s_nop 1")
        e(f"v_cmp_ne_u32 vcc, s{sWIN + rd}, v22")
        e("s_nop 1")
        e(f"v_cndmask_b32 v22, 0, v22, vcc")
    e("v_and_b32 v24, 7, v0")
    e(f"v_mov_b32 v23, s{sWIN}")
    for j in range(1, 8):
        e(f"v_cmp_eq_u32 vcc, {j}, v24")
        e(f"v_mov_b32 v25, s{sWIN + j}")
        e("s_nop 0")
        e("v_cndmask_b32 v23, v23, v25, vcc")
    e(f"""
    v_and_b32 v26, 0x7ff, v23
    v_sub_u32 v26, 2047, v26
    v_and_b32 v27, s{sM}, v23
    v_ashrrev_i32 v28, 31, v27
    v_not_b32 v28, v28
    v_or_b32 v28, 0x80000000, v28
    v_xor_b32 v27, v27, v28
    v_and_b32 v27, s{sM}, v27             ; r (f32 bits)
    """)
    e(f"""
    v_mul_f32 v28, {hex(f2u(-LOG2E))}, v27
    v_exp_f32 v28, v28
    s_nop 0
    v_add_f32 v28, 1.0, v28
    v_rcp_f32 v28, v28
    s_nop 0
    v_cvt_pk_bf16_f32 v28, v28, v28
    v_and_b32 v28, s{sM}, v28             ; bf16(sigmoid(r))
    v_lshlrev_b32 v29, 2, v0
    v_add_u32 v29, {WS_IDX}, v29
    s_or_b32 s27, s2, s{sW}
    s_cmp_eq_u32 s27, 0
    s_cselect_b64 s[42:43], -1, 0
    v_cmp_gt_u32 vcc, 8, v0
    s_nop 1
    s_and_b64 vcc, vcc, s[42:43]
    s_and_saveexec_b64 s[40:41], vcc
    s_cbranch_execz L_km_nopub
    buffer_store_dword v26, v29, s[20:23], 0 offen
    buffer_store_dword v28, v29, s[20:23], 0 offen offset:32
    L_km_nopub:
    s_mov_b64 exec, s[40:41]
    """)
    e.vq += ["pub", "pub"]
    e(f"""
    v_lshrrev_b32 v30, 4, v0
    v_lshlrev_b32 v30, 4, v30             ; q4*16
    v_lshl_add_u32 v30, v26, 10, v30
    s_lshl_b32 s27, s{sW}, 8              ; 4w*64 bytes
    v_lshlrev_b32 v31, 2, v26
    v_add_u32 v31, {WS_STAT}, v31
    """)
    e.vm(f"buffer_load_dword v32, v31, s[20:23], 0 offen", "st")
    for i in range(4):
        e.vm(f"buffer_load_dwordx4 {rng('v', 36 + 4 * i, 4)}, v30, s[4:7], s27 offen offset:{64 * i}", ("xg", i))
    e.need(vtags=["st"])
    e(f"""
    v_lshlrev_b32 v33, 16, v32            ; mean
    v_and_b32 v34, s{sM}, v32             ; sd
    v_rcp_f32 v34, v34
    """)
    e.need(vtags=[("xg", 3)])
    for i in range(16):
        r = 36 + i
        e(f"""
        v_lshlrev_b32 v52, 16, v{r}
        v_and_b32 v53, s{sM}, v{r}
        v_sub_f32 v52, v52, v33
        v_sub_f32 v53, v53, v33
        v_cvt_pk_bf16_f32 v52, v52, v53
        v_and_b32 v53, s{sM}, v52
        v_lshlrev_b32 v52, 16, v52
        v_mul_f32 v52, v52, v34
        v_mul_f32 v53, v53, v34
        v_cvt_pk_bf16_f32 v{r}, v52, v53
        """)
    e.need(vtags=["wd"])
    e("s_barrier")
    e(f"""
    v_bfe_u32 v54, v0, 2, 2               ; r
    v_lshrrev_b32 v55, 4, v0              ; q4
    v_lshl_add_u32 v54, v55, 3, v54       ; 8 q4 + r
    v_lshlrev_b32 v54, 4, v54
    v_and_b32 v55, 1, v0
    v_lshl_add_u32 v54, v55, 3, v54       ; + (c&1)*8
    v_bfe_u32 v55, v0, 1, 1
    v_lshl_add_u32 v54, v55, 13, v54      ; + U
    s_lshl_b32 s27, s{sW}, 11
    v_add_u32 v54, s27, v54
    """)
    for i in range(4):
        for rd in range(2):
            e.lds(f"ds_read_b64_tr_b16 {rng('v', 64 + 4 * i + 2 * rd, 2)}, v54 offset:{i * 512 + rd * 64}", ("fa", i))
    for i in range(4):
        e.need(ltags=[("fa", i)])
        c = "0" if i == 0 else "v[56:59]"
        e(f"v_mfma_f32_16x16x32_bf16 v[56:59], {rng('v', 64 + 4 * i, 4)}, {rng('v', 36 + 4 * i, 4)}, {c}")
    e.nop(8)
    e(f"""
    s_lshl_b32 s27, s{sW}, 10
    v_lshlrev_b32 v60, 4, v0
    v_add_u32 v61, s27, v60
    ds_write_b128 v61, v[56:59] offset:25600
    s_waitcnt lgkmcnt(0)
    s_barrier
    ds_read_b128 v[64:67], v60 offset:25600
    ds_read_b128 v[68:71], v60 offset:{25600 + 1024}
    ds_read_b128 v[72:75], v60 offset:{25600 + 2048}
    ds_read_b128 v[76:79], v60 offset:{25600 + 3072}
    s_waitcnt lgkmcnt(0)
    """)
    for i in range(4):
        e(f"v_add_f32 v{64 + i}, v{64 + i}, v{68 + i}")
        e(f"v_add_f32 v{72 + i}, v{72 + i}, v{76 + i}")
        e(f"v_add_f32 v{64 + i}, v{64 + i}, v{72 + i}")
    for i in range(4):
        e(f"v_cvt_pk_bf16_f32 v{64 + i}, v{64 + i}, v{64 + i}")
        e(f"v_and_b32 v{64 + i}, s{sM}, v{64 + i}")
        e(f"v_mov_b32 v{68 + i}, v{64 + i}")
    e("s_nop 0")
    for i in range(4):
        e(f"v_permlane32_swap_b32 v{64 + i}, v{68 + i}")
    for i in range(4):
        silu_bf16(e, 72 + i, 64 + i, 76, 77, sM)
        e(f"v_mul_f32 v{72 + i}, v{72 + i}, v{68 + i}")
    e(f"""
    v_cvt_pk_bf16_f32 v80, v72, v73
    v_cvt_pk_bf16_f32 v81, v74, v75
    v_cmp_gt_u32 vcc, 32, v0
    v_mov_b32 v82, 0
    v_mov_b32 v83, 0
    v_cndmask_b32 v80, 0, v80, vcc
    v_cndmask_b32 v81, 0, v81, vcc
    """)
    e(f"""
    v_bfe_u32 v54, v0, 2, 2               ; r
    v_bfe_u32 v55, v0, 4, 1               ; q4 & 1
    v_lshl_add_u32 v54, v55, 2, v54       ; row 0..7
    v_lshlrev_b32 v54, 10, v54
    v_and_b32 v55, 3, v0
    v_lshl_add_u32 v54, v55, 3, v54       ; + c*8
    s_lshl_b32 s27, s{sW}, 8              ; 8w tiles * 32 B
    v_add_u32 v54, s27, v54
    v_mov_b32 v86, 0
    v_mov_b32 v87, 0
    """)
    for t in range(8):
        e.lds(f"ds_read_b64_tr_b16 {rng('v', 88 + 4 * t, 2)}, v54 offset:{16384 + t * 32}", ("da", t))
        e(f"v_mov_b32 v{90 + 4 * t}, 0")
        e(f"v_mov_b32 v{91 + 4 * t}, 0")
    for t in range(8):
        e.need(ltags=[("da", t)])
        e(f"v_mfma_f32_16x16x32_bf16 {rng('v', 120 + 4 * t, 4)}, {rng('v', 88 + 4 * t, 4)}, v[80:83], 0")
    e(f"""
    s_lshl_b32 s27, s2, 14
    s_lshl_b32 s28, s{sW}, 9              ; 8w*16*4 bytes
    s_add_u32 s27, s27, s28
    s_add_u32 s27, s27, {WS_YP}
    v_and_b32 v60, 15, v0
    v_lshlrev_b32 v61, 11, v60
    v_lshrrev_b32 v62, 4, v0
    v_lshl_add_u32 v61, v62, 4, v61
    v_add_u32 v61, s27, v61
    v_cmp_gt_u32 vcc, 8, v60
    s_nop 4
    s_and_saveexec_b64 s[40:41], vcc
    """)
    for t in range(8):
        e(f"buffer_store_dwordx4 {rng('v', 120 + 4 * t, 4)}, v61, s[20:23], 0 offen offset:{t * 64}")
    e("s_mov_b64 exec, s[40:41]")
    ts_end(e, ts, S_WS, WS_TS + (1 << 20), sW)
    e(f"{done}:")
    e("s_endpgm")
    probs = check_hazards(e.l, "km")
    if probs:
        print("\n".join(probs[:40]))
        raise SystemExit("hazards")
    return e.text()


def final_math(e, n, vs, vx, vmean, vrsd, vupd, vout, t, sM):
    for i in range(n):
        a, b = t, t + 1
        e(f"v_cvt_pk_bf16_f32 v{vs[i]}, v{vs[i]}, v{vs[i]}")
        e(f"v_and_b32 v{vs[i]}, s{sM}, v{vs[i]}")
        e(f"v_sub_f32 v{a}, v{vx[i]}, v{vmean}")
        e(f"v_cvt_pk_bf16_f32 v{a}, v{a}, v{a}")
        e(f"v_and_b32 v{a}, s{sM}, v{a}")
        e(f"v_mul_f32 v{a}, v{a}, v{vrsd}")
        e(f"v_cvt_pk_bf16_f32 v{a}, v{a}, v{a}")
        e(f"v_and_b32 v{a}, s{sM}, v{a}")
        if vupd is not None:
            e(f"v_add_f32 v{a}, v{a}, v{vupd[i]}")
            e(f"v_cvt_pk_bf16_f32 v{a}, v{a}, v{a}")
            e(f"v_and_b32 v{a}, s{sM}, v{a}")
        silu_bf16(e, a, a, b, b, sM)
        e(f"v_mul_f32 v{a}, v{vs[i]}, v{a}")
        e(f"v_cvt_pk_bf16_f32 v{a}, v{a}, v{a}")
        e(f"v_and_b32 v{a}, s{sM}, v{a}")
        e(f"v_add_f32 v{vout[i]}, v{vx[i]}, v{a}")


def gen_k2(label, ts=False, perturb=None, dbgcopy=False):
    e = E()
    done = f"L_{label}_done"
    tail = f"L_{label}_tail"
    S_X, S_WS, S_OUT = 4, 8, 12
    sW, sM = 16, 17
    sIDX = 24
    e(f"""
    s_cmp_ge_u32 s2, 576
    s_cbranch_scc1 {done}
    {"s_memrealtime s[64:65]" if (ts or dbgcopy) else ""}
    s_load_dwordx2 s[4:5], s[0:1], {KA['x']}
    s_load_dwordx2 s[8:9], s[0:1], {KA['ws']}
    s_load_dwordx2 s[12:13], s[0:1], {KA['out']}
    v_lshrrev_b32 v1, 6, v0
    v_and_b32 v0, 63, v0
    s_mov_b32 s{sM}, 0xffff0000
    v_readfirstlane_b32 s{sW}, v1
    s_waitcnt lgkmcnt(0)
    s_add_u32 s18, s8, {WS_IDX}
    s_addc_u32 s19, s9, 0
    s_load_dwordx8 s[24:31], s[18:19], 0
    s_load_dwordx8 s[32:39], s[18:19], 32
    s_mov_b32 s6, 2097152
    s_mov_b32 s7, 0x20000
    s_mov_b32 s10, 0x10000000
    s_mov_b32 s11, 0x20000
    s_mov_b32 s14, 2097152
    s_mov_b32 s15, 0x20000
    s_cmp_lt_u32 s2, 64
    s_cbranch_scc1 L_k2_sel
    s_sub_u32 s63, s2, 64
    """)
    e(f"""
    s_lshl_b32 s20, s63, 2
    s_add_u32 s20, s20, s{sW}
    s_lshr_b32 s21, s20, 6                ; tb
    s_bfe_u32 s22, s20, {5 | (1 << 16)}   ; qb
    s_bfe_u32 s23, s20, {3 | (2 << 16)}   ; a
    s_and_b32 s20, s20, 7                 ; b
    s_lshl_b32 s40, s21, 6
    s_lshl_b32 s41, s22, 5
    s_add_u32 s40, s40, s41
    s_lshl_b32 s41, s23, 3
    s_add_u32 s40, s40, s41
    v_and_b32 v2, 7, v0
    v_add_u32 v3, s40, v2                 ; token
    v_lshrrev_b32 v4, 3, v0
    s_lshl_b32 s41, s20, 7
    v_lshlrev_b32 v4, 4, v4
    v_lshl_add_u32 v4, v3, 10, v4
    v_add_u32 v4, s41, v4
    s_lshl_b32 s41, s21, 16
    s_lshr_b32 s42, s20, 1
    s_lshl_b32 s42, s42, 14
    s_add_u32 s41, s41, s42
    s_and_b32 s42, s20, 1
    s_lshl_b32 s42, s42, 13
    s_add_u32 s41, s41, s42
    s_lshl_b32 s42, s22, 10
    s_add_u32 s41, s41, s42
    s_lshl_b32 s42, s23, 7
    s_add_u32 s41, s41, s42
    v_lshrrev_b32 v5, 4, v0
    v_lshlrev_b32 v5, 11, v5
    v_bfe_u32 v6, v0, 3, 1
    v_lshl_add_u32 v5, v6, 9, v5
    v_lshl_add_u32 v5, v2, 4, v5
    v_add_u32 v5, s41, v5
    v_lshlrev_b32 v7, 2, v3
    v_add_u32 v7, {WS_STAT}, v7
    """)
    for g in range(8):
        e(f"s_mov_b32 s{44 + g}, {g << 21}")
    for g in range(8):
        e.vm(f"buffer_load_dwordx4 {rng('v', 16 + 4 * g, 4)}, v5, s[8:11], s{44 + g} offen", ("p", g))
    e.vm(f"buffer_load_dword v8, v7, s[8:11], 0 offen", "st")
    e.vm(f"buffer_load_dwordx4 v[12:15], v4, s[4:7], 0 offen", "x")
    e(f"""
    s_mov_b32 s56, 0x00003f80            ; (1.0, 0)
    s_mov_b32 s57, 0x3f800000            ; (0, 1.0)
    s_mov_b32 s58, {hex(f2u(-LOG2E))}
    s_mov_b32 s59, {hex(f2u(-LOG2E))}
    s_mov_b32 s60, 1.0
    s_mov_b32 s61, 1.0
    """)
    e("s_waitcnt lgkmcnt(0)")
    for j in range(8):
        e(f"v_cmp_ne_u32 s[{72 + 2 * (j & 3)}:{73 + 2 * (j & 3)}], s{24 + j}, v3")
        if j == 3:
            e("s_nop 0")
            e("s_and_b64 s[52:53], s[72:73], s[74:75]")
            e("s_and_b64 s[54:55], s[76:77], s[78:79]")
            e("s_and_b64 s[52:53], s[52:53], s[54:55]")
    e("s_nop 0")
    e("s_and_b64 s[72:73], s[72:73], s[74:75]")
    e("s_and_b64 s[76:77], s[76:77], s[78:79]")
    e("s_and_b64 s[52:53], s[52:53], s[72:73]")
    e("s_and_b64 s[52:53], s[52:53], s[76:77]")
    for g in range(8):
        e.need(vtags=[("p", g)])
        for i in range(4):
            r = 16 + 4 * g + i
            c0 = "0" if g == 0 else f"v{48 + 2 * i}"
            c1 = "0" if g == 0 else f"v{49 + 2 * i}"
            e(f"v_dot2_f32_bf16 v{48 + 2 * i}, v{r}, s56, {c0}")
            e(f"v_dot2_f32_bf16 v{49 + 2 * i}, v{r}, s57, {c1}")
    e.need(vtags=["x"])
    e(f"""
    v_and_b32 v10, s{sM}, v8              ; sd
    v_rcp_f32 v10, v10
    v_lshlrev_b32 v9, 16, v8              ; mean
    v_mul_f32 v8, v9, v10
    v_sub_f32 v8, 0, v8
    """)
    for i in range(4):
        e(f"v_lshlrev_b32 v{60 + 2 * i}, 16, v{12 + i}")
        e(f"v_and_b32 v{61 + 2 * i}, s{sM}, v{12 + i}")
    P = lambda b: f"v[{b}:{b + 1}]"
    for i in range(4):
        e(f"v_pk_fma_f32 {P(16 + 2 * i)}, {P(60 + 2 * i)}, v[10:11], v[8:9] op_sel_hi:[1,0,0]")
    for i in range(4):
        e(f"v_pk_mul_f32 {P(24 + 2 * i)}, {P(16 + 2 * i)}, s[58:59]")
    for i in range(8):
        e(f"v_exp_f32 v{24 + i}, v{24 + i}")
    for i in range(4):
        e(f"v_pk_add_f32 {P(24 + 2 * i)}, {P(24 + 2 * i)}, s[60:61]")
    for i in range(8):
        e(f"v_rcp_f32 v{24 + i}, v{24 + i}")
    for i in range(4):
        e(f"v_pk_mul_f32 {P(16 + 2 * i)}, {P(16 + 2 * i)}, {P(24 + 2 * i)}")
    for i in range(4):
        e(f"v_pk_fma_f32 {P(60 + 2 * i)}, {P(48 + 2 * i)}, {P(16 + 2 * i)}, {P(60 + 2 * i)}")
    if perturb is not None:
        kind, delta = perturb
        if kind == "one":
            e(f"""
            v_cmp_eq_u32 vcc, 0, v4
            v_mov_b32 v58, {hex(f2u(delta))}
            s_nop 0
            v_cndmask_b32 v58, 0, v58, vcc
            v_add_f32 v60, v60, v58
            """)
        elif kind == "all":
            for i in range(8):
                e(f"v_add_f32 v{60 + i}, {hex(f2u(delta))}, v{60 + i}")
        elif kind == "mul":
            for i in range(8):
                e(f"v_mul_f32 v{60 + i}, {hex(f2u(delta))}, v{60 + i}")
    for i in range(4):
        e(f"v_cvt_pk_bf16_f32 v{12 + i}, v{60 + 2 * i}, v{61 + 2 * i}")
    e(f"""
    s_and_saveexec_b64 s[54:55], s[52:53]
    s_cbranch_execz {tail}
    buffer_store_dwordx4 v[12:15], v4, s[12:15], 0 offen
    s_branch {tail}
    """)
    e("L_k2_sel:")
    e.vq, e.lq = [], []
    e(f"""
    s_lshr_b32 s21, s2, 3                 ; j
    s_and_b32 s22, s2, 7                  ; cb
    """)
    e(f"""
    s_mul_i32 s42, s{sW}, {56 * 16384}
    s_lshl_b32 s43, s21, 11               ; j*2048
    s_add_u32 s42, s42, s43
    s_lshl_b32 s43, s22, 8                ; cb*64*4
    s_add_u32 s42, s42, s43
    s_add_u32 s42, s42, {WS_YP}
    v_lshrrev_b32 v2, 4, v0
    v_lshlrev_b32 v2, 14, v2
    v_and_b32 v3, 15, v0
    v_lshl_add_u32 v2, v3, 4, v2
    v_add_u32 v2, s42, v2
    s_mov_b32 s43, 0
    """)
    for i in range(14):
        e.vm(f"buffer_load_dwordx4 {rng('v', 16 + 4 * i, 4)}, v2, s[8:11], s43 offen", ("y", i))
        e(f"s_add_u32 s43, s43, {4 * 16384}")
    e("s_waitcnt lgkmcnt(0)")
    e("s_mov_b32 s40, s24")
    e("s_mov_b32 s41, s32")
    for j in range(1, 8):
        e(f"s_cmp_eq_u32 s21, {j}")
        e(f"s_cselect_b32 s40, s{24 + j}, s40")
        e(f"s_cselect_b32 s41, s{32 + j}, s41")
    e(f"""
    s_lshl_b32 s43, s22, 7
    s_lshl_b32 s44, s40, 10
    s_add_u32 s43, s43, s44
    v_lshlrev_b32 v4, 3, v3
    v_add_u32 v4, s43, v4
    s_lshl_b32 s44, s40, 2
    s_add_u32 s44, s44, {WS_STAT}
    v_mov_b32 v7, s44
    s_lshr_b32 s44, s40, 6
    s_lshl_b32 s44, s44, 16
    s_lshr_b32 s45, s22, 1
    s_lshl_b32 s45, s45, 14
    s_add_u32 s44, s44, s45
    s_and_b32 s45, s22, 1
    s_lshl_b32 s45, s45, 13
    s_add_u32 s44, s44, s45
    s_bfe_u32 s45, s40, {5 | (1 << 16)}
    s_lshl_b32 s45, s45, 10
    s_add_u32 s44, s44, s45
    s_and_b32 s45, s40, 31
    s_lshl_b32 s45, s45, 4
    s_add_u32 s44, s44, s45
    v_lshrrev_b32 v5, 2, v3
    v_lshlrev_b32 v5, 11, v5
    v_bfe_u32 v6, v3, 1, 1
    v_lshl_add_u32 v5, v6, 9, v5
    v_and_b32 v6, 1, v3
    v_lshl_add_u32 v5, v6, 3, v5
    v_add_u32 v5, s44, v5
    """)
    for g in range(8):
        e(f"s_mov_b32 s{56 + g}, {g << 21}")
    e.vm(f"buffer_load_dword v8, v7, s[8:11], 0 offen", "st")
    e.vm(f"buffer_load_dwordx2 v[12:13], v4, s[4:7], 0 offen", "x")
    for g in range(8):
        e.vm(f"buffer_load_dwordx2 {rng('v', 80 + 2 * g, 2)}, v5, s[8:11], s{56 + g} offen", ("p", g))
    for i in range(14):
        e.need(vtags=[("y", i)])
        if i > 0:
            for q in range(4):
                e(f"v_add_f32 v{16 + q}, v{16 + q}, v{16 + 4 * i + q}")
    for q in range(4):
        e(f"v_mov_b32 v{20 + q}, v{16 + q}")
    e("s_nop 0")
    for q in range(4):
        e(f"v_permlane32_swap_b32 v{16 + q}, v{20 + q}")
    for q in range(4):
        e(f"v_add_f32 v{16 + q}, v{16 + q}, v{20 + q}")
    for q in range(4):
        e(f"v_mov_b32 v{20 + q}, v{16 + q}")
    e("s_nop 0")
    for q in range(4):
        e(f"v_permlane16_swap_b32 v{16 + q}, v{20 + q}")
    for q in range(4):
        e(f"v_add_f32 v{16 + q}, v{16 + q}, v{20 + q}")
    e(f"""
    s_lshl_b32 s43, s{sW}, 10
    v_lshlrev_b32 v24, 4, v0
    v_add_u32 v25, s43, v24
    ds_write_b128 v25, v[16:19]
    s_waitcnt lgkmcnt(0)
    s_barrier
    s_cmp_lg_u32 s{sW}, 0
    s_cbranch_scc1 {tail}
    ds_read_b128 v[16:19], v24
    ds_read_b128 v[20:23], v24 offset:1024
    ds_read_b128 v[28:31], v24 offset:2048
    ds_read_b128 v[32:35], v24 offset:3072
    s_waitcnt lgkmcnt(0)
    """)
    for q in range(4):
        e(f"v_add_f32 v{16 + q}, v{16 + q}, v{20 + q}")
        e(f"v_add_f32 v{28 + q}, v{28 + q}, v{32 + q}")
        e(f"v_add_f32 v{16 + q}, v{16 + q}, v{28 + q}")
    for q in range(4):
        e(f"v_cvt_pk_bf16_f32 v{16 + q}, v{16 + q}, v{16 + q}")
        e(f"v_and_b32 v{16 + q}, s{sM}, v{16 + q}")
        e(f"v_mul_f32 v{16 + q}, s41, v{16 + q}")
        e(f"v_cvt_pk_bf16_f32 v{16 + q}, v{16 + q}, v{16 + q}")
        e(f"v_and_b32 v{16 + q}, s{sM}, v{16 + q}")
    e.need(vtags=[("p", 7)])
    for g in range(8):
        for i in range(2):
            r = 80 + 2 * g + i
            if g == 0:
                e(f"v_lshlrev_b32 v{48 + 2 * i}, 16, v{r}")
                e(f"v_and_b32 v{49 + 2 * i}, s{sM}, v{r}")
            else:
                e(f"v_lshlrev_b32 v56, 16, v{r}")
                e(f"v_and_b32 v57, s{sM}, v{r}")
                e(f"v_add_f32 v{48 + 2 * i}, v{48 + 2 * i}, v56")
                e(f"v_add_f32 v{49 + 2 * i}, v{49 + 2 * i}, v57")
    e(f"""
    v_lshlrev_b32 v9, 16, v8
    v_and_b32 v10, s{sM}, v8
    v_rcp_f32 v10, v10
    """)
    for i in range(2):
        e(f"v_lshlrev_b32 v{60 + 2 * i}, 16, v{12 + i}")
        e(f"v_and_b32 v{61 + 2 * i}, s{sM}, v{12 + i}")
    final_math(e, 4, [48 + i for i in range(4)], [60 + i for i in range(4)], 9, 10, [16 + i for i in range(4)],
               [60 + i for i in range(4)], 56, sM)
    for i in range(2):
        e(f"v_cvt_pk_bf16_f32 v{12 + i}, v{60 + 2 * i}, v{61 + 2 * i}")
    e(f"""
    v_cmp_gt_u32 vcc, 16, v0
    s_nop 0
    s_and_saveexec_b64 s[54:55], vcc
    buffer_store_dwordx2 v[12:13], v4, s[12:15], 0 offen
    """)
    e(f"{tail}:")
    if dbgcopy:
        e(f"""
        s_mov_b64 exec, -1
        s_waitcnt vmcnt(0) lgkmcnt(0)
        s_memrealtime s[66:67]
        s_load_dwordx2 s[70:71], s[0:1], {KA['dbg']}
        s_cmp_lg_u32 s{sW}, 0
        s_cbranch_scc1 {done}
        s_cmp_lg_u32 s2, 0
        s_cbranch_scc1 {done}
        v_lshlrev_b32 v100, 3, v0
        v_add_u32 v100, {WS_TS}, v100
        buffer_load_dword v101, v100, s[{S_WS}:{S_WS + 3}], 0 offen
        v_mov_b32 v102, {WS_TS}
        buffer_load_dword v103, v102, s[{S_WS}:{S_WS + 3}], 0 offen
        s_waitcnt vmcnt(0) lgkmcnt(0)
        v_sub_u32 v101, v101, v103
        v_mov_b32 v104, s64
        v_sub_u32 v104, v104, v103
        v_mov_b32 v105, s66
        v_sub_u32 v105, v105, v103
        v_cmp_eq_u32 vcc, 9, v0
        s_nop 1
        v_cndmask_b32 v101, v101, v104, vcc
        v_cmp_eq_u32 vcc, 10, v0
        s_nop 1
        v_cndmask_b32 v101, v101, v105, vcc
        v_lshlrev_b32 v100, 2, v0
        v_cmp_gt_u32 vcc, 11, v0
        s_nop 1
        s_and_saveexec_b64 s[68:69], vcc
        global_store_dword v100, v101, s[70:71]
        s_waitcnt vmcnt(0)
        """)
    ts_end(e, ts, S_WS, WS_TS + (2 << 20), sW)
    e(f"{done}:")
    e("s_endpgm")
    probs = check_hazards(e.l, "k2") + check_scc(e.l)
    if probs:
        print("\n".join(probs[:40]))
        raise SystemExit("hazards")
    return e.text()


SORT8 = [(0, 1), (2, 3), (4, 5), (6, 7), (0, 2), (1, 3), (4, 6), (5, 7), (1, 2), (5, 6), (0, 4), (3, 7),
         (1, 5), (2, 6), (1, 4), (3, 6), (2, 4), (3, 5), (3, 4)]


def _check_sort8():
    import itertools
    for bits in itertools.product([0, 1], repeat=8):
        a = list(bits)
        for i, j in SORT8:
            if a[i] < a[j]:
                a[i], a[j] = a[j], a[i]
        assert a == sorted(a, reverse=True)


_check_sort8()


def keys_from_r(e, K, vidx, sM, tmp):
    for i in range(8):
        r = K[i]
        e(f"v_ashrrev_i32 v{tmp}, 31, v{r}")
        e(f"v_or_b32 v{tmp}, 0x80000000, v{tmp}")
        e(f"v_xor_b32 v{r}, v{r}, v{tmp}")
        e(f"v_and_or_b32 v{r}, v{r}, s{sM}, v{vidx}")
        if i < 7:
            e(f"v_subrev_u32 v{vidx}, 1, v{vidx}")


def wave_top8(e, K, spare, vres, vt, stmp, smask):
    K = list(K)
    free = spare
    for (i, j) in SORT8:
        e(f"v_max_u32 v{free}, v{K[i]}, v{K[j]}")
        e(f"v_min_u32 v{K[j]}, v{K[i]}, v{K[j]}")
        K[i], free = free, K[i]
    e(f"v_mov_b32 v{vres}, 0")
    for rd in range(8):
        e(f"v_mov_b32 v{vt}, v{K[0]}")
        wave_max_u32(e, vt, stmp)
        e("s_nop 1")
        e(f"v_writelane_b32 v{vres}, s{stmp}, {rd}")
        if rd < 7:
            e(f"v_cmp_eq_u32 s[{smask}:{smask + 1}], s{stmp}, v{K[0]}")
            e("s_nop 1")
            for q in range(7 - rd):
                e(f"v_cndmask_b32 v{K[q]}, v{K[q]}, v{K[q + 1]}, s[{smask}:{smask + 1}]")


def moe_side(e, side, R):
    from k1 import RB, WSTR, SLOT
    sW, sRING, sM = R["W"], R["RING"], R["M"]
    S_X, S_WS = R["X"], R["WS"]
    sA, sB = 46, 47
    MX = 5 * 4096
    mk = [60, 62, 64, 66]
    K = [88 + i for i in range(8)]
    spare, vres, vt, vidx, tmp = 96, 97, 98, 99, 100
    A = side.add
    free = spare
    for (i, j) in SORT8:
        A(f"v_max_u32 v{free}, v{K[i]}, v{K[j]}")
        A(f"v_min_u32 v{K[j]}, v{K[i]}, v{K[j]}")
        K[i], free = free, K[i]
    A(f"v_mov_b32 v{vres}, 0")
    for rd in range(8):
        A(f"v_mov_b32 v{vt}, v{K[0]}")
        for sh in (1, 2, 4, 8):
            A(f"v_max_u32_dpp v{vt}, v{vt}, v{vt} row_shr:{sh} row_mask:0xf bank_mask:0xf", gap=2)
        A(f"v_max_u32_dpp v{vt}, v{vt}, v{vt} row_bcast:15 row_mask:0xa bank_mask:0xf", gap=2)
        A(f"v_max_u32_dpp v{vt}, v{vt}, v{vt} row_bcast:31 row_mask:0xc bank_mask:0xf", gap=2)
        A(f"v_readlane_b32 s{sA}, v{vt}, 63", gap=1)
        if rd < 7:
            A(f"v_cmp_eq_u32 s[{mk[0]}:{mk[0] + 1}], s{sA}, v{K[0]}", gap=2)
            A(f"v_writelane_b32 v{vres}, s{sA}, {rd}")
            for q in range(7 - rd):
                A(f"v_cndmask_b32 v{K[q]}, v{K[q]}, v{K[q + 1]}, s[{mk[0]}:{mk[0] + 1}]", gap=(1 if q == 0 else 0))
        else:
            A(f"v_writelane_b32 v{vres}, s{sA}, {rd}", gap=2)
    A(f"v_writelane_b32 v{vres}, s{R['RDY']}, 8")
    A(f"v_lshlrev_b32 v{tmp}, 2, v0")
    A(f"v_add_u32 v{tmp}, s{sRING}, v{tmp}")
    A(lambda: e.lds(f"ds_write_b32 v{tmp}, v{vres} offset:{MX}", ("mw", 0)))
    A(f"v_lshrrev_b32 v126, 3, v0")
    A(f"v_and_b32 v126, 3, v126")
    A(f"v_mul_u32_u24 v126, {WSTR}, v126")
    A(f"v_and_b32 v127, 7, v0")
    A(f"v_lshl_add_u32 v126, v127, 2, v126")
    A(f"v_add_u32 v126, {RB + MX}, v126")

    def bar():
        e.need(ltags=[("mw", 0)])
        e("s_barrier")
    A(bar)
    A(lambda: e.lds(f"ds_read_b32 v120, v126", ("mo", 0)))
    for w_ in range(4):
        A(f"v_mov_b32 v127, {RB + MX + w_ * WSTR}")
        A(lambda w_=w_: e.lds(f"ds_read_b128 v[{88 + 8 * w_}:{91 + 8 * w_}], v127", ("mc", w_)))
        A(lambda w_=w_: e.lds(f"ds_read_b128 v[{92 + 8 * w_}:{95 + 8 * w_}], v127 offset:16", ("mc", w_)))
        A(lambda w_=w_: e.lds(f"ds_read_b32 v{121 + w_}, v127 offset:32", ("mf", w_)))
    A(f"v_mov_b32 v125, 0")
    A(lambda: e.need(ltags=[("mf", 3)]))
    A(f"v_and_b32 v121, v121, v122")
    A(f"v_and_b32 v123, v123, v124")
    A(f"v_and_b32 v121, v121, v123")
    for j0 in range(0, 32, 4):
        for q in range(4):
            A(f"v_cmp_gt_u32 s[{mk[q]}:{mk[q] + 1}], v{88 + j0 + q}, v120")
        for q in range(4):
            A(f"v_addc_co_u32 v125, vcc, 0, v125, s[{mk[q]}:{mk[q] + 1}]", gap=(0 if q else 0))
    A(f"v_readfirstlane_b32 s{R['RDY']}, v121")
    A(f"v_lshlrev_b32 v126, 2, v125")
    A(f"v_add_u32 v126, s{sRING}, v126")
    A(lambda: e.lds(f"ds_write_b32 v126, v120 offset:{MX + 64}", ("mp", 0)))
    A(f"v_and_b32 v127, 7, v0")
    A(f"v_lshlrev_b32 v127, 2, v127")
    A(f"v_add_u32 v127, s{sRING}, v127")
    A(lambda: e.lds(f"ds_read_b32 v124, v127 offset:{MX + 64}", ("mq", 0)))
    A(f"v_lshrrev_b32 v122, 4, v0")
    A(f"v_lshlrev_b32 v122, 4, v122")
    A(f"s_lshl_b32 s{sB}, s{sW}, 8")
    A(lambda: e.need(ltags=[("mq", 0)]))
    A(f"v_and_b32 v123, 0x7ff, v124")
    A(f"v_sub_u32 v123, 2047, v123")
    A(f"v_accvgpr_write_b32 a225, v124")
    A(f"v_lshl_add_u32 v122, v123, 10, v122")
    A(f"v_lshlrev_b32 v123, 2, v123")
    A(f"v_add_u32 v123, {WS_STAT}, v123")
    A(lambda: e.vm(f"buffer_load_dword a224, v123, s[{S_WS}:{S_WS + 3}], 0 offen sc1", ("g", 0)), cond=(27, 0))
    for i in range(4):
        A(lambda i=i: e.vm(f"buffer_load_dwordx4 a[{208 + 4 * i}:{211 + 4 * i}], v122, s[{S_X}:{S_X + 3}], s{sB} offen offset:{64 * i}",
                           ("g", 1 + i)))


def sum_partials(e, base, acc, n_src, n_regs, s_lo, s_hi):
    for g in range(n_src):
        yield g
        for i in range(n_regs):
            r = base + n_regs * g + i
            c0 = "0" if g == 0 else f"v{acc + 2 * i}"
            c1 = "0" if g == 0 else f"v{acc + 2 * i + 1}"
            e(f"v_dot2_f32_bf16 v{acc + 2 * i}, v{r}, s{s_lo}, {c0}")
            e(f"v_dot2_f32_bf16 v{acc + 2 * i + 1}, v{r}, s{s_hi}, {c1}")


def flag_prepare(e, R, sA, sB, v, first, count):
    e(f"""
    s_lshl_b32 s{sA}, s{R['TB']}, 3
    s_add_u32 s{sB}, s{sA}, s{R['G']}
    s_lshl_b32 s{sB}, s{sB}, 2
    s_add_u32 s{sB}, s{sB}, {WS_FLG}
    s_cmp_eq_u32 s{R['W']}, 0
    s_cselect_b32 s{sB}, s{sB}, 0x7fff0000
    v_lshlrev_b32 v{v}, 10, v0
    v_add_u32 v{v}, s{sB}, v{v}
    v_mov_b32 v{v + 1}, 0x7fff0000
    v_cmp_gt_u32 vcc, {first + count}, v0
    s_nop 1
    v_cndmask_b32 v{v}, v{v + 1}, v{v}, vcc
    v_mov_b32 v{v + 1}, 1
    """)


def fused_finish(e, R, sA, sB, mk):
    S_X, S_WS, sW, sM = R["X"], R["WS"], R["W"], R["M"]
    sG, sTB = R["G"], R["TB"]
    S_OUT = 20
    from k1 import RB
    GO = RB + 5 * 4096 + 512
    e.nop(4)
    for u in range(4):
        a, b = 120 + 8 * u, 124 + 8 * u
        e(f"v_cvt_pk_bf16_f32 v{a}, v{a}, v{a + 1}")
        e(f"v_cvt_pk_bf16_f32 v{a + 1}, v{a + 2}, v{a + 3}")
        e(f"v_cvt_pk_bf16_f32 v{a + 2}, v{b}, v{b + 1}")
        e(f"v_cvt_pk_bf16_f32 v{a + 3}, v{b + 2}, v{b + 3}")
    e(f"""
    s_lshl_b32 s{sA}, s{R['SL']}, 13
    s_lshl_b32 s{sB}, s{sW}, 11
    s_add_u32 s{sA}, s{sA}, s{sB}
    s_add_u32 s{sA}, s{sA}, {WS_YP}
    v_and_b32 v60, 15, v0
    v_lshlrev_b32 v61, 6, v60
    v_lshrrev_b32 v62, 4, v0
    v_lshl_add_u32 v61, v62, 4, v61
    v_add_u32 v61, s{sA}, v61
    v_mov_b32 v63, 0x1ffffff0
    v_cmp_gt_u32 vcc, 8, v60
    s_nop 1
    v_cndmask_b32 v61, v63, v61, vcc
    """)
    for u in range(4):
        e(f"buffer_store_dwordx4 v[{120 + 8 * u}:{123 + 8 * u}], v61, s[{S_WS}:{S_WS + 3}], 0 offen offset:{u * 512} sc1")
    e(f"""
    L_fin_sync:
    v_mov_b32 v60, {GO}
    v_mov_b32 v62, 0
    v_mov_b32 v63, 0
    ds_write_b64 v60, v[62:63]
    """)
    flag_prepare(e, R, sA, sB, 24, 0, 9)
    e(f"""
    s_waitcnt vmcnt(0) lgkmcnt(0)
    s_barrier
    buffer_store_dword v25, v24, s[{S_WS}:{S_WS + 3}], 0 offen sc1
    s_mov_b32 s22, 2097152
    s_mov_b32 s23, 0x20000
    """)
    R["stamp"]("flag")
    for j in range(8):
        e(f"v_readlane_b32 s{8 + j}, v26, {j}")
    e(f"""
    s_mov_b32 s16, 0x00003f80
    s_mov_b32 s17, 0x3f800000
    s_mov_b32 s18, {hex(f2u(-LOG2E))}
    s_mov_b32 s19, {hex(f2u(-LOG2E))}
    s_mov_b32 s48, 1.0
    s_mov_b32 s49, 1.0
    """)
    for g in range(8):
        e(f"s_mov_b32 s{52 + g}, {g << 21}")
    e(f"""
    s_lshl_b32 s{sA}, s{sTB}, 6
    s_lshl_b32 s{sB}, s{sG}, 3
    s_add_u32 s{sA}, s{sA}, s{sB}
    v_and_b32 v2, 7, v0
    v_add_u32 v3, s{sA}, v2                 ; token
    v_lshrrev_b32 v4, 3, v0
    v_lshlrev_b32 v4, 4, v4
    v_lshl_add_u32 v4, v3, 10, v4
    s_lshl_b32 s{sB}, s{sW}, 8
    v_add_u32 v4, s{sB}, v4
    v_lshlrev_b32 v7, 2, v3
    v_add_u32 v7, {WS_STAT}, v7
    s_lshl_b32 s{sA}, s{sTB}, 16
    s_lshl_b32 s{sB}, s{sW}, 14
    s_add_u32 s{sA}, s{sA}, s{sB}
    s_lshr_b32 s{sB}, s{sG}, 2
    s_lshl_b32 s{sB}, s{sB}, 10
    s_add_u32 s{sA}, s{sA}, s{sB}
    s_and_b32 s{sB}, s{sG}, 3
    s_lshl_b32 s{sB}, s{sB}, 7
    s_add_u32 s{sA}, s{sA}, s{sB}
    v_lshrrev_b32 v5, 4, v0
    v_lshlrev_b32 v5, 11, v5
    v_bfe_u32 v6, v0, 3, 1
    v_lshl_add_u32 v5, v6, 9, v5
    v_lshl_add_u32 v5, v2, 4, v5
    v_add_u32 v5, s{sA}, v5
    v_add_u32 v6, 8192, v5                  ; task 1
    s_lshl_b32 s{sA}, s{sTB}, 5
    s_add_u32 s{sA}, s{sA}, {WS_FLG}
    s_lshr_b32 s{sB}, s2, 3
    s_and_b32 s{sB}, s{sB}, 7
    s_add_u32 s{sB}, s{sB}, 1
    s_lshl_b32 s51, s{sB}, 10
    s_lshr_b32 s{sB}, s{sW}, 1
    s_mul_i32 s50, s{sB}, s51
    s_add_u32 s{sA}, s{sA}, s50
    v_lshlrev_b32 v8, 2, v2
    v_add_u32 v8, s{sA}, v8
    v_lshlrev_b32 v9, 4, v0
    v_add_u32 v9, s51, v9
    v_add_u32 v9, {WS_FLG}, v9
    s_lshl_b32 s{sB}, s{sB}, 2
    s_add_u32 s{sB}, s{sB}, {GO}
    v_mov_b32 v11, s{sB}
    """)
    e.vq, e.lq = [], []
    e.vm(f"buffer_load_dwordx4 v[12:15], v4, s[{S_X}:{S_X + 3}], 0 offen", "x0")
    e.vm(f"buffer_load_dwordx4 v[16:19], v4, s[{S_X}:{S_X + 3}], 0 offen offset:128", "x1")
    spin = R["opt"].get("finspin", 200000)
    slp = R["opt"].get("finsleep", 1)
    e(f"""
    s_mov_b32 s{sB}, {spin}
    s_bitcmp1_b32 s{sW}, 0
    s_cbranch_scc1 L_fin_watch
    s_cmp_eq_u32 s{sW}, 0
    s_cbranch_scc1 L_fin_poll
    s_cmp_lt_u32 s2, 128
    s_cbranch_scc1 L_fin_pollall
    L_fin_poll:
    buffer_load_dword v20, v8, s[{S_WS}:{S_WS + 3}], 0 offen sc1
    s_waitcnt vmcnt(0)
    v_cmp_eq_u32 vcc, 1, v20
    s_sub_u32 s{sB}, s{sB}, 1
    s_cmp_eq_u32 s{sB}, 0
    s_cbranch_scc1 L_fin_set
    s_cmp_eq_u64 vcc, -1
    s_cbranch_scc1 L_fin_set
    s_sleep {slp}
    s_branch L_fin_poll
    L_fin_pollall:
    buffer_load_dwordx4 v[20:23], v9, s[{S_WS}:{S_WS + 3}], 0 offen sc1
    s_waitcnt vmcnt(0)
    v_and_b32 v20, v20, v21
    v_and_b32 v22, v22, v23
    v_and_b32 v20, v20, v22
    v_cmp_eq_u32 vcc, 1, v20
    s_sub_u32 s{sB}, s{sB}, 1
    s_cmp_eq_u32 s{sB}, 0
    s_cbranch_scc1 L_fin_set
    s_cmp_eq_u64 vcc, -1
    s_cbranch_scc1 L_fin_set
    s_sleep {slp}
    s_branch L_fin_pollall
    L_fin_set:
    v_mov_b32 v20, 1
    ds_write_b32 v11, v20
    s_branch L_fin_go
    L_fin_watch:
    s_lshl_b32 s{sB}, s{sB}, 4
    L_fin_watch_loop:
    ds_read_b32 v20, v11
    s_waitcnt lgkmcnt(0)
    v_readfirstlane_b32 s{sA}, v20
    s_sub_u32 s{sB}, s{sB}, 1
    s_cmp_eq_u32 s{sB}, 0
    s_cbranch_scc1 L_fin_go
    s_cmp_eq_u32 s{sA}, 1
    s_cbranch_scc0 L_fin_watch_loop
    L_fin_go:
    """)
    R["stamp"]("polled")
    e.vq = []
    e.vm(f"buffer_load_dword v10, v7, s[{S_WS}:{S_WS + 3}], 0 offen sc1", "st")
    for i in range(2):
        for g in range(8):
            e.vm(f"buffer_load_dwordx4 {rng('v', 64 + 32 * i + 4 * g, 4)}, v{5 + i}, s[{S_WS}:{S_WS + 3}], s{52 + g} offen sc1",
                 ("p", i, g))
    e(f"""
    s_cmp_lg_u32 s{sW}, 2
    s_cbranch_scc1 L_fin_nosel1
    s_cmp_ge_u32 s2, 128
    s_cbranch_scc1 L_fin_nosel1
    s_lshr_b32 s50, s2, 4                   ; j
    s_and_b32 s51, s2, 15                   ; cp
    s_nop 0
    v_readlane_b32 s46, v26, s50            ; token
    v_readlane_b32 s47, v28, s50            ; sigmoid(r)
    s_lshl_b32 s{sA}, s51, 9                ; w*2048 + u*512 = cp*512
    s_lshl_b32 s{sB}, s50, 6
    s_add_u32 s{sA}, s{sA}, s{sB}
    s_add_u32 s{sA}, s{sA}, {WS_YP}
    v_lshrrev_b32 v24, 2, v0
    v_lshlrev_b32 v24, 13, v24
    v_and_b32 v25, 3, v0                    ; q4
    v_lshl_add_u32 v24, v25, 4, v24
    v_add_u32 v24, s{sA}, v24
    s_lshr_b32 s{sA}, s46, 6
    s_lshl_b32 s{sA}, s{sA}, 16
    s_lshl_b32 s{sB}, s51, 12
    s_add_u32 s{sA}, s{sA}, s{sB}
    s_bfe_u32 s{sB}, s46, {5 | (1 << 16)}
    s_lshl_b32 s{sB}, s{sB}, 10
    s_add_u32 s{sA}, s{sA}, s{sB}
    s_and_b32 s{sB}, s46, 31
    s_lshl_b32 s{sB}, s{sB}, 4
    s_add_u32 s{sA}, s{sA}, s{sB}
    v_lshrrev_b32 v27, 1, v25
    v_lshlrev_b32 v27, 9, v27
    v_and_b32 v29, 1, v25
    v_lshl_add_u32 v27, v29, 3, v27
    v_add_u32 v27, s{sA}, v27
    s_lshl_b32 s{sA}, s46, 10
    s_lshl_b32 s{sB}, s51, 6
    s_add_u32 s{sA}, s{sA}, s{sB}
    v_lshlrev_b32 v29, 3, v25
    v_add_u32 v29, s{sA}, v29
    s_lshl_b32 s{sA}, s46, 2
    s_add_u32 s{sA}, s{sA}, {WS_STAT}
    v_mov_b32 v30, s{sA}
    s_mov_b32 s{sA}, 0
    """)
    for i in range(14):
        e(f"buffer_load_dwordx4 {rng('v', 128 + 4 * i, 4)}, v24, s[{S_WS}:{S_WS + 3}], s{sA} offen sc1")
        e(f"s_add_u32 s{sA}, s{sA}, {16 * 8192}")
    for g in range(8):
        e(f"buffer_load_dwordx2 {rng('v', 192 + 4 * g, 2)}, v27, s[{S_WS}:{S_WS + 3}], s{52 + g} offen sc1")
        e(f"buffer_load_dwordx2 {rng('v', 194 + 4 * g, 2)}, v27, s[{S_WS}:{S_WS + 3}], s{52 + g} offen offset:2048 sc1")
    e(f"""
    buffer_load_dwordx2 v[224:225], v29, s[{S_X}:{S_X + 3}], 0 offen
    buffer_load_dwordx2 v[226:227], v29, s[{S_X}:{S_X + 3}], 0 offen offset:32
    buffer_load_dword v228, v30, s[{S_WS}:{S_WS + 3}], 0 offen sc1
    L_fin_nosel1:
    """)
    for j in range(8):
        e(f"v_cmp_ne_u32 s[{mk[j & 3]}:{mk[j & 3] + 1}], s{8 + j}, v3")
        if (j & 3) == 3:
            e("s_nop 0")
            e(f"s_and_b64 s[{mk[0]}:{mk[0] + 1}], s[{mk[0]}:{mk[0] + 1}], s[{mk[1]}:{mk[1] + 1}]")
            e(f"s_and_b64 s[{mk[2]}:{mk[2] + 1}], s[{mk[2]}:{mk[2] + 1}], s[{mk[3]}:{mk[3] + 1}]")
            if j == 3:
                e(f"s_and_b64 s[68:69], s[{mk[0]}:{mk[0] + 1}], s[{mk[2]}:{mk[2] + 1}]")
            else:
                e(f"s_and_b64 s[{mk[0]}:{mk[0] + 1}], s[{mk[0]}:{mk[0] + 1}], s[{mk[2]}:{mk[2] + 1}]")
                e(f"s_and_b64 s[68:69], s[68:69], s[{mk[0]}:{mk[0] + 1}]")
    P = lambda b: f"v[{b}:{b + 1}]"

    def regular(extra):
        e.vq = ["st"] + [("p", i, g) for i in range(2) for g in range(8)] + ["sel"] * extra
        e.need(vtags=["st"])
        e(f"""
        v_mov_b32 v31, 0x7ffffff0
        v_cndmask_b32 v32, v31, v4, s[68:69]
        v_and_b32 v34, s{sM}, v10               ; sd
        v_rcp_f32 v34, v34
        v_lshlrev_b32 v33, 16, v10              ; mean
        v_mul_f32 v30, v33, v34
        v_sub_f32 v36, 0, v30
        """)
        for i in range(2):
            acc = 40
            for g in sum_partials(e, 64 + 32 * i, acc, 8, 4, 16, 17):
                e.need(vtags=[("p", i, g)])
            xr = 12 + 4 * i
            for q in range(4):
                e(f"v_lshlrev_b32 v{48 + 2 * q}, 16, v{xr + q}")
                e(f"v_and_b32 v{49 + 2 * q}, s{sM}, v{xr + q}")
            for q in range(4):
                e(f"v_pk_fma_f32 {P(56 + 2 * q)}, {P(48 + 2 * q)}, v[34:35], v[36:37] op_sel_hi:[1,0,0]")
            T0 = 64 + 32 * i
            for q in range(4):
                e(f"v_pk_mul_f32 {P(T0 + 2 * q)}, {P(56 + 2 * q)}, s[18:19]")
            for q in range(8):
                e(f"v_exp_f32 v{T0 + q}, v{T0 + q}")
            for q in range(4):
                e(f"v_pk_add_f32 {P(T0 + 2 * q)}, {P(T0 + 2 * q)}, s[48:49]")
            for q in range(8):
                e(f"v_rcp_f32 v{T0 + q}, v{T0 + q}")
            for q in range(4):
                e(f"v_pk_mul_f32 {P(56 + 2 * q)}, {P(56 + 2 * q)}, {P(T0 + 2 * q)}")
            for q in range(4):
                e(f"v_pk_fma_f32 {P(48 + 2 * q)}, {P(acc + 2 * q)}, {P(56 + 2 * q)}, {P(48 + 2 * q)}")
            for q in range(4):
                e(f"v_cvt_pk_bf16_f32 v{T0 + 8 + q}, v{48 + 2 * q}, v{49 + 2 * q}")
            e.vm(f"buffer_store_dwordx4 {rng('v', T0 + 8, 4)}, v32, s[{S_OUT}:{S_OUT + 3}], 0 offen offset:{128 * i}", "o")
    e(f"""
    s_cmp_lg_u32 s{sW}, 2
    s_cbranch_scc1 L_fin_plain
    s_cmp_lt_u32 s2, 128
    s_cbranch_scc1 L_fin_withsel
    L_fin_plain:
    """)
    regular(0)
    e(f"s_branch {R['done']}")
    e("L_fin_withsel:")
    regular(33)
    e("s_waitcnt vmcnt(2)")
    P2 = lambda b: f"v[{b}:{b + 1}]"
    for _ in sum_partials(e, 128, 40, 14, 4, 16, 17):
        pass
    for _ in sum_partials(e, 192, 56, 8, 4, 16, 17):
        pass
    for x in (4, 8):
        e("s_nop 1")
        for q in range(8):
            e(f"v_add_f32_dpp v{40 + q}, v{40 + q}, v{40 + q} row_ror:{x} row_mask:0xf bank_mask:0xf")
    for sw in ("v_permlane16_swap_b32", "v_permlane32_swap_b32"):
        for q in range(8):
            e(f"v_mov_b32 v{48 + q}, v{40 + q}")
        e("s_nop 0")
        for q in range(8):
            e(f"{sw} v{40 + q}, v{48 + q}")
        for q in range(8):
            e(f"v_add_f32 v{40 + q}, v{40 + q}, v{48 + q}")
    for q in range(4):
        e(f"v_cvt_pk_bf16_f32 v{48 + q}, v{40 + 2 * q}, v{41 + 2 * q}")
    for q in range(4):
        e(f"v_lshlrev_b32 v{40 + 2 * q}, 16, v{48 + q}")
        e(f"v_and_b32 v{41 + 2 * q}, s{sM}, v{48 + q}")
    e(f"""
    v_mov_b32 v48, s47
    v_and_b32 v10, s{sM}, v228
    v_rcp_f32 v10, v10
    v_lshlrev_b32 v9, 16, v228
    v_mul_f32 v8, v9, v10
    v_sub_f32 v8, 0, v8
    """)
    for q in range(4):
        e(f"v_pk_mul_f32 {P2(40 + 2 * q)}, {P2(40 + 2 * q)}, v[48:49] op_sel_hi:[1,0]")
    for q in range(4):
        e(f"v_cvt_pk_bf16_f32 v{48 + q}, v{40 + 2 * q}, v{41 + 2 * q}")
    for q in range(4):
        e(f"v_lshlrev_b32 v{40 + 2 * q}, 16, v{48 + q}")
        e(f"v_and_b32 v{41 + 2 * q}, s{sM}, v{48 + q}")
    for q in range(4):
        e(f"v_lshlrev_b32 v{64 + 2 * q}, 16, v{224 + q}")
        e(f"v_and_b32 v{65 + 2 * q}, s{sM}, v{224 + q}")
    for q in range(4):
        e(f"v_pk_fma_f32 {P2(72 + 2 * q)}, {P2(64 + 2 * q)}, v[10:11], v[8:9] op_sel_hi:[1,0,0]")
    for q in range(4):
        e(f"v_pk_add_f32 {P2(72 + 2 * q)}, {P2(72 + 2 * q)}, {P2(40 + 2 * q)}")
    for q in range(4):
        e(f"v_pk_mul_f32 {P2(80 + 2 * q)}, {P2(72 + 2 * q)}, s[18:19]")
    for q in range(8):
        e(f"v_exp_f32 v{80 + q}, v{80 + q}")
    for q in range(4):
        e(f"v_pk_add_f32 {P2(80 + 2 * q)}, {P2(80 + 2 * q)}, s[48:49]")
    for q in range(8):
        e(f"v_rcp_f32 v{80 + q}, v{80 + q}")
    for q in range(4):
        e(f"v_pk_mul_f32 {P2(72 + 2 * q)}, {P2(72 + 2 * q)}, {P2(80 + 2 * q)}")
    for q in range(4):
        e(f"v_pk_fma_f32 {P2(64 + 2 * q)}, {P2(56 + 2 * q)}, {P2(72 + 2 * q)}, {P2(64 + 2 * q)}")
    for q in range(4):
        e(f"v_cvt_pk_bf16_f32 v{76 + q}, v{64 + 2 * q}, v{65 + 2 * q}")
    e(f"""
    v_mov_b32 v31, 0x7ffffff0
    v_cmp_gt_u32 vcc, 4, v0
    s_nop 1
    v_cndmask_b32 v29, v31, v29, vcc
    s_nop 0
    buffer_store_dwordx2 v[76:77], v29, s[{S_OUT}:{S_OUT + 3}], 0 offen
    buffer_store_dwordx2 v[78:79], v29, s[{S_OUT}:{S_OUT + 3}], 0 offen offset:32
    s_branch {R['done']}
    """)


def moe_tail(e, R):
    from k1 import RB, WSTR, SLOT
    T = R["T"]
    sW, sRING, sM = R["W"], R["RING"], R["M"]
    S_X, S_WS = R["X"], R["WS"]
    sRO, sSO = T[0], T[1]
    sA, sB, sC_, sD = T[2], T[3], T[4], T[5]
    mk = [T[6], T[8], T[10], T[12]]
    e(f"s_mov_b32 s{sRO}, {WS_R}")
    e(f"s_mov_b32 s{sSO}, {WS_STAT}")
    K = [8 + i for i in range(8)]
    e(f"""
    s_cmp_eq_u32 s{R['RDY']}, 0
    s_cbranch_scc1 L_moe_slow
    """)
    e.need(vtags=[("g", 4)])
    for i in range(16):
        e(f"v_accvgpr_read_b32 v{36 + i}, a{208 + i}")
    e("v_accvgpr_read_b32 v32, a224")
    e("v_accvgpr_read_b32 v23, a225")
    e(f"""
    v_and_b32 v26, 0x7ff, v23
    v_sub_u32 v26, 2047, v26
    s_branch L_moe_gathered
    """)
    e("L_moe_keys:")
    st = R.get("stamp", lambda n: None)
    wave_top8(e, K, 16, 20, 17, sA, mk[0])
    st("top8")
    e(f"""
    v_mov_b32 v21, s{R['RDY']}
    v_cmp_eq_u32 vcc, 8, v0
    v_lshlrev_b32 v22, 2, v0
    v_add_u32 v22, s{sRING}, v22
    v_cndmask_b32 v20, v20, v21, vcc
    v_cmp_gt_u32 vcc, 9, v0
    s_nop 1
    s_and_saveexec_b64 s[{mk[0]}:{mk[0] + 1}], vcc
    ds_write_b32 v22, v20
    s_mov_b64 exec, s[{mk[0]}:{mk[0] + 1}]
    s_waitcnt lgkmcnt(0)
    s_barrier
    """)
    e(f"""
    v_lshrrev_b32 v21, 3, v0
    v_and_b32 v21, 3, v21
    v_mul_u32_u24 v21, {WSTR}, v21
    v_and_b32 v22, 7, v0
    v_lshl_add_u32 v21, v22, 2, v21
    v_mov_b32 v23, {RB}
    v_add_u32 v21, v23, v21
    ds_read_b32 v24, v21
    """)
    for w_ in range(4):
        e(f"v_add_u32 v{100 + w_}, {w_ * WSTR}, v23")
    for w_ in range(4):
        e(f"ds_read_b128 v[{32 + 8 * w_}:{35 + 8 * w_}], v{100 + w_}")
        e(f"ds_read_b128 v[{36 + 8 * w_}:{39 + 8 * w_}], v{100 + w_} offset:16")
        e(f"ds_read_b32 v{104 + w_}, v{100 + w_} offset:32")
    e(f"""
    s_waitcnt lgkmcnt(0)
    v_and_b32 v104, v104, v105
    v_and_b32 v106, v106, v107
    v_and_b32 v104, v104, v106
    v_mov_b32 v25, 0
    v_readfirstlane_b32 s{sA}, v104
    s_nop 0
    s_cmp_eq_u32 s{sA}, 0
    s_cbranch_scc1 L_moe_slow
    """)
    for j0 in range(0, 32, 4):
        for q in range(4):
            e(f"v_cmp_gt_u32 s[{mk[q]}:{mk[q] + 1}], v{32 + j0 + q}, v24")
        for q in range(4):
            e(f"v_addc_co_u32 v25, vcc, 0, v25, s[{mk[q]}:{mk[q] + 1}]")
    e(f"""
    v_cmp_gt_u32 s[{mk[0]}:{mk[0] + 1}], 8, v25
    v_cmp_gt_u32 vcc, 32, v0
    v_lshlrev_b32 v26, 2, v25
    v_add_u32 v26, s{sRING}, v26
    s_and_b64 vcc, vcc, s[{mk[0]}:{mk[0] + 1}]
    s_and_saveexec_b64 s[{mk[1]}:{mk[1] + 1}], vcc
    ds_write_b32 v26, v24 offset:64
    s_mov_b64 exec, s[{mk[1]}:{mk[1] + 1}]
    v_and_b32 v22, 7, v0
    v_lshlrev_b32 v22, 2, v22
    v_add_u32 v22, s{sRING}, v22
    ds_read_b32 v23, v22 offset:64
    s_waitcnt lgkmcnt(0)
    v_and_b32 v26, 0x7ff, v23
    v_sub_u32 v26, 2047, v26
    """)
    st("merge")
    e(f"""
    v_lshrrev_b32 v30, 4, v0
    v_lshlrev_b32 v30, 4, v30             ; q4*16
    v_lshl_add_u32 v30, v26, 10, v30
    s_lshl_b32 s{sA}, s{sW}, 8            ; 4w*64 bytes
    v_lshlrev_b32 v31, 2, v26
    v_add_u32 v31, s{sSO}, v31
    """)
    e.vq, e.lq = ["old"], []
    e.vm(f"buffer_load_dword v32, v31, s[{S_WS}:{S_WS + 3}], 0 offen sc1", "st")
    for i in range(4):
        e.vm(f"buffer_load_dwordx4 {rng('v', 36 + 4 * i, 4)}, v30, s[{S_X}:{S_X + 3}], s{sA} offen offset:{64 * i}",
             ("xg", i))
    e("s_waitcnt vmcnt(0)")
    e("L_moe_gathered:")
    e.vq = []
    e(f"""
    v_and_b32 v27, s{sM}, v23
    v_ashrrev_i32 v28, 31, v27
    v_not_b32 v28, v28
    v_or_b32 v28, 0x80000000, v28
    v_xor_b32 v27, v27, v28
    v_and_b32 v27, s{sM}, v27             ; r (f32 bits)
    v_mul_f32 v28, {hex(f2u(-LOG2E))}, v27
    v_exp_f32 v28, v28
    s_nop 0
    v_add_f32 v28, 1.0, v28
    v_rcp_f32 v28, v28
    s_nop 0
    v_cvt_pk_bf16_f32 v28, v28, v28
    v_and_b32 v28, s{sM}, v28             ; bf16(sigmoid(r))
    """)
    if R.get("fused"):
        e(f"""
        s_load_dwordx2 s[20:21], s[0:1], {KA['out']}
        s_cmp_ge_u32 s2, 224
        s_cbranch_scc1 L_fin_sync
        """)
    else:
        e(f"""
        v_lshlrev_b32 v29, 2, v0
        v_add_u32 v29, {WS_IDX}, v29
        v_mov_b32 v33, 0x7ffffff0
        s_or_b32 s{sA}, s{R['SL']}, s{sW}
        s_cmp_eq_u32 s{sA}, 0
        s_cselect_b64 s[{mk[0]}:{mk[0] + 1}], -1, 0
        v_cmp_gt_u32 vcc, 8, v0
        s_nop 1
        s_and_b64 vcc, vcc, s[{mk[0]}:{mk[0] + 1}]
        v_cndmask_b32 v29, v33, v29, vcc
        """)
        e.vm(f"buffer_store_dword v26, v29, s[{S_WS}:{S_WS + 3}], 0 offen", "pub")
        e.vm(f"buffer_store_dword v28, v29, s[{S_WS}:{S_WS + 3}], 0 offen offset:32", "pub")
    e(f"""
    v_and_b32 v34, s{sM}, v32             ; sd
    v_rcp_f32 v34, v34
    v_lshlrev_b32 v30, 16, v32            ; mean
    v_sub_f32 v30, 0, v30
    """)
    st("gather")
    for i in range(0, 16, 2):
        for j in range(2):
            r, t = 36 + i + j, 52 + 2 * j
            e(f"v_lshlrev_b32 v{t}, 16, v{r}")
            e(f"v_and_b32 v{t + 1}, s{sM}, v{r}")
        for j in range(2):
            t = 52 + 2 * j
            e(f"v_pk_add_f32 v[{t}:{t + 1}], v[{t}:{t + 1}], v[30:31] op_sel_hi:[1,0]")
        for j in range(2):
            r, t = 36 + i + j, 52 + 2 * j
            e(f"v_cvt_pk_bf16_f32 v{r}, v{t}, v{t + 1}")
        for j in range(2):
            r, t = 36 + i + j, 52 + 2 * j
            e(f"v_lshlrev_b32 v{t}, 16, v{r}")
            e(f"v_and_b32 v{t + 1}, s{sM}, v{r}")
        for j in range(2):
            t = 52 + 2 * j
            e(f"v_pk_mul_f32 v[{t}:{t + 1}], v[{t}:{t + 1}], v[34:35] op_sel_hi:[1,0]")
        for j in range(2):
            r, t = 36 + i + j, 52 + 2 * j
            e(f"v_cvt_pk_bf16_f32 v{r}, v{t}, v{t + 1}")
    st("ln")
    e("v_accvgpr_write_b32 a128, 0")
    e("v_accvgpr_write_b32 a129, 0")
    for i in range(4):
        c = "0" if i == 0 else "v[56:59]"
        e(f"v_mfma_f32_16x16x32_bf16 v[56:59], {rng('a', 96 + 4 * i, 4)}, {rng('v', 36 + 4 * i, 4)}, {c}")
    e.nop(8)
    if R.get("fused"):
        flag_prepare(e, R, sA, sB, 24, 0, 1)
        e("s_waitcnt vmcnt(8)")
    e(f"""
    v_lshlrev_b32 v60, 4, v0
    v_add_u32 v61, s{sRING}, v60
    ds_write_b128 v61, v[56:59] offset:2048
    s_waitcnt lgkmcnt(0)
    s_barrier
    """)
    if R.get("fused"):
        e(f"buffer_store_dword v25, v24, s[{S_WS}:{S_WS + 3}], 0 offen sc1")
    e(f"""
    v_add_u32 v60, {RB + 2048}, v60
    v_add_u32 v61, {WSTR}, v60
    v_add_u32 v62, {2 * WSTR}, v60
    v_add_u32 v63, {3 * WSTR}, v60
    ds_read_b128 v[64:67], v60
    ds_read_b128 v[68:71], v61
    ds_read_b128 v[72:75], v62
    ds_read_b128 v[76:79], v63
    s_waitcnt lgkmcnt(0)
    """)
    e.lq = []
    for i in range(4):
        e(f"v_add_f32 v{64 + i}, v{64 + i}, v{68 + i}")
        e(f"v_add_f32 v{72 + i}, v{72 + i}, v{76 + i}")
        e(f"v_add_f32 v{64 + i}, v{64 + i}, v{72 + i}")
    for i in range(4):
        e(f"v_cvt_pk_bf16_f32 v{64 + i}, v{64 + i}, v{64 + i}")
        e(f"v_and_b32 v{64 + i}, s{sM}, v{64 + i}")
        e(f"v_mov_b32 v{68 + i}, v{64 + i}")
    e("s_nop 0")
    for i in range(4):
        e(f"v_permlane32_swap_b32 v{64 + i}, v{68 + i}")
    for i in range(4):
        silu_bf16(e, 72 + i, 64 + i, 76, 77, sM)
        e(f"v_mul_f32 v{72 + i}, v{72 + i}, v{68 + i}")
    e(f"""
    v_cvt_pk_bf16_f32 v80, v72, v73
    v_cvt_pk_bf16_f32 v81, v74, v75
    v_cmp_gt_u32 vcc, 32, v0
    v_mov_b32 v82, 0
    v_mov_b32 v83, 0
    v_cndmask_b32 v80, 0, v80, vcc
    v_cndmask_b32 v81, 0, v81, vcc
    s_nop 1
    """)
    for t in range(8):
        e(f"v_mfma_f32_16x16x32_bf16 {rng('v', 120 + 4 * t, 4)}, {rng('a', 112 + 2 * t, 4)}, v[80:83], 0")
    if R.get("fused"):
        fused_finish(e, R, sA, sB, mk)
    else:
        e(f"""
        s_lshl_b32 s{sA}, s{R['SL']}, 14
        s_lshl_b32 s{sB}, s{sW}, 9            ; 8w*16*4 bytes
        s_add_u32 s{sA}, s{sA}, s{sB}
        s_add_u32 s{sA}, s{sA}, {WS_YP}
        v_and_b32 v60, 15, v0
        v_lshlrev_b32 v61, 11, v60
        v_lshrrev_b32 v62, 4, v0
        v_lshl_add_u32 v61, v62, 4, v61
        v_add_u32 v61, s{sA}, v61
        v_mov_b32 v63, 0x1ffffff0
        v_cmp_gt_u32 vcc, 8, v60
        s_nop 1
        v_cndmask_b32 v61, v63, v61, vcc
        s_nop 1
        """)
        for t in range(8):
            e(f"buffer_store_dwordx4 {rng('v', 120 + 4 * t, 4)}, v61, s[{S_WS}:{S_WS + 3}], 0 offen offset:{t * 64}")
        e(f"s_branch {R['done']}")

    e("L_moe_slow:")
    dbg = R["DBG"]
    e(f"""
    s_barrier
    s_mov_b32 s{sB}, {R.get('spin', 4000)}
    v_mov_b32 v21, 0
    L_moe_spin:
    global_load_dword v22, v21, s[{dbg}:{dbg + 1}] sc1
    s_waitcnt vmcnt(0)
    v_readfirstlane_b32 s{sA}, v22
    s_nop 0
    s_cmp_ge_u32 s{sA}, {R['NCNT']}
    s_cbranch_scc1 L_moe_spin_ok
    s_sleep 8
    s_sub_u32 s{sB}, s{sB}, 1
    s_cmp_lg_u32 s{sB}, 0
    s_cbranch_scc1 L_moe_spin
    L_moe_spin_ok:
    s_cmp_ge_u32 s{sA}, {R['NCNT']}
    s_cselect_b32 s{sA}, 1, 0
    v_mov_b32 v22, s{sA}
    v_mov_b32 v23, s{sRING}
    ds_write_b32 v23, v22 offset:128
    s_waitcnt lgkmcnt(0)
    s_barrier
    v_mov_b32 v23, {RB}
    ds_read_b32 v32, v23 offset:128
    ds_read_b32 v33, v23 offset:{WSTR + 128}
    ds_read_b32 v34, v23 offset:{2 * WSTR + 128}
    v_add_u32 v23, {3 * WSTR}, v23
    ds_read_b32 v35, v23 offset:128
    s_waitcnt lgkmcnt(0)
    v_and_b32 v32, v32, v33
    v_and_b32 v34, v34, v35
    v_and_b32 v32, v32, v34
    s_nop 0
    v_readfirstlane_b32 s{sA}, v32
    s_nop 0
    s_cmp_eq_u32 s{sA}, 1
    s_cbranch_scc1 L_moe_reload
    """)
    e(f"""
    s_lshl_b32 s{sRO}, s{R['SL']}, 14
    s_add_u32 s{sRO}, s{sRO}, {WS_FB}
    s_add_u32 s{sSO}, s{sRO}, 8192
    v_lshlrev_b32 v21, 4, v0
    buffer_load_dwordx4 v[40:43], v21, s[{R['WR']}:{R['WR'] + 3}], 0 offen
    s_lshl_b32 s{sB}, s{sW}, 9
    s_add_u32 s{sC_}, s{sB}, 512
    s_waitcnt vmcnt(0)
    """)
    for i in range(4):
        e(f"v_lshlrev_b32 v{44 + 2 * i}, 16, v{40 + i}")
        e(f"v_and_b32 v{45 + 2 * i}, s{sM}, v{40 + i}")
    e(f"""
    L_moe_fb:
    s_lshl_b32 s{sA}, s{sB}, 10
    buffer_load_dwordx4 v[40:43], v21, s[{S_X}:{S_X + 3}], s{sA} offen
    s_waitcnt vmcnt(0)
    """)
    for i in range(4):
        e(f"v_lshlrev_b32 v{56 + 2 * i}, 16, v{40 + i}")
        e(f"v_and_b32 v{57 + 2 * i}, s{sM}, v{40 + i}")

    def wave_sum(v, t):
        for x in (1, 2, 4, 8):
            e(f"s_nop 1")
            e(f"v_add_f32_dpp v{v}, v{v}, v{v} row_ror:{x} row_mask:0xf bank_mask:0xf")
        e(f"v_mov_b32 v{t}, v{v}")
        e("s_nop 1")
        e(f"v_permlane16_swap_b32 v{v}, v{t}")
        e("s_nop 0")
        e(f"v_add_f32 v{v}, v{v}, v{t}")
        e(f"v_mov_b32 v{t}, v{v}")
        e("s_nop 1")
        e(f"v_permlane32_swap_b32 v{v}, v{t}")
        e("s_nop 0")
        e(f"v_add_f32 v{v}, v{v}, v{t}")
    e("v_add_f32 v64, v56, v57")
    for i in range(2, 8):
        e(f"v_add_f32 v64, v64, v{56 + i}")
    wave_sum(64, 65)
    e(f"v_mul_f32 v64, {hex(f2u(1.0 / 512))}, v64        ; mean")
    e("v_sub_f32 v66, v56, v64")
    e("v_mul_f32 v67, v66, v66")
    for i in range(1, 8):
        e(f"v_sub_f32 v66, v{56 + i}, v64")
        e(f"v_fmac_f32 v67, v66, v66")
    wave_sum(67, 65)
    e(f"""
    v_mul_f32 v67, {hex(f2u(1.0 / 512))}, v67
    v_cvt_pk_bf16_f32 v68, v64, v67
    v_and_b32 v69, s{sM}, v68
    v_add_f32 v69, {hex(f2u(1e-5))}, v69
    v_cvt_pk_bf16_f32 v69, v69, v69
    v_and_b32 v69, s{sM}, v69
    v_sqrt_f32 v69, v69
    v_lshlrev_b32 v64, 16, v68
    v_cvt_pk_bf16_f32 v69, v69, v69
    v_and_b32 v69, s{sM}, v69             ; sd
    v_rcp_f32 v70, v69
    v_and_b32 v68, 0xffff, v68
    v_or_b32 v68, v68, v69
    v_mov_b32 v71, 0
    """)
    for i in range(8):
        e(f"""
        v_sub_f32 v66, v{56 + i}, v64
        v_mul_f32 v66, v66, v70
        v_cvt_pk_bf16_f32 v66, v66, v66
        v_and_b32 v66, s{sM}, v66
        v_fmac_f32 v71, v66, v{44 + i}
        """)
    wave_sum(71, 65)
    e(f"""
    v_cvt_pk_bf16_f32 v71, v71, v71
    v_and_b32 v71, s{sM}, v71
    v_ashrrev_i32 v72, 31, v71
    v_or_b32 v72, 0x80000000, v72
    v_xor_b32 v71, v71, v72
    s_sub_u32 s{sA}, 2047, s{sB}
    v_mov_b32 v72, s{sA}
    v_and_or_b32 v71, v71, s{sM}, v72
    s_lshl_b32 s{sA}, s{sB}, 2
    v_mov_b32 v72, s{sA}
    v_add_u32 v73, s{sRO}, v72
    v_add_u32 v74, s{sSO}, v72
    v_cmp_eq_u32 vcc, 0, v0
    s_nop 1
    s_and_saveexec_b64 s[{mk[0]}:{mk[0] + 1}], vcc
    buffer_store_dword v71, v73, s[{S_WS}:{S_WS + 3}], 0 offen sc1
    buffer_store_dword v68, v74, s[{S_WS}:{S_WS + 3}], 0 offen sc1
    s_mov_b64 exec, s[{mk[0]}:{mk[0] + 1}]
    s_add_u32 s{sB}, s{sB}, 1
    s_cmp_lt_u32 s{sB}, s{sC_}
    s_cbranch_scc1 L_moe_fb
    s_waitcnt vmcnt(0)
    s_barrier
    L_moe_reload:
    s_lshl_b32 s{sA}, s{sW}, 11
    v_lshlrev_b32 v21, 5, v0
    v_add_u32 v21, s{sA}, v21
    v_add_u32 v21, s{sRO}, v21
    buffer_load_dwordx4 v[8:11], v21, s[{S_WS}:{S_WS + 3}], 0 offen sc1
    buffer_load_dwordx4 v[12:15], v21, s[{S_WS}:{S_WS + 3}], 0 offen offset:16 sc1
    s_mov_b32 s{R['RDY']}, 1
    s_waitcnt vmcnt(0)
    s_barrier
    s_branch L_moe_keys
    """)


WS_FB = 24 << 20
```

```python
from emit import E, check_hazards, check_scc
from asmlib import KA

RB = 65536
WSTR = 24576
SLOT = 8192
C_SCALE = 1.4426950408889634 * (128 ** -0.5)

WS_PART = 0
WS_R = 16 << 20
WS_STAT = WS_R + 8192
WS_H = WS_R + 65536
WS_IDX = WS_H + 32768
WS_FLG = WS_R + 32768
WS_TS = 32 << 20


def f2u(x):
    import struct
    return struct.unpack("<I", struct.pack("<f", x))[0]


S_X, S_WQ, S_K, S_V, S_WO, S_WS, S_WR = 4, 8, 12, 16, 20, 24, 28
sG, sTB, sW, sSK = 32, 33, 34, 35
sWQO, sWOO, sKO, sVO = 36, 37, 38, 39
sRING = 40
sCNT = 41
sT0, sT1, sT2, sT3 = 42, 43, 44, 45
sKSL, sVSL = 46, 47
sKD, sVD = 48, 49
sTRIP = 50
sGA = 52
sGB = 56
sGAO, sGBO = 60, 61
sGAM, sGBM = 62, 63
sMASK = 64
sPASS = 70
sKVB = 71
sKVT = 51
sDBG = 72
sSL = 98
sRDY = 99
sFP = 92
sHFD = 70
sTS = 74

vLANE = 0
vWQ = 1
vWO = 5
vKDM = 9
vVDM = 13
vAA = 14
vAB = 22
vBR = 30
vKR = 32
vVR = 40
vGA = 44
vGB = 48
vL = 52
vOW = 56
vPS = 57
vT = 58
vQ = 64
vS = 128
vP = 192
vNM = 224
vACC = 128

aA = 0
aB = 96
aF = 0
aO = 128


def rng(f, b, n):
    return f"{f}[{b}:{b + n - 1}]" if n > 1 else f"{f}{b}"


def Bset(setidx, tq):
    if setidx < 2:
        return rng("a", aB + setidx * 16 + tq * 4, 4)
    return rng("v", 64 + tq * 4, 4)


def Aset(setidx, dt):
    return rng("a", aA + setidx * 32 + dt * 4, 4)


def Ahalf(setidx, dt, rd):
    return rng("a", aA + setidx * 32 + dt * 4 + 2 * rd, 2)


def acc16(dt, tq):
    return rng("v", vACC + (dt * 4 + tq) * 4, 4)


OPT = {}
STAMP = [None]
GSTAMP = [None]
P3_STATIC = [False]
NS3 = 5


class Slots:
    def __init__(self, n):
        self.n = n
        self.f = [[] for _ in range(n + 1)]

    def at(self, i, fn):
        self.f[min(max(i, 0), self.n)].append(fn)


def loop_align(e):
    a = OPT.get("align", 0)
    if a:
        e.l.append(f".p2align {a}")
    for _ in range(OPT.get("shift", 0)):
        e("s_nop 0")


class Side:
    def __init__(self):
        self.q = []
        self.last = None

    def add(self, x, gap=0, cond=None):
        self.q.append((x, gap, cond))

    def states_since(self, e):
        if self.last is None:
            return 99
        n = 0
        for l in e.l[self.last:]:
            t = l.strip()
            if t.endswith(":") or not t:
                continue
            n += int(t.split()[1], 0) + 1 if t.startswith("s_nop") else 1
        return n

    def emit(self, e, budget, pos=None, flush=False):
        while self.q and (budget > 0 or flush):
            x, gap, cond = self.q[0]
            if cond is not None and pos is not None and pos < cond and not flush:
                return
            have = self.states_since(e)
            if have < gap:
                if not flush:
                    return
                e.nop(gap - have)
            self.q.pop(0)
            if callable(x):
                x()
            else:
                e(x)
            self.last = len(e.l)
            budget -= 1


def gemm_step(e, p, phase, opts):
    j = p % 3
    jn = (p + 1) % 3
    va = vAA if phase == 1 else vAB
    rdoff = 1024 if phase == 1 else 2048
    sl = Slots(32)
    if opts.get("next", True):
        reads = []
        for dt in range(8):
            for rd in range(2):
                reads.append((dt, rd))
        spread = OPT.get("aspread", 16)
        for n, (dt, rd) in enumerate(reads):
            def f(dt=dt, rd=rd):
                if OPT.get("noaread"):
                    return
                e.lds(f"ds_read_b64_tr_b16 {Ahalf(jn, dt, rd)}, v{va + dt} offset:{jn * SLOT + rd * rdoff}",
                      ("A", p + 1, dt))
            sl.at(n * spread // 16, f)
        for tq in range(4):
            def f(tq=tq):
                e.lds(f"ds_read_b128 {Bset(jn, tq)}, v{vBR} offset:{opts['boff_next'] + tq * 1024}", ("B", p + 1, tq))
            sl.at(spread + tq, f)
    for pos, fn in opts.get("fill", []):
        sl.at(pos, fn)
    if opts.get("next", True):
        e.need(vtags=opts.get("vneed"))
    for n in range(32):
        dt, tq = n // 4, n % 4
        need = [("A", p, dt), ("B", p, tq)] + ([("B", p, 3), ("A", p, 7)] if n == 0 else [])
        e.need(ltags=need)
        c = "0" if opts.get("first") else acc16(dt, tq)
        e(f"v_mfma_f32_16x16x32_bf16 {acc16(dt, tq)}, {Aset(j, dt)}, {Bset(j, tq)}, {c}")
        for fn in sl.f[n]:
            fn()
        side = opts.get("side")
        if side is not None:
            side.emit(e, opts.get("cap", 2) - len(sl.f[n]), pos=(p, n))
    for fn in sl.f[32]:
        fn()


def wdma(e, phase, i, tag):
    if OPT.get("nodma") and tag[1] > 3:
        e.vq.append(tag)
        return
    if phase == 1:
        e.vm(f"buffer_load_dwordx4 v{vWQ + i}, s[{S_WQ}:{S_WQ + 3}], s{sWQO} offen offset:{i * 1024} lds", tag)
    else:
        e.vm(f"buffer_load_dwordx4 v{vWO + i}, s[{S_WO}:{S_WO + 3}], s{sWOO} offen offset:{i * 1024} lds", tag)


def wdma_adv(e, phase):
    if phase == 1:
        e(f"s_add_u32 s{sWQO}, s{sWQO}, {16 * 8192}")
        e(f"s_and_b32 s{sWQO}, s{sWQO}, {512 * 8192 - 1}")
    else:
        e(f"s_add_u32 s{sT0}, s{sWOO}, {16 * 1024}")
        e(f"s_and_b32 s{sT0}, s{sT0}, {512 * 1024 - 1}")
        e(f"s_and_b32 s{sWOO}, s{sWOO}, {~(512 * 1024 - 1) & 0xffffffff}")
        e(f"s_or_b32 s{sWOO}, s{sWOO}, s{sT0}")


def half_dma(e, phase, slot, half, tag):
    def m0():
        e(f"s_add_u32 m0, s{sRING}, {slot * SLOT + half * 4096}")
    out = [m0]
    for i in range(4):
        out.append(lambda i=i: wdma(e, phase, i, tag))
    out.append(lambda: wdma_adv(e, phase))
    return out


def serial(e, fl):
    fl[0]()
    e("s_nop 0")
    for fn in fl[1:]:
        fn()


def place(fl, start, stride):
    res = [(start, fl[0])]
    for i in range(4):
        res.append((start + 1 + i * stride, fl[1 + i]))
    res.append((start + 1 + 3 * stride, fl[5]))
    return res


def kv_dma(e, which, tile_slot, tag):
    out = []
    if which == "K":
        out.append(lambda: e(f"s_add_u32 m0, s{sRING}, {tile_slot * SLOT}"))
        for i in range(4):
            out.append(lambda i=i: e.vm(
                f"buffer_load_dwordx4 v{vKDM + i}, s[{S_K}:{S_K + 3}], s{sKO} offen offset:{i * 1024} lds", tag))
        out.append(lambda: kv_adv(e, sKO))
    else:
        out.append(lambda: e(f"s_add_u32 m0, s{sRING}, {tile_slot * SLOT + 4096}"))
        for i in range(4):
            out.append(lambda i=i: e.vm(
                f"buffer_load_dwordx4 v{vVDM}, s[{S_V}:{S_V + 3}], s{sVO} offen offset:{i * 1024} lds", tag))
        out.append(lambda: kv_adv(e, sVO))
    return out


def kv_adv(e, sreg):
    e(f"s_add_u32 s{sreg}, s{sreg}, 16384")
    e(f"s_and_b32 s{sreg}, s{sreg}, {8 * 16384 - 1}")


def gemm_pre(e, phase):
    va = vAA if phase == 1 else vAB
    rdoff = 1024 if phase == 1 else 2048
    e.need(vtags=[("W", 0, 0), ("W", 0, 1)])
    for tq in range(4):
        e.lds(f"ds_read_b128 {Bset(0, tq)}, v{vBR} offset:{tq * 1024}", ("B", 0, tq))
    for dt in range(8):
        for rd in range(2):
            e.lds(f"ds_read_b64_tr_b16 {Ahalf(0, dt, rd)}, v{va + dt} offset:{rd * rdoff}", ("A", 0, dt))


def gemm_main(e, phase, tail_fill, side=None, side_steps=range(10, 16)):
    e.need(ltags=[("A", 0, 7)])
    serial(e, half_dma(e, phase, 0, 0, ("W", 3, 0)))

    def step_opts(p, boff_next):
        fill = []
        sp = OPT.get("aspread", 16)
        if p + 3 <= 15:
            fl = half_dma(e, phase, p % 3, 1, ("W", p + 3, 1))
            fill += [(0, fl[0])] + [(2 + 4 * i, fl[1 + i]) for i in range(4)] + [(sp + 4, fl[5])]
        if p + 4 <= 15:
            fl = half_dma(e, phase, (p + 1) % 3, 0, ("W", p + 4, 0))

            def guard(p=p):
                e.need(ltags=[("A", p + 1, 7)])
            fill += [(sp + 5, guard), (sp + 5, fl[0])] + [(min(sp + 6 + 3 * i, 31), fl[1 + i]) for i in range(4)] + [(32, fl[5])]
        return dict(first=(p == 0), next=(p < 15), boff_next=boff_next, fill=fill,
                    vneed=[("W", p + 1, 0), ("W", p + 1, 1)])

    if GSTAMP[0]:
        GSTAMP[0]("p1_pre")
    o = step_opts(0, 1 * 4096)
    gemm_step(e, 0, phase, o)
    if GSTAMP[0]:
        GSTAMP[0]("p1_s0")
    lab = f"L_g{phase}_loop"
    e(f"s_mov_b32 s{sCNT}, 3")
    e(f"v_add_u32 v{vBR}, {1 * 4096}, v{vBR}")
    lq0, vq0 = list(e.lq), list(e.vq)
    loop_align(e)
    e(f"{lab}:")
    n0 = len(e.l)
    for u in range(3):
        p = 1 + u
        o = step_opts(p, (u + 1) * 4096)
        if u == 2:
            o["fill"] = o["fill"] + [(24, lambda: e(f"v_add_u32 v{vBR}, {3 * 4096}, v{vBR}")),
                                     (32, lambda: e(f"s_sub_u32 s{sCNT}, s{sCNT}, 1")),
                                     (32, lambda: e(f"s_cmp_lg_u32 s{sCNT}, 0"))]
        gemm_step(e, p, phase, o)
    e(f"s_cbranch_scc1 {lab}")
    body = e.l[n0:]
    probs = check_hazards(body + body, f"gemm{phase} loop x2")
    assert not probs or any(k.startswith("no") for k in OPT), "\n".join(probs[:10])
    sh = lambda q, d: [(t[0], t[1] + d) + tuple(t[2:]) if t else t for t in q]
    assert sh(lq0, 3) == e.lq or OPT.get('noaread'), (lq0, e.lq)
    assert sh(vq0, 3) == e.vq, (vq0, e.vq)
    e.lq, e.vq = sh(e.lq, 6), sh(e.vq, 6)
    for p in range(10, 16):
        if GSTAMP[0] and p in (10, 13):
            GSTAMP[0](f"p1_s{p}")
        o = step_opts(p, (p - 10 + 1) * 4096)
        o["fill"] = o["fill"] + tail_fill(p)
        o["side"] = side if p in side_steps else None
        o["cap"] = OPT.get("sidecap", 2)
        gemm_step(e, p, phase, o)


def acc3(hf, nt, tq):
    return rng("v", vACC + 64 * hf + (nt * 4 + tq) * 4, 4)


def A3(st, nt, rd=None):
    b = st * 16 + nt * 4
    return rng("a", b, 4) if rd is None else rng("a", b + 2 * rd, 2)


def B3(st, tq):
    return rng("a", 48 + st * 16 + tq * 4, 4)


def p3_dma(e, u):
    out = [lambda: e(f"s_add_u32 m0, s{sRING}, {(u % NS3) * 4096}")]
    for i in range(4):
        out.append(lambda i=i: e.vm(
            f"buffer_load_dwordx4 v{vWO + i}, s[{S_WO}:{S_WO + 3}], s{sWOO} offen offset:{i * 1024} lds", ("W", u)))

    def adv():
        p3_adv(e)
        if u == 9 and not OPT.get("p3unroll", 1):
            e(f"s_add_u32 s{sWOO}, s{sWOO}, s{sHFD}")
    out.append(adv)
    return out


def p3_adv(e):
    e(f"s_add_u32 s{sWOO}, s{sWOO}, {32 * 1024}")
    e(f"s_and_b32 s{sWOO}, s{sWOO}, {512 * 1024 - 1}")


def p3_reads(e, u, boff):
    st = u % 3
    r = []
    for nt in range(4):
        for rd in range(2):
            r.append(lambda nt=nt, rd=rd: e.lds(
                f"ds_read_b64_tr_b16 {A3(st, nt, rd)}, v{vAB + nt} offset:{(u % NS3) * 4096 + rd * 1024}", ("A", u, nt)))
    for tq in range(4):
        r.append(lambda tq=tq: e.lds(f"ds_read_b128 {B3(st, tq)}, v{vBR} offset:{boff + tq * 1024}", ("B", u, tq)))
    return r


def p3_step(e, u, boff_next, fill=(), side=None, cap=2):
    hf, st = u >> 4, u % 3
    sl = Slots(16)
    nxt = u < 31
    if nxt:
        rd = p3_reads(e, u + 1, boff_next)
        for n in range(8):
            sl.at(n, rd[n])
        for tq in range(4):
            sl.at(8 + tq, rd[8 + tq])
    if u + NS3 <= 31:
        fl = p3_dma(e, u + NS3)
        sl.at(0, fl[0])
        for i, pos in enumerate((2, 6, 12, 14)):
            sl.at(pos, fl[1 + i])
        sl.at(15, fl[5])
    for pos, fn in fill:
        sl.at(pos, fn)
    if nxt:
        e.need(vtags=[("W", u + 1)])
    for n in range(16):
        nt, tq = n // 4, n % 4
        e.need(ltags=[("A", u, nt), ("B", u, tq)] + ([("B", u, 3), ("A", u, 3)] if n == 0 else []))
        c = "0" if (u & 15) == 0 else acc3(hf, nt, tq)
        e(f"v_mfma_f32_16x16x32_bf16 {acc3(hf, nt, tq)}, {A3(st, nt)}, {B3(st, tq)}, {c}")
        for fn in sl.f[n]:
            fn()
        if side is not None:
            left = cap - len(sl.f[n])
            for sd in side:
                n0 = len(sd.q)
                sd.emit(e, left, pos=(u, n))
                left -= n0 - len(sd.q)
    for fn in sl.f[16]:
        fn()


def p3_epilogue_items(e, hf, regs):
    items = []
    k = 0
    for nt in range(4):
        for qb in range(2):
            R = regs[k % len(regs)]
            k += 1
            a0 = vACC + 64 * hf + (nt * 4 + 2 * qb) * 4
            a1 = a0 + 4
            items.append((f"v_cvt_pk_bf16_f32 v{R}, v{a0}, v{a0 + 1}", 2))
            items.append((f"v_cvt_pk_bf16_f32 v{R + 1}, v{a0 + 2}, v{a0 + 3}", 0))
            items.append((f"v_cvt_pk_bf16_f32 v{R + 2}, v{a1}, v{a1 + 1}", 0))
            items.append((f"v_cvt_pk_bf16_f32 v{R + 3}, v{a1 + 2}, v{a1 + 3}", 0))
            items.append((f"v_permlane16_swap_b32 v{R}, v{R + 2}", 2))
            items.append((f"v_permlane16_swap_b32 v{R + 1}, v{R + 3}", 1))
            off = (nt & 1) * 2048 + qb * 1024
            so = {(0, 0): "0", (0, 1): "s48", (1, 0): "s49", (1, 1): "s50"}[(hf, nt >> 1)]
            items.append((lambda R=R, off=off, nt=nt, qb=qb, so=so: e.vm(
                f"buffer_store_dwordx4 {rng('v', R, 4)}, v{vPS}, s[{S_WS}:{S_WS + 3}], {so} offen offset:{off} "
                + OPT.get("pstore", "sc1"), ("ps", hf, nt, qb)), 0))
    return items


def p3_loop_half0(e):
    p3_step(e, 0, 4096)
    e(f"s_mov_b32 s{sCNT}, 2")
    e(f"s_mov_b32 s{sHFD}, 0")
    e(f"v_add_u32 v{vBR}, {1 * 4096}, v{vBR}")
    lq0, vq0 = list(e.lq), list(e.vq)
    e("L_p3_loop:")
    n0 = len(e.l)
    for k in range(6):
        u = 1 + k
        fill = []
        if k == 5:
            fill = [(13, lambda: e(f"v_add_u32 v{vBR}, {6 * 4096}, v{vBR}")),
                    (15, lambda: e(f"s_mov_b32 s{sHFD}, 512")),
                    (15, lambda: e(f"s_sub_u32 s{sCNT}, s{sCNT}, 1")),
                    (15, lambda: e(f"s_cmp_lg_u32 s{sCNT}, 0"))]
        p3_step(e, u, (k + 1) * 4096, fill=fill)
    e("s_cbranch_scc1 L_p3_loop")
    body = e.l[n0:]
    probs = check_hazards(body + body, "p3 loop x2")
    assert not probs, "\n".join(probs[:10])
    sh = lambda q, d: [(t[0], t[1] + d) + tuple(t[2:]) if t else t for t in q]
    assert sh(lq0, 6) == e.lq, (lq0, e.lq)
    assert sh(vq0, 6) == e.vq, (vq0, e.vq)
    e.lq, e.vq = sh(e.lq, 6), sh(e.vq, 6)
    for u in range(13, 16):
        boff = (u - 13 + 1) * 4096 if u < 15 else -13 * 4096
        if u == 15:
            fill = [(0, lambda: e(f"v_subrev_u32 v{vBR}, {13 * 4096}, v{vBR}"))]
            p3_step(e, u, 0, fill=fill)
        else:
            p3_step(e, u, boff)


def p3_phase(e, tail_fill, side0, side1):
    if STAMP[0]:
        STAMP[0]("p3_start")
    if OPT.get("p3unroll", 1):
        cap = OPT.get("sidecap", 2)
        for u in range(16):
            fill = []
            if u == 15 - NS3:
                fill = [(16, lambda: e(f"s_add_u32 s{sWOO}, s{sWOO}, 512"))]
            P3_STATIC[0] = True
            p3_step(e, u, ((u + 1) & 15) * 4096, fill=fill, side=side0, cap=cap)
    else:
        p3_loop_half0(e)
    for u in range(16, 32):
        p = u & 15
        if STAMP[0] and u in (16, 24):
            STAMP[0](f"p3_u{u}")
        p3_step(e, u, ((p + 1) & 15) * 4096, fill=tail_fill(u), side=side0, cap=OPT.get("sidecap", 2))


def Sreg(par, qb, i=None):
    b = vS + par * 32 + qb * 16
    return rng("v", b, 16) if i is None else f"v{b + i}"


def Preg(par, qb, t):
    return rng("v", vP + par * 16 + qb * 8 + t * 4, 4)


def Qreg(s16, qb):
    return rng("v", vQ + (s16 * 2 + qb) * 4, 4)


def Oreg(db, qb):
    return rng("a", aO + (db * 2 + qb) * 16, 16)


def Fbuf(n, half=None):
    b = aF + (n % 8) * 4
    return rng("a", b, 4) if half is None else rng("a", b + 2 * half, 2)


def k_read(e, b, s16):
    if OPT.get("nokvread"):
        return
    e.lds(f"ds_read_b128 {Fbuf(s16)}, v{vKR + s16} offset:{(b & 1) * 49152}", ("K", b, s16))


def v_read(e, b, f, order=None):
    t, db = (order or VORD_T)[f]
    if OPT.get("nokvread"):
        return
    for rd in range(2):
        e.lds(f"ds_read_b64_tr_b16 {Fbuf(8 + f, rd)}, v{vVR + db} offset:{t * WSTR + rd * 2048}", ("V", b, f))


def sm_ops(e, b):
    par = b & 1
    ops = []
    S = lambda x: Sreg(par, x // 16, x % 16)
    exp = lambda x: (lambda: e(f"v_exp_f32 {S(x)}, {S(x)}") if not OPT.get("noexp") else None)
    add = lambda x: (lambda: e(f"v_add_f32 v{vL + (x // 16) * 2 + (x & 1)}, v{vL + (x // 16) * 2 + (x & 1)}, {S(x)}"))
    cvt = lambda k: (lambda: e(f"v_cvt_pk_bf16_f32 v{vP + par * 16 + k}, {S(2 * k)}, {S(2 * k + 1)}"))
    if OPT.get("nosm"):
        return []
    for k in range(16):
        ops.append((2 * k, exp(2 * k)))
        if k > 0:
            ops.append((2 * k, add(2 * k - 2)))
            ops.append((2 * k, cvt(k - 1)))
        ops.append((2 * k + 1, exp(2 * k + 1)))
        if k > 0:
            ops.append((2 * k + 1, add(2 * k - 1)))
    ops.append((32, add(30)))
    ops.append((32, add(31)))
    ops.append((32, cvt(15)))
    return ops


def sm_queue(e, b):
    par = b & 1
    S = lambda x: Sreg(par, x // 16, x % 16)
    exp = lambda x: (8, lambda: e(f"v_exp_f32 {S(x)}, {S(x)}"))
    add = lambda x: (4, lambda: e(f"v_add_f32 v{vL + (x // 16) * 2 + (x & 1)}, v{vL + (x // 16) * 2 + (x & 1)}, {S(x)}"))
    cvt = lambda k: (4, lambda: e(f"v_cvt_pk_bf16_f32 v{vP + par * 16 + k}, {S(2 * k)}, {S(2 * k + 1)}"))
    q = []
    for k in range(32):
        q.append(exp(k))
        if k >= 1:
            q.append(add(k - 1))
        if k >= 2 and k % 2 == 0:
            q.append(cvt(k // 2 - 1))
    q.append(add(31))
    q.append(cvt(15))
    return q


VORD_T = [(f // 4, f % 4) for f in range(8)]
VORD_D = [(f % 2, f // 2) for f in range(8)]


def p2_iter(e, b, qk=True, sm=True, pv=True, look="K", fill=(), vpre=False, smstart=0, vord=VORD_T, vord_next=VORD_T,
            side=None, cap=5):
    mf = []
    if qk:
        par = (b + 1) & 1
        for s16 in range(8):
            for qb in range(2):
                c = rng("v", vNM + qb * 16, 16) if s16 == 0 else Sreg(par, qb)
                mf.append((f"v_mfma_f32_32x32x16_bf16 {Sreg(par, qb)}, {Fbuf(s16)}, {Qreg(s16, qb)}, {c}",
                           ("K", b + 1, s16), s16))
    if pv:
        par = (b - 1) & 1
        for f in range(8):
            t, db = vord[f]
            for qb in range(2):
                mf.append((f"v_mfma_f32_32x32x16_bf16 {Oreg(db, qb)}, {Fbuf(8 + f)}, {Preg(par, qb, t)}, {Oreg(db, qb)}",
                           ("V", b - 1, f), 8 + f))
    n = len(mf)
    sl = Slots(n)
    if qk and pv:
        for f in range(4, 8):
            sl.at(2 * (f - 4) + 1, lambda f=f: k_read(e, b + 1, f))
        for f in range(8):
            fn = lambda f=f: v_read(e, b - 1, f)
            fn.ninstr = 2
            sl.at(2 * (f + 4) + 1, fn)
        if look == "K":
            for f in range(4):
                sl.at(24 + 2 * f + 1, lambda f=f: k_read(e, b + 2, f))
    elif qk:
        for f in range(4, 8):
            sl.at(2 * (f - 4) + 1, lambda f=f: k_read(e, b + 1, f))
        if look == "K":
            for f in range(4):
                sl.at(8 + 2 * f + 1, lambda f=f: k_read(e, b + 2, f))
    else:
        if vpre:
            for f in range(4):
                v_read(e, b - 1, f, vord)
        for f in range(4, 8):
            sl.at(2 * (f - 4) + 1, lambda f=f: v_read(e, b - 1, f, vord))
        if look == "V":
            for f in range(4):
                sl.at(8 + 2 * f + 1, lambda f=f: v_read(e, b, f, vord_next))
    if OPT.get("greedy", 1) and n == 32 and sm:
        B = OPT.get("budget", 24)
        cost = [4 * sum(2 if False else 1 for _ in sl.f[i]) for i in range(n)]
        for i in range(n):
            cost[i] = 0
            for fn in sl.f[i]:
                cost[i] += 4 * getattr(fn, "ninstr", 1)
            if (i + 1) % 4 == 0:
                cost[i] += 4
        q = sm_queue(e, b)
        tot = sum(c for c, _ in q)
        ex = sorted(enumerate(fill), key=lambda t: (t[1][0], t[0]))
        ex = [(pos, fn) for _, (pos, fn) in ex]
        done = 0
        for i in range(n):
            left = B - cost[i]
            need = tot * (i + 1) / n
            while q and done < need and q[0][0] <= left + (4 if done + 12 < need else 0):
                c, fn = q.pop(0)
                sl.at(i, fn)
                left -= c
                done += c
            while ex and ex[0][0] <= i and (left >= 4 * getattr(ex[0][1], "ninstr", 1) or ex[0][0] + 3 <= i):
                pos, fn = ex.pop(0)
                sl.at(i, fn)
                left -= 4 * getattr(fn, "ninstr", 1)
            while q and q[0][0] <= left and done < need + 16:
                c, fn = q.pop(0)
                sl.at(i, fn)
                left -= c
                done += c
        for c, fn in q:
            sl.at(n, fn)
        for pos, fn in ex:
            sl.at(n, fn)
    else:
        if sm:
            ops = sm_ops(e, b)
            for (s, fn) in ops:
                sl.at(smstart + s * (n - smstart) // 32 if s < 32 else n, fn)
        for (s, fn) in fill:
            sl.at(s, fn)
    if vpre and sm:
        pass
    for i, (txt, tag, fi) in enumerate(mf):
        if i % 4 == 0:
            tags = [tag]
            if i + 2 < n:
                tags.append(mf[i + 2][1])
            e.need(ltags=tags)
        e(txt)
        for fn in sl.f[i]:
            fn()
        if side is not None:
            side.emit(e, cap - len(sl.f[i]), pos=(b, i))
    for fn in sl.f[n]:
        fn()


def gen_k1(label, stamps=False, debug=None, opt=None):
    OPT.clear()
    OPT.update(opt or {})
    STAMP[0] = None
    GSTAMP[0] = None
    e = E()
    nst = [0]

    def stamp(name, wait=True):
        if not stamps:
            return
        if OPT.get("only") and name not in OPT["only"]:
            return
        k = nst[0]
        assert k < 9
        e(f"{stamps} s[{sTS + 2 * k}:{sTS + 2 * k + 1}]   ; stamp {k} {name}")
        if wait:
            e.wait_all(vm=False)
        nst[0] += 1
    done = f"L_{label}_done"
    e(f"""
    s_cmp_ge_u32 s2, 256
    s_cbranch_scc1 {done}
    s_load_dwordx2 s[4:5], s[0:1], 0
    s_load_dwordx2 s[12:13], s[0:1], 8
    s_load_dwordx2 s[16:17], s[0:1], 16
    s_load_dwordx2 s[8:9], s[0:1], 24
    s_load_dwordx2 s[20:21], s[0:1], {KA['wo']}
    s_load_dwordx2 s[28:29], s[0:1], {KA['wr']}
    s_load_dwordx2 s[24:25], s[0:1], {KA['ws']}
    s_load_dwordx2 s[{sDBG}:{sDBG + 1}], s[0:1], {KA['dbg']}
    s_load_dwordx4 s[{sFP}:{sFP + 3}], s[0:1], {KA['wg']}
    s_load_dwordx2 s[{sFP + 4}:{sFP + 5}], s[0:1], {KA['wd']}
    """)
    stamp("start", wait=False)
    e(f"""
    v_lshrrev_b32 v{vT}, 6, v0
    v_and_b32 v{vLANE}, 63, v0
    v_readfirstlane_b32 s{sW}, v{vT}
    """)
    mp = OPT.get("map", "A")
    if mp == "A":
        e(f"""
        s_and_b32 s{sG}, s2, 7
        s_lshr_b32 s{sTB}, s2, 3
        s_and_b32 s{sSK}, s{sTB}, 15
        s_and_b32 s{sKVT}, s{sTB}, 7
        """)
    elif mp == "B":
        e(f"""
        s_and_b32 s{sT0}, s2, 3
        s_lshl_b32 s{sT0}, s{sT0}, 1
        s_bfe_u32 s{sT1}, s2, {3 | (1 << 16)}
        s_or_b32 s{sG}, s{sT0}, s{sT1}
        s_bfe_u32 s{sT0}, s2, {2 | (1 << 16)}
        s_lshl_b32 s{sT0}, s{sT0}, 4
        s_lshr_b32 s{sT1}, s2, 4
        s_or_b32 s{sTB}, s{sT0}, s{sT1}
        s_and_b32 s{sSK}, s{sTB}, 7
        s_lshl_b32 s{sSK}, s{sSK}, 1
        s_and_b32 s{sKVT}, s{sTB}, 7
        """)
    elif mp == "C":
        e(f"""
        s_and_b32 s{sT0}, s2, 1
        s_lshl_b32 s{sT0}, s{sT0}, 2
        s_bfe_u32 s{sT1}, s2, {3 | (2 << 16)}
        s_or_b32 s{sG}, s{sT0}, s{sT1}
        s_bfe_u32 s{sT0}, s2, {1 | (2 << 16)}
        s_lshl_b32 s{sT0}, s{sT0}, 3
        s_lshr_b32 s{sT1}, s2, 5
        s_or_b32 s{sTB}, s{sT0}, s{sT1}
        s_and_b32 s{sSK}, s{sTB}, 7
        s_lshl_b32 s{sSK}, s{sSK}, 1
        s_and_b32 s{sKVT}, s{sTB}, 7
        """)
        if OPT.get("s4"):
            e(f"""
            s_and_b32 s{sSK}, s{sTB}, 3
            s_lshl_b32 s{sSK}, s{sSK}, 2
            """)
        if OPT.get("gskew"):
            e(f"""
            s_and_b32 s{sT0}, s{sG}, 3
            s_lshl_b32 s{sT0}, s{sT0}, 2
            s_add_u32 s{sSK}, s{sSK}, s{sT0}
            s_and_b32 s{sSK}, s{sSK}, 15
            """)
    L = vLANE
    t0, t1, t2, t3, t4, t5 = vT, vT + 1, vT + 2, vT + 3, vT + 4, vT + 5
    XV0, XV1 = 56, 57
    e(f"""
    v_and_b32 v{t2}, 15, v{L}
    v_lshrrev_b32 v{t3}, 4, v{L}
    s_lshl_b32 s{sT0}, s{sTB}, 6
    s_lshl_b32 s{sT1}, s{sW}, 4
    s_add_u32 s{sT0}, s{sT0}, s{sT1}
    v_lshrrev_b32 v{t0}, 3, v{L}
    v_add_u32 v{t0}, s{sT0}, v{t0}
    v_and_b32 v{t1}, 7, v{L}
    v_xor_b32 v{t1}, v{t1}, v{t3}
    v_lshlrev_b32 v{t1}, 4, v{t1}
    v_lshl_add_u32 v{XV0}, v{t0}, 10, v{t1}
    v_xor_b32 v{XV1}, 64, v{XV0}              ; chunk ^ 4
    v_add_u32 v{XV1}, 8192, v{XV1}            ; +8 tokens
    s_mul_i32 s{sRING}, s{sW}, {WSTR}
    s_add_u32 s{sRING}, s{sRING}, {RB}
    s_lshl_b32 s{sT3}, s{sW}, 10              ; w*1024
    s_lshl_b32 s101, s{sSK}, 6
    s_waitcnt lgkmcnt(0)
    """)
    for (dst, size) in [(S_X, 2097152), (S_K, 4194304), (S_V, 4194304), (S_WQ, 4194304),
                        (S_WO, 4194304), (S_WR, 1024), (S_WS, 0x10000000)]:
        e(f"""
        s_mov_b32 s{dst + 2}, {size}
        s_mov_b32 s{dst + 3}, 0x20000
        """)
    stamp("kernarg", wait=True)
    def xdma(u):
        for hb in range(2):
            e(f"s_add_u32 m0, s{sT3}, {(2 * u + hb) * 4096}")
            e("s_nop 0")
            e.vm(f"buffer_load_dwordx4 v{XV0 + hb}, s[{S_X}:{S_X + 3}], s101 offen lds", ("x", u, hb))
        e(f"s_add_u32 s101, s101, 128")
        e(f"s_and_b32 s101, s101, 1023")

    def wrdma():
        e(f"""
        s_lshl_b32 s{sT0}, s{sSK}, 2
        v_add_u32 v58, s{sT0}, v{L}
        v_and_b32 v58, 63, v58
        v_lshlrev_b32 v58, 4, v58
        s_add_u32 m0, s{sRING}, {2 * SLOT + 4096}
        s_nop 0
        """)
        e.vm(f"buffer_load_dwordx4 v58, s[{S_WR}:{S_WR + 3}], 0 offen lds", ("wr", 0))
    NU0 = OPT.get("nu0", 6)
    for u in range(NU0):
        xdma(u)
    e(f"""
    s_lshl_b32 s{sT0}, s{sG}, 2
    s_add_u32 s{sT0}, s{sT0}, s{sW}
    s_lshl_b32 s{sT0}, s{sT0}, 8            ; head*256
    v_lshlrev_b32 v{t4}, 1, v{t3}
    v_xor_b32 v{t4}, v{t4}, v{t2}
    v_lshlrev_b32 v{t5}, 13, v{t3}           ; rr*8192
    v_add_u32 v{t5}, s{sT0}, v{t5}
    v_lshl_add_u32 v{vWQ}, v{t4}, 4, v{t5}
    v_add_u32 v{vWQ + 1}, {32768 - 1024}, v{vWQ}
    v_xor_b32 v{t4}, 8, v{t4}
    v_lshl_add_u32 v{vWQ + 2}, v{t4}, 4, v{t5}
    v_add_u32 v{vWQ + 2}, {2 * (32768 - 1024)}, v{vWQ + 2}
    v_add_u32 v{vWQ + 3}, {32768 - 1024}, v{vWQ + 2}
    s_lshl_b32 s{sWQO}, s{sSK}, 18
    """)
    wq_pre = []
    for p in range(3):
        for h in range(2):
            fl = half_dma(e, 1, p, h, ("W", p, h))
            for i in range(4):
                grp = []
                if i == 0:
                    grp += [fl[0], lambda: e("s_nop 0")]
                grp.append(fl[1 + i])
                if i == 3:
                    grp.append(fl[5])
                wq_pre.append(grp)
    if OPT.get("early_dma", 0):
        for grp in wq_pre[:OPT["early_dma"]]:
            for fn in grp:
                fn()
        wq_pre = wq_pre[OPT["early_dma"]:]


    r_, c_ = 60, 61
    A0, A1, A2, A3, A4, A5 = 128, 129, 130, 131, 132, 133
    e(f"""
    v_bfe_u32 v{A0}, v{L}, 2, 2              ; r
    v_and_b32 v{A1}, 3, v{L}                 ; c
    v_lshrrev_b32 v{A2}, 4, v{L}             ; q4
    v_and_b32 v{A3}, 1, v{A2}
    v_lshl_or_b32 v{A3}, v{A3}, 2, v{A0}     ; phi
    v_lshlrev_b32 v{A3}, 1, v{A3}            ; f
    v_lshrrev_b32 v{A4}, 1, v{A1}
    v_xor_b32 v{A3}, v{A3}, v{A4}            ; chunk
    v_lshlrev_b32 v{A3}, 4, v{A3}
    v_and_b32 v{A4}, 1, v{A1}
    v_lshl_or_b32 v{A3}, v{A4}, 3, v{A3}     ; + (c&1)*8
    v_lshl_add_u32 v{A4}, v{A2}, 3, v{A0}    ; row
    v_lshl_add_u32 v{A3}, v{A4}, 8, v{A3}
    v_add_u32 v{vAA}, s{sRING}, v{A3}
    """)
    for dt in range(1, 8):
        e(f"v_xor_b32 v{vAA + dt}, {32 * dt}, v{vAA}")
    e(f"""
    v_and_b32 v{A3}, 1, v{A2}
    v_lshl_or_b32 v{A4}, v{A3}, 2, v{A0}     ; 4(q4&1) + r
    v_lshrrev_b32 v{A3}, 1, v{A4}            ; psi
    v_lshrrev_b32 v{A5}, 1, v{A2}
    v_lshl_or_b32 v{A4}, v{A5}, 4, v{A4}     ; row
    v_lshlrev_b32 v{A3}, 1, v{A3}
    v_lshrrev_b32 v{A5}, 1, v{A1}
    v_xor_b32 v{A3}, v{A3}, v{A5}            ; chunk
    v_lshlrev_b32 v{A3}, 4, v{A3}
    v_and_b32 v{A5}, 1, v{A1}
    v_lshl_or_b32 v{A3}, v{A5}, 3, v{A3}
    v_lshl_add_u32 v{A3}, v{A4}, 7, v{A3}
    v_add_u32 v{vAB}, s{sRING}, v{A3}
    """)
    for dt in range(1, 4):
        e(f"v_xor_b32 v{vAB + dt}, {32 * dt}, v{vAB}")
    e(f"""
    v_lshlrev_b32 v{vBR}, 4, v{L}            ; B read: X + l*16
    v_lshrrev_b32 v{A3}, 3, v{L}             ; row8
    v_lshrrev_b32 v{A4}, 1, v{A3}
    v_and_b32 v{A4}, 3, v{A4}
    v_lshlrev_b32 v{A4}, 1, v{A4}
    v_and_b32 v{A5}, 7, v{L}
    v_xor_b32 v{A4}, v{A4}, v{A5}
    v_lshlrev_b32 v{A4}, 4, v{A4}
    v_lshl_add_u32 v{A4}, v{A3}, 10, v{A4}
    s_lshl_b32 s{sT0}, s{sW}, 7
    v_add_u32 v{vWO}, s{sT0}, v{A4}
    v_add_u32 v{vWO + 1}, 7168, v{vWO}
    v_add_u32 v{vWO + 2}, {2 * 7168}, v{vWO}
    v_add_u32 v{vWO + 3}, {3 * 7168}, v{vWO}
    v_and_b32 v{A3}, 15, v{L}
    s_lshl_b32 s{sWOO}, s{sSK}, 15
    v_xor_b32 v{A4}, v{A2}, v{A3}            ; (l&15)^rr
    v_lshlrev_b32 v{A5}, 8, v{A2}
    v_lshl_add_u32 v{vKDM}, v{A4}, 4, v{A5}
    v_xor_b32 v{vKDM + 1}, 64, v{vKDM}
    v_xor_b32 v{vKDM + 2}, 128, v{vKDM}
    v_xor_b32 v{vKDM + 3}, 192, v{vKDM}
    v_lshlrev_b32 v{A4}, 2, v{A2}
    v_xor_b32 v{A4}, v{A4}, v{A3}
    v_lshl_add_u32 v{vVDM}, v{A4}, 4, v{A5}
    v_lshrrev_b32 v{A4}, 5, v{L}             ; h
    v_xor_b32 v{A4}, v{A4}, v{A3}
    v_lshlrev_b32 v{A4}, 4, v{A4}
    v_lshl_add_u32 v{A4}, v{A3}, 8, v{A4}
    v_and_b32 v{A5}, 1, v{A2}
    v_mul_u32_u24 v{A5}, {WSTR}, v{A5}
    v_add_u32 v{A4}, v{A4}, v{A5}
    v_add_u32 v{vKR}, {RB + 1 * SLOT}, v{A4}
    """)
    for s16 in range(1, 8):
        e(f"v_xor_b32 v{vKR + s16}, {32 * s16}, v{vKR}")
    e(f"""
    v_and_b32 v{A4}, 1, v{A2}
    v_lshlrev_b32 v{A4}, 1, v{A4}
    v_lshrrev_b32 v{A5}, 1, v{A1}
    v_or_b32 v{A4}, v{A4}, v{A5}
    v_lshlrev_b32 v{A5}, 2, v{A0}
    v_xor_b32 v{A4}, v{A4}, v{A5}
    v_lshlrev_b32 v{A4}, 4, v{A4}
    v_and_b32 v{A5}, 1, v{A1}
    v_lshl_or_b32 v{A4}, v{A5}, 3, v{A4}
    v_lshrrev_b32 v{A5}, 5, v{L}
    v_lshl_add_u32 v{A5}, v{A5}, 2, v{A0}    ; 4h + r
    v_lshl_add_u32 v{A4}, v{A5}, 8, v{A4}
    v_add_u32 v{vVR}, {RB + 4096 + 1 * SLOT}, v{A4}
    """)
    for db in range(1, 4):
        e(f"v_xor_b32 v{vVR + db}, {64 * db}, v{vVR}")
    e(f"""
    """)
    for u in range(NU0, 8):
        xdma(u)
    wrdma()
    e(f"""
    v_lshlrev_b32 v{vOW}, 4, v{A3}
    v_lshrrev_b32 v{A4}, 5, v{L}
    v_lshl_add_u32 v{vOW}, v{A4}, 8, v{vOW}
    v_and_b32 v{A4}, 1, v{A2}
    v_lshl_add_u32 v{vOW}, v{A4}, 10, v{vOW}
    """)
    e(f"""
    s_lshl_b32 s{sT0}, s{sG}, 5
    s_add_u32 s{sT0}, s{sT0}, s{sTB}
    s_lshl_b32 s{sT0}, s{sT0}, 3
    s_add_u32 s{sT0}, s{sT0}, s{sW}
    s_lshl_b32 s{sT0}, s{sT0}, 13
    v_lshlrev_b32 v{vPS}, 4, v{L}
    v_add_u32 v{vPS}, s{sT0}, v{vPS}
    s_lshl_b32 s{sKVB}, s{sG}, 19
    s_lshl_b32 s{sT0}, s{sW}, 12
    s_add_u32 s{sKVB}, s{sKVB}, s{sT0}
    s_add_u32 s{sKVB}, s{sKVB}, {1536 * 256}
    s_add_u32 s{S_K}, s{S_K}, s{sKVB}
    s_addc_u32 s{S_K + 1}, s{S_K + 1}, 0
    s_add_u32 s{S_V}, s{S_V}, s{sKVB}
    s_addc_u32 s{S_V + 1}, s{S_V + 1}, 0
    s_sub_u32 s{S_K + 2}, {131072}, s{sT0}
    s_mov_b32 s{S_V + 2}, s{S_K + 2}
    s_lshl_b32 s{sT0}, s{sG}, 19
    s_add_u32 s{S_WO}, s{S_WO}, s{sT0}
    s_addc_u32 s{S_WO + 1}, s{S_WO + 1}, 0
    s_mov_b32 s{S_WO + 2}, 524288
    s_lshl_b32 s{sKO}, s{sKVT}, 14
    s_mov_b32 s{sVO}, s{sKO}
    v_cmp_eq_u32 s[{sMASK}:{sMASK + 1}], 1, v{A1}
    v_cmp_eq_u32 s[{sMASK + 2}:{sMASK + 3}], 2, v{A1}
    v_cmp_eq_u32 s[{sMASK + 4}:{sMASK + 5}], 3, v{A1}
    v_cmp_eq_u32 s[98:99], v{A2}, v{A0}
    """)
    e(f"v_mov_b32 v{A5}, 0x3f803f80")
    for i in range(4):
        e(f"v_accvgpr_write_b32 a{64 + i}, v{A5}")
    e(f"s_mov_b32 s100, 0xffff0000")
    e("s_nop 0")
    SUM, GRM = 68, 72
    e(f"""
    v_and_b32 v58, 15, v{L}                  ; tok16
    v_lshrrev_b32 v59, 4, v{L}               ; q4
    v_bfe_u32 v60, v58, 1, 3                 ; swz
    v_xor_b32 v59, v59, v60
    v_lshlrev_b32 v59, 4, v59
    v_and_b32 v60, 7, v58
    v_lshl_add_u32 v59, v60, 7, v59
    v_lshrrev_b32 v60, 3, v58
    v_lshl_add_u32 v59, v60, 12, v59
    v_add_u32 v62, s{sT3}, v59
    v_xor_b32 v63, 64, v62
    """)

    for i in range(192, 256):
        e(f"v_accvgpr_write_b32 a{i}, 0")

    def stat_frag(p):
        e.need(ltags=[("xr", p)])
        xf = rng("v", vQ + 4 * p, 4)
        c1 = "0" if p == 0 else rng("a", SUM, 4)
        c2 = "0" if p == 0 else rng("a", GRM, 4)
        e(f"v_mfma_f32_16x16x32_bf16 {rng('a', SUM, 4)}, a[64:67], {xf}, {c1}")
        e(f"v_mfma_f32_16x16x32_bf16 {rng('a', GRM, 4)}, {xf}, {xf}, {c2}")
        for i in range(4):
            src = vQ + 4 * p + i
            dst = 128 + 8 * p + 2 * i
            e(f"v_lshlrev_b32 v{dst}, 16, v{src}")
            e(f"v_and_b32 v{dst + 1}, s100, v{src}")

    for u in range(8):
        e.need(vtags=[("x", u, 1)])
        for par in range(2):
            e.lds(f"ds_read_b128 {rng('v', vQ + 4 * (2 * u + par), 4)}, v{62 + par} offset:{u * 8192}", ("xr", 2 * u + par))
        for k in range(2):
            if wq_pre and u >= OPT.get("dma_from", 0):
                for fn in wq_pre.pop(0):
                    fn()
        if u > 0:
            stat_frag(2 * u - 2)
            stat_frag(2 * u - 1)
    e.need(vtags=[("wr", 0)])
    e(f"""
    v_lshrrev_b32 v58, 4, v{L}
    v_lshlrev_b32 v58, 4, v58
    v_add_u32 v58, s{sRING}, v58
    """)
    for p in range(16):
        e.lds(f"ds_read_b128 {rng('a', 128 + 4 * p, 4)}, v58 offset:{2 * SLOT + 4096 + p * 64}", ("wrf", p))
    stat_frag(14)
    stat_frag(15)
    e.nop(6)
    if not OPT.get("tailstamps") and not OPT.get("p3stamps"):
        stamp("x15_stats")
    s1, s2_, u0, u1, u2, u3 = 58, 59, 60, 61, 62, 63
    e(f"""
    v_accvgpr_read_b32 v{s1}, a{SUM}
    v_accvgpr_read_b32 v{u0}, a{GRM}
    v_accvgpr_read_b32 v{u1}, a{GRM + 1}
    v_accvgpr_read_b32 v{u2}, a{GRM + 2}
    v_accvgpr_read_b32 v{u3}, a{GRM + 3}
    v_cndmask_b32 v{u0}, v{u0}, v{u1}, s[{sMASK}:{sMASK + 1}]
    v_cndmask_b32 v{u0}, v{u0}, v{u2}, s[{sMASK + 2}:{sMASK + 3}]
    v_cndmask_b32 v{u0}, v{u0}, v{u3}, s[{sMASK + 4}:{sMASK + 5}]
    v_cndmask_b32 v{u0}, 0, v{u0}, s[98:99]
    v_mov_b32 v{u1}, v{u0}
    s_nop 1
    v_permlane32_swap_b32 v{u0}, v{u1}
    s_nop 0
    v_add_f32 v{u0}, v{u0}, v{u1}
    v_mov_b32 v{u1}, v{u0}
    s_nop 1
    v_permlane16_swap_b32 v{u0}, v{u1}
    s_nop 0
    v_add_f32 v{s2_}, v{u0}, v{u1}
    v_mul_f32 v{s1}, {hex(f2u(1.0 / 512))}, v{s1}     ; mean
    v_mul_f32 v{s2_}, {hex(f2u(1.0 / 512))}, v{s2_}
    v_fma_f32 v{s2_}, -v{s1}, v{s1}, v{s2_}      ; var
    v_max_f32 v{s2_}, 0, v{s2_}
    v_cvt_pk_bf16_f32 v{u0}, v{s1}, v{s2_}
    v_and_b32 v{u1}, s100, v{u0}
    v_add_f32 v{u1}, {hex(f2u(1e-5))}, v{u1}
    v_cvt_pk_bf16_f32 v{u1}, v{u1}, v{u1}
    v_and_b32 v{u1}, s100, v{u1}
    v_sqrt_f32 v{u1}, v{u1}
    v_lshlrev_b32 v{s1}, 16, v{u0}             ; mean_b f32
    v_cvt_pk_bf16_f32 v{u1}, v{u1}, v{u1}
    v_and_b32 v{u2}, s100, v{u1}                ; sd_b f32
    v_rcp_f32 v{u3}, v{u2}
    v_and_b32 v{u0}, 0xffff, v{u0}
    v_or_b32 v31, v{u0}, v{u2}
    v_mul_f32 v{u3}, {hex(f2u(C_SCALE))}, v{u3}     ; rsc
    v_mul_f32 v{u2}, v{s1}, v{u3}
    v_sub_f32 v{u2}, 0, v{u2}
    """)
    e(f"""
    v_mov_b32 v60, v{u3}
    v_mov_b32 v61, v{u3}
    v_mov_b32 v63, v{u2}
    """)
    e(f"""
    s_lshl_b32 s{sT0}, s{sW}, 10
    v_add_u32 v{s1}, s{sT0}, v{vBR}
    """)
    for p in range(16):
        for i in range(4):
            src = 128 + 8 * p + 2 * i
            e(f"v_pk_fma_f32 v[{src}:{src + 1}], v[{src}:{src + 1}], v[60:61], v[62:63]")
        for i in range(4):
            src = 128 + 8 * p + 2 * i
            e(f"v_cvt_pk_bf16_f32 v{vQ + 4 * p + i}, v{src}, v{src + 1}")
        e.lds(f"ds_write_b128 v{s1}, {rng('v', vQ + 4 * p, 4)} offset:{p * 4096}", ("xw", p))
        if wq_pre and p % OPT.get("dma_norm", 2) == 0 and not OPT.get("dma_late"):
            if len(wq_pre) <= 4:
                e.need(ltags=[("wrf", 15)])
            for fn in wq_pre.pop(0):
                fn()
    e.need(ltags=[("wrf", 15)])
    while wq_pre:
        for fn in wq_pre.pop(0):
            fn()
    e.need(ltags=[("xw", 15)])
    e("s_barrier")
    if not OPT.get("tailstamps") and not OPT.get("p3stamps"):
        stamp("ln_done")
    gemm_pre(e, 1)
    for p in range(16):
        c = "0" if p == 0 else "a[76:79]"
        e(f"v_mfma_f32_16x16x32_bf16 a[76:79], {rng('a', 128 + 4 * p, 4)}, {rng('v', vQ + 4 * p, 4)}, {c}")
    e.nop(8)
    e(f"""
    v_accvgpr_read_b32 v58, a76
    v_mul_f32 v58, {hex(f2u(1.0 / C_SCALE))}, v58
    v_cvt_pk_bf16_f32 v58, v58, v58
    v_and_b32 v59, s100, v58
    v_ashrrev_i32 v58, 31, v59
    v_or_b32 v58, 0x80000000, v58
    v_xor_b32 v59, v59, v58                  ; monotone map
    s_lshl_b32 s{sT0}, s{sTB}, 6
    s_lshl_b32 s{sT1}, s{sW}, 4
    s_add_u32 s{sT0}, s{sT0}, s{sT1}
    s_sub_u32 s{sT0}, 2047, s{sT0}
    v_and_b32 v58, 15, v{vLANE}
    v_sub_u32 v58, s{sT0}, v58               ; 2047 - token
    v_and_or_b32 v59, v59, s100, v58
    """)

    def lines(txt):
        return [t.strip() for t in txt.strip().split("\n") if t.strip()]

    st13 = lines(f"""
    s_add_u32 s{sGA}, s{S_WS}, {WS_R} | s_addc_u32 s{sGA + 1}, s{S_WS + 1}, 0
    s_mov_b32 s{sGA + 2}, 8192
    s_mov_b32 s{sGA + 3}, 0x20000
    s_add_u32 s{sGB}, s{S_WS}, {WS_STAT} | s_addc_u32 s{sGB + 1}, s{S_WS + 1}, 0
    s_mov_b32 s{sGB + 2}, 8192
    s_mov_b32 s{sGB + 3}, 0x20000
    s_lshl_b32 s{sT2}, s{sTB}, 6
    s_lshl_b32 s{sT1}, s{sW}, 4
    s_add_u32 s{sT2}, s{sT2}, s{sT1}
    v_add_u32 v58, s{sT2}, v{vLANE}
    v_lshlrev_b32 v58, 2, v58
    v_cmp_gt_u32 vcc, 16, v{vLANE}
    s_cmp_eq_u32 s{sG}, 0 | s_cselect_b64 s[{sMASK}:{sMASK + 1}], -1, 0
    v_mov_b32 v60, 0x7ffffff0
    s_and_b64 vcc, vcc, s[{sMASK}:{sMASK + 1}]
    v_cndmask_b32 v58, v60, v58, vcc
    """)
    st13 = [(x, None) for x in st13]
    st13.append((f"buffer_store_dword v59, v58, s[{sGA}:{sGA + 3}], 0 offen sc1", ("st", 0)))
    st13.append((f"buffer_store_dword v31, v58, s[{sGB}:{sGB + 3}], 0 offen sc1", ("st", 1)))
    if OPT.get("fused"):
        st13 += [(x, None) for x in lines(f"""
        s_lshl_b32 s{sT2}, s{sTB}, 3
        s_add_u32 s{sT2}, s{sT2}, s{sG}
        s_lshl_b32 s{sT2}, s{sT2}, 2
        s_add_u32 s{sT2}, s{sT2}, {WS_FLG}
        s_cmp_eq_u32 s{sW}, 0 | s_cselect_b32 s{sT2}, s{sT2}, 0x7fff0000
        v_lshlrev_b32 v58, 10, v{vLANE}
        v_add_u32 v58, s{sT2}, v58
        v_mov_b32 v60, 0x7fff0000
        v_cmp_gt_u32 vcc, 9, v{vLANE}
        v_mov_b32 v61, 0
        s_nop 0
        v_cndmask_b32 v58, v60, v58, vcc
        """)]
        st13.append((f"buffer_store_dword v61, v58, s[{S_WS}:{S_WS + 3}], 0 offen sc1", ("st", 2)))
    st14 = [f"v_mov_b32 v{vL + i}, 0" for i in range(4)]
    for i in range(4):
        st14 += [f"v_mov_b32 v{vGA + i}, v{vKDM + i}", f"v_mov_b32 v{vGB + i}, v{vVDM}"]
    st14 += lines(f"""
    s_mov_b32 s{sPASS}, 0
    v_mov_b32 v31, v{vKR}
    v_mov_b32 v63, v{vVR}
    s_min_u32 s{sSL}, s2, 223
    s_lshl_b32 s{sT2}, s{sW}, 7
    v_add_u32 v3, s{sT2}, v{vLANE}
    v_mul_u32_u24 v3, 3584, v3
    s_lshl_b32 s{sT2}, s{sSL}, 4
    v_add_u32 v3, s{sT2}, v3
    v_lshrrev_b32 v4, 4, v{vLANE}
    v_lshlrev_b32 v4, 10, v4
    v_and_b32 v2, 15, v{vLANE}
    v_lshl_add_u32 v4, v2, 4, v4
    s_lshl_b32 s{sT2}, s{sSL}, 13
    s_lshl_b32 s{sT1}, s{sW}, 8
    s_add_u32 s{sT2}, s{sT2}, s{sT1}
    v_add_u32 v4, s{sT2}, v4
    """)

    def emit_item(x, tag):
        def f():
            for part in x.split(" | "):
                if tag is not None:
                    e.vm(part, tag)
                else:
                    e(part)
        return f

    def tail1(p):
        f = []

        def guard(pp):
            return lambda: e.need(ltags=[("A", pp + 1, 7)])
        if p == 12:
            f += [(21, guard(12))] + place(kv_dma(e, "K", 1, ("KV", 0, "K")), 21, 3)
        if p == 13:
            f += place(kv_dma(e, "V", 1, ("KV", 0, "V")), 1, 4)
            f += [(21, guard(13))] + place(kv_dma(e, "K", 2, ("KV", 1, "K")), 21, 3)
        if p == 14:
            f += place(kv_dma(e, "V", 2, ("KV", 1, "V")), 1, 4)
            f += [(21, guard(14))] + place(kv_dma(e, "K", 0, ("KV", 2, "K")), 21, 3)
        if p == 13:
            for n, (x, tag) in enumerate(st13):
                f.append((n * 31 // len(st13), emit_item(x, tag)))
        if p == 14:
            for n, x in enumerate(st14):
                f.append((n * 31 // len(st14), emit_item(x, None)))
        return f

    qside = Side()
    for dt in range(8):
        first = True
        for qb in range(2):
            R = vQ + (dt * 2 + qb) * 4
            a0 = vACC + (dt * 4 + 2 * qb) * 4
            a1 = a0 + 4
            qside.add(f"v_cvt_pk_bf16_f32 v{R}, v{a0}, v{a0 + 1}", cond=((15, 4 * dt + 8) if first else None))
            first = False
            qside.add(f"v_cvt_pk_bf16_f32 v{R + 1}, v{a0 + 2}, v{a0 + 3}")
            qside.add(f"v_cvt_pk_bf16_f32 v{R + 2}, v{a1}, v{a1 + 1}")
            qside.add(f"v_cvt_pk_bf16_f32 v{R + 3}, v{a1 + 2}, v{a1 + 3}")
        for qb in range(2):
            R = vQ + (dt * 2 + qb) * 4
            qside.add(f"v_permlane16_swap_b32 v{R}, v{R + 2}", gap=(0 if qb == 0 else 0))
            qside.add(f"v_permlane16_swap_b32 v{R + 1}, v{R + 3}", gap=(1 if qb == 1 else 0))
    if OPT.get("only"):
        def gs(name):
            lq = list(e.lq)
            stamp(name)
            if name in OPT["only"]:
                e.lq = lq
        GSTAMP[0] = gs
    gemm_main(e, 1, tail1, side=qside, side_steps=(15,))
    if not OPT.get("tailstamps") and not OPT.get("p3stamps"):
        stamp("p1_done")
    e.nop(8)
    qside.emit(e, 0, flush=True)
    for i in range(32):
        e(f"v_mov_b32 v{vNM + i}, 0")
    if OPT.get("only"):
        stamp("q_conv")
    e(f"L_p2_start:")
    e(f"""
    s_mov_b32 s{sGA}, s{S_K}
    s_mov_b32 s{sGA + 1}, s{S_K + 1}
    s_mov_b32 s{sGA + 2}, s{S_K + 2}
    s_mov_b32 s{sGB}, s{S_V}
    s_mov_b32 s{sGB + 1}, s{S_V + 1}
    s_mov_b32 s{sGB + 2}, s{S_V + 2}
    s_mov_b32 s{sKSL}, {2 * SLOT}
    s_mov_b32 s{sVSL}, {1 * SLOT}
    s_mov_b32 s{sTRIP}, 1
    s_add_u32 s{sGAM}, s{sRING}, {1 * SLOT}
    s_add_u32 s{sGBM}, s{sRING}, 4096
    s_lshl_b32 s{sGAO}, s{sW}, 13
    s_mov_b32 s{sMASK + 2}, {64 * 3584}
    s_mov_b32 s{S_WQ + 2}, {512 * 1792 * 2}
    """)
    e.wait_all()
    e("s_barrier")
    for f in range(4):
        k_read(e, 0, f)
    e(f"""
    s_or_b32 s{sT0}, {'0' if OPT.get("fused") else 's%d' % sG}, s{sW}
    s_or_b32 s{sT0}, s{sT0}, s{sPASS}
    s_cmp_lg_u32 s{sT0}, 0
    s_cbranch_scc1 L_nopub
    """)
    if not OPT.get("xnopublish"):
        e(f"""
        v_mov_b32 v58, 0
        v_mov_b32 v59, 1
        v_cmp_eq_u32 vcc, 0, v{vLANE}
        s_nop 0
        s_and_saveexec_b64 s[{sMASK}:{sMASK + 1}], vcc
        global_atomic_add v58, v59, s[{sDBG}:{sDBG + 1}] sc1
        s_mov_b64 exec, s[{sMASK}:{sMASK + 1}]
        """)
    e("L_nopub:")
    p2_iter(e, -1, qk=True, sm=False, pv=False, look="K",
            fill=[(i // 4, lambda i=i: e(f"v_accvgpr_write_b32 a{128 + i}, 0")) for i in range(64)])
    upd = []
    for i in range(8):
        upd.append((i // 4 * 8 + i % 4 if i < 4 else 9 + i, lambda i=i: e(f"v_add_u32 v{vKR + i}, {SLOT}, v{vKR + i}")))
    p2_iter(e, 0, qk=True, sm=True, pv=False, look="K", fill=upd, smstart=5)

    if OPT.get("only"):
        lqs = list(e.lq)
        stamp("p2_preloop")
        e.lq = lqs
    lq0 = list(e.lq)
    loop_align(e)
    e("L_p2_loop:")
    n0 = len(e.l)
    e("s_waitcnt vmcnt(1)")
    e.vq = []
    if not OPT.get("nobar"):
        e("s_barrier")
    D64 = 64 * 3584
    fill = []

    def grp(*lines):
        f = lambda: [e(x) for x in lines]
        f.ninstr = len(lines)
        return f

    def adv2(sreg):
        f = lambda: kv_adv(e, sreg)
        f.ninstr = 2
        return f
    fill.append((0, lambda: e(f"s_mov_b32 m0, s{sGAM}")))
    for i in range(4):
        if not OPT.get("nogdma"):
          fill.append((2 + 4 * i, lambda i=i: e.vm(
            f"buffer_load_dwordx4 v{vGA + i}, s[{sGA}:{sGA + 3}], s{sKO} offen offset:{i * 1024} lds", ("G", 0))))
    fill.append((15, adv2(sKO)))
    fill.append((16, lambda: e(f"s_mov_b32 m0, s{sGBM}")))
    for i in range(4):
        if not OPT.get("nogdma"):
          fill.append((18 + 4 * i, lambda i=i: e.vm(
            f"buffer_load_dwordx4 v{vGB + i}, s[{sGB}:{sGB + 3}], s{sVO} offen offset:{i * 1024} lds", ("G", 1))))
    fill.append((30, adv2(sVO)))
    for db in range(4):
        fill.append((24 + 2 * db, lambda db=db: e(f"v_add_u32 v{vVR + db}, 49152, v{vVR + db}")))
    fill.append((4, grp(f"s_add_u32 s{sT1}, s{sKSL}, {SLOT}", f"s_cmp_eq_u32 s{sT1}, {3 * SLOT}",
                        f"s_cselect_b32 s{sT1}, 0, s{sT1}")))
    fill.append((8, grp(f"s_sub_u32 s{sKD}, s{sT1}, s{sKSL}", f"s_sub_u32 s{sVD}, s{sKSL}, s{sVSL}")))
    fill.append((12, grp(f"s_sub_u32 s{sVD}, s{sVD}, 49152", f"s_mov_b32 s{sVSL}, s{sKSL}", f"s_mov_b32 s{sKSL}, s{sT1}")))
    fill.append((20, grp(f"s_cmp_ge_u32 s{sTRIP}, 3", f"s_cselect_b32 s{S_WQ}, s{sFP + 2}, s{sFP}",
                         f"s_cselect_b32 s{S_WQ + 1}, s{sFP + 3}, s{sFP + 1}")))
    fill.append((22, grp(f"s_bitcmp0_b32 s{sTRIP}, 0", f"s_cselect_b32 s{sGBO}, s{sMASK + 2}, 0")))
    fill.append((24, grp(f"s_cmp_ge_u32 s{sTRIP}, 5", f"s_cselect_b32 s{S_WQ}, s{sFP + 4}, s{S_WQ}",
                         f"s_cselect_b32 s{S_WQ + 1}, s{sFP + 5}, s{S_WQ + 1}")))
    fill.append((26, grp(f"s_cmp_ge_u32 s{sTRIP}, 5", f"s_cselect_b32 s{sGBO}, 0, s{sGBO}",
                         f"s_cselect_b64 s[{sMASK}:{sMASK + 1}], -1, 0")))
    fill.append((28, grp(f"s_cmp_ge_u32 s{sTRIP}, 6", f"s_cselect_b32 s{sGBO}, 4096, s{sGBO}")))
    p2_iter(e, 1, fill=fill)
    fill = []
    for i in range(8):
        fill.append((8 + 2 * i if i >= 4 else 2 * i, lambda i=i: e(f"v_add_u32 v{vKR + i}, s{sKD}, v{vKR + i}")))
    for db in range(4):
        fill.append((24 + 2 * db, lambda db=db: e(f"v_add_u32 v{vVR + db}, s{sVD}, v{vVR + db}")))
    fill.append((1, lambda: e(f"v_cndmask_b32 v1, v3, v4, s[{sMASK}:{sMASK + 1}]")))
    fill.append((2, lambda: e(f"s_mov_b32 m0, s{sGAO}")))
    if not OPT.get("nocdma"):
        fill.append((4, lambda: e.vm(f"buffer_load_dwordx4 v1, s[{S_WQ}:{S_WQ + 3}], s{sGBO} offen lds", ("C", 0))))
    fill.append((6, lambda: e(f"s_add_u32 s{sGAO}, s{sGAO}, 1024")))
    fill.append((10, grp(f"s_add_u32 s{sGAM}, s{sRING}, s{sVSL}", f"s_add_u32 s{sT1}, s{sKSL}, {SLOT}")))
    fill.append((12, grp(f"s_cmp_eq_u32 s{sT1}, {3 * SLOT}", f"s_cselect_b32 s{sT1}, 0, s{sT1}",
                         f"s_add_u32 s{sGBM}, s{sRING}, s{sT1}")))
    fill.append((14, lambda: e(f"s_add_u32 s{sGBM}, s{sGBM}, 4096")))
    fill.append((28, lambda: e(f"s_add_u32 s{sTRIP}, s{sTRIP}, 1")))
    p2_iter(e, 2, fill=fill)
    e(f"""
    s_cmp_lg_u32 s{sTRIP}, 7
    s_cbranch_scc1 L_p2_noswitch
    s_mov_b32 s{sGA}, s{S_WO}
    s_mov_b32 s{sGA + 1}, s{S_WO + 1}
    s_mov_b32 s{sGA + 2}, s{S_WO + 2}
    s_mov_b32 s{sGB}, s{S_WO}
    s_mov_b32 s{sGB + 1}, s{S_WO + 1}
    s_mov_b32 s{sGB + 2}, s{S_WO + 2}
    s_mov_b32 s{sGAM}, s{sRING}
    s_add_u32 s{sGBM}, s{sRING}, 4096
    s_mov_b32 s{sKO}, s{sWOO}
    """)
    p3_adv(e)
    e(f"s_mov_b32 s{sVO}, s{sWOO}")
    p3_adv(e)
    for i in range(4):
        e(f"v_mov_b32 v{vGA + i}, v{vWO + i}")
        e(f"v_mov_b32 v{vGB + i}, v{vWO + i}")
    e("L_p2_noswitch:")
    e(f"s_cmp_lg_u32 s{sTRIP}, 8")
    e("s_cbranch_scc1 L_p2_loop")
    body = e.l[n0:]
    probs = check_hazards(body + body, "p2 loop x2")
    assert not probs or any(k.startswith("no") for k in OPT), "\n".join(probs[:10])
    sh = lambda q, d: [(t[0], t[1] + d) + tuple(t[2:]) if t else t for t in q]
    assert sh(lq0, 2) == e.lq, (lq0, e.lq)
    e.lq = sh(e.lq, 12)
    if OPT.get("only"):
        stamp("p2_loopend")
    e.wait_all(lds=False)
    e(f"""
    v_bfe_u32 v58, v{vLANE}, 2, 2               ; r
    v_lshrrev_b32 v59, 4, v{vLANE}              ; q4
    v_lshl_add_u32 v60, v59, 3, v58             ; 8 q4 + r
    v_lshlrev_b32 v60, 4, v60
    v_and_b32 v61, 1, v{vLANE}
    v_lshl_add_u32 v60, v61, 3, v60             ; + (c&1)*8
    v_bfe_u32 v61, v{vLANE}, 1, 1
    v_lshl_add_u32 v60, v61, 11, v60            ; + U
    s_lshl_b32 s{sT0}, s{sW}, 13
    v_add_u32 v60, s{sT0}, v60
    v_and_b32 v59, 1, v59
    v_lshl_add_u32 v58, v59, 2, v58             ; row 0..7
    v_lshlrev_b32 v58, 8, v58
    v_and_b32 v59, 3, v{vLANE}
    v_lshl_add_u32 v58, v59, 3, v58             ; + c*8
    v_add_u32 v58, s{sT0}, v58
    """)
    for i in range(4):
        for rd in range(2):
            e.lds(f"ds_read_b64_tr_b16 {rng('a', 96 + 4 * i + 2 * rd, 2)}, v60 offset:{i * 512 + rd * 64}", ("fa", i))
    for t in range(8):
        e.lds(f"ds_read_b64_tr_b16 {rng('a', 112 + 2 * t, 2)}, v58 offset:{4096 + t * 32}", ("da", t))
    e.wait_all(vm=False)
    e("s_barrier")
    e.vq = [("W", 0, 0)] * 0
    fill = place(p3_dma(e, 2), 0, 2) + place(p3_dma(e, 3), 8, 2)
    for db in range(4):
        fill.append((7 + db, lambda db=db: e(f"v_add_u32 v{vVR + db}, 49152, v{vVR + db}")))
    e.lq = [t for t in e.lq]
    e(f"v_mov_b32 v62, 0")
    e.vm(f"global_load_dword v2, v62, s[{sDBG}:{sDBG + 1}] sc1", ("cnt", 0))
    p2_iter(e, 15, qk=False, sm=True, pv=True, look="V", fill=fill, vpre=True, vord_next=VORD_D)
    RL = [58, 60]
    side = Side()
    A = side.add
    A(f"v_add_f32 v{vL}, v{vL}, v{vL + 1}")
    A(f"v_add_f32 v{vL + 2}, v{vL + 2}, v{vL + 3}")
    A(f"v_mov_b32 v{vL + 1}, v{vL}")
    A(f"v_mov_b32 v{vL + 3}, v{vL + 2}")
    A(f"v_permlane32_swap_b32 v{vL}, v{vL + 1}", gap=2)
    A(f"v_permlane32_swap_b32 v{vL + 2}, v{vL + 3}", gap=1)
    A(f"v_add_f32 v{vL}, v{vL}, v{vL + 1}", gap=1)
    A(f"v_add_f32 v{vL + 2}, v{vL + 2}, v{vL + 3}")
    A(f"v_rcp_f32 v{RL[0]}, v{vL}")
    A(f"v_rcp_f32 v{RL[1]}, v{vL + 2}")
    A(f"s_mov_b32 s{sT2}, {hex(f2u(2.0 ** -40))}")
    A(f"s_mov_b32 s{sT3}, {hex(f2u(2.0 ** 40))}")
    A(f"v_cmp_lt_f32 s[{sMASK}:{sMASK + 1}], s{sT2}, v{vL}")
    A(f"v_cmp_gt_f32 s[{sMASK + 2}:{sMASK + 3}], s{sT3}, v{vL}")
    A(f"v_cmp_lt_f32 s[{sMASK + 4}:{sMASK + 5}], s{sT2}, v{vL + 2}")
    A(f"v_cmp_gt_f32 vcc, s{sT3}, v{vL + 2}")
    A(f"s_and_b64 s[{sMASK}:{sMASK + 1}], s[{sMASK}:{sMASK + 1}], s[{sMASK + 2}:{sMASK + 3}]", gap=2)
    A(f"s_and_b64 vcc, vcc, s[{sMASK + 4}:{sMASK + 5}]")
    A(f"s_and_b64 s[{sMASK}:{sMASK + 1}], s[{sMASK}:{sMASK + 1}], vcc")
    for db in range(4):
        wa = 61 + (db & 1)
        A(lambda db=db: [e(x) for x in (f"s_lshl_b32 s{sT1}, s{sW}, 2", f"s_add_u32 s{sT1}, s{sT1}, {db}",
                                        f"s_sub_u32 s{sT1}, s{sT1}, s{sSK}")])
        A(lambda: [e(x) for x in (f"s_and_b32 s{sT1}, s{sT1}, 15", f"s_lshl_b32 s{sT1}, s{sT1}, 12")])
        A(f"v_add_u32 v{wa}, s{sT1}, v{vOW}")
        for qb in range(2):
            src = aO + (db * 2 + qb) * 16
            T = 128 + ((db * 2 + qb) % 4) * 16 if False else 128 + (db * 2 + qb) * 16
            for i in range(16):
                A(f"v_accvgpr_read_b32 v{T + i}, a{src + i}", cond=((16, min(4 * db + 7, 99)) if (i == 0 and qb == 0) else None))
            for i in range(8):
                A(f"v_pk_mul_f32 v[{T + 2 * i}:{T + 2 * i + 1}], v[{T + 2 * i}:{T + 2 * i + 1}], v[{RL[qb]}:{RL[qb] + 1}] op_sel_hi:[1,0]")
            for i in range(8):
                A(f"v_cvt_pk_bf16_f32 v{T + i}, v{T + 2 * i}, v{T + 2 * i + 1}")
            for jp in range(2):
                A(lambda T=T, jp=jp, qb=qb, db=db, wa=wa: e.lds(
                    f"ds_write_b128 v{wa}, {rng('v', T + 4 * jp, 4)} offset:{qb * 2048 + jp * 512}", ("ow", db, qb, jp)))
    p2_iter(e, 16, qk=False, sm=False, pv=True, look=None, vord=VORD_D, side=side, cap=OPT.get("normcap", 5))
    if not OPT.get("tailstamps"):
        stamp("p2_done")
    e.nop(OPT.get("normnop", 10))
    side.emit(e, 0, flush=True)
    e(f"""
    s_cmp_eq_u64 s[{sMASK}:{sMASK + 1}], -1
    s_cselect_b32 s{sT2}, 0, 1
    s_cmp_eq_u32 s{sPASS}, 0
    s_cselect_b32 s{sT2}, s{sT2}, 0
    s_cmp_eq_u32 s{sT2}, 0
    s_cbranch_scc1 L_noflag
    s_lshl_b32 s{sT0}, s{sW}, 2
    s_sub_u32 s{sT0}, s{sT0}, s{sSK}
    s_and_b32 s{sT0}, s{sT0}, 15
    s_lshl_b32 s{sT0}, s{sT0}, 12
    v_mov_b32 v58, s{sT0}
    v_mov_b32 v59, -1
    ds_write_b32 v58, v59
    L_noflag:
    """)
    e.wait_all(vm=False)
    e("s_barrier")
    for w_ in range(4):
        e(f"""
        s_sub_u32 s{sT0}, {4 * w_}, s{sSK}
        s_and_b32 s{sT0}, s{sT0}, 15
        s_lshl_b32 s{sT0}, s{sT0}, 12
        v_mov_b32 v{58 + w_}, s{sT0}
        """)
    for w_ in range(4):
        e.lds(f"ds_read_b32 v{58 + w_}, v{58 + w_}", ("mk", w_))
    e(f"v_lshlrev_b32 v{vBR}, 4, v{vLANE}")
    for fn in p3_reads(e, 0, 0)[8:] + p3_reads(e, 0, 0)[:8]:
        fn()
    serial(e, p3_dma(e, 4))
    e.need(ltags=[("mk", 3)])
    e(f"""
    v_and_b32 v58, v58, v59
    v_and_b32 v60, v60, v61
    v_max_u32 v58, v58, v60
    v_max_u32 v59, v59, v61
    """)
    e.l = e.l[:-4]
    e(f"""
    v_max_u32 v58, v58, v59
    v_max_u32 v60, v60, v61
    v_max_u32 v58, v58, v60
    s_nop 0
    v_readfirstlane_b32 s{sT0}, v58
    s_nop 0
    s_cmp_eq_u32 s{sT0}, -1
    s_cbranch_scc1 L_fallback
    L_p3_start:
    """)
    e.need(vtags=[("cnt", 0)])
    e(f"""
    v_readfirstlane_b32 s{sT0}, v2
    s_lshl_b32 s{sT1}, s{sW}, 11
    v_lshlrev_b32 v62, 5, v{vLANE}
    v_add_u32 v62, s{sT1}, v62
    v_add_u32 v62, {WS_R}, v62
    s_cmp_ge_u32 s{sT0}, {256 if OPT.get("fused") else 32}
    s_cselect_b32 s{sRDY}, 1, 0
    s_mov_b32 s48, 4096
    s_mov_b32 s49, 32768
    s_mov_b32 s50, {32768 + 4096}
    """)
    e.vm(f"buffer_load_dwordx4 v[88:91], v62, s[{S_WS}:{S_WS + 3}], 0 offen sc1", ("rl", 0))
    e.vm(f"buffer_load_dwordx4 v[92:95], v62, s[{S_WS}:{S_WS + 3}], 0 offen offset:16 sc1", ("rl", 1))
    assert [t for t in e.vq if t[0] == "W"] == [("W", u) for u in range(2, 5) for _ in range(4)], e.vq
    e.vq = [("W", u) for u in range(5) for _ in range(4)]
    import moe

    def tail3(u):
        return []

    def tail3_old(u):
        f = []
        lst = {28: [(S_WQ, 80, 0), (S_WQ, 81, 1024), (S_K, 80, 2048), (S_K, 81, 3072)], 29: [(S_V, 82, 4096), (S_V, 83, 5120)]}
        if u in lst and not OPT.get("nomoe") and not OPT.get("xnofw"):
            f.append((0, lambda u=u: e.need(ltags=[("A", u, 3)])))
            for n, (srd, v, off) in enumerate(lst[u]):
                f.append((1 + 3 * n, lambda off=off: e(f"s_add_u32 m0, s{sRING}, {2 * SLOT + off}")))
                f.append((2 + 3 * n, lambda srd=srd, v=v: e.vm(
                    f"buffer_load_dwordx4 v{v}, s[{srd}:{srd + 3}], 0 offen lds", ("fw", 0))))
        return f
    side_e, side = Side(), Side()
    sp = OPT.get("stspread", 2.0)
    for n, (x, gap) in enumerate(p3_epilogue_items(e, 0, [64, 68, 72, 76])):
        k, r = n // 7, n % 7
        pos = 16 + k * sp
        side_e.add(x, gap=gap, cond=((int(pos), 2 + int((pos % 1) * 16)) if r == 0 else None))
    if not OPT.get("nomoe"):
        moe.moe_side(e, side, dict(W=sW, RING=sRING, RDY=sRDY, M=100, X=S_X, WS=S_WS))
        side.q[0] = (side.q[0][0], side.q[0][1], (OPT.get("moestart", 4) if OPT.get("p3unroll", 1) else 16, 0))
    if OPT.get("p3stamps") or OPT.get("only"):
        def st_nowait(name):
            q = list(e.lq)
            stamp(name)
        STAMP[0] = st_nowait
    p3_phase(e, tail3, [side_e, side], None)
    side_e.emit(e, 0, flush=True)
    side.emit(e, 0, flush=True)
    stamp("p3_done")
    e.nop(6)
    side = Side()
    for (x, gap) in p3_epilogue_items(e, 1, [64, 68, 72, 76, 80, 84, 88, 92]):
        side.add(x, gap=gap)
    side.emit(e, 0, flush=True)
    stamp("epi")
    doneq = f"L_{label}_fin"
    RT = dict(X=S_X, WS=S_WS, WR=S_WR, W=sW, RING=sRING, SL=sSL, RDY=sRDY, DBG=sDBG, M=100, G=sG, TB=sTB,
              T=[42, 43, 44, 45, 46, 47, 60, 61, 62, 63, 64, 65, 66, 67], done=doneq,
              spin=OPT.get("spin", 4000), fused=OPT.get("fused"), NCNT=(256 if OPT.get("fused") else 32),
              stamp=(stamp if OPT.get("tailstamps") else (lambda n: None)), opt=OPT)
    if OPT.get("fused"):
        moe.moe_tail(e, RT)
    elif not OPT.get("nomoe"):
        e(f"""
        s_cmp_ge_u32 s2, 224
        s_cbranch_scc1 {doneq}
        s_nop 1
        """)
        moe.moe_tail(e, RT)
    e(f"{doneq}:")
    stamp("end")
    if stamps and OPT.get("dbgstamps"):
        e.wait_all()
        e(f"""
        v_mov_b32 v58, 16
        v_mov_b32 v59, s{sTS + 16}
        v_mov_b32 v60, 20
        s_not_b32 s{sT0}, s{sTS}
        v_mov_b32 v61, s{sT0}
        v_cmp_eq_u32 vcc, 0, v{vLANE}
        s_nop 0
        s_and_saveexec_b64 s[{sMASK}:{sMASK + 1}], vcc
        global_atomic_umax v58, v59, s[{sDBG}:{sDBG + 1}] sc1
        global_atomic_umax v60, v61, s[{sDBG}:{sDBG + 1}] sc1
        s_or_b32 s{sT0}, s2, s{sW}
        s_cmp_lg_u32 s{sT0}, 0
        s_cbranch_scc1 L_dbg_skip
        """)
        for k in range(1, 9):
            e(f"s_sub_u32 s{sT0}, s{sTS + 2 * k}, s{sTS}")
            e(f"v_mov_b32 v59, s{sT0}")
            e(f"v_mov_b32 v58, {24 + 4 * (k - 1)}")
            e(f"global_store_dword v58, v59, s[{sDBG}:{sDBG + 1}]")
            e("s_nop 1")
        e("L_dbg_skip:")
        e(f"s_mov_b64 exec, s[{sMASK}:{sMASK + 1}]")
    elif stamps:
        e.wait_all()
        e(f"""
        s_lshl_b32 s{sT0}, s2, 2
        s_add_u32 s{sT0}, s{sT0}, s{sW}
        s_lshl_b32 s{sT0}, s{sT0}, 7
        s_add_u32 s{sT0}, s{sT0}, {WS_TS}
        v_mov_b32 v58, s{sT0}
        v_cmp_eq_u32 vcc, 0, v{vLANE}
        s_nop 0
        s_and_saveexec_b64 s[{sMASK}:{sMASK + 1}], vcc
        """)
        for i in range(0, 20, 4):
            for q in range(4):
                e(f"v_mov_b32 v{60 + q}, s{min(sTS + i + q, sTS + 17)}")
            e(f"buffer_store_dwordx4 v[60:63], v58, s[{S_WS}:{S_WS + 3}], 0 offen offset:{i * 4}")
            e("s_nop 1")
        e(f"s_mov_b64 exec, s[{sMASK}:{sMASK + 1}]")
    e(f"s_branch {done}")
    e("L_fallback:")
    e(f"""
    s_barrier
    s_lshl_b32 s{sKO}, s{sKVT}, 14
    v_mov_b32 v{vKR}, v31
    v_mov_b32 v{vL}, 0xff800000
    v_mov_b32 v{vL + 2}, 0xff800000
    v_subrev_u32 v{vKR}, {SLOT}, v{vKR}
    s_mov_b32 s{sTRIP}, 0
    """)
    for s16 in range(1, 8):
        e(f"v_xor_b32 v{vKR + s16}, {32 * s16}, v{vKR}")
    e("L_fb_loop:")
    e("s_waitcnt vmcnt(0) lgkmcnt(0)")
    e("s_barrier")
    e.vq, e.lq = [], []
    serial(e, kv_dma(e, "K", 0, ("fbk", 0)))
    e.wait_all()
    e("s_barrier")
    for kb in range(2):
        for s16 in range(8):
            e(f"ds_read_b128 {Fbuf(s16)}, v{vKR + s16} offset:{kb * 49152}")
        e("s_waitcnt lgkmcnt(0)")
        for s16 in range(8):
            for qb in range(2):
                c = "0" if s16 == 0 else Sreg(0, qb)
                e(f"v_mfma_f32_32x32x16_bf16 {Sreg(0, qb)}, {Fbuf(s16)}, {Qreg(s16, qb)}, {c}")
        e.nop(16)
        for qb in range(2):
            m = vL + 2 * qb
            for i in range(0, 16, 2):
                e(f"v_max3_f32 v{m}, v{m}, {Sreg(0, qb, i)}, {Sreg(0, qb, i + 1)}")
    e(f"""
    s_add_u32 s{sTRIP}, s{sTRIP}, 1
    s_cmp_lt_u32 s{sTRIP}, 8
    s_cbranch_scc1 L_fb_loop
    v_mov_b32 v{vL + 1}, v{vL}
    v_mov_b32 v{vL + 3}, v{vL + 2}
    s_nop 1
    v_permlane32_swap_b32 v{vL}, v{vL + 1}
    v_permlane32_swap_b32 v{vL + 2}, v{vL + 3}
    s_nop 0
    v_max_f32 v{vL}, v{vL}, v{vL + 1}
    v_max_f32 v{vL + 2}, v{vL + 2}, v{vL + 3}
    """)
    for qb in range(2):
        for i in range(16):
            e(f"v_sub_f32 v{vNM + 16 * qb + i}, 0, v{vL + 2 * qb}")
    e(f"""
    s_barrier
    s_lshl_b32 s{sKO}, s{sKVT}, 14
    s_mov_b32 s{sVO}, s{sKO}
    s_lshl_b32 s{sWOO}, s{sSK}, 15
    v_mov_b32 v{vKR}, v31
    v_mov_b32 v{vVR}, v63
    s_mov_b32 s{sPASS}, 1
    """)
    for s16 in range(1, 8):
        e(f"v_xor_b32 v{vKR + s16}, {32 * s16}, v{vKR}")
    for db in range(1, 4):
        e(f"v_xor_b32 v{vVR + db}, {64 * db}, v{vVR}")
    for (which, slot) in (("K", 1), ("V", 1), ("K", 2), ("V", 2), ("K", 0)):
        serial(e, kv_dma(e, which, slot, ("fbp", 0)))
    for i in range(4):
        e(f"v_mov_b32 v{vL + i}, 0")
        e(f"v_mov_b32 v{vGA + i}, v{vKDM + i}")
        e(f"v_mov_b32 v{vGB + i}, v{vVDM}")
    for i in range(128):
        e(f"v_accvgpr_write_b32 a{128 + i}, 0")
    e("s_branch L_p2_start")
    e(f"{done}:")
    e("s_endpgm")
    sp = check_scc(e.l)
    if sp:
        print("\n".join(sp))
        raise SystemExit("scc")
    probs = check_hazards(e.l, "k1")
    if probs and not any(k.startswith("no") for k in OPT):
        print("\n".join(probs[:40]))
        raise SystemExit("hazards")
    return e.text()
```

```python
from emit import E, check_hazards, check_scc
from asmlib import KA
from k1 import WS_PART, WS_R, WS_STAT, WS_IDX, WS_TS, WS_FLG, f2u, rng

WS_YP = 17 << 20
NSL = 224
LOG2E = 1.4426950408889634


def wave_max_u32(e, v, tmp_s):
    for sh in (1, 2, 4, 8):
        e("s_nop 1")
        e(f"v_max_u32_dpp v{v}, v{v}, v{v} row_shr:{sh} row_mask:0xf bank_mask:0xf")
    e("s_nop 1")
    e(f"v_max_u32_dpp v{v}, v{v}, v{v} row_bcast:15 row_mask:0xa bank_mask:0xf")
    e("s_nop 1")
    e(f"v_max_u32_dpp v{v}, v{v}, v{v} row_bcast:31 row_mask:0xc bank_mask:0xf")
    e("s_nop 0")
    e(f"v_readlane_b32 s{tmp_s}, v{v}, 63")


def silu_bf16(e, dst, src, t0, t1, sM):
    e(f"v_mul_f32 v{t0}, {hex(f2u(-LOG2E))}, v{src}")
    e(f"v_exp_f32 v{t0}, v{t0}")
    e("s_nop 0")
    e(f"v_add_f32 v{t0}, 1.0, v{t0}")
    e(f"v_rcp_f32 v{t0}, v{t0}")
    e("s_nop 0")
    e(f"v_mul_f32 v{t0}, v{src}, v{t0}")
    e(f"v_cvt_pk_bf16_f32 v{t0}, v{t0}, v{t0}")
    e(f"v_and_b32 v{dst}, s{sM}, v{t0}")


def ts_begin(e, on):
    if on:
        e("s_memrealtime s[64:65]")


def ts_end(e, on, srd, off, wave_sreg, lane_v=0):
    if not on:
        return
    e(f"""
    s_memrealtime s[66:67]
    s_mov_b64 exec, -1
    s_lshl_b32 s68, s2, 2
    s_add_u32 s68, s68, s{wave_sreg}
    s_lshl_b32 s68, s68, 4
    s_add_u32 s68, s68, {off}
    s_waitcnt vmcnt(0) lgkmcnt(0)
    s_memrealtime s[66:67]
    s_waitcnt lgkmcnt(0)
    v_mov_b32 v100, s64
    v_mov_b32 v101, s65
    v_mov_b32 v102, s66
    v_mov_b32 v103, s67
    v_mov_b32 v104, s68
    v_cmp_eq_u32 vcc, 0, v{lane_v}
    s_nop 1
    s_and_saveexec_b64 s[70:71], vcc
    buffer_store_dwordx4 v[100:103], v104, s[{srd}:{srd + 3}], 0 offen
    """)


def gen_km(label, ts=False):
    e = E()
    done = f"L_{label}_done"
    S_X, S_WG, S_WU, S_WD, S_WS = 4, 8, 12, 16, 20
    sW, sF0, sM = 24, 25, 26
    sWIN = 32
    e(f"""
    s_cmp_ge_u32 s2, {NSL}
    s_cbranch_scc1 {done}
    {"s_memrealtime s[64:65]" if ts else ""}
    s_load_dwordx2 s[4:5], s[0:1], {KA['x']}
    s_load_dwordx2 s[8:9], s[0:1], {KA['wg']}
    s_load_dwordx2 s[12:13], s[0:1], {KA['wu']}
    s_load_dwordx2 s[16:17], s[0:1], {KA['wd']}
    s_load_dwordx2 s[20:21], s[0:1], {KA['ws']}
    v_lshrrev_b32 v1, 6, v0
    v_mov_b32 v63, v0                    ; tid
    v_and_b32 v0, 63, v0
    v_readfirstlane_b32 s{sW}, v1
    s_lshl_b32 s{sF0}, s2, 4
    s_mov_b32 s{sM}, 0xffff0000
    s_waitcnt lgkmcnt(0)
    s_mov_b32 s6, 2097152
    s_mov_b32 s7, 0x20000
    s_mov_b32 s10, {512 * 1792 * 2}
    s_mov_b32 s11, 0x20000
    s_mov_b32 s14, {512 * 1792 * 2}
    s_mov_b32 s15, 0x20000
    s_mov_b32 s18, {1792 * 512 * 2}
    s_mov_b32 s19, 0x20000
    s_mov_b32 s22, 0x10000000
    s_mov_b32 s23, 0x20000
    """)
    e(f"""
    v_lshlrev_b32 v2, 5, v63
    v_add_u32 v2, {WS_R}, v2
    """)
    e.vm(f"buffer_load_dwordx4 v[8:11], v2, s[20:23], 0 offen", "r0")
    e.vm(f"buffer_load_dwordx4 v[12:15], v2, s[20:23], 0 offen offset:16", "r1")
    e(f"""
    s_lshl_b32 s27, s{sW}, 7
    v_add_u32 v3, s27, v0                ; row = 128 w + l
    v_mul_u32_u24 v3, 3584, v3
    v_add_u32 v3, s{sF0}, v3
    v_add_u32 v4, {64 * 3584}, v3
    s_lshl_b32 s28, s{sW}, 11            ; w*2048
    """)
    for (srd, base) in ((S_WG, 0), (S_WU, 8192)):
        for i in range(2):
            e(f"s_add_u32 m0, s28, {base + i * 1024}")
            e("s_nop 0")
            e.vm(f"buffer_load_dwordx4 v{3 + i}, s[{srd}:{srd + 3}], 0 offen lds", "wgu")
    e(f"""
    s_lshl_b32 s29, s2, 3
    s_lshl_b32 s30, s{sW}, 1
    s_add_u32 s29, s29, s30
    s_lshl_b32 s29, s29, 10              ; row*1024
    v_lshlrev_b32 v5, 4, v0
    """)
    for i in range(2):
        e(f"s_add_u32 m0, s28, {16384 + i * 1024}")
        e("s_nop 0")
        e.vm(f"buffer_load_dwordx4 v5, s[{S_WD}:{S_WD + 3}], s29 offen lds", "wd")
        e("s_add_u32 s29, s29, 1024")
    e.need(vtags=["r1"])
    e(f"v_lshlrev_b32 v6, 3, v63")
    e(f"v_sub_u32 v6, 2047, v6            ; 2047 - idx0")
    for i in range(8):
        r = 8 + i
        e(f"v_ashrrev_i32 v7, 31, v{r}")
        e(f"v_or_b32 v7, 0x80000000, v7")
        e(f"v_xor_b32 v{r}, v{r}, v7          ; monotone map")
        e(f"v_and_b32 v{r}, s{sM}, v{r}")
        e(f"v_or_b32 v{r}, v{r}, v6")
        if i < 7:
            e(f"v_subrev_u32 v6, 1, v6")
    e("v_mov_b32 v20, 0")
    for rd in range(8):
        e("v_max3_u32 v16, v8, v9, v10")
        e("v_max3_u32 v17, v11, v12, v13")
        e("v_max3_u32 v16, v16, v14, v15")
        e("v_max_u32 v16, v16, v17")
        wave_max_u32(e, 16, 31)
        e("s_nop 1")
        for i in range(8):
            e(f"v_cmp_ne_u32 vcc, s31, v{8 + i}")
            e("s_nop 1")
            e(f"v_cndmask_b32 v{8 + i}, 0, v{8 + i}, vcc")
        e(f"v_writelane_b32 v20, s31, {rd}")
    e(f"""
    s_lshl_b32 s27, s{sW}, 5
    v_lshlrev_b32 v21, 2, v0
    v_add_u32 v21, s27, v21
    v_add_u32 v21, 24576, v21
    v_cmp_gt_u32 vcc, 8, v0
    s_nop 0
    s_and_saveexec_b64 s[40:41], vcc
    ds_write_b32 v21, v20
    s_mov_b64 exec, s[40:41]
    s_waitcnt lgkmcnt(0)
    s_barrier
    v_and_b32 v21, 31, v0
    v_lshlrev_b32 v21, 2, v21
    ds_read_b32 v22, v21 offset:24576
    v_cmp_gt_u32 vcc, 32, v0
    s_waitcnt lgkmcnt(0)
    s_nop 0
    v_cndmask_b32 v22, 0, v22, vcc
    """)
    for rd in range(8):
        e("v_mov_b32 v16, v22")
        wave_max_u32(e, 16, sWIN + rd)
        e("s_nop 1")
        e(f"v_cmp_ne_u32 vcc, s{sWIN + rd}, v22")
        e("s_nop 1")
        e(f"v_cndmask_b32 v22, 0, v22, vcc")
    e("v_and_b32 v24, 7, v0")
    e(f"v_mov_b32 v23, s{sWIN}")
    for j in range(1, 8):
        e(f"v_cmp_eq_u32 vcc, {j}, v24")
        e(f"v_mov_b32 v25, s{sWIN + j}")
        e("s_nop 0")
        e("v_cndmask_b32 v23, v23, v25, vcc")
    e(f"""
    v_and_b32 v26, 0x7ff, v23
    v_sub_u32 v26, 2047, v26
    v_and_b32 v27, s{sM}, v23
    v_ashrrev_i32 v28, 31, v27
    v_not_b32 v28, v28
    v_or_b32 v28, 0x80000000, v28
    v_xor_b32 v27, v27, v28
    v_and_b32 v27, s{sM}, v27             ; r (f32 bits)
    """)
    e(f"""
    v_mul_f32 v28, {hex(f2u(-LOG2E))}, v27
    v_exp_f32 v28, v28
    s_nop 0
    v_add_f32 v28, 1.0, v28
    v_rcp_f32 v28, v28
    s_nop 0
    v_cvt_pk_bf16_f32 v28, v28, v28
    v_and_b32 v28, s{sM}, v28             ; bf16(sigmoid(r))
    v_lshlrev_b32 v29, 2, v0
    v_add_u32 v29, {WS_IDX}, v29
    s_or_b32 s27, s2, s{sW}
    s_cmp_eq_u32 s27, 0
    s_cselect_b64 s[42:43], -1, 0
    v_cmp_gt_u32 vcc, 8, v0
    s_nop 1
    s_and_b64 vcc, vcc, s[42:43]
    s_and_saveexec_b64 s[40:41], vcc
    s_cbranch_execz L_km_nopub
    buffer_store_dword v26, v29, s[20:23], 0 offen
    buffer_store_dword v28, v29, s[20:23], 0 offen offset:32
    L_km_nopub:
    s_mov_b64 exec, s[40:41]
    """)
    e.vq += ["pub", "pub"]
    e(f"""
    v_lshrrev_b32 v30, 4, v0
    v_lshlrev_b32 v30, 4, v30             ; q4*16
    v_lshl_add_u32 v30, v26, 10, v30
    s_lshl_b32 s27, s{sW}, 8              ; 4w*64 bytes
    v_lshlrev_b32 v31, 2, v26
    v_add_u32 v31, {WS_STAT}, v31
    """)
    e.vm(f"buffer_load_dword v32, v31, s[20:23], 0 offen", "st")
    for i in range(4):
        e.vm(f"buffer_load_dwordx4 {rng('v', 36 + 4 * i, 4)}, v30, s[4:7], s27 offen offset:{64 * i}", ("xg", i))
    e.need(vtags=["st"])
    e(f"""
    v_lshlrev_b32 v33, 16, v32            ; mean
    v_and_b32 v34, s{sM}, v32             ; sd
    v_rcp_f32 v34, v34
    """)
    e.need(vtags=[("xg", 3)])
    for i in range(16):
        r = 36 + i
        e(f"""
        v_lshlrev_b32 v52, 16, v{r}
        v_and_b32 v53, s{sM}, v{r}
        v_sub_f32 v52, v52, v33
        v_sub_f32 v53, v53, v33
        v_cvt_pk_bf16_f32 v52, v52, v53
        v_and_b32 v53, s{sM}, v52
        v_lshlrev_b32 v52, 16, v52
        v_mul_f32 v52, v52, v34
        v_mul_f32 v53, v53, v34
        v_cvt_pk_bf16_f32 v{r}, v52, v53
        """)
    e.need(vtags=["wd"])
    e("s_barrier")
    e(f"""
    v_bfe_u32 v54, v0, 2, 2               ; r
    v_lshrrev_b32 v55, 4, v0              ; q4
    v_lshl_add_u32 v54, v55, 3, v54       ; 8 q4 + r
    v_lshlrev_b32 v54, 4, v54
    v_and_b32 v55, 1, v0
    v_lshl_add_u32 v54, v55, 3, v54       ; + (c&1)*8
    v_bfe_u32 v55, v0, 1, 1
    v_lshl_add_u32 v54, v55, 13, v54      ; + U
    s_lshl_b32 s27, s{sW}, 11
    v_add_u32 v54, s27, v54
    """)
    for i in range(4):
        for rd in range(2):
            e.lds(f"ds_read_b64_tr_b16 {rng('v', 64 + 4 * i + 2 * rd, 2)}, v54 offset:{i * 512 + rd * 64}", ("fa", i))
    for i in range(4):
        e.need(ltags=[("fa", i)])
        c = "0" if i == 0 else "v[56:59]"
        e(f"v_mfma_f32_16x16x32_bf16 v[56:59], {rng('v', 64 + 4 * i, 4)}, {rng('v', 36 + 4 * i, 4)}, {c}")
    e.nop(8)
    e(f"""
    s_lshl_b32 s27, s{sW}, 10
    v_lshlrev_b32 v60, 4, v0
    v_add_u32 v61, s27, v60
    ds_write_b128 v61, v[56:59] offset:25600
    s_waitcnt lgkmcnt(0)
    s_barrier
    ds_read_b128 v[64:67], v60 offset:25600
    ds_read_b128 v[68:71], v60 offset:{25600 + 1024}
    ds_read_b128 v[72:75], v60 offset:{25600 + 2048}
    ds_read_b128 v[76:79], v60 offset:{25600 + 3072}
    s_waitcnt lgkmcnt(0)
    """)
    for i in range(4):
        e(f"v_add_f32 v{64 + i}, v{64 + i}, v{68 + i}")
        e(f"v_add_f32 v{72 + i}, v{72 + i}, v{76 + i}")
        e(f"v_add_f32 v{64 + i}, v{64 + i}, v{72 + i}")
    for i in range(4):
        e(f"v_cvt_pk_bf16_f32 v{64 + i}, v{64 + i}, v{64 + i}")
        e(f"v_and_b32 v{64 + i}, s{sM}, v{64 + i}")
        e(f"v_mov_b32 v{68 + i}, v{64 + i}")
    e("s_nop 0")
    for i in range(4):
        e(f"v_permlane32_swap_b32 v{64 + i}, v{68 + i}")
    for i in range(4):
        silu_bf16(e, 72 + i, 64 + i, 76, 77, sM)
        e(f"v_mul_f32 v{72 + i}, v{72 + i}, v{68 + i}")
    e(f"""
    v_cvt_pk_bf16_f32 v80, v72, v73
    v_cvt_pk_bf16_f32 v81, v74, v75
    v_cmp_gt_u32 vcc, 32, v0
    v_mov_b32 v82, 0
    v_mov_b32 v83, 0
    v_cndmask_b32 v80, 0, v80, vcc
    v_cndmask_b32 v81, 0, v81, vcc
    """)
    e(f"""
    v_bfe_u32 v54, v0, 2, 2               ; r
    v_bfe_u32 v55, v0, 4, 1               ; q4 & 1
    v_lshl_add_u32 v54, v55, 2, v54       ; row 0..7
    v_lshlrev_b32 v54, 10, v54
    v_and_b32 v55, 3, v0
    v_lshl_add_u32 v54, v55, 3, v54       ; + c*8
    s_lshl_b32 s27, s{sW}, 8              ; 8w tiles * 32 B
    v_add_u32 v54, s27, v54
    v_mov_b32 v86, 0
    v_mov_b32 v87, 0
    """)
    for t in range(8):
        e.lds(f"ds_read_b64_tr_b16 {rng('v', 88 + 4 * t, 2)}, v54 offset:{16384 + t * 32}", ("da", t))
        e(f"v_mov_b32 v{90 + 4 * t}, 0")
        e(f"v_mov_b32 v{91 + 4 * t}, 0")
    for t in range(8):
        e.need(ltags=[("da", t)])
        e(f"v_mfma_f32_16x16x32_bf16 {rng('v', 120 + 4 * t, 4)}, {rng('v', 88 + 4 * t, 4)}, v[80:83], 0")
    e(f"""
    s_lshl_b32 s27, s2, 14
    s_lshl_b32 s28, s{sW}, 9              ; 8w*16*4 bytes
    s_add_u32 s27, s27, s28
    s_add_u32 s27, s27, {WS_YP}
    v_and_b32 v60, 15, v0
    v_lshlrev_b32 v61, 11, v60
    v_lshrrev_b32 v62, 4, v0
    v_lshl_add_u32 v61, v62, 4, v61
    v_add_u32 v61, s27, v61
    v_cmp_gt_u32 vcc, 8, v60
    s_nop 4
    s_and_saveexec_b64 s[40:41], vcc
    """)
    for t in range(8):
        e(f"buffer_store_dwordx4 {rng('v', 120 + 4 * t, 4)}, v61, s[20:23], 0 offen offset:{t * 64}")
    e("s_mov_b64 exec, s[40:41]")
    ts_end(e, ts, S_WS, WS_TS + (1 << 20), sW)
    e(f"{done}:")
    e("s_endpgm")
    probs = check_hazards(e.l, "km")
    if probs:
        print("\n".join(probs[:40]))
        raise SystemExit("hazards")
    return e.text()


def final_math(e, n, vs, vx, vmean, vrsd, vupd, vout, t, sM):
    for i in range(n):
        a, b = t, t + 1
        e(f"v_cvt_pk_bf16_f32 v{vs[i]}, v{vs[i]}, v{vs[i]}")
        e(f"v_and_b32 v{vs[i]}, s{sM}, v{vs[i]}")
        e(f"v_sub_f32 v{a}, v{vx[i]}, v{vmean}")
        e(f"v_cvt_pk_bf16_f32 v{a}, v{a}, v{a}")
        e(f"v_and_b32 v{a}, s{sM}, v{a}")
        e(f"v_mul_f32 v{a}, v{a}, v{vrsd}")
        e(f"v_cvt_pk_bf16_f32 v{a}, v{a}, v{a}")
        e(f"v_and_b32 v{a}, s{sM}, v{a}")
        if vupd is not None:
            e(f"v_add_f32 v{a}, v{a}, v{vupd[i]}")
            e(f"v_cvt_pk_bf16_f32 v{a}, v{a}, v{a}")
            e(f"v_and_b32 v{a}, s{sM}, v{a}")
        silu_bf16(e, a, a, b, b, sM)
        e(f"v_mul_f32 v{a}, v{vs[i]}, v{a}")
        e(f"v_cvt_pk_bf16_f32 v{a}, v{a}, v{a}")
        e(f"v_and_b32 v{a}, s{sM}, v{a}")
        e(f"v_add_f32 v{vout[i]}, v{vx[i]}, v{a}")


def gen_k2(label, ts=False, perturb=None, dbgcopy=False):
    e = E()
    done = f"L_{label}_done"
    tail = f"L_{label}_tail"
    S_X, S_WS, S_OUT = 4, 8, 12
    sW, sM = 16, 17
    sIDX = 24
    e(f"""
    s_cmp_ge_u32 s2, 576
    s_cbranch_scc1 {done}
    {"s_memrealtime s[64:65]" if (ts or dbgcopy) else ""}
    s_load_dwordx2 s[4:5], s[0:1], {KA['x']}
    s_load_dwordx2 s[8:9], s[0:1], {KA['ws']}
    s_load_dwordx2 s[12:13], s[0:1], {KA['out']}
    v_lshrrev_b32 v1, 6, v0
    v_and_b32 v0, 63, v0
    s_mov_b32 s{sM}, 0xffff0000
    v_readfirstlane_b32 s{sW}, v1
    s_waitcnt lgkmcnt(0)
    s_add_u32 s18, s8, {WS_IDX}
    s_addc_u32 s19, s9, 0
    s_load_dwordx8 s[24:31], s[18:19], 0
    s_load_dwordx8 s[32:39], s[18:19], 32
    s_mov_b32 s6, 2097152
    s_mov_b32 s7, 0x20000
    s_mov_b32 s10, 0x10000000
    s_mov_b32 s11, 0x20000
    s_mov_b32 s14, 2097152
    s_mov_b32 s15, 0x20000
    s_cmp_lt_u32 s2, 64
    s_cbranch_scc1 L_k2_sel
    s_sub_u32 s63, s2, 64
    """)
    e(f"""
    s_lshl_b32 s20, s63, 2
    s_add_u32 s20, s20, s{sW}
    s_lshr_b32 s21, s20, 6                ; tb
    s_bfe_u32 s22, s20, {5 | (1 << 16)}   ; qb
    s_bfe_u32 s23, s20, {3 | (2 << 16)}   ; a
    s_and_b32 s20, s20, 7                 ; b
    s_lshl_b32 s40, s21, 6
    s_lshl_b32 s41, s22, 5
    s_add_u32 s40, s40, s41
    s_lshl_b32 s41, s23, 3
    s_add_u32 s40, s40, s41
    v_and_b32 v2, 7, v0
    v_add_u32 v3, s40, v2                 ; token
    v_lshrrev_b32 v4, 3, v0
    s_lshl_b32 s41, s20, 7
    v_lshlrev_b32 v4, 4, v4
    v_lshl_add_u32 v4, v3, 10, v4
    v_add_u32 v4, s41, v4
    s_lshl_b32 s41, s21, 16
    s_lshr_b32 s42, s20, 1
    s_lshl_b32 s42, s42, 14
    s_add_u32 s41, s41, s42
    s_and_b32 s42, s20, 1
    s_lshl_b32 s42, s42, 13
    s_add_u32 s41, s41, s42
    s_lshl_b32 s42, s22, 10
    s_add_u32 s41, s41, s42
    s_lshl_b32 s42, s23, 7
    s_add_u32 s41, s41, s42
    v_lshrrev_b32 v5, 4, v0
    v_lshlrev_b32 v5, 11, v5
    v_bfe_u32 v6, v0, 3, 1
    v_lshl_add_u32 v5, v6, 9, v5
    v_lshl_add_u32 v5, v2, 4, v5
    v_add_u32 v5, s41, v5
    v_lshlrev_b32 v7, 2, v3
    v_add_u32 v7, {WS_STAT}, v7
    """)
    for g in range(8):
        e(f"s_mov_b32 s{44 + g}, {g << 21}")
    for g in range(8):
        e.vm(f"buffer_load_dwordx4 {rng('v', 16 + 4 * g, 4)}, v5, s[8:11], s{44 + g} offen", ("p", g))
    e.vm(f"buffer_load_dword v8, v7, s[8:11], 0 offen", "st")
    e.vm(f"buffer_load_dwordx4 v[12:15], v4, s[4:7], 0 offen", "x")
    e(f"""
    s_mov_b32 s56, 0x00003f80            ; (1.0, 0)
    s_mov_b32 s57, 0x3f800000            ; (0, 1.0)
    s_mov_b32 s58, {hex(f2u(-LOG2E))}
    s_mov_b32 s59, {hex(f2u(-LOG2E))}
    s_mov_b32 s60, 1.0
    s_mov_b32 s61, 1.0
    """)
    e("s_waitcnt lgkmcnt(0)")
    for j in range(8):
        e(f"v_cmp_ne_u32 s[{72 + 2 * (j & 3)}:{73 + 2 * (j & 3)}], s{24 + j}, v3")
        if j == 3:
            e("s_nop 0")
            e("s_and_b64 s[52:53], s[72:73], s[74:75]")
            e("s_and_b64 s[54:55], s[76:77], s[78:79]")
            e("s_and_b64 s[52:53], s[52:53], s[54:55]")
    e("s_nop 0")
    e("s_and_b64 s[72:73], s[72:73], s[74:75]")
    e("s_and_b64 s[76:77], s[76:77], s[78:79]")
    e("s_and_b64 s[52:53], s[52:53], s[72:73]")
    e("s_and_b64 s[52:53], s[52:53], s[76:77]")
    for g in range(8):
        e.need(vtags=[("p", g)])
        for i in range(4):
            r = 16 + 4 * g + i
            c0 = "0" if g == 0 else f"v{48 + 2 * i}"
            c1 = "0" if g == 0 else f"v{49 + 2 * i}"
            e(f"v_dot2_f32_bf16 v{48 + 2 * i}, v{r}, s56, {c0}")
            e(f"v_dot2_f32_bf16 v{49 + 2 * i}, v{r}, s57, {c1}")
    e.need(vtags=["x"])
    e(f"""
    v_and_b32 v10, s{sM}, v8              ; sd
    v_rcp_f32 v10, v10
    v_lshlrev_b32 v9, 16, v8              ; mean
    v_mul_f32 v8, v9, v10
    v_sub_f32 v8, 0, v8
    """)
    for i in range(4):
        e(f"v_lshlrev_b32 v{60 + 2 * i}, 16, v{12 + i}")
        e(f"v_and_b32 v{61 + 2 * i}, s{sM}, v{12 + i}")
    P = lambda b: f"v[{b}:{b + 1}]"
    for i in range(4):
        e(f"v_pk_fma_f32 {P(16 + 2 * i)}, {P(60 + 2 * i)}, v[10:11], v[8:9] op_sel_hi:[1,0,0]")
    for i in range(4):
        e(f"v_pk_mul_f32 {P(24 + 2 * i)}, {P(16 + 2 * i)}, s[58:59]")
    for i in range(8):
        e(f"v_exp_f32 v{24 + i}, v{24 + i}")
    for i in range(4):
        e(f"v_pk_add_f32 {P(24 + 2 * i)}, {P(24 + 2 * i)}, s[60:61]")
    for i in range(8):
        e(f"v_rcp_f32 v{24 + i}, v{24 + i}")
    for i in range(4):
        e(f"v_pk_mul_f32 {P(16 + 2 * i)}, {P(16 + 2 * i)}, {P(24 + 2 * i)}")
    for i in range(4):
        e(f"v_pk_fma_f32 {P(60 + 2 * i)}, {P(48 + 2 * i)}, {P(16 + 2 * i)}, {P(60 + 2 * i)}")
    if perturb is not None:
        kind, delta = perturb
        if kind == "one":
            e(f"""
            v_cmp_eq_u32 vcc, 0, v4
            v_mov_b32 v58, {hex(f2u(delta))}
            s_nop 0
            v_cndmask_b32 v58, 0, v58, vcc
            v_add_f32 v60, v60, v58
            """)
        elif kind == "all":
            for i in range(8):
                e(f"v_add_f32 v{60 + i}, {hex(f2u(delta))}, v{60 + i}")
        elif kind == "mul":
            for i in range(8):
                e(f"v_mul_f32 v{60 + i}, {hex(f2u(delta))}, v{60 + i}")
    for i in range(4):
        e(f"v_cvt_pk_bf16_f32 v{12 + i}, v{60 + 2 * i}, v{61 + 2 * i}")
    e(f"""
    s_and_saveexec_b64 s[54:55], s[52:53]
    s_cbranch_execz {tail}
    buffer_store_dwordx4 v[12:15], v4, s[12:15], 0 offen
    s_branch {tail}
    """)
    e("L_k2_sel:")
    e.vq, e.lq = [], []
    e(f"""
    s_lshr_b32 s21, s2, 3                 ; j
    s_and_b32 s22, s2, 7                  ; cb
    """)
    e(f"""
    s_mul_i32 s42, s{sW}, {56 * 16384}
    s_lshl_b32 s43, s21, 11               ; j*2048
    s_add_u32 s42, s42, s43
    s_lshl_b32 s43, s22, 8                ; cb*64*4
    s_add_u32 s42, s42, s43
    s_add_u32 s42, s42, {WS_YP}
    v_lshrrev_b32 v2, 4, v0
    v_lshlrev_b32 v2, 14, v2
    v_and_b32 v3, 15, v0
    v_lshl_add_u32 v2, v3, 4, v2
    v_add_u32 v2, s42, v2
    s_mov_b32 s43, 0
    """)
    for i in range(14):
        e.vm(f"buffer_load_dwordx4 {rng('v', 16 + 4 * i, 4)}, v2, s[8:11], s43 offen", ("y", i))
        e(f"s_add_u32 s43, s43, {4 * 16384}")
    e("s_waitcnt lgkmcnt(0)")
    e("s_mov_b32 s40, s24")
    e("s_mov_b32 s41, s32")
    for j in range(1, 8):
        e(f"s_cmp_eq_u32 s21, {j}")
        e(f"s_cselect_b32 s40, s{24 + j}, s40")
        e(f"s_cselect_b32 s41, s{32 + j}, s41")
    e(f"""
    s_lshl_b32 s43, s22, 7
    s_lshl_b32 s44, s40, 10
    s_add_u32 s43, s43, s44
    v_lshlrev_b32 v4, 3, v3
    v_add_u32 v4, s43, v4
    s_lshl_b32 s44, s40, 2
    s_add_u32 s44, s44, {WS_STAT}
    v_mov_b32 v7, s44
    s_lshr_b32 s44, s40, 6
    s_lshl_b32 s44, s44, 16
    s_lshr_b32 s45, s22, 1
    s_lshl_b32 s45, s45, 14
    s_add_u32 s44, s44, s45
    s_and_b32 s45, s22, 1
    s_lshl_b32 s45, s45, 13
    s_add_u32 s44, s44, s45
    s_bfe_u32 s45, s40, {5 | (1 << 16)}
    s_lshl_b32 s45, s45, 10
    s_add_u32 s44, s44, s45
    s_and_b32 s45, s40, 31
    s_lshl_b32 s45, s45, 4
    s_add_u32 s44, s44, s45
    v_lshrrev_b32 v5, 2, v3
    v_lshlrev_b32 v5, 11, v5
    v_bfe_u32 v6, v3, 1, 1
    v_lshl_add_u32 v5, v6, 9, v5
    v_and_b32 v6, 1, v3
    v_lshl_add_u32 v5, v6, 3, v5
    v_add_u32 v5, s44, v5
    """)
    for g in range(8):
        e(f"s_mov_b32 s{56 + g}, {g << 21}")
    e.vm(f"buffer_load_dword v8, v7, s[8:11], 0 offen", "st")
    e.vm(f"buffer_load_dwordx2 v[12:13], v4, s[4:7], 0 offen", "x")
    for g in range(8):
        e.vm(f"buffer_load_dwordx2 {rng('v', 80 + 2 * g, 2)}, v5, s[8:11], s{56 + g} offen", ("p", g))
    for i in range(14):
        e.need(vtags=[("y", i)])
        if i > 0:
            for q in range(4):
                e(f"v_add_f32 v{16 + q}, v{16 + q}, v{16 + 4 * i + q}")
    for q in range(4):
        e(f"v_mov_b32 v{20 + q}, v{16 + q}")
    e("s_nop 0")
    for q in range(4):
        e(f"v_permlane32_swap_b32 v{16 + q}, v{20 + q}")
    for q in range(4):
        e(f"v_add_f32 v{16 + q}, v{16 + q}, v{20 + q}")
    for q in range(4):
        e(f"v_mov_b32 v{20 + q}, v{16 + q}")
    e("s_nop 0")
    for q in range(4):
        e(f"v_permlane16_swap_b32 v{16 + q}, v{20 + q}")
    for q in range(4):
        e(f"v_add_f32 v{16 + q}, v{16 + q}, v{20 + q}")
    e(f"""
    s_lshl_b32 s43, s{sW}, 10
    v_lshlrev_b32 v24, 4, v0
    v_add_u32 v25, s43, v24
    ds_write_b128 v25, v[16:19]
    s_waitcnt lgkmcnt(0)
    s_barrier
    s_cmp_lg_u32 s{sW}, 0
    s_cbranch_scc1 {tail}
    ds_read_b128 v[16:19], v24
    ds_read_b128 v[20:23], v24 offset:1024
    ds_read_b128 v[28:31], v24 offset:2048
    ds_read_b128 v[32:35], v24 offset:3072
    s_waitcnt lgkmcnt(0)
    """)
    for q in range(4):
        e(f"v_add_f32 v{16 + q}, v{16 + q}, v{20 + q}")
        e(f"v_add_f32 v{28 + q}, v{28 + q}, v{32 + q}")
        e(f"v_add_f32 v{16 + q}, v{16 + q}, v{28 + q}")
    for q in range(4):
        e(f"v_cvt_pk_bf16_f32 v{16 + q}, v{16 + q}, v{16 + q}")
        e(f"v_and_b32 v{16 + q}, s{sM}, v{16 + q}")
        e(f"v_mul_f32 v{16 + q}, s41, v{16 + q}")
        e(f"v_cvt_pk_bf16_f32 v{16 + q}, v{16 + q}, v{16 + q}")
        e(f"v_and_b32 v{16 + q}, s{sM}, v{16 + q}")
    e.need(vtags=[("p", 7)])
    for g in range(8):
        for i in range(2):
            r = 80 + 2 * g + i
            if g == 0:
                e(f"v_lshlrev_b32 v{48 + 2 * i}, 16, v{r}")
                e(f"v_and_b32 v{49 + 2 * i}, s{sM}, v{r}")
            else:
                e(f"v_lshlrev_b32 v56, 16, v{r}")
                e(f"v_and_b32 v57, s{sM}, v{r}")
                e(f"v_add_f32 v{48 + 2 * i}, v{48 + 2 * i}, v56")
                e(f"v_add_f32 v{49 + 2 * i}, v{49 + 2 * i}, v57")
    e(f"""
    v_lshlrev_b32 v9, 16, v8
    v_and_b32 v10, s{sM}, v8
    v_rcp_f32 v10, v10
    """)
    for i in range(2):
        e(f"v_lshlrev_b32 v{60 + 2 * i}, 16, v{12 + i}")
        e(f"v_and_b32 v{61 + 2 * i}, s{sM}, v{12 + i}")
    final_math(e, 4, [48 + i for i in range(4)], [60 + i for i in range(4)], 9, 10, [16 + i for i in range(4)],
               [60 + i for i in range(4)], 56, sM)
    for i in range(2):
        e(f"v_cvt_pk_bf16_f32 v{12 + i}, v{60 + 2 * i}, v{61 + 2 * i}")
    e(f"""
    v_cmp_gt_u32 vcc, 16, v0
    s_nop 0
    s_and_saveexec_b64 s[54:55], vcc
    buffer_store_dwordx2 v[12:13], v4, s[12:15], 0 offen
    """)
    e(f"{tail}:")
    if dbgcopy:
        e(f"""
        s_mov_b64 exec, -1
        s_waitcnt vmcnt(0) lgkmcnt(0)
        s_memrealtime s[66:67]
        s_load_dwordx2 s[70:71], s[0:1], {KA['dbg']}
        s_cmp_lg_u32 s{sW}, 0
        s_cbranch_scc1 {done}
        s_cmp_lg_u32 s2, 0
        s_cbranch_scc1 {done}
        v_lshlrev_b32 v100, 3, v0
        v_add_u32 v100, {WS_TS}, v100
        buffer_load_dword v101, v100, s[{S_WS}:{S_WS + 3}], 0 offen
        v_mov_b32 v102, {WS_TS}
        buffer_load_dword v103, v102, s[{S_WS}:{S_WS + 3}], 0 offen
        s_waitcnt vmcnt(0) lgkmcnt(0)
        v_sub_u32 v101, v101, v103
        v_mov_b32 v104, s64
        v_sub_u32 v104, v104, v103
        v_mov_b32 v105, s66
        v_sub_u32 v105, v105, v103
        v_cmp_eq_u32 vcc, 9, v0
        s_nop 1
        v_cndmask_b32 v101, v101, v104, vcc
        v_cmp_eq_u32 vcc, 10, v0
        s_nop 1
        v_cndmask_b32 v101, v101, v105, vcc
        v_lshlrev_b32 v100, 2, v0
        v_cmp_gt_u32 vcc, 11, v0
        s_nop 1
        s_and_saveexec_b64 s[68:69], vcc
        global_store_dword v100, v101, s[70:71]
        s_waitcnt vmcnt(0)
        """)
    ts_end(e, ts, S_WS, WS_TS + (2 << 20), sW)
    e(f"{done}:")
    e("s_endpgm")
    probs = check_hazards(e.l, "k2") + check_scc(e.l)
    if probs:
        print("\n".join(probs[:40]))
        raise SystemExit("hazards")
    return e.text()


SORT8 = [(0, 1), (2, 3), (4, 5), (6, 7), (0, 2), (1, 3), (4, 6), (5, 7), (1, 2), (5, 6), (0, 4), (3, 7),
         (1, 5), (2, 6), (1, 4), (3, 6), (2, 4), (3, 5), (3, 4)]


def _check_sort8():
    import itertools
    for bits in itertools.product([0, 1], repeat=8):
        a = list(bits)
        for i, j in SORT8:
            if a[i] < a[j]:
                a[i], a[j] = a[j], a[i]
        assert a == sorted(a, reverse=True)


_check_sort8()


def keys_from_r(e, K, vidx, sM, tmp):
    for i in range(8):
        r = K[i]
        e(f"v_ashrrev_i32 v{tmp}, 31, v{r}")
        e(f"v_or_b32 v{tmp}, 0x80000000, v{tmp}")
        e(f"v_xor_b32 v{r}, v{r}, v{tmp}")
        e(f"v_and_or_b32 v{r}, v{r}, s{sM}, v{vidx}")
        if i < 7:
            e(f"v_subrev_u32 v{vidx}, 1, v{vidx}")


def wave_top8(e, K, spare, vres, vt, stmp, smask):
    K = list(K)
    free = spare
    for (i, j) in SORT8:
        e(f"v_max_u32 v{free}, v{K[i]}, v{K[j]}")
        e(f"v_min_u32 v{K[j]}, v{K[i]}, v{K[j]}")
        K[i], free = free, K[i]
    e(f"v_mov_b32 v{vres}, 0")
    for rd in range(8):
        e(f"v_mov_b32 v{vt}, v{K[0]}")
        wave_max_u32(e, vt, stmp)
        e("s_nop 1")
        e(f"v_writelane_b32 v{vres}, s{stmp}, {rd}")
        if rd < 7:
            e(f"v_cmp_eq_u32 s[{smask}:{smask + 1}], s{stmp}, v{K[0]}")
            e("s_nop 1")
            for q in range(7 - rd):
                e(f"v_cndmask_b32 v{K[q]}, v{K[q]}, v{K[q + 1]}, s[{smask}:{smask + 1}]")


def moe_side(e, side, R):
    from k1 import RB, WSTR, SLOT
    sW, sRING, sM = R["W"], R["RING"], R["M"]
    S_X, S_WS = R["X"], R["WS"]
    sA, sB = 46, 47
    MX = 5 * 4096
    mk = [60, 62, 64, 66]
    K = [88 + i for i in range(8)]
    spare, vres, vt, vidx, tmp = 96, 97, 98, 99, 100
    A = side.add
    free = spare
    for (i, j) in SORT8:
        A(f"v_max_u32 v{free}, v{K[i]}, v{K[j]}")
        A(f"v_min_u32 v{K[j]}, v{K[i]}, v{K[j]}")
        K[i], free = free, K[i]
    A(f"v_mov_b32 v{vres}, 0")
    for rd in range(8):
        A(f"v_mov_b32 v{vt}, v{K[0]}")
        for sh in (1, 2, 4, 8):
            A(f"v_max_u32_dpp v{vt}, v{vt}, v{vt} row_shr:{sh} row_mask:0xf bank_mask:0xf", gap=2)
        A(f"v_max_u32_dpp v{vt}, v{vt}, v{vt} row_bcast:15 row_mask:0xa bank_mask:0xf", gap=2)
        A(f"v_max_u32_dpp v{vt}, v{vt}, v{vt} row_bcast:31 row_mask:0xc bank_mask:0xf", gap=2)
        A(f"v_readlane_b32 s{sA}, v{vt}, 63", gap=1)
        if rd < 7:
            A(f"v_cmp_eq_u32 s[{mk[0]}:{mk[0] + 1}], s{sA}, v{K[0]}", gap=2)
            A(f"v_writelane_b32 v{vres}, s{sA}, {rd}")
            for q in range(7 - rd):
                A(f"v_cndmask_b32 v{K[q]}, v{K[q]}, v{K[q + 1]}, s[{mk[0]}:{mk[0] + 1}]", gap=(1 if q == 0 else 0))
        else:
            A(f"v_writelane_b32 v{vres}, s{sA}, {rd}", gap=2)
    A(f"v_writelane_b32 v{vres}, s{R['RDY']}, 8")
    A(f"v_lshlrev_b32 v{tmp}, 2, v0")
    A(f"v_add_u32 v{tmp}, s{sRING}, v{tmp}")
    A(lambda: e.lds(f"ds_write_b32 v{tmp}, v{vres} offset:{MX}", ("mw", 0)))
    A(f"v_lshrrev_b32 v126, 3, v0")
    A(f"v_and_b32 v126, 3, v126")
    A(f"v_mul_u32_u24 v126, {WSTR}, v126")
    A(f"v_and_b32 v127, 7, v0")
    A(f"v_lshl_add_u32 v126, v127, 2, v126")
    A(f"v_add_u32 v126, {RB + MX}, v126")

    def bar():
        e.need(ltags=[("mw", 0)])
        e("s_barrier")
    A(bar)
    A(lambda: e.lds(f"ds_read_b32 v120, v126", ("mo", 0)))
    for w_ in range(4):
        A(f"v_mov_b32 v127, {RB + MX + w_ * WSTR}")
        A(lambda w_=w_: e.lds(f"ds_read_b128 v[{88 + 8 * w_}:{91 + 8 * w_}], v127", ("mc", w_)))
        A(lambda w_=w_: e.lds(f"ds_read_b128 v[{92 + 8 * w_}:{95 + 8 * w_}], v127 offset:16", ("mc", w_)))
        A(lambda w_=w_: e.lds(f"ds_read_b32 v{121 + w_}, v127 offset:32", ("mf", w_)))
    A(f"v_mov_b32 v125, 0")
    A(lambda: e.need(ltags=[("mf", 3)]))
    A(f"v_and_b32 v121, v121, v122")
    A(f"v_and_b32 v123, v123, v124")
    A(f"v_and_b32 v121, v121, v123")
    for j0 in range(0, 32, 4):
        for q in range(4):
            A(f"v_cmp_gt_u32 s[{mk[q]}:{mk[q] + 1}], v{88 + j0 + q}, v120")
        for q in range(4):
            A(f"v_addc_co_u32 v125, vcc, 0, v125, s[{mk[q]}:{mk[q] + 1}]", gap=(0 if q else 0))
    A(f"v_readfirstlane_b32 s{R['RDY']}, v121")
    A(f"v_lshlrev_b32 v126, 2, v125")
    A(f"v_add_u32 v126, s{sRING}, v126")
    A(lambda: e.lds(f"ds_write_b32 v126, v120 offset:{MX + 64}", ("mp", 0)))
    A(f"v_and_b32 v127, 7, v0")
    A(f"v_lshlrev_b32 v127, 2, v127")
    A(f"v_add_u32 v127, s{sRING}, v127")
    A(lambda: e.lds(f"ds_read_b32 v124, v127 offset:{MX + 64}", ("mq", 0)))
    A(f"v_lshrrev_b32 v122, 4, v0")
    A(f"v_lshlrev_b32 v122, 4, v122")
    A(f"s_lshl_b32 s{sB}, s{sW}, 8")
    A(lambda: e.need(ltags=[("mq", 0)]))
    A(f"v_and_b32 v123, 0x7ff, v124")
    A(f"v_sub_u32 v123, 2047, v123")
    A(f"v_accvgpr_write_b32 a225, v124")
    A(f"v_lshl_add_u32 v122, v123, 10, v122")
    A(f"v_lshlrev_b32 v123, 2, v123")
    A(f"v_add_u32 v123, {WS_STAT}, v123")
    A(lambda: e.vm(f"buffer_load_dword a224, v123, s[{S_WS}:{S_WS + 3}], 0 offen sc1", ("g", 0)), cond=(27, 0))
    for i in range(4):
        A(lambda i=i: e.vm(f"buffer_load_dwordx4 a[{208 + 4 * i}:{211 + 4 * i}], v122, s[{S_X}:{S_X + 3}], s{sB} offen offset:{64 * i}",
                           ("g", 1 + i)))


def sum_partials(e, base, acc, n_src, n_regs, s_lo, s_hi):
    for g in range(n_src):
        yield g
        for i in range(n_regs):
            r = base + n_regs * g + i
            c0 = "0" if g == 0 else f"v{acc + 2 * i}"
            c1 = "0" if g == 0 else f"v{acc + 2 * i + 1}"
            e(f"v_dot2_f32_bf16 v{acc + 2 * i}, v{r}, s{s_lo}, {c0}")
            e(f"v_dot2_f32_bf16 v{acc + 2 * i + 1}, v{r}, s{s_hi}, {c1}")


def flag_prepare(e, R, sA, sB, v, first, count):
    e(f"""
    s_lshl_b32 s{sA}, s{R['TB']}, 3
    s_add_u32 s{sB}, s{sA}, s{R['G']}
    s_lshl_b32 s{sB}, s{sB}, 2
    s_add_u32 s{sB}, s{sB}, {WS_FLG}
    s_cmp_eq_u32 s{R['W']}, 0
    s_cselect_b32 s{sB}, s{sB}, 0x7fff0000
    v_lshlrev_b32 v{v}, 10, v0
    v_add_u32 v{v}, s{sB}, v{v}
    v_mov_b32 v{v + 1}, 0x7fff0000
    v_cmp_gt_u32 vcc, {first + count}, v0
    s_nop 1
    v_cndmask_b32 v{v}, v{v + 1}, v{v}, vcc
    v_mov_b32 v{v + 1}, 1
    """)


def fused_finish(e, R, sA, sB, mk):
    S_X, S_WS, sW, sM = R["X"], R["WS"], R["W"], R["M"]
    sG, sTB = R["G"], R["TB"]
    S_OUT = 20
    from k1 import RB
    GO = RB + 5 * 4096 + 512
    e.nop(4)
    for u in range(4):
        a, b = 120 + 8 * u, 124 + 8 * u
        e(f"v_cvt_pk_bf16_f32 v{a}, v{a}, v{a + 1}")
        e(f"v_cvt_pk_bf16_f32 v{a + 1}, v{a + 2}, v{a + 3}")
        e(f"v_cvt_pk_bf16_f32 v{a + 2}, v{b}, v{b + 1}")
        e(f"v_cvt_pk_bf16_f32 v{a + 3}, v{b + 2}, v{b + 3}")
    e(f"""
    s_lshl_b32 s{sA}, s{R['SL']}, 13
    s_lshl_b32 s{sB}, s{sW}, 11
    s_add_u32 s{sA}, s{sA}, s{sB}
    s_add_u32 s{sA}, s{sA}, {WS_YP}
    v_and_b32 v60, 15, v0
    v_lshlrev_b32 v61, 6, v60
    v_lshrrev_b32 v62, 4, v0
    v_lshl_add_u32 v61, v62, 4, v61
    v_add_u32 v61, s{sA}, v61
    v_mov_b32 v63, 0x1ffffff0
    v_cmp_gt_u32 vcc, 8, v60
    s_nop 1
    v_cndmask_b32 v61, v63, v61, vcc
    """)
    for u in range(4):
        e(f"buffer_store_dwordx4 v[{120 + 8 * u}:{123 + 8 * u}], v61, s[{S_WS}:{S_WS + 3}], 0 offen offset:{u * 512} sc1")
    e(f"""
    L_fin_sync:
    v_mov_b32 v60, {GO}
    v_mov_b32 v62, 0
    v_mov_b32 v63, 0
    ds_write_b64 v60, v[62:63]
    """)
    flag_prepare(e, R, sA, sB, 24, 0, 9)
    e(f"""
    s_waitcnt vmcnt(0) lgkmcnt(0)
    s_barrier
    buffer_store_dword v25, v24, s[{S_WS}:{S_WS + 3}], 0 offen sc1
    s_mov_b32 s22, 2097152
    s_mov_b32 s23, 0x20000
    """)
    R["stamp"]("flag")
    for j in range(8):
        e(f"v_readlane_b32 s{8 + j}, v26, {j}")
    e(f"""
    s_mov_b32 s16, 0x00003f80
    s_mov_b32 s17, 0x3f800000
    s_mov_b32 s18, {hex(f2u(-LOG2E))}
    s_mov_b32 s19, {hex(f2u(-LOG2E))}
    s_mov_b32 s48, 1.0
    s_mov_b32 s49, 1.0
    """)
    for g in range(8):
        e(f"s_mov_b32 s{52 + g}, {g << 21}")
    e(f"""
    s_lshl_b32 s{sA}, s{sTB}, 6
    s_lshl_b32 s{sB}, s{sG}, 3
    s_add_u32 s{sA}, s{sA}, s{sB}
    v_and_b32 v2, 7, v0
    v_add_u32 v3, s{sA}, v2                 ; token
    v_lshrrev_b32 v4, 3, v0
    v_lshlrev_b32 v4, 4, v4
    v_lshl_add_u32 v4, v3, 10, v4
    s_lshl_b32 s{sB}, s{sW}, 8
    v_add_u32 v4, s{sB}, v4
    v_lshlrev_b32 v7, 2, v3
    v_add_u32 v7, {WS_STAT}, v7
    s_lshl_b32 s{sA}, s{sTB}, 16
    s_lshl_b32 s{sB}, s{sW}, 14
    s_add_u32 s{sA}, s{sA}, s{sB}
    s_lshr_b32 s{sB}, s{sG}, 2
    s_lshl_b32 s{sB}, s{sB}, 10
    s_add_u32 s{sA}, s{sA}, s{sB}
    s_and_b32 s{sB}, s{sG}, 3
    s_lshl_b32 s{sB}, s{sB}, 7
    s_add_u32 s{sA}, s{sA}, s{sB}
    v_lshrrev_b32 v5, 4, v0
    v_lshlrev_b32 v5, 11, v5
    v_bfe_u32 v6, v0, 3, 1
    v_lshl_add_u32 v5, v6, 9, v5
    v_lshl_add_u32 v5, v2, 4, v5
    v_add_u32 v5, s{sA}, v5
    v_add_u32 v6, 8192, v5                  ; task 1
    s_lshl_b32 s{sA}, s{sTB}, 5
    s_add_u32 s{sA}, s{sA}, {WS_FLG}
    s_lshr_b32 s{sB}, s2, 3
    s_and_b32 s{sB}, s{sB}, 7
    s_add_u32 s{sB}, s{sB}, 1
    s_lshl_b32 s51, s{sB}, 10
    s_lshr_b32 s{sB}, s{sW}, 1
    s_mul_i32 s50, s{sB}, s51
    s_add_u32 s{sA}, s{sA}, s50
    v_lshlrev_b32 v8, 2, v2
    v_add_u32 v8, s{sA}, v8
    v_lshlrev_b32 v9, 4, v0
    v_add_u32 v9, s51, v9
    v_add_u32 v9, {WS_FLG}, v9
    s_lshl_b32 s{sB}, s{sB}, 2
    s_add_u32 s{sB}, s{sB}, {GO}
    v_mov_b32 v11, s{sB}
    """)
    e.vq, e.lq = [], []
    e.vm(f"buffer_load_dwordx4 v[12:15], v4, s[{S_X}:{S_X + 3}], 0 offen", "x0")
    e.vm(f"buffer_load_dwordx4 v[16:19], v4, s[{S_X}:{S_X + 3}], 0 offen offset:128", "x1")
    spin = R["opt"].get("finspin", 200000)
    slp = R["opt"].get("finsleep", 1)
    e(f"""
    s_mov_b32 s{sB}, {spin}
    s_bitcmp1_b32 s{sW}, 0
    s_cbranch_scc1 L_fin_watch
    s_cmp_eq_u32 s{sW}, 0
    s_cbranch_scc1 L_fin_poll
    s_cmp_lt_u32 s2, 128
    s_cbranch_scc1 L_fin_pollall
    L_fin_poll:
    buffer_load_dword v20, v8, s[{S_WS}:{S_WS + 3}], 0 offen sc1
    s_waitcnt vmcnt(0)
    v_cmp_eq_u32 vcc, 1, v20
    s_sub_u32 s{sB}, s{sB}, 1
    s_cmp_eq_u32 s{sB}, 0
    s_cbranch_scc1 L_fin_set
    s_cmp_eq_u64 vcc, -1
    s_cbranch_scc1 L_fin_set
    s_sleep {slp}
    s_branch L_fin_poll
    """)
    if R["opt"].get("pipepoll"):
        e(f"""
    L_fin_pollall:
    buffer_load_dwordx4 v[128:131], v9, s[{S_WS}:{S_WS + 3}], 0 offen sc1
    s_sleep {R["opt"].get("pipesleep", 8)}
    buffer_load_dwordx4 v[132:135], v9, s[{S_WS}:{S_WS + 3}], 0 offen sc1
    L_fin_pollall_loop:
    s_waitcnt vmcnt(1)
    v_and_b32 v128, v128, v129
    v_and_b32 v130, v130, v131
    v_and_b32 v20, v128, v130
    v_cmp_eq_u32 vcc, 1, v20
    s_sub_u32 s{sB}, s{sB}, 1
    s_cmp_eq_u32 s{sB}, 0
    s_cbranch_scc1 L_fin_set2
    s_cmp_eq_u64 vcc, -1
    s_cbranch_scc1 L_fin_set2
    buffer_load_dwordx4 v[128:131], v9, s[{S_WS}:{S_WS + 3}], 0 offen sc1
    s_waitcnt vmcnt(1)
    v_and_b32 v132, v132, v133
    v_and_b32 v134, v134, v135
    v_and_b32 v20, v132, v134
    v_cmp_eq_u32 vcc, 1, v20
    s_sub_u32 s{sB}, s{sB}, 1
    s_cmp_eq_u32 s{sB}, 0
    s_cbranch_scc1 L_fin_set2
    s_cmp_eq_u64 vcc, -1
    s_cbranch_scc1 L_fin_set2
    buffer_load_dwordx4 v[132:135], v9, s[{S_WS}:{S_WS + 3}], 0 offen sc1
    s_branch L_fin_pollall_loop
    L_fin_set2:
    """)
    else:
        e(f"""
    L_fin_pollall:
    buffer_load_dwordx4 v[20:23], v9, s[{S_WS}:{S_WS + 3}], 0 offen sc1
    s_waitcnt vmcnt(0)
    v_and_b32 v20, v20, v21
    v_and_b32 v22, v22, v23
    v_and_b32 v20, v20, v22
    v_cmp_eq_u32 vcc, 1, v20
    s_sub_u32 s{sB}, s{sB}, 1
    s_cmp_eq_u32 s{sB}, 0
    s_cbranch_scc1 L_fin_set
    s_cmp_eq_u64 vcc, -1
    s_cbranch_scc1 L_fin_set
    s_sleep {slp}
    s_branch L_fin_pollall
    """)
    e(f"""
    L_fin_set:
    v_mov_b32 v20, 1
    ds_write_b32 v11, v20
    s_branch L_fin_go
    L_fin_watch:
    s_lshl_b32 s{sB}, s{sB}, 4
    L_fin_watch_loop:
    ds_read_b32 v20, v11
    s_waitcnt lgkmcnt(0)
    v_readfirstlane_b32 s{sA}, v20
    s_sub_u32 s{sB}, s{sB}, 1
    s_cmp_eq_u32 s{sB}, 0
    s_cbranch_scc1 L_fin_go
    s_cmp_eq_u32 s{sA}, 1
    s_cbranch_scc0 L_fin_watch_loop
    L_fin_go:
    """)
    R["stamp"]("polled")
    e.vq = []
    e.vm(f"buffer_load_dword v10, v7, s[{S_WS}:{S_WS + 3}], 0 offen sc1", "st")
    for i in range(2):
        for g in range(8):
            e.vm(f"buffer_load_dwordx4 {rng('v', 64 + 32 * i + 4 * g, 4)}, v{5 + i}, s[{S_WS}:{S_WS + 3}], s{52 + g} offen sc1",
                 ("p", i, g))
    e(f"""
    s_cmp_lt_u32 s{sW}, 2
    s_cbranch_scc1 L_fin_nosel1
    s_cmp_ge_u32 s2, 128
    s_cbranch_scc1 L_fin_nosel1
    s_lshr_b32 s50, s2, 4                   ; j
    s_and_b32 s51, s2, 15                   ; cp
    s_and_b32 s70, s{sW}, 1                 ; par
    v_readlane_b32 s46, v26, s50            ; token
    v_readlane_b32 s47, v28, s50            ; sigmoid(r)
    s_lshl_b32 s{sA}, s51, 9                ; w*2048 + u*512 = cp*512
    s_lshl_b32 s{sB}, s50, 6
    s_add_u32 s{sA}, s{sA}, s{sB}
    s_lshl_b32 s{sB}, s70, 3
    s_add_u32 s{sA}, s{sA}, s{sB}
    s_add_u32 s{sA}, s{sA}, {WS_YP}
    v_lshrrev_b32 v24, 2, v0
    v_lshlrev_b32 v24, 13, v24
    v_and_b32 v25, 3, v0                    ; q4
    v_lshl_add_u32 v24, v25, 4, v24
    v_add_u32 v24, s{sA}, v24
    s_lshr_b32 s{sA}, s46, 6
    s_lshl_b32 s{sA}, s{sA}, 16
    s_lshl_b32 s{sB}, s51, 12
    s_add_u32 s{sA}, s{sA}, s{sB}
    s_lshl_b32 s{sB}, s70, 11
    s_add_u32 s{sA}, s{sA}, s{sB}
    s_bfe_u32 s{sB}, s46, {5 | (1 << 16)}
    s_lshl_b32 s{sB}, s{sB}, 10
    s_add_u32 s{sA}, s{sA}, s{sB}
    s_and_b32 s{sB}, s46, 31
    s_lshl_b32 s{sB}, s{sB}, 4
    s_add_u32 s{sA}, s{sA}, s{sB}
    v_lshrrev_b32 v27, 1, v25
    v_lshlrev_b32 v27, 9, v27
    v_and_b32 v29, 1, v25
    v_lshl_add_u32 v27, v29, 3, v27
    v_add_u32 v27, s{sA}, v27
    s_lshl_b32 s{sA}, s46, 10
    s_lshl_b32 s{sB}, s51, 6
    s_add_u32 s{sA}, s{sA}, s{sB}
    s_lshl_b32 s{sB}, s70, 5
    s_add_u32 s{sA}, s{sA}, s{sB}
    v_lshlrev_b32 v29, 3, v25
    v_add_u32 v29, s{sA}, v29
    s_lshl_b32 s{sA}, s46, 2
    s_add_u32 s{sA}, s{sA}, {WS_STAT}
    v_mov_b32 v30, s{sA}
    s_mov_b32 s{sA}, 0
    """)
    for i in range(14):
        e(f"buffer_load_dwordx2 {rng('v', 180 + 2 * i, 2)}, v24, s[{S_WS}:{S_WS + 3}], s{sA} offen sc1")
        e(f"s_add_u32 s{sA}, s{sA}, {16 * 8192}")
    for g in range(8):
        e(f"buffer_load_dwordx2 {rng('v', 160 + 2 * g, 2)}, v27, s[{S_WS}:{S_WS + 3}], s{52 + g} offen sc1")
    e(f"""
    buffer_load_dwordx2 v[176:177], v29, s[{S_X}:{S_X + 3}], 0 offen
    buffer_load_dword v178, v30, s[{S_WS}:{S_WS + 3}], 0 offen sc1
    L_fin_nosel1:
    """)
    for j in range(8):
        e(f"v_cmp_ne_u32 s[{mk[j & 3]}:{mk[j & 3] + 1}], s{8 + j}, v3")
        if (j & 3) == 3:
            e("s_nop 0")
            e(f"s_and_b64 s[{mk[0]}:{mk[0] + 1}], s[{mk[0]}:{mk[0] + 1}], s[{mk[1]}:{mk[1] + 1}]")
            e(f"s_and_b64 s[{mk[2]}:{mk[2] + 1}], s[{mk[2]}:{mk[2] + 1}], s[{mk[3]}:{mk[3] + 1}]")
            if j == 3:
                e(f"s_and_b64 s[68:69], s[{mk[0]}:{mk[0] + 1}], s[{mk[2]}:{mk[2] + 1}]")
            else:
                e(f"s_and_b64 s[{mk[0]}:{mk[0] + 1}], s[{mk[0]}:{mk[0] + 1}], s[{mk[2]}:{mk[2] + 1}]")
                e(f"s_and_b64 s[68:69], s[68:69], s[{mk[0]}:{mk[0] + 1}]")
    P = lambda b: f"v[{b}:{b + 1}]"

    def regular(extra):
        e.vq = ["st"] + [("p", i, g) for i in range(2) for g in range(8)] + ["sel"] * extra
        e.need(vtags=["st"])
        e(f"""
        v_mov_b32 v31, 0x7ffffff0
        v_cndmask_b32 v32, v31, v4, s[68:69]
        v_and_b32 v34, s{sM}, v10               ; sd
        v_rcp_f32 v34, v34
        v_lshlrev_b32 v33, 16, v10              ; mean
        v_mul_f32 v30, v33, v34
        v_sub_f32 v36, 0, v30
        """)
        for i in range(2):
            acc = 40
            for g in sum_partials(e, 64 + 32 * i, acc, 8, 4, 16, 17):
                e.need(vtags=[("p", i, g)])
            xr = 12 + 4 * i
            for q in range(4):
                e(f"v_lshlrev_b32 v{48 + 2 * q}, 16, v{xr + q}")
                e(f"v_and_b32 v{49 + 2 * q}, s{sM}, v{xr + q}")
            for q in range(4):
                e(f"v_pk_fma_f32 {P(56 + 2 * q)}, {P(48 + 2 * q)}, v[34:35], v[36:37] op_sel_hi:[1,0,0]")
            T0 = 64 + 32 * i
            for q in range(4):
                e(f"v_pk_mul_f32 {P(T0 + 2 * q)}, {P(56 + 2 * q)}, s[18:19]")
            for q in range(8):
                e(f"v_exp_f32 v{T0 + q}, v{T0 + q}")
            for q in range(4):
                e(f"v_pk_add_f32 {P(T0 + 2 * q)}, {P(T0 + 2 * q)}, s[48:49]")
            for q in range(8):
                e(f"v_rcp_f32 v{T0 + q}, v{T0 + q}")
            for q in range(4):
                e(f"v_pk_mul_f32 {P(56 + 2 * q)}, {P(56 + 2 * q)}, {P(T0 + 2 * q)}")
            for q in range(4):
                e(f"v_pk_fma_f32 {P(48 + 2 * q)}, {P(acc + 2 * q)}, {P(56 + 2 * q)}, {P(48 + 2 * q)}")
            for q in range(4):
                e(f"v_cvt_pk_bf16_f32 v{T0 + 8 + q}, v{48 + 2 * q}, v{49 + 2 * q}")
            e.vm(f"buffer_store_dwordx4 {rng('v', T0 + 8, 4)}, v32, s[{S_OUT}:{S_OUT + 3}], 0 offen offset:{128 * i} " + R["opt"].get("outfl", ""), "o")
    e(f"""
    s_cmp_lt_u32 s{sW}, 2
    s_cbranch_scc1 L_fin_plain
    s_cmp_lt_u32 s2, 128
    s_cbranch_scc1 L_fin_withsel
    L_fin_plain:
    """)
    regular(0)
    e(f"s_branch {R['done']}")
    e("L_fin_withsel:")
    regular(24)
    e("s_waitcnt vmcnt(2)")
    P2 = lambda b: f"v[{b}:{b + 1}]"
    for _ in sum_partials(e, 180, 40, 14, 2, 16, 17):
        pass
    for _ in sum_partials(e, 160, 56, 8, 2, 16, 17):
        pass
    e(f"""
    v_and_b32 v10, s{sM}, v178
    v_rcp_f32 v10, v10
    v_lshlrev_b32 v9, 16, v178
    v_mov_b32 v48, s47
    v_mul_f32 v8, v9, v10
    v_sub_f32 v8, 0, v8
    """)
    for x in (4, 8):
        for q in range(4):
            e(f"v_add_f32_dpp v{40 + q}, v{40 + q}, v{40 + q} row_ror:{x} row_mask:0xf bank_mask:0xf")
        if x == 4:
            e(f"v_lshlrev_b32 v64, 16, v176")
            e(f"v_and_b32 v65, s{sM}, v176")
    e(f"v_lshlrev_b32 v66, 16, v177")
    e(f"v_and_b32 v67, s{sM}, v177")
    for sw in ("v_permlane16_swap_b32", "v_permlane32_swap_b32"):
        for q in range(4):
            e(f"v_mov_b32 v{44 + q}, v{40 + q}")
        e("s_nop 0")
        for q in range(4):
            e(f"{sw} v{40 + q}, v{44 + q}")
        for q in range(4):
            e(f"v_add_f32 v{40 + q}, v{40 + q}, v{44 + q}")
    for q in range(2):
        e(f"v_cvt_pk_bf16_f32 v{50 + q}, v{40 + 2 * q}, v{41 + 2 * q}")
    for q in range(2):
        e(f"v_lshlrev_b32 v{40 + 2 * q}, 16, v{50 + q}")
        e(f"v_and_b32 v{41 + 2 * q}, s{sM}, v{50 + q}")
    for q in range(2):
        e(f"v_pk_mul_f32 {P2(40 + 2 * q)}, {P2(40 + 2 * q)}, v[48:49] op_sel_hi:[1,0]")
    for q in range(2):
        e(f"v_pk_fma_f32 {P2(72 + 2 * q)}, {P2(64 + 2 * q)}, v[10:11], v[8:9] op_sel_hi:[1,0,0]")
    for q in range(2):
        e(f"v_cvt_pk_bf16_f32 v{50 + q}, v{40 + 2 * q}, v{41 + 2 * q}")
    for q in range(2):
        e(f"v_lshlrev_b32 v{40 + 2 * q}, 16, v{50 + q}")
        e(f"v_and_b32 v{41 + 2 * q}, s{sM}, v{50 + q}")
    for q in range(2):
        e(f"v_pk_add_f32 {P2(72 + 2 * q)}, {P2(72 + 2 * q)}, {P2(40 + 2 * q)}")
    for q in range(2):
        e(f"v_pk_mul_f32 {P2(80 + 2 * q)}, {P2(72 + 2 * q)}, s[18:19]")
    for q in range(4):
        e(f"v_exp_f32 v{80 + q}, v{80 + q}")
    for q in range(2):
        e(f"v_pk_add_f32 {P2(80 + 2 * q)}, {P2(80 + 2 * q)}, s[48:49]")
    for q in range(4):
        e(f"v_rcp_f32 v{80 + q}, v{80 + q}")
    e("s_nop 0")
    for q in range(2):
        e(f"v_pk_mul_f32 {P2(72 + 2 * q)}, {P2(72 + 2 * q)}, {P2(80 + 2 * q)}")
    for q in range(2):
        e(f"v_pk_fma_f32 {P2(64 + 2 * q)}, {P2(56 + 2 * q)}, {P2(72 + 2 * q)}, {P2(64 + 2 * q)}")
    for q in range(2):
        e(f"v_cvt_pk_bf16_f32 v{76 + q}, v{64 + 2 * q}, v{65 + 2 * q}")
    e(f"""
    v_mov_b32 v31, 0x7ffffff0
    v_cmp_gt_u32 vcc, 4, v0
    s_nop 1
    v_cndmask_b32 v29, v31, v29, vcc
    s_nop 0
    buffer_store_dwordx2 v[76:77], v29, s[{S_OUT}:{S_OUT + 3}], 0 offen
    s_branch {R['done']}
    """)


def moe_tail(e, R):
    from k1 import RB, WSTR, SLOT
    T = R["T"]
    sW, sRING, sM = R["W"], R["RING"], R["M"]
    S_X, S_WS = R["X"], R["WS"]
    sRO, sSO = T[0], T[1]
    sA, sB, sC_, sD = T[2], T[3], T[4], T[5]
    mk = [T[6], T[8], T[10], T[12]]
    e(f"s_mov_b32 s{sRO}, {WS_R}")
    e(f"s_mov_b32 s{sSO}, {WS_STAT}")
    K = [8 + i for i in range(8)]
    e(f"""
    s_cmp_eq_u32 s{R['RDY']}, 0
    s_cbranch_scc1 L_moe_slow
    """)
    e.need(vtags=[("g", 4)])
    for i in range(16):
        e(f"v_accvgpr_read_b32 v{36 + i}, a{208 + i}")
    e("v_accvgpr_read_b32 v32, a224")
    e("v_accvgpr_read_b32 v23, a225")
    e(f"""
    v_and_b32 v26, 0x7ff, v23
    v_sub_u32 v26, 2047, v26
    s_branch L_moe_gathered
    """)
    e("L_moe_keys:")
    st = R.get("stamp", lambda n: None)
    wave_top8(e, K, 16, 20, 17, sA, mk[0])
    st("top8")
    e(f"""
    v_mov_b32 v21, s{R['RDY']}
    v_cmp_eq_u32 vcc, 8, v0
    v_lshlrev_b32 v22, 2, v0
    v_add_u32 v22, s{sRING}, v22
    v_cndmask_b32 v20, v20, v21, vcc
    v_cmp_gt_u32 vcc, 9, v0
    s_nop 1
    s_and_saveexec_b64 s[{mk[0]}:{mk[0] + 1}], vcc
    ds_write_b32 v22, v20
    s_mov_b64 exec, s[{mk[0]}:{mk[0] + 1}]
    s_waitcnt lgkmcnt(0)
    s_barrier
    """)
    e(f"""
    v_lshrrev_b32 v21, 3, v0
    v_and_b32 v21, 3, v21
    v_mul_u32_u24 v21, {WSTR}, v21
    v_and_b32 v22, 7, v0
    v_lshl_add_u32 v21, v22, 2, v21
    v_mov_b32 v23, {RB}
    v_add_u32 v21, v23, v21
    ds_read_b32 v24, v21
    """)
    for w_ in range(4):
        e(f"v_add_u32 v{100 + w_}, {w_ * WSTR}, v23")
    for w_ in range(4):
        e(f"ds_read_b128 v[{32 + 8 * w_}:{35 + 8 * w_}], v{100 + w_}")
        e(f"ds_read_b128 v[{36 + 8 * w_}:{39 + 8 * w_}], v{100 + w_} offset:16")
        e(f"ds_read_b32 v{104 + w_}, v{100 + w_} offset:32")
    e(f"""
    s_waitcnt lgkmcnt(0)
    v_and_b32 v104, v104, v105
    v_and_b32 v106, v106, v107
    v_and_b32 v104, v104, v106
    v_mov_b32 v25, 0
    v_readfirstlane_b32 s{sA}, v104
    s_nop 0
    s_cmp_eq_u32 s{sA}, 0
    s_cbranch_scc1 L_moe_slow
    """)
    for j0 in range(0, 32, 4):
        for q in range(4):
            e(f"v_cmp_gt_u32 s[{mk[q]}:{mk[q] + 1}], v{32 + j0 + q}, v24")
        for q in range(4):
            e(f"v_addc_co_u32 v25, vcc, 0, v25, s[{mk[q]}:{mk[q] + 1}]")
    e(f"""
    v_cmp_gt_u32 s[{mk[0]}:{mk[0] + 1}], 8, v25
    v_cmp_gt_u32 vcc, 32, v0
    v_lshlrev_b32 v26, 2, v25
    v_add_u32 v26, s{sRING}, v26
    s_and_b64 vcc, vcc, s[{mk[0]}:{mk[0] + 1}]
    s_and_saveexec_b64 s[{mk[1]}:{mk[1] + 1}], vcc
    ds_write_b32 v26, v24 offset:64
    s_mov_b64 exec, s[{mk[1]}:{mk[1] + 1}]
    v_and_b32 v22, 7, v0
    v_lshlrev_b32 v22, 2, v22
    v_add_u32 v22, s{sRING}, v22
    ds_read_b32 v23, v22 offset:64
    s_waitcnt lgkmcnt(0)
    v_and_b32 v26, 0x7ff, v23
    v_sub_u32 v26, 2047, v26
    """)
    st("merge")
    e(f"""
    v_lshrrev_b32 v30, 4, v0
    v_lshlrev_b32 v30, 4, v30             ; q4*16
    v_lshl_add_u32 v30, v26, 10, v30
    s_lshl_b32 s{sA}, s{sW}, 8            ; 4w*64 bytes
    v_lshlrev_b32 v31, 2, v26
    v_add_u32 v31, s{sSO}, v31
    """)
    e.vq, e.lq = ["old"], []
    e.vm(f"buffer_load_dword v32, v31, s[{S_WS}:{S_WS + 3}], 0 offen sc1", "st")
    for i in range(4):
        e.vm(f"buffer_load_dwordx4 {rng('v', 36 + 4 * i, 4)}, v30, s[{S_X}:{S_X + 3}], s{sA} offen offset:{64 * i}",
             ("xg", i))
    e("s_waitcnt vmcnt(0)")
    e("L_moe_gathered:")
    e.vq = []
    e(f"""
    v_and_b32 v27, s{sM}, v23
    v_ashrrev_i32 v28, 31, v27
    v_not_b32 v28, v28
    v_or_b32 v28, 0x80000000, v28
    v_xor_b32 v27, v27, v28
    v_and_b32 v27, s{sM}, v27             ; r (f32 bits)
    v_mul_f32 v28, {hex(f2u(-LOG2E))}, v27
    v_exp_f32 v28, v28
    s_nop 0
    v_add_f32 v28, 1.0, v28
    v_rcp_f32 v28, v28
    s_nop 0
    v_cvt_pk_bf16_f32 v28, v28, v28
    v_and_b32 v28, s{sM}, v28             ; bf16(sigmoid(r))
    """)
    if R.get("fused"):
        e(f"""
        s_load_dwordx2 s[20:21], s[0:1], {KA['out']}
        s_cmp_ge_u32 s2, 224
        s_cbranch_scc1 L_fin_sync
        """)
    else:
        e(f"""
        v_lshlrev_b32 v29, 2, v0
        v_add_u32 v29, {WS_IDX}, v29
        v_mov_b32 v33, 0x7ffffff0
        s_or_b32 s{sA}, s{R['SL']}, s{sW}
        s_cmp_eq_u32 s{sA}, 0
        s_cselect_b64 s[{mk[0]}:{mk[0] + 1}], -1, 0
        v_cmp_gt_u32 vcc, 8, v0
        s_nop 1
        s_and_b64 vcc, vcc, s[{mk[0]}:{mk[0] + 1}]
        v_cndmask_b32 v29, v33, v29, vcc
        """)
        e.vm(f"buffer_store_dword v26, v29, s[{S_WS}:{S_WS + 3}], 0 offen", "pub")
        e.vm(f"buffer_store_dword v28, v29, s[{S_WS}:{S_WS + 3}], 0 offen offset:32", "pub")
    e(f"""
    v_and_b32 v34, s{sM}, v32             ; sd
    v_rcp_f32 v34, v34
    v_lshlrev_b32 v30, 16, v32            ; mean
    v_sub_f32 v30, 0, v30
    """)
    st("gather")
    for i in range(0, 16, 2):
        for j in range(2):
            r, t = 36 + i + j, 52 + 2 * j
            e(f"v_lshlrev_b32 v{t}, 16, v{r}")
            e(f"v_and_b32 v{t + 1}, s{sM}, v{r}")
        for j in range(2):
            t = 52 + 2 * j
            e(f"v_pk_add_f32 v[{t}:{t + 1}], v[{t}:{t + 1}], v[30:31] op_sel_hi:[1,0]")
        for j in range(2):
            r, t = 36 + i + j, 52 + 2 * j
            e(f"v_cvt_pk_bf16_f32 v{r}, v{t}, v{t + 1}")
        for j in range(2):
            r, t = 36 + i + j, 52 + 2 * j
            e(f"v_lshlrev_b32 v{t}, 16, v{r}")
            e(f"v_and_b32 v{t + 1}, s{sM}, v{r}")
        for j in range(2):
            t = 52 + 2 * j
            e(f"v_pk_mul_f32 v[{t}:{t + 1}], v[{t}:{t + 1}], v[34:35] op_sel_hi:[1,0]")
        for j in range(2):
            r, t = 36 + i + j, 52 + 2 * j
            e(f"v_cvt_pk_bf16_f32 v{r}, v{t}, v{t + 1}")
    st("ln")
    e("v_accvgpr_write_b32 a128, 0")
    e("v_accvgpr_write_b32 a129, 0")
    for i in range(4):
        c = "0" if i == 0 else "v[56:59]"
        e(f"v_mfma_f32_16x16x32_bf16 v[56:59], {rng('a', 96 + 4 * i, 4)}, {rng('v', 36 + 4 * i, 4)}, {c}")
    e.nop(8)
    if R.get("fused"):
        flag_prepare(e, R, sA, sB, 24, 0, 1)
        e("s_waitcnt vmcnt(8)")
    e(f"""
    v_lshlrev_b32 v60, 4, v0
    v_add_u32 v61, s{sRING}, v60
    ds_write_b128 v61, v[56:59] offset:2048
    s_waitcnt lgkmcnt(0)
    s_barrier
    """)
    if R.get("fused"):
        e(f"buffer_store_dword v25, v24, s[{S_WS}:{S_WS + 3}], 0 offen sc1")
    e(f"""
    v_add_u32 v60, {RB + 2048}, v60
    v_add_u32 v61, {WSTR}, v60
    v_add_u32 v62, {2 * WSTR}, v60
    v_add_u32 v63, {3 * WSTR}, v60
    ds_read_b128 v[64:67], v60
    ds_read_b128 v[68:71], v61
    ds_read_b128 v[72:75], v62
    ds_read_b128 v[76:79], v63
    s_waitcnt lgkmcnt(0)
    """)
    e.lq = []
    for i in range(4):
        e(f"v_add_f32 v{64 + i}, v{64 + i}, v{68 + i}")
        e(f"v_add_f32 v{72 + i}, v{72 + i}, v{76 + i}")
        e(f"v_add_f32 v{64 + i}, v{64 + i}, v{72 + i}")
    for i in range(4):
        e(f"v_cvt_pk_bf16_f32 v{64 + i}, v{64 + i}, v{64 + i}")
        e(f"v_and_b32 v{64 + i}, s{sM}, v{64 + i}")
        e(f"v_mov_b32 v{68 + i}, v{64 + i}")
    e("s_nop 0")
    for i in range(4):
        e(f"v_permlane32_swap_b32 v{64 + i}, v{68 + i}")
    for i in range(4):
        silu_bf16(e, 72 + i, 64 + i, 76, 77, sM)
        e(f"v_mul_f32 v{72 + i}, v{72 + i}, v{68 + i}")
    e(f"""
    v_cvt_pk_bf16_f32 v80, v72, v73
    v_cvt_pk_bf16_f32 v81, v74, v75
    v_cmp_gt_u32 vcc, 32, v0
    v_mov_b32 v82, 0
    v_mov_b32 v83, 0
    v_cndmask_b32 v80, 0, v80, vcc
    v_cndmask_b32 v81, 0, v81, vcc
    s_nop 1
    """)
    for t in range(8):
        e(f"v_mfma_f32_16x16x32_bf16 {rng('v', 120 + 4 * t, 4)}, {rng('a', 112 + 2 * t, 4)}, v[80:83], 0")
    if R.get("fused"):
        fused_finish(e, R, sA, sB, mk)
    else:
        e(f"""
        s_lshl_b32 s{sA}, s{R['SL']}, 14
        s_lshl_b32 s{sB}, s{sW}, 9            ; 8w*16*4 bytes
        s_add_u32 s{sA}, s{sA}, s{sB}
        s_add_u32 s{sA}, s{sA}, {WS_YP}
        v_and_b32 v60, 15, v0
        v_lshlrev_b32 v61, 11, v60
        v_lshrrev_b32 v62, 4, v0
        v_lshl_add_u32 v61, v62, 4, v61
        v_add_u32 v61, s{sA}, v61
        v_mov_b32 v63, 0x1ffffff0
        v_cmp_gt_u32 vcc, 8, v60
        s_nop 1
        v_cndmask_b32 v61, v63, v61, vcc
        s_nop 1
        """)
        for t in range(8):
            e(f"buffer_store_dwordx4 {rng('v', 120 + 4 * t, 4)}, v61, s[{S_WS}:{S_WS + 3}], 0 offen offset:{t * 64}")
        e(f"s_branch {R['done']}")

    e("L_moe_slow:")
    dbg = R["DBG"]
    e(f"""
    s_barrier
    s_mov_b32 s{sB}, {R.get('spin', 4000)}
    v_mov_b32 v21, 0
    L_moe_spin:
    global_load_dword v22, v21, s[{dbg}:{dbg + 1}] sc1
    s_waitcnt vmcnt(0)
    v_readfirstlane_b32 s{sA}, v22
    s_nop 0
    s_cmp_ge_u32 s{sA}, {R['NCNT']}
    s_cbranch_scc1 L_moe_spin_ok
    s_sleep 8
    s_sub_u32 s{sB}, s{sB}, 1
    s_cmp_lg_u32 s{sB}, 0
    s_cbranch_scc1 L_moe_spin
    L_moe_spin_ok:
    s_cmp_ge_u32 s{sA}, {R['NCNT']}
    s_cselect_b32 s{sA}, 1, 0
    v_mov_b32 v22, s{sA}
    v_mov_b32 v23, s{sRING}
    ds_write_b32 v23, v22 offset:128
    s_waitcnt lgkmcnt(0)
    s_barrier
    v_mov_b32 v23, {RB}
    ds_read_b32 v32, v23 offset:128
    ds_read_b32 v33, v23 offset:{WSTR + 128}
    ds_read_b32 v34, v23 offset:{2 * WSTR + 128}
    v_add_u32 v23, {3 * WSTR}, v23
    ds_read_b32 v35, v23 offset:128
    s_waitcnt lgkmcnt(0)
    v_and_b32 v32, v32, v33
    v_and_b32 v34, v34, v35
    v_and_b32 v32, v32, v34
    s_nop 0
    v_readfirstlane_b32 s{sA}, v32
    s_nop 0
    s_cmp_eq_u32 s{sA}, 1
    s_cbranch_scc1 L_moe_reload
    """)
    e(f"""
    s_lshl_b32 s{sRO}, s{R['SL']}, 14
    s_add_u32 s{sRO}, s{sRO}, {WS_FB}
    s_add_u32 s{sSO}, s{sRO}, 8192
    v_lshlrev_b32 v21, 4, v0
    buffer_load_dwordx4 v[40:43], v21, s[{R['WR']}:{R['WR'] + 3}], 0 offen
    s_lshl_b32 s{sB}, s{sW}, 9
    s_add_u32 s{sC_}, s{sB}, 512
    s_waitcnt vmcnt(0)
    """)
    for i in range(4):
        e(f"v_lshlrev_b32 v{44 + 2 * i}, 16, v{40 + i}")
        e(f"v_and_b32 v{45 + 2 * i}, s{sM}, v{40 + i}")
    e(f"""
    L_moe_fb:
    s_lshl_b32 s{sA}, s{sB}, 10
    buffer_load_dwordx4 v[40:43], v21, s[{S_X}:{S_X + 3}], s{sA} offen
    s_waitcnt vmcnt(0)
    """)
    for i in range(4):
        e(f"v_lshlrev_b32 v{56 + 2 * i}, 16, v{40 + i}")
        e(f"v_and_b32 v{57 + 2 * i}, s{sM}, v{40 + i}")

    def wave_sum(v, t):
        for x in (1, 2, 4, 8):
            e(f"s_nop 1")
            e(f"v_add_f32_dpp v{v}, v{v}, v{v} row_ror:{x} row_mask:0xf bank_mask:0xf")
        e(f"v_mov_b32 v{t}, v{v}")
        e("s_nop 1")
        e(f"v_permlane16_swap_b32 v{v}, v{t}")
        e("s_nop 0")
        e(f"v_add_f32 v{v}, v{v}, v{t}")
        e(f"v_mov_b32 v{t}, v{v}")
        e("s_nop 1")
        e(f"v_permlane32_swap_b32 v{v}, v{t}")
        e("s_nop 0")
        e(f"v_add_f32 v{v}, v{v}, v{t}")
    e("v_add_f32 v64, v56, v57")
    for i in range(2, 8):
        e(f"v_add_f32 v64, v64, v{56 + i}")
    wave_sum(64, 65)
    e(f"v_mul_f32 v64, {hex(f2u(1.0 / 512))}, v64        ; mean")
    e("v_sub_f32 v66, v56, v64")
    e("v_mul_f32 v67, v66, v66")
    for i in range(1, 8):
        e(f"v_sub_f32 v66, v{56 + i}, v64")
        e(f"v_fmac_f32 v67, v66, v66")
    wave_sum(67, 65)
    e(f"""
    v_mul_f32 v67, {hex(f2u(1.0 / 512))}, v67
    v_cvt_pk_bf16_f32 v68, v64, v67
    v_and_b32 v69, s{sM}, v68
    v_add_f32 v69, {hex(f2u(1e-5))}, v69
    v_cvt_pk_bf16_f32 v69, v69, v69
    v_and_b32 v69, s{sM}, v69
    v_sqrt_f32 v69, v69
    v_lshlrev_b32 v64, 16, v68
    v_cvt_pk_bf16_f32 v69, v69, v69
    v_and_b32 v69, s{sM}, v69             ; sd
    v_rcp_f32 v70, v69
    v_and_b32 v68, 0xffff, v68
    v_or_b32 v68, v68, v69
    v_mov_b32 v71, 0
    """)
    for i in range(8):
        e(f"""
        v_sub_f32 v66, v{56 + i}, v64
        v_mul_f32 v66, v66, v70
        v_cvt_pk_bf16_f32 v66, v66, v66
        v_and_b32 v66, s{sM}, v66
        v_fmac_f32 v71, v66, v{44 + i}
        """)
    wave_sum(71, 65)
    e(f"""
    v_cvt_pk_bf16_f32 v71, v71, v71
    v_and_b32 v71, s{sM}, v71
    v_ashrrev_i32 v72, 31, v71
    v_or_b32 v72, 0x80000000, v72
    v_xor_b32 v71, v71, v72
    s_sub_u32 s{sA}, 2047, s{sB}
    v_mov_b32 v72, s{sA}
    v_and_or_b32 v71, v71, s{sM}, v72
    s_lshl_b32 s{sA}, s{sB}, 2
    v_mov_b32 v72, s{sA}
    v_add_u32 v73, s{sRO}, v72
    v_add_u32 v74, s{sSO}, v72
    v_cmp_eq_u32 vcc, 0, v0
    s_nop 1
    s_and_saveexec_b64 s[{mk[0]}:{mk[0] + 1}], vcc
    buffer_store_dword v71, v73, s[{S_WS}:{S_WS + 3}], 0 offen sc1
    buffer_store_dword v68, v74, s[{S_WS}:{S_WS + 3}], 0 offen sc1
    s_mov_b64 exec, s[{mk[0]}:{mk[0] + 1}]
    s_add_u32 s{sB}, s{sB}, 1
    s_cmp_lt_u32 s{sB}, s{sC_}
    s_cbranch_scc1 L_moe_fb
    s_waitcnt vmcnt(0)
    s_barrier
    L_moe_reload:
    s_lshl_b32 s{sA}, s{sW}, 11
    v_lshlrev_b32 v21, 5, v0
    v_add_u32 v21, s{sA}, v21
    v_add_u32 v21, s{sRO}, v21
    buffer_load_dwordx4 v[8:11], v21, s[{S_WS}:{S_WS + 3}], 0 offen sc1
    buffer_load_dwordx4 v[12:15], v21, s[{S_WS}:{S_WS + 3}], 0 offen offset:16 sc1
    s_mov_b32 s{R['RDY']}, 1
    s_waitcnt vmcnt(0)
    s_barrier
    s_branch L_moe_keys
    """)


WS_FB = 24 << 20
```

```python
from emit import E, check_hazards, check_scc
from asmlib import KA

RB = 65536
WSTR = 24576
SLOT = 8192
C_SCALE = 1.4426950408889634 * (128 ** -0.5)

WS_PART = 0
WS_R = 16 << 20
WS_STAT = WS_R + 8192
WS_H = WS_R + 65536
WS_IDX = WS_H + 32768
WS_FLG = WS_R + 32768
WS_TS = 32 << 20


def f2u(x):
    import struct
    return struct.unpack("<I", struct.pack("<f", x))[0]


S_X, S_WQ, S_K, S_V, S_WO, S_WS, S_WR = 4, 8, 12, 16, 20, 24, 28
sG, sTB, sW, sSK = 32, 33, 34, 35
sWQO, sWOO, sKO, sVO = 36, 37, 38, 39
sRING = 40
sCNT = 41
sT0, sT1, sT2, sT3 = 42, 43, 44, 45
sKSL, sVSL = 46, 47
sKD, sVD = 48, 49
sTRIP = 50
sGA = 52
sGB = 56
sGAO, sGBO = 60, 61
sGAM, sGBM = 62, 63
sMASK = 64
sPASS = 70
sKVB = 71
sKVT = 51
sDBG = 72
sSL = 98
sRDY = 99
sFP = 92
sHFD = 70
sTS = 74

vLANE = 0
vWQ = 1
vWO = 5
vKDM = 9
vVDM = 13
vAA = 14
vAB = 22
vBR = 30
vKR = 32
vVR = 40
vGA = 44
vGB = 48
vL = 52
vOW = 56
vPS = 57
vT = 58
vQ = 64
vS = 128
vP = 192
vNM = 224
vACC = 128

aA = 0
aB = 96
aF = 0
aO = 128


def rng(f, b, n):
    return f"{f}[{b}:{b + n - 1}]" if n > 1 else f"{f}{b}"


def Bset(setidx, tq):
    if setidx < 2:
        return rng("a", aB + setidx * 16 + tq * 4, 4)
    return rng("v", 64 + tq * 4, 4)


def Aset(setidx, dt):
    return rng("a", aA + setidx * 32 + dt * 4, 4)


def Ahalf(setidx, dt, rd):
    return rng("a", aA + setidx * 32 + dt * 4 + 2 * rd, 2)


def acc16(dt, tq):
    return rng("v", vACC + (dt * 4 + tq) * 4, 4)


OPT = {}
STAMP = [None]
GSTAMP = [None]
P3_STATIC = [False]
NS3 = 5


class Slots:
    def __init__(self, n):
        self.n = n
        self.f = [[] for _ in range(n + 1)]

    def at(self, i, fn):
        self.f[min(max(i, 0), self.n)].append(fn)


def loop_align(e):
    a = OPT.get("align", 0)
    if a:
        e.l.append(f".p2align {a}")
    for _ in range(OPT.get("shift", 0)):
        e("s_nop 0")


class Side:
    def __init__(self):
        self.q = []
        self.last = None

    def add(self, x, gap=0, cond=None):
        self.q.append((x, gap, cond))

    def states_since(self, e):
        if self.last is None:
            return 99
        n = 0
        for l in e.l[self.last:]:
            t = l.strip()
            if t.endswith(":") or not t:
                continue
            n += int(t.split()[1], 0) + 1 if t.startswith("s_nop") else 1
        return n

    def emit(self, e, budget, pos=None, flush=False):
        while self.q and (budget > 0 or flush):
            x, gap, cond = self.q[0]
            if cond is not None and pos is not None and pos < cond and not flush:
                return
            have = self.states_since(e)
            if have < gap:
                if not flush:
                    return
                e.nop(gap - have)
            self.q.pop(0)
            if callable(x):
                x()
            else:
                e(x)
            self.last = len(e.l)
            budget -= 1


def gemm_step(e, p, phase, opts):
    j = p % 3
    jn = (p + 1) % 3
    va = vAA if phase == 1 else vAB
    rdoff = 1024 if phase == 1 else 2048
    sl = Slots(32)
    if opts.get("next", True):
        reads = []
        for dt in range(8):
            for rd in range(2):
                reads.append((dt, rd))
        spread = OPT.get("aspread", 16)
        for n, (dt, rd) in enumerate(reads):
            def f(dt=dt, rd=rd):
                if OPT.get("noaread"):
                    return
                e.lds(f"ds_read_b64_tr_b16 {Ahalf(jn, dt, rd)}, v{va + dt} offset:{jn * SLOT + rd * rdoff}",
                      ("A", p + 1, dt))
            sl.at(n * spread // 16, f)
        for tq in range(4):
            def f(tq=tq):
                e.lds(f"ds_read_b128 {Bset(jn, tq)}, v{vBR} offset:{opts['boff_next'] + tq * 1024}", ("B", p + 1, tq))
            sl.at(spread + tq, f)
    for pos, fn in opts.get("fill", []):
        sl.at(pos, fn)
    if opts.get("next", True):
        e.need(vtags=opts.get("vneed"))
    for n in range(32):
        dt, tq = n // 4, n % 4
        need = [("A", p, dt), ("B", p, tq)] + ([("B", p, 3), ("A", p, 7)] if n == 0 else [])
        e.need(ltags=need)
        c = "0" if opts.get("first") else acc16(dt, tq)
        e(f"v_mfma_f32_16x16x32_bf16 {acc16(dt, tq)}, {Aset(j, dt)}, {Bset(j, tq)}, {c}")
        for fn in sl.f[n]:
            fn()
        side = opts.get("side")
        if side is not None:
            side.emit(e, opts.get("cap", 2) - len(sl.f[n]), pos=(p, n))
    for fn in sl.f[32]:
        fn()


def wdma(e, phase, i, tag):
    if OPT.get("nodma") and tag[1] > 3:
        e.vq.append(tag)
        return
    if phase == 1:
        e.vm(f"buffer_load_dwordx4 v{vWQ + i}, s[{S_WQ}:{S_WQ + 3}], s{sWQO} offen offset:{i * 1024} lds", tag)
    else:
        e.vm(f"buffer_load_dwordx4 v{vWO + i}, s[{S_WO}:{S_WO + 3}], s{sWOO} offen offset:{i * 1024} lds", tag)


def wdma_adv(e, phase):
    if phase == 1:
        e(f"s_add_u32 s{sWQO}, s{sWQO}, {16 * 8192}")
        e(f"s_and_b32 s{sWQO}, s{sWQO}, {512 * 8192 - 1}")
    else:
        e(f"s_add_u32 s{sT0}, s{sWOO}, {16 * 1024}")
        e(f"s_and_b32 s{sT0}, s{sT0}, {512 * 1024 - 1}")
        e(f"s_and_b32 s{sWOO}, s{sWOO}, {~(512 * 1024 - 1) & 0xffffffff}")
        e(f"s_or_b32 s{sWOO}, s{sWOO}, s{sT0}")


def half_dma(e, phase, slot, half, tag):
    def m0():
        e(f"s_add_u32 m0, s{sRING}, {slot * SLOT + half * 4096}")
    out = [m0]
    for i in range(4):
        out.append(lambda i=i: wdma(e, phase, i, tag))
    out.append(lambda: wdma_adv(e, phase))
    return out


def serial(e, fl):
    fl[0]()
    e("s_nop 0")
    for fn in fl[1:]:
        fn()


def place(fl, start, stride):
    res = [(start, fl[0])]
    for i in range(4):
        res.append((start + 1 + i * stride, fl[1 + i]))
    res.append((start + 1 + 3 * stride, fl[5]))
    return res


def kv_dma(e, which, tile_slot, tag):
    out = []
    if which == "K":
        out.append(lambda: e(f"s_add_u32 m0, s{sRING}, {tile_slot * SLOT}"))
        for i in range(4):
            out.append(lambda i=i: e.vm(
                f"buffer_load_dwordx4 v{vKDM + i}, s[{S_K}:{S_K + 3}], s{sKO} offen offset:{i * 1024} lds", tag))
        out.append(lambda: kv_adv(e, sKO))
    else:
        out.append(lambda: e(f"s_add_u32 m0, s{sRING}, {tile_slot * SLOT + 4096}"))
        for i in range(4):
            out.append(lambda i=i: e.vm(
                f"buffer_load_dwordx4 v{vVDM}, s[{S_V}:{S_V + 3}], s{sVO} offen offset:{i * 1024} lds", tag))
        out.append(lambda: kv_adv(e, sVO))
    return out


def kv_adv(e, sreg):
    e(f"s_add_u32 s{sreg}, s{sreg}, 16384")
    e(f"s_and_b32 s{sreg}, s{sreg}, {8 * 16384 - 1}")


def gemm_pre(e, phase):
    va = vAA if phase == 1 else vAB
    rdoff = 1024 if phase == 1 else 2048
    e.need(vtags=[("W", 0, 0), ("W", 0, 1)])
    for tq in range(4):
        e.lds(f"ds_read_b128 {Bset(0, tq)}, v{vBR} offset:{tq * 1024}", ("B", 0, tq))
    for dt in range(8):
        for rd in range(2):
            e.lds(f"ds_read_b64_tr_b16 {Ahalf(0, dt, rd)}, v{va + dt} offset:{rd * rdoff}", ("A", 0, dt))


def gemm_main(e, phase, tail_fill, side=None, side_steps=range(10, 16)):
    e.need(ltags=[("A", 0, 7)])
    serial(e, half_dma(e, phase, 0, 0, ("W", 3, 0)))

    def step_opts(p, boff_next):
        fill = []
        sp = OPT.get("aspread", 16)
        if p + 3 <= 15:
            fl = half_dma(e, phase, p % 3, 1, ("W", p + 3, 1))
            fill += [(0, fl[0])] + [(2 + 4 * i, fl[1 + i]) for i in range(4)] + [(sp + 4, fl[5])]
        if p + 4 <= 15:
            fl = half_dma(e, phase, (p + 1) % 3, 0, ("W", p + 4, 0))

            def guard(p=p):
                e.need(ltags=[("A", p + 1, 7)])
            fill += [(sp + 5, guard), (sp + 5, fl[0])] + [(min(sp + 6 + 3 * i, 31), fl[1 + i]) for i in range(4)] + [(32, fl[5])]
        return dict(first=(p == 0), next=(p < 15), boff_next=boff_next, fill=fill,
                    vneed=[("W", p + 1, 0), ("W", p + 1, 1)])

    if GSTAMP[0]:
        GSTAMP[0]("p1_pre")
    o = step_opts(0, 1 * 4096)
    gemm_step(e, 0, phase, o)
    if GSTAMP[0]:
        GSTAMP[0]("p1_s0")
    lab = f"L_g{phase}_loop"
    e(f"s_mov_b32 s{sCNT}, 3")
    e(f"v_add_u32 v{vBR}, {1 * 4096}, v{vBR}")
    lq0, vq0 = list(e.lq), list(e.vq)
    loop_align(e)
    e(f"{lab}:")
    n0 = len(e.l)
    for u in range(3):
        p = 1 + u
        o = step_opts(p, (u + 1) * 4096)
        if u == 2:
            o["fill"] = o["fill"] + [(24, lambda: e(f"v_add_u32 v{vBR}, {3 * 4096}, v{vBR}")),
                                     (32, lambda: e(f"s_sub_u32 s{sCNT}, s{sCNT}, 1")),
                                     (32, lambda: e(f"s_cmp_lg_u32 s{sCNT}, 0"))]
        gemm_step(e, p, phase, o)
    e(f"s_cbranch_scc1 {lab}")
    body = e.l[n0:]
    probs = check_hazards(body + body, f"gemm{phase} loop x2")
    assert not probs or any(k.startswith("no") for k in OPT), "\n".join(probs[:10])
    sh = lambda q, d: [(t[0], t[1] + d) + tuple(t[2:]) if t else t for t in q]
    assert sh(lq0, 3) == e.lq or OPT.get('noaread'), (lq0, e.lq)
    assert sh(vq0, 3) == e.vq, (vq0, e.vq)
    e.lq, e.vq = sh(e.lq, 6), sh(e.vq, 6)
    for p in range(10, 16):
        if GSTAMP[0] and p in (10, 13):
            GSTAMP[0](f"p1_s{p}")
        o = step_opts(p, (p - 10 + 1) * 4096)
        o["fill"] = o["fill"] + tail_fill(p)
        o["side"] = side if p in side_steps else None
        o["cap"] = OPT.get("sidecap", 2)
        gemm_step(e, p, phase, o)


def acc3(hf, nt, tq):
    return rng("v", vACC + 64 * hf + (nt * 4 + tq) * 4, 4)


def A3(st, nt, rd=None):
    b = st * 16 + nt * 4
    return rng("a", b, 4) if rd is None else rng("a", b + 2 * rd, 2)


def B3(st, tq):
    return rng("a", 48 + st * 16 + tq * 4, 4)


def p3_dma(e, u):
    out = [lambda: e(f"s_add_u32 m0, s{sRING}, {(u % NS3) * 4096}")]
    for i in range(4):
        out.append(lambda i=i: e.vm(
            f"buffer_load_dwordx4 v{vWO + i}, s[{S_WO}:{S_WO + 3}], s{sWOO} offen offset:{i * 1024} lds", ("W", u)))

    def adv():
        p3_adv(e)
        if u == 9 and not OPT.get("p3unroll", 1):
            e(f"s_add_u32 s{sWOO}, s{sWOO}, s{sHFD}")
    out.append(adv)
    return out


def p3_adv(e):
    e(f"s_add_u32 s{sWOO}, s{sWOO}, {32 * 1024}")
    e(f"s_and_b32 s{sWOO}, s{sWOO}, {512 * 1024 - 1}")


def p3_reads(e, u, boff):
    st = u % 3
    r = []
    for nt in range(4):
        for rd in range(2):
            r.append(lambda nt=nt, rd=rd: e.lds(
                f"ds_read_b64_tr_b16 {A3(st, nt, rd)}, v{vAB + nt} offset:{(u % NS3) * 4096 + rd * 1024}", ("A", u, nt)))
    for tq in range(4):
        r.append(lambda tq=tq: e.lds(f"ds_read_b128 {B3(st, tq)}, v{vBR} offset:{boff + tq * 1024}", ("B", u, tq)))
    return r


def p3_step(e, u, boff_next, fill=(), side=None, cap=2):
    hf, st = u >> 4, u % 3
    sl = Slots(16)
    nxt = u < 31
    if nxt:
        rd = p3_reads(e, u + 1, boff_next)
        for n in range(8):
            sl.at(n, rd[n])
        for tq in range(4):
            sl.at(8 + tq, rd[8 + tq])
    if u + NS3 <= 31:
        fl = p3_dma(e, u + NS3)
        sl.at(0, fl[0])
        for i, pos in enumerate((2, 6, 12, 14)):
            sl.at(pos, fl[1 + i])
        sl.at(15, fl[5])
    for pos, fn in fill:
        sl.at(pos, fn)
    if nxt:
        e.need(vtags=[("W", u + 1)])
    for n in range(16):
        nt, tq = n // 4, n % 4
        e.need(ltags=[("A", u, nt), ("B", u, tq)] + ([("B", u, 3), ("A", u, 3)] if n == 0 else []))
        c = "0" if (u & 15) == 0 else acc3(hf, nt, tq)
        e(f"v_mfma_f32_16x16x32_bf16 {acc3(hf, nt, tq)}, {A3(st, nt)}, {B3(st, tq)}, {c}")
        for fn in sl.f[n]:
            fn()
        if side is not None:
            left = cap - len(sl.f[n])
            for sd in side:
                n0 = len(sd.q)
                sd.emit(e, left, pos=(u, n))
                left -= n0 - len(sd.q)
    for fn in sl.f[16]:
        fn()


def p3_epilogue_items(e, hf, regs):
    items = []
    k = 0
    for nt in range(4):
        for qb in range(2):
            R = regs[k % len(regs)]
            k += 1
            a0 = vACC + 64 * hf + (nt * 4 + 2 * qb) * 4
            a1 = a0 + 4
            items.append((f"v_cvt_pk_bf16_f32 v{R}, v{a0}, v{a0 + 1}", 2))
            items.append((f"v_cvt_pk_bf16_f32 v{R + 1}, v{a0 + 2}, v{a0 + 3}", 0))
            items.append((f"v_cvt_pk_bf16_f32 v{R + 2}, v{a1}, v{a1 + 1}", 0))
            items.append((f"v_cvt_pk_bf16_f32 v{R + 3}, v{a1 + 2}, v{a1 + 3}", 0))
            items.append((f"v_permlane16_swap_b32 v{R}, v{R + 2}", 2))
            items.append((f"v_permlane16_swap_b32 v{R + 1}, v{R + 3}", 1))
            off = (nt & 1) * 2048 + qb * 1024
            so = {(0, 0): "0", (0, 1): "s48", (1, 0): "s49", (1, 1): "s50"}[(hf, nt >> 1)]
            items.append((lambda R=R, off=off, nt=nt, qb=qb, so=so: e.vm(
                f"buffer_store_dwordx4 {rng('v', R, 4)}, v{vPS}, s[{S_WS}:{S_WS + 3}], {so} offen offset:{off} "
                + OPT.get("pstore", "sc1"), ("ps", hf, nt, qb)), 0))
    return items


def p3_loop_half0(e):
    p3_step(e, 0, 4096)
    e(f"s_mov_b32 s{sCNT}, 2")
    e(f"s_mov_b32 s{sHFD}, 0")
    e(f"v_add_u32 v{vBR}, {1 * 4096}, v{vBR}")
    lq0, vq0 = list(e.lq), list(e.vq)
    e("L_p3_loop:")
    n0 = len(e.l)
    for k in range(6):
        u = 1 + k
        fill = []
        if k == 5:
            fill = [(13, lambda: e(f"v_add_u32 v{vBR}, {6 * 4096}, v{vBR}")),
                    (15, lambda: e(f"s_mov_b32 s{sHFD}, 512")),
                    (15, lambda: e(f"s_sub_u32 s{sCNT}, s{sCNT}, 1")),
                    (15, lambda: e(f"s_cmp_lg_u32 s{sCNT}, 0"))]
        p3_step(e, u, (k + 1) * 4096, fill=fill)
    e("s_cbranch_scc1 L_p3_loop")
    body = e.l[n0:]
    probs = check_hazards(body + body, "p3 loop x2")
    assert not probs, "\n".join(probs[:10])
    sh = lambda q, d: [(t[0], t[1] + d) + tuple(t[2:]) if t else t for t in q]
    assert sh(lq0, 6) == e.lq, (lq0, e.lq)
    assert sh(vq0, 6) == e.vq, (vq0, e.vq)
    e.lq, e.vq = sh(e.lq, 6), sh(e.vq, 6)
    for u in range(13, 16):
        boff = (u - 13 + 1) * 4096 if u < 15 else -13 * 4096
        if u == 15:
            fill = [(0, lambda: e(f"v_subrev_u32 v{vBR}, {13 * 4096}, v{vBR}"))]
            p3_step(e, u, 0, fill=fill)
        else:
            p3_step(e, u, boff)


def p3_phase(e, tail_fill, side0, side1):
    if STAMP[0]:
        STAMP[0]("p3_start")
    if OPT.get("p3unroll", 1):
        cap = OPT.get("sidecap", 2)
        for u in range(16):
            fill = []
            if u == 15 - NS3:
                fill = [(16, lambda: e(f"s_add_u32 s{sWOO}, s{sWOO}, 512"))]
            P3_STATIC[0] = True
            p3_step(e, u, ((u + 1) & 15) * 4096, fill=fill, side=side0, cap=cap)
    else:
        p3_loop_half0(e)
    for u in range(16, 32):
        p = u & 15
        if STAMP[0] and u in (16, 24):
            STAMP[0](f"p3_u{u}")
        p3_step(e, u, ((p + 1) & 15) * 4096, fill=tail_fill(u), side=side0, cap=OPT.get("sidecap", 2))


def Sreg(par, qb, i=None):
    b = vS + par * 32 + qb * 16
    return rng("v", b, 16) if i is None else f"v{b + i}"


def Preg(par, qb, t):
    return rng("v", vP + par * 16 + qb * 8 + t * 4, 4)


def Qreg(s16, qb):
    return rng("v", vQ + (s16 * 2 + qb) * 4, 4)


def Oreg(db, qb):
    return rng("a", aO + (db * 2 + qb) * 16, 16)


def Fbuf(n, half=None):
    b = aF + (n % 8) * 4
    return rng("a", b, 4) if half is None else rng("a", b + 2 * half, 2)


def k_read(e, b, s16):
    if OPT.get("nokvread"):
        return
    e.lds(f"ds_read_b128 {Fbuf(s16)}, v{vKR + s16} offset:{(b & 1) * 49152}", ("K", b, s16))


def v_read(e, b, f, order=None):
    t, db = (order or VORD_T)[f]
    if OPT.get("nokvread"):
        return
    for rd in range(2):
        e.lds(f"ds_read_b64_tr_b16 {Fbuf(8 + f, rd)}, v{vVR + db} offset:{t * WSTR + rd * 2048}", ("V", b, f))


def sm_ops(e, b):
    par = b & 1
    ops = []
    S = lambda x: Sreg(par, x // 16, x % 16)
    exp = lambda x: (lambda: e(f"v_exp_f32 {S(x)}, {S(x)}") if not OPT.get("noexp") else None)
    add = lambda x: (lambda: e(f"v_add_f32 v{vL + (x // 16) * 2 + (x & 1)}, v{vL + (x // 16) * 2 + (x & 1)}, {S(x)}"))
    cvt = lambda k: (lambda: e(f"v_cvt_pk_bf16_f32 v{vP + par * 16 + k}, {S(2 * k)}, {S(2 * k + 1)}"))
    if OPT.get("nosm"):
        return []
    for k in range(16):
        ops.append((2 * k, exp(2 * k)))
        if k > 0:
            ops.append((2 * k, add(2 * k - 2)))
            ops.append((2 * k, cvt(k - 1)))
        ops.append((2 * k + 1, exp(2 * k + 1)))
        if k > 0:
            ops.append((2 * k + 1, add(2 * k - 1)))
    ops.append((32, add(30)))
    ops.append((32, add(31)))
    ops.append((32, cvt(15)))
    return ops


def sm_queue(e, b):
    par = b & 1
    S = lambda x: Sreg(par, x // 16, x % 16)
    exp = lambda x: (8, lambda: e(f"v_exp_f32 {S(x)}, {S(x)}"))
    add = lambda x: (4, lambda: e(f"v_add_f32 v{vL + (x // 16) * 2 + (x & 1)}, v{vL + (x // 16) * 2 + (x & 1)}, {S(x)}"))
    cvt = lambda k: (4, lambda: e(f"v_cvt_pk_bf16_f32 v{vP + par * 16 + k}, {S(2 * k)}, {S(2 * k + 1)}"))
    q = []
    for k in range(32):
        q.append(exp(k))
        if k >= 1:
            q.append(add(k - 1))
        if k >= 2 and k % 2 == 0:
            q.append(cvt(k // 2 - 1))
    q.append(add(31))
    q.append(cvt(15))
    return q


VORD_T = [(f // 4, f % 4) for f in range(8)]
VORD_D = [(f % 2, f // 2) for f in range(8)]


def p2_iter(e, b, qk=True, sm=True, pv=True, look="K", fill=(), vpre=False, smstart=0, vord=VORD_T, vord_next=VORD_T,
            side=None, cap=5):
    mf = []
    if qk:
        par = (b + 1) & 1
        for s16 in range(8):
            for qb in range(2):
                c = rng("v", vNM + qb * 16, 16) if s16 == 0 else Sreg(par, qb)
                mf.append((f"v_mfma_f32_32x32x16_bf16 {Sreg(par, qb)}, {Fbuf(s16)}, {Qreg(s16, qb)}, {c}",
                           ("K", b + 1, s16), s16))
    if pv:
        par = (b - 1) & 1
        for f in range(8):
            t, db = vord[f]
            for qb in range(2):
                mf.append((f"v_mfma_f32_32x32x16_bf16 {Oreg(db, qb)}, {Fbuf(8 + f)}, {Preg(par, qb, t)}, {Oreg(db, qb)}",
                           ("V", b - 1, f), 8 + f))
    n = len(mf)
    sl = Slots(n)
    if qk and pv:
        for f in range(4, 8):
            sl.at(2 * (f - 4) + 1, lambda f=f: k_read(e, b + 1, f))
        for f in range(8):
            fn = lambda f=f: v_read(e, b - 1, f)
            fn.ninstr = 2
            sl.at(2 * (f + 4) + 1, fn)
        if look == "K":
            for f in range(4):
                sl.at(24 + 2 * f + 1, lambda f=f: k_read(e, b + 2, f))
    elif qk:
        for f in range(4, 8):
            sl.at(2 * (f - 4) + 1, lambda f=f: k_read(e, b + 1, f))
        if look == "K":
            for f in range(4):
                sl.at(8 + 2 * f + 1, lambda f=f: k_read(e, b + 2, f))
    else:
        if vpre:
            for f in range(4):
                v_read(e, b - 1, f, vord)
        for f in range(4, 8):
            sl.at(2 * (f - 4) + 1, lambda f=f: v_read(e, b - 1, f, vord))
        if look == "V":
            for f in range(4):
                sl.at(8 + 2 * f + 1, lambda f=f: v_read(e, b, f, vord_next))
    if OPT.get("greedy", 1) and n == 32 and sm:
        B = OPT.get("budget", 24)
        cost = [4 * sum(2 if False else 1 for _ in sl.f[i]) for i in range(n)]
        for i in range(n):
            cost[i] = 0
            for fn in sl.f[i]:
                cost[i] += 4 * getattr(fn, "ninstr", 1)
            if (i + 1) % 4 == 0:
                cost[i] += 4
        q = sm_queue(e, b)
        tot = sum(c for c, _ in q)
        ex = sorted(enumerate(fill), key=lambda t: (t[1][0], t[0]))
        ex = [(pos, fn) for _, (pos, fn) in ex]
        done = 0
        for i in range(n):
            left = B - cost[i]
            need = tot * (i + 1) / n
            while q and done < need and q[0][0] <= left + (4 if done + 12 < need else 0):
                c, fn = q.pop(0)
                sl.at(i, fn)
                left -= c
                done += c
            while ex and ex[0][0] <= i and (left >= 4 * getattr(ex[0][1], "ninstr", 1) or ex[0][0] + 3 <= i):
                pos, fn = ex.pop(0)
                sl.at(i, fn)
                left -= 4 * getattr(fn, "ninstr", 1)
            while q and q[0][0] <= left and done < need + 16:
                c, fn = q.pop(0)
                sl.at(i, fn)
                left -= c
                done += c
        for c, fn in q:
            sl.at(n, fn)
        for pos, fn in ex:
            sl.at(n, fn)
    else:
        if sm:
            ops = sm_ops(e, b)
            for (s, fn) in ops:
                sl.at(smstart + s * (n - smstart) // 32 if s < 32 else n, fn)
        for (s, fn) in fill:
            sl.at(s, fn)
    if vpre and sm:
        pass
    for i, (txt, tag, fi) in enumerate(mf):
        if i % 4 == 0:
            tags = [tag]
            if i + 2 < n:
                tags.append(mf[i + 2][1])
            e.need(ltags=tags)
        e(txt)
        for fn in sl.f[i]:
            fn()
        if side is not None:
            side.emit(e, cap - len(sl.f[i]), pos=(b, i))
    for fn in sl.f[n]:
        fn()


def gen_k1(label, stamps=False, debug=None, opt=None):
    OPT.clear()
    OPT.update(opt or {})
    STAMP[0] = None
    GSTAMP[0] = None
    e = E()
    nst = [0]

    def stamp(name, wait=True):
        if not stamps:
            return
        if OPT.get("only") and name not in OPT["only"]:
            return
        k = nst[0]
        assert k < 9
        e(f"{stamps} s[{sTS + 2 * k}:{sTS + 2 * k + 1}]   ; stamp {k} {name}")
        if wait:
            e.wait_all(vm=False)
        nst[0] += 1
    done = f"L_{label}_done"
    ipf_text = ""
    if OPT.get("ipf"):
        nb = OPT["ipf"]
        ipf_text = f"""
    L_kbase:
    s_getpc_b64 s[{sT0}:{sT0 + 1}]
    s_lshr_b32 s{sT2}, s2, 3
    s_and_b32 s{sT2}, s{sT2}, {nb - 1}
    s_lshl_b32 s{sT2}, s{sT2}, 12
    v_lshlrev_b32 v200, 4, v0
    v_add_u32 v200, s{sT2}, v200
    v_min_u32 v200, (L_kend - L_kbase - 32) & 0xfffffff0, v200
    global_load_dwordx4 v[200:203], v200, s[{sT0}:{sT0 + 1}]
    """
        e.vq.append(("ipf", 0))
    e(f"""
    s_cmp_ge_u32 s2, 256
    s_cbranch_scc1 {done}
    {ipf_text}
    s_load_dwordx2 s[4:5], s[0:1], 0
    s_load_dwordx2 s[12:13], s[0:1], 8
    s_load_dwordx2 s[16:17], s[0:1], 16
    s_load_dwordx2 s[8:9], s[0:1], 24
    s_load_dwordx2 s[20:21], s[0:1], {KA['wo']}
    s_load_dwordx2 s[28:29], s[0:1], {KA['wr']}
    s_load_dwordx2 s[24:25], s[0:1], {KA['ws']}
    s_load_dwordx2 s[{sDBG}:{sDBG + 1}], s[0:1], {KA['dbg']}
    s_load_dwordx4 s[{sFP}:{sFP + 3}], s[0:1], {KA['wg']}
    s_load_dwordx2 s[{sFP + 4}:{sFP + 5}], s[0:1], {KA['wd']}
    """)
    stamp("start", wait=False)
    e(f"""
    v_lshrrev_b32 v{vT}, 6, v0
    v_and_b32 v{vLANE}, 63, v0
    v_readfirstlane_b32 s{sW}, v{vT}
    """)
    mp = OPT.get("map", "A")
    if mp == "A":
        e(f"""
        s_and_b32 s{sG}, s2, 7
        s_lshr_b32 s{sTB}, s2, 3
        s_and_b32 s{sSK}, s{sTB}, 15
        s_and_b32 s{sKVT}, s{sTB}, 7
        """)
    elif mp == "B":
        e(f"""
        s_and_b32 s{sT0}, s2, 3
        s_lshl_b32 s{sT0}, s{sT0}, 1
        s_bfe_u32 s{sT1}, s2, {3 | (1 << 16)}
        s_or_b32 s{sG}, s{sT0}, s{sT1}
        s_bfe_u32 s{sT0}, s2, {2 | (1 << 16)}
        s_lshl_b32 s{sT0}, s{sT0}, 4
        s_lshr_b32 s{sT1}, s2, 4
        s_or_b32 s{sTB}, s{sT0}, s{sT1}
        s_and_b32 s{sSK}, s{sTB}, 7
        s_lshl_b32 s{sSK}, s{sSK}, 1
        s_and_b32 s{sKVT}, s{sTB}, 7
        """)
    elif mp == "C":
        e(f"""
        s_and_b32 s{sT0}, s2, 1
        s_lshl_b32 s{sT0}, s{sT0}, 2
        s_bfe_u32 s{sT1}, s2, {3 | (2 << 16)}
        s_or_b32 s{sG}, s{sT0}, s{sT1}
        s_bfe_u32 s{sT0}, s2, {1 | (2 << 16)}
        s_lshl_b32 s{sT0}, s{sT0}, 3
        s_lshr_b32 s{sT1}, s2, 5
        s_or_b32 s{sTB}, s{sT0}, s{sT1}
        s_and_b32 s{sSK}, s{sTB}, 7
        s_lshl_b32 s{sSK}, s{sSK}, 1
        s_and_b32 s{sKVT}, s{sTB}, 7
        """)
        if OPT.get("s4"):
            e(f"""
            s_and_b32 s{sSK}, s{sTB}, 3
            s_lshl_b32 s{sSK}, s{sSK}, 2
            """)
        if OPT.get("gskew"):
            e(f"""
            s_and_b32 s{sT0}, s{sG}, 3
            s_lshl_b32 s{sT0}, s{sT0}, 2
            s_add_u32 s{sSK}, s{sSK}, s{sT0}
            s_and_b32 s{sSK}, s{sSK}, 15
            """)
    L = vLANE
    t0, t1, t2, t3, t4, t5 = vT, vT + 1, vT + 2, vT + 3, vT + 4, vT + 5
    XV0, XV1 = 56, 57
    e(f"""
    v_and_b32 v{t2}, 15, v{L}
    v_lshrrev_b32 v{t3}, 4, v{L}
    s_lshl_b32 s{sT0}, s{sTB}, 6
    s_lshl_b32 s{sT1}, s{sW}, 4
    s_add_u32 s{sT0}, s{sT0}, s{sT1}
    v_lshrrev_b32 v{t0}, 3, v{L}
    v_add_u32 v{t0}, s{sT0}, v{t0}
    v_and_b32 v{t1}, 7, v{L}
    v_xor_b32 v{t1}, v{t1}, v{t3}
    v_lshlrev_b32 v{t1}, 4, v{t1}
    v_lshl_add_u32 v{XV0}, v{t0}, 10, v{t1}
    v_xor_b32 v{XV1}, 64, v{XV0}              ; chunk ^ 4
    v_add_u32 v{XV1}, 8192, v{XV1}            ; +8 tokens
    s_mul_i32 s{sRING}, s{sW}, {WSTR}
    s_add_u32 s{sRING}, s{sRING}, {RB}
    s_lshl_b32 s{sT3}, s{sW}, 10              ; w*1024
    s_lshl_b32 s101, s{sSK}, 6
    s_waitcnt lgkmcnt(0)
    """)
    for (dst, size) in [(S_X, 2097152), (S_K, 4194304), (S_V, 4194304), (S_WQ, 4194304),
                        (S_WO, 4194304), (S_WR, 1024), (S_WS, 0x10000000)]:
        e(f"""
        s_mov_b32 s{dst + 2}, {size}
        s_mov_b32 s{dst + 3}, 0x20000
        """)
    stamp("kernarg", wait=True)
    def xdma(u):
        for hb in range(2):
            e(f"s_add_u32 m0, s{sT3}, {(2 * u + hb) * 4096}")
            e("s_nop 0")
            e.vm(f"buffer_load_dwordx4 v{XV0 + hb}, s[{S_X}:{S_X + 3}], s101 offen lds", ("x", u, hb))
        e(f"s_add_u32 s101, s101, 128")
        e(f"s_and_b32 s101, s101, 1023")

    def wrdma():
        e(f"""
        s_lshl_b32 s{sT0}, s{sSK}, 2
        v_add_u32 v58, s{sT0}, v{L}
        v_and_b32 v58, 63, v58
        v_lshlrev_b32 v58, 4, v58
        s_add_u32 m0, s{sRING}, {2 * SLOT + 4096}
        s_nop 0
        """)
        e.vm(f"buffer_load_dwordx4 v58, s[{S_WR}:{S_WR + 3}], 0 offen lds", ("wr", 0))
    NU0 = OPT.get("nu0", 6)
    for u in range(NU0):
        xdma(u)
    e(f"""
    s_lshl_b32 s{sT0}, s{sG}, 2
    s_add_u32 s{sT0}, s{sT0}, s{sW}
    s_lshl_b32 s{sT0}, s{sT0}, 8            ; head*256
    v_lshlrev_b32 v{t4}, 1, v{t3}
    v_xor_b32 v{t4}, v{t4}, v{t2}
    v_lshlrev_b32 v{t5}, 13, v{t3}           ; rr*8192
    v_add_u32 v{t5}, s{sT0}, v{t5}
    v_lshl_add_u32 v{vWQ}, v{t4}, 4, v{t5}
    v_add_u32 v{vWQ + 1}, {32768 - 1024}, v{vWQ}
    v_xor_b32 v{t4}, 8, v{t4}
    v_lshl_add_u32 v{vWQ + 2}, v{t4}, 4, v{t5}
    v_add_u32 v{vWQ + 2}, {2 * (32768 - 1024)}, v{vWQ + 2}
    v_add_u32 v{vWQ + 3}, {32768 - 1024}, v{vWQ + 2}
    s_lshl_b32 s{sWQO}, s{sSK}, 18
    """)
    wq_pre = []
    for p in range(3):
        for h in range(2):
            fl = half_dma(e, 1, p, h, ("W", p, h))
            for i in range(4):
                grp = []
                if i == 0:
                    grp += [fl[0], lambda: e("s_nop 0")]
                grp.append(fl[1 + i])
                if i == 3:
                    grp.append(fl[5])
                wq_pre.append(grp)
    if OPT.get("early_dma", 0):
        for grp in wq_pre[:OPT["early_dma"]]:
            for fn in grp:
                fn()
        wq_pre = wq_pre[OPT["early_dma"]:]


    r_, c_ = 60, 61
    A0, A1, A2, A3, A4, A5 = 128, 129, 130, 131, 132, 133
    e(f"""
    v_bfe_u32 v{A0}, v{L}, 2, 2              ; r
    v_and_b32 v{A1}, 3, v{L}                 ; c
    v_lshrrev_b32 v{A2}, 4, v{L}             ; q4
    v_and_b32 v{A3}, 1, v{A2}
    v_lshl_or_b32 v{A3}, v{A3}, 2, v{A0}     ; phi
    v_lshlrev_b32 v{A3}, 1, v{A3}            ; f
    v_lshrrev_b32 v{A4}, 1, v{A1}
    v_xor_b32 v{A3}, v{A3}, v{A4}            ; chunk
    v_lshlrev_b32 v{A3}, 4, v{A3}
    v_and_b32 v{A4}, 1, v{A1}
    v_lshl_or_b32 v{A3}, v{A4}, 3, v{A3}     ; + (c&1)*8
    v_lshl_add_u32 v{A4}, v{A2}, 3, v{A0}    ; row
    v_lshl_add_u32 v{A3}, v{A4}, 8, v{A3}
    v_add_u32 v{vAA}, s{sRING}, v{A3}
    """)
    for dt in range(1, 8):
        e(f"v_xor_b32 v{vAA + dt}, {32 * dt}, v{vAA}")
    e(f"""
    v_and_b32 v{A3}, 1, v{A2}
    v_lshl_or_b32 v{A4}, v{A3}, 2, v{A0}     ; 4(q4&1) + r
    v_lshrrev_b32 v{A3}, 1, v{A4}            ; psi
    v_lshrrev_b32 v{A5}, 1, v{A2}
    v_lshl_or_b32 v{A4}, v{A5}, 4, v{A4}     ; row
    v_lshlrev_b32 v{A3}, 1, v{A3}
    v_lshrrev_b32 v{A5}, 1, v{A1}
    v_xor_b32 v{A3}, v{A3}, v{A5}            ; chunk
    v_lshlrev_b32 v{A3}, 4, v{A3}
    v_and_b32 v{A5}, 1, v{A1}
    v_lshl_or_b32 v{A3}, v{A5}, 3, v{A3}
    v_lshl_add_u32 v{A3}, v{A4}, 7, v{A3}
    v_add_u32 v{vAB}, s{sRING}, v{A3}
    """)
    for dt in range(1, 4):
        e(f"v_xor_b32 v{vAB + dt}, {32 * dt}, v{vAB}")
    e(f"""
    v_lshlrev_b32 v{vBR}, 4, v{L}            ; B read: X + l*16
    v_lshrrev_b32 v{A3}, 3, v{L}             ; row8
    v_lshrrev_b32 v{A4}, 1, v{A3}
    v_and_b32 v{A4}, 3, v{A4}
    v_lshlrev_b32 v{A4}, 1, v{A4}
    v_and_b32 v{A5}, 7, v{L}
    v_xor_b32 v{A4}, v{A4}, v{A5}
    v_lshlrev_b32 v{A4}, 4, v{A4}
    v_lshl_add_u32 v{A4}, v{A3}, 10, v{A4}
    s_lshl_b32 s{sT0}, s{sW}, 7
    v_add_u32 v{vWO}, s{sT0}, v{A4}
    v_add_u32 v{vWO + 1}, 7168, v{vWO}
    v_add_u32 v{vWO + 2}, {2 * 7168}, v{vWO}
    v_add_u32 v{vWO + 3}, {3 * 7168}, v{vWO}
    v_and_b32 v{A3}, 15, v{L}
    s_lshl_b32 s{sWOO}, s{sSK}, 15
    v_xor_b32 v{A4}, v{A2}, v{A3}            ; (l&15)^rr
    v_lshlrev_b32 v{A5}, 8, v{A2}
    v_lshl_add_u32 v{vKDM}, v{A4}, 4, v{A5}
    v_xor_b32 v{vKDM + 1}, 64, v{vKDM}
    v_xor_b32 v{vKDM + 2}, 128, v{vKDM}
    v_xor_b32 v{vKDM + 3}, 192, v{vKDM}
    v_lshlrev_b32 v{A4}, 2, v{A2}
    v_xor_b32 v{A4}, v{A4}, v{A3}
    v_lshl_add_u32 v{vVDM}, v{A4}, 4, v{A5}
    v_lshrrev_b32 v{A4}, 5, v{L}             ; h
    v_xor_b32 v{A4}, v{A4}, v{A3}
    v_lshlrev_b32 v{A4}, 4, v{A4}
    v_lshl_add_u32 v{A4}, v{A3}, 8, v{A4}
    v_and_b32 v{A5}, 1, v{A2}
    v_mul_u32_u24 v{A5}, {WSTR}, v{A5}
    v_add_u32 v{A4}, v{A4}, v{A5}
    v_add_u32 v{vKR}, {RB + 1 * SLOT}, v{A4}
    """)
    for s16 in range(1, 8):
        e(f"v_xor_b32 v{vKR + s16}, {32 * s16}, v{vKR}")
    e(f"""
    v_and_b32 v{A4}, 1, v{A2}
    v_lshlrev_b32 v{A4}, 1, v{A4}
    v_lshrrev_b32 v{A5}, 1, v{A1}
    v_or_b32 v{A4}, v{A4}, v{A5}
    v_lshlrev_b32 v{A5}, 2, v{A0}
    v_xor_b32 v{A4}, v{A4}, v{A5}
    v_lshlrev_b32 v{A4}, 4, v{A4}
    v_and_b32 v{A5}, 1, v{A1}
    v_lshl_or_b32 v{A4}, v{A5}, 3, v{A4}
    v_lshrrev_b32 v{A5}, 5, v{L}
    v_lshl_add_u32 v{A5}, v{A5}, 2, v{A0}    ; 4h + r
    v_lshl_add_u32 v{A4}, v{A5}, 8, v{A4}
    v_add_u32 v{vVR}, {RB + 4096 + 1 * SLOT}, v{A4}
    """)
    for db in range(1, 4):
        e(f"v_xor_b32 v{vVR + db}, {64 * db}, v{vVR}")
    e(f"""
    """)
    for u in range(NU0, 8):
        xdma(u)
    wrdma()
    if OPT.get("tlb"):
        T = OPT["tlb"]
        e(f"""
        v_lshlrev_b32 v58, 21, v{L}
        s_lshl_b32 s{sT0}, s{sTB}, 16
        v_add_u32 v58, s{sT0}, v58
        v_cmp_gt_u32 vcc, 9, v{L}
        v_mov_b32 v59, 0x7ffffff0
        s_nop 0
        v_cndmask_b32 v58, v59, v58, vcc
        """)
        e.vm(f"buffer_load_dword a96, v58, s[{S_WS}:{S_WS + 3}], 0 offen", ("tlb", 0))
        if "o" in T and not stamps:
            e(f"""
            s_load_dwordx2 s[88:89], s[0:1], {KA['out']}
            s_mov_b32 s90, 2097152
            s_mov_b32 s91, 0x20000
            s_lshl_b32 s{sT0}, s{sTB}, 16
            v_lshlrev_b32 v58, 10, v{L}
            v_add_u32 v58, s{sT0}, v58
            s_waitcnt lgkmcnt(0)
            """)
            e.vm(f"buffer_load_dword a97, v58, s[88:91], 0 offen", ("tlb", 4))
        if "w" in T:
            e(f"""
            v_lshlrev_b32 v58, 16, v{L}
            """)
            e.vm(f"buffer_load_dword a97, v58, s[{S_WO}:{S_WO + 3}], 0 offen", ("tlb", 1))
            e.vm(f"buffer_load_dword a98, v58, s[{S_K}:{S_K + 3}], 0 offen", ("tlb", 2))
            e.vm(f"buffer_load_dword a99, v58, s[{S_V}:{S_V + 3}], 0 offen", ("tlb", 3))
    e(f"""
    v_lshlrev_b32 v{vOW}, 4, v{A3}
    v_lshrrev_b32 v{A4}, 5, v{L}
    v_lshl_add_u32 v{vOW}, v{A4}, 8, v{vOW}
    v_and_b32 v{A4}, 1, v{A2}
    v_lshl_add_u32 v{vOW}, v{A4}, 10, v{vOW}
    """)
    e(f"""
    s_lshl_b32 s{sT0}, s{sG}, 5
    s_add_u32 s{sT0}, s{sT0}, s{sTB}
    s_lshl_b32 s{sT0}, s{sT0}, 3
    s_add_u32 s{sT0}, s{sT0}, s{sW}
    s_lshl_b32 s{sT0}, s{sT0}, 13
    v_lshlrev_b32 v{vPS}, 4, v{L}
    v_add_u32 v{vPS}, s{sT0}, v{vPS}
    s_lshl_b32 s{sKVB}, s{sG}, 19
    s_lshl_b32 s{sT0}, s{sW}, 12
    s_add_u32 s{sKVB}, s{sKVB}, s{sT0}
    s_add_u32 s{sKVB}, s{sKVB}, {1536 * 256}
    s_add_u32 s{S_K}, s{S_K}, s{sKVB}
    s_addc_u32 s{S_K + 1}, s{S_K + 1}, 0
    s_add_u32 s{S_V}, s{S_V}, s{sKVB}
    s_addc_u32 s{S_V + 1}, s{S_V + 1}, 0
    s_sub_u32 s{S_K + 2}, {131072}, s{sT0}
    s_mov_b32 s{S_V + 2}, s{S_K + 2}
    s_lshl_b32 s{sT0}, s{sG}, 19
    s_add_u32 s{S_WO}, s{S_WO}, s{sT0}
    s_addc_u32 s{S_WO + 1}, s{S_WO + 1}, 0
    s_mov_b32 s{S_WO + 2}, 524288
    s_lshl_b32 s{sKO}, s{sKVT}, 14
    s_mov_b32 s{sVO}, s{sKO}
    v_cmp_eq_u32 s[{sMASK}:{sMASK + 1}], 1, v{A1}
    v_cmp_eq_u32 s[{sMASK + 2}:{sMASK + 3}], 2, v{A1}
    v_cmp_eq_u32 s[{sMASK + 4}:{sMASK + 5}], 3, v{A1}
    v_cmp_eq_u32 s[98:99], v{A2}, v{A0}
    """)
    e(f"v_mov_b32 v{A5}, 0x3f803f80")
    for i in range(4):
        e(f"v_accvgpr_write_b32 a{64 + i}, v{A5}")
    e(f"s_mov_b32 s100, 0xffff0000")
    e("s_nop 0")
    SUM, GRM = 68, 72
    e(f"""
    v_and_b32 v58, 15, v{L}                  ; tok16
    v_lshrrev_b32 v59, 4, v{L}               ; q4
    v_bfe_u32 v60, v58, 1, 3                 ; swz
    v_xor_b32 v59, v59, v60
    v_lshlrev_b32 v59, 4, v59
    v_and_b32 v60, 7, v58
    v_lshl_add_u32 v59, v60, 7, v59
    v_lshrrev_b32 v60, 3, v58
    v_lshl_add_u32 v59, v60, 12, v59
    v_add_u32 v62, s{sT3}, v59
    v_xor_b32 v63, 64, v62
    """)

    for i in range(192, 256):
        e(f"v_accvgpr_write_b32 a{i}, 0")

    def stat_frag(p):
        e.need(ltags=[("xr", p)])
        xf = rng("v", vQ + 4 * p, 4)
        c1 = "0" if p == 0 else rng("a", SUM, 4)
        c2 = "0" if p == 0 else rng("a", GRM, 4)
        e(f"v_mfma_f32_16x16x32_bf16 {rng('a', SUM, 4)}, a[64:67], {xf}, {c1}")
        e(f"v_mfma_f32_16x16x32_bf16 {rng('a', GRM, 4)}, {xf}, {xf}, {c2}")
        for i in range(4):
            src = vQ + 4 * p + i
            dst = 128 + 8 * p + 2 * i
            e(f"v_lshlrev_b32 v{dst}, 16, v{src}")
            e(f"v_and_b32 v{dst + 1}, s100, v{src}")

    for u in range(8):
        e.need(vtags=[("x", u, 1)])
        for par in range(2):
            e.lds(f"ds_read_b128 {rng('v', vQ + 4 * (2 * u + par), 4)}, v{62 + par} offset:{u * 8192}", ("xr", 2 * u + par))
        for k in range(2):
            if wq_pre and u >= OPT.get("dma_from", 0):
                for fn in wq_pre.pop(0):
                    fn()
        if u > 0:
            stat_frag(2 * u - 2)
            stat_frag(2 * u - 1)
    e.need(vtags=[("wr", 0)])
    e(f"""
    v_lshrrev_b32 v58, 4, v{L}
    v_lshlrev_b32 v58, 4, v58
    v_add_u32 v58, s{sRING}, v58
    """)
    for p in range(16):
        e.lds(f"ds_read_b128 {rng('a', 128 + 4 * p, 4)}, v58 offset:{2 * SLOT + 4096 + p * 64}", ("wrf", p))
    stat_frag(14)
    stat_frag(15)
    e.nop(6)
    if not OPT.get("tailstamps") and not OPT.get("p3stamps"):
        stamp("x15_stats")
    s1, s2_, u0, u1, u2, u3 = 58, 59, 60, 61, 62, 63
    e(f"""
    v_accvgpr_read_b32 v{s1}, a{SUM}
    v_accvgpr_read_b32 v{u0}, a{GRM}
    v_accvgpr_read_b32 v{u1}, a{GRM + 1}
    v_accvgpr_read_b32 v{u2}, a{GRM + 2}
    v_accvgpr_read_b32 v{u3}, a{GRM + 3}
    v_cndmask_b32 v{u0}, v{u0}, v{u1}, s[{sMASK}:{sMASK + 1}]
    v_cndmask_b32 v{u0}, v{u0}, v{u2}, s[{sMASK + 2}:{sMASK + 3}]
    v_cndmask_b32 v{u0}, v{u0}, v{u3}, s[{sMASK + 4}:{sMASK + 5}]
    v_cndmask_b32 v{u0}, 0, v{u0}, s[98:99]
    v_mov_b32 v{u1}, v{u0}
    s_nop 1
    v_permlane32_swap_b32 v{u0}, v{u1}
    s_nop 0
    v_add_f32 v{u0}, v{u0}, v{u1}
    v_mov_b32 v{u1}, v{u0}
    s_nop 1
    v_permlane16_swap_b32 v{u0}, v{u1}
    s_nop 0
    v_add_f32 v{s2_}, v{u0}, v{u1}
    v_mul_f32 v{s1}, {hex(f2u(1.0 / 512))}, v{s1}     ; mean
    v_mul_f32 v{s2_}, {hex(f2u(1.0 / 512))}, v{s2_}
    v_fma_f32 v{s2_}, -v{s1}, v{s1}, v{s2_}      ; var
    v_max_f32 v{s2_}, 0, v{s2_}
    v_cvt_pk_bf16_f32 v{u0}, v{s1}, v{s2_}
    v_and_b32 v{u1}, s100, v{u0}
    v_add_f32 v{u1}, {hex(f2u(1e-5))}, v{u1}
    v_cvt_pk_bf16_f32 v{u1}, v{u1}, v{u1}
    v_and_b32 v{u1}, s100, v{u1}
    v_sqrt_f32 v{u1}, v{u1}
    v_lshlrev_b32 v{s1}, 16, v{u0}             ; mean_b f32
    v_cvt_pk_bf16_f32 v{u1}, v{u1}, v{u1}
    v_and_b32 v{u2}, s100, v{u1}                ; sd_b f32
    v_rcp_f32 v{u3}, v{u2}
    v_and_b32 v{u0}, 0xffff, v{u0}
    v_or_b32 v31, v{u0}, v{u2}
    v_mul_f32 v{u3}, {hex(f2u(C_SCALE))}, v{u3}     ; rsc
    v_mul_f32 v{u2}, v{s1}, v{u3}
    v_sub_f32 v{u2}, 0, v{u2}
    """)
    e(f"""
    v_mov_b32 v60, v{u3}
    v_mov_b32 v61, v{u3}
    v_mov_b32 v63, v{u2}
    """)
    e(f"""
    s_lshl_b32 s{sT0}, s{sW}, 10
    v_add_u32 v{s1}, s{sT0}, v{vBR}
    """)
    for p in range(16):
        for i in range(4):
            src = 128 + 8 * p + 2 * i
            e(f"v_pk_fma_f32 v[{src}:{src + 1}], v[{src}:{src + 1}], v[60:61], v[62:63]")
        for i in range(4):
            src = 128 + 8 * p + 2 * i
            e(f"v_cvt_pk_bf16_f32 v{vQ + 4 * p + i}, v{src}, v{src + 1}")
        e.lds(f"ds_write_b128 v{s1}, {rng('v', vQ + 4 * p, 4)} offset:{p * 4096}", ("xw", p))
        if wq_pre and p % OPT.get("dma_norm", 2) == 0 and not OPT.get("dma_late"):
            if len(wq_pre) <= 4:
                e.need(ltags=[("wrf", 15)])
            for fn in wq_pre.pop(0):
                fn()
    e.need(ltags=[("wrf", 15)])
    while wq_pre:
        for fn in wq_pre.pop(0):
            fn()
    e.need(ltags=[("xw", 15)])
    e("s_barrier")
    if not OPT.get("tailstamps") and not OPT.get("p3stamps"):
        stamp("ln_done")
    gemm_pre(e, 1)
    for p in range(16):
        c = "0" if p == 0 else "a[76:79]"
        e(f"v_mfma_f32_16x16x32_bf16 a[76:79], {rng('a', 128 + 4 * p, 4)}, {rng('v', vQ + 4 * p, 4)}, {c}")
    e.nop(8)
    e(f"""
    v_accvgpr_read_b32 v58, a76
    v_mul_f32 v58, {hex(f2u(1.0 / C_SCALE))}, v58
    v_cvt_pk_bf16_f32 v58, v58, v58
    v_and_b32 v59, s100, v58
    v_ashrrev_i32 v58, 31, v59
    v_or_b32 v58, 0x80000000, v58
    v_xor_b32 v59, v59, v58                  ; monotone map
    s_lshl_b32 s{sT0}, s{sTB}, 6
    s_lshl_b32 s{sT1}, s{sW}, 4
    s_add_u32 s{sT0}, s{sT0}, s{sT1}
    s_sub_u32 s{sT0}, 2047, s{sT0}
    v_and_b32 v58, 15, v{vLANE}
    v_sub_u32 v58, s{sT0}, v58               ; 2047 - token
    v_and_or_b32 v59, v59, s100, v58
    """)

    def lines(txt):
        return [t.strip() for t in txt.strip().split("\n") if t.strip()]

    st13 = lines(f"""
    s_add_u32 s{sGA}, s{S_WS}, {WS_R} | s_addc_u32 s{sGA + 1}, s{S_WS + 1}, 0
    s_mov_b32 s{sGA + 2}, 8192
    s_mov_b32 s{sGA + 3}, 0x20000
    s_add_u32 s{sGB}, s{S_WS}, {WS_STAT} | s_addc_u32 s{sGB + 1}, s{S_WS + 1}, 0
    s_mov_b32 s{sGB + 2}, 8192
    s_mov_b32 s{sGB + 3}, 0x20000
    s_lshl_b32 s{sT2}, s{sTB}, 6
    s_lshl_b32 s{sT1}, s{sW}, 4
    s_add_u32 s{sT2}, s{sT2}, s{sT1}
    v_add_u32 v58, s{sT2}, v{vLANE}
    v_lshlrev_b32 v58, 2, v58
    v_cmp_gt_u32 vcc, 16, v{vLANE}
    s_cmp_eq_u32 s{sG}, 0 | s_cselect_b64 s[{sMASK}:{sMASK + 1}], -1, 0
    v_mov_b32 v60, 0x7ffffff0
    s_and_b64 vcc, vcc, s[{sMASK}:{sMASK + 1}]
    v_cndmask_b32 v58, v60, v58, vcc
    """)
    st13 = [(x, None) for x in st13]
    st13.append((f"buffer_store_dword v59, v58, s[{sGA}:{sGA + 3}], 0 offen sc1", ("st", 0)))
    st13.append((f"buffer_store_dword v31, v58, s[{sGB}:{sGB + 3}], 0 offen sc1", ("st", 1)))
    if OPT.get("fused"):
        st13 += [(x, None) for x in lines(f"""
        s_lshl_b32 s{sT2}, s{sTB}, 3
        s_add_u32 s{sT2}, s{sT2}, s{sG}
        s_lshl_b32 s{sT2}, s{sT2}, 2
        s_add_u32 s{sT2}, s{sT2}, {WS_FLG}
        s_cmp_eq_u32 s{sW}, 0 | s_cselect_b32 s{sT2}, s{sT2}, 0x7fff0000
        v_lshlrev_b32 v58, 10, v{vLANE}
        v_add_u32 v58, s{sT2}, v58
        v_mov_b32 v60, 0x7fff0000
        v_cmp_gt_u32 vcc, 9, v{vLANE}
        v_mov_b32 v61, 0
        s_nop 0
        v_cndmask_b32 v58, v60, v58, vcc
        """)]
        st13.append((f"buffer_store_dword v61, v58, s[{S_WS}:{S_WS + 3}], 0 offen sc1", ("st", 2)))
    st14 = [f"v_mov_b32 v{vL + i}, 0" for i in range(4)]
    for i in range(4):
        st14 += [f"v_mov_b32 v{vGA + i}, v{vKDM + i}", f"v_mov_b32 v{vGB + i}, v{vVDM}"]
    st14 += lines(f"""
    s_mov_b32 s{sPASS}, 0
    v_mov_b32 v31, v{vKR}
    v_mov_b32 v63, v{vVR}
    s_min_u32 s{sSL}, s2, 223
    s_lshl_b32 s{sT2}, s{sW}, 7
    v_add_u32 v3, s{sT2}, v{vLANE}
    v_mul_u32_u24 v3, 3584, v3
    s_lshl_b32 s{sT2}, s{sSL}, 4
    v_add_u32 v3, s{sT2}, v3
    v_lshrrev_b32 v4, 4, v{vLANE}
    v_lshlrev_b32 v4, 10, v4
    v_and_b32 v2, 15, v{vLANE}
    v_lshl_add_u32 v4, v2, 4, v4
    s_lshl_b32 s{sT2}, s{sSL}, 13
    s_lshl_b32 s{sT1}, s{sW}, 8
    s_add_u32 s{sT2}, s{sT2}, s{sT1}
    v_add_u32 v4, s{sT2}, v4
    """)

    def emit_item(x, tag):
        def f():
            for part in x.split(" | "):
                if tag is not None:
                    e.vm(part, tag)
                else:
                    e(part)
        return f

    def tail1(p):
        f = []

        def guard(pp):
            return lambda: e.need(ltags=[("A", pp + 1, 7)])
        if p == 12:
            f += [(21, guard(12))] + place(kv_dma(e, "K", 1, ("KV", 0, "K")), 21, 3)
        if p == 13:
            f += place(kv_dma(e, "V", 1, ("KV", 0, "V")), 1, 4)
            f += [(21, guard(13))] + place(kv_dma(e, "K", 2, ("KV", 1, "K")), 21, 3)
        if p == 14:
            f += place(kv_dma(e, "V", 2, ("KV", 1, "V")), 1, 4)
            f += [(21, guard(14))] + place(kv_dma(e, "K", 0, ("KV", 2, "K")), 21, 3)
        if p == 13:
            for n, (x, tag) in enumerate(st13):
                f.append((n * 31 // len(st13), emit_item(x, tag)))
        if p == 14:
            for n, x in enumerate(st14):
                f.append((n * 31 // len(st14), emit_item(x, None)))
        return f

    qside = Side()
    for dt in range(8):
        first = True
        for qb in range(2):
            R = vQ + (dt * 2 + qb) * 4
            a0 = vACC + (dt * 4 + 2 * qb) * 4
            a1 = a0 + 4
            qside.add(f"v_cvt_pk_bf16_f32 v{R}, v{a0}, v{a0 + 1}", cond=((15, 4 * dt + 8) if first else None))
            first = False
            qside.add(f"v_cvt_pk_bf16_f32 v{R + 1}, v{a0 + 2}, v{a0 + 3}")
            qside.add(f"v_cvt_pk_bf16_f32 v{R + 2}, v{a1}, v{a1 + 1}")
            qside.add(f"v_cvt_pk_bf16_f32 v{R + 3}, v{a1 + 2}, v{a1 + 3}")
        for qb in range(2):
            R = vQ + (dt * 2 + qb) * 4
            qside.add(f"v_permlane16_swap_b32 v{R}, v{R + 2}", gap=(0 if qb == 0 else 0))
            qside.add(f"v_permlane16_swap_b32 v{R + 1}, v{R + 3}", gap=(1 if qb == 1 else 0))
    if OPT.get("only"):
        def gs(name):
            lq = list(e.lq)
            stamp(name)
            if name in OPT["only"]:
                e.lq = lq
        GSTAMP[0] = gs
    gemm_main(e, 1, tail1, side=qside, side_steps=(15,))
    if not OPT.get("tailstamps") and not OPT.get("p3stamps"):
        stamp("p1_done")
    e.nop(8)
    qside.emit(e, 0, flush=True)
    for i in range(32):
        e(f"v_mov_b32 v{vNM + i}, 0")
    if OPT.get("only"):
        stamp("q_conv")
    e(f"L_p2_start:")
    e(f"""
    s_mov_b32 s{sGA}, s{S_K}
    s_mov_b32 s{sGA + 1}, s{S_K + 1}
    s_mov_b32 s{sGA + 2}, s{S_K + 2}
    s_mov_b32 s{sGB}, s{S_V}
    s_mov_b32 s{sGB + 1}, s{S_V + 1}
    s_mov_b32 s{sGB + 2}, s{S_V + 2}
    s_mov_b32 s{sKSL}, {2 * SLOT}
    s_mov_b32 s{sVSL}, {1 * SLOT}
    s_mov_b32 s{sTRIP}, 1
    s_add_u32 s{sGAM}, s{sRING}, {1 * SLOT}
    s_add_u32 s{sGBM}, s{sRING}, 4096
    s_lshl_b32 s{sGAO}, s{sW}, 13
    s_mov_b32 s{sMASK + 2}, {64 * 3584}
    s_mov_b32 s{S_WQ + 2}, {512 * 1792 * 2}
    """)
    e.wait_all()
    e("s_barrier")
    for f in range(4):
        k_read(e, 0, f)
    e(f"""
    s_or_b32 s{sT0}, {'0' if OPT.get("fused") else 's%d' % sG}, s{sW}
    s_or_b32 s{sT0}, s{sT0}, s{sPASS}
    s_cmp_lg_u32 s{sT0}, 0
    s_cbranch_scc1 L_nopub
    """)
    if not OPT.get("xnopublish"):
        e(f"""
        v_mov_b32 v58, 0
        v_mov_b32 v59, 1
        v_cmp_eq_u32 vcc, 0, v{vLANE}
        s_nop 0
        s_and_saveexec_b64 s[{sMASK}:{sMASK + 1}], vcc
        global_atomic_add v58, v59, s[{sDBG}:{sDBG + 1}] sc1
        s_mov_b64 exec, s[{sMASK}:{sMASK + 1}]
        """)
    e("L_nopub:")
    p2_iter(e, -1, qk=True, sm=False, pv=False, look="K",
            fill=[(i // 4, lambda i=i: e(f"v_accvgpr_write_b32 a{128 + i}, 0")) for i in range(64)])
    upd = []
    for i in range(8):
        upd.append((i // 4 * 8 + i % 4 if i < 4 else 9 + i, lambda i=i: e(f"v_add_u32 v{vKR + i}, {SLOT}, v{vKR + i}")))
    p2_iter(e, 0, qk=True, sm=True, pv=False, look="K", fill=upd, smstart=5)

    if OPT.get("only"):
        lqs = list(e.lq)
        stamp("p2_preloop")
        e.lq = lqs
    lq0 = list(e.lq)
    loop_align(e)
    e("L_p2_loop:")
    n0 = len(e.l)
    e("s_waitcnt vmcnt(1)")
    e.vq = []
    if not OPT.get("nobar"):
        e("s_barrier")
    D64 = 64 * 3584
    fill = []

    def grp(*lines):
        f = lambda: [e(x) for x in lines]
        f.ninstr = len(lines)
        return f

    def adv2(sreg):
        f = lambda: kv_adv(e, sreg)
        f.ninstr = 2
        return f
    fill.append((0, lambda: e(f"s_mov_b32 m0, s{sGAM}")))
    for i in range(4):
        if not OPT.get("nogdma"):
          fill.append((2 + 4 * i, lambda i=i: e.vm(
            f"buffer_load_dwordx4 v{vGA + i}, s[{sGA}:{sGA + 3}], s{sKO} offen offset:{i * 1024} lds", ("G", 0))))
    fill.append((15, adv2(sKO)))
    fill.append((16, lambda: e(f"s_mov_b32 m0, s{sGBM}")))
    for i in range(4):
        if not OPT.get("nogdma"):
          fill.append((18 + 4 * i, lambda i=i: e.vm(
            f"buffer_load_dwordx4 v{vGB + i}, s[{sGB}:{sGB + 3}], s{sVO} offen offset:{i * 1024} lds", ("G", 1))))
    fill.append((30, adv2(sVO)))
    for db in range(4):
        fill.append((24 + 2 * db, lambda db=db: e(f"v_add_u32 v{vVR + db}, 49152, v{vVR + db}")))
    fill.append((4, grp(f"s_add_u32 s{sT1}, s{sKSL}, {SLOT}", f"s_cmp_eq_u32 s{sT1}, {3 * SLOT}",
                        f"s_cselect_b32 s{sT1}, 0, s{sT1}")))
    fill.append((8, grp(f"s_sub_u32 s{sKD}, s{sT1}, s{sKSL}", f"s_sub_u32 s{sVD}, s{sKSL}, s{sVSL}")))
    fill.append((12, grp(f"s_sub_u32 s{sVD}, s{sVD}, 49152", f"s_mov_b32 s{sVSL}, s{sKSL}", f"s_mov_b32 s{sKSL}, s{sT1}")))
    fill.append((20, grp(f"s_cmp_ge_u32 s{sTRIP}, 3", f"s_cselect_b32 s{S_WQ}, s{sFP + 2}, s{sFP}",
                         f"s_cselect_b32 s{S_WQ + 1}, s{sFP + 3}, s{sFP + 1}")))
    fill.append((22, grp(f"s_bitcmp0_b32 s{sTRIP}, 0", f"s_cselect_b32 s{sGBO}, s{sMASK + 2}, 0")))
    fill.append((24, grp(f"s_cmp_ge_u32 s{sTRIP}, 5", f"s_cselect_b32 s{S_WQ}, s{sFP + 4}, s{S_WQ}",
                         f"s_cselect_b32 s{S_WQ + 1}, s{sFP + 5}, s{S_WQ + 1}")))
    fill.append((26, grp(f"s_cmp_ge_u32 s{sTRIP}, 5", f"s_cselect_b32 s{sGBO}, 0, s{sGBO}",
                         f"s_cselect_b64 s[{sMASK}:{sMASK + 1}], -1, 0")))
    fill.append((28, grp(f"s_cmp_ge_u32 s{sTRIP}, 6", f"s_cselect_b32 s{sGBO}, 4096, s{sGBO}")))
    p2_iter(e, 1, fill=fill)
    fill = []
    for i in range(8):
        fill.append((8 + 2 * i if i >= 4 else 2 * i, lambda i=i: e(f"v_add_u32 v{vKR + i}, s{sKD}, v{vKR + i}")))
    for db in range(4):
        fill.append((24 + 2 * db, lambda db=db: e(f"v_add_u32 v{vVR + db}, s{sVD}, v{vVR + db}")))
    fill.append((1, lambda: e(f"v_cndmask_b32 v1, v3, v4, s[{sMASK}:{sMASK + 1}]")))
    fill.append((2, lambda: e(f"s_mov_b32 m0, s{sGAO}")))
    if not OPT.get("nocdma"):
        fill.append((4, lambda: e.vm(f"buffer_load_dwordx4 v1, s[{S_WQ}:{S_WQ + 3}], s{sGBO} offen lds", ("C", 0))))
    fill.append((6, lambda: e(f"s_add_u32 s{sGAO}, s{sGAO}, 1024")))
    fill.append((10, grp(f"s_add_u32 s{sGAM}, s{sRING}, s{sVSL}", f"s_add_u32 s{sT1}, s{sKSL}, {SLOT}")))
    fill.append((12, grp(f"s_cmp_eq_u32 s{sT1}, {3 * SLOT}", f"s_cselect_b32 s{sT1}, 0, s{sT1}",
                         f"s_add_u32 s{sGBM}, s{sRING}, s{sT1}")))
    fill.append((14, lambda: e(f"s_add_u32 s{sGBM}, s{sGBM}, 4096")))
    fill.append((28, lambda: e(f"s_add_u32 s{sTRIP}, s{sTRIP}, 1")))
    p2_iter(e, 2, fill=fill)
    e(f"""
    s_cmp_lg_u32 s{sTRIP}, 7
    s_cbranch_scc1 L_p2_noswitch
    s_mov_b32 s{sGA}, s{S_WO}
    s_mov_b32 s{sGA + 1}, s{S_WO + 1}
    s_mov_b32 s{sGA + 2}, s{S_WO + 2}
    s_mov_b32 s{sGB}, s{S_WO}
    s_mov_b32 s{sGB + 1}, s{S_WO + 1}
    s_mov_b32 s{sGB + 2}, s{S_WO + 2}
    s_mov_b32 s{sGAM}, s{sRING}
    s_add_u32 s{sGBM}, s{sRING}, 4096
    s_mov_b32 s{sKO}, s{sWOO}
    """)
    p3_adv(e)
    e(f"s_mov_b32 s{sVO}, s{sWOO}")
    p3_adv(e)
    for i in range(4):
        e(f"v_mov_b32 v{vGA + i}, v{vWO + i}")
        e(f"v_mov_b32 v{vGB + i}, v{vWO + i}")
    e("L_p2_noswitch:")
    e(f"s_cmp_lg_u32 s{sTRIP}, 8")
    e("s_cbranch_scc1 L_p2_loop")
    body = e.l[n0:]
    probs = check_hazards(body + body, "p2 loop x2")
    assert not probs or any(k.startswith("no") for k in OPT), "\n".join(probs[:10])
    sh = lambda q, d: [(t[0], t[1] + d) + tuple(t[2:]) if t else t for t in q]
    assert sh(lq0, 2) == e.lq, (lq0, e.lq)
    e.lq = sh(e.lq, 12)
    if OPT.get("only"):
        stamp("p2_loopend")
    e.wait_all(lds=False)
    e(f"""
    v_bfe_u32 v58, v{vLANE}, 2, 2               ; r
    v_lshrrev_b32 v59, 4, v{vLANE}              ; q4
    v_lshl_add_u32 v60, v59, 3, v58             ; 8 q4 + r
    v_lshlrev_b32 v60, 4, v60
    v_and_b32 v61, 1, v{vLANE}
    v_lshl_add_u32 v60, v61, 3, v60             ; + (c&1)*8
    v_bfe_u32 v61, v{vLANE}, 1, 1
    v_lshl_add_u32 v60, v61, 11, v60            ; + U
    s_lshl_b32 s{sT0}, s{sW}, 13
    v_add_u32 v60, s{sT0}, v60
    v_and_b32 v59, 1, v59
    v_lshl_add_u32 v58, v59, 2, v58             ; row 0..7
    v_lshlrev_b32 v58, 8, v58
    v_and_b32 v59, 3, v{vLANE}
    v_lshl_add_u32 v58, v59, 3, v58             ; + c*8
    v_add_u32 v58, s{sT0}, v58
    """)
    for i in range(4):
        for rd in range(2):
            e.lds(f"ds_read_b64_tr_b16 {rng('a', 96 + 4 * i + 2 * rd, 2)}, v60 offset:{i * 512 + rd * 64}", ("fa", i))
    for t in range(8):
        e.lds(f"ds_read_b64_tr_b16 {rng('a', 112 + 2 * t, 2)}, v58 offset:{4096 + t * 32}", ("da", t))
    e.wait_all(vm=False)
    e("s_barrier")
    e.vq = [("W", 0, 0)] * 0
    fill = place(p3_dma(e, 2), 0, 2) + place(p3_dma(e, 3), 8, 2)
    for db in range(4):
        fill.append((7 + db, lambda db=db: e(f"v_add_u32 v{vVR + db}, 49152, v{vVR + db}")))
    e.lq = [t for t in e.lq]
    if OPT.get("ipf2"):
        e(f"""
        s_getpc_b64 s[{sT0}:{sT0 + 1}]
        L_ipf2:
        s_lshr_b32 s{sT2}, s2, 3
        s_and_b32 s{sT2}, s{sT2}, {OPT["ipf2"] - 1}
        s_lshl_b32 s{sT2}, s{sT2}, 12
        s_lshl_b32 s{sT3}, s{sW}, 10
        s_add_u32 s{sT2}, s{sT2}, s{sT3}
        v_lshlrev_b32 v62, 4, v{vLANE}
        v_add_u32 v62, s{sT2}, v62
        v_min_u32 v62, (L_kend - L_ipf2 - 32) & 0xfffffff0, v62
        """)
        e.vm(f"global_load_dwordx4 a[36:39], v62, s[{sT0}:{sT0 + 1}]", ("ipf", 2))
    e(f"v_mov_b32 v62, 0")
    e.vm(f"global_load_dword v2, v62, s[{sDBG}:{sDBG + 1}] sc1", ("cnt", 0))
    p2_iter(e, 15, qk=False, sm=True, pv=True, look="V", fill=fill, vpre=True, vord_next=VORD_D)
    RL = [58, 60]
    side = Side()
    A = side.add
    A(f"v_add_f32 v{vL}, v{vL}, v{vL + 1}")
    A(f"v_add_f32 v{vL + 2}, v{vL + 2}, v{vL + 3}")
    A(f"v_mov_b32 v{vL + 1}, v{vL}")
    A(f"v_mov_b32 v{vL + 3}, v{vL + 2}")
    A(f"v_permlane32_swap_b32 v{vL}, v{vL + 1}", gap=2)
    A(f"v_permlane32_swap_b32 v{vL + 2}, v{vL + 3}", gap=1)
    A(f"v_add_f32 v{vL}, v{vL}, v{vL + 1}", gap=1)
    A(f"v_add_f32 v{vL + 2}, v{vL + 2}, v{vL + 3}")
    A(f"v_rcp_f32 v{RL[0]}, v{vL}")
    A(f"v_rcp_f32 v{RL[1]}, v{vL + 2}")
    A(f"s_mov_b32 s{sT2}, {hex(f2u(2.0 ** -40))}")
    A(f"s_mov_b32 s{sT3}, {hex(f2u(2.0 ** 40))}")
    A(f"v_cmp_lt_f32 s[{sMASK}:{sMASK + 1}], s{sT2}, v{vL}")
    A(f"v_cmp_gt_f32 s[{sMASK + 2}:{sMASK + 3}], s{sT3}, v{vL}")
    A(f"v_cmp_lt_f32 s[{sMASK + 4}:{sMASK + 5}], s{sT2}, v{vL + 2}")
    A(f"v_cmp_gt_f32 vcc, s{sT3}, v{vL + 2}")
    A(f"s_and_b64 s[{sMASK}:{sMASK + 1}], s[{sMASK}:{sMASK + 1}], s[{sMASK + 2}:{sMASK + 3}]", gap=2)
    A(f"s_and_b64 vcc, vcc, s[{sMASK + 4}:{sMASK + 5}]")
    A(f"s_and_b64 s[{sMASK}:{sMASK + 1}], s[{sMASK}:{sMASK + 1}], vcc")
    for db in range(4):
        wa = 61 + (db & 1)
        A(lambda db=db: [e(x) for x in (f"s_lshl_b32 s{sT1}, s{sW}, 2", f"s_add_u32 s{sT1}, s{sT1}, {db}",
                                        f"s_sub_u32 s{sT1}, s{sT1}, s{sSK}")])
        A(lambda: [e(x) for x in (f"s_and_b32 s{sT1}, s{sT1}, 15", f"s_lshl_b32 s{sT1}, s{sT1}, 12")])
        A(f"v_add_u32 v{wa}, s{sT1}, v{vOW}")
        for qb in range(2):
            src = aO + (db * 2 + qb) * 16
            T = 128 + ((db * 2 + qb) % 4) * 16 if False else 128 + (db * 2 + qb) * 16
            for i in range(16):
                A(f"v_accvgpr_read_b32 v{T + i}, a{src + i}", cond=((16, min(4 * db + 7, 99)) if (i == 0 and qb == 0) else None))
            for i in range(8):
                A(f"v_pk_mul_f32 v[{T + 2 * i}:{T + 2 * i + 1}], v[{T + 2 * i}:{T + 2 * i + 1}], v[{RL[qb]}:{RL[qb] + 1}] op_sel_hi:[1,0]")
            for i in range(8):
                A(f"v_cvt_pk_bf16_f32 v{T + i}, v{T + 2 * i}, v{T + 2 * i + 1}")
            for jp in range(2):
                A(lambda T=T, jp=jp, qb=qb, db=db, wa=wa: e.lds(
                    f"ds_write_b128 v{wa}, {rng('v', T + 4 * jp, 4)} offset:{qb * 2048 + jp * 512}", ("ow", db, qb, jp)))
    p2_iter(e, 16, qk=False, sm=False, pv=True, look=None, vord=VORD_D, side=side, cap=OPT.get("normcap", 5))
    if not OPT.get("tailstamps"):
        stamp("p2_done")
    e.nop(OPT.get("normnop", 10))
    side.emit(e, 0, flush=True)
    e(f"""
    s_cmp_eq_u64 s[{sMASK}:{sMASK + 1}], -1
    s_cselect_b32 s{sT2}, 0, 1
    s_cmp_eq_u32 s{sPASS}, 0
    s_cselect_b32 s{sT2}, s{sT2}, 0
    s_cmp_eq_u32 s{sT2}, 0
    s_cbranch_scc1 L_noflag
    s_lshl_b32 s{sT0}, s{sW}, 2
    s_sub_u32 s{sT0}, s{sT0}, s{sSK}
    s_and_b32 s{sT0}, s{sT0}, 15
    s_lshl_b32 s{sT0}, s{sT0}, 12
    v_mov_b32 v58, s{sT0}
    v_mov_b32 v59, -1
    ds_write_b32 v58, v59
    L_noflag:
    """)
    e.wait_all(vm=False)
    e("s_barrier")
    for w_ in range(4):
        e(f"""
        s_sub_u32 s{sT0}, {4 * w_}, s{sSK}
        s_and_b32 s{sT0}, s{sT0}, 15
        s_lshl_b32 s{sT0}, s{sT0}, 12
        v_mov_b32 v{58 + w_}, s{sT0}
        """)
    for w_ in range(4):
        e.lds(f"ds_read_b32 v{58 + w_}, v{58 + w_}", ("mk", w_))
    e(f"v_lshlrev_b32 v{vBR}, 4, v{vLANE}")
    for fn in p3_reads(e, 0, 0)[8:] + p3_reads(e, 0, 0)[:8]:
        fn()
    serial(e, p3_dma(e, 4))
    e.need(ltags=[("mk", 3)])
    e(f"""
    v_and_b32 v58, v58, v59
    v_and_b32 v60, v60, v61
    v_max_u32 v58, v58, v60
    v_max_u32 v59, v59, v61
    """)
    e.l = e.l[:-4]
    e(f"""
    v_max_u32 v58, v58, v59
    v_max_u32 v60, v60, v61
    v_max_u32 v58, v58, v60
    s_nop 0
    v_readfirstlane_b32 s{sT0}, v58
    s_nop 0
    s_cmp_eq_u32 s{sT0}, -1
    s_cbranch_scc1 L_fallback
    L_p3_start:
    """)
    e.need(vtags=[("cnt", 0)])
    e(f"""
    v_readfirstlane_b32 s{sT0}, v2
    s_lshl_b32 s{sT1}, s{sW}, 11
    v_lshlrev_b32 v62, 5, v{vLANE}
    v_add_u32 v62, s{sT1}, v62
    v_add_u32 v62, {WS_R}, v62
    s_cmp_ge_u32 s{sT0}, {256 if OPT.get("fused") else 32}
    s_cselect_b32 s{sRDY}, 1, 0
    s_mov_b32 s48, 4096
    s_mov_b32 s49, 32768
    s_mov_b32 s50, {32768 + 4096}
    """)
    e.vm(f"buffer_load_dwordx4 v[88:91], v62, s[{S_WS}:{S_WS + 3}], 0 offen sc1", ("rl", 0))
    e.vm(f"buffer_load_dwordx4 v[92:95], v62, s[{S_WS}:{S_WS + 3}], 0 offen offset:16 sc1", ("rl", 1))
    assert [t for t in e.vq if t[0] == "W"] == [("W", u) for u in range(2, 5) for _ in range(4)], e.vq
    e.vq = [("W", u) for u in range(5) for _ in range(4)]
    import moe

    def tail3(u):
        return []

    def tail3_old(u):
        f = []
        lst = {28: [(S_WQ, 80, 0), (S_WQ, 81, 1024), (S_K, 80, 2048), (S_K, 81, 3072)], 29: [(S_V, 82, 4096), (S_V, 83, 5120)]}
        if u in lst and not OPT.get("nomoe") and not OPT.get("xnofw"):
            f.append((0, lambda u=u: e.need(ltags=[("A", u, 3)])))
            for n, (srd, v, off) in enumerate(lst[u]):
                f.append((1 + 3 * n, lambda off=off: e(f"s_add_u32 m0, s{sRING}, {2 * SLOT + off}")))
                f.append((2 + 3 * n, lambda srd=srd, v=v: e.vm(
                    f"buffer_load_dwordx4 v{v}, s[{srd}:{srd + 3}], 0 offen lds", ("fw", 0))))
        return f
    side_e, side = Side(), Side()
    sp = OPT.get("stspread", 2.0)
    for n, (x, gap) in enumerate(p3_epilogue_items(e, 0, [64, 68, 72, 76])):
        k, r = n // 7, n % 7
        pos = 16 + k * sp
        side_e.add(x, gap=gap, cond=((int(pos), 2 + int((pos % 1) * 16)) if r == 0 else None))
    if not OPT.get("nomoe"):
        moe.moe_side(e, side, dict(W=sW, RING=sRING, RDY=sRDY, M=100, X=S_X, WS=S_WS))
        side.q[0] = (side.q[0][0], side.q[0][1], (OPT.get("moestart", 4) if OPT.get("p3unroll", 1) else 16, 0))
    if OPT.get("p3stamps") or OPT.get("only"):
        def st_nowait(name):
            q = list(e.lq)
            stamp(name)
        STAMP[0] = st_nowait
    p3_phase(e, tail3, [side_e, side], None)
    side_e.emit(e, 0, flush=True)
    side.emit(e, 0, flush=True)
    stamp("p3_done")
    e.nop(6)
    side = Side()
    for (x, gap) in p3_epilogue_items(e, 1, [64, 68, 72, 76, 80, 84, 88, 92]):
        side.add(x, gap=gap)
    side.emit(e, 0, flush=True)
    stamp("epi")
    doneq = f"L_{label}_fin"
    RT = dict(X=S_X, WS=S_WS, WR=S_WR, W=sW, RING=sRING, SL=sSL, RDY=sRDY, DBG=sDBG, M=100, G=sG, TB=sTB,
              T=[42, 43, 44, 45, 46, 47, 60, 61, 62, 63, 64, 65, 66, 67], done=doneq,
              spin=OPT.get("spin", 4000), fused=OPT.get("fused"), NCNT=(256 if OPT.get("fused") else 32),
              stamp=(stamp if OPT.get("tailstamps") else (lambda n: None)), opt=OPT)
    if OPT.get("fused"):
        moe.moe_tail(e, RT)
    elif not OPT.get("nomoe"):
        e(f"""
        s_cmp_ge_u32 s2, 224
        s_cbranch_scc1 {doneq}
        s_nop 1
        """)
        moe.moe_tail(e, RT)
    e(f"{doneq}:")
    stamp("end")
    if stamps and OPT.get("dbgstamps"):
        e.wait_all()
        e(f"""
        v_mov_b32 v58, 16
        v_mov_b32 v59, s{sTS + 16}
        v_mov_b32 v60, 20
        s_not_b32 s{sT0}, s{sTS}
        v_mov_b32 v61, s{sT0}
        v_cmp_eq_u32 vcc, 0, v{vLANE}
        s_nop 0
        s_and_saveexec_b64 s[{sMASK}:{sMASK + 1}], vcc
        global_atomic_umax v58, v59, s[{sDBG}:{sDBG + 1}] sc1
        global_atomic_umax v60, v61, s[{sDBG}:{sDBG + 1}] sc1
        s_or_b32 s{sT0}, s2, s{sW}
        s_cmp_lg_u32 s{sT0}, 0
        s_cbranch_scc1 L_dbg_skip
        """)
        for k in range(1, 9):
            e(f"s_sub_u32 s{sT0}, s{sTS + 2 * k}, s{sTS}")
            e(f"v_mov_b32 v59, s{sT0}")
            e(f"v_mov_b32 v58, {24 + 4 * (k - 1)}")
            e(f"global_store_dword v58, v59, s[{sDBG}:{sDBG + 1}]")
            e("s_nop 1")
        e("L_dbg_skip:")
        e(f"s_mov_b64 exec, s[{sMASK}:{sMASK + 1}]")
    elif stamps:
        e.wait_all()
        e(f"""
        s_lshl_b32 s{sT0}, s2, 2
        s_add_u32 s{sT0}, s{sT0}, s{sW}
        s_lshl_b32 s{sT0}, s{sT0}, 7
        s_add_u32 s{sT0}, s{sT0}, {WS_TS}
        v_mov_b32 v58, s{sT0}
        v_cmp_eq_u32 vcc, 0, v{vLANE}
        s_nop 0
        s_and_saveexec_b64 s[{sMASK}:{sMASK + 1}], vcc
        """)
        for i in range(0, 20, 4):
            for q in range(4):
                e(f"v_mov_b32 v{60 + q}, s{min(sTS + i + q, sTS + 17)}")
            e(f"buffer_store_dwordx4 v[60:63], v58, s[{S_WS}:{S_WS + 3}], 0 offen offset:{i * 4}")
            e("s_nop 1")
        e(f"s_mov_b64 exec, s[{sMASK}:{sMASK + 1}]")
    e(f"s_branch {done}")
    e("L_fallback:")
    e(f"""
    s_barrier
    s_lshl_b32 s{sKO}, s{sKVT}, 14
    v_mov_b32 v{vKR}, v31
    v_mov_b32 v{vL}, 0xff800000
    v_mov_b32 v{vL + 2}, 0xff800000
    v_subrev_u32 v{vKR}, {SLOT}, v{vKR}
    s_mov_b32 s{sTRIP}, 0
    """)
    for s16 in range(1, 8):
        e(f"v_xor_b32 v{vKR + s16}, {32 * s16}, v{vKR}")
    e("L_fb_loop:")
    e("s_waitcnt vmcnt(0) lgkmcnt(0)")
    e("s_barrier")
    e.vq, e.lq = [], []
    serial(e, kv_dma(e, "K", 0, ("fbk", 0)))
    e.wait_all()
    e("s_barrier")
    for kb in range(2):
        for s16 in range(8):
            e(f"ds_read_b128 {Fbuf(s16)}, v{vKR + s16} offset:{kb * 49152}")
        e("s_waitcnt lgkmcnt(0)")
        for s16 in range(8):
            for qb in range(2):
                c = "0" if s16 == 0 else Sreg(0, qb)
                e(f"v_mfma_f32_32x32x16_bf16 {Sreg(0, qb)}, {Fbuf(s16)}, {Qreg(s16, qb)}, {c}")
        e.nop(16)
        for qb in range(2):
            m = vL + 2 * qb
            for i in range(0, 16, 2):
                e(f"v_max3_f32 v{m}, v{m}, {Sreg(0, qb, i)}, {Sreg(0, qb, i + 1)}")
    e(f"""
    s_add_u32 s{sTRIP}, s{sTRIP}, 1
    s_cmp_lt_u32 s{sTRIP}, 8
    s_cbranch_scc1 L_fb_loop
    v_mov_b32 v{vL + 1}, v{vL}
    v_mov_b32 v{vL + 3}, v{vL + 2}
    s_nop 1
    v_permlane32_swap_b32 v{vL}, v{vL + 1}
    v_permlane32_swap_b32 v{vL + 2}, v{vL + 3}
    s_nop 0
    v_max_f32 v{vL}, v{vL}, v{vL + 1}
    v_max_f32 v{vL + 2}, v{vL + 2}, v{vL + 3}
    """)
    for qb in range(2):
        for i in range(16):
            e(f"v_sub_f32 v{vNM + 16 * qb + i}, 0, v{vL + 2 * qb}")
    e(f"""
    s_barrier
    s_lshl_b32 s{sKO}, s{sKVT}, 14
    s_mov_b32 s{sVO}, s{sKO}
    s_lshl_b32 s{sWOO}, s{sSK}, 15
    v_mov_b32 v{vKR}, v31
    v_mov_b32 v{vVR}, v63
    s_mov_b32 s{sPASS}, 1
    """)
    for s16 in range(1, 8):
        e(f"v_xor_b32 v{vKR + s16}, {32 * s16}, v{vKR}")
    for db in range(1, 4):
        e(f"v_xor_b32 v{vVR + db}, {64 * db}, v{vVR}")
    for (which, slot) in (("K", 1), ("V", 1), ("K", 2), ("V", 2), ("K", 0)):
        serial(e, kv_dma(e, which, slot, ("fbp", 0)))
    for i in range(4):
        e(f"v_mov_b32 v{vL + i}, 0")
        e(f"v_mov_b32 v{vGA + i}, v{vKDM + i}")
        e(f"v_mov_b32 v{vGB + i}, v{vVDM}")
    for i in range(128):
        e(f"v_accvgpr_write_b32 a{128 + i}, 0")
    e("s_branch L_p2_start")
    e(f"{done}:")
    e("s_endpgm")
    e("L_kend:")
    sp = check_scc(e.l)
    if sp:
        print("\n".join(sp))
        raise SystemExit("scc")
    probs = check_hazards(e.l, "k1")
    if probs and not any(k.startswith("no") for k in OPT):
        print("\n".join(probs[:40]))
        raise SystemExit("hazards")
    return e.text()
```

```python
from emit import E, check_hazards, check_scc
from asmlib import KA

RB = 65536
WSTR = 24576
SLOT = 8192
C_SCALE = 1.4426950408889634 * (128 ** -0.5)

WS_PART = 0
WS_R = 16 << 20
WS_STAT = WS_R + 8192
WS_H = WS_R + 65536
WS_IDX = WS_H + 32768
WS_FLG = WS_R + 32768
WS_TS = 32 << 20


def f2u(x):
    import struct
    return struct.unpack("<I", struct.pack("<f", x))[0]


S_X, S_WQ, S_K, S_V, S_WO, S_WS, S_WR = 4, 8, 12, 16, 20, 24, 28
sG, sTB, sW, sSK = 32, 33, 34, 35
sWQO, sWOO, sKO, sVO = 36, 37, 38, 39
sRING = 40
sCNT = 41
sT0, sT1, sT2, sT3 = 42, 43, 44, 45
sKSL, sVSL = 46, 47
sKD, sVD = 48, 49
sTRIP = 50
sGA = 52
sGB = 56
sGAO, sGBO = 60, 61
sGAM, sGBM = 62, 63
sMASK = 64
sPASS = 70
sKVB = 71
sKVT = 51
sDBG = 72
sSL = 98
sRDY = 99
sFP = 92
sHFD = 70
sTS = 74

vLANE = 0
vWQ = 1
vWO = 5
vKDM = 9
vVDM = 13
vAA = 14
vAB = 22
vBR = 30
vKR = 32
vVR = 40
vGA = 44
vGB = 48
vL = 52
vOW = 56
vPS = 57
vT = 58
vQ = 64
vS = 128
vP = 192
vNM = 224
vACC = 128

aA = 0
aB = 96
aF = 0
aO = 128


def rng(f, b, n):
    return f"{f}[{b}:{b + n - 1}]" if n > 1 else f"{f}{b}"


def Bset(setidx, tq):
    if setidx < 2:
        return rng("a", aB + setidx * 16 + tq * 4, 4)
    return rng("v", 64 + tq * 4, 4)


def Aset(setidx, dt):
    return rng("a", aA + setidx * 32 + dt * 4, 4)


def Ahalf(setidx, dt, rd):
    return rng("a", aA + setidx * 32 + dt * 4 + 2 * rd, 2)


def acc16(dt, tq):
    return rng("v", vACC + (dt * 4 + tq) * 4, 4)


OPT = {}
STAMP = [None]
GSTAMP = [None]
P3_STATIC = [False]
NS3 = 5


class Slots:
    def __init__(self, n):
        self.n = n
        self.f = [[] for _ in range(n + 1)]

    def at(self, i, fn):
        self.f[min(max(i, 0), self.n)].append(fn)


def loop_align(e):
    a = OPT.get("align", 0)
    if a:
        e.l.append(f".p2align {a}")
    for _ in range(OPT.get("shift", 0)):
        e("s_nop 0")


class Side:
    def __init__(self):
        self.q = []
        self.last = None

    def add(self, x, gap=0, cond=None):
        self.q.append((x, gap, cond))

    def states_since(self, e):
        if self.last is None:
            return 99
        n = 0
        for l in e.l[self.last:]:
            t = l.strip()
            if t.endswith(":") or not t:
                continue
            n += int(t.split()[1], 0) + 1 if t.startswith("s_nop") else 1
        return n

    def emit(self, e, budget, pos=None, flush=False):
        while self.q and (budget > 0 or flush):
            x, gap, cond = self.q[0]
            if cond is not None and pos is not None and pos < cond and not flush:
                return
            have = self.states_since(e)
            if have < gap:
                if not flush:
                    return
                e.nop(gap - have)
            self.q.pop(0)
            if callable(x):
                x()
            else:
                e(x)
            self.last = len(e.l)
            budget -= 1


def gemm_step(e, p, phase, opts):
    j = p % 3
    jn = (p + 1) % 3
    va = vAA if phase == 1 else vAB
    rdoff = 1024 if phase == 1 else 2048
    sl = Slots(32)
    if opts.get("next", True):
        reads = []
        for dt in range(8):
            for rd in range(2):
                reads.append((dt, rd))
        spread = OPT.get("aspread", 16)
        for n, (dt, rd) in enumerate(reads):
            def f(dt=dt, rd=rd):
                if OPT.get("noaread"):
                    return
                e.lds(f"ds_read_b64_tr_b16 {Ahalf(jn, dt, rd)}, v{va + dt} offset:{jn * SLOT + rd * rdoff}",
                      ("A", p + 1, dt))
            sl.at(n * spread // 16, f)
        for tq in range(4):
            def f(tq=tq):
                e.lds(f"ds_read_b128 {Bset(jn, tq)}, v{vBR} offset:{opts['boff_next'] + tq * 1024}", ("B", p + 1, tq))
            sl.at(spread + tq, f)
    for pos, fn in opts.get("fill", []):
        sl.at(pos, fn)
    if opts.get("next", True):
        e.need(vtags=opts.get("vneed"))
    for n in range(32):
        dt, tq = n // 4, n % 4
        need = [("A", p, dt), ("B", p, tq)] + ([("B", p, 3), ("A", p, 7)] if n == 0 else [])
        e.need(ltags=need)
        c = "0" if opts.get("first") else acc16(dt, tq)
        e(f"v_mfma_f32_16x16x32_bf16 {acc16(dt, tq)}, {Aset(j, dt)}, {Bset(j, tq)}, {c}")
        for fn in sl.f[n]:
            fn()
        side = opts.get("side")
        if side is not None:
            side.emit(e, opts.get("cap", 2) - len(sl.f[n]), pos=(p, n))
    for fn in sl.f[32]:
        fn()


def wdma(e, phase, i, tag):
    if OPT.get("nodma") and tag[1] > 3:
        e.vq.append(tag)
        return
    if phase == 1:
        e.vm(f"buffer_load_dwordx4 v{vWQ + i}, s[{S_WQ}:{S_WQ + 3}], s{sWQO} offen offset:{i * 1024} lds", tag)
    else:
        e.vm(f"buffer_load_dwordx4 v{vWO + i}, s[{S_WO}:{S_WO + 3}], s{sWOO} offen offset:{i * 1024} lds", tag)


def wdma_adv(e, phase):
    if phase == 1:
        e(f"s_add_u32 s{sWQO}, s{sWQO}, {16 * 8192}")
        e(f"s_and_b32 s{sWQO}, s{sWQO}, {512 * 8192 - 1}")
    else:
        e(f"s_add_u32 s{sT0}, s{sWOO}, {16 * 1024}")
        e(f"s_and_b32 s{sT0}, s{sT0}, {512 * 1024 - 1}")
        e(f"s_and_b32 s{sWOO}, s{sWOO}, {~(512 * 1024 - 1) & 0xffffffff}")
        e(f"s_or_b32 s{sWOO}, s{sWOO}, s{sT0}")


def half_dma(e, phase, slot, half, tag):
    def m0():
        e(f"s_add_u32 m0, s{sRING}, {slot * SLOT + half * 4096}")
    out = [m0]
    for i in range(4):
        out.append(lambda i=i: wdma(e, phase, i, tag))
    out.append(lambda: wdma_adv(e, phase))
    return out


def serial(e, fl):
    fl[0]()
    e("s_nop 0")
    for fn in fl[1:]:
        fn()


def place(fl, start, stride):
    res = [(start, fl[0])]
    for i in range(4):
        res.append((start + 1 + i * stride, fl[1 + i]))
    res.append((start + 1 + 3 * stride, fl[5]))
    return res


def kv_dma(e, which, tile_slot, tag):
    out = []
    if which == "K":
        out.append(lambda: e(f"s_add_u32 m0, s{sRING}, {tile_slot * SLOT}"))
        for i in range(4):
            out.append(lambda i=i: e.vm(
                f"buffer_load_dwordx4 v{vKDM + i}, s[{S_K}:{S_K + 3}], s{sKO} offen offset:{i * 1024} lds", tag))
        out.append(lambda: kv_adv(e, sKO))
    else:
        out.append(lambda: e(f"s_add_u32 m0, s{sRING}, {tile_slot * SLOT + 4096}"))
        for i in range(4):
            out.append(lambda i=i: e.vm(
                f"buffer_load_dwordx4 v{vVDM}, s[{S_V}:{S_V + 3}], s{sVO} offen offset:{i * 1024} lds", tag))
        out.append(lambda: kv_adv(e, sVO))
    return out


def kv_adv(e, sreg):
    e(f"s_add_u32 s{sreg}, s{sreg}, 16384")
    e(f"s_and_b32 s{sreg}, s{sreg}, {8 * 16384 - 1}")


def gemm_pre(e, phase):
    va = vAA if phase == 1 else vAB
    rdoff = 1024 if phase == 1 else 2048
    e.need(vtags=[("W", 0, 0), ("W", 0, 1)])
    for tq in range(4):
        e.lds(f"ds_read_b128 {Bset(0, tq)}, v{vBR} offset:{tq * 1024}", ("B", 0, tq))
    for dt in range(8):
        for rd in range(2):
            e.lds(f"ds_read_b64_tr_b16 {Ahalf(0, dt, rd)}, v{va + dt} offset:{rd * rdoff}", ("A", 0, dt))


def gemm_main(e, phase, tail_fill, side=None, side_steps=range(10, 16)):
    e.need(ltags=[("A", 0, 7)])
    serial(e, half_dma(e, phase, 0, 0, ("W", 3, 0)))

    def step_opts(p, boff_next):
        fill = []
        sp = OPT.get("aspread", 16)
        if p + 3 <= 15:
            fl = half_dma(e, phase, p % 3, 1, ("W", p + 3, 1))
            fill += [(0, fl[0])] + [(2 + 4 * i, fl[1 + i]) for i in range(4)] + [(sp + 4, fl[5])]
        if p + 4 <= 15:
            fl = half_dma(e, phase, (p + 1) % 3, 0, ("W", p + 4, 0))

            def guard(p=p):
                e.need(ltags=[("A", p + 1, 7)])
            fill += [(sp + 5, guard), (sp + 5, fl[0])] + [(min(sp + 6 + 3 * i, 31), fl[1 + i]) for i in range(4)] + [(32, fl[5])]
        return dict(first=(p == 0), next=(p < 15), boff_next=boff_next, fill=fill,
                    vneed=[("W", p + 1, 0), ("W", p + 1, 1)])

    if GSTAMP[0]:
        GSTAMP[0]("p1_pre")
    o = step_opts(0, 1 * 4096)
    gemm_step(e, 0, phase, o)
    if GSTAMP[0]:
        GSTAMP[0]("p1_s0")
    lab = f"L_g{phase}_loop"
    e(f"s_mov_b32 s{sCNT}, 3")
    e(f"v_add_u32 v{vBR}, {1 * 4096}, v{vBR}")
    lq0, vq0 = list(e.lq), list(e.vq)
    loop_align(e)
    e(f"{lab}:")
    n0 = len(e.l)
    for u in range(3):
        p = 1 + u
        o = step_opts(p, (u + 1) * 4096)
        if u == 2:
            o["fill"] = o["fill"] + [(24, lambda: e(f"v_add_u32 v{vBR}, {3 * 4096}, v{vBR}")),
                                     (32, lambda: e(f"s_sub_u32 s{sCNT}, s{sCNT}, 1")),
                                     (32, lambda: e(f"s_cmp_lg_u32 s{sCNT}, 0"))]
        gemm_step(e, p, phase, o)
    e(f"s_cbranch_scc1 {lab}")
    body = e.l[n0:]
    probs = check_hazards(body + body, f"gemm{phase} loop x2")
    assert not probs or any(k.startswith("no") for k in OPT), "\n".join(probs[:10])
    sh = lambda q, d: [(t[0], t[1] + d) + tuple(t[2:]) if t else t for t in q]
    assert sh(lq0, 3) == e.lq or OPT.get('noaread'), (lq0, e.lq)
    assert sh(vq0, 3) == e.vq, (vq0, e.vq)
    e.lq, e.vq = sh(e.lq, 6), sh(e.vq, 6)
    for p in range(10, 16):
        if GSTAMP[0] and p in (10, 13):
            GSTAMP[0](f"p1_s{p}")
        o = step_opts(p, (p - 10 + 1) * 4096)
        o["fill"] = o["fill"] + tail_fill(p)
        o["side"] = side if p in side_steps else None
        o["cap"] = OPT.get("sidecap", 2)
        gemm_step(e, p, phase, o)


def acc3(hf, nt, tq):
    return rng("v", vACC + 64 * hf + (nt * 4 + tq) * 4, 4)


def A3(st, nt, rd=None):
    b = st * 16 + nt * 4
    return rng("a", b, 4) if rd is None else rng("a", b + 2 * rd, 2)


def B3(st, tq):
    return rng("a", 48 + st * 16 + tq * 4, 4)


def p3_dma(e, u):
    out = [lambda: e(f"s_add_u32 m0, s{sRING}, {(u % NS3) * 4096}")]
    for i in range(4):
        out.append(lambda i=i: e.vm(
            f"buffer_load_dwordx4 v{vWO + i}, s[{S_WO}:{S_WO + 3}], s{sWOO} offen offset:{i * 1024} lds", ("W", u)))

    def adv():
        p3_adv(e)
        if u == 9 and not OPT.get("p3unroll", 1):
            e(f"s_add_u32 s{sWOO}, s{sWOO}, s{sHFD}")
    out.append(adv)
    return out


def p3_adv(e):
    e(f"s_add_u32 s{sWOO}, s{sWOO}, {32 * 1024}")
    e(f"s_and_b32 s{sWOO}, s{sWOO}, {512 * 1024 - 1}")


def p3_reads(e, u, boff):
    st = u % 3
    r = []
    for nt in range(4):
        for rd in range(2):
            r.append(lambda nt=nt, rd=rd: e.lds(
                f"ds_read_b64_tr_b16 {A3(st, nt, rd)}, v{vAB + nt} offset:{(u % NS3) * 4096 + rd * 1024}", ("A", u, nt)))
    for tq in range(4):
        r.append(lambda tq=tq: e.lds(f"ds_read_b128 {B3(st, tq)}, v{vBR} offset:{boff + tq * 1024}", ("B", u, tq)))
    return r


def p3_step(e, u, boff_next, fill=(), side=None, cap=2):
    hf, st = u >> 4, u % 3
    sl = Slots(16)
    nxt = u < 31
    if nxt:
        rd = p3_reads(e, u + 1, boff_next)
        for n in range(8):
            sl.at(n, rd[n])
        for tq in range(4):
            sl.at(8 + tq, rd[8 + tq])
    if u + NS3 <= 31:
        fl = p3_dma(e, u + NS3)
        sl.at(0, fl[0])
        for i, pos in enumerate((2, 6, 12, 14)):
            sl.at(pos, fl[1 + i])
        sl.at(15, fl[5])
    for pos, fn in fill:
        sl.at(pos, fn)
    if nxt:
        e.need(vtags=[("W", u + 1)])
    for n in range(16):
        nt, tq = n // 4, n % 4
        e.need(ltags=[("A", u, nt), ("B", u, tq)] + ([("B", u, 3), ("A", u, 3)] if n == 0 else []))
        c = "0" if (u & 15) == 0 else acc3(hf, nt, tq)
        e(f"v_mfma_f32_16x16x32_bf16 {acc3(hf, nt, tq)}, {A3(st, nt)}, {B3(st, tq)}, {c}")
        for fn in sl.f[n]:
            fn()
        if side is not None:
            left = cap - len(sl.f[n])
            for sd in side:
                n0 = len(sd.q)
                sd.emit(e, left, pos=(u, n))
                left -= n0 - len(sd.q)
    for fn in sl.f[16]:
        fn()


def p3_epilogue_items(e, hf, regs):
    items = []
    k = 0
    for nt in range(4):
        for qb in range(2):
            R = regs[k % len(regs)]
            k += 1
            a0 = vACC + 64 * hf + (nt * 4 + 2 * qb) * 4
            a1 = a0 + 4
            items.append((f"v_cvt_pk_bf16_f32 v{R}, v{a0}, v{a0 + 1}", 2))
            items.append((f"v_cvt_pk_bf16_f32 v{R + 1}, v{a0 + 2}, v{a0 + 3}", 0))
            items.append((f"v_cvt_pk_bf16_f32 v{R + 2}, v{a1}, v{a1 + 1}", 0))
            items.append((f"v_cvt_pk_bf16_f32 v{R + 3}, v{a1 + 2}, v{a1 + 3}", 0))
            items.append((f"v_permlane16_swap_b32 v{R}, v{R + 2}", 2))
            items.append((f"v_permlane16_swap_b32 v{R + 1}, v{R + 3}", 1))
            off = (nt & 1) * 2048 + qb * 1024
            so = {(0, 0): "0", (0, 1): "s48", (1, 0): "s49", (1, 1): "s50"}[(hf, nt >> 1)]
            items.append((lambda R=R, off=off, nt=nt, qb=qb, so=so: e.vm(
                f"buffer_store_dwordx4 {rng('v', R, 4)}, v{vPS}, s[{S_WS}:{S_WS + 3}], {so} offen offset:{off} "
                + OPT.get("pstore", "sc1"), ("ps", hf, nt, qb)), 0))
    return items


def p3_loop_half0(e):
    p3_step(e, 0, 4096)
    e(f"s_mov_b32 s{sCNT}, 2")
    e(f"s_mov_b32 s{sHFD}, 0")
    e(f"v_add_u32 v{vBR}, {1 * 4096}, v{vBR}")
    lq0, vq0 = list(e.lq), list(e.vq)
    e("L_p3_loop:")
    n0 = len(e.l)
    for k in range(6):
        u = 1 + k
        fill = []
        if k == 5:
            fill = [(13, lambda: e(f"v_add_u32 v{vBR}, {6 * 4096}, v{vBR}")),
                    (15, lambda: e(f"s_mov_b32 s{sHFD}, 512")),
                    (15, lambda: e(f"s_sub_u32 s{sCNT}, s{sCNT}, 1")),
                    (15, lambda: e(f"s_cmp_lg_u32 s{sCNT}, 0"))]
        p3_step(e, u, (k + 1) * 4096, fill=fill)
    e("s_cbranch_scc1 L_p3_loop")
    body = e.l[n0:]
    probs = check_hazards(body + body, "p3 loop x2")
    assert not probs, "\n".join(probs[:10])
    sh = lambda q, d: [(t[0], t[1] + d) + tuple(t[2:]) if t else t for t in q]
    assert sh(lq0, 6) == e.lq, (lq0, e.lq)
    assert sh(vq0, 6) == e.vq, (vq0, e.vq)
    e.lq, e.vq = sh(e.lq, 6), sh(e.vq, 6)
    for u in range(13, 16):
        boff = (u - 13 + 1) * 4096 if u < 15 else -13 * 4096
        if u == 15:
            fill = [(0, lambda: e(f"v_subrev_u32 v{vBR}, {13 * 4096}, v{vBR}"))]
            p3_step(e, u, 0, fill=fill)
        else:
            p3_step(e, u, boff)


def p3_phase(e, tail_fill, side0, side1):
    if STAMP[0]:
        STAMP[0]("p3_start")
    if OPT.get("p3unroll", 1):
        cap = OPT.get("sidecap", 2)
        for u in range(16):
            fill = []
            if u == 15 - NS3:
                fill = [(16, lambda: e(f"s_add_u32 s{sWOO}, s{sWOO}, 512"))]
            P3_STATIC[0] = True
            p3_step(e, u, ((u + 1) & 15) * 4096, fill=fill, side=side0, cap=cap)
    else:
        p3_loop_half0(e)
    for u in range(16, 32):
        p = u & 15
        if STAMP[0] and u in (16, 24):
            STAMP[0](f"p3_u{u}")
        p3_step(e, u, ((p + 1) & 15) * 4096, fill=tail_fill(u), side=side0, cap=OPT.get("sidecap", 2))


def Sreg(par, qb, i=None):
    b = vS + par * 32 + qb * 16
    return rng("v", b, 16) if i is None else f"v{b + i}"


def Preg(par, qb, t):
    return rng("v", vP + par * 16 + qb * 8 + t * 4, 4)


def Qreg(s16, qb):
    return rng("v", vQ + (s16 * 2 + qb) * 4, 4)


def Oreg(db, qb):
    return rng("a", aO + (db * 2 + qb) * 16, 16)


def Fbuf(n, half=None):
    b = aF + (n % 8) * 4
    return rng("a", b, 4) if half is None else rng("a", b + 2 * half, 2)


def k_read(e, b, s16):
    if OPT.get("nokvread"):
        return
    e.lds(f"ds_read_b128 {Fbuf(s16)}, v{vKR + s16} offset:{(b & 1) * 49152}", ("K", b, s16))


def v_read(e, b, f, order=None):
    t, db = (order or VORD_T)[f]
    if OPT.get("nokvread"):
        return
    for rd in range(2):
        e.lds(f"ds_read_b64_tr_b16 {Fbuf(8 + f, rd)}, v{vVR + db} offset:{t * WSTR + rd * 2048}", ("V", b, f))


def sm_ops(e, b):
    par = b & 1
    ops = []
    S = lambda x: Sreg(par, x // 16, x % 16)
    exp = lambda x: (lambda: e(f"v_exp_f32 {S(x)}, {S(x)}") if not OPT.get("noexp") else None)
    add = lambda x: (lambda: e(f"v_add_f32 v{vL + (x // 16) * 2 + (x & 1)}, v{vL + (x // 16) * 2 + (x & 1)}, {S(x)}"))
    cvt = lambda k: (lambda: e(f"v_cvt_pk_bf16_f32 v{vP + par * 16 + k}, {S(2 * k)}, {S(2 * k + 1)}"))
    if OPT.get("nosm"):
        return []
    for k in range(16):
        ops.append((2 * k, exp(2 * k)))
        if k > 0:
            ops.append((2 * k, add(2 * k - 2)))
            ops.append((2 * k, cvt(k - 1)))
        ops.append((2 * k + 1, exp(2 * k + 1)))
        if k > 0:
            ops.append((2 * k + 1, add(2 * k - 1)))
    ops.append((32, add(30)))
    ops.append((32, add(31)))
    ops.append((32, cvt(15)))
    return ops


def sm_queue(e, b):
    par = b & 1
    S = lambda x: Sreg(par, x // 16, x % 16)
    exp = lambda x: (8, lambda: e(f"v_exp_f32 {S(x)}, {S(x)}"))
    add = lambda x: (4, lambda: e(f"v_add_f32 v{vL + (x // 16) * 2 + (x & 1)}, v{vL + (x // 16) * 2 + (x & 1)}, {S(x)}"))
    cvt = lambda k: (4, lambda: e(f"v_cvt_pk_bf16_f32 v{vP + par * 16 + k}, {S(2 * k)}, {S(2 * k + 1)}"))
    q = []
    for k in range(32):
        q.append(exp(k))
        if k >= 1:
            q.append(add(k - 1))
        if k >= 2 and k % 2 == 0:
            q.append(cvt(k // 2 - 1))
    q.append(add(31))
    q.append(cvt(15))
    return q


VORD_T = [(f // 4, f % 4) for f in range(8)]
VORD_D = [(f % 2, f // 2) for f in range(8)]


def p2_iter(e, b, qk=True, sm=True, pv=True, look="K", fill=(), vpre=False, smstart=0, vord=VORD_T, vord_next=VORD_T,
            side=None, cap=5):
    mf = []
    if qk:
        par = (b + 1) & 1
        for s16 in range(8):
            for qb in range(2):
                c = rng("v", vNM + qb * 16, 16) if s16 == 0 else Sreg(par, qb)
                mf.append((f"v_mfma_f32_32x32x16_bf16 {Sreg(par, qb)}, {Fbuf(s16)}, {Qreg(s16, qb)}, {c}",
                           ("K", b + 1, s16), s16))
    if pv:
        par = (b - 1) & 1
        for f in range(8):
            t, db = vord[f]
            for qb in range(2):
                mf.append((f"v_mfma_f32_32x32x16_bf16 {Oreg(db, qb)}, {Fbuf(8 + f)}, {Preg(par, qb, t)}, {Oreg(db, qb)}",
                           ("V", b - 1, f), 8 + f))
    n = len(mf)
    sl = Slots(n)
    if qk and pv:
        for f in range(4, 8):
            sl.at(2 * (f - 4) + 1, lambda f=f: k_read(e, b + 1, f))
        for f in range(8):
            fn = lambda f=f: v_read(e, b - 1, f)
            fn.ninstr = 2
            sl.at(2 * (f + 4) + 1, fn)
        if look == "K":
            for f in range(4):
                sl.at(24 + 2 * f + 1, lambda f=f: k_read(e, b + 2, f))
    elif qk:
        for f in range(4, 8):
            sl.at(2 * (f - 4) + 1, lambda f=f: k_read(e, b + 1, f))
        if look == "K":
            for f in range(4):
                sl.at(8 + 2 * f + 1, lambda f=f: k_read(e, b + 2, f))
    else:
        if vpre:
            for f in range(4):
                v_read(e, b - 1, f, vord)
        for f in range(4, 8):
            sl.at(2 * (f - 4) + 1, lambda f=f: v_read(e, b - 1, f, vord))
        if look == "V":
            for f in range(4):
                sl.at(8 + 2 * f + 1, lambda f=f: v_read(e, b, f, vord_next))
    if OPT.get("greedy", 1) and n == 32 and sm:
        B = OPT.get("budget", 24)
        cost = [4 * sum(2 if False else 1 for _ in sl.f[i]) for i in range(n)]
        for i in range(n):
            cost[i] = 0
            for fn in sl.f[i]:
                cost[i] += 4 * getattr(fn, "ninstr", 1)
            if (i + 1) % 4 == 0:
                cost[i] += 4
        q = sm_queue(e, b)
        tot = sum(c for c, _ in q)
        ex = sorted(enumerate(fill), key=lambda t: (t[1][0], t[0]))
        ex = [(pos, fn) for _, (pos, fn) in ex]
        done = 0
        for i in range(n):
            left = B - cost[i]
            need = tot * (i + 1) / n
            while q and done < need and q[0][0] <= left + (4 if done + 12 < need else 0):
                c, fn = q.pop(0)
                sl.at(i, fn)
                left -= c
                done += c
            while ex and ex[0][0] <= i and (left >= 4 * getattr(ex[0][1], "ninstr", 1) or ex[0][0] + 3 <= i):
                pos, fn = ex.pop(0)
                sl.at(i, fn)
                left -= 4 * getattr(fn, "ninstr", 1)
            while q and q[0][0] <= left and done < need + 16:
                c, fn = q.pop(0)
                sl.at(i, fn)
                left -= c
                done += c
        for c, fn in q:
            sl.at(n, fn)
        for pos, fn in ex:
            sl.at(n, fn)
    else:
        if sm:
            ops = sm_ops(e, b)
            for (s, fn) in ops:
                sl.at(smstart + s * (n - smstart) // 32 if s < 32 else n, fn)
        for (s, fn) in fill:
            sl.at(s, fn)
    if vpre and sm:
        pass
    for i, (txt, tag, fi) in enumerate(mf):
        if i % 4 == 0:
            tags = [tag]
            if i + 2 < n:
                tags.append(mf[i + 2][1])
            e.need(ltags=tags)
        e(txt)
        for fn in sl.f[i]:
            fn()
        if side is not None:
            side.emit(e, cap - len(sl.f[i]), pos=(b, i))
    for fn in sl.f[n]:
        fn()


def gen_k1(label, stamps=False, debug=None, opt=None):
    OPT.clear()
    OPT.update(opt or {})
    STAMP[0] = None
    GSTAMP[0] = None
    e = E()
    nst = [0]

    def stamp(name, wait=True):
        if not stamps:
            return
        if OPT.get("only") and name not in OPT["only"]:
            return
        k = nst[0]
        assert k < 9
        e(f"{stamps} s[{sTS + 2 * k}:{sTS + 2 * k + 1}]   ; stamp {k} {name}")
        if wait:
            e.wait_all(vm=False)
        nst[0] += 1
    done = f"L_{label}_done"
    ipf_text = ""
    if OPT.get("ipf"):
        nb = OPT["ipf"]
        ipf_text = f"""
    L_kbase:
    s_getpc_b64 s[{sT0}:{sT0 + 1}]
    s_lshr_b32 s{sT2}, s2, 3
    s_and_b32 s{sT2}, s{sT2}, {nb - 1}
    s_lshl_b32 s{sT2}, s{sT2}, 12
    v_lshlrev_b32 v200, 4, v0
    v_add_u32 v200, s{sT2}, v200
    v_min_u32 v200, (L_kend - L_kbase - 32) & 0xfffffff0, v200
    global_load_dwordx4 v[200:203], v200, s[{sT0}:{sT0 + 1}]
    """
        e.vq.append(("ipf", 0))
    e(f"""
    s_cmp_ge_u32 s2, 256
    s_cbranch_scc1 {done}
    {ipf_text}
    s_load_dwordx2 s[4:5], s[0:1], 0
    s_load_dwordx2 s[12:13], s[0:1], 8
    s_load_dwordx2 s[16:17], s[0:1], 16
    s_load_dwordx2 s[8:9], s[0:1], 24
    s_load_dwordx2 s[20:21], s[0:1], {KA['wo']}
    s_load_dwordx2 s[28:29], s[0:1], {KA['wr']}
    s_load_dwordx2 s[24:25], s[0:1], {KA['ws']}
    s_load_dwordx2 s[{sDBG}:{sDBG + 1}], s[0:1], {KA['dbg']}
    s_load_dwordx4 s[{sFP}:{sFP + 3}], s[0:1], {KA['wg']}
    s_load_dwordx2 s[{sFP + 4}:{sFP + 5}], s[0:1], {KA['wd']}
    """)
    stamp("start", wait=False)
    e(f"""
    v_lshrrev_b32 v{vT}, 6, v0
    v_and_b32 v{vLANE}, 63, v0
    v_readfirstlane_b32 s{sW}, v{vT}
    """)
    mp = OPT.get("map", "A")
    if mp == "A":
        e(f"""
        s_and_b32 s{sG}, s2, 7
        s_lshr_b32 s{sTB}, s2, 3
        s_and_b32 s{sSK}, s{sTB}, 15
        s_and_b32 s{sKVT}, s{sTB}, 7
        """)
    elif mp == "B":
        e(f"""
        s_and_b32 s{sT0}, s2, 3
        s_lshl_b32 s{sT0}, s{sT0}, 1
        s_bfe_u32 s{sT1}, s2, {3 | (1 << 16)}
        s_or_b32 s{sG}, s{sT0}, s{sT1}
        s_bfe_u32 s{sT0}, s2, {2 | (1 << 16)}
        s_lshl_b32 s{sT0}, s{sT0}, 4
        s_lshr_b32 s{sT1}, s2, 4
        s_or_b32 s{sTB}, s{sT0}, s{sT1}
        s_and_b32 s{sSK}, s{sTB}, 7
        s_lshl_b32 s{sSK}, s{sSK}, 1
        s_and_b32 s{sKVT}, s{sTB}, 7
        """)
    elif mp == "C":
        e(f"""
        s_and_b32 s{sT0}, s2, 1
        s_lshl_b32 s{sT0}, s{sT0}, 2
        s_bfe_u32 s{sT1}, s2, {3 | (2 << 16)}
        s_or_b32 s{sG}, s{sT0}, s{sT1}
        s_bfe_u32 s{sT0}, s2, {1 | (2 << 16)}
        s_lshl_b32 s{sT0}, s{sT0}, 3
        s_lshr_b32 s{sT1}, s2, 5
        s_or_b32 s{sTB}, s{sT0}, s{sT1}
        s_and_b32 s{sSK}, s{sTB}, 7
        s_lshl_b32 s{sSK}, s{sSK}, 1
        s_and_b32 s{sKVT}, s{sTB}, 7
        """)
        if OPT.get("s4"):
            e(f"""
            s_and_b32 s{sSK}, s{sTB}, 3
            s_lshl_b32 s{sSK}, s{sSK}, 2
            """)
        if OPT.get("gskew"):
            e(f"""
            s_and_b32 s{sT0}, s{sG}, 3
            s_lshl_b32 s{sT0}, s{sT0}, 2
            s_add_u32 s{sSK}, s{sSK}, s{sT0}
            s_and_b32 s{sSK}, s{sSK}, 15
            """)
    L = vLANE
    t0, t1, t2, t3, t4, t5 = vT, vT + 1, vT + 2, vT + 3, vT + 4, vT + 5
    XV0, XV1 = 56, 57
    e(f"""
    v_and_b32 v{t2}, 15, v{L}
    v_lshrrev_b32 v{t3}, 4, v{L}
    s_lshl_b32 s{sT0}, s{sTB}, 6
    s_lshl_b32 s{sT1}, s{sW}, 4
    s_add_u32 s{sT0}, s{sT0}, s{sT1}
    v_lshrrev_b32 v{t0}, 3, v{L}
    v_add_u32 v{t0}, s{sT0}, v{t0}
    v_and_b32 v{t1}, 7, v{L}
    v_xor_b32 v{t1}, v{t1}, v{t3}
    v_lshlrev_b32 v{t1}, 4, v{t1}
    v_lshl_add_u32 v{XV0}, v{t0}, 10, v{t1}
    v_xor_b32 v{XV1}, 64, v{XV0}              ; chunk ^ 4
    v_add_u32 v{XV1}, 8192, v{XV1}            ; +8 tokens
    s_mul_i32 s{sRING}, s{sW}, {WSTR}
    s_add_u32 s{sRING}, s{sRING}, {RB}
    s_lshl_b32 s{sT3}, s{sW}, 10              ; w*1024
    s_lshl_b32 s101, s{sSK}, 6
    s_waitcnt lgkmcnt(0)
    """)
    for (dst, size) in [(S_X, 2097152), (S_K, 4194304), (S_V, 4194304), (S_WQ, 4194304),
                        (S_WO, 4194304), (S_WR, 1024), (S_WS, 0x10000000)]:
        e(f"""
        s_mov_b32 s{dst + 2}, {size}
        s_mov_b32 s{dst + 3}, 0x20000
        """)
    stamp("kernarg", wait=True)
    def xdma(u):
        for hb in range(2):
            e(f"s_add_u32 m0, s{sT3}, {(2 * u + hb) * 4096}")
            e("s_nop 0")
            e.vm(f"buffer_load_dwordx4 v{XV0 + hb}, s[{S_X}:{S_X + 3}], s101 offen lds", ("x", u, hb))
        e(f"s_add_u32 s101, s101, 128")
        e(f"s_and_b32 s101, s101, 1023")

    def wrdma():
        e(f"""
        s_lshl_b32 s{sT0}, s{sSK}, 2
        v_add_u32 v58, s{sT0}, v{L}
        v_and_b32 v58, 63, v58
        v_lshlrev_b32 v58, 4, v58
        s_add_u32 m0, s{sRING}, {2 * SLOT + 4096}
        s_nop 0
        """)
        e.vm(f"buffer_load_dwordx4 v58, s[{S_WR}:{S_WR + 3}], 0 offen lds", ("wr", 0))
    NU0 = OPT.get("nu0", 6)
    for u in range(NU0):
        xdma(u)
    e(f"""
    s_lshl_b32 s{sT0}, s{sG}, 2
    s_add_u32 s{sT0}, s{sT0}, s{sW}
    s_lshl_b32 s{sT0}, s{sT0}, 8            ; head*256
    v_lshlrev_b32 v{t4}, 1, v{t3}
    v_xor_b32 v{t4}, v{t4}, v{t2}
    v_lshlrev_b32 v{t5}, 13, v{t3}           ; rr*8192
    v_add_u32 v{t5}, s{sT0}, v{t5}
    v_lshl_add_u32 v{vWQ}, v{t4}, 4, v{t5}
    v_add_u32 v{vWQ + 1}, {32768 - 1024}, v{vWQ}
    v_xor_b32 v{t4}, 8, v{t4}
    v_lshl_add_u32 v{vWQ + 2}, v{t4}, 4, v{t5}
    v_add_u32 v{vWQ + 2}, {2 * (32768 - 1024)}, v{vWQ + 2}
    v_add_u32 v{vWQ + 3}, {32768 - 1024}, v{vWQ + 2}
    s_lshl_b32 s{sWQO}, s{sSK}, 18
    """)
    wq_pre = []
    for p in range(3):
        for h in range(2):
            fl = half_dma(e, 1, p, h, ("W", p, h))
            for i in range(4):
                grp = []
                if i == 0:
                    grp += [fl[0], lambda: e("s_nop 0")]
                grp.append(fl[1 + i])
                if i == 3:
                    grp.append(fl[5])
                wq_pre.append(grp)
    if OPT.get("early_dma", 0):
        for grp in wq_pre[:OPT["early_dma"]]:
            for fn in grp:
                fn()
        wq_pre = wq_pre[OPT["early_dma"]:]


    r_, c_ = 60, 61
    A0, A1, A2, A3, A4, A5 = 128, 129, 130, 131, 132, 133
    e(f"""
    v_bfe_u32 v{A0}, v{L}, 2, 2              ; r
    v_and_b32 v{A1}, 3, v{L}                 ; c
    v_lshrrev_b32 v{A2}, 4, v{L}             ; q4
    v_and_b32 v{A3}, 1, v{A2}
    v_lshl_or_b32 v{A3}, v{A3}, 2, v{A0}     ; phi
    v_lshlrev_b32 v{A3}, 1, v{A3}            ; f
    v_lshrrev_b32 v{A4}, 1, v{A1}
    v_xor_b32 v{A3}, v{A3}, v{A4}            ; chunk
    v_lshlrev_b32 v{A3}, 4, v{A3}
    v_and_b32 v{A4}, 1, v{A1}
    v_lshl_or_b32 v{A3}, v{A4}, 3, v{A3}     ; + (c&1)*8
    v_lshl_add_u32 v{A4}, v{A2}, 3, v{A0}    ; row
    v_lshl_add_u32 v{A3}, v{A4}, 8, v{A3}
    v_add_u32 v{vAA}, s{sRING}, v{A3}
    """)
    for dt in range(1, 8):
        e(f"v_xor_b32 v{vAA + dt}, {32 * dt}, v{vAA}")
    e(f"""
    v_and_b32 v{A3}, 1, v{A2}
    v_lshl_or_b32 v{A4}, v{A3}, 2, v{A0}     ; 4(q4&1) + r
    v_lshrrev_b32 v{A3}, 1, v{A4}            ; psi
    v_lshrrev_b32 v{A5}, 1, v{A2}
    v_lshl_or_b32 v{A4}, v{A5}, 4, v{A4}     ; row
    v_lshlrev_b32 v{A3}, 1, v{A3}
    v_lshrrev_b32 v{A5}, 1, v{A1}
    v_xor_b32 v{A3}, v{A3}, v{A5}            ; chunk
    v_lshlrev_b32 v{A3}, 4, v{A3}
    v_and_b32 v{A5}, 1, v{A1}
    v_lshl_or_b32 v{A3}, v{A5}, 3, v{A3}
    v_lshl_add_u32 v{A3}, v{A4}, 7, v{A3}
    v_add_u32 v{vAB}, s{sRING}, v{A3}
    """)
    for dt in range(1, 4):
        e(f"v_xor_b32 v{vAB + dt}, {32 * dt}, v{vAB}")
    e(f"""
    v_lshlrev_b32 v{vBR}, 4, v{L}            ; B read: X + l*16
    v_lshrrev_b32 v{A3}, 3, v{L}             ; row8
    v_lshrrev_b32 v{A4}, 1, v{A3}
    v_and_b32 v{A4}, 3, v{A4}
    v_lshlrev_b32 v{A4}, 1, v{A4}
    v_and_b32 v{A5}, 7, v{L}
    v_xor_b32 v{A4}, v{A4}, v{A5}
    v_lshlrev_b32 v{A4}, 4, v{A4}
    v_lshl_add_u32 v{A4}, v{A3}, 10, v{A4}
    s_lshl_b32 s{sT0}, s{sW}, 7
    v_add_u32 v{vWO}, s{sT0}, v{A4}
    v_add_u32 v{vWO + 1}, 7168, v{vWO}
    v_add_u32 v{vWO + 2}, {2 * 7168}, v{vWO}
    v_add_u32 v{vWO + 3}, {3 * 7168}, v{vWO}
    v_and_b32 v{A3}, 15, v{L}
    s_lshl_b32 s{sWOO}, s{sSK}, 15
    v_xor_b32 v{A4}, v{A2}, v{A3}            ; (l&15)^rr
    v_lshlrev_b32 v{A5}, 8, v{A2}
    v_lshl_add_u32 v{vKDM}, v{A4}, 4, v{A5}
    v_xor_b32 v{vKDM + 1}, 64, v{vKDM}
    v_xor_b32 v{vKDM + 2}, 128, v{vKDM}
    v_xor_b32 v{vKDM + 3}, 192, v{vKDM}
    v_lshlrev_b32 v{A4}, 2, v{A2}
    v_xor_b32 v{A4}, v{A4}, v{A3}
    v_lshl_add_u32 v{vVDM}, v{A4}, 4, v{A5}
    v_lshrrev_b32 v{A4}, 5, v{L}             ; h
    v_xor_b32 v{A4}, v{A4}, v{A3}
    v_lshlrev_b32 v{A4}, 4, v{A4}
    v_lshl_add_u32 v{A4}, v{A3}, 8, v{A4}
    v_and_b32 v{A5}, 1, v{A2}
    v_mul_u32_u24 v{A5}, {WSTR}, v{A5}
    v_add_u32 v{A4}, v{A4}, v{A5}
    v_add_u32 v{vKR}, {RB + 1 * SLOT}, v{A4}
    """)
    for s16 in range(1, 8):
        e(f"v_xor_b32 v{vKR + s16}, {32 * s16}, v{vKR}")
    e(f"""
    v_and_b32 v{A4}, 1, v{A2}
    v_lshlrev_b32 v{A4}, 1, v{A4}
    v_lshrrev_b32 v{A5}, 1, v{A1}
    v_or_b32 v{A4}, v{A4}, v{A5}
    v_lshlrev_b32 v{A5}, 2, v{A0}
    v_xor_b32 v{A4}, v{A4}, v{A5}
    v_lshlrev_b32 v{A4}, 4, v{A4}
    v_and_b32 v{A5}, 1, v{A1}
    v_lshl_or_b32 v{A4}, v{A5}, 3, v{A4}
    v_lshrrev_b32 v{A5}, 5, v{L}
    v_lshl_add_u32 v{A5}, v{A5}, 2, v{A0}    ; 4h + r
    v_lshl_add_u32 v{A4}, v{A5}, 8, v{A4}
    v_add_u32 v{vVR}, {RB + 4096 + 1 * SLOT}, v{A4}
    """)
    for db in range(1, 4):
        e(f"v_xor_b32 v{vVR + db}, {64 * db}, v{vVR}")
    e(f"""
    """)
    for u in range(NU0, 8):
        xdma(u)
    wrdma()
    if OPT.get("tlb"):
        T = OPT["tlb"]
        e(f"""
        v_lshlrev_b32 v58, 21, v{L}
        s_lshl_b32 s{sT0}, s{sTB}, 16
        v_add_u32 v58, s{sT0}, v58
        v_cmp_gt_u32 vcc, 9, v{L}
        v_mov_b32 v59, 0x7ffffff0
        s_nop 0
        v_cndmask_b32 v58, v59, v58, vcc
        """)
        e.vm(f"buffer_load_dword a96, v58, s[{S_WS}:{S_WS + 3}], 0 offen", ("tlb", 0))
        if "o" in T and not stamps:
            e(f"""
            s_load_dwordx2 s[88:89], s[0:1], {KA['out']}
            s_mov_b32 s90, 2097152
            s_mov_b32 s91, 0x20000
            s_lshl_b32 s{sT0}, s{sTB}, 16
            v_lshlrev_b32 v58, 10, v{L}
            v_add_u32 v58, s{sT0}, v58
            s_waitcnt lgkmcnt(0)
            """)
            e.vm(f"buffer_load_dword a97, v58, s[88:91], 0 offen", ("tlb", 4))
        if "w" in T:
            e(f"""
            v_lshlrev_b32 v58, 16, v{L}
            """)
            e.vm(f"buffer_load_dword a97, v58, s[{S_WO}:{S_WO + 3}], 0 offen", ("tlb", 1))
            e.vm(f"buffer_load_dword a98, v58, s[{S_K}:{S_K + 3}], 0 offen", ("tlb", 2))
            e.vm(f"buffer_load_dword a99, v58, s[{S_V}:{S_V + 3}], 0 offen", ("tlb", 3))
    e(f"""
    v_lshlrev_b32 v{vOW}, 4, v{A3}
    v_lshrrev_b32 v{A4}, 5, v{L}
    v_lshl_add_u32 v{vOW}, v{A4}, 8, v{vOW}
    v_and_b32 v{A4}, 1, v{A2}
    v_lshl_add_u32 v{vOW}, v{A4}, 10, v{vOW}
    """)
    e(f"""
    s_lshl_b32 s{sT0}, s{sG}, 5
    s_add_u32 s{sT0}, s{sT0}, s{sTB}
    s_lshl_b32 s{sT0}, s{sT0}, 3
    s_add_u32 s{sT0}, s{sT0}, s{sW}
    s_lshl_b32 s{sT0}, s{sT0}, 13
    v_lshlrev_b32 v{vPS}, 4, v{L}
    v_add_u32 v{vPS}, s{sT0}, v{vPS}
    s_lshl_b32 s{sKVB}, s{sG}, 19
    s_lshl_b32 s{sT0}, s{sW}, 12
    s_add_u32 s{sKVB}, s{sKVB}, s{sT0}
    s_add_u32 s{sKVB}, s{sKVB}, {1536 * 256}
    s_add_u32 s{S_K}, s{S_K}, s{sKVB}
    s_addc_u32 s{S_K + 1}, s{S_K + 1}, 0
    s_add_u32 s{S_V}, s{S_V}, s{sKVB}
    s_addc_u32 s{S_V + 1}, s{S_V + 1}, 0
    s_sub_u32 s{S_K + 2}, {131072}, s{sT0}
    s_mov_b32 s{S_V + 2}, s{S_K + 2}
    s_lshl_b32 s{sT0}, s{sG}, 19
    s_add_u32 s{S_WO}, s{S_WO}, s{sT0}
    s_addc_u32 s{S_WO + 1}, s{S_WO + 1}, 0
    s_mov_b32 s{S_WO + 2}, 524288
    s_lshl_b32 s{sKO}, s{sKVT}, 14
    s_mov_b32 s{sVO}, s{sKO}
    v_cmp_eq_u32 s[{sMASK}:{sMASK + 1}], 1, v{A1}
    v_cmp_eq_u32 s[{sMASK + 2}:{sMASK + 3}], 2, v{A1}
    v_cmp_eq_u32 s[{sMASK + 4}:{sMASK + 5}], 3, v{A1}
    v_cmp_eq_u32 s[98:99], v{A2}, v{A0}
    """)
    e(f"v_mov_b32 v{A5}, 0x3f803f80")
    for i in range(4):
        e(f"v_accvgpr_write_b32 a{64 + i}, v{A5}")
    e(f"s_mov_b32 s100, 0xffff0000")
    e("s_nop 0")
    SUM, GRM = 68, 72
    e(f"""
    v_and_b32 v58, 15, v{L}                  ; tok16
    v_lshrrev_b32 v59, 4, v{L}               ; q4
    v_bfe_u32 v60, v58, 1, 3                 ; swz
    v_xor_b32 v59, v59, v60
    v_lshlrev_b32 v59, 4, v59
    v_and_b32 v60, 7, v58
    v_lshl_add_u32 v59, v60, 7, v59
    v_lshrrev_b32 v60, 3, v58
    v_lshl_add_u32 v59, v60, 12, v59
    v_add_u32 v62, s{sT3}, v59
    v_xor_b32 v63, 64, v62
    """)

    for i in range(192, 256):
        e(f"v_accvgpr_write_b32 a{i}, 0")

    def stat_frag(p):
        e.need(ltags=[("xr", p)])
        xf = rng("v", vQ + 4 * p, 4)
        c1 = "0" if p == 0 else rng("a", SUM, 4)
        c2 = "0" if p == 0 else rng("a", GRM, 4)
        e(f"v_mfma_f32_16x16x32_bf16 {rng('a', SUM, 4)}, a[64:67], {xf}, {c1}")
        e(f"v_mfma_f32_16x16x32_bf16 {rng('a', GRM, 4)}, {xf}, {xf}, {c2}")
        for i in range(4):
            src = vQ + 4 * p + i
            dst = 128 + 8 * p + 2 * i
            e(f"v_lshlrev_b32 v{dst}, 16, v{src}")
            e(f"v_and_b32 v{dst + 1}, s100, v{src}")

    for u in range(8):
        e.need(vtags=[("x", u, 1)])
        for par in range(2):
            e.lds(f"ds_read_b128 {rng('v', vQ + 4 * (2 * u + par), 4)}, v{62 + par} offset:{u * 8192}", ("xr", 2 * u + par))
        for k in range(2):
            if wq_pre and u >= OPT.get("dma_from", 0):
                for fn in wq_pre.pop(0):
                    fn()
        if u > 0:
            stat_frag(2 * u - 2)
            stat_frag(2 * u - 1)
    e.need(vtags=[("wr", 0)])
    e(f"""
    v_lshrrev_b32 v58, 4, v{L}
    v_lshlrev_b32 v58, 4, v58
    v_add_u32 v58, s{sRING}, v58
    """)
    for p in range(16):
        e.lds(f"ds_read_b128 {rng('a', 128 + 4 * p, 4)}, v58 offset:{2 * SLOT + 4096 + p * 64}", ("wrf", p))
    stat_frag(14)
    stat_frag(15)
    e.nop(6)
    if not OPT.get("tailstamps") and not OPT.get("p3stamps"):
        stamp("x15_stats")
    s1, s2_, u0, u1, u2, u3 = 58, 59, 60, 61, 62, 63
    e(f"""
    v_accvgpr_read_b32 v{s1}, a{SUM}
    v_accvgpr_read_b32 v{u0}, a{GRM}
    v_accvgpr_read_b32 v{u1}, a{GRM + 1}
    v_accvgpr_read_b32 v{u2}, a{GRM + 2}
    v_accvgpr_read_b32 v{u3}, a{GRM + 3}
    v_cndmask_b32 v{u0}, v{u0}, v{u1}, s[{sMASK}:{sMASK + 1}]
    v_cndmask_b32 v{u0}, v{u0}, v{u2}, s[{sMASK + 2}:{sMASK + 3}]
    v_cndmask_b32 v{u0}, v{u0}, v{u3}, s[{sMASK + 4}:{sMASK + 5}]
    v_cndmask_b32 v{u0}, 0, v{u0}, s[98:99]
    v_mov_b32 v{u1}, v{u0}
    s_nop 1
    v_permlane32_swap_b32 v{u0}, v{u1}
    s_nop 0
    v_add_f32 v{u0}, v{u0}, v{u1}
    v_mov_b32 v{u1}, v{u0}
    s_nop 1
    v_permlane16_swap_b32 v{u0}, v{u1}
    s_nop 0
    v_add_f32 v{s2_}, v{u0}, v{u1}
    v_mul_f32 v{s1}, {hex(f2u(1.0 / 512))}, v{s1}     ; mean
    v_mul_f32 v{s2_}, {hex(f2u(1.0 / 512))}, v{s2_}
    v_fma_f32 v{s2_}, -v{s1}, v{s1}, v{s2_}      ; var
    v_max_f32 v{s2_}, 0, v{s2_}
    v_cvt_pk_bf16_f32 v{u0}, v{s1}, v{s2_}
    v_and_b32 v{u1}, s100, v{u0}
    v_add_f32 v{u1}, {hex(f2u(1e-5))}, v{u1}
    v_cvt_pk_bf16_f32 v{u1}, v{u1}, v{u1}
    v_and_b32 v{u1}, s100, v{u1}
    v_sqrt_f32 v{u1}, v{u1}
    v_lshlrev_b32 v{s1}, 16, v{u0}             ; mean_b f32
    v_cvt_pk_bf16_f32 v{u1}, v{u1}, v{u1}
    v_and_b32 v{u2}, s100, v{u1}                ; sd_b f32
    v_rcp_f32 v{u3}, v{u2}
    v_and_b32 v{u0}, 0xffff, v{u0}
    v_or_b32 v31, v{u0}, v{u2}
    v_mul_f32 v{u3}, {hex(f2u(C_SCALE))}, v{u3}     ; rsc
    v_mul_f32 v{u2}, v{s1}, v{u3}
    v_sub_f32 v{u2}, 0, v{u2}
    """)
    e(f"""
    v_mov_b32 v60, v{u3}
    v_mov_b32 v61, v{u3}
    v_mov_b32 v63, v{u2}
    """)
    e(f"""
    s_lshl_b32 s{sT0}, s{sW}, 10
    v_add_u32 v{s1}, s{sT0}, v{vBR}
    """)
    for p in range(16):
        for i in range(4):
            src = 128 + 8 * p + 2 * i
            e(f"v_pk_fma_f32 v[{src}:{src + 1}], v[{src}:{src + 1}], v[60:61], v[62:63]")
        for i in range(4):
            src = 128 + 8 * p + 2 * i
            e(f"v_cvt_pk_bf16_f32 v{vQ + 4 * p + i}, v{src}, v{src + 1}")
        e.lds(f"ds_write_b128 v{s1}, {rng('v', vQ + 4 * p, 4)} offset:{p * 4096}", ("xw", p))
        if wq_pre and p % OPT.get("dma_norm", 2) == 0 and not OPT.get("dma_late"):
            if len(wq_pre) <= 4:
                e.need(ltags=[("wrf", 15)])
            for fn in wq_pre.pop(0):
                fn()
    e.need(ltags=[("wrf", 15)])
    while wq_pre:
        for fn in wq_pre.pop(0):
            fn()
    e.need(ltags=[("xw", 15)])
    e("s_barrier")
    if not OPT.get("tailstamps") and not OPT.get("p3stamps"):
        stamp("ln_done")
    gemm_pre(e, 1)
    for p in range(16):
        c = "0" if p == 0 else "a[76:79]"
        e(f"v_mfma_f32_16x16x32_bf16 a[76:79], {rng('a', 128 + 4 * p, 4)}, {rng('v', vQ + 4 * p, 4)}, {c}")
    e.nop(8)
    e(f"""
    v_accvgpr_read_b32 v58, a76
    v_mul_f32 v58, {hex(f2u(1.0 / C_SCALE))}, v58
    v_cvt_pk_bf16_f32 v58, v58, v58
    v_and_b32 v59, s100, v58
    v_ashrrev_i32 v58, 31, v59
    v_or_b32 v58, 0x80000000, v58
    v_xor_b32 v59, v59, v58                  ; monotone map
    s_lshl_b32 s{sT0}, s{sTB}, 6
    s_lshl_b32 s{sT1}, s{sW}, 4
    s_add_u32 s{sT0}, s{sT0}, s{sT1}
    s_sub_u32 s{sT0}, 2047, s{sT0}
    v_and_b32 v58, 15, v{vLANE}
    v_sub_u32 v58, s{sT0}, v58               ; 2047 - token
    v_and_or_b32 v59, v59, s100, v58
    """)

    def lines(txt):
        return [t.strip() for t in txt.strip().split("\n") if t.strip()]

    st13 = lines(f"""
    s_add_u32 s{sGA}, s{S_WS}, {WS_R} | s_addc_u32 s{sGA + 1}, s{S_WS + 1}, 0
    s_mov_b32 s{sGA + 2}, 8192
    s_mov_b32 s{sGA + 3}, 0x20000
    s_add_u32 s{sGB}, s{S_WS}, {WS_STAT} | s_addc_u32 s{sGB + 1}, s{S_WS + 1}, 0
    s_mov_b32 s{sGB + 2}, 8192
    s_mov_b32 s{sGB + 3}, 0x20000
    s_lshl_b32 s{sT2}, s{sTB}, 6
    s_lshl_b32 s{sT1}, s{sW}, 4
    s_add_u32 s{sT2}, s{sT2}, s{sT1}
    v_add_u32 v58, s{sT2}, v{vLANE}
    v_lshlrev_b32 v58, 2, v58
    v_cmp_gt_u32 vcc, 16, v{vLANE}
    s_cmp_eq_u32 s{sG}, 0 | s_cselect_b64 s[{sMASK}:{sMASK + 1}], -1, 0
    v_mov_b32 v60, 0x7ffffff0
    s_and_b64 vcc, vcc, s[{sMASK}:{sMASK + 1}]
    v_cndmask_b32 v58, v60, v58, vcc
    """)
    st13 = [(x, None) for x in st13]
    st13.append((f"buffer_store_dword v59, v58, s[{sGA}:{sGA + 3}], 0 offen sc1", ("st", 0)))
    st13.append((f"buffer_store_dword v31, v58, s[{sGB}:{sGB + 3}], 0 offen sc1", ("st", 1)))
    if OPT.get("fused"):
        st13 += [(x, None) for x in lines(f"""
        s_lshl_b32 s{sT2}, s{sTB}, 3
        s_add_u32 s{sT2}, s{sT2}, s{sG}
        s_lshl_b32 s{sT2}, s{sT2}, 2
        s_add_u32 s{sT2}, s{sT2}, {WS_FLG}
        s_cmp_eq_u32 s{sW}, 0 | s_cselect_b32 s{sT2}, s{sT2}, 0x7fff0000
        v_lshlrev_b32 v58, 10, v{vLANE}
        v_add_u32 v58, s{sT2}, v58
        v_mov_b32 v60, 0x7fff0000
        v_cmp_gt_u32 vcc, 9, v{vLANE}
        v_mov_b32 v61, 0
        s_nop 0
        v_cndmask_b32 v58, v60, v58, vcc
        """)]
        st13.append((f"buffer_store_dword v61, v58, s[{S_WS}:{S_WS + 3}], 0 offen sc1", ("st", 2)))
    st14 = [f"v_mov_b32 v{vL + i}, 0" for i in range(4)]
    for i in range(4):
        st14 += [f"v_mov_b32 v{vGA + i}, v{vKDM + i}", f"v_mov_b32 v{vGB + i}, v{vVDM}"]
    st14 += lines(f"""
    s_mov_b32 s{sPASS}, 0
    v_mov_b32 v31, v{vKR}
    v_mov_b32 v63, v{vVR}
    s_min_u32 s{sSL}, s2, 223
    s_lshl_b32 s{sT2}, s{sW}, 7
    v_add_u32 v3, s{sT2}, v{vLANE}
    v_mul_u32_u24 v3, 3584, v3
    s_lshl_b32 s{sT2}, s{sSL}, 4
    v_add_u32 v3, s{sT2}, v3
    v_lshrrev_b32 v4, 4, v{vLANE}
    v_lshlrev_b32 v4, 10, v4
    v_and_b32 v2, 15, v{vLANE}
    v_lshl_add_u32 v4, v2, 4, v4
    s_lshl_b32 s{sT2}, s{sSL}, 13
    s_lshl_b32 s{sT1}, s{sW}, 8
    s_add_u32 s{sT2}, s{sT2}, s{sT1}
    v_add_u32 v4, s{sT2}, v4
    """)

    def emit_item(x, tag):
        def f():
            for part in x.split(" | "):
                if tag is not None:
                    e.vm(part, tag)
                else:
                    e(part)
        return f

    def tail1(p):
        f = []

        def guard(pp):
            return lambda: e.need(ltags=[("A", pp + 1, 7)])
        if p == 12:
            f += [(21, guard(12))] + place(kv_dma(e, "K", 1, ("KV", 0, "K")), 21, 3)
        if p == 13:
            f += place(kv_dma(e, "V", 1, ("KV", 0, "V")), 1, 4)
            f += [(21, guard(13))] + place(kv_dma(e, "K", 2, ("KV", 1, "K")), 21, 3)
        if p == 14:
            f += place(kv_dma(e, "V", 2, ("KV", 1, "V")), 1, 4)
            f += [(21, guard(14))] + place(kv_dma(e, "K", 0, ("KV", 2, "K")), 21, 3)
        if p == 13:
            for n, (x, tag) in enumerate(st13):
                f.append((n * 31 // len(st13), emit_item(x, tag)))
        if p == 14:
            for n, x in enumerate(st14):
                f.append((n * 31 // len(st14), emit_item(x, None)))
        return f

    qside = Side()
    for dt in range(8):
        first = True
        for qb in range(2):
            R = vQ + (dt * 2 + qb) * 4
            a0 = vACC + (dt * 4 + 2 * qb) * 4
            a1 = a0 + 4
            qside.add(f"v_cvt_pk_bf16_f32 v{R}, v{a0}, v{a0 + 1}", cond=((15, 4 * dt + 8) if first else None))
            first = False
            qside.add(f"v_cvt_pk_bf16_f32 v{R + 1}, v{a0 + 2}, v{a0 + 3}")
            qside.add(f"v_cvt_pk_bf16_f32 v{R + 2}, v{a1}, v{a1 + 1}")
            qside.add(f"v_cvt_pk_bf16_f32 v{R + 3}, v{a1 + 2}, v{a1 + 3}")
        for qb in range(2):
            R = vQ + (dt * 2 + qb) * 4
            qside.add(f"v_permlane16_swap_b32 v{R}, v{R + 2}", gap=(0 if qb == 0 else 0))
            qside.add(f"v_permlane16_swap_b32 v{R + 1}, v{R + 3}", gap=(1 if qb == 1 else 0))
    if OPT.get("only"):
        def gs(name):
            lq = list(e.lq)
            stamp(name)
            if name in OPT["only"]:
                e.lq = lq
        GSTAMP[0] = gs
    gemm_main(e, 1, tail1, side=qside, side_steps=(15,))
    if not OPT.get("tailstamps") and not OPT.get("p3stamps"):
        stamp("p1_done")
    e.nop(8)
    qside.emit(e, 0, flush=True)
    for i in range(32):
        e(f"v_mov_b32 v{vNM + i}, 0")
    if OPT.get("only"):
        stamp("q_conv")
    e(f"L_p2_start:")
    e(f"""
    s_mov_b32 s{sGA}, s{S_K}
    s_mov_b32 s{sGA + 1}, s{S_K + 1}
    s_mov_b32 s{sGA + 2}, s{S_K + 2}
    s_mov_b32 s{sGB}, s{S_V}
    s_mov_b32 s{sGB + 1}, s{S_V + 1}
    s_mov_b32 s{sGB + 2}, s{S_V + 2}
    s_mov_b32 s{sKSL}, {2 * SLOT}
    s_mov_b32 s{sVSL}, {1 * SLOT}
    s_mov_b32 s{sTRIP}, 1
    s_add_u32 s{sGAM}, s{sRING}, {1 * SLOT}
    s_add_u32 s{sGBM}, s{sRING}, 4096
    s_lshl_b32 s{sGAO}, s{sW}, 13
    s_mov_b32 s{sMASK + 2}, {64 * 3584}
    s_mov_b32 s{S_WQ + 2}, {512 * 1792 * 2}
    """)
    e.wait_all()
    e("s_barrier")
    for f in range(4):
        k_read(e, 0, f)
    e(f"""
    s_or_b32 s{sT0}, {'0' if OPT.get("fused") else 's%d' % sG}, s{sW}
    s_or_b32 s{sT0}, s{sT0}, s{sPASS}
    s_cmp_lg_u32 s{sT0}, 0
    s_cbranch_scc1 L_nopub
    """)
    if not OPT.get("xnopublish"):
        e(f"""
        v_mov_b32 v58, 0
        v_mov_b32 v59, 1
        v_cmp_eq_u32 vcc, 0, v{vLANE}
        s_nop 0
        s_and_saveexec_b64 s[{sMASK}:{sMASK + 1}], vcc
        global_atomic_add v58, v59, s[{sDBG}:{sDBG + 1}] sc1
        s_mov_b64 exec, s[{sMASK}:{sMASK + 1}]
        """)
    e("L_nopub:")
    p2_iter(e, -1, qk=True, sm=False, pv=False, look="K",
            fill=[(i // 4, lambda i=i: e(f"v_accvgpr_write_b32 a{128 + i}, 0")) for i in range(64)])
    upd = []
    for i in range(8):
        upd.append((i // 4 * 8 + i % 4 if i < 4 else 9 + i, lambda i=i: e(f"v_add_u32 v{vKR + i}, {SLOT}, v{vKR + i}")))
    p2_iter(e, 0, qk=True, sm=True, pv=False, look="K", fill=upd, smstart=5)

    if OPT.get("only"):
        lqs = list(e.lq)
        stamp("p2_preloop")
        e.lq = lqs
    lq0 = list(e.lq)
    loop_align(e)
    e("L_p2_loop:")
    n0 = len(e.l)
    e("s_waitcnt vmcnt(1)")
    e.vq = []
    if not OPT.get("nobar"):
        e("s_barrier")
    D64 = 64 * 3584
    fill = []

    def grp(*lines):
        f = lambda: [e(x) for x in lines]
        f.ninstr = len(lines)
        return f

    def adv2(sreg):
        f = lambda: kv_adv(e, sreg)
        f.ninstr = 2
        return f
    fill.append((0, lambda: e(f"s_mov_b32 m0, s{sGAM}")))
    for i in range(4):
        if not OPT.get("nogdma"):
          fill.append((2 + 4 * i, lambda i=i: e.vm(
            f"buffer_load_dwordx4 v{vGA + i}, s[{sGA}:{sGA + 3}], s{sKO} offen offset:{i * 1024} lds", ("G", 0))))
    fill.append((15, adv2(sKO)))
    fill.append((16, lambda: e(f"s_mov_b32 m0, s{sGBM}")))
    for i in range(4):
        if not OPT.get("nogdma"):
          fill.append((18 + 4 * i, lambda i=i: e.vm(
            f"buffer_load_dwordx4 v{vGB + i}, s[{sGB}:{sGB + 3}], s{sVO} offen offset:{i * 1024} lds", ("G", 1))))
    fill.append((30, adv2(sVO)))
    for db in range(4):
        fill.append((24 + 2 * db, lambda db=db: e(f"v_add_u32 v{vVR + db}, 49152, v{vVR + db}")))
    fill.append((4, grp(f"s_add_u32 s{sT1}, s{sKSL}, {SLOT}", f"s_cmp_eq_u32 s{sT1}, {3 * SLOT}",
                        f"s_cselect_b32 s{sT1}, 0, s{sT1}")))
    fill.append((8, grp(f"s_sub_u32 s{sKD}, s{sT1}, s{sKSL}", f"s_sub_u32 s{sVD}, s{sKSL}, s{sVSL}")))
    fill.append((12, grp(f"s_sub_u32 s{sVD}, s{sVD}, 49152", f"s_mov_b32 s{sVSL}, s{sKSL}", f"s_mov_b32 s{sKSL}, s{sT1}")))
    fill.append((20, grp(f"s_cmp_ge_u32 s{sTRIP}, 3", f"s_cselect_b32 s{S_WQ}, s{sFP + 2}, s{sFP}",
                         f"s_cselect_b32 s{S_WQ + 1}, s{sFP + 3}, s{sFP + 1}")))
    fill.append((22, grp(f"s_bitcmp0_b32 s{sTRIP}, 0", f"s_cselect_b32 s{sGBO}, s{sMASK + 2}, 0")))
    fill.append((24, grp(f"s_cmp_ge_u32 s{sTRIP}, 5", f"s_cselect_b32 s{S_WQ}, s{sFP + 4}, s{S_WQ}",
                         f"s_cselect_b32 s{S_WQ + 1}, s{sFP + 5}, s{S_WQ + 1}")))
    fill.append((26, grp(f"s_cmp_ge_u32 s{sTRIP}, 5", f"s_cselect_b32 s{sGBO}, 0, s{sGBO}",
                         f"s_cselect_b64 s[{sMASK}:{sMASK + 1}], -1, 0")))
    fill.append((28, grp(f"s_cmp_ge_u32 s{sTRIP}, 6", f"s_cselect_b32 s{sGBO}, 4096, s{sGBO}")))
    p2_iter(e, 1, fill=fill)
    fill = []
    for i in range(8):
        fill.append((8 + 2 * i if i >= 4 else 2 * i, lambda i=i: e(f"v_add_u32 v{vKR + i}, s{sKD}, v{vKR + i}")))
    for db in range(4):
        fill.append((24 + 2 * db, lambda db=db: e(f"v_add_u32 v{vVR + db}, s{sVD}, v{vVR + db}")))
    fill.append((1, lambda: e(f"v_cndmask_b32 v1, v3, v4, s[{sMASK}:{sMASK + 1}]")))
    fill.append((2, lambda: e(f"s_mov_b32 m0, s{sGAO}")))
    if not OPT.get("nocdma"):
        fill.append((4, lambda: e.vm(f"buffer_load_dwordx4 v1, s[{S_WQ}:{S_WQ + 3}], s{sGBO} offen lds", ("C", 0))))
    fill.append((6, lambda: e(f"s_add_u32 s{sGAO}, s{sGAO}, 1024")))
    fill.append((10, grp(f"s_add_u32 s{sGAM}, s{sRING}, s{sVSL}", f"s_add_u32 s{sT1}, s{sKSL}, {SLOT}")))
    fill.append((12, grp(f"s_cmp_eq_u32 s{sT1}, {3 * SLOT}", f"s_cselect_b32 s{sT1}, 0, s{sT1}",
                         f"s_add_u32 s{sGBM}, s{sRING}, s{sT1}")))
    fill.append((14, lambda: e(f"s_add_u32 s{sGBM}, s{sGBM}, 4096")))
    fill.append((28, lambda: e(f"s_add_u32 s{sTRIP}, s{sTRIP}, 1")))
    p2_iter(e, 2, fill=fill)
    e(f"""
    s_cmp_lg_u32 s{sTRIP}, 7
    s_cbranch_scc1 L_p2_noswitch
    s_mov_b32 s{sGA}, s{S_WO}
    s_mov_b32 s{sGA + 1}, s{S_WO + 1}
    s_mov_b32 s{sGA + 2}, s{S_WO + 2}
    s_mov_b32 s{sGB}, s{S_WO}
    s_mov_b32 s{sGB + 1}, s{S_WO + 1}
    s_mov_b32 s{sGB + 2}, s{S_WO + 2}
    s_mov_b32 s{sGAM}, s{sRING}
    s_add_u32 s{sGBM}, s{sRING}, 4096
    s_mov_b32 s{sKO}, s{sWOO}
    """)
    p3_adv(e)
    e(f"s_mov_b32 s{sVO}, s{sWOO}")
    p3_adv(e)
    for i in range(4):
        e(f"v_mov_b32 v{vGA + i}, v{vWO + i}")
        e(f"v_mov_b32 v{vGB + i}, v{vWO + i}")
    e("L_p2_noswitch:")
    e(f"s_cmp_lg_u32 s{sTRIP}, 8")
    e("s_cbranch_scc1 L_p2_loop")
    body = e.l[n0:]
    probs = check_hazards(body + body, "p2 loop x2")
    assert not probs or any(k.startswith("no") for k in OPT), "\n".join(probs[:10])
    sh = lambda q, d: [(t[0], t[1] + d) + tuple(t[2:]) if t else t for t in q]
    assert sh(lq0, 2) == e.lq, (lq0, e.lq)
    e.lq = sh(e.lq, 12)
    if OPT.get("only"):
        stamp("p2_loopend")
    e.wait_all(lds=False)
    e(f"""
    v_bfe_u32 v58, v{vLANE}, 2, 2               ; r
    v_lshrrev_b32 v59, 4, v{vLANE}              ; q4
    v_lshl_add_u32 v60, v59, 3, v58             ; 8 q4 + r
    v_lshlrev_b32 v60, 4, v60
    v_and_b32 v61, 1, v{vLANE}
    v_lshl_add_u32 v60, v61, 3, v60             ; + (c&1)*8
    v_bfe_u32 v61, v{vLANE}, 1, 1
    v_lshl_add_u32 v60, v61, 11, v60            ; + U
    s_lshl_b32 s{sT0}, s{sW}, 13
    v_add_u32 v60, s{sT0}, v60
    v_and_b32 v59, 1, v59
    v_lshl_add_u32 v58, v59, 2, v58             ; row 0..7
    v_lshlrev_b32 v58, 8, v58
    v_and_b32 v59, 3, v{vLANE}
    v_lshl_add_u32 v58, v59, 3, v58             ; + c*8
    v_add_u32 v58, s{sT0}, v58
    """)
    for i in range(4):
        for rd in range(2):
            e.lds(f"ds_read_b64_tr_b16 {rng('a', 96 + 4 * i + 2 * rd, 2)}, v60 offset:{i * 512 + rd * 64}", ("fa", i))
    for t in range(8):
        e.lds(f"ds_read_b64_tr_b16 {rng('a', 112 + 2 * t, 2)}, v58 offset:{4096 + t * 32}", ("da", t))
    e.wait_all(vm=False)
    e("s_barrier")
    e.vq = [("W", 0, 0)] * 0
    fill = place(p3_dma(e, 2), 0, 2) + place(p3_dma(e, 3), 8, 2)
    for db in range(4):
        fill.append((7 + db, lambda db=db: e(f"v_add_u32 v{vVR + db}, 49152, v{vVR + db}")))
    e.lq = [t for t in e.lq]
    if OPT.get("ipf2"):
        e(f"""
        s_getpc_b64 s[{sT0}:{sT0 + 1}]
        L_ipf2:
        s_lshr_b32 s{sT2}, s2, 3
        s_and_b32 s{sT2}, s{sT2}, {OPT["ipf2"] - 1}
        s_lshl_b32 s{sT2}, s{sT2}, 12
        s_lshl_b32 s{sT3}, s{sW}, 10
        s_add_u32 s{sT2}, s{sT2}, s{sT3}
        v_lshlrev_b32 v62, 4, v{vLANE}
        v_add_u32 v62, s{sT2}, v62
        v_min_u32 v62, (L_kend - L_ipf2 - 32) & 0xfffffff0, v62
        """)
        e.vm(f"global_load_dwordx4 a[36:39], v62, s[{sT0}:{sT0 + 1}]", ("ipf", 2))
    e(f"v_mov_b32 v62, 0")
    e.vm(f"global_load_dword v2, v62, s[{sDBG}:{sDBG + 1}] sc1", ("cnt", 0))
    p2_iter(e, 15, qk=False, sm=True, pv=True, look="V", fill=fill, vpre=True, vord_next=VORD_D)
    RL = [58, 60]
    side = Side()
    A = side.add
    A(f"v_add_f32 v{vL}, v{vL}, v{vL + 1}")
    A(f"v_add_f32 v{vL + 2}, v{vL + 2}, v{vL + 3}")
    A(f"v_mov_b32 v{vL + 1}, v{vL}")
    A(f"v_mov_b32 v{vL + 3}, v{vL + 2}")
    A(f"v_permlane32_swap_b32 v{vL}, v{vL + 1}", gap=2)
    A(f"v_permlane32_swap_b32 v{vL + 2}, v{vL + 3}", gap=1)
    A(f"v_add_f32 v{vL}, v{vL}, v{vL + 1}", gap=1)
    A(f"v_add_f32 v{vL + 2}, v{vL + 2}, v{vL + 3}")
    A(f"v_rcp_f32 v{RL[0]}, v{vL}")
    A(f"v_rcp_f32 v{RL[1]}, v{vL + 2}")
    A(f"s_mov_b32 s{sT2}, {hex(f2u(2.0 ** -40))}")
    A(f"s_mov_b32 s{sT3}, {hex(f2u(2.0 ** 40))}")
    A(f"v_cmp_lt_f32 s[{sMASK}:{sMASK + 1}], s{sT2}, v{vL}")
    A(f"v_cmp_gt_f32 s[{sMASK + 2}:{sMASK + 3}], s{sT3}, v{vL}")
    A(f"v_cmp_lt_f32 s[{sMASK + 4}:{sMASK + 5}], s{sT2}, v{vL + 2}")
    A(f"v_cmp_gt_f32 vcc, s{sT3}, v{vL + 2}")
    A(f"s_and_b64 s[{sMASK}:{sMASK + 1}], s[{sMASK}:{sMASK + 1}], s[{sMASK + 2}:{sMASK + 3}]", gap=2)
    A(f"s_and_b64 vcc, vcc, s[{sMASK + 4}:{sMASK + 5}]")
    A(f"s_and_b64 s[{sMASK}:{sMASK + 1}], s[{sMASK}:{sMASK + 1}], vcc")
    for db in range(4):
        wa = 61 + (db & 1)
        A(lambda db=db: [e(x) for x in (f"s_lshl_b32 s{sT1}, s{sW}, 2", f"s_add_u32 s{sT1}, s{sT1}, {db}",
                                        f"s_sub_u32 s{sT1}, s{sT1}, s{sSK}")])
        A(lambda: [e(x) for x in (f"s_and_b32 s{sT1}, s{sT1}, 15", f"s_lshl_b32 s{sT1}, s{sT1}, 12")])
        A(f"v_add_u32 v{wa}, s{sT1}, v{vOW}")
        for qb in range(2):
            src = aO + (db * 2 + qb) * 16
            T = 128 + ((db * 2 + qb) % 4) * 16 if False else 128 + (db * 2 + qb) * 16
            for i in range(16):
                A(f"v_accvgpr_read_b32 v{T + i}, a{src + i}", cond=((16, min(4 * db + 7, 99)) if (i == 0 and qb == 0) else None))
            for i in range(8):
                A(f"v_pk_mul_f32 v[{T + 2 * i}:{T + 2 * i + 1}], v[{T + 2 * i}:{T + 2 * i + 1}], v[{RL[qb]}:{RL[qb] + 1}] op_sel_hi:[1,0]")
            for i in range(8):
                A(f"v_cvt_pk_bf16_f32 v{T + i}, v{T + 2 * i}, v{T + 2 * i + 1}")
            for jp in range(2):
                A(lambda T=T, jp=jp, qb=qb, db=db, wa=wa: e.lds(
                    f"ds_write_b128 v{wa}, {rng('v', T + 4 * jp, 4)} offset:{qb * 2048 + jp * 512}", ("ow", db, qb, jp)))
    p2_iter(e, 16, qk=False, sm=False, pv=True, look=None, vord=VORD_D, side=side, cap=OPT.get("normcap", 5))
    if not OPT.get("tailstamps"):
        stamp("p2_done")
    e.nop(OPT.get("normnop", 10))
    side.emit(e, 0, flush=True)
    e(f"""
    s_cmp_eq_u64 s[{sMASK}:{sMASK + 1}], -1
    s_cselect_b32 s{sT2}, 0, 1
    s_cmp_eq_u32 s{sPASS}, 0
    s_cselect_b32 s{sT2}, s{sT2}, 0
    s_cmp_eq_u32 s{sT2}, 0
    s_cbranch_scc1 L_noflag
    s_lshl_b32 s{sT0}, s{sW}, 2
    s_sub_u32 s{sT0}, s{sT0}, s{sSK}
    s_and_b32 s{sT0}, s{sT0}, 15
    s_lshl_b32 s{sT0}, s{sT0}, 12
    v_mov_b32 v58, s{sT0}
    v_mov_b32 v59, -1
    ds_write_b32 v58, v59
    L_noflag:
    """)
    for w_ in range(4):
        e(f"""
        s_sub_u32 s{sT0}, {4 * w_}, s{sSK}
        s_and_b32 s{sT0}, s{sT0}, 15
        s_lshl_b32 s{sT0}, s{sT0}, 12
        v_mov_b32 v{58 + w_}, s{sT0}
        """)
    e(f"""
    s_lshl_b32 s{sT1}, s{sW}, 11
    v_lshlrev_b32 v62, 5, v{vLANE}
    v_add_u32 v62, s{sT1}, v62
    v_add_u32 v62, {WS_R}, v62
    v_lshlrev_b32 v{vBR}, 4, v{vLANE}
    s_mov_b32 s48, 4096
    s_mov_b32 s49, 32768
    s_mov_b32 s50, {32768 + 4096}
    """)
    e.wait_all(vm=False)
    e("s_barrier")
    for w_ in range(4):
        e.lds(f"ds_read_b32 v{58 + w_}, v{58 + w_}", ("mk", w_))
    for fn in p3_reads(e, 0, 0)[8:] + p3_reads(e, 0, 0)[:8]:
        fn()
    serial(e, p3_dma(e, 4))
    e.need(ltags=[("mk", 3)])
    e(f"""
    v_and_b32 v58, v58, v59
    v_and_b32 v60, v60, v61
    v_max_u32 v58, v58, v60
    v_max_u32 v59, v59, v61
    """)
    e.l = e.l[:-4]
    e(f"""
    v_max_u32 v58, v58, v59
    v_max_u32 v60, v60, v61
    v_max_u32 v58, v58, v60
    s_nop 0
    v_readfirstlane_b32 s{sT0}, v58
    s_nop 0
    s_cmp_eq_u32 s{sT0}, -1
    s_cbranch_scc1 L_fallback
    L_p3_start:
    """)
    e.need(vtags=[("cnt", 0)])
    e(f"""
    v_readfirstlane_b32 s{sT0}, v2
    s_nop 0
    s_cmp_ge_u32 s{sT0}, {256 if OPT.get("fused") else 32}
    s_cselect_b32 s{sRDY}, 1, 0
    """)
    e.vm(f"buffer_load_dwordx4 v[88:91], v62, s[{S_WS}:{S_WS + 3}], 0 offen sc1", ("rl", 0))
    e.vm(f"buffer_load_dwordx4 v[92:95], v62, s[{S_WS}:{S_WS + 3}], 0 offen offset:16 sc1", ("rl", 1))
    assert [t for t in e.vq if t[0] == "W"] == [("W", u) for u in range(2, 5) for _ in range(4)], e.vq
    e.vq = [("W", u) for u in range(5) for _ in range(4)]
    import moe

    def tail3(u):
        return []

    def tail3_old(u):
        f = []
        lst = {28: [(S_WQ, 80, 0), (S_WQ, 81, 1024), (S_K, 80, 2048), (S_K, 81, 3072)], 29: [(S_V, 82, 4096), (S_V, 83, 5120)]}
        if u in lst and not OPT.get("nomoe") and not OPT.get("xnofw"):
            f.append((0, lambda u=u: e.need(ltags=[("A", u, 3)])))
            for n, (srd, v, off) in enumerate(lst[u]):
                f.append((1 + 3 * n, lambda off=off: e(f"s_add_u32 m0, s{sRING}, {2 * SLOT + off}")))
                f.append((2 + 3 * n, lambda srd=srd, v=v: e.vm(
                    f"buffer_load_dwordx4 v{v}, s[{srd}:{srd + 3}], 0 offen lds", ("fw", 0))))
        return f
    side_e, side = Side(), Side()
    sp = OPT.get("stspread", 2.0)
    for n, (x, gap) in enumerate(p3_epilogue_items(e, 0, [64, 68, 72, 76])):
        k, r = n // 7, n % 7
        pos = 16 + k * sp
        side_e.add(x, gap=gap, cond=((int(pos), 2 + int((pos % 1) * 16)) if r == 0 else None))
    if not OPT.get("nomoe"):
        moe.moe_side(e, side, dict(W=sW, RING=sRING, RDY=sRDY, M=100, X=S_X, WS=S_WS))
        side.q[0] = (side.q[0][0], side.q[0][1], (OPT.get("moestart", 4) if OPT.get("p3unroll", 1) else 16, 0))
    if OPT.get("p3stamps") or OPT.get("only"):
        def st_nowait(name):
            q = list(e.lq)
            stamp(name)
        STAMP[0] = st_nowait
    p3_phase(e, tail3, [side_e, side], None)
    side_e.emit(e, 0, flush=True)
    side.emit(e, 0, flush=True)
    stamp("p3_done")
    e.nop(6)
    side = Side()
    for (x, gap) in p3_epilogue_items(e, 1, [64, 68, 72, 76, 80, 84, 88, 92]):
        side.add(x, gap=gap)
    side.emit(e, 0, flush=True)
    stamp("epi")
    doneq = f"L_{label}_fin"
    RT = dict(X=S_X, WS=S_WS, WR=S_WR, W=sW, RING=sRING, SL=sSL, RDY=sRDY, DBG=sDBG, M=100, G=sG, TB=sTB,
              T=[42, 43, 44, 45, 46, 47, 60, 61, 62, 63, 64, 65, 66, 67], done=doneq,
              spin=OPT.get("spin", 4000), fused=OPT.get("fused"), NCNT=(256 if OPT.get("fused") else 32),
              stamp=(stamp if OPT.get("tailstamps") else (lambda n: None)), opt=OPT)
    if OPT.get("fused"):
        moe.moe_tail(e, RT)
    elif not OPT.get("nomoe"):
        e(f"""
        s_cmp_ge_u32 s2, 224
        s_cbranch_scc1 {doneq}
        s_nop 1
        """)
        moe.moe_tail(e, RT)
    e(f"{doneq}:")
    stamp("end")
    if stamps and OPT.get("dbgstamps"):
        e.wait_all()
        e(f"""
        v_mov_b32 v58, 16
        v_mov_b32 v59, s{sTS + 16}
        v_mov_b32 v60, 20
        s_not_b32 s{sT0}, s{sTS}
        v_mov_b32 v61, s{sT0}
        v_cmp_eq_u32 vcc, 0, v{vLANE}
        s_nop 0
        s_and_saveexec_b64 s[{sMASK}:{sMASK + 1}], vcc
        global_atomic_umax v58, v59, s[{sDBG}:{sDBG + 1}] sc1
        global_atomic_umax v60, v61, s[{sDBG}:{sDBG + 1}] sc1
        s_or_b32 s{sT0}, s2, s{sW}
        s_cmp_lg_u32 s{sT0}, 0
        s_cbranch_scc1 L_dbg_skip
        """)
        for k in range(1, 9):
            e(f"s_sub_u32 s{sT0}, s{sTS + 2 * k}, s{sTS}")
            e(f"v_mov_b32 v59, s{sT0}")
            e(f"v_mov_b32 v58, {24 + 4 * (k - 1)}")
            e(f"global_store_dword v58, v59, s[{sDBG}:{sDBG + 1}]")
            e("s_nop 1")
        e("L_dbg_skip:")
        e(f"s_mov_b64 exec, s[{sMASK}:{sMASK + 1}]")
    elif stamps:
        e.wait_all()
        e(f"""
        s_lshl_b32 s{sT0}, s2, 2
        s_add_u32 s{sT0}, s{sT0}, s{sW}
        s_lshl_b32 s{sT0}, s{sT0}, 7
        s_add_u32 s{sT0}, s{sT0}, {WS_TS}
        v_mov_b32 v58, s{sT0}
        v_cmp_eq_u32 vcc, 0, v{vLANE}
        s_nop 0
        s_and_saveexec_b64 s[{sMASK}:{sMASK + 1}], vcc
        """)
        for i in range(0, 20, 4):
            for q in range(4):
                e(f"v_mov_b32 v{60 + q}, s{min(sTS + i + q, sTS + 17)}")
            e(f"buffer_store_dwordx4 v[60:63], v58, s[{S_WS}:{S_WS + 3}], 0 offen offset:{i * 4}")
            e("s_nop 1")
        e(f"s_mov_b64 exec, s[{sMASK}:{sMASK + 1}]")
    e(f"s_branch {done}")
    e("L_fallback:")
    e(f"""
    s_barrier
    s_lshl_b32 s{sKO}, s{sKVT}, 14
    v_mov_b32 v{vKR}, v31
    v_mov_b32 v{vL}, 0xff800000
    v_mov_b32 v{vL + 2}, 0xff800000
    v_subrev_u32 v{vKR}, {SLOT}, v{vKR}
    s_mov_b32 s{sTRIP}, 0
    """)
    for s16 in range(1, 8):
        e(f"v_xor_b32 v{vKR + s16}, {32 * s16}, v{vKR}")
    e("L_fb_loop:")
    e("s_waitcnt vmcnt(0) lgkmcnt(0)")
    e("s_barrier")
    e.vq, e.lq = [], []
    serial(e, kv_dma(e, "K", 0, ("fbk", 0)))
    e.wait_all()
    e("s_barrier")
    for kb in range(2):
        for s16 in range(8):
            e(f"ds_read_b128 {Fbuf(s16)}, v{vKR + s16} offset:{kb * 49152}")
        e("s_waitcnt lgkmcnt(0)")
        for s16 in range(8):
            for qb in range(2):
                c = "0" if s16 == 0 else Sreg(0, qb)
                e(f"v_mfma_f32_32x32x16_bf16 {Sreg(0, qb)}, {Fbuf(s16)}, {Qreg(s16, qb)}, {c}")
        e.nop(16)
        for qb in range(2):
            m = vL + 2 * qb
            for i in range(0, 16, 2):
                e(f"v_max3_f32 v{m}, v{m}, {Sreg(0, qb, i)}, {Sreg(0, qb, i + 1)}")
    e(f"""
    s_add_u32 s{sTRIP}, s{sTRIP}, 1
    s_cmp_lt_u32 s{sTRIP}, 8
    s_cbranch_scc1 L_fb_loop
    v_mov_b32 v{vL + 1}, v{vL}
    v_mov_b32 v{vL + 3}, v{vL + 2}
    s_nop 1
    v_permlane32_swap_b32 v{vL}, v{vL + 1}
    v_permlane32_swap_b32 v{vL + 2}, v{vL + 3}
    s_nop 0
    v_max_f32 v{vL}, v{vL}, v{vL + 1}
    v_max_f32 v{vL + 2}, v{vL + 2}, v{vL + 3}
    """)
    for qb in range(2):
        for i in range(16):
            e(f"v_sub_f32 v{vNM + 16 * qb + i}, 0, v{vL + 2 * qb}")
    e(f"""
    s_barrier
    s_lshl_b32 s{sKO}, s{sKVT}, 14
    s_mov_b32 s{sVO}, s{sKO}
    s_lshl_b32 s{sWOO}, s{sSK}, 15
    v_mov_b32 v{vKR}, v31
    v_mov_b32 v{vVR}, v63
    s_mov_b32 s{sPASS}, 1
    """)
    for s16 in range(1, 8):
        e(f"v_xor_b32 v{vKR + s16}, {32 * s16}, v{vKR}")
    for db in range(1, 4):
        e(f"v_xor_b32 v{vVR + db}, {64 * db}, v{vVR}")
    for (which, slot) in (("K", 1), ("V", 1), ("K", 2), ("V", 2), ("K", 0)):
        serial(e, kv_dma(e, which, slot, ("fbp", 0)))
    for i in range(4):
        e(f"v_mov_b32 v{vL + i}, 0")
        e(f"v_mov_b32 v{vGA + i}, v{vKDM + i}")
        e(f"v_mov_b32 v{vGB + i}, v{vVDM}")
    for i in range(128):
        e(f"v_accvgpr_write_b32 a{128 + i}, 0")
    e("s_branch L_p2_start")
    e(f"{done}:")
    e("s_endpgm")
    e("L_kend:")
    sp = check_scc(e.l)
    if sp:
        print("\n".join(sp))
        raise SystemExit("scc")
    probs = check_hazards(e.l, "k1")
    if probs and not any(k.startswith("no") for k in OPT):
        print("\n".join(probs[:40]))
        raise SystemExit("hazards")
    return e.text()
```

```python
from emit import E, check_hazards, check_scc
from asmlib import KA
from k1 import WS_PART, WS_R, WS_STAT, WS_IDX, WS_TS, WS_FLG, f2u, rng

WS_YP = 17 << 20
NSL = 224
LOG2E = 1.4426950408889634


def wave_max_u32(e, v, tmp_s):
    for sh in (1, 2, 4, 8):
        e("s_nop 1")
        e(f"v_max_u32_dpp v{v}, v{v}, v{v} row_shr:{sh} row_mask:0xf bank_mask:0xf")
    e("s_nop 1")
    e(f"v_max_u32_dpp v{v}, v{v}, v{v} row_bcast:15 row_mask:0xa bank_mask:0xf")
    e("s_nop 1")
    e(f"v_max_u32_dpp v{v}, v{v}, v{v} row_bcast:31 row_mask:0xc bank_mask:0xf")
    e("s_nop 0")
    e(f"v_readlane_b32 s{tmp_s}, v{v}, 63")


def silu_bf16(e, dst, src, t0, t1, sM):
    e(f"v_mul_f32 v{t0}, {hex(f2u(-LOG2E))}, v{src}")
    e(f"v_exp_f32 v{t0}, v{t0}")
    e("s_nop 0")
    e(f"v_add_f32 v{t0}, 1.0, v{t0}")
    e(f"v_rcp_f32 v{t0}, v{t0}")
    e("s_nop 0")
    e(f"v_mul_f32 v{t0}, v{src}, v{t0}")
    e(f"v_cvt_pk_bf16_f32 v{t0}, v{t0}, v{t0}")
    e(f"v_and_b32 v{dst}, s{sM}, v{t0}")


def ts_begin(e, on):
    if on:
        e("s_memrealtime s[64:65]")


def ts_end(e, on, srd, off, wave_sreg, lane_v=0):
    if not on:
        return
    e(f"""
    s_memrealtime s[66:67]
    s_mov_b64 exec, -1
    s_lshl_b32 s68, s2, 2
    s_add_u32 s68, s68, s{wave_sreg}
    s_lshl_b32 s68, s68, 4
    s_add_u32 s68, s68, {off}
    s_waitcnt vmcnt(0) lgkmcnt(0)
    s_memrealtime s[66:67]
    s_waitcnt lgkmcnt(0)
    v_mov_b32 v100, s64
    v_mov_b32 v101, s65
    v_mov_b32 v102, s66
    v_mov_b32 v103, s67
    v_mov_b32 v104, s68
    v_cmp_eq_u32 vcc, 0, v{lane_v}
    s_nop 1
    s_and_saveexec_b64 s[70:71], vcc
    buffer_store_dwordx4 v[100:103], v104, s[{srd}:{srd + 3}], 0 offen
    """)


def gen_km(label, ts=False):
    e = E()
    done = f"L_{label}_done"
    S_X, S_WG, S_WU, S_WD, S_WS = 4, 8, 12, 16, 20
    sW, sF0, sM = 24, 25, 26
    sWIN = 32
    e(f"""
    s_cmp_ge_u32 s2, {NSL}
    s_cbranch_scc1 {done}
    {"s_memrealtime s[64:65]" if ts else ""}
    s_load_dwordx2 s[4:5], s[0:1], {KA['x']}
    s_load_dwordx2 s[8:9], s[0:1], {KA['wg']}
    s_load_dwordx2 s[12:13], s[0:1], {KA['wu']}
    s_load_dwordx2 s[16:17], s[0:1], {KA['wd']}
    s_load_dwordx2 s[20:21], s[0:1], {KA['ws']}
    v_lshrrev_b32 v1, 6, v0
    v_mov_b32 v63, v0                    ; tid
    v_and_b32 v0, 63, v0
    v_readfirstlane_b32 s{sW}, v1
    s_lshl_b32 s{sF0}, s2, 4
    s_mov_b32 s{sM}, 0xffff0000
    s_waitcnt lgkmcnt(0)
    s_mov_b32 s6, 2097152
    s_mov_b32 s7, 0x20000
    s_mov_b32 s10, {512 * 1792 * 2}
    s_mov_b32 s11, 0x20000
    s_mov_b32 s14, {512 * 1792 * 2}
    s_mov_b32 s15, 0x20000
    s_mov_b32 s18, {1792 * 512 * 2}
    s_mov_b32 s19, 0x20000
    s_mov_b32 s22, 0x10000000
    s_mov_b32 s23, 0x20000
    """)
    e(f"""
    v_lshlrev_b32 v2, 5, v63
    v_add_u32 v2, {WS_R}, v2
    """)
    e.vm(f"buffer_load_dwordx4 v[8:11], v2, s[20:23], 0 offen", "r0")
    e.vm(f"buffer_load_dwordx4 v[12:15], v2, s[20:23], 0 offen offset:16", "r1")
    e(f"""
    s_lshl_b32 s27, s{sW}, 7
    v_add_u32 v3, s27, v0                ; row = 128 w + l
    v_mul_u32_u24 v3, 3584, v3
    v_add_u32 v3, s{sF0}, v3
    v_add_u32 v4, {64 * 3584}, v3
    s_lshl_b32 s28, s{sW}, 11            ; w*2048
    """)
    for (srd, base) in ((S_WG, 0), (S_WU, 8192)):
        for i in range(2):
            e(f"s_add_u32 m0, s28, {base + i * 1024}")
            e("s_nop 0")
            e.vm(f"buffer_load_dwordx4 v{3 + i}, s[{srd}:{srd + 3}], 0 offen lds", "wgu")
    e(f"""
    s_lshl_b32 s29, s2, 3
    s_lshl_b32 s30, s{sW}, 1
    s_add_u32 s29, s29, s30
    s_lshl_b32 s29, s29, 10              ; row*1024
    v_lshlrev_b32 v5, 4, v0
    """)
    for i in range(2):
        e(f"s_add_u32 m0, s28, {16384 + i * 1024}")
        e("s_nop 0")
        e.vm(f"buffer_load_dwordx4 v5, s[{S_WD}:{S_WD + 3}], s29 offen lds", "wd")
        e("s_add_u32 s29, s29, 1024")
    e.need(vtags=["r1"])
    e(f"v_lshlrev_b32 v6, 3, v63")
    e(f"v_sub_u32 v6, 2047, v6            ; 2047 - idx0")
    for i in range(8):
        r = 8 + i
        e(f"v_ashrrev_i32 v7, 31, v{r}")
        e(f"v_or_b32 v7, 0x80000000, v7")
        e(f"v_xor_b32 v{r}, v{r}, v7          ; monotone map")
        e(f"v_and_b32 v{r}, s{sM}, v{r}")
        e(f"v_or_b32 v{r}, v{r}, v6")
        if i < 7:
            e(f"v_subrev_u32 v6, 1, v6")
    e("v_mov_b32 v20, 0")
    for rd in range(8):
        e("v_max3_u32 v16, v8, v9, v10")
        e("v_max3_u32 v17, v11, v12, v13")
        e("v_max3_u32 v16, v16, v14, v15")
        e("v_max_u32 v16, v16, v17")
        wave_max_u32(e, 16, 31)
        e("s_nop 1")
        for i in range(8):
            e(f"v_cmp_ne_u32 vcc, s31, v{8 + i}")
            e("s_nop 1")
            e(f"v_cndmask_b32 v{8 + i}, 0, v{8 + i}, vcc")
        e(f"v_writelane_b32 v20, s31, {rd}")
    e(f"""
    s_lshl_b32 s27, s{sW}, 5
    v_lshlrev_b32 v21, 2, v0
    v_add_u32 v21, s27, v21
    v_add_u32 v21, 24576, v21
    v_cmp_gt_u32 vcc, 8, v0
    s_nop 0
    s_and_saveexec_b64 s[40:41], vcc
    ds_write_b32 v21, v20
    s_mov_b64 exec, s[40:41]
    s_waitcnt lgkmcnt(0)
    s_barrier
    v_and_b32 v21, 31, v0
    v_lshlrev_b32 v21, 2, v21
    ds_read_b32 v22, v21 offset:24576
    v_cmp_gt_u32 vcc, 32, v0
    s_waitcnt lgkmcnt(0)
    s_nop 0
    v_cndmask_b32 v22, 0, v22, vcc
    """)
    for rd in range(8):
        e("v_mov_b32 v16, v22")
        wave_max_u32(e, 16, sWIN + rd)
        e("s_nop 1")
        e(f"v_cmp_ne_u32 vcc, s{sWIN + rd}, v22")
        e("s_nop 1")
        e(f"v_cndmask_b32 v22, 0, v22, vcc")
    e("v_and_b32 v24, 7, v0")
    e(f"v_mov_b32 v23, s{sWIN}")
    for j in range(1, 8):
        e(f"v_cmp_eq_u32 vcc, {j}, v24")
        e(f"v_mov_b32 v25, s{sWIN + j}")
        e("s_nop 0")
        e("v_cndmask_b32 v23, v23, v25, vcc")
    e(f"""
    v_and_b32 v26, 0x7ff, v23
    v_sub_u32 v26, 2047, v26
    v_and_b32 v27, s{sM}, v23
    v_ashrrev_i32 v28, 31, v27
    v_not_b32 v28, v28
    v_or_b32 v28, 0x80000000, v28
    v_xor_b32 v27, v27, v28
    v_and_b32 v27, s{sM}, v27             ; r (f32 bits)
    """)
    e(f"""
    v_mul_f32 v28, {hex(f2u(-LOG2E))}, v27
    v_exp_f32 v28, v28
    s_nop 0
    v_add_f32 v28, 1.0, v28
    v_rcp_f32 v28, v28
    s_nop 0
    v_cvt_pk_bf16_f32 v28, v28, v28
    v_and_b32 v28, s{sM}, v28             ; bf16(sigmoid(r))
    v_lshlrev_b32 v29, 2, v0
    v_add_u32 v29, {WS_IDX}, v29
    s_or_b32 s27, s2, s{sW}
    s_cmp_eq_u32 s27, 0
    s_cselect_b64 s[42:43], -1, 0
    v_cmp_gt_u32 vcc, 8, v0
    s_nop 1
    s_and_b64 vcc, vcc, s[42:43]
    s_and_saveexec_b64 s[40:41], vcc
    s_cbranch_execz L_km_nopub
    buffer_store_dword v26, v29, s[20:23], 0 offen
    buffer_store_dword v28, v29, s[20:23], 0 offen offset:32
    L_km_nopub:
    s_mov_b64 exec, s[40:41]
    """)
    e.vq += ["pub", "pub"]
    e(f"""
    v_lshrrev_b32 v30, 4, v0
    v_lshlrev_b32 v30, 4, v30             ; q4*16
    v_lshl_add_u32 v30, v26, 10, v30
    s_lshl_b32 s27, s{sW}, 8              ; 4w*64 bytes
    v_lshlrev_b32 v31, 2, v26
    v_add_u32 v31, {WS_STAT}, v31
    """)
    e.vm(f"buffer_load_dword v32, v31, s[20:23], 0 offen", "st")
    for i in range(4):
        e.vm(f"buffer_load_dwordx4 {rng('v', 36 + 4 * i, 4)}, v30, s[4:7], s27 offen offset:{64 * i}", ("xg", i))
    e.need(vtags=["st"])
    e(f"""
    v_lshlrev_b32 v33, 16, v32            ; mean
    v_and_b32 v34, s{sM}, v32             ; sd
    v_rcp_f32 v34, v34
    """)
    e.need(vtags=[("xg", 3)])
    for i in range(16):
        r = 36 + i
        e(f"""
        v_lshlrev_b32 v52, 16, v{r}
        v_and_b32 v53, s{sM}, v{r}
        v_sub_f32 v52, v52, v33
        v_sub_f32 v53, v53, v33
        v_cvt_pk_bf16_f32 v52, v52, v53
        v_and_b32 v53, s{sM}, v52
        v_lshlrev_b32 v52, 16, v52
        v_mul_f32 v52, v52, v34
        v_mul_f32 v53, v53, v34
        v_cvt_pk_bf16_f32 v{r}, v52, v53
        """)
    e.need(vtags=["wd"])
    e("s_barrier")
    e(f"""
    v_bfe_u32 v54, v0, 2, 2               ; r
    v_lshrrev_b32 v55, 4, v0              ; q4
    v_lshl_add_u32 v54, v55, 3, v54       ; 8 q4 + r
    v_lshlrev_b32 v54, 4, v54
    v_and_b32 v55, 1, v0
    v_lshl_add_u32 v54, v55, 3, v54       ; + (c&1)*8
    v_bfe_u32 v55, v0, 1, 1
    v_lshl_add_u32 v54, v55, 13, v54      ; + U
    s_lshl_b32 s27, s{sW}, 11
    v_add_u32 v54, s27, v54
    """)
    for i in range(4):
        for rd in range(2):
            e.lds(f"ds_read_b64_tr_b16 {rng('v', 64 + 4 * i + 2 * rd, 2)}, v54 offset:{i * 512 + rd * 64}", ("fa", i))
    for i in range(4):
        e.need(ltags=[("fa", i)])
        c = "0" if i == 0 else "v[56:59]"
        e(f"v_mfma_f32_16x16x32_bf16 v[56:59], {rng('v', 64 + 4 * i, 4)}, {rng('v', 36 + 4 * i, 4)}, {c}")
    e.nop(8)
    e(f"""
    s_lshl_b32 s27, s{sW}, 10
    v_lshlrev_b32 v60, 4, v0
    v_add_u32 v61, s27, v60
    ds_write_b128 v61, v[56:59] offset:25600
    s_waitcnt lgkmcnt(0)
    s_barrier
    ds_read_b128 v[64:67], v60 offset:25600
    ds_read_b128 v[68:71], v60 offset:{25600 + 1024}
    ds_read_b128 v[72:75], v60 offset:{25600 + 2048}
    ds_read_b128 v[76:79], v60 offset:{25600 + 3072}
    s_waitcnt lgkmcnt(0)
    """)
    for i in range(4):
        e(f"v_add_f32 v{64 + i}, v{64 + i}, v{68 + i}")
        e(f"v_add_f32 v{72 + i}, v{72 + i}, v{76 + i}")
        e(f"v_add_f32 v{64 + i}, v{64 + i}, v{72 + i}")
    for i in range(4):
        e(f"v_cvt_pk_bf16_f32 v{64 + i}, v{64 + i}, v{64 + i}")
        e(f"v_and_b32 v{64 + i}, s{sM}, v{64 + i}")
        e(f"v_mov_b32 v{68 + i}, v{64 + i}")
    e("s_nop 0")
    for i in range(4):
        e(f"v_permlane32_swap_b32 v{64 + i}, v{68 + i}")
    for i in range(4):
        silu_bf16(e, 72 + i, 64 + i, 76, 77, sM)
        e(f"v_mul_f32 v{72 + i}, v{72 + i}, v{68 + i}")
    e(f"""
    v_cvt_pk_bf16_f32 v80, v72, v73
    v_cvt_pk_bf16_f32 v81, v74, v75
    v_cmp_gt_u32 vcc, 32, v0
    v_mov_b32 v82, 0
    v_mov_b32 v83, 0
    v_cndmask_b32 v80, 0, v80, vcc
    v_cndmask_b32 v81, 0, v81, vcc
    """)
    e(f"""
    v_bfe_u32 v54, v0, 2, 2               ; r
    v_bfe_u32 v55, v0, 4, 1               ; q4 & 1
    v_lshl_add_u32 v54, v55, 2, v54       ; row 0..7
    v_lshlrev_b32 v54, 10, v54
    v_and_b32 v55, 3, v0
    v_lshl_add_u32 v54, v55, 3, v54       ; + c*8
    s_lshl_b32 s27, s{sW}, 8              ; 8w tiles * 32 B
    v_add_u32 v54, s27, v54
    v_mov_b32 v86, 0
    v_mov_b32 v87, 0
    """)
    for t in range(8):
        e.lds(f"ds_read_b64_tr_b16 {rng('v', 88 + 4 * t, 2)}, v54 offset:{16384 + t * 32}", ("da", t))
        e(f"v_mov_b32 v{90 + 4 * t}, 0")
        e(f"v_mov_b32 v{91 + 4 * t}, 0")
    for t in range(8):
        e.need(ltags=[("da", t)])
        e(f"v_mfma_f32_16x16x32_bf16 {rng('v', 120 + 4 * t, 4)}, {rng('v', 88 + 4 * t, 4)}, v[80:83], 0")
    e(f"""
    s_lshl_b32 s27, s2, 14
    s_lshl_b32 s28, s{sW}, 9              ; 8w*16*4 bytes
    s_add_u32 s27, s27, s28
    s_add_u32 s27, s27, {WS_YP}
    v_and_b32 v60, 15, v0
    v_lshlrev_b32 v61, 11, v60
    v_lshrrev_b32 v62, 4, v0
    v_lshl_add_u32 v61, v62, 4, v61
    v_add_u32 v61, s27, v61
    v_cmp_gt_u32 vcc, 8, v60
    s_nop 4
    s_and_saveexec_b64 s[40:41], vcc
    """)
    for t in range(8):
        e(f"buffer_store_dwordx4 {rng('v', 120 + 4 * t, 4)}, v61, s[20:23], 0 offen offset:{t * 64}")
    e("s_mov_b64 exec, s[40:41]")
    ts_end(e, ts, S_WS, WS_TS + (1 << 20), sW)
    e(f"{done}:")
    e("s_endpgm")
    probs = check_hazards(e.l, "km")
    if probs:
        print("\n".join(probs[:40]))
        raise SystemExit("hazards")
    return e.text()


def final_math(e, n, vs, vx, vmean, vrsd, vupd, vout, t, sM):
    for i in range(n):
        a, b = t, t + 1
        e(f"v_cvt_pk_bf16_f32 v{vs[i]}, v{vs[i]}, v{vs[i]}")
        e(f"v_and_b32 v{vs[i]}, s{sM}, v{vs[i]}")
        e(f"v_sub_f32 v{a}, v{vx[i]}, v{vmean}")
        e(f"v_cvt_pk_bf16_f32 v{a}, v{a}, v{a}")
        e(f"v_and_b32 v{a}, s{sM}, v{a}")
        e(f"v_mul_f32 v{a}, v{a}, v{vrsd}")
        e(f"v_cvt_pk_bf16_f32 v{a}, v{a}, v{a}")
        e(f"v_and_b32 v{a}, s{sM}, v{a}")
        if vupd is not None:
            e(f"v_add_f32 v{a}, v{a}, v{vupd[i]}")
            e(f"v_cvt_pk_bf16_f32 v{a}, v{a}, v{a}")
            e(f"v_and_b32 v{a}, s{sM}, v{a}")
        silu_bf16(e, a, a, b, b, sM)
        e(f"v_mul_f32 v{a}, v{vs[i]}, v{a}")
        e(f"v_cvt_pk_bf16_f32 v{a}, v{a}, v{a}")
        e(f"v_and_b32 v{a}, s{sM}, v{a}")
        e(f"v_add_f32 v{vout[i]}, v{vx[i]}, v{a}")


def gen_k2(label, ts=False, perturb=None, dbgcopy=False):
    e = E()
    done = f"L_{label}_done"
    tail = f"L_{label}_tail"
    S_X, S_WS, S_OUT = 4, 8, 12
    sW, sM = 16, 17
    sIDX = 24
    e(f"""
    s_cmp_ge_u32 s2, 576
    s_cbranch_scc1 {done}
    {"s_memrealtime s[64:65]" if (ts or dbgcopy) else ""}
    s_load_dwordx2 s[4:5], s[0:1], {KA['x']}
    s_load_dwordx2 s[8:9], s[0:1], {KA['ws']}
    s_load_dwordx2 s[12:13], s[0:1], {KA['out']}
    v_lshrrev_b32 v1, 6, v0
    v_and_b32 v0, 63, v0
    s_mov_b32 s{sM}, 0xffff0000
    v_readfirstlane_b32 s{sW}, v1
    s_waitcnt lgkmcnt(0)
    s_add_u32 s18, s8, {WS_IDX}
    s_addc_u32 s19, s9, 0
    s_load_dwordx8 s[24:31], s[18:19], 0
    s_load_dwordx8 s[32:39], s[18:19], 32
    s_mov_b32 s6, 2097152
    s_mov_b32 s7, 0x20000
    s_mov_b32 s10, 0x10000000
    s_mov_b32 s11, 0x20000
    s_mov_b32 s14, 2097152
    s_mov_b32 s15, 0x20000
    s_cmp_lt_u32 s2, 64
    s_cbranch_scc1 L_k2_sel
    s_sub_u32 s63, s2, 64
    """)
    e(f"""
    s_lshl_b32 s20, s63, 2
    s_add_u32 s20, s20, s{sW}
    s_lshr_b32 s21, s20, 6                ; tb
    s_bfe_u32 s22, s20, {5 | (1 << 16)}   ; qb
    s_bfe_u32 s23, s20, {3 | (2 << 16)}   ; a
    s_and_b32 s20, s20, 7                 ; b
    s_lshl_b32 s40, s21, 6
    s_lshl_b32 s41, s22, 5
    s_add_u32 s40, s40, s41
    s_lshl_b32 s41, s23, 3
    s_add_u32 s40, s40, s41
    v_and_b32 v2, 7, v0
    v_add_u32 v3, s40, v2                 ; token
    v_lshrrev_b32 v4, 3, v0
    s_lshl_b32 s41, s20, 7
    v_lshlrev_b32 v4, 4, v4
    v_lshl_add_u32 v4, v3, 10, v4
    v_add_u32 v4, s41, v4
    s_lshl_b32 s41, s21, 16
    s_lshr_b32 s42, s20, 1
    s_lshl_b32 s42, s42, 14
    s_add_u32 s41, s41, s42
    s_and_b32 s42, s20, 1
    s_lshl_b32 s42, s42, 13
    s_add_u32 s41, s41, s42
    s_lshl_b32 s42, s22, 10
    s_add_u32 s41, s41, s42
    s_lshl_b32 s42, s23, 7
    s_add_u32 s41, s41, s42
    v_lshrrev_b32 v5, 4, v0
    v_lshlrev_b32 v5, 11, v5
    v_bfe_u32 v6, v0, 3, 1
    v_lshl_add_u32 v5, v6, 9, v5
    v_lshl_add_u32 v5, v2, 4, v5
    v_add_u32 v5, s41, v5
    v_lshlrev_b32 v7, 2, v3
    v_add_u32 v7, {WS_STAT}, v7
    """)
    for g in range(8):
        e(f"s_mov_b32 s{44 + g}, {g << 21}")
    for g in range(8):
        e.vm(f"buffer_load_dwordx4 {rng('v', 16 + 4 * g, 4)}, v5, s[8:11], s{44 + g} offen", ("p", g))
    e.vm(f"buffer_load_dword v8, v7, s[8:11], 0 offen", "st")
    e.vm(f"buffer_load_dwordx4 v[12:15], v4, s[4:7], 0 offen", "x")
    e(f"""
    s_mov_b32 s56, 0x00003f80            ; (1.0, 0)
    s_mov_b32 s57, 0x3f800000            ; (0, 1.0)
    s_mov_b32 s58, {hex(f2u(-LOG2E))}
    s_mov_b32 s59, {hex(f2u(-LOG2E))}
    s_mov_b32 s60, 1.0
    s_mov_b32 s61, 1.0
    """)
    e("s_waitcnt lgkmcnt(0)")
    for j in range(8):
        e(f"v_cmp_ne_u32 s[{72 + 2 * (j & 3)}:{73 + 2 * (j & 3)}], s{24 + j}, v3")
        if j == 3:
            e("s_nop 0")
            e("s_and_b64 s[52:53], s[72:73], s[74:75]")
            e("s_and_b64 s[54:55], s[76:77], s[78:79]")
            e("s_and_b64 s[52:53], s[52:53], s[54:55]")
    e("s_nop 0")
    e("s_and_b64 s[72:73], s[72:73], s[74:75]")
    e("s_and_b64 s[76:77], s[76:77], s[78:79]")
    e("s_and_b64 s[52:53], s[52:53], s[72:73]")
    e("s_and_b64 s[52:53], s[52:53], s[76:77]")
    for g in range(8):
        e.need(vtags=[("p", g)])
        for i in range(4):
            r = 16 + 4 * g + i
            c0 = "0" if g == 0 else f"v{48 + 2 * i}"
            c1 = "0" if g == 0 else f"v{49 + 2 * i}"
            e(f"v_dot2_f32_bf16 v{48 + 2 * i}, v{r}, s56, {c0}")
            e(f"v_dot2_f32_bf16 v{49 + 2 * i}, v{r}, s57, {c1}")
    e.need(vtags=["x"])
    e(f"""
    v_and_b32 v10, s{sM}, v8              ; sd
    v_rcp_f32 v10, v10
    v_lshlrev_b32 v9, 16, v8              ; mean
    v_mul_f32 v8, v9, v10
    v_sub_f32 v8, 0, v8
    """)
    for i in range(4):
        e(f"v_lshlrev_b32 v{60 + 2 * i}, 16, v{12 + i}")
        e(f"v_and_b32 v{61 + 2 * i}, s{sM}, v{12 + i}")
    P = lambda b: f"v[{b}:{b + 1}]"
    for i in range(4):
        e(f"v_pk_fma_f32 {P(16 + 2 * i)}, {P(60 + 2 * i)}, v[10:11], v[8:9] op_sel_hi:[1,0,0]")
    for i in range(4):
        e(f"v_pk_mul_f32 {P(24 + 2 * i)}, {P(16 + 2 * i)}, s[58:59]")
    for i in range(8):
        e(f"v_exp_f32 v{24 + i}, v{24 + i}")
    for i in range(4):
        e(f"v_pk_add_f32 {P(24 + 2 * i)}, {P(24 + 2 * i)}, s[60:61]")
    for i in range(8):
        e(f"v_rcp_f32 v{24 + i}, v{24 + i}")
    for i in range(4):
        e(f"v_pk_mul_f32 {P(16 + 2 * i)}, {P(16 + 2 * i)}, {P(24 + 2 * i)}")
    for i in range(4):
        e(f"v_pk_fma_f32 {P(60 + 2 * i)}, {P(48 + 2 * i)}, {P(16 + 2 * i)}, {P(60 + 2 * i)}")
    if perturb is not None:
        kind, delta = perturb
        if kind == "one":
            e(f"""
            v_cmp_eq_u32 vcc, 0, v4
            v_mov_b32 v58, {hex(f2u(delta))}
            s_nop 0
            v_cndmask_b32 v58, 0, v58, vcc
            v_add_f32 v60, v60, v58
            """)
        elif kind == "all":
            for i in range(8):
                e(f"v_add_f32 v{60 + i}, {hex(f2u(delta))}, v{60 + i}")
        elif kind == "mul":
            for i in range(8):
                e(f"v_mul_f32 v{60 + i}, {hex(f2u(delta))}, v{60 + i}")
    for i in range(4):
        e(f"v_cvt_pk_bf16_f32 v{12 + i}, v{60 + 2 * i}, v{61 + 2 * i}")
    e(f"""
    s_and_saveexec_b64 s[54:55], s[52:53]
    s_cbranch_execz {tail}
    buffer_store_dwordx4 v[12:15], v4, s[12:15], 0 offen
    s_branch {tail}
    """)
    e("L_k2_sel:")
    e.vq, e.lq = [], []
    e(f"""
    s_lshr_b32 s21, s2, 3                 ; j
    s_and_b32 s22, s2, 7                  ; cb
    """)
    e(f"""
    s_mul_i32 s42, s{sW}, {56 * 16384}
    s_lshl_b32 s43, s21, 11               ; j*2048
    s_add_u32 s42, s42, s43
    s_lshl_b32 s43, s22, 8                ; cb*64*4
    s_add_u32 s42, s42, s43
    s_add_u32 s42, s42, {WS_YP}
    v_lshrrev_b32 v2, 4, v0
    v_lshlrev_b32 v2, 14, v2
    v_and_b32 v3, 15, v0
    v_lshl_add_u32 v2, v3, 4, v2
    v_add_u32 v2, s42, v2
    s_mov_b32 s43, 0
    """)
    for i in range(14):
        e.vm(f"buffer_load_dwordx4 {rng('v', 16 + 4 * i, 4)}, v2, s[8:11], s43 offen", ("y", i))
        e(f"s_add_u32 s43, s43, {4 * 16384}")
    e("s_waitcnt lgkmcnt(0)")
    e("s_mov_b32 s40, s24")
    e("s_mov_b32 s41, s32")
    for j in range(1, 8):
        e(f"s_cmp_eq_u32 s21, {j}")
        e(f"s_cselect_b32 s40, s{24 + j}, s40")
        e(f"s_cselect_b32 s41, s{32 + j}, s41")
    e(f"""
    s_lshl_b32 s43, s22, 7
    s_lshl_b32 s44, s40, 10
    s_add_u32 s43, s43, s44
    v_lshlrev_b32 v4, 3, v3
    v_add_u32 v4, s43, v4
    s_lshl_b32 s44, s40, 2
    s_add_u32 s44, s44, {WS_STAT}
    v_mov_b32 v7, s44
    s_lshr_b32 s44, s40, 6
    s_lshl_b32 s44, s44, 16
    s_lshr_b32 s45, s22, 1
    s_lshl_b32 s45, s45, 14
    s_add_u32 s44, s44, s45
    s_and_b32 s45, s22, 1
    s_lshl_b32 s45, s45, 13
    s_add_u32 s44, s44, s45
    s_bfe_u32 s45, s40, {5 | (1 << 16)}
    s_lshl_b32 s45, s45, 10
    s_add_u32 s44, s44, s45
    s_and_b32 s45, s40, 31
    s_lshl_b32 s45, s45, 4
    s_add_u32 s44, s44, s45
    v_lshrrev_b32 v5, 2, v3
    v_lshlrev_b32 v5, 11, v5
    v_bfe_u32 v6, v3, 1, 1
    v_lshl_add_u32 v5, v6, 9, v5
    v_and_b32 v6, 1, v3
    v_lshl_add_u32 v5, v6, 3, v5
    v_add_u32 v5, s44, v5
    """)
    for g in range(8):
        e(f"s_mov_b32 s{56 + g}, {g << 21}")
    e.vm(f"buffer_load_dword v8, v7, s[8:11], 0 offen", "st")
    e.vm(f"buffer_load_dwordx2 v[12:13], v4, s[4:7], 0 offen", "x")
    for g in range(8):
        e.vm(f"buffer_load_dwordx2 {rng('v', 80 + 2 * g, 2)}, v5, s[8:11], s{56 + g} offen", ("p", g))
    for i in range(14):
        e.need(vtags=[("y", i)])
        if i > 0:
            for q in range(4):
                e(f"v_add_f32 v{16 + q}, v{16 + q}, v{16 + 4 * i + q}")
    for q in range(4):
        e(f"v_mov_b32 v{20 + q}, v{16 + q}")
    e("s_nop 0")
    for q in range(4):
        e(f"v_permlane32_swap_b32 v{16 + q}, v{20 + q}")
    for q in range(4):
        e(f"v_add_f32 v{16 + q}, v{16 + q}, v{20 + q}")
    for q in range(4):
        e(f"v_mov_b32 v{20 + q}, v{16 + q}")
    e("s_nop 0")
    for q in range(4):
        e(f"v_permlane16_swap_b32 v{16 + q}, v{20 + q}")
    for q in range(4):
        e(f"v_add_f32 v{16 + q}, v{16 + q}, v{20 + q}")
    e(f"""
    s_lshl_b32 s43, s{sW}, 10
    v_lshlrev_b32 v24, 4, v0
    v_add_u32 v25, s43, v24
    ds_write_b128 v25, v[16:19]
    s_waitcnt lgkmcnt(0)
    s_barrier
    s_cmp_lg_u32 s{sW}, 0
    s_cbranch_scc1 {tail}
    ds_read_b128 v[16:19], v24
    ds_read_b128 v[20:23], v24 offset:1024
    ds_read_b128 v[28:31], v24 offset:2048
    ds_read_b128 v[32:35], v24 offset:3072
    s_waitcnt lgkmcnt(0)
    """)
    for q in range(4):
        e(f"v_add_f32 v{16 + q}, v{16 + q}, v{20 + q}")
        e(f"v_add_f32 v{28 + q}, v{28 + q}, v{32 + q}")
        e(f"v_add_f32 v{16 + q}, v{16 + q}, v{28 + q}")
    for q in range(4):
        e(f"v_cvt_pk_bf16_f32 v{16 + q}, v{16 + q}, v{16 + q}")
        e(f"v_and_b32 v{16 + q}, s{sM}, v{16 + q}")
        e(f"v_mul_f32 v{16 + q}, s41, v{16 + q}")
        e(f"v_cvt_pk_bf16_f32 v{16 + q}, v{16 + q}, v{16 + q}")
        e(f"v_and_b32 v{16 + q}, s{sM}, v{16 + q}")
    e.need(vtags=[("p", 7)])
    for g in range(8):
        for i in range(2):
            r = 80 + 2 * g + i
            if g == 0:
                e(f"v_lshlrev_b32 v{48 + 2 * i}, 16, v{r}")
                e(f"v_and_b32 v{49 + 2 * i}, s{sM}, v{r}")
            else:
                e(f"v_lshlrev_b32 v56, 16, v{r}")
                e(f"v_and_b32 v57, s{sM}, v{r}")
                e(f"v_add_f32 v{48 + 2 * i}, v{48 + 2 * i}, v56")
                e(f"v_add_f32 v{49 + 2 * i}, v{49 + 2 * i}, v57")
    e(f"""
    v_lshlrev_b32 v9, 16, v8
    v_and_b32 v10, s{sM}, v8
    v_rcp_f32 v10, v10
    """)
    for i in range(2):
        e(f"v_lshlrev_b32 v{60 + 2 * i}, 16, v{12 + i}")
        e(f"v_and_b32 v{61 + 2 * i}, s{sM}, v{12 + i}")
    final_math(e, 4, [48 + i for i in range(4)], [60 + i for i in range(4)], 9, 10, [16 + i for i in range(4)],
               [60 + i for i in range(4)], 56, sM)
    for i in range(2):
        e(f"v_cvt_pk_bf16_f32 v{12 + i}, v{60 + 2 * i}, v{61 + 2 * i}")
    e(f"""
    v_cmp_gt_u32 vcc, 16, v0
    s_nop 0
    s_and_saveexec_b64 s[54:55], vcc
    buffer_store_dwordx2 v[12:13], v4, s[12:15], 0 offen
    """)
    e(f"{tail}:")
    if dbgcopy:
        e(f"""
        s_mov_b64 exec, -1
        s_waitcnt vmcnt(0) lgkmcnt(0)
        s_memrealtime s[66:67]
        s_load_dwordx2 s[70:71], s[0:1], {KA['dbg']}
        s_cmp_lg_u32 s{sW}, 0
        s_cbranch_scc1 {done}
        s_cmp_lg_u32 s2, 0
        s_cbranch_scc1 {done}
        v_lshlrev_b32 v100, 3, v0
        v_add_u32 v100, {WS_TS}, v100
        buffer_load_dword v101, v100, s[{S_WS}:{S_WS + 3}], 0 offen
        v_mov_b32 v102, {WS_TS}
        buffer_load_dword v103, v102, s[{S_WS}:{S_WS + 3}], 0 offen
        s_waitcnt vmcnt(0) lgkmcnt(0)
        v_sub_u32 v101, v101, v103
        v_mov_b32 v104, s64
        v_sub_u32 v104, v104, v103
        v_mov_b32 v105, s66
        v_sub_u32 v105, v105, v103
        v_cmp_eq_u32 vcc, 9, v0
        s_nop 1
        v_cndmask_b32 v101, v101, v104, vcc
        v_cmp_eq_u32 vcc, 10, v0
        s_nop 1
        v_cndmask_b32 v101, v101, v105, vcc
        v_lshlrev_b32 v100, 2, v0
        v_cmp_gt_u32 vcc, 11, v0
        s_nop 1
        s_and_saveexec_b64 s[68:69], vcc
        global_store_dword v100, v101, s[70:71]
        s_waitcnt vmcnt(0)
        """)
    ts_end(e, ts, S_WS, WS_TS + (2 << 20), sW)
    e(f"{done}:")
    e("s_endpgm")
    probs = check_hazards(e.l, "k2") + check_scc(e.l)
    if probs:
        print("\n".join(probs[:40]))
        raise SystemExit("hazards")
    return e.text()


SORT8 = [(0, 1), (2, 3), (4, 5), (6, 7), (0, 2), (1, 3), (4, 6), (5, 7), (1, 2), (5, 6), (0, 4), (3, 7),
         (1, 5), (2, 6), (1, 4), (3, 6), (2, 4), (3, 5), (3, 4)]


def _check_sort8():
    import itertools
    for bits in itertools.product([0, 1], repeat=8):
        a = list(bits)
        for i, j in SORT8:
            if a[i] < a[j]:
                a[i], a[j] = a[j], a[i]
        assert a == sorted(a, reverse=True)


_check_sort8()


def keys_from_r(e, K, vidx, sM, tmp):
    for i in range(8):
        r = K[i]
        e(f"v_ashrrev_i32 v{tmp}, 31, v{r}")
        e(f"v_or_b32 v{tmp}, 0x80000000, v{tmp}")
        e(f"v_xor_b32 v{r}, v{r}, v{tmp}")
        e(f"v_and_or_b32 v{r}, v{r}, s{sM}, v{vidx}")
        if i < 7:
            e(f"v_subrev_u32 v{vidx}, 1, v{vidx}")


def wave_top8(e, K, spare, vres, vt, stmp, smask):
    K = list(K)
    free = spare
    for (i, j) in SORT8:
        e(f"v_max_u32 v{free}, v{K[i]}, v{K[j]}")
        e(f"v_min_u32 v{K[j]}, v{K[i]}, v{K[j]}")
        K[i], free = free, K[i]
    e(f"v_mov_b32 v{vres}, 0")
    for rd in range(8):
        e(f"v_mov_b32 v{vt}, v{K[0]}")
        wave_max_u32(e, vt, stmp)
        e("s_nop 1")
        e(f"v_writelane_b32 v{vres}, s{stmp}, {rd}")
        if rd < 7:
            e(f"v_cmp_eq_u32 s[{smask}:{smask + 1}], s{stmp}, v{K[0]}")
            e("s_nop 1")
            for q in range(7 - rd):
                e(f"v_cndmask_b32 v{K[q]}, v{K[q]}, v{K[q + 1]}, s[{smask}:{smask + 1}]")


def moe_side(e, side, R):
    from k1 import RB, WSTR, SLOT
    sW, sRING, sM = R["W"], R["RING"], R["M"]
    S_X, S_WS = R["X"], R["WS"]
    sA, sB = 46, 47
    MX = 5 * 4096
    mk = [60, 62, 64, 66]
    K = [88 + i for i in range(8)]
    spare, vres, vt, vidx, tmp = 96, 97, 98, 99, 100
    A = side.add
    free = spare
    for (i, j) in SORT8:
        A(f"v_max_u32 v{free}, v{K[i]}, v{K[j]}")
        A(f"v_min_u32 v{K[j]}, v{K[i]}, v{K[j]}")
        K[i], free = free, K[i]
    A(f"v_mov_b32 v{vres}, 0")
    for rd in range(8):
        A(f"v_mov_b32 v{vt}, v{K[0]}")
        for sh in (1, 2, 4, 8):
            A(f"v_max_u32_dpp v{vt}, v{vt}, v{vt} row_shr:{sh} row_mask:0xf bank_mask:0xf", gap=2)
        A(f"v_max_u32_dpp v{vt}, v{vt}, v{vt} row_bcast:15 row_mask:0xa bank_mask:0xf", gap=2)
        A(f"v_max_u32_dpp v{vt}, v{vt}, v{vt} row_bcast:31 row_mask:0xc bank_mask:0xf", gap=2)
        A(f"v_readlane_b32 s{sA}, v{vt}, 63", gap=1)
        if rd < 7:
            A(f"v_cmp_eq_u32 s[{mk[0]}:{mk[0] + 1}], s{sA}, v{K[0]}", gap=2)
            A(f"v_writelane_b32 v{vres}, s{sA}, {rd}")
            for q in range(7 - rd):
                A(f"v_cndmask_b32 v{K[q]}, v{K[q]}, v{K[q + 1]}, s[{mk[0]}:{mk[0] + 1}]", gap=(1 if q == 0 else 0))
        else:
            A(f"v_writelane_b32 v{vres}, s{sA}, {rd}", gap=2)
    A(f"v_writelane_b32 v{vres}, s{R['RDY']}, 8")
    A(f"v_lshlrev_b32 v{tmp}, 2, v0")
    A(f"v_add_u32 v{tmp}, s{sRING}, v{tmp}")
    A(lambda: e.lds(f"ds_write_b32 v{tmp}, v{vres} offset:{MX}", ("mw", 0)))
    A(f"v_lshrrev_b32 v126, 3, v0")
    A(f"v_and_b32 v126, 3, v126")
    A(f"v_mul_u32_u24 v126, {WSTR}, v126")
    A(f"v_and_b32 v127, 7, v0")
    A(f"v_lshl_add_u32 v126, v127, 2, v126")
    A(f"v_add_u32 v126, {RB + MX}, v126")

    def bar():
        e.need(ltags=[("mw", 0)])
        e("s_barrier")
    A(bar)
    A(lambda: e.lds(f"ds_read_b32 v120, v126", ("mo", 0)))
    for w_ in range(4):
        A(f"v_mov_b32 v127, {RB + MX + w_ * WSTR}")
        A(lambda w_=w_: e.lds(f"ds_read_b128 v[{88 + 8 * w_}:{91 + 8 * w_}], v127", ("mc", w_)))
        A(lambda w_=w_: e.lds(f"ds_read_b128 v[{92 + 8 * w_}:{95 + 8 * w_}], v127 offset:16", ("mc", w_)))
        A(lambda w_=w_: e.lds(f"ds_read_b32 v{121 + w_}, v127 offset:32", ("mf", w_)))
    A(f"v_mov_b32 v125, 0")
    A(lambda: e.need(ltags=[("mf", 3)]))
    A(f"v_and_b32 v121, v121, v122")
    A(f"v_and_b32 v123, v123, v124")
    A(f"v_and_b32 v121, v121, v123")
    for j0 in range(0, 32, 4):
        for q in range(4):
            A(f"v_cmp_gt_u32 s[{mk[q]}:{mk[q] + 1}], v{88 + j0 + q}, v120")
        for q in range(4):
            A(f"v_addc_co_u32 v125, vcc, 0, v125, s[{mk[q]}:{mk[q] + 1}]", gap=(0 if q else 0))
    A(f"v_readfirstlane_b32 s{R['RDY']}, v121")
    A(f"v_lshlrev_b32 v126, 2, v125")
    A(f"v_add_u32 v126, s{sRING}, v126")
    A(lambda: e.lds(f"ds_write_b32 v126, v120 offset:{MX + 64}", ("mp", 0)))
    A(f"v_and_b32 v127, 7, v0")
    A(f"v_lshlrev_b32 v127, 2, v127")
    A(f"v_add_u32 v127, s{sRING}, v127")
    A(lambda: e.lds(f"ds_read_b32 v124, v127 offset:{MX + 64}", ("mq", 0)))
    A(f"v_lshrrev_b32 v122, 4, v0")
    A(f"v_lshlrev_b32 v122, 4, v122")
    A(f"s_lshl_b32 s{sB}, s{sW}, 8")
    A(lambda: e.need(ltags=[("mq", 0)]))
    A(f"v_and_b32 v123, 0x7ff, v124")
    A(f"v_sub_u32 v123, 2047, v123")
    A(f"v_accvgpr_write_b32 a225, v124")
    A(f"v_lshl_add_u32 v122, v123, 10, v122")
    A(f"v_lshlrev_b32 v123, 2, v123")
    A(f"v_add_u32 v123, {WS_STAT}, v123")
    A(lambda: e.vm(f"buffer_load_dword a224, v123, s[{S_WS}:{S_WS + 3}], 0 offen sc1", ("g", 0)), cond=(27, 0))
    for i in range(4):
        A(lambda i=i: e.vm(f"buffer_load_dwordx4 a[{208 + 4 * i}:{211 + 4 * i}], v122, s[{S_X}:{S_X + 3}], s{sB} offen offset:{64 * i}",
                           ("g", 1 + i)))


def sum_partials(e, base, acc, n_src, n_regs, s_lo, s_hi):
    for g in range(n_src):
        yield g
        for i in range(n_regs):
            r = base + n_regs * g + i
            c0 = "0" if g == 0 else f"v{acc + 2 * i}"
            c1 = "0" if g == 0 else f"v{acc + 2 * i + 1}"
            e(f"v_dot2_f32_bf16 v{acc + 2 * i}, v{r}, s{s_lo}, {c0}")
            e(f"v_dot2_f32_bf16 v{acc + 2 * i + 1}, v{r}, s{s_hi}, {c1}")


def flag_prepare(e, R, sA, sB, v, first, count):
    e(f"""
    s_lshl_b32 s{sA}, s{R['TB']}, 3
    s_add_u32 s{sB}, s{sA}, s{R['G']}
    s_lshl_b32 s{sB}, s{sB}, 2
    s_add_u32 s{sB}, s{sB}, {WS_FLG}
    s_cmp_eq_u32 s{R['W']}, 0
    s_cselect_b32 s{sB}, s{sB}, 0x7fff0000
    v_lshlrev_b32 v{v}, 10, v0
    v_add_u32 v{v}, s{sB}, v{v}
    v_mov_b32 v{v + 1}, 0x7fff0000
    v_cmp_gt_u32 vcc, {first + count}, v0
    s_nop 1
    v_cndmask_b32 v{v}, v{v + 1}, v{v}, vcc
    v_mov_b32 v{v + 1}, 1
    """)


def fused_finish(e, R, sA, sB, mk):
    S_X, S_WS, sW, sM = R["X"], R["WS"], R["W"], R["M"]
    sG, sTB = R["G"], R["TB"]
    S_OUT = 20
    from k1 import RB
    GO = RB + 5 * 4096 + 512
    e.nop(4)
    for u in range(4):
        a, b = 120 + 8 * u, 124 + 8 * u
        e(f"v_cvt_pk_bf16_f32 v{a}, v{a}, v{a + 1}")
        e(f"v_cvt_pk_bf16_f32 v{a + 1}, v{a + 2}, v{a + 3}")
        e(f"v_cvt_pk_bf16_f32 v{a + 2}, v{b}, v{b + 1}")
        e(f"v_cvt_pk_bf16_f32 v{a + 3}, v{b + 2}, v{b + 3}")
    e(f"""
    s_lshl_b32 s{sA}, s{R['SL']}, 13
    s_lshl_b32 s{sB}, s{sW}, 11
    s_add_u32 s{sA}, s{sA}, s{sB}
    s_add_u32 s{sA}, s{sA}, {WS_YP}
    v_and_b32 v60, 15, v0
    v_lshlrev_b32 v61, 6, v60
    v_lshrrev_b32 v62, 4, v0
    v_lshl_add_u32 v61, v62, 4, v61
    v_add_u32 v61, s{sA}, v61
    v_mov_b32 v63, 0x1ffffff0
    v_cmp_gt_u32 vcc, 8, v60
    s_nop 1
    v_cndmask_b32 v61, v63, v61, vcc
    """)
    for u in range(4):
        e(f"buffer_store_dwordx4 v[{120 + 8 * u}:{123 + 8 * u}], v61, s[{S_WS}:{S_WS + 3}], 0 offen offset:{u * 512} sc1")
    e(f"""
    L_fin_sync:
    v_mov_b32 v60, {GO}
    v_mov_b32 v62, 0
    v_mov_b32 v63, 0
    ds_write_b64 v60, v[62:63]
    """)
    flag_prepare(e, R, sA, sB, 24, 0, 9)
    e(f"""
    s_waitcnt vmcnt(0) lgkmcnt(0)
    s_barrier
    buffer_store_dword v25, v24, s[{S_WS}:{S_WS + 3}], 0 offen sc1
    s_mov_b32 s22, 2097152
    s_mov_b32 s23, 0x20000
    """)
    R["stamp"]("flag")
    for j in range(8):
        e(f"v_readlane_b32 s{8 + j}, v26, {j}")
    e(f"""
    s_mov_b32 s16, 0x00003f80
    s_mov_b32 s17, 0x3f800000
    s_mov_b32 s18, {hex(f2u(-LOG2E))}
    s_mov_b32 s19, {hex(f2u(-LOG2E))}
    s_mov_b32 s48, 1.0
    s_mov_b32 s49, 1.0
    """)
    for g in range(8):
        e(f"s_mov_b32 s{52 + g}, {g << 21}")
    e(f"""
    s_lshl_b32 s{sA}, s{sTB}, 6
    s_lshl_b32 s{sB}, s{sG}, 3
    s_add_u32 s{sA}, s{sA}, s{sB}
    v_and_b32 v2, 7, v0
    v_add_u32 v3, s{sA}, v2                 ; token
    v_lshrrev_b32 v4, 3, v0
    v_lshlrev_b32 v4, 4, v4
    v_lshl_add_u32 v4, v3, 10, v4
    s_lshl_b32 s{sB}, s{sW}, 8
    v_add_u32 v4, s{sB}, v4
    v_lshlrev_b32 v7, 2, v3
    v_add_u32 v7, {WS_STAT}, v7
    s_lshl_b32 s{sA}, s{sTB}, 16
    s_lshl_b32 s{sB}, s{sW}, 14
    s_add_u32 s{sA}, s{sA}, s{sB}
    s_lshr_b32 s{sB}, s{sG}, 2
    s_lshl_b32 s{sB}, s{sB}, 10
    s_add_u32 s{sA}, s{sA}, s{sB}
    s_and_b32 s{sB}, s{sG}, 3
    s_lshl_b32 s{sB}, s{sB}, 7
    s_add_u32 s{sA}, s{sA}, s{sB}
    v_lshrrev_b32 v5, 4, v0
    v_lshlrev_b32 v5, 11, v5
    v_bfe_u32 v6, v0, 3, 1
    v_lshl_add_u32 v5, v6, 9, v5
    v_lshl_add_u32 v5, v2, 4, v5
    v_add_u32 v5, s{sA}, v5
    v_add_u32 v6, 8192, v5                  ; task 1
    s_lshl_b32 s{sA}, s{sTB}, 5
    s_add_u32 s{sA}, s{sA}, {WS_FLG}
    s_lshr_b32 s{sB}, s2, 3
    s_and_b32 s{sB}, s{sB}, 7
    s_add_u32 s{sB}, s{sB}, 1
    s_lshl_b32 s51, s{sB}, 10
    s_lshr_b32 s{sB}, s{sW}, 1
    s_mul_i32 s50, s{sB}, s51
    s_add_u32 s{sA}, s{sA}, s50
    v_lshlrev_b32 v8, 2, v2
    v_add_u32 v8, s{sA}, v8
    v_lshlrev_b32 v9, 4, v0
    v_add_u32 v9, s51, v9
    v_add_u32 v9, {WS_FLG}, v9
    s_lshl_b32 s{sB}, s{sB}, 2
    s_add_u32 s{sB}, s{sB}, {GO}
    v_mov_b32 v11, s{sB}
    """)
    e.vq, e.lq = [], []
    e.vm(f"buffer_load_dwordx4 v[12:15], v4, s[{S_X}:{S_X + 3}], 0 offen", "x0")
    e.vm(f"buffer_load_dwordx4 v[16:19], v4, s[{S_X}:{S_X + 3}], 0 offen offset:128", "x1")
    spin = R["opt"].get("finspin", 200000)
    slp = R["opt"].get("finsleep", 1)
    e(f"""
    s_mov_b32 s{sB}, {spin}
    s_bitcmp1_b32 s{sW}, 0
    s_cbranch_scc1 L_fin_watch
    s_cmp_eq_u32 s{sW}, 0
    s_cbranch_scc1 L_fin_poll
    s_cmp_lt_u32 s2, 128
    s_cbranch_scc1 L_fin_pollall
    L_fin_poll:
    buffer_load_dword v20, v8, s[{S_WS}:{S_WS + 3}], 0 offen sc1
    s_waitcnt vmcnt(0)
    v_cmp_eq_u32 vcc, 1, v20
    s_sub_u32 s{sB}, s{sB}, 1
    s_cmp_eq_u32 s{sB}, 0
    s_cbranch_scc1 L_fin_set
    s_cmp_eq_u64 vcc, -1
    s_cbranch_scc1 L_fin_set
    s_sleep {slp}
    s_branch L_fin_poll
    """)
    if R["opt"].get("pipepoll"):
        e(f"""
    L_fin_pollall:
    buffer_load_dwordx4 v[128:131], v9, s[{S_WS}:{S_WS + 3}], 0 offen sc1
    s_sleep {R["opt"].get("pipesleep", 8)}
    buffer_load_dwordx4 v[132:135], v9, s[{S_WS}:{S_WS + 3}], 0 offen sc1
    L_fin_pollall_loop:
    s_waitcnt vmcnt(1)
    v_and_b32 v128, v128, v129
    v_and_b32 v130, v130, v131
    v_and_b32 v20, v128, v130
    v_cmp_eq_u32 vcc, 1, v20
    s_sub_u32 s{sB}, s{sB}, 1
    s_cmp_eq_u32 s{sB}, 0
    s_cbranch_scc1 L_fin_set2
    s_cmp_eq_u64 vcc, -1
    s_cbranch_scc1 L_fin_set2
    buffer_load_dwordx4 v[128:131], v9, s[{S_WS}:{S_WS + 3}], 0 offen sc1
    s_waitcnt vmcnt(1)
    v_and_b32 v132, v132, v133
    v_and_b32 v134, v134, v135
    v_and_b32 v20, v132, v134
    v_cmp_eq_u32 vcc, 1, v20
    s_sub_u32 s{sB}, s{sB}, 1
    s_cmp_eq_u32 s{sB}, 0
    s_cbranch_scc1 L_fin_set2
    s_cmp_eq_u64 vcc, -1
    s_cbranch_scc1 L_fin_set2
    buffer_load_dwordx4 v[132:135], v9, s[{S_WS}:{S_WS + 3}], 0 offen sc1
    s_branch L_fin_pollall_loop
    L_fin_set2:
    """)
    else:
        e(f"""
    L_fin_pollall:
    buffer_load_dwordx4 v[20:23], v9, s[{S_WS}:{S_WS + 3}], 0 offen sc1
    s_waitcnt vmcnt(0)
    v_and_b32 v20, v20, v21
    v_and_b32 v22, v22, v23
    v_and_b32 v20, v20, v22
    v_cmp_eq_u32 vcc, 1, v20
    s_sub_u32 s{sB}, s{sB}, 1
    s_cmp_eq_u32 s{sB}, 0
    s_cbranch_scc1 L_fin_set
    s_cmp_eq_u64 vcc, -1
    s_cbranch_scc1 L_fin_set
    s_sleep {slp}
    s_branch L_fin_pollall
    """)
    e(f"""
    L_fin_set:
    v_mov_b32 v20, 1
    ds_write_b32 v11, v20
    s_branch L_fin_go
    L_fin_watch:
    s_lshl_b32 s{sB}, s{sB}, 4
    L_fin_watch_loop:
    ds_read_b32 v20, v11
    s_waitcnt lgkmcnt(0)
    v_readfirstlane_b32 s{sA}, v20
    s_sub_u32 s{sB}, s{sB}, 1
    s_cmp_eq_u32 s{sB}, 0
    s_cbranch_scc1 L_fin_go
    s_cmp_eq_u32 s{sA}, 1
    s_cbranch_scc0 L_fin_watch_loop
    L_fin_go:
    """)
    R["stamp"]("polled")
    e.vq = []
    e.vm(f"buffer_load_dword v10, v7, s[{S_WS}:{S_WS + 3}], 0 offen sc1", "st")
    for i in range(2):
        for g in range(8):
            e.vm(f"buffer_load_dwordx4 {rng('v', 64 + 32 * i + 4 * g, 4)}, v{5 + i}, s[{S_WS}:{S_WS + 3}], s{52 + g} offen sc1",
                 ("p", i, g))
    e(f"""
    s_cmp_lt_u32 s{sW}, 2
    s_cbranch_scc1 L_fin_nosel1
    s_cmp_ge_u32 s2, 128
    s_cbranch_scc1 L_fin_nosel1
    s_lshr_b32 s50, s2, 4                   ; j
    s_and_b32 s51, s2, 15                   ; cp
    s_and_b32 s70, s{sW}, 1                 ; par
    v_readlane_b32 s46, v26, s50            ; token
    v_readlane_b32 s47, v28, s50            ; sigmoid(r)
    s_lshl_b32 s{sA}, s51, 9                ; w*2048 + u*512 = cp*512
    s_lshl_b32 s{sB}, s50, 6
    s_add_u32 s{sA}, s{sA}, s{sB}
    s_lshl_b32 s{sB}, s70, 3
    s_add_u32 s{sA}, s{sA}, s{sB}
    s_add_u32 s{sA}, s{sA}, {WS_YP}
    v_lshrrev_b32 v24, 2, v0
    v_lshlrev_b32 v24, 13, v24
    v_and_b32 v25, 3, v0                    ; q4
    v_lshl_add_u32 v24, v25, 4, v24
    v_add_u32 v24, s{sA}, v24
    s_lshr_b32 s{sA}, s46, 6
    s_lshl_b32 s{sA}, s{sA}, 16
    s_lshl_b32 s{sB}, s51, 12
    s_add_u32 s{sA}, s{sA}, s{sB}
    s_lshl_b32 s{sB}, s70, 11
    s_add_u32 s{sA}, s{sA}, s{sB}
    s_bfe_u32 s{sB}, s46, {5 | (1 << 16)}
    s_lshl_b32 s{sB}, s{sB}, 10
    s_add_u32 s{sA}, s{sA}, s{sB}
    s_and_b32 s{sB}, s46, 31
    s_lshl_b32 s{sB}, s{sB}, 4
    s_add_u32 s{sA}, s{sA}, s{sB}
    v_lshrrev_b32 v27, 1, v25
    v_lshlrev_b32 v27, 9, v27
    v_and_b32 v29, 1, v25
    v_lshl_add_u32 v27, v29, 3, v27
    v_add_u32 v27, s{sA}, v27
    s_lshl_b32 s{sA}, s46, 10
    s_lshl_b32 s{sB}, s51, 6
    s_add_u32 s{sA}, s{sA}, s{sB}
    s_lshl_b32 s{sB}, s70, 5
    s_add_u32 s{sA}, s{sA}, s{sB}
    v_lshlrev_b32 v29, 3, v25
    v_add_u32 v29, s{sA}, v29
    s_lshl_b32 s{sA}, s46, 2
    s_add_u32 s{sA}, s{sA}, {WS_STAT}
    v_mov_b32 v30, s{sA}
    s_mov_b32 s{sA}, 0
    """)
    for i in range(14):
        e(f"buffer_load_dwordx2 {rng('v', 180 + 2 * i, 2)}, v24, s[{S_WS}:{S_WS + 3}], s{sA} offen sc1")
        e(f"s_add_u32 s{sA}, s{sA}, {16 * 8192}")
    for g in range(8):
        e(f"buffer_load_dwordx2 {rng('v', 160 + 2 * g, 2)}, v27, s[{S_WS}:{S_WS + 3}], s{52 + g} offen sc1")
    e(f"""
    buffer_load_dwordx2 v[176:177], v29, s[{S_X}:{S_X + 3}], 0 offen
    buffer_load_dword v178, v30, s[{S_WS}:{S_WS + 3}], 0 offen sc1
    L_fin_nosel1:
    """)
    for j in range(8):
        e(f"v_cmp_ne_u32 s[{mk[j & 3]}:{mk[j & 3] + 1}], s{8 + j}, v3")
        if (j & 3) == 3:
            e("s_nop 0")
            e(f"s_and_b64 s[{mk[0]}:{mk[0] + 1}], s[{mk[0]}:{mk[0] + 1}], s[{mk[1]}:{mk[1] + 1}]")
            e(f"s_and_b64 s[{mk[2]}:{mk[2] + 1}], s[{mk[2]}:{mk[2] + 1}], s[{mk[3]}:{mk[3] + 1}]")
            if j == 3:
                e(f"s_and_b64 s[68:69], s[{mk[0]}:{mk[0] + 1}], s[{mk[2]}:{mk[2] + 1}]")
            else:
                e(f"s_and_b64 s[{mk[0]}:{mk[0] + 1}], s[{mk[0]}:{mk[0] + 1}], s[{mk[2]}:{mk[2] + 1}]")
                e(f"s_and_b64 s[68:69], s[68:69], s[{mk[0]}:{mk[0] + 1}]")
    P = lambda b: f"v[{b}:{b + 1}]"

    def regular(extra):
        e.vq = ["st"] + [("p", i, g) for i in range(2) for g in range(8)] + ["sel"] * extra
        e.need(vtags=["st"])
        e(f"""
        v_mov_b32 v31, 0x7ffffff0
        v_cndmask_b32 v32, v31, v4, s[68:69]
        v_and_b32 v34, s{sM}, v10               ; sd
        v_rcp_f32 v34, v34
        v_lshlrev_b32 v33, 16, v10              ; mean
        v_mul_f32 v30, v33, v34
        v_sub_f32 v36, 0, v30
        """)
        for i in range(2):
            acc = 40
            for g in sum_partials(e, 64 + 32 * i, acc, 8, 4, 16, 17):
                e.need(vtags=[("p", i, g)])
            xr = 12 + 4 * i
            for q in range(4):
                e(f"v_lshlrev_b32 v{48 + 2 * q}, 16, v{xr + q}")
                e(f"v_and_b32 v{49 + 2 * q}, s{sM}, v{xr + q}")
            for q in range(4):
                e(f"v_pk_fma_f32 {P(56 + 2 * q)}, {P(48 + 2 * q)}, v[34:35], v[36:37] op_sel_hi:[1,0,0]")
            T0 = 64 + 32 * i
            for q in range(4):
                e(f"v_pk_mul_f32 {P(T0 + 2 * q)}, {P(56 + 2 * q)}, s[18:19]")
            for q in range(8):
                e(f"v_exp_f32 v{T0 + q}, v{T0 + q}")
            for q in range(4):
                e(f"v_pk_add_f32 {P(T0 + 2 * q)}, {P(T0 + 2 * q)}, s[48:49]")
            for q in range(8):
                e(f"v_rcp_f32 v{T0 + q}, v{T0 + q}")
            for q in range(4):
                e(f"v_pk_mul_f32 {P(56 + 2 * q)}, {P(56 + 2 * q)}, {P(T0 + 2 * q)}")
            for q in range(4):
                e(f"v_pk_fma_f32 {P(48 + 2 * q)}, {P(acc + 2 * q)}, {P(56 + 2 * q)}, {P(48 + 2 * q)}")
            for q in range(4):
                e(f"v_cvt_pk_bf16_f32 v{T0 + 8 + q}, v{48 + 2 * q}, v{49 + 2 * q}")
            e.vm(f"buffer_store_dwordx4 {rng('v', T0 + 8, 4)}, v32, s[{S_OUT}:{S_OUT + 3}], 0 offen offset:{128 * i} " + R["opt"].get("outfl", ""), "o")
    e(f"""
    s_cmp_lt_u32 s{sW}, 2
    s_cbranch_scc1 L_fin_plain
    s_cmp_lt_u32 s2, 128
    s_cbranch_scc1 L_fin_withsel
    L_fin_plain:
    """)
    regular(0)
    e(f"s_branch {R['done']}")
    e("L_fin_withsel:")
    regular(24)
    e("s_waitcnt vmcnt(2)")
    P2 = lambda b: f"v[{b}:{b + 1}]"
    for _ in sum_partials(e, 180, 40, 14, 2, 16, 17):
        pass
    for _ in sum_partials(e, 160, 56, 8, 2, 16, 17):
        pass
    e(f"""
    v_and_b32 v10, s{sM}, v178
    v_rcp_f32 v10, v10
    v_lshlrev_b32 v9, 16, v178
    v_mov_b32 v48, s47
    v_mul_f32 v8, v9, v10
    v_sub_f32 v8, 0, v8
    """)
    for x in (4, 8):
        for q in range(4):
            e(f"v_add_f32_dpp v{40 + q}, v{40 + q}, v{40 + q} row_ror:{x} row_mask:0xf bank_mask:0xf")
        if x == 4:
            e(f"v_lshlrev_b32 v64, 16, v176")
            e(f"v_and_b32 v65, s{sM}, v176")
    e(f"v_lshlrev_b32 v66, 16, v177")
    e(f"v_and_b32 v67, s{sM}, v177")
    for sw in ("v_permlane16_swap_b32", "v_permlane32_swap_b32"):
        for q in range(4):
            e(f"v_mov_b32 v{44 + q}, v{40 + q}")
        e("s_nop 0")
        for q in range(4):
            e(f"{sw} v{40 + q}, v{44 + q}")
        for q in range(4):
            e(f"v_add_f32 v{40 + q}, v{40 + q}, v{44 + q}")
    for q in range(2):
        e(f"v_cvt_pk_bf16_f32 v{50 + q}, v{40 + 2 * q}, v{41 + 2 * q}")
    for q in range(2):
        e(f"v_lshlrev_b32 v{40 + 2 * q}, 16, v{50 + q}")
        e(f"v_and_b32 v{41 + 2 * q}, s{sM}, v{50 + q}")
    for q in range(2):
        e(f"v_pk_mul_f32 {P2(40 + 2 * q)}, {P2(40 + 2 * q)}, v[48:49] op_sel_hi:[1,0]")
    for q in range(2):
        e(f"v_pk_fma_f32 {P2(72 + 2 * q)}, {P2(64 + 2 * q)}, v[10:11], v[8:9] op_sel_hi:[1,0,0]")
    for q in range(2):
        e(f"v_cvt_pk_bf16_f32 v{50 + q}, v{40 + 2 * q}, v{41 + 2 * q}")
    for q in range(2):
        e(f"v_lshlrev_b32 v{40 + 2 * q}, 16, v{50 + q}")
        e(f"v_and_b32 v{41 + 2 * q}, s{sM}, v{50 + q}")
    for q in range(2):
        e(f"v_pk_add_f32 {P2(72 + 2 * q)}, {P2(72 + 2 * q)}, {P2(40 + 2 * q)}")
    for q in range(2):
        e(f"v_pk_mul_f32 {P2(80 + 2 * q)}, {P2(72 + 2 * q)}, s[18:19]")
    for q in range(4):
        e(f"v_exp_f32 v{80 + q}, v{80 + q}")
    for q in range(2):
        e(f"v_pk_add_f32 {P2(80 + 2 * q)}, {P2(80 + 2 * q)}, s[48:49]")
    for q in range(4):
        e(f"v_rcp_f32 v{80 + q}, v{80 + q}")
    e("s_nop 0")
    for q in range(2):
        e(f"v_pk_mul_f32 {P2(72 + 2 * q)}, {P2(72 + 2 * q)}, {P2(80 + 2 * q)}")
    for q in range(2):
        e(f"v_pk_fma_f32 {P2(64 + 2 * q)}, {P2(56 + 2 * q)}, {P2(72 + 2 * q)}, {P2(64 + 2 * q)}")
    for q in range(2):
        e(f"v_cvt_pk_bf16_f32 v{76 + q}, v{64 + 2 * q}, v{65 + 2 * q}")
    e(f"""
    v_mov_b32 v31, 0x7ffffff0
    v_cmp_gt_u32 vcc, 4, v0
    s_nop 1
    v_cndmask_b32 v29, v31, v29, vcc
    s_nop 0
    buffer_store_dwordx2 v[76:77], v29, s[{S_OUT}:{S_OUT + 3}], 0 offen
    s_branch {R['done']}
    """)


def moe_tail(e, R):
    from k1 import RB, WSTR, SLOT
    T = R["T"]
    sW, sRING, sM = R["W"], R["RING"], R["M"]
    S_X, S_WS = R["X"], R["WS"]
    sRO, sSO = T[0], T[1]
    sA, sB, sC_, sD = T[2], T[3], T[4], T[5]
    mk = [T[6], T[8], T[10], T[12]]
    e(f"s_mov_b32 s{sRO}, {WS_R}")
    e(f"s_mov_b32 s{sSO}, {WS_STAT}")
    K = [8 + i for i in range(8)]
    e(f"""
    s_cmp_eq_u32 s{R['RDY']}, 0
    s_cbranch_scc1 L_moe_slow
    """)
    e.need(vtags=[("g", 4)])
    for i in range(16):
        e(f"v_accvgpr_read_b32 v{36 + i}, a{208 + i}")
    e("v_accvgpr_read_b32 v32, a224")
    e("v_accvgpr_read_b32 v23, a225")
    e(f"""
    v_and_b32 v26, 0x7ff, v23
    v_sub_u32 v26, 2047, v26
    """)
    st = R.get("stamp", lambda n: None)
    e("L_moe_gathered:")
    e.vq = []
    e(f"""
    v_and_b32 v27, s{sM}, v23
    v_ashrrev_i32 v28, 31, v27
    v_not_b32 v28, v28
    v_or_b32 v28, 0x80000000, v28
    v_xor_b32 v27, v27, v28
    v_and_b32 v27, s{sM}, v27             ; r (f32 bits)
    v_mul_f32 v28, {hex(f2u(-LOG2E))}, v27
    v_exp_f32 v28, v28
    s_nop 0
    v_add_f32 v28, 1.0, v28
    v_rcp_f32 v28, v28
    s_nop 0
    v_cvt_pk_bf16_f32 v28, v28, v28
    v_and_b32 v28, s{sM}, v28             ; bf16(sigmoid(r))
    """)
    if R.get("fused"):
        e(f"""
        s_load_dwordx2 s[20:21], s[0:1], {KA['out']}
        s_cmp_ge_u32 s2, 224
        s_cbranch_scc1 L_fin_sync
        """)
    else:
        e(f"""
        v_lshlrev_b32 v29, 2, v0
        v_add_u32 v29, {WS_IDX}, v29
        v_mov_b32 v33, 0x7ffffff0
        s_or_b32 s{sA}, s{R['SL']}, s{sW}
        s_cmp_eq_u32 s{sA}, 0
        s_cselect_b64 s[{mk[0]}:{mk[0] + 1}], -1, 0
        v_cmp_gt_u32 vcc, 8, v0
        s_nop 1
        s_and_b64 vcc, vcc, s[{mk[0]}:{mk[0] + 1}]
        v_cndmask_b32 v29, v33, v29, vcc
        """)
        e.vm(f"buffer_store_dword v26, v29, s[{S_WS}:{S_WS + 3}], 0 offen", "pub")
        e.vm(f"buffer_store_dword v28, v29, s[{S_WS}:{S_WS + 3}], 0 offen offset:32", "pub")
    e(f"""
    v_and_b32 v34, s{sM}, v32             ; sd
    v_rcp_f32 v34, v34
    v_lshlrev_b32 v30, 16, v32            ; mean
    v_sub_f32 v30, 0, v30
    """)
    st("gather")
    for i in range(0, 16, 2):
        for j in range(2):
            r, t = 36 + i + j, 52 + 2 * j
            e(f"v_lshlrev_b32 v{t}, 16, v{r}")
            e(f"v_and_b32 v{t + 1}, s{sM}, v{r}")
        for j in range(2):
            t = 52 + 2 * j
            e(f"v_pk_add_f32 v[{t}:{t + 1}], v[{t}:{t + 1}], v[30:31] op_sel_hi:[1,0]")
        for j in range(2):
            r, t = 36 + i + j, 52 + 2 * j
            e(f"v_cvt_pk_bf16_f32 v{r}, v{t}, v{t + 1}")
        for j in range(2):
            r, t = 36 + i + j, 52 + 2 * j
            e(f"v_lshlrev_b32 v{t}, 16, v{r}")
            e(f"v_and_b32 v{t + 1}, s{sM}, v{r}")
        for j in range(2):
            t = 52 + 2 * j
            e(f"v_pk_mul_f32 v[{t}:{t + 1}], v[{t}:{t + 1}], v[34:35] op_sel_hi:[1,0]")
        for j in range(2):
            r, t = 36 + i + j, 52 + 2 * j
            e(f"v_cvt_pk_bf16_f32 v{r}, v{t}, v{t + 1}")
    st("ln")
    e("v_accvgpr_write_b32 a128, 0")
    e("v_accvgpr_write_b32 a129, 0")
    for i in range(4):
        c = "0" if i == 0 else "v[56:59]"
        e(f"v_mfma_f32_16x16x32_bf16 v[56:59], {rng('a', 96 + 4 * i, 4)}, {rng('v', 36 + 4 * i, 4)}, {c}")
    e.nop(8)
    if R.get("fused"):
        flag_prepare(e, R, sA, sB, 24, 0, 1)
        e("s_waitcnt vmcnt(8)")
    e(f"""
    v_lshlrev_b32 v60, 4, v0
    v_add_u32 v61, s{sRING}, v60
    ds_write_b128 v61, v[56:59] offset:2048
    s_waitcnt lgkmcnt(0)
    s_barrier
    """)
    if R.get("fused"):
        e(f"buffer_store_dword v25, v24, s[{S_WS}:{S_WS + 3}], 0 offen sc1")
    e(f"""
    v_add_u32 v60, {RB + 2048}, v60
    v_add_u32 v61, {WSTR}, v60
    v_add_u32 v62, {2 * WSTR}, v60
    v_add_u32 v63, {3 * WSTR}, v60
    ds_read_b128 v[64:67], v60
    ds_read_b128 v[68:71], v61
    ds_read_b128 v[72:75], v62
    ds_read_b128 v[76:79], v63
    s_waitcnt lgkmcnt(0)
    """)
    e.lq = []
    for i in range(4):
        e(f"v_add_f32 v{64 + i}, v{64 + i}, v{68 + i}")
        e(f"v_add_f32 v{72 + i}, v{72 + i}, v{76 + i}")
        e(f"v_add_f32 v{64 + i}, v{64 + i}, v{72 + i}")
    for i in range(4):
        e(f"v_cvt_pk_bf16_f32 v{64 + i}, v{64 + i}, v{64 + i}")
        e(f"v_and_b32 v{64 + i}, s{sM}, v{64 + i}")
        e(f"v_mov_b32 v{68 + i}, v{64 + i}")
    e("s_nop 0")
    for i in range(4):
        e(f"v_permlane32_swap_b32 v{64 + i}, v{68 + i}")
    for i in range(4):
        silu_bf16(e, 72 + i, 64 + i, 76, 77, sM)
        e(f"v_mul_f32 v{72 + i}, v{72 + i}, v{68 + i}")
    e(f"""
    v_cvt_pk_bf16_f32 v80, v72, v73
    v_cvt_pk_bf16_f32 v81, v74, v75
    v_cmp_gt_u32 vcc, 32, v0
    v_mov_b32 v82, 0
    v_mov_b32 v83, 0
    v_cndmask_b32 v80, 0, v80, vcc
    v_cndmask_b32 v81, 0, v81, vcc
    s_nop 1
    """)
    for t in range(8):
        e(f"v_mfma_f32_16x16x32_bf16 {rng('v', 120 + 4 * t, 4)}, {rng('a', 112 + 2 * t, 4)}, v[80:83], 0")
    if R.get("fused"):
        fused_finish(e, R, sA, sB, mk)
    else:
        e(f"""
        s_lshl_b32 s{sA}, s{R['SL']}, 14
        s_lshl_b32 s{sB}, s{sW}, 9            ; 8w*16*4 bytes
        s_add_u32 s{sA}, s{sA}, s{sB}
        s_add_u32 s{sA}, s{sA}, {WS_YP}
        v_and_b32 v60, 15, v0
        v_lshlrev_b32 v61, 11, v60
        v_lshrrev_b32 v62, 4, v0
        v_lshl_add_u32 v61, v62, 4, v61
        v_add_u32 v61, s{sA}, v61
        v_mov_b32 v63, 0x1ffffff0
        v_cmp_gt_u32 vcc, 8, v60
        s_nop 1
        v_cndmask_b32 v61, v63, v61, vcc
        s_nop 1
        """)
        for t in range(8):
            e(f"buffer_store_dwordx4 {rng('v', 120 + 4 * t, 4)}, v61, s[{S_WS}:{S_WS + 3}], 0 offen offset:{t * 64}")
        e(f"s_branch {R['done']}")

    e("L_moe_slow:")
    dbg = R["DBG"]
    e(f"""
    s_barrier
    s_mov_b32 s{sB}, {R.get('spin', 4000)}
    v_mov_b32 v21, 0
    L_moe_spin:
    global_load_dword v22, v21, s[{dbg}:{dbg + 1}] sc1
    s_waitcnt vmcnt(0)
    v_readfirstlane_b32 s{sA}, v22
    s_nop 0
    s_cmp_ge_u32 s{sA}, {R['NCNT']}
    s_cbranch_scc1 L_moe_spin_ok
    s_sleep 8
    s_sub_u32 s{sB}, s{sB}, 1
    s_cmp_lg_u32 s{sB}, 0
    s_cbranch_scc1 L_moe_spin
    L_moe_spin_ok:
    s_cmp_ge_u32 s{sA}, {R['NCNT']}
    s_cselect_b32 s{sA}, 1, 0
    v_mov_b32 v22, s{sA}
    v_mov_b32 v23, s{sRING}
    ds_write_b32 v23, v22 offset:128
    s_waitcnt lgkmcnt(0)
    s_barrier
    v_mov_b32 v23, {RB}
    ds_read_b32 v32, v23 offset:128
    ds_read_b32 v33, v23 offset:{WSTR + 128}
    ds_read_b32 v34, v23 offset:{2 * WSTR + 128}
    v_add_u32 v23, {3 * WSTR}, v23
    ds_read_b32 v35, v23 offset:128
    s_waitcnt lgkmcnt(0)
    v_and_b32 v32, v32, v33
    v_and_b32 v34, v34, v35
    v_and_b32 v32, v32, v34
    s_nop 0
    v_readfirstlane_b32 s{sA}, v32
    s_nop 0
    s_cmp_eq_u32 s{sA}, 1
    s_cbranch_scc1 L_moe_reload
    """)
    e(f"""
    s_lshl_b32 s{sRO}, s{R['SL']}, 14
    s_add_u32 s{sRO}, s{sRO}, {WS_FB}
    s_add_u32 s{sSO}, s{sRO}, 8192
    v_lshlrev_b32 v21, 4, v0
    buffer_load_dwordx4 v[40:43], v21, s[{R['WR']}:{R['WR'] + 3}], 0 offen
    s_lshl_b32 s{sB}, s{sW}, 9
    s_add_u32 s{sC_}, s{sB}, 512
    s_waitcnt vmcnt(0)
    """)
    for i in range(4):
        e(f"v_lshlrev_b32 v{44 + 2 * i}, 16, v{40 + i}")
        e(f"v_and_b32 v{45 + 2 * i}, s{sM}, v{40 + i}")
    e(f"""
    L_moe_fb:
    s_lshl_b32 s{sA}, s{sB}, 10
    buffer_load_dwordx4 v[40:43], v21, s[{S_X}:{S_X + 3}], s{sA} offen
    s_waitcnt vmcnt(0)
    """)
    for i in range(4):
        e(f"v_lshlrev_b32 v{56 + 2 * i}, 16, v{40 + i}")
        e(f"v_and_b32 v{57 + 2 * i}, s{sM}, v{40 + i}")

    def wave_sum(v, t):
        for x in (1, 2, 4, 8):
            e(f"s_nop 1")
            e(f"v_add_f32_dpp v{v}, v{v}, v{v} row_ror:{x} row_mask:0xf bank_mask:0xf")
        e(f"v_mov_b32 v{t}, v{v}")
        e("s_nop 1")
        e(f"v_permlane16_swap_b32 v{v}, v{t}")
        e("s_nop 0")
        e(f"v_add_f32 v{v}, v{v}, v{t}")
        e(f"v_mov_b32 v{t}, v{v}")
        e("s_nop 1")
        e(f"v_permlane32_swap_b32 v{v}, v{t}")
        e("s_nop 0")
        e(f"v_add_f32 v{v}, v{v}, v{t}")
    e("v_add_f32 v64, v56, v57")
    for i in range(2, 8):
        e(f"v_add_f32 v64, v64, v{56 + i}")
    wave_sum(64, 65)
    e(f"v_mul_f32 v64, {hex(f2u(1.0 / 512))}, v64        ; mean")
    e("v_sub_f32 v66, v56, v64")
    e("v_mul_f32 v67, v66, v66")
    for i in range(1, 8):
        e(f"v_sub_f32 v66, v{56 + i}, v64")
        e(f"v_fmac_f32 v67, v66, v66")
    wave_sum(67, 65)
    e(f"""
    v_mul_f32 v67, {hex(f2u(1.0 / 512))}, v67
    v_cvt_pk_bf16_f32 v68, v64, v67
    v_and_b32 v69, s{sM}, v68
    v_add_f32 v69, {hex(f2u(1e-5))}, v69
    v_cvt_pk_bf16_f32 v69, v69, v69
    v_and_b32 v69, s{sM}, v69
    v_sqrt_f32 v69, v69
    v_lshlrev_b32 v64, 16, v68
    v_cvt_pk_bf16_f32 v69, v69, v69
    v_and_b32 v69, s{sM}, v69             ; sd
    v_rcp_f32 v70, v69
    v_and_b32 v68, 0xffff, v68
    v_or_b32 v68, v68, v69
    v_mov_b32 v71, 0
    """)
    for i in range(8):
        e(f"""
        v_sub_f32 v66, v{56 + i}, v64
        v_mul_f32 v66, v66, v70
        v_cvt_pk_bf16_f32 v66, v66, v66
        v_and_b32 v66, s{sM}, v66
        v_fmac_f32 v71, v66, v{44 + i}
        """)
    wave_sum(71, 65)
    e(f"""
    v_cvt_pk_bf16_f32 v71, v71, v71
    v_and_b32 v71, s{sM}, v71
    v_ashrrev_i32 v72, 31, v71
    v_or_b32 v72, 0x80000000, v72
    v_xor_b32 v71, v71, v72
    s_sub_u32 s{sA}, 2047, s{sB}
    v_mov_b32 v72, s{sA}
    v_and_or_b32 v71, v71, s{sM}, v72
    s_lshl_b32 s{sA}, s{sB}, 2
    v_mov_b32 v72, s{sA}
    v_add_u32 v73, s{sRO}, v72
    v_add_u32 v74, s{sSO}, v72
    v_cmp_eq_u32 vcc, 0, v0
    s_nop 1
    s_and_saveexec_b64 s[{mk[0]}:{mk[0] + 1}], vcc
    buffer_store_dword v71, v73, s[{S_WS}:{S_WS + 3}], 0 offen sc1
    buffer_store_dword v68, v74, s[{S_WS}:{S_WS + 3}], 0 offen sc1
    s_mov_b64 exec, s[{mk[0]}:{mk[0] + 1}]
    s_add_u32 s{sB}, s{sB}, 1
    s_cmp_lt_u32 s{sB}, s{sC_}
    s_cbranch_scc1 L_moe_fb
    s_waitcnt vmcnt(0)
    s_barrier
    L_moe_reload:
    s_lshl_b32 s{sA}, s{sW}, 11
    v_lshlrev_b32 v21, 5, v0
    v_add_u32 v21, s{sA}, v21
    v_add_u32 v21, s{sRO}, v21
    buffer_load_dwordx4 v[8:11], v21, s[{S_WS}:{S_WS + 3}], 0 offen sc1
    buffer_load_dwordx4 v[12:15], v21, s[{S_WS}:{S_WS + 3}], 0 offen offset:16 sc1
    s_mov_b32 s{R['RDY']}, 1
    s_waitcnt vmcnt(0)
    s_barrier
    """)
    e("L_moe_keys:")
    wave_top8(e, K, 16, 20, 17, sA, mk[0])
    st("top8")
    e(f"""
    v_mov_b32 v21, s{R['RDY']}
    v_cmp_eq_u32 vcc, 8, v0
    v_lshlrev_b32 v22, 2, v0
    v_add_u32 v22, s{sRING}, v22
    v_cndmask_b32 v20, v20, v21, vcc
    v_cmp_gt_u32 vcc, 9, v0
    s_nop 1
    s_and_saveexec_b64 s[{mk[0]}:{mk[0] + 1}], vcc
    ds_write_b32 v22, v20
    s_mov_b64 exec, s[{mk[0]}:{mk[0] + 1}]
    s_waitcnt lgkmcnt(0)
    s_barrier
    """)
    e(f"""
    v_lshrrev_b32 v21, 3, v0
    v_and_b32 v21, 3, v21
    v_mul_u32_u24 v21, {WSTR}, v21
    v_and_b32 v22, 7, v0
    v_lshl_add_u32 v21, v22, 2, v21
    v_mov_b32 v23, {RB}
    v_add_u32 v21, v23, v21
    ds_read_b32 v24, v21
    """)
    for w_ in range(4):
        e(f"v_add_u32 v{100 + w_}, {w_ * WSTR}, v23")
    for w_ in range(4):
        e(f"ds_read_b128 v[{32 + 8 * w_}:{35 + 8 * w_}], v{100 + w_}")
        e(f"ds_read_b128 v[{36 + 8 * w_}:{39 + 8 * w_}], v{100 + w_} offset:16")
        e(f"ds_read_b32 v{104 + w_}, v{100 + w_} offset:32")
    e(f"""
    s_waitcnt lgkmcnt(0)
    v_and_b32 v104, v104, v105
    v_and_b32 v106, v106, v107
    v_and_b32 v104, v104, v106
    v_mov_b32 v25, 0
    v_readfirstlane_b32 s{sA}, v104
    s_nop 0
    s_cmp_eq_u32 s{sA}, 0
    s_cbranch_scc1 L_moe_slow
    """)
    for j0 in range(0, 32, 4):
        for q in range(4):
            e(f"v_cmp_gt_u32 s[{mk[q]}:{mk[q] + 1}], v{32 + j0 + q}, v24")
        for q in range(4):
            e(f"v_addc_co_u32 v25, vcc, 0, v25, s[{mk[q]}:{mk[q] + 1}]")
    e(f"""
    v_cmp_gt_u32 s[{mk[0]}:{mk[0] + 1}], 8, v25
    v_cmp_gt_u32 vcc, 32, v0
    v_lshlrev_b32 v26, 2, v25
    v_add_u32 v26, s{sRING}, v26
    s_and_b64 vcc, vcc, s[{mk[0]}:{mk[0] + 1}]
    s_and_saveexec_b64 s[{mk[1]}:{mk[1] + 1}], vcc
    ds_write_b32 v26, v24 offset:64
    s_mov_b64 exec, s[{mk[1]}:{mk[1] + 1}]
    v_and_b32 v22, 7, v0
    v_lshlrev_b32 v22, 2, v22
    v_add_u32 v22, s{sRING}, v22
    ds_read_b32 v23, v22 offset:64
    s_waitcnt lgkmcnt(0)
    v_and_b32 v26, 0x7ff, v23
    v_sub_u32 v26, 2047, v26
    """)
    st("merge")
    e(f"""
    v_lshrrev_b32 v30, 4, v0
    v_lshlrev_b32 v30, 4, v30             ; q4*16
    v_lshl_add_u32 v30, v26, 10, v30
    s_lshl_b32 s{sA}, s{sW}, 8            ; 4w*64 bytes
    v_lshlrev_b32 v31, 2, v26
    v_add_u32 v31, s{sSO}, v31
    """)
    e.vq, e.lq = ["old"], []
    e.vm(f"buffer_load_dword v32, v31, s[{S_WS}:{S_WS + 3}], 0 offen sc1", "st")
    for i in range(4):
        e.vm(f"buffer_load_dwordx4 {rng('v', 36 + 4 * i, 4)}, v30, s[{S_X}:{S_X + 3}], s{sA} offen offset:{64 * i}",
             ("xg", i))
    e("s_waitcnt vmcnt(0)")
    e("s_branch L_moe_gathered")


WS_FB = 24 << 20
```

```python
from emit import E, check_hazards, check_scc
from asmlib import KA

RB = 65536
WSTR = 24576
SLOT = 8192
C_SCALE = 1.4426950408889634 * (128 ** -0.5)

WS_PART = 0
WS_R = 16 << 20
WS_STAT = WS_R + 8192
WS_H = WS_R + 65536
WS_IDX = WS_H + 32768
WS_FLG = WS_R + 32768
WS_TS = 32 << 20


def f2u(x):
    import struct
    return struct.unpack("<I", struct.pack("<f", x))[0]


S_X, S_WQ, S_K, S_V, S_WO, S_WS, S_WR = 4, 8, 12, 16, 20, 24, 28
sG, sTB, sW, sSK = 32, 33, 34, 35
sWQO, sWOO, sKO, sVO = 36, 37, 38, 39
sRING = 40
sCNT = 41
sT0, sT1, sT2, sT3 = 42, 43, 44, 45
sKSL, sVSL = 46, 47
sKD, sVD = 48, 49
sTRIP = 50
sGA = 52
sGB = 56
sGAO, sGBO = 60, 61
sGAM, sGBM = 62, 63
sMASK = 64
sPASS = 70
sKVB = 71
sKVT = 51
sDBG = 72
sSL = 98
sRDY = 99
sFP = 92
sHFD = 70
sTS = 74

vLANE = 0
vWQ = 1
vWO = 5
vKDM = 9
vVDM = 13
vAA = 14
vAB = 22
vBR = 30
vKR = 32
vVR = 40
vGA = 44
vGB = 48
vL = 52
vOW = 56
vPS = 57
vT = 58
vQ = 64
vS = 128
vP = 192
vNM = 224
vACC = 128

aA = 0
aB = 96
aF = 0
aO = 128


def rng(f, b, n):
    return f"{f}[{b}:{b + n - 1}]" if n > 1 else f"{f}{b}"


def Bset(setidx, tq):
    if setidx < 2:
        return rng("a", aB + setidx * 16 + tq * 4, 4)
    return rng("v", 64 + tq * 4, 4)


def Aset(setidx, dt):
    return rng("a", aA + setidx * 32 + dt * 4, 4)


def Ahalf(setidx, dt, rd):
    return rng("a", aA + setidx * 32 + dt * 4 + 2 * rd, 2)


def acc16(dt, tq):
    return rng("v", vACC + (dt * 4 + tq) * 4, 4)


OPT = {}
STAMP = [None]
GSTAMP = [None]
P3_STATIC = [False]
NS3 = 5


class Slots:
    def __init__(self, n):
        self.n = n
        self.f = [[] for _ in range(n + 1)]

    def at(self, i, fn):
        self.f[min(max(i, 0), self.n)].append(fn)


class Side:
    def __init__(self):
        self.q = []
        self.last = None

    def add(self, x, gap=0, cond=None):
        self.q.append((x, gap, cond))

    def states_since(self, e):
        if self.last is None:
            return 99
        n = 0
        for l in e.l[self.last:]:
            t = l.strip()
            if t.endswith(":") or not t:
                continue
            n += int(t.split()[1], 0) + 1 if t.startswith("s_nop") else 1
        return n

    def emit(self, e, budget, pos=None, flush=False):
        while self.q and (budget > 0 or flush):
            x, gap, cond = self.q[0]
            if cond is not None and pos is not None and pos < cond and not flush:
                return
            have = self.states_since(e)
            if have < gap:
                if not flush:
                    return
                e.nop(gap - have)
            self.q.pop(0)
            if callable(x):
                x()
            else:
                e(x)
            self.last = len(e.l)
            budget -= 1


def gemm_step(e, p, phase, opts):
    j = p % 3
    jn = (p + 1) % 3
    va = vAA if phase == 1 else vAB
    rdoff = 1024 if phase == 1 else 2048
    sl = Slots(32)
    if opts.get("next", True):
        reads = []
        for dt in range(8):
            for rd in range(2):
                reads.append((dt, rd))
        spread = OPT.get("aspread", 16)
        for n, (dt, rd) in enumerate(reads):
            def f(dt=dt, rd=rd):
                if OPT.get("noaread"):
                    return
                e.lds(f"ds_read_b64_tr_b16 {Ahalf(jn, dt, rd)}, v{va + dt} offset:{jn * SLOT + rd * rdoff}",
                      ("A", p + 1, dt))
            sl.at(n * spread // 16, f)
        for tq in range(4):
            def f(tq=tq):
                e.lds(f"ds_read_b128 {Bset(jn, tq)}, v{vBR} offset:{opts['boff_next'] + tq * 1024}", ("B", p + 1, tq))
            sl.at(spread + tq, f)
    for pos, fn in opts.get("fill", []):
        sl.at(pos, fn)
    if opts.get("next", True):
        e.need(vtags=opts.get("vneed"))
    for n in range(32):
        dt, tq = n // 4, n % 4
        need = [("A", p, dt), ("B", p, tq)] + ([("B", p, 3), ("A", p, 7)] if n == 0 else [])
        e.need(ltags=need)
        c = "0" if opts.get("first") else acc16(dt, tq)
        e(f"v_mfma_f32_16x16x32_bf16 {acc16(dt, tq)}, {Aset(j, dt)}, {Bset(j, tq)}, {c}")
        for fn in sl.f[n]:
            fn()
        side = opts.get("side")
        if side is not None:
            side.emit(e, opts.get("cap", 2) - len(sl.f[n]), pos=(p, n))
    for fn in sl.f[32]:
        fn()


def wdma(e, phase, i, tag):
    if OPT.get("nodma") and tag[1] > 3:
        e.vq.append(tag)
        return
    if phase == 1:
        e.vm(f"buffer_load_dwordx4 v{vWQ + i}, s[{S_WQ}:{S_WQ + 3}], s{sWQO} offen offset:{i * 1024} lds", tag)
    else:
        e.vm(f"buffer_load_dwordx4 v{vWO + i}, s[{S_WO}:{S_WO + 3}], s{sWOO} offen offset:{i * 1024} lds", tag)


def wdma_adv(e, phase):
    if phase == 1:
        e(f"s_add_u32 s{sWQO}, s{sWQO}, {16 * 8192}")
        e(f"s_and_b32 s{sWQO}, s{sWQO}, {512 * 8192 - 1}")
    else:
        e(f"s_add_u32 s{sT0}, s{sWOO}, {16 * 1024}")
        e(f"s_and_b32 s{sT0}, s{sT0}, {512 * 1024 - 1}")
        e(f"s_and_b32 s{sWOO}, s{sWOO}, {~(512 * 1024 - 1) & 0xffffffff}")
        e(f"s_or_b32 s{sWOO}, s{sWOO}, s{sT0}")


def half_dma(e, phase, slot, half, tag):
    def m0():
        e(f"s_add_u32 m0, s{sRING}, {slot * SLOT + half * 4096}")
    out = [m0]
    for i in range(4):
        out.append(lambda i=i: wdma(e, phase, i, tag))
    out.append(lambda: wdma_adv(e, phase))
    return out


def serial(e, fl):
    fl[0]()
    e("s_nop 0")
    for fn in fl[1:]:
        fn()


def place(fl, start, stride):
    res = [(start, fl[0])]
    for i in range(4):
        res.append((start + 1 + i * stride, fl[1 + i]))
    res.append((start + 1 + 3 * stride, fl[5]))
    return res


def kv_dma(e, which, tile_slot, tag):
    out = []
    if which == "K":
        out.append(lambda: e(f"s_add_u32 m0, s{sRING}, {tile_slot * SLOT}"))
        for i in range(4):
            out.append(lambda i=i: e.vm(
                f"buffer_load_dwordx4 v{vKDM + i}, s[{S_K}:{S_K + 3}], s{sKO} offen offset:{i * 1024} lds", tag))
        out.append(lambda: kv_adv(e, sKO))
    else:
        out.append(lambda: e(f"s_add_u32 m0, s{sRING}, {tile_slot * SLOT + 4096}"))
        for i in range(4):
            out.append(lambda i=i: e.vm(
                f"buffer_load_dwordx4 v{vVDM}, s[{S_V}:{S_V + 3}], s{sVO} offen offset:{i * 1024} lds", tag))
        out.append(lambda: kv_adv(e, sVO))
    return out


def kv_adv(e, sreg):
    e(f"s_add_u32 s{sreg}, s{sreg}, 16384")
    e(f"s_and_b32 s{sreg}, s{sreg}, {8 * 16384 - 1}")


def gemm_pre(e, phase):
    va = vAA if phase == 1 else vAB
    rdoff = 1024 if phase == 1 else 2048
    e.need(vtags=[("W", 0, 0), ("W", 0, 1)])
    for tq in range(4):
        e.lds(f"ds_read_b128 {Bset(0, tq)}, v{vBR} offset:{tq * 1024}", ("B", 0, tq))
    for dt in range(8):
        for rd in range(2):
            e.lds(f"ds_read_b64_tr_b16 {Ahalf(0, dt, rd)}, v{va + dt} offset:{rd * rdoff}", ("A", 0, dt))


def gemm_main(e, phase, tail_fill, side=None):
    e.need(ltags=[("A", 0, 7)])
    serial(e, half_dma(e, phase, 0, 0, ("W", 3, 0)))

    def step_opts(p, boff_next):
        fill = []
        sp = OPT.get("aspread", 16)
        if p + 3 <= 15:
            fl = half_dma(e, phase, p % 3, 1, ("W", p + 3, 1))
            fill += [(0, fl[0])] + [(2 + 4 * i, fl[1 + i]) for i in range(4)] + [(sp + 4, fl[5])]
        if p + 4 <= 15:
            fl = half_dma(e, phase, (p + 1) % 3, 0, ("W", p + 4, 0))

            def guard(p=p):
                e.need(ltags=[("A", p + 1, 7)])
            fill += [(sp + 5, guard), (sp + 5, fl[0])] + [(min(sp + 6 + 3 * i, 31), fl[1 + i]) for i in range(4)] + [(32, fl[5])]
        return dict(first=(p == 0), next=(p < 15), boff_next=boff_next, fill=fill,
                    vneed=[("W", p + 1, 0), ("W", p + 1, 1)])

    if GSTAMP[0]:
        GSTAMP[0]("p1_pre")
    o = step_opts(0, 1 * 4096)
    gemm_step(e, 0, phase, o)
    if GSTAMP[0]:
        GSTAMP[0]("p1_s0")
    lab = f"L_g{phase}_loop"
    e(f"s_mov_b32 s{sCNT}, 3")
    e(f"v_add_u32 v{vBR}, {1 * 4096}, v{vBR}")
    lq0, vq0 = list(e.lq), list(e.vq)
    e(f"{lab}:")
    n0 = len(e.l)
    for u in range(3):
        p = 1 + u
        o = step_opts(p, (u + 1) * 4096)
        if u == 2:
            o["fill"] = o["fill"] + [(24, lambda: e(f"v_add_u32 v{vBR}, {3 * 4096}, v{vBR}")),
                                     (32, lambda: e(f"s_sub_u32 s{sCNT}, s{sCNT}, 1")),
                                     (32, lambda: e(f"s_cmp_lg_u32 s{sCNT}, 0"))]
        gemm_step(e, p, phase, o)
    e(f"s_cbranch_scc1 {lab}")
    body = e.l[n0:]
    probs = check_hazards(body + body, f"gemm{phase} loop x2")
    assert not probs or any(k.startswith("no") for k in OPT), "\n".join(probs[:10])
    sh = lambda q, d: [(t[0], t[1] + d) + tuple(t[2:]) if t else t for t in q]
    assert sh(lq0, 3) == e.lq or OPT.get('noaread'), (lq0, e.lq)
    assert sh(vq0, 3) == e.vq, (vq0, e.vq)
    e.lq, e.vq = sh(e.lq, 6), sh(e.vq, 6)
    for p in range(10, 16):
        if GSTAMP[0] and p in (10, 13):
            GSTAMP[0](f"p1_s{p}")
        o = step_opts(p, (p - 10 + 1) * 4096)
        o["fill"] = o["fill"] + tail_fill(p)
        o["side"] = side
        o["cap"] = OPT.get("sidecap", 2)
        gemm_step(e, p, phase, o)


def acc3(hf, nt, tq):
    return rng("v", vACC + 64 * hf + (nt * 4 + tq) * 4, 4)


def A3(st, nt, rd=None):
    b = st * 16 + nt * 4
    return rng("a", b, 4) if rd is None else rng("a", b + 2 * rd, 2)


def B3(st, tq):
    return rng("a", 48 + st * 16 + tq * 4, 4)


def p3_dma(e, u):
    out = [lambda: e(f"s_add_u32 m0, s{sRING}, {(u % NS3) * 4096}")]
    for i in range(4):
        out.append(lambda i=i: e.vm(
            f"buffer_load_dwordx4 v{vWO + i}, s[{S_WO}:{S_WO + 3}], s{sWOO} offen offset:{i * 1024} lds", ("W", u)))

    def adv():
        p3_adv(e)
        if u == 9 and not OPT.get("p3unroll", 1):
            e(f"s_add_u32 s{sWOO}, s{sWOO}, s{sHFD}")
    out.append(adv)
    return out


def p3_adv(e):
    e(f"s_add_u32 s{sWOO}, s{sWOO}, {32 * 1024}")
    e(f"s_and_b32 s{sWOO}, s{sWOO}, {512 * 1024 - 1}")


def p3_reads(e, u, boff):
    st = u % 3
    r = []
    for nt in range(4):
        for rd in range(2):
            r.append(lambda nt=nt, rd=rd: e.lds(
                f"ds_read_b64_tr_b16 {A3(st, nt, rd)}, v{vAB + nt} offset:{(u % NS3) * 4096 + rd * 1024}", ("A", u, nt)))
    for tq in range(4):
        r.append(lambda tq=tq: e.lds(f"ds_read_b128 {B3(st, tq)}, v{vBR} offset:{boff + tq * 1024}", ("B", u, tq)))
    return r


def p3_step(e, u, boff_next, fill=(), side=None, cap=2):
    hf, st = u >> 4, u % 3
    sl = Slots(16)
    nxt = u < 31
    if nxt:
        rd = p3_reads(e, u + 1, boff_next)
        for n in range(8):
            sl.at(n, rd[n])
        for tq in range(4):
            sl.at(8 + tq, rd[8 + tq])
    if u + NS3 <= 31:
        fl = p3_dma(e, u + NS3)
        sl.at(0, fl[0])
        for i, pos in enumerate((2, 6, 12, 14)):
            sl.at(pos, fl[1 + i])
        sl.at(15, fl[5])
    for pos, fn in fill:
        sl.at(pos, fn)
    if nxt:
        e.need(vtags=[("W", u + 1)])
    for n in range(16):
        nt, tq = n // 4, n % 4
        e.need(ltags=[("A", u, nt), ("B", u, tq)] + ([("B", u, 3), ("A", u, 3)] if n == 0 else []))
        c = "0" if (u & 15) == 0 else acc3(hf, nt, tq)
        e(f"v_mfma_f32_16x16x32_bf16 {acc3(hf, nt, tq)}, {A3(st, nt)}, {B3(st, tq)}, {c}")
        for fn in sl.f[n]:
            fn()
        if side is not None:
            left = cap - len(sl.f[n])
            for sd in side:
                n0 = len(sd.q)
                sd.emit(e, left, pos=(u, n))
                left -= n0 - len(sd.q)
    for fn in sl.f[16]:
        fn()


def p3_epilogue_items(e, hf, regs):
    items = []
    k = 0
    for nt in range(4):
        for qb in range(2):
            R = regs[k % len(regs)]
            k += 1
            a0 = vACC + 64 * hf + (nt * 4 + 2 * qb) * 4
            a1 = a0 + 4
            items.append((f"v_cvt_pk_bf16_f32 v{R}, v{a0}, v{a0 + 1}", 2))
            items.append((f"v_cvt_pk_bf16_f32 v{R + 1}, v{a0 + 2}, v{a0 + 3}", 0))
            items.append((f"v_cvt_pk_bf16_f32 v{R + 2}, v{a1}, v{a1 + 1}", 0))
            items.append((f"v_cvt_pk_bf16_f32 v{R + 3}, v{a1 + 2}, v{a1 + 3}", 0))
            items.append((f"v_permlane16_swap_b32 v{R}, v{R + 2}", 2))
            items.append((f"v_permlane16_swap_b32 v{R + 1}, v{R + 3}", 1))
            off = (nt & 1) * 2048 + qb * 1024
            so = {(0, 0): "0", (0, 1): "s48", (1, 0): "s49", (1, 1): "s50"}[(hf, nt >> 1)]
            items.append((lambda R=R, off=off, nt=nt, qb=qb, so=so: e.vm(
                f"buffer_store_dwordx4 {rng('v', R, 4)}, v{vPS}, s[{S_WS}:{S_WS + 3}], {so} offen offset:{off} "
                + OPT.get("pstore", "sc1"), ("ps", hf, nt, qb)), 0))
    return items


def p3_loop_half0(e):
    p3_step(e, 0, 4096)
    e(f"s_mov_b32 s{sCNT}, 2")
    e(f"s_mov_b32 s{sHFD}, 0")
    e(f"v_add_u32 v{vBR}, {1 * 4096}, v{vBR}")
    lq0, vq0 = list(e.lq), list(e.vq)
    e("L_p3_loop:")
    n0 = len(e.l)
    for k in range(6):
        u = 1 + k
        fill = []
        if k == 5:
            fill = [(13, lambda: e(f"v_add_u32 v{vBR}, {6 * 4096}, v{vBR}")),
                    (15, lambda: e(f"s_mov_b32 s{sHFD}, 512")),
                    (15, lambda: e(f"s_sub_u32 s{sCNT}, s{sCNT}, 1")),
                    (15, lambda: e(f"s_cmp_lg_u32 s{sCNT}, 0"))]
        p3_step(e, u, (k + 1) * 4096, fill=fill)
    e("s_cbranch_scc1 L_p3_loop")
    body = e.l[n0:]
    probs = check_hazards(body + body, "p3 loop x2")
    assert not probs, "\n".join(probs[:10])
    sh = lambda q, d: [(t[0], t[1] + d) + tuple(t[2:]) if t else t for t in q]
    assert sh(lq0, 6) == e.lq, (lq0, e.lq)
    assert sh(vq0, 6) == e.vq, (vq0, e.vq)
    e.lq, e.vq = sh(e.lq, 6), sh(e.vq, 6)
    for u in range(13, 16):
        boff = (u - 13 + 1) * 4096 if u < 15 else -13 * 4096
        if u == 15:
            fill = [(0, lambda: e(f"v_subrev_u32 v{vBR}, {13 * 4096}, v{vBR}"))]
            p3_step(e, u, 0, fill=fill)
        else:
            p3_step(e, u, boff)


def p3_phase(e, tail_fill, side0, side1):
    if STAMP[0]:
        STAMP[0]("p3_start")
    if OPT.get("p3unroll", 1):
        cap = OPT.get("sidecap", 2)
        for u in range(16):
            fill = []
            if u == 15 - NS3:
                fill = [(16, lambda: e(f"s_add_u32 s{sWOO}, s{sWOO}, 512"))]
            P3_STATIC[0] = True
            p3_step(e, u, ((u + 1) & 15) * 4096, fill=fill, side=side0, cap=cap)
    else:
        p3_loop_half0(e)
    for u in range(16, 32):
        p = u & 15
        if STAMP[0] and u in (16, 24):
            STAMP[0](f"p3_u{u}")
        p3_step(e, u, ((p + 1) & 15) * 4096, fill=tail_fill(u), side=side0, cap=OPT.get("sidecap", 2))


def Sreg(par, qb, i=None):
    b = vS + par * 32 + qb * 16
    return rng("v", b, 16) if i is None else f"v{b + i}"


def Preg(par, qb, t):
    return rng("v", vP + par * 16 + qb * 8 + t * 4, 4)


def Qreg(s16, qb):
    return rng("v", vQ + (s16 * 2 + qb) * 4, 4)


def Oreg(db, qb):
    return rng("a", aO + (db * 2 + qb) * 16, 16)


def Fbuf(n, half=None):
    b = aF + (n % 8) * 4
    return rng("a", b, 4) if half is None else rng("a", b + 2 * half, 2)


def k_read(e, b, s16):
    if OPT.get("nokvread"):
        return
    e.lds(f"ds_read_b128 {Fbuf(s16)}, v{vKR + s16} offset:{(b & 1) * 49152}", ("K", b, s16))


def v_read(e, b, f, order=None):
    t, db = (order or VORD_T)[f]
    if OPT.get("nokvread"):
        return
    for rd in range(2):
        e.lds(f"ds_read_b64_tr_b16 {Fbuf(8 + f, rd)}, v{vVR + db} offset:{t * WSTR + rd * 2048}", ("V", b, f))


def sm_ops(e, b):
    par = b & 1
    ops = []
    S = lambda x: Sreg(par, x // 16, x % 16)
    exp = lambda x: (lambda: e(f"v_exp_f32 {S(x)}, {S(x)}") if not OPT.get("noexp") else None)
    add = lambda x: (lambda: e(f"v_add_f32 v{vL + (x // 16) * 2 + (x & 1)}, v{vL + (x // 16) * 2 + (x & 1)}, {S(x)}"))
    cvt = lambda k: (lambda: e(f"v_cvt_pk_bf16_f32 v{vP + par * 16 + k}, {S(2 * k)}, {S(2 * k + 1)}"))
    if OPT.get("nosm"):
        return []
    for k in range(16):
        ops.append((2 * k, exp(2 * k)))
        if k > 0:
            ops.append((2 * k, add(2 * k - 2)))
            ops.append((2 * k, cvt(k - 1)))
        ops.append((2 * k + 1, exp(2 * k + 1)))
        if k > 0:
            ops.append((2 * k + 1, add(2 * k - 1)))
    ops.append((32, add(30)))
    ops.append((32, add(31)))
    ops.append((32, cvt(15)))
    return ops


def sm_queue(e, b):
    par = b & 1
    S = lambda x: Sreg(par, x // 16, x % 16)
    exp = lambda x: (8, lambda: e(f"v_exp_f32 {S(x)}, {S(x)}"))
    add = lambda x: (4, lambda: e(f"v_add_f32 v{vL + (x // 16) * 2 + (x & 1)}, v{vL + (x // 16) * 2 + (x & 1)}, {S(x)}"))
    cvt = lambda k: (4, lambda: e(f"v_cvt_pk_bf16_f32 v{vP + par * 16 + k}, {S(2 * k)}, {S(2 * k + 1)}"))
    q = []
    for k in range(32):
        q.append(exp(k))
        if k >= 1:
            q.append(add(k - 1))
        if k >= 2 and k % 2 == 0:
            q.append(cvt(k // 2 - 1))
    q.append(add(31))
    q.append(cvt(15))
    return q


VORD_T = [(f // 4, f % 4) for f in range(8)]
VORD_D = [(f % 2, f // 2) for f in range(8)]


def p2_iter(e, b, qk=True, sm=True, pv=True, look="K", fill=(), vpre=False, smstart=0, vord=VORD_T, vord_next=VORD_T,
            side=None, cap=5):
    mf = []
    if qk:
        par = (b + 1) & 1
        for s16 in range(8):
            for qb in range(2):
                c = rng("v", vNM + qb * 16, 16) if s16 == 0 else Sreg(par, qb)
                mf.append((f"v_mfma_f32_32x32x16_bf16 {Sreg(par, qb)}, {Fbuf(s16)}, {Qreg(s16, qb)}, {c}",
                           ("K", b + 1, s16), s16))
    if pv:
        par = (b - 1) & 1
        for f in range(8):
            t, db = vord[f]
            for qb in range(2):
                mf.append((f"v_mfma_f32_32x32x16_bf16 {Oreg(db, qb)}, {Fbuf(8 + f)}, {Preg(par, qb, t)}, {Oreg(db, qb)}",
                           ("V", b - 1, f), 8 + f))
    n = len(mf)
    sl = Slots(n)
    if qk and pv:
        for f in range(4, 8):
            sl.at(2 * (f - 4) + 1, lambda f=f: k_read(e, b + 1, f))
        for f in range(8):
            fn = lambda f=f: v_read(e, b - 1, f)
            fn.ninstr = 2
            sl.at(2 * (f + 4) + 1, fn)
        if look == "K":
            for f in range(4):
                sl.at(24 + 2 * f + 1, lambda f=f: k_read(e, b + 2, f))
    elif qk:
        for f in range(4, 8):
            sl.at(2 * (f - 4) + 1, lambda f=f: k_read(e, b + 1, f))
        if look == "K":
            for f in range(4):
                sl.at(8 + 2 * f + 1, lambda f=f: k_read(e, b + 2, f))
    else:
        if vpre:
            for f in range(4):
                v_read(e, b - 1, f, vord)
        for f in range(4, 8):
            sl.at(2 * (f - 4) + 1, lambda f=f: v_read(e, b - 1, f, vord))
        if look == "V":
            for f in range(4):
                sl.at(8 + 2 * f + 1, lambda f=f: v_read(e, b, f, vord_next))
    if OPT.get("greedy", 1) and n == 32 and sm:
        B = OPT.get("budget", 24)
        cost = [4 * sum(2 if False else 1 for _ in sl.f[i]) for i in range(n)]
        for i in range(n):
            cost[i] = 0
            for fn in sl.f[i]:
                cost[i] += 4 * getattr(fn, "ninstr", 1)
            if (i + 1) % 4 == 0:
                cost[i] += 4
        q = sm_queue(e, b)
        tot = sum(c for c, _ in q)
        ex = sorted(enumerate(fill), key=lambda t: (t[1][0], t[0]))
        ex = [(pos, fn) for _, (pos, fn) in ex]
        done = 0
        for i in range(n):
            left = B - cost[i]
            need = tot * (i + 1) / n
            while q and done < need and q[0][0] <= left + (4 if done + 12 < need else 0):
                c, fn = q.pop(0)
                sl.at(i, fn)
                left -= c
                done += c
            while ex and ex[0][0] <= i and (left >= 4 * getattr(ex[0][1], "ninstr", 1) or ex[0][0] + 3 <= i):
                pos, fn = ex.pop(0)
                sl.at(i, fn)
                left -= 4 * getattr(fn, "ninstr", 1)
            while q and q[0][0] <= left and done < need + 16:
                c, fn = q.pop(0)
                sl.at(i, fn)
                left -= c
                done += c
        for c, fn in q:
            sl.at(n, fn)
        for pos, fn in ex:
            sl.at(n, fn)
    else:
        if sm:
            ops = sm_ops(e, b)
            for (s, fn) in ops:
                sl.at(smstart + s * (n - smstart) // 32 if s < 32 else n, fn)
        for (s, fn) in fill:
            sl.at(s, fn)
    if vpre and sm:
        pass
    for i, (txt, tag, fi) in enumerate(mf):
        if i % 4 == 0:
            tags = [tag]
            if i + 2 < n:
                tags.append(mf[i + 2][1])
            e.need(ltags=tags)
        e(txt)
        for fn in sl.f[i]:
            fn()
        if side is not None:
            side.emit(e, cap - len(sl.f[i]), pos=(b, i))
    for fn in sl.f[n]:
        fn()


def gen_k1(label, stamps=False, debug=None, opt=None):
    OPT.clear()
    OPT.update(opt or {})
    STAMP[0] = None
    GSTAMP[0] = None
    e = E()
    nst = [0]

    def stamp(name, wait=True):
        if not stamps:
            return
        if OPT.get("only") and name not in OPT["only"]:
            return
        k = nst[0]
        assert k < 9
        e(f"{stamps} s[{sTS + 2 * k}:{sTS + 2 * k + 1}]   ; stamp {k} {name}")
        if wait:
            e.wait_all(vm=False)
        nst[0] += 1
    done = f"L_{label}_done"
    e(f"""
    s_cmp_ge_u32 s2, 256
    s_cbranch_scc1 {done}
    s_load_dwordx2 s[4:5], s[0:1], 0
    s_load_dwordx2 s[12:13], s[0:1], 8
    s_load_dwordx2 s[16:17], s[0:1], 16
    s_load_dwordx2 s[8:9], s[0:1], 24
    s_load_dwordx2 s[20:21], s[0:1], {KA['wo']}
    s_load_dwordx2 s[28:29], s[0:1], {KA['wr']}
    s_load_dwordx2 s[24:25], s[0:1], {KA['ws']}
    s_load_dwordx2 s[{sDBG}:{sDBG + 1}], s[0:1], {KA['dbg']}
    s_load_dwordx4 s[{sFP}:{sFP + 3}], s[0:1], {KA['wg']}
    s_load_dwordx2 s[{sFP + 4}:{sFP + 5}], s[0:1], {KA['wd']}
    """)
    stamp("start", wait=False)
    e(f"""
    v_lshrrev_b32 v{vT}, 6, v0
    v_and_b32 v{vLANE}, 63, v0
    v_readfirstlane_b32 s{sW}, v{vT}
    """)
    mp = OPT.get("map", "A")
    if mp == "A":
        e(f"""
        s_and_b32 s{sG}, s2, 7
        s_lshr_b32 s{sTB}, s2, 3
        s_and_b32 s{sSK}, s{sTB}, 15
        s_and_b32 s{sKVT}, s{sTB}, 7
        """)
    elif mp == "B":
        e(f"""
        s_and_b32 s{sT0}, s2, 3
        s_lshl_b32 s{sT0}, s{sT0}, 1
        s_bfe_u32 s{sT1}, s2, {3 | (1 << 16)}
        s_or_b32 s{sG}, s{sT0}, s{sT1}
        s_bfe_u32 s{sT0}, s2, {2 | (1 << 16)}
        s_lshl_b32 s{sT0}, s{sT0}, 4
        s_lshr_b32 s{sT1}, s2, 4
        s_or_b32 s{sTB}, s{sT0}, s{sT1}
        s_and_b32 s{sSK}, s{sTB}, 7
        s_lshl_b32 s{sSK}, s{sSK}, 1
        s_and_b32 s{sKVT}, s{sTB}, 7
        """)
    elif mp == "C":
        e(f"""
        s_and_b32 s{sT0}, s2, 1
        s_lshl_b32 s{sT0}, s{sT0}, 2
        s_bfe_u32 s{sT1}, s2, {3 | (2 << 16)}
        s_or_b32 s{sG}, s{sT0}, s{sT1}
        s_bfe_u32 s{sT0}, s2, {1 | (2 << 16)}
        s_lshl_b32 s{sT0}, s{sT0}, 3
        s_lshr_b32 s{sT1}, s2, 5
        s_or_b32 s{sTB}, s{sT0}, s{sT1}
        s_and_b32 s{sSK}, s{sTB}, 7
        s_lshl_b32 s{sSK}, s{sSK}, 1
        s_and_b32 s{sKVT}, s{sTB}, 7
        """)
        if OPT.get("s4"):
            e(f"""
            s_and_b32 s{sSK}, s{sTB}, 3
            s_lshl_b32 s{sSK}, s{sSK}, 2
            """)
        if OPT.get("gskew"):
            e(f"""
            s_and_b32 s{sT0}, s{sG}, 3
            s_lshl_b32 s{sT0}, s{sT0}, 2
            s_add_u32 s{sSK}, s{sSK}, s{sT0}
            s_and_b32 s{sSK}, s{sSK}, 15
            """)
    L = vLANE
    t0, t1, t2, t3, t4, t5 = vT, vT + 1, vT + 2, vT + 3, vT + 4, vT + 5
    XV0, XV1 = 56, 57
    e(f"""
    v_and_b32 v{t2}, 15, v{L}
    v_lshrrev_b32 v{t3}, 4, v{L}
    s_lshl_b32 s{sT0}, s{sTB}, 6
    s_lshl_b32 s{sT1}, s{sW}, 4
    s_add_u32 s{sT0}, s{sT0}, s{sT1}
    v_lshrrev_b32 v{t0}, 3, v{L}
    v_add_u32 v{t0}, s{sT0}, v{t0}
    v_and_b32 v{t1}, 7, v{L}
    v_xor_b32 v{t1}, v{t1}, v{t3}
    v_lshlrev_b32 v{t1}, 4, v{t1}
    v_lshl_add_u32 v{XV0}, v{t0}, 10, v{t1}
    v_xor_b32 v{XV1}, 64, v{XV0}              ; chunk ^ 4
    v_add_u32 v{XV1}, 8192, v{XV1}            ; +8 tokens
    s_mul_i32 s{sRING}, s{sW}, {WSTR}
    s_add_u32 s{sRING}, s{sRING}, {RB}
    s_lshl_b32 s{sT3}, s{sW}, 10              ; w*1024
    s_lshl_b32 s101, s{sSK}, 6
    s_waitcnt lgkmcnt(0)
    """)
    for (dst, size) in [(S_X, 2097152), (S_K, 4194304), (S_V, 4194304), (S_WQ, 4194304),
                        (S_WO, 4194304), (S_WR, 1024), (S_WS, 0x10000000)]:
        e(f"""
        s_mov_b32 s{dst + 2}, {size}
        s_mov_b32 s{dst + 3}, 0x20000
        """)
    stamp("kernarg", wait=True)
    def xdma(u):
        for hb in range(2):
            e(f"s_add_u32 m0, s{sT3}, {(2 * u + hb) * 4096}")
            e("s_nop 0")
            e.vm(f"buffer_load_dwordx4 v{XV0 + hb}, s[{S_X}:{S_X + 3}], s101 offen lds", ("x", u, hb))
        e(f"s_add_u32 s101, s101, 128")
        e(f"s_and_b32 s101, s101, 1023")

    def wrdma():
        e(f"""
        s_lshl_b32 s{sT0}, s{sSK}, 2
        v_add_u32 v58, s{sT0}, v{L}
        v_and_b32 v58, 63, v58
        v_lshlrev_b32 v58, 4, v58
        s_add_u32 m0, s{sRING}, {2 * SLOT + 4096}
        s_nop 0
        """)
        e.vm(f"buffer_load_dwordx4 v58, s[{S_WR}:{S_WR + 3}], 0 offen lds", ("wr", 0))
    NU0 = OPT.get("nu0", 6)
    for u in range(NU0):
        xdma(u)
    e(f"""
    s_lshl_b32 s{sT0}, s{sG}, 2
    s_add_u32 s{sT0}, s{sT0}, s{sW}
    s_lshl_b32 s{sT0}, s{sT0}, 8            ; head*256
    v_lshlrev_b32 v{t4}, 1, v{t3}
    v_xor_b32 v{t4}, v{t4}, v{t2}
    v_lshlrev_b32 v{t5}, 13, v{t3}           ; rr*8192
    v_add_u32 v{t5}, s{sT0}, v{t5}
    v_lshl_add_u32 v{vWQ}, v{t4}, 4, v{t5}
    v_add_u32 v{vWQ + 1}, {32768 - 1024}, v{vWQ}
    v_xor_b32 v{t4}, 8, v{t4}
    v_lshl_add_u32 v{vWQ + 2}, v{t4}, 4, v{t5}
    v_add_u32 v{vWQ + 2}, {2 * (32768 - 1024)}, v{vWQ + 2}
    v_add_u32 v{vWQ + 3}, {32768 - 1024}, v{vWQ + 2}
    s_lshl_b32 s{sWQO}, s{sSK}, 18
    """)
    wq_pre = []
    for p in range(3):
        for h in range(2):
            fl = half_dma(e, 1, p, h, ("W", p, h))
            for i in range(4):
                grp = []
                if i == 0:
                    grp += [fl[0], lambda: e("s_nop 0")]
                grp.append(fl[1 + i])
                if i == 3:
                    grp.append(fl[5])
                wq_pre.append(grp)
    if OPT.get("early_dma", 0):
        for grp in wq_pre[:OPT["early_dma"]]:
            for fn in grp:
                fn()
        wq_pre = wq_pre[OPT["early_dma"]:]


    r_, c_ = 60, 61
    A0, A1, A2, A3, A4, A5 = 128, 129, 130, 131, 132, 133
    e(f"""
    v_bfe_u32 v{A0}, v{L}, 2, 2              ; r
    v_and_b32 v{A1}, 3, v{L}                 ; c
    v_lshrrev_b32 v{A2}, 4, v{L}             ; q4
    v_and_b32 v{A3}, 1, v{A2}
    v_lshl_or_b32 v{A3}, v{A3}, 2, v{A0}     ; phi
    v_lshlrev_b32 v{A3}, 1, v{A3}            ; f
    v_lshrrev_b32 v{A4}, 1, v{A1}
    v_xor_b32 v{A3}, v{A3}, v{A4}            ; chunk
    v_lshlrev_b32 v{A3}, 4, v{A3}
    v_and_b32 v{A4}, 1, v{A1}
    v_lshl_or_b32 v{A3}, v{A4}, 3, v{A3}     ; + (c&1)*8
    v_lshl_add_u32 v{A4}, v{A2}, 3, v{A0}    ; row
    v_lshl_add_u32 v{A3}, v{A4}, 8, v{A3}
    v_add_u32 v{vAA}, s{sRING}, v{A3}
    """)
    for dt in range(1, 8):
        e(f"v_xor_b32 v{vAA + dt}, {32 * dt}, v{vAA}")
    e(f"""
    v_and_b32 v{A3}, 1, v{A2}
    v_lshl_or_b32 v{A4}, v{A3}, 2, v{A0}     ; 4(q4&1) + r
    v_lshrrev_b32 v{A3}, 1, v{A4}            ; psi
    v_lshrrev_b32 v{A5}, 1, v{A2}
    v_lshl_or_b32 v{A4}, v{A5}, 4, v{A4}     ; row
    v_lshlrev_b32 v{A3}, 1, v{A3}
    v_lshrrev_b32 v{A5}, 1, v{A1}
    v_xor_b32 v{A3}, v{A3}, v{A5}            ; chunk
    v_lshlrev_b32 v{A3}, 4, v{A3}
    v_and_b32 v{A5}, 1, v{A1}
    v_lshl_or_b32 v{A3}, v{A5}, 3, v{A3}
    v_lshl_add_u32 v{A3}, v{A4}, 7, v{A3}
    v_add_u32 v{vAB}, s{sRING}, v{A3}
    """)
    for dt in range(1, 4):
        e(f"v_xor_b32 v{vAB + dt}, {32 * dt}, v{vAB}")
    e(f"""
    v_lshlrev_b32 v{vBR}, 4, v{L}            ; B read: X + l*16
    v_lshrrev_b32 v{A3}, 3, v{L}             ; row8
    v_lshrrev_b32 v{A4}, 1, v{A3}
    v_and_b32 v{A4}, 3, v{A4}
    v_lshlrev_b32 v{A4}, 1, v{A4}
    v_and_b32 v{A5}, 7, v{L}
    v_xor_b32 v{A4}, v{A4}, v{A5}
    v_lshlrev_b32 v{A4}, 4, v{A4}
    v_lshl_add_u32 v{A4}, v{A3}, 10, v{A4}
    s_lshl_b32 s{sT0}, s{sW}, 7
    v_add_u32 v{vWO}, s{sT0}, v{A4}
    v_add_u32 v{vWO + 1}, 7168, v{vWO}
    v_add_u32 v{vWO + 2}, {2 * 7168}, v{vWO}
    v_add_u32 v{vWO + 3}, {3 * 7168}, v{vWO}
    v_and_b32 v{A3}, 15, v{L}
    s_lshl_b32 s{sWOO}, s{sSK}, 15
    v_xor_b32 v{A4}, v{A2}, v{A3}            ; (l&15)^rr
    v_lshlrev_b32 v{A5}, 8, v{A2}
    v_lshl_add_u32 v{vKDM}, v{A4}, 4, v{A5}
    v_xor_b32 v{vKDM + 1}, 64, v{vKDM}
    v_xor_b32 v{vKDM + 2}, 128, v{vKDM}
    v_xor_b32 v{vKDM + 3}, 192, v{vKDM}
    v_lshlrev_b32 v{A4}, 2, v{A2}
    v_xor_b32 v{A4}, v{A4}, v{A3}
    v_lshl_add_u32 v{vVDM}, v{A4}, 4, v{A5}
    v_lshrrev_b32 v{A4}, 5, v{L}             ; h
    v_xor_b32 v{A4}, v{A4}, v{A3}
    v_lshlrev_b32 v{A4}, 4, v{A4}
    v_lshl_add_u32 v{A4}, v{A3}, 8, v{A4}
    v_and_b32 v{A5}, 1, v{A2}
    v_mul_u32_u24 v{A5}, {WSTR}, v{A5}
    v_add_u32 v{A4}, v{A4}, v{A5}
    v_add_u32 v{vKR}, {RB + 1 * SLOT}, v{A4}
    """)
    for s16 in range(1, 8):
        e(f"v_xor_b32 v{vKR + s16}, {32 * s16}, v{vKR}")
    e(f"""
    v_and_b32 v{A4}, 1, v{A2}
    v_lshlrev_b32 v{A4}, 1, v{A4}
    v_lshrrev_b32 v{A5}, 1, v{A1}
    v_or_b32 v{A4}, v{A4}, v{A5}
    v_lshlrev_b32 v{A5}, 2, v{A0}
    v_xor_b32 v{A4}, v{A4}, v{A5}
    v_lshlrev_b32 v{A4}, 4, v{A4}
    v_and_b32 v{A5}, 1, v{A1}
    v_lshl_or_b32 v{A4}, v{A5}, 3, v{A4}
    v_lshrrev_b32 v{A5}, 5, v{L}
    v_lshl_add_u32 v{A5}, v{A5}, 2, v{A0}    ; 4h + r
    v_lshl_add_u32 v{A4}, v{A5}, 8, v{A4}
    v_add_u32 v{vVR}, {RB + 4096 + 1 * SLOT}, v{A4}
    """)
    for db in range(1, 4):
        e(f"v_xor_b32 v{vVR + db}, {64 * db}, v{vVR}")
    e(f"""
    """)
    for u in range(NU0, 8):
        xdma(u)
    wrdma()
    e(f"""
    v_lshlrev_b32 v{vOW}, 4, v{A3}
    v_lshrrev_b32 v{A4}, 5, v{L}
    v_lshl_add_u32 v{vOW}, v{A4}, 8, v{vOW}
    v_and_b32 v{A4}, 1, v{A2}
    v_lshl_add_u32 v{vOW}, v{A4}, 10, v{vOW}
    """)
    e(f"""
    s_lshl_b32 s{sT0}, s{sG}, 5
    s_add_u32 s{sT0}, s{sT0}, s{sTB}
    s_lshl_b32 s{sT0}, s{sT0}, 3
    s_add_u32 s{sT0}, s{sT0}, s{sW}
    s_lshl_b32 s{sT0}, s{sT0}, 13
    v_lshlrev_b32 v{vPS}, 4, v{L}
    v_add_u32 v{vPS}, s{sT0}, v{vPS}
    s_lshl_b32 s{sKVB}, s{sG}, 19
    s_lshl_b32 s{sT0}, s{sW}, 12
    s_add_u32 s{sKVB}, s{sKVB}, s{sT0}
    s_add_u32 s{sKVB}, s{sKVB}, {1536 * 256}
    s_add_u32 s{S_K}, s{S_K}, s{sKVB}
    s_addc_u32 s{S_K + 1}, s{S_K + 1}, 0
    s_add_u32 s{S_V}, s{S_V}, s{sKVB}
    s_addc_u32 s{S_V + 1}, s{S_V + 1}, 0
    s_sub_u32 s{S_K + 2}, {131072}, s{sT0}
    s_mov_b32 s{S_V + 2}, s{S_K + 2}
    s_lshl_b32 s{sT0}, s{sG}, 19
    s_add_u32 s{S_WO}, s{S_WO}, s{sT0}
    s_addc_u32 s{S_WO + 1}, s{S_WO + 1}, 0
    s_mov_b32 s{S_WO + 2}, 524288
    s_lshl_b32 s{sKO}, s{sKVT}, 14
    s_mov_b32 s{sVO}, s{sKO}
    v_cmp_eq_u32 s[{sMASK}:{sMASK + 1}], 1, v{A1}
    v_cmp_eq_u32 s[{sMASK + 2}:{sMASK + 3}], 2, v{A1}
    v_cmp_eq_u32 s[{sMASK + 4}:{sMASK + 5}], 3, v{A1}
    v_cmp_eq_u32 s[98:99], v{A2}, v{A0}
    """)
    e(f"v_mov_b32 v{A5}, 0x3f803f80")
    for i in range(4):
        e(f"v_accvgpr_write_b32 a{64 + i}, v{A5}")
    e(f"s_mov_b32 s100, 0xffff0000")
    e("s_nop 0")
    SUM, GRM = 68, 72
    e(f"""
    v_and_b32 v58, 15, v{L}                  ; tok16
    v_lshrrev_b32 v59, 4, v{L}               ; q4
    v_bfe_u32 v60, v58, 1, 3                 ; swz
    v_xor_b32 v59, v59, v60
    v_lshlrev_b32 v59, 4, v59
    v_and_b32 v60, 7, v58
    v_lshl_add_u32 v59, v60, 7, v59
    v_lshrrev_b32 v60, 3, v58
    v_lshl_add_u32 v59, v60, 12, v59
    v_add_u32 v62, s{sT3}, v59
    v_xor_b32 v63, 64, v62
    """)

    def stat_frag(p):
        e.need(ltags=[("xr", p)])
        xf = rng("v", vQ + 4 * p, 4)
        c1 = "0" if p == 0 else rng("a", SUM, 4)
        c2 = "0" if p == 0 else rng("a", GRM, 4)
        e(f"v_mfma_f32_16x16x32_bf16 {rng('a', SUM, 4)}, a[64:67], {xf}, {c1}")
        e(f"v_mfma_f32_16x16x32_bf16 {rng('a', GRM, 4)}, {xf}, {xf}, {c2}")
        for i in range(4):
            src = vQ + 4 * p + i
            dst = 128 + 8 * p + 2 * i
            e(f"v_lshlrev_b32 v{dst}, 16, v{src}")
            e(f"v_and_b32 v{dst + 1}, s100, v{src}")

    for u in range(8):
        e.need(vtags=[("x", u, 1)])
        for par in range(2):
            e.lds(f"ds_read_b128 {rng('v', vQ + 4 * (2 * u + par), 4)}, v{62 + par} offset:{u * 8192}", ("xr", 2 * u + par))
        for k in range(2):
            if wq_pre and u >= OPT.get("dma_from", 0):
                for fn in wq_pre.pop(0):
                    fn()
        if u > 0:
            stat_frag(2 * u - 2)
            stat_frag(2 * u - 1)
    e.need(vtags=[("wr", 0)])
    e(f"""
    v_lshrrev_b32 v58, 4, v{L}
    v_lshlrev_b32 v58, 4, v58
    v_add_u32 v58, s{sRING}, v58
    """)
    for p in range(16):
        e.lds(f"ds_read_b128 {rng('a', 128 + 4 * p, 4)}, v58 offset:{2 * SLOT + 4096 + p * 64}", ("wrf", p))
    stat_frag(14)
    stat_frag(15)
    e.nop(6)
    if not OPT.get("tailstamps") and not OPT.get("p3stamps"):
        stamp("x15_stats")
    s1, s2_, u0, u1, u2, u3 = 58, 59, 60, 61, 62, 63
    e(f"""
    v_accvgpr_read_b32 v{s1}, a{SUM}
    v_accvgpr_read_b32 v{u0}, a{GRM}
    v_accvgpr_read_b32 v{u1}, a{GRM + 1}
    v_accvgpr_read_b32 v{u2}, a{GRM + 2}
    v_accvgpr_read_b32 v{u3}, a{GRM + 3}
    v_cndmask_b32 v{u0}, v{u0}, v{u1}, s[{sMASK}:{sMASK + 1}]
    v_cndmask_b32 v{u0}, v{u0}, v{u2}, s[{sMASK + 2}:{sMASK + 3}]
    v_cndmask_b32 v{u0}, v{u0}, v{u3}, s[{sMASK + 4}:{sMASK + 5}]
    v_cndmask_b32 v{u0}, 0, v{u0}, s[98:99]
    v_mov_b32 v{u1}, v{u0}
    s_nop 1
    v_permlane32_swap_b32 v{u0}, v{u1}
    s_nop 0
    v_add_f32 v{u0}, v{u0}, v{u1}
    v_mov_b32 v{u1}, v{u0}
    s_nop 1
    v_permlane16_swap_b32 v{u0}, v{u1}
    s_nop 0
    v_add_f32 v{s2_}, v{u0}, v{u1}
    v_mul_f32 v{s1}, {hex(f2u(1.0 / 512))}, v{s1}     ; mean
    v_mul_f32 v{s2_}, {hex(f2u(1.0 / 512))}, v{s2_}
    v_fma_f32 v{s2_}, -v{s1}, v{s1}, v{s2_}      ; var
    v_max_f32 v{s2_}, 0, v{s2_}
    v_cvt_pk_bf16_f32 v{u0}, v{s1}, v{s2_}
    v_and_b32 v{u1}, s100, v{u0}
    v_add_f32 v{u1}, {hex(f2u(1e-5))}, v{u1}
    v_cvt_pk_bf16_f32 v{u1}, v{u1}, v{u1}
    v_and_b32 v{u1}, s100, v{u1}
    v_sqrt_f32 v{u1}, v{u1}
    v_lshlrev_b32 v{s1}, 16, v{u0}             ; mean_b f32
    v_cvt_pk_bf16_f32 v{u1}, v{u1}, v{u1}
    v_and_b32 v{u2}, s100, v{u1}                ; sd_b f32
    v_rcp_f32 v{u3}, v{u2}
    v_and_b32 v{u0}, 0xffff, v{u0}
    v_or_b32 v31, v{u0}, v{u2}
    v_mul_f32 v{u3}, {hex(f2u(C_SCALE))}, v{u3}     ; rsc
    v_mul_f32 v{u2}, v{s1}, v{u3}
    v_sub_f32 v{u2}, 0, v{u2}
    """)
    e(f"""
    v_mov_b32 v60, v{u3}
    v_mov_b32 v61, v{u3}
    v_mov_b32 v63, v{u2}
    """)
    e(f"""
    s_lshl_b32 s{sT0}, s{sW}, 10
    v_add_u32 v{s1}, s{sT0}, v{vBR}
    """)
    for p in range(16):
        for i in range(4):
            src = 128 + 8 * p + 2 * i
            e(f"v_pk_fma_f32 v[{src}:{src + 1}], v[{src}:{src + 1}], v[60:61], v[62:63]")
        for i in range(4):
            src = 128 + 8 * p + 2 * i
            e(f"v_cvt_pk_bf16_f32 v{vQ + 4 * p + i}, v{src}, v{src + 1}")
        e.lds(f"ds_write_b128 v{s1}, {rng('v', vQ + 4 * p, 4)} offset:{p * 4096}", ("xw", p))
        if wq_pre and p % OPT.get("dma_norm", 2) == 0 and not OPT.get("dma_late"):
            if len(wq_pre) <= 4:
                e.need(ltags=[("wrf", 15)])
            for fn in wq_pre.pop(0):
                fn()
    e.need(ltags=[("wrf", 15)])
    while wq_pre:
        for fn in wq_pre.pop(0):
            fn()
    e.need(ltags=[("xw", 15)])
    e("s_barrier")
    if not OPT.get("tailstamps") and not OPT.get("p3stamps"):
        stamp("ln_done")
    gemm_pre(e, 1)
    for p in range(16):
        c = "0" if p == 0 else "a[76:79]"
        e(f"v_mfma_f32_16x16x32_bf16 a[76:79], {rng('a', 128 + 4 * p, 4)}, {rng('v', vQ + 4 * p, 4)}, {c}")
    e.nop(8)
    e(f"""
    v_accvgpr_read_b32 v58, a76
    v_mul_f32 v58, {hex(f2u(1.0 / C_SCALE))}, v58
    v_cvt_pk_bf16_f32 v58, v58, v58
    v_and_b32 v59, s100, v58
    v_ashrrev_i32 v58, 31, v59
    v_or_b32 v58, 0x80000000, v58
    v_xor_b32 v59, v59, v58                  ; monotone map
    s_lshl_b32 s{sT0}, s{sTB}, 6
    s_lshl_b32 s{sT1}, s{sW}, 4
    s_add_u32 s{sT0}, s{sT0}, s{sT1}
    s_sub_u32 s{sT0}, 2047, s{sT0}
    v_and_b32 v58, 15, v{vLANE}
    v_sub_u32 v58, s{sT0}, v58               ; 2047 - token
    v_and_or_b32 v59, v59, s100, v58
    """)

    def tail1(p):
        f = []

        def guard(pp):
            return lambda: e.need(ltags=[("A", pp + 1, 7)])
        if p == 12:
            f += [(21, guard(12))] + place(kv_dma(e, "K", 1, ("KV", 0, "K")), 21, 3)
        if p == 13:
            f += place(kv_dma(e, "V", 1, ("KV", 0, "V")), 1, 4)
            f += [(21, guard(13))] + place(kv_dma(e, "K", 2, ("KV", 1, "K")), 21, 3)
        if p == 14:
            f += place(kv_dma(e, "V", 2, ("KV", 1, "V")), 1, 4)
            f += [(21, guard(14))] + place(kv_dma(e, "K", 0, ("KV", 2, "K")), 21, 3)
        if p >= 12:
            for i in range(32):
                f.append((i, lambda i=i: e(f"v_accvgpr_write_b32 a{128 + (p - 12) * 32 + i}, 0")))
        return f

    if OPT.get("only"):
        def gs(name):
            lq = list(e.lq)
            stamp(name)
            if name in OPT["only"]:
                e.lq = lq
        GSTAMP[0] = gs
    gemm_main(e, 1, tail1)
    if not OPT.get("tailstamps") and not OPT.get("p3stamps"):
        stamp("p1_done")
    e(f"""
    s_add_u32 s{sGA}, s{S_WS}, {WS_R}
    s_addc_u32 s{sGA + 1}, s{S_WS + 1}, 0
    s_mov_b32 s{sGA + 2}, 8192
    s_mov_b32 s{sGA + 3}, 0x20000
    s_add_u32 s{sGB}, s{S_WS}, {WS_STAT}
    s_addc_u32 s{sGB + 1}, s{S_WS + 1}, 0
    s_mov_b32 s{sGB + 2}, 8192
    s_mov_b32 s{sGB + 3}, 0x20000
    s_lshl_b32 s{sT0}, s{sTB}, 6
    s_lshl_b32 s{sT1}, s{sW}, 4
    s_add_u32 s{sT0}, s{sT0}, s{sT1}
    v_add_u32 v58, s{sT0}, v{vLANE}
    v_lshlrev_b32 v58, 2, v58
    v_cmp_gt_u32 vcc, 16, v{vLANE}
    s_cmp_eq_u32 s{sG}, 0
    s_cselect_b64 s[{sMASK}:{sMASK + 1}], -1, 0
    v_mov_b32 v60, 0x7ffffff0
    s_and_b64 vcc, vcc, s[{sMASK}:{sMASK + 1}]
    v_cndmask_b32 v58, v60, v58, vcc
    """)
    e.vm(f"buffer_store_dword v59, v58, s[{sGA}:{sGA + 3}], 0 offen sc1", ("st", 0))
    e.vm(f"buffer_store_dword v31, v58, s[{sGB}:{sGB + 3}], 0 offen sc1", ("st", 1))
    if OPT.get("fused"):
        e(f"""
        s_lshl_b32 s{sT0}, s{sTB}, 3
        s_add_u32 s{sT0}, s{sT0}, s{sG}
        s_lshl_b32 s{sT0}, s{sT0}, 2
        s_add_u32 s{sT0}, s{sT0}, {WS_FLG}
        s_cmp_eq_u32 s{sW}, 0
        s_cselect_b32 s{sT0}, s{sT0}, 0x7fff0000
        v_lshlrev_b32 v58, 10, v{vLANE}
        v_add_u32 v58, s{sT0}, v58
        v_mov_b32 v60, 0x7fff0000
        v_cmp_gt_u32 vcc, 10, v{vLANE}
        v_mov_b32 v61, 0
        s_nop 0
        v_cndmask_b32 v58, v60, v58, vcc
        """)
        e.vm(f"buffer_store_dword v61, v58, s[{S_WS}:{S_WS + 3}], 0 offen sc1", ("st", 2))
    e.nop(4)
    for dt in (6, 7, 0, 1, 2, 3, 4, 5):
        for qb in range(2):
            R = vQ + (dt * 2 + qb) * 4
            a0 = vACC + (dt * 4 + 2 * qb) * 4
            a1 = a0 + 4
            e(f"v_cvt_pk_bf16_f32 v{R}, v{a0}, v{a0 + 1}")
            e(f"v_cvt_pk_bf16_f32 v{R + 1}, v{a0 + 2}, v{a0 + 3}")
            e(f"v_cvt_pk_bf16_f32 v{R + 2}, v{a1}, v{a1 + 1}")
            e(f"v_cvt_pk_bf16_f32 v{R + 3}, v{a1 + 2}, v{a1 + 3}")
        for qb in range(2):
            R = vQ + (dt * 2 + qb) * 4
            e(f"v_permlane16_swap_b32 v{R}, v{R + 2}")
            e(f"v_permlane16_swap_b32 v{R + 1}, v{R + 3}")
        if dt == 7:
            for i in range(32):
                e(f"v_mov_b32 v{vNM + i}, 0")
    for i in range(4):
        e(f"v_mov_b32 v{vL + i}, 0")
    for i in range(4):
        e(f"v_mov_b32 v{vGA + i}, v{vKDM + i}")
        e(f"v_mov_b32 v{vGB + i}, v{vVDM}")
    e(f"s_mov_b32 s{sPASS}, 0")
    e(f"v_mov_b32 v31, v{vKR}")
    e(f"v_mov_b32 v63, v{vVR}")
    e(f"""
    s_min_u32 s{sSL}, s2, 223
    s_lshl_b32 s{sT0}, s{sW}, 7
    v_add_u32 v3, s{sT0}, v{vLANE}
    v_mul_u32_u24 v3, 3584, v3
    s_lshl_b32 s{sT0}, s{sSL}, 4
    v_add_u32 v3, s{sT0}, v3
    v_lshrrev_b32 v4, 4, v{vLANE}
    v_lshlrev_b32 v4, 10, v4
    v_and_b32 v2, 15, v{vLANE}
    v_lshl_add_u32 v4, v2, 4, v4
    s_lshl_b32 s{sT0}, s{sSL}, 13
    s_lshl_b32 s{sT1}, s{sW}, 8
    s_add_u32 s{sT0}, s{sT0}, s{sT1}
    v_add_u32 v4, s{sT0}, v4
    """)
    if OPT.get("only"):
        stamp("q_conv")
    e(f"L_p2_start:")
    e.wait_all()
    e("s_barrier")
    e(f"""
    s_or_b32 s{sT0}, {'0' if OPT.get("fused") else 's%d' % sG}, s{sW}
    s_or_b32 s{sT0}, s{sT0}, s{sPASS}
    s_cmp_lg_u32 s{sT0}, 0
    s_cbranch_scc1 L_nopub
    """)
    if not OPT.get("xnopublish"):
        e(f"""
        v_mov_b32 v58, 0
        v_mov_b32 v59, 1
        v_cmp_eq_u32 vcc, 0, v{vLANE}
        s_nop 0
        s_and_saveexec_b64 s[{sMASK}:{sMASK + 1}], vcc
        global_atomic_add v58, v59, s[{sDBG}:{sDBG + 1}] sc1
        s_mov_b64 exec, s[{sMASK}:{sMASK + 1}]
        """)
    e("L_nopub:")
    e(f"""
    s_mov_b32 s{sGA}, s{S_K}
    s_mov_b32 s{sGA + 1}, s{S_K + 1}
    s_mov_b32 s{sGA + 2}, s{S_K + 2}
    s_mov_b32 s{sGB}, s{S_V}
    s_mov_b32 s{sGB + 1}, s{S_V + 1}
    s_mov_b32 s{sGB + 2}, s{S_V + 2}
    s_mov_b32 s{sKSL}, {2 * SLOT}
    s_mov_b32 s{sVSL}, {1 * SLOT}
    s_mov_b32 s{sTRIP}, 1
    s_add_u32 s{sGAM}, s{sRING}, {1 * SLOT}
    s_add_u32 s{sGBM}, s{sRING}, 4096
    s_lshl_b32 s{sGAO}, s{sW}, 13
    s_mov_b32 s{sMASK + 2}, {64 * 3584}
    s_mov_b32 s{S_WQ + 2}, {512 * 1792 * 2}
    """)
    for f in range(4):
        k_read(e, 0, f)
    p2_iter(e, -1, qk=True, sm=False, pv=False, look="K")
    upd = []
    for i in range(8):
        upd.append((i // 4 * 8 + i % 4 if i < 4 else 9 + i, lambda i=i: e(f"v_add_u32 v{vKR + i}, {SLOT}, v{vKR + i}")))
    p2_iter(e, 0, qk=True, sm=True, pv=False, look="K", fill=upd, smstart=5)

    if OPT.get("only"):
        lqs = list(e.lq)
        stamp("p2_preloop")
        e.lq = lqs
    lq0 = list(e.lq)
    e("L_p2_loop:")
    n0 = len(e.l)
    e("s_waitcnt vmcnt(1)")
    e.vq = []
    e("s_barrier")
    D64 = 64 * 3584
    fill = []

    def grp(*lines):
        f = lambda: [e(x) for x in lines]
        f.ninstr = len(lines)
        return f

    def adv2(sreg):
        f = lambda: kv_adv(e, sreg)
        f.ninstr = 2
        return f
    fill.append((0, lambda: e(f"s_mov_b32 m0, s{sGAM}")))
    for i in range(4):
        fill.append((2 + 4 * i, lambda i=i: e.vm(
            f"buffer_load_dwordx4 v{vGA + i}, s[{sGA}:{sGA + 3}], s{sKO} offen offset:{i * 1024} lds", ("G", 0))))
    fill.append((15, adv2(sKO)))
    fill.append((16, lambda: e(f"s_mov_b32 m0, s{sGBM}")))
    for i in range(4):
        fill.append((18 + 4 * i, lambda i=i: e.vm(
            f"buffer_load_dwordx4 v{vGB + i}, s[{sGB}:{sGB + 3}], s{sVO} offen offset:{i * 1024} lds", ("G", 1))))
    fill.append((30, adv2(sVO)))
    for db in range(4):
        fill.append((24 + 2 * db, lambda db=db: e(f"v_add_u32 v{vVR + db}, 49152, v{vVR + db}")))
    fill.append((4, grp(f"s_add_u32 s{sT1}, s{sKSL}, {SLOT}", f"s_cmp_eq_u32 s{sT1}, {3 * SLOT}",
                        f"s_cselect_b32 s{sT1}, 0, s{sT1}")))
    fill.append((8, grp(f"s_sub_u32 s{sKD}, s{sT1}, s{sKSL}", f"s_sub_u32 s{sVD}, s{sKSL}, s{sVSL}")))
    fill.append((12, grp(f"s_sub_u32 s{sVD}, s{sVD}, 49152", f"s_mov_b32 s{sVSL}, s{sKSL}", f"s_mov_b32 s{sKSL}, s{sT1}")))
    fill.append((20, grp(f"s_cmp_ge_u32 s{sTRIP}, 3", f"s_cselect_b32 s{S_WQ}, s{sFP + 2}, s{sFP}",
                         f"s_cselect_b32 s{S_WQ + 1}, s{sFP + 3}, s{sFP + 1}")))
    fill.append((22, grp(f"s_bitcmp0_b32 s{sTRIP}, 0", f"s_cselect_b32 s{sGBO}, s{sMASK + 2}, 0")))
    fill.append((24, grp(f"s_cmp_ge_u32 s{sTRIP}, 5", f"s_cselect_b32 s{S_WQ}, s{sFP + 4}, s{S_WQ}",
                         f"s_cselect_b32 s{S_WQ + 1}, s{sFP + 5}, s{S_WQ + 1}")))
    fill.append((26, grp(f"s_cmp_ge_u32 s{sTRIP}, 5", f"s_cselect_b32 s{sGBO}, 0, s{sGBO}",
                         f"s_cselect_b64 s[{sMASK}:{sMASK + 1}], -1, 0")))
    fill.append((28, grp(f"s_cmp_ge_u32 s{sTRIP}, 6", f"s_cselect_b32 s{sGBO}, 4096, s{sGBO}")))
    p2_iter(e, 1, fill=fill)
    fill = []
    for i in range(8):
        fill.append((8 + 2 * i if i >= 4 else 2 * i, lambda i=i: e(f"v_add_u32 v{vKR + i}, s{sKD}, v{vKR + i}")))
    for db in range(4):
        fill.append((24 + 2 * db, lambda db=db: e(f"v_add_u32 v{vVR + db}, s{sVD}, v{vVR + db}")))
    fill.append((1, lambda: e(f"v_cndmask_b32 v1, v3, v4, s[{sMASK}:{sMASK + 1}]")))
    fill.append((2, lambda: e(f"s_mov_b32 m0, s{sGAO}")))
    fill.append((4, lambda: e.vm(f"buffer_load_dwordx4 v1, s[{S_WQ}:{S_WQ + 3}], s{sGBO} offen lds", ("C", 0))))
    fill.append((6, lambda: e(f"s_add_u32 s{sGAO}, s{sGAO}, 1024")))
    fill.append((10, grp(f"s_add_u32 s{sGAM}, s{sRING}, s{sVSL}", f"s_add_u32 s{sT1}, s{sKSL}, {SLOT}")))
    fill.append((12, grp(f"s_cmp_eq_u32 s{sT1}, {3 * SLOT}", f"s_cselect_b32 s{sT1}, 0, s{sT1}",
                         f"s_add_u32 s{sGBM}, s{sRING}, s{sT1}")))
    fill.append((14, lambda: e(f"s_add_u32 s{sGBM}, s{sGBM}, 4096")))
    fill.append((28, lambda: e(f"s_add_u32 s{sTRIP}, s{sTRIP}, 1")))
    p2_iter(e, 2, fill=fill)
    e(f"""
    s_cmp_lg_u32 s{sTRIP}, 7
    s_cbranch_scc1 L_p2_noswitch
    s_mov_b32 s{sGA}, s{S_WO}
    s_mov_b32 s{sGA + 1}, s{S_WO + 1}
    s_mov_b32 s{sGA + 2}, s{S_WO + 2}
    s_mov_b32 s{sGB}, s{S_WO}
    s_mov_b32 s{sGB + 1}, s{S_WO + 1}
    s_mov_b32 s{sGB + 2}, s{S_WO + 2}
    s_mov_b32 s{sGAM}, s{sRING}
    s_add_u32 s{sGBM}, s{sRING}, 4096
    s_mov_b32 s{sKO}, s{sWOO}
    """)
    p3_adv(e)
    e(f"s_mov_b32 s{sVO}, s{sWOO}")
    p3_adv(e)
    for i in range(4):
        e(f"v_mov_b32 v{vGA + i}, v{vWO + i}")
        e(f"v_mov_b32 v{vGB + i}, v{vWO + i}")
    e("L_p2_noswitch:")
    e(f"s_cmp_lg_u32 s{sTRIP}, 8")
    e("s_cbranch_scc1 L_p2_loop")
    body = e.l[n0:]
    probs = check_hazards(body + body, "p2 loop x2")
    assert not probs or any(k.startswith("no") for k in OPT), "\n".join(probs[:10])
    sh = lambda q, d: [(t[0], t[1] + d) + tuple(t[2:]) if t else t for t in q]
    assert sh(lq0, 2) == e.lq, (lq0, e.lq)
    e.lq = sh(e.lq, 12)
    if OPT.get("only"):
        stamp("p2_loopend")
    e.wait_all(lds=False)
    e(f"""
    v_bfe_u32 v58, v{vLANE}, 2, 2               ; r
    v_lshrrev_b32 v59, 4, v{vLANE}              ; q4
    v_lshl_add_u32 v60, v59, 3, v58             ; 8 q4 + r
    v_lshlrev_b32 v60, 4, v60
    v_and_b32 v61, 1, v{vLANE}
    v_lshl_add_u32 v60, v61, 3, v60             ; + (c&1)*8
    v_bfe_u32 v61, v{vLANE}, 1, 1
    v_lshl_add_u32 v60, v61, 11, v60            ; + U
    s_lshl_b32 s{sT0}, s{sW}, 13
    v_add_u32 v60, s{sT0}, v60
    v_and_b32 v59, 1, v59
    v_lshl_add_u32 v58, v59, 2, v58             ; row 0..7
    v_lshlrev_b32 v58, 8, v58
    v_and_b32 v59, 3, v{vLANE}
    v_lshl_add_u32 v58, v59, 3, v58             ; + c*8
    v_add_u32 v58, s{sT0}, v58
    """)
    for i in range(4):
        for rd in range(2):
            e.lds(f"ds_read_b64_tr_b16 {rng('a', 96 + 4 * i + 2 * rd, 2)}, v60 offset:{i * 512 + rd * 64}", ("fa", i))
    for t in range(8):
        e.lds(f"ds_read_b64_tr_b16 {rng('a', 112 + 2 * t, 2)}, v58 offset:{4096 + t * 32}", ("da", t))
    e.wait_all(vm=False)
    e("s_barrier")
    e.vq = [("W", 0, 0)] * 0
    fill = place(p3_dma(e, 2), 0, 2) + place(p3_dma(e, 3), 8, 2)
    for db in range(4):
        fill.append((7 + db, lambda db=db: e(f"v_add_u32 v{vVR + db}, 49152, v{vVR + db}")))
    e.lq = [t for t in e.lq]
    e(f"v_mov_b32 v62, 0")
    e.vm(f"global_load_dword v2, v62, s[{sDBG}:{sDBG + 1}] sc1", ("cnt", 0))
    p2_iter(e, 15, qk=False, sm=True, pv=True, look="V", fill=fill, vpre=True, vord_next=VORD_D)
    RL = [58, 60]
    side = Side()
    A = side.add
    A(f"v_add_f32 v{vL}, v{vL}, v{vL + 1}")
    A(f"v_add_f32 v{vL + 2}, v{vL + 2}, v{vL + 3}")
    A(f"v_mov_b32 v{vL + 1}, v{vL}")
    A(f"v_mov_b32 v{vL + 3}, v{vL + 2}")
    A(f"v_permlane32_swap_b32 v{vL}, v{vL + 1}", gap=2)
    A(f"v_permlane32_swap_b32 v{vL + 2}, v{vL + 3}", gap=1)
    A(f"v_add_f32 v{vL}, v{vL}, v{vL + 1}", gap=1)
    A(f"v_add_f32 v{vL + 2}, v{vL + 2}, v{vL + 3}")
    A(f"v_rcp_f32 v{RL[0]}, v{vL}")
    A(f"v_rcp_f32 v{RL[1]}, v{vL + 2}")
    A(f"s_mov_b32 s{sT2}, {hex(f2u(2.0 ** -40))}")
    A(f"s_mov_b32 s{sT3}, {hex(f2u(2.0 ** 40))}")
    A(f"v_cmp_lt_f32 s[{sMASK}:{sMASK + 1}], s{sT2}, v{vL}")
    A(f"v_cmp_gt_f32 s[{sMASK + 2}:{sMASK + 3}], s{sT3}, v{vL}")
    A(f"v_cmp_lt_f32 s[{sMASK + 4}:{sMASK + 5}], s{sT2}, v{vL + 2}")
    A(f"v_cmp_gt_f32 vcc, s{sT3}, v{vL + 2}")
    A(f"s_and_b64 s[{sMASK}:{sMASK + 1}], s[{sMASK}:{sMASK + 1}], s[{sMASK + 2}:{sMASK + 3}]", gap=2)
    A(f"s_and_b64 vcc, vcc, s[{sMASK + 4}:{sMASK + 5}]")
    A(f"s_and_b64 s[{sMASK}:{sMASK + 1}], s[{sMASK}:{sMASK + 1}], vcc")
    for db in range(4):
        wa = 61 + (db & 1)
        A(lambda db=db: [e(x) for x in (f"s_lshl_b32 s{sT1}, s{sW}, 2", f"s_add_u32 s{sT1}, s{sT1}, {db}",
                                        f"s_sub_u32 s{sT1}, s{sT1}, s{sSK}")])
        A(lambda: [e(x) for x in (f"s_and_b32 s{sT1}, s{sT1}, 15", f"s_lshl_b32 s{sT1}, s{sT1}, 12")])
        A(f"v_add_u32 v{wa}, s{sT1}, v{vOW}")
        for qb in range(2):
            src = aO + (db * 2 + qb) * 16
            T = 128 + ((db * 2 + qb) % 4) * 16 if False else 128 + (db * 2 + qb) * 16
            for i in range(16):
                A(f"v_accvgpr_read_b32 v{T + i}, a{src + i}", cond=((16, min(4 * db + 7, 99)) if (i == 0 and qb == 0) else None))
            for i in range(8):
                A(f"v_pk_mul_f32 v[{T + 2 * i}:{T + 2 * i + 1}], v[{T + 2 * i}:{T + 2 * i + 1}], v[{RL[qb]}:{RL[qb] + 1}] op_sel_hi:[1,0]")
            for i in range(8):
                A(f"v_cvt_pk_bf16_f32 v{T + i}, v{T + 2 * i}, v{T + 2 * i + 1}")
            for jp in range(2):
                A(lambda T=T, jp=jp, qb=qb, db=db, wa=wa: e.lds(
                    f"ds_write_b128 v{wa}, {rng('v', T + 4 * jp, 4)} offset:{qb * 2048 + jp * 512}", ("ow", db, qb, jp)))
    p2_iter(e, 16, qk=False, sm=False, pv=True, look=None, vord=VORD_D, side=side, cap=OPT.get("normcap", 5))
    if not OPT.get("tailstamps"):
        stamp("p2_done")
    e.nop(OPT.get("normnop", 10))
    side.emit(e, 0, flush=True)
    e(f"""
    s_cmp_eq_u64 s[{sMASK}:{sMASK + 1}], -1
    s_cselect_b32 s{sT2}, 0, 1
    s_cmp_eq_u32 s{sPASS}, 0
    s_cselect_b32 s{sT2}, s{sT2}, 0
    s_cmp_eq_u32 s{sT2}, 0
    s_cbranch_scc1 L_noflag
    s_lshl_b32 s{sT0}, s{sW}, 2
    s_sub_u32 s{sT0}, s{sT0}, s{sSK}
    s_and_b32 s{sT0}, s{sT0}, 15
    s_lshl_b32 s{sT0}, s{sT0}, 12
    v_mov_b32 v58, s{sT0}
    v_mov_b32 v59, -1
    ds_write_b32 v58, v59
    L_noflag:
    """)
    e.wait_all(vm=False)
    e("s_barrier")
    for w_ in range(4):
        e(f"""
        s_sub_u32 s{sT0}, {4 * w_}, s{sSK}
        s_and_b32 s{sT0}, s{sT0}, 15
        s_lshl_b32 s{sT0}, s{sT0}, 12
        v_mov_b32 v{58 + w_}, s{sT0}
        """)
    for w_ in range(4):
        e.lds(f"ds_read_b32 v{58 + w_}, v{58 + w_}", ("mk", w_))
    e(f"v_lshlrev_b32 v{vBR}, 4, v{vLANE}")
    for fn in p3_reads(e, 0, 0)[8:] + p3_reads(e, 0, 0)[:8]:
        fn()
    serial(e, p3_dma(e, 4))
    e.need(ltags=[("mk", 3)])
    e(f"""
    v_and_b32 v58, v58, v59
    v_and_b32 v60, v60, v61
    v_max_u32 v58, v58, v60
    v_max_u32 v59, v59, v61
    """)
    e.l = e.l[:-4]
    e(f"""
    v_max_u32 v58, v58, v59
    v_max_u32 v60, v60, v61
    v_max_u32 v58, v58, v60
    s_nop 0
    v_readfirstlane_b32 s{sT0}, v58
    s_nop 0
    s_cmp_eq_u32 s{sT0}, -1
    s_cbranch_scc1 L_fallback
    L_p3_start:
    """)
    e.need(vtags=[("cnt", 0)])
    e(f"""
    v_readfirstlane_b32 s{sT0}, v2
    s_lshl_b32 s{sT1}, s{sW}, 11
    v_lshlrev_b32 v62, 5, v{vLANE}
    v_add_u32 v62, s{sT1}, v62
    v_add_u32 v62, {WS_R}, v62
    s_cmp_ge_u32 s{sT0}, {256 if OPT.get("fused") else 32}
    s_cselect_b32 s{sRDY}, 1, 0
    s_mov_b32 s48, 4096
    s_mov_b32 s49, 32768
    s_mov_b32 s50, {32768 + 4096}
    """)
    e.vm(f"buffer_load_dwordx4 v[88:91], v62, s[{S_WS}:{S_WS + 3}], 0 offen sc1", ("rl", 0))
    e.vm(f"buffer_load_dwordx4 v[92:95], v62, s[{S_WS}:{S_WS + 3}], 0 offen offset:16 sc1", ("rl", 1))
    assert [t for t in e.vq if t[0] == "W"] == [("W", u) for u in range(2, 5) for _ in range(4)], e.vq
    e.vq = [("W", u) for u in range(5) for _ in range(4)]
    import moe

    def tail3(u):
        return []

    def tail3_old(u):
        f = []
        lst = {28: [(S_WQ, 80, 0), (S_WQ, 81, 1024), (S_K, 80, 2048), (S_K, 81, 3072)], 29: [(S_V, 82, 4096), (S_V, 83, 5120)]}
        if u in lst and not OPT.get("nomoe") and not OPT.get("xnofw"):
            f.append((0, lambda u=u: e.need(ltags=[("A", u, 3)])))
            for n, (srd, v, off) in enumerate(lst[u]):
                f.append((1 + 3 * n, lambda off=off: e(f"s_add_u32 m0, s{sRING}, {2 * SLOT + off}")))
                f.append((2 + 3 * n, lambda srd=srd, v=v: e.vm(
                    f"buffer_load_dwordx4 v{v}, s[{srd}:{srd + 3}], 0 offen lds", ("fw", 0))))
        return f
    side_e, side = Side(), Side()
    sp = OPT.get("stspread", 2.0)
    for n, (x, gap) in enumerate(p3_epilogue_items(e, 0, [64, 68, 72, 76])):
        k, r = n // 7, n % 7
        pos = 16 + k * sp
        side_e.add(x, gap=gap, cond=((int(pos), 2 + int((pos % 1) * 16)) if r == 0 else None))
    if not OPT.get("nomoe"):
        moe.moe_side(e, side, dict(W=sW, RING=sRING, RDY=sRDY, M=100, X=S_X, WS=S_WS))
        side.q[0] = (side.q[0][0], side.q[0][1], (OPT.get("moestart", 4) if OPT.get("p3unroll", 1) else 16, 0))
    if OPT.get("p3stamps") or OPT.get("only"):
        def st_nowait(name):
            q = list(e.lq)
            stamp(name)
        STAMP[0] = st_nowait
    p3_phase(e, tail3, [side_e, side], None)
    side_e.emit(e, 0, flush=True)
    side.emit(e, 0, flush=True)
    stamp("p3_done")
    e.nop(6)
    side = Side()
    for (x, gap) in p3_epilogue_items(e, 1, [64, 68, 72, 76, 80, 84, 88, 92]):
        side.add(x, gap=gap)
    side.emit(e, 0, flush=True)
    stamp("epi")
    doneq = f"L_{label}_fin"
    RT = dict(X=S_X, WS=S_WS, WR=S_WR, W=sW, RING=sRING, SL=sSL, RDY=sRDY, DBG=sDBG, M=100, G=sG, TB=sTB,
              T=[42, 43, 44, 45, 46, 47, 60, 61, 62, 63, 64, 65, 66, 67], done=doneq,
              spin=OPT.get("spin", 4000), fused=OPT.get("fused"), NCNT=(256 if OPT.get("fused") else 32),
              stamp=(stamp if OPT.get("tailstamps") else (lambda n: None)), opt=OPT)
    if OPT.get("fused"):
        moe.moe_tail(e, RT)
    elif not OPT.get("nomoe"):
        e(f"""
        s_cmp_ge_u32 s2, 224
        s_cbranch_scc1 {doneq}
        s_nop 1
        """)
        moe.moe_tail(e, RT)
    e(f"{doneq}:")
    stamp("end")
    if stamps and OPT.get("dbgstamps"):
        e.wait_all()
        e(f"""
        v_mov_b32 v58, 16
        v_mov_b32 v59, s{sTS + 16}
        v_mov_b32 v60, 20
        s_not_b32 s{sT0}, s{sTS}
        v_mov_b32 v61, s{sT0}
        v_cmp_eq_u32 vcc, 0, v{vLANE}
        s_nop 0
        s_and_saveexec_b64 s[{sMASK}:{sMASK + 1}], vcc
        global_atomic_umax v58, v59, s[{sDBG}:{sDBG + 1}] sc1
        global_atomic_umax v60, v61, s[{sDBG}:{sDBG + 1}] sc1
        s_or_b32 s{sT0}, s2, s{sW}
        s_cmp_lg_u32 s{sT0}, 0
        s_cbranch_scc1 L_dbg_skip
        """)
        for k in range(1, 9):
            e(f"s_sub_u32 s{sT0}, s{sTS + 2 * k}, s{sTS}")
            e(f"v_mov_b32 v59, s{sT0}")
            e(f"v_mov_b32 v58, {24 + 4 * (k - 1)}")
            e(f"global_store_dword v58, v59, s[{sDBG}:{sDBG + 1}]")
            e("s_nop 1")
        e("L_dbg_skip:")
        e(f"s_mov_b64 exec, s[{sMASK}:{sMASK + 1}]")
    elif stamps:
        e.wait_all()
        e(f"""
        s_lshl_b32 s{sT0}, s2, 2
        s_add_u32 s{sT0}, s{sT0}, s{sW}
        s_lshl_b32 s{sT0}, s{sT0}, 7
        s_add_u32 s{sT0}, s{sT0}, {WS_TS}
        v_mov_b32 v58, s{sT0}
        v_cmp_eq_u32 vcc, 0, v{vLANE}
        s_nop 0
        s_and_saveexec_b64 s[{sMASK}:{sMASK + 1}], vcc
        """)
        for i in range(0, 20, 4):
            for q in range(4):
                e(f"v_mov_b32 v{60 + q}, s{min(sTS + i + q, sTS + 17)}")
            e(f"buffer_store_dwordx4 v[60:63], v58, s[{S_WS}:{S_WS + 3}], 0 offen offset:{i * 4}")
            e("s_nop 1")
        e(f"s_mov_b64 exec, s[{sMASK}:{sMASK + 1}]")
    e(f"s_branch {done}")
    e("L_fallback:")
    e(f"""
    s_barrier
    s_lshl_b32 s{sKO}, s{sKVT}, 14
    v_mov_b32 v{vKR}, v31
    v_mov_b32 v{vL}, 0xff800000
    v_mov_b32 v{vL + 2}, 0xff800000
    v_subrev_u32 v{vKR}, {SLOT}, v{vKR}
    s_mov_b32 s{sTRIP}, 0
    """)
    for s16 in range(1, 8):
        e(f"v_xor_b32 v{vKR + s16}, {32 * s16}, v{vKR}")
    e("L_fb_loop:")
    e("s_waitcnt vmcnt(0) lgkmcnt(0)")
    e("s_barrier")
    e.vq, e.lq = [], []
    serial(e, kv_dma(e, "K", 0, ("fbk", 0)))
    e.wait_all()
    e("s_barrier")
    for kb in range(2):
        for s16 in range(8):
            e(f"ds_read_b128 {Fbuf(s16)}, v{vKR + s16} offset:{kb * 49152}")
        e("s_waitcnt lgkmcnt(0)")
        for s16 in range(8):
            for qb in range(2):
                c = "0" if s16 == 0 else Sreg(0, qb)
                e(f"v_mfma_f32_32x32x16_bf16 {Sreg(0, qb)}, {Fbuf(s16)}, {Qreg(s16, qb)}, {c}")
        e.nop(16)
        for qb in range(2):
            m = vL + 2 * qb
            for i in range(0, 16, 2):
                e(f"v_max3_f32 v{m}, v{m}, {Sreg(0, qb, i)}, {Sreg(0, qb, i + 1)}")
    e(f"""
    s_add_u32 s{sTRIP}, s{sTRIP}, 1
    s_cmp_lt_u32 s{sTRIP}, 8
    s_cbranch_scc1 L_fb_loop
    v_mov_b32 v{vL + 1}, v{vL}
    v_mov_b32 v{vL + 3}, v{vL + 2}
    s_nop 1
    v_permlane32_swap_b32 v{vL}, v{vL + 1}
    v_permlane32_swap_b32 v{vL + 2}, v{vL + 3}
    s_nop 0
    v_max_f32 v{vL}, v{vL}, v{vL + 1}
    v_max_f32 v{vL + 2}, v{vL + 2}, v{vL + 3}
    """)
    for qb in range(2):
        for i in range(16):
            e(f"v_sub_f32 v{vNM + 16 * qb + i}, 0, v{vL + 2 * qb}")
    e(f"""
    s_barrier
    s_lshl_b32 s{sKO}, s{sKVT}, 14
    s_mov_b32 s{sVO}, s{sKO}
    s_lshl_b32 s{sWOO}, s{sSK}, 15
    v_mov_b32 v{vKR}, v31
    v_mov_b32 v{vVR}, v63
    s_mov_b32 s{sPASS}, 1
    """)
    for s16 in range(1, 8):
        e(f"v_xor_b32 v{vKR + s16}, {32 * s16}, v{vKR}")
    for db in range(1, 4):
        e(f"v_xor_b32 v{vVR + db}, {64 * db}, v{vVR}")
    for (which, slot) in (("K", 1), ("V", 1), ("K", 2), ("V", 2), ("K", 0)):
        serial(e, kv_dma(e, which, slot, ("fbp", 0)))
    for i in range(4):
        e(f"v_mov_b32 v{vL + i}, 0")
        e(f"v_mov_b32 v{vGA + i}, v{vKDM + i}")
        e(f"v_mov_b32 v{vGB + i}, v{vVDM}")
    for i in range(128):
        e(f"v_accvgpr_write_b32 a{128 + i}, 0")
    e("s_branch L_p2_start")
    e(f"{done}:")
    e("s_endpgm")
    sp = check_scc(e.l)
    if sp:
        print("\n".join(sp))
        raise SystemExit("scc")
    probs = check_hazards(e.l, "k1")
    if probs and not any(k.startswith("no") for k in OPT):
        print("\n".join(probs[:40]))
        raise SystemExit("hazards")
    return e.text()
```

```python
from emit import E, check_hazards, check_scc
from asmlib import KA
from k1 import WS_PART, WS_R, WS_STAT, WS_IDX, WS_TS, WS_FLG, f2u, rng

WS_YP = 17 << 20
NSL = 224
LOG2E = 1.4426950408889634


def wave_max_u32(e, v, tmp_s):
    for sh in (1, 2, 4, 8):
        e("s_nop 1")
        e(f"v_max_u32_dpp v{v}, v{v}, v{v} row_shr:{sh} row_mask:0xf bank_mask:0xf")
    e("s_nop 1")
    e(f"v_max_u32_dpp v{v}, v{v}, v{v} row_bcast:15 row_mask:0xa bank_mask:0xf")
    e("s_nop 1")
    e(f"v_max_u32_dpp v{v}, v{v}, v{v} row_bcast:31 row_mask:0xc bank_mask:0xf")
    e("s_nop 0")
    e(f"v_readlane_b32 s{tmp_s}, v{v}, 63")


def silu_bf16(e, dst, src, t0, t1, sM):
    e(f"v_mul_f32 v{t0}, {hex(f2u(-LOG2E))}, v{src}")
    e(f"v_exp_f32 v{t0}, v{t0}")
    e("s_nop 0")
    e(f"v_add_f32 v{t0}, 1.0, v{t0}")
    e(f"v_rcp_f32 v{t0}, v{t0}")
    e("s_nop 0")
    e(f"v_mul_f32 v{t0}, v{src}, v{t0}")
    e(f"v_cvt_pk_bf16_f32 v{t0}, v{t0}, v{t0}")
    e(f"v_and_b32 v{dst}, s{sM}, v{t0}")


def ts_begin(e, on):
    if on:
        e("s_memrealtime s[64:65]")


def ts_end(e, on, srd, off, wave_sreg, lane_v=0):
    if not on:
        return
    e(f"""
    s_memrealtime s[66:67]
    s_mov_b64 exec, -1
    s_lshl_b32 s68, s2, 2
    s_add_u32 s68, s68, s{wave_sreg}
    s_lshl_b32 s68, s68, 4
    s_add_u32 s68, s68, {off}
    s_waitcnt vmcnt(0) lgkmcnt(0)
    s_memrealtime s[66:67]
    s_waitcnt lgkmcnt(0)
    v_mov_b32 v100, s64
    v_mov_b32 v101, s65
    v_mov_b32 v102, s66
    v_mov_b32 v103, s67
    v_mov_b32 v104, s68
    v_cmp_eq_u32 vcc, 0, v{lane_v}
    s_nop 1
    s_and_saveexec_b64 s[70:71], vcc
    buffer_store_dwordx4 v[100:103], v104, s[{srd}:{srd + 3}], 0 offen
    """)


def gen_km(label, ts=False):
    e = E()
    done = f"L_{label}_done"
    S_X, S_WG, S_WU, S_WD, S_WS = 4, 8, 12, 16, 20
    sW, sF0, sM = 24, 25, 26
    sWIN = 32
    e(f"""
    s_cmp_ge_u32 s2, {NSL}
    s_cbranch_scc1 {done}
    {"s_memrealtime s[64:65]" if ts else ""}
    s_load_dwordx2 s[4:5], s[0:1], {KA['x']}
    s_load_dwordx2 s[8:9], s[0:1], {KA['wg']}
    s_load_dwordx2 s[12:13], s[0:1], {KA['wu']}
    s_load_dwordx2 s[16:17], s[0:1], {KA['wd']}
    s_load_dwordx2 s[20:21], s[0:1], {KA['ws']}
    v_lshrrev_b32 v1, 6, v0
    v_mov_b32 v63, v0                    ; tid
    v_and_b32 v0, 63, v0
    v_readfirstlane_b32 s{sW}, v1
    s_lshl_b32 s{sF0}, s2, 4
    s_mov_b32 s{sM}, 0xffff0000
    s_waitcnt lgkmcnt(0)
    s_mov_b32 s6, 2097152
    s_mov_b32 s7, 0x20000
    s_mov_b32 s10, {512 * 1792 * 2}
    s_mov_b32 s11, 0x20000
    s_mov_b32 s14, {512 * 1792 * 2}
    s_mov_b32 s15, 0x20000
    s_mov_b32 s18, {1792 * 512 * 2}
    s_mov_b32 s19, 0x20000
    s_mov_b32 s22, 0x10000000
    s_mov_b32 s23, 0x20000
    """)
    e(f"""
    v_lshlrev_b32 v2, 5, v63
    v_add_u32 v2, {WS_R}, v2
    """)
    e.vm(f"buffer_load_dwordx4 v[8:11], v2, s[20:23], 0 offen", "r0")
    e.vm(f"buffer_load_dwordx4 v[12:15], v2, s[20:23], 0 offen offset:16", "r1")
    e(f"""
    s_lshl_b32 s27, s{sW}, 7
    v_add_u32 v3, s27, v0                ; row = 128 w + l
    v_mul_u32_u24 v3, 3584, v3
    v_add_u32 v3, s{sF0}, v3
    v_add_u32 v4, {64 * 3584}, v3
    s_lshl_b32 s28, s{sW}, 11            ; w*2048
    """)
    for (srd, base) in ((S_WG, 0), (S_WU, 8192)):
        for i in range(2):
            e(f"s_add_u32 m0, s28, {base + i * 1024}")
            e("s_nop 0")
            e.vm(f"buffer_load_dwordx4 v{3 + i}, s[{srd}:{srd + 3}], 0 offen lds", "wgu")
    e(f"""
    s_lshl_b32 s29, s2, 3
    s_lshl_b32 s30, s{sW}, 1
    s_add_u32 s29, s29, s30
    s_lshl_b32 s29, s29, 10              ; row*1024
    v_lshlrev_b32 v5, 4, v0
    """)
    for i in range(2):
        e(f"s_add_u32 m0, s28, {16384 + i * 1024}")
        e("s_nop 0")
        e.vm(f"buffer_load_dwordx4 v5, s[{S_WD}:{S_WD + 3}], s29 offen lds", "wd")
        e("s_add_u32 s29, s29, 1024")
    e.need(vtags=["r1"])
    e(f"v_lshlrev_b32 v6, 3, v63")
    e(f"v_sub_u32 v6, 2047, v6            ; 2047 - idx0")
    for i in range(8):
        r = 8 + i
        e(f"v_ashrrev_i32 v7, 31, v{r}")
        e(f"v_or_b32 v7, 0x80000000, v7")
        e(f"v_xor_b32 v{r}, v{r}, v7          ; monotone map")
        e(f"v_and_b32 v{r}, s{sM}, v{r}")
        e(f"v_or_b32 v{r}, v{r}, v6")
        if i < 7:
            e(f"v_subrev_u32 v6, 1, v6")
    e("v_mov_b32 v20, 0")
    for rd in range(8):
        e("v_max3_u32 v16, v8, v9, v10")
        e("v_max3_u32 v17, v11, v12, v13")
        e("v_max3_u32 v16, v16, v14, v15")
        e("v_max_u32 v16, v16, v17")
        wave_max_u32(e, 16, 31)
        e("s_nop 1")
        for i in range(8):
            e(f"v_cmp_ne_u32 vcc, s31, v{8 + i}")
            e("s_nop 1")
            e(f"v_cndmask_b32 v{8 + i}, 0, v{8 + i}, vcc")
        e(f"v_writelane_b32 v20, s31, {rd}")
    e(f"""
    s_lshl_b32 s27, s{sW}, 5
    v_lshlrev_b32 v21, 2, v0
    v_add_u32 v21, s27, v21
    v_add_u32 v21, 24576, v21
    v_cmp_gt_u32 vcc, 8, v0
    s_nop 0
    s_and_saveexec_b64 s[40:41], vcc
    ds_write_b32 v21, v20
    s_mov_b64 exec, s[40:41]
    s_waitcnt lgkmcnt(0)
    s_barrier
    v_and_b32 v21, 31, v0
    v_lshlrev_b32 v21, 2, v21
    ds_read_b32 v22, v21 offset:24576
    v_cmp_gt_u32 vcc, 32, v0
    s_waitcnt lgkmcnt(0)
    s_nop 0
    v_cndmask_b32 v22, 0, v22, vcc
    """)
    for rd in range(8):
        e("v_mov_b32 v16, v22")
        wave_max_u32(e, 16, sWIN + rd)
        e("s_nop 1")
        e(f"v_cmp_ne_u32 vcc, s{sWIN + rd}, v22")
        e("s_nop 1")
        e(f"v_cndmask_b32 v22, 0, v22, vcc")
    e("v_and_b32 v24, 7, v0")
    e(f"v_mov_b32 v23, s{sWIN}")
    for j in range(1, 8):
        e(f"v_cmp_eq_u32 vcc, {j}, v24")
        e(f"v_mov_b32 v25, s{sWIN + j}")
        e("s_nop 0")
        e("v_cndmask_b32 v23, v23, v25, vcc")
    e(f"""
    v_and_b32 v26, 0x7ff, v23
    v_sub_u32 v26, 2047, v26
    v_and_b32 v27, s{sM}, v23
    v_ashrrev_i32 v28, 31, v27
    v_not_b32 v28, v28
    v_or_b32 v28, 0x80000000, v28
    v_xor_b32 v27, v27, v28
    v_and_b32 v27, s{sM}, v27             ; r (f32 bits)
    """)
    e(f"""
    v_mul_f32 v28, {hex(f2u(-LOG2E))}, v27
    v_exp_f32 v28, v28
    s_nop 0
    v_add_f32 v28, 1.0, v28
    v_rcp_f32 v28, v28
    s_nop 0
    v_cvt_pk_bf16_f32 v28, v28, v28
    v_and_b32 v28, s{sM}, v28             ; bf16(sigmoid(r))
    v_lshlrev_b32 v29, 2, v0
    v_add_u32 v29, {WS_IDX}, v29
    s_or_b32 s27, s2, s{sW}
    s_cmp_eq_u32 s27, 0
    s_cselect_b64 s[42:43], -1, 0
    v_cmp_gt_u32 vcc, 8, v0
    s_nop 1
    s_and_b64 vcc, vcc, s[42:43]
    s_and_saveexec_b64 s[40:41], vcc
    s_cbranch_execz L_km_nopub
    buffer_store_dword v26, v29, s[20:23], 0 offen
    buffer_store_dword v28, v29, s[20:23], 0 offen offset:32
    L_km_nopub:
    s_mov_b64 exec, s[40:41]
    """)
    e.vq += ["pub", "pub"]
    e(f"""
    v_lshrrev_b32 v30, 4, v0
    v_lshlrev_b32 v30, 4, v30             ; q4*16
    v_lshl_add_u32 v30, v26, 10, v30
    s_lshl_b32 s27, s{sW}, 8              ; 4w*64 bytes
    v_lshlrev_b32 v31, 2, v26
    v_add_u32 v31, {WS_STAT}, v31
    """)
    e.vm(f"buffer_load_dword v32, v31, s[20:23], 0 offen", "st")
    for i in range(4):
        e.vm(f"buffer_load_dwordx4 {rng('v', 36 + 4 * i, 4)}, v30, s[4:7], s27 offen offset:{64 * i}", ("xg", i))
    e.need(vtags=["st"])
    e(f"""
    v_lshlrev_b32 v33, 16, v32            ; mean
    v_and_b32 v34, s{sM}, v32             ; sd
    v_rcp_f32 v34, v34
    """)
    e.need(vtags=[("xg", 3)])
    for i in range(16):
        r = 36 + i
        e(f"""
        v_lshlrev_b32 v52, 16, v{r}
        v_and_b32 v53, s{sM}, v{r}
        v_sub_f32 v52, v52, v33
        v_sub_f32 v53, v53, v33
        v_cvt_pk_bf16_f32 v52, v52, v53
        v_and_b32 v53, s{sM}, v52
        v_lshlrev_b32 v52, 16, v52
        v_mul_f32 v52, v52, v34
        v_mul_f32 v53, v53, v34
        v_cvt_pk_bf16_f32 v{r}, v52, v53
        """)
    e.need(vtags=["wd"])
    e("s_barrier")
    e(f"""
    v_bfe_u32 v54, v0, 2, 2               ; r
    v_lshrrev_b32 v55, 4, v0              ; q4
    v_lshl_add_u32 v54, v55, 3, v54       ; 8 q4 + r
    v_lshlrev_b32 v54, 4, v54
    v_and_b32 v55, 1, v0
    v_lshl_add_u32 v54, v55, 3, v54       ; + (c&1)*8
    v_bfe_u32 v55, v0, 1, 1
    v_lshl_add_u32 v54, v55, 13, v54      ; + U
    s_lshl_b32 s27, s{sW}, 11
    v_add_u32 v54, s27, v54
    """)
    for i in range(4):
        for rd in range(2):
            e.lds(f"ds_read_b64_tr_b16 {rng('v', 64 + 4 * i + 2 * rd, 2)}, v54 offset:{i * 512 + rd * 64}", ("fa", i))
    for i in range(4):
        e.need(ltags=[("fa", i)])
        c = "0" if i == 0 else "v[56:59]"
        e(f"v_mfma_f32_16x16x32_bf16 v[56:59], {rng('v', 64 + 4 * i, 4)}, {rng('v', 36 + 4 * i, 4)}, {c}")
    e.nop(8)
    e(f"""
    s_lshl_b32 s27, s{sW}, 10
    v_lshlrev_b32 v60, 4, v0
    v_add_u32 v61, s27, v60
    ds_write_b128 v61, v[56:59] offset:25600
    s_waitcnt lgkmcnt(0)
    s_barrier
    ds_read_b128 v[64:67], v60 offset:25600
    ds_read_b128 v[68:71], v60 offset:{25600 + 1024}
    ds_read_b128 v[72:75], v60 offset:{25600 + 2048}
    ds_read_b128 v[76:79], v60 offset:{25600 + 3072}
    s_waitcnt lgkmcnt(0)
    """)
    for i in range(4):
        e(f"v_add_f32 v{64 + i}, v{64 + i}, v{68 + i}")
        e(f"v_add_f32 v{72 + i}, v{72 + i}, v{76 + i}")
        e(f"v_add_f32 v{64 + i}, v{64 + i}, v{72 + i}")
    for i in range(4):
        e(f"v_cvt_pk_bf16_f32 v{64 + i}, v{64 + i}, v{64 + i}")
        e(f"v_and_b32 v{64 + i}, s{sM}, v{64 + i}")
        e(f"v_mov_b32 v{68 + i}, v{64 + i}")
    e("s_nop 0")
    for i in range(4):
        e(f"v_permlane32_swap_b32 v{64 + i}, v{68 + i}")
    for i in range(4):
        silu_bf16(e, 72 + i, 64 + i, 76, 77, sM)
        e(f"v_mul_f32 v{72 + i}, v{72 + i}, v{68 + i}")
    e(f"""
    v_cvt_pk_bf16_f32 v80, v72, v73
    v_cvt_pk_bf16_f32 v81, v74, v75
    v_cmp_gt_u32 vcc, 32, v0
    v_mov_b32 v82, 0
    v_mov_b32 v83, 0
    v_cndmask_b32 v80, 0, v80, vcc
    v_cndmask_b32 v81, 0, v81, vcc
    """)
    e(f"""
    v_bfe_u32 v54, v0, 2, 2               ; r
    v_bfe_u32 v55, v0, 4, 1               ; q4 & 1
    v_lshl_add_u32 v54, v55, 2, v54       ; row 0..7
    v_lshlrev_b32 v54, 10, v54
    v_and_b32 v55, 3, v0
    v_lshl_add_u32 v54, v55, 3, v54       ; + c*8
    s_lshl_b32 s27, s{sW}, 8              ; 8w tiles * 32 B
    v_add_u32 v54, s27, v54
    v_mov_b32 v86, 0
    v_mov_b32 v87, 0
    """)
    for t in range(8):
        e.lds(f"ds_read_b64_tr_b16 {rng('v', 88 + 4 * t, 2)}, v54 offset:{16384 + t * 32}", ("da", t))
        e(f"v_mov_b32 v{90 + 4 * t}, 0")
        e(f"v_mov_b32 v{91 + 4 * t}, 0")
    for t in range(8):
        e.need(ltags=[("da", t)])
        e(f"v_mfma_f32_16x16x32_bf16 {rng('v', 120 + 4 * t, 4)}, {rng('v', 88 + 4 * t, 4)}, v[80:83], 0")
    e(f"""
    s_lshl_b32 s27, s2, 14
    s_lshl_b32 s28, s{sW}, 9              ; 8w*16*4 bytes
    s_add_u32 s27, s27, s28
    s_add_u32 s27, s27, {WS_YP}
    v_and_b32 v60, 15, v0
    v_lshlrev_b32 v61, 11, v60
    v_lshrrev_b32 v62, 4, v0
    v_lshl_add_u32 v61, v62, 4, v61
    v_add_u32 v61, s27, v61
    v_cmp_gt_u32 vcc, 8, v60
    s_nop 4
    s_and_saveexec_b64 s[40:41], vcc
    """)
    for t in range(8):
        e(f"buffer_store_dwordx4 {rng('v', 120 + 4 * t, 4)}, v61, s[20:23], 0 offen offset:{t * 64}")
    e("s_mov_b64 exec, s[40:41]")
    ts_end(e, ts, S_WS, WS_TS + (1 << 20), sW)
    e(f"{done}:")
    e("s_endpgm")
    probs = check_hazards(e.l, "km")
    if probs:
        print("\n".join(probs[:40]))
        raise SystemExit("hazards")
    return e.text()


def final_math(e, n, vs, vx, vmean, vrsd, vupd, vout, t, sM):
    for i in range(n):
        a, b = t, t + 1
        e(f"v_cvt_pk_bf16_f32 v{vs[i]}, v{vs[i]}, v{vs[i]}")
        e(f"v_and_b32 v{vs[i]}, s{sM}, v{vs[i]}")
        e(f"v_sub_f32 v{a}, v{vx[i]}, v{vmean}")
        e(f"v_cvt_pk_bf16_f32 v{a}, v{a}, v{a}")
        e(f"v_and_b32 v{a}, s{sM}, v{a}")
        e(f"v_mul_f32 v{a}, v{a}, v{vrsd}")
        e(f"v_cvt_pk_bf16_f32 v{a}, v{a}, v{a}")
        e(f"v_and_b32 v{a}, s{sM}, v{a}")
        if vupd is not None:
            e(f"v_add_f32 v{a}, v{a}, v{vupd[i]}")
            e(f"v_cvt_pk_bf16_f32 v{a}, v{a}, v{a}")
            e(f"v_and_b32 v{a}, s{sM}, v{a}")
        silu_bf16(e, a, a, b, b, sM)
        e(f"v_mul_f32 v{a}, v{vs[i]}, v{a}")
        e(f"v_cvt_pk_bf16_f32 v{a}, v{a}, v{a}")
        e(f"v_and_b32 v{a}, s{sM}, v{a}")
        e(f"v_add_f32 v{vout[i]}, v{vx[i]}, v{a}")


def gen_k2(label, ts=False, perturb=None, dbgcopy=False):
    e = E()
    done = f"L_{label}_done"
    tail = f"L_{label}_tail"
    S_X, S_WS, S_OUT = 4, 8, 12
    sW, sM = 16, 17
    sIDX = 24
    e(f"""
    s_cmp_ge_u32 s2, 576
    s_cbranch_scc1 {done}
    {"s_memrealtime s[64:65]" if (ts or dbgcopy) else ""}
    s_load_dwordx2 s[4:5], s[0:1], {KA['x']}
    s_load_dwordx2 s[8:9], s[0:1], {KA['ws']}
    s_load_dwordx2 s[12:13], s[0:1], {KA['out']}
    v_lshrrev_b32 v1, 6, v0
    v_and_b32 v0, 63, v0
    s_mov_b32 s{sM}, 0xffff0000
    v_readfirstlane_b32 s{sW}, v1
    s_waitcnt lgkmcnt(0)
    s_add_u32 s18, s8, {WS_IDX}
    s_addc_u32 s19, s9, 0
    s_load_dwordx8 s[24:31], s[18:19], 0
    s_load_dwordx8 s[32:39], s[18:19], 32
    s_mov_b32 s6, 2097152
    s_mov_b32 s7, 0x20000
    s_mov_b32 s10, 0x10000000
    s_mov_b32 s11, 0x20000
    s_mov_b32 s14, 2097152
    s_mov_b32 s15, 0x20000
    s_cmp_lt_u32 s2, 64
    s_cbranch_scc1 L_k2_sel
    s_sub_u32 s63, s2, 64
    """)
    e(f"""
    s_lshl_b32 s20, s63, 2
    s_add_u32 s20, s20, s{sW}
    s_lshr_b32 s21, s20, 6                ; tb
    s_bfe_u32 s22, s20, {5 | (1 << 16)}   ; qb
    s_bfe_u32 s23, s20, {3 | (2 << 16)}   ; a
    s_and_b32 s20, s20, 7                 ; b
    s_lshl_b32 s40, s21, 6
    s_lshl_b32 s41, s22, 5
    s_add_u32 s40, s40, s41
    s_lshl_b32 s41, s23, 3
    s_add_u32 s40, s40, s41
    v_and_b32 v2, 7, v0
    v_add_u32 v3, s40, v2                 ; token
    v_lshrrev_b32 v4, 3, v0
    s_lshl_b32 s41, s20, 7
    v_lshlrev_b32 v4, 4, v4
    v_lshl_add_u32 v4, v3, 10, v4
    v_add_u32 v4, s41, v4
    s_lshl_b32 s41, s21, 16
    s_lshr_b32 s42, s20, 1
    s_lshl_b32 s42, s42, 14
    s_add_u32 s41, s41, s42
    s_and_b32 s42, s20, 1
    s_lshl_b32 s42, s42, 13
    s_add_u32 s41, s41, s42
    s_lshl_b32 s42, s22, 10
    s_add_u32 s41, s41, s42
    s_lshl_b32 s42, s23, 7
    s_add_u32 s41, s41, s42
    v_lshrrev_b32 v5, 4, v0
    v_lshlrev_b32 v5, 11, v5
    v_bfe_u32 v6, v0, 3, 1
    v_lshl_add_u32 v5, v6, 9, v5
    v_lshl_add_u32 v5, v2, 4, v5
    v_add_u32 v5, s41, v5
    v_lshlrev_b32 v7, 2, v3
    v_add_u32 v7, {WS_STAT}, v7
    """)
    for g in range(8):
        e(f"s_mov_b32 s{44 + g}, {g << 21}")
    for g in range(8):
        e.vm(f"buffer_load_dwordx4 {rng('v', 16 + 4 * g, 4)}, v5, s[8:11], s{44 + g} offen", ("p", g))
    e.vm(f"buffer_load_dword v8, v7, s[8:11], 0 offen", "st")
    e.vm(f"buffer_load_dwordx4 v[12:15], v4, s[4:7], 0 offen", "x")
    e(f"""
    s_mov_b32 s56, 0x00003f80            ; (1.0, 0)
    s_mov_b32 s57, 0x3f800000            ; (0, 1.0)
    s_mov_b32 s58, {hex(f2u(-LOG2E))}
    s_mov_b32 s59, {hex(f2u(-LOG2E))}
    s_mov_b32 s60, 1.0
    s_mov_b32 s61, 1.0
    """)
    e("s_waitcnt lgkmcnt(0)")
    for j in range(8):
        e(f"v_cmp_ne_u32 s[{72 + 2 * (j & 3)}:{73 + 2 * (j & 3)}], s{24 + j}, v3")
        if j == 3:
            e("s_nop 0")
            e("s_and_b64 s[52:53], s[72:73], s[74:75]")
            e("s_and_b64 s[54:55], s[76:77], s[78:79]")
            e("s_and_b64 s[52:53], s[52:53], s[54:55]")
    e("s_nop 0")
    e("s_and_b64 s[72:73], s[72:73], s[74:75]")
    e("s_and_b64 s[76:77], s[76:77], s[78:79]")
    e("s_and_b64 s[52:53], s[52:53], s[72:73]")
    e("s_and_b64 s[52:53], s[52:53], s[76:77]")
    for g in range(8):
        e.need(vtags=[("p", g)])
        for i in range(4):
            r = 16 + 4 * g + i
            c0 = "0" if g == 0 else f"v{48 + 2 * i}"
            c1 = "0" if g == 0 else f"v{49 + 2 * i}"
            e(f"v_dot2_f32_bf16 v{48 + 2 * i}, v{r}, s56, {c0}")
            e(f"v_dot2_f32_bf16 v{49 + 2 * i}, v{r}, s57, {c1}")
    e.need(vtags=["x"])
    e(f"""
    v_and_b32 v10, s{sM}, v8              ; sd
    v_rcp_f32 v10, v10
    v_lshlrev_b32 v9, 16, v8              ; mean
    v_mul_f32 v8, v9, v10
    v_sub_f32 v8, 0, v8
    """)
    for i in range(4):
        e(f"v_lshlrev_b32 v{60 + 2 * i}, 16, v{12 + i}")
        e(f"v_and_b32 v{61 + 2 * i}, s{sM}, v{12 + i}")
    P = lambda b: f"v[{b}:{b + 1}]"
    for i in range(4):
        e(f"v_pk_fma_f32 {P(16 + 2 * i)}, {P(60 + 2 * i)}, v[10:11], v[8:9] op_sel_hi:[1,0,0]")
    for i in range(4):
        e(f"v_pk_mul_f32 {P(24 + 2 * i)}, {P(16 + 2 * i)}, s[58:59]")
    for i in range(8):
        e(f"v_exp_f32 v{24 + i}, v{24 + i}")
    for i in range(4):
        e(f"v_pk_add_f32 {P(24 + 2 * i)}, {P(24 + 2 * i)}, s[60:61]")
    for i in range(8):
        e(f"v_rcp_f32 v{24 + i}, v{24 + i}")
    for i in range(4):
        e(f"v_pk_mul_f32 {P(16 + 2 * i)}, {P(16 + 2 * i)}, {P(24 + 2 * i)}")
    for i in range(4):
        e(f"v_pk_fma_f32 {P(60 + 2 * i)}, {P(48 + 2 * i)}, {P(16 + 2 * i)}, {P(60 + 2 * i)}")
    if perturb is not None:
        kind, delta = perturb
        if kind == "one":
            e(f"""
            v_cmp_eq_u32 vcc, 0, v4
            v_mov_b32 v58, {hex(f2u(delta))}
            s_nop 0
            v_cndmask_b32 v58, 0, v58, vcc
            v_add_f32 v60, v60, v58
            """)
        elif kind == "all":
            for i in range(8):
                e(f"v_add_f32 v{60 + i}, {hex(f2u(delta))}, v{60 + i}")
        elif kind == "mul":
            for i in range(8):
                e(f"v_mul_f32 v{60 + i}, {hex(f2u(delta))}, v{60 + i}")
    for i in range(4):
        e(f"v_cvt_pk_bf16_f32 v{12 + i}, v{60 + 2 * i}, v{61 + 2 * i}")
    e(f"""
    s_and_saveexec_b64 s[54:55], s[52:53]
    s_cbranch_execz {tail}
    buffer_store_dwordx4 v[12:15], v4, s[12:15], 0 offen
    s_branch {tail}
    """)
    e("L_k2_sel:")
    e.vq, e.lq = [], []
    e(f"""
    s_lshr_b32 s21, s2, 3                 ; j
    s_and_b32 s22, s2, 7                  ; cb
    """)
    e(f"""
    s_mul_i32 s42, s{sW}, {56 * 16384}
    s_lshl_b32 s43, s21, 11               ; j*2048
    s_add_u32 s42, s42, s43
    s_lshl_b32 s43, s22, 8                ; cb*64*4
    s_add_u32 s42, s42, s43
    s_add_u32 s42, s42, {WS_YP}
    v_lshrrev_b32 v2, 4, v0
    v_lshlrev_b32 v2, 14, v2
    v_and_b32 v3, 15, v0
    v_lshl_add_u32 v2, v3, 4, v2
    v_add_u32 v2, s42, v2
    s_mov_b32 s43, 0
    """)
    for i in range(14):
        e.vm(f"buffer_load_dwordx4 {rng('v', 16 + 4 * i, 4)}, v2, s[8:11], s43 offen", ("y", i))
        e(f"s_add_u32 s43, s43, {4 * 16384}")
    e("s_waitcnt lgkmcnt(0)")
    e("s_mov_b32 s40, s24")
    e("s_mov_b32 s41, s32")
    for j in range(1, 8):
        e(f"s_cmp_eq_u32 s21, {j}")
        e(f"s_cselect_b32 s40, s{24 + j}, s40")
        e(f"s_cselect_b32 s41, s{32 + j}, s41")
    e(f"""
    s_lshl_b32 s43, s22, 7
    s_lshl_b32 s44, s40, 10
    s_add_u32 s43, s43, s44
    v_lshlrev_b32 v4, 3, v3
    v_add_u32 v4, s43, v4
    s_lshl_b32 s44, s40, 2
    s_add_u32 s44, s44, {WS_STAT}
    v_mov_b32 v7, s44
    s_lshr_b32 s44, s40, 6
    s_lshl_b32 s44, s44, 16
    s_lshr_b32 s45, s22, 1
    s_lshl_b32 s45, s45, 14
    s_add_u32 s44, s44, s45
    s_and_b32 s45, s22, 1
    s_lshl_b32 s45, s45, 13
    s_add_u32 s44, s44, s45
    s_bfe_u32 s45, s40, {5 | (1 << 16)}
    s_lshl_b32 s45, s45, 10
    s_add_u32 s44, s44, s45
    s_and_b32 s45, s40, 31
    s_lshl_b32 s45, s45, 4
    s_add_u32 s44, s44, s45
    v_lshrrev_b32 v5, 2, v3
    v_lshlrev_b32 v5, 11, v5
    v_bfe_u32 v6, v3, 1, 1
    v_lshl_add_u32 v5, v6, 9, v5
    v_and_b32 v6, 1, v3
    v_lshl_add_u32 v5, v6, 3, v5
    v_add_u32 v5, s44, v5
    """)
    for g in range(8):
        e(f"s_mov_b32 s{56 + g}, {g << 21}")
    e.vm(f"buffer_load_dword v8, v7, s[8:11], 0 offen", "st")
    e.vm(f"buffer_load_dwordx2 v[12:13], v4, s[4:7], 0 offen", "x")
    for g in range(8):
        e.vm(f"buffer_load_dwordx2 {rng('v', 80 + 2 * g, 2)}, v5, s[8:11], s{56 + g} offen", ("p", g))
    for i in range(14):
        e.need(vtags=[("y", i)])
        if i > 0:
            for q in range(4):
                e(f"v_add_f32 v{16 + q}, v{16 + q}, v{16 + 4 * i + q}")
    for q in range(4):
        e(f"v_mov_b32 v{20 + q}, v{16 + q}")
    e("s_nop 0")
    for q in range(4):
        e(f"v_permlane32_swap_b32 v{16 + q}, v{20 + q}")
    for q in range(4):
        e(f"v_add_f32 v{16 + q}, v{16 + q}, v{20 + q}")
    for q in range(4):
        e(f"v_mov_b32 v{20 + q}, v{16 + q}")
    e("s_nop 0")
    for q in range(4):
        e(f"v_permlane16_swap_b32 v{16 + q}, v{20 + q}")
    for q in range(4):
        e(f"v_add_f32 v{16 + q}, v{16 + q}, v{20 + q}")
    e(f"""
    s_lshl_b32 s43, s{sW}, 10
    v_lshlrev_b32 v24, 4, v0
    v_add_u32 v25, s43, v24
    ds_write_b128 v25, v[16:19]
    s_waitcnt lgkmcnt(0)
    s_barrier
    s_cmp_lg_u32 s{sW}, 0
    s_cbranch_scc1 {tail}
    ds_read_b128 v[16:19], v24
    ds_read_b128 v[20:23], v24 offset:1024
    ds_read_b128 v[28:31], v24 offset:2048
    ds_read_b128 v[32:35], v24 offset:3072
    s_waitcnt lgkmcnt(0)
    """)
    for q in range(4):
        e(f"v_add_f32 v{16 + q}, v{16 + q}, v{20 + q}")
        e(f"v_add_f32 v{28 + q}, v{28 + q}, v{32 + q}")
        e(f"v_add_f32 v{16 + q}, v{16 + q}, v{28 + q}")
    for q in range(4):
        e(f"v_cvt_pk_bf16_f32 v{16 + q}, v{16 + q}, v{16 + q}")
        e(f"v_and_b32 v{16 + q}, s{sM}, v{16 + q}")
        e(f"v_mul_f32 v{16 + q}, s41, v{16 + q}")
        e(f"v_cvt_pk_bf16_f32 v{16 + q}, v{16 + q}, v{16 + q}")
        e(f"v_and_b32 v{16 + q}, s{sM}, v{16 + q}")
    e.need(vtags=[("p", 7)])
    for g in range(8):
        for i in range(2):
            r = 80 + 2 * g + i
            if g == 0:
                e(f"v_lshlrev_b32 v{48 + 2 * i}, 16, v{r}")
                e(f"v_and_b32 v{49 + 2 * i}, s{sM}, v{r}")
            else:
                e(f"v_lshlrev_b32 v56, 16, v{r}")
                e(f"v_and_b32 v57, s{sM}, v{r}")
                e(f"v_add_f32 v{48 + 2 * i}, v{48 + 2 * i}, v56")
                e(f"v_add_f32 v{49 + 2 * i}, v{49 + 2 * i}, v57")
    e(f"""
    v_lshlrev_b32 v9, 16, v8
    v_and_b32 v10, s{sM}, v8
    v_rcp_f32 v10, v10
    """)
    for i in range(2):
        e(f"v_lshlrev_b32 v{60 + 2 * i}, 16, v{12 + i}")
        e(f"v_and_b32 v{61 + 2 * i}, s{sM}, v{12 + i}")
    final_math(e, 4, [48 + i for i in range(4)], [60 + i for i in range(4)], 9, 10, [16 + i for i in range(4)],
               [60 + i for i in range(4)], 56, sM)
    for i in range(2):
        e(f"v_cvt_pk_bf16_f32 v{12 + i}, v{60 + 2 * i}, v{61 + 2 * i}")
    e(f"""
    v_cmp_gt_u32 vcc, 16, v0
    s_nop 0
    s_and_saveexec_b64 s[54:55], vcc
    buffer_store_dwordx2 v[12:13], v4, s[12:15], 0 offen
    """)
    e(f"{tail}:")
    if dbgcopy:
        e(f"""
        s_mov_b64 exec, -1
        s_waitcnt vmcnt(0) lgkmcnt(0)
        s_memrealtime s[66:67]
        s_load_dwordx2 s[70:71], s[0:1], {KA['dbg']}
        s_cmp_lg_u32 s{sW}, 0
        s_cbranch_scc1 {done}
        s_cmp_lg_u32 s2, 0
        s_cbranch_scc1 {done}
        v_lshlrev_b32 v100, 3, v0
        v_add_u32 v100, {WS_TS}, v100
        buffer_load_dword v101, v100, s[{S_WS}:{S_WS + 3}], 0 offen
        v_mov_b32 v102, {WS_TS}
        buffer_load_dword v103, v102, s[{S_WS}:{S_WS + 3}], 0 offen
        s_waitcnt vmcnt(0) lgkmcnt(0)
        v_sub_u32 v101, v101, v103
        v_mov_b32 v104, s64
        v_sub_u32 v104, v104, v103
        v_mov_b32 v105, s66
        v_sub_u32 v105, v105, v103
        v_cmp_eq_u32 vcc, 9, v0
        s_nop 1
        v_cndmask_b32 v101, v101, v104, vcc
        v_cmp_eq_u32 vcc, 10, v0
        s_nop 1
        v_cndmask_b32 v101, v101, v105, vcc
        v_lshlrev_b32 v100, 2, v0
        v_cmp_gt_u32 vcc, 11, v0
        s_nop 1
        s_and_saveexec_b64 s[68:69], vcc
        global_store_dword v100, v101, s[70:71]
        s_waitcnt vmcnt(0)
        """)
    ts_end(e, ts, S_WS, WS_TS + (2 << 20), sW)
    e(f"{done}:")
    e("s_endpgm")
    probs = check_hazards(e.l, "k2") + check_scc(e.l)
    if probs:
        print("\n".join(probs[:40]))
        raise SystemExit("hazards")
    return e.text()


SORT8 = [(0, 1), (2, 3), (4, 5), (6, 7), (0, 2), (1, 3), (4, 6), (5, 7), (1, 2), (5, 6), (0, 4), (3, 7),
         (1, 5), (2, 6), (1, 4), (3, 6), (2, 4), (3, 5), (3, 4)]


def _check_sort8():
    import itertools
    for bits in itertools.product([0, 1], repeat=8):
        a = list(bits)
        for i, j in SORT8:
            if a[i] < a[j]:
                a[i], a[j] = a[j], a[i]
        assert a == sorted(a, reverse=True)


_check_sort8()


def keys_from_r(e, K, vidx, sM, tmp):
    for i in range(8):
        r = K[i]
        e(f"v_ashrrev_i32 v{tmp}, 31, v{r}")
        e(f"v_or_b32 v{tmp}, 0x80000000, v{tmp}")
        e(f"v_xor_b32 v{r}, v{r}, v{tmp}")
        e(f"v_and_or_b32 v{r}, v{r}, s{sM}, v{vidx}")
        if i < 7:
            e(f"v_subrev_u32 v{vidx}, 1, v{vidx}")


def wave_top8(e, K, spare, vres, vt, stmp, smask):
    K = list(K)
    free = spare
    for (i, j) in SORT8:
        e(f"v_max_u32 v{free}, v{K[i]}, v{K[j]}")
        e(f"v_min_u32 v{K[j]}, v{K[i]}, v{K[j]}")
        K[i], free = free, K[i]
    e(f"v_mov_b32 v{vres}, 0")
    for rd in range(8):
        e(f"v_mov_b32 v{vt}, v{K[0]}")
        wave_max_u32(e, vt, stmp)
        e("s_nop 1")
        e(f"v_writelane_b32 v{vres}, s{stmp}, {rd}")
        if rd < 7:
            e(f"v_cmp_eq_u32 s[{smask}:{smask + 1}], s{stmp}, v{K[0]}")
            e("s_nop 1")
            for q in range(7 - rd):
                e(f"v_cndmask_b32 v{K[q]}, v{K[q]}, v{K[q + 1]}, s[{smask}:{smask + 1}]")


def moe_side(e, side, R):
    from k1 import RB, WSTR, SLOT
    sW, sRING, sM = R["W"], R["RING"], R["M"]
    S_X, S_WS = R["X"], R["WS"]
    sA, sB = 46, 47
    MX = 5 * 4096
    mk = [60, 62, 64, 66]
    K = [88 + i for i in range(8)]
    spare, vres, vt, vidx, tmp = 96, 97, 98, 99, 100
    A = side.add
    free = spare
    for (i, j) in SORT8:
        A(f"v_max_u32 v{free}, v{K[i]}, v{K[j]}")
        A(f"v_min_u32 v{K[j]}, v{K[i]}, v{K[j]}")
        K[i], free = free, K[i]
    A(f"v_mov_b32 v{vres}, 0")
    for rd in range(8):
        A(f"v_mov_b32 v{vt}, v{K[0]}")
        for sh in (1, 2, 4, 8):
            A(f"v_max_u32_dpp v{vt}, v{vt}, v{vt} row_shr:{sh} row_mask:0xf bank_mask:0xf", gap=2)
        A(f"v_max_u32_dpp v{vt}, v{vt}, v{vt} row_bcast:15 row_mask:0xa bank_mask:0xf", gap=2)
        A(f"v_max_u32_dpp v{vt}, v{vt}, v{vt} row_bcast:31 row_mask:0xc bank_mask:0xf", gap=2)
        A(f"v_readlane_b32 s{sA}, v{vt}, 63", gap=1)
        if rd < 7:
            A(f"v_cmp_eq_u32 s[{mk[0]}:{mk[0] + 1}], s{sA}, v{K[0]}", gap=2)
            A(f"v_writelane_b32 v{vres}, s{sA}, {rd}")
            for q in range(7 - rd):
                A(f"v_cndmask_b32 v{K[q]}, v{K[q]}, v{K[q + 1]}, s[{mk[0]}:{mk[0] + 1}]", gap=(1 if q == 0 else 0))
        else:
            A(f"v_writelane_b32 v{vres}, s{sA}, {rd}", gap=2)
    A(f"v_writelane_b32 v{vres}, s{R['RDY']}, 8")
    A(f"v_lshlrev_b32 v{tmp}, 2, v0")
    A(f"v_add_u32 v{tmp}, s{sRING}, v{tmp}")
    A(lambda: e.lds(f"ds_write_b32 v{tmp}, v{vres} offset:{MX}", ("mw", 0)))
    A(f"v_lshrrev_b32 v126, 3, v0")
    A(f"v_and_b32 v126, 3, v126")
    A(f"v_mul_u32_u24 v126, {WSTR}, v126")
    A(f"v_and_b32 v127, 7, v0")
    A(f"v_lshl_add_u32 v126, v127, 2, v126")
    A(f"v_add_u32 v126, {RB + MX}, v126")

    def bar():
        e.need(ltags=[("mw", 0)])
        e("s_barrier")
    A(bar)
    A(lambda: e.lds(f"ds_read_b32 v120, v126", ("mo", 0)))
    for w_ in range(4):
        A(f"v_mov_b32 v127, {RB + MX + w_ * WSTR}")
        A(lambda w_=w_: e.lds(f"ds_read_b128 v[{88 + 8 * w_}:{91 + 8 * w_}], v127", ("mc", w_)))
        A(lambda w_=w_: e.lds(f"ds_read_b128 v[{92 + 8 * w_}:{95 + 8 * w_}], v127 offset:16", ("mc", w_)))
        A(lambda w_=w_: e.lds(f"ds_read_b32 v{121 + w_}, v127 offset:32", ("mf", w_)))
    A(f"v_mov_b32 v125, 0")
    A(lambda: e.need(ltags=[("mf", 3)]))
    A(f"v_and_b32 v121, v121, v122")
    A(f"v_and_b32 v123, v123, v124")
    A(f"v_and_b32 v121, v121, v123")
    for j0 in range(0, 32, 4):
        for q in range(4):
            A(f"v_cmp_gt_u32 s[{mk[q]}:{mk[q] + 1}], v{88 + j0 + q}, v120")
        for q in range(4):
            A(f"v_addc_co_u32 v125, vcc, 0, v125, s[{mk[q]}:{mk[q] + 1}]", gap=(0 if q else 0))
    A(f"v_readfirstlane_b32 s{R['RDY']}, v121")
    A(f"v_lshlrev_b32 v126, 2, v125")
    A(f"v_add_u32 v126, s{sRING}, v126")
    A(lambda: e.lds(f"ds_write_b32 v126, v120 offset:{MX + 64}", ("mp", 0)))
    A(f"v_and_b32 v127, 7, v0")
    A(f"v_lshlrev_b32 v127, 2, v127")
    A(f"v_add_u32 v127, s{sRING}, v127")
    A(lambda: e.lds(f"ds_read_b32 v124, v127 offset:{MX + 64}", ("mq", 0)))
    A(f"v_lshrrev_b32 v122, 4, v0")
    A(f"v_lshlrev_b32 v122, 4, v122")
    A(f"s_lshl_b32 s{sB}, s{sW}, 8")
    A(lambda: e.need(ltags=[("mq", 0)]))
    A(f"v_and_b32 v123, 0x7ff, v124")
    A(f"v_sub_u32 v123, 2047, v123")
    A(f"v_accvgpr_write_b32 a225, v124")
    A(f"v_lshl_add_u32 v122, v123, 10, v122")
    A(f"v_lshlrev_b32 v123, 2, v123")
    A(f"v_add_u32 v123, {WS_STAT}, v123")
    A(lambda: e.vm(f"buffer_load_dword a224, v123, s[{S_WS}:{S_WS + 3}], 0 offen sc1", ("g", 0)), cond=(27, 0))
    for i in range(4):
        A(lambda i=i: e.vm(f"buffer_load_dwordx4 a[{208 + 4 * i}:{211 + 4 * i}], v122, s[{S_X}:{S_X + 3}], s{sB} offen offset:{64 * i}",
                           ("g", 1 + i)))


def sum_partials(e, base, acc, n_src, n_regs, s_lo, s_hi):
    for g in range(n_src):
        yield g
        for i in range(n_regs):
            r = base + n_regs * g + i
            c0 = "0" if g == 0 else f"v{acc + 2 * i}"
            c1 = "0" if g == 0 else f"v{acc + 2 * i + 1}"
            e(f"v_dot2_f32_bf16 v{acc + 2 * i}, v{r}, s{s_lo}, {c0}")
            e(f"v_dot2_f32_bf16 v{acc + 2 * i + 1}, v{r}, s{s_hi}, {c1}")


def flag_prepare(e, R, sA, sB, v, first, count):
    e(f"""
    s_lshl_b32 s{sA}, s{R['TB']}, 3
    s_add_u32 s{sB}, s{sA}, s{R['G']}
    s_lshl_b32 s{sB}, s{sB}, 2
    s_add_u32 s{sB}, s{sB}, {WS_FLG}
    s_cmp_eq_u32 s{R['W']}, 0
    s_cselect_b32 s{sB}, s{sB}, 0x7fff0000
    v_lshlrev_b32 v{v}, 10, v0
    v_add_u32 v{v}, s{sB}, v{v}
    v_mov_b32 v{v + 1}, 0x7fff0000
    v_subrev_u32 v{v + 2}, {first}, v0
    v_cmp_gt_u32 vcc, {count}, v{v + 2}
    s_nop 1
    v_cndmask_b32 v{v}, v{v + 1}, v{v}, vcc
    v_mov_b32 v{v + 1}, 1
    """)


def fin_setup(e, R, sA, sB, mk):
    from k1 import RB
    S_X, S_WS, sW, sM = R["X"], R["WS"], R["W"], R["M"]
    sG, sTB = R["G"], R["TB"]
    GO = RB + 5 * 4096 + 512
    for j in range(8):
        e(f"v_readlane_b32 s{8 + j}, v26, {j}")
    e(f"""
    s_mov_b32 s16, 0x00003f80
    s_mov_b32 s17, 0x3f800000
    s_mov_b32 s18, {hex(f2u(-LOG2E))}
    s_mov_b32 s19, {hex(f2u(-LOG2E))}
    s_mov_b32 s48, 1.0
    s_mov_b32 s49, 1.0
    s_mov_b32 s22, 2097152
    s_mov_b32 s23, 0x20000
    """)
    for g in range(8):
        e(f"s_mov_b32 s{52 + g}, {g << 21}")
    e(f"""
    s_lshl_b32 s{sA}, s{sTB}, 6
    s_lshl_b32 s{sB}, s{sG}, 3
    s_add_u32 s{sA}, s{sA}, s{sB}
    v_and_b32 v2, 7, v0
    v_add_u32 v3, s{sA}, v2                 ; token
    v_lshrrev_b32 v4, 3, v0
    v_lshlrev_b32 v4, 4, v4
    v_lshl_add_u32 v4, v3, 10, v4
    s_lshl_b32 s{sB}, s{sW}, 8
    v_add_u32 v4, s{sB}, v4
    """)
    e.vm(f"buffer_load_dwordx4 v[12:15], v4, s[{S_X}:{S_X + 3}], 0 offen", "x0")
    e.vm(f"buffer_load_dwordx4 v[16:19], v4, s[{S_X}:{S_X + 3}], 0 offen offset:128", "x1")
    e(f"""
    v_lshlrev_b32 v7, 2, v3
    v_add_u32 v7, {WS_STAT}, v7
    s_lshl_b32 s{sA}, s{sTB}, 16
    s_lshl_b32 s{sB}, s{sW}, 14
    s_add_u32 s{sA}, s{sA}, s{sB}
    s_lshr_b32 s{sB}, s{sG}, 2
    s_lshl_b32 s{sB}, s{sB}, 10
    s_add_u32 s{sA}, s{sA}, s{sB}
    s_and_b32 s{sB}, s{sG}, 3
    s_lshl_b32 s{sB}, s{sB}, 7
    s_add_u32 s{sA}, s{sA}, s{sB}
    v_lshrrev_b32 v5, 4, v0
    v_lshlrev_b32 v5, 11, v5
    v_bfe_u32 v6, v0, 3, 1
    v_lshl_add_u32 v5, v6, 9, v5
    v_lshl_add_u32 v5, v2, 4, v5
    v_add_u32 v5, s{sA}, v5
    v_add_u32 v6, 8192, v5                  ; task 1
    s_lshl_b32 s{sA}, s{sTB}, 5
    s_add_u32 s{sA}, s{sA}, {WS_FLG}
    s_lshr_b32 s{sB}, s2, 3
    s_and_b32 s{sB}, s{sB}, 7
    s_add_u32 s{sB}, s{sB}, 2
    s_lshl_b32 s51, s{sB}, 10
    s_lshr_b32 s{sB}, s{sW}, 1
    s_lshl_b32 s50, s{sB}, 10
    s_add_u32 s{sA}, s{sA}, s50
    v_lshlrev_b32 v8, 2, v2
    v_add_u32 v8, s{sA}, v8
    v_lshlrev_b32 v9, 4, v0
    v_add_u32 v9, s51, v9
    v_add_u32 v9, {WS_FLG}, v9
    s_lshl_b32 s{sB}, s{sB}, 2
    s_add_u32 s{sB}, s{sB}, {GO}
    v_mov_b32 v11, s{sB}
    v_mov_b32 v152, {GO}
    v_mov_b32 v154, 0
    v_mov_b32 v155, 0
    ds_write_b64 v152, v[154:155]           ; both go words start at zero (a barrier follows before anyone sets or reads them)
    """)
    e(f"""
    s_bfe_u32 s50, s2, {4 | (3 << 16)}       ; j
    s_and_b32 s51, s2, 15                   ; cp
    s_nop 0
    v_readlane_b32 s46, v26, s50            ; token
    v_readlane_b32 s47, v28, s50            ; sigmoid(r)
    s_lshl_b32 s{sA}, s51, 9                ; w*2048 + u*512 = cp*512
    s_lshl_b32 s{sB}, s50, 6
    s_add_u32 s{sA}, s{sA}, s{sB}
    s_add_u32 s{sA}, s{sA}, {WS_YP}
    v_lshrrev_b32 v152, 2, v0
    v_lshlrev_b32 v152, 13, v152
    v_and_b32 v156, 3, v0                   ; q4
    v_lshl_add_u32 v152, v156, 4, v152
    v_add_u32 v152, s{sA}, v152
    s_lshr_b32 s{sA}, s46, 6
    s_lshl_b32 s{sA}, s{sA}, 16
    s_lshl_b32 s{sB}, s51, 12
    s_add_u32 s{sA}, s{sA}, s{sB}
    s_bfe_u32 s{sB}, s46, {5 | (1 << 16)}
    s_lshl_b32 s{sB}, s{sB}, 10
    s_add_u32 s{sA}, s{sA}, s{sB}
    s_and_b32 s{sB}, s46, 31
    s_lshl_b32 s{sB}, s{sB}, 4
    s_add_u32 s{sA}, s{sA}, s{sB}
    v_lshrrev_b32 v153, 1, v156
    v_lshlrev_b32 v153, 9, v153
    v_and_b32 v157, 1, v156
    v_lshl_add_u32 v153, v157, 3, v153
    v_add_u32 v153, s{sA}, v153
    s_lshl_b32 s{sA}, s46, 10
    s_lshl_b32 s{sB}, s51, 6
    s_add_u32 s{sA}, s{sA}, s{sB}
    v_lshlrev_b32 v154, 3, v156
    v_add_u32 v154, s{sA}, v154
    s_lshl_b32 s{sA}, s46, 2
    s_add_u32 s{sA}, s{sA}, {WS_STAT}
    v_mov_b32 v155, s{sA}
    """)
    for j in range(8):
        e(f"v_cmp_ne_u32 s[{mk[j & 3]}:{mk[j & 3] + 1}], s{8 + j}, v3")
        if (j & 3) == 3:
            e("s_nop 0")
            e(f"s_and_b64 s[{mk[0]}:{mk[0] + 1}], s[{mk[0]}:{mk[0] + 1}], s[{mk[1]}:{mk[1] + 1}]")
            e(f"s_and_b64 s[{mk[2]}:{mk[2] + 1}], s[{mk[2]}:{mk[2] + 1}], s[{mk[3]}:{mk[3] + 1}]")
            if j == 3:
                e(f"s_and_b64 s[68:69], s[{mk[0]}:{mk[0] + 1}], s[{mk[2]}:{mk[2] + 1}]")
            else:
                e(f"s_and_b64 s[{mk[0]}:{mk[0] + 1}], s[{mk[0]}:{mk[0] + 1}], s[{mk[2]}:{mk[2] + 1}]")
                e(f"s_and_b64 s[68:69], s[68:69], s[{mk[0]}:{mk[0] + 1}]")


def poll_check(e, v, sB, lab):
    e(f"""
    v_cmp_eq_u32 vcc, 1, v{v}
    s_sub_u32 s{sB}, s{sB}, 1
    s_cmp_eq_u32 s{sB}, 0
    s_cbranch_scc1 {lab}
    s_cmp_eq_u64 vcc, -1
    s_cbranch_scc1 {lab}
    """)


def fused_finish(e, R, sA, sB, mk):
    S_X, S_WS, sW, sM = R["X"], R["WS"], R["W"], R["M"]
    sG, sTB = R["G"], R["TB"]
    S_OUT = 20
    spin = R["opt"].get("finspin", 200000)
    slp = R["opt"].get("finsleep", 2)
    WSR = f"s[{S_WS}:{S_WS + 3}]"
    e.nop(4)
    for u in range(4):
        a, b = 120 + 8 * u, 124 + 8 * u
        e(f"v_cvt_pk_bf16_f32 v{a}, v{a}, v{a + 1}")
        e(f"v_cvt_pk_bf16_f32 v{a + 1}, v{a + 2}, v{a + 3}")
        e(f"v_cvt_pk_bf16_f32 v{a + 2}, v{b}, v{b + 1}")
        e(f"v_cvt_pk_bf16_f32 v{a + 3}, v{b + 2}, v{b + 3}")
    e(f"""
    s_lshl_b32 s{sA}, s{R['SL']}, 13
    s_lshl_b32 s{sB}, s{sW}, 11
    s_add_u32 s{sA}, s{sA}, s{sB}
    s_add_u32 s{sA}, s{sA}, {WS_YP}
    v_and_b32 v60, 15, v0
    v_lshlrev_b32 v61, 6, v60
    v_lshrrev_b32 v62, 4, v0
    v_lshl_add_u32 v61, v62, 4, v61
    v_add_u32 v61, s{sA}, v61
    v_mov_b32 v63, 0x1ffffff0
    v_cmp_gt_u32 vcc, 8, v60
    s_nop 1
    v_cndmask_b32 v61, v63, v61, vcc
    """)
    for u in range(4):
        e(f"buffer_store_dwordx4 v[{120 + 8 * u}:{123 + 8 * u}], v61, {WSR}, 0 offen offset:{u * 512} sc1")
    flag_prepare(e, R, sA, sB, 22, 1, 1)
    e(f"""
    s_waitcnt vmcnt(4)
    s_barrier
    buffer_store_dword v23, v22, {WSR}, 0 offen sc1
    """)
    flag_prepare(e, R, sA, sB, 22, 2, 8)
    e(f"""
    s_mov_b32 s{sB}, {spin}
    s_bitcmp1_b32 s{sW}, 0
    s_cbranch_scc1 L_fin_wdrain
    buffer_load_dword v158, v8, {WSR}, 0 offen sc1
    s_sleep {slp}
    buffer_load_dword v159, v8, {WSR}, 0 offen sc1
    s_waitcnt vmcnt(3)
    s_barrier
    buffer_store_dword v23, v22, {WSR}, 0 offen sc1
    s_waitcnt vmcnt(2)
    """)
    poll_check(e, 158, sB, "L_fin_set")
    e("s_waitcnt vmcnt(1)")
    poll_check(e, 159, sB, "L_fin_set")
    e(f"""
    s_branch L_fin_poll
    L_fin_wdrain:
    s_waitcnt vmcnt(1)
    s_barrier
    buffer_store_dword v23, v22, {WSR}, 0 offen sc1
    s_branch L_fin_watch
    """)
    e("L_fin_sync:")
    flag_prepare(e, R, sA, sB, 22, 0, 10)
    e(f"""
    s_waitcnt vmcnt(0) lgkmcnt(0)
    s_barrier
    buffer_store_dword v23, v22, {WSR}, 0 offen sc1
    s_mov_b32 s{sB}, {spin}
    s_bitcmp1_b32 s{sW}, 0
    s_cbranch_scc1 L_fin_watch
    L_fin_poll:
    buffer_load_dword v158, v8, {WSR}, 0 offen sc1
    s_sleep {slp}
    buffer_load_dword v159, v8, {WSR}, 0 offen sc1
    L_fin_poll_loop:
    s_waitcnt vmcnt(1)
    """)
    poll_check(e, 158, sB, "L_fin_set")
    e(f"buffer_load_dword v158, v8, {WSR}, 0 offen sc1")
    e("s_waitcnt vmcnt(1)")
    poll_check(e, 159, sB, "L_fin_set")
    e(f"""
    buffer_load_dword v159, v8, {WSR}, 0 offen sc1
    s_branch L_fin_poll_loop
    L_fin_set:
    v_mov_b32 v20, 1
    ds_write_b32 v11, v20
    s_branch L_fin_go
    L_fin_watch:
    s_cmp_lg_u32 s{sW}, 1
    s_cbranch_scc1 L_fin_watch2
    s_cmp_ge_u32 s2, 128
    s_cbranch_scc1 L_fin_watch2
    ; wave 1 of a workgroup with a selected-row task: all 256 B2 flags (they imply the A flags of its regular task)
    buffer_load_dwordx4 v[128:131], v9, {WSR}, 0 offen sc1
    s_sleep {slp}
    buffer_load_dwordx4 v[132:135], v9, {WSR}, 0 offen sc1
    L_fin_pollall:
    s_waitcnt vmcnt(1)
    v_and_b32 v128, v128, v129
    v_and_b32 v130, v130, v131
    v_and_b32 v158, v128, v130
    """)
    poll_check(e, 158, sB, "L_fin_allset")
    e(f"""
    buffer_load_dwordx4 v[128:131], v9, {WSR}, 0 offen sc1
    s_waitcnt vmcnt(1)
    v_and_b32 v132, v132, v133
    v_and_b32 v134, v134, v135
    v_and_b32 v158, v132, v134
    """)
    poll_check(e, 158, sB, "L_fin_allset")
    e(f"""
    buffer_load_dwordx4 v[132:135], v9, {WSR}, 0 offen sc1
    s_branch L_fin_pollall
    L_fin_allset:
    s_branch L_fin_go
    L_fin_watch2:
    s_lshl_b32 s{sB}, s{sB}, 4
    L_fin_watch_loop:
    ds_read_b32 v20, v11
    s_waitcnt lgkmcnt(0)
    v_readfirstlane_b32 s{sA}, v20
    s_sub_u32 s{sB}, s{sB}, 1
    s_cmp_eq_u32 s{sB}, 0
    s_cbranch_scc1 L_fin_go
    s_cmp_eq_u32 s{sA}, 1
    s_cbranch_scc0 L_fin_watch_loop
    L_fin_go:
    s_waitcnt lgkmcnt(0)
    """)
    R["stamp"]("polled")
    e.vq = []
    e.vm(f"buffer_load_dword v10, v7, {WSR}, 0 offen sc1", "st")
    for i in range(2):
        for g in range(8):
            e.vm(f"buffer_load_dwordx4 {rng('v', 64 + 32 * i + 4 * g, 4)}, v{5 + i}, {WSR}, s{52 + g} offen sc1",
                 ("p", i, g))
    e(f"""
    s_cmp_lg_u32 s{sW}, 1
    s_cbranch_scc1 L_fin_nosel1
    s_cmp_ge_u32 s2, 128
    s_cbranch_scc1 L_fin_nosel1
    s_mov_b32 s{sA}, 0
    """)
    for i in range(14):
        e(f"buffer_load_dwordx4 {rng('v', 160 + 4 * i, 4)}, v152, {WSR}, s{sA} offen sc1")
        e(f"s_add_u32 s{sA}, s{sA}, {16 * 8192}")
    for g in range(8):
        e(f"buffer_load_dwordx2 {rng('v', 216 + 4 * g, 2)}, v153, {WSR}, s{52 + g} offen sc1")
        e(f"buffer_load_dwordx2 {rng('v', 218 + 4 * g, 2)}, v153, {WSR}, s{52 + g} offen offset:2048 sc1")
    e(f"""
    buffer_load_dwordx2 v[248:249], v154, s[{S_X}:{S_X + 3}], 0 offen
    buffer_load_dwordx2 v[250:251], v154, s[{S_X}:{S_X + 3}], 0 offen offset:32
    buffer_load_dword v252, v155, {WSR}, 0 offen sc1
    L_fin_nosel1:
    """)
    P = lambda b: f"v[{b}:{b + 1}]"

    def regular(extra):
        e.vq = ["st"] + [("p", i, g) for i in range(2) for g in range(8)] + ["sel"] * extra
        e.need(vtags=["st"])
        e(f"""
        v_mov_b32 v31, 0x7ffffff0
        v_cndmask_b32 v32, v31, v4, s[68:69]
        v_and_b32 v34, s{sM}, v10               ; sd
        v_rcp_f32 v34, v34
        v_lshlrev_b32 v33, 16, v10              ; mean
        v_mul_f32 v30, v33, v34
        v_sub_f32 v36, 0, v30
        """)
        for i in range(2):
            acc = 40
            for g in sum_partials(e, 64 + 32 * i, acc, 8, 4, 16, 17):
                e.need(vtags=[("p", i, g)])
            xr = 12 + 4 * i
            for q in range(4):
                e(f"v_lshlrev_b32 v{48 + 2 * q}, 16, v{xr + q}")
                e(f"v_and_b32 v{49 + 2 * q}, s{sM}, v{xr + q}")
            for q in range(4):
                e(f"v_pk_fma_f32 {P(56 + 2 * q)}, {P(48 + 2 * q)}, v[34:35], v[36:37] op_sel_hi:[1,0,0]")
            T0 = 64 + 32 * i
            for q in range(4):
                e(f"v_pk_mul_f32 {P(T0 + 2 * q)}, {P(56 + 2 * q)}, s[18:19]")
            for q in range(8):
                e(f"v_exp_f32 v{T0 + q}, v{T0 + q}")
            for q in range(4):
                e(f"v_pk_add_f32 {P(T0 + 2 * q)}, {P(T0 + 2 * q)}, s[48:49]")
            for q in range(8):
                e(f"v_rcp_f32 v{T0 + q}, v{T0 + q}")
            for q in range(4):
                e(f"v_pk_mul_f32 {P(56 + 2 * q)}, {P(56 + 2 * q)}, {P(T0 + 2 * q)}")
            for q in range(4):
                e(f"v_pk_fma_f32 {P(48 + 2 * q)}, {P(acc + 2 * q)}, {P(56 + 2 * q)}, {P(48 + 2 * q)}")
            for q in range(4):
                e(f"v_cvt_pk_bf16_f32 v{T0 + 8 + q}, v{48 + 2 * q}, v{49 + 2 * q}")
            e.vm(f"buffer_store_dwordx4 {rng('v', T0 + 8, 4)}, v32, s[{S_OUT}:{S_OUT + 3}], 0 offen offset:{128 * i}", "o")
    e(f"""
    s_cmp_lg_u32 s{sW}, 1
    s_cbranch_scc1 L_fin_plain
    s_cmp_lt_u32 s2, 128
    s_cbranch_scc1 L_fin_withsel
    L_fin_plain:
    """)
    regular(0)
    e(f"s_branch {R['done']}")
    e("L_fin_withsel:")
    regular(33)
    e("s_waitcnt vmcnt(2)")
    P2 = lambda b: f"v[{b}:{b + 1}]"
    for _ in sum_partials(e, 160, 40, 14, 4, 16, 17):
        pass
    for _ in sum_partials(e, 216, 56, 8, 4, 16, 17):
        pass
    for x in (4, 8):
        e("s_nop 1")
        for q in range(8):
            e(f"v_add_f32_dpp v{40 + q}, v{40 + q}, v{40 + q} row_ror:{x} row_mask:0xf bank_mask:0xf")
    for sw in ("v_permlane16_swap_b32", "v_permlane32_swap_b32"):
        for q in range(8):
            e(f"v_mov_b32 v{48 + q}, v{40 + q}")
        e("s_nop 0")
        for q in range(8):
            e(f"{sw} v{40 + q}, v{48 + q}")
        for q in range(8):
            e(f"v_add_f32 v{40 + q}, v{40 + q}, v{48 + q}")
    for q in range(4):
        e(f"v_cvt_pk_bf16_f32 v{48 + q}, v{40 + 2 * q}, v{41 + 2 * q}")
    for q in range(4):
        e(f"v_lshlrev_b32 v{40 + 2 * q}, 16, v{48 + q}")
        e(f"v_and_b32 v{41 + 2 * q}, s{sM}, v{48 + q}")
    e(f"""
    v_mov_b32 v48, s47
    v_and_b32 v10, s{sM}, v252
    v_rcp_f32 v10, v10
    v_lshlrev_b32 v9, 16, v252
    v_mul_f32 v8, v9, v10
    v_sub_f32 v8, 0, v8
    """)
    for q in range(4):
        e(f"v_pk_mul_f32 {P2(40 + 2 * q)}, {P2(40 + 2 * q)}, v[48:49] op_sel_hi:[1,0]")
    for q in range(4):
        e(f"v_cvt_pk_bf16_f32 v{48 + q}, v{40 + 2 * q}, v{41 + 2 * q}")
    for q in range(4):
        e(f"v_lshlrev_b32 v{40 + 2 * q}, 16, v{48 + q}")
        e(f"v_and_b32 v{41 + 2 * q}, s{sM}, v{48 + q}")
    for q in range(4):
        e(f"v_lshlrev_b32 v{64 + 2 * q}, 16, v{248 + q}")
        e(f"v_and_b32 v{65 + 2 * q}, s{sM}, v{248 + q}")
    for q in range(4):
        e(f"v_pk_fma_f32 {P2(72 + 2 * q)}, {P2(64 + 2 * q)}, v[10:11], v[8:9] op_sel_hi:[1,0,0]")
    for q in range(4):
        e(f"v_pk_add_f32 {P2(72 + 2 * q)}, {P2(72 + 2 * q)}, {P2(40 + 2 * q)}")
    for q in range(4):
        e(f"v_pk_mul_f32 {P2(80 + 2 * q)}, {P2(72 + 2 * q)}, s[18:19]")
    for q in range(8):
        e(f"v_exp_f32 v{80 + q}, v{80 + q}")
    for q in range(4):
        e(f"v_pk_add_f32 {P2(80 + 2 * q)}, {P2(80 + 2 * q)}, s[48:49]")
    for q in range(8):
        e(f"v_rcp_f32 v{80 + q}, v{80 + q}")
    for q in range(4):
        e(f"v_pk_mul_f32 {P2(72 + 2 * q)}, {P2(72 + 2 * q)}, {P2(80 + 2 * q)}")
    for q in range(4):
        e(f"v_pk_fma_f32 {P2(64 + 2 * q)}, {P2(56 + 2 * q)}, {P2(72 + 2 * q)}, {P2(64 + 2 * q)}")
    for q in range(4):
        e(f"v_cvt_pk_bf16_f32 v{76 + q}, v{64 + 2 * q}, v{65 + 2 * q}")
    e(f"""
    v_mov_b32 v31, 0x7ffffff0
    v_cmp_gt_u32 vcc, 4, v0
    s_nop 1
    v_cndmask_b32 v154, v31, v154, vcc
    s_nop 0
    buffer_store_dwordx2 v[76:77], v154, s[{S_OUT}:{S_OUT + 3}], 0 offen
    buffer_store_dwordx2 v[78:79], v154, s[{S_OUT}:{S_OUT + 3}], 0 offen offset:32
    s_branch {R['done']}
    """)


def moe_tail(e, R):
    from k1 import RB, WSTR, SLOT
    T = R["T"]
    sW, sRING, sM = R["W"], R["RING"], R["M"]
    S_X, S_WS = R["X"], R["WS"]
    sRO, sSO = T[0], T[1]
    sA, sB, sC_, sD = T[2], T[3], T[4], T[5]
    mk = [T[6], T[8], T[10], T[12]]
    e(f"s_mov_b32 s{sRO}, {WS_R}")
    e(f"s_mov_b32 s{sSO}, {WS_STAT}")
    K = [8 + i for i in range(8)]
    e(f"""
    s_cmp_eq_u32 s{R['RDY']}, 0
    s_cbranch_scc1 L_moe_slow
    """)
    e.need(vtags=[("g", 4)])
    for i in range(16):
        e(f"v_accvgpr_read_b32 v{36 + i}, a{208 + i}")
    e("v_accvgpr_read_b32 v32, a224")
    e("v_accvgpr_read_b32 v23, a225")
    e(f"""
    v_and_b32 v26, 0x7ff, v23
    v_sub_u32 v26, 2047, v26
    s_branch L_moe_gathered
    """)
    e("L_moe_keys:")
    st = R.get("stamp", lambda n: None)
    wave_top8(e, K, 16, 20, 17, sA, mk[0])
    st("top8")
    e(f"""
    v_mov_b32 v21, s{R['RDY']}
    v_cmp_eq_u32 vcc, 8, v0
    v_lshlrev_b32 v22, 2, v0
    v_add_u32 v22, s{sRING}, v22
    v_cndmask_b32 v20, v20, v21, vcc
    v_cmp_gt_u32 vcc, 9, v0
    s_nop 1
    s_and_saveexec_b64 s[{mk[0]}:{mk[0] + 1}], vcc
    ds_write_b32 v22, v20
    s_mov_b64 exec, s[{mk[0]}:{mk[0] + 1}]
    s_waitcnt lgkmcnt(0)
    s_barrier
    """)
    e(f"""
    v_lshrrev_b32 v21, 3, v0
    v_and_b32 v21, 3, v21
    v_mul_u32_u24 v21, {WSTR}, v21
    v_and_b32 v22, 7, v0
    v_lshl_add_u32 v21, v22, 2, v21
    v_mov_b32 v23, {RB}
    v_add_u32 v21, v23, v21
    ds_read_b32 v24, v21
    """)
    for w_ in range(4):
        e(f"v_add_u32 v{100 + w_}, {w_ * WSTR}, v23")
    for w_ in range(4):
        e(f"ds_read_b128 v[{32 + 8 * w_}:{35 + 8 * w_}], v{100 + w_}")
        e(f"ds_read_b128 v[{36 + 8 * w_}:{39 + 8 * w_}], v{100 + w_} offset:16")
        e(f"ds_read_b32 v{104 + w_}, v{100 + w_} offset:32")
    e(f"""
    s_waitcnt lgkmcnt(0)
    v_and_b32 v104, v104, v105
    v_and_b32 v106, v106, v107
    v_and_b32 v104, v104, v106
    v_mov_b32 v25, 0
    v_readfirstlane_b32 s{sA}, v104
    s_nop 0
    s_cmp_eq_u32 s{sA}, 0
    s_cbranch_scc1 L_moe_slow
    """)
    for j0 in range(0, 32, 4):
        for q in range(4):
            e(f"v_cmp_gt_u32 s[{mk[q]}:{mk[q] + 1}], v{32 + j0 + q}, v24")
        for q in range(4):
            e(f"v_addc_co_u32 v25, vcc, 0, v25, s[{mk[q]}:{mk[q] + 1}]")
    e(f"""
    v_cmp_gt_u32 s[{mk[0]}:{mk[0] + 1}], 8, v25
    v_cmp_gt_u32 vcc, 32, v0
    v_lshlrev_b32 v26, 2, v25
    v_add_u32 v26, s{sRING}, v26
    s_and_b64 vcc, vcc, s[{mk[0]}:{mk[0] + 1}]
    s_and_saveexec_b64 s[{mk[1]}:{mk[1] + 1}], vcc
    ds_write_b32 v26, v24 offset:64
    s_mov_b64 exec, s[{mk[1]}:{mk[1] + 1}]
    v_and_b32 v22, 7, v0
    v_lshlrev_b32 v22, 2, v22
    v_add_u32 v22, s{sRING}, v22
    ds_read_b32 v23, v22 offset:64
    s_waitcnt lgkmcnt(0)
    v_and_b32 v26, 0x7ff, v23
    v_sub_u32 v26, 2047, v26
    """)
    st("merge")
    e(f"""
    v_lshrrev_b32 v30, 4, v0
    v_lshlrev_b32 v30, 4, v30             ; q4*16
    v_lshl_add_u32 v30, v26, 10, v30
    s_lshl_b32 s{sA}, s{sW}, 8            ; 4w*64 bytes
    v_lshlrev_b32 v31, 2, v26
    v_add_u32 v31, s{sSO}, v31
    """)
    e.vq, e.lq = ["old"], []
    e.vm(f"buffer_load_dword v32, v31, s[{S_WS}:{S_WS + 3}], 0 offen sc1", "st")
    for i in range(4):
        e.vm(f"buffer_load_dwordx4 {rng('v', 36 + 4 * i, 4)}, v30, s[{S_X}:{S_X + 3}], s{sA} offen offset:{64 * i}",
             ("xg", i))
    e("s_waitcnt vmcnt(0)")
    e("L_moe_gathered:")
    e.vq = []
    e(f"""
    v_and_b32 v27, s{sM}, v23
    v_ashrrev_i32 v28, 31, v27
    v_not_b32 v28, v28
    v_or_b32 v28, 0x80000000, v28
    v_xor_b32 v27, v27, v28
    v_and_b32 v27, s{sM}, v27             ; r (f32 bits)
    v_mul_f32 v28, {hex(f2u(-LOG2E))}, v27
    v_exp_f32 v28, v28
    s_nop 0
    v_add_f32 v28, 1.0, v28
    v_rcp_f32 v28, v28
    s_nop 0
    v_cvt_pk_bf16_f32 v28, v28, v28
    v_and_b32 v28, s{sM}, v28             ; bf16(sigmoid(r))
    """)
    if R.get("fused"):
        e(f"""
        s_load_dwordx2 s[20:21], s[0:1], {KA['out']}
        """)
        fin_setup(e, R, sA, sB, mk)
        e("""
        s_cmp_ge_u32 s2, 224
        s_cbranch_scc1 L_fin_sync
        """)
    else:
        e(f"""
        v_lshlrev_b32 v29, 2, v0
        v_add_u32 v29, {WS_IDX}, v29
        v_mov_b32 v33, 0x7ffffff0
        s_or_b32 s{sA}, s{R['SL']}, s{sW}
        s_cmp_eq_u32 s{sA}, 0
        s_cselect_b64 s[{mk[0]}:{mk[0] + 1}], -1, 0
        v_cmp_gt_u32 vcc, 8, v0
        s_nop 1
        s_and_b64 vcc, vcc, s[{mk[0]}:{mk[0] + 1}]
        v_cndmask_b32 v29, v33, v29, vcc
        """)
        e.vm(f"buffer_store_dword v26, v29, s[{S_WS}:{S_WS + 3}], 0 offen", "pub")
        e.vm(f"buffer_store_dword v28, v29, s[{S_WS}:{S_WS + 3}], 0 offen offset:32", "pub")
    e(f"""
    v_and_b32 v34, s{sM}, v32             ; sd
    v_rcp_f32 v34, v34
    v_lshlrev_b32 v30, 16, v32            ; mean
    v_sub_f32 v30, 0, v30
    """)
    st("gather")
    for i in range(0, 16, 2):
        for j in range(2):
            r, t = 36 + i + j, 52 + 2 * j
            e(f"v_lshlrev_b32 v{t}, 16, v{r}")
            e(f"v_and_b32 v{t + 1}, s{sM}, v{r}")
        for j in range(2):
            t = 52 + 2 * j
            e(f"v_pk_add_f32 v[{t}:{t + 1}], v[{t}:{t + 1}], v[30:31] op_sel_hi:[1,0]")
        for j in range(2):
            r, t = 36 + i + j, 52 + 2 * j
            e(f"v_cvt_pk_bf16_f32 v{r}, v{t}, v{t + 1}")
        for j in range(2):
            r, t = 36 + i + j, 52 + 2 * j
            e(f"v_lshlrev_b32 v{t}, 16, v{r}")
            e(f"v_and_b32 v{t + 1}, s{sM}, v{r}")
        for j in range(2):
            t = 52 + 2 * j
            e(f"v_pk_mul_f32 v[{t}:{t + 1}], v[{t}:{t + 1}], v[34:35] op_sel_hi:[1,0]")
        for j in range(2):
            r, t = 36 + i + j, 52 + 2 * j
            e(f"v_cvt_pk_bf16_f32 v{r}, v{t}, v{t + 1}")
    st("ln")
    e("v_accvgpr_write_b32 a128, 0")
    e("v_accvgpr_write_b32 a129, 0")
    for i in range(4):
        c = "0" if i == 0 else "v[56:59]"
        e(f"v_mfma_f32_16x16x32_bf16 v[56:59], {rng('a', 96 + 4 * i, 4)}, {rng('v', 36 + 4 * i, 4)}, {c}")
    e.nop(8)
    if R.get("fused"):
        flag_prepare(e, R, sA, sB, 22, 0, 1)
        e("s_waitcnt vmcnt(10)")
    e(f"""
    v_lshlrev_b32 v60, 4, v0
    v_add_u32 v61, s{sRING}, v60
    ds_write_b128 v61, v[56:59] offset:2048
    s_waitcnt lgkmcnt(0)
    s_barrier
    """)
    if R.get("fused"):
        e(f"buffer_store_dword v23, v22, s[{S_WS}:{S_WS + 3}], 0 offen sc1")
    e(f"""
    v_add_u32 v60, {RB + 2048}, v60
    v_add_u32 v61, {WSTR}, v60
    v_add_u32 v62, {2 * WSTR}, v60
    v_add_u32 v63, {3 * WSTR}, v60
    ds_read_b128 v[64:67], v60
    ds_read_b128 v[68:71], v61
    ds_read_b128 v[72:75], v62
    ds_read_b128 v[76:79], v63
    s_waitcnt lgkmcnt(0)
    """)
    e.lq = []
    for i in range(4):
        e(f"v_add_f32 v{64 + i}, v{64 + i}, v{68 + i}")
        e(f"v_add_f32 v{72 + i}, v{72 + i}, v{76 + i}")
        e(f"v_add_f32 v{64 + i}, v{64 + i}, v{72 + i}")
    for i in range(4):
        e(f"v_cvt_pk_bf16_f32 v{64 + i}, v{64 + i}, v{64 + i}")
        e(f"v_and_b32 v{64 + i}, s{sM}, v{64 + i}")
        e(f"v_mov_b32 v{68 + i}, v{64 + i}")
    e("s_nop 0")
    for i in range(4):
        e(f"v_permlane32_swap_b32 v{64 + i}, v{68 + i}")
    for i in range(4):
        silu_bf16(e, 72 + i, 64 + i, 76, 77, sM)
        e(f"v_mul_f32 v{72 + i}, v{72 + i}, v{68 + i}")
    e(f"""
    v_cvt_pk_bf16_f32 v80, v72, v73
    v_cvt_pk_bf16_f32 v81, v74, v75
    v_cmp_gt_u32 vcc, 32, v0
    v_mov_b32 v82, 0
    v_mov_b32 v83, 0
    v_cndmask_b32 v80, 0, v80, vcc
    v_cndmask_b32 v81, 0, v81, vcc
    s_nop 1
    """)
    for t in range(8):
        e(f"v_mfma_f32_16x16x32_bf16 {rng('v', 120 + 4 * t, 4)}, {rng('a', 112 + 2 * t, 4)}, v[80:83], 0")
    if R.get("fused"):
        fused_finish(e, R, sA, sB, mk)
    else:
        e(f"""
        s_lshl_b32 s{sA}, s{R['SL']}, 14
        s_lshl_b32 s{sB}, s{sW}, 9            ; 8w*16*4 bytes
        s_add_u32 s{sA}, s{sA}, s{sB}
        s_add_u32 s{sA}, s{sA}, {WS_YP}
        v_and_b32 v60, 15, v0
        v_lshlrev_b32 v61, 11, v60
        v_lshrrev_b32 v62, 4, v0
        v_lshl_add_u32 v61, v62, 4, v61
        v_add_u32 v61, s{sA}, v61
        v_mov_b32 v63, 0x1ffffff0
        v_cmp_gt_u32 vcc, 8, v60
        s_nop 1
        v_cndmask_b32 v61, v63, v61, vcc
        s_nop 1
        """)
        for t in range(8):
            e(f"buffer_store_dwordx4 {rng('v', 120 + 4 * t, 4)}, v61, s[{S_WS}:{S_WS + 3}], 0 offen offset:{t * 64}")
        e(f"s_branch {R['done']}")

    e("L_moe_slow:")
    dbg = R["DBG"]
    e(f"""
    s_barrier
    s_mov_b32 s{sB}, {R.get('spin', 4000)}
    v_mov_b32 v21, 0
    L_moe_spin:
    global_load_dword v22, v21, s[{dbg}:{dbg + 1}] sc1
    s_waitcnt vmcnt(0)
    v_readfirstlane_b32 s{sA}, v22
    s_nop 0
    s_cmp_ge_u32 s{sA}, {R['NCNT']}
    s_cbranch_scc1 L_moe_spin_ok
    s_sleep 8
    s_sub_u32 s{sB}, s{sB}, 1
    s_cmp_lg_u32 s{sB}, 0
    s_cbranch_scc1 L_moe_spin
    L_moe_spin_ok:
    s_cmp_ge_u32 s{sA}, {R['NCNT']}
    s_cselect_b32 s{sA}, 1, 0
    v_mov_b32 v22, s{sA}
    v_mov_b32 v23, s{sRING}
    ds_write_b32 v23, v22 offset:128
    s_waitcnt lgkmcnt(0)
    s_barrier
    v_mov_b32 v23, {RB}
    ds_read_b32 v32, v23 offset:128
    ds_read_b32 v33, v23 offset:{WSTR + 128}
    ds_read_b32 v34, v23 offset:{2 * WSTR + 128}
    v_add_u32 v23, {3 * WSTR}, v23
    ds_read_b32 v35, v23 offset:128
    s_waitcnt lgkmcnt(0)
    v_and_b32 v32, v32, v33
    v_and_b32 v34, v34, v35
    v_and_b32 v32, v32, v34
    s_nop 0
    v_readfirstlane_b32 s{sA}, v32
    s_nop 0
    s_cmp_eq_u32 s{sA}, 1
    s_cbranch_scc1 L_moe_reload
    """)
    e(f"""
    s_lshl_b32 s{sRO}, s{R['SL']}, 14
    s_add_u32 s{sRO}, s{sRO}, {WS_FB}
    s_add_u32 s{sSO}, s{sRO}, 8192
    v_lshlrev_b32 v21, 4, v0
    buffer_load_dwordx4 v[40:43], v21, s[{R['WR']}:{R['WR'] + 3}], 0 offen
    s_lshl_b32 s{sB}, s{sW}, 9
    s_add_u32 s{sC_}, s{sB}, 512
    s_waitcnt vmcnt(0)
    """)
    for i in range(4):
        e(f"v_lshlrev_b32 v{44 + 2 * i}, 16, v{40 + i}")
        e(f"v_and_b32 v{45 + 2 * i}, s{sM}, v{40 + i}")
    e(f"""
    L_moe_fb:
    s_lshl_b32 s{sA}, s{sB}, 10
    buffer_load_dwordx4 v[40:43], v21, s[{S_X}:{S_X + 3}], s{sA} offen
    s_waitcnt vmcnt(0)
    """)
    for i in range(4):
        e(f"v_lshlrev_b32 v{56 + 2 * i}, 16, v{40 + i}")
        e(f"v_and_b32 v{57 + 2 * i}, s{sM}, v{40 + i}")

    def wave_sum(v, t):
        for x in (1, 2, 4, 8):
            e(f"s_nop 1")
            e(f"v_add_f32_dpp v{v}, v{v}, v{v} row_ror:{x} row_mask:0xf bank_mask:0xf")
        e(f"v_mov_b32 v{t}, v{v}")
        e("s_nop 1")
        e(f"v_permlane16_swap_b32 v{v}, v{t}")
        e("s_nop 0")
        e(f"v_add_f32 v{v}, v{v}, v{t}")
        e(f"v_mov_b32 v{t}, v{v}")
        e("s_nop 1")
        e(f"v_permlane32_swap_b32 v{v}, v{t}")
        e("s_nop 0")
        e(f"v_add_f32 v{v}, v{v}, v{t}")
    e("v_add_f32 v64, v56, v57")
    for i in range(2, 8):
        e(f"v_add_f32 v64, v64, v{56 + i}")
    wave_sum(64, 65)
    e(f"v_mul_f32 v64, {hex(f2u(1.0 / 512))}, v64        ; mean")
    e("v_sub_f32 v66, v56, v64")
    e("v_mul_f32 v67, v66, v66")
    for i in range(1, 8):
        e(f"v_sub_f32 v66, v{56 + i}, v64")
        e(f"v_fmac_f32 v67, v66, v66")
    wave_sum(67, 65)
    e(f"""
    v_mul_f32 v67, {hex(f2u(1.0 / 512))}, v67
    v_cvt_pk_bf16_f32 v68, v64, v67
    v_and_b32 v69, s{sM}, v68
    v_add_f32 v69, {hex(f2u(1e-5))}, v69
    v_cvt_pk_bf16_f32 v69, v69, v69
    v_and_b32 v69, s{sM}, v69
    v_sqrt_f32 v69, v69
    v_lshlrev_b32 v64, 16, v68
    v_cvt_pk_bf16_f32 v69, v69, v69
    v_and_b32 v69, s{sM}, v69             ; sd
    v_rcp_f32 v70, v69
    v_and_b32 v68, 0xffff, v68
    v_or_b32 v68, v68, v69
    v_mov_b32 v71, 0
    """)
    for i in range(8):
        e(f"""
        v_sub_f32 v66, v{56 + i}, v64
        v_mul_f32 v66, v66, v70
        v_cvt_pk_bf16_f32 v66, v66, v66
        v_and_b32 v66, s{sM}, v66
        v_fmac_f32 v71, v66, v{44 + i}
        """)
    wave_sum(71, 65)
    e(f"""
    v_cvt_pk_bf16_f32 v71, v71, v71
    v_and_b32 v71, s{sM}, v71
    v_ashrrev_i32 v72, 31, v71
    v_or_b32 v72, 0x80000000, v72
    v_xor_b32 v71, v71, v72
    s_sub_u32 s{sA}, 2047, s{sB}
    v_mov_b32 v72, s{sA}
    v_and_or_b32 v71, v71, s{sM}, v72
    s_lshl_b32 s{sA}, s{sB}, 2
    v_mov_b32 v72, s{sA}
    v_add_u32 v73, s{sRO}, v72
    v_add_u32 v74, s{sSO}, v72
    v_cmp_eq_u32 vcc, 0, v0
    s_nop 1
    s_and_saveexec_b64 s[{mk[0]}:{mk[0] + 1}], vcc
    buffer_store_dword v71, v73, s[{S_WS}:{S_WS + 3}], 0 offen sc1
    buffer_store_dword v68, v74, s[{S_WS}:{S_WS + 3}], 0 offen sc1
    s_mov_b64 exec, s[{mk[0]}:{mk[0] + 1}]
    s_add_u32 s{sB}, s{sB}, 1
    s_cmp_lt_u32 s{sB}, s{sC_}
    s_cbranch_scc1 L_moe_fb
    s_waitcnt vmcnt(0)
    s_barrier
    L_moe_reload:
    s_lshl_b32 s{sA}, s{sW}, 11
    v_lshlrev_b32 v21, 5, v0
    v_add_u32 v21, s{sA}, v21
    v_add_u32 v21, s{sRO}, v21
    buffer_load_dwordx4 v[8:11], v21, s[{S_WS}:{S_WS + 3}], 0 offen sc1
    buffer_load_dwordx4 v[12:15], v21, s[{S_WS}:{S_WS + 3}], 0 offen offset:16 sc1
    s_mov_b32 s{R['RDY']}, 1
    s_waitcnt vmcnt(0)
    s_barrier
    s_branch L_moe_keys
    """)


WS_FB = 24 << 20
```

```python
from emit import E, check_hazards, check_scc
from asmlib import KA

RB = 65536
WSTR = 24576
SLOT = 8192
C_SCALE = 1.4426950408889634 * (128 ** -0.5)

WS_PART = 0
WS_R = 16 << 20
WS_STAT = WS_R + 8192
WS_H = WS_R + 65536
WS_IDX = WS_H + 32768
WS_FLG = WS_R + 32768
WS_TS = 32 << 20


def f2u(x):
    import struct
    return struct.unpack("<I", struct.pack("<f", x))[0]


S_X, S_WQ, S_K, S_V, S_WO, S_WS, S_WR = 4, 8, 12, 16, 20, 24, 28
sG, sTB, sW, sSK = 32, 33, 34, 35
sWQO, sWOO, sKO, sVO = 36, 37, 38, 39
sRING = 40
sCNT = 41
sT0, sT1, sT2, sT3 = 42, 43, 44, 45
sKSL, sVSL = 46, 47
sKD, sVD = 48, 49
sTRIP = 50
sGA = 52
sGB = 56
sGAO, sGBO = 60, 61
sGAM, sGBM = 62, 63
sMASK = 64
sPASS = 70
sKVB = 71
sKVT = 51
sDBG = 72
sSL = 98
sRDY = 99
sFP = 92
sHFD = 70
sTS = 74

vLANE = 0
vWQ = 1
vWO = 5
vKDM = 9
vVDM = 13
vAA = 14
vAB = 22
vBR = 30
vKR = 32
vVR = 40
vGA = 44
vGB = 48
vL = 52
vOW = 56
vPS = 57
vT = 58
vQ = 64
vS = 128
vP = 192
vNM = 224
vACC = 128

aA = 0
aB = 96
aF = 0
aO = 128


def rng(f, b, n):
    return f"{f}[{b}:{b + n - 1}]" if n > 1 else f"{f}{b}"


def Bset(setidx, tq):
    if setidx < 2:
        return rng("a", aB + setidx * 16 + tq * 4, 4)
    return rng("v", 64 + tq * 4, 4)


def Aset(setidx, dt):
    return rng("a", aA + setidx * 32 + dt * 4, 4)


def Ahalf(setidx, dt, rd):
    return rng("a", aA + setidx * 32 + dt * 4 + 2 * rd, 2)


def acc16(dt, tq):
    return rng("v", vACC + (dt * 4 + tq) * 4, 4)


OPT = {}
STAMP = [None]
GSTAMP = [None]
P3_STATIC = [False]
NS3 = 5


class Slots:
    def __init__(self, n):
        self.n = n
        self.f = [[] for _ in range(n + 1)]

    def at(self, i, fn):
        self.f[min(max(i, 0), self.n)].append(fn)


def loop_align(e):
    a = OPT.get("align", 0)
    if a:
        e.l.append(f".p2align {a}")
    for _ in range(OPT.get("shift", 0)):
        e("s_nop 0")


class Side:
    def __init__(self):
        self.q = []
        self.last = None

    def add(self, x, gap=0, cond=None):
        self.q.append((x, gap, cond))

    def states_since(self, e):
        if self.last is None:
            return 99
        n = 0
        for l in e.l[self.last:]:
            t = l.strip()
            if t.endswith(":") or not t:
                continue
            n += int(t.split()[1], 0) + 1 if t.startswith("s_nop") else 1
        return n

    def emit(self, e, budget, pos=None, flush=False):
        while self.q and (budget > 0 or flush):
            x, gap, cond = self.q[0]
            if cond is not None and pos is not None and pos < cond and not flush:
                return
            have = self.states_since(e)
            if have < gap:
                if not flush:
                    return
                e.nop(gap - have)
            self.q.pop(0)
            if callable(x):
                x()
            else:
                e(x)
            self.last = len(e.l)
            budget -= 1


def gemm_step(e, p, phase, opts):
    j = p % 3
    jn = (p + 1) % 3
    va = vAA if phase == 1 else vAB
    rdoff = 1024 if phase == 1 else 2048
    sl = Slots(32)
    if opts.get("next", True):
        reads = []
        for dt in range(8):
            for rd in range(2):
                reads.append((dt, rd))
        spread = OPT.get("aspread", 16)
        for n, (dt, rd) in enumerate(reads):
            def f(dt=dt, rd=rd):
                if OPT.get("noaread"):
                    return
                e.lds(f"ds_read_b64_tr_b16 {Ahalf(jn, dt, rd)}, v{va + dt} offset:{jn * SLOT + rd * rdoff}",
                      ("A", p + 1, dt))
            sl.at(n * spread // 16, f)
        for tq in range(4):
            def f(tq=tq):
                e.lds(f"ds_read_b128 {Bset(jn, tq)}, v{vBR} offset:{opts['boff_next'] + tq * 1024}", ("B", p + 1, tq))
            sl.at(spread + tq, f)
    for pos, fn in opts.get("fill", []):
        sl.at(pos, fn)
    if opts.get("next", True):
        e.need(vtags=opts.get("vneed"))
    for n in range(32):
        dt, tq = n // 4, n % 4
        need = [("A", p, dt), ("B", p, tq)] + ([("B", p, 3), ("A", p, 7)] if n == 0 else [])
        e.need(ltags=need)
        c = "0" if opts.get("first") else acc16(dt, tq)
        e(f"v_mfma_f32_16x16x32_bf16 {acc16(dt, tq)}, {Aset(j, dt)}, {Bset(j, tq)}, {c}")
        for fn in sl.f[n]:
            fn()
        side = opts.get("side")
        if side is not None:
            side.emit(e, opts.get("cap", 2) - len(sl.f[n]), pos=(p, n))
    for fn in sl.f[32]:
        fn()


def wdma(e, phase, i, tag):
    if OPT.get("nodma") and tag[1] > 3:
        e.vq.append(tag)
        return
    if phase == 1:
        e.vm(f"buffer_load_dwordx4 v{vWQ + i}, s[{S_WQ}:{S_WQ + 3}], s{sWQO} offen offset:{i * 1024} lds", tag)
    else:
        e.vm(f"buffer_load_dwordx4 v{vWO + i}, s[{S_WO}:{S_WO + 3}], s{sWOO} offen offset:{i * 1024} lds", tag)


def wdma_adv(e, phase):
    if phase == 1:
        e(f"s_add_u32 s{sWQO}, s{sWQO}, {16 * 8192}")
        e(f"s_and_b32 s{sWQO}, s{sWQO}, {512 * 8192 - 1}")
    else:
        e(f"s_add_u32 s{sT0}, s{sWOO}, {16 * 1024}")
        e(f"s_and_b32 s{sT0}, s{sT0}, {512 * 1024 - 1}")
        e(f"s_and_b32 s{sWOO}, s{sWOO}, {~(512 * 1024 - 1) & 0xffffffff}")
        e(f"s_or_b32 s{sWOO}, s{sWOO}, s{sT0}")


def half_dma(e, phase, slot, half, tag):
    def m0():
        e(f"s_add_u32 m0, s{sRING}, {slot * SLOT + half * 4096}")
    out = [m0]
    for i in range(4):
        out.append(lambda i=i: wdma(e, phase, i, tag))
    out.append(lambda: wdma_adv(e, phase))
    return out


def serial(e, fl):
    fl[0]()
    e("s_nop 0")
    for fn in fl[1:]:
        fn()


def place(fl, start, stride):
    res = [(start, fl[0])]
    for i in range(4):
        res.append((start + 1 + i * stride, fl[1 + i]))
    res.append((start + 1 + 3 * stride, fl[5]))
    return res


def kv_dma(e, which, tile_slot, tag):
    out = []
    if which == "K":
        out.append(lambda: e(f"s_add_u32 m0, s{sRING}, {tile_slot * SLOT}"))
        for i in range(4):
            out.append(lambda i=i: e.vm(
                f"buffer_load_dwordx4 v{vKDM + i}, s[{S_K}:{S_K + 3}], s{sKO} offen offset:{i * 1024} lds", tag))
        out.append(lambda: kv_adv(e, sKO))
    else:
        out.append(lambda: e(f"s_add_u32 m0, s{sRING}, {tile_slot * SLOT + 4096}"))
        for i in range(4):
            out.append(lambda i=i: e.vm(
                f"buffer_load_dwordx4 v{vVDM}, s[{S_V}:{S_V + 3}], s{sVO} offen offset:{i * 1024} lds", tag))
        out.append(lambda: kv_adv(e, sVO))
    return out


def kv_adv(e, sreg):
    e(f"s_add_u32 s{sreg}, s{sreg}, 16384")
    e(f"s_and_b32 s{sreg}, s{sreg}, {8 * 16384 - 1}")


def gemm_pre(e, phase):
    va = vAA if phase == 1 else vAB
    rdoff = 1024 if phase == 1 else 2048
    e.need(vtags=[("W", 0, 0), ("W", 0, 1)])
    for tq in range(4):
        e.lds(f"ds_read_b128 {Bset(0, tq)}, v{vBR} offset:{tq * 1024}", ("B", 0, tq))
    for dt in range(8):
        for rd in range(2):
            e.lds(f"ds_read_b64_tr_b16 {Ahalf(0, dt, rd)}, v{va + dt} offset:{rd * rdoff}", ("A", 0, dt))


def gemm_main(e, phase, tail_fill, side=None, side_steps=range(10, 16)):
    e.need(ltags=[("A", 0, 7)])
    serial(e, half_dma(e, phase, 0, 0, ("W", 3, 0)))

    def step_opts(p, boff_next):
        fill = []
        sp = OPT.get("aspread", 16)
        if p + 3 <= 15:
            fl = half_dma(e, phase, p % 3, 1, ("W", p + 3, 1))
            fill += [(0, fl[0])] + [(2 + 4 * i, fl[1 + i]) for i in range(4)] + [(sp + 4, fl[5])]
        if p + 4 <= 15:
            fl = half_dma(e, phase, (p + 1) % 3, 0, ("W", p + 4, 0))

            def guard(p=p):
                e.need(ltags=[("A", p + 1, 7)])
            fill += [(sp + 5, guard), (sp + 5, fl[0])] + [(min(sp + 6 + 3 * i, 31), fl[1 + i]) for i in range(4)] + [(32, fl[5])]
        return dict(first=(p == 0), next=(p < 15), boff_next=boff_next, fill=fill,
                    vneed=[("W", p + 1, 0), ("W", p + 1, 1)])

    if GSTAMP[0]:
        GSTAMP[0]("p1_pre")
    o = step_opts(0, 1 * 4096)
    gemm_step(e, 0, phase, o)
    if GSTAMP[0]:
        GSTAMP[0]("p1_s0")
    lab = f"L_g{phase}_loop"
    e(f"s_mov_b32 s{sCNT}, 3")
    e(f"v_add_u32 v{vBR}, {1 * 4096}, v{vBR}")
    lq0, vq0 = list(e.lq), list(e.vq)
    loop_align(e)
    e(f"{lab}:")
    n0 = len(e.l)
    for u in range(3):
        p = 1 + u
        o = step_opts(p, (u + 1) * 4096)
        if u == 2:
            o["fill"] = o["fill"] + [(24, lambda: e(f"v_add_u32 v{vBR}, {3 * 4096}, v{vBR}")),
                                     (32, lambda: e(f"s_sub_u32 s{sCNT}, s{sCNT}, 1")),
                                     (32, lambda: e(f"s_cmp_lg_u32 s{sCNT}, 0"))]
        gemm_step(e, p, phase, o)
    e(f"s_cbranch_scc1 {lab}")
    body = e.l[n0:]
    probs = check_hazards(body + body, f"gemm{phase} loop x2")
    assert not probs or any(k.startswith("no") for k in OPT), "\n".join(probs[:10])
    sh = lambda q, d: [(t[0], t[1] + d) + tuple(t[2:]) if t else t for t in q]
    assert sh(lq0, 3) == e.lq or OPT.get('noaread'), (lq0, e.lq)
    assert sh(vq0, 3) == e.vq, (vq0, e.vq)
    e.lq, e.vq = sh(e.lq, 6), sh(e.vq, 6)
    for p in range(10, 16):
        if GSTAMP[0] and p in (10, 13):
            GSTAMP[0](f"p1_s{p}")
        o = step_opts(p, (p - 10 + 1) * 4096)
        o["fill"] = o["fill"] + tail_fill(p)
        o["side"] = side if p in side_steps else None
        o["cap"] = OPT.get("sidecap", 2)
        gemm_step(e, p, phase, o)


def acc3(hf, nt, tq):
    return rng("v", vACC + 64 * hf + (nt * 4 + tq) * 4, 4)


def A3(st, nt, rd=None):
    b = st * 16 + nt * 4
    return rng("a", b, 4) if rd is None else rng("a", b + 2 * rd, 2)


def B3(st, tq):
    return rng("a", 48 + st * 16 + tq * 4, 4)


def p3_dma(e, u):
    out = [lambda: e(f"s_add_u32 m0, s{sRING}, {(u % NS3) * 4096}")]
    for i in range(4):
        out.append(lambda i=i: e.vm(
            f"buffer_load_dwordx4 v{vWO + i}, s[{S_WO}:{S_WO + 3}], s{sWOO} offen offset:{i * 1024} lds", ("W", u)))

    def adv():
        p3_adv(e)
        if u == 9 and not OPT.get("p3unroll", 1):
            e(f"s_add_u32 s{sWOO}, s{sWOO}, s{sHFD}")
    out.append(adv)
    return out


def p3_adv(e):
    e(f"s_add_u32 s{sWOO}, s{sWOO}, {32 * 1024}")
    e(f"s_and_b32 s{sWOO}, s{sWOO}, {512 * 1024 - 1}")


def p3_reads(e, u, boff):
    st = u % 3
    r = []
    for nt in range(4):
        for rd in range(2):
            r.append(lambda nt=nt, rd=rd: e.lds(
                f"ds_read_b64_tr_b16 {A3(st, nt, rd)}, v{vAB + nt} offset:{(u % NS3) * 4096 + rd * 1024}", ("A", u, nt)))
    for tq in range(4):
        r.append(lambda tq=tq: e.lds(f"ds_read_b128 {B3(st, tq)}, v{vBR} offset:{boff + tq * 1024}", ("B", u, tq)))
    return r


def p3_step(e, u, boff_next, fill=(), side=None, cap=2):
    hf, st = u >> 4, u % 3
    sl = Slots(16)
    nxt = u < 31
    if nxt:
        rd = p3_reads(e, u + 1, boff_next)
        for n in range(8):
            sl.at(n, rd[n])
        for tq in range(4):
            sl.at(8 + tq, rd[8 + tq])
    if u + NS3 <= 31:
        fl = p3_dma(e, u + NS3)
        sl.at(0, fl[0])
        for i, pos in enumerate((2, 6, 12, 14)):
            sl.at(pos, fl[1 + i])
        sl.at(15, fl[5])
    for pos, fn in fill:
        sl.at(pos, fn)
    if nxt:
        e.need(vtags=[("W", u + 1)])
    for n in range(16):
        nt, tq = n // 4, n % 4
        e.need(ltags=[("A", u, nt), ("B", u, tq)] + ([("B", u, 3), ("A", u, 3)] if n == 0 else []))
        c = "0" if (u & 15) == 0 else acc3(hf, nt, tq)
        e(f"v_mfma_f32_16x16x32_bf16 {acc3(hf, nt, tq)}, {A3(st, nt)}, {B3(st, tq)}, {c}")
        for fn in sl.f[n]:
            fn()
        if side is not None:
            left = cap - len(sl.f[n])
            for sd in side:
                n0 = len(sd.q)
                sd.emit(e, left, pos=(u, n))
                left -= n0 - len(sd.q)
    for fn in sl.f[16]:
        fn()


def p3_epilogue_items(e, hf, regs):
    items = []
    k = 0
    for nt in range(4):
        for qb in range(2):
            R = regs[k % len(regs)]
            k += 1
            a0 = vACC + 64 * hf + (nt * 4 + 2 * qb) * 4
            a1 = a0 + 4
            items.append((f"v_cvt_pk_bf16_f32 v{R}, v{a0}, v{a0 + 1}", 2))
            items.append((f"v_cvt_pk_bf16_f32 v{R + 1}, v{a0 + 2}, v{a0 + 3}", 0))
            items.append((f"v_cvt_pk_bf16_f32 v{R + 2}, v{a1}, v{a1 + 1}", 0))
            items.append((f"v_cvt_pk_bf16_f32 v{R + 3}, v{a1 + 2}, v{a1 + 3}", 0))
            items.append((f"v_permlane16_swap_b32 v{R}, v{R + 2}", 2))
            items.append((f"v_permlane16_swap_b32 v{R + 1}, v{R + 3}", 1))
            off = (nt & 1) * 2048 + qb * 1024
            so = {(0, 0): "0", (0, 1): "s48", (1, 0): "s49", (1, 1): "s50"}[(hf, nt >> 1)]
            items.append((lambda R=R, off=off, nt=nt, qb=qb, so=so: e.vm(
                f"buffer_store_dwordx4 {rng('v', R, 4)}, v{vPS}, s[{S_WS}:{S_WS + 3}], {so} offen offset:{off} "
                + OPT.get("pstore", "sc1"), ("ps", hf, nt, qb)), 0))
    return items


def p3_loop_half0(e):
    p3_step(e, 0, 4096)
    e(f"s_mov_b32 s{sCNT}, 2")
    e(f"s_mov_b32 s{sHFD}, 0")
    e(f"v_add_u32 v{vBR}, {1 * 4096}, v{vBR}")
    lq0, vq0 = list(e.lq), list(e.vq)
    e("L_p3_loop:")
    n0 = len(e.l)
    for k in range(6):
        u = 1 + k
        fill = []
        if k == 5:
            fill = [(13, lambda: e(f"v_add_u32 v{vBR}, {6 * 4096}, v{vBR}")),
                    (15, lambda: e(f"s_mov_b32 s{sHFD}, 512")),
                    (15, lambda: e(f"s_sub_u32 s{sCNT}, s{sCNT}, 1")),
                    (15, lambda: e(f"s_cmp_lg_u32 s{sCNT}, 0"))]
        p3_step(e, u, (k + 1) * 4096, fill=fill)
    e("s_cbranch_scc1 L_p3_loop")
    body = e.l[n0:]
    probs = check_hazards(body + body, "p3 loop x2")
    assert not probs, "\n".join(probs[:10])
    sh = lambda q, d: [(t[0], t[1] + d) + tuple(t[2:]) if t else t for t in q]
    assert sh(lq0, 6) == e.lq, (lq0, e.lq)
    assert sh(vq0, 6) == e.vq, (vq0, e.vq)
    e.lq, e.vq = sh(e.lq, 6), sh(e.vq, 6)
    for u in range(13, 16):
        boff = (u - 13 + 1) * 4096 if u < 15 else -13 * 4096
        if u == 15:
            fill = [(0, lambda: e(f"v_subrev_u32 v{vBR}, {13 * 4096}, v{vBR}"))]
            p3_step(e, u, 0, fill=fill)
        else:
            p3_step(e, u, boff)


def p3_phase(e, tail_fill, side0, side1):
    if STAMP[0]:
        STAMP[0]("p3_start")
    if OPT.get("p3unroll", 1):
        cap = OPT.get("sidecap", 2)
        for u in range(16):
            fill = []
            if u == 15 - NS3:
                fill = [(16, lambda: e(f"s_add_u32 s{sWOO}, s{sWOO}, 512"))]
            P3_STATIC[0] = True
            p3_step(e, u, ((u + 1) & 15) * 4096, fill=fill, side=side0, cap=cap)
    else:
        p3_loop_half0(e)
    for u in range(16, 32):
        p = u & 15
        if STAMP[0] and u in (16, 24):
            STAMP[0](f"p3_u{u}")
        p3_step(e, u, ((p + 1) & 15) * 4096, fill=tail_fill(u), side=side0, cap=OPT.get("sidecap", 2))


def Sreg(par, qb, i=None):
    b = vS + par * 32 + qb * 16
    return rng("v", b, 16) if i is None else f"v{b + i}"


def Preg(par, qb, t):
    return rng("v", vP + par * 16 + qb * 8 + t * 4, 4)


def Qreg(s16, qb):
    return rng("v", vQ + (s16 * 2 + qb) * 4, 4)


def Oreg(db, qb):
    return rng("a", aO + (db * 2 + qb) * 16, 16)


def Fbuf(n, half=None):
    b = aF + (n % 8) * 4
    return rng("a", b, 4) if half is None else rng("a", b + 2 * half, 2)


def k_read(e, b, s16):
    if OPT.get("nokvread"):
        return
    e.lds(f"ds_read_b128 {Fbuf(s16)}, v{vKR + s16} offset:{(b & 1) * 49152}", ("K", b, s16))


def v_read(e, b, f, order=None):
    t, db = (order or VORD_T)[f]
    if OPT.get("nokvread"):
        return
    for rd in range(2):
        e.lds(f"ds_read_b64_tr_b16 {Fbuf(8 + f, rd)}, v{vVR + db} offset:{t * WSTR + rd * 2048}", ("V", b, f))


def sm_ops(e, b):
    par = b & 1
    ops = []
    S = lambda x: Sreg(par, x // 16, x % 16)
    exp = lambda x: (lambda: e(f"v_exp_f32 {S(x)}, {S(x)}") if not OPT.get("noexp") else None)
    add = lambda x: (lambda: e(f"v_add_f32 v{vL + (x // 16) * 2 + (x & 1)}, v{vL + (x // 16) * 2 + (x & 1)}, {S(x)}"))
    cvt = lambda k: (lambda: e(f"v_cvt_pk_bf16_f32 v{vP + par * 16 + k}, {S(2 * k)}, {S(2 * k + 1)}"))
    if OPT.get("nosm"):
        return []
    for k in range(16):
        ops.append((2 * k, exp(2 * k)))
        if k > 0:
            ops.append((2 * k, add(2 * k - 2)))
            ops.append((2 * k, cvt(k - 1)))
        ops.append((2 * k + 1, exp(2 * k + 1)))
        if k > 0:
            ops.append((2 * k + 1, add(2 * k - 1)))
    ops.append((32, add(30)))
    ops.append((32, add(31)))
    ops.append((32, cvt(15)))
    return ops


def sm_queue(e, b):
    par = b & 1
    S = lambda x: Sreg(par, x // 16, x % 16)
    exp = lambda x: (8, lambda: e(f"v_exp_f32 {S(x)}, {S(x)}"))
    add = lambda x: (4, lambda: e(f"v_add_f32 v{vL + (x // 16) * 2 + (x & 1)}, v{vL + (x // 16) * 2 + (x & 1)}, {S(x)}"))
    cvt = lambda k: (4, lambda: e(f"v_cvt_pk_bf16_f32 v{vP + par * 16 + k}, {S(2 * k)}, {S(2 * k + 1)}"))
    q = []
    for k in range(32):
        q.append(exp(k))
        if k >= 1:
            q.append(add(k - 1))
        if k >= 2 and k % 2 == 0:
            q.append(cvt(k // 2 - 1))
    q.append(add(31))
    q.append(cvt(15))
    return q


VORD_T = [(f // 4, f % 4) for f in range(8)]
VORD_D = [(f % 2, f // 2) for f in range(8)]


def p2_iter(e, b, qk=True, sm=True, pv=True, look="K", fill=(), vpre=False, smstart=0, vord=VORD_T, vord_next=VORD_T,
            side=None, cap=5):
    mf = []
    if qk:
        par = (b + 1) & 1
        for s16 in range(8):
            for qb in range(2):
                c = rng("v", vNM + qb * 16, 16) if s16 == 0 else Sreg(par, qb)
                mf.append((f"v_mfma_f32_32x32x16_bf16 {Sreg(par, qb)}, {Fbuf(s16)}, {Qreg(s16, qb)}, {c}",
                           ("K", b + 1, s16), s16))
    if pv:
        par = (b - 1) & 1
        for f in range(8):
            t, db = vord[f]
            for qb in range(2):
                mf.append((f"v_mfma_f32_32x32x16_bf16 {Oreg(db, qb)}, {Fbuf(8 + f)}, {Preg(par, qb, t)}, {Oreg(db, qb)}",
                           ("V", b - 1, f), 8 + f))
    n = len(mf)
    sl = Slots(n)
    if qk and pv:
        for f in range(4, 8):
            sl.at(2 * (f - 4) + 1, lambda f=f: k_read(e, b + 1, f))
        for f in range(8):
            fn = lambda f=f: v_read(e, b - 1, f)
            fn.ninstr = 2
            sl.at(2 * (f + 4) + 1, fn)
        if look == "K":
            for f in range(4):
                sl.at(24 + 2 * f + 1, lambda f=f: k_read(e, b + 2, f))
    elif qk:
        for f in range(4, 8):
            sl.at(2 * (f - 4) + 1, lambda f=f: k_read(e, b + 1, f))
        if look == "K":
            for f in range(4):
                sl.at(8 + 2 * f + 1, lambda f=f: k_read(e, b + 2, f))
    else:
        if vpre:
            for f in range(4):
                v_read(e, b - 1, f, vord)
        for f in range(4, 8):
            sl.at(2 * (f - 4) + 1, lambda f=f: v_read(e, b - 1, f, vord))
        if look == "V":
            for f in range(4):
                sl.at(8 + 2 * f + 1, lambda f=f: v_read(e, b, f, vord_next))
    if OPT.get("greedy", 1) and n == 32 and sm:
        B = OPT.get("budget", 24)
        cost = [4 * sum(2 if False else 1 for _ in sl.f[i]) for i in range(n)]
        for i in range(n):
            cost[i] = 0
            for fn in sl.f[i]:
                cost[i] += 4 * getattr(fn, "ninstr", 1)
            if (i + 1) % 4 == 0:
                cost[i] += 4
        q = sm_queue(e, b)
        tot = sum(c for c, _ in q)
        ex = sorted(enumerate(fill), key=lambda t: (t[1][0], t[0]))
        ex = [(pos, fn) for _, (pos, fn) in ex]
        done = 0
        for i in range(n):
            left = B - cost[i]
            need = tot * (i + 1) / n
            while q and done < need and q[0][0] <= left + (4 if done + 12 < need else 0):
                c, fn = q.pop(0)
                sl.at(i, fn)
                left -= c
                done += c
            while ex and ex[0][0] <= i and (left >= 4 * getattr(ex[0][1], "ninstr", 1) or ex[0][0] + 3 <= i):
                pos, fn = ex.pop(0)
                sl.at(i, fn)
                left -= 4 * getattr(fn, "ninstr", 1)
            while q and q[0][0] <= left and done < need + 16:
                c, fn = q.pop(0)
                sl.at(i, fn)
                left -= c
                done += c
        for c, fn in q:
            sl.at(n, fn)
        for pos, fn in ex:
            sl.at(n, fn)
    else:
        if sm:
            ops = sm_ops(e, b)
            for (s, fn) in ops:
                sl.at(smstart + s * (n - smstart) // 32 if s < 32 else n, fn)
        for (s, fn) in fill:
            sl.at(s, fn)
    if vpre and sm:
        pass
    for i, (txt, tag, fi) in enumerate(mf):
        if i % 4 == 0:
            tags = [tag]
            if i + 2 < n:
                tags.append(mf[i + 2][1])
            e.need(ltags=tags)
        e(txt)
        for fn in sl.f[i]:
            fn()
        if side is not None:
            side.emit(e, cap - len(sl.f[i]), pos=(b, i))
    for fn in sl.f[n]:
        fn()


def gen_k1(label, stamps=False, debug=None, opt=None):
    OPT.clear()
    OPT.update(opt or {})
    STAMP[0] = None
    GSTAMP[0] = None
    e = E()
    nst = [0]

    def stamp(name, wait=True):
        if not stamps:
            return
        if OPT.get("only") and name not in OPT["only"]:
            return
        k = nst[0]
        assert k < 9
        e(f"{stamps} s[{sTS + 2 * k}:{sTS + 2 * k + 1}]   ; stamp {k} {name}")
        if wait:
            e.wait_all(vm=False)
        nst[0] += 1
    done = f"L_{label}_done"
    ipf_text = ""
    if OPT.get("ipf"):
        nb = OPT["ipf"]
        ipf_text = f"""
    L_kbase:
    s_getpc_b64 s[{sT0}:{sT0 + 1}]
    s_lshr_b32 s{sT2}, s2, 3
    s_and_b32 s{sT2}, s{sT2}, {nb - 1}
    s_lshl_b32 s{sT2}, s{sT2}, 12
    v_lshlrev_b32 v200, 4, v0
    v_add_u32 v200, s{sT2}, v200
    v_min_u32 v200, (L_kend - L_kbase - 32) & 0xfffffff0, v200
    global_load_dwordx4 v[200:203], v200, s[{sT0}:{sT0 + 1}]
    """
        e.vq.append(("ipf", 0))
    e(f"""
    s_cmp_ge_u32 s2, 256
    s_cbranch_scc1 {done}
    {ipf_text}
    s_load_dwordx2 s[4:5], s[0:1], 0
    s_load_dwordx2 s[12:13], s[0:1], 8
    s_load_dwordx2 s[16:17], s[0:1], 16
    s_load_dwordx2 s[8:9], s[0:1], 24
    s_load_dwordx2 s[20:21], s[0:1], {KA['wo']}
    s_load_dwordx2 s[28:29], s[0:1], {KA['wr']}
    s_load_dwordx2 s[24:25], s[0:1], {KA['ws']}
    s_load_dwordx2 s[{sDBG}:{sDBG + 1}], s[0:1], {KA['dbg']}
    s_load_dwordx4 s[{sFP}:{sFP + 3}], s[0:1], {KA['wg']}
    s_load_dwordx2 s[{sFP + 4}:{sFP + 5}], s[0:1], {KA['wd']}
    """)
    stamp("start", wait=False)
    e(f"""
    v_lshrrev_b32 v{vT}, 6, v0
    v_and_b32 v{vLANE}, 63, v0
    v_readfirstlane_b32 s{sW}, v{vT}
    """)
    mp = OPT.get("map", "A")
    if mp == "A":
        e(f"""
        s_and_b32 s{sG}, s2, 7
        s_lshr_b32 s{sTB}, s2, 3
        s_and_b32 s{sSK}, s{sTB}, 15
        s_and_b32 s{sKVT}, s{sTB}, 7
        """)
    elif mp == "B":
        e(f"""
        s_and_b32 s{sT0}, s2, 3
        s_lshl_b32 s{sT0}, s{sT0}, 1
        s_bfe_u32 s{sT1}, s2, {3 | (1 << 16)}
        s_or_b32 s{sG}, s{sT0}, s{sT1}
        s_bfe_u32 s{sT0}, s2, {2 | (1 << 16)}
        s_lshl_b32 s{sT0}, s{sT0}, 4
        s_lshr_b32 s{sT1}, s2, 4
        s_or_b32 s{sTB}, s{sT0}, s{sT1}
        s_and_b32 s{sSK}, s{sTB}, 7
        s_lshl_b32 s{sSK}, s{sSK}, 1
        s_and_b32 s{sKVT}, s{sTB}, 7
        """)
    elif mp == "C":
        e(f"""
        s_and_b32 s{sT0}, s2, 1
        s_lshl_b32 s{sT0}, s{sT0}, 2
        s_bfe_u32 s{sT1}, s2, {3 | (2 << 16)}
        s_or_b32 s{sG}, s{sT0}, s{sT1}
        s_bfe_u32 s{sT0}, s2, {1 | (2 << 16)}
        s_lshl_b32 s{sT0}, s{sT0}, 3
        s_lshr_b32 s{sT1}, s2, 5
        s_or_b32 s{sTB}, s{sT0}, s{sT1}
        s_and_b32 s{sSK}, s{sTB}, 7
        s_lshl_b32 s{sSK}, s{sSK}, 1
        s_and_b32 s{sKVT}, s{sTB}, 7
        """)
        if OPT.get("s4"):
            e(f"""
            s_and_b32 s{sSK}, s{sTB}, 3
            s_lshl_b32 s{sSK}, s{sSK}, 2
            """)
        if OPT.get("gskew"):
            e(f"""
            s_and_b32 s{sT0}, s{sG}, 3
            s_lshl_b32 s{sT0}, s{sT0}, 2
            s_add_u32 s{sSK}, s{sSK}, s{sT0}
            s_and_b32 s{sSK}, s{sSK}, 15
            """)
    L = vLANE
    t0, t1, t2, t3, t4, t5 = vT, vT + 1, vT + 2, vT + 3, vT + 4, vT + 5
    XV0, XV1 = 56, 57
    e(f"""
    v_and_b32 v{t2}, 15, v{L}
    v_lshrrev_b32 v{t3}, 4, v{L}
    s_lshl_b32 s{sT0}, s{sTB}, 6
    s_lshl_b32 s{sT1}, s{sW}, 4
    s_add_u32 s{sT0}, s{sT0}, s{sT1}
    v_lshrrev_b32 v{t0}, 3, v{L}
    v_add_u32 v{t0}, s{sT0}, v{t0}
    v_and_b32 v{t1}, 7, v{L}
    v_xor_b32 v{t1}, v{t1}, v{t3}
    v_lshlrev_b32 v{t1}, 4, v{t1}
    v_lshl_add_u32 v{XV0}, v{t0}, 10, v{t1}
    v_xor_b32 v{XV1}, 64, v{XV0}              ; chunk ^ 4
    v_add_u32 v{XV1}, 8192, v{XV1}            ; +8 tokens
    s_mul_i32 s{sRING}, s{sW}, {WSTR}
    s_add_u32 s{sRING}, s{sRING}, {RB}
    s_lshl_b32 s{sT3}, s{sW}, 10              ; w*1024
    s_lshl_b32 s101, s{sSK}, 6
    s_waitcnt lgkmcnt(0)
    """)
    for (dst, size) in [(S_X, 2097152), (S_K, 4194304), (S_V, 4194304), (S_WQ, 4194304),
                        (S_WO, 4194304), (S_WR, 1024), (S_WS, 0x10000000)]:
        e(f"""
        s_mov_b32 s{dst + 2}, {size}
        s_mov_b32 s{dst + 3}, 0x20000
        """)
    stamp("kernarg", wait=True)
    def xdma(u):
        for hb in range(2):
            e(f"s_add_u32 m0, s{sT3}, {(2 * u + hb) * 4096}")
            e("s_nop 0")
            e.vm(f"buffer_load_dwordx4 v{XV0 + hb}, s[{S_X}:{S_X + 3}], s101 offen lds", ("x", u, hb))
        e(f"s_add_u32 s101, s101, 128")
        e(f"s_and_b32 s101, s101, 1023")

    def wrdma():
        e(f"""
        s_lshl_b32 s{sT0}, s{sSK}, 2
        v_add_u32 v58, s{sT0}, v{L}
        v_and_b32 v58, 63, v58
        v_lshlrev_b32 v58, 4, v58
        s_add_u32 m0, s{sRING}, {2 * SLOT + 4096}
        s_nop 0
        """)
        e.vm(f"buffer_load_dwordx4 v58, s[{S_WR}:{S_WR + 3}], 0 offen lds", ("wr", 0))
    NU0 = OPT.get("nu0", 6)
    for u in range(NU0):
        xdma(u)
    e(f"""
    s_lshl_b32 s{sT0}, s{sG}, 2
    s_add_u32 s{sT0}, s{sT0}, s{sW}
    s_lshl_b32 s{sT0}, s{sT0}, 8            ; head*256
    v_lshlrev_b32 v{t4}, 1, v{t3}
    v_xor_b32 v{t4}, v{t4}, v{t2}
    v_lshlrev_b32 v{t5}, 13, v{t3}           ; rr*8192
    v_add_u32 v{t5}, s{sT0}, v{t5}
    v_lshl_add_u32 v{vWQ}, v{t4}, 4, v{t5}
    v_add_u32 v{vWQ + 1}, {32768 - 1024}, v{vWQ}
    v_xor_b32 v{t4}, 8, v{t4}
    v_lshl_add_u32 v{vWQ + 2}, v{t4}, 4, v{t5}
    v_add_u32 v{vWQ + 2}, {2 * (32768 - 1024)}, v{vWQ + 2}
    v_add_u32 v{vWQ + 3}, {32768 - 1024}, v{vWQ + 2}
    s_lshl_b32 s{sWQO}, s{sSK}, 18
    """)
    wq_pre = []
    for p in range(3):
        for h in range(2):
            fl = half_dma(e, 1, p, h, ("W", p, h))
            for i in range(4):
                grp = []
                if i == 0:
                    grp += [fl[0], lambda: e("s_nop 0")]
                grp.append(fl[1 + i])
                if i == 3:
                    grp.append(fl[5])
                wq_pre.append(grp)
    if OPT.get("early_dma", 0):
        for grp in wq_pre[:OPT["early_dma"]]:
            for fn in grp:
                fn()
        wq_pre = wq_pre[OPT["early_dma"]:]


    r_, c_ = 60, 61
    A0, A1, A2, A3, A4, A5 = 128, 129, 130, 131, 132, 133
    e(f"""
    v_bfe_u32 v{A0}, v{L}, 2, 2              ; r
    v_and_b32 v{A1}, 3, v{L}                 ; c
    v_lshrrev_b32 v{A2}, 4, v{L}             ; q4
    v_and_b32 v{A3}, 1, v{A2}
    v_lshl_or_b32 v{A3}, v{A3}, 2, v{A0}     ; phi
    v_lshlrev_b32 v{A3}, 1, v{A3}            ; f
    v_lshrrev_b32 v{A4}, 1, v{A1}
    v_xor_b32 v{A3}, v{A3}, v{A4}            ; chunk
    v_lshlrev_b32 v{A3}, 4, v{A3}
    v_and_b32 v{A4}, 1, v{A1}
    v_lshl_or_b32 v{A3}, v{A4}, 3, v{A3}     ; + (c&1)*8
    v_lshl_add_u32 v{A4}, v{A2}, 3, v{A0}    ; row
    v_lshl_add_u32 v{A3}, v{A4}, 8, v{A3}
    v_add_u32 v{vAA}, s{sRING}, v{A3}
    """)
    for dt in range(1, 8):
        e(f"v_xor_b32 v{vAA + dt}, {32 * dt}, v{vAA}")
    e(f"""
    v_and_b32 v{A3}, 1, v{A2}
    v_lshl_or_b32 v{A4}, v{A3}, 2, v{A0}     ; 4(q4&1) + r
    v_lshrrev_b32 v{A3}, 1, v{A4}            ; psi
    v_lshrrev_b32 v{A5}, 1, v{A2}
    v_lshl_or_b32 v{A4}, v{A5}, 4, v{A4}     ; row
    v_lshlrev_b32 v{A3}, 1, v{A3}
    v_lshrrev_b32 v{A5}, 1, v{A1}
    v_xor_b32 v{A3}, v{A3}, v{A5}            ; chunk
    v_lshlrev_b32 v{A3}, 4, v{A3}
    v_and_b32 v{A5}, 1, v{A1}
    v_lshl_or_b32 v{A3}, v{A5}, 3, v{A3}
    v_lshl_add_u32 v{A3}, v{A4}, 7, v{A3}
    v_add_u32 v{vAB}, s{sRING}, v{A3}
    """)
    for dt in range(1, 4):
        e(f"v_xor_b32 v{vAB + dt}, {32 * dt}, v{vAB}")
    e(f"""
    v_lshlrev_b32 v{vBR}, 4, v{L}            ; B read: X + l*16
    v_lshrrev_b32 v{A3}, 3, v{L}             ; row8
    v_lshrrev_b32 v{A4}, 1, v{A3}
    v_and_b32 v{A4}, 3, v{A4}
    v_lshlrev_b32 v{A4}, 1, v{A4}
    v_and_b32 v{A5}, 7, v{L}
    v_xor_b32 v{A4}, v{A4}, v{A5}
    v_lshlrev_b32 v{A4}, 4, v{A4}
    v_lshl_add_u32 v{A4}, v{A3}, 10, v{A4}
    s_lshl_b32 s{sT0}, s{sW}, 7
    v_add_u32 v{vWO}, s{sT0}, v{A4}
    v_add_u32 v{vWO + 1}, 7168, v{vWO}
    v_add_u32 v{vWO + 2}, {2 * 7168}, v{vWO}
    v_add_u32 v{vWO + 3}, {3 * 7168}, v{vWO}
    v_and_b32 v{A3}, 15, v{L}
    s_lshl_b32 s{sWOO}, s{sSK}, 15
    v_xor_b32 v{A4}, v{A2}, v{A3}            ; (l&15)^rr
    v_lshlrev_b32 v{A5}, 8, v{A2}
    v_lshl_add_u32 v{vKDM}, v{A4}, 4, v{A5}
    v_xor_b32 v{vKDM + 1}, 64, v{vKDM}
    v_xor_b32 v{vKDM + 2}, 128, v{vKDM}
    v_xor_b32 v{vKDM + 3}, 192, v{vKDM}
    v_lshlrev_b32 v{A4}, 2, v{A2}
    v_xor_b32 v{A4}, v{A4}, v{A3}
    v_lshl_add_u32 v{vVDM}, v{A4}, 4, v{A5}
    v_lshrrev_b32 v{A4}, 5, v{L}             ; h
    v_xor_b32 v{A4}, v{A4}, v{A3}
    v_lshlrev_b32 v{A4}, 4, v{A4}
    v_lshl_add_u32 v{A4}, v{A3}, 8, v{A4}
    v_and_b32 v{A5}, 1, v{A2}
    v_mul_u32_u24 v{A5}, {WSTR}, v{A5}
    v_add_u32 v{A4}, v{A4}, v{A5}
    v_add_u32 v{vKR}, {RB + 1 * SLOT}, v{A4}
    """)
    for s16 in range(1, 8):
        e(f"v_xor_b32 v{vKR + s16}, {32 * s16}, v{vKR}")
    e(f"""
    v_and_b32 v{A4}, 1, v{A2}
    v_lshlrev_b32 v{A4}, 1, v{A4}
    v_lshrrev_b32 v{A5}, 1, v{A1}
    v_or_b32 v{A4}, v{A4}, v{A5}
    v_lshlrev_b32 v{A5}, 2, v{A0}
    v_xor_b32 v{A4}, v{A4}, v{A5}
    v_lshlrev_b32 v{A4}, 4, v{A4}
    v_and_b32 v{A5}, 1, v{A1}
    v_lshl_or_b32 v{A4}, v{A5}, 3, v{A4}
    v_lshrrev_b32 v{A5}, 5, v{L}
    v_lshl_add_u32 v{A5}, v{A5}, 2, v{A0}    ; 4h + r
    v_lshl_add_u32 v{A4}, v{A5}, 8, v{A4}
    v_add_u32 v{vVR}, {RB + 4096 + 1 * SLOT}, v{A4}
    """)
    for db in range(1, 4):
        e(f"v_xor_b32 v{vVR + db}, {64 * db}, v{vVR}")
    e(f"""
    """)
    for u in range(NU0, 8):
        xdma(u)
    wrdma()
    if OPT.get("tlb"):
        T = OPT["tlb"]
        e(f"""
        v_lshlrev_b32 v58, 21, v{L}
        s_lshl_b32 s{sT0}, s{sTB}, 16
        v_add_u32 v58, s{sT0}, v58
        v_cmp_gt_u32 vcc, 9, v{L}
        v_mov_b32 v59, 0x7ffffff0
        s_nop 0
        v_cndmask_b32 v58, v59, v58, vcc
        """)
        e.vm(f"buffer_load_dword a96, v58, s[{S_WS}:{S_WS + 3}], 0 offen", ("tlb", 0))
        if "o" in T and not stamps:
            e(f"""
            s_load_dwordx2 s[88:89], s[0:1], {KA['out']}
            s_mov_b32 s90, 2097152
            s_mov_b32 s91, 0x20000
            s_lshl_b32 s{sT0}, s{sTB}, 16
            v_lshlrev_b32 v58, 10, v{L}
            v_add_u32 v58, s{sT0}, v58
            s_waitcnt lgkmcnt(0)
            """)
            e.vm(f"buffer_load_dword a97, v58, s[88:91], 0 offen", ("tlb", 4))
        if "w" in T:
            e(f"""
            v_lshlrev_b32 v58, 16, v{L}
            """)
            e.vm(f"buffer_load_dword a97, v58, s[{S_WO}:{S_WO + 3}], 0 offen", ("tlb", 1))
            e.vm(f"buffer_load_dword a98, v58, s[{S_K}:{S_K + 3}], 0 offen", ("tlb", 2))
            e.vm(f"buffer_load_dword a99, v58, s[{S_V}:{S_V + 3}], 0 offen", ("tlb", 3))
    e(f"""
    v_lshlrev_b32 v{vOW}, 4, v{A3}
    v_lshrrev_b32 v{A4}, 5, v{L}
    v_lshl_add_u32 v{vOW}, v{A4}, 8, v{vOW}
    v_and_b32 v{A4}, 1, v{A2}
    v_lshl_add_u32 v{vOW}, v{A4}, 10, v{vOW}
    """)
    e(f"""
    s_lshl_b32 s{sT0}, s{sG}, 5
    s_add_u32 s{sT0}, s{sT0}, s{sTB}
    s_lshl_b32 s{sT0}, s{sT0}, 3
    s_add_u32 s{sT0}, s{sT0}, s{sW}
    s_lshl_b32 s{sT0}, s{sT0}, 13
    v_lshlrev_b32 v{vPS}, 4, v{L}
    v_add_u32 v{vPS}, s{sT0}, v{vPS}
    s_lshl_b32 s{sKVB}, s{sG}, 19
    s_lshl_b32 s{sT0}, s{sW}, 12
    s_add_u32 s{sKVB}, s{sKVB}, s{sT0}
    s_add_u32 s{sKVB}, s{sKVB}, {1536 * 256}
    s_add_u32 s{S_K}, s{S_K}, s{sKVB}
    s_addc_u32 s{S_K + 1}, s{S_K + 1}, 0
    s_add_u32 s{S_V}, s{S_V}, s{sKVB}
    s_addc_u32 s{S_V + 1}, s{S_V + 1}, 0
    s_sub_u32 s{S_K + 2}, {131072}, s{sT0}
    s_mov_b32 s{S_V + 2}, s{S_K + 2}
    s_lshl_b32 s{sT0}, s{sG}, 19
    s_add_u32 s{S_WO}, s{S_WO}, s{sT0}
    s_addc_u32 s{S_WO + 1}, s{S_WO + 1}, 0
    s_mov_b32 s{S_WO + 2}, 524288
    s_lshl_b32 s{sKO}, s{sKVT}, 14
    s_mov_b32 s{sVO}, s{sKO}
    v_cmp_eq_u32 s[{sMASK}:{sMASK + 1}], 1, v{A1}
    v_cmp_eq_u32 s[{sMASK + 2}:{sMASK + 3}], 2, v{A1}
    v_cmp_eq_u32 s[{sMASK + 4}:{sMASK + 5}], 3, v{A1}
    v_cmp_eq_u32 s[98:99], v{A2}, v{A0}
    """)
    e(f"v_mov_b32 v{A5}, 0x3f803f80")
    for i in range(4):
        e(f"v_accvgpr_write_b32 a{64 + i}, v{A5}")
    e(f"s_mov_b32 s100, 0xffff0000")
    e("s_nop 0")
    SUM, GRM = 68, 72
    e(f"""
    v_and_b32 v58, 15, v{L}                  ; tok16
    v_lshrrev_b32 v59, 4, v{L}               ; q4
    v_bfe_u32 v60, v58, 1, 3                 ; swz
    v_xor_b32 v59, v59, v60
    v_lshlrev_b32 v59, 4, v59
    v_and_b32 v60, 7, v58
    v_lshl_add_u32 v59, v60, 7, v59
    v_lshrrev_b32 v60, 3, v58
    v_lshl_add_u32 v59, v60, 12, v59
    v_add_u32 v62, s{sT3}, v59
    v_xor_b32 v63, 64, v62
    """)

    for i in range(192, 256):
        e(f"v_accvgpr_write_b32 a{i}, 0")

    def stat_frag(p):
        e.need(ltags=[("xr", p)])
        xf = rng("v", vQ + 4 * p, 4)
        c1 = "0" if p == 0 else rng("a", SUM, 4)
        c2 = "0" if p == 0 else rng("a", GRM, 4)
        e(f"v_mfma_f32_16x16x32_bf16 {rng('a', SUM, 4)}, a[64:67], {xf}, {c1}")
        e(f"v_mfma_f32_16x16x32_bf16 {rng('a', GRM, 4)}, {xf}, {xf}, {c2}")
        for i in range(4):
            src = vQ + 4 * p + i
            dst = 128 + 8 * p + 2 * i
            e(f"v_lshlrev_b32 v{dst}, 16, v{src}")
            e(f"v_and_b32 v{dst + 1}, s100, v{src}")

    for u in range(8):
        e.need(vtags=[("x", u, 1)])
        for par in range(2):
            e.lds(f"ds_read_b128 {rng('v', vQ + 4 * (2 * u + par), 4)}, v{62 + par} offset:{u * 8192}", ("xr", 2 * u + par))
        sched = OPT.get("dma_sched") or [2 if uu >= OPT.get("dma_from", 0) else 0 for uu in range(8)]
        for k in range(sched[u]):
            if len(wq_pre) > 4:
                for fn in wq_pre.pop(0):
                    fn()
        if u > 0:
            stat_frag(2 * u - 2)
            stat_frag(2 * u - 1)
    e.need(vtags=[("wr", 0)])
    e(f"""
    v_lshrrev_b32 v58, 4, v{L}
    v_lshlrev_b32 v58, 4, v58
    v_add_u32 v58, s{sRING}, v58
    """)
    for p in range(16):
        e.lds(f"ds_read_b128 {rng('a', 128 + 4 * p, 4)}, v58 offset:{2 * SLOT + 4096 + p * 64}", ("wrf", p))
    stat_frag(14)
    stat_frag(15)
    e.nop(6)
    if not OPT.get("tailstamps") and not OPT.get("p3stamps"):
        stamp("x15_stats")
    s1, s2_, u0, u1, u2, u3 = 58, 59, 60, 61, 62, 63
    e(f"""
    v_accvgpr_read_b32 v{s1}, a{SUM}
    v_accvgpr_read_b32 v{u0}, a{GRM}
    v_accvgpr_read_b32 v{u1}, a{GRM + 1}
    v_accvgpr_read_b32 v{u2}, a{GRM + 2}
    v_accvgpr_read_b32 v{u3}, a{GRM + 3}
    v_cndmask_b32 v{u0}, v{u0}, v{u1}, s[{sMASK}:{sMASK + 1}]
    v_cndmask_b32 v{u0}, v{u0}, v{u2}, s[{sMASK + 2}:{sMASK + 3}]
    v_cndmask_b32 v{u0}, v{u0}, v{u3}, s[{sMASK + 4}:{sMASK + 5}]
    v_cndmask_b32 v{u0}, 0, v{u0}, s[98:99]
    v_mov_b32 v{u1}, v{u0}
    s_nop 1
    v_permlane32_swap_b32 v{u0}, v{u1}
    s_nop 0
    v_add_f32 v{u0}, v{u0}, v{u1}
    v_mov_b32 v{u1}, v{u0}
    s_nop 1
    v_permlane16_swap_b32 v{u0}, v{u1}
    s_nop 0
    v_add_f32 v{s2_}, v{u0}, v{u1}
    v_mul_f32 v{s1}, {hex(f2u(1.0 / 512))}, v{s1}     ; mean
    v_mul_f32 v{s2_}, {hex(f2u(1.0 / 512))}, v{s2_}
    v_fma_f32 v{s2_}, -v{s1}, v{s1}, v{s2_}      ; var
    v_max_f32 v{s2_}, 0, v{s2_}
    v_cvt_pk_bf16_f32 v{u0}, v{s1}, v{s2_}
    v_and_b32 v{u1}, s100, v{u0}
    v_add_f32 v{u1}, {hex(f2u(1e-5))}, v{u1}
    v_cvt_pk_bf16_f32 v{u1}, v{u1}, v{u1}
    v_and_b32 v{u1}, s100, v{u1}
    v_sqrt_f32 v{u1}, v{u1}
    v_lshlrev_b32 v{s1}, 16, v{u0}             ; mean_b f32
    v_cvt_pk_bf16_f32 v{u1}, v{u1}, v{u1}
    v_and_b32 v{u2}, s100, v{u1}                ; sd_b f32
    v_rcp_f32 v{u3}, v{u2}
    v_and_b32 v{u0}, 0xffff, v{u0}
    v_or_b32 v31, v{u0}, v{u2}
    v_mul_f32 v{u3}, {hex(f2u(C_SCALE))}, v{u3}     ; rsc
    v_mul_f32 v{u2}, v{s1}, v{u3}
    v_sub_f32 v{u2}, 0, v{u2}
    """)
    e(f"""
    v_mov_b32 v60, v{u3}
    v_mov_b32 v61, v{u3}
    v_mov_b32 v63, v{u2}
    """)
    e(f"""
    s_lshl_b32 s{sT0}, s{sW}, 10
    v_add_u32 v{s1}, s{sT0}, v{vBR}
    """)
    for p in range(16):
        for i in range(4):
            src = 128 + 8 * p + 2 * i
            e(f"v_pk_fma_f32 v[{src}:{src + 1}], v[{src}:{src + 1}], v[60:61], v[62:63]")
        for i in range(4):
            src = 128 + 8 * p + 2 * i
            e(f"v_cvt_pk_bf16_f32 v{vQ + 4 * p + i}, v{src}, v{src + 1}")
        e.lds(f"ds_write_b128 v{s1}, {rng('v', vQ + 4 * p, 4)} offset:{p * 4096}", ("xw", p))
        if wq_pre and p % OPT.get("dma_norm", 2) == 0 and not OPT.get("dma_late"):
            if len(wq_pre) <= 4:
                e.need(ltags=[("wrf", 15)])
            for fn in wq_pre.pop(0):
                fn()
    e.need(ltags=[("wrf", 15)])
    while wq_pre:
        for fn in wq_pre.pop(0):
            fn()
    e.need(ltags=[("xw", 15)])
    e("s_barrier")
    if not OPT.get("tailstamps") and not OPT.get("p3stamps"):
        stamp("ln_done")
    gemm_pre(e, 1)
    for p in range(16):
        c = "0" if p == 0 else "a[76:79]"
        e(f"v_mfma_f32_16x16x32_bf16 a[76:79], {rng('a', 128 + 4 * p, 4)}, {rng('v', vQ + 4 * p, 4)}, {c}")
    e.nop(8)
    e(f"""
    v_accvgpr_read_b32 v58, a76
    v_mul_f32 v58, {hex(f2u(1.0 / C_SCALE))}, v58
    v_cvt_pk_bf16_f32 v58, v58, v58
    v_and_b32 v59, s100, v58
    v_ashrrev_i32 v58, 31, v59
    v_or_b32 v58, 0x80000000, v58
    v_xor_b32 v59, v59, v58                  ; monotone map
    s_lshl_b32 s{sT0}, s{sTB}, 6
    s_lshl_b32 s{sT1}, s{sW}, 4
    s_add_u32 s{sT0}, s{sT0}, s{sT1}
    s_sub_u32 s{sT0}, 2047, s{sT0}
    v_and_b32 v58, 15, v{vLANE}
    v_sub_u32 v58, s{sT0}, v58               ; 2047 - token
    v_and_or_b32 v59, v59, s100, v58
    """)

    def lines(txt):
        return [t.strip() for t in txt.strip().split("\n") if t.strip()]

    st13 = lines(f"""
    s_add_u32 s{sGA}, s{S_WS}, {WS_R} | s_addc_u32 s{sGA + 1}, s{S_WS + 1}, 0
    s_mov_b32 s{sGA + 2}, 8192
    s_mov_b32 s{sGA + 3}, 0x20000
    s_add_u32 s{sGB}, s{S_WS}, {WS_STAT} | s_addc_u32 s{sGB + 1}, s{S_WS + 1}, 0
    s_mov_b32 s{sGB + 2}, 8192
    s_mov_b32 s{sGB + 3}, 0x20000
    s_lshl_b32 s{sT2}, s{sTB}, 6
    s_lshl_b32 s{sT1}, s{sW}, 4
    s_add_u32 s{sT2}, s{sT2}, s{sT1}
    v_add_u32 v58, s{sT2}, v{vLANE}
    v_lshlrev_b32 v58, 2, v58
    v_cmp_gt_u32 vcc, 16, v{vLANE}
    s_cmp_eq_u32 s{sG}, 0 | s_cselect_b64 s[{sMASK}:{sMASK + 1}], -1, 0
    v_mov_b32 v60, 0x7ffffff0
    s_and_b64 vcc, vcc, s[{sMASK}:{sMASK + 1}]
    v_cndmask_b32 v58, v60, v58, vcc
    """)
    st13 = [(x, None) for x in st13]
    st13.append((f"buffer_store_dword v59, v58, s[{sGA}:{sGA + 3}], 0 offen sc1", ("st", 0)))
    st13.append((f"buffer_store_dword v31, v58, s[{sGB}:{sGB + 3}], 0 offen sc1", ("st", 1)))
    if OPT.get("fused"):
        st13 += [(x, None) for x in lines(f"""
        s_lshl_b32 s{sT2}, s{sTB}, 3
        s_add_u32 s{sT2}, s{sT2}, s{sG}
        s_lshl_b32 s{sT2}, s{sT2}, 2
        s_add_u32 s{sT2}, s{sT2}, {WS_FLG}
        s_cmp_eq_u32 s{sW}, 0 | s_cselect_b32 s{sT2}, s{sT2}, 0x7fff0000
        v_lshlrev_b32 v58, 10, v{vLANE}
        v_add_u32 v58, s{sT2}, v58
        v_mov_b32 v60, 0x7fff0000
        v_cmp_gt_u32 vcc, 9, v{vLANE}
        v_mov_b32 v61, 0
        s_nop 0
        v_cndmask_b32 v58, v60, v58, vcc
        """)]
        st13.append((f"buffer_store_dword v61, v58, s[{S_WS}:{S_WS + 3}], 0 offen sc1", ("st", 2)))
    st14 = [f"v_mov_b32 v{vL + i}, 0" for i in range(4)]
    for i in range(4):
        st14 += [f"v_mov_b32 v{vGA + i}, v{vKDM + i}", f"v_mov_b32 v{vGB + i}, v{vVDM}"]
    st14 += lines(f"""
    s_mov_b32 s{sPASS}, 0
    v_mov_b32 v31, v{vKR}
    v_mov_b32 v63, v{vVR}
    s_min_u32 s{sSL}, s2, 223
    s_lshl_b32 s{sT2}, s{sW}, 7
    v_add_u32 v3, s{sT2}, v{vLANE}
    v_mul_u32_u24 v3, 3584, v3
    s_lshl_b32 s{sT2}, s{sSL}, 4
    v_add_u32 v3, s{sT2}, v3
    v_lshrrev_b32 v4, 4, v{vLANE}
    v_lshlrev_b32 v4, 10, v4
    v_and_b32 v2, 15, v{vLANE}
    v_lshl_add_u32 v4, v2, 4, v4
    s_lshl_b32 s{sT2}, s{sSL}, 13
    s_lshl_b32 s{sT1}, s{sW}, 8
    s_add_u32 s{sT2}, s{sT2}, s{sT1}
    v_add_u32 v4, s{sT2}, v4
    """)

    def emit_item(x, tag):
        def f():
            for part in x.split(" | "):
                if tag is not None:
                    e.vm(part, tag)
                else:
                    e(part)
        return f

    def tail1(p):
        f = []

        def guard(pp):
            return lambda: e.need(ltags=[("A", pp + 1, 7)])
        if p == 12:
            f += [(21, guard(12))] + place(kv_dma(e, "K", 1, ("KV", 0, "K")), 21, 3)
        if p == 13:
            f += place(kv_dma(e, "V", 1, ("KV", 0, "V")), 1, 4)
            f += [(21, guard(13))] + place(kv_dma(e, "K", 2, ("KV", 1, "K")), 21, 3)
        if p == 14:
            f += place(kv_dma(e, "V", 2, ("KV", 1, "V")), 1, 4)
            f += [(21, guard(14))] + place(kv_dma(e, "K", 0, ("KV", 2, "K")), 21, 3)
        if p == 13:
            for n, (x, tag) in enumerate(st13):
                f.append((n * 31 // len(st13), emit_item(x, tag)))
        if p == 14:
            for n, x in enumerate(st14):
                f.append((n * 31 // len(st14), emit_item(x, None)))
        return f

    qside = Side()
    for dt in range(8):
        first = True
        for qb in range(2):
            R = vQ + (dt * 2 + qb) * 4
            a0 = vACC + (dt * 4 + 2 * qb) * 4
            a1 = a0 + 4
            qside.add(f"v_cvt_pk_bf16_f32 v{R}, v{a0}, v{a0 + 1}", cond=((15, 4 * dt + 8) if first else None))
            first = False
            qside.add(f"v_cvt_pk_bf16_f32 v{R + 1}, v{a0 + 2}, v{a0 + 3}")
            qside.add(f"v_cvt_pk_bf16_f32 v{R + 2}, v{a1}, v{a1 + 1}")
            qside.add(f"v_cvt_pk_bf16_f32 v{R + 3}, v{a1 + 2}, v{a1 + 3}")
        for qb in range(2):
            R = vQ + (dt * 2 + qb) * 4
            qside.add(f"v_permlane16_swap_b32 v{R}, v{R + 2}", gap=(0 if qb == 0 else 0))
            qside.add(f"v_permlane16_swap_b32 v{R + 1}, v{R + 3}", gap=(1 if qb == 1 else 0))
    if OPT.get("only"):
        def gs(name):
            lq = list(e.lq)
            stamp(name)
            if name in OPT["only"]:
                e.lq = lq
        GSTAMP[0] = gs
    gemm_main(e, 1, tail1, side=qside, side_steps=(15,))
    if not OPT.get("tailstamps") and not OPT.get("p3stamps"):
        stamp("p1_done")
    e.nop(8)
    qside.emit(e, 0, flush=True)
    for i in range(32):
        e(f"v_mov_b32 v{vNM + i}, 0")
    if OPT.get("only"):
        stamp("q_conv")
    e(f"L_p2_start:")
    e(f"""
    s_mov_b32 s{sGA}, s{S_K}
    s_mov_b32 s{sGA + 1}, s{S_K + 1}
    s_mov_b32 s{sGA + 2}, s{S_K + 2}
    s_mov_b32 s{sGB}, s{S_V}
    s_mov_b32 s{sGB + 1}, s{S_V + 1}
    s_mov_b32 s{sGB + 2}, s{S_V + 2}
    s_mov_b32 s{sKSL}, {2 * SLOT}
    s_mov_b32 s{sVSL}, {1 * SLOT}
    s_mov_b32 s{sTRIP}, 1
    s_add_u32 s{sGAM}, s{sRING}, {1 * SLOT}
    s_add_u32 s{sGBM}, s{sRING}, 4096
    s_lshl_b32 s{sGAO}, s{sW}, 13
    s_mov_b32 s{sMASK + 2}, {64 * 3584}
    s_mov_b32 s{S_WQ + 2}, {512 * 1792 * 2}
    """)
    e.wait_all()
    e("s_barrier")
    for f in range(4):
        k_read(e, 0, f)
    e(f"""
    s_or_b32 s{sT0}, {'0' if OPT.get("fused") else 's%d' % sG}, s{sW}
    s_or_b32 s{sT0}, s{sT0}, s{sPASS}
    s_cmp_lg_u32 s{sT0}, 0
    s_cbranch_scc1 L_nopub
    """)
    if not OPT.get("xnopublish"):
        e(f"""
        v_mov_b32 v58, 0
        v_mov_b32 v59, 1
        v_cmp_eq_u32 vcc, 0, v{vLANE}
        s_nop 0
        s_and_saveexec_b64 s[{sMASK}:{sMASK + 1}], vcc
        global_atomic_add v58, v59, s[{sDBG}:{sDBG + 1}] sc1
        s_mov_b64 exec, s[{sMASK}:{sMASK + 1}]
        """)
    e("L_nopub:")
    p2_iter(e, -1, qk=True, sm=False, pv=False, look="K",
            fill=[(i // 4, lambda i=i: e(f"v_accvgpr_write_b32 a{128 + i}, 0")) for i in range(64)])
    upd = []
    for i in range(8):
        upd.append((i // 4 * 8 + i % 4 if i < 4 else 9 + i, lambda i=i: e(f"v_add_u32 v{vKR + i}, {SLOT}, v{vKR + i}")))
    p2_iter(e, 0, qk=True, sm=True, pv=False, look="K", fill=upd, smstart=5)

    if OPT.get("only"):
        lqs = list(e.lq)
        stamp("p2_preloop")
        e.lq = lqs
    lq0 = list(e.lq)
    loop_align(e)
    e("L_p2_loop:")
    n0 = len(e.l)
    e("s_waitcnt vmcnt(1)")
    e.vq = []
    if not OPT.get("nobar"):
        e("s_barrier")
    D64 = 64 * 3584
    fill = []

    def grp(*lines):
        f = lambda: [e(x) for x in lines]
        f.ninstr = len(lines)
        return f

    def adv2(sreg):
        f = lambda: kv_adv(e, sreg)
        f.ninstr = 2
        return f
    fill.append((0, lambda: e(f"s_mov_b32 m0, s{sGAM}")))
    for i in range(4):
        if not OPT.get("nogdma"):
          fill.append((2 + 4 * i, lambda i=i: e.vm(
            f"buffer_load_dwordx4 v{vGA + i}, s[{sGA}:{sGA + 3}], s{sKO} offen offset:{i * 1024} lds", ("G", 0))))
    fill.append((15, adv2(sKO)))
    fill.append((16, lambda: e(f"s_mov_b32 m0, s{sGBM}")))
    for i in range(4):
        if not OPT.get("nogdma"):
          fill.append((18 + 4 * i, lambda i=i: e.vm(
            f"buffer_load_dwordx4 v{vGB + i}, s[{sGB}:{sGB + 3}], s{sVO} offen offset:{i * 1024} lds", ("G", 1))))
    fill.append((30, adv2(sVO)))
    for db in range(4):
        fill.append((24 + 2 * db, lambda db=db: e(f"v_add_u32 v{vVR + db}, 49152, v{vVR + db}")))
    fill.append((4, grp(f"s_add_u32 s{sT1}, s{sKSL}, {SLOT}", f"s_cmp_eq_u32 s{sT1}, {3 * SLOT}",
                        f"s_cselect_b32 s{sT1}, 0, s{sT1}")))
    fill.append((8, grp(f"s_sub_u32 s{sKD}, s{sT1}, s{sKSL}", f"s_sub_u32 s{sVD}, s{sKSL}, s{sVSL}")))
    fill.append((12, grp(f"s_sub_u32 s{sVD}, s{sVD}, 49152", f"s_mov_b32 s{sVSL}, s{sKSL}", f"s_mov_b32 s{sKSL}, s{sT1}")))
    fill.append((20, grp(f"s_cmp_ge_u32 s{sTRIP}, 3", f"s_cselect_b32 s{S_WQ}, s{sFP + 2}, s{sFP}",
                         f"s_cselect_b32 s{S_WQ + 1}, s{sFP + 3}, s{sFP + 1}")))
    fill.append((22, grp(f"s_bitcmp0_b32 s{sTRIP}, 0", f"s_cselect_b32 s{sGBO}, s{sMASK + 2}, 0")))
    fill.append((24, grp(f"s_cmp_ge_u32 s{sTRIP}, 5", f"s_cselect_b32 s{S_WQ}, s{sFP + 4}, s{S_WQ}",
                         f"s_cselect_b32 s{S_WQ + 1}, s{sFP + 5}, s{S_WQ + 1}")))
    fill.append((26, grp(f"s_cmp_ge_u32 s{sTRIP}, 5", f"s_cselect_b32 s{sGBO}, 0, s{sGBO}",
                         f"s_cselect_b64 s[{sMASK}:{sMASK + 1}], -1, 0")))
    fill.append((28, grp(f"s_cmp_ge_u32 s{sTRIP}, 6", f"s_cselect_b32 s{sGBO}, 4096, s{sGBO}")))
    p2_iter(e, 1, fill=fill)
    fill = []
    for i in range(8):
        fill.append((8 + 2 * i if i >= 4 else 2 * i, lambda i=i: e(f"v_add_u32 v{vKR + i}, s{sKD}, v{vKR + i}")))
    for db in range(4):
        fill.append((24 + 2 * db, lambda db=db: e(f"v_add_u32 v{vVR + db}, s{sVD}, v{vVR + db}")))
    fill.append((1, lambda: e(f"v_cndmask_b32 v1, v3, v4, s[{sMASK}:{sMASK + 1}]")))
    fill.append((2, lambda: e(f"s_mov_b32 m0, s{sGAO}")))
    if not OPT.get("nocdma"):
        fill.append((4, lambda: e.vm(f"buffer_load_dwordx4 v1, s[{S_WQ}:{S_WQ + 3}], s{sGBO} offen lds", ("C", 0))))
    fill.append((6, lambda: e(f"s_add_u32 s{sGAO}, s{sGAO}, 1024")))
    fill.append((10, grp(f"s_add_u32 s{sGAM}, s{sRING}, s{sVSL}", f"s_add_u32 s{sT1}, s{sKSL}, {SLOT}")))
    fill.append((12, grp(f"s_cmp_eq_u32 s{sT1}, {3 * SLOT}", f"s_cselect_b32 s{sT1}, 0, s{sT1}",
                         f"s_add_u32 s{sGBM}, s{sRING}, s{sT1}")))
    fill.append((14, lambda: e(f"s_add_u32 s{sGBM}, s{sGBM}, 4096")))
    fill.append((28, lambda: e(f"s_add_u32 s{sTRIP}, s{sTRIP}, 1")))
    p2_iter(e, 2, fill=fill)
    e(f"""
    s_cmp_lg_u32 s{sTRIP}, 7
    s_cbranch_scc1 L_p2_noswitch
    s_mov_b32 s{sGA}, s{S_WO}
    s_mov_b32 s{sGA + 1}, s{S_WO + 1}
    s_mov_b32 s{sGA + 2}, s{S_WO + 2}
    s_mov_b32 s{sGB}, s{S_WO}
    s_mov_b32 s{sGB + 1}, s{S_WO + 1}
    s_mov_b32 s{sGB + 2}, s{S_WO + 2}
    s_mov_b32 s{sGAM}, s{sRING}
    s_add_u32 s{sGBM}, s{sRING}, 4096
    s_mov_b32 s{sKO}, s{sWOO}
    """)
    p3_adv(e)
    e(f"s_mov_b32 s{sVO}, s{sWOO}")
    p3_adv(e)
    for i in range(4):
        e(f"v_mov_b32 v{vGA + i}, v{vWO + i}")
        e(f"v_mov_b32 v{vGB + i}, v{vWO + i}")
    e("L_p2_noswitch:")
    e(f"s_cmp_lg_u32 s{sTRIP}, 8")
    e("s_cbranch_scc1 L_p2_loop")
    body = e.l[n0:]
    probs = check_hazards(body + body, "p2 loop x2")
    assert not probs or any(k.startswith("no") for k in OPT), "\n".join(probs[:10])
    sh = lambda q, d: [(t[0], t[1] + d) + tuple(t[2:]) if t else t for t in q]
    assert sh(lq0, 2) == e.lq, (lq0, e.lq)
    e.lq = sh(e.lq, 12)
    if OPT.get("only"):
        stamp("p2_loopend")
    e.wait_all(lds=False)
    e(f"""
    v_bfe_u32 v58, v{vLANE}, 2, 2               ; r
    v_lshrrev_b32 v59, 4, v{vLANE}              ; q4
    v_lshl_add_u32 v60, v59, 3, v58             ; 8 q4 + r
    v_lshlrev_b32 v60, 4, v60
    v_and_b32 v61, 1, v{vLANE}
    v_lshl_add_u32 v60, v61, 3, v60             ; + (c&1)*8
    v_bfe_u32 v61, v{vLANE}, 1, 1
    v_lshl_add_u32 v60, v61, 11, v60            ; + U
    s_lshl_b32 s{sT0}, s{sW}, 13
    v_add_u32 v60, s{sT0}, v60
    v_and_b32 v59, 1, v59
    v_lshl_add_u32 v58, v59, 2, v58             ; row 0..7
    v_lshlrev_b32 v58, 8, v58
    v_and_b32 v59, 3, v{vLANE}
    v_lshl_add_u32 v58, v59, 3, v58             ; + c*8
    v_add_u32 v58, s{sT0}, v58
    """)
    for i in range(4):
        for rd in range(2):
            e.lds(f"ds_read_b64_tr_b16 {rng('a', 96 + 4 * i + 2 * rd, 2)}, v60 offset:{i * 512 + rd * 64}", ("fa", i))
    for t in range(8):
        e.lds(f"ds_read_b64_tr_b16 {rng('a', 112 + 2 * t, 2)}, v58 offset:{4096 + t * 32}", ("da", t))
    e.wait_all(vm=False)
    e("s_barrier")
    e.vq = [("W", 0, 0)] * 0
    fill = place(p3_dma(e, 2), 0, 2) + place(p3_dma(e, 3), 8, 2)
    for db in range(4):
        fill.append((7 + db, lambda db=db: e(f"v_add_u32 v{vVR + db}, 49152, v{vVR + db}")))
    e.lq = [t for t in e.lq]
    if OPT.get("ipf2"):
        e(f"""
        s_getpc_b64 s[{sT0}:{sT0 + 1}]
        L_ipf2:
        s_lshr_b32 s{sT2}, s2, 3
        s_and_b32 s{sT2}, s{sT2}, {OPT["ipf2"] - 1}
        s_lshl_b32 s{sT2}, s{sT2}, 12
        s_lshl_b32 s{sT3}, s{sW}, 10
        s_add_u32 s{sT2}, s{sT2}, s{sT3}
        v_lshlrev_b32 v62, 4, v{vLANE}
        v_add_u32 v62, s{sT2}, v62
        v_min_u32 v62, (L_kend - L_ipf2 - 32) & 0xfffffff0, v62
        """)
        e.vm(f"global_load_dwordx4 a[36:39], v62, s[{sT0}:{sT0 + 1}]", ("ipf", 2))
    e(f"v_mov_b32 v62, 0")
    e.vm(f"global_load_dword v2, v62, s[{sDBG}:{sDBG + 1}] sc1", ("cnt", 0))
    p2_iter(e, 15, qk=False, sm=True, pv=True, look="V", fill=fill, vpre=True, vord_next=VORD_D)
    RL = [58, 60]
    side = Side()
    A = side.add
    A(f"v_add_f32 v{vL}, v{vL}, v{vL + 1}")
    A(f"v_add_f32 v{vL + 2}, v{vL + 2}, v{vL + 3}")
    A(f"v_mov_b32 v{vL + 1}, v{vL}")
    A(f"v_mov_b32 v{vL + 3}, v{vL + 2}")
    A(f"v_permlane32_swap_b32 v{vL}, v{vL + 1}", gap=2)
    A(f"v_permlane32_swap_b32 v{vL + 2}, v{vL + 3}", gap=1)
    A(f"v_add_f32 v{vL}, v{vL}, v{vL + 1}", gap=1)
    A(f"v_add_f32 v{vL + 2}, v{vL + 2}, v{vL + 3}")
    A(f"v_rcp_f32 v{RL[0]}, v{vL}")
    A(f"v_rcp_f32 v{RL[1]}, v{vL + 2}")
    A(f"s_mov_b32 s{sT2}, {hex(f2u(2.0 ** -40))}")
    A(f"s_mov_b32 s{sT3}, {hex(f2u(2.0 ** 40))}")
    A(f"v_cmp_lt_f32 s[{sMASK}:{sMASK + 1}], s{sT2}, v{vL}")
    A(f"v_cmp_gt_f32 s[{sMASK + 2}:{sMASK + 3}], s{sT3}, v{vL}")
    A(f"v_cmp_lt_f32 s[{sMASK + 4}:{sMASK + 5}], s{sT2}, v{vL + 2}")
    A(f"v_cmp_gt_f32 vcc, s{sT3}, v{vL + 2}")
    A(f"s_and_b64 s[{sMASK}:{sMASK + 1}], s[{sMASK}:{sMASK + 1}], s[{sMASK + 2}:{sMASK + 3}]", gap=2)
    A(f"s_and_b64 vcc, vcc, s[{sMASK + 4}:{sMASK + 5}]")
    A(f"s_and_b64 s[{sMASK}:{sMASK + 1}], s[{sMASK}:{sMASK + 1}], vcc")
    for db in range(4):
        wa = 61 + (db & 1)
        A(lambda db=db: [e(x) for x in (f"s_lshl_b32 s{sT1}, s{sW}, 2", f"s_add_u32 s{sT1}, s{sT1}, {db}",
                                        f"s_sub_u32 s{sT1}, s{sT1}, s{sSK}")])
        A(lambda: [e(x) for x in (f"s_and_b32 s{sT1}, s{sT1}, 15", f"s_lshl_b32 s{sT1}, s{sT1}, 12")])
        A(f"v_add_u32 v{wa}, s{sT1}, v{vOW}")
        for qb in range(2):
            src = aO + (db * 2 + qb) * 16
            T = 128 + ((db * 2 + qb) % 4) * 16 if False else 128 + (db * 2 + qb) * 16
            for i in range(16):
                A(f"v_accvgpr_read_b32 v{T + i}, a{src + i}", cond=((16, min(4 * db + 7, 99)) if (i == 0 and qb == 0) else None))
            for i in range(8):
                A(f"v_pk_mul_f32 v[{T + 2 * i}:{T + 2 * i + 1}], v[{T + 2 * i}:{T + 2 * i + 1}], v[{RL[qb]}:{RL[qb] + 1}] op_sel_hi:[1,0]")
            for i in range(8):
                A(f"v_cvt_pk_bf16_f32 v{T + i}, v{T + 2 * i}, v{T + 2 * i + 1}")
            for jp in range(2):
                A(lambda T=T, jp=jp, qb=qb, db=db, wa=wa: e.lds(
                    f"ds_write_b128 v{wa}, {rng('v', T + 4 * jp, 4)} offset:{qb * 2048 + jp * 512}", ("ow", db, qb, jp)))
    p2_iter(e, 16, qk=False, sm=False, pv=True, look=None, vord=VORD_D, side=side, cap=OPT.get("normcap", 5))
    if not OPT.get("tailstamps"):
        stamp("p2_done")
    e.nop(OPT.get("normnop", 10))
    side.emit(e, 0, flush=True)
    e(f"""
    s_cmp_eq_u64 s[{sMASK}:{sMASK + 1}], -1
    s_cselect_b32 s{sT2}, 0, 1
    s_cmp_eq_u32 s{sPASS}, 0
    s_cselect_b32 s{sT2}, s{sT2}, 0
    s_cmp_eq_u32 s{sT2}, 0
    s_cbranch_scc1 L_noflag
    s_lshl_b32 s{sT0}, s{sW}, 2
    s_sub_u32 s{sT0}, s{sT0}, s{sSK}
    s_and_b32 s{sT0}, s{sT0}, 15
    s_lshl_b32 s{sT0}, s{sT0}, 12
    v_mov_b32 v58, s{sT0}
    v_mov_b32 v59, -1
    ds_write_b32 v58, v59
    L_noflag:
    """)
    for w_ in range(4):
        e(f"""
        s_sub_u32 s{sT0}, {4 * w_}, s{sSK}
        s_and_b32 s{sT0}, s{sT0}, 15
        s_lshl_b32 s{sT0}, s{sT0}, 12
        v_mov_b32 v{58 + w_}, s{sT0}
        """)
    e(f"""
    s_lshl_b32 s{sT1}, s{sW}, 11
    v_lshlrev_b32 v62, 5, v{vLANE}
    v_add_u32 v62, s{sT1}, v62
    v_add_u32 v62, {WS_R}, v62
    v_lshlrev_b32 v{vBR}, 4, v{vLANE}
    s_mov_b32 s48, 4096
    s_mov_b32 s49, 32768
    s_mov_b32 s50, {32768 + 4096}
    """)
    e.wait_all(vm=False)
    e("s_barrier")
    for w_ in range(4):
        e.lds(f"ds_read_b32 v{58 + w_}, v{58 + w_}", ("mk", w_))
    for fn in p3_reads(e, 0, 0)[8:] + p3_reads(e, 0, 0)[:8]:
        fn()
    serial(e, p3_dma(e, 4))
    e.need(ltags=[("mk", 3)])
    e(f"""
    v_and_b32 v58, v58, v59
    v_and_b32 v60, v60, v61
    v_max_u32 v58, v58, v60
    v_max_u32 v59, v59, v61
    """)
    e.l = e.l[:-4]
    e(f"""
    v_max_u32 v58, v58, v59
    v_max_u32 v60, v60, v61
    v_max_u32 v58, v58, v60
    s_nop 0
    v_readfirstlane_b32 s{sT0}, v58
    s_nop 0
    s_cmp_eq_u32 s{sT0}, -1
    s_cbranch_scc1 L_fallback
    L_p3_start:
    """)
    e.need(vtags=[("cnt", 0)])
    e(f"""
    v_readfirstlane_b32 s{sT0}, v2
    s_nop 0
    s_cmp_ge_u32 s{sT0}, {256 if OPT.get("fused") else 32}
    s_cselect_b32 s{sRDY}, 1, 0
    """)
    e.vm(f"buffer_load_dwordx4 v[88:91], v62, s[{S_WS}:{S_WS + 3}], 0 offen sc1", ("rl", 0))
    e.vm(f"buffer_load_dwordx4 v[92:95], v62, s[{S_WS}:{S_WS + 3}], 0 offen offset:16 sc1", ("rl", 1))
    assert [t for t in e.vq if t[0] == "W"] == [("W", u) for u in range(2, 5) for _ in range(4)], e.vq
    e.vq = [("W", u) for u in range(5) for _ in range(4)]
    import moe

    def tail3(u):
        return []

    def tail3_old(u):
        f = []
        lst = {28: [(S_WQ, 80, 0), (S_WQ, 81, 1024), (S_K, 80, 2048), (S_K, 81, 3072)], 29: [(S_V, 82, 4096), (S_V, 83, 5120)]}
        if u in lst and not OPT.get("nomoe") and not OPT.get("xnofw"):
            f.append((0, lambda u=u: e.need(ltags=[("A", u, 3)])))
            for n, (srd, v, off) in enumerate(lst[u]):
                f.append((1 + 3 * n, lambda off=off: e(f"s_add_u32 m0, s{sRING}, {2 * SLOT + off}")))
                f.append((2 + 3 * n, lambda srd=srd, v=v: e.vm(
                    f"buffer_load_dwordx4 v{v}, s[{srd}:{srd + 3}], 0 offen lds", ("fw", 0))))
        return f
    side_e, side = Side(), Side()
    sp = OPT.get("stspread", 2.0)
    for n, (x, gap) in enumerate(p3_epilogue_items(e, 0, [64, 68, 72, 76])):
        k, r = n // 7, n % 7
        pos = 16 + k * sp
        side_e.add(x, gap=gap, cond=((int(pos), 2 + int((pos % 1) * 16)) if r == 0 else None))
    if not OPT.get("nomoe"):
        moe.moe_side(e, side, dict(W=sW, RING=sRING, RDY=sRDY, M=100, X=S_X, WS=S_WS))
        side.q[0] = (side.q[0][0], side.q[0][1], (OPT.get("moestart", 4) if OPT.get("p3unroll", 1) else 16, 0))
    if OPT.get("p3stamps") or OPT.get("only"):
        def st_nowait(name):
            q = list(e.lq)
            stamp(name)
        STAMP[0] = st_nowait
    p3_phase(e, tail3, [side_e, side], None)
    side_e.emit(e, 0, flush=True)
    side.emit(e, 0, flush=True)
    stamp("p3_done")
    e.nop(6)
    side = Side()
    for (x, gap) in p3_epilogue_items(e, 1, [64, 68, 72, 76, 80, 84, 88, 92]):
        side.add(x, gap=gap)
    side.emit(e, 0, flush=True)
    stamp("epi")
    doneq = f"L_{label}_fin"
    RT = dict(X=S_X, WS=S_WS, WR=S_WR, W=sW, RING=sRING, SL=sSL, RDY=sRDY, DBG=sDBG, M=100, G=sG, TB=sTB,
              T=[42, 43, 44, 45, 46, 47, 60, 61, 62, 63, 64, 65, 66, 67], done=doneq,
              spin=OPT.get("spin", 4000), fused=OPT.get("fused"), NCNT=(256 if OPT.get("fused") else 32),
              stamp=(stamp if OPT.get("tailstamps") else (lambda n: None)), opt=OPT)
    if OPT.get("fused"):
        moe.moe_tail(e, RT)
    elif not OPT.get("nomoe"):
        e(f"""
        s_cmp_ge_u32 s2, 224
        s_cbranch_scc1 {doneq}
        s_nop 1
        """)
        moe.moe_tail(e, RT)
    e(f"{doneq}:")
    stamp("end")
    if stamps and OPT.get("dbgstamps"):
        e.wait_all()
        e(f"""
        v_mov_b32 v58, 16
        v_mov_b32 v59, s{sTS + 16}
        v_mov_b32 v60, 20
        s_not_b32 s{sT0}, s{sTS}
        v_mov_b32 v61, s{sT0}
        v_cmp_eq_u32 vcc, 0, v{vLANE}
        s_nop 0
        s_and_saveexec_b64 s[{sMASK}:{sMASK + 1}], vcc
        global_atomic_umax v58, v59, s[{sDBG}:{sDBG + 1}] sc1
        global_atomic_umax v60, v61, s[{sDBG}:{sDBG + 1}] sc1
        s_or_b32 s{sT0}, s2, s{sW}
        s_cmp_lg_u32 s{sT0}, 0
        s_cbranch_scc1 L_dbg_skip
        """)
        for k in range(1, 9):
            e(f"s_sub_u32 s{sT0}, s{sTS + 2 * k}, s{sTS}")
            e(f"v_mov_b32 v59, s{sT0}")
            e(f"v_mov_b32 v58, {24 + 4 * (k - 1)}")
            e(f"global_store_dword v58, v59, s[{sDBG}:{sDBG + 1}]")
            e("s_nop 1")
        e("L_dbg_skip:")
        e(f"s_mov_b64 exec, s[{sMASK}:{sMASK + 1}]")
    elif stamps:
        e.wait_all()
        e(f"""
        s_lshl_b32 s{sT0}, s2, 2
        s_add_u32 s{sT0}, s{sT0}, s{sW}
        s_lshl_b32 s{sT0}, s{sT0}, 7
        s_add_u32 s{sT0}, s{sT0}, {WS_TS}
        v_mov_b32 v58, s{sT0}
        v_cmp_eq_u32 vcc, 0, v{vLANE}
        s_nop 0
        s_and_saveexec_b64 s[{sMASK}:{sMASK + 1}], vcc
        """)
        for i in range(0, 20, 4):
            for q in range(4):
                e(f"v_mov_b32 v{60 + q}, s{min(sTS + i + q, sTS + 17)}")
            e(f"buffer_store_dwordx4 v[60:63], v58, s[{S_WS}:{S_WS + 3}], 0 offen offset:{i * 4}")
            e("s_nop 1")
        e(f"s_mov_b64 exec, s[{sMASK}:{sMASK + 1}]")
    e(f"s_branch {done}")
    e("L_fallback:")
    e(f"""
    s_barrier
    s_lshl_b32 s{sKO}, s{sKVT}, 14
    v_mov_b32 v{vKR}, v31
    v_mov_b32 v{vL}, 0xff800000
    v_mov_b32 v{vL + 2}, 0xff800000
    v_subrev_u32 v{vKR}, {SLOT}, v{vKR}
    s_mov_b32 s{sTRIP}, 0
    """)
    for s16 in range(1, 8):
        e(f"v_xor_b32 v{vKR + s16}, {32 * s16}, v{vKR}")
    e("L_fb_loop:")
    e("s_waitcnt vmcnt(0) lgkmcnt(0)")
    e("s_barrier")
    e.vq, e.lq = [], []
    serial(e, kv_dma(e, "K", 0, ("fbk", 0)))
    e.wait_all()
    e("s_barrier")
    for kb in range(2):
        for s16 in range(8):
            e(f"ds_read_b128 {Fbuf(s16)}, v{vKR + s16} offset:{kb * 49152}")
        e("s_waitcnt lgkmcnt(0)")
        for s16 in range(8):
            for qb in range(2):
                c = "0" if s16 == 0 else Sreg(0, qb)
                e(f"v_mfma_f32_32x32x16_bf16 {Sreg(0, qb)}, {Fbuf(s16)}, {Qreg(s16, qb)}, {c}")
        e.nop(16)
        for qb in range(2):
            m = vL + 2 * qb
            for i in range(0, 16, 2):
                e(f"v_max3_f32 v{m}, v{m}, {Sreg(0, qb, i)}, {Sreg(0, qb, i + 1)}")
    e(f"""
    s_add_u32 s{sTRIP}, s{sTRIP}, 1
    s_cmp_lt_u32 s{sTRIP}, 8
    s_cbranch_scc1 L_fb_loop
    v_mov_b32 v{vL + 1}, v{vL}
    v_mov_b32 v{vL + 3}, v{vL + 2}
    s_nop 1
    v_permlane32_swap_b32 v{vL}, v{vL + 1}
    v_permlane32_swap_b32 v{vL + 2}, v{vL + 3}
    s_nop 0
    v_max_f32 v{vL}, v{vL}, v{vL + 1}
    v_max_f32 v{vL + 2}, v{vL + 2}, v{vL + 3}
    """)
    for qb in range(2):
        for i in range(16):
            e(f"v_sub_f32 v{vNM + 16 * qb + i}, 0, v{vL + 2 * qb}")
    e(f"""
    s_barrier
    s_lshl_b32 s{sKO}, s{sKVT}, 14
    s_mov_b32 s{sVO}, s{sKO}
    s_lshl_b32 s{sWOO}, s{sSK}, 15
    v_mov_b32 v{vKR}, v31
    v_mov_b32 v{vVR}, v63
    s_mov_b32 s{sPASS}, 1
    """)
    for s16 in range(1, 8):
        e(f"v_xor_b32 v{vKR + s16}, {32 * s16}, v{vKR}")
    for db in range(1, 4):
        e(f"v_xor_b32 v{vVR + db}, {64 * db}, v{vVR}")
    for (which, slot) in (("K", 1), ("V", 1), ("K", 2), ("V", 2), ("K", 0)):
        serial(e, kv_dma(e, which, slot, ("fbp", 0)))
    for i in range(4):
        e(f"v_mov_b32 v{vL + i}, 0")
        e(f"v_mov_b32 v{vGA + i}, v{vKDM + i}")
        e(f"v_mov_b32 v{vGB + i}, v{vVDM}")
    for i in range(128):
        e(f"v_accvgpr_write_b32 a{128 + i}, 0")
    e("s_branch L_p2_start")
    e(f"{done}:")
    e("s_endpgm")
    e("L_kend:")
    sp = check_scc(e.l)
    if sp:
        print("\n".join(sp))
        raise SystemExit("scc")
    probs = check_hazards(e.l, "k1")
    if probs and not any(k.startswith("no") for k in OPT):
        print("\n".join(probs[:40]))
        raise SystemExit("hazards")
    return e.text()
```

```python
import sys
sys.path.insert(0, "dev")
from asmlib import header, kstart, kdesc, NAME
import k1, moe

HDR = """; Fused kernel for: out = x + attn(LN(x)) * silu(LN(x) + scatter(top-8 expert-choice SwiGLU FFN))        (gfx950, wave64)
;
"""

DEF = dict(map="B", dma_from=2, moestart=8)
FINAL = dict(fused=1, ipf=16, tlb="p", dma_norm=1, dma_sched=[0, 0, 4, 4, 0, 0, 0, 0], w2late=4, wotouch=1, ffnearly=1, w23late=1, normcap=6)


def build(path, opt=None, stamps=False, with_moe=False, perturb=None):
    o = dict(DEF)
    o.update(opt or {})
    opt = o
    if opt.get("fused"):
        lab = NAME + "_kernel"
        s = HDR + f"; @launch grid=(256,1,1) block=(256,1,1) lds=163840\n" + '.amdgcn_target "amdgcn-amd-amdhsa--gfx950"\n.text\n'
        s += kstart(lab) + k1.gen_k1(lab, stamps=stamps, opt=opt) + kdesc(lab, 512, accum=256)
        open(path, "w").write(s)
        return
    launches = [("mainfused_kernel", 256, 256, 163840)]
    if with_moe:
        launches.append(("moeffn_kernel", 224, 256, 32768))
    launches.append((NAME + "_kernel", 576, 256, 4096))
    s = HDR + header(launches)
    lab = "mainfused_kernel"
    s += kstart(lab) + k1.gen_k1(lab, stamps=stamps, opt=opt) + kdesc(lab, 512, accum=256)
    if with_moe:
        lab = "moeffn_kernel"
        s += kstart(lab) + moe.gen_km(lab, ts=bool(stamps)) + kdesc(lab, 160, sgpr=80)
    lab = NAME + "_kernel"
    s += kstart(lab) + moe.gen_k2(lab, ts=bool(stamps) and not opt.get('dbgcopy'), perturb=perturb, dbgcopy=opt.get('dbgcopy')) + kdesc(lab, 112, sgpr=80)
    open(path, "w").write(s)

if __name__ == "__main__":
    build("final.s", opt=FINAL)
    o = dict(FINAL); o.update(xnopublish=1, spin=20, finspin=20000)
    build("final_nopub.s", opt=o)
```

```python
from emit import E, check_hazards, check_scc
from asmlib import KA

RB = 65536
WSTR = 24576
SLOT = 8192
C_SCALE = 1.4426950408889634 * (128 ** -0.5)

WS_PART = 0
WS_R = 16 << 20
WS_STAT = WS_R + 8192
WS_H = WS_R + 65536
WS_IDX = WS_H + 32768
WS_FLG = WS_R + 32768
WS_TS = 32 << 20


def f2u(x):
    import struct
    return struct.unpack("<I", struct.pack("<f", x))[0]


S_X, S_WQ, S_K, S_V, S_WO, S_WS, S_WR = 4, 8, 12, 16, 20, 24, 28
sG, sTB, sW, sSK = 32, 33, 34, 35
sWQO, sWOO, sKO, sVO = 36, 37, 38, 39
sRING = 40
sCNT = 41
sT0, sT1, sT2, sT3 = 42, 43, 44, 45
sKSL, sVSL = 46, 47
sKD, sVD = 48, 49
sTRIP = 50
sGA = 52
sGB = 56
sGAO, sGBO = 60, 61
sGAM, sGBM = 62, 63
sMASK = 64
sPASS = 70
sKVB = 71
sKVT = 51
sDBG = 72
sSL = 98
sRDY = 99
sFP = 92
sHFD = 70
sTS = 74

vLANE = 0
vWQ = 1
vWO = 5
vKDM = 9
vVDM = 13
vAA = 14
vAB = 22
vBR = 30
vKR = 32
vVR = 40
vGA = 44
vGB = 48
vL = 52
vOW = 56
vPS = 57
vT = 58
vQ = 64
vS = 128
vP = 192
vNM = 224
vACC = 128

aA = 0
aB = 96
aF = 0
aO = 128


def rng(f, b, n):
    return f"{f}[{b}:{b + n - 1}]" if n > 1 else f"{f}{b}"


def Bset(setidx, tq):
    if setidx < 2:
        return rng("a", aB + setidx * 16 + tq * 4, 4)
    return rng("v", 64 + tq * 4, 4)


def Aset(setidx, dt):
    return rng("a", aA + setidx * 32 + dt * 4, 4)


def Ahalf(setidx, dt, rd):
    return rng("a", aA + setidx * 32 + dt * 4 + 2 * rd, 2)


def acc16(dt, tq):
    return rng("v", vACC + (dt * 4 + tq) * 4, 4)


OPT = {}
STAMP = [None]
GSTAMP = [None]
P3_STATIC = [False]
NS3 = 5


class Slots:
    def __init__(self, n):
        self.n = n
        self.f = [[] for _ in range(n + 1)]

    def at(self, i, fn):
        self.f[min(max(i, 0), self.n)].append(fn)


def loop_align(e):
    a = OPT.get("align", 0)
    if a:
        e.l.append(f".p2align {a}")
    for _ in range(OPT.get("shift", 0)):
        e("s_nop 0")


class Side:
    def __init__(self):
        self.q = []
        self.last = None

    def add(self, x, gap=0, cond=None):
        self.q.append((x, gap, cond))

    def states_since(self, e):
        if self.last is None:
            return 99
        n = 0
        for l in e.l[self.last:]:
            t = l.strip()
            if t.endswith(":") or not t:
                continue
            n += int(t.split()[1], 0) + 1 if t.startswith("s_nop") else 1
        return n

    def emit(self, e, budget, pos=None, flush=False):
        while self.q and (budget > 0 or flush):
            x, gap, cond = self.q[0]
            if cond is not None and pos is not None and pos < cond and not flush:
                return
            have = self.states_since(e)
            if have < gap:
                if not flush:
                    return
                e.nop(gap - have)
            self.q.pop(0)
            if callable(x):
                x()
            else:
                e(x)
            self.last = len(e.l)
            budget -= 1


def gemm_step(e, p, phase, opts):
    j = p % 3
    jn = (p + 1) % 3
    va = vAA if phase == 1 else vAB
    rdoff = 1024 if phase == 1 else 2048
    sl = Slots(32)
    if opts.get("next", True):
        reads = []
        for dt in range(8):
            for rd in range(2):
                reads.append((dt, rd))
        spread = OPT.get("aspread", 16)
        for n, (dt, rd) in enumerate(reads):
            def f(dt=dt, rd=rd):
                if OPT.get("noaread"):
                    return
                e.lds(f"ds_read_b64_tr_b16 {Ahalf(jn, dt, rd)}, v{va + dt} offset:{jn * SLOT + rd * rdoff}",
                      ("A", p + 1, dt))
            sl.at(n * spread // 16, f)
        for tq in range(4):
            def f(tq=tq):
                e.lds(f"ds_read_b128 {Bset(jn, tq)}, v{vBR} offset:{opts['boff_next'] + tq * 1024}", ("B", p + 1, tq))
            sl.at(spread + tq, f)
    for pos, fn in opts.get("fill", []):
        sl.at(pos, fn)
    if opts.get("next", True):
        e.need(vtags=opts.get("vneed"))
    for n in range(32):
        dt, tq = n // 4, n % 4
        need = [("A", p, dt), ("B", p, tq)] + ([("B", p, 3), ("A", p, 7)] if n == 0 else [])
        e.need(ltags=need)
        c = "0" if opts.get("first") else acc16(dt, tq)
        e(f"v_mfma_f32_16x16x32_bf16 {acc16(dt, tq)}, {Aset(j, dt)}, {Bset(j, tq)}, {c}")
        for fn in sl.f[n]:
            fn()
        side = opts.get("side")
        if side is not None:
            side.emit(e, opts.get("cap", 2) - len(sl.f[n]), pos=(p, n))
    for fn in sl.f[32]:
        fn()


def wdma(e, phase, i, tag):
    if OPT.get("nodma") and tag[1] > 3:
        e.vq.append(tag)
        return
    if phase == 1:
        e.vm(f"buffer_load_dwordx4 v{vWQ + i}, s[{S_WQ}:{S_WQ + 3}], s{sWQO} offen offset:{i * 1024} lds", tag)
    else:
        e.vm(f"buffer_load_dwordx4 v{vWO + i}, s[{S_WO}:{S_WO + 3}], s{sWOO} offen offset:{i * 1024} lds", tag)


def wdma_adv(e, phase):
    if phase == 1:
        e(f"s_add_u32 s{sWQO}, s{sWQO}, {16 * 8192}")
        e(f"s_and_b32 s{sWQO}, s{sWQO}, {512 * 8192 - 1}")
    else:
        e(f"s_add_u32 s{sT0}, s{sWOO}, {16 * 1024}")
        e(f"s_and_b32 s{sT0}, s{sT0}, {512 * 1024 - 1}")
        e(f"s_and_b32 s{sWOO}, s{sWOO}, {~(512 * 1024 - 1) & 0xffffffff}")
        e(f"s_or_b32 s{sWOO}, s{sWOO}, s{sT0}")


def half_dma(e, phase, slot, half, tag):
    def m0():
        e(f"s_add_u32 m0, s{sRING}, {slot * SLOT + half * 4096}")
    out = [m0]
    for i in range(4):
        out.append(lambda i=i: wdma(e, phase, i, tag))
    out.append(lambda: wdma_adv(e, phase))
    return out


def serial(e, fl):
    fl[0]()
    e("s_nop 0")
    for fn in fl[1:]:
        fn()


def place(fl, start, stride):
    res = [(start, fl[0])]
    for i in range(4):
        res.append((start + 1 + i * stride, fl[1 + i]))
    res.append((start + 1 + 3 * stride, fl[5]))
    return res


def kv_dma(e, which, tile_slot, tag):
    out = []
    if which == "K":
        out.append(lambda: e(f"s_add_u32 m0, s{sRING}, {tile_slot * SLOT}"))
        for i in range(4):
            out.append(lambda i=i: e.vm(
                f"buffer_load_dwordx4 v{vKDM + i}, s[{S_K}:{S_K + 3}], s{sKO} offen offset:{i * 1024} lds", tag))
        out.append(lambda: kv_adv(e, sKO))
    else:
        out.append(lambda: e(f"s_add_u32 m0, s{sRING}, {tile_slot * SLOT + 4096}"))
        for i in range(4):
            out.append(lambda i=i: e.vm(
                f"buffer_load_dwordx4 v{vVDM}, s[{S_V}:{S_V + 3}], s{sVO} offen offset:{i * 1024} lds", tag))
        out.append(lambda: kv_adv(e, sVO))
    return out


def kv_adv(e, sreg):
    e(f"s_add_u32 s{sreg}, s{sreg}, 16384")
    e(f"s_and_b32 s{sreg}, s{sreg}, {8 * 16384 - 1}")


def gemm_pre(e, phase):
    va = vAA if phase == 1 else vAB
    rdoff = 1024 if phase == 1 else 2048
    e.need(vtags=[("W", 0, 0), ("W", 0, 1)])
    for tq in range(4):
        e.lds(f"ds_read_b128 {Bset(0, tq)}, v{vBR} offset:{tq * 1024}", ("B", 0, tq))
    for dt in range(8):
        for rd in range(2):
            e.lds(f"ds_read_b64_tr_b16 {Ahalf(0, dt, rd)}, v{va + dt} offset:{rd * rdoff}", ("A", 0, dt))


def gemm_main(e, phase, tail_fill, side=None, side_steps=range(10, 16)):
    e.need(ltags=[("A", 0, 7)])
    serial(e, half_dma(e, phase, 0, 0, ("W", 3, 0)))

    def step_opts(p, boff_next):
        fill = []
        sp = OPT.get("aspread", 16)
        if p + 3 <= 15:
            fl = half_dma(e, phase, p % 3, 1, ("W", p + 3, 1))
            fill += [(0, fl[0])] + [(2 + 4 * i, fl[1 + i]) for i in range(4)] + [(sp + 4, fl[5])]
        if p + 4 <= 15:
            fl = half_dma(e, phase, (p + 1) % 3, 0, ("W", p + 4, 0))

            def guard(p=p):
                e.need(ltags=[("A", p + 1, 7)])
            fill += [(sp + 5, guard), (sp + 5, fl[0])] + [(min(sp + 6 + 3 * i, 31), fl[1 + i]) for i in range(4)] + [(32, fl[5])]
        return dict(first=(p == 0), next=(p < 15), boff_next=boff_next, fill=fill,
                    vneed=[("W", p + 1, 0), ("W", p + 1, 1)])

    if GSTAMP[0]:
        GSTAMP[0]("p1_pre")
    o = step_opts(0, 1 * 4096)
    gemm_step(e, 0, phase, o)
    if GSTAMP[0]:
        GSTAMP[0]("p1_s0")
    lab = f"L_g{phase}_loop"
    e(f"s_mov_b32 s{sCNT}, 3")
    e(f"v_add_u32 v{vBR}, {1 * 4096}, v{vBR}")
    lq0, vq0 = list(e.lq), list(e.vq)
    loop_align(e)
    e(f"{lab}:")
    n0 = len(e.l)
    for u in range(3):
        p = 1 + u
        o = step_opts(p, (u + 1) * 4096)
        if u == 2:
            o["fill"] = o["fill"] + [(24, lambda: e(f"v_add_u32 v{vBR}, {3 * 4096}, v{vBR}")),
                                     (32, lambda: e(f"s_sub_u32 s{sCNT}, s{sCNT}, 1")),
                                     (32, lambda: e(f"s_cmp_lg_u32 s{sCNT}, 0"))]
        gemm_step(e, p, phase, o)
    e(f"s_cbranch_scc1 {lab}")
    body = e.l[n0:]
    probs = check_hazards(body + body, f"gemm{phase} loop x2")
    assert not probs or any(k.startswith("no") for k in OPT), "\n".join(probs[:10])
    sh = lambda q, d: [(t[0], t[1] + d) + tuple(t[2:]) if t else t for t in q]
    assert sh(lq0, 3) == e.lq or OPT.get('noaread'), (lq0, e.lq)
    assert sh(vq0, 3) == e.vq, (vq0, e.vq)
    e.lq, e.vq = sh(e.lq, 6), sh(e.vq, 6)
    for p in range(10, 16):
        if GSTAMP[0] and p in (10, 13):
            GSTAMP[0](f"p1_s{p}")
        o = step_opts(p, (p - 10 + 1) * 4096)
        o["fill"] = o["fill"] + tail_fill(p)
        o["side"] = side if p in side_steps else None
        o["cap"] = OPT.get("sidecap", 2)
        gemm_step(e, p, phase, o)


def acc3(hf, nt, tq):
    return rng("v", vACC + 64 * hf + (nt * 4 + tq) * 4, 4)


def A3(st, nt, rd=None):
    b = st * 16 + nt * 4
    return rng("a", b, 4) if rd is None else rng("a", b + 2 * rd, 2)


def B3(st, tq):
    return rng("a", 48 + st * 16 + tq * 4, 4)


def p3_dma(e, u):
    out = [lambda: e(f"s_add_u32 m0, s{sRING}, {(u % NS3) * 4096}")]
    for i in range(4):
        out.append(lambda i=i: e.vm(
            f"buffer_load_dwordx4 v{vWO + i}, s[{S_WO}:{S_WO + 3}], s{sWOO} offen offset:{i * 1024} lds", ("W", u)))

    def adv():
        p3_adv(e)
        if u == 9 and not OPT.get("p3unroll", 1):
            e(f"s_add_u32 s{sWOO}, s{sWOO}, s{sHFD}")
    out.append(adv)
    return out


def p3_adv(e):
    e(f"s_add_u32 s{sWOO}, s{sWOO}, {32 * 1024}")
    e(f"s_and_b32 s{sWOO}, s{sWOO}, {512 * 1024 - 1}")


def p3_reads(e, u, boff):
    st = u % 3
    r = []
    for nt in range(4):
        for rd in range(2):
            r.append(lambda nt=nt, rd=rd: e.lds(
                f"ds_read_b64_tr_b16 {A3(st, nt, rd)}, v{vAB + nt} offset:{(u % NS3) * 4096 + rd * 1024}", ("A", u, nt)))
    for tq in range(4):
        r.append(lambda tq=tq: e.lds(f"ds_read_b128 {B3(st, tq)}, v{vBR} offset:{boff + tq * 1024}", ("B", u, tq)))
    return r


def p3_step(e, u, boff_next, fill=(), side=None, cap=2):
    hf, st = u >> 4, u % 3
    sl = Slots(16)
    nxt = u < 31
    if nxt:
        rd = p3_reads(e, u + 1, boff_next)
        for n in range(8):
            sl.at(n, rd[n])
        for tq in range(4):
            sl.at(8 + tq, rd[8 + tq])
    if u + NS3 <= 31:
        fl = p3_dma(e, u + NS3)
        sl.at(0, fl[0])
        for i, pos in enumerate((2, 6, 12, 14)):
            sl.at(pos, fl[1 + i])
        sl.at(15, fl[5])
    for pos, fn in fill:
        sl.at(pos, fn)
    if nxt:
        e.need(vtags=[("W", u + 1)])
    for n in range(16):
        nt, tq = n // 4, n % 4
        e.need(ltags=[("A", u, nt), ("B", u, tq)] + ([("B", u, 3), ("A", u, 3)] if n == 0 else []))
        c = "0" if (u & 15) == 0 else acc3(hf, nt, tq)
        e(f"v_mfma_f32_16x16x32_bf16 {acc3(hf, nt, tq)}, {A3(st, nt)}, {B3(st, tq)}, {c}")
        for fn in sl.f[n]:
            fn()
        if side is not None:
            left = cap - len(sl.f[n])
            for sd in side:
                n0 = len(sd.q)
                sd.emit(e, left, pos=(u, n))
                left -= n0 - len(sd.q)
    for fn in sl.f[16]:
        fn()


def p3_epilogue_items(e, hf, regs):
    items = []
    k = 0
    for nt in range(4):
        for qb in range(2):
            R = regs[k % len(regs)]
            k += 1
            a0 = vACC + 64 * hf + (nt * 4 + 2 * qb) * 4
            a1 = a0 + 4
            items.append((f"v_cvt_pk_bf16_f32 v{R}, v{a0}, v{a0 + 1}", 2))
            items.append((f"v_cvt_pk_bf16_f32 v{R + 1}, v{a0 + 2}, v{a0 + 3}", 0))
            items.append((f"v_cvt_pk_bf16_f32 v{R + 2}, v{a1}, v{a1 + 1}", 0))
            items.append((f"v_cvt_pk_bf16_f32 v{R + 3}, v{a1 + 2}, v{a1 + 3}", 0))
            items.append((f"v_permlane16_swap_b32 v{R}, v{R + 2}", 2))
            items.append((f"v_permlane16_swap_b32 v{R + 1}, v{R + 3}", 1))
            off = (nt & 1) * 2048 + qb * 1024
            so = {(0, 0): "0", (0, 1): "s48", (1, 0): "s49", (1, 1): "s50"}[(hf, nt >> 1)]
            items.append((lambda R=R, off=off, nt=nt, qb=qb, so=so: e.vm(
                f"buffer_store_dwordx4 {rng('v', R, 4)}, v{vPS}, s[{S_WS}:{S_WS + 3}], {so} offen offset:{off} "
                + OPT.get("pstore", "sc1"), ("ps", hf, nt, qb)), 0))
    return items


def p3_loop_half0(e):
    p3_step(e, 0, 4096)
    e(f"s_mov_b32 s{sCNT}, 2")
    e(f"s_mov_b32 s{sHFD}, 0")
    e(f"v_add_u32 v{vBR}, {1 * 4096}, v{vBR}")
    lq0, vq0 = list(e.lq), list(e.vq)
    e("L_p3_loop:")
    n0 = len(e.l)
    for k in range(6):
        u = 1 + k
        fill = []
        if k == 5:
            fill = [(13, lambda: e(f"v_add_u32 v{vBR}, {6 * 4096}, v{vBR}")),
                    (15, lambda: e(f"s_mov_b32 s{sHFD}, 512")),
                    (15, lambda: e(f"s_sub_u32 s{sCNT}, s{sCNT}, 1")),
                    (15, lambda: e(f"s_cmp_lg_u32 s{sCNT}, 0"))]
        p3_step(e, u, (k + 1) * 4096, fill=fill)
    e("s_cbranch_scc1 L_p3_loop")
    body = e.l[n0:]
    probs = check_hazards(body + body, "p3 loop x2")
    assert not probs, "\n".join(probs[:10])
    sh = lambda q, d: [(t[0], t[1] + d) + tuple(t[2:]) if t else t for t in q]
    assert sh(lq0, 6) == e.lq, (lq0, e.lq)
    assert sh(vq0, 6) == e.vq, (vq0, e.vq)
    e.lq, e.vq = sh(e.lq, 6), sh(e.vq, 6)
    for u in range(13, 16):
        boff = (u - 13 + 1) * 4096 if u < 15 else -13 * 4096
        if u == 15:
            fill = [(0, lambda: e(f"v_subrev_u32 v{vBR}, {13 * 4096}, v{vBR}"))]
            p3_step(e, u, 0, fill=fill)
        else:
            p3_step(e, u, boff)


def p3_phase(e, tail_fill, side0, side1):
    if STAMP[0]:
        STAMP[0]("p3_start")
    if OPT.get("p3unroll", 1):
        cap = OPT.get("sidecap", 2)
        for u in range(16):
            fill = []
            if u == 15 - NS3:
                fill = [(16, lambda: e(f"s_add_u32 s{sWOO}, s{sWOO}, 512"))]
            P3_STATIC[0] = True
            p3_step(e, u, ((u + 1) & 15) * 4096, fill=fill, side=side0, cap=cap)
    else:
        p3_loop_half0(e)
    for u in range(16, 32):
        p = u & 15
        if STAMP[0] and u in (16, 24):
            STAMP[0](f"p3_u{u}")
        p3_step(e, u, ((p + 1) & 15) * 4096, fill=tail_fill(u), side=side0, cap=OPT.get("sidecap", 2))


def Sreg(par, qb, i=None):
    b = vS + par * 32 + qb * 16
    return rng("v", b, 16) if i is None else f"v{b + i}"


def Preg(par, qb, t):
    return rng("v", vP + par * 16 + qb * 8 + t * 4, 4)


def Qreg(s16, qb):
    return rng("v", vQ + (s16 * 2 + qb) * 4, 4)


def Oreg(db, qb):
    return rng("a", aO + (db * 2 + qb) * 16, 16)


def Fbuf(n, half=None):
    b = aF + (n % 8) * 4
    return rng("a", b, 4) if half is None else rng("a", b + 2 * half, 2)


def k_read(e, b, s16):
    if OPT.get("nokvread"):
        return
    e.lds(f"ds_read_b128 {Fbuf(s16)}, v{vKR + s16} offset:{(b & 1) * 49152}", ("K", b, s16))


def v_read(e, b, f, order=None):
    t, db = (order or VORD_T)[f]
    if OPT.get("nokvread"):
        return
    for rd in range(2):
        e.lds(f"ds_read_b64_tr_b16 {Fbuf(8 + f, rd)}, v{vVR + db} offset:{t * WSTR + rd * 2048}", ("V", b, f))


def sm_ops(e, b):
    par = b & 1
    ops = []
    S = lambda x: Sreg(par, x // 16, x % 16)
    exp = lambda x: (lambda: e(f"v_exp_f32 {S(x)}, {S(x)}") if not OPT.get("noexp") else None)
    add = lambda x: (lambda: e(f"v_add_f32 v{vL + (x // 16) * 2 + (x & 1)}, v{vL + (x // 16) * 2 + (x & 1)}, {S(x)}"))
    cvt = lambda k: (lambda: e(f"v_cvt_pk_bf16_f32 v{vP + par * 16 + k}, {S(2 * k)}, {S(2 * k + 1)}"))
    if OPT.get("nosm"):
        return []
    for k in range(16):
        ops.append((2 * k, exp(2 * k)))
        if k > 0:
            ops.append((2 * k, add(2 * k - 2)))
            ops.append((2 * k, cvt(k - 1)))
        ops.append((2 * k + 1, exp(2 * k + 1)))
        if k > 0:
            ops.append((2 * k + 1, add(2 * k - 1)))
    ops.append((32, add(30)))
    ops.append((32, add(31)))
    ops.append((32, cvt(15)))
    return ops


def sm_queue(e, b):
    par = b & 1
    S = lambda x: Sreg(par, x // 16, x % 16)
    exp = lambda x: (8, lambda: e(f"v_exp_f32 {S(x)}, {S(x)}"))
    add = lambda x: (4, lambda: e(f"v_add_f32 v{vL + (x // 16) * 2 + (x & 1)}, v{vL + (x // 16) * 2 + (x & 1)}, {S(x)}"))
    cvt = lambda k: (4, lambda: e(f"v_cvt_pk_bf16_f32 v{vP + par * 16 + k}, {S(2 * k)}, {S(2 * k + 1)}"))
    q = []
    if OPT.get("dotsum"):
        dot = lambda k: (OPT["dotsum"], lambda: e(f"v_dot2_f32_bf16 v{vL + (k // 8) * 2 + (k & 1)}, v{vP + par * 16 + k}, s67, v{vL + (k // 8) * 2 + (k & 1)}"))
        for k in range(32):
            q.append(exp(k))
            if k >= 2 and k % 2 == 0:
                q.append(cvt(k // 2 - 1))
            if k >= 3 and k % 2 == 1:
                q.append(dot((k - 1) // 2 - 1))
        q.append((4, lambda: e("s_nop 0")))
        q.append(cvt(15))
        q.append((4, lambda: e("s_nop 0")))
        q.append(dot(15))
        return q
    for k in range(32):
        q.append(exp(k))
        if k >= 1:
            q.append(add(k - 1))
        if k >= 2 and k % 2 == 0:
            q.append(cvt(k // 2 - 1))
    q.append(add(31))
    q.append(cvt(15))
    return q


VORD_T = [(f // 4, f % 4) for f in range(8)]
VORD_D = [(f % 2, f // 2) for f in range(8)]


def p2_iter(e, b, qk=True, sm=True, pv=True, look="K", fill=(), vpre=False, smstart=0, vord=VORD_T, vord_next=VORD_T,
            side=None, cap=5):
    mf = []
    if qk:
        par = (b + 1) & 1
        for s16 in range(8):
            for qb in range(2):
                c = rng("v", vNM + qb * 16, 16) if s16 == 0 else Sreg(par, qb)
                mf.append((f"v_mfma_f32_32x32x16_bf16 {Sreg(par, qb)}, {Fbuf(s16)}, {Qreg(s16, qb)}, {c}",
                           ("K", b + 1, s16), s16))
    if pv:
        par = (b - 1) & 1
        for f in range(8):
            t, db = vord[f]
            for qb in range(2):
                mf.append((f"v_mfma_f32_32x32x16_bf16 {Oreg(db, qb)}, {Fbuf(8 + f)}, {Preg(par, qb, t)}, {Oreg(db, qb)}",
                           ("V", b - 1, f), 8 + f))
    n = len(mf)
    sl = Slots(n)
    if qk and pv:
        for f in range(4, 8):
            sl.at(2 * (f - 4) + 1, lambda f=f: k_read(e, b + 1, f))
        for f in range(8):
            fn = lambda f=f: v_read(e, b - 1, f)
            fn.ninstr = 2
            sl.at(2 * (f + 4) + 1, fn)
        if look == "K":
            for f in range(4):
                sl.at(24 + 2 * f + 1, lambda f=f: k_read(e, b + 2, f))
    elif qk:
        for f in range(4, 8):
            sl.at(2 * (f - 4) + 1, lambda f=f: k_read(e, b + 1, f))
        if look == "K":
            for f in range(4):
                sl.at(8 + 2 * f + 1, lambda f=f: k_read(e, b + 2, f))
    else:
        if vpre:
            for f in range(4):
                v_read(e, b - 1, f, vord)
        for f in range(4, 8):
            sl.at(2 * (f - 4) + 1, lambda f=f: v_read(e, b - 1, f, vord))
        if look == "V":
            for f in range(4):
                sl.at(8 + 2 * f + 1, lambda f=f: v_read(e, b, f, vord_next))
    if OPT.get("greedy", 1) and n == 32 and sm:
        B = OPT.get("budget", 24)
        cost = [4 * sum(2 if False else 1 for _ in sl.f[i]) for i in range(n)]
        for i in range(n):
            cost[i] = 0
            for fn in sl.f[i]:
                cost[i] += 4 * getattr(fn, "ninstr", 1)
            if (i + 1) % 4 == 0:
                cost[i] += 4
        q = sm_queue(e, b)
        tot = sum(c for c, _ in q)
        ex = sorted(enumerate(fill), key=lambda t: (t[1][0], t[0]))
        ex = [(pos, fn) for _, (pos, fn) in ex]
        done = 0
        for i in range(n):
            left = B - cost[i]
            need = tot * (i + 1) / n
            while q and done < need and q[0][0] <= left + (4 if done + 12 < need else 0):
                c, fn = q.pop(0)
                sl.at(i, fn)
                left -= c
                done += c
            while ex and ex[0][0] <= i and (left >= 4 * getattr(ex[0][1], "ninstr", 1) or ex[0][0] + 3 <= i):
                pos, fn = ex.pop(0)
                sl.at(i, fn)
                left -= 4 * getattr(fn, "ninstr", 1)
            while q and q[0][0] <= left and done < need + 16:
                c, fn = q.pop(0)
                sl.at(i, fn)
                left -= c
                done += c
        for c, fn in q:
            sl.at(n, fn)
        for pos, fn in ex:
            sl.at(n, fn)
    else:
        if sm:
            ops = sm_ops(e, b)
            for (s, fn) in ops:
                sl.at(smstart + s * (n - smstart) // 32 if s < 32 else n, fn)
        for (s, fn) in fill:
            sl.at(s, fn)
    if vpre and sm:
        pass
    for i, (txt, tag, fi) in enumerate(mf):
        if i % 4 == 0:
            tags = [tag]
            if i + 2 < n:
                tags.append(mf[i + 2][1])
            e.need(ltags=tags)
        e(txt)
        for fn in sl.f[i]:
            fn()
        if side is not None:
            side.emit(e, cap - len(sl.f[i]), pos=(b, i))
    for fn in sl.f[n]:
        fn()


def gen_k1(label, stamps=False, debug=None, opt=None):
    OPT.clear()
    OPT.update(opt or {})
    STAMP[0] = None
    GSTAMP[0] = None
    e = E()
    nst = [0]

    def stamp(name, wait=True):
        if not stamps:
            return
        if OPT.get("only") and name not in OPT["only"]:
            return
        k = nst[0]
        assert k < 9
        e(f"{stamps} s[{sTS + 2 * k}:{sTS + 2 * k + 1}]   ; stamp {k} {name}")
        if wait:
            e.wait_all(vm=False)
        nst[0] += 1
    done = f"L_{label}_done"
    ipf_text = ""
    if OPT.get("ipf"):
        nb = OPT["ipf"]
        ipf_text = f"""
    L_kbase:
    s_getpc_b64 s[{sT0}:{sT0 + 1}]
    s_lshr_b32 s{sT2}, s2, 3
    s_and_b32 s{sT2}, s{sT2}, {nb - 1}
    s_lshl_b32 s{sT2}, s{sT2}, 12
    v_lshlrev_b32 v200, 4, v0
    v_add_u32 v200, s{sT2}, v200
    v_min_u32 v200, (L_kend - L_kbase - 32) & 0xfffffff0, v200
    global_load_dwordx4 v[200:203], v200, s[{sT0}:{sT0 + 1}]
    """
        e.vq.append(("ipf", 0))
    e(f"""
    s_cmp_ge_u32 s2, 256
    s_cbranch_scc1 {done}
    {ipf_text}
    s_load_dwordx2 s[4:5], s[0:1], 0
    s_load_dwordx2 s[12:13], s[0:1], 8
    s_load_dwordx2 s[16:17], s[0:1], 16
    s_load_dwordx2 s[8:9], s[0:1], 24
    s_load_dwordx2 s[20:21], s[0:1], {KA['wo']}
    s_load_dwordx2 s[28:29], s[0:1], {KA['wr']}
    s_load_dwordx2 s[24:25], s[0:1], {KA['ws']}
    s_load_dwordx2 s[{sDBG}:{sDBG + 1}], s[0:1], {KA['dbg']}
    s_load_dwordx4 s[{sFP}:{sFP + 3}], s[0:1], {KA['wg']}
    s_load_dwordx2 s[{sFP + 4}:{sFP + 5}], s[0:1], {KA['wd']}
    """)
    stamp("start", wait=False)
    e(f"""
    v_lshrrev_b32 v{vT}, 6, v0
    v_and_b32 v{vLANE}, 63, v0
    v_readfirstlane_b32 s{sW}, v{vT}
    """)
    mp = OPT.get("map", "A")
    if mp == "A":
        e(f"""
        s_and_b32 s{sG}, s2, 7
        s_lshr_b32 s{sTB}, s2, 3
        s_and_b32 s{sSK}, s{sTB}, 15
        s_and_b32 s{sKVT}, s{sTB}, 7
        """)
    elif mp == "B":
        e(f"""
        s_and_b32 s{sT0}, s2, 3
        s_lshl_b32 s{sT0}, s{sT0}, 1
        s_bfe_u32 s{sT1}, s2, {3 | (1 << 16)}
        s_or_b32 s{sG}, s{sT0}, s{sT1}
        s_bfe_u32 s{sT0}, s2, {2 | (1 << 16)}
        s_lshl_b32 s{sT0}, s{sT0}, 4
        s_lshr_b32 s{sT1}, s2, 4
        s_or_b32 s{sTB}, s{sT0}, s{sT1}
        s_and_b32 s{sSK}, s{sTB}, 7
        s_lshl_b32 s{sSK}, s{sSK}, 1
        s_and_b32 s{sKVT}, s{sTB}, 7
        """)
    elif mp == "C":
        e(f"""
        s_and_b32 s{sT0}, s2, 1
        s_lshl_b32 s{sT0}, s{sT0}, 2
        s_bfe_u32 s{sT1}, s2, {3 | (2 << 16)}
        s_or_b32 s{sG}, s{sT0}, s{sT1}
        s_bfe_u32 s{sT0}, s2, {1 | (2 << 16)}
        s_lshl_b32 s{sT0}, s{sT0}, 3
        s_lshr_b32 s{sT1}, s2, 5
        s_or_b32 s{sTB}, s{sT0}, s{sT1}
        s_and_b32 s{sSK}, s{sTB}, 7
        s_lshl_b32 s{sSK}, s{sSK}, 1
        s_and_b32 s{sKVT}, s{sTB}, 7
        """)
        if OPT.get("s4"):
            e(f"""
            s_and_b32 s{sSK}, s{sTB}, 3
            s_lshl_b32 s{sSK}, s{sSK}, 2
            """)
        if OPT.get("gskew"):
            e(f"""
            s_and_b32 s{sT0}, s{sG}, 3
            s_lshl_b32 s{sT0}, s{sT0}, 2
            s_add_u32 s{sSK}, s{sSK}, s{sT0}
            s_and_b32 s{sSK}, s{sSK}, 15
            """)
    L = vLANE
    t0, t1, t2, t3, t4, t5 = vT, vT + 1, vT + 2, vT + 3, vT + 4, vT + 5
    XV0, XV1 = 56, 57
    e(f"""
    v_and_b32 v{t2}, 15, v{L}
    v_lshrrev_b32 v{t3}, 4, v{L}
    s_lshl_b32 s{sT0}, s{sTB}, 6
    s_lshl_b32 s{sT1}, s{sW}, 4
    s_add_u32 s{sT0}, s{sT0}, s{sT1}
    v_lshrrev_b32 v{t0}, 3, v{L}
    v_add_u32 v{t0}, s{sT0}, v{t0}
    v_and_b32 v{t1}, 7, v{L}
    v_xor_b32 v{t1}, v{t1}, v{t3}
    v_lshlrev_b32 v{t1}, 4, v{t1}
    v_lshl_add_u32 v{XV0}, v{t0}, 10, v{t1}
    v_xor_b32 v{XV1}, 64, v{XV0}              ; chunk ^ 4
    v_add_u32 v{XV1}, 8192, v{XV1}            ; +8 tokens
    s_mul_i32 s{sRING}, s{sW}, {WSTR}
    s_add_u32 s{sRING}, s{sRING}, {RB}
    s_lshl_b32 s{sT3}, s{sW}, 10              ; w*1024
    s_lshl_b32 s101, s{sSK}, 6
    s_waitcnt lgkmcnt(0)
    """)
    for (dst, size) in [(S_X, 2097152), (S_K, 4194304), (S_V, 4194304), (S_WQ, 4194304),
                        (S_WO, 4194304), (S_WR, 1024), (S_WS, 0x10000000)]:
        e(f"""
        s_mov_b32 s{dst + 2}, {size}
        s_mov_b32 s{dst + 3}, 0x20000
        """)
    stamp("kernarg", wait=True)
    def xdma(u):
        for hb in range(2):
            e(f"s_add_u32 m0, s{sT3}, {(2 * u + hb) * 4096}")
            e("s_nop 0")
            e.vm(f"buffer_load_dwordx4 v{XV0 + hb}, s[{S_X}:{S_X + 3}], s101 offen lds", ("x", u, hb))
        e(f"s_add_u32 s101, s101, 128")
        e(f"s_and_b32 s101, s101, 1023")

    def wrdma():
        e(f"""
        s_lshl_b32 s{sT0}, s{sSK}, 2
        v_add_u32 v58, s{sT0}, v{L}
        v_and_b32 v58, 63, v58
        v_lshlrev_b32 v58, 4, v58
        s_add_u32 m0, s{sRING}, {2 * SLOT + 4096}
        s_nop 0
        """)
        e.vm(f"buffer_load_dwordx4 v58, s[{S_WR}:{S_WR + 3}], 0 offen lds", ("wr", 0))
    NU0 = OPT.get("nu0", 6)
    for u in range(NU0):
        xdma(u)
    e(f"""
    s_lshl_b32 s{sT0}, s{sG}, 2
    s_add_u32 s{sT0}, s{sT0}, s{sW}
    s_lshl_b32 s{sT0}, s{sT0}, 8            ; head*256
    v_lshlrev_b32 v{t4}, 1, v{t3}
    v_xor_b32 v{t4}, v{t4}, v{t2}
    v_lshlrev_b32 v{t5}, 13, v{t3}           ; rr*8192
    v_add_u32 v{t5}, s{sT0}, v{t5}
    v_lshl_add_u32 v{vWQ}, v{t4}, 4, v{t5}
    v_add_u32 v{vWQ + 1}, {32768 - 1024}, v{vWQ}
    v_xor_b32 v{t4}, 8, v{t4}
    v_lshl_add_u32 v{vWQ + 2}, v{t4}, 4, v{t5}
    v_add_u32 v{vWQ + 2}, {2 * (32768 - 1024)}, v{vWQ + 2}
    v_add_u32 v{vWQ + 3}, {32768 - 1024}, v{vWQ + 2}
    s_lshl_b32 s{sWQO}, s{sSK}, 18
    """)
    wq_pre = []
    for p in range(3):
        for h in range(2):
            fl = half_dma(e, 1, p, h, ("W", p, h))
            for i in range(4):
                grp = []
                if i == 0:
                    grp += [fl[0], lambda: e("s_nop 0")]
                grp.append(fl[1 + i])
                if i == 3:
                    grp.append(fl[5])
                wq_pre.append(grp)
    if OPT.get("early_dma", 0):
        for grp in wq_pre[:OPT["early_dma"]]:
            for fn in grp:
                fn()
        wq_pre = wq_pre[OPT["early_dma"]:]


    r_, c_ = 60, 61
    A0, A1, A2, A3, A4, A5 = 128, 129, 130, 131, 132, 133
    e(f"""
    v_bfe_u32 v{A0}, v{L}, 2, 2              ; r
    v_and_b32 v{A1}, 3, v{L}                 ; c
    v_lshrrev_b32 v{A2}, 4, v{L}             ; q4
    v_and_b32 v{A3}, 1, v{A2}
    v_lshl_or_b32 v{A3}, v{A3}, 2, v{A0}     ; phi
    v_lshlrev_b32 v{A3}, 1, v{A3}            ; f
    v_lshrrev_b32 v{A4}, 1, v{A1}
    v_xor_b32 v{A3}, v{A3}, v{A4}            ; chunk
    v_lshlrev_b32 v{A3}, 4, v{A3}
    v_and_b32 v{A4}, 1, v{A1}
    v_lshl_or_b32 v{A3}, v{A4}, 3, v{A3}     ; + (c&1)*8
    v_lshl_add_u32 v{A4}, v{A2}, 3, v{A0}    ; row
    v_lshl_add_u32 v{A3}, v{A4}, 8, v{A3}
    v_add_u32 v{vAA}, s{sRING}, v{A3}
    """)
    for dt in range(1, 8):
        e(f"v_xor_b32 v{vAA + dt}, {32 * dt}, v{vAA}")
    e(f"""
    v_and_b32 v{A3}, 1, v{A2}
    v_lshl_or_b32 v{A4}, v{A3}, 2, v{A0}     ; 4(q4&1) + r
    v_lshrrev_b32 v{A3}, 1, v{A4}            ; psi
    v_lshrrev_b32 v{A5}, 1, v{A2}
    v_lshl_or_b32 v{A4}, v{A5}, 4, v{A4}     ; row
    v_lshlrev_b32 v{A3}, 1, v{A3}
    v_lshrrev_b32 v{A5}, 1, v{A1}
    v_xor_b32 v{A3}, v{A3}, v{A5}            ; chunk
    v_lshlrev_b32 v{A3}, 4, v{A3}
    v_and_b32 v{A5}, 1, v{A1}
    v_lshl_or_b32 v{A3}, v{A5}, 3, v{A3}
    v_lshl_add_u32 v{A3}, v{A4}, 7, v{A3}
    v_add_u32 v{vAB}, s{sRING}, v{A3}
    """)
    for dt in range(1, 4):
        e(f"v_xor_b32 v{vAB + dt}, {32 * dt}, v{vAB}")
    e(f"""
    v_lshlrev_b32 v{vBR}, 4, v{L}            ; B read: X + l*16
    v_lshrrev_b32 v{A3}, 3, v{L}             ; row8
    v_lshrrev_b32 v{A4}, 1, v{A3}
    v_and_b32 v{A4}, 3, v{A4}
    v_lshlrev_b32 v{A4}, 1, v{A4}
    v_and_b32 v{A5}, 7, v{L}
    v_xor_b32 v{A4}, v{A4}, v{A5}
    v_lshlrev_b32 v{A4}, 4, v{A4}
    v_lshl_add_u32 v{A4}, v{A3}, 10, v{A4}
    s_lshl_b32 s{sT0}, s{sW}, 7
    v_add_u32 v{vWO}, s{sT0}, v{A4}
    v_add_u32 v{vWO + 1}, 7168, v{vWO}
    v_add_u32 v{vWO + 2}, {2 * 7168}, v{vWO}
    v_add_u32 v{vWO + 3}, {3 * 7168}, v{vWO}
    v_and_b32 v{A3}, 15, v{L}
    s_lshl_b32 s{sWOO}, s{sSK}, 15
    v_xor_b32 v{A4}, v{A2}, v{A3}            ; (l&15)^rr
    v_lshlrev_b32 v{A5}, 8, v{A2}
    v_lshl_add_u32 v{vKDM}, v{A4}, 4, v{A5}
    v_xor_b32 v{vKDM + 1}, 64, v{vKDM}
    v_xor_b32 v{vKDM + 2}, 128, v{vKDM}
    v_xor_b32 v{vKDM + 3}, 192, v{vKDM}
    v_lshlrev_b32 v{A4}, 2, v{A2}
    v_xor_b32 v{A4}, v{A4}, v{A3}
    v_lshl_add_u32 v{vVDM}, v{A4}, 4, v{A5}
    v_lshrrev_b32 v{A4}, 5, v{L}             ; h
    v_xor_b32 v{A4}, v{A4}, v{A3}
    v_lshlrev_b32 v{A4}, 4, v{A4}
    v_lshl_add_u32 v{A4}, v{A3}, 8, v{A4}
    v_and_b32 v{A5}, 1, v{A2}
    v_mul_u32_u24 v{A5}, {WSTR}, v{A5}
    v_add_u32 v{A4}, v{A4}, v{A5}
    v_add_u32 v{vKR}, {RB + 1 * SLOT}, v{A4}
    """)
    for s16 in range(1, 8):
        e(f"v_xor_b32 v{vKR + s16}, {32 * s16}, v{vKR}")
    e(f"""
    v_and_b32 v{A4}, 1, v{A2}
    v_lshlrev_b32 v{A4}, 1, v{A4}
    v_lshrrev_b32 v{A5}, 1, v{A1}
    v_or_b32 v{A4}, v{A4}, v{A5}
    v_lshlrev_b32 v{A5}, 2, v{A0}
    v_xor_b32 v{A4}, v{A4}, v{A5}
    v_lshlrev_b32 v{A4}, 4, v{A4}
    v_and_b32 v{A5}, 1, v{A1}
    v_lshl_or_b32 v{A4}, v{A5}, 3, v{A4}
    v_lshrrev_b32 v{A5}, 5, v{L}
    v_lshl_add_u32 v{A5}, v{A5}, 2, v{A0}    ; 4h + r
    v_lshl_add_u32 v{A4}, v{A5}, 8, v{A4}
    v_add_u32 v{vVR}, {RB + 4096 + 1 * SLOT}, v{A4}
    """)
    for db in range(1, 4):
        e(f"v_xor_b32 v{vVR + db}, {64 * db}, v{vVR}")
    e(f"""
    """)
    for u in range(NU0, 8):
        xdma(u)
    wrdma()
    if OPT.get("tlb"):
        T = OPT["tlb"]
        e(f"""
        v_lshlrev_b32 v58, 21, v{L}
        s_lshl_b32 s{sT0}, s{sTB}, 16
        v_add_u32 v58, s{sT0}, v58
        v_cmp_gt_u32 vcc, 9, v{L}
        v_mov_b32 v59, 0x7ffffff0
        s_nop 0
        v_cndmask_b32 v58, v59, v58, vcc
        """)
        e.vm(f"buffer_load_dword a96, v58, s[{S_WS}:{S_WS + 3}], 0 offen", ("tlb", 0))
        if "o" in T and not stamps:
            e(f"""
            s_load_dwordx2 s[88:89], s[0:1], {KA['out']}
            s_mov_b32 s90, 2097152
            s_mov_b32 s91, 0x20000
            s_lshl_b32 s{sT0}, s{sTB}, 16
            v_lshlrev_b32 v58, 10, v{L}
            v_add_u32 v58, s{sT0}, v58
            s_waitcnt lgkmcnt(0)
            """)
            e.vm(f"buffer_load_dword a97, v58, s[88:91], 0 offen", ("tlb", 4))
        if "w" in T:
            e(f"""
            v_lshlrev_b32 v58, 16, v{L}
            """)
            e.vm(f"buffer_load_dword a97, v58, s[{S_WO}:{S_WO + 3}], 0 offen", ("tlb", 1))
            e.vm(f"buffer_load_dword a98, v58, s[{S_K}:{S_K + 3}], 0 offen", ("tlb", 2))
            e.vm(f"buffer_load_dword a99, v58, s[{S_V}:{S_V + 3}], 0 offen", ("tlb", 3))
    e(f"""
    v_lshlrev_b32 v{vOW}, 4, v{A3}
    v_lshrrev_b32 v{A4}, 5, v{L}
    v_lshl_add_u32 v{vOW}, v{A4}, 8, v{vOW}
    v_and_b32 v{A4}, 1, v{A2}
    v_lshl_add_u32 v{vOW}, v{A4}, 10, v{vOW}
    """)
    e(f"""
    s_lshl_b32 s{sT0}, s{sG}, 5
    s_add_u32 s{sT0}, s{sT0}, s{sTB}
    s_lshl_b32 s{sT0}, s{sT0}, 3
    s_add_u32 s{sT0}, s{sT0}, s{sW}
    s_lshl_b32 s{sT0}, s{sT0}, 13
    v_lshlrev_b32 v{vPS}, 4, v{L}
    v_add_u32 v{vPS}, s{sT0}, v{vPS}
    s_lshl_b32 s{sKVB}, s{sG}, 19
    s_lshl_b32 s{sT0}, s{sW}, 12
    s_add_u32 s{sKVB}, s{sKVB}, s{sT0}
    s_add_u32 s{sKVB}, s{sKVB}, {1536 * 256}
    s_add_u32 s{S_K}, s{S_K}, s{sKVB}
    s_addc_u32 s{S_K + 1}, s{S_K + 1}, 0
    s_add_u32 s{S_V}, s{S_V}, s{sKVB}
    s_addc_u32 s{S_V + 1}, s{S_V + 1}, 0
    s_sub_u32 s{S_K + 2}, {131072}, s{sT0}
    s_mov_b32 s{S_V + 2}, s{S_K + 2}
    s_lshl_b32 s{sT0}, s{sG}, 19
    s_add_u32 s{S_WO}, s{S_WO}, s{sT0}
    s_addc_u32 s{S_WO + 1}, s{S_WO + 1}, 0
    s_mov_b32 s{S_WO + 2}, 524288
    s_lshl_b32 s{sKO}, s{sKVT}, 14
    s_mov_b32 s{sVO}, s{sKO}
    v_cmp_eq_u32 s[{sMASK}:{sMASK + 1}], 1, v{A1}
    v_cmp_eq_u32 s[{sMASK + 2}:{sMASK + 3}], 2, v{A1}
    v_cmp_eq_u32 s[{sMASK + 4}:{sMASK + 5}], 3, v{A1}
    v_cmp_eq_u32 s[98:99], v{A2}, v{A0}
    """)
    e(f"v_mov_b32 v{A5}, 0x3f803f80")
    for i in range(4):
        e(f"v_accvgpr_write_b32 a{64 + i}, v{A5}")
    e(f"s_mov_b32 s100, 0xffff0000")
    e("s_nop 0")
    SUM, GRM = 68, 72
    e(f"""
    v_and_b32 v58, 15, v{L}                  ; tok16
    v_lshrrev_b32 v59, 4, v{L}               ; q4
    v_bfe_u32 v60, v58, 1, 3                 ; swz
    v_xor_b32 v59, v59, v60
    v_lshlrev_b32 v59, 4, v59
    v_and_b32 v60, 7, v58
    v_lshl_add_u32 v59, v60, 7, v59
    v_lshrrev_b32 v60, 3, v58
    v_lshl_add_u32 v59, v60, 12, v59
    v_add_u32 v62, s{sT3}, v59
    v_xor_b32 v63, 64, v62
    """)

    for i in range(192, 256):
        e(f"v_accvgpr_write_b32 a{i}, 0")

    def stat_frag(p):
        e.need(ltags=[("xr", p)])
        xf = rng("v", vQ + 4 * p, 4)
        c1 = "0" if p == 0 else rng("a", SUM, 4)
        c2 = "0" if p == 0 else rng("a", GRM, 4)
        e(f"v_mfma_f32_16x16x32_bf16 {rng('a', SUM, 4)}, a[64:67], {xf}, {c1}")
        e(f"v_mfma_f32_16x16x32_bf16 {rng('a', GRM, 4)}, {xf}, {xf}, {c2}")
        for i in range(4):
            src = vQ + 4 * p + i
            dst = 128 + 8 * p + 2 * i
            e(f"v_lshlrev_b32 v{dst}, 16, v{src}")
            e(f"v_and_b32 v{dst + 1}, s100, v{src}")

    for u in range(8):
        e.need(vtags=[("x", u, 1)])
        for par in range(2):
            e.lds(f"ds_read_b128 {rng('v', vQ + 4 * (2 * u + par), 4)}, v{62 + par} offset:{u * 8192}", ("xr", 2 * u + par))
        sched = OPT.get("dma_sched") or [2 if uu >= OPT.get("dma_from", 0) else 0 for uu in range(8)]
        for k in range(sched[u]):
            if len(wq_pre) > 4:
                for fn in wq_pre.pop(0):
                    fn()
        if u > 0:
            stat_frag(2 * u - 2)
            stat_frag(2 * u - 1)
    e.need(vtags=[("wr", 0)])
    e(f"""
    v_lshrrev_b32 v58, 4, v{L}
    v_lshlrev_b32 v58, 4, v58
    v_add_u32 v58, s{sRING}, v58
    """)
    for p in range(16):
        e.lds(f"ds_read_b128 {rng('a', 128 + 4 * p, 4)}, v58 offset:{2 * SLOT + 4096 + p * 64}", ("wrf", p))
    stat_frag(14)
    stat_frag(15)
    e.nop(6)
    if not OPT.get("tailstamps") and not OPT.get("p3stamps"):
        stamp("x15_stats")
    s1, s2_, u0, u1, u2, u3 = 58, 59, 60, 61, 62, 63
    e(f"""
    v_accvgpr_read_b32 v{s1}, a{SUM}
    v_accvgpr_read_b32 v{u0}, a{GRM}
    v_accvgpr_read_b32 v{u1}, a{GRM + 1}
    v_accvgpr_read_b32 v{u2}, a{GRM + 2}
    v_accvgpr_read_b32 v{u3}, a{GRM + 3}
    v_cndmask_b32 v{u0}, v{u0}, v{u1}, s[{sMASK}:{sMASK + 1}]
    v_cndmask_b32 v{u0}, v{u0}, v{u2}, s[{sMASK + 2}:{sMASK + 3}]
    v_cndmask_b32 v{u0}, v{u0}, v{u3}, s[{sMASK + 4}:{sMASK + 5}]
    v_cndmask_b32 v{u0}, 0, v{u0}, s[98:99]
    v_mov_b32 v{u1}, v{u0}
    s_nop 1
    v_permlane32_swap_b32 v{u0}, v{u1}
    s_nop 0
    v_add_f32 v{u0}, v{u0}, v{u1}
    v_mov_b32 v{u1}, v{u0}
    s_nop 1
    v_permlane16_swap_b32 v{u0}, v{u1}
    s_nop 0
    v_add_f32 v{s2_}, v{u0}, v{u1}
    v_mul_f32 v{s1}, {hex(f2u(1.0 / 512))}, v{s1}     ; mean
    v_mul_f32 v{s2_}, {hex(f2u(1.0 / 512))}, v{s2_}
    v_fma_f32 v{s2_}, -v{s1}, v{s1}, v{s2_}      ; var
    v_max_f32 v{s2_}, 0, v{s2_}
    v_cvt_pk_bf16_f32 v{u0}, v{s1}, v{s2_}
    v_and_b32 v{u1}, s100, v{u0}
    v_add_f32 v{u1}, {hex(f2u(1e-5))}, v{u1}
    v_cvt_pk_bf16_f32 v{u1}, v{u1}, v{u1}
    v_and_b32 v{u1}, s100, v{u1}
    v_sqrt_f32 v{u1}, v{u1}
    v_lshlrev_b32 v{s1}, 16, v{u0}             ; mean_b f32
    v_cvt_pk_bf16_f32 v{u1}, v{u1}, v{u1}
    v_and_b32 v{u2}, s100, v{u1}                ; sd_b f32
    v_rcp_f32 v{u3}, v{u2}
    v_and_b32 v{u0}, 0xffff, v{u0}
    v_or_b32 v31, v{u0}, v{u2}
    v_mul_f32 v{u3}, {hex(f2u(C_SCALE))}, v{u3}     ; rsc
    v_mul_f32 v{u2}, v{s1}, v{u3}
    v_sub_f32 v{u2}, 0, v{u2}
    """)
    e(f"""
    v_mov_b32 v60, v{u3}
    v_mov_b32 v61, v{u3}
    v_mov_b32 v63, v{u2}
    """)
    e(f"""
    s_lshl_b32 s{sT0}, s{sW}, 10
    v_add_u32 v{s1}, s{sT0}, v{vBR}
    """)
    for p in range(16):
        for i in range(4):
            src = 128 + 8 * p + 2 * i
            e(f"v_pk_fma_f32 v[{src}:{src + 1}], v[{src}:{src + 1}], v[60:61], v[62:63]")
        for i in range(4):
            src = 128 + 8 * p + 2 * i
            e(f"v_cvt_pk_bf16_f32 v{vQ + 4 * p + i}, v{src}, v{src + 1}")
        e.lds(f"ds_write_b128 v{s1}, {rng('v', vQ + 4 * p, 4)} offset:{p * 4096}", ("xw", p))
        if wq_pre and p % OPT.get("dma_norm", 2) == 0 and not OPT.get("dma_late"):
            if len(wq_pre) <= 4:
                e.need(ltags=[("wrf", 15)])
            for fn in wq_pre.pop(0):
                fn()
    e.need(ltags=[("wrf", 15)])
    while wq_pre:
        for fn in wq_pre.pop(0):
            fn()
    e.need(ltags=[("xw", 15)])
    e("s_barrier")
    if not OPT.get("tailstamps") and not OPT.get("p3stamps"):
        stamp("ln_done")
    gemm_pre(e, 1)
    for p in range(16):
        c = "0" if p == 0 else "a[76:79]"
        e(f"v_mfma_f32_16x16x32_bf16 a[76:79], {rng('a', 128 + 4 * p, 4)}, {rng('v', vQ + 4 * p, 4)}, {c}")
    e.nop(8)
    e(f"""
    v_accvgpr_read_b32 v58, a76
    v_mul_f32 v58, {hex(f2u(1.0 / C_SCALE))}, v58
    v_cvt_pk_bf16_f32 v58, v58, v58
    v_and_b32 v59, s100, v58
    v_ashrrev_i32 v58, 31, v59
    v_or_b32 v58, 0x80000000, v58
    v_xor_b32 v59, v59, v58                  ; monotone map
    s_lshl_b32 s{sT0}, s{sTB}, 6
    s_lshl_b32 s{sT1}, s{sW}, 4
    s_add_u32 s{sT0}, s{sT0}, s{sT1}
    s_sub_u32 s{sT0}, 2047, s{sT0}
    v_and_b32 v58, 15, v{vLANE}
    v_sub_u32 v58, s{sT0}, v58               ; 2047 - token
    v_and_or_b32 v59, v59, s100, v58
    """)

    def lines(txt):
        return [t.strip() for t in txt.strip().split("\n") if t.strip()]

    st13 = lines(f"""
    s_add_u32 s{sGA}, s{S_WS}, {WS_R} | s_addc_u32 s{sGA + 1}, s{S_WS + 1}, 0
    s_mov_b32 s{sGA + 2}, 8192
    s_mov_b32 s{sGA + 3}, 0x20000
    s_add_u32 s{sGB}, s{S_WS}, {WS_STAT} | s_addc_u32 s{sGB + 1}, s{S_WS + 1}, 0
    s_mov_b32 s{sGB + 2}, 8192
    s_mov_b32 s{sGB + 3}, 0x20000
    s_lshl_b32 s{sT2}, s{sTB}, 6
    s_lshl_b32 s{sT1}, s{sW}, 4
    s_add_u32 s{sT2}, s{sT2}, s{sT1}
    v_add_u32 v58, s{sT2}, v{vLANE}
    v_lshlrev_b32 v58, 2, v58
    v_cmp_gt_u32 vcc, 16, v{vLANE}
    s_cmp_eq_u32 s{sG}, 0 | s_cselect_b64 s[{sMASK}:{sMASK + 1}], -1, 0
    v_mov_b32 v60, 0x7ffffff0
    s_and_b64 vcc, vcc, s[{sMASK}:{sMASK + 1}]
    v_cndmask_b32 v58, v60, v58, vcc
    """)
    st13 = [(x, None) for x in st13]
    st13.append((f"buffer_store_dword v59, v58, s[{sGA}:{sGA + 3}], 0 offen sc1", ("st", 0)))
    st13.append((f"buffer_store_dword v31, v58, s[{sGB}:{sGB + 3}], 0 offen sc1", ("st", 1)))
    if OPT.get("fused"):
        st13 += [(x, None) for x in lines(f"""
        s_lshl_b32 s{sT2}, s{sTB}, 3
        s_add_u32 s{sT2}, s{sT2}, s{sG}
        s_lshl_b32 s{sT2}, s{sT2}, 2
        s_add_u32 s{sT2}, s{sT2}, {WS_FLG}
        s_cmp_eq_u32 s{sW}, 0 | s_cselect_b32 s{sT2}, s{sT2}, 0x7fff0000
        v_lshlrev_b32 v58, 10, v{vLANE}
        v_add_u32 v58, s{sT2}, v58
        v_mov_b32 v60, 0x7fff0000
        v_cmp_gt_u32 vcc, 9, v{vLANE}
        v_mov_b32 v61, 0
        s_nop 0
        v_cndmask_b32 v58, v60, v58, vcc
        """)]
        st13.append((f"buffer_store_dword v61, v58, s[{S_WS}:{S_WS + 3}], 0 offen sc1", ("st", 2)))
    st14 = [f"v_mov_b32 v{vL + i}, 0" for i in range(4)]
    for i in range(4):
        st14 += [f"v_mov_b32 v{vGA + i}, v{vKDM + i}", f"v_mov_b32 v{vGB + i}, v{vVDM}"]
    st14 += lines(f"""
    s_mov_b32 s{sPASS}, 0
    v_mov_b32 v31, v{vKR}
    v_mov_b32 v63, v{vVR}
    s_min_u32 s{sSL}, s2, 223
    s_lshl_b32 s{sT2}, s{sW}, 7
    v_add_u32 v3, s{sT2}, v{vLANE}
    v_mul_u32_u24 v3, 3584, v3
    s_lshl_b32 s{sT2}, s{sSL}, 4
    v_add_u32 v3, s{sT2}, v3
    v_lshrrev_b32 v4, 4, v{vLANE}
    v_lshlrev_b32 v4, 10, v4
    v_and_b32 v2, 15, v{vLANE}
    v_lshl_add_u32 v4, v2, 4, v4
    s_lshl_b32 s{sT2}, s{sSL}, 13
    s_lshl_b32 s{sT1}, s{sW}, 8
    s_add_u32 s{sT2}, s{sT2}, s{sT1}
    v_add_u32 v4, s{sT2}, v4
    """)

    def emit_item(x, tag):
        def f():
            for part in x.split(" | "):
                if tag is not None:
                    e.vm(part, tag)
                else:
                    e(part)
        return f

    def tail1(p):
        f = []

        def guard(pp):
            return lambda: e.need(ltags=[("A", pp + 1, 7)])
        if p == 12:
            f += [(21, guard(12))] + place(kv_dma(e, "K", 1, ("KV", 0, "K")), 21, 3)
        if p == 13:
            f += place(kv_dma(e, "V", 1, ("KV", 0, "V")), 1, 4)
            f += [(21, guard(13))] + place(kv_dma(e, "K", 2, ("KV", 1, "K")), 21, 3)
        if p == 14:
            f += place(kv_dma(e, "V", 2, ("KV", 1, "V")), 1, 4)
            f += [(21, guard(14))] + place(kv_dma(e, "K", 0, ("KV", 2, "K")), 21, 3)
        if p == 13:
            for n, (x, tag) in enumerate(st13):
                f.append((n * 31 // len(st13), emit_item(x, tag)))
        if p == 14:
            for n, x in enumerate(st14):
                f.append((n * 31 // len(st14), emit_item(x, None)))
        return f

    qside = Side()
    for dt in range(8):
        first = True
        for qb in range(2):
            R = vQ + (dt * 2 + qb) * 4
            a0 = vACC + (dt * 4 + 2 * qb) * 4
            a1 = a0 + 4
            qside.add(f"v_cvt_pk_bf16_f32 v{R}, v{a0}, v{a0 + 1}", cond=((15, 4 * dt + 8) if first else None))
            first = False
            qside.add(f"v_cvt_pk_bf16_f32 v{R + 1}, v{a0 + 2}, v{a0 + 3}")
            qside.add(f"v_cvt_pk_bf16_f32 v{R + 2}, v{a1}, v{a1 + 1}")
            qside.add(f"v_cvt_pk_bf16_f32 v{R + 3}, v{a1 + 2}, v{a1 + 3}")
        for qb in range(2):
            R = vQ + (dt * 2 + qb) * 4
            qside.add(f"v_permlane16_swap_b32 v{R}, v{R + 2}", gap=(0 if qb == 0 else 0))
            qside.add(f"v_permlane16_swap_b32 v{R + 1}, v{R + 3}", gap=(1 if qb == 1 else 0))
    if OPT.get("only"):
        def gs(name):
            lq = list(e.lq)
            stamp(name)
            if name in OPT["only"]:
                e.lq = lq
        GSTAMP[0] = gs
    gemm_main(e, 1, tail1, side=qside, side_steps=(15,))
    if not OPT.get("tailstamps") and not OPT.get("p3stamps"):
        stamp("p1_done")
    e.nop(8)
    qside.emit(e, 0, flush=True)
    for i in range(32):
        e(f"v_mov_b32 v{vNM + i}, 0")
    if OPT.get("only"):
        stamp("q_conv")
    e(f"L_p2_start:")
    e(f"""
    s_mov_b32 s{sGA}, s{S_K}
    s_mov_b32 s{sGA + 1}, s{S_K + 1}
    s_mov_b32 s{sGA + 2}, s{S_K + 2}
    s_mov_b32 s{sGB}, s{S_V}
    s_mov_b32 s{sGB + 1}, s{S_V + 1}
    s_mov_b32 s{sGB + 2}, s{S_V + 2}
    s_mov_b32 s{sKSL}, {2 * SLOT}
    s_mov_b32 s{sVSL}, {1 * SLOT}
    s_mov_b32 s{sTRIP}, 1
    s_add_u32 s{sGAM}, s{sRING}, {1 * SLOT}
    s_add_u32 s{sGBM}, s{sRING}, 4096
    s_lshl_b32 s{sGAO}, s{sW}, 13
    s_mov_b32 s{sMASK + 2}, {64 * 3584}
    s_mov_b32 s{S_WQ + 2}, {512 * 1792 * 2}
    """)
    e(f"""
    v_bfe_u32 v61, v{vLANE}, 2, 2               ; r
    v_lshrrev_b32 v59, 4, v{vLANE}              ; q4
    v_lshl_add_u32 v60, v59, 3, v61             ; 8 q4 + r
    v_lshlrev_b32 v60, 4, v60
    v_and_b32 v62, 1, v{vLANE}
    v_lshl_add_u32 v60, v62, 3, v60             ; + (c&1)*8
    v_bfe_u32 v62, v{vLANE}, 1, 1
    v_lshl_add_u32 v60, v62, 11, v60            ; + U
    s_lshl_b32 s{sT0}, s{sW}, 13
    v_add_u32 v60, s{sT0}, v60
    v_and_b32 v59, 1, v59
    v_lshl_add_u32 v61, v59, 2, v61             ; row 0..7
    v_lshlrev_b32 v61, 8, v61
    v_and_b32 v59, 3, v{vLANE}
    v_lshl_add_u32 v61, v59, 3, v61             ; + c*8
    v_add_u32 v61, s{sT0}, v61
    """)
    e.wait_all()
    e("s_barrier")
    for f in range(4):
        k_read(e, 0, f)
    e(f"""
    s_or_b32 s{sT0}, {'0' if OPT.get("fused") else 's%d' % sG}, s{sW}
    s_or_b32 s{sT0}, s{sT0}, s{sPASS}
    s_cmp_lg_u32 s{sT0}, 0
    s_cbranch_scc1 L_nopub
    """)
    if not OPT.get("xnopublish"):
        e(f"""
        v_mov_b32 v58, 0
        v_mov_b32 v59, 1
        v_cmp_eq_u32 vcc, 0, v{vLANE}
        s_nop 0
        s_and_saveexec_b64 s[{sMASK}:{sMASK + 1}], vcc
        global_atomic_add v58, v59, s[{sDBG}:{sDBG + 1}] sc1
        s_mov_b64 exec, s[{sMASK}:{sMASK + 1}]
        """)
    e("L_nopub:")
    if OPT.get("ipf2"):
        e(f"""
        s_getpc_b64 s[{sT0}:{sT0 + 1}]
        L_ipf2:
        s_lshr_b32 s{sT2}, s2, 3
        s_and_b32 s{sT2}, s{sT2}, {OPT["ipf2"] - 1}
        s_lshl_b32 s{sT2}, s{sT2}, 12
        s_lshl_b32 s{sT3}, s{sW}, 10
        s_add_u32 s{sT2}, s{sT2}, s{sT3}
        v_lshlrev_b32 v62, 4, v{vLANE}
        v_add_u32 v62, s{sT2}, v62
        v_min_u32 v62, (L_kend - L_ipf2 - 32) & 0xfffffff0, v62
        """)
        e.vm(f"global_load_dwordx4 a[36:39], v62, s[{sT0}:{sT0 + 1}]", ("ipf", 2))
    p2_iter(e, -1, qk=True, sm=False, pv=False, look="K",
            fill=[(i // 4, lambda i=i: e(f"v_accvgpr_write_b32 a{128 + i}, 0")) for i in range(64)])
    upd = []
    for i in range(8):
        upd.append((i // 4 * 8 + i % 4 if i < 4 else 9 + i, lambda i=i: e(f"v_add_u32 v{vKR + i}, {SLOT}, v{vKR + i}")))
    p2_iter(e, 0, qk=True, sm=True, pv=False, look="K", fill=upd, smstart=5)

    if OPT.get("only"):
        lqs = list(e.lq)
        stamp("p2_preloop")
        e.lq = lqs
    lq0 = list(e.lq)
    loop_align(e)
    e("L_p2_loop:")
    n0 = len(e.l)
    e("s_waitcnt vmcnt(1)")
    e.vq = []
    if not OPT.get("nobar"):
        e("s_barrier")
    D64 = 64 * 3584
    fill = []

    def grp(*lines):
        f = lambda: [e(x) for x in lines]
        f.ninstr = len(lines)
        return f

    def adv2(sreg):
        f = lambda: kv_adv(e, sreg)
        f.ninstr = 2
        return f
    fill.append((0, lambda: e(f"s_mov_b32 m0, s{sGAM}")))
    for i in range(4):
        if not OPT.get("nogdma"):
          fill.append((2 + 4 * i, lambda i=i: e.vm(
            f"buffer_load_dwordx4 v{vGA + i}, s[{sGA}:{sGA + 3}], s{sKO} offen offset:{i * 1024} lds", ("G", 0))))
    fill.append((15, adv2(sKO)))
    fill.append((16, lambda: e(f"s_mov_b32 m0, s{sGBM}")))
    for i in range(4):
        if not OPT.get("nogdma"):
          fill.append((18 + 4 * i, lambda i=i: e.vm(
            f"buffer_load_dwordx4 v{vGB + i}, s[{sGB}:{sGB + 3}], s{sVO} offen offset:{i * 1024} lds", ("G", 1))))
    fill.append((30, adv2(sVO)))
    for db in range(4):
        fill.append((24 + 2 * db, lambda db=db: e(f"v_add_u32 v{vVR + db}, 49152, v{vVR + db}")))
    fill.append((4, grp(f"s_add_u32 s{sT1}, s{sKSL}, {SLOT}", f"s_cmp_eq_u32 s{sT1}, {3 * SLOT}",
                        f"s_cselect_b32 s{sT1}, 0, s{sT1}")))
    fill.append((8, grp(f"s_sub_u32 s{sKD}, s{sT1}, s{sKSL}", f"s_sub_u32 s{sVD}, s{sKSL}, s{sVSL}")))
    fill.append((12, grp(f"s_sub_u32 s{sVD}, s{sVD}, 49152", f"s_mov_b32 s{sVSL}, s{sKSL}", f"s_mov_b32 s{sKSL}, s{sT1}")))
    fill.append((20, grp(f"s_cmp_ge_u32 s{sTRIP}, 3", f"s_cselect_b32 s{S_WQ}, s{sFP + 2}, s{sFP}",
                         f"s_cselect_b32 s{S_WQ + 1}, s{sFP + 3}, s{sFP + 1}")))
    fill.append((22, grp(f"s_bitcmp0_b32 s{sTRIP}, 0", f"s_cselect_b32 s{sGBO}, s{sMASK + 2}, 0")))
    fill.append((24, grp(f"s_cmp_ge_u32 s{sTRIP}, 5", f"s_cselect_b32 s{S_WQ}, s{sFP + 4}, s{S_WQ}",
                         f"s_cselect_b32 s{S_WQ + 1}, s{sFP + 5}, s{S_WQ + 1}")))
    fill.append((26, grp(f"s_cmp_ge_u32 s{sTRIP}, 5", f"s_cselect_b32 s{sGBO}, 0, s{sGBO}",
                         f"s_cselect_b64 s[{sMASK}:{sMASK + 1}], -1, 0")))
    fill.append((28, grp(f"s_cmp_ge_u32 s{sTRIP}, 6", f"s_cselect_b32 s{sGBO}, 4096, s{sGBO}")))
    p2_iter(e, 1, fill=fill)
    fill = []
    for i in range(8):
        fill.append((8 + 2 * i if i >= 4 else 2 * i, lambda i=i: e(f"v_add_u32 v{vKR + i}, s{sKD}, v{vKR + i}")))
    for db in range(4):
        fill.append((24 + 2 * db, lambda db=db: e(f"v_add_u32 v{vVR + db}, s{sVD}, v{vVR + db}")))
    fill.append((1, lambda: e(f"v_cndmask_b32 v1, v3, v4, s[{sMASK}:{sMASK + 1}]")))
    fill.append((2, lambda: e(f"s_mov_b32 m0, s{sGAO}")))
    if not OPT.get("nocdma"):
        def cdma():
            e(f"s_cmp_eq_u32 s{sTRIP}, 7")
            e("s_cbranch_scc1 L_p2_noc")
            e.vm(f"buffer_load_dwordx4 v1, s[{S_WQ}:{S_WQ + 3}], s{sGBO} offen lds", ("C", 0))
            e("L_p2_noc:")
        cdma.ninstr = 3
        fill.append((4, cdma))
    fill.append((6, lambda: e(f"s_add_u32 s{sGAO}, s{sGAO}, 1024")))
    fill.append((10, grp(f"s_add_u32 s{sGAM}, s{sRING}, s{sVSL}", f"s_add_u32 s{sT1}, s{sKSL}, {SLOT}")))
    fill.append((12, grp(f"s_cmp_eq_u32 s{sT1}, {3 * SLOT}", f"s_cselect_b32 s{sT1}, 0, s{sT1}",
                         f"s_add_u32 s{sGBM}, s{sRING}, s{sT1}")))
    fill.append((14, lambda: e(f"s_add_u32 s{sGBM}, s{sGBM}, 4096")))
    fill.append((28, lambda: e(f"s_add_u32 s{sTRIP}, s{sTRIP}, 1")))
    p2_iter(e, 2, fill=fill)
    e(f"""
    s_cmp_lg_u32 s{sTRIP}, 7
    s_cbranch_scc1 L_p2_noswitch
    s_mov_b32 s{sGA}, s{S_WO}
    s_mov_b32 s{sGA + 1}, s{S_WO + 1}
    s_mov_b32 s{sGA + 2}, s{S_WO + 2}
    s_mov_b32 s{sGB}, s{S_WO}
    s_mov_b32 s{sGB + 1}, s{S_WO + 1}
    s_mov_b32 s{sGB + 2}, s{S_WO + 2}
    s_mov_b32 s{sGAM}, s{sRING}
    s_add_u32 s{sGBM}, s{sRING}, 4096
    s_mov_b32 s{sKO}, s{sWOO}
    """)
    p3_adv(e)
    e(f"s_mov_b32 s{sVO}, s{sWOO}")
    p3_adv(e)
    for i in range(4):
        e(f"v_mov_b32 v{vGA + i}, v{vWO + i}")
        e(f"v_mov_b32 v{vGB + i}, v{vWO + i}")
    e("L_p2_noswitch:")
    e(f"s_cmp_lg_u32 s{sTRIP}, 8")
    e("s_cbranch_scc1 L_p2_loop")
    body = e.l[n0:]
    probs = check_hazards(body + body, "p2 loop x2")
    assert not probs or any(k.startswith("no") for k in OPT), "\n".join(probs[:10])
    sh = lambda q, d: [(t[0], t[1] + d) + tuple(t[2:]) if t else t for t in q]
    assert sh(lq0, 2) == e.lq, (lq0, e.lq)
    e.lq = sh(e.lq, 12)
    if OPT.get("only"):
        stamp("p2_loopend")
    e("s_waitcnt vmcnt(8)")
    e.vq = [("W", 0)] * 4 + [("W", 1)] * 4
    for i in range(4):
        for rd in range(2):
            e.lds(f"ds_read_b64_tr_b16 {rng('a', 96 + 4 * i + 2 * rd, 2)}, v60 offset:{i * 512 + rd * 64}", ("fa", i))
    for t in range(8):
        e.lds(f"ds_read_b64_tr_b16 {rng('a', 112 + 2 * t, 2)}, v61 offset:{4096 + t * 32}", ("da", t))
    for f in range(4):
        v_read(e, 14, f, VORD_T)
    e.wait_all(vm=False)
    e("s_barrier")
    if OPT.get("only"):
        stamp("b15_start")
    fill = place(p3_dma(e, 2), 0, 2) + place(p3_dma(e, 3), 8, 2)
    for db in range(4):
        fill.append((7 + db, lambda db=db: e(f"v_add_u32 v{vVR + db}, 49152, v{vVR + db}")))
    e.lq = [t for t in e.lq]
    e(f"v_mov_b32 v62, 0")
    e.vm(f"global_load_dword v2, v62, s[{sDBG}:{sDBG + 1}] sc1", ("cnt", 0))
    p2_iter(e, 15, qk=False, sm=True, pv=True, look="V", fill=fill, vpre=False, vord_next=VORD_D)
    if OPT.get("only"):
        lqs = list(e.lq)
        stamp("b15_end")
        e.lq = lqs
    RL = [58, 60]
    side = Side()
    A = side.add
    A(f"v_add_f32 v{vL}, v{vL}, v{vL + 1}")
    A(f"v_add_f32 v{vL + 2}, v{vL + 2}, v{vL + 3}")
    A(f"v_mov_b32 v{vL + 1}, v{vL}")
    A(f"v_mov_b32 v{vL + 3}, v{vL + 2}")
    A(f"v_permlane32_swap_b32 v{vL}, v{vL + 1}", gap=2)
    A(f"v_permlane32_swap_b32 v{vL + 2}, v{vL + 3}", gap=1)
    A(f"v_add_f32 v{vL}, v{vL}, v{vL + 1}", gap=1)
    A(f"v_add_f32 v{vL + 2}, v{vL + 2}, v{vL + 3}")
    A(f"v_rcp_f32 v{RL[0]}, v{vL}")
    A(f"v_rcp_f32 v{RL[1]}, v{vL + 2}")
    A(f"s_mov_b32 s{sT2}, {hex(f2u(2.0 ** -40))}")
    A(f"s_mov_b32 s{sT3}, {hex(f2u(2.0 ** 40))}")
    A(f"v_cmp_lt_f32 s[{sMASK}:{sMASK + 1}], s{sT2}, v{vL}")
    A(f"v_cmp_gt_f32 s[{sMASK + 2}:{sMASK + 3}], s{sT3}, v{vL}")
    A(f"v_cmp_lt_f32 s[{sMASK + 4}:{sMASK + 5}], s{sT2}, v{vL + 2}")
    A(f"v_cmp_gt_f32 vcc, s{sT3}, v{vL + 2}")
    A(f"s_and_b64 s[{sMASK}:{sMASK + 1}], s[{sMASK}:{sMASK + 1}], s[{sMASK + 2}:{sMASK + 3}]", gap=2)
    A(f"s_and_b64 vcc, vcc, s[{sMASK + 4}:{sMASK + 5}]")
    A(f"s_and_b64 s[{sMASK}:{sMASK + 1}], s[{sMASK}:{sMASK + 1}], vcc")
    for db in range(4):
        wa = 61 + (db & 1)
        A(lambda db=db: [e(x) for x in (f"s_lshl_b32 s{sT1}, s{sW}, 2", f"s_add_u32 s{sT1}, s{sT1}, {db}",
                                        f"s_sub_u32 s{sT1}, s{sT1}, s{sSK}")])
        A(lambda: [e(x) for x in (f"s_and_b32 s{sT1}, s{sT1}, 15", f"s_lshl_b32 s{sT1}, s{sT1}, 12")])
        A(f"v_add_u32 v{wa}, s{sT1}, v{vOW}")
        for qb in range(2):
            src = aO + (db * 2 + qb) * 16
            T = 128 + ((db * 2 + qb) % 4) * 16 if False else 128 + (db * 2 + qb) * 16
            for i in range(16):
                A(f"v_accvgpr_read_b32 v{T + i}, a{src + i}", cond=((16, min(4 * db + 7, 99)) if (i == 0 and qb == 0) else None))
            for i in range(8):
                A(f"v_pk_mul_f32 v[{T + 2 * i}:{T + 2 * i + 1}], v[{T + 2 * i}:{T + 2 * i + 1}], v[{RL[qb]}:{RL[qb] + 1}] op_sel_hi:[1,0]")
            for i in range(8):
                A(f"v_cvt_pk_bf16_f32 v{T + i}, v{T + 2 * i}, v{T + 2 * i + 1}")
            for jp in range(2):
                A(lambda T=T, jp=jp, qb=qb, db=db, wa=wa: e.lds(
                    f"ds_write_b128 v{wa}, {rng('v', T + 4 * jp, 4)} offset:{qb * 2048 + jp * 512}", ("ow", db, qb, jp)))
    p2_iter(e, 16, qk=False, sm=False, pv=True, look=None, vord=VORD_D, side=side, cap=OPT.get("normcap", 5))
    if not OPT.get("tailstamps"):
        stamp("p2_done")
    e.nop(OPT.get("normnop", 10))
    side.emit(e, 0, flush=True)
    if OPT.get("only"):
        stamp("flush_end")
    e(f"""
    s_cmp_eq_u64 s[{sMASK}:{sMASK + 1}], -1
    s_cselect_b32 s{sT2}, 0, 1
    s_cmp_eq_u32 s{sPASS}, 0
    s_cselect_b32 s{sT2}, s{sT2}, 0
    s_cmp_eq_u32 s{sT2}, 0
    s_cbranch_scc1 L_noflag
    s_lshl_b32 s{sT0}, s{sW}, 2
    s_sub_u32 s{sT0}, s{sT0}, s{sSK}
    s_and_b32 s{sT0}, s{sT0}, 15
    s_lshl_b32 s{sT0}, s{sT0}, 12
    v_mov_b32 v58, s{sT0}
    v_mov_b32 v59, -1
    ds_write_b32 v58, v59
    L_noflag:
    """)
    for w_ in range(4):
        e(f"""
        s_sub_u32 s{sT0}, {4 * w_}, s{sSK}
        s_and_b32 s{sT0}, s{sT0}, 15
        s_lshl_b32 s{sT0}, s{sT0}, 12
        v_mov_b32 v{58 + w_}, s{sT0}
        """)
    e(f"""
    s_lshl_b32 s{sT1}, s{sW}, 11
    v_lshlrev_b32 v62, 5, v{vLANE}
    v_add_u32 v62, s{sT1}, v62
    v_add_u32 v62, {WS_R}, v62
    v_lshlrev_b32 v{vBR}, 4, v{vLANE}
    s_mov_b32 s48, 4096
    s_mov_b32 s49, 32768
    s_mov_b32 s50, {32768 + 4096}
    """)
    e.wait_all(vm=False)
    e("s_barrier")
    if OPT.get("only"):
        stamp("b2_bar")
    for w_ in range(4):
        e.lds(f"ds_read_b32 v{58 + w_}, v{58 + w_}", ("mk", w_))
    e.need(vtags=[("W", 0)])
    for fn in p3_reads(e, 0, 0)[8:] + p3_reads(e, 0, 0)[:8]:
        fn()
    serial(e, p3_dma(e, 4))
    e.need(ltags=[("mk", 3)])
    e(f"""
    v_and_b32 v58, v58, v59
    v_and_b32 v60, v60, v61
    v_max_u32 v58, v58, v60
    v_max_u32 v59, v59, v61
    """)
    e.l = e.l[:-4]
    e(f"""
    v_max_u32 v58, v58, v59
    v_max_u32 v60, v60, v61
    v_max_u32 v58, v58, v60
    s_nop 0
    v_readfirstlane_b32 s{sT0}, v58
    s_nop 0
    s_cmp_eq_u32 s{sT0}, -1
    s_cbranch_scc1 L_fallback
    L_p3_start:
    """)
    e.need(vtags=[("cnt", 0)])
    e(f"""
    v_readfirstlane_b32 s{sT0}, v2
    s_nop 0
    s_cmp_ge_u32 s{sT0}, {(256 if OPT.get("fused") else 32) + (1000 if OPT.get("xforceslow") else 0)}
    s_cselect_b32 s{sRDY}, 1, 0
    """)
    e.vm(f"buffer_load_dwordx4 v[88:91], v62, s[{S_WS}:{S_WS + 3}], 0 offen sc1", ("rl", 0))
    e.vm(f"buffer_load_dwordx4 v[92:95], v62, s[{S_WS}:{S_WS + 3}], 0 offen offset:16 sc1", ("rl", 1))
    assert [t for t in e.vq if t[0] == "W"] == [("W", u) for u in range(2, 5) for _ in range(4)], e.vq
    e.vq = [("W", u) for u in range(5) for _ in range(4)]
    import moe

    def tail3(u):
        return []

    def tail3_old(u):
        f = []
        lst = {28: [(S_WQ, 80, 0), (S_WQ, 81, 1024), (S_K, 80, 2048), (S_K, 81, 3072)], 29: [(S_V, 82, 4096), (S_V, 83, 5120)]}
        if u in lst and not OPT.get("nomoe") and not OPT.get("xnofw"):
            f.append((0, lambda u=u: e.need(ltags=[("A", u, 3)])))
            for n, (srd, v, off) in enumerate(lst[u]):
                f.append((1 + 3 * n, lambda off=off: e(f"s_add_u32 m0, s{sRING}, {2 * SLOT + off}")))
                f.append((2 + 3 * n, lambda srd=srd, v=v: e.vm(
                    f"buffer_load_dwordx4 v{v}, s[{srd}:{srd + 3}], 0 offen lds", ("fw", 0))))
        return f
    side_e, side = Side(), Side()
    sp = OPT.get("stspread", 2.0)
    for n, (x, gap) in enumerate(p3_epilogue_items(e, 0, [64, 68, 72, 76])):
        k, r = n // 7, n % 7
        pos = 16 + k * sp
        side_e.add(x, gap=gap, cond=((int(pos), 2 + int((pos % 1) * 16)) if r == 0 else None))
    if not OPT.get("nomoe"):
        moe.moe_side(e, side, dict(W=sW, RING=sRING, RDY=sRDY, M=100, X=S_X, WS=S_WS))
        side.q[0] = (side.q[0][0], side.q[0][1], (OPT.get("moestart", 4) if OPT.get("p3unroll", 1) else 16, 0))
    if OPT.get("p3stamps") or OPT.get("only"):
        def st_nowait(name):
            q = list(e.lq)
            stamp(name)
        STAMP[0] = st_nowait
    p3_phase(e, tail3, [side_e, side], None)
    side_e.emit(e, 0, flush=True)
    side.emit(e, 0, flush=True)
    stamp("p3_done")
    e.nop(6)
    side = Side()
    for (x, gap) in p3_epilogue_items(e, 1, [64, 68, 72, 76, 80, 84, 88, 92]):
        side.add(x, gap=gap)
    side.emit(e, 0, flush=True)
    stamp("epi")
    doneq = f"L_{label}_fin"
    RT = dict(X=S_X, WS=S_WS, WR=S_WR, W=sW, RING=sRING, SL=sSL, RDY=sRDY, DBG=sDBG, M=100, G=sG, TB=sTB,
              T=[42, 43, 44, 45, 46, 47, 60, 61, 62, 63, 64, 65, 66, 67], done=doneq,
              spin=OPT.get("spin", 4000), fused=OPT.get("fused"), NCNT=(256 if OPT.get("fused") else 32),
              stamp=(stamp if OPT.get("tailstamps") else (lambda n: None)), opt=OPT)
    if OPT.get("fused"):
        moe.moe_tail(e, RT)
    elif not OPT.get("nomoe"):
        e(f"""
        s_cmp_ge_u32 s2, 224
        s_cbranch_scc1 {doneq}
        s_nop 1
        """)
        moe.moe_tail(e, RT)
    e(f"{doneq}:")
    stamp("end")
    if stamps and OPT.get("dbgstamps"):
        e.wait_all()
        e(f"""
        v_mov_b32 v58, 16
        v_mov_b32 v59, s{sTS + 16}
        v_mov_b32 v60, 20
        s_not_b32 s{sT0}, s{sTS}
        v_mov_b32 v61, s{sT0}
        v_cmp_eq_u32 vcc, 0, v{vLANE}
        s_nop 0
        s_and_saveexec_b64 s[{sMASK}:{sMASK + 1}], vcc
        global_atomic_umax v58, v59, s[{sDBG}:{sDBG + 1}] sc1
        global_atomic_umax v60, v61, s[{sDBG}:{sDBG + 1}] sc1
        s_or_b32 s{sT0}, s2, s{sW}
        s_cmp_lg_u32 s{sT0}, 0
        s_cbranch_scc1 L_dbg_skip
        """)
        for k in range(1, 9):
            e(f"s_sub_u32 s{sT0}, s{sTS + 2 * k}, s{sTS}")
            e(f"v_mov_b32 v59, s{sT0}")
            e(f"v_mov_b32 v58, {24 + 4 * (k - 1)}")
            e(f"global_store_dword v58, v59, s[{sDBG}:{sDBG + 1}]")
            e("s_nop 1")
        e("L_dbg_skip:")
        e(f"s_mov_b64 exec, s[{sMASK}:{sMASK + 1}]")
    elif stamps:
        e.wait_all()
        e(f"""
        s_lshl_b32 s{sT0}, s2, 2
        s_add_u32 s{sT0}, s{sT0}, s{sW}
        s_lshl_b32 s{sT0}, s{sT0}, 7
        s_add_u32 s{sT0}, s{sT0}, {WS_TS}
        v_mov_b32 v58, s{sT0}
        v_cmp_eq_u32 vcc, 0, v{vLANE}
        s_nop 0
        s_and_saveexec_b64 s[{sMASK}:{sMASK + 1}], vcc
        """)
        for i in range(0, 20, 4):
            for q in range(4):
                e(f"v_mov_b32 v{60 + q}, s{min(sTS + i + q, sTS + 17)}")
            e(f"buffer_store_dwordx4 v[60:63], v58, s[{S_WS}:{S_WS + 3}], 0 offen offset:{i * 4}")
            e("s_nop 1")
        e(f"s_mov_b64 exec, s[{sMASK}:{sMASK + 1}]")
    e(f"s_branch {done}")
    e("L_fallback:")
    e(f"""
    s_barrier
    s_lshl_b32 s{sKO}, s{sKVT}, 14
    v_mov_b32 v{vKR}, v31
    v_mov_b32 v{vL}, 0xff800000
    v_mov_b32 v{vL + 2}, 0xff800000
    v_subrev_u32 v{vKR}, {SLOT}, v{vKR}
    s_mov_b32 s{sTRIP}, 0
    """)
    for s16 in range(1, 8):
        e(f"v_xor_b32 v{vKR + s16}, {32 * s16}, v{vKR}")
    e("L_fb_loop:")
    e("s_waitcnt vmcnt(0) lgkmcnt(0)")
    e("s_barrier")
    e.vq, e.lq = [], []
    serial(e, kv_dma(e, "K", 0, ("fbk", 0)))
    e.wait_all()
    e("s_barrier")
    for kb in range(2):
        for s16 in range(8):
            e(f"ds_read_b128 {Fbuf(s16)}, v{vKR + s16} offset:{kb * 49152}")
        e("s_waitcnt lgkmcnt(0)")
        for s16 in range(8):
            for qb in range(2):
                c = "0" if s16 == 0 else Sreg(0, qb)
                e(f"v_mfma_f32_32x32x16_bf16 {Sreg(0, qb)}, {Fbuf(s16)}, {Qreg(s16, qb)}, {c}")
        e.nop(16)
        for qb in range(2):
            m = vL + 2 * qb
            for i in range(0, 16, 2):
                e(f"v_max3_f32 v{m}, v{m}, {Sreg(0, qb, i)}, {Sreg(0, qb, i + 1)}")
    e(f"""
    s_add_u32 s{sTRIP}, s{sTRIP}, 1
    s_cmp_lt_u32 s{sTRIP}, 8
    s_cbranch_scc1 L_fb_loop
    v_mov_b32 v{vL + 1}, v{vL}
    v_mov_b32 v{vL + 3}, v{vL + 2}
    s_nop 1
    v_permlane32_swap_b32 v{vL}, v{vL + 1}
    v_permlane32_swap_b32 v{vL + 2}, v{vL + 3}
    s_nop 0
    v_max_f32 v{vL}, v{vL}, v{vL + 1}
    v_max_f32 v{vL + 2}, v{vL + 2}, v{vL + 3}
    """)
    for qb in range(2):
        for i in range(16):
            e(f"v_sub_f32 v{vNM + 16 * qb + i}, 0, v{vL + 2 * qb}")
    e(f"""
    s_barrier
    s_lshl_b32 s{sKO}, s{sKVT}, 14
    s_mov_b32 s{sVO}, s{sKO}
    s_lshl_b32 s{sWOO}, s{sSK}, 15
    v_mov_b32 v{vKR}, v31
    v_mov_b32 v{vVR}, v63
    s_mov_b32 s{sPASS}, 1
    """)
    for s16 in range(1, 8):
        e(f"v_xor_b32 v{vKR + s16}, {32 * s16}, v{vKR}")
    for db in range(1, 4):
        e(f"v_xor_b32 v{vVR + db}, {64 * db}, v{vVR}")
    for (which, slot) in (("K", 1), ("V", 1), ("K", 2), ("V", 2), ("K", 0)):
        serial(e, kv_dma(e, which, slot, ("fbp", 0)))
    for i in range(4):
        e(f"v_mov_b32 v{vL + i}, 0")
        e(f"v_mov_b32 v{vGA + i}, v{vKDM + i}")
        e(f"v_mov_b32 v{vGB + i}, v{vVDM}")
    for i in range(128):
        e(f"v_accvgpr_write_b32 a{128 + i}, 0")
    e("s_branch L_p2_start")
    e(f"{done}:")
    e("s_endpgm")
    e("L_kend:")
    sp = check_scc(e.l)
    if sp:
        print("\n".join(sp))
        raise SystemExit("scc")
    probs = check_hazards(e.l, "k1")
    if probs and not any(k.startswith("no") for k in OPT):
        print("\n".join(probs[:40]))
        raise SystemExit("hazards")
    return e.text()
```

```python
from emit import E, check_hazards, check_scc
from asmlib import KA

RB = 65536
WSTR = 24576
SLOT = 8192
C_SCALE = 1.4426950408889634 * (128 ** -0.5)

WS_PART = 0
WS_R = 16 << 20
WS_STAT = WS_R + 8192
WS_H = WS_R + 65536
WS_IDX = WS_H + 32768
WS_FLG = WS_R + 32768
WS_TS = 32 << 20


def f2u(x):
    import struct
    return struct.unpack("<I", struct.pack("<f", x))[0]


S_X, S_WQ, S_K, S_V, S_WO, S_WS, S_WR = 4, 8, 12, 16, 20, 24, 28
sG, sTB, sW, sSK = 32, 33, 34, 35
sWQO, sWOO, sKO, sVO = 36, 37, 38, 39
sRING = 40
sCNT = 41
sT0, sT1, sT2, sT3 = 42, 43, 44, 45
sKSL, sVSL = 46, 47
sKD, sVD = 48, 49
sTRIP = 50
sGA = 52
sGB = 56
sGAO, sGBO = 60, 61
sGAM, sGBM = 62, 63
sMASK = 64
sPASS = 70
sKVB = 71
sKVT = 51
sDBG = 72
sSL = 98
sRDY = 99
sFP = 92
sHFD = 70
sTS = 74

vLANE = 0
vWQ = 1
vWO = 5
vKDM = 9
vVDM = 13
vAA = 14
vAB = 22
vBR = 30
vKR = 32
vVR = 40
vGA = 44
vGB = 48
vL = 52
vOW = 56
vPS = 57
vT = 58
vQ = 64
vS = 128
vP = 192
vNM = 224
vACC = 128

aA = 0
aB = 96
aF = 0
aO = 128


def rng(f, b, n):
    return f"{f}[{b}:{b + n - 1}]" if n > 1 else f"{f}{b}"


def Bset(setidx, tq):
    if setidx < 2:
        return rng("a", aB + setidx * 16 + tq * 4, 4)
    return rng("v", 64 + tq * 4, 4)


def Aset(setidx, dt):
    return rng("a", aA + setidx * 32 + dt * 4, 4)


def Ahalf(setidx, dt, rd):
    return rng("a", aA + setidx * 32 + dt * 4 + 2 * rd, 2)


def acc16(dt, tq):
    return rng("v", vACC + (dt * 4 + tq) * 4, 4)


OPT = {}
STAMP = [None]
GSTAMP = [None]
P3_STATIC = [False]
NS3 = 5


class Slots:
    def __init__(self, n):
        self.n = n
        self.f = [[] for _ in range(n + 1)]

    def at(self, i, fn):
        self.f[min(max(i, 0), self.n)].append(fn)


def loop_align(e):
    a = OPT.get("align", 0)
    if a:
        e.l.append(f".p2align {a}")
    for _ in range(OPT.get("shift", 0)):
        e("s_nop 0")


class Side:
    def __init__(self):
        self.q = []
        self.last = None

    def add(self, x, gap=0, cond=None):
        self.q.append((x, gap, cond))

    def states_since(self, e):
        if self.last is None:
            return 99
        n = 0
        for l in e.l[self.last:]:
            t = l.strip()
            if t.endswith(":") or not t:
                continue
            n += int(t.split()[1], 0) + 1 if t.startswith("s_nop") else 1
        return n

    def emit(self, e, budget, pos=None, flush=False):
        while self.q and (budget > 0 or flush):
            x, gap, cond = self.q[0]
            if cond is not None and pos is not None and pos < cond and not flush:
                return
            have = self.states_since(e)
            if have < gap:
                if not flush:
                    return
                e.nop(gap - have)
            self.q.pop(0)
            if callable(x):
                x()
            else:
                e(x)
            self.last = len(e.l)
            budget -= 1


def gemm_step(e, p, phase, opts):
    j = p % 3
    jn = (p + 1) % 3
    va = vAA if phase == 1 else vAB
    rdoff = 1024 if phase == 1 else 2048
    sl = Slots(32)
    if opts.get("next", True):
        reads = []
        for dt in range(8):
            for rd in range(2):
                reads.append((dt, rd))
        spread = OPT.get("aspread", 16)
        for n, (dt, rd) in enumerate(reads):
            def f(dt=dt, rd=rd):
                if OPT.get("noaread"):
                    return
                e.lds(f"ds_read_b64_tr_b16 {Ahalf(jn, dt, rd)}, v{va + dt} offset:{jn * SLOT + rd * rdoff}",
                      ("A", p + 1, dt))
            sl.at(n * spread // 16, f)
        for tq in range(4):
            def f(tq=tq):
                e.lds(f"ds_read_b128 {Bset(jn, tq)}, v{vBR} offset:{opts['boff_next'] + tq * 1024}", ("B", p + 1, tq))
            sl.at(spread + tq, f)
    for pos, fn in opts.get("fill", []):
        sl.at(pos, fn)
    if opts.get("next", True):
        e.need(vtags=opts.get("vneed"))
    for n in range(32):
        dt, tq = n // 4, n % 4
        need = [("A", p, dt), ("B", p, tq)] + ([("B", p, 3), ("A", p, 7)] if n == 0 else [])
        e.need(ltags=need)
        c = "0" if opts.get("first") else acc16(dt, tq)
        e(f"v_mfma_f32_16x16x32_bf16 {acc16(dt, tq)}, {Aset(j, dt)}, {Bset(j, tq)}, {c}")
        for fn in sl.f[n]:
            fn()
        side = opts.get("side")
        if side is not None:
            side.emit(e, opts.get("cap", 2) - len(sl.f[n]), pos=(p, n))
    for fn in sl.f[32]:
        fn()


def wdma(e, phase, i, tag):
    if OPT.get("nodma") and tag[1] > 3:
        e.vq.append(tag)
        return
    if phase == 1:
        e.vm(f"buffer_load_dwordx4 v{vWQ + i}, s[{S_WQ}:{S_WQ + 3}], s{sWQO} offen offset:{i * 1024} lds", tag)
    else:
        e.vm(f"buffer_load_dwordx4 v{vWO + i}, s[{S_WO}:{S_WO + 3}], s{sWOO} offen offset:{i * 1024} lds", tag)


def wdma_adv(e, phase):
    if phase == 1:
        e(f"s_add_u32 s{sWQO}, s{sWQO}, {16 * 8192}")
        e(f"s_and_b32 s{sWQO}, s{sWQO}, {512 * 8192 - 1}")
    else:
        e(f"s_add_u32 s{sT0}, s{sWOO}, {16 * 1024}")
        e(f"s_and_b32 s{sT0}, s{sT0}, {512 * 1024 - 1}")
        e(f"s_and_b32 s{sWOO}, s{sWOO}, {~(512 * 1024 - 1) & 0xffffffff}")
        e(f"s_or_b32 s{sWOO}, s{sWOO}, s{sT0}")


def half_dma(e, phase, slot, half, tag):
    def m0():
        e(f"s_add_u32 m0, s{sRING}, {slot * SLOT + half * 4096}")
    out = [m0]
    for i in range(4):
        out.append(lambda i=i: wdma(e, phase, i, tag))
    out.append(lambda: wdma_adv(e, phase))
    return out


def serial(e, fl):
    fl[0]()
    e("s_nop 0")
    for fn in fl[1:]:
        fn()


def place(fl, start, stride):
    res = [(start, fl[0])]
    for i in range(4):
        res.append((start + 1 + i * stride, fl[1 + i]))
    res.append((start + 1 + 3 * stride, fl[5]))
    return res


def kv_dma(e, which, tile_slot, tag):
    out = []
    if which == "K":
        out.append(lambda: e(f"s_add_u32 m0, s{sRING}, {tile_slot * SLOT}"))
        for i in range(4):
            out.append(lambda i=i: e.vm(
                f"buffer_load_dwordx4 v{vKDM + i}, s[{S_K}:{S_K + 3}], s{sKO} offen offset:{i * 1024} lds", tag))
        out.append(lambda: kv_adv(e, sKO))
    else:
        out.append(lambda: e(f"s_add_u32 m0, s{sRING}, {tile_slot * SLOT + 4096}"))
        for i in range(4):
            out.append(lambda i=i: e.vm(
                f"buffer_load_dwordx4 v{vVDM}, s[{S_V}:{S_V + 3}], s{sVO} offen offset:{i * 1024} lds", tag))
        out.append(lambda: kv_adv(e, sVO))
    return out


def kv_adv(e, sreg):
    e(f"s_add_u32 s{sreg}, s{sreg}, 16384")
    e(f"s_and_b32 s{sreg}, s{sreg}, {8 * 16384 - 1}")


def gemm_pre(e, phase):
    va = vAA if phase == 1 else vAB
    rdoff = 1024 if phase == 1 else 2048
    e.need(vtags=[("W", 0, 0), ("W", 0, 1)])
    for tq in range(4):
        e.lds(f"ds_read_b128 {Bset(0, tq)}, v{vBR} offset:{tq * 1024}", ("B", 0, tq))
    for dt in range(8):
        for rd in range(2):
            e.lds(f"ds_read_b64_tr_b16 {Ahalf(0, dt, rd)}, v{va + dt} offset:{rd * rdoff}", ("A", 0, dt))


def gemm_main(e, phase, tail_fill, side=None, side_steps=range(10, 16)):
    e.need(ltags=[("A", 0, 7)])
    serial(e, half_dma(e, phase, 0, 0, ("W", 3, 0)))

    def step_opts(p, boff_next):
        fill = []
        sp = OPT.get("aspread", 16)
        if p + 3 <= 15:
            fl = half_dma(e, phase, p % 3, 1, ("W", p + 3, 1))
            fill += [(0, fl[0])] + [(2 + 4 * i, fl[1 + i]) for i in range(4)] + [(sp + 4, fl[5])]
        if p + 4 <= 15:
            fl = half_dma(e, phase, (p + 1) % 3, 0, ("W", p + 4, 0))

            def guard(p=p):
                e.need(ltags=[("A", p + 1, 7)])
            fill += [(sp + 5, guard), (sp + 5, fl[0])] + [(min(sp + 6 + 3 * i, 31), fl[1 + i]) for i in range(4)] + [(32, fl[5])]
        return dict(first=(p == 0), next=(p < 15), boff_next=boff_next, fill=fill,
                    vneed=[("W", p + 1, 0), ("W", p + 1, 1)])

    if GSTAMP[0]:
        GSTAMP[0]("p1_pre")
    o = step_opts(0, 1 * 4096)
    gemm_step(e, 0, phase, o)
    if GSTAMP[0]:
        GSTAMP[0]("p1_s0")
    lab = f"L_g{phase}_loop"
    e(f"s_mov_b32 s{sCNT}, 3")
    e(f"v_add_u32 v{vBR}, {1 * 4096}, v{vBR}")
    lq0, vq0 = list(e.lq), list(e.vq)
    loop_align(e)
    e(f"{lab}:")
    n0 = len(e.l)
    for u in range(3):
        p = 1 + u
        o = step_opts(p, (u + 1) * 4096)
        if u == 2:
            o["fill"] = o["fill"] + [(24, lambda: e(f"v_add_u32 v{vBR}, {3 * 4096}, v{vBR}")),
                                     (32, lambda: e(f"s_sub_u32 s{sCNT}, s{sCNT}, 1")),
                                     (32, lambda: e(f"s_cmp_lg_u32 s{sCNT}, 0"))]
        gemm_step(e, p, phase, o)
    e(f"s_cbranch_scc1 {lab}")
    body = e.l[n0:]
    probs = check_hazards(body + body, f"gemm{phase} loop x2")
    assert not probs or any(k.startswith("no") for k in OPT), "\n".join(probs[:10])
    sh = lambda q, d: [(t[0], t[1] + d) + tuple(t[2:]) if t else t for t in q]
    assert sh(lq0, 3) == e.lq or OPT.get('noaread'), (lq0, e.lq)
    assert sh(vq0, 3) == e.vq, (vq0, e.vq)
    e.lq, e.vq = sh(e.lq, 6), sh(e.vq, 6)
    for p in range(10, 16):
        if GSTAMP[0] and p in (10, 13):
            GSTAMP[0](f"p1_s{p}")
        o = step_opts(p, (p - 10 + 1) * 4096)
        o["fill"] = o["fill"] + tail_fill(p)
        o["side"] = side if p in side_steps else None
        o["cap"] = OPT.get("sidecap", 2)
        gemm_step(e, p, phase, o)


def acc3(hf, nt, tq):
    return rng("v", vACC + 64 * hf + (nt * 4 + tq) * 4, 4)


def A3(st, nt, rd=None):
    b = st * 16 + nt * 4
    return rng("a", b, 4) if rd is None else rng("a", b + 2 * rd, 2)


def B3(st, tq):
    return rng("a", 48 + st * 16 + tq * 4, 4)


def p3_dma(e, u):
    out = [lambda: e(f"s_add_u32 m0, s{sRING}, {(u % NS3) * 4096}")]
    for i in range(4):
        out.append(lambda i=i: e.vm(
            f"buffer_load_dwordx4 v{vWO + i}, s[{S_WO}:{S_WO + 3}], s{sWOO} offen offset:{i * 1024} lds", ("W", u)))

    def adv():
        p3_adv(e)
        if u == 9 and not OPT.get("p3unroll", 1):
            e(f"s_add_u32 s{sWOO}, s{sWOO}, s{sHFD}")
    out.append(adv)
    return out


def p3_adv(e):
    e(f"s_add_u32 s{sWOO}, s{sWOO}, {32 * 1024}")
    e(f"s_and_b32 s{sWOO}, s{sWOO}, {512 * 1024 - 1}")


def p3_reads(e, u, boff):
    st = u % 3
    r = []
    for nt in range(4):
        for rd in range(2):
            r.append(lambda nt=nt, rd=rd: e.lds(
                f"ds_read_b64_tr_b16 {A3(st, nt, rd)}, v{vAB + nt} offset:{(u % NS3) * 4096 + rd * 1024}", ("A", u, nt)))
    for tq in range(4):
        r.append(lambda tq=tq: e.lds(f"ds_read_b128 {B3(st, tq)}, v{vBR} offset:{boff + tq * 1024}", ("B", u, tq)))
    return r


def p3_step(e, u, boff_next, fill=(), side=None, cap=2):
    hf, st = u >> 4, u % 3
    sl = Slots(16)
    nxt = u < 31
    if nxt:
        rd = p3_reads(e, u + 1, boff_next)
        for n in range(8):
            sl.at(n, rd[n])
        for tq in range(4):
            sl.at(8 + tq, rd[8 + tq])
    if u + NS3 <= 31:
        fl = p3_dma(e, u + NS3)
        sl.at(0, fl[0])
        for i, pos in enumerate((2, 6, 12, 14)):
            sl.at(pos, fl[1 + i])
        sl.at(15, fl[5])
    for pos, fn in fill:
        sl.at(pos, fn)
    if nxt:
        e.need(vtags=[("W", u + 1)])
    for n in range(16):
        nt, tq = n // 4, n % 4
        e.need(ltags=[("A", u, nt), ("B", u, tq)] + ([("B", u, 3), ("A", u, 3)] if n == 0 else []))
        c = "0" if (u & 15) == 0 else acc3(hf, nt, tq)
        e(f"v_mfma_f32_16x16x32_bf16 {acc3(hf, nt, tq)}, {A3(st, nt)}, {B3(st, tq)}, {c}")
        for fn in sl.f[n]:
            fn()
        if side is not None:
            left = cap - len(sl.f[n])
            for sd in side:
                n0 = len(sd.q)
                sd.emit(e, left, pos=(u, n))
                left -= n0 - len(sd.q)
    for fn in sl.f[16]:
        fn()


def p3_epilogue_items(e, hf, regs):
    items = []
    k = 0
    for nt in range(4):
        for qb in range(2):
            R = regs[k % len(regs)]
            k += 1
            a0 = vACC + 64 * hf + (nt * 4 + 2 * qb) * 4
            a1 = a0 + 4
            items.append((f"v_cvt_pk_bf16_f32 v{R}, v{a0}, v{a0 + 1}", 2))
            items.append((f"v_cvt_pk_bf16_f32 v{R + 1}, v{a0 + 2}, v{a0 + 3}", 0))
            items.append((f"v_cvt_pk_bf16_f32 v{R + 2}, v{a1}, v{a1 + 1}", 0))
            items.append((f"v_cvt_pk_bf16_f32 v{R + 3}, v{a1 + 2}, v{a1 + 3}", 0))
            items.append((f"v_permlane16_swap_b32 v{R}, v{R + 2}", 2))
            items.append((f"v_permlane16_swap_b32 v{R + 1}, v{R + 3}", 1))
            off = (nt & 1) * 2048 + qb * 1024
            so = {(0, 0): "0", (0, 1): "s48", (1, 0): "s49", (1, 1): "s50"}[(hf, nt >> 1)]
            items.append((lambda R=R, off=off, nt=nt, qb=qb, so=so: e.vm(
                f"buffer_store_dwordx4 {rng('v', R, 4)}, v{vPS}, s[{S_WS}:{S_WS + 3}], {so} offen offset:{off} "
                + OPT.get("pstore", "sc1"), ("ps", hf, nt, qb)), 0))
    return items


def p3_loop_half0(e):
    p3_step(e, 0, 4096)
    e(f"s_mov_b32 s{sCNT}, 2")
    e(f"s_mov_b32 s{sHFD}, 0")
    e(f"v_add_u32 v{vBR}, {1 * 4096}, v{vBR}")
    lq0, vq0 = list(e.lq), list(e.vq)
    e("L_p3_loop:")
    n0 = len(e.l)
    for k in range(6):
        u = 1 + k
        fill = []
        if k == 5:
            fill = [(13, lambda: e(f"v_add_u32 v{vBR}, {6 * 4096}, v{vBR}")),
                    (15, lambda: e(f"s_mov_b32 s{sHFD}, 512")),
                    (15, lambda: e(f"s_sub_u32 s{sCNT}, s{sCNT}, 1")),
                    (15, lambda: e(f"s_cmp_lg_u32 s{sCNT}, 0"))]
        p3_step(e, u, (k + 1) * 4096, fill=fill)
    e("s_cbranch_scc1 L_p3_loop")
    body = e.l[n0:]
    probs = check_hazards(body + body, "p3 loop x2")
    assert not probs, "\n".join(probs[:10])
    sh = lambda q, d: [(t[0], t[1] + d) + tuple(t[2:]) if t else t for t in q]
    assert sh(lq0, 6) == e.lq, (lq0, e.lq)
    assert sh(vq0, 6) == e.vq, (vq0, e.vq)
    e.lq, e.vq = sh(e.lq, 6), sh(e.vq, 6)
    for u in range(13, 16):
        boff = (u - 13 + 1) * 4096 if u < 15 else -13 * 4096
        if u == 15:
            fill = [(0, lambda: e(f"v_subrev_u32 v{vBR}, {13 * 4096}, v{vBR}"))]
            p3_step(e, u, 0, fill=fill)
        else:
            p3_step(e, u, boff)


def p3_phase(e, tail_fill, side0, side1):
    if STAMP[0]:
        STAMP[0]("p3_start")
    if OPT.get("p3unroll", 1):
        cap = OPT.get("sidecap", 2)
        for u in range(16):
            fill = []
            if u == 15 - NS3:
                fill = [(16, lambda: e(f"s_add_u32 s{sWOO}, s{sWOO}, 512"))]
            P3_STATIC[0] = True
            p3_step(e, u, ((u + 1) & 15) * 4096, fill=fill, side=side0, cap=cap)
    else:
        p3_loop_half0(e)
    for u in range(16, 32):
        p = u & 15
        if STAMP[0] and u in (16, 24):
            STAMP[0](f"p3_u{u}")
        p3_step(e, u, ((p + 1) & 15) * 4096, fill=tail_fill(u), side=side0, cap=OPT.get("sidecap", 2))


def Sreg(par, qb, i=None):
    b = vS + par * 32 + qb * 16
    return rng("v", b, 16) if i is None else f"v{b + i}"


def Preg(par, qb, t):
    return rng("v", vP + par * 16 + qb * 8 + t * 4, 4)


def Qreg(s16, qb):
    return rng("v", vQ + (s16 * 2 + qb) * 4, 4)


def Oreg(db, qb):
    return rng("a", aO + (db * 2 + qb) * 16, 16)


def Fbuf(n, half=None):
    b = aF + (n % 8) * 4
    return rng("a", b, 4) if half is None else rng("a", b + 2 * half, 2)


def k_read(e, b, s16):
    if OPT.get("nokvread"):
        return
    e.lds(f"ds_read_b128 {Fbuf(s16)}, v{vKR + s16} offset:{(b & 1) * 49152}", ("K", b, s16))


def v_read(e, b, f, order=None):
    t, db = (order or VORD_T)[f]
    if OPT.get("nokvread"):
        return
    for rd in range(2):
        e.lds(f"ds_read_b64_tr_b16 {Fbuf(8 + f, rd)}, v{vVR + db} offset:{t * WSTR + rd * 2048}", ("V", b, f))


def sm_ops(e, b):
    par = b & 1
    ops = []
    S = lambda x: Sreg(par, x // 16, x % 16)
    exp = lambda x: (lambda: e(f"v_exp_f32 {S(x)}, {S(x)}") if not OPT.get("noexp") else None)
    add = lambda x: (lambda: e(f"v_add_f32 v{vL + (x // 16) * 2 + (x & 1)}, v{vL + (x // 16) * 2 + (x & 1)}, {S(x)}"))
    cvt = lambda k: (lambda: e(f"v_cvt_pk_bf16_f32 v{vP + par * 16 + k}, {S(2 * k)}, {S(2 * k + 1)}"))
    if OPT.get("nosm"):
        return []
    for k in range(16):
        ops.append((2 * k, exp(2 * k)))
        if k > 0:
            ops.append((2 * k, add(2 * k - 2)))
            ops.append((2 * k, cvt(k - 1)))
        ops.append((2 * k + 1, exp(2 * k + 1)))
        if k > 0:
            ops.append((2 * k + 1, add(2 * k - 1)))
    ops.append((32, add(30)))
    ops.append((32, add(31)))
    ops.append((32, cvt(15)))
    return ops


def sm_queue(e, b):
    par = b & 1
    S = lambda x: Sreg(par, x // 16, x % 16)
    exp = lambda x: (8, lambda: e(f"v_exp_f32 {S(x)}, {S(x)}"))
    add = lambda x: (4, lambda: e(f"v_add_f32 v{vL + (x // 16) * 2 + (x & 1)}, v{vL + (x // 16) * 2 + (x & 1)}, {S(x)}"))
    cvt = lambda k: (4, lambda: e(f"v_cvt_pk_bf16_f32 v{vP + par * 16 + k}, {S(2 * k)}, {S(2 * k + 1)}"))
    q = []
    if OPT.get("dotsum"):
        dot = lambda k: (OPT["dotsum"], lambda: e(f"v_dot2_f32_bf16 v{vL + (k // 8) * 2 + (k & 1)}, v{vP + par * 16 + k}, s67, v{vL + (k // 8) * 2 + (k & 1)}"))
        for k in range(32):
            q.append(exp(k))
            if k >= 2 and k % 2 == 0:
                q.append(cvt(k // 2 - 1))
            if k >= 3 and k % 2 == 1:
                q.append(dot((k - 1) // 2 - 1))
        q.append((4, lambda: e("s_nop 0")))
        q.append(cvt(15))
        q.append((4, lambda: e("s_nop 0")))
        q.append(dot(15))
        return q
    for k in range(32):
        q.append(exp(k))
        if k >= 1:
            q.append(add(k - 1))
        if k >= 2 and k % 2 == 0:
            q.append(cvt(k // 2 - 1))
    q.append(add(31))
    q.append(cvt(15))
    return q


VORD_T = [(f // 4, f % 4) for f in range(8)]
VORD_D = [(f % 2, f // 2) for f in range(8)]


def p2_iter(e, b, qk=True, sm=True, pv=True, look="K", fill=(), vpre=False, smstart=0, vord=VORD_T, vord_next=VORD_T,
            side=None, cap=5):
    mf = []
    if qk:
        par = (b + 1) & 1
        for s16 in range(8):
            for qb in range(2):
                c = rng("v", vNM + qb * 16, 16) if s16 == 0 else Sreg(par, qb)
                mf.append((f"v_mfma_f32_32x32x16_bf16 {Sreg(par, qb)}, {Fbuf(s16)}, {Qreg(s16, qb)}, {c}",
                           ("K", b + 1, s16), s16))
    if pv:
        par = (b - 1) & 1
        for f in range(8):
            t, db = vord[f]
            for qb in range(2):
                mf.append((f"v_mfma_f32_32x32x16_bf16 {Oreg(db, qb)}, {Fbuf(8 + f)}, {Preg(par, qb, t)}, {Oreg(db, qb)}",
                           ("V", b - 1, f), 8 + f))
    n = len(mf)
    sl = Slots(n)
    if qk and pv:
        for f in range(4, 8):
            sl.at(2 * (f - 4) + 1, lambda f=f: k_read(e, b + 1, f))
        for f in range(8):
            fn = lambda f=f: v_read(e, b - 1, f)
            fn.ninstr = 2
            sl.at(2 * (f + 4) + 1, fn)
        if look == "K":
            for f in range(4):
                sl.at(24 + 2 * f + 1, lambda f=f: k_read(e, b + 2, f))
    elif qk:
        for f in range(4, 8):
            sl.at(2 * (f - 4) + 1, lambda f=f: k_read(e, b + 1, f))
        if look == "K":
            for f in range(4):
                sl.at(8 + 2 * f + 1, lambda f=f: k_read(e, b + 2, f))
    else:
        if vpre:
            for f in range(4):
                v_read(e, b - 1, f, vord)
        for f in range(4, 8):
            sl.at(2 * (f - 4) + 1, lambda f=f: v_read(e, b - 1, f, vord))
        if look == "V":
            for f in range(4):
                sl.at(8 + 2 * f + 1, lambda f=f: v_read(e, b, f, vord_next))
    if OPT.get("greedy", 1) and n == 32 and sm:
        B = OPT.get("budget", 24)
        cost = [4 * sum(2 if False else 1 for _ in sl.f[i]) for i in range(n)]
        for i in range(n):
            cost[i] = 0
            for fn in sl.f[i]:
                cost[i] += 4 * getattr(fn, "ninstr", 1)
            if (i + 1) % 4 == 0:
                cost[i] += 4
        q = sm_queue(e, b)
        tot = sum(c for c, _ in q)
        ex = sorted(enumerate(fill), key=lambda t: (t[1][0], t[0]))
        ex = [(pos, fn) for _, (pos, fn) in ex]
        done = 0
        for i in range(n):
            left = B - cost[i]
            need = tot * (i + 1) / n
            while q and done < need and q[0][0] <= left + (4 if done + 12 < need else 0):
                c, fn = q.pop(0)
                sl.at(i, fn)
                left -= c
                done += c
            while ex and ex[0][0] <= i and (left >= 4 * getattr(ex[0][1], "ninstr", 1) or ex[0][0] + 3 <= i):
                pos, fn = ex.pop(0)
                sl.at(i, fn)
                left -= 4 * getattr(fn, "ninstr", 1)
            while q and q[0][0] <= left and done < need + 16:
                c, fn = q.pop(0)
                sl.at(i, fn)
                left -= c
                done += c
        for c, fn in q:
            sl.at(n, fn)
        for pos, fn in ex:
            sl.at(n, fn)
    else:
        if sm:
            ops = sm_ops(e, b)
            for (s, fn) in ops:
                sl.at(smstart + s * (n - smstart) // 32 if s < 32 else n, fn)
        for (s, fn) in fill:
            sl.at(s, fn)
    if vpre and sm:
        pass
    for i, (txt, tag, fi) in enumerate(mf):
        if i % 4 == 0:
            tags = [tag]
            if i + 2 < n:
                tags.append(mf[i + 2][1])
            e.need(ltags=tags)
        e(txt)
        for fn in sl.f[i]:
            fn()
        if side is not None:
            side.emit(e, cap - len(sl.f[i]), pos=(b, i))
    for fn in sl.f[n]:
        fn()


def gen_k1(label, stamps=False, debug=None, opt=None):
    OPT.clear()
    OPT.update(opt or {})
    STAMP[0] = None
    GSTAMP[0] = None
    e = E()
    nst = [0]

    def stamp(name, wait=True):
        if not stamps:
            return
        if OPT.get("only") and name not in OPT["only"]:
            return
        k = nst[0]
        assert k < 9
        e(f"{stamps} s[{sTS + 2 * k}:{sTS + 2 * k + 1}]   ; stamp {k} {name}")
        if wait:
            e.wait_all(vm=False)
        nst[0] += 1
    done = f"L_{label}_done"
    ipf_text = ""
    if OPT.get("ipf"):
        nb = OPT["ipf"]
        ipf_text = f"""
    L_kbase:
    s_getpc_b64 s[{sT0}:{sT0 + 1}]
    s_lshr_b32 s{sT2}, s2, 3
    s_and_b32 s{sT2}, s{sT2}, {nb - 1}
    s_lshl_b32 s{sT2}, s{sT2}, 12
    v_lshlrev_b32 v200, 4, v0
    v_add_u32 v200, s{sT2}, v200
    v_min_u32 v200, (L_kend - L_kbase - 32) & 0xfffffff0, v200
    global_load_dwordx4 v[200:203], v200, s[{sT0}:{sT0 + 1}]
    """
        e.vq.append(("ipf", 0))
    e(f"""
    s_cmp_ge_u32 s2, 256
    s_cbranch_scc1 {done}
    {ipf_text}
    s_load_dwordx2 s[4:5], s[0:1], 0
    s_load_dwordx2 s[12:13], s[0:1], 8
    s_load_dwordx2 s[16:17], s[0:1], 16
    s_load_dwordx2 s[8:9], s[0:1], 24
    s_load_dwordx2 s[20:21], s[0:1], {KA['wo']}
    s_load_dwordx2 s[28:29], s[0:1], {KA['wr']}
    s_load_dwordx2 s[24:25], s[0:1], {KA['ws']}
    s_load_dwordx2 s[{sDBG}:{sDBG + 1}], s[0:1], {KA['dbg']}
    s_load_dwordx4 s[{sFP}:{sFP + 3}], s[0:1], {KA['wg']}
    s_load_dwordx2 s[{sFP + 4}:{sFP + 5}], s[0:1], {KA['wd']}
    """)
    stamp("start", wait=False)
    e(f"""
    v_lshrrev_b32 v{vT}, 6, v0
    v_and_b32 v{vLANE}, 63, v0
    v_readfirstlane_b32 s{sW}, v{vT}
    """)
    mp = OPT.get("map", "A")
    if mp == "A":
        e(f"""
        s_and_b32 s{sG}, s2, 7
        s_lshr_b32 s{sTB}, s2, 3
        s_and_b32 s{sSK}, s{sTB}, 15
        s_and_b32 s{sKVT}, s{sTB}, 7
        """)
    elif mp == "B":
        e(f"""
        s_and_b32 s{sT0}, s2, 3
        s_lshl_b32 s{sT0}, s{sT0}, 1
        s_bfe_u32 s{sT1}, s2, {3 | (1 << 16)}
        s_or_b32 s{sG}, s{sT0}, s{sT1}
        s_bfe_u32 s{sT0}, s2, {2 | (1 << 16)}
        s_lshl_b32 s{sT0}, s{sT0}, 4
        s_lshr_b32 s{sT1}, s2, 4
        s_or_b32 s{sTB}, s{sT0}, s{sT1}
        s_and_b32 s{sSK}, s{sTB}, 7
        s_lshl_b32 s{sSK}, s{sSK}, 1
        s_and_b32 s{sKVT}, s{sTB}, 7
        """)
    elif mp == "C":
        e(f"""
        s_and_b32 s{sT0}, s2, 1
        s_lshl_b32 s{sT0}, s{sT0}, 2
        s_bfe_u32 s{sT1}, s2, {3 | (2 << 16)}
        s_or_b32 s{sG}, s{sT0}, s{sT1}
        s_bfe_u32 s{sT0}, s2, {1 | (2 << 16)}
        s_lshl_b32 s{sT0}, s{sT0}, 3
        s_lshr_b32 s{sT1}, s2, 5
        s_or_b32 s{sTB}, s{sT0}, s{sT1}
        s_and_b32 s{sSK}, s{sTB}, 7
        s_lshl_b32 s{sSK}, s{sSK}, 1
        s_and_b32 s{sKVT}, s{sTB}, 7
        """)
        if OPT.get("s4"):
            e(f"""
            s_and_b32 s{sSK}, s{sTB}, 3
            s_lshl_b32 s{sSK}, s{sSK}, 2
            """)
        if OPT.get("gskew"):
            e(f"""
            s_and_b32 s{sT0}, s{sG}, 3
            s_lshl_b32 s{sT0}, s{sT0}, 2
            s_add_u32 s{sSK}, s{sSK}, s{sT0}
            s_and_b32 s{sSK}, s{sSK}, 15
            """)
    L = vLANE
    t0, t1, t2, t3, t4, t5 = vT, vT + 1, vT + 2, vT + 3, vT + 4, vT + 5
    XV0, XV1 = 56, 57
    e(f"""
    v_and_b32 v{t2}, 15, v{L}
    v_lshrrev_b32 v{t3}, 4, v{L}
    s_lshl_b32 s{sT0}, s{sTB}, 6
    s_lshl_b32 s{sT1}, s{sW}, 4
    s_add_u32 s{sT0}, s{sT0}, s{sT1}
    v_lshrrev_b32 v{t0}, 3, v{L}
    v_add_u32 v{t0}, s{sT0}, v{t0}
    v_and_b32 v{t1}, 7, v{L}
    v_xor_b32 v{t1}, v{t1}, v{t3}
    v_lshlrev_b32 v{t1}, 4, v{t1}
    v_lshl_add_u32 v{XV0}, v{t0}, 10, v{t1}
    v_xor_b32 v{XV1}, 64, v{XV0}              ; chunk ^ 4
    v_add_u32 v{XV1}, 8192, v{XV1}            ; +8 tokens
    s_mul_i32 s{sRING}, s{sW}, {WSTR}
    s_add_u32 s{sRING}, s{sRING}, {RB}
    s_lshl_b32 s{sT3}, s{sW}, 10              ; w*1024
    s_lshl_b32 s101, s{sSK}, 6
    s_waitcnt lgkmcnt(0)
    """)
    for (dst, size) in [(S_X, 2097152), (S_K, 4194304), (S_V, 4194304), (S_WQ, 4194304),
                        (S_WO, 4194304), (S_WR, 1024), (S_WS, 0x10000000)]:
        e(f"""
        s_mov_b32 s{dst + 2}, {size}
        s_mov_b32 s{dst + 3}, 0x20000
        """)
    stamp("kernarg", wait=True)
    def xdma(u):
        for hb in range(2):
            e(f"s_add_u32 m0, s{sT3}, {(2 * u + hb) * 4096}")
            e("s_nop 0")
            e.vm(f"buffer_load_dwordx4 v{XV0 + hb}, s[{S_X}:{S_X + 3}], s101 offen lds", ("x", u, hb))
        e(f"s_add_u32 s101, s101, 128")
        e(f"s_and_b32 s101, s101, 1023")

    def wrdma():
        e(f"""
        s_lshl_b32 s{sT0}, s{sSK}, 2
        v_add_u32 v58, s{sT0}, v{L}
        v_and_b32 v58, 63, v58
        v_lshlrev_b32 v58, 4, v58
        s_add_u32 m0, s{sRING}, {2 * SLOT + 4096}
        s_nop 0
        """)
        e.vm(f"buffer_load_dwordx4 v58, s[{S_WR}:{S_WR + 3}], 0 offen lds", ("wr", 0))
    NU0 = OPT.get("nu0", 6)
    for u in range(NU0):
        xdma(u)
    e(f"""
    s_lshl_b32 s{sT0}, s{sG}, 2
    s_add_u32 s{sT0}, s{sT0}, s{sW}
    s_lshl_b32 s{sT0}, s{sT0}, 8            ; head*256
    v_lshlrev_b32 v{t4}, 1, v{t3}
    v_xor_b32 v{t4}, v{t4}, v{t2}
    v_lshlrev_b32 v{t5}, 13, v{t3}           ; rr*8192
    v_add_u32 v{t5}, s{sT0}, v{t5}
    v_lshl_add_u32 v{vWQ}, v{t4}, 4, v{t5}
    v_add_u32 v{vWQ + 1}, {32768 - 1024}, v{vWQ}
    v_xor_b32 v{t4}, 8, v{t4}
    v_lshl_add_u32 v{vWQ + 2}, v{t4}, 4, v{t5}
    v_add_u32 v{vWQ + 2}, {2 * (32768 - 1024)}, v{vWQ + 2}
    v_add_u32 v{vWQ + 3}, {32768 - 1024}, v{vWQ + 2}
    s_lshl_b32 s{sWQO}, s{sSK}, 18
    """)
    wq_pre = []
    for p in range(3):
        for h in range(2):
            fl = half_dma(e, 1, p, h, ("W", p, h))
            for i in range(4):
                grp = []
                if i == 0:
                    grp += [fl[0], lambda: e("s_nop 0")]
                grp.append(fl[1 + i])
                if i == 3:
                    grp.append(fl[5])
                wq_pre.append(grp)
    if OPT.get("early_dma", 0):
        for grp in wq_pre[:OPT["early_dma"]]:
            for fn in grp:
                fn()
        wq_pre = wq_pre[OPT["early_dma"]:]


    r_, c_ = 60, 61
    A0, A1, A2, A3, A4, A5 = 128, 129, 130, 131, 132, 133
    e(f"""
    v_bfe_u32 v{A0}, v{L}, 2, 2              ; r
    v_and_b32 v{A1}, 3, v{L}                 ; c
    v_lshrrev_b32 v{A2}, 4, v{L}             ; q4
    v_and_b32 v{A3}, 1, v{A2}
    v_lshl_or_b32 v{A3}, v{A3}, 2, v{A0}     ; phi
    v_lshlrev_b32 v{A3}, 1, v{A3}            ; f
    v_lshrrev_b32 v{A4}, 1, v{A1}
    v_xor_b32 v{A3}, v{A3}, v{A4}            ; chunk
    v_lshlrev_b32 v{A3}, 4, v{A3}
    v_and_b32 v{A4}, 1, v{A1}
    v_lshl_or_b32 v{A3}, v{A4}, 3, v{A3}     ; + (c&1)*8
    v_lshl_add_u32 v{A4}, v{A2}, 3, v{A0}    ; row
    v_lshl_add_u32 v{A3}, v{A4}, 8, v{A3}
    v_add_u32 v{vAA}, s{sRING}, v{A3}
    """)
    for dt in range(1, 8):
        e(f"v_xor_b32 v{vAA + dt}, {32 * dt}, v{vAA}")
    e(f"""
    v_and_b32 v{A3}, 1, v{A2}
    v_lshl_or_b32 v{A4}, v{A3}, 2, v{A0}     ; 4(q4&1) + r
    v_lshrrev_b32 v{A3}, 1, v{A4}            ; psi
    v_lshrrev_b32 v{A5}, 1, v{A2}
    v_lshl_or_b32 v{A4}, v{A5}, 4, v{A4}     ; row
    v_lshlrev_b32 v{A3}, 1, v{A3}
    v_lshrrev_b32 v{A5}, 1, v{A1}
    v_xor_b32 v{A3}, v{A3}, v{A5}            ; chunk
    v_lshlrev_b32 v{A3}, 4, v{A3}
    v_and_b32 v{A5}, 1, v{A1}
    v_lshl_or_b32 v{A3}, v{A5}, 3, v{A3}
    v_lshl_add_u32 v{A3}, v{A4}, 7, v{A3}
    v_add_u32 v{vAB}, s{sRING}, v{A3}
    """)
    for dt in range(1, 4):
        e(f"v_xor_b32 v{vAB + dt}, {32 * dt}, v{vAB}")
    e(f"""
    v_lshlrev_b32 v{vBR}, 4, v{L}            ; B read: X + l*16
    v_lshrrev_b32 v{A3}, 3, v{L}             ; row8
    v_lshrrev_b32 v{A4}, 1, v{A3}
    v_and_b32 v{A4}, 3, v{A4}
    v_lshlrev_b32 v{A4}, 1, v{A4}
    v_and_b32 v{A5}, 7, v{L}
    v_xor_b32 v{A4}, v{A4}, v{A5}
    v_lshlrev_b32 v{A4}, 4, v{A4}
    v_lshl_add_u32 v{A4}, v{A3}, 10, v{A4}
    s_lshl_b32 s{sT0}, s{sW}, 7
    v_add_u32 v{vWO}, s{sT0}, v{A4}
    v_add_u32 v{vWO + 1}, 7168, v{vWO}
    v_add_u32 v{vWO + 2}, {2 * 7168}, v{vWO}
    v_add_u32 v{vWO + 3}, {3 * 7168}, v{vWO}
    v_and_b32 v{A3}, 15, v{L}
    s_lshl_b32 s{sWOO}, s{sSK}, 15
    v_xor_b32 v{A4}, v{A2}, v{A3}            ; (l&15)^rr
    v_lshlrev_b32 v{A5}, 8, v{A2}
    v_lshl_add_u32 v{vKDM}, v{A4}, 4, v{A5}
    v_xor_b32 v{vKDM + 1}, 64, v{vKDM}
    v_xor_b32 v{vKDM + 2}, 128, v{vKDM}
    v_xor_b32 v{vKDM + 3}, 192, v{vKDM}
    v_lshlrev_b32 v{A4}, 2, v{A2}
    v_xor_b32 v{A4}, v{A4}, v{A3}
    v_lshl_add_u32 v{vVDM}, v{A4}, 4, v{A5}
    v_lshrrev_b32 v{A4}, 5, v{L}             ; h
    v_xor_b32 v{A4}, v{A4}, v{A3}
    v_lshlrev_b32 v{A4}, 4, v{A4}
    v_lshl_add_u32 v{A4}, v{A3}, 8, v{A4}
    v_and_b32 v{A5}, 1, v{A2}
    v_mul_u32_u24 v{A5}, {WSTR}, v{A5}
    v_add_u32 v{A4}, v{A4}, v{A5}
    v_add_u32 v{vKR}, {RB + 1 * SLOT}, v{A4}
    """)
    for s16 in range(1, 8):
        e(f"v_xor_b32 v{vKR + s16}, {32 * s16}, v{vKR}")
    e(f"""
    v_and_b32 v{A4}, 1, v{A2}
    v_lshlrev_b32 v{A4}, 1, v{A4}
    v_lshrrev_b32 v{A5}, 1, v{A1}
    v_or_b32 v{A4}, v{A4}, v{A5}
    v_lshlrev_b32 v{A5}, 2, v{A0}
    v_xor_b32 v{A4}, v{A4}, v{A5}
    v_lshlrev_b32 v{A4}, 4, v{A4}
    v_and_b32 v{A5}, 1, v{A1}
    v_lshl_or_b32 v{A4}, v{A5}, 3, v{A4}
    v_lshrrev_b32 v{A5}, 5, v{L}
    v_lshl_add_u32 v{A5}, v{A5}, 2, v{A0}    ; 4h + r
    v_lshl_add_u32 v{A4}, v{A5}, 8, v{A4}
    v_add_u32 v{vVR}, {RB + 4096 + 1 * SLOT}, v{A4}
    """)
    for db in range(1, 4):
        e(f"v_xor_b32 v{vVR + db}, {64 * db}, v{vVR}")
    e(f"""
    """)
    for u in range(NU0, 8):
        xdma(u)
    wrdma()
    if OPT.get("tlb"):
        T = OPT["tlb"]
        e(f"""
        v_lshlrev_b32 v58, 21, v{L}
        s_lshl_b32 s{sT0}, s{sTB}, 16
        v_add_u32 v58, s{sT0}, v58
        v_cmp_gt_u32 vcc, 9, v{L}
        v_mov_b32 v59, 0x7ffffff0
        s_nop 0
        v_cndmask_b32 v58, v59, v58, vcc
        """)
        e.vm(f"buffer_load_dword a96, v58, s[{S_WS}:{S_WS + 3}], 0 offen", ("tlb", 0))
        if "o" in T and not stamps:
            e(f"""
            s_load_dwordx2 s[88:89], s[0:1], {KA['out']}
            s_mov_b32 s90, 2097152
            s_mov_b32 s91, 0x20000
            s_lshl_b32 s{sT0}, s{sTB}, 16
            v_lshlrev_b32 v58, 10, v{L}
            v_add_u32 v58, s{sT0}, v58
            s_waitcnt lgkmcnt(0)
            """)
            e.vm(f"buffer_load_dword a97, v58, s[88:91], 0 offen", ("tlb", 4))
        if "w" in T:
            e(f"""
            v_lshlrev_b32 v58, 16, v{L}
            """)
            e.vm(f"buffer_load_dword a97, v58, s[{S_WO}:{S_WO + 3}], 0 offen", ("tlb", 1))
            e.vm(f"buffer_load_dword a98, v58, s[{S_K}:{S_K + 3}], 0 offen", ("tlb", 2))
            e.vm(f"buffer_load_dword a99, v58, s[{S_V}:{S_V + 3}], 0 offen", ("tlb", 3))
    e(f"""
    v_lshlrev_b32 v{vOW}, 4, v{A3}
    v_lshrrev_b32 v{A4}, 5, v{L}
    v_lshl_add_u32 v{vOW}, v{A4}, 8, v{vOW}
    v_and_b32 v{A4}, 1, v{A2}
    v_lshl_add_u32 v{vOW}, v{A4}, 10, v{vOW}
    """)
    e(f"""
    s_lshl_b32 s{sT0}, s{sG}, 5
    s_add_u32 s{sT0}, s{sT0}, s{sTB}
    s_lshl_b32 s{sT0}, s{sT0}, 3
    s_add_u32 s{sT0}, s{sT0}, s{sW}
    s_lshl_b32 s{sT0}, s{sT0}, 13
    v_lshlrev_b32 v{vPS}, 4, v{L}
    v_add_u32 v{vPS}, s{sT0}, v{vPS}
    s_lshl_b32 s{sKVB}, s{sG}, 19
    s_lshl_b32 s{sT0}, s{sW}, 12
    s_add_u32 s{sKVB}, s{sKVB}, s{sT0}
    s_add_u32 s{sKVB}, s{sKVB}, {1536 * 256}
    s_add_u32 s{S_K}, s{S_K}, s{sKVB}
    s_addc_u32 s{S_K + 1}, s{S_K + 1}, 0
    s_add_u32 s{S_V}, s{S_V}, s{sKVB}
    s_addc_u32 s{S_V + 1}, s{S_V + 1}, 0
    s_sub_u32 s{S_K + 2}, {131072}, s{sT0}
    s_mov_b32 s{S_V + 2}, s{S_K + 2}
    s_lshl_b32 s{sT0}, s{sG}, 19
    s_add_u32 s{S_WO}, s{S_WO}, s{sT0}
    s_addc_u32 s{S_WO + 1}, s{S_WO + 1}, 0
    s_mov_b32 s{S_WO + 2}, 524288
    s_lshl_b32 s{sKO}, s{sKVT}, 14
    s_mov_b32 s{sVO}, s{sKO}
    v_cmp_eq_u32 s[{sMASK}:{sMASK + 1}], 1, v{A1}
    v_cmp_eq_u32 s[{sMASK + 2}:{sMASK + 3}], 2, v{A1}
    v_cmp_eq_u32 s[{sMASK + 4}:{sMASK + 5}], 3, v{A1}
    v_cmp_eq_u32 s[98:99], v{A2}, v{A0}
    """)
    e(f"v_mov_b32 v{A5}, 0x3f803f80")
    for i in range(4):
        e(f"v_accvgpr_write_b32 a{64 + i}, v{A5}")
    e(f"s_mov_b32 s100, 0xffff0000")
    e("s_nop 0")
    SUM, GRM = 68, 72
    e(f"""
    v_and_b32 v58, 15, v{L}                  ; tok16
    v_lshrrev_b32 v59, 4, v{L}               ; q4
    v_bfe_u32 v60, v58, 1, 3                 ; swz
    v_xor_b32 v59, v59, v60
    v_lshlrev_b32 v59, 4, v59
    v_and_b32 v60, 7, v58
    v_lshl_add_u32 v59, v60, 7, v59
    v_lshrrev_b32 v60, 3, v58
    v_lshl_add_u32 v59, v60, 12, v59
    v_add_u32 v62, s{sT3}, v59
    v_xor_b32 v63, 64, v62
    """)

    for i in range(192, 256):
        e(f"v_accvgpr_write_b32 a{i}, 0")

    def stat_frag(p):
        e.need(ltags=[("xr", p)])
        xf = rng("v", vQ + 4 * p, 4)
        c1 = "0" if p == 0 else rng("a", SUM, 4)
        c2 = "0" if p == 0 else rng("a", GRM, 4)
        e(f"v_mfma_f32_16x16x32_bf16 {rng('a', SUM, 4)}, a[64:67], {xf}, {c1}")
        e(f"v_mfma_f32_16x16x32_bf16 {rng('a', GRM, 4)}, {xf}, {xf}, {c2}")
        for i in range(4):
            src = vQ + 4 * p + i
            dst = 128 + 8 * p + 2 * i
            e(f"v_lshlrev_b32 v{dst}, 16, v{src}")
            e(f"v_and_b32 v{dst + 1}, s100, v{src}")

    for u in range(8):
        e.need(vtags=[("x", u, 1)])
        for par in range(2):
            e.lds(f"ds_read_b128 {rng('v', vQ + 4 * (2 * u + par), 4)}, v{62 + par} offset:{u * 8192}", ("xr", 2 * u + par))
        sched = OPT.get("dma_sched") or [2 if uu >= OPT.get("dma_from", 0) else 0 for uu in range(8)]
        for k in range(sched[u]):
            if len(wq_pre) > 4:
                for fn in wq_pre.pop(0):
                    fn()
        if u > 0:
            stat_frag(2 * u - 2)
            stat_frag(2 * u - 1)
    e.need(vtags=[("wr", 0)])
    e(f"""
    v_lshrrev_b32 v58, 4, v{L}
    v_lshlrev_b32 v58, 4, v58
    v_add_u32 v58, s{sRING}, v58
    """)
    for p in range(16):
        e.lds(f"ds_read_b128 {rng('a', 128 + 4 * p, 4)}, v58 offset:{2 * SLOT + 4096 + p * 64}", ("wrf", p))
    stat_frag(14)
    stat_frag(15)
    e.nop(6)
    if not OPT.get("tailstamps") and not OPT.get("p3stamps"):
        stamp("x15_stats")
    s1, s2_, u0, u1, u2, u3 = 58, 59, 60, 61, 62, 63
    e(f"""
    v_accvgpr_read_b32 v{s1}, a{SUM}
    v_accvgpr_read_b32 v{u0}, a{GRM}
    v_accvgpr_read_b32 v{u1}, a{GRM + 1}
    v_accvgpr_read_b32 v{u2}, a{GRM + 2}
    v_accvgpr_read_b32 v{u3}, a{GRM + 3}
    v_cndmask_b32 v{u0}, v{u0}, v{u1}, s[{sMASK}:{sMASK + 1}]
    v_cndmask_b32 v{u0}, v{u0}, v{u2}, s[{sMASK + 2}:{sMASK + 3}]
    v_cndmask_b32 v{u0}, v{u0}, v{u3}, s[{sMASK + 4}:{sMASK + 5}]
    v_cndmask_b32 v{u0}, 0, v{u0}, s[98:99]
    v_mov_b32 v{u1}, v{u0}
    s_nop 1
    v_permlane32_swap_b32 v{u0}, v{u1}
    s_nop 0
    v_add_f32 v{u0}, v{u0}, v{u1}
    v_mov_b32 v{u1}, v{u0}
    s_nop 1
    v_permlane16_swap_b32 v{u0}, v{u1}
    s_nop 0
    v_add_f32 v{s2_}, v{u0}, v{u1}
    v_mul_f32 v{s1}, {hex(f2u(1.0 / 512))}, v{s1}     ; mean
    v_mul_f32 v{s2_}, {hex(f2u(1.0 / 512))}, v{s2_}
    v_fma_f32 v{s2_}, -v{s1}, v{s1}, v{s2_}      ; var
    v_max_f32 v{s2_}, 0, v{s2_}
    v_cvt_pk_bf16_f32 v{u0}, v{s1}, v{s2_}
    v_and_b32 v{u1}, s100, v{u0}
    v_add_f32 v{u1}, {hex(f2u(1e-5))}, v{u1}
    v_cvt_pk_bf16_f32 v{u1}, v{u1}, v{u1}
    v_and_b32 v{u1}, s100, v{u1}
    v_sqrt_f32 v{u1}, v{u1}
    v_lshlrev_b32 v{s1}, 16, v{u0}             ; mean_b f32
    v_cvt_pk_bf16_f32 v{u1}, v{u1}, v{u1}
    v_and_b32 v{u2}, s100, v{u1}                ; sd_b f32
    v_rcp_f32 v{u3}, v{u2}
    v_and_b32 v{u0}, 0xffff, v{u0}
    v_or_b32 v31, v{u0}, v{u2}
    v_mul_f32 v{u3}, {hex(f2u(C_SCALE))}, v{u3}     ; rsc
    v_mul_f32 v{u2}, v{s1}, v{u3}
    v_sub_f32 v{u2}, 0, v{u2}
    """)
    e(f"""
    v_mov_b32 v60, v{u3}
    v_mov_b32 v61, v{u3}
    v_mov_b32 v63, v{u2}
    """)
    e(f"""
    s_lshl_b32 s{sT0}, s{sW}, 10
    v_add_u32 v{s1}, s{sT0}, v{vBR}
    """)
    for p in range(16):
        for i in range(4):
            src = 128 + 8 * p + 2 * i
            e(f"v_pk_fma_f32 v[{src}:{src + 1}], v[{src}:{src + 1}], v[60:61], v[62:63]")
        for i in range(4):
            src = 128 + 8 * p + 2 * i
            e(f"v_cvt_pk_bf16_f32 v{vQ + 4 * p + i}, v{src}, v{src + 1}")
        e.lds(f"ds_write_b128 v{s1}, {rng('v', vQ + 4 * p, 4)} offset:{p * 4096}", ("xw", p))
        if len(wq_pre) > OPT.get("w2late", 0) and p % OPT.get("dma_norm", 2) == 0 and not OPT.get("dma_late"):
            if len(wq_pre) <= 4:
                e.need(ltags=[("wrf", 15)])
            for fn in wq_pre.pop(0):
                fn()
    e.need(ltags=[("wrf", 15)])
    while len(wq_pre) > OPT.get("w2late", 0):
        for fn in wq_pre.pop(0):
            fn()
    e.need(ltags=[("xw", 15)])
    e("s_barrier")
    if not OPT.get("tailstamps") and not OPT.get("p3stamps"):
        stamp("ln_done")
    gemm_pre(e, 1)
    while wq_pre:
        for fn in wq_pre.pop(0):
            fn()
    for p in range(16):
        c = "0" if p == 0 else "a[76:79]"
        e(f"v_mfma_f32_16x16x32_bf16 a[76:79], {rng('a', 128 + 4 * p, 4)}, {rng('v', vQ + 4 * p, 4)}, {c}")
    e.nop(8)
    e(f"""
    v_accvgpr_read_b32 v58, a76
    v_mul_f32 v58, {hex(f2u(1.0 / C_SCALE))}, v58
    v_cvt_pk_bf16_f32 v58, v58, v58
    v_and_b32 v59, s100, v58
    v_ashrrev_i32 v58, 31, v59
    v_or_b32 v58, 0x80000000, v58
    v_xor_b32 v59, v59, v58                  ; monotone map
    s_lshl_b32 s{sT0}, s{sTB}, 6
    s_lshl_b32 s{sT1}, s{sW}, 4
    s_add_u32 s{sT0}, s{sT0}, s{sT1}
    s_sub_u32 s{sT0}, 2047, s{sT0}
    v_and_b32 v58, 15, v{vLANE}
    v_sub_u32 v58, s{sT0}, v58               ; 2047 - token
    v_and_or_b32 v59, v59, s100, v58
    """)

    def lines(txt):
        return [t.strip() for t in txt.strip().split("\n") if t.strip()]

    st13 = lines(f"""
    s_add_u32 s{sGA}, s{S_WS}, {WS_R} | s_addc_u32 s{sGA + 1}, s{S_WS + 1}, 0
    s_mov_b32 s{sGA + 2}, 8192
    s_mov_b32 s{sGA + 3}, 0x20000
    s_add_u32 s{sGB}, s{S_WS}, {WS_STAT} | s_addc_u32 s{sGB + 1}, s{S_WS + 1}, 0
    s_mov_b32 s{sGB + 2}, 8192
    s_mov_b32 s{sGB + 3}, 0x20000
    s_lshl_b32 s{sT2}, s{sTB}, 6
    s_lshl_b32 s{sT1}, s{sW}, 4
    s_add_u32 s{sT2}, s{sT2}, s{sT1}
    v_add_u32 v58, s{sT2}, v{vLANE}
    v_lshlrev_b32 v58, 2, v58
    v_cmp_gt_u32 vcc, 16, v{vLANE}
    s_cmp_eq_u32 s{sG}, 0 | s_cselect_b64 s[{sMASK}:{sMASK + 1}], -1, 0
    v_mov_b32 v60, 0x7ffffff0
    s_and_b64 vcc, vcc, s[{sMASK}:{sMASK + 1}]
    v_cndmask_b32 v58, v60, v58, vcc
    """)
    st13 = [(x, None) for x in st13]
    st13.append((f"buffer_store_dword v59, v58, s[{sGA}:{sGA + 3}], 0 offen sc1", ("st", 0)))
    st13.append((f"buffer_store_dword v31, v58, s[{sGB}:{sGB + 3}], 0 offen sc1", ("st", 1)))
    if OPT.get("fused"):
        st13 += [(x, None) for x in lines(f"""
        s_lshl_b32 s{sT2}, s{sTB}, 3
        s_add_u32 s{sT2}, s{sT2}, s{sG}
        s_lshl_b32 s{sT2}, s{sT2}, 2
        s_add_u32 s{sT2}, s{sT2}, {WS_FLG}
        s_cmp_eq_u32 s{sW}, 0 | s_cselect_b32 s{sT2}, s{sT2}, 0x7fff0000
        v_lshlrev_b32 v58, 10, v{vLANE}
        v_add_u32 v58, s{sT2}, v58
        v_mov_b32 v60, 0x7fff0000
        v_cmp_gt_u32 vcc, 9, v{vLANE}
        v_mov_b32 v61, 0
        s_nop 0
        v_cndmask_b32 v58, v60, v58, vcc
        """)]
        st13.append((f"buffer_store_dword v61, v58, s[{S_WS}:{S_WS + 3}], 0 offen sc1", ("st", 2)))
    st14 = [f"v_mov_b32 v{vL + i}, 0" for i in range(4)]
    for i in range(4):
        st14 += [f"v_mov_b32 v{vGA + i}, v{vKDM + i}", f"v_mov_b32 v{vGB + i}, v{vVDM}"]
    st14 += lines(f"""
    s_mov_b32 s{sPASS}, 0
    v_mov_b32 v31, v{vKR}
    v_mov_b32 v63, v{vVR}
    s_min_u32 s{sSL}, s2, 223
    s_lshl_b32 s{sT2}, s{sW}, 7
    v_add_u32 v3, s{sT2}, v{vLANE}
    v_mul_u32_u24 v3, 3584, v3
    s_lshl_b32 s{sT2}, s{sSL}, 4
    v_add_u32 v3, s{sT2}, v3
    v_lshrrev_b32 v4, 4, v{vLANE}
    v_lshlrev_b32 v4, 10, v4
    v_and_b32 v2, 15, v{vLANE}
    v_lshl_add_u32 v4, v2, 4, v4
    s_lshl_b32 s{sT2}, s{sSL}, 13
    s_lshl_b32 s{sT1}, s{sW}, 8
    s_add_u32 s{sT2}, s{sT2}, s{sT1}
    v_add_u32 v4, s{sT2}, v4
    """)

    def emit_item(x, tag):
        def f():
            for part in x.split(" | "):
                if tag is not None:
                    e.vm(part, tag)
                else:
                    e(part)
        return f

    def tail1(p):
        f = []

        def guard(pp):
            return lambda: e.need(ltags=[("A", pp + 1, 7)])
        if p == 12:
            f += [(21, guard(12))] + place(kv_dma(e, "K", 1, ("KV", 0, "K")), 21, 3)
        if p == 13:
            f += place(kv_dma(e, "V", 1, ("KV", 0, "V")), 1, 4)
            f += [(21, guard(13))] + place(kv_dma(e, "K", 2, ("KV", 1, "K")), 21, 3)
        if p == 14:
            f += place(kv_dma(e, "V", 2, ("KV", 1, "V")), 1, 4)
            f += [(21, guard(14))] + place(kv_dma(e, "K", 0, ("KV", 2, "K")), 21, 3)
        if p == 13:
            for n, (x, tag) in enumerate(st13):
                f.append((n * 31 // len(st13), emit_item(x, tag)))
        if p == 14:
            for n, x in enumerate(st14):
                f.append((n * 31 // len(st14), emit_item(x, None)))
        return f

    qside = Side()
    for dt in range(8):
        first = True
        for qb in range(2):
            R = vQ + (dt * 2 + qb) * 4
            a0 = vACC + (dt * 4 + 2 * qb) * 4
            a1 = a0 + 4
            qside.add(f"v_cvt_pk_bf16_f32 v{R}, v{a0}, v{a0 + 1}", cond=((15, 4 * dt + 8) if first else None))
            first = False
            qside.add(f"v_cvt_pk_bf16_f32 v{R + 1}, v{a0 + 2}, v{a0 + 3}")
            qside.add(f"v_cvt_pk_bf16_f32 v{R + 2}, v{a1}, v{a1 + 1}")
            qside.add(f"v_cvt_pk_bf16_f32 v{R + 3}, v{a1 + 2}, v{a1 + 3}")
        for qb in range(2):
            R = vQ + (dt * 2 + qb) * 4
            qside.add(f"v_permlane16_swap_b32 v{R}, v{R + 2}", gap=(0 if qb == 0 else 0))
            qside.add(f"v_permlane16_swap_b32 v{R + 1}, v{R + 3}", gap=(1 if qb == 1 else 0))
    if OPT.get("only"):
        def gs(name):
            lq = list(e.lq)
            stamp(name)
            if name in OPT["only"]:
                e.lq = lq
        GSTAMP[0] = gs
    gemm_main(e, 1, tail1, side=qside, side_steps=(15,))
    if not OPT.get("tailstamps") and not OPT.get("p3stamps"):
        stamp("p1_done")
    e.nop(8)
    qside.emit(e, 0, flush=True)
    for i in range(32):
        e(f"v_mov_b32 v{vNM + i}, 0")
    if OPT.get("only"):
        stamp("q_conv")
    e(f"L_p2_start:")
    e(f"""
    s_mov_b32 s{sGA}, s{S_K}
    s_mov_b32 s{sGA + 1}, s{S_K + 1}
    s_mov_b32 s{sGA + 2}, s{S_K + 2}
    s_mov_b32 s{sGB}, s{S_V}
    s_mov_b32 s{sGB + 1}, s{S_V + 1}
    s_mov_b32 s{sGB + 2}, s{S_V + 2}
    s_mov_b32 s{sKSL}, {2 * SLOT}
    s_mov_b32 s{sVSL}, {1 * SLOT}
    s_mov_b32 s{sTRIP}, 1
    s_add_u32 s{sGAM}, s{sRING}, {1 * SLOT}
    s_add_u32 s{sGBM}, s{sRING}, 4096
    s_lshl_b32 s{sGAO}, s{sW}, 13
    s_mov_b32 s{sMASK + 2}, {64 * 3584}
    s_mov_b32 s{S_WQ + 2}, {512 * 1792 * 2}
    """)
    e(f"""
    v_bfe_u32 v61, v{vLANE}, 2, 2               ; r
    v_lshrrev_b32 v59, 4, v{vLANE}              ; q4
    v_lshl_add_u32 v60, v59, 3, v61             ; 8 q4 + r
    v_lshlrev_b32 v60, 4, v60
    v_and_b32 v62, 1, v{vLANE}
    v_lshl_add_u32 v60, v62, 3, v60             ; + (c&1)*8
    v_bfe_u32 v62, v{vLANE}, 1, 1
    v_lshl_add_u32 v60, v62, 11, v60            ; + U
    s_lshl_b32 s{sT0}, s{sW}, 13
    v_add_u32 v60, s{sT0}, v60
    v_and_b32 v59, 1, v59
    v_lshl_add_u32 v61, v59, 2, v61             ; row 0..7
    v_lshlrev_b32 v61, 8, v61
    v_and_b32 v59, 3, v{vLANE}
    v_lshl_add_u32 v61, v59, 3, v61             ; + c*8
    v_add_u32 v61, s{sT0}, v61
    """)
    e.wait_all()
    e("s_barrier")
    for f in range(4):
        k_read(e, 0, f)
    e(f"""
    s_or_b32 s{sT0}, {'0' if OPT.get("fused") else 's%d' % sG}, s{sW}
    s_or_b32 s{sT0}, s{sT0}, s{sPASS}
    s_cmp_lg_u32 s{sT0}, 0
    s_cbranch_scc1 L_nopub
    """)
    if not OPT.get("xnopublish"):
        e(f"""
        v_mov_b32 v58, 0
        v_mov_b32 v59, 1
        v_cmp_eq_u32 vcc, 0, v{vLANE}
        s_nop 0
        s_and_saveexec_b64 s[{sMASK}:{sMASK + 1}], vcc
        global_atomic_add v58, v59, s[{sDBG}:{sDBG + 1}] sc1
        s_mov_b64 exec, s[{sMASK}:{sMASK + 1}]
        """)
    e("L_nopub:")
    if OPT.get("ipf2"):
        e(f"""
        s_getpc_b64 s[{sT0}:{sT0 + 1}]
        L_ipf2:
        s_lshr_b32 s{sT2}, s2, 3
        s_and_b32 s{sT2}, s{sT2}, {OPT["ipf2"] - 1}
        s_lshl_b32 s{sT2}, s{sT2}, 12
        s_lshl_b32 s{sT3}, s{sW}, 10
        s_add_u32 s{sT2}, s{sT2}, s{sT3}
        v_lshlrev_b32 v62, 4, v{vLANE}
        v_add_u32 v62, s{sT2}, v62
        v_min_u32 v62, (L_kend - L_ipf2 - 32) & 0xfffffff0, v62
        """)
        e.vm(f"global_load_dwordx4 a[36:39], v62, s[{sT0}:{sT0 + 1}]", ("ipf", 2))
    p2_iter(e, -1, qk=True, sm=False, pv=False, look="K",
            fill=[(i // 4, lambda i=i: e(f"v_accvgpr_write_b32 a{128 + i}, 0")) for i in range(64)])
    upd = []
    for i in range(8):
        upd.append((i // 4 * 8 + i % 4 if i < 4 else 9 + i, lambda i=i: e(f"v_add_u32 v{vKR + i}, {SLOT}, v{vKR + i}")))
    p2_iter(e, 0, qk=True, sm=True, pv=False, look="K", fill=upd, smstart=5)

    if OPT.get("only"):
        lqs = list(e.lq)
        stamp("p2_preloop")
        e.lq = lqs
    lq0 = list(e.lq)
    loop_align(e)
    e("L_p2_loop:")
    n0 = len(e.l)
    e("s_waitcnt vmcnt(1)")
    e.vq = []
    if not OPT.get("nobar"):
        e("s_barrier")
    D64 = 64 * 3584
    fill = []

    def grp(*lines):
        f = lambda: [e(x) for x in lines]
        f.ninstr = len(lines)
        return f

    def adv2(sreg):
        f = lambda: kv_adv(e, sreg)
        f.ninstr = 2
        return f
    fill.append((0, lambda: e(f"s_mov_b32 m0, s{sGAM}")))
    for i in range(4):
        if not OPT.get("nogdma"):
          fill.append((2 + 4 * i, lambda i=i: e.vm(
            f"buffer_load_dwordx4 v{vGA + i}, s[{sGA}:{sGA + 3}], s{sKO} offen offset:{i * 1024} lds", ("G", 0))))
    fill.append((15, adv2(sKO)))
    fill.append((16, lambda: e(f"s_mov_b32 m0, s{sGBM}")))
    for i in range(4):
        if not OPT.get("nogdma"):
          fill.append((18 + 4 * i, lambda i=i: e.vm(
            f"buffer_load_dwordx4 v{vGB + i}, s[{sGB}:{sGB + 3}], s{sVO} offen offset:{i * 1024} lds", ("G", 1))))
    fill.append((30, adv2(sVO)))
    for db in range(4):
        fill.append((24 + 2 * db, lambda db=db: e(f"v_add_u32 v{vVR + db}, 49152, v{vVR + db}")))
    fill.append((4, grp(f"s_add_u32 s{sT1}, s{sKSL}, {SLOT}", f"s_cmp_eq_u32 s{sT1}, {3 * SLOT}",
                        f"s_cselect_b32 s{sT1}, 0, s{sT1}")))
    fill.append((8, grp(f"s_sub_u32 s{sKD}, s{sT1}, s{sKSL}", f"s_sub_u32 s{sVD}, s{sKSL}, s{sVSL}")))
    fill.append((12, grp(f"s_sub_u32 s{sVD}, s{sVD}, 49152", f"s_mov_b32 s{sVSL}, s{sKSL}", f"s_mov_b32 s{sKSL}, s{sT1}")))
    fill.append((20, grp(f"s_cmp_ge_u32 s{sTRIP}, 3", f"s_cselect_b32 s{S_WQ}, s{sFP + 2}, s{sFP}",
                         f"s_cselect_b32 s{S_WQ + 1}, s{sFP + 3}, s{sFP + 1}")))
    fill.append((22, grp(f"s_bitcmp0_b32 s{sTRIP}, 0", f"s_cselect_b32 s{sGBO}, s{sMASK + 2}, 0")))
    fill.append((24, grp(f"s_cmp_ge_u32 s{sTRIP}, 5", f"s_cselect_b32 s{S_WQ}, s{sFP + 4}, s{S_WQ}",
                         f"s_cselect_b32 s{S_WQ + 1}, s{sFP + 5}, s{S_WQ + 1}")))
    fill.append((26, grp(f"s_cmp_ge_u32 s{sTRIP}, 5", f"s_cselect_b32 s{sGBO}, 0, s{sGBO}",
                         f"s_cselect_b64 s[{sMASK}:{sMASK + 1}], -1, 0")))
    fill.append((28, grp(f"s_cmp_ge_u32 s{sTRIP}, 6", f"s_cselect_b32 s{sGBO}, 4096, s{sGBO}")))
    p2_iter(e, 1, fill=fill)
    fill = []
    for i in range(8):
        fill.append((8 + 2 * i if i >= 4 else 2 * i, lambda i=i: e(f"v_add_u32 v{vKR + i}, s{sKD}, v{vKR + i}")))
    for db in range(4):
        fill.append((24 + 2 * db, lambda db=db: e(f"v_add_u32 v{vVR + db}, s{sVD}, v{vVR + db}")))
    fill.append((1, lambda: e(f"v_cndmask_b32 v1, v3, v4, s[{sMASK}:{sMASK + 1}]")))
    fill.append((2, lambda: e(f"s_mov_b32 m0, s{sGAO}")))
    if not OPT.get("nocdma"):
        def cdma():
            e(f"s_cmp_eq_u32 s{sTRIP}, 7")
            e("s_cbranch_scc1 L_p2_noc")
            e.vm(f"buffer_load_dwordx4 v1, s[{S_WQ}:{S_WQ + 3}], s{sGBO} offen lds", ("C", 0))
            e("L_p2_noc:")
        cdma.ninstr = 3
        fill.append((4, cdma))
    fill.append((6, lambda: e(f"s_add_u32 s{sGAO}, s{sGAO}, 1024")))
    fill.append((10, grp(f"s_add_u32 s{sGAM}, s{sRING}, s{sVSL}", f"s_add_u32 s{sT1}, s{sKSL}, {SLOT}")))
    fill.append((12, grp(f"s_cmp_eq_u32 s{sT1}, {3 * SLOT}", f"s_cselect_b32 s{sT1}, 0, s{sT1}",
                         f"s_add_u32 s{sGBM}, s{sRING}, s{sT1}")))
    fill.append((14, lambda: e(f"s_add_u32 s{sGBM}, s{sGBM}, 4096")))
    fill.append((28, lambda: e(f"s_add_u32 s{sTRIP}, s{sTRIP}, 1")))
    p2_iter(e, 2, fill=fill)
    e(f"""
    s_cmp_lg_u32 s{sTRIP}, 7
    s_cbranch_scc1 L_p2_noswitch
    s_mov_b32 s{sGA}, s{S_WO}
    s_mov_b32 s{sGA + 1}, s{S_WO + 1}
    s_mov_b32 s{sGA + 2}, s{S_WO + 2}
    s_mov_b32 s{sGB}, s{S_WO}
    s_mov_b32 s{sGB + 1}, s{S_WO + 1}
    s_mov_b32 s{sGB + 2}, s{S_WO + 2}
    s_mov_b32 s{sGAM}, s{sRING}
    s_add_u32 s{sGBM}, s{sRING}, 4096
    s_mov_b32 s{sKO}, s{sWOO}
    """)
    p3_adv(e)
    e(f"s_mov_b32 s{sVO}, s{sWOO}")
    p3_adv(e)
    for i in range(4):
        e(f"v_mov_b32 v{vGA + i}, v{vWO + i}")
        e(f"v_mov_b32 v{vGB + i}, v{vWO + i}")
    e("L_p2_noswitch:")
    e(f"s_cmp_lg_u32 s{sTRIP}, 8")
    e("s_cbranch_scc1 L_p2_loop")
    body = e.l[n0:]
    probs = check_hazards(body + body, "p2 loop x2")
    assert not probs or any(k.startswith("no") for k in OPT), "\n".join(probs[:10])
    sh = lambda q, d: [(t[0], t[1] + d) + tuple(t[2:]) if t else t for t in q]
    assert sh(lq0, 2) == e.lq, (lq0, e.lq)
    e.lq = sh(e.lq, 12)
    if OPT.get("only"):
        stamp("p2_loopend")
    e("s_waitcnt vmcnt(8)")
    e.vq = [("W", 0)] * 4 + [("W", 1)] * 4
    for i in range(4):
        for rd in range(2):
            e.lds(f"ds_read_b64_tr_b16 {rng('a', 96 + 4 * i + 2 * rd, 2)}, v60 offset:{i * 512 + rd * 64}", ("fa", i))
    for t in range(8):
        e.lds(f"ds_read_b64_tr_b16 {rng('a', 112 + 2 * t, 2)}, v61 offset:{4096 + t * 32}", ("da", t))
    for f in range(4):
        v_read(e, 14, f, VORD_T)
    e.wait_all(vm=False)
    e("s_barrier")
    if OPT.get("only"):
        stamp("b15_start")
    fill = place(p3_dma(e, 2), 0, 2) + place(p3_dma(e, 3), 8, 2)
    for db in range(4):
        fill.append((7 + db, lambda db=db: e(f"v_add_u32 v{vVR + db}, 49152, v{vVR + db}")))
    e.lq = [t for t in e.lq]
    e(f"v_mov_b32 v62, 0")
    e.vm(f"global_load_dword v2, v62, s[{sDBG}:{sDBG + 1}] sc1", ("cnt", 0))
    p2_iter(e, 15, qk=False, sm=True, pv=True, look="V", fill=fill, vpre=False, vord_next=VORD_D)
    if OPT.get("only"):
        lqs = list(e.lq)
        stamp("b15_end")
        e.lq = lqs
    RL = [58, 60]
    side = Side()
    A = side.add
    A(f"v_add_f32 v{vL}, v{vL}, v{vL + 1}")
    A(f"v_add_f32 v{vL + 2}, v{vL + 2}, v{vL + 3}")
    A(f"v_mov_b32 v{vL + 1}, v{vL}")
    A(f"v_mov_b32 v{vL + 3}, v{vL + 2}")
    A(f"v_permlane32_swap_b32 v{vL}, v{vL + 1}", gap=2)
    A(f"v_permlane32_swap_b32 v{vL + 2}, v{vL + 3}", gap=1)
    A(f"v_add_f32 v{vL}, v{vL}, v{vL + 1}", gap=1)
    A(f"v_add_f32 v{vL + 2}, v{vL + 2}, v{vL + 3}")
    A(f"v_rcp_f32 v{RL[0]}, v{vL}")
    A(f"v_rcp_f32 v{RL[1]}, v{vL + 2}")
    A(f"s_mov_b32 s{sT2}, {hex(f2u(2.0 ** -40))}")
    A(f"s_mov_b32 s{sT3}, {hex(f2u(2.0 ** 40))}")
    A(f"v_cmp_lt_f32 s[{sMASK}:{sMASK + 1}], s{sT2}, v{vL}")
    A(f"v_cmp_gt_f32 s[{sMASK + 2}:{sMASK + 3}], s{sT3}, v{vL}")
    A(f"v_cmp_lt_f32 s[{sMASK + 4}:{sMASK + 5}], s{sT2}, v{vL + 2}")
    A(f"v_cmp_gt_f32 vcc, s{sT3}, v{vL + 2}")
    A(f"s_and_b64 s[{sMASK}:{sMASK + 1}], s[{sMASK}:{sMASK + 1}], s[{sMASK + 2}:{sMASK + 3}]", gap=2)
    A(f"s_and_b64 vcc, vcc, s[{sMASK + 4}:{sMASK + 5}]")
    A(f"s_and_b64 s[{sMASK}:{sMASK + 1}], s[{sMASK}:{sMASK + 1}], vcc")
    for db in range(4):
        wa = 61 + (db & 1)
        A(lambda db=db: [e(x) for x in (f"s_lshl_b32 s{sT1}, s{sW}, 2", f"s_add_u32 s{sT1}, s{sT1}, {db}",
                                        f"s_sub_u32 s{sT1}, s{sT1}, s{sSK}")])
        A(lambda: [e(x) for x in (f"s_and_b32 s{sT1}, s{sT1}, 15", f"s_lshl_b32 s{sT1}, s{sT1}, 12")])
        A(f"v_add_u32 v{wa}, s{sT1}, v{vOW}")
        for qb in range(2):
            src = aO + (db * 2 + qb) * 16
            T = 128 + ((db * 2 + qb) % 4) * 16 if False else 128 + (db * 2 + qb) * 16
            for i in range(16):
                A(f"v_accvgpr_read_b32 v{T + i}, a{src + i}", cond=((16, min(4 * db + 7, 99)) if (i == 0 and qb == 0) else None))
            for i in range(8):
                A(f"v_pk_mul_f32 v[{T + 2 * i}:{T + 2 * i + 1}], v[{T + 2 * i}:{T + 2 * i + 1}], v[{RL[qb]}:{RL[qb] + 1}] op_sel_hi:[1,0]")
            for i in range(8):
                A(f"v_cvt_pk_bf16_f32 v{T + i}, v{T + 2 * i}, v{T + 2 * i + 1}")
            for jp in range(2):
                A(lambda T=T, jp=jp, qb=qb, db=db, wa=wa: e.lds(
                    f"ds_write_b128 v{wa}, {rng('v', T + 4 * jp, 4)} offset:{qb * 2048 + jp * 512}", ("ow", db, qb, jp)))
    p2_iter(e, 16, qk=False, sm=False, pv=True, look=None, vord=VORD_D, side=side, cap=OPT.get("normcap", 5))
    if not OPT.get("tailstamps"):
        stamp("p2_done")
    e.nop(OPT.get("normnop", 10))
    side.emit(e, 0, flush=True)
    if OPT.get("only"):
        stamp("flush_end")
    e(f"""
    s_cmp_eq_u64 s[{sMASK}:{sMASK + 1}], -1
    s_cselect_b32 s{sT2}, 0, 1
    s_cmp_eq_u32 s{sPASS}, 0
    s_cselect_b32 s{sT2}, s{sT2}, 0
    s_cmp_eq_u32 s{sT2}, 0
    s_cbranch_scc1 L_noflag
    s_lshl_b32 s{sT0}, s{sW}, 2
    s_sub_u32 s{sT0}, s{sT0}, s{sSK}
    s_and_b32 s{sT0}, s{sT0}, 15
    s_lshl_b32 s{sT0}, s{sT0}, 12
    v_mov_b32 v58, s{sT0}
    v_mov_b32 v59, -1
    ds_write_b32 v58, v59
    L_noflag:
    """)
    for w_ in range(4):
        e(f"""
        s_sub_u32 s{sT0}, {4 * w_}, s{sSK}
        s_and_b32 s{sT0}, s{sT0}, 15
        s_lshl_b32 s{sT0}, s{sT0}, 12
        v_mov_b32 v{58 + w_}, s{sT0}
        """)
    e(f"""
    s_lshl_b32 s{sT1}, s{sW}, 11
    v_lshlrev_b32 v62, 5, v{vLANE}
    v_add_u32 v62, s{sT1}, v62
    v_add_u32 v62, {WS_R}, v62
    v_lshlrev_b32 v{vBR}, 4, v{vLANE}
    s_mov_b32 s48, 4096
    s_mov_b32 s49, 32768
    s_mov_b32 s50, {32768 + 4096}
    """)
    e.wait_all(vm=False)
    e("s_barrier")
    if OPT.get("only"):
        stamp("b2_bar")
    for w_ in range(4):
        e.lds(f"ds_read_b32 v{58 + w_}, v{58 + w_}", ("mk", w_))
    e.need(vtags=[("W", 0)])
    for fn in p3_reads(e, 0, 0)[8:] + p3_reads(e, 0, 0)[:8]:
        fn()
    serial(e, p3_dma(e, 4))
    e.need(ltags=[("mk", 3)])
    e(f"""
    v_and_b32 v58, v58, v59
    v_and_b32 v60, v60, v61
    v_max_u32 v58, v58, v60
    v_max_u32 v59, v59, v61
    """)
    e.l = e.l[:-4]
    e(f"""
    v_max_u32 v58, v58, v59
    v_max_u32 v60, v60, v61
    v_max_u32 v58, v58, v60
    s_nop 0
    v_readfirstlane_b32 s{sT0}, v58
    s_nop 0
    s_cmp_eq_u32 s{sT0}, -1
    s_cbranch_scc1 L_fallback
    L_p3_start:
    """)
    e.need(vtags=[("cnt", 0)])
    e(f"""
    v_readfirstlane_b32 s{sT0}, v2
    s_nop 0
    s_cmp_ge_u32 s{sT0}, {(256 if OPT.get("fused") else 32) + (1000 if OPT.get("xforceslow") else 0)}
    s_cselect_b32 s{sRDY}, 1, 0
    """)
    e.vm(f"buffer_load_dwordx4 v[88:91], v62, s[{S_WS}:{S_WS + 3}], 0 offen sc1", ("rl", 0))
    e.vm(f"buffer_load_dwordx4 v[92:95], v62, s[{S_WS}:{S_WS + 3}], 0 offen offset:16 sc1", ("rl", 1))
    assert [t for t in e.vq if t[0] == "W"] == [("W", u) for u in range(2, 5) for _ in range(4)], e.vq
    e.vq = [("W", u) for u in range(5) for _ in range(4)]
    import moe

    def tail3(u):
        return []

    def tail3_old(u):
        f = []
        lst = {28: [(S_WQ, 80, 0), (S_WQ, 81, 1024), (S_K, 80, 2048), (S_K, 81, 3072)], 29: [(S_V, 82, 4096), (S_V, 83, 5120)]}
        if u in lst and not OPT.get("nomoe") and not OPT.get("xnofw"):
            f.append((0, lambda u=u: e.need(ltags=[("A", u, 3)])))
            for n, (srd, v, off) in enumerate(lst[u]):
                f.append((1 + 3 * n, lambda off=off: e(f"s_add_u32 m0, s{sRING}, {2 * SLOT + off}")))
                f.append((2 + 3 * n, lambda srd=srd, v=v: e.vm(
                    f"buffer_load_dwordx4 v{v}, s[{srd}:{srd + 3}], 0 offen lds", ("fw", 0))))
        return f
    side_e, side = Side(), Side()
    sp = OPT.get("stspread", 2.0)
    for n, (x, gap) in enumerate(p3_epilogue_items(e, 0, [64, 68, 72, 76])):
        k, r = n // 7, n % 7
        pos = 16 + k * sp
        side_e.add(x, gap=gap, cond=((int(pos), 2 + int((pos % 1) * 16)) if r == 0 else None))
    if not OPT.get("nomoe"):
        moe.moe_side(e, side, dict(W=sW, RING=sRING, RDY=sRDY, M=100, X=S_X, WS=S_WS))
        side.q[0] = (side.q[0][0], side.q[0][1], (OPT.get("moestart", 4) if OPT.get("p3unroll", 1) else 16, 0))
    if OPT.get("p3stamps") or OPT.get("only"):
        def st_nowait(name):
            q = list(e.lq)
            stamp(name)
        STAMP[0] = st_nowait
    p3_phase(e, tail3, [side_e, side], None)
    side_e.emit(e, 0, flush=True)
    side.emit(e, 0, flush=True)
    stamp("p3_done")
    e.nop(6)
    side = Side()
    for (x, gap) in p3_epilogue_items(e, 1, [64, 68, 72, 76, 80, 84, 88, 92]):
        side.add(x, gap=gap)
    side.emit(e, 0, flush=True)
    stamp("epi")
    doneq = f"L_{label}_fin"
    RT = dict(X=S_X, WS=S_WS, WR=S_WR, W=sW, RING=sRING, SL=sSL, RDY=sRDY, DBG=sDBG, M=100, G=sG, TB=sTB,
              T=[42, 43, 44, 45, 46, 47, 60, 61, 62, 63, 64, 65, 66, 67], done=doneq,
              spin=OPT.get("spin", 4000), fused=OPT.get("fused"), NCNT=(256 if OPT.get("fused") else 32),
              stamp=(stamp if OPT.get("tailstamps") else (lambda n: None)), opt=OPT)
    if OPT.get("fused"):
        moe.moe_tail(e, RT)
    elif not OPT.get("nomoe"):
        e(f"""
        s_cmp_ge_u32 s2, 224
        s_cbranch_scc1 {doneq}
        s_nop 1
        """)
        moe.moe_tail(e, RT)
    e(f"{doneq}:")
    stamp("end")
    if stamps and OPT.get("dbgstamps"):
        e.wait_all()
        e(f"""
        v_mov_b32 v58, 16
        v_mov_b32 v59, s{sTS + 16}
        v_mov_b32 v60, 20
        s_not_b32 s{sT0}, s{sTS}
        v_mov_b32 v61, s{sT0}
        v_cmp_eq_u32 vcc, 0, v{vLANE}
        s_nop 0
        s_and_saveexec_b64 s[{sMASK}:{sMASK + 1}], vcc
        global_atomic_umax v58, v59, s[{sDBG}:{sDBG + 1}] sc1
        global_atomic_umax v60, v61, s[{sDBG}:{sDBG + 1}] sc1
        s_or_b32 s{sT0}, s2, s{sW}
        s_cmp_lg_u32 s{sT0}, 0
        s_cbranch_scc1 L_dbg_skip
        """)
        for k in range(1, 9):
            e(f"s_sub_u32 s{sT0}, s{sTS + 2 * k}, s{sTS}")
            e(f"v_mov_b32 v59, s{sT0}")
            e(f"v_mov_b32 v58, {24 + 4 * (k - 1)}")
            e(f"global_store_dword v58, v59, s[{sDBG}:{sDBG + 1}]")
            e("s_nop 1")
        e("L_dbg_skip:")
        e(f"s_mov_b64 exec, s[{sMASK}:{sMASK + 1}]")
    elif stamps:
        e.wait_all()
        e(f"""
        s_lshl_b32 s{sT0}, s2, 2
        s_add_u32 s{sT0}, s{sT0}, s{sW}
        s_lshl_b32 s{sT0}, s{sT0}, 7
        s_add_u32 s{sT0}, s{sT0}, {WS_TS}
        v_mov_b32 v58, s{sT0}
        v_cmp_eq_u32 vcc, 0, v{vLANE}
        s_nop 0
        s_and_saveexec_b64 s[{sMASK}:{sMASK + 1}], vcc
        """)
        for i in range(0, 20, 4):
            for q in range(4):
                e(f"v_mov_b32 v{60 + q}, s{min(sTS + i + q, sTS + 17)}")
            e(f"buffer_store_dwordx4 v[60:63], v58, s[{S_WS}:{S_WS + 3}], 0 offen offset:{i * 4}")
            e("s_nop 1")
        e(f"s_mov_b64 exec, s[{sMASK}:{sMASK + 1}]")
    e(f"s_branch {done}")
    e("L_fallback:")
    e(f"""
    s_barrier
    s_lshl_b32 s{sKO}, s{sKVT}, 14
    v_mov_b32 v{vKR}, v31
    v_mov_b32 v{vL}, 0xff800000
    v_mov_b32 v{vL + 2}, 0xff800000
    v_subrev_u32 v{vKR}, {SLOT}, v{vKR}
    s_mov_b32 s{sTRIP}, 0
    """)
    for s16 in range(1, 8):
        e(f"v_xor_b32 v{vKR + s16}, {32 * s16}, v{vKR}")
    e("L_fb_loop:")
    e("s_waitcnt vmcnt(0) lgkmcnt(0)")
    e("s_barrier")
    e.vq, e.lq = [], []
    serial(e, kv_dma(e, "K", 0, ("fbk", 0)))
    e.wait_all()
    e("s_barrier")
    for kb in range(2):
        for s16 in range(8):
            e(f"ds_read_b128 {Fbuf(s16)}, v{vKR + s16} offset:{kb * 49152}")
        e("s_waitcnt lgkmcnt(0)")
        for s16 in range(8):
            for qb in range(2):
                c = "0" if s16 == 0 else Sreg(0, qb)
                e(f"v_mfma_f32_32x32x16_bf16 {Sreg(0, qb)}, {Fbuf(s16)}, {Qreg(s16, qb)}, {c}")
        e.nop(16)
        for qb in range(2):
            m = vL + 2 * qb
            for i in range(0, 16, 2):
                e(f"v_max3_f32 v{m}, v{m}, {Sreg(0, qb, i)}, {Sreg(0, qb, i + 1)}")
    e(f"""
    s_add_u32 s{sTRIP}, s{sTRIP}, 1
    s_cmp_lt_u32 s{sTRIP}, 8
    s_cbranch_scc1 L_fb_loop
    v_mov_b32 v{vL + 1}, v{vL}
    v_mov_b32 v{vL + 3}, v{vL + 2}
    s_nop 1
    v_permlane32_swap_b32 v{vL}, v{vL + 1}
    v_permlane32_swap_b32 v{vL + 2}, v{vL + 3}
    s_nop 0
    v_max_f32 v{vL}, v{vL}, v{vL + 1}
    v_max_f32 v{vL + 2}, v{vL + 2}, v{vL + 3}
    """)
    for qb in range(2):
        for i in range(16):
            e(f"v_sub_f32 v{vNM + 16 * qb + i}, 0, v{vL + 2 * qb}")
    e(f"""
    s_barrier
    s_lshl_b32 s{sKO}, s{sKVT}, 14
    s_mov_b32 s{sVO}, s{sKO}
    s_lshl_b32 s{sWOO}, s{sSK}, 15
    v_mov_b32 v{vKR}, v31
    v_mov_b32 v{vVR}, v63
    s_mov_b32 s{sPASS}, 1
    """)
    for s16 in range(1, 8):
        e(f"v_xor_b32 v{vKR + s16}, {32 * s16}, v{vKR}")
    for db in range(1, 4):
        e(f"v_xor_b32 v{vVR + db}, {64 * db}, v{vVR}")
    for (which, slot) in (("K", 1), ("V", 1), ("K", 2), ("V", 2), ("K", 0)):
        serial(e, kv_dma(e, which, slot, ("fbp", 0)))
    for i in range(4):
        e(f"v_mov_b32 v{vL + i}, 0")
        e(f"v_mov_b32 v{vGA + i}, v{vKDM + i}")
        e(f"v_mov_b32 v{vGB + i}, v{vVDM}")
    for i in range(128):
        e(f"v_accvgpr_write_b32 a{128 + i}, 0")
    e("s_branch L_p2_start")
    e(f"{done}:")
    e("s_endpgm")
    e("L_kend:")
    sp = check_scc(e.l)
    if sp:
        print("\n".join(sp))
        raise SystemExit("scc")
    probs = check_hazards(e.l, "k1")
    if probs and not any(k.startswith("no") for k in OPT):
        print("\n".join(probs[:40]))
        raise SystemExit("hazards")
    return e.text()
```

```python
from emit import E, check_hazards, check_scc
from asmlib import KA

RB = 65536
WSTR = 24576
SLOT = 8192
C_SCALE = 1.4426950408889634 * (128 ** -0.5)

WS_PART = 0
WS_R = 16 << 20
WS_STAT = WS_R + 8192
WS_H = WS_R + 65536
WS_IDX = WS_H + 32768
WS_FLG = WS_R + 32768
WS_TS = 32 << 20


def f2u(x):
    import struct
    return struct.unpack("<I", struct.pack("<f", x))[0]


S_X, S_WQ, S_K, S_V, S_WO, S_WS, S_WR = 4, 8, 12, 16, 20, 24, 28
sG, sTB, sW, sSK = 32, 33, 34, 35
sWQO, sWOO, sKO, sVO = 36, 37, 38, 39
sRING = 40
sCNT = 41
sT0, sT1, sT2, sT3 = 42, 43, 44, 45
sKSL, sVSL = 46, 47
sKD, sVD = 48, 49
sTRIP = 50
sGA = 52
sGB = 56
sGAO, sGBO = 60, 61
sGAM, sGBM = 62, 63
sMASK = 64
sPASS = 70
sKVB = 71
sKVT = 51
sDBG = 72
sSL = 98
sRDY = 99
sFP = 92
sHFD = 70
sTS = 74

vLANE = 0
vWQ = 1
vWO = 5
vKDM = 9
vVDM = 13
vAA = 14
vAB = 22
vBR = 30
vKR = 32
vVR = 40
vGA = 44
vGB = 48
vL = 52
vOW = 56
vPS = 57
vT = 58
vQ = 64
vS = 128
vP = 192
vNM = 224
vACC = 128

aA = 0
aB = 96
aF = 0
aO = 128


def rng(f, b, n):
    return f"{f}[{b}:{b + n - 1}]" if n > 1 else f"{f}{b}"


def Bset(setidx, tq):
    if setidx < 2:
        return rng("a", aB + setidx * 16 + tq * 4, 4)
    return rng("v", 64 + tq * 4, 4)


def Aset(setidx, dt):
    return rng("a", aA + setidx * 32 + dt * 4, 4)


def Ahalf(setidx, dt, rd):
    return rng("a", aA + setidx * 32 + dt * 4 + 2 * rd, 2)


def acc16(dt, tq):
    return rng("v", vACC + (dt * 4 + tq) * 4, 4)


OPT = {}
STAMP = [None]
GSTAMP = [None]
P3_STATIC = [False]
NS3 = 5


class Slots:
    def __init__(self, n):
        self.n = n
        self.f = [[] for _ in range(n + 1)]

    def at(self, i, fn):
        self.f[min(max(i, 0), self.n)].append(fn)


def loop_align(e):
    a = OPT.get("align", 0)
    if a:
        e.l.append(f".p2align {a}")
    for _ in range(OPT.get("shift", 0)):
        e("s_nop 0")


class Side:
    def __init__(self):
        self.q = []
        self.last = None

    def add(self, x, gap=0, cond=None):
        self.q.append((x, gap, cond))

    def states_since(self, e):
        if self.last is None:
            return 99
        n = 0
        for l in e.l[self.last:]:
            t = l.strip()
            if t.endswith(":") or not t:
                continue
            n += int(t.split()[1], 0) + 1 if t.startswith("s_nop") else 1
        return n

    def emit(self, e, budget, pos=None, flush=False):
        while self.q and (budget > 0 or flush):
            x, gap, cond = self.q[0]
            if cond is not None and pos is not None and pos < cond and not flush:
                return
            have = self.states_since(e)
            if have < gap:
                if not flush:
                    return
                e.nop(gap - have)
            self.q.pop(0)
            if callable(x):
                x()
            else:
                e(x)
            self.last = len(e.l)
            budget -= 1


def gemm_step(e, p, phase, opts):
    j = p % 3
    jn = (p + 1) % 3
    va = vAA if phase == 1 else vAB
    rdoff = 1024 if phase == 1 else 2048
    sl = Slots(32)
    if opts.get("next", True):
        reads = []
        for dt in range(8):
            for rd in range(2):
                reads.append((dt, rd))
        spread = OPT.get("aspread", 16)
        for n, (dt, rd) in enumerate(reads):
            def f(dt=dt, rd=rd):
                if OPT.get("noaread"):
                    return
                e.lds(f"ds_read_b64_tr_b16 {Ahalf(jn, dt, rd)}, v{va + dt} offset:{jn * SLOT + rd * rdoff}",
                      ("A", p + 1, dt))
            sl.at(n * spread // 16, f)
        for tq in range(4):
            def f(tq=tq):
                e.lds(f"ds_read_b128 {Bset(jn, tq)}, v{vBR} offset:{opts['boff_next'] + tq * 1024}", ("B", p + 1, tq))
            sl.at(spread + tq, f)
    for pos, fn in opts.get("fill", []):
        sl.at(pos, fn)
    if opts.get("next", True):
        e.need(vtags=opts.get("vneed"))
    for n in range(32):
        dt, tq = n // 4, n % 4
        need = [("A", p, dt), ("B", p, tq)] + ([("B", p, 3), ("A", p, 7)] if n == 0 else [])
        e.need(ltags=need)
        c = "0" if opts.get("first") else acc16(dt, tq)
        e(f"v_mfma_f32_16x16x32_bf16 {acc16(dt, tq)}, {Aset(j, dt)}, {Bset(j, tq)}, {c}")
        for fn in sl.f[n]:
            fn()
        side = opts.get("side")
        if side is not None:
            side.emit(e, opts.get("cap", 2) - len(sl.f[n]), pos=(p, n))
    for fn in sl.f[32]:
        fn()


def wdma(e, phase, i, tag):
    if OPT.get("nodma") and tag[1] > 3:
        e.vq.append(tag)
        return
    if phase == 1:
        e.vm(f"buffer_load_dwordx4 v{vWQ + i}, s[{S_WQ}:{S_WQ + 3}], s{sWQO} offen offset:{i * 1024} lds", tag)
    else:
        e.vm(f"buffer_load_dwordx4 v{vWO + i}, s[{S_WO}:{S_WO + 3}], s{sWOO} offen offset:{i * 1024} lds", tag)


def wdma_adv(e, phase):
    if phase == 1:
        e(f"s_add_u32 s{sWQO}, s{sWQO}, {16 * 8192}")
        e(f"s_and_b32 s{sWQO}, s{sWQO}, {512 * 8192 - 1}")
    else:
        e(f"s_add_u32 s{sT0}, s{sWOO}, {16 * 1024}")
        e(f"s_and_b32 s{sT0}, s{sT0}, {512 * 1024 - 1}")
        e(f"s_and_b32 s{sWOO}, s{sWOO}, {~(512 * 1024 - 1) & 0xffffffff}")
        e(f"s_or_b32 s{sWOO}, s{sWOO}, s{sT0}")


def half_dma(e, phase, slot, half, tag):
    def m0():
        e(f"s_add_u32 m0, s{sRING}, {slot * SLOT + half * 4096}")
    out = [m0]
    for i in range(4):
        out.append(lambda i=i: wdma(e, phase, i, tag))
    out.append(lambda: wdma_adv(e, phase))
    return out


def serial(e, fl):
    fl[0]()
    e("s_nop 0")
    for fn in fl[1:]:
        fn()


def place(fl, start, stride):
    res = [(start, fl[0])]
    for i in range(4):
        res.append((start + 1 + i * stride, fl[1 + i]))
    res.append((start + 1 + 3 * stride, fl[5]))
    return res


def kv_dma(e, which, tile_slot, tag):
    out = []
    if which == "K":
        out.append(lambda: e(f"s_add_u32 m0, s{sRING}, {tile_slot * SLOT}"))
        for i in range(4):
            out.append(lambda i=i: e.vm(
                f"buffer_load_dwordx4 v{vKDM + i}, s[{S_K}:{S_K + 3}], s{sKO} offen offset:{i * 1024} lds", tag))
        out.append(lambda: kv_adv(e, sKO))
    else:
        out.append(lambda: e(f"s_add_u32 m0, s{sRING}, {tile_slot * SLOT + 4096}"))
        for i in range(4):
            out.append(lambda i=i: e.vm(
                f"buffer_load_dwordx4 v{vVDM}, s[{S_V}:{S_V + 3}], s{sVO} offen offset:{i * 1024} lds", tag))
        out.append(lambda: kv_adv(e, sVO))
    return out


def kv_adv(e, sreg):
    e(f"s_add_u32 s{sreg}, s{sreg}, 16384")
    e(f"s_and_b32 s{sreg}, s{sreg}, {8 * 16384 - 1}")


def gemm_pre(e, phase):
    va = vAA if phase == 1 else vAB
    rdoff = 1024 if phase == 1 else 2048
    e.need(vtags=[("W", 0, 0), ("W", 0, 1)])
    for tq in range(4):
        e.lds(f"ds_read_b128 {Bset(0, tq)}, v{vBR} offset:{tq * 1024}", ("B", 0, tq))
    for dt in range(8):
        for rd in range(2):
            e.lds(f"ds_read_b64_tr_b16 {Ahalf(0, dt, rd)}, v{va + dt} offset:{rd * rdoff}", ("A", 0, dt))


def gemm_main(e, phase, tail_fill, side=None, side_steps=range(10, 16)):
    e.need(ltags=[("A", 0, 7)])
    serial(e, half_dma(e, phase, 0, 0, ("W", 3, 0)))

    def step_opts(p, boff_next):
        fill = []
        sp = OPT.get("aspread", 16)
        if p + 3 <= 15:
            fl = half_dma(e, phase, p % 3, 1, ("W", p + 3, 1))
            fill += [(0, fl[0])] + [(2 + 4 * i, fl[1 + i]) for i in range(4)] + [(sp + 4, fl[5])]
        if p + 4 <= 15:
            fl = half_dma(e, phase, (p + 1) % 3, 0, ("W", p + 4, 0))

            def guard(p=p):
                e.need(ltags=[("A", p + 1, 7)])
            fill += [(sp + 5, guard), (sp + 5, fl[0])] + [(min(sp + 6 + 3 * i, 31), fl[1 + i]) for i in range(4)] + [(32, fl[5])]
        return dict(first=(p == 0), next=(p < 15), boff_next=boff_next, fill=fill,
                    vneed=[("W", p + 1, 0), ("W", p + 1, 1)])

    if GSTAMP[0]:
        GSTAMP[0]("p1_pre")
    o = step_opts(0, 1 * 4096)
    gemm_step(e, 0, phase, o)
    if GSTAMP[0]:
        GSTAMP[0]("p1_s0")
    lab = f"L_g{phase}_loop"
    e(f"s_mov_b32 s{sCNT}, 3")
    e(f"v_add_u32 v{vBR}, {1 * 4096}, v{vBR}")
    lq0, vq0 = list(e.lq), list(e.vq)
    loop_align(e)
    e(f"{lab}:")
    n0 = len(e.l)
    for u in range(3):
        p = 1 + u
        o = step_opts(p, (u + 1) * 4096)
        if u == 2:
            o["fill"] = o["fill"] + [(24, lambda: e(f"v_add_u32 v{vBR}, {3 * 4096}, v{vBR}")),
                                     (32, lambda: e(f"s_sub_u32 s{sCNT}, s{sCNT}, 1")),
                                     (32, lambda: e(f"s_cmp_lg_u32 s{sCNT}, 0"))]
        gemm_step(e, p, phase, o)
    e(f"s_cbranch_scc1 {lab}")
    body = e.l[n0:]
    probs = check_hazards(body + body, f"gemm{phase} loop x2")
    assert not probs or any(k.startswith("no") for k in OPT), "\n".join(probs[:10])
    sh = lambda q, d: [(t[0], t[1] + d) + tuple(t[2:]) if t else t for t in q]
    assert sh(lq0, 3) == e.lq or OPT.get('noaread'), (lq0, e.lq)
    assert sh(vq0, 3) == e.vq, (vq0, e.vq)
    e.lq, e.vq = sh(e.lq, 6), sh(e.vq, 6)
    for p in range(10, 16):
        if GSTAMP[0] and p in (10, 13):
            GSTAMP[0](f"p1_s{p}")
        o = step_opts(p, (p - 10 + 1) * 4096)
        o["fill"] = o["fill"] + tail_fill(p)
        o["side"] = side if p in side_steps else None
        o["cap"] = OPT.get("sidecap", 2)
        gemm_step(e, p, phase, o)


def acc3(hf, nt, tq):
    return rng("v", vACC + 64 * hf + (nt * 4 + tq) * 4, 4)


def A3(st, nt, rd=None):
    b = st * 16 + nt * 4
    return rng("a", b, 4) if rd is None else rng("a", b + 2 * rd, 2)


def B3(st, tq):
    return rng("a", 48 + st * 16 + tq * 4, 4)


def p3_dma(e, u):
    out = [lambda: e(f"s_add_u32 m0, s{sRING}, {(u % NS3) * 4096}")]
    for i in range(4):
        out.append(lambda i=i: e.vm(
            f"buffer_load_dwordx4 v{vWO + i}, s[{S_WO}:{S_WO + 3}], s{sWOO} offen offset:{i * 1024} lds", ("W", u)))

    def adv():
        p3_adv(e)
        if u == 9 and not OPT.get("p3unroll", 1):
            e(f"s_add_u32 s{sWOO}, s{sWOO}, s{sHFD}")
    out.append(adv)
    return out


def p3_adv(e):
    e(f"s_add_u32 s{sWOO}, s{sWOO}, {32 * 1024}")
    e(f"s_and_b32 s{sWOO}, s{sWOO}, {512 * 1024 - 1}")


def p3_reads(e, u, boff):
    st = u % 3
    r = []
    for nt in range(4):
        for rd in range(2):
            r.append(lambda nt=nt, rd=rd: e.lds(
                f"ds_read_b64_tr_b16 {A3(st, nt, rd)}, v{vAB + nt} offset:{(u % NS3) * 4096 + rd * 1024}", ("A", u, nt)))
    for tq in range(4):
        r.append(lambda tq=tq: e.lds(f"ds_read_b128 {B3(st, tq)}, v{vBR} offset:{boff + tq * 1024}", ("B", u, tq)))
    return r


def p3_step(e, u, boff_next, fill=(), side=None, cap=2):
    hf, st = u >> 4, u % 3
    sl = Slots(16)
    nxt = u < 31
    if nxt:
        rd = p3_reads(e, u + 1, boff_next)
        for n in range(8):
            sl.at(n, rd[n])
        for tq in range(4):
            sl.at(8 + tq, rd[8 + tq])
    if u + NS3 <= 31:
        fl = p3_dma(e, u + NS3)
        sl.at(0, fl[0])
        for i, pos in enumerate((2, 6, 12, 14)):
            sl.at(pos, fl[1 + i])
        sl.at(15, fl[5])
    for pos, fn in fill:
        sl.at(pos, fn)
    if nxt:
        e.need(vtags=[("W", u + 1)])
    for n in range(16):
        nt, tq = n // 4, n % 4
        e.need(ltags=[("A", u, nt), ("B", u, tq)] + ([("B", u, 3), ("A", u, 3)] if n == 0 else []))
        c = "0" if (u & 15) == 0 else acc3(hf, nt, tq)
        e(f"v_mfma_f32_16x16x32_bf16 {acc3(hf, nt, tq)}, {A3(st, nt)}, {B3(st, tq)}, {c}")
        for fn in sl.f[n]:
            fn()
        if side is not None:
            left = cap - len(sl.f[n])
            for sd in side:
                n0 = len(sd.q)
                sd.emit(e, left, pos=(u, n))
                left -= n0 - len(sd.q)
    for fn in sl.f[16]:
        fn()


def p3_epilogue_items(e, hf, regs):
    items = []
    k = 0
    for nt in range(4):
        for qb in range(2):
            R = regs[k % len(regs)]
            k += 1
            a0 = vACC + 64 * hf + (nt * 4 + 2 * qb) * 4
            a1 = a0 + 4
            items.append((f"v_cvt_pk_bf16_f32 v{R}, v{a0}, v{a0 + 1}", 2))
            items.append((f"v_cvt_pk_bf16_f32 v{R + 1}, v{a0 + 2}, v{a0 + 3}", 0))
            items.append((f"v_cvt_pk_bf16_f32 v{R + 2}, v{a1}, v{a1 + 1}", 0))
            items.append((f"v_cvt_pk_bf16_f32 v{R + 3}, v{a1 + 2}, v{a1 + 3}", 0))
            items.append((f"v_permlane16_swap_b32 v{R}, v{R + 2}", 2))
            items.append((f"v_permlane16_swap_b32 v{R + 1}, v{R + 3}", 1))
            off = (nt & 1) * 2048 + qb * 1024
            so = {(0, 0): "0", (0, 1): "s48", (1, 0): "s49", (1, 1): "s50"}[(hf, nt >> 1)]
            items.append((lambda R=R, off=off, nt=nt, qb=qb, so=so: e.vm(
                f"buffer_store_dwordx4 {rng('v', R, 4)}, v{vPS}, s[{S_WS}:{S_WS + 3}], {so} offen offset:{off} "
                + OPT.get("pstore", "sc1"), ("ps", hf, nt, qb)), 0))
    return items


def p3_loop_half0(e):
    p3_step(e, 0, 4096)
    e(f"s_mov_b32 s{sCNT}, 2")
    e(f"s_mov_b32 s{sHFD}, 0")
    e(f"v_add_u32 v{vBR}, {1 * 4096}, v{vBR}")
    lq0, vq0 = list(e.lq), list(e.vq)
    e("L_p3_loop:")
    n0 = len(e.l)
    for k in range(6):
        u = 1 + k
        fill = []
        if k == 5:
            fill = [(13, lambda: e(f"v_add_u32 v{vBR}, {6 * 4096}, v{vBR}")),
                    (15, lambda: e(f"s_mov_b32 s{sHFD}, 512")),
                    (15, lambda: e(f"s_sub_u32 s{sCNT}, s{sCNT}, 1")),
                    (15, lambda: e(f"s_cmp_lg_u32 s{sCNT}, 0"))]
        p3_step(e, u, (k + 1) * 4096, fill=fill)
    e("s_cbranch_scc1 L_p3_loop")
    body = e.l[n0:]
    probs = check_hazards(body + body, "p3 loop x2")
    assert not probs, "\n".join(probs[:10])
    sh = lambda q, d: [(t[0], t[1] + d) + tuple(t[2:]) if t else t for t in q]
    assert sh(lq0, 6) == e.lq, (lq0, e.lq)
    assert sh(vq0, 6) == e.vq, (vq0, e.vq)
    e.lq, e.vq = sh(e.lq, 6), sh(e.vq, 6)
    for u in range(13, 16):
        boff = (u - 13 + 1) * 4096 if u < 15 else -13 * 4096
        if u == 15:
            fill = [(0, lambda: e(f"v_subrev_u32 v{vBR}, {13 * 4096}, v{vBR}"))]
            p3_step(e, u, 0, fill=fill)
        else:
            p3_step(e, u, boff)


def p3_phase(e, tail_fill, side0, side1):
    if STAMP[0]:
        STAMP[0]("p3_start")
    if OPT.get("p3unroll", 1):
        cap = OPT.get("sidecap", 2)
        for u in range(16):
            fill = []
            if u == 15 - NS3:
                fill = [(16, lambda: e(f"s_add_u32 s{sWOO}, s{sWOO}, 512"))]
            P3_STATIC[0] = True
            p3_step(e, u, ((u + 1) & 15) * 4096, fill=fill, side=side0, cap=cap)
    else:
        p3_loop_half0(e)
    for u in range(16, 32):
        p = u & 15
        if STAMP[0] and u in (16, 24):
            STAMP[0](f"p3_u{u}")
        p3_step(e, u, ((p + 1) & 15) * 4096, fill=tail_fill(u), side=side0, cap=OPT.get("sidecap", 2))


def Sreg(par, qb, i=None):
    b = vS + par * 32 + qb * 16
    return rng("v", b, 16) if i is None else f"v{b + i}"


def Preg(par, qb, t):
    return rng("v", vP + par * 16 + qb * 8 + t * 4, 4)


def Qreg(s16, qb):
    return rng("v", vQ + (s16 * 2 + qb) * 4, 4)


def Oreg(db, qb):
    return rng("a", aO + (db * 2 + qb) * 16, 16)


def Fbuf(n, half=None):
    b = aF + (n % 8) * 4
    return rng("a", b, 4) if half is None else rng("a", b + 2 * half, 2)


def k_read(e, b, s16):
    if OPT.get("nokvread"):
        return
    e.lds(f"ds_read_b128 {Fbuf(s16)}, v{vKR + s16} offset:{(b & 1) * 49152}", ("K", b, s16))


def v_read(e, b, f, order=None):
    t, db = (order or VORD_T)[f]
    if OPT.get("nokvread"):
        return
    for rd in range(2):
        e.lds(f"ds_read_b64_tr_b16 {Fbuf(8 + f, rd)}, v{vVR + db} offset:{t * WSTR + rd * 2048}", ("V", b, f))


def sm_ops(e, b):
    par = b & 1
    ops = []
    S = lambda x: Sreg(par, x // 16, x % 16)
    exp = lambda x: (lambda: e(f"v_exp_f32 {S(x)}, {S(x)}") if not OPT.get("noexp") else None)
    add = lambda x: (lambda: e(f"v_add_f32 v{vL + (x // 16) * 2 + (x & 1)}, v{vL + (x // 16) * 2 + (x & 1)}, {S(x)}"))
    cvt = lambda k: (lambda: e(f"v_cvt_pk_bf16_f32 v{vP + par * 16 + k}, {S(2 * k)}, {S(2 * k + 1)}"))
    if OPT.get("nosm"):
        return []
    for k in range(16):
        ops.append((2 * k, exp(2 * k)))
        if k > 0:
            ops.append((2 * k, add(2 * k - 2)))
            ops.append((2 * k, cvt(k - 1)))
        ops.append((2 * k + 1, exp(2 * k + 1)))
        if k > 0:
            ops.append((2 * k + 1, add(2 * k - 1)))
    ops.append((32, add(30)))
    ops.append((32, add(31)))
    ops.append((32, cvt(15)))
    return ops


def sm_queue(e, b):
    par = b & 1
    S = lambda x: Sreg(par, x // 16, x % 16)
    exp = lambda x: (8, lambda: e(f"v_exp_f32 {S(x)}, {S(x)}"))
    add = lambda x: (4, lambda: e(f"v_add_f32 v{vL + (x // 16) * 2 + (x & 1)}, v{vL + (x // 16) * 2 + (x & 1)}, {S(x)}"))
    cvt = lambda k: (4, lambda: e(f"v_cvt_pk_bf16_f32 v{vP + par * 16 + k}, {S(2 * k)}, {S(2 * k + 1)}"))
    q = []
    if OPT.get("dotsum"):
        dot = lambda k: (OPT["dotsum"], lambda: e(f"v_dot2_f32_bf16 v{vL + (k // 8) * 2 + (k & 1)}, v{vP + par * 16 + k}, s67, v{vL + (k // 8) * 2 + (k & 1)}"))
        for k in range(32):
            q.append(exp(k))
            if k >= 2 and k % 2 == 0:
                q.append(cvt(k // 2 - 1))
            if k >= 3 and k % 2 == 1:
                q.append(dot((k - 1) // 2 - 1))
        q.append((4, lambda: e("s_nop 0")))
        q.append(cvt(15))
        q.append((4, lambda: e("s_nop 0")))
        q.append(dot(15))
        return q
    for k in range(32):
        q.append(exp(k))
        if k >= 1:
            q.append(add(k - 1))
        if k >= 2 and k % 2 == 0:
            q.append(cvt(k // 2 - 1))
    q.append(add(31))
    q.append(cvt(15))
    return q


VORD_T = [(f // 4, f % 4) for f in range(8)]
VORD_D = [(f % 2, f // 2) for f in range(8)]


def p2_iter(e, b, qk=True, sm=True, pv=True, look="K", fill=(), vpre=False, smstart=0, vord=VORD_T, vord_next=VORD_T,
            side=None, cap=5):
    mf = []
    if qk:
        par = (b + 1) & 1
        for s16 in range(8):
            for qb in range(2):
                c = rng("v", vNM + qb * 16, 16) if s16 == 0 else Sreg(par, qb)
                mf.append((f"v_mfma_f32_32x32x16_bf16 {Sreg(par, qb)}, {Fbuf(s16)}, {Qreg(s16, qb)}, {c}",
                           ("K", b + 1, s16), s16))
    if pv:
        par = (b - 1) & 1
        for f in range(8):
            t, db = vord[f]
            for qb in range(2):
                mf.append((f"v_mfma_f32_32x32x16_bf16 {Oreg(db, qb)}, {Fbuf(8 + f)}, {Preg(par, qb, t)}, {Oreg(db, qb)}",
                           ("V", b - 1, f), 8 + f))
    n = len(mf)
    sl = Slots(n)
    if qk and pv:
        for f in range(4, 8):
            sl.at(2 * (f - 4) + 1, lambda f=f: k_read(e, b + 1, f))
        for f in range(8):
            fn = lambda f=f: v_read(e, b - 1, f)
            fn.ninstr = 2
            sl.at(2 * (f + 4) + 1, fn)
        if look == "K":
            for f in range(4):
                sl.at(24 + 2 * f + 1, lambda f=f: k_read(e, b + 2, f))
    elif qk:
        for f in range(4, 8):
            sl.at(2 * (f - 4) + 1, lambda f=f: k_read(e, b + 1, f))
        if look == "K":
            for f in range(4):
                sl.at(8 + 2 * f + 1, lambda f=f: k_read(e, b + 2, f))
    else:
        if vpre:
            for f in range(4):
                v_read(e, b - 1, f, vord)
        for f in range(4, 8):
            sl.at(2 * (f - 4) + 1, lambda f=f: v_read(e, b - 1, f, vord))
        if look == "V":
            for f in range(4):
                sl.at(8 + 2 * f + 1, lambda f=f: v_read(e, b, f, vord_next))
    if OPT.get("greedy", 1) and n == 32 and sm:
        B = OPT.get("budget", 24)
        cost = [4 * sum(2 if False else 1 for _ in sl.f[i]) for i in range(n)]
        for i in range(n):
            cost[i] = 0
            for fn in sl.f[i]:
                cost[i] += 4 * getattr(fn, "ninstr", 1)
            if (i + 1) % 4 == 0:
                cost[i] += 4
        q = sm_queue(e, b)
        tot = sum(c for c, _ in q)
        ex = sorted(enumerate(fill), key=lambda t: (t[1][0], t[0]))
        ex = [(pos, fn) for _, (pos, fn) in ex]
        done = 0
        for i in range(n):
            left = B - cost[i]
            need = tot * (i + 1) / n
            while q and done < need and q[0][0] <= left + (4 if done + 12 < need else 0):
                c, fn = q.pop(0)
                sl.at(i, fn)
                left -= c
                done += c
            while ex and ex[0][0] <= i and (left >= 4 * getattr(ex[0][1], "ninstr", 1) or ex[0][0] + 3 <= i):
                pos, fn = ex.pop(0)
                sl.at(i, fn)
                left -= 4 * getattr(fn, "ninstr", 1)
            while q and q[0][0] <= left and done < need + 16:
                c, fn = q.pop(0)
                sl.at(i, fn)
                left -= c
                done += c
        for c, fn in q:
            sl.at(n, fn)
        for pos, fn in ex:
            sl.at(n, fn)
    else:
        if sm:
            ops = sm_ops(e, b)
            for (s, fn) in ops:
                sl.at(smstart + s * (n - smstart) // 32 if s < 32 else n, fn)
        for (s, fn) in fill:
            sl.at(s, fn)
    if vpre and sm:
        pass
    for i, (txt, tag, fi) in enumerate(mf):
        if i % 4 == 0:
            tags = [tag]
            if i + 2 < n:
                tags.append(mf[i + 2][1])
            e.need(ltags=tags)
        e(txt)
        for fn in sl.f[i]:
            fn()
        if side is not None:
            side.emit(e, cap - len(sl.f[i]), pos=(b, i))
    for fn in sl.f[n]:
        fn()


def gen_k1(label, stamps=False, debug=None, opt=None):
    OPT.clear()
    OPT.update(opt or {})
    STAMP[0] = None
    GSTAMP[0] = None
    e = E()
    nst = [0]

    def stamp(name, wait=True):
        if not stamps:
            return
        if OPT.get("only") and name not in OPT["only"]:
            return
        k = nst[0]
        assert k < 9
        e(f"{stamps} s[{sTS + 2 * k}:{sTS + 2 * k + 1}]   ; stamp {k} {name}")
        if wait:
            e.wait_all(vm=False)
        nst[0] += 1
    done = f"L_{label}_done"
    ipf_text = ""
    if OPT.get("ipf"):
        nb = OPT["ipf"]
        ipf_text = f"""
    L_kbase:
    s_getpc_b64 s[{sT0}:{sT0 + 1}]
    s_lshr_b32 s{sT2}, s2, 3
    s_and_b32 s{sT2}, s{sT2}, {nb - 1}
    s_lshl_b32 s{sT2}, s{sT2}, 12
    v_lshlrev_b32 v200, 4, v0
    v_add_u32 v200, s{sT2}, v200
    v_min_u32 v200, (L_kend - L_kbase - 32) & 0xfffffff0, v200
    global_load_dwordx4 v[200:203], v200, s[{sT0}:{sT0 + 1}]
    """
        e.vq.append(("ipf", 0))
    e(f"""
    s_cmp_ge_u32 s2, 256
    s_cbranch_scc1 {done}
    {ipf_text}
    s_load_dwordx2 s[4:5], s[0:1], 0
    s_load_dwordx2 s[12:13], s[0:1], 8
    s_load_dwordx2 s[16:17], s[0:1], 16
    s_load_dwordx2 s[8:9], s[0:1], 24
    s_load_dwordx2 s[20:21], s[0:1], {KA['wo']}
    s_load_dwordx2 s[28:29], s[0:1], {KA['wr']}
    s_load_dwordx2 s[24:25], s[0:1], {KA['ws']}
    s_load_dwordx2 s[{sDBG}:{sDBG + 1}], s[0:1], {KA['dbg']}
    s_load_dwordx4 s[{sFP}:{sFP + 3}], s[0:1], {KA['wg']}
    s_load_dwordx2 s[{sFP + 4}:{sFP + 5}], s[0:1], {KA['wd']}
    """)
    stamp("start", wait=False)
    e(f"""
    v_lshrrev_b32 v{vT}, 6, v0
    v_and_b32 v{vLANE}, 63, v0
    v_readfirstlane_b32 s{sW}, v{vT}
    """)
    mp = OPT.get("map", "A")
    if mp == "A":
        e(f"""
        s_and_b32 s{sG}, s2, 7
        s_lshr_b32 s{sTB}, s2, 3
        s_and_b32 s{sSK}, s{sTB}, 15
        s_and_b32 s{sKVT}, s{sTB}, 7
        """)
    elif mp == "B":
        e(f"""
        s_and_b32 s{sT0}, s2, 3
        s_lshl_b32 s{sT0}, s{sT0}, 1
        s_bfe_u32 s{sT1}, s2, {3 | (1 << 16)}
        s_or_b32 s{sG}, s{sT0}, s{sT1}
        s_bfe_u32 s{sT0}, s2, {2 | (1 << 16)}
        s_lshl_b32 s{sT0}, s{sT0}, 4
        s_lshr_b32 s{sT1}, s2, 4
        s_or_b32 s{sTB}, s{sT0}, s{sT1}
        s_and_b32 s{sSK}, s{sTB}, 7
        s_lshl_b32 s{sSK}, s{sSK}, 1
        s_and_b32 s{sKVT}, s{sTB}, 7
        """)
    elif mp == "C":
        e(f"""
        s_and_b32 s{sT0}, s2, 1
        s_lshl_b32 s{sT0}, s{sT0}, 2
        s_bfe_u32 s{sT1}, s2, {3 | (2 << 16)}
        s_or_b32 s{sG}, s{sT0}, s{sT1}
        s_bfe_u32 s{sT0}, s2, {1 | (2 << 16)}
        s_lshl_b32 s{sT0}, s{sT0}, 3
        s_lshr_b32 s{sT1}, s2, 5
        s_or_b32 s{sTB}, s{sT0}, s{sT1}
        s_and_b32 s{sSK}, s{sTB}, 7
        s_lshl_b32 s{sSK}, s{sSK}, 1
        s_and_b32 s{sKVT}, s{sTB}, 7
        """)
        if OPT.get("s4"):
            e(f"""
            s_and_b32 s{sSK}, s{sTB}, 3
            s_lshl_b32 s{sSK}, s{sSK}, 2
            """)
        if OPT.get("gskew"):
            e(f"""
            s_and_b32 s{sT0}, s{sG}, 3
            s_lshl_b32 s{sT0}, s{sT0}, 2
            s_add_u32 s{sSK}, s{sSK}, s{sT0}
            s_and_b32 s{sSK}, s{sSK}, 15
            """)
    L = vLANE
    t0, t1, t2, t3, t4, t5 = vT, vT + 1, vT + 2, vT + 3, vT + 4, vT + 5
    XV0, XV1 = 56, 57
    e(f"""
    v_and_b32 v{t2}, 15, v{L}
    v_lshrrev_b32 v{t3}, 4, v{L}
    s_lshl_b32 s{sT0}, s{sTB}, 6
    s_lshl_b32 s{sT1}, s{sW}, 4
    s_add_u32 s{sT0}, s{sT0}, s{sT1}
    v_lshrrev_b32 v{t0}, 3, v{L}
    v_add_u32 v{t0}, s{sT0}, v{t0}
    v_and_b32 v{t1}, 7, v{L}
    v_xor_b32 v{t1}, v{t1}, v{t3}
    v_lshlrev_b32 v{t1}, 4, v{t1}
    v_lshl_add_u32 v{XV0}, v{t0}, 10, v{t1}
    v_xor_b32 v{XV1}, 64, v{XV0}              ; chunk ^ 4
    v_add_u32 v{XV1}, 8192, v{XV1}            ; +8 tokens
    s_mul_i32 s{sRING}, s{sW}, {WSTR}
    s_add_u32 s{sRING}, s{sRING}, {RB}
    s_lshl_b32 s{sT3}, s{sW}, 10              ; w*1024
    s_lshl_b32 s101, s{sSK}, 6
    s_waitcnt lgkmcnt(0)
    """)
    for (dst, size) in [(S_X, 2097152), (S_K, 4194304), (S_V, 4194304), (S_WQ, 4194304),
                        (S_WO, 4194304), (S_WR, 1024), (S_WS, 0x10000000)]:
        e(f"""
        s_mov_b32 s{dst + 2}, {size}
        s_mov_b32 s{dst + 3}, 0x20000
        """)
    stamp("kernarg", wait=True)
    def xdma(u):
        for hb in range(2):
            e(f"s_add_u32 m0, s{sT3}, {(2 * u + hb) * 4096}")
            e("s_nop 0")
            e.vm(f"buffer_load_dwordx4 v{XV0 + hb}, s[{S_X}:{S_X + 3}], s101 offen lds", ("x", u, hb))
        e(f"s_add_u32 s101, s101, 128")
        e(f"s_and_b32 s101, s101, 1023")

    def wrdma():
        e(f"""
        s_lshl_b32 s{sT0}, s{sSK}, 2
        v_add_u32 v58, s{sT0}, v{L}
        v_and_b32 v58, 63, v58
        v_lshlrev_b32 v58, 4, v58
        s_add_u32 m0, s{sRING}, {2 * SLOT + 4096}
        s_nop 0
        """)
        e.vm(f"buffer_load_dwordx4 v58, s[{S_WR}:{S_WR + 3}], 0 offen lds", ("wr", 0))
    NU0 = OPT.get("nu0", 6)
    for u in range(NU0):
        xdma(u)
    e(f"""
    s_lshl_b32 s{sT0}, s{sG}, 2
    s_add_u32 s{sT0}, s{sT0}, s{sW}
    s_lshl_b32 s{sT0}, s{sT0}, 8            ; head*256
    v_lshlrev_b32 v{t4}, 1, v{t3}
    v_xor_b32 v{t4}, v{t4}, v{t2}
    v_lshlrev_b32 v{t5}, 13, v{t3}           ; rr*8192
    v_add_u32 v{t5}, s{sT0}, v{t5}
    v_lshl_add_u32 v{vWQ}, v{t4}, 4, v{t5}
    v_add_u32 v{vWQ + 1}, {32768 - 1024}, v{vWQ}
    v_xor_b32 v{t4}, 8, v{t4}
    v_lshl_add_u32 v{vWQ + 2}, v{t4}, 4, v{t5}
    v_add_u32 v{vWQ + 2}, {2 * (32768 - 1024)}, v{vWQ + 2}
    v_add_u32 v{vWQ + 3}, {32768 - 1024}, v{vWQ + 2}
    s_lshl_b32 s{sWQO}, s{sSK}, 18
    """)
    wq_pre = []
    for p in range(3):
        for h in range(2):
            fl = half_dma(e, 1, p, h, ("W", p, h))
            for i in range(4):
                grp = []
                if i == 0:
                    grp += [fl[0], lambda: e("s_nop 0")]
                grp.append(fl[1 + i])
                if i == 3:
                    grp.append(fl[5])
                wq_pre.append(grp)
    if OPT.get("early_dma", 0):
        for grp in wq_pre[:OPT["early_dma"]]:
            for fn in grp:
                fn()
        wq_pre = wq_pre[OPT["early_dma"]:]


    r_, c_ = 60, 61
    A0, A1, A2, A3, A4, A5 = 128, 129, 130, 131, 132, 133
    e(f"""
    v_bfe_u32 v{A0}, v{L}, 2, 2              ; r
    v_and_b32 v{A1}, 3, v{L}                 ; c
    v_lshrrev_b32 v{A2}, 4, v{L}             ; q4
    v_and_b32 v{A3}, 1, v{A2}
    v_lshl_or_b32 v{A3}, v{A3}, 2, v{A0}     ; phi
    v_lshlrev_b32 v{A3}, 1, v{A3}            ; f
    v_lshrrev_b32 v{A4}, 1, v{A1}
    v_xor_b32 v{A3}, v{A3}, v{A4}            ; chunk
    v_lshlrev_b32 v{A3}, 4, v{A3}
    v_and_b32 v{A4}, 1, v{A1}
    v_lshl_or_b32 v{A3}, v{A4}, 3, v{A3}     ; + (c&1)*8
    v_lshl_add_u32 v{A4}, v{A2}, 3, v{A0}    ; row
    v_lshl_add_u32 v{A3}, v{A4}, 8, v{A3}
    v_add_u32 v{vAA}, s{sRING}, v{A3}
    """)
    for dt in range(1, 8):
        e(f"v_xor_b32 v{vAA + dt}, {32 * dt}, v{vAA}")
    e(f"""
    v_and_b32 v{A3}, 1, v{A2}
    v_lshl_or_b32 v{A4}, v{A3}, 2, v{A0}     ; 4(q4&1) + r
    v_lshrrev_b32 v{A3}, 1, v{A4}            ; psi
    v_lshrrev_b32 v{A5}, 1, v{A2}
    v_lshl_or_b32 v{A4}, v{A5}, 4, v{A4}     ; row
    v_lshlrev_b32 v{A3}, 1, v{A3}
    v_lshrrev_b32 v{A5}, 1, v{A1}
    v_xor_b32 v{A3}, v{A3}, v{A5}            ; chunk
    v_lshlrev_b32 v{A3}, 4, v{A3}
    v_and_b32 v{A5}, 1, v{A1}
    v_lshl_or_b32 v{A3}, v{A5}, 3, v{A3}
    v_lshl_add_u32 v{A3}, v{A4}, 7, v{A3}
    v_add_u32 v{vAB}, s{sRING}, v{A3}
    """)
    for dt in range(1, 4):
        e(f"v_xor_b32 v{vAB + dt}, {32 * dt}, v{vAB}")
    e(f"""
    v_lshlrev_b32 v{vBR}, 4, v{L}            ; B read: X + l*16
    v_lshrrev_b32 v{A3}, 3, v{L}             ; row8
    v_lshrrev_b32 v{A4}, 1, v{A3}
    v_and_b32 v{A4}, 3, v{A4}
    v_lshlrev_b32 v{A4}, 1, v{A4}
    v_and_b32 v{A5}, 7, v{L}
    v_xor_b32 v{A4}, v{A4}, v{A5}
    v_lshlrev_b32 v{A4}, 4, v{A4}
    v_lshl_add_u32 v{A4}, v{A3}, 10, v{A4}
    s_lshl_b32 s{sT0}, s{sW}, 7
    v_add_u32 v{vWO}, s{sT0}, v{A4}
    v_add_u32 v{vWO + 1}, 7168, v{vWO}
    v_add_u32 v{vWO + 2}, {2 * 7168}, v{vWO}
    v_add_u32 v{vWO + 3}, {3 * 7168}, v{vWO}
    v_and_b32 v{A3}, 15, v{L}
    s_lshl_b32 s{sWOO}, s{sSK}, 15
    v_xor_b32 v{A4}, v{A2}, v{A3}            ; (l&15)^rr
    v_lshlrev_b32 v{A5}, 8, v{A2}
    v_lshl_add_u32 v{vKDM}, v{A4}, 4, v{A5}
    v_xor_b32 v{vKDM + 1}, 64, v{vKDM}
    v_xor_b32 v{vKDM + 2}, 128, v{vKDM}
    v_xor_b32 v{vKDM + 3}, 192, v{vKDM}
    v_lshlrev_b32 v{A4}, 2, v{A2}
    v_xor_b32 v{A4}, v{A4}, v{A3}
    v_lshl_add_u32 v{vVDM}, v{A4}, 4, v{A5}
    v_lshrrev_b32 v{A4}, 5, v{L}             ; h
    v_xor_b32 v{A4}, v{A4}, v{A3}
    v_lshlrev_b32 v{A4}, 4, v{A4}
    v_lshl_add_u32 v{A4}, v{A3}, 8, v{A4}
    v_and_b32 v{A5}, 1, v{A2}
    v_mul_u32_u24 v{A5}, {WSTR}, v{A5}
    v_add_u32 v{A4}, v{A4}, v{A5}
    v_add_u32 v{vKR}, {RB + 1 * SLOT}, v{A4}
    """)
    for s16 in range(1, 8):
        e(f"v_xor_b32 v{vKR + s16}, {32 * s16}, v{vKR}")
    e(f"""
    v_and_b32 v{A4}, 1, v{A2}
    v_lshlrev_b32 v{A4}, 1, v{A4}
    v_lshrrev_b32 v{A5}, 1, v{A1}
    v_or_b32 v{A4}, v{A4}, v{A5}
    v_lshlrev_b32 v{A5}, 2, v{A0}
    v_xor_b32 v{A4}, v{A4}, v{A5}
    v_lshlrev_b32 v{A4}, 4, v{A4}
    v_and_b32 v{A5}, 1, v{A1}
    v_lshl_or_b32 v{A4}, v{A5}, 3, v{A4}
    v_lshrrev_b32 v{A5}, 5, v{L}
    v_lshl_add_u32 v{A5}, v{A5}, 2, v{A0}    ; 4h + r
    v_lshl_add_u32 v{A4}, v{A5}, 8, v{A4}
    v_add_u32 v{vVR}, {RB + 4096 + 1 * SLOT}, v{A4}
    """)
    for db in range(1, 4):
        e(f"v_xor_b32 v{vVR + db}, {64 * db}, v{vVR}")
    e(f"""
    """)
    for u in range(NU0, 8):
        xdma(u)
    wrdma()
    if OPT.get("tlb"):
        T = OPT["tlb"]
        e(f"""
        v_lshlrev_b32 v58, 21, v{L}
        s_lshl_b32 s{sT0}, s{sTB}, 16
        v_add_u32 v58, s{sT0}, v58
        v_cmp_gt_u32 vcc, 9, v{L}
        v_mov_b32 v59, 0x7ffffff0
        s_nop 0
        v_cndmask_b32 v58, v59, v58, vcc
        """)
        e.vm(f"buffer_load_dword a96, v58, s[{S_WS}:{S_WS + 3}], 0 offen", ("tlb", 0))
        if "o" in T and not stamps:
            e(f"""
            s_load_dwordx2 s[88:89], s[0:1], {KA['out']}
            s_mov_b32 s90, 2097152
            s_mov_b32 s91, 0x20000
            s_lshl_b32 s{sT0}, s{sTB}, 16
            v_lshlrev_b32 v58, 10, v{L}
            v_add_u32 v58, s{sT0}, v58
            s_waitcnt lgkmcnt(0)
            """)
            e.vm(f"buffer_load_dword a97, v58, s[88:91], 0 offen", ("tlb", 4))
        if "w" in T:
            e(f"""
            v_lshlrev_b32 v58, 16, v{L}
            """)
            e.vm(f"buffer_load_dword a97, v58, s[{S_WO}:{S_WO + 3}], 0 offen", ("tlb", 1))
            e.vm(f"buffer_load_dword a98, v58, s[{S_K}:{S_K + 3}], 0 offen", ("tlb", 2))
            e.vm(f"buffer_load_dword a99, v58, s[{S_V}:{S_V + 3}], 0 offen", ("tlb", 3))
    e(f"""
    v_lshlrev_b32 v{vOW}, 4, v{A3}
    v_lshrrev_b32 v{A4}, 5, v{L}
    v_lshl_add_u32 v{vOW}, v{A4}, 8, v{vOW}
    v_and_b32 v{A4}, 1, v{A2}
    v_lshl_add_u32 v{vOW}, v{A4}, 10, v{vOW}
    """)
    e(f"""
    s_lshl_b32 s{sT0}, s{sG}, 5
    s_add_u32 s{sT0}, s{sT0}, s{sTB}
    s_lshl_b32 s{sT0}, s{sT0}, 3
    s_add_u32 s{sT0}, s{sT0}, s{sW}
    s_lshl_b32 s{sT0}, s{sT0}, 13
    v_lshlrev_b32 v{vPS}, 4, v{L}
    v_add_u32 v{vPS}, s{sT0}, v{vPS}
    s_lshl_b32 s{sKVB}, s{sG}, 19
    s_lshl_b32 s{sT0}, s{sW}, 12
    s_add_u32 s{sKVB}, s{sKVB}, s{sT0}
    s_add_u32 s{sKVB}, s{sKVB}, {1536 * 256}
    s_add_u32 s{S_K}, s{S_K}, s{sKVB}
    s_addc_u32 s{S_K + 1}, s{S_K + 1}, 0
    s_add_u32 s{S_V}, s{S_V}, s{sKVB}
    s_addc_u32 s{S_V + 1}, s{S_V + 1}, 0
    s_sub_u32 s{S_K + 2}, {131072}, s{sT0}
    s_mov_b32 s{S_V + 2}, s{S_K + 2}
    s_lshl_b32 s{sT0}, s{sG}, 19
    s_add_u32 s{S_WO}, s{S_WO}, s{sT0}
    s_addc_u32 s{S_WO + 1}, s{S_WO + 1}, 0
    s_mov_b32 s{S_WO + 2}, 524288
    s_lshl_b32 s{sKO}, s{sKVT}, 14
    s_mov_b32 s{sVO}, s{sKO}
    v_cmp_eq_u32 s[{sMASK}:{sMASK + 1}], 1, v{A1}
    v_cmp_eq_u32 s[{sMASK + 2}:{sMASK + 3}], 2, v{A1}
    v_cmp_eq_u32 s[{sMASK + 4}:{sMASK + 5}], 3, v{A1}
    v_cmp_eq_u32 s[98:99], v{A2}, v{A0}
    """)
    e(f"v_mov_b32 v{A5}, 0x3f803f80")
    for i in range(4):
        e(f"v_accvgpr_write_b32 a{64 + i}, v{A5}")
    e(f"s_mov_b32 s100, 0xffff0000")
    e("s_nop 0")
    SUM, GRM = 68, 72
    e(f"""
    v_and_b32 v58, 15, v{L}                  ; tok16
    v_lshrrev_b32 v59, 4, v{L}               ; q4
    v_bfe_u32 v60, v58, 1, 3                 ; swz
    v_xor_b32 v59, v59, v60
    v_lshlrev_b32 v59, 4, v59
    v_and_b32 v60, 7, v58
    v_lshl_add_u32 v59, v60, 7, v59
    v_lshrrev_b32 v60, 3, v58
    v_lshl_add_u32 v59, v60, 12, v59
    v_add_u32 v62, s{sT3}, v59
    v_xor_b32 v63, 64, v62
    """)

    for i in range(192, 256):
        e(f"v_accvgpr_write_b32 a{i}, 0")

    def stat_frag(p):
        e.need(ltags=[("xr", p)])
        xf = rng("v", vQ + 4 * p, 4)
        c1 = "0" if p == 0 else rng("a", SUM, 4)
        c2 = "0" if p == 0 else rng("a", GRM, 4)
        e(f"v_mfma_f32_16x16x32_bf16 {rng('a', SUM, 4)}, a[64:67], {xf}, {c1}")
        e(f"v_mfma_f32_16x16x32_bf16 {rng('a', GRM, 4)}, {xf}, {xf}, {c2}")
        for i in range(4):
            src = vQ + 4 * p + i
            dst = 128 + 8 * p + 2 * i
            e(f"v_lshlrev_b32 v{dst}, 16, v{src}")
            e(f"v_and_b32 v{dst + 1}, s100, v{src}")

    for u in range(8):
        e.need(vtags=[("x", u, 1)])
        for par in range(2):
            e.lds(f"ds_read_b128 {rng('v', vQ + 4 * (2 * u + par), 4)}, v{62 + par} offset:{u * 8192}", ("xr", 2 * u + par))
        sched = OPT.get("dma_sched") or [2 if uu >= OPT.get("dma_from", 0) else 0 for uu in range(8)]
        for k in range(sched[u]):
            if len(wq_pre) > 4:
                for fn in wq_pre.pop(0):
                    fn()
        if u > 0:
            stat_frag(2 * u - 2)
            stat_frag(2 * u - 1)
    e.need(vtags=[("wr", 0)])
    e(f"""
    v_lshrrev_b32 v58, 4, v{L}
    v_lshlrev_b32 v58, 4, v58
    v_add_u32 v58, s{sRING}, v58
    """)
    for p in range(16):
        e.lds(f"ds_read_b128 {rng('a', 128 + 4 * p, 4)}, v58 offset:{2 * SLOT + 4096 + p * 64}", ("wrf", p))
    stat_frag(14)
    stat_frag(15)
    e.nop(6)
    if not OPT.get("tailstamps") and not OPT.get("p3stamps"):
        stamp("x15_stats")
    s1, s2_, u0, u1, u2, u3 = 58, 59, 60, 61, 62, 63
    e(f"""
    v_accvgpr_read_b32 v{s1}, a{SUM}
    v_accvgpr_read_b32 v{u0}, a{GRM}
    v_accvgpr_read_b32 v{u1}, a{GRM + 1}
    v_accvgpr_read_b32 v{u2}, a{GRM + 2}
    v_accvgpr_read_b32 v{u3}, a{GRM + 3}
    v_cndmask_b32 v{u0}, v{u0}, v{u1}, s[{sMASK}:{sMASK + 1}]
    v_cndmask_b32 v{u0}, v{u0}, v{u2}, s[{sMASK + 2}:{sMASK + 3}]
    v_cndmask_b32 v{u0}, v{u0}, v{u3}, s[{sMASK + 4}:{sMASK + 5}]
    v_cndmask_b32 v{u0}, 0, v{u0}, s[98:99]
    v_mov_b32 v{u1}, v{u0}
    s_nop 1
    v_permlane32_swap_b32 v{u0}, v{u1}
    s_nop 0
    v_add_f32 v{u0}, v{u0}, v{u1}
    v_mov_b32 v{u1}, v{u0}
    s_nop 1
    v_permlane16_swap_b32 v{u0}, v{u1}
    s_nop 0
    v_add_f32 v{s2_}, v{u0}, v{u1}
    v_mul_f32 v{s1}, {hex(f2u(1.0 / 512))}, v{s1}     ; mean
    v_mul_f32 v{s2_}, {hex(f2u(1.0 / 512))}, v{s2_}
    v_fma_f32 v{s2_}, -v{s1}, v{s1}, v{s2_}      ; var
    v_max_f32 v{s2_}, 0, v{s2_}
    v_cvt_pk_bf16_f32 v{u0}, v{s1}, v{s2_}
    v_and_b32 v{u1}, s100, v{u0}
    v_add_f32 v{u1}, {hex(f2u(1e-5))}, v{u1}
    v_cvt_pk_bf16_f32 v{u1}, v{u1}, v{u1}
    v_and_b32 v{u1}, s100, v{u1}
    v_sqrt_f32 v{u1}, v{u1}
    v_lshlrev_b32 v{s1}, 16, v{u0}             ; mean_b f32
    v_cvt_pk_bf16_f32 v{u1}, v{u1}, v{u1}
    v_and_b32 v{u2}, s100, v{u1}                ; sd_b f32
    v_rcp_f32 v{u3}, v{u2}
    v_and_b32 v{u0}, 0xffff, v{u0}
    v_or_b32 v31, v{u0}, v{u2}
    v_mul_f32 v{u3}, {hex(f2u(C_SCALE))}, v{u3}     ; rsc
    v_mul_f32 v{u2}, v{s1}, v{u3}
    v_sub_f32 v{u2}, 0, v{u2}
    """)
    e(f"""
    v_mov_b32 v60, v{u3}
    v_mov_b32 v61, v{u3}
    v_mov_b32 v63, v{u2}
    """)
    e(f"""
    s_lshl_b32 s{sT0}, s{sW}, 10
    v_add_u32 v{s1}, s{sT0}, v{vBR}
    """)
    for p in range(16):
        for i in range(4):
            src = 128 + 8 * p + 2 * i
            e(f"v_pk_fma_f32 v[{src}:{src + 1}], v[{src}:{src + 1}], v[60:61], v[62:63]")
        for i in range(4):
            src = 128 + 8 * p + 2 * i
            e(f"v_cvt_pk_bf16_f32 v{vQ + 4 * p + i}, v{src}, v{src + 1}")
        e.lds(f"ds_write_b128 v{s1}, {rng('v', vQ + 4 * p, 4)} offset:{p * 4096}", ("xw", p))
        if len(wq_pre) > OPT.get("w2late", 0) and p % OPT.get("dma_norm", 2) == 0 and not OPT.get("dma_late"):
            if len(wq_pre) <= 4:
                e.need(ltags=[("wrf", 15)])
            for fn in wq_pre.pop(0):
                fn()
    e.need(ltags=[("wrf", 15)])
    while len(wq_pre) > OPT.get("w2late", 0):
        for fn in wq_pre.pop(0):
            fn()
    e.need(ltags=[("xw", 15)])
    e("s_barrier")
    if not OPT.get("tailstamps") and not OPT.get("p3stamps"):
        stamp("ln_done")
    gemm_pre(e, 1)
    while wq_pre:
        for fn in wq_pre.pop(0):
            fn()
    for p in range(16):
        c = "0" if p == 0 else "a[76:79]"
        e(f"v_mfma_f32_16x16x32_bf16 a[76:79], {rng('a', 128 + 4 * p, 4)}, {rng('v', vQ + 4 * p, 4)}, {c}")
    e.nop(8)
    e(f"""
    v_accvgpr_read_b32 v58, a76
    v_mul_f32 v58, {hex(f2u(1.0 / C_SCALE))}, v58
    v_cvt_pk_bf16_f32 v58, v58, v58
    v_and_b32 v59, s100, v58
    v_ashrrev_i32 v58, 31, v59
    v_or_b32 v58, 0x80000000, v58
    v_xor_b32 v59, v59, v58                  ; monotone map
    s_lshl_b32 s{sT0}, s{sTB}, 6
    s_lshl_b32 s{sT1}, s{sW}, 4
    s_add_u32 s{sT0}, s{sT0}, s{sT1}
    s_sub_u32 s{sT0}, 2047, s{sT0}
    v_and_b32 v58, 15, v{vLANE}
    v_sub_u32 v58, s{sT0}, v58               ; 2047 - token
    v_and_or_b32 v59, v59, s100, v58
    """)

    def lines(txt):
        return [t.strip() for t in txt.strip().split("\n") if t.strip()]

    st13 = lines(f"""
    s_add_u32 s{sGA}, s{S_WS}, {WS_R} | s_addc_u32 s{sGA + 1}, s{S_WS + 1}, 0
    s_mov_b32 s{sGA + 2}, 8192
    s_mov_b32 s{sGA + 3}, 0x20000
    s_add_u32 s{sGB}, s{S_WS}, {WS_STAT} | s_addc_u32 s{sGB + 1}, s{S_WS + 1}, 0
    s_mov_b32 s{sGB + 2}, 8192
    s_mov_b32 s{sGB + 3}, 0x20000
    s_lshl_b32 s{sT2}, s{sTB}, 6
    s_lshl_b32 s{sT1}, s{sW}, 4
    s_add_u32 s{sT2}, s{sT2}, s{sT1}
    v_add_u32 v58, s{sT2}, v{vLANE}
    v_lshlrev_b32 v58, 2, v58
    v_cmp_gt_u32 vcc, 16, v{vLANE}
    s_cmp_eq_u32 s{sG}, 0 | s_cselect_b64 s[{sMASK}:{sMASK + 1}], -1, 0
    v_mov_b32 v60, 0x7ffffff0
    s_and_b64 vcc, vcc, s[{sMASK}:{sMASK + 1}]
    v_cndmask_b32 v58, v60, v58, vcc
    """)
    st13 = [(x, None) for x in st13]
    st13.append((f"buffer_store_dword v59, v58, s[{sGA}:{sGA + 3}], 0 offen sc1", ("st", 0)))
    st13.append((f"buffer_store_dword v31, v58, s[{sGB}:{sGB + 3}], 0 offen sc1", ("st", 1)))
    if OPT.get("fused"):
        st13 += [(x, None) for x in lines(f"""
        s_lshl_b32 s{sT2}, s{sTB}, 3
        s_add_u32 s{sT2}, s{sT2}, s{sG}
        s_lshl_b32 s{sT2}, s{sT2}, 2
        s_add_u32 s{sT2}, s{sT2}, {WS_FLG}
        s_cmp_eq_u32 s{sW}, 0 | s_cselect_b32 s{sT2}, s{sT2}, 0x7fff0000
        v_lshlrev_b32 v58, 10, v{vLANE}
        v_add_u32 v58, s{sT2}, v58
        v_mov_b32 v60, 0x7fff0000
        v_cmp_gt_u32 vcc, 9, v{vLANE}
        v_mov_b32 v61, 0
        s_nop 0
        v_cndmask_b32 v58, v60, v58, vcc
        """)]
        st13.append((f"buffer_store_dword v61, v58, s[{S_WS}:{S_WS + 3}], 0 offen sc1", ("st", 2)))
    st14 = [f"v_mov_b32 v{vL + i}, 0" for i in range(4)]
    for i in range(4):
        st14 += [f"v_mov_b32 v{vGA + i}, v{vKDM + i}", f"v_mov_b32 v{vGB + i}, v{vVDM}"]
    st14 += lines(f"""
    s_mov_b32 s{sPASS}, 0
    v_mov_b32 v31, v{vKR}
    v_mov_b32 v63, v{vVR}
    s_min_u32 s{sSL}, s2, 223
    s_lshl_b32 s{sT2}, s{sW}, 7
    v_add_u32 v3, s{sT2}, v{vLANE}
    v_mul_u32_u24 v3, 3584, v3
    s_lshl_b32 s{sT2}, s{sSL}, 4
    v_add_u32 v3, s{sT2}, v3
    v_lshrrev_b32 v4, 4, v{vLANE}
    v_lshlrev_b32 v4, 10, v4
    v_and_b32 v2, 15, v{vLANE}
    v_lshl_add_u32 v4, v2, 4, v4
    s_lshl_b32 s{sT2}, s{sSL}, 13
    s_lshl_b32 s{sT1}, s{sW}, 8
    s_add_u32 s{sT2}, s{sT2}, s{sT1}
    v_add_u32 v4, s{sT2}, v4
    """)

    def emit_item(x, tag):
        def f():
            for part in x.split(" | "):
                if tag is not None:
                    e.vm(part, tag)
                else:
                    e(part)
        return f

    def tail1(p):
        f = []

        def guard(pp):
            return lambda: e.need(ltags=[("A", pp + 1, 7)])
        if p == 12:
            f += [(21, guard(12))] + place(kv_dma(e, "K", 1, ("KV", 0, "K")), 21, 3)
        if p == 13:
            f += place(kv_dma(e, "V", 1, ("KV", 0, "V")), 1, 4)
            f += [(21, guard(13))] + place(kv_dma(e, "K", 2, ("KV", 1, "K")), 21, 3)
        if p == 14:
            f += place(kv_dma(e, "V", 2, ("KV", 1, "V")), 1, 4)
            f += [(21, guard(14))] + place(kv_dma(e, "K", 0, ("KV", 2, "K")), 21, 3)
        if p == 13:
            for n, (x, tag) in enumerate(st13):
                f.append((n * 31 // len(st13), emit_item(x, tag)))
        if p == 14:
            for n, x in enumerate(st14):
                f.append((n * 31 // len(st14), emit_item(x, None)))
        return f

    qside = Side()
    for dt in range(8):
        first = True
        for qb in range(2):
            R = vQ + (dt * 2 + qb) * 4
            a0 = vACC + (dt * 4 + 2 * qb) * 4
            a1 = a0 + 4
            qside.add(f"v_cvt_pk_bf16_f32 v{R}, v{a0}, v{a0 + 1}", cond=((15, 4 * dt + 8) if first else None))
            first = False
            qside.add(f"v_cvt_pk_bf16_f32 v{R + 1}, v{a0 + 2}, v{a0 + 3}")
            qside.add(f"v_cvt_pk_bf16_f32 v{R + 2}, v{a1}, v{a1 + 1}")
            qside.add(f"v_cvt_pk_bf16_f32 v{R + 3}, v{a1 + 2}, v{a1 + 3}")
        for qb in range(2):
            R = vQ + (dt * 2 + qb) * 4
            qside.add(f"v_permlane16_swap_b32 v{R}, v{R + 2}", gap=(0 if qb == 0 else 0))
            qside.add(f"v_permlane16_swap_b32 v{R + 1}, v{R + 3}", gap=(1 if qb == 1 else 0))
    if OPT.get("only"):
        def gs(name):
            lq = list(e.lq)
            stamp(name)
            if name in OPT["only"]:
                e.lq = lq
        GSTAMP[0] = gs
    gemm_main(e, 1, tail1, side=qside, side_steps=(15,))
    if not OPT.get("tailstamps") and not OPT.get("p3stamps"):
        stamp("p1_done")
    e.nop(8)
    qside.emit(e, 0, flush=True)
    for i in range(32):
        e(f"v_mov_b32 v{vNM + i}, 0")
    if OPT.get("only"):
        stamp("q_conv")
    e(f"L_p2_start:")
    e(f"""
    s_mov_b32 s{sGA}, s{S_K}
    s_mov_b32 s{sGA + 1}, s{S_K + 1}
    s_mov_b32 s{sGA + 2}, s{S_K + 2}
    s_mov_b32 s{sGB}, s{S_V}
    s_mov_b32 s{sGB + 1}, s{S_V + 1}
    s_mov_b32 s{sGB + 2}, s{S_V + 2}
    s_mov_b32 s{sKSL}, {2 * SLOT}
    s_mov_b32 s{sVSL}, {1 * SLOT}
    s_mov_b32 s{sTRIP}, 1
    s_add_u32 s{sGAM}, s{sRING}, {1 * SLOT}
    s_add_u32 s{sGBM}, s{sRING}, 4096
    s_lshl_b32 s{sGAO}, s{sW}, 13
    s_mov_b32 s{sMASK + 2}, {64 * 3584}
    s_mov_b32 s{S_WQ + 2}, {512 * 1792 * 2}
    """)
    e(f"""
    v_bfe_u32 v61, v{vLANE}, 2, 2               ; r
    v_lshrrev_b32 v59, 4, v{vLANE}              ; q4
    v_lshl_add_u32 v60, v59, 3, v61             ; 8 q4 + r
    v_lshlrev_b32 v60, 4, v60
    v_and_b32 v62, 1, v{vLANE}
    v_lshl_add_u32 v60, v62, 3, v60             ; + (c&1)*8
    v_bfe_u32 v62, v{vLANE}, 1, 1
    v_lshl_add_u32 v60, v62, 11, v60            ; + U
    s_lshl_b32 s{sT0}, s{sW}, 13
    v_add_u32 v60, s{sT0}, v60
    v_and_b32 v59, 1, v59
    v_lshl_add_u32 v61, v59, 2, v61             ; row 0..7
    v_lshlrev_b32 v61, 8, v61
    v_and_b32 v59, 3, v{vLANE}
    v_lshl_add_u32 v61, v59, 3, v61             ; + c*8
    v_add_u32 v61, s{sT0}, v61
    """)
    if OPT.get("wotouch"):
        e(f"""
        s_and_b32 s{sT0}, s{sTB}, 15
        s_lshl_b32 s{sT0}, s{sT0}, 2
        s_add_u32 s{sT0}, s{sT0}, s{sW}
        s_lshl_b32 s{sT0}, s{sT0}, 13
        v_lshlrev_b32 v62, 7, v{vLANE}
        v_add_u32 v62, s{sT0}, v62
        """)
    e.wait_all()
    e("s_barrier")
    for f in range(4):
        k_read(e, 0, f)
    e(f"""
    s_or_b32 s{sT0}, {'0' if OPT.get("fused") else 's%d' % sG}, s{sW}
    s_or_b32 s{sT0}, s{sT0}, s{sPASS}
    s_cmp_lg_u32 s{sT0}, 0
    s_cbranch_scc1 L_nopub
    """)
    if not OPT.get("xnopublish"):
        e(f"""
        v_mov_b32 v58, 0
        v_mov_b32 v59, 1
        v_cmp_eq_u32 vcc, 0, v{vLANE}
        s_nop 0
        s_and_saveexec_b64 s[{sMASK}:{sMASK + 1}], vcc
        global_atomic_add v58, v59, s[{sDBG}:{sDBG + 1}] sc1
        s_mov_b64 exec, s[{sMASK}:{sMASK + 1}]
        """)
    e("L_nopub:")
    if OPT.get("ipf2"):
        e(f"""
        s_getpc_b64 s[{sT0}:{sT0 + 1}]
        L_ipf2:
        s_lshr_b32 s{sT2}, s2, 3
        s_and_b32 s{sT2}, s{sT2}, {OPT["ipf2"] - 1}
        s_lshl_b32 s{sT2}, s{sT2}, 12
        s_lshl_b32 s{sT3}, s{sW}, 10
        s_add_u32 s{sT2}, s{sT2}, s{sT3}
        v_lshlrev_b32 v62, 4, v{vLANE}
        v_add_u32 v62, s{sT2}, v62
        v_min_u32 v62, (L_kend - L_ipf2 - 32) & 0xfffffff0, v62
        """)
        e.vm(f"global_load_dwordx4 a[36:39], v62, s[{sT0}:{sT0 + 1}]", ("ipf", 2))
    p2_iter(e, -1, qk=True, sm=False, pv=False, look="K",
            fill=[(i // 4, lambda i=i: e(f"v_accvgpr_write_b32 a{128 + i}, 0")) for i in range(64)])
    upd = []
    for i in range(8):
        upd.append((i // 4 * 8 + i % 4 if i < 4 else 9 + i, lambda i=i: e(f"v_add_u32 v{vKR + i}, {SLOT}, v{vKR + i}")))
    p2_iter(e, 0, qk=True, sm=True, pv=False, look="K", fill=upd, smstart=5)

    if OPT.get("only"):
        lqs = list(e.lq)
        stamp("p2_preloop")
        e.lq = lqs
    lq0 = list(e.lq)
    loop_align(e)
    e("L_p2_loop:")
    n0 = len(e.l)
    e("s_waitcnt vmcnt(1)")
    e.vq = []
    if not OPT.get("nobar"):
        e("s_barrier")
    D64 = 64 * 3584
    fill = []

    def grp(*lines):
        f = lambda: [e(x) for x in lines]
        f.ninstr = len(lines)
        return f

    def adv2(sreg):
        f = lambda: kv_adv(e, sreg)
        f.ninstr = 2
        return f
    fill.append((0, lambda: e(f"s_mov_b32 m0, s{sGAM}")))
    for i in range(4):
        if not OPT.get("nogdma"):
          fill.append((2 + 4 * i, lambda i=i: e.vm(
            f"buffer_load_dwordx4 v{vGA + i}, s[{sGA}:{sGA + 3}], s{sKO} offen offset:{i * 1024} lds", ("G", 0))))
    fill.append((15, adv2(sKO)))
    fill.append((16, lambda: e(f"s_mov_b32 m0, s{sGBM}")))
    for i in range(4):
        if not OPT.get("nogdma"):
          fill.append((18 + 4 * i, lambda i=i: e.vm(
            f"buffer_load_dwordx4 v{vGB + i}, s[{sGB}:{sGB + 3}], s{sVO} offen offset:{i * 1024} lds", ("G", 1))))
    fill.append((30, adv2(sVO)))
    for db in range(4):
        fill.append((24 + 2 * db, lambda db=db: e(f"v_add_u32 v{vVR + db}, 49152, v{vVR + db}")))
    fill.append((4, grp(f"s_add_u32 s{sT1}, s{sKSL}, {SLOT}", f"s_cmp_eq_u32 s{sT1}, {3 * SLOT}",
                        f"s_cselect_b32 s{sT1}, 0, s{sT1}")))
    fill.append((8, grp(f"s_sub_u32 s{sKD}, s{sT1}, s{sKSL}", f"s_sub_u32 s{sVD}, s{sKSL}, s{sVSL}")))
    fill.append((12, grp(f"s_sub_u32 s{sVD}, s{sVD}, 49152", f"s_mov_b32 s{sVSL}, s{sKSL}", f"s_mov_b32 s{sKSL}, s{sT1}")))
    fill.append((20, grp(f"s_cmp_ge_u32 s{sTRIP}, 3", f"s_cselect_b32 s{S_WQ}, s{sFP + 2}, s{sFP}",
                         f"s_cselect_b32 s{S_WQ + 1}, s{sFP + 3}, s{sFP + 1}")))
    fill.append((22, grp(f"s_bitcmp0_b32 s{sTRIP}, 0", f"s_cselect_b32 s{sGBO}, s{sMASK + 2}, 0")))
    fill.append((24, grp(f"s_cmp_ge_u32 s{sTRIP}, 5", f"s_cselect_b32 s{S_WQ}, s{sFP + 4}, s{S_WQ}",
                         f"s_cselect_b32 s{S_WQ + 1}, s{sFP + 5}, s{S_WQ + 1}")))
    fill.append((26, grp(f"s_cmp_ge_u32 s{sTRIP}, 5", f"s_cselect_b32 s{sGBO}, 0, s{sGBO}",
                         f"s_cselect_b64 s[{sMASK}:{sMASK + 1}], -1, 0")))
    fill.append((28, grp(f"s_cmp_ge_u32 s{sTRIP}, 6", f"s_cselect_b32 s{sGBO}, 4096, s{sGBO}")))
    p2_iter(e, 1, fill=fill)
    fill = []
    for i in range(8):
        fill.append((8 + 2 * i if i >= 4 else 2 * i, lambda i=i: e(f"v_add_u32 v{vKR + i}, s{sKD}, v{vKR + i}")))
    for db in range(4):
        fill.append((24 + 2 * db, lambda db=db: e(f"v_add_u32 v{vVR + db}, s{sVD}, v{vVR + db}")))
    fill.append((1, lambda: e(f"v_cndmask_b32 v1, v3, v4, s[{sMASK}:{sMASK + 1}]")))
    fill.append((2, lambda: e(f"s_mov_b32 m0, s{sGAO}")))
    if not OPT.get("nocdma"):
        def cdma():
            e(f"s_cmp_eq_u32 s{sTRIP}, 7")
            if OPT.get("wotouch"):
                e("s_cbranch_scc0 L_p2_c")
                e(f"buffer_load_dword a40, v62, s[{S_WO}:{S_WO + 3}], 0 offen")
                e("s_branch L_p2_noc")
                e("L_p2_c:")
            else:
                e("s_cbranch_scc1 L_p2_noc")
            e.vm(f"buffer_load_dwordx4 v1, s[{S_WQ}:{S_WQ + 3}], s{sGBO} offen lds", ("C", 0))
            e("L_p2_noc:")
        cdma.ninstr = 3
        fill.append((4, cdma))
    fill.append((6, lambda: e(f"s_add_u32 s{sGAO}, s{sGAO}, 1024")))
    fill.append((10, grp(f"s_add_u32 s{sGAM}, s{sRING}, s{sVSL}", f"s_add_u32 s{sT1}, s{sKSL}, {SLOT}")))
    fill.append((12, grp(f"s_cmp_eq_u32 s{sT1}, {3 * SLOT}", f"s_cselect_b32 s{sT1}, 0, s{sT1}",
                         f"s_add_u32 s{sGBM}, s{sRING}, s{sT1}")))
    fill.append((14, lambda: e(f"s_add_u32 s{sGBM}, s{sGBM}, 4096")))
    fill.append((28, lambda: e(f"s_add_u32 s{sTRIP}, s{sTRIP}, 1")))
    p2_iter(e, 2, fill=fill)
    e(f"""
    s_cmp_lg_u32 s{sTRIP}, 7
    s_cbranch_scc1 L_p2_noswitch
    s_mov_b32 s{sGA}, s{S_WO}
    s_mov_b32 s{sGA + 1}, s{S_WO + 1}
    s_mov_b32 s{sGA + 2}, s{S_WO + 2}
    s_mov_b32 s{sGB}, s{S_WO}
    s_mov_b32 s{sGB + 1}, s{S_WO + 1}
    s_mov_b32 s{sGB + 2}, s{S_WO + 2}
    s_mov_b32 s{sGAM}, s{sRING}
    s_add_u32 s{sGBM}, s{sRING}, 4096
    s_mov_b32 s{sKO}, s{sWOO}
    """)
    p3_adv(e)
    e(f"s_mov_b32 s{sVO}, s{sWOO}")
    p3_adv(e)
    for i in range(4):
        e(f"v_mov_b32 v{vGA + i}, v{vWO + i}")
        e(f"v_mov_b32 v{vGB + i}, v{vWO + i}")
    e("L_p2_noswitch:")
    e(f"s_cmp_lg_u32 s{sTRIP}, 8")
    e("s_cbranch_scc1 L_p2_loop")
    body = e.l[n0:]
    probs = check_hazards(body + body, "p2 loop x2")
    assert not probs or any(k.startswith("no") for k in OPT), "\n".join(probs[:10])
    sh = lambda q, d: [(t[0], t[1] + d) + tuple(t[2:]) if t else t for t in q]
    assert sh(lq0, 2) == e.lq, (lq0, e.lq)
    e.lq = sh(e.lq, 12)
    if OPT.get("only"):
        stamp("p2_loopend")
    e(f"s_waitcnt vmcnt({9 if OPT.get('wotouch') else 8})")
    e.vq = [("W", 0)] * 4 + [("W", 1)] * 4 + ([("touch", 0)] if OPT.get("wotouch") else [])
    for i in range(4):
        for rd in range(2):
            e.lds(f"ds_read_b64_tr_b16 {rng('a', 96 + 4 * i + 2 * rd, 2)}, v60 offset:{i * 512 + rd * 64}", ("fa", i))
    for t in range(8):
        e.lds(f"ds_read_b64_tr_b16 {rng('a', 112 + 2 * t, 2)}, v61 offset:{4096 + t * 32}", ("da", t))
    for f in range(4):
        v_read(e, 14, f, VORD_T)
    e.wait_all(vm=False)
    e("s_barrier")
    if OPT.get("only"):
        stamp("b15_start")
    fill = place(p3_dma(e, 2), 0, 2) + place(p3_dma(e, 3), 8, 2)
    for db in range(4):
        fill.append((7 + db, lambda db=db: e(f"v_add_u32 v{vVR + db}, 49152, v{vVR + db}")))
    e.lq = [t for t in e.lq]
    e(f"v_mov_b32 v62, 0")
    e.vm(f"global_load_dword v2, v62, s[{sDBG}:{sDBG + 1}] sc1", ("cnt", 0))
    p2_iter(e, 15, qk=False, sm=True, pv=True, look="V", fill=fill, vpre=False, vord_next=VORD_D)
    if OPT.get("only"):
        lqs = list(e.lq)
        stamp("b15_end")
        e.lq = lqs
    RL = [58, 60]
    side = Side()
    A = side.add
    A(f"v_add_f32 v{vL}, v{vL}, v{vL + 1}")
    A(f"v_add_f32 v{vL + 2}, v{vL + 2}, v{vL + 3}")
    A(f"v_mov_b32 v{vL + 1}, v{vL}")
    A(f"v_mov_b32 v{vL + 3}, v{vL + 2}")
    A(f"v_permlane32_swap_b32 v{vL}, v{vL + 1}", gap=2)
    A(f"v_permlane32_swap_b32 v{vL + 2}, v{vL + 3}", gap=1)
    A(f"v_add_f32 v{vL}, v{vL}, v{vL + 1}", gap=1)
    A(f"v_add_f32 v{vL + 2}, v{vL + 2}, v{vL + 3}")
    A(f"v_rcp_f32 v{RL[0]}, v{vL}")
    A(f"v_rcp_f32 v{RL[1]}, v{vL + 2}")
    A(f"s_mov_b32 s{sT2}, {hex(f2u(2.0 ** -40))}")
    A(f"s_mov_b32 s{sT3}, {hex(f2u(2.0 ** 40))}")
    A(f"v_cmp_lt_f32 s[{sMASK}:{sMASK + 1}], s{sT2}, v{vL}")
    A(f"v_cmp_gt_f32 s[{sMASK + 2}:{sMASK + 3}], s{sT3}, v{vL}")
    A(f"v_cmp_lt_f32 s[{sMASK + 4}:{sMASK + 5}], s{sT2}, v{vL + 2}")
    A(f"v_cmp_gt_f32 vcc, s{sT3}, v{vL + 2}")
    A(f"s_and_b64 s[{sMASK}:{sMASK + 1}], s[{sMASK}:{sMASK + 1}], s[{sMASK + 2}:{sMASK + 3}]", gap=2)
    A(f"s_and_b64 vcc, vcc, s[{sMASK + 4}:{sMASK + 5}]")
    A(f"s_and_b64 s[{sMASK}:{sMASK + 1}], s[{sMASK}:{sMASK + 1}], vcc")
    for db in range(4):
        wa = 61 + (db & 1)
        A(lambda db=db: [e(x) for x in (f"s_lshl_b32 s{sT1}, s{sW}, 2", f"s_add_u32 s{sT1}, s{sT1}, {db}",
                                        f"s_sub_u32 s{sT1}, s{sT1}, s{sSK}")])
        A(lambda: [e(x) for x in (f"s_and_b32 s{sT1}, s{sT1}, 15", f"s_lshl_b32 s{sT1}, s{sT1}, 12")])
        A(f"v_add_u32 v{wa}, s{sT1}, v{vOW}")
        for qb in range(2):
            src = aO + (db * 2 + qb) * 16
            T = 128 + ((db * 2 + qb) % 4) * 16 if False else 128 + (db * 2 + qb) * 16
            for i in range(16):
                A(f"v_accvgpr_read_b32 v{T + i}, a{src + i}", cond=((16, min(4 * db + 7, 99)) if (i == 0 and qb == 0) else None))
            for i in range(8):
                A(f"v_pk_mul_f32 v[{T + 2 * i}:{T + 2 * i + 1}], v[{T + 2 * i}:{T + 2 * i + 1}], v[{RL[qb]}:{RL[qb] + 1}] op_sel_hi:[1,0]")
            for i in range(8):
                A(f"v_cvt_pk_bf16_f32 v{T + i}, v{T + 2 * i}, v{T + 2 * i + 1}")
            for jp in range(2):
                A(lambda T=T, jp=jp, qb=qb, db=db, wa=wa: e.lds(
                    f"ds_write_b128 v{wa}, {rng('v', T + 4 * jp, 4)} offset:{qb * 2048 + jp * 512}", ("ow", db, qb, jp)))
    p2_iter(e, 16, qk=False, sm=False, pv=True, look=None, vord=VORD_D, side=side, cap=OPT.get("normcap", 5))
    if not OPT.get("tailstamps"):
        stamp("p2_done")
    e.nop(OPT.get("normnop", 10))
    side.emit(e, 0, flush=True)
    if OPT.get("only"):
        stamp("flush_end")
    e(f"""
    s_cmp_eq_u64 s[{sMASK}:{sMASK + 1}], -1
    s_cselect_b32 s{sT2}, 0, 1
    s_cmp_eq_u32 s{sPASS}, 0
    s_cselect_b32 s{sT2}, s{sT2}, 0
    s_cmp_eq_u32 s{sT2}, 0
    s_cbranch_scc1 L_noflag
    s_lshl_b32 s{sT0}, s{sW}, 2
    s_sub_u32 s{sT0}, s{sT0}, s{sSK}
    s_and_b32 s{sT0}, s{sT0}, 15
    s_lshl_b32 s{sT0}, s{sT0}, 12
    v_mov_b32 v58, s{sT0}
    v_mov_b32 v59, -1
    ds_write_b32 v58, v59
    L_noflag:
    """)
    for w_ in range(4):
        e(f"""
        s_sub_u32 s{sT0}, {4 * w_}, s{sSK}
        s_and_b32 s{sT0}, s{sT0}, 15
        s_lshl_b32 s{sT0}, s{sT0}, 12
        v_mov_b32 v{58 + w_}, s{sT0}
        """)
    e(f"""
    s_lshl_b32 s{sT1}, s{sW}, 11
    v_lshlrev_b32 v62, 5, v{vLANE}
    v_add_u32 v62, s{sT1}, v62
    v_add_u32 v62, {WS_R}, v62
    v_lshlrev_b32 v{vBR}, 4, v{vLANE}
    s_mov_b32 s48, 4096
    s_mov_b32 s49, 32768
    s_mov_b32 s50, {32768 + 4096}
    """)
    e.wait_all(vm=False)
    e("s_barrier")
    if OPT.get("only"):
        stamp("b2_bar")
    for w_ in range(4):
        e.lds(f"ds_read_b32 v{58 + w_}, v{58 + w_}", ("mk", w_))
    e.need(vtags=[("W", 0)])
    for fn in p3_reads(e, 0, 0)[8:] + p3_reads(e, 0, 0)[:8]:
        fn()
    serial(e, p3_dma(e, 4))
    e.need(ltags=[("mk", 3)])
    e(f"""
    v_and_b32 v58, v58, v59
    v_and_b32 v60, v60, v61
    v_max_u32 v58, v58, v60
    v_max_u32 v59, v59, v61
    """)
    e.l = e.l[:-4]
    e(f"""
    v_max_u32 v58, v58, v59
    v_max_u32 v60, v60, v61
    v_max_u32 v58, v58, v60
    s_nop 0
    v_readfirstlane_b32 s{sT0}, v58
    s_nop 0
    s_cmp_eq_u32 s{sT0}, -1
    s_cbranch_scc1 L_fallback
    L_p3_start:
    """)
    e.need(vtags=[("cnt", 0)])
    e(f"""
    v_readfirstlane_b32 s{sT0}, v2
    s_nop 0
    s_cmp_ge_u32 s{sT0}, {(256 if OPT.get("fused") else 32) + (1000 if OPT.get("xforceslow") else 0)}
    s_cselect_b32 s{sRDY}, 1, 0
    """)
    e.vm(f"buffer_load_dwordx4 v[88:91], v62, s[{S_WS}:{S_WS + 3}], 0 offen sc1", ("rl", 0))
    e.vm(f"buffer_load_dwordx4 v[92:95], v62, s[{S_WS}:{S_WS + 3}], 0 offen offset:16 sc1", ("rl", 1))
    assert [t for t in e.vq if t[0] == "W"] == [("W", u) for u in range(2, 5) for _ in range(4)], e.vq
    e.vq = [("W", u) for u in range(5) for _ in range(4)]
    import moe

    def tail3(u):
        return []

    def tail3_old(u):
        f = []
        lst = {28: [(S_WQ, 80, 0), (S_WQ, 81, 1024), (S_K, 80, 2048), (S_K, 81, 3072)], 29: [(S_V, 82, 4096), (S_V, 83, 5120)]}
        if u in lst and not OPT.get("nomoe") and not OPT.get("xnofw"):
            f.append((0, lambda u=u: e.need(ltags=[("A", u, 3)])))
            for n, (srd, v, off) in enumerate(lst[u]):
                f.append((1 + 3 * n, lambda off=off: e(f"s_add_u32 m0, s{sRING}, {2 * SLOT + off}")))
                f.append((2 + 3 * n, lambda srd=srd, v=v: e.vm(
                    f"buffer_load_dwordx4 v{v}, s[{srd}:{srd + 3}], 0 offen lds", ("fw", 0))))
        return f
    side_e, side = Side(), Side()
    sp = OPT.get("stspread", 2.0)
    for n, (x, gap) in enumerate(p3_epilogue_items(e, 0, [64, 68, 72, 76])):
        k, r = n // 7, n % 7
        pos = 16 + k * sp
        side_e.add(x, gap=gap, cond=((int(pos), 2 + int((pos % 1) * 16)) if r == 0 else None))
    if not OPT.get("nomoe"):
        moe.moe_side(e, side, dict(W=sW, RING=sRING, RDY=sRDY, M=100, X=S_X, WS=S_WS))
        side.q[0] = (side.q[0][0], side.q[0][1], (OPT.get("moestart", 4) if OPT.get("p3unroll", 1) else 16, 0))
    if OPT.get("p3stamps") or OPT.get("only"):
        def st_nowait(name):
            q = list(e.lq)
            stamp(name)
        STAMP[0] = st_nowait
    p3_phase(e, tail3, [side_e, side], None)
    side_e.emit(e, 0, flush=True)
    side.emit(e, 0, flush=True)
    stamp("p3_done")
    e.nop(6)
    side = Side()
    for (x, gap) in p3_epilogue_items(e, 1, [64, 68, 72, 76, 80, 84, 88, 92]):
        side.add(x, gap=gap)
    side.emit(e, 0, flush=True)
    stamp("epi")
    doneq = f"L_{label}_fin"
    RT = dict(X=S_X, WS=S_WS, WR=S_WR, W=sW, RING=sRING, SL=sSL, RDY=sRDY, DBG=sDBG, M=100, G=sG, TB=sTB,
              T=[42, 43, 44, 45, 46, 47, 60, 61, 62, 63, 64, 65, 66, 67], done=doneq,
              spin=OPT.get("spin", 4000), fused=OPT.get("fused"), NCNT=(256 if OPT.get("fused") else 32),
              stamp=(stamp if OPT.get("tailstamps") else (lambda n: None)), opt=OPT)
    if OPT.get("fused"):
        moe.moe_tail(e, RT)
    elif not OPT.get("nomoe"):
        e(f"""
        s_cmp_ge_u32 s2, 224
        s_cbranch_scc1 {doneq}
        s_nop 1
        """)
        moe.moe_tail(e, RT)
    e(f"{doneq}:")
    stamp("end")
    if stamps and OPT.get("dbgstamps"):
        e.wait_all()
        e(f"""
        v_mov_b32 v58, 16
        v_mov_b32 v59, s{sTS + 16}
        v_mov_b32 v60, 20
        s_not_b32 s{sT0}, s{sTS}
        v_mov_b32 v61, s{sT0}
        v_cmp_eq_u32 vcc, 0, v{vLANE}
        s_nop 0
        s_and_saveexec_b64 s[{sMASK}:{sMASK + 1}], vcc
        global_atomic_umax v58, v59, s[{sDBG}:{sDBG + 1}] sc1
        global_atomic_umax v60, v61, s[{sDBG}:{sDBG + 1}] sc1
        s_or_b32 s{sT0}, s2, s{sW}
        s_cmp_lg_u32 s{sT0}, 0
        s_cbranch_scc1 L_dbg_skip
        """)
        for k in range(1, 9):
            e(f"s_sub_u32 s{sT0}, s{sTS + 2 * k}, s{sTS}")
            e(f"v_mov_b32 v59, s{sT0}")
            e(f"v_mov_b32 v58, {24 + 4 * (k - 1)}")
            e(f"global_store_dword v58, v59, s[{sDBG}:{sDBG + 1}]")
            e("s_nop 1")
        e("L_dbg_skip:")
        e(f"s_mov_b64 exec, s[{sMASK}:{sMASK + 1}]")
    elif stamps:
        e.wait_all()
        e(f"""
        s_lshl_b32 s{sT0}, s2, 2
        s_add_u32 s{sT0}, s{sT0}, s{sW}
        s_lshl_b32 s{sT0}, s{sT0}, 7
        s_add_u32 s{sT0}, s{sT0}, {WS_TS}
        v_mov_b32 v58, s{sT0}
        v_cmp_eq_u32 vcc, 0, v{vLANE}
        s_nop 0
        s_and_saveexec_b64 s[{sMASK}:{sMASK + 1}], vcc
        """)
        for i in range(0, 20, 4):
            for q in range(4):
                e(f"v_mov_b32 v{60 + q}, s{min(sTS + i + q, sTS + 17)}")
            e(f"buffer_store_dwordx4 v[60:63], v58, s[{S_WS}:{S_WS + 3}], 0 offen offset:{i * 4}")
            e("s_nop 1")
        e(f"s_mov_b64 exec, s[{sMASK}:{sMASK + 1}]")
    e(f"s_branch {done}")
    e("L_fallback:")
    e(f"""
    s_barrier
    s_lshl_b32 s{sKO}, s{sKVT}, 14
    v_mov_b32 v{vKR}, v31
    v_mov_b32 v{vL}, 0xff800000
    v_mov_b32 v{vL + 2}, 0xff800000
    v_subrev_u32 v{vKR}, {SLOT}, v{vKR}
    s_mov_b32 s{sTRIP}, 0
    """)
    for s16 in range(1, 8):
        e(f"v_xor_b32 v{vKR + s16}, {32 * s16}, v{vKR}")
    e("L_fb_loop:")
    e("s_waitcnt vmcnt(0) lgkmcnt(0)")
    e("s_barrier")
    e.vq, e.lq = [], []
    serial(e, kv_dma(e, "K", 0, ("fbk", 0)))
    e.wait_all()
    e("s_barrier")
    for kb in range(2):
        for s16 in range(8):
            e(f"ds_read_b128 {Fbuf(s16)}, v{vKR + s16} offset:{kb * 49152}")
        e("s_waitcnt lgkmcnt(0)")
        for s16 in range(8):
            for qb in range(2):
                c = "0" if s16 == 0 else Sreg(0, qb)
                e(f"v_mfma_f32_32x32x16_bf16 {Sreg(0, qb)}, {Fbuf(s16)}, {Qreg(s16, qb)}, {c}")
        e.nop(16)
        for qb in range(2):
            m = vL + 2 * qb
            for i in range(0, 16, 2):
                e(f"v_max3_f32 v{m}, v{m}, {Sreg(0, qb, i)}, {Sreg(0, qb, i + 1)}")
    e(f"""
    s_add_u32 s{sTRIP}, s{sTRIP}, 1
    s_cmp_lt_u32 s{sTRIP}, 8
    s_cbranch_scc1 L_fb_loop
    v_mov_b32 v{vL + 1}, v{vL}
    v_mov_b32 v{vL + 3}, v{vL + 2}
    s_nop 1
    v_permlane32_swap_b32 v{vL}, v{vL + 1}
    v_permlane32_swap_b32 v{vL + 2}, v{vL + 3}
    s_nop 0
    v_max_f32 v{vL}, v{vL}, v{vL + 1}
    v_max_f32 v{vL + 2}, v{vL + 2}, v{vL + 3}
    """)
    for qb in range(2):
        for i in range(16):
            e(f"v_sub_f32 v{vNM + 16 * qb + i}, 0, v{vL + 2 * qb}")
    e(f"""
    s_barrier
    s_lshl_b32 s{sKO}, s{sKVT}, 14
    s_mov_b32 s{sVO}, s{sKO}
    s_lshl_b32 s{sWOO}, s{sSK}, 15
    v_mov_b32 v{vKR}, v31
    v_mov_b32 v{vVR}, v63
    s_mov_b32 s{sPASS}, 1
    """)
    for s16 in range(1, 8):
        e(f"v_xor_b32 v{vKR + s16}, {32 * s16}, v{vKR}")
    for db in range(1, 4):
        e(f"v_xor_b32 v{vVR + db}, {64 * db}, v{vVR}")
    for (which, slot) in (("K", 1), ("V", 1), ("K", 2), ("V", 2), ("K", 0)):
        serial(e, kv_dma(e, which, slot, ("fbp", 0)))
    for i in range(4):
        e(f"v_mov_b32 v{vL + i}, 0")
        e(f"v_mov_b32 v{vGA + i}, v{vKDM + i}")
        e(f"v_mov_b32 v{vGB + i}, v{vVDM}")
    for i in range(128):
        e(f"v_accvgpr_write_b32 a{128 + i}, 0")
    e("s_branch L_p2_start")
    e(f"{done}:")
    e("s_endpgm")
    e("L_kend:")
    sp = check_scc(e.l)
    if sp:
        print("\n".join(sp))
        raise SystemExit("scc")
    probs = check_hazards(e.l, "k1")
    if probs and not any(k.startswith("no") for k in OPT):
        print("\n".join(probs[:40]))
        raise SystemExit("hazards")
    return e.text()
```

```python
from emit import E, check_hazards, check_scc
from asmlib import KA

RB = 65536
WSTR = 24576
SLOT = 8192
C_SCALE = 1.4426950408889634 * (128 ** -0.5)

WS_PART = 0
WS_R = 16 << 20
WS_STAT = WS_R + 8192
WS_H = WS_R + 65536
WS_IDX = WS_H + 32768
WS_FLG = WS_R + 32768
WS_TS = 32 << 20


def f2u(x):
    import struct
    return struct.unpack("<I", struct.pack("<f", x))[0]


S_X, S_WQ, S_K, S_V, S_WO, S_WS, S_WR = 4, 8, 12, 16, 20, 24, 28
sG, sTB, sW, sSK = 32, 33, 34, 35
sWQO, sWOO, sKO, sVO = 36, 37, 38, 39
sRING = 40
sCNT = 41
sT0, sT1, sT2, sT3 = 42, 43, 44, 45
sKSL, sVSL = 46, 47
sKD, sVD = 48, 49
sTRIP = 50
sGA = 52
sGB = 56
sGAO, sGBO = 60, 61
sGAM, sGBM = 62, 63
sMASK = 64
sPASS = 70
sKVB = 71
sKVT = 51
sDBG = 72
sSL = 98
sRDY = 99
sFP = 92
sHFD = 70
sTS = 74

vLANE = 0
vWQ = 1
vWO = 5
vKDM = 9
vVDM = 13
vAA = 14
vAB = 22
vBR = 30
vKR = 32
vVR = 40
vGA = 44
vGB = 48
vL = 52
vOW = 56
vPS = 57
vT = 58
vQ = 64
vS = 128
vP = 192
vNM = 224
vACC = 128

aA = 0
aB = 96
aF = 0
aO = 128


def rng(f, b, n):
    return f"{f}[{b}:{b + n - 1}]" if n > 1 else f"{f}{b}"


def Bset(setidx, tq):
    if setidx < 2:
        return rng("a", aB + setidx * 16 + tq * 4, 4)
    return rng("v", 64 + tq * 4, 4)


def Aset(setidx, dt):
    return rng("a", aA + setidx * 32 + dt * 4, 4)


def Ahalf(setidx, dt, rd):
    return rng("a", aA + setidx * 32 + dt * 4 + 2 * rd, 2)


def acc16(dt, tq):
    return rng("v", vACC + (dt * 4 + tq) * 4, 4)


OPT = {}
STAMP = [None]
GSTAMP = [None]
P3_STATIC = [False]
NS3 = 5


class Slots:
    def __init__(self, n):
        self.n = n
        self.f = [[] for _ in range(n + 1)]

    def at(self, i, fn):
        self.f[min(max(i, 0), self.n)].append(fn)


def loop_align(e):
    a = OPT.get("align", 0)
    if a:
        e.l.append(f".p2align {a}")
    for _ in range(OPT.get("shift", 0)):
        e("s_nop 0")


class Side:
    def __init__(self):
        self.q = []
        self.last = None

    def add(self, x, gap=0, cond=None):
        self.q.append((x, gap, cond))

    def states_since(self, e):
        if self.last is None:
            return 99
        n = 0
        for l in e.l[self.last:]:
            t = l.strip()
            if t.endswith(":") or not t:
                continue
            n += int(t.split()[1], 0) + 1 if t.startswith("s_nop") else 1
        return n

    def emit(self, e, budget, pos=None, flush=False):
        while self.q and (budget > 0 or flush):
            x, gap, cond = self.q[0]
            if cond is not None and pos is not None and pos < cond and not flush:
                return
            have = self.states_since(e)
            if have < gap:
                if not flush:
                    return
                e.nop(gap - have)
            self.q.pop(0)
            if callable(x):
                x()
            else:
                e(x)
            self.last = len(e.l)
            budget -= 1


def gemm_step(e, p, phase, opts):
    j = p % 3
    jn = (p + 1) % 3
    va = vAA if phase == 1 else vAB
    rdoff = 1024 if phase == 1 else 2048
    sl = Slots(32)
    if opts.get("next", True):
        reads = []
        for dt in range(8):
            for rd in range(2):
                reads.append((dt, rd))
        spread = OPT.get("aspread", 16)
        for n, (dt, rd) in enumerate(reads):
            def f(dt=dt, rd=rd):
                if OPT.get("noaread"):
                    return
                e.lds(f"ds_read_b64_tr_b16 {Ahalf(jn, dt, rd)}, v{va + dt} offset:{jn * SLOT + rd * rdoff}",
                      ("A", p + 1, dt))
            sl.at(n * spread // 16, f)
        for tq in range(4):
            def f(tq=tq):
                e.lds(f"ds_read_b128 {Bset(jn, tq)}, v{vBR} offset:{opts['boff_next'] + tq * 1024}", ("B", p + 1, tq))
            sl.at(spread + tq, f)
    for pos, fn in opts.get("fill", []):
        sl.at(pos, fn)
    if opts.get("next", True):
        e.need(vtags=opts.get("vneed"))
    for n in range(32):
        dt, tq = n // 4, n % 4
        need = [("A", p, dt), ("B", p, tq)] + ([("B", p, 3), ("A", p, 7)] if n == 0 else [])
        e.need(ltags=need)
        c = "0" if opts.get("first") else acc16(dt, tq)
        e(f"v_mfma_f32_16x16x32_bf16 {acc16(dt, tq)}, {Aset(j, dt)}, {Bset(j, tq)}, {c}")
        for fn in sl.f[n]:
            fn()
        side = opts.get("side")
        if side is not None:
            side.emit(e, opts.get("cap", 2) - len(sl.f[n]), pos=(p, n))
    for fn in sl.f[32]:
        fn()


def wdma(e, phase, i, tag):
    if OPT.get("nodma") and tag[1] > 3:
        e.vq.append(tag)
        return
    if phase == 1:
        e.vm(f"buffer_load_dwordx4 v{vWQ + i}, s[{S_WQ}:{S_WQ + 3}], s{sWQO} offen offset:{i * 1024} lds", tag)
    else:
        e.vm(f"buffer_load_dwordx4 v{vWO + i}, s[{S_WO}:{S_WO + 3}], s{sWOO} offen offset:{i * 1024} lds", tag)


def wdma_adv(e, phase):
    if phase == 1:
        e(f"s_add_u32 s{sWQO}, s{sWQO}, {16 * 8192}")
        e(f"s_and_b32 s{sWQO}, s{sWQO}, {512 * 8192 - 1}")
    else:
        e(f"s_add_u32 s{sT0}, s{sWOO}, {16 * 1024}")
        e(f"s_and_b32 s{sT0}, s{sT0}, {512 * 1024 - 1}")
        e(f"s_and_b32 s{sWOO}, s{sWOO}, {~(512 * 1024 - 1) & 0xffffffff}")
        e(f"s_or_b32 s{sWOO}, s{sWOO}, s{sT0}")


def half_dma(e, phase, slot, half, tag):
    def m0():
        e(f"s_add_u32 m0, s{sRING}, {slot * SLOT + half * 4096}")
    out = [m0]
    for i in range(4):
        out.append(lambda i=i: wdma(e, phase, i, tag))
    out.append(lambda: wdma_adv(e, phase))
    return out


def serial(e, fl):
    fl[0]()
    e("s_nop 0")
    for fn in fl[1:]:
        fn()


def place(fl, start, stride):
    res = [(start, fl[0])]
    for i in range(4):
        res.append((start + 1 + i * stride, fl[1 + i]))
    res.append((start + 1 + 3 * stride, fl[5]))
    return res


def kv_dma(e, which, tile_slot, tag):
    out = []
    if which == "K":
        out.append(lambda: e(f"s_add_u32 m0, s{sRING}, {tile_slot * SLOT}"))
        for i in range(4):
            out.append(lambda i=i: e.vm(
                f"buffer_load_dwordx4 v{vKDM + i}, s[{S_K}:{S_K + 3}], s{sKO} offen offset:{i * 1024} lds", tag))
        out.append(lambda: kv_adv(e, sKO))
    else:
        out.append(lambda: e(f"s_add_u32 m0, s{sRING}, {tile_slot * SLOT + 4096}"))
        for i in range(4):
            out.append(lambda i=i: e.vm(
                f"buffer_load_dwordx4 v{vVDM}, s[{S_V}:{S_V + 3}], s{sVO} offen offset:{i * 1024} lds", tag))
        out.append(lambda: kv_adv(e, sVO))
    return out


def kv_adv(e, sreg):
    e(f"s_add_u32 s{sreg}, s{sreg}, 16384")
    e(f"s_and_b32 s{sreg}, s{sreg}, {8 * 16384 - 1}")


def gemm_pre(e, phase):
    va = vAA if phase == 1 else vAB
    rdoff = 1024 if phase == 1 else 2048
    e.need(vtags=[("W", 0, 0), ("W", 0, 1)])
    for tq in range(4):
        e.lds(f"ds_read_b128 {Bset(0, tq)}, v{vBR} offset:{tq * 1024}", ("B", 0, tq))
    for dt in range(8):
        for rd in range(2):
            e.lds(f"ds_read_b64_tr_b16 {Ahalf(0, dt, rd)}, v{va + dt} offset:{rd * rdoff}", ("A", 0, dt))


def gemm_main(e, phase, tail_fill, side=None, side_steps=range(10, 16)):
    e.need(ltags=[("A", 0, 7)])
    serial(e, half_dma(e, phase, 0, 0, ("W", 3, 0)))

    def step_opts(p, boff_next):
        fill = []
        sp = OPT.get("aspread", 16)
        if p + 3 <= 15:
            fl = half_dma(e, phase, p % 3, 1, ("W", p + 3, 1))
            fill += [(0, fl[0])] + [(2 + 4 * i, fl[1 + i]) for i in range(4)] + [(sp + 4, fl[5])]
        if p + 4 <= 15:
            fl = half_dma(e, phase, (p + 1) % 3, 0, ("W", p + 4, 0))

            def guard(p=p):
                e.need(ltags=[("A", p + 1, 7)])
            fill += [(sp + 5, guard), (sp + 5, fl[0])] + [(min(sp + 6 + 3 * i, 31), fl[1 + i]) for i in range(4)] + [(32, fl[5])]
        return dict(first=(p == 0), next=(p < 15), boff_next=boff_next, fill=fill,
                    vneed=[("W", p + 1, 0), ("W", p + 1, 1)])

    if GSTAMP[0]:
        GSTAMP[0]("p1_pre")
    o = step_opts(0, 1 * 4096)
    gemm_step(e, 0, phase, o)
    if GSTAMP[0]:
        GSTAMP[0]("p1_s0")
    lab = f"L_g{phase}_loop"
    e(f"s_mov_b32 s{sCNT}, 3")
    e(f"v_add_u32 v{vBR}, {1 * 4096}, v{vBR}")
    lq0, vq0 = list(e.lq), list(e.vq)
    loop_align(e)
    e(f"{lab}:")
    n0 = len(e.l)
    for u in range(3):
        p = 1 + u
        o = step_opts(p, (u + 1) * 4096)
        if u == 2:
            o["fill"] = o["fill"] + [(24, lambda: e(f"v_add_u32 v{vBR}, {3 * 4096}, v{vBR}")),
                                     (32, lambda: e(f"s_sub_u32 s{sCNT}, s{sCNT}, 1")),
                                     (32, lambda: e(f"s_cmp_lg_u32 s{sCNT}, 0"))]
        gemm_step(e, p, phase, o)
    e(f"s_cbranch_scc1 {lab}")
    body = e.l[n0:]
    probs = check_hazards(body + body, f"gemm{phase} loop x2")
    assert not probs or any(k.startswith("no") for k in OPT), "\n".join(probs[:10])
    sh = lambda q, d: [(t[0], t[1] + d) + tuple(t[2:]) if t else t for t in q]
    assert sh(lq0, 3) == e.lq or OPT.get('noaread'), (lq0, e.lq)
    assert sh(vq0, 3) == e.vq, (vq0, e.vq)
    e.lq, e.vq = sh(e.lq, 6), sh(e.vq, 6)
    for p in range(10, 16):
        if GSTAMP[0] and p in (10, 13):
            GSTAMP[0](f"p1_s{p}")
        o = step_opts(p, (p - 10 + 1) * 4096)
        o["fill"] = o["fill"] + tail_fill(p)
        o["side"] = side if p in side_steps else None
        o["cap"] = OPT.get("sidecap", 2)
        gemm_step(e, p, phase, o)


def acc3(hf, nt, tq):
    return rng("v", vACC + 64 * hf + (nt * 4 + tq) * 4, 4)


def A3(st, nt, rd=None):
    b = st * 16 + nt * 4
    return rng("a", b, 4) if rd is None else rng("a", b + 2 * rd, 2)


def B3(st, tq):
    return rng("a", 48 + st * 16 + tq * 4, 4)


def p3_dma(e, u):
    out = [lambda: e(f"s_add_u32 m0, s{sRING}, {(u % NS3) * 4096}")]
    for i in range(4):
        out.append(lambda i=i: e.vm(
            f"buffer_load_dwordx4 v{vWO + i}, s[{S_WO}:{S_WO + 3}], s{sWOO} offen offset:{i * 1024} lds", ("W", u)))

    def adv():
        p3_adv(e)
        if u == 9 and not OPT.get("p3unroll", 1):
            e(f"s_add_u32 s{sWOO}, s{sWOO}, s{sHFD}")
    out.append(adv)
    return out


def p3_adv(e):
    e(f"s_add_u32 s{sWOO}, s{sWOO}, {32 * 1024}")
    e(f"s_and_b32 s{sWOO}, s{sWOO}, {512 * 1024 - 1}")


def p3_reads(e, u, boff):
    st = u % 3
    r = []
    for nt in range(4):
        for rd in range(2):
            r.append(lambda nt=nt, rd=rd: e.lds(
                f"ds_read_b64_tr_b16 {A3(st, nt, rd)}, v{vAB + nt} offset:{(u % NS3) * 4096 + rd * 1024}", ("A", u, nt)))
    for tq in range(4):
        r.append(lambda tq=tq: e.lds(f"ds_read_b128 {B3(st, tq)}, v{vBR} offset:{boff + tq * 1024}", ("B", u, tq)))
    return r


def p3_step(e, u, boff_next, fill=(), side=None, cap=2):
    hf, st = u >> 4, u % 3
    sl = Slots(16)
    nxt = u < 31
    if nxt:
        rd = p3_reads(e, u + 1, boff_next)
        for n in range(8):
            sl.at(n, rd[n])
        for tq in range(4):
            sl.at(8 + tq, rd[8 + tq])
    if u + NS3 <= 31:
        fl = p3_dma(e, u + NS3)
        sl.at(0, fl[0])
        for i, pos in enumerate((2, 6, 12, 14)):
            sl.at(pos, fl[1 + i])
        sl.at(15, fl[5])
    for pos, fn in fill:
        sl.at(pos, fn)
    if nxt:
        e.need(vtags=[("W", u + 1)])
    for n in range(16):
        nt, tq = n // 4, n % 4
        e.need(ltags=[("A", u, nt), ("B", u, tq)] + ([("B", u, 3), ("A", u, 3)] if n == 0 else []))
        c = "0" if (u & 15) == 0 else acc3(hf, nt, tq)
        e(f"v_mfma_f32_16x16x32_bf16 {acc3(hf, nt, tq)}, {A3(st, nt)}, {B3(st, tq)}, {c}")
        for fn in sl.f[n]:
            fn()
        if side is not None:
            left = cap - len(sl.f[n])
            for sd in side:
                n0 = len(sd.q)
                sd.emit(e, left, pos=(u, n))
                left -= n0 - len(sd.q)
    for fn in sl.f[16]:
        fn()


def p3_epilogue_items(e, hf, regs):
    items = []
    k = 0
    for nt in range(4):
        for qb in range(2):
            R = regs[k % len(regs)]
            k += 1
            a0 = vACC + 64 * hf + (nt * 4 + 2 * qb) * 4
            a1 = a0 + 4
            items.append((f"v_cvt_pk_bf16_f32 v{R}, v{a0}, v{a0 + 1}", 2))
            items.append((f"v_cvt_pk_bf16_f32 v{R + 1}, v{a0 + 2}, v{a0 + 3}", 0))
            items.append((f"v_cvt_pk_bf16_f32 v{R + 2}, v{a1}, v{a1 + 1}", 0))
            items.append((f"v_cvt_pk_bf16_f32 v{R + 3}, v{a1 + 2}, v{a1 + 3}", 0))
            items.append((f"v_permlane16_swap_b32 v{R}, v{R + 2}", 2))
            items.append((f"v_permlane16_swap_b32 v{R + 1}, v{R + 3}", 1))
            off = (nt & 1) * 2048 + qb * 1024
            so = {(0, 0): "0", (0, 1): "s48", (1, 0): "s49", (1, 1): "s50"}[(hf, nt >> 1)]
            items.append((lambda R=R, off=off, nt=nt, qb=qb, so=so: e.vm(
                f"buffer_store_dwordx4 {rng('v', R, 4)}, v{vPS}, s[{S_WS}:{S_WS + 3}], {so} offen offset:{off} "
                + OPT.get("pstore", "sc1"), ("ps", hf, nt, qb)), 0))
    return items


def p3_loop_half0(e):
    p3_step(e, 0, 4096)
    e(f"s_mov_b32 s{sCNT}, 2")
    e(f"s_mov_b32 s{sHFD}, 0")
    e(f"v_add_u32 v{vBR}, {1 * 4096}, v{vBR}")
    lq0, vq0 = list(e.lq), list(e.vq)
    e("L_p3_loop:")
    n0 = len(e.l)
    for k in range(6):
        u = 1 + k
        fill = []
        if k == 5:
            fill = [(13, lambda: e(f"v_add_u32 v{vBR}, {6 * 4096}, v{vBR}")),
                    (15, lambda: e(f"s_mov_b32 s{sHFD}, 512")),
                    (15, lambda: e(f"s_sub_u32 s{sCNT}, s{sCNT}, 1")),
                    (15, lambda: e(f"s_cmp_lg_u32 s{sCNT}, 0"))]
        p3_step(e, u, (k + 1) * 4096, fill=fill)
    e("s_cbranch_scc1 L_p3_loop")
    body = e.l[n0:]
    probs = check_hazards(body + body, "p3 loop x2")
    assert not probs, "\n".join(probs[:10])
    sh = lambda q, d: [(t[0], t[1] + d) + tuple(t[2:]) if t else t for t in q]
    assert sh(lq0, 6) == e.lq, (lq0, e.lq)
    assert sh(vq0, 6) == e.vq, (vq0, e.vq)
    e.lq, e.vq = sh(e.lq, 6), sh(e.vq, 6)
    for u in range(13, 16):
        boff = (u - 13 + 1) * 4096 if u < 15 else -13 * 4096
        if u == 15:
            fill = [(0, lambda: e(f"v_subrev_u32 v{vBR}, {13 * 4096}, v{vBR}"))]
            p3_step(e, u, 0, fill=fill)
        else:
            p3_step(e, u, boff)


def p3_phase(e, tail_fill, side0, side1):
    if STAMP[0]:
        STAMP[0]("p3_start")
    if OPT.get("p3unroll", 1):
        cap = OPT.get("sidecap", 2)
        for u in range(16):
            fill = []
            if u == 15 - NS3:
                fill = [(16, lambda: e(f"s_add_u32 s{sWOO}, s{sWOO}, 512"))]
            P3_STATIC[0] = True
            p3_step(e, u, ((u + 1) & 15) * 4096, fill=fill, side=side0, cap=cap)
    else:
        p3_loop_half0(e)
    for u in range(16, 32):
        p = u & 15
        if STAMP[0] and u in (16, 24):
            STAMP[0](f"p3_u{u}")
        p3_step(e, u, ((p + 1) & 15) * 4096, fill=tail_fill(u), side=side0, cap=OPT.get("sidecap", 2))


def Sreg(par, qb, i=None):
    b = vS + par * 32 + qb * 16
    return rng("v", b, 16) if i is None else f"v{b + i}"


def Preg(par, qb, t):
    return rng("v", vP + par * 16 + qb * 8 + t * 4, 4)


def Qreg(s16, qb):
    return rng("v", vQ + (s16 * 2 + qb) * 4, 4)


def Oreg(db, qb):
    return rng("a", aO + (db * 2 + qb) * 16, 16)


def Fbuf(n, half=None):
    b = aF + (n % 8) * 4
    return rng("a", b, 4) if half is None else rng("a", b + 2 * half, 2)


def k_read(e, b, s16):
    if OPT.get("nokvread"):
        return
    e.lds(f"ds_read_b128 {Fbuf(s16)}, v{vKR + s16} offset:{(b & 1) * 49152}", ("K", b, s16))


def v_read(e, b, f, order=None):
    t, db = (order or VORD_T)[f]
    if OPT.get("nokvread"):
        return
    for rd in range(2):
        e.lds(f"ds_read_b64_tr_b16 {Fbuf(8 + f, rd)}, v{vVR + db} offset:{t * WSTR + rd * 2048}", ("V", b, f))


def sm_ops(e, b):
    par = b & 1
    ops = []
    S = lambda x: Sreg(par, x // 16, x % 16)
    exp = lambda x: (lambda: e(f"v_exp_f32 {S(x)}, {S(x)}") if not OPT.get("noexp") else None)
    add = lambda x: (lambda: e(f"v_add_f32 v{vL + (x // 16) * 2 + (x & 1)}, v{vL + (x // 16) * 2 + (x & 1)}, {S(x)}"))
    cvt = lambda k: (lambda: e(f"v_cvt_pk_bf16_f32 v{vP + par * 16 + k}, {S(2 * k)}, {S(2 * k + 1)}"))
    if OPT.get("nosm"):
        return []
    for k in range(16):
        ops.append((2 * k, exp(2 * k)))
        if k > 0:
            ops.append((2 * k, add(2 * k - 2)))
            ops.append((2 * k, cvt(k - 1)))
        ops.append((2 * k + 1, exp(2 * k + 1)))
        if k > 0:
            ops.append((2 * k + 1, add(2 * k - 1)))
    ops.append((32, add(30)))
    ops.append((32, add(31)))
    ops.append((32, cvt(15)))
    return ops


def sm_queue(e, b):
    par = b & 1
    S = lambda x: Sreg(par, x // 16, x % 16)
    exp = lambda x: (8, lambda: e(f"v_exp_f32 {S(x)}, {S(x)}"))
    add = lambda x: (4, lambda: e(f"v_add_f32 v{vL + (x // 16) * 2 + (x & 1)}, v{vL + (x // 16) * 2 + (x & 1)}, {S(x)}"))
    cvt = lambda k: (4, lambda: e(f"v_cvt_pk_bf16_f32 v{vP + par * 16 + k}, {S(2 * k)}, {S(2 * k + 1)}"))
    q = []
    if OPT.get("dotsum"):
        dot = lambda k: (OPT["dotsum"], lambda: e(f"v_dot2_f32_bf16 v{vL + (k // 8) * 2 + (k & 1)}, v{vP + par * 16 + k}, s67, v{vL + (k // 8) * 2 + (k & 1)}"))
        for k in range(32):
            q.append(exp(k))
            if k >= 2 and k % 2 == 0:
                q.append(cvt(k // 2 - 1))
            if k >= 3 and k % 2 == 1:
                q.append(dot((k - 1) // 2 - 1))
        q.append((4, lambda: e("s_nop 0")))
        q.append(cvt(15))
        q.append((4, lambda: e("s_nop 0")))
        q.append(dot(15))
        return q
    for k in range(32):
        q.append(exp(k))
        if k >= 1:
            q.append(add(k - 1))
        if k >= 2 and k % 2 == 0:
            q.append(cvt(k // 2 - 1))
    q.append(add(31))
    q.append(cvt(15))
    return q


VORD_T = [(f // 4, f % 4) for f in range(8)]
VORD_D = [(f % 2, f // 2) for f in range(8)]


def p2_iter(e, b, qk=True, sm=True, pv=True, look="K", fill=(), vpre=False, smstart=0, vord=VORD_T, vord_next=VORD_T,
            side=None, cap=5):
    mf = []
    if qk:
        par = (b + 1) & 1
        for s16 in range(8):
            for qb in range(2):
                c = rng("v", vNM + qb * 16, 16) if s16 == 0 else Sreg(par, qb)
                mf.append((f"v_mfma_f32_32x32x16_bf16 {Sreg(par, qb)}, {Fbuf(s16)}, {Qreg(s16, qb)}, {c}",
                           ("K", b + 1, s16), s16))
    if pv:
        par = (b - 1) & 1
        for f in range(8):
            t, db = vord[f]
            for qb in range(2):
                mf.append((f"v_mfma_f32_32x32x16_bf16 {Oreg(db, qb)}, {Fbuf(8 + f)}, {Preg(par, qb, t)}, {Oreg(db, qb)}",
                           ("V", b - 1, f), 8 + f))
    n = len(mf)
    sl = Slots(n)
    if qk and pv:
        for f in range(4, 8):
            sl.at(2 * (f - 4) + 1, lambda f=f: k_read(e, b + 1, f))
        for f in range(8):
            fn = lambda f=f: v_read(e, b - 1, f)
            fn.ninstr = 2
            sl.at(2 * (f + 4) + 1, fn)
        if look == "K":
            for f in range(4):
                sl.at(24 + 2 * f + 1, lambda f=f: k_read(e, b + 2, f))
    elif qk:
        for f in range(4, 8):
            sl.at(2 * (f - 4) + 1, lambda f=f: k_read(e, b + 1, f))
        if look == "K":
            for f in range(4):
                sl.at(8 + 2 * f + 1, lambda f=f: k_read(e, b + 2, f))
    else:
        if vpre:
            for f in range(4):
                v_read(e, b - 1, f, vord)
        for f in range(4, 8):
            sl.at(2 * (f - 4) + 1, lambda f=f: v_read(e, b - 1, f, vord))
        if look == "V":
            for f in range(4):
                sl.at(8 + 2 * f + 1, lambda f=f: v_read(e, b, f, vord_next))
    if OPT.get("greedy", 1) and n == 32 and sm:
        B = OPT.get("budget", 24)
        cost = [4 * sum(2 if False else 1 for _ in sl.f[i]) for i in range(n)]
        for i in range(n):
            cost[i] = 0
            for fn in sl.f[i]:
                cost[i] += 4 * getattr(fn, "ninstr", 1)
            if (i + 1) % 4 == 0:
                cost[i] += 4
        q = sm_queue(e, b)
        tot = sum(c for c, _ in q)
        ex = sorted(enumerate(fill), key=lambda t: (t[1][0], t[0]))
        ex = [(pos, fn) for _, (pos, fn) in ex]
        done = 0
        for i in range(n):
            left = B - cost[i]
            need = tot * (i + 1) / n
            while q and done < need and q[0][0] <= left + (4 if done + 12 < need else 0):
                c, fn = q.pop(0)
                sl.at(i, fn)
                left -= c
                done += c
            while ex and ex[0][0] <= i and (left >= 4 * getattr(ex[0][1], "ninstr", 1) or ex[0][0] + 3 <= i):
                pos, fn = ex.pop(0)
                sl.at(i, fn)
                left -= 4 * getattr(fn, "ninstr", 1)
            while q and q[0][0] <= left and done < need + 16:
                c, fn = q.pop(0)
                sl.at(i, fn)
                left -= c
                done += c
        for c, fn in q:
            sl.at(n, fn)
        for pos, fn in ex:
            sl.at(n, fn)
    else:
        if sm:
            ops = sm_ops(e, b)
            for (s, fn) in ops:
                sl.at(smstart + s * (n - smstart) // 32 if s < 32 else n, fn)
        for (s, fn) in fill:
            sl.at(s, fn)
    if vpre and sm:
        pass
    for i, (txt, tag, fi) in enumerate(mf):
        if i % 4 == 0:
            tags = [tag]
            if i + 2 < n:
                tags.append(mf[i + 2][1])
            e.need(ltags=tags)
        e(txt)
        for fn in sl.f[i]:
            fn()
        if side is not None:
            side.emit(e, cap - len(sl.f[i]), pos=(b, i))
    for fn in sl.f[n]:
        fn()


def gen_k1(label, stamps=False, debug=None, opt=None):
    OPT.clear()
    OPT.update(opt or {})
    STAMP[0] = None
    GSTAMP[0] = None
    e = E()
    nst = [0]

    def stamp(name, wait=True):
        if not stamps:
            return
        if OPT.get("only") and name not in OPT["only"]:
            return
        k = nst[0]
        assert k < 9
        e(f"{stamps} s[{sTS + 2 * k}:{sTS + 2 * k + 1}]   ; stamp {k} {name}")
        if wait:
            e.wait_all(vm=False)
        nst[0] += 1
    done = f"L_{label}_done"
    ipf_text = ""
    if OPT.get("ipf"):
        nb = OPT["ipf"]
        ipf_text = f"""
    L_kbase:
    s_getpc_b64 s[{sT0}:{sT0 + 1}]
    s_lshr_b32 s{sT2}, s2, 3
    s_and_b32 s{sT2}, s{sT2}, {nb - 1}
    s_lshl_b32 s{sT2}, s{sT2}, 12
    v_lshlrev_b32 v200, 4, v0
    v_add_u32 v200, s{sT2}, v200
    v_min_u32 v200, (L_kend - L_kbase - 32) & 0xfffffff0, v200
    global_load_dwordx4 v[200:203], v200, s[{sT0}:{sT0 + 1}]
    """
        e.vq.append(("ipf", 0))
    e(f"""
    s_cmp_ge_u32 s2, 256
    s_cbranch_scc1 {done}
    {ipf_text}
    s_load_dwordx2 s[4:5], s[0:1], 0
    s_load_dwordx2 s[12:13], s[0:1], 8
    s_load_dwordx2 s[16:17], s[0:1], 16
    s_load_dwordx2 s[8:9], s[0:1], 24
    s_load_dwordx2 s[20:21], s[0:1], {KA['wo']}
    s_load_dwordx2 s[28:29], s[0:1], {KA['wr']}
    s_load_dwordx2 s[24:25], s[0:1], {KA['ws']}
    s_load_dwordx2 s[{sDBG}:{sDBG + 1}], s[0:1], {KA['dbg']}
    s_load_dwordx4 s[{sFP}:{sFP + 3}], s[0:1], {KA['wg']}
    s_load_dwordx2 s[{sFP + 4}:{sFP + 5}], s[0:1], {KA['wd']}
    """)
    stamp("start", wait=False)
    e(f"""
    v_lshrrev_b32 v{vT}, 6, v0
    v_and_b32 v{vLANE}, 63, v0
    v_readfirstlane_b32 s{sW}, v{vT}
    """)
    mp = OPT.get("map", "A")
    if mp == "A":
        e(f"""
        s_and_b32 s{sG}, s2, 7
        s_lshr_b32 s{sTB}, s2, 3
        s_and_b32 s{sSK}, s{sTB}, 15
        s_and_b32 s{sKVT}, s{sTB}, 7
        """)
    elif mp == "B":
        e(f"""
        s_and_b32 s{sT0}, s2, 3
        s_lshl_b32 s{sT0}, s{sT0}, 1
        s_bfe_u32 s{sT1}, s2, {3 | (1 << 16)}
        s_or_b32 s{sG}, s{sT0}, s{sT1}
        s_bfe_u32 s{sT0}, s2, {2 | (1 << 16)}
        s_lshl_b32 s{sT0}, s{sT0}, 4
        s_lshr_b32 s{sT1}, s2, 4
        s_or_b32 s{sTB}, s{sT0}, s{sT1}
        s_and_b32 s{sSK}, s{sTB}, 7
        s_lshl_b32 s{sSK}, s{sSK}, 1
        s_and_b32 s{sKVT}, s{sTB}, 7
        """)
    elif mp == "C":
        e(f"""
        s_and_b32 s{sT0}, s2, 1
        s_lshl_b32 s{sT0}, s{sT0}, 2
        s_bfe_u32 s{sT1}, s2, {3 | (2 << 16)}
        s_or_b32 s{sG}, s{sT0}, s{sT1}
        s_bfe_u32 s{sT0}, s2, {1 | (2 << 16)}
        s_lshl_b32 s{sT0}, s{sT0}, 3
        s_lshr_b32 s{sT1}, s2, 5
        s_or_b32 s{sTB}, s{sT0}, s{sT1}
        s_and_b32 s{sSK}, s{sTB}, 7
        s_lshl_b32 s{sSK}, s{sSK}, 1
        s_and_b32 s{sKVT}, s{sTB}, 7
        """)
        if OPT.get("s4"):
            e(f"""
            s_and_b32 s{sSK}, s{sTB}, 3
            s_lshl_b32 s{sSK}, s{sSK}, 2
            """)
        if OPT.get("gskew"):
            e(f"""
            s_and_b32 s{sT0}, s{sG}, 3
            s_lshl_b32 s{sT0}, s{sT0}, 2
            s_add_u32 s{sSK}, s{sSK}, s{sT0}
            s_and_b32 s{sSK}, s{sSK}, 15
            """)
    L = vLANE
    t0, t1, t2, t3, t4, t5 = vT, vT + 1, vT + 2, vT + 3, vT + 4, vT + 5
    XV0, XV1 = 56, 57
    e(f"""
    v_and_b32 v{t2}, 15, v{L}
    v_lshrrev_b32 v{t3}, 4, v{L}
    s_lshl_b32 s{sT0}, s{sTB}, 6
    s_lshl_b32 s{sT1}, s{sW}, 4
    s_add_u32 s{sT0}, s{sT0}, s{sT1}
    v_lshrrev_b32 v{t0}, 3, v{L}
    v_add_u32 v{t0}, s{sT0}, v{t0}
    v_and_b32 v{t1}, 7, v{L}
    v_xor_b32 v{t1}, v{t1}, v{t3}
    v_lshlrev_b32 v{t1}, 4, v{t1}
    v_lshl_add_u32 v{XV0}, v{t0}, 10, v{t1}
    v_xor_b32 v{XV1}, 64, v{XV0}              ; chunk ^ 4
    v_add_u32 v{XV1}, 8192, v{XV1}            ; +8 tokens
    s_mul_i32 s{sRING}, s{sW}, {WSTR}
    s_add_u32 s{sRING}, s{sRING}, {RB}
    s_lshl_b32 s{sT3}, s{sW}, 10              ; w*1024
    s_lshl_b32 s101, s{sSK}, 6
    s_waitcnt lgkmcnt(0)
    """)
    for (dst, size) in [(S_X, 2097152), (S_K, 4194304), (S_V, 4194304), (S_WQ, 4194304),
                        (S_WO, 4194304), (S_WR, 1024), (S_WS, 0x10000000)]:
        e(f"""
        s_mov_b32 s{dst + 2}, {size}
        s_mov_b32 s{dst + 3}, 0x20000
        """)
    stamp("kernarg", wait=True)
    def xdma(u):
        for hb in range(2):
            e(f"s_add_u32 m0, s{sT3}, {(2 * u + hb) * 4096}")
            e("s_nop 0")
            e.vm(f"buffer_load_dwordx4 v{XV0 + hb}, s[{S_X}:{S_X + 3}], s101 offen lds", ("x", u, hb))
        e(f"s_add_u32 s101, s101, 128")
        e(f"s_and_b32 s101, s101, 1023")

    def wrdma():
        e(f"""
        s_lshl_b32 s{sT0}, s{sSK}, 2
        v_add_u32 v58, s{sT0}, v{L}
        v_and_b32 v58, 63, v58
        v_lshlrev_b32 v58, 4, v58
        s_add_u32 m0, s{sRING}, {2 * SLOT + 4096}
        s_nop 0
        """)
        e.vm(f"buffer_load_dwordx4 v58, s[{S_WR}:{S_WR + 3}], 0 offen lds", ("wr", 0))
    NU0 = OPT.get("nu0", 6)
    for u in range(NU0):
        xdma(u)
    e(f"""
    s_lshl_b32 s{sT0}, s{sG}, 2
    s_add_u32 s{sT0}, s{sT0}, s{sW}
    s_lshl_b32 s{sT0}, s{sT0}, 8            ; head*256
    v_lshlrev_b32 v{t4}, 1, v{t3}
    v_xor_b32 v{t4}, v{t4}, v{t2}
    v_lshlrev_b32 v{t5}, 13, v{t3}           ; rr*8192
    v_add_u32 v{t5}, s{sT0}, v{t5}
    v_lshl_add_u32 v{vWQ}, v{t4}, 4, v{t5}
    v_add_u32 v{vWQ + 1}, {32768 - 1024}, v{vWQ}
    v_xor_b32 v{t4}, 8, v{t4}
    v_lshl_add_u32 v{vWQ + 2}, v{t4}, 4, v{t5}
    v_add_u32 v{vWQ + 2}, {2 * (32768 - 1024)}, v{vWQ + 2}
    v_add_u32 v{vWQ + 3}, {32768 - 1024}, v{vWQ + 2}
    s_lshl_b32 s{sWQO}, s{sSK}, 18
    """)
    wq_pre = []
    for p in range(3):
        for h in range(2):
            fl = half_dma(e, 1, p, h, ("W", p, h))
            for i in range(4):
                grp = []
                if i == 0:
                    grp += [fl[0], lambda: e("s_nop 0")]
                grp.append(fl[1 + i])
                if i == 3:
                    grp.append(fl[5])
                wq_pre.append(grp)
    if OPT.get("early_dma", 0):
        for grp in wq_pre[:OPT["early_dma"]]:
            for fn in grp:
                fn()
        wq_pre = wq_pre[OPT["early_dma"]:]


    r_, c_ = 60, 61
    A0, A1, A2, A3, A4, A5 = 128, 129, 130, 131, 132, 133
    e(f"""
    v_bfe_u32 v{A0}, v{L}, 2, 2              ; r
    v_and_b32 v{A1}, 3, v{L}                 ; c
    v_lshrrev_b32 v{A2}, 4, v{L}             ; q4
    v_and_b32 v{A3}, 1, v{A2}
    v_lshl_or_b32 v{A3}, v{A3}, 2, v{A0}     ; phi
    v_lshlrev_b32 v{A3}, 1, v{A3}            ; f
    v_lshrrev_b32 v{A4}, 1, v{A1}
    v_xor_b32 v{A3}, v{A3}, v{A4}            ; chunk
    v_lshlrev_b32 v{A3}, 4, v{A3}
    v_and_b32 v{A4}, 1, v{A1}
    v_lshl_or_b32 v{A3}, v{A4}, 3, v{A3}     ; + (c&1)*8
    v_lshl_add_u32 v{A4}, v{A2}, 3, v{A0}    ; row
    v_lshl_add_u32 v{A3}, v{A4}, 8, v{A3}
    v_add_u32 v{vAA}, s{sRING}, v{A3}
    """)
    for dt in range(1, 8):
        e(f"v_xor_b32 v{vAA + dt}, {32 * dt}, v{vAA}")
    e(f"""
    v_and_b32 v{A3}, 1, v{A2}
    v_lshl_or_b32 v{A4}, v{A3}, 2, v{A0}     ; 4(q4&1) + r
    v_lshrrev_b32 v{A3}, 1, v{A4}            ; psi
    v_lshrrev_b32 v{A5}, 1, v{A2}
    v_lshl_or_b32 v{A4}, v{A5}, 4, v{A4}     ; row
    v_lshlrev_b32 v{A3}, 1, v{A3}
    v_lshrrev_b32 v{A5}, 1, v{A1}
    v_xor_b32 v{A3}, v{A3}, v{A5}            ; chunk
    v_lshlrev_b32 v{A3}, 4, v{A3}
    v_and_b32 v{A5}, 1, v{A1}
    v_lshl_or_b32 v{A3}, v{A5}, 3, v{A3}
    v_lshl_add_u32 v{A3}, v{A4}, 7, v{A3}
    v_add_u32 v{vAB}, s{sRING}, v{A3}
    """)
    for dt in range(1, 4):
        e(f"v_xor_b32 v{vAB + dt}, {32 * dt}, v{vAB}")
    e(f"""
    v_lshlrev_b32 v{vBR}, 4, v{L}            ; B read: X + l*16
    v_lshrrev_b32 v{A3}, 3, v{L}             ; row8
    v_lshrrev_b32 v{A4}, 1, v{A3}
    v_and_b32 v{A4}, 3, v{A4}
    v_lshlrev_b32 v{A4}, 1, v{A4}
    v_and_b32 v{A5}, 7, v{L}
    v_xor_b32 v{A4}, v{A4}, v{A5}
    v_lshlrev_b32 v{A4}, 4, v{A4}
    v_lshl_add_u32 v{A4}, v{A3}, 10, v{A4}
    s_lshl_b32 s{sT0}, s{sW}, 7
    v_add_u32 v{vWO}, s{sT0}, v{A4}
    v_add_u32 v{vWO + 1}, 7168, v{vWO}
    v_add_u32 v{vWO + 2}, {2 * 7168}, v{vWO}
    v_add_u32 v{vWO + 3}, {3 * 7168}, v{vWO}
    v_and_b32 v{A3}, 15, v{L}
    s_lshl_b32 s{sWOO}, s{sSK}, 15
    v_xor_b32 v{A4}, v{A2}, v{A3}            ; (l&15)^rr
    v_lshlrev_b32 v{A5}, 8, v{A2}
    v_lshl_add_u32 v{vKDM}, v{A4}, 4, v{A5}
    v_xor_b32 v{vKDM + 1}, 64, v{vKDM}
    v_xor_b32 v{vKDM + 2}, 128, v{vKDM}
    v_xor_b32 v{vKDM + 3}, 192, v{vKDM}
    v_lshlrev_b32 v{A4}, 2, v{A2}
    v_xor_b32 v{A4}, v{A4}, v{A3}
    v_lshl_add_u32 v{vVDM}, v{A4}, 4, v{A5}
    v_lshrrev_b32 v{A4}, 5, v{L}             ; h
    v_xor_b32 v{A4}, v{A4}, v{A3}
    v_lshlrev_b32 v{A4}, 4, v{A4}
    v_lshl_add_u32 v{A4}, v{A3}, 8, v{A4}
    v_and_b32 v{A5}, 1, v{A2}
    v_mul_u32_u24 v{A5}, {WSTR}, v{A5}
    v_add_u32 v{A4}, v{A4}, v{A5}
    v_add_u32 v{vKR}, {RB + 1 * SLOT}, v{A4}
    """)
    for s16 in range(1, 8):
        e(f"v_xor_b32 v{vKR + s16}, {32 * s16}, v{vKR}")
    e(f"""
    v_and_b32 v{A4}, 1, v{A2}
    v_lshlrev_b32 v{A4}, 1, v{A4}
    v_lshrrev_b32 v{A5}, 1, v{A1}
    v_or_b32 v{A4}, v{A4}, v{A5}
    v_lshlrev_b32 v{A5}, 2, v{A0}
    v_xor_b32 v{A4}, v{A4}, v{A5}
    v_lshlrev_b32 v{A4}, 4, v{A4}
    v_and_b32 v{A5}, 1, v{A1}
    v_lshl_or_b32 v{A4}, v{A5}, 3, v{A4}
    v_lshrrev_b32 v{A5}, 5, v{L}
    v_lshl_add_u32 v{A5}, v{A5}, 2, v{A0}    ; 4h + r
    v_lshl_add_u32 v{A4}, v{A5}, 8, v{A4}
    v_add_u32 v{vVR}, {RB + 4096 + 1 * SLOT}, v{A4}
    """)
    for db in range(1, 4):
        e(f"v_xor_b32 v{vVR + db}, {64 * db}, v{vVR}")
    e(f"""
    """)
    for u in range(NU0, 8):
        xdma(u)
    wrdma()
    if OPT.get("tlb"):
        T = OPT["tlb"]
        e(f"""
        v_lshlrev_b32 v58, 21, v{L}
        s_lshl_b32 s{sT0}, s{sTB}, 16
        v_add_u32 v58, s{sT0}, v58
        v_cmp_gt_u32 vcc, 9, v{L}
        v_mov_b32 v59, 0x7ffffff0
        s_nop 0
        v_cndmask_b32 v58, v59, v58, vcc
        """)
        e.vm(f"buffer_load_dword a96, v58, s[{S_WS}:{S_WS + 3}], 0 offen", ("tlb", 0))
        if "o" in T and not stamps:
            e(f"""
            s_load_dwordx2 s[88:89], s[0:1], {KA['out']}
            s_mov_b32 s90, 2097152
            s_mov_b32 s91, 0x20000
            s_lshl_b32 s{sT0}, s{sTB}, 16
            v_lshlrev_b32 v58, 10, v{L}
            v_add_u32 v58, s{sT0}, v58
            s_waitcnt lgkmcnt(0)
            """)
            e.vm(f"buffer_load_dword a97, v58, s[88:91], 0 offen", ("tlb", 4))
        if "w" in T:
            e(f"""
            v_lshlrev_b32 v58, 16, v{L}
            """)
            e.vm(f"buffer_load_dword a97, v58, s[{S_WO}:{S_WO + 3}], 0 offen", ("tlb", 1))
            e.vm(f"buffer_load_dword a98, v58, s[{S_K}:{S_K + 3}], 0 offen", ("tlb", 2))
            e.vm(f"buffer_load_dword a99, v58, s[{S_V}:{S_V + 3}], 0 offen", ("tlb", 3))
    e(f"""
    v_lshlrev_b32 v{vOW}, 4, v{A3}
    v_lshrrev_b32 v{A4}, 5, v{L}
    v_lshl_add_u32 v{vOW}, v{A4}, 8, v{vOW}
    v_and_b32 v{A4}, 1, v{A2}
    v_lshl_add_u32 v{vOW}, v{A4}, 10, v{vOW}
    """)
    e(f"""
    s_lshl_b32 s{sT0}, s{sG}, 5
    s_add_u32 s{sT0}, s{sT0}, s{sTB}
    s_lshl_b32 s{sT0}, s{sT0}, 3
    s_add_u32 s{sT0}, s{sT0}, s{sW}
    s_lshl_b32 s{sT0}, s{sT0}, 13
    v_lshlrev_b32 v{vPS}, 4, v{L}
    v_add_u32 v{vPS}, s{sT0}, v{vPS}
    s_lshl_b32 s{sKVB}, s{sG}, 19
    s_lshl_b32 s{sT0}, s{sW}, 12
    s_add_u32 s{sKVB}, s{sKVB}, s{sT0}
    s_add_u32 s{sKVB}, s{sKVB}, {1536 * 256}
    s_add_u32 s{S_K}, s{S_K}, s{sKVB}
    s_addc_u32 s{S_K + 1}, s{S_K + 1}, 0
    s_add_u32 s{S_V}, s{S_V}, s{sKVB}
    s_addc_u32 s{S_V + 1}, s{S_V + 1}, 0
    s_sub_u32 s{S_K + 2}, {131072}, s{sT0}
    s_mov_b32 s{S_V + 2}, s{S_K + 2}
    s_lshl_b32 s{sT0}, s{sG}, 19
    s_add_u32 s{S_WO}, s{S_WO}, s{sT0}
    s_addc_u32 s{S_WO + 1}, s{S_WO + 1}, 0
    s_mov_b32 s{S_WO + 2}, 524288
    s_lshl_b32 s{sKO}, s{sKVT}, 14
    s_mov_b32 s{sVO}, s{sKO}
    v_cmp_eq_u32 s[{sMASK}:{sMASK + 1}], 1, v{A1}
    v_cmp_eq_u32 s[{sMASK + 2}:{sMASK + 3}], 2, v{A1}
    v_cmp_eq_u32 s[{sMASK + 4}:{sMASK + 5}], 3, v{A1}
    v_cmp_eq_u32 s[98:99], v{A2}, v{A0}
    """)
    e(f"v_mov_b32 v{A5}, 0x3f803f80")
    for i in range(4):
        e(f"v_accvgpr_write_b32 a{64 + i}, v{A5}")
    e(f"s_mov_b32 s100, 0xffff0000")
    e("s_nop 0")
    SUM, GRM = 68, 72
    e(f"""
    v_and_b32 v58, 15, v{L}                  ; tok16
    v_lshrrev_b32 v59, 4, v{L}               ; q4
    v_bfe_u32 v60, v58, 1, 3                 ; swz
    v_xor_b32 v59, v59, v60
    v_lshlrev_b32 v59, 4, v59
    v_and_b32 v60, 7, v58
    v_lshl_add_u32 v59, v60, 7, v59
    v_lshrrev_b32 v60, 3, v58
    v_lshl_add_u32 v59, v60, 12, v59
    v_add_u32 v62, s{sT3}, v59
    v_xor_b32 v63, 64, v62
    """)

    for i in range(192, 256):
        e(f"v_accvgpr_write_b32 a{i}, 0")

    def stat_frag(p):
        e.need(ltags=[("xr", p)])
        xf = rng("v", vQ + 4 * p, 4)
        c1 = "0" if p == 0 else rng("a", SUM, 4)
        c2 = "0" if p == 0 else rng("a", GRM, 4)
        e(f"v_mfma_f32_16x16x32_bf16 {rng('a', SUM, 4)}, a[64:67], {xf}, {c1}")
        e(f"v_mfma_f32_16x16x32_bf16 {rng('a', GRM, 4)}, {xf}, {xf}, {c2}")
        for i in range(4):
            src = vQ + 4 * p + i
            dst = 128 + 8 * p + 2 * i
            e(f"v_lshlrev_b32 v{dst}, 16, v{src}")
            e(f"v_and_b32 v{dst + 1}, s100, v{src}")

    for u in range(8):
        e.need(vtags=[("x", u, 1)])
        for par in range(2):
            e.lds(f"ds_read_b128 {rng('v', vQ + 4 * (2 * u + par), 4)}, v{62 + par} offset:{u * 8192}", ("xr", 2 * u + par))
        sched = OPT.get("dma_sched") or [2 if uu >= OPT.get("dma_from", 0) else 0 for uu in range(8)]
        for k in range(sched[u]):
            if len(wq_pre) > 4:
                for fn in wq_pre.pop(0):
                    fn()
        if u > 0:
            stat_frag(2 * u - 2)
            stat_frag(2 * u - 1)
    e.need(vtags=[("wr", 0)])
    e(f"""
    v_lshrrev_b32 v58, 4, v{L}
    v_lshlrev_b32 v58, 4, v58
    v_add_u32 v58, s{sRING}, v58
    """)
    for p in range(16):
        e.lds(f"ds_read_b128 {rng('a', 128 + 4 * p, 4)}, v58 offset:{2 * SLOT + 4096 + p * 64}", ("wrf", p))
    stat_frag(14)
    stat_frag(15)
    e.nop(6)
    if not OPT.get("tailstamps") and not OPT.get("p3stamps"):
        stamp("x15_stats")
    s1, s2_, u0, u1, u2, u3 = 58, 59, 60, 61, 62, 63
    e(f"""
    v_accvgpr_read_b32 v{s1}, a{SUM}
    v_accvgpr_read_b32 v{u0}, a{GRM}
    v_accvgpr_read_b32 v{u1}, a{GRM + 1}
    v_accvgpr_read_b32 v{u2}, a{GRM + 2}
    v_accvgpr_read_b32 v{u3}, a{GRM + 3}
    v_cndmask_b32 v{u0}, v{u0}, v{u1}, s[{sMASK}:{sMASK + 1}]
    v_cndmask_b32 v{u0}, v{u0}, v{u2}, s[{sMASK + 2}:{sMASK + 3}]
    v_cndmask_b32 v{u0}, v{u0}, v{u3}, s[{sMASK + 4}:{sMASK + 5}]
    v_cndmask_b32 v{u0}, 0, v{u0}, s[98:99]
    v_mov_b32 v{u1}, v{u0}
    s_nop 1
    v_permlane32_swap_b32 v{u0}, v{u1}
    s_nop 0
    v_add_f32 v{u0}, v{u0}, v{u1}
    v_mov_b32 v{u1}, v{u0}
    s_nop 1
    v_permlane16_swap_b32 v{u0}, v{u1}
    s_nop 0
    v_add_f32 v{s2_}, v{u0}, v{u1}
    v_mul_f32 v{s1}, {hex(f2u(1.0 / 512))}, v{s1}     ; mean
    v_mul_f32 v{s2_}, {hex(f2u(1.0 / 512))}, v{s2_}
    v_fma_f32 v{s2_}, -v{s1}, v{s1}, v{s2_}      ; var
    v_max_f32 v{s2_}, 0, v{s2_}
    v_cvt_pk_bf16_f32 v{u0}, v{s1}, v{s2_}
    v_and_b32 v{u1}, s100, v{u0}
    v_add_f32 v{u1}, {hex(f2u(1e-5))}, v{u1}
    v_cvt_pk_bf16_f32 v{u1}, v{u1}, v{u1}
    v_and_b32 v{u1}, s100, v{u1}
    v_sqrt_f32 v{u1}, v{u1}
    v_lshlrev_b32 v{s1}, 16, v{u0}             ; mean_b f32
    v_cvt_pk_bf16_f32 v{u1}, v{u1}, v{u1}
    v_and_b32 v{u2}, s100, v{u1}                ; sd_b f32
    v_rcp_f32 v{u3}, v{u2}
    v_and_b32 v{u0}, 0xffff, v{u0}
    v_or_b32 v31, v{u0}, v{u2}
    v_mul_f32 v{u3}, {hex(f2u(C_SCALE))}, v{u3}     ; rsc
    v_mul_f32 v{u2}, v{s1}, v{u3}
    v_sub_f32 v{u2}, 0, v{u2}
    """)
    e(f"""
    v_mov_b32 v60, v{u3}
    v_mov_b32 v61, v{u3}
    v_mov_b32 v63, v{u2}
    """)
    e(f"""
    s_lshl_b32 s{sT0}, s{sW}, 10
    v_add_u32 v{s1}, s{sT0}, v{vBR}
    """)
    for p in range(16):
        for i in range(4):
            src = 128 + 8 * p + 2 * i
            e(f"v_pk_fma_f32 v[{src}:{src + 1}], v[{src}:{src + 1}], v[60:61], v[62:63]")
        for i in range(4):
            src = 128 + 8 * p + 2 * i
            e(f"v_cvt_pk_bf16_f32 v{vQ + 4 * p + i}, v{src}, v{src + 1}")
        e.lds(f"ds_write_b128 v{s1}, {rng('v', vQ + 4 * p, 4)} offset:{p * 4096}", ("xw", p))
        if len(wq_pre) > OPT.get("w2late", 0) and p % OPT.get("dma_norm", 2) == 0 and not OPT.get("dma_late"):
            if len(wq_pre) <= 4:
                e.need(ltags=[("wrf", 15)])
            for fn in wq_pre.pop(0):
                fn()
    e.need(ltags=[("wrf", 15)])
    while len(wq_pre) > OPT.get("w2late", 0):
        for fn in wq_pre.pop(0):
            fn()
    e.need(ltags=[("xw", 15)])
    e("s_barrier")
    if not OPT.get("tailstamps") and not OPT.get("p3stamps"):
        stamp("ln_done")
    gemm_pre(e, 1)
    while wq_pre:
        for fn in wq_pre.pop(0):
            fn()
    for p in range(16):
        c = "0" if p == 0 else "a[76:79]"
        e(f"v_mfma_f32_16x16x32_bf16 a[76:79], {rng('a', 128 + 4 * p, 4)}, {rng('v', vQ + 4 * p, 4)}, {c}")
    e.nop(8)
    e(f"""
    v_accvgpr_read_b32 v58, a76
    v_mul_f32 v58, {hex(f2u(1.0 / C_SCALE))}, v58
    v_cvt_pk_bf16_f32 v58, v58, v58
    v_and_b32 v59, s100, v58
    v_ashrrev_i32 v58, 31, v59
    v_or_b32 v58, 0x80000000, v58
    v_xor_b32 v59, v59, v58                  ; monotone map
    s_lshl_b32 s{sT0}, s{sTB}, 6
    s_lshl_b32 s{sT1}, s{sW}, 4
    s_add_u32 s{sT0}, s{sT0}, s{sT1}
    s_sub_u32 s{sT0}, 2047, s{sT0}
    v_and_b32 v58, 15, v{vLANE}
    v_sub_u32 v58, s{sT0}, v58               ; 2047 - token
    v_and_or_b32 v59, v59, s100, v58
    """)

    def lines(txt):
        return [t.strip() for t in txt.strip().split("\n") if t.strip()]

    st13 = lines(f"""
    s_add_u32 s{sGA}, s{S_WS}, {WS_R} | s_addc_u32 s{sGA + 1}, s{S_WS + 1}, 0
    s_mov_b32 s{sGA + 2}, 8192
    s_mov_b32 s{sGA + 3}, 0x20000
    s_add_u32 s{sGB}, s{S_WS}, {WS_STAT} | s_addc_u32 s{sGB + 1}, s{S_WS + 1}, 0
    s_mov_b32 s{sGB + 2}, 8192
    s_mov_b32 s{sGB + 3}, 0x20000
    s_lshl_b32 s{sT2}, s{sTB}, 6
    s_lshl_b32 s{sT1}, s{sW}, 4
    s_add_u32 s{sT2}, s{sT2}, s{sT1}
    v_add_u32 v58, s{sT2}, v{vLANE}
    v_lshlrev_b32 v58, 2, v58
    v_cmp_gt_u32 vcc, 16, v{vLANE}
    s_cmp_eq_u32 s{sG}, 0 | s_cselect_b64 s[{sMASK}:{sMASK + 1}], -1, 0
    v_mov_b32 v60, 0x7ffffff0
    s_and_b64 vcc, vcc, s[{sMASK}:{sMASK + 1}]
    v_cndmask_b32 v58, v60, v58, vcc
    """)
    st13 = [(x, None) for x in st13]
    st13.append((f"buffer_store_dword v59, v58, s[{sGA}:{sGA + 3}], 0 offen sc1", ("st", 0)))
    st13.append((f"buffer_store_dword v31, v58, s[{sGB}:{sGB + 3}], 0 offen sc1", ("st", 1)))
    if OPT.get("fused"):
        st13 += [(x, None) for x in lines(f"""
        s_lshl_b32 s{sT2}, s{sTB}, 3
        s_add_u32 s{sT2}, s{sT2}, s{sG}
        s_lshl_b32 s{sT2}, s{sT2}, 2
        s_add_u32 s{sT2}, s{sT2}, {WS_FLG}
        s_cmp_eq_u32 s{sW}, 0 | s_cselect_b32 s{sT2}, s{sT2}, 0x7fff0000
        v_lshlrev_b32 v58, 10, v{vLANE}
        v_add_u32 v58, s{sT2}, v58
        v_mov_b32 v60, 0x7fff0000
        v_cmp_gt_u32 vcc, 9, v{vLANE}
        v_mov_b32 v61, 0
        s_nop 0
        v_cndmask_b32 v58, v60, v58, vcc
        """)]
        st13.append((f"buffer_store_dword v61, v58, s[{S_WS}:{S_WS + 3}], 0 offen sc1", ("st", 2)))
    st14 = [f"v_mov_b32 v{vL + i}, 0" for i in range(4)]
    for i in range(4):
        st14 += [f"v_mov_b32 v{vGA + i}, v{vKDM + i}", f"v_mov_b32 v{vGB + i}, v{vVDM}"]
    st14 += lines(f"""
    s_mov_b32 s{sPASS}, 0
    v_mov_b32 v31, v{vKR}
    v_mov_b32 v63, v{vVR}
    s_min_u32 s{sSL}, s2, 223
    s_lshl_b32 s{sT2}, s{sW}, 7
    v_add_u32 v3, s{sT2}, v{vLANE}
    v_mul_u32_u24 v3, 3584, v3
    s_lshl_b32 s{sT2}, s{sSL}, 4
    v_add_u32 v3, s{sT2}, v3
    v_lshrrev_b32 v4, 4, v{vLANE}
    v_lshlrev_b32 v2, 1, v4
    v_lshlrev_b32 v4, 10, v4
    v_xor_b32 v2, v2, v{vLANE}
    v_and_b32 v2, 15, v2
    v_lshl_add_u32 v4, v2, 4, v4
    s_lshl_b32 s{sT2}, s{sSL}, 13
    s_lshl_b32 s{sT1}, s{sW}, 8
    s_add_u32 s{sT2}, s{sT2}, s{sT1}
    v_add_u32 v4, s{sT2}, v4
    """)

    def emit_item(x, tag):
        def f():
            for part in x.split(" | "):
                if tag is not None:
                    e.vm(part, tag)
                else:
                    e(part)
        return f

    def tail1(p):
        f = []

        def guard(pp):
            return lambda: e.need(ltags=[("A", pp + 1, 7)])
        if p == 12:
            f += [(21, guard(12))] + place(kv_dma(e, "K", 1, ("KV", 0, "K")), 21, 3)
        if p == 13:
            f += place(kv_dma(e, "V", 1, ("KV", 0, "V")), 1, 4)
            f += [(21, guard(13))] + place(kv_dma(e, "K", 2, ("KV", 1, "K")), 21, 3)
        if p == 14:
            f += place(kv_dma(e, "V", 2, ("KV", 1, "V")), 1, 4)
            f += [(21, guard(14))] + place(kv_dma(e, "K", 0, ("KV", 2, "K")), 21, 3)
        if p == 13:
            for n, (x, tag) in enumerate(st13):
                f.append((n * 31 // len(st13), emit_item(x, tag)))
        if p == 14:
            for n, x in enumerate(st14):
                f.append((n * 31 // len(st14), emit_item(x, None)))
        return f

    qside = Side()
    for dt in range(8):
        first = True
        for qb in range(2):
            R = vQ + (dt * 2 + qb) * 4
            a0 = vACC + (dt * 4 + 2 * qb) * 4
            a1 = a0 + 4
            qside.add(f"v_cvt_pk_bf16_f32 v{R}, v{a0}, v{a0 + 1}", cond=((15, 4 * dt + 8) if first else None))
            first = False
            qside.add(f"v_cvt_pk_bf16_f32 v{R + 1}, v{a0 + 2}, v{a0 + 3}")
            qside.add(f"v_cvt_pk_bf16_f32 v{R + 2}, v{a1}, v{a1 + 1}")
            qside.add(f"v_cvt_pk_bf16_f32 v{R + 3}, v{a1 + 2}, v{a1 + 3}")
        for qb in range(2):
            R = vQ + (dt * 2 + qb) * 4
            qside.add(f"v_permlane16_swap_b32 v{R}, v{R + 2}", gap=(0 if qb == 0 else 0))
            qside.add(f"v_permlane16_swap_b32 v{R + 1}, v{R + 3}", gap=(1 if qb == 1 else 0))
    if OPT.get("only"):
        def gs(name):
            lq = list(e.lq)
            stamp(name)
            if name in OPT["only"]:
                e.lq = lq
        GSTAMP[0] = gs
    gemm_main(e, 1, tail1, side=qside, side_steps=(15,))
    if not OPT.get("tailstamps") and not OPT.get("p3stamps"):
        stamp("p1_done")
    e.nop(8)
    qside.emit(e, 0, flush=True)
    for i in range(32):
        e(f"v_mov_b32 v{vNM + i}, 0")
    if OPT.get("only"):
        stamp("q_conv")
    e(f"L_p2_start:")
    e(f"""
    s_mov_b32 s{sGA}, s{S_K}
    s_mov_b32 s{sGA + 1}, s{S_K + 1}
    s_mov_b32 s{sGA + 2}, s{S_K + 2}
    s_mov_b32 s{sGB}, s{S_V}
    s_mov_b32 s{sGB + 1}, s{S_V + 1}
    s_mov_b32 s{sGB + 2}, s{S_V + 2}
    s_mov_b32 s{sKSL}, {2 * SLOT}
    s_mov_b32 s{sVSL}, {1 * SLOT}
    s_mov_b32 s{sTRIP}, 1
    s_add_u32 s{sGAM}, s{sRING}, {1 * SLOT}
    s_add_u32 s{sGBM}, s{sRING}, 4096
    s_lshl_b32 s{sGAO}, s{sW}, 13
    s_mov_b32 s{sMASK + 2}, {64 * 3584}
    s_mov_b32 s{S_WQ + 2}, {512 * 1792 * 2}
    """)
    e(f"""
    v_bfe_u32 v61, v{vLANE}, 2, 2               ; r
    v_lshrrev_b32 v59, 4, v{vLANE}              ; q4
    v_lshl_add_u32 v60, v59, 3, v61             ; 8 q4 + r
    v_lshlrev_b32 v60, 4, v60
    v_and_b32 v62, 1, v{vLANE}
    v_lshl_add_u32 v60, v62, 3, v60             ; + (c&1)*8
    v_bfe_u32 v62, v{vLANE}, 1, 1
    v_lshl_add_u32 v60, v62, 11, v60            ; + U
    s_lshl_b32 s{sT0}, s{sW}, 13
    v_add_u32 v60, s{sT0}, v60
    v_and_b32 v59, 1, v59
    v_lshl_add_u32 v59, v59, 2, v61             ; row 0..7
    v_lshlrev_b32 v59, 8, v59                   ; row*256
    v_lshlrev_b32 v61, 5, v61
    v_or_b32 v61, v61, v59
    v_bfe_u32 v59, v{vLANE}, 1, 1
    v_lshl_add_u32 v61, v59, 4, v61             ; + (c>>1)*16
    v_and_b32 v59, 1, v{vLANE}
    v_lshl_add_u32 v61, v59, 3, v61             ; + (c&1)*8
    v_add_u32 v61, s{sT0}, v61
    """)
    if OPT.get("wotouch"):
        e(f"""
        s_and_b32 s{sT0}, s{sTB}, 15
        s_lshl_b32 s{sT0}, s{sT0}, 2
        s_add_u32 s{sT0}, s{sT0}, s{sW}
        s_lshl_b32 s{sT0}, s{sT0}, 13
        v_lshlrev_b32 v62, 7, v{vLANE}
        v_add_u32 v62, s{sT0}, v62
        """)
    e.wait_all()
    e("s_barrier")
    for f in range(4):
        k_read(e, 0, f)
    e(f"""
    s_or_b32 s{sT0}, {'0' if OPT.get("fused") else 's%d' % sG}, s{sW}
    s_or_b32 s{sT0}, s{sT0}, s{sPASS}
    s_cmp_lg_u32 s{sT0}, 0
    s_cbranch_scc1 L_nopub
    """)
    if not OPT.get("xnopublish"):
        e(f"""
        v_mov_b32 v58, 0
        v_mov_b32 v59, 1
        v_cmp_eq_u32 vcc, 0, v{vLANE}
        s_nop 0
        s_and_saveexec_b64 s[{sMASK}:{sMASK + 1}], vcc
        global_atomic_add v58, v59, s[{sDBG}:{sDBG + 1}] sc1
        s_mov_b64 exec, s[{sMASK}:{sMASK + 1}]
        """)
    e("L_nopub:")
    e("v_xor_b32 v58, 32, v61")
    e("v_xor_b32 v59, 64, v61")
    e("v_xor_b32 v2, 96, v61")
    if OPT.get("ipf2"):
        e(f"""
        s_getpc_b64 s[{sT0}:{sT0 + 1}]
        L_ipf2:
        s_lshr_b32 s{sT2}, s2, 3
        s_and_b32 s{sT2}, s{sT2}, {OPT["ipf2"] - 1}
        s_lshl_b32 s{sT2}, s{sT2}, 12
        s_lshl_b32 s{sT3}, s{sW}, 10
        s_add_u32 s{sT2}, s{sT2}, s{sT3}
        v_lshlrev_b32 v62, 4, v{vLANE}
        v_add_u32 v62, s{sT2}, v62
        v_min_u32 v62, (L_kend - L_ipf2 - 32) & 0xfffffff0, v62
        """)
        e.vm(f"global_load_dwordx4 a[36:39], v62, s[{sT0}:{sT0 + 1}]", ("ipf", 2))
    p2_iter(e, -1, qk=True, sm=False, pv=False, look="K",
            fill=[(i // 4, lambda i=i: e(f"v_accvgpr_write_b32 a{128 + i}, 0")) for i in range(64)])
    upd = []
    for i in range(8):
        upd.append((i // 4 * 8 + i % 4 if i < 4 else 9 + i, lambda i=i: e(f"v_add_u32 v{vKR + i}, {SLOT}, v{vKR + i}")))
    p2_iter(e, 0, qk=True, sm=True, pv=False, look="K", fill=upd, smstart=5)

    if OPT.get("only"):
        lqs = list(e.lq)
        stamp("p2_preloop")
        e.lq = lqs
    lq0 = list(e.lq)
    loop_align(e)
    e("L_p2_loop:")
    n0 = len(e.l)
    e("s_waitcnt vmcnt(1)")
    e.vq = []
    if not OPT.get("nobar"):
        e("s_barrier")
    D64 = 64 * 3584
    fill = []

    def grp(*lines):
        f = lambda: [e(x) for x in lines]
        f.ninstr = len(lines)
        return f

    def adv2(sreg):
        f = lambda: kv_adv(e, sreg)
        f.ninstr = 2
        return f
    fill.append((0, lambda: e(f"s_mov_b32 m0, s{sGAM}")))
    for i in range(4):
        if not OPT.get("nogdma"):
          fill.append((2 + 4 * i, lambda i=i: e.vm(
            f"buffer_load_dwordx4 v{vGA + i}, s[{sGA}:{sGA + 3}], s{sKO} offen offset:{i * 1024} lds", ("G", 0))))
    fill.append((15, adv2(sKO)))
    fill.append((16, lambda: e(f"s_mov_b32 m0, s{sGBM}")))
    for i in range(4):
        if not OPT.get("nogdma"):
          fill.append((18 + 4 * i, lambda i=i: e.vm(
            f"buffer_load_dwordx4 v{vGB + i}, s[{sGB}:{sGB + 3}], s{sVO} offen offset:{i * 1024} lds", ("G", 1))))
    fill.append((30, adv2(sVO)))
    for db in range(4):
        fill.append((24 + 2 * db, lambda db=db: e(f"v_add_u32 v{vVR + db}, 49152, v{vVR + db}")))
    fill.append((4, grp(f"s_add_u32 s{sT1}, s{sKSL}, {SLOT}", f"s_cmp_eq_u32 s{sT1}, {3 * SLOT}",
                        f"s_cselect_b32 s{sT1}, 0, s{sT1}")))
    fill.append((8, grp(f"s_sub_u32 s{sKD}, s{sT1}, s{sKSL}", f"s_sub_u32 s{sVD}, s{sKSL}, s{sVSL}")))
    fill.append((12, grp(f"s_sub_u32 s{sVD}, s{sVD}, 49152", f"s_mov_b32 s{sVSL}, s{sKSL}", f"s_mov_b32 s{sKSL}, s{sT1}")))
    fill.append((20, grp(f"s_cmp_ge_u32 s{sTRIP}, 3", f"s_cselect_b32 s{S_WQ}, s{sFP + 2}, s{sFP}",
                         f"s_cselect_b32 s{S_WQ + 1}, s{sFP + 3}, s{sFP + 1}")))
    fill.append((22, grp(f"s_bitcmp0_b32 s{sTRIP}, 0", f"s_cselect_b32 s{sGBO}, s{sMASK + 2}, 0")))
    fill.append((24, grp(f"s_cmp_ge_u32 s{sTRIP}, 5", f"s_cselect_b32 s{S_WQ}, s{sFP + 4}, s{S_WQ}",
                         f"s_cselect_b32 s{S_WQ + 1}, s{sFP + 5}, s{S_WQ + 1}")))
    fill.append((26, grp(f"s_cmp_ge_u32 s{sTRIP}, 5", f"s_cselect_b32 s{sGBO}, 0, s{sGBO}",
                         f"s_cselect_b64 s[{sMASK}:{sMASK + 1}], -1, 0")))
    fill.append((28, grp(f"s_cmp_ge_u32 s{sTRIP}, 6", f"s_cselect_b32 s{sGBO}, 4096, s{sGBO}")))
    p2_iter(e, 1, fill=fill)
    fill = []
    for i in range(8):
        fill.append((8 + 2 * i if i >= 4 else 2 * i, lambda i=i: e(f"v_add_u32 v{vKR + i}, s{sKD}, v{vKR + i}")))
    for db in range(4):
        fill.append((24 + 2 * db, lambda db=db: e(f"v_add_u32 v{vVR + db}, s{sVD}, v{vVR + db}")))
    fill.append((1, lambda: e(f"v_cndmask_b32 v1, v3, v4, s[{sMASK}:{sMASK + 1}]")))
    fill.append((2, lambda: e(f"s_mov_b32 m0, s{sGAO}")))
    if not OPT.get("nocdma"):
        def cdma():
            e(f"s_cmp_eq_u32 s{sTRIP}, 7")
            if OPT.get("wotouch"):
                e("s_cbranch_scc0 L_p2_c")
                if OPT.get("ffnearly"):
                    e("s_waitcnt vmcnt(8)")
                    for i in range(4):
                        for rd in range(2):
                            e(f"ds_read_b64_tr_b16 {rng('a', 96 + 4 * i + 2 * rd, 2)}, v60 offset:{i * 512 + rd * 64}")
                    for t in range(8):
                        e(f"ds_read_b64_tr_b16 {rng('a', 112 + 2 * t, 2)}, v{[61, 58, 59, 2][t & 3]} offset:{4096 + (t >> 2) * 128}")
                e(f"buffer_load_dword a40, v62, s[{S_WO}:{S_WO + 3}], 0 offen")
                e("s_branch L_p2_noc")
                e("L_p2_c:")
            else:
                e("s_cbranch_scc1 L_p2_noc")
            e.vm(f"buffer_load_dwordx4 v1, s[{S_WQ}:{S_WQ + 3}], s{sGBO} offen lds", ("C", 0))
            e("L_p2_noc:")
        cdma.ninstr = 3
        fill.append((4, cdma))
    fill.append((6, lambda: e(f"s_add_u32 s{sGAO}, s{sGAO}, 1024")))
    fill.append((10, grp(f"s_add_u32 s{sGAM}, s{sRING}, s{sVSL}", f"s_add_u32 s{sT1}, s{sKSL}, {SLOT}")))
    fill.append((12, grp(f"s_cmp_eq_u32 s{sT1}, {3 * SLOT}", f"s_cselect_b32 s{sT1}, 0, s{sT1}",
                         f"s_add_u32 s{sGBM}, s{sRING}, s{sT1}")))
    fill.append((14, lambda: e(f"s_add_u32 s{sGBM}, s{sGBM}, 4096")))
    fill.append((28, lambda: e(f"s_add_u32 s{sTRIP}, s{sTRIP}, 1")))
    p2_iter(e, 2, fill=fill)
    e(f"""
    s_cmp_lg_u32 s{sTRIP}, 7
    s_cbranch_scc1 L_p2_noswitch
    s_mov_b32 s{sGA}, s{S_WO}
    s_mov_b32 s{sGA + 1}, s{S_WO + 1}
    s_mov_b32 s{sGA + 2}, s{S_WO + 2}
    s_mov_b32 s{sGB}, s{S_WO}
    s_mov_b32 s{sGB + 1}, s{S_WO + 1}
    s_mov_b32 s{sGB + 2}, s{S_WO + 2}
    s_mov_b32 s{sGAM}, s{sRING}
    s_add_u32 s{sGBM}, s{sRING}, 4096
    s_mov_b32 s{sKO}, s{sWOO}
    """)
    p3_adv(e)
    e(f"s_mov_b32 s{sVO}, s{sWOO}")
    p3_adv(e)
    for i in range(4):
        e(f"v_mov_b32 v{vGA + i}, v{vWO + i}")
        e(f"v_mov_b32 v{vGB + i}, v{vWO + i}")
    e("L_p2_noswitch:")
    e(f"s_cmp_lg_u32 s{sTRIP}, 8")
    e("s_cbranch_scc1 L_p2_loop")
    body = e.l[n0:]
    probs = check_hazards(body + body, "p2 loop x2")
    assert not probs or any(k.startswith("no") for k in OPT), "\n".join(probs[:10])
    sh = lambda q, d: [(t[0], t[1] + d) + tuple(t[2:]) if t else t for t in q]
    assert sh(lq0, 2) == e.lq, (lq0, e.lq)
    e.lq = sh(e.lq, 12)
    if OPT.get("only"):
        stamp("p2_loopend")
    e.vq = [("W", 0)] * 4 + [("W", 1)] * 4 + ([("touch", 0)] if OPT.get("wotouch") else [])
    if not OPT.get("ffnearly"):
        e(f"s_waitcnt vmcnt({9 if OPT.get('wotouch') else 8})")
        for i in range(4):
            for rd in range(2):
                e.lds(f"ds_read_b64_tr_b16 {rng('a', 96 + 4 * i + 2 * rd, 2)}, v60 offset:{i * 512 + rd * 64}", ("fa", i))
        for t in range(8):
            e.lds(f"ds_read_b64_tr_b16 {rng('a', 112 + 2 * t, 2)}, v{[61, 58, 59, 2][t & 3]} offset:{4096 + (t >> 2) * 128}", ("da", t))
    for f in range(4):
        v_read(e, 14, f, VORD_T)
    e.wait_all(vm=False)
    e("s_barrier")
    if OPT.get("only"):
        stamp("b15_start")
    fill = place(p3_dma(e, 2), 0, 2) + place(p3_dma(e, 3), 8, 2)
    for db in range(4):
        fill.append((7 + db, lambda db=db: e(f"v_add_u32 v{vVR + db}, 49152, v{vVR + db}")))
    e.lq = [t for t in e.lq]
    e(f"v_mov_b32 v62, 0")
    e.vm(f"global_load_dword v2, v62, s[{sDBG}:{sDBG + 1}] sc1", ("cnt", 0))
    p2_iter(e, 15, qk=False, sm=True, pv=True, look="V", fill=fill, vpre=False, vord_next=VORD_D)
    if OPT.get("only"):
        lqs = list(e.lq)
        stamp("b15_end")
        e.lq = lqs
    RL = [58, 60]
    side = Side()
    A = side.add
    A(f"v_add_f32 v{vL}, v{vL}, v{vL + 1}")
    A(f"v_add_f32 v{vL + 2}, v{vL + 2}, v{vL + 3}")
    A(f"v_mov_b32 v{vL + 1}, v{vL}")
    A(f"v_mov_b32 v{vL + 3}, v{vL + 2}")
    A(f"v_permlane32_swap_b32 v{vL}, v{vL + 1}", gap=2)
    A(f"v_permlane32_swap_b32 v{vL + 2}, v{vL + 3}", gap=1)
    A(f"v_add_f32 v{vL}, v{vL}, v{vL + 1}", gap=1)
    A(f"v_add_f32 v{vL + 2}, v{vL + 2}, v{vL + 3}")
    A(f"v_rcp_f32 v{RL[0]}, v{vL}")
    A(f"v_rcp_f32 v{RL[1]}, v{vL + 2}")
    A(f"s_mov_b32 s{sT2}, {hex(f2u(2.0 ** -40))}")
    A(f"s_mov_b32 s{sT3}, {hex(f2u(2.0 ** 40))}")
    A(f"v_cmp_lt_f32 s[{sMASK}:{sMASK + 1}], s{sT2}, v{vL}")
    A(f"v_cmp_gt_f32 s[{sMASK + 2}:{sMASK + 3}], s{sT3}, v{vL}")
    A(f"v_cmp_lt_f32 s[{sMASK + 4}:{sMASK + 5}], s{sT2}, v{vL + 2}")
    A(f"v_cmp_gt_f32 vcc, s{sT3}, v{vL + 2}")
    A(f"s_and_b64 s[{sMASK}:{sMASK + 1}], s[{sMASK}:{sMASK + 1}], s[{sMASK + 2}:{sMASK + 3}]", gap=2)
    A(f"s_and_b64 vcc, vcc, s[{sMASK + 4}:{sMASK + 5}]")
    A(f"s_and_b64 s[{sMASK}:{sMASK + 1}], s[{sMASK}:{sMASK + 1}], vcc")
    for db in range(4):
        wa = 61 + (db & 1)
        A(lambda db=db: [e(x) for x in (f"s_lshl_b32 s{sT1}, s{sW}, 2", f"s_add_u32 s{sT1}, s{sT1}, {db}",
                                        f"s_sub_u32 s{sT1}, s{sT1}, s{sSK}")])
        A(lambda: [e(x) for x in (f"s_and_b32 s{sT1}, s{sT1}, 15", f"s_lshl_b32 s{sT1}, s{sT1}, 12")])
        A(f"v_add_u32 v{wa}, s{sT1}, v{vOW}")
        for qb in range(2):
            src = aO + (db * 2 + qb) * 16
            T = 128 + ((db * 2 + qb) % 4) * 16 if False else 128 + (db * 2 + qb) * 16
            for i in range(16):
                A(f"v_accvgpr_read_b32 v{T + i}, a{src + i}", cond=((16, min(4 * db + 7, 99)) if (i == 0 and qb == 0) else None))
            for i in range(8):
                A(f"v_pk_mul_f32 v[{T + 2 * i}:{T + 2 * i + 1}], v[{T + 2 * i}:{T + 2 * i + 1}], v[{RL[qb]}:{RL[qb] + 1}] op_sel_hi:[1,0]")
            for i in range(8):
                A(f"v_cvt_pk_bf16_f32 v{T + i}, v{T + 2 * i}, v{T + 2 * i + 1}")
            for jp in range(2):
                A(lambda T=T, jp=jp, qb=qb, db=db, wa=wa: e.lds(
                    f"ds_write_b128 v{wa}, {rng('v', T + 4 * jp, 4)} offset:{qb * 2048 + jp * 512}", ("ow", db, qb, jp)))
    p2_iter(e, 16, qk=False, sm=False, pv=True, look=None, vord=VORD_D, side=side, cap=OPT.get("normcap", 5))
    if not OPT.get("tailstamps"):
        stamp("p2_done")
    e.nop(OPT.get("normnop", 10))
    side.emit(e, 0, flush=True)
    if OPT.get("only"):
        stamp("flush_end")
    e(f"""
    s_cmp_eq_u64 s[{sMASK}:{sMASK + 1}], -1
    s_cselect_b32 s{sT2}, 0, 1
    s_cmp_eq_u32 s{sPASS}, 0
    s_cselect_b32 s{sT2}, s{sT2}, 0
    s_cmp_eq_u32 s{sT2}, 0
    s_cbranch_scc1 L_noflag
    s_lshl_b32 s{sT0}, s{sW}, 2
    s_sub_u32 s{sT0}, s{sT0}, s{sSK}
    s_and_b32 s{sT0}, s{sT0}, 15
    s_lshl_b32 s{sT0}, s{sT0}, 12
    v_mov_b32 v58, s{sT0}
    v_mov_b32 v59, -1
    ds_write_b32 v58, v59
    L_noflag:
    """)
    for w_ in range(4):
        e(f"""
        s_sub_u32 s{sT0}, {4 * w_}, s{sSK}
        s_and_b32 s{sT0}, s{sT0}, 15
        s_lshl_b32 s{sT0}, s{sT0}, 12
        v_mov_b32 v{58 + w_}, s{sT0}
        """)
    e(f"""
    s_lshl_b32 s{sT1}, s{sW}, 11
    v_lshlrev_b32 v62, 5, v{vLANE}
    v_add_u32 v62, s{sT1}, v62
    v_add_u32 v62, {WS_R}, v62
    v_lshlrev_b32 v{vBR}, 4, v{vLANE}
    s_mov_b32 s48, 4096
    s_mov_b32 s49, 32768
    s_mov_b32 s50, {32768 + 4096}
    """)
    e.wait_all(vm=False)
    e("s_barrier")
    if OPT.get("only"):
        stamp("b2_bar")
    for w_ in range(4):
        e.lds(f"ds_read_b32 v{58 + w_}, v{58 + w_}", ("mk", w_))
    e.need(vtags=[("W", 0)])
    for fn in p3_reads(e, 0, 0)[8:] + p3_reads(e, 0, 0)[:8]:
        fn()
    serial(e, p3_dma(e, 4))
    e.need(ltags=[("mk", 3)])
    e(f"""
    v_and_b32 v58, v58, v59
    v_and_b32 v60, v60, v61
    v_max_u32 v58, v58, v60
    v_max_u32 v59, v59, v61
    """)
    e.l = e.l[:-4]
    e(f"""
    v_max_u32 v58, v58, v59
    v_max_u32 v60, v60, v61
    v_max_u32 v58, v58, v60
    s_nop 0
    v_readfirstlane_b32 s{sT0}, v58
    s_nop 0
    s_cmp_eq_u32 s{sT0}, -1
    s_cbranch_scc1 L_fallback
    L_p3_start:
    """)
    e.need(vtags=[("cnt", 0)])
    e(f"""
    v_readfirstlane_b32 s{sT0}, v2
    s_nop 0
    s_cmp_ge_u32 s{sT0}, {(256 if OPT.get("fused") else 32) + (1000 if OPT.get("xforceslow") else 0)}
    s_cselect_b32 s{sRDY}, 1, 0
    """)
    e.vm(f"buffer_load_dwordx4 v[88:91], v62, s[{S_WS}:{S_WS + 3}], 0 offen sc1", ("rl", 0))
    e.vm(f"buffer_load_dwordx4 v[92:95], v62, s[{S_WS}:{S_WS + 3}], 0 offen offset:16 sc1", ("rl", 1))
    assert [t for t in e.vq if t[0] == "W"] == [("W", u) for u in range(2, 5) for _ in range(4)], e.vq
    e.vq = [("W", u) for u in range(5) for _ in range(4)]
    import moe

    def tail3(u):
        return []

    def tail3_old(u):
        f = []
        lst = {28: [(S_WQ, 80, 0), (S_WQ, 81, 1024), (S_K, 80, 2048), (S_K, 81, 3072)], 29: [(S_V, 82, 4096), (S_V, 83, 5120)]}
        if u in lst and not OPT.get("nomoe") and not OPT.get("xnofw"):
            f.append((0, lambda u=u: e.need(ltags=[("A", u, 3)])))
            for n, (srd, v, off) in enumerate(lst[u]):
                f.append((1 + 3 * n, lambda off=off: e(f"s_add_u32 m0, s{sRING}, {2 * SLOT + off}")))
                f.append((2 + 3 * n, lambda srd=srd, v=v: e.vm(
                    f"buffer_load_dwordx4 v{v}, s[{srd}:{srd + 3}], 0 offen lds", ("fw", 0))))
        return f
    side_e, side = Side(), Side()
    sp = OPT.get("stspread", 2.0)
    for n, (x, gap) in enumerate(p3_epilogue_items(e, 0, [64, 68, 72, 76])):
        k, r = n // 7, n % 7
        pos = 16 + k * sp
        side_e.add(x, gap=gap, cond=((int(pos), 2 + int((pos % 1) * 16)) if r == 0 else None))
    if not OPT.get("nomoe"):
        moe.moe_side(e, side, dict(W=sW, RING=sRING, RDY=sRDY, M=100, X=S_X, WS=S_WS))
        side.q[0] = (side.q[0][0], side.q[0][1], (OPT.get("moestart", 4) if OPT.get("p3unroll", 1) else 16, 0))
    if OPT.get("p3stamps") or OPT.get("only"):
        def st_nowait(name):
            q = list(e.lq)
            stamp(name)
        STAMP[0] = st_nowait
    p3_phase(e, tail3, [side_e, side], None)
    side_e.emit(e, 0, flush=True)
    side.emit(e, 0, flush=True)
    stamp("p3_done")
    e.nop(6)
    side = Side()
    for (x, gap) in p3_epilogue_items(e, 1, [64, 68, 72, 76, 80, 84, 88, 92]):
        side.add(x, gap=gap)
    side.emit(e, 0, flush=True)
    stamp("epi")
    doneq = f"L_{label}_fin"
    RT = dict(X=S_X, WS=S_WS, WR=S_WR, W=sW, RING=sRING, SL=sSL, RDY=sRDY, DBG=sDBG, M=100, G=sG, TB=sTB,
              T=[42, 43, 44, 45, 46, 47, 60, 61, 62, 63, 64, 65, 66, 67], done=doneq,
              spin=OPT.get("spin", 4000), fused=OPT.get("fused"), NCNT=(256 if OPT.get("fused") else 32),
              stamp=(stamp if OPT.get("tailstamps") else (lambda n: None)), opt=OPT)
    if OPT.get("fused"):
        moe.moe_tail(e, RT)
    elif not OPT.get("nomoe"):
        e(f"""
        s_cmp_ge_u32 s2, 224
        s_cbranch_scc1 {doneq}
        s_nop 1
        """)
        moe.moe_tail(e, RT)
    e(f"{doneq}:")
    stamp("end")
    if stamps and OPT.get("dbgstamps"):
        e.wait_all()
        e(f"""
        v_mov_b32 v58, 16
        v_mov_b32 v59, s{sTS + 16}
        v_mov_b32 v60, 20
        s_not_b32 s{sT0}, s{sTS}
        v_mov_b32 v61, s{sT0}
        v_cmp_eq_u32 vcc, 0, v{vLANE}
        s_nop 0
        s_and_saveexec_b64 s[{sMASK}:{sMASK + 1}], vcc
        global_atomic_umax v58, v59, s[{sDBG}:{sDBG + 1}] sc1
        global_atomic_umax v60, v61, s[{sDBG}:{sDBG + 1}] sc1
        s_or_b32 s{sT0}, s2, s{sW}
        s_cmp_lg_u32 s{sT0}, 0
        s_cbranch_scc1 L_dbg_skip
        """)
        for k in range(1, 9):
            e(f"s_sub_u32 s{sT0}, s{sTS + 2 * k}, s{sTS}")
            e(f"v_mov_b32 v59, s{sT0}")
            e(f"v_mov_b32 v58, {24 + 4 * (k - 1)}")
            e(f"global_store_dword v58, v59, s[{sDBG}:{sDBG + 1}]")
            e("s_nop 1")
        e("L_dbg_skip:")
        e(f"s_mov_b64 exec, s[{sMASK}:{sMASK + 1}]")
    elif stamps:
        e.wait_all()
        e(f"""
        s_lshl_b32 s{sT0}, s2, 2
        s_add_u32 s{sT0}, s{sT0}, s{sW}
        s_lshl_b32 s{sT0}, s{sT0}, 7
        s_add_u32 s{sT0}, s{sT0}, {WS_TS}
        v_mov_b32 v58, s{sT0}
        v_cmp_eq_u32 vcc, 0, v{vLANE}
        s_nop 0
        s_and_saveexec_b64 s[{sMASK}:{sMASK + 1}], vcc
        """)
        for i in range(0, 20, 4):
            for q in range(4):
                e(f"v_mov_b32 v{60 + q}, s{min(sTS + i + q, sTS + 17)}")
            e(f"buffer_store_dwordx4 v[60:63], v58, s[{S_WS}:{S_WS + 3}], 0 offen offset:{i * 4}")
            e("s_nop 1")
        e(f"s_mov_b64 exec, s[{sMASK}:{sMASK + 1}]")
    e(f"s_branch {done}")
    e("L_fallback:")
    e(f"""
    s_barrier
    s_lshl_b32 s{sKO}, s{sKVT}, 14
    v_mov_b32 v{vKR}, v31
    v_mov_b32 v{vL}, 0xff800000
    v_mov_b32 v{vL + 2}, 0xff800000
    v_subrev_u32 v{vKR}, {SLOT}, v{vKR}
    s_mov_b32 s{sTRIP}, 0
    """)
    for s16 in range(1, 8):
        e(f"v_xor_b32 v{vKR + s16}, {32 * s16}, v{vKR}")
    e("L_fb_loop:")
    e("s_waitcnt vmcnt(0) lgkmcnt(0)")
    e("s_barrier")
    e.vq, e.lq = [], []
    serial(e, kv_dma(e, "K", 0, ("fbk", 0)))
    e.wait_all()
    e("s_barrier")
    for kb in range(2):
        for s16 in range(8):
            e(f"ds_read_b128 {Fbuf(s16)}, v{vKR + s16} offset:{kb * 49152}")
        e("s_waitcnt lgkmcnt(0)")
        for s16 in range(8):
            for qb in range(2):
                c = "0" if s16 == 0 else Sreg(0, qb)
                e(f"v_mfma_f32_32x32x16_bf16 {Sreg(0, qb)}, {Fbuf(s16)}, {Qreg(s16, qb)}, {c}")
        e.nop(16)
        for qb in range(2):
            m = vL + 2 * qb
            for i in range(0, 16, 2):
                e(f"v_max3_f32 v{m}, v{m}, {Sreg(0, qb, i)}, {Sreg(0, qb, i + 1)}")
    e(f"""
    s_add_u32 s{sTRIP}, s{sTRIP}, 1
    s_cmp_lt_u32 s{sTRIP}, 8
    s_cbranch_scc1 L_fb_loop
    v_mov_b32 v{vL + 1}, v{vL}
    v_mov_b32 v{vL + 3}, v{vL + 2}
    s_nop 1
    v_permlane32_swap_b32 v{vL}, v{vL + 1}
    v_permlane32_swap_b32 v{vL + 2}, v{vL + 3}
    s_nop 0
    v_max_f32 v{vL}, v{vL}, v{vL + 1}
    v_max_f32 v{vL + 2}, v{vL + 2}, v{vL + 3}
    """)
    for qb in range(2):
        for i in range(16):
            e(f"v_sub_f32 v{vNM + 16 * qb + i}, 0, v{vL + 2 * qb}")
    e(f"""
    s_barrier
    s_lshl_b32 s{sKO}, s{sKVT}, 14
    s_mov_b32 s{sVO}, s{sKO}
    s_lshl_b32 s{sWOO}, s{sSK}, 15
    v_mov_b32 v{vKR}, v31
    v_mov_b32 v{vVR}, v63
    s_mov_b32 s{sPASS}, 1
    """)
    for s16 in range(1, 8):
        e(f"v_xor_b32 v{vKR + s16}, {32 * s16}, v{vKR}")
    for db in range(1, 4):
        e(f"v_xor_b32 v{vVR + db}, {64 * db}, v{vVR}")
    for (which, slot) in (("K", 1), ("V", 1), ("K", 2), ("V", 2), ("K", 0)):
        serial(e, kv_dma(e, which, slot, ("fbp", 0)))
    for i in range(4):
        e(f"v_mov_b32 v{vL + i}, 0")
        e(f"v_mov_b32 v{vGA + i}, v{vKDM + i}")
        e(f"v_mov_b32 v{vGB + i}, v{vVDM}")
    for i in range(128):
        e(f"v_accvgpr_write_b32 a{128 + i}, 0")
    e("s_branch L_p2_start")
    e(f"{done}:")
    e("s_endpgm")
    e("L_kend:")
    sp = check_scc(e.l)
    if sp:
        print("\n".join(sp))
        raise SystemExit("scc")
    probs = check_hazards(e.l, "k1")
    if probs and not any(k.startswith("no") for k in OPT):
        print("\n".join(probs[:40]))
        raise SystemExit("hazards")
    return e.text()
```

```python
from emit import E, check_hazards, check_scc
from asmlib import KA

RB = 65536
WSTR = 24576
SLOT = 8192
C_SCALE = 1.4426950408889634 * (128 ** -0.5)

WS_PART = 0
WS_R = 16 << 20
WS_STAT = WS_R + 8192
WS_H = WS_R + 65536
WS_IDX = WS_H + 32768
WS_FLG = WS_R + 32768
WS_TS = 32 << 20


def f2u(x):
    import struct
    return struct.unpack("<I", struct.pack("<f", x))[0]


S_X, S_WQ, S_K, S_V, S_WO, S_WS, S_WR = 4, 8, 12, 16, 20, 24, 28
sG, sTB, sW, sSK = 32, 33, 34, 35
sWQO, sWOO, sKO, sVO = 36, 37, 38, 39
sRING = 40
sCNT = 41
sT0, sT1, sT2, sT3 = 42, 43, 44, 45
sKSL, sVSL = 46, 47
sKD, sVD = 48, 49
sTRIP = 50
sGA = 52
sGB = 56
sGAO, sGBO = 60, 61
sGAM, sGBM = 62, 63
sMASK = 64
sPASS = 70
sKVB = 71
sKVT = 51
sDBG = 72
sSL = 98
sRDY = 99
sFP = 92
sHFD = 70
sTS = 74

vLANE = 0
vWQ = 1
vWO = 5
vKDM = 9
vVDM = 13
vAA = 14
vAB = 22
vBR = 30
vKR = 32
vVR = 40
vGA = 44
vGB = 48
vL = 52
vOW = 56
vPS = 57
vT = 58
vQ = 64
vS = 128
vP = 192
vNM = 224
vACC = 128

aA = 0
aB = 96
aF = 0
aO = 128


def rng(f, b, n):
    return f"{f}[{b}:{b + n - 1}]" if n > 1 else f"{f}{b}"


def Bset(setidx, tq):
    if setidx < 2:
        return rng("a", aB + setidx * 16 + tq * 4, 4)
    return rng("v", 64 + tq * 4, 4)


def Aset(setidx, dt):
    return rng("a", aA + setidx * 32 + dt * 4, 4)


def Ahalf(setidx, dt, rd):
    return rng("a", aA + setidx * 32 + dt * 4 + 2 * rd, 2)


def acc16(dt, tq):
    return rng("v", vACC + (dt * 4 + tq) * 4, 4)


OPT = {}
STAMP = [None]
GSTAMP = [None]
P3_STATIC = [False]
NS3 = 5


class Slots:
    def __init__(self, n):
        self.n = n
        self.f = [[] for _ in range(n + 1)]

    def at(self, i, fn):
        self.f[min(max(i, 0), self.n)].append(fn)


def loop_align(e):
    a = OPT.get("align", 0)
    if a:
        e.l.append(f".p2align {a}")
    for _ in range(OPT.get("shift", 0)):
        e("s_nop 0")


class Side:
    def __init__(self):
        self.q = []
        self.last = None

    def add(self, x, gap=0, cond=None):
        self.q.append((x, gap, cond))

    def states_since(self, e):
        if self.last is None:
            return 99
        n = 0
        for l in e.l[self.last:]:
            t = l.strip()
            if t.endswith(":") or not t:
                continue
            n += int(t.split()[1], 0) + 1 if t.startswith("s_nop") else 1
        return n

    def emit(self, e, budget, pos=None, flush=False):
        while self.q and (budget > 0 or flush):
            x, gap, cond = self.q[0]
            if cond is not None and pos is not None and pos < cond and not flush:
                return
            have = self.states_since(e)
            if have < gap:
                if not flush:
                    return
                e.nop(gap - have)
            self.q.pop(0)
            if callable(x):
                x()
            else:
                e(x)
            self.last = len(e.l)
            budget -= 1


def gemm_step(e, p, phase, opts):
    j = p % 3
    jn = (p + 1) % 3
    va = vAA if phase == 1 else vAB
    rdoff = 1024 if phase == 1 else 2048
    sl = Slots(32)
    if opts.get("next", True):
        reads = []
        for dt in range(8):
            for rd in range(2):
                reads.append((dt, rd))
        spread = OPT.get("aspread", 16)
        for n, (dt, rd) in enumerate(reads):
            def f(dt=dt, rd=rd):
                if OPT.get("noaread"):
                    return
                e.lds(f"ds_read_b64_tr_b16 {Ahalf(jn, dt, rd)}, v{va + dt} offset:{jn * SLOT + rd * rdoff}",
                      ("A", p + 1, dt))
            sl.at(n * spread // 16, f)
        for tq in range(4):
            def f(tq=tq):
                e.lds(f"ds_read_b128 {Bset(jn, tq)}, v{vBR} offset:{opts['boff_next'] + tq * 1024}", ("B", p + 1, tq))
            sl.at(spread + tq, f)
    for pos, fn in opts.get("fill", []):
        sl.at(pos, fn)
    if opts.get("next", True):
        e.need(vtags=opts.get("vneed"))
    for n in range(32):
        dt, tq = n // 4, n % 4
        need = [("A", p, dt), ("B", p, tq)] + ([("B", p, 3), ("A", p, 7)] if n == 0 else [])
        e.need(ltags=need)
        c = "0" if opts.get("first") else acc16(dt, tq)
        e(f"v_mfma_f32_16x16x32_bf16 {acc16(dt, tq)}, {Aset(j, dt)}, {Bset(j, tq)}, {c}")
        for fn in sl.f[n]:
            fn()
        side = opts.get("side")
        if side is not None:
            side.emit(e, opts.get("cap", 2) - len(sl.f[n]), pos=(p, n))
    for fn in sl.f[32]:
        fn()


def wdma(e, phase, i, tag):
    if OPT.get("nodma") and tag[1] > 3:
        e.vq.append(tag)
        return
    if phase == 1:
        e.vm(f"buffer_load_dwordx4 v{vWQ + i}, s[{S_WQ}:{S_WQ + 3}], s{sWQO} offen offset:{i * 1024} lds", tag)
    else:
        e.vm(f"buffer_load_dwordx4 v{vWO + i}, s[{S_WO}:{S_WO + 3}], s{sWOO} offen offset:{i * 1024} lds", tag)


def wdma_adv(e, phase):
    if phase == 1:
        e(f"s_add_u32 s{sWQO}, s{sWQO}, {16 * 8192}")
        e(f"s_and_b32 s{sWQO}, s{sWQO}, {512 * 8192 - 1}")
    else:
        e(f"s_add_u32 s{sT0}, s{sWOO}, {16 * 1024}")
        e(f"s_and_b32 s{sT0}, s{sT0}, {512 * 1024 - 1}")
        e(f"s_and_b32 s{sWOO}, s{sWOO}, {~(512 * 1024 - 1) & 0xffffffff}")
        e(f"s_or_b32 s{sWOO}, s{sWOO}, s{sT0}")


def half_dma(e, phase, slot, half, tag):
    def m0():
        e(f"s_add_u32 m0, s{sRING}, {slot * SLOT + half * 4096}")
    out = [m0]
    for i in range(4):
        out.append(lambda i=i: wdma(e, phase, i, tag))
    out.append(lambda: wdma_adv(e, phase))
    return out


def serial(e, fl):
    fl[0]()
    e("s_nop 0")
    for fn in fl[1:]:
        fn()


def place(fl, start, stride):
    res = [(start, fl[0])]
    for i in range(4):
        res.append((start + 1 + i * stride, fl[1 + i]))
    res.append((start + 1 + 3 * stride, fl[5]))
    return res


def kv_dma(e, which, tile_slot, tag):
    out = []
    if which == "K":
        out.append(lambda: e(f"s_add_u32 m0, s{sRING}, {tile_slot * SLOT}"))
        for i in range(4):
            out.append(lambda i=i: e.vm(
                f"buffer_load_dwordx4 v{vKDM + i}, s[{S_K}:{S_K + 3}], s{sKO} offen offset:{i * 1024} lds", tag))
        out.append(lambda: kv_adv(e, sKO))
    else:
        out.append(lambda: e(f"s_add_u32 m0, s{sRING}, {tile_slot * SLOT + 4096}"))
        for i in range(4):
            out.append(lambda i=i: e.vm(
                f"buffer_load_dwordx4 v{vVDM}, s[{S_V}:{S_V + 3}], s{sVO} offen offset:{i * 1024} lds", tag))
        out.append(lambda: kv_adv(e, sVO))
    return out


def kv_adv(e, sreg):
    e(f"s_add_u32 s{sreg}, s{sreg}, 16384")
    e(f"s_and_b32 s{sreg}, s{sreg}, {8 * 16384 - 1}")


def gemm_pre(e, phase):
    va = vAA if phase == 1 else vAB
    rdoff = 1024 if phase == 1 else 2048
    e.need(vtags=[("W", 0, 0), ("W", 0, 1)])
    for tq in range(4):
        e.lds(f"ds_read_b128 {Bset(0, tq)}, v{vBR} offset:{tq * 1024}", ("B", 0, tq))
    for dt in range(8):
        for rd in range(2):
            e.lds(f"ds_read_b64_tr_b16 {Ahalf(0, dt, rd)}, v{va + dt} offset:{rd * rdoff}", ("A", 0, dt))


def gemm_main(e, phase, tail_fill, side=None, side_steps=range(10, 16)):
    e.need(ltags=[("A", 0, 7)])
    serial(e, half_dma(e, phase, 0, 0, ("W", 3, 0)))

    def step_opts(p, boff_next):
        fill = []
        sp = OPT.get("aspread", 16)
        if p + 3 <= 15:
            fl = half_dma(e, phase, p % 3, 1, ("W", p + 3, 1))
            fill += [(0, fl[0])] + [(2 + 4 * i, fl[1 + i]) for i in range(4)] + [(sp + 4, fl[5])]
        if p + 4 <= 15:
            fl = half_dma(e, phase, (p + 1) % 3, 0, ("W", p + 4, 0))

            def guard(p=p):
                e.need(ltags=[("A", p + 1, 7)])
            fill += [(sp + 5, guard), (sp + 5, fl[0])] + [(min(sp + 6 + 3 * i, 31), fl[1 + i]) for i in range(4)] + [(32, fl[5])]
        return dict(first=(p == 0), next=(p < 15), boff_next=boff_next, fill=fill,
                    vneed=[("W", p + 1, 0), ("W", p + 1, 1)])

    if GSTAMP[0]:
        GSTAMP[0]("p1_pre")
    o = step_opts(0, 1 * 4096)
    gemm_step(e, 0, phase, o)
    if GSTAMP[0]:
        GSTAMP[0]("p1_s0")
    lab = f"L_g{phase}_loop"
    e(f"s_mov_b32 s{sCNT}, 3")
    e(f"v_add_u32 v{vBR}, {1 * 4096}, v{vBR}")
    lq0, vq0 = list(e.lq), list(e.vq)
    loop_align(e)
    e(f"{lab}:")
    n0 = len(e.l)
    for u in range(3):
        p = 1 + u
        o = step_opts(p, (u + 1) * 4096)
        if u == 2:
            o["fill"] = o["fill"] + [(24, lambda: e(f"v_add_u32 v{vBR}, {3 * 4096}, v{vBR}")),
                                     (32, lambda: e(f"s_sub_u32 s{sCNT}, s{sCNT}, 1")),
                                     (32, lambda: e(f"s_cmp_lg_u32 s{sCNT}, 0"))]
        gemm_step(e, p, phase, o)
    e(f"s_cbranch_scc1 {lab}")
    body = e.l[n0:]
    probs = check_hazards(body + body, f"gemm{phase} loop x2")
    assert not probs or any(k.startswith("no") for k in OPT), "\n".join(probs[:10])
    sh = lambda q, d: [(t[0], t[1] + d) + tuple(t[2:]) if t else t for t in q]
    assert sh(lq0, 3) == e.lq or OPT.get('noaread'), (lq0, e.lq)
    assert sh(vq0, 3) == e.vq, (vq0, e.vq)
    e.lq, e.vq = sh(e.lq, 6), sh(e.vq, 6)
    for p in range(10, 16):
        if GSTAMP[0] and p in (10, 13):
            GSTAMP[0](f"p1_s{p}")
        o = step_opts(p, (p - 10 + 1) * 4096)
        o["fill"] = o["fill"] + tail_fill(p)
        o["side"] = side if p in side_steps else None
        o["cap"] = OPT.get("sidecap", 2)
        gemm_step(e, p, phase, o)


def acc3(hf, nt, tq):
    return rng("v", vACC + 64 * hf + (nt * 4 + tq) * 4, 4)


def A3(st, nt, rd=None):
    b = st * 16 + nt * 4
    return rng("a", b, 4) if rd is None else rng("a", b + 2 * rd, 2)


def B3(st, tq):
    return rng("a", 48 + st * 16 + tq * 4, 4)


def p3_dma(e, u):
    out = [lambda: e(f"s_add_u32 m0, s{sRING}, {(u % NS3) * 4096}")]
    for i in range(4):
        out.append(lambda i=i: e.vm(
            f"buffer_load_dwordx4 v{vWO + i}, s[{S_WO}:{S_WO + 3}], s{sWOO} offen offset:{i * 1024} lds", ("W", u)))

    def adv():
        p3_adv(e)
        if u == 9 and not OPT.get("p3unroll", 1):
            e(f"s_add_u32 s{sWOO}, s{sWOO}, s{sHFD}")
    out.append(adv)
    return out


def p3_adv(e):
    e(f"s_add_u32 s{sWOO}, s{sWOO}, {32 * 1024}")
    e(f"s_and_b32 s{sWOO}, s{sWOO}, {512 * 1024 - 1}")


def p3_reads(e, u, boff):
    st = u % 3
    r = []
    for nt in range(4):
        for rd in range(2):
            r.append(lambda nt=nt, rd=rd: e.lds(
                f"ds_read_b64_tr_b16 {A3(st, nt, rd)}, v{vAB + nt} offset:{(u % NS3) * 4096 + rd * 1024}", ("A", u, nt)))
    for tq in range(4):
        r.append(lambda tq=tq: e.lds(f"ds_read_b128 {B3(st, tq)}, v{vBR} offset:{boff + tq * 1024}", ("B", u, tq)))
    return r


def p3_step(e, u, boff_next, fill=(), side=None, cap=2):
    hf, st = u >> 4, u % 3
    sl = Slots(16)
    nxt = u < 31
    if nxt:
        rd = p3_reads(e, u + 1, boff_next)
        for n in range(8):
            sl.at(n, rd[n])
        for tq in range(4):
            sl.at(8 + tq, rd[8 + tq])
    if u + NS3 <= 31:
        fl = p3_dma(e, u + NS3)
        sl.at(0, fl[0])
        for i, pos in enumerate((2, 6, 12, 14)):
            sl.at(pos, fl[1 + i])
        sl.at(15, fl[5])
    for pos, fn in fill:
        sl.at(pos, fn)
    if nxt:
        e.need(vtags=[("W", u + 1)])
    for n in range(16):
        nt, tq = n // 4, n % 4
        e.need(ltags=[("A", u, nt), ("B", u, tq)] + ([("B", u, 3), ("A", u, 3)] if n == 0 else []))
        c = "0" if (u & 15) == 0 else acc3(hf, nt, tq)
        e(f"v_mfma_f32_16x16x32_bf16 {acc3(hf, nt, tq)}, {A3(st, nt)}, {B3(st, tq)}, {c}")
        for fn in sl.f[n]:
            fn()
        if side is not None:
            left = cap - len(sl.f[n])
            for sd in side:
                n0 = len(sd.q)
                sd.emit(e, left, pos=(u, n))
                left -= n0 - len(sd.q)
    for fn in sl.f[16]:
        fn()


def p3_epilogue_items(e, hf, regs):
    items = []
    k = 0
    for nt in range(4):
        for qb in range(2):
            R = regs[k % len(regs)]
            k += 1
            a0 = vACC + 64 * hf + (nt * 4 + 2 * qb) * 4
            a1 = a0 + 4
            items.append((f"v_cvt_pk_bf16_f32 v{R}, v{a0}, v{a0 + 1}", 2))
            items.append((f"v_cvt_pk_bf16_f32 v{R + 1}, v{a0 + 2}, v{a0 + 3}", 0))
            items.append((f"v_cvt_pk_bf16_f32 v{R + 2}, v{a1}, v{a1 + 1}", 0))
            items.append((f"v_cvt_pk_bf16_f32 v{R + 3}, v{a1 + 2}, v{a1 + 3}", 0))
            items.append((f"v_permlane16_swap_b32 v{R}, v{R + 2}", 2))
            items.append((f"v_permlane16_swap_b32 v{R + 1}, v{R + 3}", 1))
            off = (nt & 1) * 2048 + qb * 1024
            so = {(0, 0): "0", (0, 1): "s48", (1, 0): "s49", (1, 1): "s50"}[(hf, nt >> 1)]
            items.append((lambda R=R, off=off, nt=nt, qb=qb, so=so: e.vm(
                f"buffer_store_dwordx4 {rng('v', R, 4)}, v{vPS}, s[{S_WS}:{S_WS + 3}], {so} offen offset:{off} "
                + OPT.get("pstore", "sc1"), ("ps", hf, nt, qb)), 0))
    return items


def p3_loop_half0(e):
    p3_step(e, 0, 4096)
    e(f"s_mov_b32 s{sCNT}, 2")
    e(f"s_mov_b32 s{sHFD}, 0")
    e(f"v_add_u32 v{vBR}, {1 * 4096}, v{vBR}")
    lq0, vq0 = list(e.lq), list(e.vq)
    e("L_p3_loop:")
    n0 = len(e.l)
    for k in range(6):
        u = 1 + k
        fill = []
        if k == 5:
            fill = [(13, lambda: e(f"v_add_u32 v{vBR}, {6 * 4096}, v{vBR}")),
                    (15, lambda: e(f"s_mov_b32 s{sHFD}, 512")),
                    (15, lambda: e(f"s_sub_u32 s{sCNT}, s{sCNT}, 1")),
                    (15, lambda: e(f"s_cmp_lg_u32 s{sCNT}, 0"))]
        p3_step(e, u, (k + 1) * 4096, fill=fill)
    e("s_cbranch_scc1 L_p3_loop")
    body = e.l[n0:]
    probs = check_hazards(body + body, "p3 loop x2")
    assert not probs, "\n".join(probs[:10])
    sh = lambda q, d: [(t[0], t[1] + d) + tuple(t[2:]) if t else t for t in q]
    assert sh(lq0, 6) == e.lq, (lq0, e.lq)
    assert sh(vq0, 6) == e.vq, (vq0, e.vq)
    e.lq, e.vq = sh(e.lq, 6), sh(e.vq, 6)
    for u in range(13, 16):
        boff = (u - 13 + 1) * 4096 if u < 15 else -13 * 4096
        if u == 15:
            fill = [(0, lambda: e(f"v_subrev_u32 v{vBR}, {13 * 4096}, v{vBR}"))]
            p3_step(e, u, 0, fill=fill)
        else:
            p3_step(e, u, boff)


def p3_phase(e, tail_fill, side0, side1):
    if STAMP[0]:
        STAMP[0]("p3_start")
    if OPT.get("p3unroll", 1):
        cap = OPT.get("sidecap", 2)
        for u in range(16):
            fill = []
            if u == 15 - NS3:
                fill = [(16, lambda: e(f"s_add_u32 s{sWOO}, s{sWOO}, 512"))]
            P3_STATIC[0] = True
            p3_step(e, u, ((u + 1) & 15) * 4096, fill=fill, side=side0, cap=cap)
    else:
        p3_loop_half0(e)
    for u in range(16, 32):
        p = u & 15
        if STAMP[0] and u in (16, 24):
            STAMP[0](f"p3_u{u}")
        p3_step(e, u, ((p + 1) & 15) * 4096, fill=tail_fill(u), side=side0, cap=OPT.get("sidecap", 2))


def Sreg(par, qb, i=None):
    b = vS + par * 32 + qb * 16
    return rng("v", b, 16) if i is None else f"v{b + i}"


def Preg(par, qb, t):
    return rng("v", vP + par * 16 + qb * 8 + t * 4, 4)


def Qreg(s16, qb):
    return rng("v", vQ + (s16 * 2 + qb) * 4, 4)


def Oreg(db, qb):
    return rng("a", aO + (db * 2 + qb) * 16, 16)


def Fbuf(n, half=None):
    b = aF + (n % 8) * 4
    return rng("a", b, 4) if half is None else rng("a", b + 2 * half, 2)


def k_read(e, b, s16):
    if OPT.get("nokvread"):
        return
    e.lds(f"ds_read_b128 {Fbuf(s16)}, v{vKR + s16} offset:{(b & 1) * 49152}", ("K", b, s16))


def v_read(e, b, f, order=None):
    t, db = (order or VORD_T)[f]
    if OPT.get("nokvread"):
        return
    for rd in range(2):
        e.lds(f"ds_read_b64_tr_b16 {Fbuf(8 + f, rd)}, v{vVR + db} offset:{t * WSTR + rd * 2048}", ("V", b, f))


def sm_ops(e, b):
    par = b & 1
    ops = []
    S = lambda x: Sreg(par, x // 16, x % 16)
    exp = lambda x: (lambda: e(f"v_exp_f32 {S(x)}, {S(x)}") if not OPT.get("noexp") else None)
    add = lambda x: (lambda: e(f"v_add_f32 v{vL + (x // 16) * 2 + (x & 1)}, v{vL + (x // 16) * 2 + (x & 1)}, {S(x)}"))
    cvt = lambda k: (lambda: e(f"v_cvt_pk_bf16_f32 v{vP + par * 16 + k}, {S(2 * k)}, {S(2 * k + 1)}"))
    if OPT.get("nosm"):
        return []
    for k in range(16):
        ops.append((2 * k, exp(2 * k)))
        if k > 0:
            ops.append((2 * k, add(2 * k - 2)))
            ops.append((2 * k, cvt(k - 1)))
        ops.append((2 * k + 1, exp(2 * k + 1)))
        if k > 0:
            ops.append((2 * k + 1, add(2 * k - 1)))
    ops.append((32, add(30)))
    ops.append((32, add(31)))
    ops.append((32, cvt(15)))
    return ops


def sm_queue(e, b):
    par = b & 1
    S = lambda x: Sreg(par, x // 16, x % 16)
    exp = lambda x: (8, lambda: e(f"v_exp_f32 {S(x)}, {S(x)}"))
    add = lambda x: (4, lambda: e(f"v_add_f32 v{vL + (x // 16) * 2 + (x & 1)}, v{vL + (x // 16) * 2 + (x & 1)}, {S(x)}"))
    cvt = lambda k: (4, lambda: e(f"v_cvt_pk_bf16_f32 v{vP + par * 16 + k}, {S(2 * k)}, {S(2 * k + 1)}"))
    q = []
    if OPT.get("dotsum"):
        dot = lambda k: (OPT["dotsum"], lambda: e(f"v_dot2_f32_bf16 v{vL + (k // 8) * 2 + (k & 1)}, v{vP + par * 16 + k}, s67, v{vL + (k // 8) * 2 + (k & 1)}"))
        for k in range(32):
            q.append(exp(k))
            if k >= 2 and k % 2 == 0:
                q.append(cvt(k // 2 - 1))
            if k >= 3 and k % 2 == 1:
                q.append(dot((k - 1) // 2 - 1))
        q.append((4, lambda: e("s_nop 0")))
        q.append(cvt(15))
        q.append((4, lambda: e("s_nop 0")))
        q.append(dot(15))
        return q
    for k in range(32):
        q.append(exp(k))
        if k >= 1:
            q.append(add(k - 1))
        if k >= 2 and k % 2 == 0:
            q.append(cvt(k // 2 - 1))
    q.append(add(31))
    q.append(cvt(15))
    return q


VORD_T = [(f // 4, f % 4) for f in range(8)]
VORD_D = [(f % 2, f // 2) for f in range(8)]


def p2_iter(e, b, qk=True, sm=True, pv=True, look="K", fill=(), vpre=False, smstart=0, vord=VORD_T, vord_next=VORD_T,
            side=None, cap=5):
    mf = []
    if qk:
        par = (b + 1) & 1
        for s16 in range(8):
            for qb in range(2):
                c = rng("v", vNM + qb * 16, 16) if s16 == 0 else Sreg(par, qb)
                mf.append((f"v_mfma_f32_32x32x16_bf16 {Sreg(par, qb)}, {Fbuf(s16)}, {Qreg(s16, qb)}, {c}",
                           ("K", b + 1, s16), s16))
    if pv:
        par = (b - 1) & 1
        for f in range(8):
            t, db = vord[f]
            for qb in range(2):
                mf.append((f"v_mfma_f32_32x32x16_bf16 {Oreg(db, qb)}, {Fbuf(8 + f)}, {Preg(par, qb, t)}, {Oreg(db, qb)}",
                           ("V", b - 1, f), 8 + f))
    n = len(mf)
    sl = Slots(n)
    if qk and pv:
        for f in range(4, 8):
            sl.at(2 * (f - 4) + 1, lambda f=f: k_read(e, b + 1, f))
        for f in range(8):
            fn = lambda f=f: v_read(e, b - 1, f)
            fn.ninstr = 2
            sl.at(2 * (f + 4) + 1, fn)
        if look == "K":
            for f in range(4):
                sl.at(24 + 2 * f + 1, lambda f=f: k_read(e, b + 2, f))
    elif qk:
        for f in range(4, 8):
            sl.at(2 * (f - 4) + 1, lambda f=f: k_read(e, b + 1, f))
        if look == "K":
            for f in range(4):
                sl.at(8 + 2 * f + 1, lambda f=f: k_read(e, b + 2, f))
    else:
        if vpre:
            for f in range(4):
                v_read(e, b - 1, f, vord)
        for f in range(4, 8):
            sl.at(2 * (f - 4) + 1, lambda f=f: v_read(e, b - 1, f, vord))
        if look == "V":
            for f in range(4):
                sl.at(8 + 2 * f + 1, lambda f=f: v_read(e, b, f, vord_next))
    if OPT.get("greedy", 1) and n == 32 and sm:
        B = OPT.get("budget", 24)
        cost = [4 * sum(2 if False else 1 for _ in sl.f[i]) for i in range(n)]
        for i in range(n):
            cost[i] = 0
            for fn in sl.f[i]:
                cost[i] += 4 * getattr(fn, "ninstr", 1)
            if (i + 1) % 4 == 0:
                cost[i] += 4
        q = sm_queue(e, b)
        tot = sum(c for c, _ in q)
        ex = sorted(enumerate(fill), key=lambda t: (t[1][0], t[0]))
        ex = [(pos, fn) for _, (pos, fn) in ex]
        done = 0
        for i in range(n):
            left = B - cost[i]
            need = tot * (i + 1) / n
            while q and done < need and q[0][0] <= left + (4 if done + 12 < need else 0):
                c, fn = q.pop(0)
                sl.at(i, fn)
                left -= c
                done += c
            while ex and ex[0][0] <= i and (left >= 4 * getattr(ex[0][1], "ninstr", 1) or ex[0][0] + 3 <= i):
                pos, fn = ex.pop(0)
                sl.at(i, fn)
                left -= 4 * getattr(fn, "ninstr", 1)
            while q and q[0][0] <= left and done < need + 16:
                c, fn = q.pop(0)
                sl.at(i, fn)
                left -= c
                done += c
        for c, fn in q:
            sl.at(n, fn)
        for pos, fn in ex:
            sl.at(n, fn)
    else:
        if sm:
            ops = sm_ops(e, b)
            for (s, fn) in ops:
                sl.at(smstart + s * (n - smstart) // 32 if s < 32 else n, fn)
        for (s, fn) in fill:
            sl.at(s, fn)
    if vpre and sm:
        pass
    for i, (txt, tag, fi) in enumerate(mf):
        if i % 4 == 0:
            tags = [tag]
            if i + 2 < n:
                tags.append(mf[i + 2][1])
            e.need(ltags=tags)
        e(txt)
        for fn in sl.f[i]:
            fn()
        if side is not None:
            side.emit(e, cap - len(sl.f[i]), pos=(b, i))
    for fn in sl.f[n]:
        fn()


def gen_k1(label, stamps=False, debug=None, opt=None):
    OPT.clear()
    OPT.update(opt or {})
    STAMP[0] = None
    GSTAMP[0] = None
    e = E()
    nst = [0]

    def stamp(name, wait=True):
        if not stamps:
            return
        if OPT.get("only") and name not in OPT["only"]:
            return
        k = nst[0]
        assert k < 9
        e(f"{stamps} s[{sTS + 2 * k}:{sTS + 2 * k + 1}]   ; stamp {k} {name}")
        if wait:
            e.wait_all(vm=False)
        nst[0] += 1
    done = f"L_{label}_done"
    ipf_text = ""
    if OPT.get("ipf"):
        nb = OPT["ipf"]
        ipf_text = f"""
    L_kbase:
    s_getpc_b64 s[{sT0}:{sT0 + 1}]
    s_lshr_b32 s{sT2}, s2, 3
    s_and_b32 s{sT2}, s{sT2}, {nb - 1}
    s_lshl_b32 s{sT2}, s{sT2}, 12
    v_lshlrev_b32 v200, 4, v0
    v_add_u32 v200, s{sT2}, v200
    v_min_u32 v200, (L_kend - L_kbase - 32) & 0xfffffff0, v200
    global_load_dwordx4 v[200:203], v200, s[{sT0}:{sT0 + 1}]
    """
        e.vq.append(("ipf", 0))
    e(f"""
    s_cmp_ge_u32 s2, 256
    s_cbranch_scc1 {done}
    {ipf_text}
    s_load_dwordx2 s[4:5], s[0:1], 0
    s_load_dwordx2 s[12:13], s[0:1], 8
    s_load_dwordx2 s[16:17], s[0:1], 16
    s_load_dwordx2 s[8:9], s[0:1], 24
    s_load_dwordx2 s[20:21], s[0:1], {KA['wo']}
    s_load_dwordx2 s[28:29], s[0:1], {KA['wr']}
    s_load_dwordx2 s[24:25], s[0:1], {KA['ws']}
    s_load_dwordx2 s[{sDBG}:{sDBG + 1}], s[0:1], {KA['dbg']}
    s_load_dwordx4 s[{sFP}:{sFP + 3}], s[0:1], {KA['wg']}
    s_load_dwordx2 s[{sFP + 4}:{sFP + 5}], s[0:1], {KA['wd']}
    """)
    stamp("start", wait=False)
    e(f"""
    v_lshrrev_b32 v{vT}, 6, v0
    v_and_b32 v{vLANE}, 63, v0
    v_readfirstlane_b32 s{sW}, v{vT}
    """)
    mp = OPT.get("map", "A")
    if mp == "A":
        e(f"""
        s_and_b32 s{sG}, s2, 7
        s_lshr_b32 s{sTB}, s2, 3
        s_and_b32 s{sSK}, s{sTB}, 15
        s_and_b32 s{sKVT}, s{sTB}, 7
        """)
    elif mp == "B":
        e(f"""
        s_and_b32 s{sT0}, s2, 3
        s_lshl_b32 s{sT0}, s{sT0}, 1
        s_bfe_u32 s{sT1}, s2, {3 | (1 << 16)}
        s_or_b32 s{sG}, s{sT0}, s{sT1}
        s_bfe_u32 s{sT0}, s2, {2 | (1 << 16)}
        s_lshl_b32 s{sT0}, s{sT0}, 4
        s_lshr_b32 s{sT1}, s2, 4
        s_or_b32 s{sTB}, s{sT0}, s{sT1}
        s_and_b32 s{sSK}, s{sTB}, 7
        s_lshl_b32 s{sSK}, s{sSK}, 1
        s_and_b32 s{sKVT}, s{sTB}, 7
        """)
    elif mp == "C":
        e(f"""
        s_and_b32 s{sT0}, s2, 1
        s_lshl_b32 s{sT0}, s{sT0}, 2
        s_bfe_u32 s{sT1}, s2, {3 | (2 << 16)}
        s_or_b32 s{sG}, s{sT0}, s{sT1}
        s_bfe_u32 s{sT0}, s2, {1 | (2 << 16)}
        s_lshl_b32 s{sT0}, s{sT0}, 3
        s_lshr_b32 s{sT1}, s2, 5
        s_or_b32 s{sTB}, s{sT0}, s{sT1}
        s_and_b32 s{sSK}, s{sTB}, 7
        s_lshl_b32 s{sSK}, s{sSK}, 1
        s_and_b32 s{sKVT}, s{sTB}, 7
        """)
        if OPT.get("s4"):
            e(f"""
            s_and_b32 s{sSK}, s{sTB}, 3
            s_lshl_b32 s{sSK}, s{sSK}, 2
            """)
        if OPT.get("gskew"):
            e(f"""
            s_and_b32 s{sT0}, s{sG}, 3
            s_lshl_b32 s{sT0}, s{sT0}, 2
            s_add_u32 s{sSK}, s{sSK}, s{sT0}
            s_and_b32 s{sSK}, s{sSK}, 15
            """)
    L = vLANE
    t0, t1, t2, t3, t4, t5 = vT, vT + 1, vT + 2, vT + 3, vT + 4, vT + 5
    XV0, XV1 = 56, 57
    e(f"""
    v_and_b32 v{t2}, 15, v{L}
    v_lshrrev_b32 v{t3}, 4, v{L}
    s_lshl_b32 s{sT0}, s{sTB}, 6
    s_lshl_b32 s{sT1}, s{sW}, 4
    s_add_u32 s{sT0}, s{sT0}, s{sT1}
    v_lshrrev_b32 v{t0}, 3, v{L}
    v_add_u32 v{t0}, s{sT0}, v{t0}
    v_and_b32 v{t1}, 7, v{L}
    v_xor_b32 v{t1}, v{t1}, v{t3}
    v_lshlrev_b32 v{t1}, 4, v{t1}
    v_lshl_add_u32 v{XV0}, v{t0}, 10, v{t1}
    v_xor_b32 v{XV1}, 64, v{XV0}              ; chunk ^ 4
    v_add_u32 v{XV1}, 8192, v{XV1}            ; +8 tokens
    s_mul_i32 s{sRING}, s{sW}, {WSTR}
    s_add_u32 s{sRING}, s{sRING}, {RB}
    s_lshl_b32 s{sT3}, s{sW}, 10              ; w*1024
    s_lshl_b32 s101, s{sSK}, 6
    s_waitcnt lgkmcnt(0)
    """)
    for (dst, size) in [(S_X, 2097152), (S_K, 4194304), (S_V, 4194304), (S_WQ, 4194304),
                        (S_WO, 4194304), (S_WR, 1024), (S_WS, 0x10000000)]:
        e(f"""
        s_mov_b32 s{dst + 2}, {size}
        s_mov_b32 s{dst + 3}, 0x20000
        """)
    stamp("kernarg", wait=True)
    def xdma(u):
        for hb in range(2):
            e(f"s_add_u32 m0, s{sT3}, {(2 * u + hb) * 4096}")
            e("s_nop 0")
            e.vm(f"buffer_load_dwordx4 v{XV0 + hb}, s[{S_X}:{S_X + 3}], s101 offen lds", ("x", u, hb))
        e(f"s_add_u32 s101, s101, 128")
        e(f"s_and_b32 s101, s101, 1023")

    def wrdma():
        e(f"""
        s_lshl_b32 s{sT0}, s{sSK}, 2
        v_add_u32 v58, s{sT0}, v{L}
        v_and_b32 v58, 63, v58
        v_lshlrev_b32 v58, 4, v58
        s_add_u32 m0, s{sRING}, {2 * SLOT + 4096}
        s_nop 0
        """)
        e.vm(f"buffer_load_dwordx4 v58, s[{S_WR}:{S_WR + 3}], 0 offen lds", ("wr", 0))
    NU0 = OPT.get("nu0", 6)
    for u in range(NU0):
        xdma(u)
    e(f"""
    s_lshl_b32 s{sT0}, s{sG}, 2
    s_add_u32 s{sT0}, s{sT0}, s{sW}
    s_lshl_b32 s{sT0}, s{sT0}, 8            ; head*256
    v_lshlrev_b32 v{t4}, 1, v{t3}
    v_xor_b32 v{t4}, v{t4}, v{t2}
    v_lshlrev_b32 v{t5}, 13, v{t3}           ; rr*8192
    v_add_u32 v{t5}, s{sT0}, v{t5}
    v_lshl_add_u32 v{vWQ}, v{t4}, 4, v{t5}
    v_add_u32 v{vWQ + 1}, {32768 - 1024}, v{vWQ}
    v_xor_b32 v{t4}, 8, v{t4}
    v_lshl_add_u32 v{vWQ + 2}, v{t4}, 4, v{t5}
    v_add_u32 v{vWQ + 2}, {2 * (32768 - 1024)}, v{vWQ + 2}
    v_add_u32 v{vWQ + 3}, {32768 - 1024}, v{vWQ + 2}
    s_lshl_b32 s{sWQO}, s{sSK}, 18
    """)
    wq_pre = []
    for p in range(3):
        for h in range(2):
            fl = half_dma(e, 1, p, h, ("W", p, h))
            for i in range(4):
                grp = []
                if i == 0:
                    grp += [fl[0], lambda: e("s_nop 0")]
                grp.append(fl[1 + i])
                if i == 3:
                    grp.append(fl[5])
                wq_pre.append(grp)
    if OPT.get("early_dma", 0):
        for grp in wq_pre[:OPT["early_dma"]]:
            for fn in grp:
                fn()
        wq_pre = wq_pre[OPT["early_dma"]:]


    r_, c_ = 60, 61
    A0, A1, A2, A3, A4, A5 = 128, 129, 130, 131, 132, 133
    e(f"""
    v_bfe_u32 v{A0}, v{L}, 2, 2              ; r
    v_and_b32 v{A1}, 3, v{L}                 ; c
    v_lshrrev_b32 v{A2}, 4, v{L}             ; q4
    v_and_b32 v{A3}, 1, v{A2}
    v_lshl_or_b32 v{A3}, v{A3}, 2, v{A0}     ; phi
    v_lshlrev_b32 v{A3}, 1, v{A3}            ; f
    v_lshrrev_b32 v{A4}, 1, v{A1}
    v_xor_b32 v{A3}, v{A3}, v{A4}            ; chunk
    v_lshlrev_b32 v{A3}, 4, v{A3}
    v_and_b32 v{A4}, 1, v{A1}
    v_lshl_or_b32 v{A3}, v{A4}, 3, v{A3}     ; + (c&1)*8
    v_lshl_add_u32 v{A4}, v{A2}, 3, v{A0}    ; row
    v_lshl_add_u32 v{A3}, v{A4}, 8, v{A3}
    v_add_u32 v{vAA}, s{sRING}, v{A3}
    """)
    for dt in range(1, 8):
        e(f"v_xor_b32 v{vAA + dt}, {32 * dt}, v{vAA}")
    e(f"""
    v_and_b32 v{A3}, 1, v{A2}
    v_lshl_or_b32 v{A4}, v{A3}, 2, v{A0}     ; 4(q4&1) + r
    v_lshrrev_b32 v{A3}, 1, v{A4}            ; psi
    v_lshrrev_b32 v{A5}, 1, v{A2}
    v_lshl_or_b32 v{A4}, v{A5}, 4, v{A4}     ; row
    v_lshlrev_b32 v{A3}, 1, v{A3}
    v_lshrrev_b32 v{A5}, 1, v{A1}
    v_xor_b32 v{A3}, v{A3}, v{A5}            ; chunk
    v_lshlrev_b32 v{A3}, 4, v{A3}
    v_and_b32 v{A5}, 1, v{A1}
    v_lshl_or_b32 v{A3}, v{A5}, 3, v{A3}
    v_lshl_add_u32 v{A3}, v{A4}, 7, v{A3}
    v_add_u32 v{vAB}, s{sRING}, v{A3}
    """)
    for dt in range(1, 4):
        e(f"v_xor_b32 v{vAB + dt}, {32 * dt}, v{vAB}")
    e(f"""
    v_lshlrev_b32 v{vBR}, 4, v{L}            ; B read: X + l*16
    v_lshrrev_b32 v{A3}, 3, v{L}             ; row8
    v_lshrrev_b32 v{A4}, 1, v{A3}
    v_and_b32 v{A4}, 3, v{A4}
    v_lshlrev_b32 v{A4}, 1, v{A4}
    v_and_b32 v{A5}, 7, v{L}
    v_xor_b32 v{A4}, v{A4}, v{A5}
    v_lshlrev_b32 v{A4}, 4, v{A4}
    v_lshl_add_u32 v{A4}, v{A3}, 10, v{A4}
    s_lshl_b32 s{sT0}, s{sW}, 7
    v_add_u32 v{vWO}, s{sT0}, v{A4}
    v_add_u32 v{vWO + 1}, 7168, v{vWO}
    v_add_u32 v{vWO + 2}, {2 * 7168}, v{vWO}
    v_add_u32 v{vWO + 3}, {3 * 7168}, v{vWO}
    v_and_b32 v{A3}, 15, v{L}
    s_lshl_b32 s{sWOO}, s{sSK}, 15
    v_xor_b32 v{A4}, v{A2}, v{A3}            ; (l&15)^rr
    v_lshlrev_b32 v{A5}, 8, v{A2}
    v_lshl_add_u32 v{vKDM}, v{A4}, 4, v{A5}
    v_xor_b32 v{vKDM + 1}, 64, v{vKDM}
    v_xor_b32 v{vKDM + 2}, 128, v{vKDM}
    v_xor_b32 v{vKDM + 3}, 192, v{vKDM}
    v_lshlrev_b32 v{A4}, 2, v{A2}
    v_xor_b32 v{A4}, v{A4}, v{A3}
    v_lshl_add_u32 v{vVDM}, v{A4}, 4, v{A5}
    v_lshrrev_b32 v{A4}, 5, v{L}             ; h
    v_xor_b32 v{A4}, v{A4}, v{A3}
    v_lshlrev_b32 v{A4}, 4, v{A4}
    v_lshl_add_u32 v{A4}, v{A3}, 8, v{A4}
    v_and_b32 v{A5}, 1, v{A2}
    v_mul_u32_u24 v{A5}, {WSTR}, v{A5}
    v_add_u32 v{A4}, v{A4}, v{A5}
    v_add_u32 v{vKR}, {RB + 1 * SLOT}, v{A4}
    """)
    for s16 in range(1, 8):
        e(f"v_xor_b32 v{vKR + s16}, {32 * s16}, v{vKR}")
    e(f"""
    v_and_b32 v{A4}, 1, v{A2}
    v_lshlrev_b32 v{A4}, 1, v{A4}
    v_lshrrev_b32 v{A5}, 1, v{A1}
    v_or_b32 v{A4}, v{A4}, v{A5}
    v_lshlrev_b32 v{A5}, 2, v{A0}
    v_xor_b32 v{A4}, v{A4}, v{A5}
    v_lshlrev_b32 v{A4}, 4, v{A4}
    v_and_b32 v{A5}, 1, v{A1}
    v_lshl_or_b32 v{A4}, v{A5}, 3, v{A4}
    v_lshrrev_b32 v{A5}, 5, v{L}
    v_lshl_add_u32 v{A5}, v{A5}, 2, v{A0}    ; 4h + r
    v_lshl_add_u32 v{A4}, v{A5}, 8, v{A4}
    v_add_u32 v{vVR}, {RB + 4096 + 1 * SLOT}, v{A4}
    """)
    for db in range(1, 4):
        e(f"v_xor_b32 v{vVR + db}, {64 * db}, v{vVR}")
    e(f"""
    """)
    for u in range(NU0, 8):
        xdma(u)
    wrdma()
    if OPT.get("tlb"):
        T = OPT["tlb"]
        e(f"""
        v_lshlrev_b32 v58, 21, v{L}
        s_lshl_b32 s{sT0}, s{sTB}, 16
        v_add_u32 v58, s{sT0}, v58
        v_cmp_gt_u32 vcc, 9, v{L}
        v_mov_b32 v59, 0x7ffffff0
        s_nop 0
        v_cndmask_b32 v58, v59, v58, vcc
        """)
        e.vm(f"buffer_load_dword a96, v58, s[{S_WS}:{S_WS + 3}], 0 offen", ("tlb", 0))
        if "o" in T and not stamps:
            e(f"""
            s_load_dwordx2 s[88:89], s[0:1], {KA['out']}
            s_mov_b32 s90, 2097152
            s_mov_b32 s91, 0x20000
            s_lshl_b32 s{sT0}, s{sTB}, 16
            v_lshlrev_b32 v58, 10, v{L}
            v_add_u32 v58, s{sT0}, v58
            s_waitcnt lgkmcnt(0)
            """)
            e.vm(f"buffer_load_dword a97, v58, s[88:91], 0 offen", ("tlb", 4))
        if "w" in T:
            e(f"""
            v_lshlrev_b32 v58, 16, v{L}
            """)
            e.vm(f"buffer_load_dword a97, v58, s[{S_WO}:{S_WO + 3}], 0 offen", ("tlb", 1))
            e.vm(f"buffer_load_dword a98, v58, s[{S_K}:{S_K + 3}], 0 offen", ("tlb", 2))
            e.vm(f"buffer_load_dword a99, v58, s[{S_V}:{S_V + 3}], 0 offen", ("tlb", 3))
    e(f"""
    v_lshlrev_b32 v{vOW}, 4, v{A3}
    v_lshrrev_b32 v{A4}, 5, v{L}
    v_lshl_add_u32 v{vOW}, v{A4}, 8, v{vOW}
    v_and_b32 v{A4}, 1, v{A2}
    v_lshl_add_u32 v{vOW}, v{A4}, 10, v{vOW}
    """)
    e(f"""
    s_lshl_b32 s{sT0}, s{sG}, 5
    s_add_u32 s{sT0}, s{sT0}, s{sTB}
    s_lshl_b32 s{sT0}, s{sT0}, 3
    s_add_u32 s{sT0}, s{sT0}, s{sW}
    s_lshl_b32 s{sT0}, s{sT0}, 13
    v_lshlrev_b32 v{vPS}, 4, v{L}
    v_add_u32 v{vPS}, s{sT0}, v{vPS}
    s_lshl_b32 s{sKVB}, s{sG}, 19
    s_lshl_b32 s{sT0}, s{sW}, 12
    s_add_u32 s{sKVB}, s{sKVB}, s{sT0}
    s_add_u32 s{sKVB}, s{sKVB}, {1536 * 256}
    s_add_u32 s{S_K}, s{S_K}, s{sKVB}
    s_addc_u32 s{S_K + 1}, s{S_K + 1}, 0
    s_add_u32 s{S_V}, s{S_V}, s{sKVB}
    s_addc_u32 s{S_V + 1}, s{S_V + 1}, 0
    s_sub_u32 s{S_K + 2}, {131072}, s{sT0}
    s_mov_b32 s{S_V + 2}, s{S_K + 2}
    s_lshl_b32 s{sT0}, s{sG}, 19
    s_add_u32 s{S_WO}, s{S_WO}, s{sT0}
    s_addc_u32 s{S_WO + 1}, s{S_WO + 1}, 0
    s_mov_b32 s{S_WO + 2}, 524288
    s_lshl_b32 s{sKO}, s{sKVT}, 14
    s_mov_b32 s{sVO}, s{sKO}
    v_cmp_eq_u32 s[{sMASK}:{sMASK + 1}], 1, v{A1}
    v_cmp_eq_u32 s[{sMASK + 2}:{sMASK + 3}], 2, v{A1}
    v_cmp_eq_u32 s[{sMASK + 4}:{sMASK + 5}], 3, v{A1}
    v_cmp_eq_u32 s[98:99], v{A2}, v{A0}
    """)
    e(f"v_mov_b32 v{A5}, 0x3f803f80")
    for i in range(4):
        e(f"v_accvgpr_write_b32 a{64 + i}, v{A5}")
    e(f"s_mov_b32 s100, 0xffff0000")
    e("s_nop 0")
    SUM, GRM = 68, 72
    e(f"""
    v_and_b32 v58, 15, v{L}                  ; tok16
    v_lshrrev_b32 v59, 4, v{L}               ; q4
    v_bfe_u32 v60, v58, 1, 3                 ; swz
    v_xor_b32 v59, v59, v60
    v_lshlrev_b32 v59, 4, v59
    v_and_b32 v60, 7, v58
    v_lshl_add_u32 v59, v60, 7, v59
    v_lshrrev_b32 v60, 3, v58
    v_lshl_add_u32 v59, v60, 12, v59
    v_add_u32 v62, s{sT3}, v59
    v_xor_b32 v63, 64, v62
    """)

    for i in range(192, 256):
        e(f"v_accvgpr_write_b32 a{i}, 0")

    def stat_frag(p):
        e.need(ltags=[("xr", p)])
        xf = rng("v", vQ + 4 * p, 4)
        c1 = "0" if p == 0 else rng("a", SUM, 4)
        c2 = "0" if p == 0 else rng("a", GRM, 4)
        e(f"v_mfma_f32_16x16x32_bf16 {rng('a', SUM, 4)}, a[64:67], {xf}, {c1}")
        e(f"v_mfma_f32_16x16x32_bf16 {rng('a', GRM, 4)}, {xf}, {xf}, {c2}")
        for i in range(4):
            src = vQ + 4 * p + i
            dst = 128 + 8 * p + 2 * i
            e(f"v_lshlrev_b32 v{dst}, 16, v{src}")
            e(f"v_and_b32 v{dst + 1}, s100, v{src}")

    for u in range(8):
        e.need(vtags=[("x", u, 1)])
        for par in range(2):
            e.lds(f"ds_read_b128 {rng('v', vQ + 4 * (2 * u + par), 4)}, v{62 + par} offset:{u * 8192}", ("xr", 2 * u + par))
        sched = OPT.get("dma_sched") or [2 if uu >= OPT.get("dma_from", 0) else 0 for uu in range(8)]
        for k in range(sched[u]):
            if len(wq_pre) > 4:
                for fn in wq_pre.pop(0):
                    fn()
        if u > 0:
            stat_frag(2 * u - 2)
            stat_frag(2 * u - 1)
    e.need(vtags=[("wr", 0)])
    e(f"""
    v_lshrrev_b32 v58, 4, v{L}
    v_lshlrev_b32 v58, 4, v58
    v_add_u32 v58, s{sRING}, v58
    """)
    for p in range(16):
        e.lds(f"ds_read_b128 {rng('a', 128 + 4 * p, 4)}, v58 offset:{2 * SLOT + 4096 + p * 64}", ("wrf", p))
    stat_frag(14)
    stat_frag(15)
    e.nop(6)
    if not OPT.get("tailstamps") and not OPT.get("p3stamps"):
        stamp("x15_stats")
    s1, s2_, u0, u1, u2, u3 = 58, 59, 60, 61, 62, 63
    e(f"""
    v_accvgpr_read_b32 v{s1}, a{SUM}
    v_accvgpr_read_b32 v{u0}, a{GRM}
    v_accvgpr_read_b32 v{u1}, a{GRM + 1}
    v_accvgpr_read_b32 v{u2}, a{GRM + 2}
    v_accvgpr_read_b32 v{u3}, a{GRM + 3}
    v_cndmask_b32 v{u0}, v{u0}, v{u1}, s[{sMASK}:{sMASK + 1}]
    v_cndmask_b32 v{u0}, v{u0}, v{u2}, s[{sMASK + 2}:{sMASK + 3}]
    v_cndmask_b32 v{u0}, v{u0}, v{u3}, s[{sMASK + 4}:{sMASK + 5}]
    v_cndmask_b32 v{u0}, 0, v{u0}, s[98:99]
    v_mov_b32 v{u1}, v{u0}
    s_nop 1
    v_permlane32_swap_b32 v{u0}, v{u1}
    s_nop 0
    v_add_f32 v{u0}, v{u0}, v{u1}
    v_mov_b32 v{u1}, v{u0}
    s_nop 1
    v_permlane16_swap_b32 v{u0}, v{u1}
    s_nop 0
    v_add_f32 v{s2_}, v{u0}, v{u1}
    v_mul_f32 v{s1}, {hex(f2u(1.0 / 512))}, v{s1}     ; mean
    v_mul_f32 v{s2_}, {hex(f2u(1.0 / 512))}, v{s2_}
    v_fma_f32 v{s2_}, -v{s1}, v{s1}, v{s2_}      ; var
    v_max_f32 v{s2_}, 0, v{s2_}
    v_cvt_pk_bf16_f32 v{u0}, v{s1}, v{s2_}
    v_and_b32 v{u1}, s100, v{u0}
    v_add_f32 v{u1}, {hex(f2u(1e-5))}, v{u1}
    v_cvt_pk_bf16_f32 v{u1}, v{u1}, v{u1}
    v_and_b32 v{u1}, s100, v{u1}
    v_sqrt_f32 v{u1}, v{u1}
    v_lshlrev_b32 v{s1}, 16, v{u0}             ; mean_b f32
    v_cvt_pk_bf16_f32 v{u1}, v{u1}, v{u1}
    v_and_b32 v{u2}, s100, v{u1}                ; sd_b f32
    v_rcp_f32 v{u3}, v{u2}
    v_and_b32 v{u0}, 0xffff, v{u0}
    v_or_b32 v31, v{u0}, v{u2}
    v_mul_f32 v{u3}, {hex(f2u(C_SCALE))}, v{u3}     ; rsc
    v_mul_f32 v{u2}, v{s1}, v{u3}
    v_sub_f32 v{u2}, 0, v{u2}
    """)
    e(f"""
    v_mov_b32 v60, v{u3}
    v_mov_b32 v61, v{u3}
    v_mov_b32 v63, v{u2}
    """)
    e(f"""
    s_lshl_b32 s{sT0}, s{sW}, 10
    v_add_u32 v{s1}, s{sT0}, v{vBR}
    """)
    for p in range(16):
        for i in range(4):
            src = 128 + 8 * p + 2 * i
            e(f"v_pk_fma_f32 v[{src}:{src + 1}], v[{src}:{src + 1}], v[60:61], v[62:63]")
        for i in range(4):
            src = 128 + 8 * p + 2 * i
            e(f"v_cvt_pk_bf16_f32 v{vQ + 4 * p + i}, v{src}, v{src + 1}")
        e.lds(f"ds_write_b128 v{s1}, {rng('v', vQ + 4 * p, 4)} offset:{p * 4096}", ("xw", p))
        if len(wq_pre) > OPT.get("w2late", 0) and p % OPT.get("dma_norm", 2) == 0 and not OPT.get("dma_late"):
            if len(wq_pre) <= 4:
                e.need(ltags=[("wrf", 15)])
            for fn in wq_pre.pop(0):
                fn()
    e.need(ltags=[("wrf", 15)])
    while len(wq_pre) > OPT.get("w2late", 0):
        for fn in wq_pre.pop(0):
            fn()
    e.need(ltags=[("xw", 15)])
    e("s_barrier")
    if not OPT.get("tailstamps") and not OPT.get("p3stamps"):
        stamp("ln_done")
    gemm_pre(e, 1)
    while wq_pre:
        for fn in wq_pre.pop(0):
            fn()
    for p in range(16):
        c = "0" if p == 0 else "a[76:79]"
        e(f"v_mfma_f32_16x16x32_bf16 a[76:79], {rng('a', 128 + 4 * p, 4)}, {rng('v', vQ + 4 * p, 4)}, {c}")
    e.nop(8)
    e(f"""
    v_accvgpr_read_b32 v58, a76
    v_mul_f32 v58, {hex(f2u(1.0 / C_SCALE))}, v58
    v_cvt_pk_bf16_f32 v58, v58, v58
    v_and_b32 v59, s100, v58
    v_ashrrev_i32 v58, 31, v59
    v_or_b32 v58, 0x80000000, v58
    v_xor_b32 v59, v59, v58                  ; monotone map
    s_lshl_b32 s{sT0}, s{sTB}, 6
    s_lshl_b32 s{sT1}, s{sW}, 4
    s_add_u32 s{sT0}, s{sT0}, s{sT1}
    s_sub_u32 s{sT0}, 2047, s{sT0}
    v_and_b32 v58, 15, v{vLANE}
    v_sub_u32 v58, s{sT0}, v58               ; 2047 - token
    v_and_or_b32 v59, v59, s100, v58
    """)

    def lines(txt):
        return [t.strip() for t in txt.strip().split("\n") if t.strip()]

    st13 = lines(f"""
    s_add_u32 s{sGA}, s{S_WS}, {WS_R} | s_addc_u32 s{sGA + 1}, s{S_WS + 1}, 0
    s_mov_b32 s{sGA + 2}, 8192
    s_mov_b32 s{sGA + 3}, 0x20000
    s_add_u32 s{sGB}, s{S_WS}, {WS_STAT} | s_addc_u32 s{sGB + 1}, s{S_WS + 1}, 0
    s_mov_b32 s{sGB + 2}, 8192
    s_mov_b32 s{sGB + 3}, 0x20000
    s_lshl_b32 s{sT2}, s{sTB}, 6
    s_lshl_b32 s{sT1}, s{sW}, 4
    s_add_u32 s{sT2}, s{sT2}, s{sT1}
    v_add_u32 v58, s{sT2}, v{vLANE}
    v_lshlrev_b32 v58, 2, v58
    v_cmp_gt_u32 vcc, 16, v{vLANE}
    s_cmp_eq_u32 s{sG}, 0 | s_cselect_b64 s[{sMASK}:{sMASK + 1}], -1, 0
    v_mov_b32 v60, 0x7ffffff0
    s_and_b64 vcc, vcc, s[{sMASK}:{sMASK + 1}]
    v_cndmask_b32 v58, v60, v58, vcc
    """)
    st13 = [(x, None) for x in st13]
    st13.append((f"buffer_store_dword v59, v58, s[{sGA}:{sGA + 3}], 0 offen sc1", ("st", 0)))
    st13.append((f"buffer_store_dword v31, v58, s[{sGB}:{sGB + 3}], 0 offen sc1", ("st", 1)))
    if OPT.get("fused"):
        st13 += [(x, None) for x in lines(f"""
        s_lshl_b32 s{sT2}, s{sTB}, 3
        s_add_u32 s{sT2}, s{sT2}, s{sG}
        s_lshl_b32 s{sT2}, s{sT2}, 2
        s_add_u32 s{sT2}, s{sT2}, {WS_FLG}
        s_cmp_eq_u32 s{sW}, 0 | s_cselect_b32 s{sT2}, s{sT2}, 0x7fff0000
        v_lshlrev_b32 v58, 10, v{vLANE}
        v_add_u32 v58, s{sT2}, v58
        v_mov_b32 v60, 0x7fff0000
        v_cmp_gt_u32 vcc, 9, v{vLANE}
        v_mov_b32 v61, 0
        s_nop 0
        v_cndmask_b32 v58, v60, v58, vcc
        """)]
        st13.append((f"buffer_store_dword v61, v58, s[{S_WS}:{S_WS + 3}], 0 offen sc1", ("st", 2)))
    st14 = [f"v_mov_b32 v{vL + i}, 0" for i in range(4)]
    for i in range(4):
        st14 += [f"v_mov_b32 v{vGA + i}, v{vKDM + i}", f"v_mov_b32 v{vGB + i}, v{vVDM}"]
    st14 += lines(f"""
    s_mov_b32 s{sPASS}, 0
    v_mov_b32 v31, v{vKR}
    v_mov_b32 v63, v{vVR}
    s_min_u32 s{sSL}, s2, 223
    s_lshl_b32 s{sT2}, s{sW}, 7
    v_add_u32 v3, s{sT2}, v{vLANE}
    v_mul_u32_u24 v3, 3584, v3
    s_lshl_b32 s{sT2}, s{sSL}, 4
    v_add_u32 v3, s{sT2}, v3
    v_lshrrev_b32 v4, 4, v{vLANE}
    v_lshlrev_b32 v2, 1, v4
    v_lshlrev_b32 v4, 10, v4
    v_xor_b32 v2, v2, v{vLANE}
    v_and_b32 v2, 15, v2
    v_lshl_add_u32 v4, v2, 4, v4
    s_lshl_b32 s{sT2}, s{sSL}, 13
    s_lshl_b32 s{sT1}, s{sW}, 8
    s_add_u32 s{sT2}, s{sT2}, s{sT1}
    v_add_u32 v4, s{sT2}, v4
    """)

    def emit_item(x, tag):
        def f():
            for part in x.split(" | "):
                if tag is not None:
                    e.vm(part, tag)
                else:
                    e(part)
        return f

    def tail1(p):
        f = []

        def guard(pp):
            return lambda: e.need(ltags=[("A", pp + 1, 7)])
        if p == 12:
            f += [(21, guard(12))] + place(kv_dma(e, "K", 1, ("KV", 0, "K")), 21, 3)
        if p == 13:
            f += place(kv_dma(e, "V", 1, ("KV", 0, "V")), 1, 4)
            f += [(21, guard(13))] + place(kv_dma(e, "K", 2, ("KV", 1, "K")), 21, 3)
        if p == 14:
            f += place(kv_dma(e, "V", 2, ("KV", 1, "V")), 1, 4)
            f += [(21, guard(14))] + place(kv_dma(e, "K", 0, ("KV", 2, "K")), 21, 3)
        if p == 13:
            for n, (x, tag) in enumerate(st13):
                f.append((n * 31 // len(st13), emit_item(x, tag)))
        if p == 14:
            for n, x in enumerate(st14):
                f.append((n * 31 // len(st14), emit_item(x, None)))
        return f

    qside = Side()
    for dt in range(8):
        first = True
        for qb in range(2):
            R = vQ + (dt * 2 + qb) * 4
            a0 = vACC + (dt * 4 + 2 * qb) * 4
            a1 = a0 + 4
            qside.add(f"v_cvt_pk_bf16_f32 v{R}, v{a0}, v{a0 + 1}", cond=((15, 4 * dt + 8) if first else None))
            first = False
            qside.add(f"v_cvt_pk_bf16_f32 v{R + 1}, v{a0 + 2}, v{a0 + 3}")
            qside.add(f"v_cvt_pk_bf16_f32 v{R + 2}, v{a1}, v{a1 + 1}")
            qside.add(f"v_cvt_pk_bf16_f32 v{R + 3}, v{a1 + 2}, v{a1 + 3}")
        for qb in range(2):
            R = vQ + (dt * 2 + qb) * 4
            qside.add(f"v_permlane16_swap_b32 v{R}, v{R + 2}", gap=(0 if qb == 0 else 0))
            qside.add(f"v_permlane16_swap_b32 v{R + 1}, v{R + 3}", gap=(1 if qb == 1 else 0))
    if OPT.get("only"):
        def gs(name):
            lq = list(e.lq)
            stamp(name)
            if name in OPT["only"]:
                e.lq = lq
        GSTAMP[0] = gs
    gemm_main(e, 1, tail1, side=qside, side_steps=(15,))
    if not OPT.get("tailstamps") and not OPT.get("p3stamps"):
        stamp("p1_done")
    e.nop(8)
    qside.emit(e, 0, flush=True)
    for i in range(32):
        e(f"v_mov_b32 v{vNM + i}, 0")
    if OPT.get("only"):
        stamp("q_conv")
    e(f"L_p2_start:")
    e(f"""
    s_mov_b32 s{sGA}, s{S_K}
    s_mov_b32 s{sGA + 1}, s{S_K + 1}
    s_mov_b32 s{sGA + 2}, s{S_K + 2}
    s_mov_b32 s{sGB}, s{S_V}
    s_mov_b32 s{sGB + 1}, s{S_V + 1}
    s_mov_b32 s{sGB + 2}, s{S_V + 2}
    s_mov_b32 s{sKSL}, {2 * SLOT}
    s_mov_b32 s{sVSL}, {1 * SLOT}
    s_mov_b32 s{sTRIP}, 1
    s_add_u32 s{sGAM}, s{sRING}, {1 * SLOT}
    s_add_u32 s{sGBM}, s{sRING}, 4096
    s_lshl_b32 s{sGAO}, s{sW}, 13
    s_mov_b32 s{sMASK + 2}, {64 * 3584}
    s_mov_b32 s{S_WQ + 2}, {512 * 1792 * 2}
    """)
    e(f"""
    v_bfe_u32 v61, v{vLANE}, 2, 2               ; r
    v_lshrrev_b32 v59, 4, v{vLANE}              ; q4
    v_lshl_add_u32 v60, v59, 3, v61             ; 8 q4 + r
    v_lshlrev_b32 v60, 4, v60
    v_and_b32 v62, 1, v{vLANE}
    v_lshl_add_u32 v60, v62, 3, v60             ; + (c&1)*8
    v_bfe_u32 v62, v{vLANE}, 1, 1
    v_lshl_add_u32 v60, v62, 11, v60            ; + U
    s_lshl_b32 s{sT0}, s{sW}, 13
    v_add_u32 v60, s{sT0}, v60
    v_and_b32 v59, 1, v59
    v_lshl_add_u32 v59, v59, 2, v61             ; row 0..7
    v_lshlrev_b32 v59, 8, v59                   ; row*256
    v_lshlrev_b32 v61, 5, v61
    v_or_b32 v61, v61, v59
    v_bfe_u32 v59, v{vLANE}, 1, 1
    v_lshl_add_u32 v61, v59, 4, v61             ; + (c>>1)*16
    v_and_b32 v59, 1, v{vLANE}
    v_lshl_add_u32 v61, v59, 3, v61             ; + (c&1)*8
    v_add_u32 v61, s{sT0}, v61
    """)
    if OPT.get("wotouch"):
        e(f"""
        s_and_b32 s{sT0}, s{sTB}, 15
        s_lshl_b32 s{sT0}, s{sT0}, 2
        s_add_u32 s{sT0}, s{sT0}, s{sW}
        s_lshl_b32 s{sT0}, s{sT0}, 13
        v_lshlrev_b32 v62, 7, v{vLANE}
        v_add_u32 v62, s{sT0}, v62
        """)
    e.wait_all()
    e("s_barrier")
    for f in range(4):
        k_read(e, 0, f)
    e(f"""
    s_or_b32 s{sT0}, {'0' if OPT.get("fused") else 's%d' % sG}, s{sW}
    s_or_b32 s{sT0}, s{sT0}, s{sPASS}
    s_cmp_lg_u32 s{sT0}, 0
    s_cbranch_scc1 L_nopub
    """)
    if not OPT.get("xnopublish"):
        e(f"""
        v_mov_b32 v58, 0
        v_mov_b32 v59, 1
        v_cmp_eq_u32 vcc, 0, v{vLANE}
        s_nop 0
        s_and_saveexec_b64 s[{sMASK}:{sMASK + 1}], vcc
        global_atomic_add v58, v59, s[{sDBG}:{sDBG + 1}] sc1
        s_mov_b64 exec, s[{sMASK}:{sMASK + 1}]
        """)
    e("L_nopub:")
    e("v_xor_b32 v58, 32, v61")
    e("v_xor_b32 v59, 64, v61")
    e("v_xor_b32 v2, 96, v61")
    if OPT.get("ipf2"):
        e(f"""
        s_getpc_b64 s[{sT0}:{sT0 + 1}]
        L_ipf2:
        s_lshr_b32 s{sT2}, s2, 3
        s_and_b32 s{sT2}, s{sT2}, {OPT["ipf2"] - 1}
        s_lshl_b32 s{sT2}, s{sT2}, 12
        s_lshl_b32 s{sT3}, s{sW}, 10
        s_add_u32 s{sT2}, s{sT2}, s{sT3}
        v_lshlrev_b32 v62, 4, v{vLANE}
        v_add_u32 v62, s{sT2}, v62
        v_min_u32 v62, (L_kend - L_ipf2 - 32) & 0xfffffff0, v62
        """)
        e.vm(f"global_load_dwordx4 a[36:39], v62, s[{sT0}:{sT0 + 1}]", ("ipf", 2))
    p2_iter(e, -1, qk=True, sm=False, pv=False, look="K",
            fill=[(i // 4, lambda i=i: e(f"v_accvgpr_write_b32 a{128 + i}, 0")) for i in range(64)])
    upd = []
    for i in range(8):
        upd.append((i // 4 * 8 + i % 4 if i < 4 else 9 + i, lambda i=i: e(f"v_add_u32 v{vKR + i}, {SLOT}, v{vKR + i}")))
    p2_iter(e, 0, qk=True, sm=True, pv=False, look="K", fill=upd, smstart=5)

    if OPT.get("only"):
        lqs = list(e.lq)
        stamp("p2_preloop")
        e.lq = lqs
    lq0 = list(e.lq)
    loop_align(e)
    e("L_p2_loop:")
    n0 = len(e.l)
    e("s_waitcnt vmcnt(1)")
    e.vq = []
    if not OPT.get("nobar"):
        e("s_barrier")
    D64 = 64 * 3584
    fill = []

    def grp(*lines):
        f = lambda: [e(x) for x in lines]
        f.ninstr = len(lines)
        return f

    def adv2(sreg):
        f = lambda: kv_adv(e, sreg)
        f.ninstr = 2
        return f
    fill.append((0, lambda: e(f"s_mov_b32 m0, s{sGAM}")))
    for i in range(4):
        if not OPT.get("nogdma"):
          fill.append((2 + 4 * i, lambda i=i: e.vm(
            f"buffer_load_dwordx4 v{vGA + i}, s[{sGA}:{sGA + 3}], s{sKO} offen offset:{i * 1024} lds", ("G", 0))))
    fill.append((15, adv2(sKO)))
    fill.append((16, lambda: e(f"s_mov_b32 m0, s{sGBM}")))
    for i in range(4):
        if not OPT.get("nogdma"):
          fill.append((18 + 4 * i, lambda i=i: e.vm(
            f"buffer_load_dwordx4 v{vGB + i}, s[{sGB}:{sGB + 3}], s{sVO} offen offset:{i * 1024} lds", ("G", 1))))
    fill.append((30, adv2(sVO)))
    for db in range(4):
        fill.append((24 + 2 * db, lambda db=db: e(f"v_add_u32 v{vVR + db}, 49152, v{vVR + db}")))
    fill.append((4, grp(f"s_add_u32 s{sT1}, s{sKSL}, {SLOT}", f"s_cmp_eq_u32 s{sT1}, {3 * SLOT}",
                        f"s_cselect_b32 s{sT1}, 0, s{sT1}")))
    fill.append((8, grp(f"s_sub_u32 s{sKD}, s{sT1}, s{sKSL}", f"s_sub_u32 s{sVD}, s{sKSL}, s{sVSL}")))
    fill.append((12, grp(f"s_sub_u32 s{sVD}, s{sVD}, 49152", f"s_mov_b32 s{sVSL}, s{sKSL}", f"s_mov_b32 s{sKSL}, s{sT1}")))
    fill.append((20, grp(f"s_cmp_ge_u32 s{sTRIP}, 3", f"s_cselect_b32 s{S_WQ}, s{sFP + 2}, s{sFP}",
                         f"s_cselect_b32 s{S_WQ + 1}, s{sFP + 3}, s{sFP + 1}")))
    fill.append((22, grp(f"s_bitcmp0_b32 s{sTRIP}, 0", f"s_cselect_b32 s{sGBO}, s{sMASK + 2}, 0")))
    fill.append((24, grp(f"s_cmp_ge_u32 s{sTRIP}, 5", f"s_cselect_b32 s{S_WQ}, s{sFP + 4}, s{S_WQ}",
                         f"s_cselect_b32 s{S_WQ + 1}, s{sFP + 5}, s{S_WQ + 1}")))
    fill.append((26, grp(f"s_cmp_ge_u32 s{sTRIP}, 5", f"s_cselect_b32 s{sGBO}, 0, s{sGBO}",
                         f"s_cselect_b64 s[{sMASK}:{sMASK + 1}], -1, 0")))
    fill.append((28, grp(f"s_cmp_ge_u32 s{sTRIP}, 6", f"s_cselect_b32 s{sGBO}, 4096, s{sGBO}")))
    p2_iter(e, 1, fill=fill)
    fill = []
    for i in range(8):
        fill.append((8 + 2 * i if i >= 4 else 2 * i, lambda i=i: e(f"v_add_u32 v{vKR + i}, s{sKD}, v{vKR + i}")))
    for db in range(4):
        fill.append((24 + 2 * db, lambda db=db: e(f"v_add_u32 v{vVR + db}, s{sVD}, v{vVR + db}")))
    fill.append((1, lambda: e(f"v_cndmask_b32 v1, v3, v4, s[{sMASK}:{sMASK + 1}]")))
    fill.append((2, lambda: e(f"s_mov_b32 m0, s{sGAO}")))
    if not OPT.get("nocdma"):
        def cdma():
            e(f"s_cmp_eq_u32 s{sTRIP}, 7")
            if OPT.get("wotouch"):
                e("s_cbranch_scc0 L_p2_c")
                if OPT.get("ffnearly"):
                    e("s_waitcnt vmcnt(8)")
                    for i in range(4):
                        for rd in range(2):
                            e(f"ds_read_b64_tr_b16 {rng('a', 96 + 4 * i + 2 * rd, 2)}, v60 offset:{i * 512 + rd * 64}")
                    for t in range(8):
                        e(f"ds_read_b64_tr_b16 {rng('a', 112 + 2 * t, 2)}, v{[61, 58, 59, 2][t & 3]} offset:{4096 + (t >> 2) * 128}")
                e(f"buffer_load_dword a40, v62, s[{S_WO}:{S_WO + 3}], 0 offen")
                e("s_branch L_p2_noc")
                e("L_p2_c:")
            else:
                e("s_cbranch_scc1 L_p2_noc")
            e.vm(f"buffer_load_dwordx4 v1, s[{S_WQ}:{S_WQ + 3}], s{sGBO} offen lds", ("C", 0))
            e("L_p2_noc:")
        cdma.ninstr = 3
        fill.append((4, cdma))
    fill.append((6, lambda: e(f"s_add_u32 s{sGAO}, s{sGAO}, 1024")))
    fill.append((10, grp(f"s_add_u32 s{sGAM}, s{sRING}, s{sVSL}", f"s_add_u32 s{sT1}, s{sKSL}, {SLOT}")))
    fill.append((12, grp(f"s_cmp_eq_u32 s{sT1}, {3 * SLOT}", f"s_cselect_b32 s{sT1}, 0, s{sT1}",
                         f"s_add_u32 s{sGBM}, s{sRING}, s{sT1}")))
    fill.append((14, lambda: e(f"s_add_u32 s{sGBM}, s{sGBM}, 4096")))
    fill.append((28, lambda: e(f"s_add_u32 s{sTRIP}, s{sTRIP}, 1")))
    p2_iter(e, 2, fill=fill)
    e(f"""
    s_cmp_lg_u32 s{sTRIP}, 7
    s_cbranch_scc1 L_p2_noswitch
    s_mov_b32 s{sGA}, s{S_WO}
    s_mov_b32 s{sGA + 1}, s{S_WO + 1}
    s_mov_b32 s{sGA + 2}, s{S_WO + 2}
    s_mov_b32 s{sGB}, s{S_WO}
    s_mov_b32 s{sGB + 1}, s{S_WO + 1}
    s_mov_b32 s{sGB + 2}, s{S_WO + 2}
    s_mov_b32 s{sGAM}, s{sRING}
    s_add_u32 s{sGBM}, s{sRING}, 4096
    s_mov_b32 s{sKO}, s{sWOO}
    """)
    p3_adv(e)
    e(f"s_mov_b32 s{sVO}, s{sWOO}")
    p3_adv(e)
    for i in range(4):
        e(f"v_mov_b32 v{vGA + i}, v{vWO + i}")
        e(f"v_mov_b32 v{vGB + i}, v{vWO + i}")
    e("L_p2_noswitch:")
    e(f"s_cmp_lg_u32 s{sTRIP}, 8")
    e("s_cbranch_scc1 L_p2_loop")
    body = e.l[n0:]
    probs = check_hazards(body + body, "p2 loop x2")
    assert not probs or any(k.startswith("no") for k in OPT), "\n".join(probs[:10])
    sh = lambda q, d: [(t[0], t[1] + d) + tuple(t[2:]) if t else t for t in q]
    assert sh(lq0, 2) == e.lq, (lq0, e.lq)
    e.lq = sh(e.lq, 12)
    if OPT.get("only"):
        stamp("p2_loopend")
    e.vq = [("W", 0)] * 4 + [("W", 1)] * 4 + ([("touch", 0)] if OPT.get("wotouch") else [])
    if not OPT.get("ffnearly"):
        e(f"s_waitcnt vmcnt({9 if OPT.get('wotouch') else 8})")
        for i in range(4):
            for rd in range(2):
                e.lds(f"ds_read_b64_tr_b16 {rng('a', 96 + 4 * i + 2 * rd, 2)}, v60 offset:{i * 512 + rd * 64}", ("fa", i))
        for t in range(8):
            e.lds(f"ds_read_b64_tr_b16 {rng('a', 112 + 2 * t, 2)}, v{[61, 58, 59, 2][t & 3]} offset:{4096 + (t >> 2) * 128}", ("da", t))
    for f in range(4):
        v_read(e, 14, f, VORD_T)
    e.wait_all(vm=False)
    e("s_barrier")
    if OPT.get("only"):
        stamp("b15_start")
    wl = OPT.get("w23late", 0)
    fill = [] if wl else place(p3_dma(e, 2), 0, 2) + place(p3_dma(e, 3), 8, 2)
    for db in range(4):
        fill.append((7 + db, lambda db=db: e(f"v_add_u32 v{vVR + db}, 49152, v{vVR + db}")))
    e.lq = [t for t in e.lq]
    e(f"v_mov_b32 v62, 0")
    e.vm(f"global_load_dword v2, v62, s[{sDBG}:{sDBG + 1}] sc1", ("cnt", 0))
    p2_iter(e, 15, qk=False, sm=True, pv=True, look="V", fill=fill, vpre=False, vord_next=VORD_D)
    if OPT.get("only"):
        lqs = list(e.lq)
        stamp("b15_end")
        e.lq = lqs
    RL = [58, 60]
    side = Side()
    A = side.add
    A(f"v_add_f32 v{vL}, v{vL}, v{vL + 1}")
    A(f"v_add_f32 v{vL + 2}, v{vL + 2}, v{vL + 3}")
    A(f"v_mov_b32 v{vL + 1}, v{vL}")
    A(f"v_mov_b32 v{vL + 3}, v{vL + 2}")
    A(f"v_permlane32_swap_b32 v{vL}, v{vL + 1}", gap=2)
    A(f"v_permlane32_swap_b32 v{vL + 2}, v{vL + 3}", gap=1)
    A(f"v_add_f32 v{vL}, v{vL}, v{vL + 1}", gap=1)
    A(f"v_add_f32 v{vL + 2}, v{vL + 2}, v{vL + 3}")
    A(f"v_rcp_f32 v{RL[0]}, v{vL}")
    A(f"v_rcp_f32 v{RL[1]}, v{vL + 2}")
    A(f"s_mov_b32 s{sT2}, {hex(f2u(2.0 ** -40))}")
    A(f"s_mov_b32 s{sT3}, {hex(f2u(2.0 ** 40))}")
    A(f"v_cmp_lt_f32 s[{sMASK}:{sMASK + 1}], s{sT2}, v{vL}")
    A(f"v_cmp_gt_f32 s[{sMASK + 2}:{sMASK + 3}], s{sT3}, v{vL}")
    A(f"v_cmp_lt_f32 s[{sMASK + 4}:{sMASK + 5}], s{sT2}, v{vL + 2}")
    A(f"v_cmp_gt_f32 vcc, s{sT3}, v{vL + 2}")
    A(f"s_and_b64 s[{sMASK}:{sMASK + 1}], s[{sMASK}:{sMASK + 1}], s[{sMASK + 2}:{sMASK + 3}]", gap=2)
    A(f"s_and_b64 vcc, vcc, s[{sMASK + 4}:{sMASK + 5}]")
    A(f"s_and_b64 s[{sMASK}:{sMASK + 1}], s[{sMASK}:{sMASK + 1}], vcc")
    for db in range(4):
        wa = 61 + (db & 1)
        A(lambda db=db: [e(x) for x in (f"s_lshl_b32 s{sT1}, s{sW}, 2", f"s_add_u32 s{sT1}, s{sT1}, {db}",
                                        f"s_sub_u32 s{sT1}, s{sT1}, s{sSK}")])
        A(lambda: [e(x) for x in (f"s_and_b32 s{sT1}, s{sT1}, 15", f"s_lshl_b32 s{sT1}, s{sT1}, 12")])
        A(f"v_add_u32 v{wa}, s{sT1}, v{vOW}")
        for qb in range(2):
            src = aO + (db * 2 + qb) * 16
            T = 128 + ((db * 2 + qb) % 4) * 16 if False else 128 + (db * 2 + qb) * 16
            for i in range(16):
                A(f"v_accvgpr_read_b32 v{T + i}, a{src + i}", cond=((16, min(4 * db + 7, 99)) if (i == 0 and qb == 0) else None))
            for i in range(8):
                A(f"v_pk_mul_f32 v[{T + 2 * i}:{T + 2 * i + 1}], v[{T + 2 * i}:{T + 2 * i + 1}], v[{RL[qb]}:{RL[qb] + 1}] op_sel_hi:[1,0]")
            for i in range(8):
                A(f"v_cvt_pk_bf16_f32 v{T + i}, v{T + 2 * i}, v{T + 2 * i + 1}")
            for jp in range(2):
                A(lambda T=T, jp=jp, qb=qb, db=db, wa=wa: e.lds(
                    f"ds_write_b128 v{wa}, {rng('v', T + 4 * jp, 4)} offset:{qb * 2048 + jp * 512}", ("ow", db, qb, jp)))
    fill16 = place(p3_dma(e, 2), 0, 2) + place(p3_dma(e, 3), 8, 2) if wl else []
    p2_iter(e, 16, qk=False, sm=False, pv=True, look=None, vord=VORD_D, side=side, cap=OPT.get("normcap", 5), fill=fill16)
    if not OPT.get("tailstamps"):
        stamp("p2_done")
    e.nop(OPT.get("normnop", 10))
    side.emit(e, 0, flush=True)
    if OPT.get("only"):
        stamp("flush_end")
    e(f"""
    s_cmp_eq_u64 s[{sMASK}:{sMASK + 1}], -1
    s_cselect_b32 s{sT2}, 0, 1
    s_cmp_eq_u32 s{sPASS}, 0
    s_cselect_b32 s{sT2}, s{sT2}, 0
    s_cmp_eq_u32 s{sT2}, 0
    s_cbranch_scc1 L_noflag
    s_lshl_b32 s{sT0}, s{sW}, 2
    s_sub_u32 s{sT0}, s{sT0}, s{sSK}
    s_and_b32 s{sT0}, s{sT0}, 15
    s_lshl_b32 s{sT0}, s{sT0}, 12
    v_mov_b32 v58, s{sT0}
    v_mov_b32 v59, -1
    ds_write_b32 v58, v59
    L_noflag:
    """)
    for w_ in range(4):
        e(f"""
        s_sub_u32 s{sT0}, {4 * w_}, s{sSK}
        s_and_b32 s{sT0}, s{sT0}, 15
        s_lshl_b32 s{sT0}, s{sT0}, 12
        v_mov_b32 v{58 + w_}, s{sT0}
        """)
    e(f"""
    s_lshl_b32 s{sT1}, s{sW}, 11
    v_lshlrev_b32 v62, 5, v{vLANE}
    v_add_u32 v62, s{sT1}, v62
    v_add_u32 v62, {WS_R}, v62
    v_lshlrev_b32 v{vBR}, 4, v{vLANE}
    s_mov_b32 s48, 4096
    s_mov_b32 s49, 32768
    s_mov_b32 s50, {32768 + 4096}
    """)
    e.wait_all(vm=False)
    e("s_barrier")
    if OPT.get("only"):
        stamp("b2_bar")
    for w_ in range(4):
        e.lds(f"ds_read_b32 v{58 + w_}, v{58 + w_}", ("mk", w_))
    e.need(vtags=[("W", 0)])
    for fn in p3_reads(e, 0, 0)[8:] + p3_reads(e, 0, 0)[:8]:
        fn()
    serial(e, p3_dma(e, 4))
    e.need(ltags=[("mk", 3)])
    e(f"""
    v_and_b32 v58, v58, v59
    v_and_b32 v60, v60, v61
    v_max_u32 v58, v58, v60
    v_max_u32 v59, v59, v61
    """)
    e.l = e.l[:-4]
    e(f"""
    v_max_u32 v58, v58, v59
    v_max_u32 v60, v60, v61
    v_max_u32 v58, v58, v60
    s_nop 0
    v_readfirstlane_b32 s{sT0}, v58
    s_nop 0
    s_cmp_eq_u32 s{sT0}, -1
    s_cbranch_scc1 L_fallback
    L_p3_start:
    """)
    e.need(vtags=[("cnt", 0)])
    e(f"""
    v_readfirstlane_b32 s{sT0}, v2
    s_nop 0
    s_cmp_ge_u32 s{sT0}, {(256 if OPT.get("fused") else 32) + (1000 if OPT.get("xforceslow") else 0)}
    s_cselect_b32 s{sRDY}, 1, 0
    """)
    e.vm(f"buffer_load_dwordx4 v[88:91], v62, s[{S_WS}:{S_WS + 3}], 0 offen sc1", ("rl", 0))
    e.vm(f"buffer_load_dwordx4 v[92:95], v62, s[{S_WS}:{S_WS + 3}], 0 offen offset:16 sc1", ("rl", 1))
    assert [t for t in e.vq if t[0] == "W"] == [("W", u) for u in range(2, 5) for _ in range(4)], e.vq
    e.vq = [("W", u) for u in range(5) for _ in range(4)]
    import moe

    def tail3(u):
        return []

    def tail3_old(u):
        f = []
        lst = {28: [(S_WQ, 80, 0), (S_WQ, 81, 1024), (S_K, 80, 2048), (S_K, 81, 3072)], 29: [(S_V, 82, 4096), (S_V, 83, 5120)]}
        if u in lst and not OPT.get("nomoe") and not OPT.get("xnofw"):
            f.append((0, lambda u=u: e.need(ltags=[("A", u, 3)])))
            for n, (srd, v, off) in enumerate(lst[u]):
                f.append((1 + 3 * n, lambda off=off: e(f"s_add_u32 m0, s{sRING}, {2 * SLOT + off}")))
                f.append((2 + 3 * n, lambda srd=srd, v=v: e.vm(
                    f"buffer_load_dwordx4 v{v}, s[{srd}:{srd + 3}], 0 offen lds", ("fw", 0))))
        return f
    side_e, side = Side(), Side()
    sp = OPT.get("stspread", 2.0)
    for n, (x, gap) in enumerate(p3_epilogue_items(e, 0, [64, 68, 72, 76])):
        k, r = n // 7, n % 7
        pos = 16 + k * sp
        side_e.add(x, gap=gap, cond=((int(pos), 2 + int((pos % 1) * 16)) if r == 0 else None))
    if not OPT.get("nomoe"):
        moe.moe_side(e, side, dict(W=sW, RING=sRING, RDY=sRDY, M=100, X=S_X, WS=S_WS))
        side.q[0] = (side.q[0][0], side.q[0][1], (OPT.get("moestart", 4) if OPT.get("p3unroll", 1) else 16, 0))
    if OPT.get("p3stamps") or OPT.get("only"):
        def st_nowait(name):
            q = list(e.lq)
            stamp(name)
        STAMP[0] = st_nowait
    p3_phase(e, tail3, [side_e, side], None)
    side_e.emit(e, 0, flush=True)
    side.emit(e, 0, flush=True)
    stamp("p3_done")
    e.nop(6)
    items = p3_epilogue_items(e, 1, [64, 68, 72, 76, 80, 84, 88, 92])
    side = Side()
    for (x, gap) in items:
        side.add(x, gap=gap)
    side.emit(e, 0, flush=True)
    if OPT.get("fused"):
        moe.fused_pre(e, 100)
        stamp("gather") if OPT.get("tailstamps") else None
        for g_ in range(8):
            moe.ln_iter(e, 100, 2 * g_)
    stamp("epi")
    doneq = f"L_{label}_fin"
    RT = dict(X=S_X, WS=S_WS, WR=S_WR, W=sW, RING=sRING, SL=sSL, RDY=sRDY, DBG=sDBG, M=100, G=sG, TB=sTB,
              T=[42, 43, 44, 45, 46, 47, 60, 61, 62, 63, 64, 65, 66, 67], done=doneq,
              spin=OPT.get("spin", 4000), fused=OPT.get("fused"), NCNT=(256 if OPT.get("fused") else 32),
              stamp=(stamp if OPT.get("tailstamps") else (lambda n: None)), opt=OPT)
    if OPT.get("fused"):
        moe.moe_tail(e, RT)
    elif not OPT.get("nomoe"):
        e(f"""
        s_cmp_ge_u32 s2, 224
        s_cbranch_scc1 {doneq}
        s_nop 1
        """)
        moe.moe_tail(e, RT)
    e(f"{doneq}:")
    stamp("end")
    if stamps and OPT.get("dbgstamps"):
        e.wait_all()
        e(f"""
        v_mov_b32 v58, 16
        v_mov_b32 v59, s{sTS + 16}
        v_mov_b32 v60, 20
        s_not_b32 s{sT0}, s{sTS}
        v_mov_b32 v61, s{sT0}
        v_cmp_eq_u32 vcc, 0, v{vLANE}
        s_nop 0
        s_and_saveexec_b64 s[{sMASK}:{sMASK + 1}], vcc
        global_atomic_umax v58, v59, s[{sDBG}:{sDBG + 1}] sc1
        global_atomic_umax v60, v61, s[{sDBG}:{sDBG + 1}] sc1
        s_or_b32 s{sT0}, s2, s{sW}
        s_cmp_lg_u32 s{sT0}, 0
        s_cbranch_scc1 L_dbg_skip
        """)
        for k in range(1, 9):
            e(f"s_sub_u32 s{sT0}, s{sTS + 2 * k}, s{sTS}")
            e(f"v_mov_b32 v59, s{sT0}")
            e(f"v_mov_b32 v58, {24 + 4 * (k - 1)}")
            e(f"global_store_dword v58, v59, s[{sDBG}:{sDBG + 1}]")
            e("s_nop 1")
        e("L_dbg_skip:")
        e(f"s_mov_b64 exec, s[{sMASK}:{sMASK + 1}]")
    elif stamps:
        e.wait_all()
        e(f"""
        s_lshl_b32 s{sT0}, s2, 2
        s_add_u32 s{sT0}, s{sT0}, s{sW}
        s_lshl_b32 s{sT0}, s{sT0}, 7
        s_add_u32 s{sT0}, s{sT0}, {WS_TS}
        v_mov_b32 v58, s{sT0}
        v_cmp_eq_u32 vcc, 0, v{vLANE}
        s_nop 0
        s_and_saveexec_b64 s[{sMASK}:{sMASK + 1}], vcc
        """)
        for i in range(0, 20, 4):
            for q in range(4):
                e(f"v_mov_b32 v{60 + q}, s{min(sTS + i + q, sTS + 17)}")
            e(f"buffer_store_dwordx4 v[60:63], v58, s[{S_WS}:{S_WS + 3}], 0 offen offset:{i * 4}")
            e("s_nop 1")
        e(f"s_mov_b64 exec, s[{sMASK}:{sMASK + 1}]")
    e(f"s_branch {done}")
    e("L_fallback:")
    e(f"""
    s_barrier
    s_lshl_b32 s{sKO}, s{sKVT}, 14
    v_mov_b32 v{vKR}, v31
    v_mov_b32 v{vL}, 0xff800000
    v_mov_b32 v{vL + 2}, 0xff800000
    v_subrev_u32 v{vKR}, {SLOT}, v{vKR}
    s_mov_b32 s{sTRIP}, 0
    """)
    for s16 in range(1, 8):
        e(f"v_xor_b32 v{vKR + s16}, {32 * s16}, v{vKR}")
    e("L_fb_loop:")
    e("s_waitcnt vmcnt(0) lgkmcnt(0)")
    e("s_barrier")
    e.vq, e.lq = [], []
    serial(e, kv_dma(e, "K", 0, ("fbk", 0)))
    e.wait_all()
    e("s_barrier")
    for kb in range(2):
        for s16 in range(8):
            e(f"ds_read_b128 {Fbuf(s16)}, v{vKR + s16} offset:{kb * 49152}")
        e("s_waitcnt lgkmcnt(0)")
        for s16 in range(8):
            for qb in range(2):
                c = "0" if s16 == 0 else Sreg(0, qb)
                e(f"v_mfma_f32_32x32x16_bf16 {Sreg(0, qb)}, {Fbuf(s16)}, {Qreg(s16, qb)}, {c}")
        e.nop(16)
        for qb in range(2):
            m = vL + 2 * qb
            for i in range(0, 16, 2):
                e(f"v_max3_f32 v{m}, v{m}, {Sreg(0, qb, i)}, {Sreg(0, qb, i + 1)}")
    e(f"""
    s_add_u32 s{sTRIP}, s{sTRIP}, 1
    s_cmp_lt_u32 s{sTRIP}, 8
    s_cbranch_scc1 L_fb_loop
    v_mov_b32 v{vL + 1}, v{vL}
    v_mov_b32 v{vL + 3}, v{vL + 2}
    s_nop 1
    v_permlane32_swap_b32 v{vL}, v{vL + 1}
    v_permlane32_swap_b32 v{vL + 2}, v{vL + 3}
    s_nop 0
    v_max_f32 v{vL}, v{vL}, v{vL + 1}
    v_max_f32 v{vL + 2}, v{vL + 2}, v{vL + 3}
    """)
    for qb in range(2):
        for i in range(16):
            e(f"v_sub_f32 v{vNM + 16 * qb + i}, 0, v{vL + 2 * qb}")
    e(f"""
    s_barrier
    s_lshl_b32 s{sKO}, s{sKVT}, 14
    s_mov_b32 s{sVO}, s{sKO}
    s_lshl_b32 s{sWOO}, s{sSK}, 15
    v_mov_b32 v{vKR}, v31
    v_mov_b32 v{vVR}, v63
    s_mov_b32 s{sPASS}, 1
    """)
    for s16 in range(1, 8):
        e(f"v_xor_b32 v{vKR + s16}, {32 * s16}, v{vKR}")
    for db in range(1, 4):
        e(f"v_xor_b32 v{vVR + db}, {64 * db}, v{vVR}")
    for (which, slot) in (("K", 1), ("V", 1), ("K", 2), ("V", 2), ("K", 0)):
        serial(e, kv_dma(e, which, slot, ("fbp", 0)))
    for i in range(4):
        e(f"v_mov_b32 v{vL + i}, 0")
        e(f"v_mov_b32 v{vGA + i}, v{vKDM + i}")
        e(f"v_mov_b32 v{vGB + i}, v{vVDM}")
    for i in range(128):
        e(f"v_accvgpr_write_b32 a{128 + i}, 0")
    e("s_branch L_p2_start")
    e(f"{done}:")
    e("s_endpgm")
    e("L_kend:")
    sp = check_scc(e.l)
    if sp:
        print("\n".join(sp))
        raise SystemExit("scc")
    probs = check_hazards(e.l, "k1")
    if probs and not any(k.startswith("no") for k in OPT):
        print("\n".join(probs[:40]))
        raise SystemExit("hazards")
    return e.text()
```

```python
from emit import E, check_hazards, check_scc
from asmlib import KA
from k1 import WS_PART, WS_R, WS_STAT, WS_IDX, WS_TS, WS_FLG, f2u, rng

WS_YP = 17 << 20
NSL = 224
LOG2E = 1.4426950408889634


def wave_max_u32(e, v, tmp_s):
    for sh in (1, 2, 4, 8):
        e("s_nop 1")
        e(f"v_max_u32_dpp v{v}, v{v}, v{v} row_shr:{sh} row_mask:0xf bank_mask:0xf")
    e("s_nop 1")
    e(f"v_max_u32_dpp v{v}, v{v}, v{v} row_bcast:15 row_mask:0xa bank_mask:0xf")
    e("s_nop 1")
    e(f"v_max_u32_dpp v{v}, v{v}, v{v} row_bcast:31 row_mask:0xc bank_mask:0xf")
    e("s_nop 0")
    e(f"v_readlane_b32 s{tmp_s}, v{v}, 63")


def silu_bf16(e, dst, src, t0, t1, sM):
    e(f"v_mul_f32 v{t0}, {hex(f2u(-LOG2E))}, v{src}")
    e(f"v_exp_f32 v{t0}, v{t0}")
    e("s_nop 0")
    e(f"v_add_f32 v{t0}, 1.0, v{t0}")
    e(f"v_rcp_f32 v{t0}, v{t0}")
    e("s_nop 0")
    e(f"v_mul_f32 v{t0}, v{src}, v{t0}")
    e(f"v_cvt_pk_bf16_f32 v{t0}, v{t0}, v{t0}")
    e(f"v_and_b32 v{dst}, s{sM}, v{t0}")


def ts_begin(e, on):
    if on:
        e("s_memrealtime s[64:65]")


def ts_end(e, on, srd, off, wave_sreg, lane_v=0):
    if not on:
        return
    e(f"""
    s_memrealtime s[66:67]
    s_mov_b64 exec, -1
    s_lshl_b32 s68, s2, 2
    s_add_u32 s68, s68, s{wave_sreg}
    s_lshl_b32 s68, s68, 4
    s_add_u32 s68, s68, {off}
    s_waitcnt vmcnt(0) lgkmcnt(0)
    s_memrealtime s[66:67]
    s_waitcnt lgkmcnt(0)
    v_mov_b32 v100, s64
    v_mov_b32 v101, s65
    v_mov_b32 v102, s66
    v_mov_b32 v103, s67
    v_mov_b32 v104, s68
    v_cmp_eq_u32 vcc, 0, v{lane_v}
    s_nop 1
    s_and_saveexec_b64 s[70:71], vcc
    buffer_store_dwordx4 v[100:103], v104, s[{srd}:{srd + 3}], 0 offen
    """)


def gen_km(label, ts=False):
    e = E()
    done = f"L_{label}_done"
    S_X, S_WG, S_WU, S_WD, S_WS = 4, 8, 12, 16, 20
    sW, sF0, sM = 24, 25, 26
    sWIN = 32
    e(f"""
    s_cmp_ge_u32 s2, {NSL}
    s_cbranch_scc1 {done}
    {"s_memrealtime s[64:65]" if ts else ""}
    s_load_dwordx2 s[4:5], s[0:1], {KA['x']}
    s_load_dwordx2 s[8:9], s[0:1], {KA['wg']}
    s_load_dwordx2 s[12:13], s[0:1], {KA['wu']}
    s_load_dwordx2 s[16:17], s[0:1], {KA['wd']}
    s_load_dwordx2 s[20:21], s[0:1], {KA['ws']}
    v_lshrrev_b32 v1, 6, v0
    v_mov_b32 v63, v0                    ; tid
    v_and_b32 v0, 63, v0
    v_readfirstlane_b32 s{sW}, v1
    s_lshl_b32 s{sF0}, s2, 4
    s_mov_b32 s{sM}, 0xffff0000
    s_waitcnt lgkmcnt(0)
    s_mov_b32 s6, 2097152
    s_mov_b32 s7, 0x20000
    s_mov_b32 s10, {512 * 1792 * 2}
    s_mov_b32 s11, 0x20000
    s_mov_b32 s14, {512 * 1792 * 2}
    s_mov_b32 s15, 0x20000
    s_mov_b32 s18, {1792 * 512 * 2}
    s_mov_b32 s19, 0x20000
    s_mov_b32 s22, 0x10000000
    s_mov_b32 s23, 0x20000
    """)
    e(f"""
    v_lshlrev_b32 v2, 5, v63
    v_add_u32 v2, {WS_R}, v2
    """)
    e.vm(f"buffer_load_dwordx4 v[8:11], v2, s[20:23], 0 offen", "r0")
    e.vm(f"buffer_load_dwordx4 v[12:15], v2, s[20:23], 0 offen offset:16", "r1")
    e(f"""
    s_lshl_b32 s27, s{sW}, 7
    v_add_u32 v3, s27, v0                ; row = 128 w + l
    v_mul_u32_u24 v3, 3584, v3
    v_add_u32 v3, s{sF0}, v3
    v_add_u32 v4, {64 * 3584}, v3
    s_lshl_b32 s28, s{sW}, 11            ; w*2048
    """)
    for (srd, base) in ((S_WG, 0), (S_WU, 8192)):
        for i in range(2):
            e(f"s_add_u32 m0, s28, {base + i * 1024}")
            e("s_nop 0")
            e.vm(f"buffer_load_dwordx4 v{3 + i}, s[{srd}:{srd + 3}], 0 offen lds", "wgu")
    e(f"""
    s_lshl_b32 s29, s2, 3
    s_lshl_b32 s30, s{sW}, 1
    s_add_u32 s29, s29, s30
    s_lshl_b32 s29, s29, 10              ; row*1024
    v_lshlrev_b32 v5, 4, v0
    """)
    for i in range(2):
        e(f"s_add_u32 m0, s28, {16384 + i * 1024}")
        e("s_nop 0")
        e.vm(f"buffer_load_dwordx4 v5, s[{S_WD}:{S_WD + 3}], s29 offen lds", "wd")
        e("s_add_u32 s29, s29, 1024")
    e.need(vtags=["r1"])
    e(f"v_lshlrev_b32 v6, 3, v63")
    e(f"v_sub_u32 v6, 2047, v6            ; 2047 - idx0")
    for i in range(8):
        r = 8 + i
        e(f"v_ashrrev_i32 v7, 31, v{r}")
        e(f"v_or_b32 v7, 0x80000000, v7")
        e(f"v_xor_b32 v{r}, v{r}, v7          ; monotone map")
        e(f"v_and_b32 v{r}, s{sM}, v{r}")
        e(f"v_or_b32 v{r}, v{r}, v6")
        if i < 7:
            e(f"v_subrev_u32 v6, 1, v6")
    e("v_mov_b32 v20, 0")
    for rd in range(8):
        e("v_max3_u32 v16, v8, v9, v10")
        e("v_max3_u32 v17, v11, v12, v13")
        e("v_max3_u32 v16, v16, v14, v15")
        e("v_max_u32 v16, v16, v17")
        wave_max_u32(e, 16, 31)
        e("s_nop 1")
        for i in range(8):
            e(f"v_cmp_ne_u32 vcc, s31, v{8 + i}")
            e("s_nop 1")
            e(f"v_cndmask_b32 v{8 + i}, 0, v{8 + i}, vcc")
        e(f"v_writelane_b32 v20, s31, {rd}")
    e(f"""
    s_lshl_b32 s27, s{sW}, 5
    v_lshlrev_b32 v21, 2, v0
    v_add_u32 v21, s27, v21
    v_add_u32 v21, 24576, v21
    v_cmp_gt_u32 vcc, 8, v0
    s_nop 0
    s_and_saveexec_b64 s[40:41], vcc
    ds_write_b32 v21, v20
    s_mov_b64 exec, s[40:41]
    s_waitcnt lgkmcnt(0)
    s_barrier
    v_and_b32 v21, 31, v0
    v_lshlrev_b32 v21, 2, v21
    ds_read_b32 v22, v21 offset:24576
    v_cmp_gt_u32 vcc, 32, v0
    s_waitcnt lgkmcnt(0)
    s_nop 0
    v_cndmask_b32 v22, 0, v22, vcc
    """)
    for rd in range(8):
        e("v_mov_b32 v16, v22")
        wave_max_u32(e, 16, sWIN + rd)
        e("s_nop 1")
        e(f"v_cmp_ne_u32 vcc, s{sWIN + rd}, v22")
        e("s_nop 1")
        e(f"v_cndmask_b32 v22, 0, v22, vcc")
    e("v_and_b32 v24, 7, v0")
    e(f"v_mov_b32 v23, s{sWIN}")
    for j in range(1, 8):
        e(f"v_cmp_eq_u32 vcc, {j}, v24")
        e(f"v_mov_b32 v25, s{sWIN + j}")
        e("s_nop 0")
        e("v_cndmask_b32 v23, v23, v25, vcc")
    e(f"""
    v_and_b32 v26, 0x7ff, v23
    v_sub_u32 v26, 2047, v26
    v_and_b32 v27, s{sM}, v23
    v_ashrrev_i32 v28, 31, v27
    v_not_b32 v28, v28
    v_or_b32 v28, 0x80000000, v28
    v_xor_b32 v27, v27, v28
    v_and_b32 v27, s{sM}, v27             ; r (f32 bits)
    """)
    e(f"""
    v_mul_f32 v28, {hex(f2u(-LOG2E))}, v27
    v_exp_f32 v28, v28
    s_nop 0
    v_add_f32 v28, 1.0, v28
    v_rcp_f32 v28, v28
    s_nop 0
    v_cvt_pk_bf16_f32 v28, v28, v28
    v_and_b32 v28, s{sM}, v28             ; bf16(sigmoid(r))
    v_lshlrev_b32 v29, 2, v0
    v_add_u32 v29, {WS_IDX}, v29
    s_or_b32 s27, s2, s{sW}
    s_cmp_eq_u32 s27, 0
    s_cselect_b64 s[42:43], -1, 0
    v_cmp_gt_u32 vcc, 8, v0
    s_nop 1
    s_and_b64 vcc, vcc, s[42:43]
    s_and_saveexec_b64 s[40:41], vcc
    s_cbranch_execz L_km_nopub
    buffer_store_dword v26, v29, s[20:23], 0 offen
    buffer_store_dword v28, v29, s[20:23], 0 offen offset:32
    L_km_nopub:
    s_mov_b64 exec, s[40:41]
    """)
    e.vq += ["pub", "pub"]
    e(f"""
    v_lshrrev_b32 v30, 4, v0
    v_lshlrev_b32 v30, 4, v30             ; q4*16
    v_lshl_add_u32 v30, v26, 10, v30
    s_lshl_b32 s27, s{sW}, 8              ; 4w*64 bytes
    v_lshlrev_b32 v31, 2, v26
    v_add_u32 v31, {WS_STAT}, v31
    """)
    e.vm(f"buffer_load_dword v32, v31, s[20:23], 0 offen", "st")
    for i in range(4):
        e.vm(f"buffer_load_dwordx4 {rng('v', 36 + 4 * i, 4)}, v30, s[4:7], s27 offen offset:{64 * i}", ("xg", i))
    e.need(vtags=["st"])
    e(f"""
    v_lshlrev_b32 v33, 16, v32            ; mean
    v_and_b32 v34, s{sM}, v32             ; sd
    v_rcp_f32 v34, v34
    """)
    e.need(vtags=[("xg", 3)])
    for i in range(16):
        r = 36 + i
        e(f"""
        v_lshlrev_b32 v52, 16, v{r}
        v_and_b32 v53, s{sM}, v{r}
        v_sub_f32 v52, v52, v33
        v_sub_f32 v53, v53, v33
        v_cvt_pk_bf16_f32 v52, v52, v53
        v_and_b32 v53, s{sM}, v52
        v_lshlrev_b32 v52, 16, v52
        v_mul_f32 v52, v52, v34
        v_mul_f32 v53, v53, v34
        v_cvt_pk_bf16_f32 v{r}, v52, v53
        """)
    e.need(vtags=["wd"])
    e("s_barrier")
    e(f"""
    v_bfe_u32 v54, v0, 2, 2               ; r
    v_lshrrev_b32 v55, 4, v0              ; q4
    v_lshl_add_u32 v54, v55, 3, v54       ; 8 q4 + r
    v_lshlrev_b32 v54, 4, v54
    v_and_b32 v55, 1, v0
    v_lshl_add_u32 v54, v55, 3, v54       ; + (c&1)*8
    v_bfe_u32 v55, v0, 1, 1
    v_lshl_add_u32 v54, v55, 13, v54      ; + U
    s_lshl_b32 s27, s{sW}, 11
    v_add_u32 v54, s27, v54
    """)
    for i in range(4):
        for rd in range(2):
            e.lds(f"ds_read_b64_tr_b16 {rng('v', 64 + 4 * i + 2 * rd, 2)}, v54 offset:{i * 512 + rd * 64}", ("fa", i))
    for i in range(4):
        e.need(ltags=[("fa", i)])
        c = "0" if i == 0 else "v[56:59]"
        e(f"v_mfma_f32_16x16x32_bf16 v[56:59], {rng('v', 64 + 4 * i, 4)}, {rng('v', 36 + 4 * i, 4)}, {c}")
    e.nop(8)
    e(f"""
    s_lshl_b32 s27, s{sW}, 10
    v_lshlrev_b32 v60, 4, v0
    v_add_u32 v61, s27, v60
    ds_write_b128 v61, v[56:59] offset:25600
    s_waitcnt lgkmcnt(0)
    s_barrier
    ds_read_b128 v[64:67], v60 offset:25600
    ds_read_b128 v[68:71], v60 offset:{25600 + 1024}
    ds_read_b128 v[72:75], v60 offset:{25600 + 2048}
    ds_read_b128 v[76:79], v60 offset:{25600 + 3072}
    s_waitcnt lgkmcnt(0)
    """)
    for i in range(4):
        e(f"v_add_f32 v{64 + i}, v{64 + i}, v{68 + i}")
        e(f"v_add_f32 v{72 + i}, v{72 + i}, v{76 + i}")
        e(f"v_add_f32 v{64 + i}, v{64 + i}, v{72 + i}")
    for i in range(4):
        e(f"v_cvt_pk_bf16_f32 v{64 + i}, v{64 + i}, v{64 + i}")
        e(f"v_and_b32 v{64 + i}, s{sM}, v{64 + i}")
        e(f"v_mov_b32 v{68 + i}, v{64 + i}")
    e("s_nop 0")
    for i in range(4):
        e(f"v_permlane32_swap_b32 v{64 + i}, v{68 + i}")
    for i in range(4):
        silu_bf16(e, 72 + i, 64 + i, 76, 77, sM)
        e(f"v_mul_f32 v{72 + i}, v{72 + i}, v{68 + i}")
    e(f"""
    v_cvt_pk_bf16_f32 v80, v72, v73
    v_cvt_pk_bf16_f32 v81, v74, v75
    v_cmp_gt_u32 vcc, 32, v0
    v_mov_b32 v82, 0
    v_mov_b32 v83, 0
    v_cndmask_b32 v80, 0, v80, vcc
    v_cndmask_b32 v81, 0, v81, vcc
    """)
    e(f"""
    v_bfe_u32 v54, v0, 2, 2               ; r
    v_bfe_u32 v55, v0, 4, 1               ; q4 & 1
    v_lshl_add_u32 v54, v55, 2, v54       ; row 0..7
    v_lshlrev_b32 v54, 10, v54
    v_and_b32 v55, 3, v0
    v_lshl_add_u32 v54, v55, 3, v54       ; + c*8
    s_lshl_b32 s27, s{sW}, 8              ; 8w tiles * 32 B
    v_add_u32 v54, s27, v54
    v_mov_b32 v86, 0
    v_mov_b32 v87, 0
    """)
    for t in range(8):
        e.lds(f"ds_read_b64_tr_b16 {rng('v', 88 + 4 * t, 2)}, v54 offset:{16384 + t * 32}", ("da", t))
        e(f"v_mov_b32 v{90 + 4 * t}, 0")
        e(f"v_mov_b32 v{91 + 4 * t}, 0")
    for t in range(8):
        e.need(ltags=[("da", t)])
        e(f"v_mfma_f32_16x16x32_bf16 {rng('v', 120 + 4 * t, 4)}, {rng('v', 88 + 4 * t, 4)}, v[80:83], 0")
    e(f"""
    s_lshl_b32 s27, s2, 14
    s_lshl_b32 s28, s{sW}, 9              ; 8w*16*4 bytes
    s_add_u32 s27, s27, s28
    s_add_u32 s27, s27, {WS_YP}
    v_and_b32 v60, 15, v0
    v_lshlrev_b32 v61, 11, v60
    v_lshrrev_b32 v62, 4, v0
    v_lshl_add_u32 v61, v62, 4, v61
    v_add_u32 v61, s27, v61
    v_cmp_gt_u32 vcc, 8, v60
    s_nop 4
    s_and_saveexec_b64 s[40:41], vcc
    """)
    for t in range(8):
        e(f"buffer_store_dwordx4 {rng('v', 120 + 4 * t, 4)}, v61, s[20:23], 0 offen offset:{t * 64}")
    e("s_mov_b64 exec, s[40:41]")
    ts_end(e, ts, S_WS, WS_TS + (1 << 20), sW)
    e(f"{done}:")
    e("s_endpgm")
    probs = check_hazards(e.l, "km")
    if probs:
        print("\n".join(probs[:40]))
        raise SystemExit("hazards")
    return e.text()


def final_math(e, n, vs, vx, vmean, vrsd, vupd, vout, t, sM):
    for i in range(n):
        a, b = t, t + 1
        e(f"v_cvt_pk_bf16_f32 v{vs[i]}, v{vs[i]}, v{vs[i]}")
        e(f"v_and_b32 v{vs[i]}, s{sM}, v{vs[i]}")
        e(f"v_sub_f32 v{a}, v{vx[i]}, v{vmean}")
        e(f"v_cvt_pk_bf16_f32 v{a}, v{a}, v{a}")
        e(f"v_and_b32 v{a}, s{sM}, v{a}")
        e(f"v_mul_f32 v{a}, v{a}, v{vrsd}")
        e(f"v_cvt_pk_bf16_f32 v{a}, v{a}, v{a}")
        e(f"v_and_b32 v{a}, s{sM}, v{a}")
        if vupd is not None:
            e(f"v_add_f32 v{a}, v{a}, v{vupd[i]}")
            e(f"v_cvt_pk_bf16_f32 v{a}, v{a}, v{a}")
            e(f"v_and_b32 v{a}, s{sM}, v{a}")
        silu_bf16(e, a, a, b, b, sM)
        e(f"v_mul_f32 v{a}, v{vs[i]}, v{a}")
        e(f"v_cvt_pk_bf16_f32 v{a}, v{a}, v{a}")
        e(f"v_and_b32 v{a}, s{sM}, v{a}")
        e(f"v_add_f32 v{vout[i]}, v{vx[i]}, v{a}")


def gen_k2(label, ts=False, perturb=None, dbgcopy=False):
    e = E()
    done = f"L_{label}_done"
    tail = f"L_{label}_tail"
    S_X, S_WS, S_OUT = 4, 8, 12
    sW, sM = 16, 17
    sIDX = 24
    e(f"""
    s_cmp_ge_u32 s2, 576
    s_cbranch_scc1 {done}
    {"s_memrealtime s[64:65]" if (ts or dbgcopy) else ""}
    s_load_dwordx2 s[4:5], s[0:1], {KA['x']}
    s_load_dwordx2 s[8:9], s[0:1], {KA['ws']}
    s_load_dwordx2 s[12:13], s[0:1], {KA['out']}
    v_lshrrev_b32 v1, 6, v0
    v_and_b32 v0, 63, v0
    s_mov_b32 s{sM}, 0xffff0000
    v_readfirstlane_b32 s{sW}, v1
    s_waitcnt lgkmcnt(0)
    s_add_u32 s18, s8, {WS_IDX}
    s_addc_u32 s19, s9, 0
    s_load_dwordx8 s[24:31], s[18:19], 0
    s_load_dwordx8 s[32:39], s[18:19], 32
    s_mov_b32 s6, 2097152
    s_mov_b32 s7, 0x20000
    s_mov_b32 s10, 0x10000000
    s_mov_b32 s11, 0x20000
    s_mov_b32 s14, 2097152
    s_mov_b32 s15, 0x20000
    s_cmp_lt_u32 s2, 64
    s_cbranch_scc1 L_k2_sel
    s_sub_u32 s63, s2, 64
    """)
    e(f"""
    s_lshl_b32 s20, s63, 2
    s_add_u32 s20, s20, s{sW}
    s_lshr_b32 s21, s20, 6                ; tb
    s_bfe_u32 s22, s20, {5 | (1 << 16)}   ; qb
    s_bfe_u32 s23, s20, {3 | (2 << 16)}   ; a
    s_and_b32 s20, s20, 7                 ; b
    s_lshl_b32 s40, s21, 6
    s_lshl_b32 s41, s22, 5
    s_add_u32 s40, s40, s41
    s_lshl_b32 s41, s23, 3
    s_add_u32 s40, s40, s41
    v_and_b32 v2, 7, v0
    v_add_u32 v3, s40, v2                 ; token
    v_lshrrev_b32 v4, 3, v0
    s_lshl_b32 s41, s20, 7
    v_lshlrev_b32 v4, 4, v4
    v_lshl_add_u32 v4, v3, 10, v4
    v_add_u32 v4, s41, v4
    s_lshl_b32 s41, s21, 16
    s_lshr_b32 s42, s20, 1
    s_lshl_b32 s42, s42, 14
    s_add_u32 s41, s41, s42
    s_and_b32 s42, s20, 1
    s_lshl_b32 s42, s42, 13
    s_add_u32 s41, s41, s42
    s_lshl_b32 s42, s22, 10
    s_add_u32 s41, s41, s42
    s_lshl_b32 s42, s23, 7
    s_add_u32 s41, s41, s42
    v_lshrrev_b32 v5, 4, v0
    v_lshlrev_b32 v5, 11, v5
    v_bfe_u32 v6, v0, 3, 1
    v_lshl_add_u32 v5, v6, 9, v5
    v_lshl_add_u32 v5, v2, 4, v5
    v_add_u32 v5, s41, v5
    v_lshlrev_b32 v7, 2, v3
    v_add_u32 v7, {WS_STAT}, v7
    """)
    for g in range(8):
        e(f"s_mov_b32 s{44 + g}, {g << 21}")
    for g in range(8):
        e.vm(f"buffer_load_dwordx4 {rng('v', 16 + 4 * g, 4)}, v5, s[8:11], s{44 + g} offen", ("p", g))
    e.vm(f"buffer_load_dword v8, v7, s[8:11], 0 offen", "st")
    e.vm(f"buffer_load_dwordx4 v[12:15], v4, s[4:7], 0 offen", "x")
    e(f"""
    s_mov_b32 s56, 0x00003f80            ; (1.0, 0)
    s_mov_b32 s57, 0x3f800000            ; (0, 1.0)
    s_mov_b32 s58, {hex(f2u(-LOG2E))}
    s_mov_b32 s59, {hex(f2u(-LOG2E))}
    s_mov_b32 s60, 1.0
    s_mov_b32 s61, 1.0
    """)
    e("s_waitcnt lgkmcnt(0)")
    for j in range(8):
        e(f"v_cmp_ne_u32 s[{72 + 2 * (j & 3)}:{73 + 2 * (j & 3)}], s{24 + j}, v3")
        if j == 3:
            e("s_nop 0")
            e("s_and_b64 s[52:53], s[72:73], s[74:75]")
            e("s_and_b64 s[54:55], s[76:77], s[78:79]")
            e("s_and_b64 s[52:53], s[52:53], s[54:55]")
    e("s_nop 0")
    e("s_and_b64 s[72:73], s[72:73], s[74:75]")
    e("s_and_b64 s[76:77], s[76:77], s[78:79]")
    e("s_and_b64 s[52:53], s[52:53], s[72:73]")
    e("s_and_b64 s[52:53], s[52:53], s[76:77]")
    for g in range(8):
        e.need(vtags=[("p", g)])
        for i in range(4):
            r = 16 + 4 * g + i
            c0 = "0" if g == 0 else f"v{48 + 2 * i}"
            c1 = "0" if g == 0 else f"v{49 + 2 * i}"
            e(f"v_dot2_f32_bf16 v{48 + 2 * i}, v{r}, s56, {c0}")
            e(f"v_dot2_f32_bf16 v{49 + 2 * i}, v{r}, s57, {c1}")
    e.need(vtags=["x"])
    e(f"""
    v_and_b32 v10, s{sM}, v8              ; sd
    v_rcp_f32 v10, v10
    v_lshlrev_b32 v9, 16, v8              ; mean
    v_mul_f32 v8, v9, v10
    v_sub_f32 v8, 0, v8
    """)
    for i in range(4):
        e(f"v_lshlrev_b32 v{60 + 2 * i}, 16, v{12 + i}")
        e(f"v_and_b32 v{61 + 2 * i}, s{sM}, v{12 + i}")
    P = lambda b: f"v[{b}:{b + 1}]"
    for i in range(4):
        e(f"v_pk_fma_f32 {P(16 + 2 * i)}, {P(60 + 2 * i)}, v[10:11], v[8:9] op_sel_hi:[1,0,0]")
    for i in range(4):
        e(f"v_pk_mul_f32 {P(24 + 2 * i)}, {P(16 + 2 * i)}, s[58:59]")
    for i in range(8):
        e(f"v_exp_f32 v{24 + i}, v{24 + i}")
    for i in range(4):
        e(f"v_pk_add_f32 {P(24 + 2 * i)}, {P(24 + 2 * i)}, s[60:61]")
    for i in range(8):
        e(f"v_rcp_f32 v{24 + i}, v{24 + i}")
    for i in range(4):
        e(f"v_pk_mul_f32 {P(16 + 2 * i)}, {P(16 + 2 * i)}, {P(24 + 2 * i)}")
    for i in range(4):
        e(f"v_pk_fma_f32 {P(60 + 2 * i)}, {P(48 + 2 * i)}, {P(16 + 2 * i)}, {P(60 + 2 * i)}")
    if perturb is not None:
        kind, delta = perturb
        if kind == "one":
            e(f"""
            v_cmp_eq_u32 vcc, 0, v4
            v_mov_b32 v58, {hex(f2u(delta))}
            s_nop 0
            v_cndmask_b32 v58, 0, v58, vcc
            v_add_f32 v60, v60, v58
            """)
        elif kind == "all":
            for i in range(8):
                e(f"v_add_f32 v{60 + i}, {hex(f2u(delta))}, v{60 + i}")
        elif kind == "mul":
            for i in range(8):
                e(f"v_mul_f32 v{60 + i}, {hex(f2u(delta))}, v{60 + i}")
    for i in range(4):
        e(f"v_cvt_pk_bf16_f32 v{12 + i}, v{60 + 2 * i}, v{61 + 2 * i}")
    e(f"""
    s_and_saveexec_b64 s[54:55], s[52:53]
    s_cbranch_execz {tail}
    buffer_store_dwordx4 v[12:15], v4, s[12:15], 0 offen
    s_branch {tail}
    """)
    e("L_k2_sel:")
    e.vq, e.lq = [], []
    e(f"""
    s_lshr_b32 s21, s2, 3                 ; j
    s_and_b32 s22, s2, 7                  ; cb
    """)
    e(f"""
    s_mul_i32 s42, s{sW}, {56 * 16384}
    s_lshl_b32 s43, s21, 11               ; j*2048
    s_add_u32 s42, s42, s43
    s_lshl_b32 s43, s22, 8                ; cb*64*4
    s_add_u32 s42, s42, s43
    s_add_u32 s42, s42, {WS_YP}
    v_lshrrev_b32 v2, 4, v0
    v_lshlrev_b32 v2, 14, v2
    v_and_b32 v3, 15, v0
    v_lshl_add_u32 v2, v3, 4, v2
    v_add_u32 v2, s42, v2
    s_mov_b32 s43, 0
    """)
    for i in range(14):
        e.vm(f"buffer_load_dwordx4 {rng('v', 16 + 4 * i, 4)}, v2, s[8:11], s43 offen", ("y", i))
        e(f"s_add_u32 s43, s43, {4 * 16384}")
    e("s_waitcnt lgkmcnt(0)")
    e("s_mov_b32 s40, s24")
    e("s_mov_b32 s41, s32")
    for j in range(1, 8):
        e(f"s_cmp_eq_u32 s21, {j}")
        e(f"s_cselect_b32 s40, s{24 + j}, s40")
        e(f"s_cselect_b32 s41, s{32 + j}, s41")
    e(f"""
    s_lshl_b32 s43, s22, 7
    s_lshl_b32 s44, s40, 10
    s_add_u32 s43, s43, s44
    v_lshlrev_b32 v4, 3, v3
    v_add_u32 v4, s43, v4
    s_lshl_b32 s44, s40, 2
    s_add_u32 s44, s44, {WS_STAT}
    v_mov_b32 v7, s44
    s_lshr_b32 s44, s40, 6
    s_lshl_b32 s44, s44, 16
    s_lshr_b32 s45, s22, 1
    s_lshl_b32 s45, s45, 14
    s_add_u32 s44, s44, s45
    s_and_b32 s45, s22, 1
    s_lshl_b32 s45, s45, 13
    s_add_u32 s44, s44, s45
    s_bfe_u32 s45, s40, {5 | (1 << 16)}
    s_lshl_b32 s45, s45, 10
    s_add_u32 s44, s44, s45
    s_and_b32 s45, s40, 31
    s_lshl_b32 s45, s45, 4
    s_add_u32 s44, s44, s45
    v_lshrrev_b32 v5, 2, v3
    v_lshlrev_b32 v5, 11, v5
    v_bfe_u32 v6, v3, 1, 1
    v_lshl_add_u32 v5, v6, 9, v5
    v_and_b32 v6, 1, v3
    v_lshl_add_u32 v5, v6, 3, v5
    v_add_u32 v5, s44, v5
    """)
    for g in range(8):
        e(f"s_mov_b32 s{56 + g}, {g << 21}")
    e.vm(f"buffer_load_dword v8, v7, s[8:11], 0 offen", "st")
    e.vm(f"buffer_load_dwordx2 v[12:13], v4, s[4:7], 0 offen", "x")
    for g in range(8):
        e.vm(f"buffer_load_dwordx2 {rng('v', 80 + 2 * g, 2)}, v5, s[8:11], s{56 + g} offen", ("p", g))
    for i in range(14):
        e.need(vtags=[("y", i)])
        if i > 0:
            for q in range(4):
                e(f"v_add_f32 v{16 + q}, v{16 + q}, v{16 + 4 * i + q}")
    for q in range(4):
        e(f"v_mov_b32 v{20 + q}, v{16 + q}")
    e("s_nop 0")
    for q in range(4):
        e(f"v_permlane32_swap_b32 v{16 + q}, v{20 + q}")
    for q in range(4):
        e(f"v_add_f32 v{16 + q}, v{16 + q}, v{20 + q}")
    for q in range(4):
        e(f"v_mov_b32 v{20 + q}, v{16 + q}")
    e("s_nop 0")
    for q in range(4):
        e(f"v_permlane16_swap_b32 v{16 + q}, v{20 + q}")
    for q in range(4):
        e(f"v_add_f32 v{16 + q}, v{16 + q}, v{20 + q}")
    e(f"""
    s_lshl_b32 s43, s{sW}, 10
    v_lshlrev_b32 v24, 4, v0
    v_add_u32 v25, s43, v24
    ds_write_b128 v25, v[16:19]
    s_waitcnt lgkmcnt(0)
    s_barrier
    s_cmp_lg_u32 s{sW}, 0
    s_cbranch_scc1 {tail}
    ds_read_b128 v[16:19], v24
    ds_read_b128 v[20:23], v24 offset:1024
    ds_read_b128 v[28:31], v24 offset:2048
    ds_read_b128 v[32:35], v24 offset:3072
    s_waitcnt lgkmcnt(0)
    """)
    for q in range(4):
        e(f"v_add_f32 v{16 + q}, v{16 + q}, v{20 + q}")
        e(f"v_add_f32 v{28 + q}, v{28 + q}, v{32 + q}")
        e(f"v_add_f32 v{16 + q}, v{16 + q}, v{28 + q}")
    for q in range(4):
        e(f"v_cvt_pk_bf16_f32 v{16 + q}, v{16 + q}, v{16 + q}")
        e(f"v_and_b32 v{16 + q}, s{sM}, v{16 + q}")
        e(f"v_mul_f32 v{16 + q}, s41, v{16 + q}")
        e(f"v_cvt_pk_bf16_f32 v{16 + q}, v{16 + q}, v{16 + q}")
        e(f"v_and_b32 v{16 + q}, s{sM}, v{16 + q}")
    e.need(vtags=[("p", 7)])
    for g in range(8):
        for i in range(2):
            r = 80 + 2 * g + i
            if g == 0:
                e(f"v_lshlrev_b32 v{48 + 2 * i}, 16, v{r}")
                e(f"v_and_b32 v{49 + 2 * i}, s{sM}, v{r}")
            else:
                e(f"v_lshlrev_b32 v56, 16, v{r}")
                e(f"v_and_b32 v57, s{sM}, v{r}")
                e(f"v_add_f32 v{48 + 2 * i}, v{48 + 2 * i}, v56")
                e(f"v_add_f32 v{49 + 2 * i}, v{49 + 2 * i}, v57")
    e(f"""
    v_lshlrev_b32 v9, 16, v8
    v_and_b32 v10, s{sM}, v8
    v_rcp_f32 v10, v10
    """)
    for i in range(2):
        e(f"v_lshlrev_b32 v{60 + 2 * i}, 16, v{12 + i}")
        e(f"v_and_b32 v{61 + 2 * i}, s{sM}, v{12 + i}")
    final_math(e, 4, [48 + i for i in range(4)], [60 + i for i in range(4)], 9, 10, [16 + i for i in range(4)],
               [60 + i for i in range(4)], 56, sM)
    for i in range(2):
        e(f"v_cvt_pk_bf16_f32 v{12 + i}, v{60 + 2 * i}, v{61 + 2 * i}")
    e(f"""
    v_cmp_gt_u32 vcc, 16, v0
    s_nop 0
    s_and_saveexec_b64 s[54:55], vcc
    buffer_store_dwordx2 v[12:13], v4, s[12:15], 0 offen
    """)
    e(f"{tail}:")
    if dbgcopy:
        e(f"""
        s_mov_b64 exec, -1
        s_waitcnt vmcnt(0) lgkmcnt(0)
        s_memrealtime s[66:67]
        s_load_dwordx2 s[70:71], s[0:1], {KA['dbg']}
        s_cmp_lg_u32 s{sW}, 0
        s_cbranch_scc1 {done}
        s_cmp_lg_u32 s2, 0
        s_cbranch_scc1 {done}
        v_lshlrev_b32 v100, 3, v0
        v_add_u32 v100, {WS_TS}, v100
        buffer_load_dword v101, v100, s[{S_WS}:{S_WS + 3}], 0 offen
        v_mov_b32 v102, {WS_TS}
        buffer_load_dword v103, v102, s[{S_WS}:{S_WS + 3}], 0 offen
        s_waitcnt vmcnt(0) lgkmcnt(0)
        v_sub_u32 v101, v101, v103
        v_mov_b32 v104, s64
        v_sub_u32 v104, v104, v103
        v_mov_b32 v105, s66
        v_sub_u32 v105, v105, v103
        v_cmp_eq_u32 vcc, 9, v0
        s_nop 1
        v_cndmask_b32 v101, v101, v104, vcc
        v_cmp_eq_u32 vcc, 10, v0
        s_nop 1
        v_cndmask_b32 v101, v101, v105, vcc
        v_lshlrev_b32 v100, 2, v0
        v_cmp_gt_u32 vcc, 11, v0
        s_nop 1
        s_and_saveexec_b64 s[68:69], vcc
        global_store_dword v100, v101, s[70:71]
        s_waitcnt vmcnt(0)
        """)
    ts_end(e, ts, S_WS, WS_TS + (2 << 20), sW)
    e(f"{done}:")
    e("s_endpgm")
    probs = check_hazards(e.l, "k2") + check_scc(e.l)
    if probs:
        print("\n".join(probs[:40]))
        raise SystemExit("hazards")
    return e.text()


SORT8 = [(0, 1), (2, 3), (4, 5), (6, 7), (0, 2), (1, 3), (4, 6), (5, 7), (1, 2), (5, 6), (0, 4), (3, 7),
         (1, 5), (2, 6), (1, 4), (3, 6), (2, 4), (3, 5), (3, 4)]


def _check_sort8():
    import itertools
    for bits in itertools.product([0, 1], repeat=8):
        a = list(bits)
        for i, j in SORT8:
            if a[i] < a[j]:
                a[i], a[j] = a[j], a[i]
        assert a == sorted(a, reverse=True)


_check_sort8()


def keys_from_r(e, K, vidx, sM, tmp):
    for i in range(8):
        r = K[i]
        e(f"v_ashrrev_i32 v{tmp}, 31, v{r}")
        e(f"v_or_b32 v{tmp}, 0x80000000, v{tmp}")
        e(f"v_xor_b32 v{r}, v{r}, v{tmp}")
        e(f"v_and_or_b32 v{r}, v{r}, s{sM}, v{vidx}")
        if i < 7:
            e(f"v_subrev_u32 v{vidx}, 1, v{vidx}")


def wave_top8(e, K, spare, vres, vt, stmp, smask):
    K = list(K)
    free = spare
    for (i, j) in SORT8:
        e(f"v_max_u32 v{free}, v{K[i]}, v{K[j]}")
        e(f"v_min_u32 v{K[j]}, v{K[i]}, v{K[j]}")
        K[i], free = free, K[i]
    e(f"v_mov_b32 v{vres}, 0")
    for rd in range(8):
        e(f"v_mov_b32 v{vt}, v{K[0]}")
        wave_max_u32(e, vt, stmp)
        e("s_nop 1")
        e(f"v_writelane_b32 v{vres}, s{stmp}, {rd}")
        if rd < 7:
            e(f"v_cmp_eq_u32 s[{smask}:{smask + 1}], s{stmp}, v{K[0]}")
            e("s_nop 1")
            for q in range(7 - rd):
                e(f"v_cndmask_b32 v{K[q]}, v{K[q]}, v{K[q + 1]}, s[{smask}:{smask + 1}]")


def moe_side(e, side, R):
    from k1 import RB, WSTR, SLOT
    sW, sRING, sM = R["W"], R["RING"], R["M"]
    S_X, S_WS = R["X"], R["WS"]
    sA, sB = 46, 47
    MX = 5 * 4096
    mk = [60, 62, 64, 66]
    K = [88 + i for i in range(8)]
    spare, vres, vt, vidx, tmp = 96, 97, 98, 99, 100
    A = side.add
    free = spare
    for (i, j) in SORT8:
        A(f"v_max_u32 v{free}, v{K[i]}, v{K[j]}")
        A(f"v_min_u32 v{K[j]}, v{K[i]}, v{K[j]}")
        K[i], free = free, K[i]
    A(f"v_mov_b32 v{vres}, 0")
    for rd in range(8):
        A(f"v_mov_b32 v{vt}, v{K[0]}")
        for sh in (1, 2, 4, 8):
            A(f"v_max_u32_dpp v{vt}, v{vt}, v{vt} row_shr:{sh} row_mask:0xf bank_mask:0xf", gap=2)
        A(f"v_max_u32_dpp v{vt}, v{vt}, v{vt} row_bcast:15 row_mask:0xa bank_mask:0xf", gap=2)
        A(f"v_max_u32_dpp v{vt}, v{vt}, v{vt} row_bcast:31 row_mask:0xc bank_mask:0xf", gap=2)
        A(f"v_readlane_b32 s{sA}, v{vt}, 63", gap=1)
        if rd < 7:
            A(f"v_cmp_eq_u32 s[{mk[0]}:{mk[0] + 1}], s{sA}, v{K[0]}", gap=2)
            A(f"v_writelane_b32 v{vres}, s{sA}, {rd}")
            for q in range(7 - rd):
                A(f"v_cndmask_b32 v{K[q]}, v{K[q]}, v{K[q + 1]}, s[{mk[0]}:{mk[0] + 1}]", gap=(1 if q == 0 else 0))
        else:
            A(f"v_writelane_b32 v{vres}, s{sA}, {rd}", gap=2)
    A(f"v_writelane_b32 v{vres}, s{R['RDY']}, 8")
    A(f"v_lshlrev_b32 v{tmp}, 2, v0")
    A(f"v_add_u32 v{tmp}, s{sRING}, v{tmp}")
    A(lambda: e.lds(f"ds_write_b32 v{tmp}, v{vres} offset:{MX}", ("mw", 0)))
    A(f"v_lshrrev_b32 v126, 3, v0")
    A(f"v_and_b32 v126, 3, v126")
    A(f"v_mul_u32_u24 v126, {WSTR}, v126")
    A(f"v_and_b32 v127, 7, v0")
    A(f"v_lshl_add_u32 v126, v127, 2, v126")
    A(f"v_add_u32 v126, {RB + MX}, v126")

    def bar():
        e.need(ltags=[("mw", 0)])
        e("s_barrier")
    A(bar)
    A(lambda: e.lds(f"ds_read_b32 v120, v126", ("mo", 0)))
    for w_ in range(4):
        A(f"v_mov_b32 v127, {RB + MX + w_ * WSTR}")
        A(lambda w_=w_: e.lds(f"ds_read_b128 v[{88 + 8 * w_}:{91 + 8 * w_}], v127", ("mc", w_)))
        A(lambda w_=w_: e.lds(f"ds_read_b128 v[{92 + 8 * w_}:{95 + 8 * w_}], v127 offset:16", ("mc", w_)))
        A(lambda w_=w_: e.lds(f"ds_read_b32 v{121 + w_}, v127 offset:32", ("mf", w_)))
    A(f"v_mov_b32 v125, 0")
    A(lambda: e.need(ltags=[("mf", 3)]))
    A(f"v_and_b32 v121, v121, v122")
    A(f"v_and_b32 v123, v123, v124")
    A(f"v_and_b32 v121, v121, v123")
    for j0 in range(0, 32, 4):
        for q in range(4):
            A(f"v_cmp_gt_u32 s[{mk[q]}:{mk[q] + 1}], v{88 + j0 + q}, v120")
        for q in range(4):
            A(f"v_addc_co_u32 v125, vcc, 0, v125, s[{mk[q]}:{mk[q] + 1}]", gap=(0 if q else 0))
    A(f"v_readfirstlane_b32 s{R['RDY']}, v121")
    A(f"v_lshlrev_b32 v126, 2, v125")
    A(f"v_add_u32 v126, s{sRING}, v126")
    A(lambda: e.lds(f"ds_write_b32 v126, v120 offset:{MX + 64}", ("mp", 0)))
    A(f"v_and_b32 v127, 7, v0")
    A(f"v_lshlrev_b32 v127, 2, v127")
    A(f"v_add_u32 v127, s{sRING}, v127")
    A(lambda: e.lds(f"ds_read_b32 v124, v127 offset:{MX + 64}", ("mq", 0)))
    A(f"v_lshrrev_b32 v122, 4, v0")
    A(f"v_lshlrev_b32 v122, 4, v122")
    A(f"s_lshl_b32 s{sB}, s{sW}, 8")
    A(lambda: e.need(ltags=[("mq", 0)]))
    A(f"v_and_b32 v123, 0x7ff, v124")
    A(f"v_sub_u32 v123, 2047, v123")
    A(f"v_accvgpr_write_b32 a225, v124")
    A(f"v_lshl_add_u32 v122, v123, 10, v122")
    A(f"v_lshlrev_b32 v123, 2, v123")
    A(f"v_add_u32 v123, {WS_STAT}, v123")
    A(lambda: e.vm(f"buffer_load_dword a224, v123, s[{S_WS}:{S_WS + 3}], 0 offen sc1", ("g", 0)), cond=(27, 0))
    for i in range(4):
        A(lambda i=i: e.vm(f"buffer_load_dwordx4 a[{208 + 4 * i}:{211 + 4 * i}], v122, s[{S_X}:{S_X + 3}], s{sB} offen offset:{64 * i}",
                           ("g", 1 + i)))


def sum_partials(e, base, acc, n_src, n_regs, s_lo, s_hi):
    for g in range(n_src):
        yield g
        for i in range(n_regs):
            r = base + n_regs * g + i
            c0 = "0" if g == 0 else f"v{acc + 2 * i}"
            c1 = "0" if g == 0 else f"v{acc + 2 * i + 1}"
            e(f"v_dot2_f32_bf16 v{acc + 2 * i}, v{r}, s{s_lo}, {c0}")
            e(f"v_dot2_f32_bf16 v{acc + 2 * i + 1}, v{r}, s{s_hi}, {c1}")


def flag_prepare(e, R, sA, sB, v, first, count):
    e(f"""
    s_lshl_b32 s{sA}, s{R['TB']}, 3
    s_add_u32 s{sB}, s{sA}, s{R['G']}
    s_lshl_b32 s{sB}, s{sB}, 2
    s_add_u32 s{sB}, s{sB}, {WS_FLG}
    s_cmp_eq_u32 s{R['W']}, 0
    s_cselect_b32 s{sB}, s{sB}, 0x7fff0000
    v_lshlrev_b32 v{v}, 10, v0
    v_add_u32 v{v}, s{sB}, v{v}
    v_mov_b32 v{v + 1}, 0x7fff0000
    v_cmp_gt_u32 vcc, {first + count}, v0
    s_nop 1
    v_cndmask_b32 v{v}, v{v + 1}, v{v}, vcc
    v_mov_b32 v{v + 1}, 1
    """)


def fused_finish(e, R, sA, sB, mk):
    S_X, S_WS, sW, sM = R["X"], R["WS"], R["W"], R["M"]
    sG, sTB = R["G"], R["TB"]
    S_OUT = 20
    from k1 import RB
    GO = RB + 5 * 4096 + 512
    e.nop(4)
    for u in range(4):
        a, b = 120 + 8 * u, 124 + 8 * u
        e(f"v_cvt_pk_bf16_f32 v{a}, v{a}, v{a + 1}")
        e(f"v_cvt_pk_bf16_f32 v{a + 1}, v{a + 2}, v{a + 3}")
        e(f"v_cvt_pk_bf16_f32 v{a + 2}, v{b}, v{b + 1}")
        e(f"v_cvt_pk_bf16_f32 v{a + 3}, v{b + 2}, v{b + 3}")
    e(f"""
    s_lshl_b32 s{sA}, s{R['SL']}, 13
    s_lshl_b32 s{sB}, s{sW}, 11
    s_add_u32 s{sA}, s{sA}, s{sB}
    s_add_u32 s{sA}, s{sA}, {WS_YP}
    v_and_b32 v60, 15, v0
    v_lshlrev_b32 v61, 6, v60
    v_lshrrev_b32 v62, 4, v0
    v_lshl_add_u32 v61, v62, 4, v61
    v_add_u32 v61, s{sA}, v61
    v_mov_b32 v63, 0x1ffffff0
    v_cmp_gt_u32 vcc, 8, v60
    s_nop 1
    v_cndmask_b32 v61, v63, v61, vcc
    """)
    for u in range(4):
        e(f"buffer_store_dwordx4 v[{120 + 8 * u}:{123 + 8 * u}], v61, s[{S_WS}:{S_WS + 3}], 0 offen offset:{u * 512} sc1")
    e(f"""
    L_fin_sync:
    v_mov_b32 v60, {GO}
    v_mov_b32 v62, 0
    v_mov_b32 v63, 0
    ds_write_b64 v60, v[62:63]
    """)
    flag_prepare(e, R, sA, sB, 24, 0, 9)
    e(f"""
    s_waitcnt vmcnt(0) lgkmcnt(0)
    s_barrier
    buffer_store_dword v25, v24, s[{S_WS}:{S_WS + 3}], 0 offen sc1
    s_mov_b32 s22, 2097152
    s_mov_b32 s23, 0x20000
    """)
    R["stamp"]("flag")
    for j in range(8):
        e(f"v_readlane_b32 s{8 + j}, v26, {j}")
    e(f"""
    s_mov_b32 s16, 0x00003f80
    s_mov_b32 s17, 0x3f800000
    s_mov_b32 s18, {hex(f2u(-LOG2E))}
    s_mov_b32 s19, {hex(f2u(-LOG2E))}
    s_mov_b32 s48, 1.0
    s_mov_b32 s49, 1.0
    """)
    for g in range(8):
        e(f"s_mov_b32 s{52 + g}, {g << 21}")
    e(f"""
    s_lshl_b32 s{sA}, s{sTB}, 6
    s_lshl_b32 s{sB}, s{sG}, 3
    s_add_u32 s{sA}, s{sA}, s{sB}
    v_and_b32 v2, 7, v0
    v_add_u32 v3, s{sA}, v2                 ; token
    v_lshrrev_b32 v4, 3, v0
    v_lshlrev_b32 v4, 4, v4
    v_lshl_add_u32 v4, v3, 10, v4
    s_lshl_b32 s{sB}, s{sW}, 8
    v_add_u32 v4, s{sB}, v4
    v_lshlrev_b32 v7, 2, v3
    v_add_u32 v7, {WS_STAT}, v7
    s_lshl_b32 s{sA}, s{sTB}, 16
    s_lshl_b32 s{sB}, s{sW}, 14
    s_add_u32 s{sA}, s{sA}, s{sB}
    s_lshr_b32 s{sB}, s{sG}, 2
    s_lshl_b32 s{sB}, s{sB}, 10
    s_add_u32 s{sA}, s{sA}, s{sB}
    s_and_b32 s{sB}, s{sG}, 3
    s_lshl_b32 s{sB}, s{sB}, 7
    s_add_u32 s{sA}, s{sA}, s{sB}
    v_lshrrev_b32 v5, 4, v0
    v_lshlrev_b32 v5, 11, v5
    v_bfe_u32 v6, v0, 3, 1
    v_lshl_add_u32 v5, v6, 9, v5
    v_lshl_add_u32 v5, v2, 4, v5
    v_add_u32 v5, s{sA}, v5
    v_add_u32 v6, 8192, v5                  ; task 1
    s_lshl_b32 s{sA}, s{sTB}, 5
    s_add_u32 s{sA}, s{sA}, {WS_FLG}
    s_lshr_b32 s{sB}, s2, 3
    s_and_b32 s{sB}, s{sB}, 7
    s_add_u32 s{sB}, s{sB}, 1
    s_lshl_b32 s51, s{sB}, 10
    s_lshr_b32 s{sB}, s{sW}, 1
    s_mul_i32 s50, s{sB}, s51
    s_add_u32 s{sA}, s{sA}, s50
    v_lshlrev_b32 v8, 2, v2
    v_add_u32 v8, s{sA}, v8
    v_lshlrev_b32 v9, 4, v0
    v_add_u32 v9, s51, v9
    v_add_u32 v9, {WS_FLG}, v9
    s_lshl_b32 s{sB}, s{sB}, 2
    s_add_u32 s{sB}, s{sB}, {GO}
    v_mov_b32 v11, s{sB}
    """)
    e.vq, e.lq = [], []
    e.vm(f"buffer_load_dwordx4 v[12:15], v4, s[{S_X}:{S_X + 3}], 0 offen", "x0")
    e.vm(f"buffer_load_dwordx4 v[16:19], v4, s[{S_X}:{S_X + 3}], 0 offen offset:128", "x1")
    spin = R["opt"].get("finspin", 200000)
    slp = R["opt"].get("finsleep", 1)
    e(f"""
    s_mov_b32 s{sB}, {spin}
    s_bitcmp1_b32 s{sW}, 0
    s_cbranch_scc1 L_fin_watch
    s_cmp_eq_u32 s{sW}, 0
    s_cbranch_scc1 L_fin_poll
    s_cmp_lt_u32 s2, 128
    s_cbranch_scc1 L_fin_pollall
    L_fin_poll:
    buffer_load_dword v20, v8, s[{S_WS}:{S_WS + 3}], 0 offen sc1
    s_waitcnt vmcnt(0)
    v_cmp_eq_u32 vcc, 1, v20
    s_sub_u32 s{sB}, s{sB}, 1
    s_cmp_eq_u32 s{sB}, 0
    s_cbranch_scc1 L_fin_set
    s_cmp_eq_u64 vcc, -1
    s_cbranch_scc1 L_fin_set
    s_sleep {slp}
    s_branch L_fin_poll
    """)
    if R["opt"].get("pipepoll"):
        e(f"""
    L_fin_pollall:
    buffer_load_dwordx4 v[128:131], v9, s[{S_WS}:{S_WS + 3}], 0 offen sc1
    s_sleep {R["opt"].get("pipesleep", 8)}
    buffer_load_dwordx4 v[132:135], v9, s[{S_WS}:{S_WS + 3}], 0 offen sc1
    L_fin_pollall_loop:
    s_waitcnt vmcnt(1)
    v_and_b32 v128, v128, v129
    v_and_b32 v130, v130, v131
    v_and_b32 v20, v128, v130
    v_cmp_eq_u32 vcc, 1, v20
    s_sub_u32 s{sB}, s{sB}, 1
    s_cmp_eq_u32 s{sB}, 0
    s_cbranch_scc1 L_fin_set2
    s_cmp_eq_u64 vcc, -1
    s_cbranch_scc1 L_fin_set2
    buffer_load_dwordx4 v[128:131], v9, s[{S_WS}:{S_WS + 3}], 0 offen sc1
    s_waitcnt vmcnt(1)
    v_and_b32 v132, v132, v133
    v_and_b32 v134, v134, v135
    v_and_b32 v20, v132, v134
    v_cmp_eq_u32 vcc, 1, v20
    s_sub_u32 s{sB}, s{sB}, 1
    s_cmp_eq_u32 s{sB}, 0
    s_cbranch_scc1 L_fin_set2
    s_cmp_eq_u64 vcc, -1
    s_cbranch_scc1 L_fin_set2
    buffer_load_dwordx4 v[132:135], v9, s[{S_WS}:{S_WS + 3}], 0 offen sc1
    s_branch L_fin_pollall_loop
    L_fin_set2:
    """)
    else:
        e(f"""
    L_fin_pollall:
    buffer_load_dwordx4 v[20:23], v9, s[{S_WS}:{S_WS + 3}], 0 offen sc1
    s_waitcnt vmcnt(0)
    v_and_b32 v20, v20, v21
    v_and_b32 v22, v22, v23
    v_and_b32 v20, v20, v22
    v_cmp_eq_u32 vcc, 1, v20
    s_sub_u32 s{sB}, s{sB}, 1
    s_cmp_eq_u32 s{sB}, 0
    s_cbranch_scc1 L_fin_set
    s_cmp_eq_u64 vcc, -1
    s_cbranch_scc1 L_fin_set
    s_sleep {slp}
    s_branch L_fin_pollall
    """)
    e(f"""
    L_fin_set:
    v_mov_b32 v20, 1
    ds_write_b32 v11, v20
    s_branch L_fin_go
    L_fin_watch:
    s_lshl_b32 s{sB}, s{sB}, 4
    L_fin_watch_loop:
    ds_read_b32 v20, v11
    s_waitcnt lgkmcnt(0)
    v_readfirstlane_b32 s{sA}, v20
    s_sub_u32 s{sB}, s{sB}, 1
    s_cmp_eq_u32 s{sB}, 0
    s_cbranch_scc1 L_fin_go
    s_cmp_eq_u32 s{sA}, 1
    s_cbranch_scc0 L_fin_watch_loop
    L_fin_go:
    """)
    R["stamp"]("polled")
    e.vq = []
    e.vm(f"buffer_load_dword v10, v7, s[{S_WS}:{S_WS + 3}], 0 offen sc1", "st")
    for i in range(2):
        for g in range(8):
            e.vm(f"buffer_load_dwordx4 {rng('v', 64 + 32 * i + 4 * g, 4)}, v{5 + i}, s[{S_WS}:{S_WS + 3}], s{52 + g} offen sc1",
                 ("p", i, g))
    e(f"""
    s_cmp_lt_u32 s{sW}, 2
    s_cbranch_scc1 L_fin_nosel1
    s_cmp_ge_u32 s2, 128
    s_cbranch_scc1 L_fin_nosel1
    s_lshr_b32 s50, s2, 4                   ; j
    s_and_b32 s51, s2, 15                   ; cp
    s_and_b32 s70, s{sW}, 1                 ; par
    v_readlane_b32 s46, v26, s50            ; token
    v_readlane_b32 s47, v28, s50            ; sigmoid(r)
    s_lshl_b32 s{sA}, s51, 9                ; w*2048 + u*512 = cp*512
    s_lshl_b32 s{sB}, s50, 6
    s_add_u32 s{sA}, s{sA}, s{sB}
    s_lshl_b32 s{sB}, s70, 3
    s_add_u32 s{sA}, s{sA}, s{sB}
    s_add_u32 s{sA}, s{sA}, {WS_YP}
    v_lshrrev_b32 v24, 2, v0
    v_lshlrev_b32 v24, 13, v24
    v_and_b32 v25, 3, v0                    ; q4
    v_lshl_add_u32 v24, v25, 4, v24
    v_add_u32 v24, s{sA}, v24
    s_lshr_b32 s{sA}, s46, 6
    s_lshl_b32 s{sA}, s{sA}, 16
    s_lshl_b32 s{sB}, s51, 12
    s_add_u32 s{sA}, s{sA}, s{sB}
    s_lshl_b32 s{sB}, s70, 11
    s_add_u32 s{sA}, s{sA}, s{sB}
    s_bfe_u32 s{sB}, s46, {5 | (1 << 16)}
    s_lshl_b32 s{sB}, s{sB}, 10
    s_add_u32 s{sA}, s{sA}, s{sB}
    s_and_b32 s{sB}, s46, 31
    s_lshl_b32 s{sB}, s{sB}, 4
    s_add_u32 s{sA}, s{sA}, s{sB}
    v_lshrrev_b32 v27, 1, v25
    v_lshlrev_b32 v27, 9, v27
    v_and_b32 v29, 1, v25
    v_lshl_add_u32 v27, v29, 3, v27
    v_add_u32 v27, s{sA}, v27
    s_lshl_b32 s{sA}, s46, 10
    s_lshl_b32 s{sB}, s51, 6
    s_add_u32 s{sA}, s{sA}, s{sB}
    s_lshl_b32 s{sB}, s70, 5
    s_add_u32 s{sA}, s{sA}, s{sB}
    v_lshlrev_b32 v29, 3, v25
    v_add_u32 v29, s{sA}, v29
    s_lshl_b32 s{sA}, s46, 2
    s_add_u32 s{sA}, s{sA}, {WS_STAT}
    v_mov_b32 v30, s{sA}
    s_mov_b32 s{sA}, 0
    """)
    for i in range(14):
        e(f"buffer_load_dwordx2 {rng('v', 180 + 2 * i, 2)}, v24, s[{S_WS}:{S_WS + 3}], s{sA} offen sc1")
        e(f"s_add_u32 s{sA}, s{sA}, {16 * 8192}")
    for g in range(8):
        e(f"buffer_load_dwordx2 {rng('v', 160 + 2 * g, 2)}, v27, s[{S_WS}:{S_WS + 3}], s{52 + g} offen sc1")
    e(f"""
    buffer_load_dwordx2 v[176:177], v29, s[{S_X}:{S_X + 3}], 0 offen
    buffer_load_dword v178, v30, s[{S_WS}:{S_WS + 3}], 0 offen sc1
    L_fin_nosel1:
    """)
    for j in range(8):
        e(f"v_cmp_ne_u32 s[{mk[j & 3]}:{mk[j & 3] + 1}], s{8 + j}, v3")
        if (j & 3) == 3:
            e("s_nop 0")
            e(f"s_and_b64 s[{mk[0]}:{mk[0] + 1}], s[{mk[0]}:{mk[0] + 1}], s[{mk[1]}:{mk[1] + 1}]")
            e(f"s_and_b64 s[{mk[2]}:{mk[2] + 1}], s[{mk[2]}:{mk[2] + 1}], s[{mk[3]}:{mk[3] + 1}]")
            if j == 3:
                e(f"s_and_b64 s[68:69], s[{mk[0]}:{mk[0] + 1}], s[{mk[2]}:{mk[2] + 1}]")
            else:
                e(f"s_and_b64 s[{mk[0]}:{mk[0] + 1}], s[{mk[0]}:{mk[0] + 1}], s[{mk[2]}:{mk[2] + 1}]")
                e(f"s_and_b64 s[68:69], s[68:69], s[{mk[0]}:{mk[0] + 1}]")
    P = lambda b: f"v[{b}:{b + 1}]"

    def regular(extra):
        e.vq = ["st"] + [("p", i, g) for i in range(2) for g in range(8)] + ["sel"] * extra
        e.need(vtags=["st"])
        e(f"""
        v_mov_b32 v31, 0x7ffffff0
        v_cndmask_b32 v32, v31, v4, s[68:69]
        v_and_b32 v34, s{sM}, v10               ; sd
        v_rcp_f32 v34, v34
        v_lshlrev_b32 v33, 16, v10              ; mean
        v_mul_f32 v30, v33, v34
        v_sub_f32 v36, 0, v30
        """)
        for i in range(2):
            acc = 40
            for g in sum_partials(e, 64 + 32 * i, acc, 8, 4, 16, 17):
                e.need(vtags=[("p", i, g)])
            xr = 12 + 4 * i
            for q in range(4):
                e(f"v_lshlrev_b32 v{48 + 2 * q}, 16, v{xr + q}")
                e(f"v_and_b32 v{49 + 2 * q}, s{sM}, v{xr + q}")
            for q in range(4):
                e(f"v_pk_fma_f32 {P(56 + 2 * q)}, {P(48 + 2 * q)}, v[34:35], v[36:37] op_sel_hi:[1,0,0]")
            T0 = 64 + 32 * i
            for q in range(4):
                e(f"v_pk_mul_f32 {P(T0 + 2 * q)}, {P(56 + 2 * q)}, s[18:19]")
            for q in range(8):
                e(f"v_exp_f32 v{T0 + q}, v{T0 + q}")
            for q in range(4):
                e(f"v_pk_add_f32 {P(T0 + 2 * q)}, {P(T0 + 2 * q)}, s[48:49]")
            for q in range(8):
                e(f"v_rcp_f32 v{T0 + q}, v{T0 + q}")
            for q in range(4):
                e(f"v_pk_mul_f32 {P(56 + 2 * q)}, {P(56 + 2 * q)}, {P(T0 + 2 * q)}")
            for q in range(4):
                e(f"v_pk_fma_f32 {P(48 + 2 * q)}, {P(acc + 2 * q)}, {P(56 + 2 * q)}, {P(48 + 2 * q)}")
            for q in range(4):
                e(f"v_cvt_pk_bf16_f32 v{T0 + 8 + q}, v{48 + 2 * q}, v{49 + 2 * q}")
            e.vm(f"buffer_store_dwordx4 {rng('v', T0 + 8, 4)}, v32, s[{S_OUT}:{S_OUT + 3}], 0 offen offset:{128 * i} " + R["opt"].get("outfl", ""), "o")
    e(f"""
    s_cmp_lt_u32 s{sW}, 2
    s_cbranch_scc1 L_fin_plain
    s_cmp_lt_u32 s2, 128
    s_cbranch_scc1 L_fin_withsel
    L_fin_plain:
    """)
    regular(0)
    e(f"s_branch {R['done']}")
    e("L_fin_withsel:")
    regular(24)
    e("s_waitcnt vmcnt(2)")
    P2 = lambda b: f"v[{b}:{b + 1}]"
    for _ in sum_partials(e, 180, 40, 14, 2, 16, 17):
        pass
    for _ in sum_partials(e, 160, 56, 8, 2, 16, 17):
        pass
    e(f"""
    v_and_b32 v10, s{sM}, v178
    v_rcp_f32 v10, v10
    v_lshlrev_b32 v9, 16, v178
    v_mov_b32 v48, s47
    v_mul_f32 v8, v9, v10
    v_sub_f32 v8, 0, v8
    """)
    for x in (4, 8):
        for q in range(4):
            e(f"v_add_f32_dpp v{40 + q}, v{40 + q}, v{40 + q} row_ror:{x} row_mask:0xf bank_mask:0xf")
        if x == 4:
            e(f"v_lshlrev_b32 v64, 16, v176")
            e(f"v_and_b32 v65, s{sM}, v176")
    e(f"v_lshlrev_b32 v66, 16, v177")
    e(f"v_and_b32 v67, s{sM}, v177")
    for sw in ("v_permlane16_swap_b32", "v_permlane32_swap_b32"):
        for q in range(4):
            e(f"v_mov_b32 v{44 + q}, v{40 + q}")
        e("s_nop 0")
        for q in range(4):
            e(f"{sw} v{40 + q}, v{44 + q}")
        for q in range(4):
            e(f"v_add_f32 v{40 + q}, v{40 + q}, v{44 + q}")
    for q in range(2):
        e(f"v_cvt_pk_bf16_f32 v{50 + q}, v{40 + 2 * q}, v{41 + 2 * q}")
    for q in range(2):
        e(f"v_lshlrev_b32 v{40 + 2 * q}, 16, v{50 + q}")
        e(f"v_and_b32 v{41 + 2 * q}, s{sM}, v{50 + q}")
    for q in range(2):
        e(f"v_pk_mul_f32 {P2(40 + 2 * q)}, {P2(40 + 2 * q)}, v[48:49] op_sel_hi:[1,0]")
    for q in range(2):
        e(f"v_pk_fma_f32 {P2(72 + 2 * q)}, {P2(64 + 2 * q)}, v[10:11], v[8:9] op_sel_hi:[1,0,0]")
    for q in range(2):
        e(f"v_cvt_pk_bf16_f32 v{50 + q}, v{40 + 2 * q}, v{41 + 2 * q}")
    for q in range(2):
        e(f"v_lshlrev_b32 v{40 + 2 * q}, 16, v{50 + q}")
        e(f"v_and_b32 v{41 + 2 * q}, s{sM}, v{50 + q}")
    for q in range(2):
        e(f"v_pk_add_f32 {P2(72 + 2 * q)}, {P2(72 + 2 * q)}, {P2(40 + 2 * q)}")
    for q in range(2):
        e(f"v_pk_mul_f32 {P2(80 + 2 * q)}, {P2(72 + 2 * q)}, s[18:19]")
    for q in range(4):
        e(f"v_exp_f32 v{80 + q}, v{80 + q}")
    for q in range(2):
        e(f"v_pk_add_f32 {P2(80 + 2 * q)}, {P2(80 + 2 * q)}, s[48:49]")
    for q in range(4):
        e(f"v_rcp_f32 v{80 + q}, v{80 + q}")
    e("s_nop 0")
    for q in range(2):
        e(f"v_pk_mul_f32 {P2(72 + 2 * q)}, {P2(72 + 2 * q)}, {P2(80 + 2 * q)}")
    for q in range(2):
        e(f"v_pk_fma_f32 {P2(64 + 2 * q)}, {P2(56 + 2 * q)}, {P2(72 + 2 * q)}, {P2(64 + 2 * q)}")
    for q in range(2):
        e(f"v_cvt_pk_bf16_f32 v{76 + q}, v{64 + 2 * q}, v{65 + 2 * q}")
    e(f"""
    v_mov_b32 v31, 0x7ffffff0
    v_cmp_gt_u32 vcc, 4, v0
    s_nop 1
    v_cndmask_b32 v29, v31, v29, vcc
    s_nop 0
    buffer_store_dwordx2 v[76:77], v29, s[{S_OUT}:{S_OUT + 3}], 0 offen
    s_branch {R['done']}
    """)


def sel_scalars(e, sM):
    e(f"""
    v_and_b32 v27, s{sM}, v23
    v_ashrrev_i32 v28, 31, v27
    v_not_b32 v28, v28
    v_or_b32 v28, 0x80000000, v28
    v_xor_b32 v27, v27, v28
    v_and_b32 v27, s{sM}, v27             ; r (f32 bits)
    v_mul_f32 v28, {hex(f2u(-LOG2E))}, v27
    v_exp_f32 v28, v28
    v_and_b32 v34, s{sM}, v32             ; sd
    v_add_f32 v28, 1.0, v28
    v_rcp_f32 v28, v28
    v_rcp_f32 v34, v34
    v_lshlrev_b32 v30, 16, v32            ; mean
    v_cvt_pk_bf16_f32 v28, v28, v28
    v_and_b32 v28, s{sM}, v28             ; bf16(sigmoid(r))
    v_sub_f32 v30, 0, v30
    """)


def ln_iter(e, sM, i):
    for j in range(2):
        r, t = 36 + i + j, 52 + 2 * j
        e(f"v_lshlrev_b32 v{t}, 16, v{r}")
        e(f"v_and_b32 v{t + 1}, s{sM}, v{r}")
    for j in range(2):
        t = 52 + 2 * j
        e(f"v_pk_add_f32 v[{t}:{t + 1}], v[{t}:{t + 1}], v[30:31] op_sel_hi:[1,0]")
    for j in range(2):
        r, t = 36 + i + j, 52 + 2 * j
        e(f"v_cvt_pk_bf16_f32 v{r}, v{t}, v{t + 1}")
    for j in range(2):
        r, t = 36 + i + j, 52 + 2 * j
        e(f"v_lshlrev_b32 v{t}, 16, v{r}")
        e(f"v_and_b32 v{t + 1}, s{sM}, v{r}")
    for j in range(2):
        t = 52 + 2 * j
        e(f"v_pk_mul_f32 v[{t}:{t + 1}], v[{t}:{t + 1}], v[34:35] op_sel_hi:[1,0]")
    for j in range(2):
        r, t = 36 + i + j, 52 + 2 * j
        e(f"v_cvt_pk_bf16_f32 v{r}, v{t}, v{t + 1}")


def fused_pre(e, sM):
    e.need(vtags=[("g", 4)])
    e("v_accvgpr_read_b32 v32, a224")
    e("v_accvgpr_read_b32 v23, a225")
    for i in range(16):
        e(f"v_accvgpr_read_b32 v{36 + i}, a{208 + i}")
    e(f"""
    v_and_b32 v26, 0x7ff, v23
    v_sub_u32 v26, 2047, v26
    s_load_dwordx2 s[20:21], s[0:1], {KA['out']}
    """)
    sel_scalars(e, sM)


def moe_tail(e, R):
    from k1 import RB, WSTR, SLOT
    T = R["T"]
    sW, sRING, sM = R["W"], R["RING"], R["M"]
    S_X, S_WS = R["X"], R["WS"]
    sRO, sSO = T[0], T[1]
    sA, sB, sC_, sD = T[2], T[3], T[4], T[5]
    mk = [T[6], T[8], T[10], T[12]]
    e(f"s_mov_b32 s{sRO}, {WS_R}")
    e(f"s_mov_b32 s{sSO}, {WS_STAT}")
    K = [8 + i for i in range(8)]
    st = R.get("stamp", lambda n: None)
    if R.get("fused"):
        e(f"""
        s_cmp_eq_u32 s{R['RDY']}, 0
        s_cbranch_scc1 L_moe_slow
        L_moe_lndone:
        s_cmp_ge_u32 s2, 224
        s_cbranch_scc1 L_fin_sync
        """)
    else:
        e(f"""
        s_cmp_eq_u32 s{R['RDY']}, 0
        s_cbranch_scc1 L_moe_slow
        """)
        e.need(vtags=[("g", 4)])
        for i in range(16):
            e(f"v_accvgpr_read_b32 v{36 + i}, a{208 + i}")
        e("v_accvgpr_read_b32 v32, a224")
        e("v_accvgpr_read_b32 v23, a225")
        e(f"""
        v_and_b32 v26, 0x7ff, v23
        v_sub_u32 v26, 2047, v26
        """)
        e("L_moe_gathered:")
        e.vq = []
        sel_scalars(e, sM)
        e(f"""
        v_lshlrev_b32 v29, 2, v0
        v_add_u32 v29, {WS_IDX}, v29
        v_mov_b32 v33, 0x7ffffff0
        s_or_b32 s{sA}, s{R['SL']}, s{sW}
        s_cmp_eq_u32 s{sA}, 0
        s_cselect_b64 s[{mk[0]}:{mk[0] + 1}], -1, 0
        v_cmp_gt_u32 vcc, 8, v0
        s_nop 1
        s_and_b64 vcc, vcc, s[{mk[0]}:{mk[0] + 1}]
        v_cndmask_b32 v29, v33, v29, vcc
        """)
        e.vm(f"buffer_store_dword v26, v29, s[{S_WS}:{S_WS + 3}], 0 offen", "pub")
        e.vm(f"buffer_store_dword v28, v29, s[{S_WS}:{S_WS + 3}], 0 offen offset:32", "pub")
        for i in range(0, 16, 2):
            ln_iter(e, sM, i)
    e.vq = []
    st("ln")
    e("s_nop 0")
    for i in range(4):
        c = "0" if i == 0 else "v[56:59]"
        e(f"v_mfma_f32_16x16x32_bf16 v[56:59], {rng('a', 96 + 4 * i, 4)}, {rng('v', 36 + 4 * i, 4)}, {c}")
    e("v_accvgpr_write_b32 a128, 0")
    e("v_accvgpr_write_b32 a129, 0")
    e(f"""
    v_lshlrev_b32 v60, 4, v0
    v_add_u32 v61, s{sRING}, v60
    v_add_u32 v60, {RB + 2048}, v60
    v_add_u32 v62, {2 * WSTR}, v60
    v_add_u32 v63, {3 * WSTR}, v60
    v_mov_b32 v82, 0
    v_mov_b32 v83, 0
    """)
    if R.get("fused"):
        flag_prepare(e, R, sA, sB, 24, 0, 1)
        e("s_waitcnt vmcnt(8)")
    else:
        e.nop(4)
    e(f"""
    ds_write_b128 v61, v[56:59] offset:2048
    v_add_u32 v61, {WSTR}, v60
    s_waitcnt lgkmcnt(0)
    s_barrier
    ds_read_b128 v[64:67], v60
    ds_read_b128 v[68:71], v61
    ds_read_b128 v[72:75], v62
    ds_read_b128 v[76:79], v63
    """)
    if R.get("fused"):
        e(f"buffer_store_dword v25, v24, s[{S_WS}:{S_WS + 3}], 0 offen sc1")
    e(f"""
    v_cmp_gt_u32 vcc, 32, v0
    s_waitcnt lgkmcnt(0)
    """)
    e.lq = []
    for i in range(4):
        e(f"v_add_f32 v{64 + i}, v{64 + i}, v{68 + i}")
    for i in range(4):
        e(f"v_add_f32 v{72 + i}, v{72 + i}, v{76 + i}")
    for i in range(4):
        e(f"v_add_f32 v{64 + i}, v{64 + i}, v{72 + i}")
    e("v_cvt_pk_bf16_f32 v72, v64, v65")
    e("v_cvt_pk_bf16_f32 v73, v66, v67")
    e("v_mov_b32 v74, v72")
    e("v_mov_b32 v75, v73")
    e("s_nop 0")
    e("v_permlane32_swap_b32 v72, v74")
    e("v_permlane32_swap_b32 v73, v75")
    for i in range(2):
        e(f"v_lshlrev_b32 v{64 + 2 * i}, 16, v{72 + i}")
        e(f"v_and_b32 v{65 + 2 * i}, s{sM}, v{72 + i}")
        e(f"v_lshlrev_b32 v{68 + 2 * i}, 16, v{74 + i}")
        e(f"v_and_b32 v{69 + 2 * i}, s{sM}, v{74 + i}")
    for i in range(4):
        e(f"v_mul_f32 v{76 + i}, {hex(f2u(-LOG2E))}, v{64 + i}")
    for i in range(4):
        e(f"v_exp_f32 v{76 + i}, v{76 + i}")
    for i in range(4):
        e(f"v_add_f32 v{76 + i}, 1.0, v{76 + i}")
    for i in range(4):
        e(f"v_rcp_f32 v{76 + i}, v{76 + i}")
    for i in range(4):
        e(f"v_mul_f32 v{76 + i}, v{64 + i}, v{76 + i}")
    e("v_cvt_pk_bf16_f32 v72, v76, v77")
    e("v_cvt_pk_bf16_f32 v73, v78, v79")
    for i in range(2):
        e(f"v_lshlrev_b32 v{76 + 2 * i}, 16, v{72 + i}")
        e(f"v_and_b32 v{77 + 2 * i}, s{sM}, v{72 + i}")
    for i in range(4):
        e(f"v_mul_f32 v{76 + i}, v{76 + i}, v{68 + i}")
    e(f"""
    v_cvt_pk_bf16_f32 v80, v76, v77
    v_cvt_pk_bf16_f32 v81, v78, v79
    s_nop 0
    v_cndmask_b32 v80, 0, v80, vcc
    v_cndmask_b32 v81, 0, v81, vcc
    s_nop 1
    """)
    for t in range(8):
        e(f"v_mfma_f32_16x16x32_bf16 {rng('v', 120 + 4 * t, 4)}, {rng('a', 112 + 2 * t, 4)}, v[80:83], 0")
    if R.get("fused"):
        fused_finish(e, R, sA, sB, mk)
    else:
        e(f"""
        s_lshl_b32 s{sA}, s{R['SL']}, 14
        s_lshl_b32 s{sB}, s{sW}, 9            ; 8w*16*4 bytes
        s_add_u32 s{sA}, s{sA}, s{sB}
        s_add_u32 s{sA}, s{sA}, {WS_YP}
        v_and_b32 v60, 15, v0
        v_lshlrev_b32 v61, 11, v60
        v_lshrrev_b32 v62, 4, v0
        v_lshl_add_u32 v61, v62, 4, v61
        v_add_u32 v61, s{sA}, v61
        v_mov_b32 v63, 0x1ffffff0
        v_cmp_gt_u32 vcc, 8, v60
        s_nop 1
        v_cndmask_b32 v61, v63, v61, vcc
        s_nop 1
        """)
        for t in range(8):
            e(f"buffer_store_dwordx4 {rng('v', 120 + 4 * t, 4)}, v61, s[{S_WS}:{S_WS + 3}], 0 offen offset:{t * 64}")
        e(f"s_branch {R['done']}")

    e("L_moe_slow:")
    dbg = R["DBG"]
    e(f"""
    s_barrier
    s_mov_b32 s{sB}, {R.get('spin', 4000)}
    v_mov_b32 v21, 0
    L_moe_spin:
    global_load_dword v22, v21, s[{dbg}:{dbg + 1}] sc1
    s_waitcnt vmcnt(0)
    v_readfirstlane_b32 s{sA}, v22
    s_nop 0
    s_cmp_ge_u32 s{sA}, {R['NCNT']}
    s_cbranch_scc1 L_moe_spin_ok
    s_sleep 8
    s_sub_u32 s{sB}, s{sB}, 1
    s_cmp_lg_u32 s{sB}, 0
    s_cbranch_scc1 L_moe_spin
    L_moe_spin_ok:
    s_cmp_ge_u32 s{sA}, {R['NCNT']}
    s_cselect_b32 s{sA}, 1, 0
    v_mov_b32 v22, s{sA}
    v_mov_b32 v23, s{sRING}
    ds_write_b32 v23, v22 offset:128
    s_waitcnt lgkmcnt(0)
    s_barrier
    v_mov_b32 v23, {RB}
    ds_read_b32 v32, v23 offset:128
    ds_read_b32 v33, v23 offset:{WSTR + 128}
    ds_read_b32 v34, v23 offset:{2 * WSTR + 128}
    v_add_u32 v23, {3 * WSTR}, v23
    ds_read_b32 v35, v23 offset:128
    s_waitcnt lgkmcnt(0)
    v_and_b32 v32, v32, v33
    v_and_b32 v34, v34, v35
    v_and_b32 v32, v32, v34
    s_nop 0
    v_readfirstlane_b32 s{sA}, v32
    s_nop 0
    s_cmp_eq_u32 s{sA}, 1
    s_cbranch_scc1 L_moe_reload
    """)
    e(f"""
    s_lshl_b32 s{sRO}, s{R['SL']}, 14
    s_add_u32 s{sRO}, s{sRO}, {WS_FB}
    s_add_u32 s{sSO}, s{sRO}, 8192
    v_lshlrev_b32 v21, 4, v0
    buffer_load_dwordx4 v[40:43], v21, s[{R['WR']}:{R['WR'] + 3}], 0 offen
    s_lshl_b32 s{sB}, s{sW}, 9
    s_add_u32 s{sC_}, s{sB}, 512
    s_waitcnt vmcnt(0)
    """)
    for i in range(4):
        e(f"v_lshlrev_b32 v{44 + 2 * i}, 16, v{40 + i}")
        e(f"v_and_b32 v{45 + 2 * i}, s{sM}, v{40 + i}")
    e(f"""
    L_moe_fb:
    s_lshl_b32 s{sA}, s{sB}, 10
    buffer_load_dwordx4 v[40:43], v21, s[{S_X}:{S_X + 3}], s{sA} offen
    s_waitcnt vmcnt(0)
    """)
    for i in range(4):
        e(f"v_lshlrev_b32 v{56 + 2 * i}, 16, v{40 + i}")
        e(f"v_and_b32 v{57 + 2 * i}, s{sM}, v{40 + i}")

    def wave_sum(v, t):
        for x in (1, 2, 4, 8):
            e(f"s_nop 1")
            e(f"v_add_f32_dpp v{v}, v{v}, v{v} row_ror:{x} row_mask:0xf bank_mask:0xf")
        e(f"v_mov_b32 v{t}, v{v}")
        e("s_nop 1")
        e(f"v_permlane16_swap_b32 v{v}, v{t}")
        e("s_nop 0")
        e(f"v_add_f32 v{v}, v{v}, v{t}")
        e(f"v_mov_b32 v{t}, v{v}")
        e("s_nop 1")
        e(f"v_permlane32_swap_b32 v{v}, v{t}")
        e("s_nop 0")
        e(f"v_add_f32 v{v}, v{v}, v{t}")
    e("v_add_f32 v64, v56, v57")
    for i in range(2, 8):
        e(f"v_add_f32 v64, v64, v{56 + i}")
    wave_sum(64, 65)
    e(f"v_mul_f32 v64, {hex(f2u(1.0 / 512))}, v64        ; mean")
    e("v_sub_f32 v66, v56, v64")
    e("v_mul_f32 v67, v66, v66")
    for i in range(1, 8):
        e(f"v_sub_f32 v66, v{56 + i}, v64")
        e(f"v_fmac_f32 v67, v66, v66")
    wave_sum(67, 65)
    e(f"""
    v_mul_f32 v67, {hex(f2u(1.0 / 512))}, v67
    v_cvt_pk_bf16_f32 v68, v64, v67
    v_and_b32 v69, s{sM}, v68
    v_add_f32 v69, {hex(f2u(1e-5))}, v69
    v_cvt_pk_bf16_f32 v69, v69, v69
    v_and_b32 v69, s{sM}, v69
    v_sqrt_f32 v69, v69
    v_lshlrev_b32 v64, 16, v68
    v_cvt_pk_bf16_f32 v69, v69, v69
    v_and_b32 v69, s{sM}, v69             ; sd
    v_rcp_f32 v70, v69
    v_and_b32 v68, 0xffff, v68
    v_or_b32 v68, v68, v69
    v_mov_b32 v71, 0
    """)
    for i in range(8):
        e(f"""
        v_sub_f32 v66, v{56 + i}, v64
        v_mul_f32 v66, v66, v70
        v_cvt_pk_bf16_f32 v66, v66, v66
        v_and_b32 v66, s{sM}, v66
        v_fmac_f32 v71, v66, v{44 + i}
        """)
    wave_sum(71, 65)
    e(f"""
    v_cvt_pk_bf16_f32 v71, v71, v71
    v_and_b32 v71, s{sM}, v71
    v_ashrrev_i32 v72, 31, v71
    v_or_b32 v72, 0x80000000, v72
    v_xor_b32 v71, v71, v72
    s_sub_u32 s{sA}, 2047, s{sB}
    v_mov_b32 v72, s{sA}
    v_and_or_b32 v71, v71, s{sM}, v72
    s_lshl_b32 s{sA}, s{sB}, 2
    v_mov_b32 v72, s{sA}
    v_add_u32 v73, s{sRO}, v72
    v_add_u32 v74, s{sSO}, v72
    v_cmp_eq_u32 vcc, 0, v0
    s_nop 1
    s_and_saveexec_b64 s[{mk[0]}:{mk[0] + 1}], vcc
    buffer_store_dword v71, v73, s[{S_WS}:{S_WS + 3}], 0 offen sc1
    buffer_store_dword v68, v74, s[{S_WS}:{S_WS + 3}], 0 offen sc1
    s_mov_b64 exec, s[{mk[0]}:{mk[0] + 1}]
    s_add_u32 s{sB}, s{sB}, 1
    s_cmp_lt_u32 s{sB}, s{sC_}
    s_cbranch_scc1 L_moe_fb
    s_waitcnt vmcnt(0)
    s_barrier
    L_moe_reload:
    s_lshl_b32 s{sA}, s{sW}, 11
    v_lshlrev_b32 v21, 5, v0
    v_add_u32 v21, s{sA}, v21
    v_add_u32 v21, s{sRO}, v21
    buffer_load_dwordx4 v[8:11], v21, s[{S_WS}:{S_WS + 3}], 0 offen sc1
    buffer_load_dwordx4 v[12:15], v21, s[{S_WS}:{S_WS + 3}], 0 offen offset:16 sc1
    s_mov_b32 s{R['RDY']}, 1
    s_waitcnt vmcnt(0)
    s_barrier
    """)
    e("L_moe_keys:")
    wave_top8(e, K, 16, 20, 17, sA, mk[0])
    st("top8")
    e(f"""
    v_mov_b32 v21, s{R['RDY']}
    v_cmp_eq_u32 vcc, 8, v0
    v_lshlrev_b32 v22, 2, v0
    v_add_u32 v22, s{sRING}, v22
    v_cndmask_b32 v20, v20, v21, vcc
    v_cmp_gt_u32 vcc, 9, v0
    s_nop 1
    s_and_saveexec_b64 s[{mk[0]}:{mk[0] + 1}], vcc
    ds_write_b32 v22, v20
    s_mov_b64 exec, s[{mk[0]}:{mk[0] + 1}]
    s_waitcnt lgkmcnt(0)
    s_barrier
    """)
    e(f"""
    v_lshrrev_b32 v21, 3, v0
    v_and_b32 v21, 3, v21
    v_mul_u32_u24 v21, {WSTR}, v21
    v_and_b32 v22, 7, v0
    v_lshl_add_u32 v21, v22, 2, v21
    v_mov_b32 v23, {RB}
    v_add_u32 v21, v23, v21
    ds_read_b32 v24, v21
    """)
    for w_ in range(4):
        e(f"v_add_u32 v{100 + w_}, {w_ * WSTR}, v23")
    for w_ in range(4):
        e(f"ds_read_b128 v[{32 + 8 * w_}:{35 + 8 * w_}], v{100 + w_}")
        e(f"ds_read_b128 v[{36 + 8 * w_}:{39 + 8 * w_}], v{100 + w_} offset:16")
        e(f"ds_read_b32 v{104 + w_}, v{100 + w_} offset:32")
    e(f"""
    s_waitcnt lgkmcnt(0)
    v_and_b32 v104, v104, v105
    v_and_b32 v106, v106, v107
    v_and_b32 v104, v104, v106
    v_mov_b32 v25, 0
    v_readfirstlane_b32 s{sA}, v104
    s_nop 0
    s_cmp_eq_u32 s{sA}, 0
    s_cbranch_scc1 L_moe_slow
    """)
    for j0 in range(0, 32, 4):
        for q in range(4):
            e(f"v_cmp_gt_u32 s[{mk[q]}:{mk[q] + 1}], v{32 + j0 + q}, v24")
        for q in range(4):
            e(f"v_addc_co_u32 v25, vcc, 0, v25, s[{mk[q]}:{mk[q] + 1}]")
    e(f"""
    v_cmp_gt_u32 s[{mk[0]}:{mk[0] + 1}], 8, v25
    v_cmp_gt_u32 vcc, 32, v0
    v_lshlrev_b32 v26, 2, v25
    v_add_u32 v26, s{sRING}, v26
    s_and_b64 vcc, vcc, s[{mk[0]}:{mk[0] + 1}]
    s_and_saveexec_b64 s[{mk[1]}:{mk[1] + 1}], vcc
    ds_write_b32 v26, v24 offset:64
    s_mov_b64 exec, s[{mk[1]}:{mk[1] + 1}]
    v_and_b32 v22, 7, v0
    v_lshlrev_b32 v22, 2, v22
    v_add_u32 v22, s{sRING}, v22
    ds_read_b32 v23, v22 offset:64
    s_waitcnt lgkmcnt(0)
    v_and_b32 v26, 0x7ff, v23
    v_sub_u32 v26, 2047, v26
    """)
    st("merge")
    e(f"""
    v_lshrrev_b32 v30, 4, v0
    v_lshlrev_b32 v30, 4, v30             ; q4*16
    v_lshl_add_u32 v30, v26, 10, v30
    s_lshl_b32 s{sA}, s{sW}, 8            ; 4w*64 bytes
    v_lshlrev_b32 v31, 2, v26
    v_add_u32 v31, s{sSO}, v31
    """)
    e.vq, e.lq = ["old"], []
    e.vm(f"buffer_load_dword v32, v31, s[{S_WS}:{S_WS + 3}], 0 offen sc1", "st")
    for i in range(4):
        e.vm(f"buffer_load_dwordx4 {rng('v', 36 + 4 * i, 4)}, v30, s[{S_X}:{S_X + 3}], s{sA} offen offset:{64 * i}",
             ("xg", i))
    e("s_waitcnt vmcnt(0)")
    if R.get("fused"):
        sel_scalars(e, sM)
        for i in range(0, 16, 2):
            ln_iter(e, sM, i)
        e("s_branch L_moe_lndone")
    else:
        e("s_branch L_moe_gathered")


WS_FB = 24 << 20
```
